```python
import torch

def _softmax(x, axis=-1):
    return torch.softmax(x, dim=axis)
def _gelu(x):
    return torch.nn.functional.gelu(x, approximate="tanh")
def _silu(x):
    return torch.nn.functional.silu(x)
def _sigmoid(x):
    return torch.sigmoid(x)
def _layernorm(x, axis=-1, eps=1e-5):
    m = x.mean(dim=axis, keepdim=True)
    v = x.var(dim=axis, keepdim=True, unbiased=False)
    return (x - m) / torch.sqrt(v + eps)
def _scatter_add(tgt, idx, src, axis=0):
    return tgt.clone().index_add_(axis, idx, src)
def _segment_sum(src, seg, n):
    out = torch.zeros((n,) + src.shape[1:], dtype=src.dtype)
    return out.index_add_(0, seg, src)
def _pad(x, pw):
    flat = tuple(v for pair in reversed(pw) for v in pair)
    return torch.nn.functional.pad(x, flat)

kernel_name = 'standalone__deep_cross_xdeepfm__recsys'

def setup_inputs():

    _w = (lambda a: (lambda t: t.to(torch.bfloat16) if t.is_floating_point() else t)(torch.as_tensor(a)))
    B, F, D, L = 4096, 26, 64, 3
    V = min(1000000, 100000)
    Din = F * D
    return {
        "idx": _w((lambda lo, hi, *s: torch.randint(lo, hi, s))(0, V, B, F).to(torch.int64)),
        "table": _w((lambda *s: torch.randn(*s, dtype=torch.bfloat16) * 0.8)(V, D)),
        "ws_cin": _w((lambda *s: torch.randn(*s, dtype=torch.bfloat16) * 0.2)(L, F, F, F) * (1.0 / F)),
        "w_cin_out": _w((lambda *s: torch.randn(*s, dtype=torch.bfloat16) * 0.2)(L * F) * ((L * F) ** -0.5)),
        "w_dnn1": _w((lambda *s: torch.randn(*s, dtype=torch.bfloat16) * 0.8)(Din, Din) * (Din ** -0.5)),
        "b_dnn1": _w((lambda *s: torch.randn(*s, dtype=torch.bfloat16) * 1.6)(Din) * 0.1),
        "w_dnn2": _w((lambda *s: torch.randn(*s, dtype=torch.bfloat16) * 0.2)(Din) * (Din ** -0.5)),
        "b_out": _w((lambda *s: torch.randn(*s, dtype=torch.bfloat16) * 0.2)(1)),
    }

def reference(idx, table, ws_cin, w_cin_out, w_dnn1, b_dnn1, w_dnn2, b_out):
    x0 = table[idx]
    B = x0.shape[0]
    L = ws_cin.shape[0]
    xk = x0
    pooled = []
    for l in range(L):
        xk = torch.einsum('bid,bjd,hij->bhd', xk, x0, ws_cin[l])
        pooled.append(xk.sum(axis=-1))
    p_plus = torch.stack(pooled, axis=1).reshape(B, -1)
    logit_cin = p_plus @ w_cin_out
    h = x0.reshape(B, -1)
    h = _gelu(h @ w_dnn1 + b_dnn1)
    logit_dnn = h @ w_dnn2
    return logit_cin + logit_dnn + b_out
```

```python
import re

_REG = re.compile(r'^(-?)(abs\()?([vsa])(\d+)\)?$')
_RNG = re.compile(r'^([vsa])\[(\d+):(\d+)\]$')


def regs_of(tok):
    tok = tok.strip()
    m = _REG.match(tok)
    if m:
        return [(m.group(3), int(m.group(4)))]
    m = _RNG.match(tok)
    if m:
        return [(m.group(1), i) for i in range(int(m.group(2)), int(m.group(3)) + 1)]
    if tok in ('vcc', 'exec', 'm0', 'scc', 'exec_hi', 'exec_lo', 'vcc_lo', 'vcc_hi'):
        base = tok.split('_')[0]
        return [(base, 0)]
    return []


TRANS = ('v_exp_f32', 'v_log_f32', 'v_rcp_f32', 'v_rsq_f32', 'v_sqrt_f32', 'v_sin_f32', 'v_cos_f32')


class I:
    __slots__ = ('text', 'mn', 'kind', 'rd', 'wr', 'nops', 'w_vm', 'w_lgkm', 'tag', 'need', 'passes',
                 'srcc', 'srcab', 'comment', 'isdpp', 'lds_dma', 'store_data')

    def __init__(self, text, tag=None):
        self.text = text
        self.nops = 0
        self.w_vm = None
        self.w_lgkm = None
        self.tag = tag
        self.need = None
        self.passes = 0
        self.srcc = []
        self.srcab = []
        self.lds_dma = False
        self.store_data = []
        t = text.split(';')[0].strip()
        if (t.endswith(':') and ' ' not in t) or t.startswith('.') or not t:
            self.mn = 'label'
            self.kind = 'label'
            self.rd = []
            self.wr = []
            self.isdpp = False
            return
        parts = t.split(None, 1)
        mn = parts[0]
        self.mn = mn
        rest = parts[1] if len(parts) > 1 else ''
        ops = [o.strip() for o in rest.split(',')] if rest else []
        mods = ''
        if ops:
            last = ops[-1].split(None, 1)
        rest2 = re.sub(r'\b(op_sel|op_sel_hi|neg_lo|neg_hi|quad_perm):\[[^\]]*\]', '', rest)
        ops = [o.strip() for o in rest2.split(',')] if rest2.strip() else []
        if ops:
            last = ops[-1].split(None, 1)
            ops[-1] = last[0]
            mods = last[1] if len(last) > 1 else ''
        self.isdpp = ('row_' in rest) or ('quad_perm' in rest) or ('wave_' in rest)
        rd, wr = [], []
        R = regs_of
        if mn.startswith('v_mfma'):
            self.kind = 'mfma'
            wr = R(ops[0])
            self.srcab = R(ops[1]) + R(ops[2])
            self.srcc = R(ops[3])
            rd = self.srcab + self.srcc
            self.passes = 8 if '32x32x16' in mn else 4
        elif mn.startswith('v_cmp'):
            self.kind = 'valu'
            wr = R(ops[0])
            for o in ops[1:]:
                rd += R(o)
        elif mn.startswith('v_readfirstlane') or mn.startswith('v_readlane'):
            self.kind = 'valu'
            wr = R(ops[0])
            for o in ops[1:]:
                rd += R(o)
        elif mn.startswith('v_permlane'):
            self.kind = 'valu'
            wr = R(ops[0]) + R(ops[1])
            rd = list(wr)
        elif mn.startswith('v_'):
            self.kind = 'valu'
            wr = R(ops[0])
            k = 1
            if mn.startswith(('v_add_co', 'v_sub_co', 'v_addc_co', 'v_subb_co')):
                wr += R(ops[1])
                k = 2
            for o in ops[k:]:
                rd += R(o)
            if mn.startswith(('v_fmac', 'v_mac', 'v_writelane', 'v_dot2c')) or self.isdpp or 'UNUSED_PRESERVE' in rest:
                rd += R(ops[0])
            if mn.startswith('v_cndmask') and len(ops) == 3:
                rd += [('vcc', 0)]
        elif mn.startswith('ds_'):
            self.kind = 'ds'
            if mn.startswith(('ds_read', 'ds_bpermute', 'ds_permute', 'ds_swizzle')):
                wr = R(ops[0])
                for o in ops[1:]:
                    rd += R(o)
                if 'd16' in mn:
                    rd += R(ops[0])
            else:
                for o in ops:
                    rd += R(o)
        elif mn.startswith(('buffer_', 'global_')):
            self.kind = 'vmem'
            if ' lds' in (' ' + mods + ' ') or mods.endswith('lds'):
                self.lds_dma = True
                for o in ops:
                    rd += R(o)
                rd += [('m0', 0)]
            elif '_load' in mn:
                wr = R(ops[0])
                for o in ops[1:]:
                    rd += R(o)
                if 'd16' in mn:
                    rd += R(ops[0])
            elif '_atomic' in mn:
                for o in ops:
                    rd += R(o)
                if 'sc0' in mods:
                    wr = R(ops[0])
            elif mn.startswith('buffer_store'):
                for o in ops:
                    rd += R(o)
                if 'x3' in mn or 'x4' in mn:
                    self.store_data = R(ops[0])
            elif mn.startswith('global_store'):
                for o in ops:
                    rd += R(o)
                if 'x3' in mn or 'x4' in mn:
                    self.store_data = R(ops[1])
            else:
                for o in ops:
                    rd += R(o)
        elif mn.startswith('s_load') or mn.startswith('s_memtime') or mn.startswith('s_memrealtime'):
            self.kind = 'smem'
            wr = R(ops[0])
            for o in ops[1:]:
                rd += R(o)
        elif mn in ('s_waitcnt',):
            self.kind = 'wait'
        elif mn in ('s_barrier',):
            self.kind = 'barrier'
        elif mn == 's_nop':
            self.kind = 'nop'
        elif mn.startswith(('s_cbranch', 's_branch', 's_endpgm', 's_setprio', 's_sleep', 's_set_gpr_idx')):
            self.kind = 'sctl'
        elif mn.startswith('s_cmp') or mn.startswith('s_bitcmp'):
            self.kind = 'salu'
            for o in ops:
                rd += R(o)
            wr = [('scc', 0)]
        elif mn.startswith('s_'):
            self.kind = 'salu'
            wr = R(ops[0])
            for o in ops[1:]:
                rd += R(o)
            if 'saveexec' in mn:
                wr += [('exec', 0)]
        else:
            raise ValueError('unknown instr ' + text)
        self.rd = rd
        self.wr = wr

    def slots(self):
        if self.kind == 'label':
            return 0
        if self.kind == 'nop':
            return int(self.text.split()[1]) + 1
        return 1


class WaitTag(I):
    def __init__(self, vm_tags=(), lgkm0=False, vm0=False, allbut=None):
        I.__init__(self, 's_waitcnt')
        self.need = (set(vm_tags), lgkm0, vm0, allbut)
        self.kind = 'waittag'


class Prog:
    def __init__(self):
        self.static = []

    def add(self, ins):
        if isinstance(ins, str):
            ins = I(ins)
        self.static.append(ins)
        return ins

    def emit(self):
        out = []
        for i in self.static:
            if i.kind == 'label':
                out.append(i.text)
                continue
            w = []
            if i.w_vm is not None:
                w.append(f'vmcnt({i.w_vm})')
            if i.w_lgkm is not None:
                w.append(f'lgkmcnt({i.w_lgkm})')
            n = i.nops
            if w:
                out.append('  s_waitcnt ' + ' '.join(w))
                n = max(0, n - 1) if i.kind != 'waittag' else n
            while n > 0:
                k = min(n, 16)
                out.append(f'  s_nop {k - 1}')
                n -= k
            if i.kind == 'waittag':
                continue
            out.append('  ' + i.text)
        return '\n'.join(out) + '\n'


def _minset(cur, v):
    return v if cur is None else min(cur, v)


def resolve_waits(trace):
    vm = []
    lg = []
    for ins in trace:
        if ins.kind == 'label':
            continue
        if ins.kind == 'wait':
            m = re.search(r'vmcnt\((\d+)\)', ins.text)
            if m:
                n = int(m.group(1))
                vm = vm[len(vm) - n:] if n < len(vm) else vm
                if n == 0:
                    vm = []
            m = re.search(r'lgkmcnt\((\d+)\)', ins.text)
            if m:
                n = int(m.group(1))
                lg = lg[len(lg) - n:] if n < len(lg) else lg
                if n == 0:
                    lg = []
            continue
        if ins.kind == 'waittag':
            tags, lgkm0, vm0, allbut = ins.need
            if vm0:
                ins.w_vm = 0
                vm = []
            else:
                last = -1
                for k, (r, t) in enumerate(vm):
                    if t in tags:
                        last = k
                if allbut is not None:
                    pos = [k for k, (r, t) in enumerate(vm) if t == allbut[0]]
                    if len(pos) > allbut[1]:
                        last = max(last, pos[len(pos) - allbut[1] - 1])
                if last >= 0:
                    n = min(len(vm) - 1 - last, 62)
                    ins.w_vm = _minset(ins.w_vm, n)
                    vm = vm[len(vm) - n:] if n else []
            if lgkm0:
                ins.w_lgkm = 0
                lg = []
            continue
        touched = set(ins.rd) | set(ins.wr)
        if ins.kind == 'ds' and 'v[248:' in ins.text.split(',')[0] and 'offset' in ins.text and getattr(resolve_waits, 'dbg', False):
            touched = set(ins.rd)
        for q, name, cap in ((vm, 'vm', 62), (lg, 'lg', 14)):
            last = -1
            for k, (r, t) in enumerate(q):
                if r & touched:
                    last = k
            if last >= 0:
                if name == 'lg' and any(t == '__smem' for (_, t) in q):
                    n = 0
                else:
                    n = min(len(q) - 1 - last, cap)
                if name == 'vm':
                    ins.w_vm = _minset(ins.w_vm, n)
                    vm = vm[len(vm) - n:] if n else []
                else:
                    ins.w_lgkm = _minset(ins.w_lgkm, n)
                    lg = lg[len(lg) - n:] if n else []
        if ins.kind == 'vmem':
            if '_store' in ins.mn or '_atomic' in ins.mn:
                assert not ins.wr or True
                continue
            vm.append((set(ins.wr), ins.tag))
        elif ins.kind == 'ds':
            lg.append((set(ins.wr), ins.tag))
        elif ins.kind == 'smem':
            lg.append((set(ins.wr), '__smem'))


def resolve_hazards(trace):
    hist = []
    pos = 0
    WINDOW = 24
    for ins in trace:
        if ins.kind == 'label':
            continue
        if ins.kind == 'waittag':
            if ins.w_vm is not None or ins.w_lgkm is not None:
                pos += 1
            continue
        need = 0
        rd = set(ins.rd)
        wr = set(ins.wr)
        isv = ins.kind == 'valu'
        for (p, ppos) in reversed(hist):
            dist = pos - ppos
            if dist > WINDOW:
                break
            req = 0
            pw = set(p.wr)
            if p.kind == 'valu':
                pv = {r for r in pw if r[0] == 'v'}
                ps = {r for r in pw if r[0] in ('s', 'vcc')}
                pe = ('exec', 0) in pw
                if ins.kind == 'mfma' and (pv & rd):
                    req = max(req, 2)
                if isv and ins.isdpp and (pv & rd):
                    req = max(req, 2)
                if isv and ins.mn.startswith('v_permlane') and (pv & rd):
                    req = max(req, 2)
                if isv and ins.mn.startswith(('v_readfirstlane', 'v_readlane')) and (pv & rd):
                    req = max(req, 1)
                if isv and (ps & rd):
                    req = max(req, 2)
                    if ins.mn.startswith(('v_readlane', 'v_writelane')):
                        req = max(req, 4)
                if ins.kind == 'vmem' and (ps & rd):
                    req = max(req, 5)
                if ins.kind in ('salu', 'sctl', 'smem') and (ps & rd):
                    req = max(req, 1)
                if p.mn in TRANS and isv and (pv & rd):
                    req = max(req, 1)
                if ('sdwa' in p.mn or 'op_sel' in p.text) and isv and (pv & (rd | wr)):
                    req = max(req, 1)
                if pe and (ins.kind == 'mfma' or ins.isdpp):
                    req = max(req, 5)
            elif p.kind == 'mfma':
                d = pw
                big = {4: 8, 8: 12}[p.passes]
                if ins.kind == 'mfma':
                    if d & set(ins.srcab):
                        req = max(req, big)
                    c = set(ins.srcc)
                    if c & d:
                        if c == d and ins.passes == p.passes:
                            pass
                        else:
                            req = max(req, {4: 6, 8: 10}[p.passes])
                    elif d & wr:
                        req = max(req, {4: 6, 8: 10}[p.passes])
                elif ins.kind in ('valu', 'vmem', 'ds'):
                    if d & (rd | wr):
                        req = max(req, big)
                    if ins.kind == 'valu' and (set(p.srcc) & wr):
                        req = max(req, {4: 3, 8: 7}[p.passes])
            elif p.kind == 'salu':
                if ('m0', 0) in pw and ins.kind == 'vmem' and ins.lds_dma:
                    req = max(req, 1)
            elif p.kind == 'vmem':
                if p.store_data and (set(p.store_data) & wr):
                    req = max(req, 2)
            if req > dist:
                need = max(need, req - dist)
        if need > ins.nops:
            ins.nops = need
        pos += max(ins.nops, 1 if (ins.w_vm is not None or ins.w_lgkm is not None) else 0)
        pos += ins.slots()
        hist.append((ins, pos))
        if len(hist) > 64:
            hist = hist[-40:]
```

```python
import sys, os, struct, argparse
sys.path.insert(0, os.path.dirname(os.path.abspath(__file__)))
from asmlib import I, WaitTag, Prog, resolve_waits, resolve_hazards

KNAME = 'standalone__deep_cross_xdeepfm__recsys_kernel'
LDS_TOTAL = 163840

XSLOT = 16384
WR = 4 * XSLOT
WP = 672
WSLOT = 32 * WP
L_BIAS = WR + 4 * WSLOT
L_W2 = L_BIAS + WP
RB = 2 * XSLOT

FRAG = 832
ASZ = 35264
A1 = 1536
FR = A1 + ASZ
A2 = FR + 22 * FRAG
A3 = A2 + ASZ
UST = 1356
V3OFF = A3 + ASZ
V2OFF = V3OFF + 2048
L_WCO = V2OFF + 1408
L_FLG = L_WCO + 192
RC = L_FLG + 64
XB = RC + 512
XBSZ = 3584
assert XB + 8 * XBSZ <= LDS_TOTAL and XB % 16 == 0 and A2 % 16 == 0 and A3 % 16 == 0 and L_WCO % 16 == 0

S_WAVE = 3
S_IDX, S_TAB, S_CIN, S_WCO, S_W1, S_B1, S_W2, S_BO, S_OUT, S_DBG, S_WS = 4, 6, 8, 10, 12, 14, 16, 18, 20, 22, 24
S_MB, S_R = 26, 27
SRD_IDX, SRD_TAB, SRD_CIN, SRD_WCO, SRD_W, SRD_B1, SRD_W2, SRD_OUT, SRD_WS, SRD_DBG = 28, 32, 36, 40, 44, 48, 52, 56, 60, 64
S_T0, S_T1, S_T2, S_T3 = 68, 69, 70, 71
S_LOOP, S_IDXOFF, S_WSOFF, S_WMB, S_XM0, S_N0, S_C0, S_CW, S_BOUT, S_TW = 72, 73, 74, 75, 76, 77, 78, 79, 80, 81
S_EX = 82
S_GRP, S_RC = 84, 85
S_ST = 86
S_M26, S_MASK = 90, 92
S_SAMP, S_STG, S_STG9, S_TGT = 94, 95, 96, 97
S_M26B = 98
S_GW = 100
S_TAGT = 0
S_TAG = 1
S_PW = 101
S_PX = 77
S_PXE = 73

GELU_C0 = -2.0 * 0.7978845608028654 * 1.4426950408889634
GELU_C1 = GELU_C0 * 0.044715


def f32hex(x):
    return '0x%08x' % struct.unpack('<I', struct.pack('<f', x))[0]


def vr(a, n):
    return f'v[{a}:{a + n - 1}]' if n > 1 else f'v{a}'


def srd(a):
    return f's[{a}:{a + 3}]'


def flat(gs):
    res = []
    for c in gs:
        if isinstance(c, (tuple, list)):
            res += flat(c)
        else:
            res.append(c)
    return res


def interleave(a, b):
    out = []
    ia = ib = 0
    na, nb = len(a), len(b)
    while ia < na or ib < nb:
        if ib >= nb or (ia < na and ia * nb <= ib * na):
            out.append(a[ia]); ia += 1
        else:
            out.append(b[ib]); ib += 1
    return out


SLOTS = []
for j in range(0, 26, 2):
    for s in range(0, 14 if j <= 12 else 13):
        SLOTS.append((j, (j + s) % 26))
assert len(SLOTS) == 176
DUP_SLOT = SLOTS.index((12, 25))
assert all((d * 2521) >> 16 == d // 26 for d in range(800))
assert all((d * 10923) >> 16 == d // 6 for d in range(64))
assert all((d * 1561) >> 16 == d // 42 for d in range(176))


DOC = '''; ---------------------------------------------------------------------------------------------
;
;       U[i,j,k] = sum_h W2[h,i,j] V3[h,k]
; ---------------------------------------------------------------------------------------------
'''


class Gen:
    def __init__(self, opt):
        self.opt = opt
        self.P = Prog()
        self.role = 'x'

    def seq(self, lines):
        return [self.P.add(l) for l in flat(lines)]

    def build_srd(self, dst, ptr, size):
        return [f's_mov_b32 s{dst}, s{ptr}', f's_and_b32 s{dst + 1}, s{ptr + 1}, 0xffff',
                f's_mov_b32 s{dst + 2}, {size}', f's_mov_b32 s{dst + 3}, 0x20000']

    def stamp(self, slot):
        if self.opt.padat == f'{self.role}{slot}':
            return [f's_memrealtime s[88:89]', 's_waitcnt lgkmcnt(0)']
        if not self.opt.stamps:
            return []
        return [f's_memtime s[{S_ST}:{S_ST + 1}]', f's_memrealtime s[{S_ST + 2}:{S_ST + 3}]', 's_waitcnt lgkmcnt(0)',
                f'v_writelane_b32 v252, s{S_ST}, {slot}', f'v_writelane_b32 v253, s{S_ST + 2}, {slot}']

    def stamp_flush(self):
        if not self.opt.stamps:
            return []
        L = self.build_srd(SRD_WS, S_WS, 0x10000000)
        L += [f's_lshl_b32 s{S_C0}, s2, 3', f's_add_u32 s{S_C0}, s{S_C0}, s{S_WAVE}',
              f's_lshl_b32 s{S_C0}, s{S_C0}, 8', f's_add_u32 s{S_C0}, s{S_C0}, 0x100000',
              'v_lshlrev_b32 v254, 3, v0', 's_mov_b32 exec_hi, 0',
              f'buffer_store_dwordx2 v[252:253], v254, {srd(SRD_WS)}, s{S_C0} offen', 's_mov_b32 exec_hi, -1']
        return L

    def stamp0(self):
        if not self.opt.stamps:
            return []
        return ['v_mov_b32 v252, 0xcdcdcdcd', 'v_mov_b32 v253, 0xcdcdcdcd',
                f'v_writelane_b32 v252, s{S_ST}, 0', f'v_writelane_b32 v253, s{S_ST + 2}, 0'] + self.stamp(15)

    def tlb2(self, t):
        L = self.build_srd(SRD_WS, S_WS, 0x10000000) + self.build_srd(SRD_OUT, S_OUT, 8192) + self.build_srd(SRD_DBG, S_DBG, 256)
        L += [f's_load_dword s{S_BOUT}, s[{S_BO}:{S_BO + 1}], 0', f'v_mov_b32 v{t}, 0', 's_mov_b64 exec, 1',
              f's_mov_b32 s{S_TW}, 0x80000',
              f'buffer_load_dword v{t + 1}, v{t}, {srd(SRD_WS)}, s{S_TW} offen',
              f'buffer_load_dword v{t + 2}, v{t}, {srd(SRD_OUT)}, 0 offen',
              's_mov_b64 exec, -1']
        return L

    def tlb1(self, vtmp, vdst):
        if not self.opt.etlb:
            return self.build_srd(SRD_TAB, S_TAB, 100000 * 128)
        return self.build_srd(SRD_TAB, S_TAB, 100000 * 128) + [
            f'v_mov_b32 v{vtmp}, s{S_BOUT}', f'buffer_load_dword v{vdst}, v{vtmp}, {srd(SRD_TAB)}, 0 offen']

    def gettag(self, lab, t, VT):
        return [f's_cmp_lg_u32 s{S_WAVE}, 0', f's_cbranch_scc1 {lab}',
                f's_memrealtime s[{S_TAGT}:{S_TAGT + 1}]'] + self.build_srd(SRD_DBG, S_DBG, 256) + [
                f's_lshl_b32 s{S_TW}, s{S_MB}, 2', f'v_mov_b32 v{t}, s{S_TW}', 's_waitcnt lgkmcnt(0)',
                f's_or_b32 s{S_TAG}, s{S_TAGT}, 1', f'v_mov_b32 v{VT}, s{S_TAG}', f'v_mov_b32 v{VT + 1}, 0',
                's_mov_b64 exec, 1',
                f'buffer_atomic_cmpswap v[{VT}:{VT + 1}], v{t}, {srd(SRD_DBG)}, 0 offen offset:128 sc0',
                's_mov_b64 exec, -1', f'{lab}:']

    def prologue(self):
        L = []
        if self.opt.padat == 'start':
            L += ['s_memrealtime s[88:89]']
        elif self.opt.padat:
            L += [f's_mov_b32 s88, {-1 if self.opt.padmin else 0}']
        if self.opt.stamps:
            L += [f's_memtime s[{S_ST}:{S_ST + 1}]', f's_memrealtime s[{S_ST + 2}:{S_ST + 3}]']
        L += ['s_cmp_ge_u32 s2, 256', 's_cbranch_scc1 L_end',
              's_load_dwordx16 s[4:19], s[0:1], 0',
              's_load_dwordx4 s[20:23], s[0:1], 64',
              's_load_dwordx2 s[24:25], s[0:1], 80',
              'v_lshrrev_b32 v1, 6, v0']
        if self.opt.cpf:
            L += [f's_getpc_b64 s[{S_MASK}:{S_MASK + 1}]', 'L_pc:',
                  f's_and_b32 s{S_T0}, s2, 0xf8', f'v_add_u32 v2, s{S_T0}, v1', 'v_lshlrev_b32 v2, 7, v2',
                  f'v_min_u32 v2, L_end-L_pc, v2',
                  f'v_mov_b32 v3, s{S_MASK + 1}',
                  f'v_add_co_u32 v2, vcc, s{S_MASK}, v2', 'v_addc_co_u32 v3, vcc, 0, v3, vcc',
                  'global_load_dword v251, v[2:3], off']
        L += ['v_and_b32 v0, 63, v0',
              f'v_readfirstlane_b32 s{S_WAVE}, v1',
              f's_and_b32 s{S_T0}, s2, 7', f's_lshl_b32 s{S_T0}, s{S_T0}, 2',
              f's_lshr_b32 s{S_MB}, s2, 6', f's_add_u32 s{S_MB}, s{S_MB}, s{S_T0}',
              f's_bfe_u32 s{S_R}, s2, 0x30003',
              f's_and_b32 s{S_BOUT}, s2, 0xf8', f's_add_u32 s{S_BOUT}, s{S_BOUT}, s{S_WAVE}', f's_lshl_b32 s{S_BOUT}, s{S_BOUT}, {self.opt.etlb}',
              f's_cmp_ge_u32 s{S_R}, 5', 's_cbranch_scc1 L_cin']
        return self.seq(L)

    def dnn(self):
        o = self.opt
        self.role = 'd'
        tr = []
        vWa, vWb = [1, 2], [3, 4]
        vX = [[5, 6, 7, 8], [9, 10, 11, 12]]
        vIdxOff, vCh = 13, [14, 15]
        ST = [16, 20]
        VO = 24
        vWD = [32, 33, 34]
        vPa, vPb = 35, 36
        WF = 40
        XA = 64
        T = 96
        ACC = 128
        PK = 224
        W2F = 232
        SUMP, KC0, KC1, KONE = 14, 244, 246, 248
        L3 = o.lead3
        WL = 3 if L3 else 4

        def acc(tn, tm):
            return ACC + (tn * 8 + tm) * 4

        WM, WN = S_T0, S_T1
        g, i4, q = T + 18, T + 19, T + 20
        PI, vCW = T + 8, T + 12
        nr = o.coopw
        L = [f's_mul_i32 s{S_N0}, s{S_R}, 672', f's_min_u32 s{S_N0}, s{S_N0}, 2656',
             f's_mul_i32 s{S_T2}, s{S_WAVE}, 7', f'v_min_u32 v{q}, 6, v0', f'v_add_u32 v{q}, s{S_T2}, v{q}', f'v_min_u32 v{q}, 51, v{q}',
             f'v_lshrrev_b32 v{g}, 1, v{q}', f'v_mul_u32_u24 v{g}, 96, v{g}', f'v_lshl_add_u32 v{q}, v{q}, 2, v{g}',
             f's_mul_i32 s{S_C0}, s{S_R}, 26', f's_min_u32 s{S_C0}, s{S_C0}, 102', f's_lshl_b32 s{S_T3}, s{S_MB}, 7',
             f's_add_u32 s{S_C0}, s{S_C0}, s{S_T3}', f's_mul_i32 s{S_C0}, s{S_C0}, 104',
             f's_and_b32 s{S_T2}, s{S_MB}, 3', f's_lshl_b32 s{S_T2}, s{S_T2}, 3', f's_add_u32 s{S_T2}, s{S_T2}, s{S_WAVE}',
             f's_mul_i32 s{S_T2}, s{S_T2}, 3328', f's_andn2_b32 s{S_TW}, s{S_N0}, 127', f's_add_u32 s{S_TW}, s{S_T2}, s{S_TW}',
             f'v_min_u32 v{vCW}, {8 * nr - 1}, v0', f'v_lshrrev_b32 v{g}, 3, v{vCW}', f's_mov_b32 s{S_T2}, {32 * 3328}',
             f'v_mul_u32_u24 v{g}, s{S_T2}, v{g}',
             f'v_and_b32 v{vCW}, 7, v{vCW}', f'v_min_u32 v{vCW}, 5, v{vCW}', f'v_lshl_add_u32 v{vCW}, v{vCW}, 7, v{g}',
             's_waitcnt lgkmcnt(0)']
        L += self.build_srd(SRD_IDX, S_IDX, 4096 * 104)
        L += [f'buffer_load_dwordx3 {vr(PI, 3)}, v{q}, {srd(SRD_IDX)}, s{S_C0} offen']
        L += self.tlb1(T + 24, T + 25)
        vBL = 37
        bias1 = lambda: [f's_mov_b32 m0, {L_BIAS}', 's_mov_b32 exec_hi, 0x3ff',
                         I(f'buffer_load_dwordx4 v{vBL}, {srd(SRD_B1)}, s{S_N0} offen lds', tag='BIAS'),
                         's_mov_b64 exec, -1']
        L += [f'v_lshlrev_b32 v{vBL}, 4, v0'] + self.build_srd(SRD_B1, S_B1, 3328)
        L += self.build_srd(SRD_W, S_W1, 1664 * 3328)
        L += (['s_barrier'] if o.dbar else [])
        L += [f'buffer_load_dword v{T + 23}, v{vCW}, {srd(SRD_W)}, s{S_TW} offen']
        if o.bearly:
            L += bias1()
        L += self.stamp0()
        L += [f's_lshr_b32 s{WM}, s{S_WAVE}, 2', f's_and_b32 s{WN}, s{S_WAVE}, 3',
              f's_lshl_b32 s{S_T2}, s{S_WAVE}, 4', f's_add_u32 s{S_T2}, s{S_T2}, s{S_T3}',
              f'v_lshrrev_b32 v{T + 16}, 3, v0', f'v_add_u32 v{T + 16}, s{S_T2}, v{T + 16}',
              f'v_mul_u32_u24 v{vIdxOff}, 104, v{T + 16}',
              f's_mov_b32 s{S_T2}, 1561']
        for u in range(3):
            qq_, rr = T + 16, T + 17
            L += [f'v_add_u32 v{qq_}, {56 * u}, v0',
                  f'v_mul_u32_u24 v{rr}, s{S_T2}, v{qq_}', f'v_lshrrev_b32 v{rr}, 16, v{rr}',
                  f'v_mul_u32_u24 v{rr}, {3328 - 672}, v{rr}',
                  f'v_lshl_add_u32 v{vWD[u]}, v0, 4, v{rr}']
        L += [f's_lshl_b32 s{S_T2}, s{WM}, 4', f's_and_b32 s{S_T3}, s{S_WAVE}, 1', f's_lshl_b32 s{S_T3}, s{S_T3}, 3',
              f's_add_u32 s{S_T2}, s{S_T2}, s{S_T3}', f's_and_b32 s{S_T3}, s{S_WAVE}, 2', f's_lshl_b32 s{S_T3}, s{S_T3}, 1',
              f's_add_u32 s{S_T2}, s{S_T2}, s{S_T3}', f's_mul_i32 s{S_T2}, s{S_T2}, 3328',
              f's_add_u32 s{S_WSOFF}, s{S_T2}, s{S_N0}',
              f's_mul_i32 s{S_WMB}, s{S_WAVE}, {4 * WP}',
              f's_lshl_b32 s{S_XM0}, s{S_WAVE}, 11',
              f'v_and_b32 v{q}, 7, v0', f'v_lshrrev_b32 v{g}, 4, v0',
              f'v_xor_b32 v{q}, v{q}, v{g}', f'v_lshlrev_b32 v{vCh[0]}, 4, v{q}',
              f'v_xor_b32 v{vCh[1]}, 64, v{vCh[0]}']
        L += self.build_srd(SRD_W2, S_W2, 3328)
        bmark = len(L)

        def wld(u):
            return I(f'buffer_load_dwordx4 v{vWD[u]}, {srd(SRD_W)}, s{S_WSOFF} offen offset:{896 * u}{o.wfl} lds', tag='W')

        def wstage(slot):
            return [f's_add_u32 m0, s{S_WMB}, {WR + slot * WSLOT}', 's_mov_b32 exec_hi, 0xffffff',
                    wld(0), wld(1), wld(2), 's_mov_b32 exec_hi, -1',
                    f's_add_u32 s{S_WSOFF}, s{S_WSOFF}, {32 * 3328}']

        def xld(f, pc, tag, slot=None):
            slot = f if slot is None else slot
            return [f's_add_u32 m0, s{S_XM0}, {slot * XSLOT + pc * 1024}',
                    I(f'buffer_load_dwordx4 v{VO + 2 * f + pc}, {srd(SRD_TAB)}, 0 offen{o.xfl} lds', tag=tag)]
        w2l = lambda: [f's_mov_b32 m0, {L_W2}', 's_mov_b32 exec_hi, 0x3ff',
                       I(f'buffer_load_dwordx4 v{vBL}, {srd(SRD_W2)}, s{S_N0} offen lds', tag='BIAS'),
                       's_mov_b64 exec, -1']
        bias = lambda: ([] if o.bearly else bias1()) + ([] if o.w2late else w2l())
        if o.bpos == 2:
            L += bias()
        idxf = [f'buffer_load_dwordx4 {vr(T + 4 * pc, 4)}, v{vIdxOff}, {srd(SRD_IDX)}, 0 offen offset:{pc * 832}' for pc in range(2)]
        R2 = [f'v_lshlrev_b32 v{PI}, 7, v{PI}']
        if o.idxfirst == 1:
            R2 += idxf + ['s_barrier']
        if o.idxfirst == 2:
            R2 += idxf
        R2 += [f'buffer_load_dword v250, v{PI}, {srd(SRD_TAB)}, 0 offen']
        tB = [f'v_lshlrev_b32 v{PI + 2}, 7, v{PI + 2}', f'buffer_load_dword v249, v{PI + 2}, {srd(SRD_TAB)}, 0 offen']
        if o.tbpos == 0:
            R2 += tB
        R2 += self.stamp(6) + (['s_barrier'] if o.dbar2 else [])
        if not o.idxfirst:
            R2 += idxf
        R2 += ([] if (o.lateb or o.bpos) else bias()) + wstage(0) + ['@U1']
        for f in range(4):
            for pc in range(2):
                R2.append(f'v_lshl_add_u32 v{VO + 2 * f + pc}, v{T + 4 * pc + f}, 7, v{vCh[pc]}')
                if f < 2:
                    R2 += xld(f, pc, 'X0' if f == 0 else 'X')
            if f == 0:
                R2 += self.stamp(7) + ['@U2'] + (['s_barrier'] if o.dbar3 else []) + (tB if o.tbpos == 1 else []) + (bias() if o.bpos == 1 else []) + wstage(1)
        if o.tbpos == 2:
            R2 += tB
        if L3:
            R2 += [f'buffer_load_dwordx4 {vr(ST[pc], 4)}, v{vIdxOff}, {srd(SRD_IDX)}, 0 offen offset:{pc * 832 + 12}' for pc in range(2)]
        L += [f'v_lshrrev_b32 v{q}, 5, v0', f'v_lshlrev_b32 v{q}, 4, v{q}',
              f'v_bfe_u32 v{i4}, v0, 2, 3', f'v_add_u32 v{q}, v{q}, v{i4}',
              f'v_mul_u32_u24 v{q}, {WP}, v{q}',
              f'v_and_b32 v{i4}, 3, v0', f'v_lshl_add_u32 v{q}, v{i4}, 3, v{q}',
              f's_mul_i32 s{S_T2}, s{WN}, 160', f's_add_u32 s{S_T3}, s{S_T2}, 64',
              f's_cmp_eq_u32 s{WM}, 0', f's_cselect_b32 s{S_T3}, s{S_T3}, 640',
              f's_mul_i32 s{S_C0}, s{WM}, 96', f's_add_u32 s{S_T2}, s{S_T2}, s{S_C0}',
              f'v_add_u32 v{q}, {WR}, v{q}',
              f'v_add_u32 v{vWa[0]}, s{S_T2}, v{q}', f'v_add_u32 v{vWa[1]}, {2 * WSLOT}, v{vWa[0]}',
              f'v_add_u32 v{vWb[0]}, s{S_T3}, v{q}', f'v_add_u32 v{vWb[1]}, {2 * WSLOT}, v{vWb[0]}',
              f'v_lshlrev_b32 v{q}, 3, v{g}', f'v_add_u32 v{q}, {L_BIAS}, v{q}',
              f'v_add_u32 v{vPa}, s{S_T2}, v{q}', f'v_add_u32 v{vPb}, s{S_T3}, v{q}',
              f'v_and_b32 v{q}, 15, v0', f'v_lshlrev_b32 v{q}, 7, v{q}',
              f'v_bfe_u32 v{i4}, v0, 1, 3', f'v_xor_b32 v{i4}, v{i4}, v{g}',
              f'v_lshl_add_u32 v{q}, v{i4}, 4, v{q}',
              f's_lshl_b32 s{S_T2}, s{WN}, 12', f'v_add_u32 v{vX[0][0]}, s{S_T2}, v{q}']
        for tp in range(1, 4):
            L.append(f'v_xor_b32 v{vX[0][tp]}, {tp * 4096}, v{vX[0][0]}')
        for tp in range(4):
            L.append(f'v_xor_b32 v{vX[1][tp]}, 64, v{vX[0][tp]}')

        BF = 2
        vPc = 38
        if o.lateb:
            L += [f'v_mov_b32 v{ACC + r}, 0' for r in range(96)]
        L += [f's_lshl_b32 s{S_T2}, s{S_WAVE}, 9', f's_add_u32 s{S_T2}, s{S_T2}, {RB}',
              f'v_xor_b32 v{vPc}, s{WN}, v{g}', f'v_lshlrev_b32 v{vPc}, 7, v{vPc}',
              f'v_and_b32 v{q}, 15, v0', f'v_lshl_add_u32 v{vPc}, v{q}, 2, v{vPc}',
              f'v_add_u32 v{vPc}, s{S_T2}, v{vPc}',
              f's_lshl_b32 s{S_T2}, s{S_R}, 3', f's_add_u32 s{S_T2}, s{S_T2}, s{S_WAVE}', f's_cmp_eq_u32 s{S_T2}, 32',
              f's_cselect_b32 s{S_CW}, 0, -1']
        def pkreads(off, dst):
            c = [f'ds_read_b64 {vr(dst + 2 * tn, 2)}, v{vPa} offset:{off + 32 * tn}' for tn in range(2)]
            c.append(f'ds_read_b64 {vr(dst + 4, 2)}, v{vPb} offset:{off}')
            return c

        def unp(dst, src):
            c = []
            for tn in range(3):
                for d in range(2):
                    c += [f'v_lshlrev_b32 v{dst + 4 * tn + 2 * d}, 16, v{src + 2 * tn + d}',
                          f'v_and_b32 v{dst + 4 * tn + 2 * d + 1}, 0xffff0000, v{src + 2 * tn + d}']
            return c
        w2prep = [f'v_and_b32 v{PK}, s{S_CW}, v{PK}', f'v_and_b32 v{PK + 1}, s{S_CW}, v{PK + 1}'] + unp(W2F, PK)
        U = []
        if not o.lateb:
            U.append(WaitTag(vm_tags=['BIAS']))
            U += pkreads(0, PK) + ([] if o.w2late else pkreads(WP, WF))
            for tn in range(3):
                for d in range(2):
                    U.append(f'v_lshlrev_b32 v{acc(tn, 0) + 2 * d}, 16, v{PK + 2 * tn + d}')
                    U.append(f'v_and_b32 v{acc(tn, 0) + 2 * d + 1}, 0xffff0000, v{PK + 2 * tn + d}')
            for tn in range(3):
                for tm in range(1, 8):
                    for d in range(2):
                        U.append(f'v_mov_b64 {vr(acc(tn, tm) + 2 * d, 2)}, {vr(acc(tn, 0) + 2 * d, 2)}')
            if not o.w2late:
                U += [f'v_and_b32 v{WF}, s{S_CW}, v{WF}', f'v_and_b32 v{WF + 1}, s{S_CW}, v{WF + 1}'] + unp(W2F, WF)
        R2 += ['@U3']
        for x in R2:
            if isinstance(x, str) and x.startswith('@U'):
                if int(x[2]) == o.upos:
                    L += U
            else:
                L.append(x)
        L += [f's_mov_b32 s{S_LOOP}, 0', f's_mov_b32 s{S_IDXOFF}, {28 if L3 else 32}']

        def reads(k8):
            par = k8 % 2
            sl = k8 % 4
            wo = (sl % 2) * WSLOT
            xo = ((k8 // 2) % 4) * XSLOT
            wf = WF + 12 * par

            def rW(tn, rd):
                if tn < 2:
                    return f'ds_read_b64_tr_b16 {vr(wf + 4 * tn + 2 * rd, 2)}, v{vWa[sl // 2]} offset:{wo + rd * 8 * WP + tn * 32}'
                return f'ds_read_b64_tr_b16 {vr(wf + 4 * tn + 2 * rd, 2)}, v{vWb[sl // 2]} offset:{wo + rd * 8 * WP}'
            R = [f'ds_read_b128 {vr(XA + 32 * par + 4 * tm, 4)}, v{vX[par][tm // 2]} offset:{xo + (tm % 2) * 2048}' for tm in range(8)]
            R += [rW(tn, rd) for tn in range(3) for rd in range(2)]
            return R

        pre2 = wstage(2) + ((xld(2, 0, 'X') + [f'v_mov_b32 v{VO + 7}, v{VO + 5}']) if L3 else [])
        if o.d1:
            L += pre2
        L.append(WaitTag(vm_tags=['X0'], lgkm0=True))
        L += self.stamp(1) + ['s_barrier'] + self.stamp(2)
        L += reads(0) + ([] if o.d1 else pre2)
        L += [WaitTag(allbut=('W', 3), lgkm0=True)]
        if o.prio47:
            L += [f's_cmp_ge_u32 s{S_WAVE}, 4', 's_cbranch_scc0 L_noprio', f's_setprio {o.prio47}', 'L_noprio:']
        tr += self.seq(L)

        def mf(tn, tm, par):
            a = acc(tn, tm)
            return f'v_mfma_f32_16x16x32_bf16 {vr(a, 4)}, {vr(WF + 12 * par + 4 * tn, 4)}, {vr(XA + 32 * par + 4 * tm, 4)}, {vr(a, 4)}'

        def step(n, inloop, half, extra=()):
            n8 = n % 8
            par = n8 % 2
            M = [mf(tn, tm if tn % 2 == 0 else 7 - tm, par) for tn in range(2) for tm in range(8)] + [mf(2, tm, par) for tm in range(8 if half == 0 else 2)]
            if o.morder:
                M = [mf(tn if tm % 2 == 0 else nt_ - 1 - tn, tm, par) for tm in range(8) for nt_ in [3 if (half == 0 or tm < 2) else 2] for tn in range(nt_)]
            R, D_, E = [], [], []
            if inloop or n < 51:
                R = reads((n8 + 1) % 8)
            if inloop:
                if not o.nodma:
                    D_ += [(f's_add_u32 m0, s{S_WMB}, {WR + ((n8 + WL) % 4) * WSLOT}', 's_mov_b32 exec_hi, 0xffffff', wld(0), 's_mov_b32 exec_hi, -1'),
                           ('s_mov_b32 exec_hi, 0xffffff', wld(1), 's_mov_b32 exec_hi, -1'),
                           ('s_mov_b32 exec_hi, 0xffffff', wld(2), 's_mov_b32 exec_hi, -1',
                            f's_add_u32 s{S_WSOFF}, s{S_WSOFF}, {32 * 3328}' if not ('whit' in o.dbg and n8 == 7) else f's_sub_u32 s{S_WSOFF}, s{S_WSOFF}, {7 * 32 * 3328}')]
                    f = ((n8 + 7) % 8) // 2
                    D_ += [tuple(xld(f, 1 - par, 'X', (f + WL) % 4))]
                if n8 == 0:
                    for ff in range(4):
                        for pc in range(2):
                            E.append(f'v_lshl_add_u32 v{VO + 2 * ff + pc}, v{ST[pc] + ff}, 7, v{vCh[pc]}')
                if n8 == 1:
                    for pc in range(2):
                        E.append(f'buffer_load_dwordx4 {vr(ST[pc], 4)}, v{vIdxOff}, {srd(SRD_IDX)}, s{S_IDXOFF} offen offset:{pc * 832}')
                    E.append(f's_add_u32 s{S_IDXOFF}, s{S_IDXOFF}, 16')
                if n8 == 7:
                    E += [f's_add_u32 s{S_LOOP}, s{S_LOOP}, 1', f's_cmp_lt_u32 s{S_LOOP}, 6']
                W_ = [WaitTag(allbut=('W', 3 * (WL - 2)), lgkm0=True)]
            elif n == 48:
                W_ = [WaitTag(allbut=('W', 3), lgkm0=True)]
                if L3:
                    D_ += [tuple(wstage(3))]
                if o.w2late:
                    E += [tuple(w2l())]
                if o.tlb2:
                    E += self.tlb2(PK)
                if half == 0:
                    E += self.build_srd(SRD_DBG, S_DBG, 256) + [
                        f's_lshl_b32 s{S_TW}, s{S_MB}, 2', f'v_mov_b32 v{PK + 4}, s{S_TW}',
                        ('s_mov_b64 exec, 1', f'buffer_load_dword v250, v{PK + 4}, {srd(SRD_DBG)}, 0 offen offset:128 sc1', 's_mov_b64 exec, -1')]
            elif n == 49:
                W_ = [WaitTag(vm0=True, lgkm0=True)]
                E += [f'v_mov_b32 v{KC0}, {f32hex(GELU_C0)}', f'v_mov_b32 v{KC0 + 1}, {f32hex(GELU_C0)}',
                      f'v_mov_b32 v{KC1}, {f32hex(GELU_C1)}', f'v_mov_b32 v{KC1 + 1}, {f32hex(GELU_C1)}',
                      f'v_mov_b32 v{KONE}, 1.0', f'v_mov_b32 v{KONE + 1}, 1.0']
            elif n == 50:
                W_ = ['s_waitcnt lgkmcnt(0)']
                if o.w2late:
                    E += pkreads(WP, PK)
            else:
                W_ = []
                if o.w2late:
                    E += w2prep
            if extra == 'p0':
                D_ = [tuple(xld(2, 0, 'X')), tuple(xld(2, 1, 'X')), tuple(wstage(3))] + D_[:3]
                E = [f'buffer_load_dwordx4 {vr(ST[pc], 4)}, v{vIdxOff}, {srd(SRD_IDX)}, 0 offen offset:{pc * 832 + 16}' for pc in range(2)]
                D_ = [tuple(E)] + D_
                E = []
            if extra == 'p1':
                vo = [f'v_lshl_add_u32 v{VO + 2 * ff + pc}, v{ST[pc] + ff}, 7, v{vCh[pc]}' for ff in range(4) for pc in range(2)]
                D_ = D_[:3] + [tuple(xld(3, 0, 'X')), tuple(xld(3, 1, 'X')), tuple(vo)] + D_[3:]
            if 'dnods' in o.dbg and inloop:
                R = []
            if 'dnox' in o.dbg and inloop:
                R = R[4:]
            if 'dnow' in o.dbg and inloop:
                R = R[:4]
            if 'ddup' in o.dbg and inloop:
                R = R + [x.replace(x.split(',')[0].split()[1], 'v[248:249]') for x in R[4:]]
            if 'dxdup' in o.dbg and inloop:
                R = R + [x.replace(x.split(',')[0].split()[1], 'v[248:251]') for x in R[:4]] + [x.replace(x.split(',')[0].split()[1], 'v[248:251]') for x in R[:2]]
            fill = interleave(R, D_) + E
            S = ['s_barrier'] if (inloop or n < 51) else []
            hp = [f's_setprio {o.mprio}'] if o.mprio else []
            lp = ['s_setprio 0'] if o.mprio else []
            if (half == 0) != bool(o.swap):
                k = o.aov
                if o.rfirst:
                    fill = R + D_ + E
                S += M[:len(M) - k] + interleave(M[len(M) - k:], fill[:2 * k]) + lp + fill[2 * k:] + W_ + hp
            else:
                kb = o.bov
                S += lp + fill + M[:len(M) - kb] + W_ + M[len(M) - kb:]
            return S

        tr += self.seq([f's_cmp_ge_u32 s{S_WAVE}, 4', 's_cbranch_scc1 L_dnn_h1'])
        trs = []
        for half in range(2):
            th = list(tr)
            if L3:
                th += self.seq([f'L_dnn_h{half}:'])
            else:
                th += self.seq([f'L_dnn_h{half}:'] + step(0, True, half, 'p0') + step(1, True, half, 'p1') + [f's_branch L_dnn_mid{half}'])
            body = self.seq([f'L_dnn_loop{half}:'])
            for n8 in range(8):
                S = step(n8, True, half)
                if n8 == 2:
                    mid = len(body)
                    S = [f'L_dnn_mid{half}:'] + S
                if n8 == 7:
                    if o.stamps and o.itst:
                        S = [f's_memtime s[{S_ST}:{S_ST + 1}]', f's_memrealtime s[{S_ST + 2}:{S_ST + 3}]', f's_add_u32 s{S_C0}, s{S_LOOP}, 8', 's_waitcnt lgkmcnt(0)',
                             f's_mov_b32 m0, s{S_C0}', f'v_writelane_b32 v252, s{S_ST}, m0', f'v_writelane_b32 v253, s{S_ST + 2}, m0'] + S
                    S += [f's_cbranch_scc1 L_dnn_loop{half}']
                body += self.seq(S)
            th += body if L3 else body[mid:]
            for it in range(5):
                th += body
            for n in range(48, 52):
                th += self.seq(step(n, False, half))
            if half == 0:
                th += self.seq(['s_branch L_epi'])
            trs.append(th)
        tr = self.seq(['L_epi:'] + self.stamp(3) + (([f'v_readfirstlane_b32 s{S_T3}, v250', f's_cmp_lg_u32 s{S_T3}, 0', 's_cbranch_scc1 L_tagd']
                      + self.gettag('L_tagd', PK + 4, 250)) if o.tag else []) + self.pubprep(250))

        p2 = lambda r: vr(r, 2)

        def gelu(groups):
            L = []
            for k, vals in enumerate(groups):
                tb = XA + (k % 2) * 16
                V_ = [(x, w, s_, tb + 4 * i_, tb + 4 * i_ + 2) for i_, (x, w, s_) in enumerate(vals)]
                if o.lateb:
                    for (x, w, s_, t, u) in V_:
                        L.append(f'v_pk_add_f32 {p2(x)}, {p2(x)}, {p2(w - W2F + BF)}')
                for (x, w, s_, t, u) in V_:
                    L.append(f'v_pk_mul_f32 {p2(t)}, {p2(x)}, {p2(x)}')
                for (x, w, s_, t, u) in V_:
                    L.append(f'v_pk_fma_f32 {p2(t)}, {p2(t)}, {p2(KC1)}, {p2(KC0)}')
                for (x, w, s_, t, u) in V_:
                    L.append(f'v_pk_mul_f32 {p2(t)}, {p2(t)}, {p2(x)}')
                for (x, w, s_, t, u) in V_:
                    L += [f'v_exp_f32 v{t}, v{t}', f'v_exp_f32 v{t + 1}, v{t + 1}']
                for (x, w, s_, t, u) in V_:
                    L.append(f'v_pk_mul_f32 {p2(u)}, {p2(x)}, {p2(w)}')
                for (x, w, s_, t, u) in V_:
                    L.append(f'v_pk_add_f32 {p2(t)}, {p2(t)}, {p2(KONE)}')
                for (x, w, s_, t, u) in V_:
                    L += [f'v_rcp_f32 v{t}, v{t}', f'v_rcp_f32 v{t + 1}, v{t + 1}']
                for (x, w, s_, t, u) in V_:
                    if s_ in seen:
                        L.append(f'v_pk_fma_f32 {p2(s_)}, {p2(t)}, {p2(u)}, {p2(s_)}')
                    else:
                        L.append(f'v_pk_mul_f32 {p2(s_)}, {p2(t)}, {p2(u)}')
                        seen.add(s_)
            return L
        seen = set()
        el = lambda tn, tm, d: (acc(tn, tm) + 2 * d, W2F + 4 * tn + 2 * d, SUMP + 2 * tm)
        g1 = [[el(tn, 4 * hh + tm, d) for tm in range(4)] for tn in range(2) for hh in range(2) for d in range(2)]
        g1.append([el(2, tm, d) for d in range(2) for tm in range(2)])
        g2 = [[el(2, tm, d) for d in range(2) for tm in (2, 3)]] + [[el(2, 4 + tm, d) for tm in range(4)] for d in range(2)]
        tr += self.seq(gelu(g1) + [f's_cmp_ge_u32 s{S_WAVE}, 4', 's_cbranch_scc1 L_epi2'])
        ea = self.seq(gelu(g2))
        L = ['L_epi2:']
        for tm in range(8):
            L += [f'v_add_f32 v{SUMP + 2 * tm}, v{SUMP + 2 * tm}, v{SUMP + 2 * tm + 1}']
        sm = lambda tm: SUMP + 2 * tm
        for tm in range(4):
            L += [f'v_permlane32_swap_b32 v{sm(tm)}, v{sm(tm + 4)}']
        for tm in range(4):
            L += [f'v_add_f32 v{sm(tm)}, v{sm(tm)}, v{sm(tm + 4)}']
        for tm in range(2):
            L += [f'v_permlane16_swap_b32 v{sm(tm)}, v{sm(tm + 2)}']
        for tm in range(2):
            L += [f'v_add_f32 v{sm(tm)}, v{sm(tm)}, v{sm(tm + 2)}', f'ds_write_b32 v{vPc}, v{sm(tm)} offset:{64 * tm}']
        L += ['s_waitcnt lgkmcnt(0)'] + self.stamp(4) + self.stamp_flush()
        L += ['s_barrier', f's_cmp_lg_u32 s{S_WAVE}, 0', 's_cbranch_scc1 L_end']
        A = 64
        L += [f'v_lshlrev_b32 v1, 3, v0', f'v_add_u32 v2, {RB}, v1']
        for qq in range(8):
            L.append(f'ds_read_b64 {vr(A + 2 * qq, 2)}, v2 offset:{qq * 512}')
        for st in (1, 2, 4):
            for qq in range(0, 8, 2 * st):
                L.append(f'v_pk_add_f32 {p2(A + 2 * qq)}, {p2(A + 2 * qq)}, {p2(A + 2 * (qq + st))}')
        tr2 = self.seq(L)

        if o.tag:
            G = 96
            L = ['L_pub:'] + (self.stamp(16) if o.diag else [])
            L += [f'v_mov_b32 v{A + 2}, v{A + 1}', f'v_mov_b32 v{A + 1}, s{S_TAG}', f'v_mov_b32 v{A + 3}, s{S_TAG}',
                  f'buffer_store_dwordx4 {vr(A, 4)}, v3, {srd(SRD_WS)}, s{S_T1} offen sc1',
                  's_mov_b64 exec, 1',
                  f'buffer_atomic_add v5, v6, {srd(SRD_DBG)}, 0 offen sc0',
                  's_mov_b64 exec, -1', f's_lshl_b32 s{S_T2}, s{S_R}, 2',
                  's_waitcnt vmcnt(0)'] + (self.stamp(18) if o.diag else []) + [
                  f'v_readfirstlane_b32 s{S_T3}, v5',
                  f's_cmp_lg_u32 s{S_T3}, 7', 's_cbranch_scc1 L_end',
                  'L_again:']
            for qq in range(8):
                L.append(f'buffer_load_dwordx4 {vr(G + 4 * qq, 4)}, v{3 + (qq // 4)}, {srd(SRD_WS)}, s{S_T0} offen offset:{(qq % 4) * 1024} sc1')
            L += ['s_waitcnt vmcnt(0)',
                  f's_set_gpr_idx_on s{S_T2}, gpr_idx(DST)', 's_nop 1']
            L += [f'v_mov_b32 v{G + k}, v{A + k}' for k in range(4)]
            L += ['s_set_gpr_idx_off', f'v_mov_b32 v7, 0']
            for qq in range(8):
                L += [f'v_xor_b32 v{G + 4 * qq + 1}, s{S_TAG}, v{G + 4 * qq + 1}', f'v_xor_b32 v{G + 4 * qq + 3}, s{S_TAG}, v{G + 4 * qq + 3}',
                      f'v_or3_b32 v7, v7, v{G + 4 * qq + 1}, v{G + 4 * qq + 3}']
            L += ['v_cmp_ne_u32 vcc, 0, v7', 's_cbranch_vccnz L_again']
            for qq in range(1, 8):
                L += [f'v_add_f32 v{G}, v{G}, v{G + 4 * qq}', f'v_add_f32 v{G + 2}, v{G + 2}, v{G + 4 * qq + 2}']
            L += [f'v_add_f32 v{G}, s{S_BOUT}, v{G}', f'v_add_f32 v{G + 2}, s{S_BOUT}, v{G + 2}',
                  f'v_cvt_pk_bf16_f32 v{G}, v{G}, v{G + 2}',
                  f's_lshl_b32 s{S_T0}, s{S_MB}, 8', f'v_lshlrev_b32 v1, 2, v0',
                  f'buffer_store_dword v{G}, v1, {srd(SRD_OUT)}, s{S_T0} offen']
        else:
            L = ['L_pub:'] + (self.stamp(16) if o.diag else [])
            if o.padat:
                L += ([f's_not_b32 s88, s88'] if o.padmin else []) + ['v_mov_b32 v7, s88', 'v_mov_b32 v8, 4', 's_mov_b64 exec, 1',
                      f'buffer_atomic_umax v7, v8, {srd(SRD_DBG)}, 0 offen', 's_mov_b64 exec, -1']
            L += [f'buffer_store_dwordx2 {vr(A, 2)}, v3, {srd(SRD_WS)}, s{S_T1} offen sc1',
                  's_mov_b64 exec, 1', 's_waitcnt vmcnt(0)',
                  f'buffer_atomic_add v5, v6, {srd(SRD_DBG)}, 0 offen sc0',
                  's_waitcnt vmcnt(0)'] + (self.stamp(18) if o.diag else []) + [
                  's_mov_b64 exec, -1',
                  f'v_readfirstlane_b32 s{S_T3}, v5',
                  f's_cmp_lg_u32 s{S_T3}, 7', 's_cbranch_scc1 L_end']
            for qq in range(8):
                L.append(f'buffer_load_dwordx2 {vr(A + 2 * qq, 2)}, v3, {srd(SRD_WS)}, s{S_T0} offen offset:{qq * 512} sc1')
            L += [f's_lshl_b32 s{S_T0}, s{S_MB}, 8', f'v_lshlrev_b32 v1, 2, v0', 's_waitcnt lgkmcnt(0)', f's_lshl_b32 s{S_BOUT}, s{S_BOUT}, 16']
            for qq in range(1, 8):
                L += [f'v_pk_add_f32 {p2(A)}, {p2(A)}, {p2(A + 2 * qq)}']
            L += [f'v_add_f32 v{A}, s{S_BOUT}, v{A}', f'v_add_f32 v{A + 1}, s{S_BOUT}, v{A + 1}',
                  f'v_cvt_pk_bf16_f32 v{A}, v{A}, v{A + 1}']
            if o.padat:
                L += ['L_padspin:', f'buffer_load_dword v7, v8, {srd(SRD_DBG)}, 0 offen sc1', 's_waitcnt vmcnt(0)', 's_memrealtime s[86:87]',
                      'v_readfirstlane_b32 s88, v7', 's_waitcnt lgkmcnt(0)', 's_nop 4'] + (['s_not_b32 s88, s88'] if o.padmin else []) + [
                      's_sub_u32 s86, s86, s88', 's_cmp_lt_i32 s86, 6000', 's_cbranch_scc1 L_padspin']
            L += [f'buffer_store_dword v{A}, v1, {srd(SRD_OUT)}, s{S_T0} offen']
        L += self.stamp(5) + self.stamp_flush()
        L += ['s_endpgm']
        self.pub = self.seq(L)
        return [trs[0] + tr + ea + tr2 + self.pub, trs[1] + tr + tr2 + self.pub]

    def pubprep_s(self):
        L = self.build_srd(SRD_WS, S_WS, 0x10000000) + self.build_srd(SRD_OUT, S_OUT, 8192) + self.build_srd(SRD_DBG, S_DBG, 256)
        L += [f's_lshl_b32 s{S_T0}, s{S_MB}, 12', f's_lshl_b32 s{S_T1}, s{S_R}, 9', f's_add_u32 s{S_T1}, s{S_T1}, s{S_T0}',
              f's_lshl_b32 s{S_T2}, s{S_MB}, {self.opt.cstr}']
        return L

    def pubprep_v(self):
        return ['v_lshlrev_b32 v3, 3, v0', 'v_mov_b32 v5, 1', f'v_mov_b32 v6, s{S_T2}']

    def pubprep(self, VT):
        assert not self.opt.tag
        return self.pubprep_s() + self.pubprep_v()

    def cin(self):
        o = self.opt
        self.role = 'c'
        cw = S_CW
        vFA, vFa, vXa, vFR, vXi0, vXi1, vC16 = 1, 2, 3, 4, 5, 6, 7
        T = 8
        vAcc, vStg, vOne = 16, 16, 17
        vB0, vB1, vB2, vL, vFw, vA3, vBs0, vBs1a, vBs1b, vUw, vV2w, vF, _u, vE = range(18, 32)
        AD = 32
        XI = 48
        vPWL, vPXL, PXR, PFR = 45, 46, 47, 58
        XL, XH, TP, Z, WF, D = 60, 86, 112, 128, 160, 184
        AFR, UP, T0O, BT, BS = 112, 60, 160, 216, 240
        BALL, DALL = 60, 120
        half, i32 = T + 1, T + 2
        nsync = [0]

        def sig(**kw):
            return [WaitTag(lgkm0=True, **kw), f'ds_add_u32 v{vFA}, v{vOne}', f's_add_u32 s{S_TGT}, s{S_TGT}, 4']

        def wait():
            nsync[0] += 1
            lab = f'L_csync{nsync[0]}'
            return [f'{lab}:', f'ds_read_b32 v{vF}, v{vFR}', 's_waitcnt lgkmcnt(0)',
                    f'v_cmp_gt_u32 vcc, s{S_TGT}, v{vF}', f's_cbranch_vccnz {lab}']

        L = ['L_cin:', f's_and_b32 s{cw}, s{S_WAVE}, 3', f's_lshr_b32 s{S_GRP}, s{S_WAVE}, 2',
             f's_and_b32 s{S_T0}, s{S_MB}, 3', f's_mul_i32 s{S_T0}, s{S_T0}, 3', f's_add_u32 s{S_T0}, s{S_T0}, s{S_R}',
             f's_sub_u32 s{S_T0}, s{S_T0}, 5', f's_lshl_b32 s{S_T0}, s{S_T0}, 3', f's_add_u32 s{S_T0}, s{S_T0}, s{S_WAVE}',
             f's_mul_i32 s{S_T0}, s{S_T0}, {9 * 128}',
             f'v_min_u32 v{T}, 8, v0', f'v_lshlrev_b32 v{T}, 7, v{T}',
             f'v_lshlrev_b32 v{vStg}, 4, v0',
             f's_lshl_b32 s{S_STG}, s{cw}, 10',
             f's_cmp_eq_u32 s{cw}, 2', f's_cselect_b64 s[{S_EX}:{S_EX + 1}], 0x1fffff, -1',
             f's_cmp_eq_u32 s{cw}, 3', f's_cselect_b32 s{S_STG9}, 0, {8 * 4096}',
             f's_add_u32 s{S_STG9}, s{S_STG9}, s{S_STG}',
             f's_sub_u32 s{S_T1}, s{S_R}, 5', f's_mul_i32 s{S_T2}, s{S_T1}, 43', f's_add_u32 s{S_T2}, s{S_T2}, s{S_WAVE}',
             f's_lshl_b32 s{S_RC}, s{S_T2}, 2', f's_add_u32 s{S_RC}, s{S_RC}, {RC}',
             f's_lshl_b32 s{S_SAMP}, s{S_MB}, 7', f's_add_u32 s{S_SAMP}, s{S_SAMP}, s{S_T2}', f's_mul_i32 s{S_SAMP}, s{S_SAMP}, 104',
             f's_lshr_b32 s{S_T1}, s{S_T1}, 1', f's_sub_u32 s{S_T1}, 3, s{S_T1}',
             f's_cmp_lt_u32 s{S_WAVE}, s{S_T1}', f's_cselect_b32 s{S_LOOP}, 6, 5',
             f'v_lshrrev_b32 v{T + 3}, 3, v0', f'v_lshlrev_b32 v{vXi0}, 2, v{T + 3}',
             f'v_add_u32 v{vXi1}, 96, v{vXi0}', f'v_cmp_lt_u32 vcc, 1, v{T + 3}',
             f'v_cndmask_b32 v{vXi1}, v{vXi1}, 0, vcc',
             f's_mul_i32 s{S_GW}, s{S_MB}, 3', f's_add_u32 s{S_GW}, s{S_GW}, s{S_R}', f's_sub_u32 s{S_GW}, s{S_GW}, 5',
             f's_lshl_b32 s{S_GW}, s{S_GW}, 3', f's_add_u32 s{S_GW}, s{S_GW}, s{S_WAVE}',
             f's_add_u32 s{S_PW}, s{S_GW}, {o.pfe0 * 832}', f's_lshl_b32 s{S_PW}, s{S_PW}, 7',
             f's_mov_b32 s{S_T3}, {768 * 128}', f'v_min_u32 v{vPWL}, {max(o.pfne - 1, 0)}, v0', f'v_mul_lo_u32 v{vPWL}, s{S_T3}, v{vPWL}',
             f'v_mov_b32 v{vFR}, {L_FLG}', f'v_lshlrev_b32 v{vFA}, 20, v0', f'v_add_u32 v{vFA}, {L_FLG}, v{vFA}',
             f'v_mov_b32 v{vOne}, 0', f'ds_write_b32 v{vFR}, v{vOne}', f's_mov_b32 s{S_TGT}, 4',
             f'v_lshrrev_b32 v{half}, 5, v0', f'v_and_b32 v{i32}, 31, v0',
             's_waitcnt lgkmcnt(0)', f'v_mov_b32 v{vOne}, 1']
        L += self.tlb1(T + 7, XI + 5)
        L += self.build_srd(SRD_CIN, S_CIN, 105456)
        if o.coop:
            L += [f'buffer_load_dword v{XI + 4}, v{T}, {srd(SRD_CIN)}, s{S_T0} offen']
        L += self.build_srd(SRD_W, S_W1, 1664 * 3328)

        def pfw():
            return [f'buffer_load_dword v{PFR}, v{vPWL}, {srd(SRD_W)}, s{S_PW} offen',
                    f's_add_u32 s{S_PW}, s{S_PW}, {o.pfne * 768 * 128}']
        L += ['s_barrier']
        if o.pfs:
            L += [f's_mov_b64 exec, {(1 << o.pfs) - 1}', f'buffer_load_dword v{PFR + 1}, v{vPWL}, {srd(SRD_W)}, s{S_PW} offen', 's_mov_b64 exec, -1',
                  f's_add_u32 s{S_PW}, s{S_PW}, {o.pfs * 768 * 128}']
        L += self.build_srd(SRD_IDX, S_IDX, 4096 * 104)

        def pfx_a():
            return [f'buffer_load_dword v{PXR}, v{vPXL}, {srd(SRD_IDX)}, s{S_PX} offen',
                    f's_cmp_eq_u32 s{S_PX}, s{S_PXE}', f's_cselect_b32 s{S_PXE}, 0x7000000, s{S_PXE}',
                    f's_cselect_b32 s{S_PX}, 0x7000000, s{S_PX}',
                    f's_add_u32 s{S_PX}, s{S_PX}, 24', f's_min_u32 s{S_PX}, s{S_PX}, s{S_PXE}']

        def pfx_b():
            return [f'v_lshlrev_b32 v{PXR}, 7, v{PXR}', f'buffer_load_dword v{PFR + 1}, v{PXR}, {srd(SRD_TAB)}, 0 offen']

        def xidx(XI=XI, off=0, adv=True):
            c = [f'buffer_load_dword v{XI + u}, v{vXi0}, {srd(SRD_IDX)}, s{S_SAMP} offen offset:{32 * u + off}' for u in range(3)]
            c.append(f'buffer_load_dword v{XI + 3}, v{vXi1}, {srd(SRD_IDX)}, s{S_SAMP} offen offset:{off}')
            if adv:
                c.append(f's_add_u32 s{S_SAMP}, s{S_SAMP}, {8 * 104}')
            return c

        def xdma(XI=XI, lo=0):
            c = []
            for u in range(4):
                g = [f'v_lshl_add_u32 v{XI + u}, v{XI + u}, 7, v{vC16}', f's_add_u32 m0, s{S_XM0}, {u * 1024 + lo}']
                if u == 3:
                    g.append('s_mov_b64 exec, 0xffffff')
                g.append(I(f'buffer_load_dwordx4 v{XI + u}, {srd(SRD_TAB)}, 0 offen lds', tag='XB'))
                if u == 3:
                    g.append('s_mov_b64 exec, -1')
                c.append(tuple(g))
            return c
        wco = self.build_srd(SRD_WCO, S_WCO, 156) + [f's_mov_b32 m0, {L_WCO}', 's_mov_b64 exec, 0x7ff',
              I(f'buffer_load_dwordx4 v{vStg}, {srd(SRD_WCO)}, 0 offen lds', tag='STG'),
              's_mov_b64 exec, -1']
        if o.tlb:
            L += [f'v_lshlrev_b32 v{T}, {o.tlb}, v0', f'buffer_load_dword v{XI + 6}, v{T}, {srd(SRD_TAB)}, 0 offen']
        L += self.stamp0()

        def stage(dst, goff, tag):
            st = []
            for m in range(8):
                st.append((f's_add_u32 m0, s{S_STG}, {dst + m * 4096}', f's_add_u32 s{S_TW}, s{S_STG}, {goff + m * 4096}',
                           I(f'buffer_load_dwordx4 v{vStg}, {srd(SRD_CIN)}, s{S_TW} offen lds', tag=tag)))
            st.append((f's_add_u32 m0, s{S_STG9}, {dst}', f's_add_u32 s{S_TW}, s{S_STG9}, {goff}',
                       f's_mov_b64 exec, s[{S_EX}:{S_EX + 1}]',
                       I(f'buffer_load_dwordx4 v{vStg}, {srd(SRD_CIN)}, s{S_TW} offen lds', tag=tag),
                       's_mov_b64 exec, -1'))
            return st

        t3, t4, t5 = T + 3, T + 4, T + 5
        L += [f's_cmp_lg_u32 s{S_GRP}, 0', 's_cbranch_scc1 L_g1a']
        c0 = self.seq(L)
        st2 = stage(A2, 35152, 'STG2')
        XJ = 208
        L = wco + xidx(XJ, 4 * 104, False) + xidx() + stage(A3, 70304, 'STG') + st2[:o.sigat] + [WaitTag(vm_tags=['STG']), f'ds_add_u32 v{vFA}, v{vOne}'] + self.stamp(1)
        L += st2[o.sigat:] + stage(A1, 0, 'STG2') + ['s_branch L_addrc']
        g0a = self.seq(L)
        L = ['L_g1a:', 's_setprio 1']
        g1t = []
        if o.g1x:
            nf = o.g1x
            sh = nf.bit_length() - 1
            L += [f's_sub_u32 s{S_T0}, s{S_R}, 5', f's_lshl_b32 s{S_T0}, s{S_T0}, 2', f's_add_u32 s{S_T0}, s{S_T0}, s{cw}',
                  f's_mul_i32 s{S_T0}, s{S_T0}, 682', f's_lshr_b32 s{S_T0}, s{S_T0}, 6',
                  f's_lshl_b32 s{S_T1}, s{S_MB}, 7', f's_add_u32 s{S_T0}, s{S_T0}, s{S_T1}', f's_mul_i32 s{S_T0}, s{S_T0}, 104',
                  f'v_min_u32 v{t3}, {11 * nf - 1}, v0', f'v_lshrrev_b32 v{t4}, {sh}, v{t3}', f'v_mul_u32_u24 v{t4}, {104 - 4 * nf}, v{t4}',
                  f'v_lshl_add_u32 v{t3}, v{t3}, 2, v{t4}',
                  f'buffer_load_dword v{XI}, v{t3}, {srd(SRD_IDX)}, s{S_T0} offen offset:8']
            g1t = [f'v_lshlrev_b32 v{XI}, 7, v{XI}', f'buffer_load_dword v{XI + 1}, v{XI}, {srd(SRD_TAB)}, 0 offen']
        L += [
              f'v_bfe_u32 v{t3}, v0, 2, 2', f'v_lshl_add_u32 v{t3}, v{half}, 3, v{t3}',
              f'v_bfe_u32 v{t4}, v0, 4, 1', f'v_lshlrev_b32 v{t4}, 5, v{t4}',
              f'v_and_b32 v{t5}, 3, v0', f'v_lshl_add_u32 v{t4}, v{t5}, 3, v{t4}',
              f'v_lshl_add_u32 v{vA3}, v{t3}, 6, v{t4}', f'v_add_u32 v{vA3}, {V3OFF}, v{vA3}',
              f's_lshl_b32 s{S_T0}, s{cw}, 6', f's_add_u32 s{S_T0}, s{S_T0}, {A2}',
              f'v_add_u32 v{t4}, s{S_T0}, v{t4}',
              f'v_mul_u32_u24 v{t5}, 1352, v{t3}', f'v_add_u32 v{vBs0}, v{t4}, v{t5}',
              f'v_add_u32 v{t5}, 16, v{t3}', f'v_min_u32 v{t5}, 25, v{t5}',
              f'v_mul_u32_u24 v{t5}, 1352, v{t5}', f'v_add_u32 v{vBs1a}, v{t4}, v{t5}',
              f'v_add_u32 v{t5}, 20, v{t3}', f'v_min_u32 v{t5}, 25, v{t5}',
              f'v_mul_u32_u24 v{t5}, 1352, v{t5}', f'v_add_u32 v{vBs1b}, v{t4}, v{t5}',
              f's_lshl_b32 s{S_T0}, s{cw}, 5', f'v_add_u32 v{vE}, s{S_T0}, v{i32}',
              f'v_mul_u32_u24 v{t3}, 52, v{vE}', f'v_lshl_add_u32 v{t3}, v{half}, 3, v{t3}',
              f'v_add_u32 v{vUw}, {A3}, v{t3}',
              f'v_lshlrev_b32 v{t3}, 1, v{vE}', f'v_add_u32 v{vV2w}, {V2OFF}, v{t3}',
              f'v_mov_b32 v{BT}, 0', f'v_mov_b32 v{BT + 1}, 0',
              f'v_lshlrev_b32 v{t3}, 3, v0', f'v_add_u32 v{t4}, {V3OFF + 26 * 64}, v{t3}', f'v_add_u32 v{t3}, {RC}, v{t3}',
              f'ds_write_b64 v{t3}, {vr(BT, 2)}',
              's_mov_b32 exec_hi, 0xffff', f'ds_write_b64 v{t4}, {vr(BT, 2)}', 's_mov_b32 exec_hi, -1']
        L += [f'v_lshl_add_u32 v{t3}, v{half}, 7, v{vE}', f's_mov_b32 s{S_T1}, 2521', f's_mov_b32 s{S_T2}, {V3OFF}']
        for p_ in range(3):
            L += [f'v_mul_u32_u24 v{t4}, s{S_T1}, v{t3}', f'v_lshrrev_b32 v{t4}, 16, v{t4}',
                  f'v_mad_u32_u24 v{t4}, v{t4}, 12, s{S_T2}', f'v_lshl_add_u32 v{AD + p_}, v{t3}, 1, v{t4}']
            if p_ < 2:
                L += [f'v_add_u32 v{t3}, 256, v{t3}']
        L += [f'v_mov_b32 v{t4}, 676', f'v_cmp_gt_u32 s[{S_MASK}:{S_MASK + 1}], v{t4}, v{t3}']
        for m in range(6):
            L += [f'v_add_u32 v{t3}, {128 * m}, v{vE}', f'v_mul_u32_u24 v{t4}, s{S_T1}, v{t3}', f'v_lshrrev_b32 v{t4}, 16, v{t4}',
                  f'v_lshl_add_u32 v{t4}, v{t4}, 2, v{vUw}', f'v_add_u32 v{AD + 4 + m}, {m * 6656}, v{t4}']
        L += [f'v_lshlrev_b32 v{AD + 10}, 4, v{half}', f'v_add_u32 v{AD + 10}, {L_WCO + 104}, v{AD + 10}',
              f'v_lshlrev_b32 v{AD + 11}, 1, v0', f'v_add_u32 v{AD + 11}, {L_WCO}, v{AD + 11}',
              f'v_lshlrev_b32 v{AD + 12}, 6, v0', f'v_add_u32 v{AD + 12}, {V3OFF + 52}, v{AD + 12}']
        g1a = self.seq(L)
        L = ['L_addrc:']
        L += [
              f'v_cmp_gt_u32 s[{S_M26}:{S_M26 + 1}], 26, v{i32}',
              f'v_mul_u32_u24 v{t3}, 26, v{half}', f'v_add_u32 v{t3}, v{t3}, v{i32}',
              f'v_lshlrev_b32 v{vFw}, 4, v{t3}', f'v_add_u32 v{vFw}, {FR}, v{vFw}',
              f'v_mov_b32 v{t4}, 0x100000',
              f'v_cndmask_b32 v{vFa}, v{t4}, v{vFw}, s[{S_M26}:{S_M26 + 1}]',
              f's_mul_i32 s{S_T0}, s{S_GRP}, {UST - 1352}', f's_add_u32 s{S_T0}, s{S_T0}, 1352',
              f's_mul_i32 s{S_T1}, s{S_GRP}, {A3 - A1}', f's_add_u32 s{S_T1}, s{S_T1}, {A1}',
              f'v_min_u32 v{t3}, 25, v{i32}',
              f'v_mul_u32_u24 v{t4}, s{S_T0}, v{t3}', f'v_add_u32 v{t4}, s{S_T1}, v{t4}',
              f'v_mul_u32_u24 v{t5}, 54, v{half}', f'v_add_u32 v{vB0}, v{t4}, v{t5}',
              f'v_lshl_add_u32 v{vB1}, v{half}, 1, v{t4}',
              f'v_mul_u32_u24 v{t5}, 1298, v{half}', f'v_sub_u32 v{vB2}, v{t4}, v{t5}',
              f'v_mul_u32_u24 v{t4}, 52, v{t3}', f'v_lshl_add_u32 v{t4}, v{half}, 1, v{t4}',
              f'v_add_u32 v{vL}, {V2OFF}, v{t4}',
              f's_mul_i32 s{S_T0}, s{S_GRP}, 22', f's_add_u32 s{S_T0}, s{S_T0}, s{cw}', f's_mul_i32 s{S_T0}, s{S_T0}, {FRAG}',
              f'v_add_u32 v{vFw}, s{S_T0}, v{vFw}',
              f's_and_b32 s{S_T0}, s{S_WAVE}, 6', f's_cmp_lg_u32 s{S_T0}, 2',
              f's_cselect_b64 s[{S_M26B}:{S_M26B + 1}], s[{S_M26}:{S_M26 + 1}], 0',
              f'v_and_b32 v{vC16}, 7, v0', f'v_lshlrev_b32 v{vC16}, 4, v{vC16}',
              f's_mul_i32 s{S_XM0}, s{S_WAVE}, {XBSZ}', f's_add_u32 s{S_XM0}, s{S_XM0}, {XB}',
              f'v_lshlrev_b32 v{t3}, 2, v0', f'v_add_u32 v{vXa}, s{S_XM0}, v{t3}']
        L += [f's_sub_u32 s{S_PX}, s{S_R}, 5', f's_lshl_b32 s{S_PX}, s{S_PX}, 3', f's_add_u32 s{S_PX}, s{S_PX}, s{S_WAVE}',
              f's_mul_i32 s{S_PX}, s{S_PX}, 341', f's_lshr_b32 s{S_PX}, s{S_PX}, 6',
              f's_lshl_b32 s{S_T3}, s{S_MB}, 7', f's_add_u32 s{S_PX}, s{S_PX}, s{S_T3}', f's_mul_i32 s{S_PX}, s{S_PX}, 104',
              f's_add_u32 s{S_PXE}, s{S_PX}, 80', f's_add_u32 s{S_PX}, s{S_PX}, {4 * o.pfx0}',
              f's_mov_b32 s{S_T3}, 10923', f'v_min_u32 v{t3}, 35, v0',
              f'v_mul_u32_u24 v{t4}, s{S_T3}, v{t3}', f'v_lshrrev_b32 v{t4}, 16, v{t4}',
              f'v_mul_u32_u24 v{t4}, {104 - 24}, v{t4}', f'v_lshl_add_u32 v{vPXL}, v{t3}, 2, v{t4}']
        L += [f'v_lshlrev_b32 v{AD + 11}, 1, v0', f'v_add_u32 v{AD + 11}, {L_WCO}, v{AD + 11}']
        for r in range(BT, BT + 24):
            L.append(f'v_mov_b32 v{r}, 0')
        L += self.stamp(14)
        L += [f's_cmp_eq_u32 s{S_GRP}, 0', 's_cbranch_scc1 L_g0pf']
        cc = self.seq(L)

        def bread(m, base):
            b = BALL + m * 8
            return [f'ds_read_b64_tr_b16 {vr(b, 2)}, v{vBs0} offset:{base + m * 256}',
                    f'ds_read_b64_tr_b16 {vr(b + 2, 2)}, v{vBs0} offset:{base + m * 256 + 4 * 1352}',
                    f'ds_read_b64_tr_b16 {vr(b + 4, 2)}, v{vBs1a} offset:{base + m * 256}',
                    f'ds_read_b64_tr_b16 {vr(b + 6, 2)}, v{vBs1b} offset:{base + m * 256}']

        def mm6(base):
            c = []
            for m in range(3):
                c += bread(m, base)
            for m in range(6):
                if m + 3 < 6:
                    c += bread(m + 3, base)
                b = BALL + m * 8
                d = DALL + m * 16
                c.append(f'v_mfma_f32_32x32x16_bf16 {vr(d, 16)}, {vr(AFR, 4)}, {vr(b, 4)}, 0')
                c.append(f'v_mfma_f32_32x32x16_bf16 {vr(d, 16)}, {vr(AFR + 4, 4)}, {vr(b + 4, 4)}, {vr(d, 16)}')
            return c

        L = g1t + wait() + self.stamp(2)
        for s2 in range(2):
            for rd in range(2):
                L.append(f'ds_read_b64 {vr(AFR + 4 * s2 + 2 * rd, 2)}, v{AD + 10} offset:{s2 * 32 + rd * 8}')
        L += [f'ds_read_u16 v{t5}, v{AD + 11} offset:52']
        L += mm6(A3 - A2)
        L += ['s_mov_b64 exec, 0x3ffffff', f'ds_write_b16 v{AD + 12}, v{t5}', 's_mov_b64 exec, -1']
        for p_ in range(3):
            L += [f'v_cvt_pk_bf16_f32 v{BALL + p_}, v{DALL + 32 * p_}, 0',
                  's_mov_b32 exec_lo, 0', f'v_cvt_pk_bf16_f32 v{BALL + p_}, v{DALL + 32 * p_ + 16}, 0', 's_mov_b32 exec_lo, -1']
            if p_ == 2:
                L += [f's_mov_b64 exec, s[{S_MASK}:{S_MASK + 1}]']
            L += [f'ds_write_b16 v{AD + p_}, v{BALL + p_}']
        L += ['s_mov_b64 exec, -1']
        v3 = self.seq(L)
        v3 += self.seq([f's_add_u32 s{S_SAMP}, s{S_SAMP}, {8 * 104}', 's_branch L_g0a'])
        e1 = [f'buffer_load_dword v{XJ + 4}, v{vPXL}, {srd(SRD_IDX)}, s{S_PX} offen',
              f'buffer_load_dword v{XJ + 5}, v{vPXL}, {srd(SRD_IDX)}, s{S_PX} offen offset:{21 * 104}'] if o.epx else []
        e2 = [f'v_lshlrev_b32 v{XJ + 4}, 7, v{XJ + 4}', f'buffer_load_dword v{XJ + 4}, v{XJ + 4}, {srd(SRD_TAB)}, 0 offen',
              f'v_lshlrev_b32 v{XJ + 5}, 7, v{XJ + 5}', f'buffer_load_dword v{XJ + 5}, v{XJ + 5}, {srd(SRD_TAB)}, 0 offen'] if o.epx else []
        g0pf = self.seq(['L_g0pf:'] + e1 + (e2 if o.epx == 2 else []) + xdma() + xdma(XJ, 4 * XBSZ) + (e2 if o.epx == 3 else []))
        L = ['L_g0a:', WaitTag(vm_tags=['STG2'], lgkm0=True), 's_barrier'] + self.stamp(5)
        L += ([f's_add_u32 s{S_PX}, s{S_PX}, 24'] if o.epx else []) + [f's_cmp_eq_u32 s{S_GRP}, 0', 's_cbranch_scc1 L_g0b']
        c1 = self.seq(L)
        L = []
        for s2 in range(2):
            for rd in range(2):
                L.append(f'ds_read_b64_tr_b16 {vr(AFR + 4 * s2 + 2 * rd, 2)}, v{vA3} offset:{s2 * 1024 + rd * 256}')
        L += mm6(0)
        L += [f'v_cmp_gt_u32 s[{S_MASK}:{S_MASK + 1}], 36, v{vE}']
        for m in range(6):
            L += [f'v_cvt_pk_bf16_f32 v{UP + 8 * m + qq}, v{DALL + 16 * m + 2 * qq}, v{DALL + 16 * m + 2 * qq + 1}' for qq in range(8)]
            if m == 5:
                L.append(f's_mov_b64 exec, s[{S_MASK}:{S_MASK + 1}]')
            for a in range(3):
                L.append(f'ds_write2_b32 v{AD + 4 + m}, v{UP + 8 * m + 2 * a}, v{UP + 8 * m + 2 * a + 1} offset0:{4 * a} offset1:{4 * a + 1}')
        L.append('s_mov_b32 exec_hi, 0')
        for m in (5, 4, 3, 2, 1, 0):
            L.append(f'ds_write_b32 v{AD + 4 + m}, v{UP + 8 * m + 6} offset:48')
            L.append(f'ds_write_b16 v{vV2w}, v{UP + 8 * m + 7} offset:{m * 256}')
            if m == 5:
                L.append('s_mov_b32 exec_lo, -1')
        L.append('s_mov_b64 exec, -1')
        L += sig() + wait() + self.stamp(7) + ['s_branch L_build']
        uc = self.seq(L)
        g0b = self.seq(['L_g0b:'] + (e2 if o.epx == 1 else []))

        def builder(frags):
            units = [(n, s_, pr) for n, s_ in enumerate(frags) for pr in range(4)]
            NB_, BA = 6, 3
            reads, maths = [], []
            for ui, (n, s_, pr) in enumerate(units):
                tb = BT + (ui % NB_) * 4
                R, M = [], []
                dst = T0O + 4 * n
                srcs = []
                for qq in range(2):
                    si = 8 * s_ + 2 * pr + qq
                    j, k = SLOTS[si]
                    bs = BS + (ui % 2) * 2 + qq
                    R.append(f'ds_read_u16_d16_hi v{tb + 2 * qq}, v{vB1 if k == 25 else vB0} offset:{(26 * j + k) * 2}')
                    if j != k:
                        R.append(f'ds_read_u16_d16_hi v{tb + 2 * qq + 1}, v{vB2 if k == 25 else vB0} offset:{(26 * k + j) * 2}')
                        M.append(f'v_add_f32 v{bs}, v{tb + 2 * qq}, v{tb + 2 * qq + 1}')
                        if si == DUP_SLOT:
                            M.append(('s_mov_b32 exec_lo, 0', f'v_mov_b32 v{bs}, 0', 's_mov_b32 exec_lo, -1'))
                        srcs.append(bs)
                    else:
                        srcs.append(tb + 2 * qq)
                M = M[::-1] if len(M) == 2 and not isinstance(M[1], tuple) else M
                M.append(f'v_cvt_pk_bf16_f32 v{dst + pr}, v{srcs[0]}, v{srcs[1]}')
                reads.append(R)
                maths.append(M)
            code = []
            nu = len(units)
            for ui in range(nu + BA):
                if ui < nu:
                    code += reads[ui]
                if ui >= BA:
                    code += maths[ui - BA]
            return code

        def lincode(w):
            c = []
            t0 = 8 * (w - 2)
            for t in range(t0, min(t0 + 8, 13)):
                c.append(f'ds_read_u16_d16_hi v{BT + t - t0}, v{vL} offset:{4 * t}')
            dst = T0O + 20
            if w == 2:
                for qq in range(4):
                    c.append(f'v_cvt_pk_bf16_f32 v{dst + qq}, v{BT + 2 * qq}, v{BT + 2 * qq + 1}')
            else:
                c += [f'v_mov_b32 v{BT + 5}, 0', 's_mov_b32 exec_hi, 0', f'ds_read_u16_d16_hi v{BT + 5}, v{AD + 11}', 's_mov_b32 exec_hi, -1']
                for qq in range(3):
                    c.append(f'v_cvt_pk_bf16_f32 v{dst + qq}, v{BT + 2 * qq}, v{BT + 2 * qq + 1}')
                c.append(f'v_mov_b32 v{dst + 3}, 0')
            return c

        disp = self.seq(['L_build:', f's_cmp_eq_u32 s{cw}, 1', 's_cbranch_scc1 L_pre1', f's_cmp_eq_u32 s{cw}, 2',
                         's_cbranch_scc1 L_pre2', f's_cmp_eq_u32 s{cw}, 3', 's_cbranch_scc1 L_pre3'])
        bw = []
        for w in range(4):
            L = [f'L_pre{w}:'] + builder([s_ for s_ in range(w, 22, 4)]) + (lincode(w) if w >= 2 else [])
            if w != 3:
                L += ['s_branch L_built']
            bw.append(self.seq(L))
        L = ['L_built:'] + self.stamp(10) + [f's_mov_b64 exec, s[{S_M26}:{S_M26 + 1}]']
        for n in range(6):
            if n == 5:
                L.append(f's_mov_b64 exec, s[{S_M26B}:{S_M26B + 1}]')
            L.append(f'ds_write_b128 v{vFw}, {vr(T0O + 4 * n, 4)} offset:{(4 * n) * FRAG}')
        L.append('s_mov_b64 exec, -1')
        L += xidx() + pfx_a() + self.pubprep_s()
        L += [f'v_mov_b32 v{r}, 0' for r in range(XL, XL + 52)]
        if o.c2:
            L += [f's_xor_b32 s{S_STG}, s{S_GRP}, 1', 's_waitcnt lgkmcnt(0)',
                  f's_cmp_eq_u32 s{S_GRP}, 0', 's_cbranch_scc1 L_g0c', 's_barrier', 'L_g0c:'] + self.stamp(8)
        else:
            L += [WaitTag(vm_tags=['XB'], lgkm0=True), 's_barrier'] + self.stamp(8)
        L += [f's_cmp_lg_u32 s{S_WAVE}, 0', 's_cbranch_scc1 L_cin_loop'] + (self.tlb2(XI + 6) if o.tlb2 else [])
        L += [f'v_mov_b32 v{XI + 4}, 0', 's_mov_b64 exec, 1', f'buffer_load_dword v14, v{XI + 4}, {srd(SRD_DBG)}, 0 offen offset:128 sc1', 's_mov_b64 exec, -1']
        if o.w2late:
            L += self.build_srd(SRD_W2, S_W2, 3328) + [f'v_lshlrev_b32 v{XI + 4}, 7, v0', f'buffer_load_dword v15, v{XI + 4}, {srd(SRD_W2)}, 0 offen']
        c2 = self.seq(L)

        NWF, PF, NZ, LA = o.nwf, o.nwf - 2, o.nz, o.lookahead
        ZR = [128 + 8 * k for k in range(4)] + [32, 120]
        WFR = [160 + 4 * k for k in range(6)] + [40, 248]
        jobs = [(s_, t) for s_ in range(24) for t in range(2) if not (t == 0 and s_ >= 22)]
        NJ = len(jobs)

        def wread(n):
            s_, t = jobs[n]
            return f'ds_read_b128 {vr(WFR[n % NWF], 4)}, v{vFa} offset:{(s_ + 22 * t) * FRAG}'

        def zreg(cg, s_):
            return ZR[s_ % NZ] + 4 * cg

        def zgen(cg, s_):
            X = XL if cg == 0 else XH
            z = zreg(cg, s_)
            c = []
            if s_ < 22:
                for hf in range(2):
                    tb = TP + hf * 4
                    for qq in range(4):
                        j, k = SLOTS[8 * s_ + 4 * hf + qq]
                        c.append(f'v_mul_f32 v{tb + qq}, v{X + j}, v{X + k}')
                    c.append(f'v_cvt_pk_bf16_f32 v{z + 2 * hf}, v{tb}, v{tb + 1}')
                    c.append(f'v_cvt_pk_bf16_f32 v{z + 2 * hf + 1}, v{tb + 2}, v{tb + 3}')
            else:
                for qq in range(4):
                    t0 = 8 * (s_ - 22) + 2 * qq
                    op = lambda t: f'v{X + 2 * t}' if t < 13 else ('1.0' if t == 13 else '0')
                    c.append(f'v_mov_b32 v{z + qq}, 0' if t0 > 13 else f'v_cvt_pk_bf16_f32 v{z + qq}, {op(t0)}, {op(t0 + 1)}')
            return c

        code = ['L_cin_loop:', 's_setprio 0', WaitTag(vm_tags=['XB'])]
        for j in range(26):
            code += [f'ds_read_u16_d16_hi v{XL + j}, v{vXa} offset:{j * 128}',
                     f'ds_read_u16_d16_hi v{XH + j}, v{vXa} offset:{j * 128 + 2}']
        if o.pfx:
            code += pfx_b() + pfx_a()
        if o.pfw:
            code += pfw()
        code += ['s_waitcnt lgkmcnt(0)'] + xdma() + xidx()
        if not o.c2:
            code += [wread(k) for k in range(PF)]
        V = []
        zdone = {}
        for s_ in range(24):
            for x in zgen(0, s_) + zgen(1, s_):
                V.append((x, s_ - NZ))
            zdone[s_] = len(V)
        vp, sdone = 0, -1
        while vp < zdone[LA - 1]:
            if o.c2 and vp == zdone[LA - 2]:
                code += [f's_cmp_eq_u32 s{S_STG}, 0', 's_cbranch_scc1 L_nob', 's_barrier', f's_mov_b32 s{S_STG}, 0', 'L_nob:']
                code += [wread(k) for k in range(PF)]
            code.append(V[vp][0]); vp += 1
        code.append('s_setprio 1')
        forced = 0
        for n, (s_, tt) in enumerate(jobs):
            while vp < zdone[s_]:
                assert V[vp][1] <= sdone
                code.append(V[vp][0]); vp += 1; forced += 1
            if n == o.hiat:
                code.append('s_setprio 2')
            if n % 2 == 0 and o.wmerge:
                out_ = min(PF, NJ - n) - 2
                code.append(f's_waitcnt lgkmcnt({max(out_, 0)})')
            for cg in range(2):
                cgx = cg if not (o.csnake and tt == 1 and s_ < 22) else 1 - cg
                d = D + (cgx * 2 + tt) * 16
                c = '0' if s_ == 0 else vr(d, 16)
                if o.cswap:
                    pass
                code.append(f'v_mfma_f32_32x32x16_bf16 {vr(d, 16)}, {vr(WFR[n % NWF], 4)}, {vr(zreg(cgx, s_), 4)}, {c}')
                if cg == 1 and tt == 1:
                    sdone = s_
                other = 0
                if cg == 0 and n + PF < NJ:
                    code.append(wread(n + PF))
                    other = 1
                if cg == 1 and (n % 2 == 1 or not o.wmerge):
                    other = 1
                k = 0
                while vp < len(V) and k < o.gapv - other and V[vp][1] <= sdone:
                    code.append(V[vp][0]); vp += 1; k += 1
        print('forced VALU', forced)
        code.append('s_setprio 0')
        code.append(f'v_mul_f32 v{vAcc}, v{D}, v{D + 16}')
        for cg in range(2):
            for r in range(14):
                if cg or r:
                    code.append(f'v_fmac_f32 v{vAcc}, v{D + cg * 32 + r}, v{D + cg * 32 + 16 + r}')
        if o.ldsred:
            code += [f'v_mov_b32 v{T}, s{S_RC}', f'ds_add_f32 v{T}, v{vAcc}']
        else:
            for (ctl, rm) in (('row_shr:1', '0xf'), ('row_shr:2', '0xf'), ('row_shr:4', '0xf'), ('row_shr:8', '0xf'),
                              ('row_bcast:15', '0xa'), ('row_bcast:31', '0xc')):
                code.append(f'v_add_f32_dpp v{vAcc}, v{vAcc}, v{vAcc} {ctl} row_mask:{rm} bank_mask:0xf')
            code += [f'v_mov_b32 v{T}, s{S_RC}', 's_mov_b32 exec_lo, 0', 's_mov_b32 exec_hi, 0x80000000',
                     f'ds_write_b32 v{T}, v{vAcc}', 's_mov_b64 exec, -1']
        code += [
                 f's_add_u32 s{S_RC}, s{S_RC}, 32',
                 f's_sub_u32 s{S_LOOP}, s{S_LOOP}, 1', f's_cmp_lg_u32 s{S_LOOP}, 0', 's_cbranch_scc1 L_cin_loop']
        def keep(x):
            t_ = x.text if isinstance(x, I) else x
            if isinstance(t_, tuple):
                return True
            if 'novalu' in o.dbg and t_.startswith(('v_mul_f32', 'v_cvt_pk')):
                return False
            if 'nomfma' in o.dbg and t_.startswith('v_mfma'):
                return False
            if 'nowf' in o.dbg and t_.startswith('ds_read_b128'):
                return False
            return True
        code = [x for x in code if keep(x)]
        loop = self.seq(code)
        L = ['L_cin_done:'] + self.stamp(9) + self.stamp_flush() + ['s_waitcnt lgkmcnt(0)', 's_barrier',
                                                  f's_cmp_lg_u32 s{S_WAVE}, 0', 's_cbranch_scc1 L_end',
                                                  'v_lshlrev_b32 v1, 3, v0', f'v_add_u32 v2, {RC}, v1',
                                                  'ds_read_b64 v[64:65], v2'] + self.pubprep_v() + ['s_waitcnt lgkmcnt(0)', 's_branch L_pub']
        fin_ = self.seq(L)
        traces = []
        for grp in range(2):
            for w in range(4):
                tr = c0 + (g1a if grp else g0a) + cc + (v3 if grp else g0pf) + c1 + (uc if grp else g0b) + disp + bw[w] + c2 + loop * 3 + fin_ + self.pub
                traces.append(tr)
        return traces

    def build(self):
        pro = self.prologue()
        d = self.dnn()
        cs = self.cin()
        self.seq(['L_end:', 's_endpgm'])
        traces = [pro + c for c in d + cs]
        for t in traces:
            resolve_waits(t)
        for _ in range(2):
            for t in traces:
                resolve_hazards(t)
        hdr = open(os.path.join(os.path.dirname(os.path.abspath(__file__)), 'header.txt')).read()
        txt = hdr + f'; @launch grid=(256,1,1) block=(512,1,1) lds={LDS_TOTAL}\n'
        txt += f'''.amdgcn_target "amdgcn-amd-amdhsa--gfx950"
{DOC}.text
.globl {KNAME}
.p2align 8
.type {KNAME},@function
{KNAME}:
'''
        body_ = self.P.emit()
        if 'wsame' in self.opt.dbg:
            body_ = body_.replace(f's_add_u32 s{S_WSOFF}, s{S_WSOFF}, {32 * 3328}', f's_xor_b32 s{S_WSOFF}, s{S_WSOFF}, 0')
        if 'xsame' in self.opt.dbg:
            import re as _re
            body_ = _re.sub(r'v_lshl_add_u32 v(2[4-9]|3[01]), v(1[6-9]), 7', r'v_lshl_add_u32 v\1, v16, 7', body_)
            body_ = _re.sub(r'v_lshl_add_u32 v(2[4-9]|3[01]), v(2[0-3]), 7', r'v_lshl_add_u32 v\1, v20, 7', body_)
            body_ = _re.sub(r'v_lshl_add_u32 v(2[4-9]|3[01]), v(9[6-9]), 7', r'v_lshl_add_u32 v\1, v96, 7', body_)
            body_ = _re.sub(r'v_lshl_add_u32 v(2[4-9]|3[01]), v(10[0-3]), 7', r'v_lshl_add_u32 v\1, v100, 7', body_)
            body_ = body_.replace('offen offset:12\n', 'offen offset:0\n').replace('offen offset:844\n', 'offen offset:832\n')
            body_ = body_.replace(f's_mov_b32 s{S_IDXOFF}, 28', f's_mov_b32 s{S_IDXOFF}, 0').replace(f's_add_u32 s{S_IDXOFF}, s{S_IDXOFF}, 16', 's_nop 0')
        if self.opt.align:
            for lab in ('L_dnn_loop0:', 'L_dnn_loop1:', 'L_cin_loop:', 'L_epi:'):
                pad = '  s_nop 0\n' if self.opt.align > 100 else ''
                body_ = body_.replace(lab + '\n', f'.p2align {self.opt.align % 100}\n{pad}{lab}\n')
        txt += body_
        txt += f'''.section .rodata,"a"
.p2align 6
.amdhsa_kernel {KNAME}
  .amdhsa_next_free_vgpr 256
  .amdhsa_next_free_sgpr 102
  .amdhsa_accum_offset 256
  .amdhsa_group_segment_fixed_size 0
  .amdhsa_kernarg_size 88
  .amdhsa_user_sgpr_count 2
  .amdhsa_user_sgpr_kernarg_segment_ptr 1
  .amdhsa_system_sgpr_workgroup_id_x 1
  .amdhsa_float_denorm_mode_32 {self.opt.denorm}
.end_amdhsa_kernel
'''
        return txt


def main():
    ap = argparse.ArgumentParser()
    ap.add_argument('-o', default='standalone__deep_cross_xdeepfm__recsys.s')
    ap.add_argument('--stamps', action='store_true')
    ap.add_argument('--padat', default='')
    ap.add_argument('--padmin', type=int, default=0)
    ap.add_argument('--nodma', action='store_true')
    ap.add_argument('--cpf', type=int, default=1)
    ap.add_argument('--coop', type=int, default=1)
    ap.add_argument('--coopw', type=int, default=2)
    ap.add_argument('--tbpos', type=int, default=0)
    ap.add_argument('--dbar3', type=int, default=1)
    ap.add_argument('--tlb', type=int, default=0)
    ap.add_argument('--tlb2', type=int, default=1)
    ap.add_argument('--itst', type=int, default=0)
    ap.add_argument('--diag', type=int, default=0)
    ap.add_argument('--dbg', default='')
    ap.add_argument('--lead3', type=int, default=1)
    ap.add_argument('--morder', type=int, default=0)
    ap.add_argument('--etlb', type=int, default=21)
    ap.add_argument('--lateb', type=int, default=0)
    ap.add_argument('--wfl', default='')
    ap.add_argument('--xfl', default='')
    ap.add_argument('--tag', type=int, default=0)
    ap.add_argument('--idxfirst', type=int, default=1)
    ap.add_argument('--bpos', type=int, default=2)
    ap.add_argument('--sigat', type=int, default=4)
    ap.add_argument('--epx', type=int, default=1)
    ap.add_argument('--denorm', type=int, default=3)
    ap.add_argument('--mprio', type=int, default=0)
    ap.add_argument('--swap', type=int, default=0)
    ap.add_argument('--bov', type=int, default=1)
    ap.add_argument('--rfirst', type=int, default=0)
    ap.add_argument('--g1x', type=int, default=0)
    ap.add_argument('--ldsred', type=int, default=0)
    ap.add_argument('--csnake', type=int, default=0)
    ap.add_argument('--cswap', type=int, default=0)
    ap.add_argument('--align', type=int, default=0)
    ap.add_argument('--c2', type=int, default=0)
    ap.add_argument('--d1', type=int, default=0)
    ap.add_argument('--cstr', type=int, default=3)
    ap.add_argument('--bearly', type=int, default=1)
    ap.add_argument('--w2late', type=int, default=1)
    ap.add_argument('--aov', type=int, default=5)
    ap.add_argument('--upos', type=int, default=1)
    ap.add_argument('--calt', type=int, default=1)
    ap.add_argument('--pfpos', type=int, default=1)
    ap.add_argument('--wlate', type=int, default=0)
    ap.add_argument('--dbar2', type=int, default=0)
    ap.add_argument('--dbar', type=int, default=0)
    ap.add_argument('--pfw', type=int, default=1)
    ap.add_argument('--pfx', type=int, default=3)
    ap.add_argument('--pfx0', type=int, default=4)
    ap.add_argument('--pfs', type=int, default=13)
    ap.add_argument('--dcoopx', type=int, default=1)
    ap.add_argument('--dcx0', type=int, default=0)
    ap.add_argument('--dcxpos', type=int, default=-1)
    ap.add_argument('--pfe0', type=int, default=2)
    ap.add_argument('--pfne', type=int, default=13)
    ap.add_argument('--prio47', type=int, default=0)
    ap.add_argument('--lookahead', type=int, default=5)
    ap.add_argument('--nz', type=int, default=6)
    ap.add_argument('--nwf', type=int, default=8)
    ap.add_argument('--hiat', type=int, default=4)
    ap.add_argument('--wmerge', type=int, default=0)
    ap.add_argument('--gapv', type=int, default=6)
    opt = ap.parse_args()
    resolve_waits.dbg = 'dup' in opt.dbg
    g = Gen(opt)
    txt = g.build()
    open(opt.o, 'w').write(txt)
    print('wrote', opt.o, len(txt), 'bytes')


if __name__ == '__main__':
    main()
```

```python
import re

_REG = re.compile(r'^(-?)(abs\()?([vsa])(\d+)\)?$')
_RNG = re.compile(r'^([vsa])\[(\d+):(\d+)\]$')


def regs_of(tok):
    tok = tok.strip()
    m = _REG.match(tok)
    if m:
        return [(m.group(3), int(m.group(4)))]
    m = _RNG.match(tok)
    if m:
        return [(m.group(1), i) for i in range(int(m.group(2)), int(m.group(3)) + 1)]
    if tok in ('vcc', 'exec', 'm0', 'scc', 'exec_hi', 'exec_lo', 'vcc_lo', 'vcc_hi'):
        base = tok.split('_')[0]
        return [(base, 0)]
    return []


TRANS = ('v_exp_f32', 'v_log_f32', 'v_rcp_f32', 'v_rsq_f32', 'v_sqrt_f32', 'v_sin_f32', 'v_cos_f32')


class I:
    __slots__ = ('text', 'mn', 'kind', 'rd', 'wr', 'nops', 'w_vm', 'w_lgkm', 'tag', 'need', 'passes',
                 'srcc', 'srcab', 'comment', 'isdpp', 'lds_dma', 'store_data')

    def __init__(self, text, tag=None):
        self.text = text
        self.nops = 0
        self.w_vm = None
        self.w_lgkm = None
        self.tag = tag
        self.need = None
        self.passes = 0
        self.srcc = []
        self.srcab = []
        self.lds_dma = False
        self.store_data = []
        t = text.split(';')[0].strip()
        if (t.endswith(':') and ' ' not in t) or t.startswith('.') or not t:
            self.mn = 'label'
            self.kind = 'label'
            self.rd = []
            self.wr = []
            self.isdpp = False
            return
        parts = t.split(None, 1)
        mn = parts[0]
        self.mn = mn
        rest = parts[1] if len(parts) > 1 else ''
        ops = [o.strip() for o in rest.split(',')] if rest else []
        mods = ''
        if ops:
            last = ops[-1].split(None, 1)
        rest2 = re.sub(r'\b(op_sel|op_sel_hi|neg_lo|neg_hi|quad_perm):\[[^\]]*\]', '', rest)
        ops = [o.strip() for o in rest2.split(',')] if rest2.strip() else []
        if ops:
            last = ops[-1].split(None, 1)
            ops[-1] = last[0]
            mods = last[1] if len(last) > 1 else ''
        self.isdpp = ('row_' in rest) or ('quad_perm' in rest) or ('wave_' in rest)
        rd, wr = [], []
        R = regs_of
        if mn.startswith('v_mfma'):
            self.kind = 'mfma'
            wr = R(ops[0])
            self.srcab = R(ops[1]) + R(ops[2])
            self.srcc = R(ops[3])
            rd = self.srcab + self.srcc
            self.passes = 8 if '32x32x16' in mn else 4
        elif mn.startswith('v_smfmac'):
            self.kind = 'mfma'
            wr = R(ops[0])
            self.srcab = R(ops[1]) + R(ops[2]) + R(ops[3])
            self.srcc = R(ops[0])
            rd = self.srcab + self.srcc
            self.passes = 4
        elif mn.startswith('v_cmp'):
            self.kind = 'valu'
            wr = R(ops[0])
            for o in ops[1:]:
                rd += R(o)
        elif mn.startswith('v_readfirstlane') or mn.startswith('v_readlane'):
            self.kind = 'valu'
            wr = R(ops[0])
            for o in ops[1:]:
                rd += R(o)
        elif mn.startswith('v_permlane'):
            self.kind = 'valu'
            wr = R(ops[0]) + R(ops[1])
            rd = list(wr)
        elif mn.startswith('v_'):
            self.kind = 'valu'
            wr = R(ops[0])
            k = 1
            if mn.startswith(('v_add_co', 'v_sub_co', 'v_addc_co', 'v_subb_co')):
                wr += R(ops[1])
                k = 2
            for o in ops[k:]:
                rd += R(o)
            if mn.startswith(('v_fmac', 'v_mac', 'v_writelane', 'v_dot2c', 'v_fma_mixlo', 'v_fma_mixhi')) or self.isdpp or 'UNUSED_PRESERVE' in rest:
                rd += R(ops[0])
            if mn.startswith('v_cndmask') and len(ops) == 3:
                rd += [('vcc', 0)]
        elif mn.startswith('ds_'):
            self.kind = 'ds'
            if mn.startswith(('ds_read', 'ds_bpermute', 'ds_permute', 'ds_swizzle')) or '_rtn_' in mn:
                wr = R(ops[0])
                for o in ops[1:]:
                    rd += R(o)
                if 'd16' in mn:
                    rd += R(ops[0])
            else:
                for o in ops:
                    rd += R(o)
        elif mn.startswith(('buffer_', 'global_')):
            self.kind = 'vmem'
            if ' lds' in (' ' + mods + ' ') or mods.endswith('lds'):
                self.lds_dma = True
                for o in ops:
                    rd += R(o)
                rd += [('m0', 0)]
            elif '_load' in mn:
                wr = R(ops[0])
                for o in ops[1:]:
                    rd += R(o)
                if 'd16' in mn:
                    rd += R(ops[0])
            elif '_atomic' in mn:
                for o in ops:
                    rd += R(o)
                if 'sc0' in mods:
                    wr = R(ops[0])
            elif mn.startswith('buffer_store'):
                for o in ops:
                    rd += R(o)
                if 'x3' in mn or 'x4' in mn:
                    self.store_data = R(ops[0])
            elif mn.startswith('global_store'):
                for o in ops:
                    rd += R(o)
                if 'x3' in mn or 'x4' in mn:
                    self.store_data = R(ops[1])
            else:
                for o in ops:
                    rd += R(o)
        elif mn.startswith('s_load') or mn.startswith('s_memtime') or mn.startswith('s_memrealtime'):
            self.kind = 'smem'
            wr = R(ops[0])
            for o in ops[1:]:
                rd += R(o)
        elif mn in ('s_waitcnt',):
            self.kind = 'wait'
        elif mn in ('s_barrier',):
            self.kind = 'barrier'
        elif mn == 's_nop':
            self.kind = 'nop'
        elif mn.startswith(('s_cbranch', 's_branch', 's_endpgm', 's_setprio', 's_sleep', 's_set_gpr_idx')):
            self.kind = 'sctl'
        elif mn.startswith('s_cmp') or mn.startswith('s_bitcmp'):
            self.kind = 'salu'
            for o in ops:
                rd += R(o)
            wr = [('scc', 0)]
        elif mn.startswith('s_'):
            self.kind = 'salu'
            wr = R(ops[0])
            for o in ops[1:]:
                rd += R(o)
            if 'saveexec' in mn:
                wr += [('exec', 0)]
        else:
            raise ValueError('unknown instr ' + text)
        self.rd = rd
        self.wr = wr

    def slots(self):
        if self.kind == 'label':
            return 0
        if self.kind == 'nop':
            return int(self.text.split()[1]) + 1
        return 1


class WaitTag(I):
    def __init__(self, vm_tags=(), lgkm0=False, vm0=False, allbut=None):
        I.__init__(self, 's_waitcnt')
        self.need = (set(vm_tags), lgkm0, vm0, allbut)
        self.kind = 'waittag'


class Prog:
    def __init__(self):
        self.static = []

    def add(self, ins):
        if isinstance(ins, str):
            ins = I(ins)
        self.static.append(ins)
        return ins

    def emit(self):
        out = []
        for i in self.static:
            if i.kind == 'label':
                out.append(i.text)
                continue
            w = []
            if i.w_vm is not None:
                w.append(f'vmcnt({i.w_vm})')
            if i.w_lgkm is not None:
                w.append(f'lgkmcnt({i.w_lgkm})')
            n = i.nops
            if w:
                out.append('  s_waitcnt ' + ' '.join(w))
                n = max(0, n - 1) if i.kind != 'waittag' else n
            while n > 0:
                k = min(n, 16)
                out.append(f'  s_nop {k - 1}')
                n -= k
            if i.kind == 'waittag':
                continue
            out.append('  ' + i.text)
        return '\n'.join(out) + '\n'


def _minset(cur, v):
    return v if cur is None else min(cur, v)


def resolve_waits(trace):
    vm = []
    lg = []
    for ins in trace:
        if ins.kind == 'label':
            continue
        if ins.kind == 'wait':
            m = re.search(r'vmcnt\((\d+)\)', ins.text)
            if m:
                n = int(m.group(1))
                vm = vm[len(vm) - n:] if n < len(vm) else vm
                if n == 0:
                    vm = []
            m = re.search(r'lgkmcnt\((\d+)\)', ins.text)
            if m:
                n = int(m.group(1))
                lg = lg[len(lg) - n:] if n < len(lg) else lg
                if n == 0:
                    lg = []
            continue
        if ins.kind == 'waittag':
            tags, lgkm0, vm0, allbut = ins.need
            if vm0:
                ins.w_vm = 0
                vm = []
            else:
                last = -1
                for k, (r, t) in enumerate(vm):
                    if t in tags:
                        last = k
                if allbut is not None:
                    pos = [k for k, (r, t) in enumerate(vm) if t == allbut[0]]
                    if len(pos) > allbut[1]:
                        last = max(last, pos[len(pos) - allbut[1] - 1])
                if last >= 0:
                    n = min(len(vm) - 1 - last, 62)
                    ins.w_vm = _minset(ins.w_vm, n)
                    vm = vm[len(vm) - n:] if n else []
            if lgkm0:
                ins.w_lgkm = 0
                lg = []
            continue
        touched = set(ins.rd) | set(ins.wr)
        if ins.kind == 'smem' and ins.wr == [('s', 92)]:
            touched = set(ins.rd)
        if ins.kind == 'vmem' and ins.wr == [('v', 255)]:
            touched = set(ins.rd)
        if ins.kind == 'ds' and 'v[248:' in ins.text.split(',')[0] and 'offset' in ins.text and getattr(resolve_waits, 'dbg', False):
            touched = set(ins.rd)
        for q, name, cap in ((vm, 'vm', 62), (lg, 'lg', 14)):
            last = -1
            for k, (r, t) in enumerate(q):
                if r & touched:
                    last = k
            if last >= 0:
                if name == 'lg' and any(t == '__smem' for (_, t) in q):
                    n = 0
                else:
                    n = min(len(q) - 1 - last, cap)
                if name == 'vm':
                    ins.w_vm = _minset(ins.w_vm, n)
                    vm = vm[len(vm) - n:] if n else []
                else:
                    ins.w_lgkm = _minset(ins.w_lgkm, n)
                    lg = lg[len(lg) - n:] if n else []
        if ins.kind == 'vmem':
            if '_store' in ins.mn or '_atomic' in ins.mn:
                assert not ins.wr or True
                continue
            vm.append((set(ins.wr), ins.tag))
        elif ins.kind == 'ds':
            lg.append((set(ins.wr), ins.tag))
        elif ins.kind == 'smem':
            lg.append((set(ins.wr), '__smem'))


def resolve_hazards(trace):
    hist = []
    pos = 0
    WINDOW = 24
    for ins in trace:
        if ins.kind == 'label':
            continue
        if ins.kind == 'waittag':
            if ins.w_vm is not None or ins.w_lgkm is not None:
                pos += 1
            continue
        need = 0
        rd = set(ins.rd)
        wr = set(ins.wr)
        isv = ins.kind == 'valu'
        for (p, ppos) in reversed(hist):
            dist = pos - ppos
            if dist > WINDOW:
                break
            req = 0
            pw = set(p.wr)
            if p.kind == 'valu':
                pv = {r for r in pw if r[0] == 'v'}
                ps = {r for r in pw if r[0] in ('s', 'vcc')}
                pe = ('exec', 0) in pw
                if ins.kind == 'mfma' and (pv & rd):
                    req = max(req, 2)
                if isv and ins.isdpp and (pv & rd):
                    req = max(req, 2)
                if isv and ins.mn.startswith('v_permlane') and (pv & rd):
                    req = max(req, 2)
                if isv and ins.mn.startswith(('v_readfirstlane', 'v_readlane')) and (pv & rd):
                    req = max(req, 1)
                if isv and (ps & rd):
                    req = max(req, 2)
                    if ins.mn.startswith(('v_readlane', 'v_writelane')):
                        req = max(req, 4)
                if ins.kind == 'vmem' and (ps & rd):
                    req = max(req, 5)
                if ins.kind in ('salu', 'sctl', 'smem') and (ps & rd):
                    req = max(req, 1)
                if p.mn in TRANS and isv and (pv & rd):
                    req = max(req, 1)
                if ('sdwa' in p.mn or 'mixhi' in p.mn or 'mixlo' in p.mn or ('op_sel' in p.text and not p.mn.startswith('v_pk_'))) and isv and (pv & (rd | wr)):
                    req = max(req, 1)
                if pe and (ins.kind == 'mfma' or ins.isdpp):
                    req = max(req, 5)
            elif p.kind == 'mfma':
                d = pw
                big = {4: 8, 8: 12}[p.passes]
                if ins.kind == 'mfma':
                    if d & set(ins.srcab):
                        req = max(req, big)
                    c = set(ins.srcc)
                    if c & d:
                        if c == d and ins.passes == p.passes:
                            pass
                        else:
                            req = max(req, {4: 6, 8: 10}[p.passes])
                    elif d & wr:
                        req = max(req, {4: 6, 8: 10}[p.passes])
                elif ins.kind in ('valu', 'vmem', 'ds'):
                    if d & (rd | wr):
                        req = max(req, big)
                    if ins.kind == 'valu' and (set(p.srcc) & wr):
                        req = max(req, {4: 3, 8: 7}[p.passes])
            elif p.kind == 'salu':
                if ('m0', 0) in pw and ins.kind == 'vmem' and ins.lds_dma:
                    req = max(req, 1)
            elif p.kind == 'vmem':
                if p.store_data and (set(p.store_data) & wr):
                    req = max(req, 2)
            if req > dist:
                need = max(need, req - dist)
        if need > ins.nops:
            ins.nops = need
        pos += max(ins.nops, 1 if (ins.w_vm is not None or ins.w_lgkm is not None) else 0)
        pos += ins.slots()
        hist.append((ins, pos))
        if len(hist) > 64:
            hist = hist[-40:]
```

```python
ONE = 26


def rowfield(g, r):
    if r < 6:
        return 4 * r + g
    if r == 6:
        return 24 + (g & 1)
    return ONE if g == 3 else 24 + min(g, 1)


def elem(g, reg, hi):
    j, r = reg // 4, reg % 4
    sl = g + j
    gg, tw = sl % 4, (sl >= 4 and j == 2)
    if r == 3:
        return rowfield(gg, 6 + hi)
    return rowfield(gg, r + 3 * (hi ^ tw))


def st(a, b): return ((a, 0, b, 0), (a, 1, b, 1))
def cr(a, b): return ((a, 0, b, 1), (a, 1, b, 0))
def bl(a, b): return ((a, 0, b, 0), (a, 1, b, 0))


ZD = [st(0, 0), st(1, 1), st(2, 2), st(0, 1),
      cr(0, 1), st(0, 2), cr(0, 2), st(1, 2),
      cr(1, 2), bl(0, 3), bl(1, 3), bl(2, 3),
      ((0, 0, 0, 1), (1, 0, 1, 1)), ((2, 0, 2, 1), (3, 0, 3, 1))]
for u in range(3):
    ZD.append(bl(u, 7))
for u in range(3):
    for v in range(3):
        ZD += [st(u, 4 + v), cr(u, 4 + v)]
for u in range(3):
    ZD.append(st(u, 8 + u))
for (u, v) in ((0, 1), (0, 2), (1, 2)):
    ZD += [st(u, 8 + v), cr(u, 8 + v)]
assert len(ZD) == 44
_cov = {}
for n, d in enumerate(ZD):
    for h, (a, ha, b, hb) in enumerate(d):
        for g in range(4):
            p = tuple(sorted((elem(g, a, ha), elem(g, b, hb))))
            _cov.setdefault(p, []).append((n, h, g))
assert all(len(v) == 1 for v in _cov.values()) and len(_cov) == 352
assert [p for p in _cov if ONE in p] == [(25, ONE)]
assert all((j, k) in _cov for j in range(26) for k in range(j, 26))


def cls(reg, hi):
    f = [elem(g, reg, hi) for g in range(4)]
    return f[0], tuple(x - f[0] for x in f)


if __name__ == '__main__':
    cl = set()
    for d in ZD:
        for (a, ha, b, hb) in d:
            cl.add((cls(a, ha)[1], cls(b, hb)[1]))
    for c in sorted(cl):
        print(c)
```

```python
import sys, os, struct, argparse
sys.path.insert(0, os.path.dirname(os.path.abspath(__file__)))
from cinplan import ZD, cls
from asmlib import I, WaitTag, Prog, resolve_waits, resolve_hazards

KNAME = 'standalone__deep_cross_xdeepfm__recsys_kernel'
LDS_TOTAL = 163840

XSLOT = 16384
WR = 4 * XSLOT
WP = 640
WSLOT = 32 * WP
L_BIAS = WR + 4 * WSLOT
L_W2 = L_BIAS + WP
RB = 2 * XSLOT
RWR = 131072

ASZ = 35264
A1 = 1024
A2 = A1 + ASZ
A3 = A2 + ASZ
UST = 1356
V3OFF = A3 + ASZ
V2OFF = V3OFF + 2048
L_WCO = V2OFF + 1408
L_FLG = L_WCO + 192
RC = L_FLG + 64
XB0 = RC + 512
XPI = 1056
XBSZ = 4 * XPI
XB1 = A3
TA = A1
TC = TA + 11 * 1024
TD = TC + 11 * 1024
TB = A2
LL = TB + 11 * 1024
XSP = A1
XCH = XB0 + 8 * XBSZ
OOB = 0x100000
assert XCH + 8192 <= LDS_TOTAL and XB0 % 16 == 0 and A2 % 16 == 0 and A3 % 16 == 0 and L_WCO % 16 == 0
assert LL + 3072 <= A3 and 8 * XBSZ <= ASZ and TD + 11 * 1024 <= A2

S_WAVE = 3
S_IDX, S_TAB, S_CIN, S_WCO, S_W1, S_B1, S_W2, S_BO, S_OUT, S_DBG, S_WS = 4, 6, 8, 10, 12, 14, 16, 18, 20, 22, 24
S_MB, S_R = 26, 27
SRD_IDX, SRD_TAB, SRD_CIN, SRD_WCO, SRD_W, SRD_B1, SRD_W2, SRD_OUT, SRD_WS, SRD_DBG = 28, 32, 36, 40, 44, 48, 52, 56, 60, 64
S_T0, S_T1, S_T2, S_T3 = 68, 69, 70, 71
S_LOOP, S_IDXOFF, S_WSOFF, S_WMB, S_XM0, S_N0, S_C0, S_CW, S_BOUT, S_TW = 72, 73, 74, 75, 76, 77, 78, 79, 80, 81
S_EX = 82
S_GRP, S_RC = 84, 85
S_ST = 86
S_M26, S_MASK = 90, 92
S_SAMP, S_STG, S_STG9, S_TGT = 94, 95, 96, 97
S_M26B = 98
S_GW = 100
S_TAGT = 0
S_TAG = 1
S_PW = 101
S_PX = 77
S_PXE = 73

GELU_C0 = -2.0 * 0.7978845608028654 * 1.4426950408889634
GELU_C1 = GELU_C0 * 0.044715


def f32hex(x):
    return '0x%08x' % struct.unpack('<I', struct.pack('<f', x))[0]


def vr(a, n):
    return f'v[{a}:{a + n - 1}]' if n > 1 else f'v{a}'


def srd(a):
    return f's[{a}:{a + 3}]'


def flat(gs):
    res = []
    for c in gs:
        if isinstance(c, (tuple, list)):
            res += flat(c)
        else:
            res.append(c)
    return res


def interleave(a, b):
    out = []
    ia = ib = 0
    na, nb = len(a), len(b)
    while ia < na or ib < nb:
        if ib >= nb or (ia < na and ia * nb <= ib * na):
            out.append(a[ia]); ia += 1
        else:
            out.append(b[ib]); ib += 1
    return out


assert all((d * 2521) >> 16 == d // 26 for d in range(800))
assert all((d * 10923) >> 16 == d // 6 for d in range(64))
assert all((d * 1561) >> 16 == d // 42 for d in range(176))


DOC = '''; ---------------------------------------------------------------------------------------------
;
;       V3[h,k]  = sum_g wo[52+g] W3[g,h,k]          V2[i,j] = sum_h wo[26+h] W2[h,i,j]
;       U[i,j,k] = sum_h W2[h,i,j] V3[h,k]
;       g1[i]    = wo[i] + sum_j V2[i,j] x_j + sum_jk U[i,j,k] x_j x_k
;   Both quadratic forms use the 351 distinct products x_j x_k (j<=k) with symmetrised weights,
; Work split: per block of 128 samples, 5 workgroups do the DNN branch (128 x 336 output tiles) and
;   3 workgroups the CIN branch; partial logits go through d_ws (sc1) and a counter in d_debug,
;   the last arriver of a block adds them up and writes d_out.
; ---------------------------------------------------------------------------------------------
'''


class Gen:
    def __init__(self, opt):
        self.opt = opt
        self.P = Prog()
        self.role = 'x'

    def seq(self, lines):
        return [self.P.add(l) for l in flat(lines)]

    def build_srd(self, dst, ptr, size):
        return [f's_mov_b32 s{dst}, s{ptr}', f's_and_b32 s{dst + 1}, s{ptr + 1}, 0xffff',
                f's_mov_b32 s{dst + 2}, {size}', f's_mov_b32 s{dst + 3}, 0x20000']

    def stamp(self, slot):
        if self.opt.padat == f'{self.role}{slot}':
            return [f's_memrealtime s[88:89]', 's_waitcnt lgkmcnt(0)']
        if not self.opt.stamps:
            return []
        return [f's_memtime s[{S_ST}:{S_ST + 1}]', f's_memrealtime s[{S_ST + 2}:{S_ST + 3}]', 's_waitcnt lgkmcnt(0)',
                f'v_writelane_b32 v252, s{S_ST}, {slot}', f'v_writelane_b32 v253, s{S_ST + 2}, {slot}']

    def stamp_flush(self):
        if not self.opt.stamps:
            return []
        L = self.build_srd(SRD_WS, S_WS, 0x10000000)
        L += [f's_lshl_b32 s{S_C0}, s2, 3', f's_add_u32 s{S_C0}, s{S_C0}, s{S_WAVE}',
              f's_lshl_b32 s{S_C0}, s{S_C0}, 8', f's_add_u32 s{S_C0}, s{S_C0}, 0x100000',
              'v_lshlrev_b32 v254, 3, v0', 's_mov_b32 exec_hi, 0',
              f'buffer_store_dwordx2 v[252:253], v254, {srd(SRD_WS)}, s{S_C0} offen', 's_mov_b32 exec_hi, -1']
        return L

    def stamp0(self):
        if not self.opt.stamps:
            return []
        return ['v_mov_b32 v252, 0xcdcdcdcd', 'v_mov_b32 v253, 0xcdcdcdcd',
                f'v_writelane_b32 v252, s{S_ST}, 0', f'v_writelane_b32 v253, s{S_ST + 2}, 0'] + self.stamp(15)

    def tlb2(self, t):
        L = self.build_srd(SRD_WS, S_WS, 0x10000000) + self.build_srd(SRD_OUT, S_OUT, 8192) + self.build_srd(SRD_DBG, S_DBG, 256)
        L += [f's_load_dword s{S_BOUT}, s[{S_BO}:{S_BO + 1}], 0', f'v_mov_b32 v{t}, 0',
              ('s_mov_b64 exec, 1', f's_mov_b32 s{S_TW}, 0x80000',
               f'buffer_load_dword v255, v{t}, {srd(SRD_WS)}, s{S_TW} offen',
               f'buffer_load_dword v255, v{t}, {srd(SRD_OUT)}, 0 offen',
               f'buffer_load_dword v255, v{t}, {srd(SRD_DBG)}, 0 offen offset:128 sc1',
               's_mov_b64 exec, -1')]
        return L

    def tlb1(self, vtmp, vdst):
        if not self.opt.etlb:
            return self.build_srd(SRD_TAB, S_TAB, 100000 * 128)
        return self.build_srd(SRD_TAB, S_TAB, 100000 * 128) + [
            f'v_mov_b32 v{vtmp}, s{S_BOUT}', f'buffer_load_dword v{vdst}, v{vtmp}, {srd(SRD_TAB)}, 0 offen']

    def prologue(self):
        L = []
        if self.opt.padat == 'start':
            L += ['s_memrealtime s[88:89]']
        elif self.opt.padat:
            L += [f's_mov_b32 s88, {-1 if self.opt.padmin else 0}']
        if self.opt.stamps:
            L += [f's_memtime s[{S_ST}:{S_ST + 1}]', f's_memrealtime s[{S_ST + 2}:{S_ST + 3}]']
        L += ['s_cmp_ge_u32 s2, 256', 's_cbranch_scc1 L_end',
              's_load_dwordx16 s[4:19], s[0:1], 0',
              's_load_dwordx4 s[20:23], s[0:1], 64',
              's_load_dwordx2 s[24:25], s[0:1], 80',
              'v_lshrrev_b32 v1, 6, v0']
        if self.opt.cpf:
            L += [f's_getpc_b64 s[{S_MASK}:{S_MASK + 1}]', 'L_pc:',
                  f's_and_b32 s{S_T0}, s2, 0xf8', f'v_add_u32 v2, s{S_T0}, v1', 'v_lshlrev_b32 v2, 7, v2',
                  f'v_min_u32 v2, L_end-L_pc, v2',
                  f'v_mov_b32 v3, s{S_MASK + 1}',
                  f'v_add_co_u32 v2, vcc, s{S_MASK}, v2', 'v_addc_co_u32 v3, vcc, 0, v3, vcc',
                  'global_load_dword v255, v[2:3], off']
        L += ['v_and_b32 v0, 63, v0',
              f'v_readfirstlane_b32 s{S_WAVE}, v1',
              f's_and_b32 s{S_T0}, s2, 7', f's_lshl_b32 s{S_T0}, s{S_T0}, 2',
              f's_lshr_b32 s{S_MB}, s2, 6', f's_add_u32 s{S_MB}, s{S_MB}, s{S_T0}',
              f's_bfe_u32 s{S_R}, s2, 0x30003',
              f's_and_b32 s{S_BOUT}, s2, 0xf8', f's_add_u32 s{S_BOUT}, s{S_BOUT}, s{S_WAVE}', f's_lshl_b32 s{S_BOUT}, s{S_BOUT}, {self.opt.etlb}',
              f's_cmp_ge_u32 s{S_R}, 5', 's_cbranch_scc1 L_cin']
        return self.seq(L)

    def gelu(self, groups, TB, KC0, KC1, KONE):
        p2 = lambda r: vr(r, 2)
        L = []
        seen = set()
        for k, vals in enumerate(groups):
            tb = TB + (k % 2) * 16
            V_ = [(x, w, s_, tb + 4 * i_, tb + 4 * i_ + 2) for i_, (x, w, s_) in enumerate(vals)]
            for (x, w, s_, t, u) in V_:
                L.append(f'v_pk_mul_f32 {p2(t)}, {p2(x)}, {p2(x)}')
            for (x, w, s_, t, u) in V_:
                L.append(f'v_pk_fma_f32 {p2(t)}, {p2(t)}, {p2(KC1)}, {p2(KC0)}')
            for (x, w, s_, t, u) in V_:
                L.append(f'v_pk_mul_f32 {p2(t)}, {p2(t)}, {p2(x)}')
            for (x, w, s_, t, u) in V_:
                L += [f'v_exp_f32 v{t}, v{t}', f'v_exp_f32 v{t + 1}, v{t + 1}']
            for (x, w, s_, t, u) in V_:
                L.append(f'v_pk_mul_f32 {p2(u)}, {p2(x)}, {p2(w)}')
            for (x, w, s_, t, u) in V_:
                L.append(f'v_pk_add_f32 {p2(t)}, {p2(t)}, {p2(KONE)}')
            for (x, w, s_, t, u) in V_:
                L += [f'v_rcp_f32 v{t}, v{t}', f'v_rcp_f32 v{t + 1}, v{t + 1}']
            for (x, w, s_, t, u) in V_:
                if s_ in seen:
                    L.append(f'v_pk_fma_f32 {p2(s_)}, {p2(t)}, {p2(u)}, {p2(s_)}')
                else:
                    L.append(f'v_pk_mul_f32 {p2(s_)}, {p2(t)}, {p2(u)}')
                    seen.add(s_)
        if self.opt.nopk:
            import re as _re
            L2 = []
            for x in L:
                if x.startswith('v_pk_'):
                    mn = x.split()[0].replace('v_pk_', 'v_')
                    rs = [int(r) for r in _re.findall(r'v\[(\d+):', x)]
                    L2 += [f'{mn} ' + ', '.join(f'v{r + h}' for r in rs) for h in range(2)]
                else:
                    L2.append(x)
            L = L2
        return L

    def red4(self, SUMP):
        sm = lambda tm: SUMP + 2 * tm
        L = [f'v_add_f32 v{sm(tm)}, v{sm(tm)}, v{sm(tm) + 1}' for tm in range(4)]
        L += [f'v_permlane32_swap_b32 v{sm(tm)}, v{sm(tm + 2)}' for tm in range(2)]
        L += [f'v_add_f32 v{sm(tm)}, v{sm(tm)}, v{sm(tm + 2)}' for tm in range(2)]
        L += [f'v_permlane16_swap_b32 v{sm(0)}, v{sm(1)}', f'v_add_f32 v{sm(0)}, v{sm(0)}, v{sm(1)}']
        return L

    def kconst(self, KC0, KC1, KONE):
        return [f'v_mov_b32 v{KC0}, {f32hex(GELU_C0)}', f'v_mov_b32 v{KC0 + 1}, {f32hex(GELU_C0)}',
                f'v_mov_b32 v{KC1}, {f32hex(GELU_C1)}', f'v_mov_b32 v{KC1 + 1}, {f32hex(GELU_C1)}',
                f'v_mov_b32 v{KONE}, 1.0', f'v_mov_b32 v{KONE + 1}, 1.0']

    def dnn(self):
        o = self.opt
        self.role = 'd'
        vW = [[1, 2, 3, 4, 5], [6, 7, 8, 9, 10]]
        vX = [11, 12]
        vIdxOff, vCh = 13, [14, 15]
        ST = [16, 20]
        VO = 24
        vWD = [32, 33, 34]
        vP, vPc, vBL = 35, 36, 37
        WF = 40
        XA = 80
        T = 112
        W2F = 112
        ACC = 140
        PK = 220
        SUMP, KC0, KC1, KONE = 16, 232, 234, 236
        WL = 3

        def acc(tn, tm):
            return ACC + (tn * 4 + tm) * 4

        HH, SL = S_T0, S_T1
        g, i4, q = T + 18, T + 19, T + 20
        PI, vCW = T + 8, T + 12
        nr = o.coopw
        L = [f's_mul_i32 s{S_N0}, s{S_R}, {WP}',
             f's_mul_i32 s{S_T2}, s{S_WAVE}, 7', f'v_min_u32 v{q}, 6, v0', f'v_add_u32 v{q}, s{S_T2}, v{q}', f'v_min_u32 v{q}, 51, v{q}',
             f'v_lshrrev_b32 v{g}, 1, v{q}', f'v_mul_u32_u24 v{g}, 96, v{g}', f'v_lshl_add_u32 v{q}, v{q}, 2, v{g}',
             f's_mul_i32 s{S_C0}, s{S_R}, 26', f's_min_u32 s{S_C0}, s{S_C0}, 102', f's_lshl_b32 s{S_T3}, s{S_MB}, 7',
             f's_add_u32 s{S_C0}, s{S_C0}, s{S_T3}', f's_mul_i32 s{S_C0}, s{S_C0}, 104',
             f's_and_b32 s{S_T2}, s{S_MB}, 3', f's_lshl_b32 s{S_T2}, s{S_T2}, 3', f's_add_u32 s{S_T2}, s{S_T2}, s{S_WAVE}',
             f's_mul_i32 s{S_T2}, s{S_T2}, 3328', f's_add_u32 s{S_TW}, s{S_T2}, s{S_N0}',
             f'v_min_u32 v{vCW}, {8 * nr - 1}, v0', f'v_lshrrev_b32 v{g}, 3, v{vCW}', f's_mov_b32 s{S_T2}, {32 * 3328}',
             f'v_mul_u32_u24 v{g}, s{S_T2}, v{g}',
             f'v_and_b32 v{vCW}, 7, v{vCW}', f'v_min_u32 v{vCW}, 4, v{vCW}', f'v_lshl_add_u32 v{vCW}, v{vCW}, 7, v{g}',
             's_waitcnt lgkmcnt(0)']
        L += self.build_srd(SRD_IDX, S_IDX, 4096 * 104)
        L += [f'buffer_load_dwordx3 {vr(PI, 3)}, v{q}, {srd(SRD_IDX)}, s{S_C0} offen']
        L += self.tlb1(T + 24, 255)
        vec = lambda dst, sr: [f's_mov_b32 m0, {dst}', 's_mov_b32 exec_hi, 0xff',
                               I(f'buffer_load_dwordx4 v{vBL}, {srd(sr)}, s{S_N0} offen lds', tag='BIAS'), 's_mov_b64 exec, -1']
        L += [f'v_lshlrev_b32 v{vBL}, 4, v0'] + self.build_srd(SRD_B1, S_B1, 3328)
        L += self.build_srd(SRD_W, S_W1, 1664 * 3328)
        L += [f'buffer_load_dword v255, v{vCW}, {srd(SRD_W)}, s{S_TW} offen']
        L += vec(L_BIAS, SRD_B1)
        L += self.stamp0()
        L += [f's_lshr_b32 s{HH}, s{S_WAVE}, 2', f's_and_b32 s{SL}, s{S_WAVE}, 3',
              f's_lshl_b32 s{S_T2}, s{S_WAVE}, 4', f's_add_u32 s{S_T2}, s{S_T2}, s{S_T3}',
              f'v_lshrrev_b32 v{T + 16}, 3, v0', f'v_add_u32 v{T + 16}, s{S_T2}, v{T + 16}',
              f'v_mul_u32_u24 v{vIdxOff}, 104, v{T + 16}',
              f's_mul_i32 s{S_T3}, s{HH}, 192', f's_mov_b32 s{S_T2}, 1639', f's_and_b32 s{S_C0}, s{SL}, 1', f's_lshl_b32 s{S_C0}, s{S_C0}, 2',
              f's_mov_b32 s{S_TW}, 3328', f'v_add_u32 v{T + 16}, s{S_T3}, v0']
        for u in range(3):
            ci, rr = T + 16, T + 17
            L += [f'v_mul_u32_u24 v{rr}, s{S_T2}, v{ci}', f'v_lshrrev_b32 v{rr}, 16, v{rr}',
                  f'v_mul_u32_u24 v{q}, 40, v{rr}', f'v_sub_u32 v{q}, v{ci}, v{q}',
                  f'v_and_b32 v{i4}, 2, v{rr}', f'v_or_b32 v{i4}, s{S_C0}, v{i4}', f'v_xor_b32 v{q}, v{q}, v{i4}',
                  f'v_mul_u32_u24 v{rr}, s{S_TW}, v{rr}', f'v_lshl_add_u32 v{vWD[u]}, v{q}, 4, v{rr}']
            if u:
                L += [f'v_subrev_u32 v{vWD[u]}, {1024 * u}, v{vWD[u]}']
            if u < 2:
                L += [f'v_add_u32 v{ci}, 64, v{ci}']
        L += [f's_mul_i32 s{S_T2}, s{SL}, {8 * 3328}', f's_add_u32 s{S_WSOFF}, s{S_T2}, s{S_N0}',
              f's_mul_i32 s{S_WMB}, s{SL}, {8 * WP}', f's_mul_i32 s{S_T2}, s{HH}, 3072', f's_add_u32 s{S_WMB}, s{S_WMB}, s{S_T2}',
              f's_lshl_b32 s{S_XM0}, s{S_WAVE}, 11',
              f'v_and_b32 v{q}, 7, v0', f'v_lshrrev_b32 v{g}, 4, v0',
              f'v_xor_b32 v{q}, v{q}, v{g}', f'v_lshlrev_b32 v{vCh[0]}, 4, v{q}',
              f'v_xor_b32 v{vCh[1]}, 64, v{vCh[0]}']
        L += self.build_srd(SRD_W2, S_W2, 3328)
        L += [f's_lshr_b32 s{S_T2}, s{S_WAVE}, 1', f's_mul_i32 s{S_T3}, s{S_T2}, 5',
              f'v_bfe_u32 v{i4}, v0, 2, 2', f'v_lshl_add_u32 v{q}, v{g}, 3, v{i4}', f'v_mul_u32_u24 v{q}, {WP}, v{q}',
              f'v_and_b32 v{i4}, 3, v0', f'v_lshl_add_u32 v{q}, v{i4}, 3, v{q}', f'v_add_u32 v{q}, {WR}, v{q}',
              f'v_bfe_u32 v{i4}, v0, 3, 2']
        for i in range(5):
            L += [f'v_xor_b32 v{T + 16}, s{S_T3}, v{i4}', f'v_lshl_add_u32 v{vW[0][i]}, v{T + 16}, 5, v{q}',
                  f'v_add_u32 v{vW[1][i]}, {2 * WSLOT}, v{vW[0][i]}', f's_add_u32 s{S_T3}, s{S_T3}, 1']
        L += [f's_mul_i32 s{S_T3}, s{S_T2}, 160', f's_add_u32 s{S_T3}, s{S_T3}, {L_BIAS}',
              f'v_lshlrev_b32 v{q}, 3, v{g}', f'v_add_u32 v{vP}, s{S_T3}, v{q}',
              f'v_and_b32 v{q}, 15, v0', f'v_lshlrev_b32 v{q}, 7, v{q}',
              f'v_bfe_u32 v{i4}, v0, 1, 3', f'v_xor_b32 v{i4}, v{i4}, v{g}',
              f'v_lshl_add_u32 v{q}, v{i4}, 4, v{q}',
              f's_lshl_b32 s{S_T3}, s{S_C0}, 11', f'v_add_u32 v{vX[0]}, s{S_T3}, v{q}', f'v_xor_b32 v{vX[1]}, 64, v{vX[0]}',
              f's_lshl_b32 s{S_T2}, s{S_WAVE}, 8', f's_add_u32 s{S_T2}, s{S_T2}, {RB}',
              f'v_lshlrev_b32 v{vPc}, 2, v0', f'v_add_u32 v{vPc}, s{S_T2}, v{vPc}']

        def wld(u):
            return I(f'buffer_load_dwordx4 v{vWD[u]}, {srd(SRD_W)}, s{S_WSOFF} offen offset:{1024 * u} lds', tag='W')
        wadv = f's_add_u32 s{S_WSOFF}, s{S_WSOFF}, {32 * 3328}'

        def xld(f, pc, tag, slot=None):
            slot = f if slot is None else slot
            return [f's_add_u32 m0, s{S_XM0}, {slot * XSLOT + pc * 1024}',
                    I(f'buffer_load_dwordx4 v{VO + 2 * f + pc}, {srd(SRD_TAB)}, 0 offen lds', tag=tag)]
        pkreads = lambda off: [f'ds_read_b64 {vr(PK + 2 * tn, 2)}, v{vP} offset:{off + 32 * tn}' for tn in range(5)]

        def unp(dst):
            c = []
            for tn in range(5):
                for d in range(2):
                    c += [f'v_lshlrev_b32 v{dst(tn) + 2 * d}, 16, v{PK + 2 * tn + d}', f'v_and_b32 v{dst(tn) + 2 * d + 1}, 0xffff0000, v{PK + 2 * tn + d}']
            return c

        def reads(k8):
            par = k8 % 2
            sl = k8 % 4
            wo = (sl % 2) * WSLOT
            xo = ((k8 // 2) % 4) * XSLOT
            R = [f'ds_read_b128 {vr(XA + 16 * par + 4 * tm, 4)}, v{vX[par]} offset:{xo + tm * 2048}' for tm in range(4)]
            R += [f'ds_read_b64_tr_b16 {vr(WF + 20 * par + 4 * tn + 2 * rd, 2)}, v{vW[sl // 2][tn]} offset:{wo + rd * 4 * WP}' for tn in range(5) for rd in range(2)]
            return R

        trs = [[], []]
        nsk = [0]

        def flush():
            nonlocal L
            c = self.seq(L)
            trs[0] += c; trs[1] += c
            L = []

        def wstage_p(slot):
            nonlocal L
            nsk[0] += 1
            L += [f's_add_u32 m0, s{S_WMB}, {WR + slot * WSLOT}', f's_cmp_lg_u32 s{HH}, 0', wld(0), wld(1), f's_cbranch_scc1 L_wsk{nsk[0]}']
            flush()
            trs[0] += self.seq([wld(2)])
            L += [f'L_wsk{nsk[0]}:', wadv]
        L += [f'v_lshlrev_b32 v{PI}, 7, v{PI}']
        L += [f'buffer_load_dwordx4 {vr(T + 4 * pc, 4)}, v{vIdxOff}, {srd(SRD_IDX)}, 0 offen offset:{pc * 832}' for pc in range(2)] + ['s_barrier']
        L += [f'buffer_load_dword v255, v{PI}, {srd(SRD_TAB)}, 0 offen',
              f'v_lshlrev_b32 v{PI + 2}, 7, v{PI + 2}', f'buffer_load_dword v255, v{PI + 2}, {srd(SRD_TAB)}, 0 offen']
        L += self.stamp(6)
        wstage_p(0)
        L += [WaitTag(vm_tags=['BIAS'])] + pkreads(0) + unp(lambda tn: acc(tn, 0))
        L += [f'v_mov_b64 {vr(acc(tn, tm) + 2 * d, 2)}, {vr(acc(tn, 0) + 2 * d, 2)}' for tn in range(5) for tm in range(1, 4) for d in range(2)]
        for f in range(4):
            for pc in range(2):
                L.append(f'v_lshl_add_u32 v{VO + 2 * f + pc}, v{T + 4 * pc + f}, 7, v{vCh[pc]}')
                if f < 2:
                    L += xld(f, pc, 'X0' if f == 0 else 'X')
            if f == 0:
                L += self.stamp(7) + ['s_barrier']
                wstage_p(1)
        L += [f'buffer_load_dwordx4 {vr(ST[pc], 4)}, v{vIdxOff}, {srd(SRD_IDX)}, 0 offen offset:{pc * 832 + 12}' for pc in range(2)]
        L += [f's_mov_b32 s{S_LOOP}, 0', f's_mov_b32 s{S_IDXOFF}, 28']
        L.append(WaitTag(vm_tags=['X0'], lgkm0=True))
        L += self.stamp(1) + ['s_barrier'] + self.stamp(2)
        L += reads(0)
        wstage_p(2)
        L += xld(2, 0, 'X') + [f'v_mov_b32 v{VO + 7}, v{VO + 5}', f's_cmp_lg_u32 s{HH}, 0', 's_cbranch_scc1 L_dnn_h1']
        flush()

        def mf(tn, tm, par):
            a = acc(tn, tm)
            return f'v_mfma_f32_16x16x32_bf16 {vr(a, 4)}, {vr(WF + 20 * par + 4 * tn, 4)}, {vr(XA + 16 * par + 4 * tm, 4)}, {vr(a, 4)}'

        def step(n, inloop, half):
            n8 = n % 8
            par = n8 % 2
            NW = 3 - half
            M = [mf(tn, tm if tn % 2 == 0 else 3 - tm, par) for tn in range(5) for tm in range(4)]
            R, D_, E = [], [], []
            wst = lambda slot: [(f's_add_u32 m0, s{S_WMB}, {WR + slot * WSLOT}', wld(0))] + [(wld(u),) for u in range(1, NW - 1)] + [(wld(NW - 1), wadv)]
            if inloop or n < 51:
                R = reads((n8 + 1) % 8)
            if inloop:
                D_ += wst((n8 + WL) % 4)
                f = ((n8 + 7) % 8) // 2
                D_ += [tuple(xld(f, 1 - par, 'X', (f + WL) % 4))]
                if n8 == 0:
                    for ff in range(4):
                        for pc in range(2):
                            E.append(f'v_lshl_add_u32 v{VO + 2 * ff + pc}, v{ST[pc] + ff}, 7, v{vCh[pc]}')
                if n8 == 1:
                    for pc in range(2):
                        E.append(f'buffer_load_dwordx4 {vr(ST[pc], 4)}, v{vIdxOff}, {srd(SRD_IDX)}, s{S_IDXOFF} offen offset:{pc * 832}')
                    E.append(f's_add_u32 s{S_IDXOFF}, s{S_IDXOFF}, 16')
                if n8 == 7:
                    E += [f's_add_u32 s{S_LOOP}, s{S_LOOP}, 1', f's_cmp_lt_u32 s{S_LOOP}, 6']
                W_ = [WaitTag(allbut=('W', NW), lgkm0=True)]
            elif n == 48:
                W_ = [WaitTag(allbut=('W', NW), lgkm0=True)]
                D_ += wst(3)
                E += [tuple(vec(L_W2, SRD_W2))]
                if half == 0:
                    E += self.tlb2(PK)
            elif n == 49:
                W_ = [WaitTag(vm0=True, lgkm0=True)]
                E += self.kconst(KC0, KC1, KONE)
            elif n == 50:
                W_ = ['s_waitcnt lgkmcnt(0)']
                E += pkreads(WP)
            else:
                W_ = []
                E += unp(lambda tn: W2F + 4 * tn)
            fill = interleave(R, D_) + E
            S = ['s_barrier'] if (inloop or n < 51) else []
            if half == 0:
                k = o.aov
                S += M[:len(M) - k] + interleave(M[len(M) - k:], fill[:2 * k]) + fill[2 * k:] + W_
            else:
                kb = o.bov
                if n == 51 and not inloop and o.eprio:
                    S += ['s_setprio 3']
                S += fill + M[:len(M) - kb] + W_ + M[len(M) - kb:]
                if n == 51 and not inloop and o.eprio == 1:
                    S += ['s_setprio 0']
            return S

        for half in range(2):
            th = trs[half]
            th += self.seq([f'L_dnn_h{half}:', WaitTag(allbut=('W', 3 - half), lgkm0=True)])
            body = self.seq([f'L_dnn_loop{half}:'])
            for n8 in range(8):
                S = step(n8, True, half)
                if n8 == 7:
                    if o.stamps and o.itst:
                        S = [f's_memtime s[{S_ST}:{S_ST + 1}]', f's_memrealtime s[{S_ST + 2}:{S_ST + 3}]', f's_add_u32 s{S_C0}, s{S_LOOP}, 8', 's_waitcnt lgkmcnt(0)',
                             f's_mov_b32 m0, s{S_C0}', f'v_writelane_b32 v252, s{S_ST}, m0', f'v_writelane_b32 v253, s{S_ST + 2}, m0'] + S
                    S += [f's_cbranch_scc1 L_dnn_loop{half}']
                body += self.seq(S)
            for it in range(6):
                th += body
            for n in range(48, 52):
                th += self.seq(step(n, False, half))
            if half == 0:
                th += self.seq(['s_branch L_epi'])
        p2 = lambda r: vr(r, 2)
        el = lambda tn, tm, d: (acc(tn, tm) + 2 * d, W2F + 4 * tn + 2 * d, SUMP + 2 * tm)
        L = ['L_epi:'] + self.stamp(3) + self.pubprep_s()
        L += [f's_lshl_b32 s{S_T1}, s{S_R}, 11', f's_and_b32 s{S_T3}, s{S_MB}, 3', f's_lshl_b32 s{S_T3}, s{S_T3}, 9',
              f's_add_u32 s{S_T1}, s{S_T1}, s{S_T3}', f's_add_u32 s{S_T1}, s{S_T1}, s{S_T0}', 'v_lshlrev_b32 v3, 3, v0', f'v_add_u32 v2, {RB}, v3'] + self.pubprep_v()
        L += self.gelu([[el(tn, tm, d) for tm in range(4)] for tn in range(5) for d in range(2)], WF, KC0, KC1, KONE)
        L += self.red4(SUMP) + [f'ds_write_b32 v{vPc}, v{SUMP}', 's_waitcnt lgkmcnt(0)'] + self.stamp(4) + self.stamp_flush()
        L += ['s_barrier', f's_cmp_lg_u32 s{S_WAVE}, 0', 's_cbranch_scc1 L_end']
        A = 64
        L += [f'ds_read_b64 {vr(A + 2 * qq, 2)}, v2 offset:{qq * 512}' for qq in range(4)]
        L += [f'v_pk_add_f32 {p2(A)}, {p2(A)}, {p2(A + 2)}', f'v_pk_add_f32 {p2(A + 4)}, {p2(A + 4)}, {p2(A + 6)}', f'v_pk_add_f32 {p2(A)}, {p2(A)}, {p2(A + 4)}',
              f'buffer_store_dwordx2 {vr(A, 2)}, v3, {srd(SRD_WS)}, s{S_T1} offen sc1']
        tr = self.seq(L)

        L = ['L_pub:'] + (self.stamp(16) if o.diag else [])
        if o.padat:
            L += ([f's_not_b32 s88, s88'] if o.padmin else []) + ['v_mov_b32 v7, s88', 'v_mov_b32 v8, 4', 's_mov_b64 exec, 1',
                  f'buffer_atomic_umax v7, v8, {srd(SRD_DBG)}, 0 offen', 's_mov_b64 exec, -1']
        L += ['s_mov_b64 exec, 1', 's_waitcnt vmcnt(0)',
              f'buffer_atomic_add v5, v6, {srd(SRD_DBG)}, 0 offen sc0',
              's_waitcnt vmcnt(0)'] + (self.stamp(18) if o.diag else []) + [
              's_mov_b64 exec, -1',
              f'v_readfirstlane_b32 s{S_T3}, v5',
              f's_cmp_lg_u32 s{S_T3}, 31', 's_cbranch_scc1 L_end']
        for qq in range(7):
            if qq % 2 == 0 and qq:
                L.append(f's_add_u32 s{S_T0}, s{S_T0}, 4096')
            for hh in range(2):
                L.append(f'buffer_load_dwordx4 {vr(A + 8 * qq + 4 * hh, 4)}, v4, {srd(SRD_WS)}, s{S_T0} offen offset:{(qq % 2) * 2048 + 16 * hh} sc1')
        L += [f's_lshl_b32 s{S_T0}, s{S_T2}, 5', 'v_lshlrev_b32 v1, 4, v0', 's_waitcnt lgkmcnt(0)', f's_lshl_b32 s{S_BOUT}, s{S_BOUT}, 16']
        for qq in range(1, 7):
            L += [f'v_pk_add_f32 {p2(A + 2 * k)}, {p2(A + 2 * k)}, {p2(A + 8 * qq + 2 * k)}' for k in range(4)]
        L += [f'v_add_f32 v{A + k}, s{S_BOUT}, v{A + k}' for k in range(8)]
        L += [f'v_cvt_pk_bf16_f32 v{A + k}, v{A + 2 * k}, v{A + 2 * k + 1}' for k in range(4)]
        if o.padat:
            L += ['L_padspin:', f'buffer_load_dword v7, v8, {srd(SRD_DBG)}, 0 offen sc1', 's_waitcnt vmcnt(0)', 's_memrealtime s[86:87]',
                  'v_readfirstlane_b32 s88, v7', 's_waitcnt lgkmcnt(0)', 's_nop 4'] + (['s_not_b32 s88, s88'] if o.padmin else []) + [
                  's_sub_u32 s86, s86, s88', 's_cmp_lt_i32 s86, 6000', 's_cbranch_scc1 L_padspin']
        L += [f'buffer_store_dwordx4 {vr(A, 4)}, v1, {srd(SRD_OUT)}, s{S_T0} offen']
        L += self.stamp(5) + self.stamp_flush()
        L += ['s_endpgm']
        self.pub = self.seq(L)
        return [trs[0] + tr + self.pub, trs[1] + tr + self.pub]

    def pubprep_s(self):
        L = self.build_srd(SRD_WS, S_WS, 0x10000000) + self.build_srd(SRD_OUT, S_OUT, 8192) + self.build_srd(SRD_DBG, S_DBG, 256)
        L += [f's_and_b32 s{S_T2}, s2, 7', f's_lshl_b32 s{S_T0}, s{S_T2}, 14', f's_lshl_b32 s{S_T2}, s{S_T2}, 5']
        return L

    def pubprep_v(self):
        return ['v_lshlrev_b32 v4, 5, v0', 'v_mov_b32 v5, 1', f'v_mov_b32 v6, s{S_T2}']

    def rem(self):
        o = self.opt
        self.role = 'r'
        vW = [1, 2, 7, 8]
        vX = [11, 12]
        vWD, vCh, vT, VO = 13, [14, 15], 9, 24
        SUMP = 16
        IDX = 32
        WF, XA = 64, 96
        ACC = 160
        W2F = 224
        PK = 128
        KC0, KC1, KONE = 240, 242, 244
        g, i4, q = 246, 247, 248
        S_F = S_IDXOFF
        acc = lambda tn, tm: ACC + (tn * 4 + tm) * 4
        L = ['L_rem:', f's_and_b32 s{S_T0}, s2, 7', f's_lshl_b32 s{S_T0}, s{S_T0}, 3', f's_add_u32 s{S_T0}, s{S_T0}, s{S_WAVE}',
             f's_mul_i32 s{S_T0}, s{S_T0}, {64 * 104}', f's_lshl_b32 s{S_XM0}, s{S_WAVE}, 14',
             f'v_lshlrev_b32 v{q}, 4, v0', f'v_lshrrev_b32 v{g}, 4, v0',
             f'v_lshrrev_b32 v{i4}, 3, v0', f'v_mul_u32_u24 v{vWD}, 3328, v{i4}', f'v_and_b32 v{i4}, 2, v{i4}',
             f's_and_b32 s{S_T1}, s{S_WAVE}, 1', f's_lshl_b32 s{S_T1}, s{S_T1}, 2', f'v_or_b32 v{i4}, s{S_T1}, v{i4}',
             f'v_and_b32 v{vT}, 7, v0', f'v_xor_b32 v{i4}, v{i4}, v{vT}', f'v_lshl_add_u32 v{vWD}, v{i4}, 4, v{vWD}',
             f's_mul_i32 s{S_WSOFF}, s{S_WAVE}, {8 * 3328}', f's_add_u32 s{S_WSOFF}, s{S_WSOFF}, 3200',
             f's_lshl_b32 s{S_WMB}, s{S_WAVE}, 10', f's_add_u32 s{S_WMB}, s{S_WMB}, {RWR}',
             's_waitcnt lgkmcnt(0)']
        L += self.build_srd(SRD_IDX, S_IDX, 4096 * 104)
        for u in range(7):
            L += [f's_add_u32 m0, s{S_XM0}, {8192 + u * 1024}', I(f'buffer_load_dwordx4 v{q}, {srd(SRD_IDX)}, s{S_T0} offen lds', tag='I'),
                  f's_add_u32 s{S_T0}, s{S_T0}, 1024']
        L += self.build_srd(SRD_W, S_W1, 1664 * 3328)
        wld = lambda slot: [f's_add_u32 m0, s{S_WMB}, {slot * 8192}', I(f'buffer_load_dwordx4 v{vWD}, {srd(SRD_W)}, s{S_WSOFF} offen lds', tag='W'),
                            f's_add_u32 s{S_WSOFF}, s{S_WSOFF}, {64 * 3328}']
        L += wld(0) + wld(1) + wld(2)
        L += self.build_srd(SRD_B1, S_B1, 3328) + self.build_srd(SRD_W2, S_W2, 3328) + self.build_srd(SRD_TAB, S_TAB, 100000 * 128)
        L += [f'v_lshlrev_b32 v{q}, 3, v{g}']
        L += [f'buffer_load_dwordx2 {vr(PK + 2 * tn, 2)}, v{q}, {srd(SRD_B1)}, 0 offen offset:{3200 + 32 * tn}' for tn in range(4)]
        L += [f'buffer_load_dwordx2 {vr(PK + 8 + 2 * tn, 2)}, v{q}, {srd(SRD_W2)}, 0 offen offset:{3200 + 32 * tn}' for tn in range(4)]
        L += self.stamp0()
        L += [f'v_xor_b32 v{q}, v{vT}, v{g}', f'v_lshlrev_b32 v{vCh[0]}, 4, v{q}', f'v_xor_b32 v{vCh[1]}, 64, v{vCh[0]}',
              f'v_bfe_u32 v{i4}, v0, 2, 2', f'v_lshl_add_u32 v{q}, v{g}, 3, v{i4}', f'v_lshlrev_b32 v{q}, 7, v{q}',
              f'v_and_b32 v{i4}, 3, v0', f'v_lshl_add_u32 v{q}, v{i4}, 3, v{q}', f'v_add_u32 v{q}, {RWR}, v{q}',
              f'v_bfe_u32 v{i4}, v0, 3, 2', f'v_lshl_add_u32 v{vW[0]}, v{i4}, 5, v{q}']
        L += [f'v_xor_b32 v{vW[i]}, {32 * i}, v{vW[0]}' for i in range(1, 4)]
        L += [f'v_and_b32 v{q}, 15, v0', f'v_lshlrev_b32 v{q}, 7, v{q}',
              f'v_bfe_u32 v{i4}, v0, 1, 3', f'v_xor_b32 v{i4}, v{i4}, v{g}', f'v_lshl_add_u32 v{q}, v{i4}, 4, v{q}',
              f'v_add_u32 v{vX[0]}, s{S_XM0}, v{q}', f'v_xor_b32 v{vX[1]}, 64, v{vX[0]}',
              f'v_lshrrev_b32 v{i4}, 3, v0', f'v_lshl_add_u32 v{q}, v{vT}, 3, v{i4}', f'v_mul_u32_u24 v{q}, 104, v{q}', f'v_add_u32 v{q}, s{S_XM0}, v{q}']
        L += self.kconst(KC0, KC1, KONE) + [WaitTag(vm_tags=['I'])]
        L += [f'ds_read_b64 {vr(IDX + 2 * k, 2)}, v{q} offset:{8192 + 8 * k}' for k in range(13)]

        def xld(src, slot):
            c = [tuple(f'v_add_u32_dpp v{VO + pc}, v{src}, v{vCh[pc % 2]} row_newbcast:{8 * hh + pc} row_mask:0xf bank_mask:{hex(3 << (2 * hh))}'
                       for hh in range(2) for pc in range(4 * k, 4 * k + 4)) for k in range(2)]
            d = [(f's_add_u32 m0, s{S_XM0}, {slot * 8192 + pc * 1024}',
                  I(f'buffer_load_dwordx4 v{VO + pc}, {srd(SRD_TAB)}, 0 offen lds', tag='X')) for pc in range(8)]
            return c[:1] + d[:4] + c[1:] + d[4:]
        L += [f'v_mov_b32 v{VO + pc}, 0' for pc in range(8)]
        L += [f'v_lshlrev_b32 v{IDX}, 7, v{IDX}'] + xld(IDX, 0)
        L += [f'v_lshlrev_b32 v{IDX + k}, 7, v{IDX + k}' for k in range(25, 0, -1)] + xld(IDX + 1, 1)
        for tn in range(4):
            for d in range(2):
                L += [f'v_lshlrev_b32 v{acc(tn, 0) + 2 * d}, 16, v{PK + 2 * tn + d}', f'v_and_b32 v{acc(tn, 0) + 2 * d + 1}, 0xffff0000, v{PK + 2 * tn + d}',
                      f'v_lshlrev_b32 v{W2F + 4 * tn + 2 * d}, 16, v{PK + 8 + 2 * tn + d}', f'v_and_b32 v{W2F + 4 * tn + 2 * d + 1}, 0xffff0000, v{PK + 8 + 2 * tn + d}']
        L += [f'v_mov_b64 {vr(acc(tn, tm) + 2 * d, 2)}, {vr(acc(tn, 0) + 2 * d, 2)}' for tn in range(4) for tm in range(1, 4) for d in range(2)]

        rdx = lambda fp: [f'ds_read_b128 {vr(XA + 32 * fp + 16 * par + 4 * tm, 4)}, v{vX[par]} offset:{fp * 8192 + tm * 2048}' for par in range(2) for tm in range(4)]
        rdw = lambda fp, par: [f'ds_read_b64_tr_b16 {vr(WF + 16 * par + 4 * tn + 2 * rd, 2)}, v{vW[tn]} offset:{fp * 8192 + par * 4096 + rd * 512}'
                               for tn in range(4) for rd in range(2)]

        def mm(fp, par):
            return [f'v_mfma_f32_16x16x32_bf16 {vr(acc(tn, tm), 4)}, {vr(WF + 16 * par + 4 * tn, 4)}, {vr(XA + 32 * fp + 16 * par + 4 * tm, 4)}, {vr(acc(tn, tm), 4)}'
                    for tn in range(4) for tm in (range(4) if tn % 2 == 0 else range(3, -1, -1))]
        L += [f's_mov_b32 s{S_F}, 2', WaitTag(allbut=('X', 8)), 's_barrier'] + self.stamp(2) + rdx(0) + rdw(0, 0)
        tr = self.seq(L)
        L = ['L_rem_loop:']
        for fp in range(2):
            L += [f's_min_u32 s{S_TW}, s{S_F}, 25', f's_set_gpr_idx_on s{S_TW}, gpr_idx(SRC0)', 's_nop 0', f'v_mov_b32 v{vT}, v{IDX}', 's_set_gpr_idx_off',
                  f's_add_u32 s{S_F}, s{S_F}, 1']
            L += interleave(mm(fp, 0), interleave(xld(vT, fp), rdw(fp, 1)))
            L += [WaitTag(allbut=('X', 8), lgkm0=True), 's_barrier']
            if fp == 1:
                L += [f'v_xor_b32 v{vW[i]}, 16384, v{vW[i]}' for i in range(4)]
            sx = (f's_xor_b32 s{S_WMB}, s{S_WMB}, 16384',)
            wl = [sx + tuple(wld(1)) + sx] if fp == 0 else [tuple(wld(0)) + sx]
            L += interleave(mm(fp, 1), wl + rdx(1 - fp) + rdw(1 - fp, 0))
        L += [f's_cmp_lt_u32 s{S_F}, 28', 's_cbranch_scc1 L_rem_loop']
        body = self.seq(L)
        el = lambda tn, tm, d: (acc(tn, tm) + 2 * d, W2F + 4 * tn + 2 * d, SUMP + 2 * tm)
        L = self.stamp(3) + self.pubprep_s() + [f's_load_dword s{S_BOUT}, s[{S_BO}:{S_BO + 1}], 0',
             f's_lshl_b32 s{S_T1}, s{S_WAVE}, 8', f's_add_u32 s{S_T1}, s{S_T1}, s{S_T0}', f's_add_u32 s{S_T1}, s{S_T1}, {5 * 2048}',
             'v_lshlrev_b32 v3, 2, v0', 's_waitcnt lgkmcnt(0)'] + self.pubprep_v()
        L += self.gelu([[el(tn, tm, d) for tm in range(4)] for tn in range(4) for d in range(2)], WF, KC0, KC1, KONE)
        L += self.red4(SUMP) + [f'buffer_store_dword v{SUMP}, v3, {srd(SRD_WS)}, s{S_T1} offen sc1'] + self.stamp(4) + self.stamp_flush()
        L += ['s_waitcnt vmcnt(0)', 's_barrier', f's_cmp_lg_u32 s{S_WAVE}, 0', 's_cbranch_scc1 L_end', 's_branch L_pub']
        return [tr + body * 3 + self.seq(L) + self.pub]

    def cin(self):
        o = self.opt
        self.role = 'c'
        cw = S_CW
        S_BCUR, S_BD, S_EXP, S_EXPC, S_PREV, S_SC, S_PH = 74, 75, 48, 49, 50, 51, 97
        S_CHK = S_M26
        vFA, vFR, vOne, vF, vFG, vFGa = 1, 2, 3, 4, 5, 6
        vRaw, vLin, vLinB, vXw, vX1, vX2, vSh, vAcc, vOr, vSI, vXi, vC16, vPWL, vPXL, PXR = range(7, 22)
        FT, XI, aD, aS, aLc, aC = 22, 24, 28, 29, 30, 31
        RAW, X, RZ, D = 32, 40, 52, 68
        WA, WB, WC, WS_, WL = 84, 128, 172, 216, 240
        Da, Db, Dc, Ds = D, D + 4, D + 8, D + 12
        T = 40
        half, i32, t3, t4, t5, vg, vm = T + 1, T + 2, T + 3, T + 4, T + 5, T + 6, T + 7
        vStg = 48
        GB = 49
        vMx, vWr, vL6, vL, vLw, vWo = range(62, 68)
        AD = 68
        vA3, vBs0, vBs1a, vBs1b, vUw, vV2w, vE, V3T = 240, 241, 242, 243, 244, 245, 246, 81
        BALL, UP, AFR, DALL = 84, 84, 132, 140
        BT, SUM, OUT = 216, 84, 132
        XJ = 204
        F_W3, F_W2, F_RDY, F_M, M_X, F_PEEL = 0, 4, 8, 16, 20, 12
        nsync = [0]

        def sig(off, A=vFA, **kw):
            return [WaitTag(lgkm0=True, **kw), f'ds_add_u32 v{A}, v{vOne} offset:{off}']

        def wait(off, tgt, R=vFR):
            nsync[0] += 1
            lab = f'L_csync{nsync[0]}'
            return [f'{lab}:', f'ds_read_b32 v{vF}, v{R} offset:{off}', 's_waitcnt lgkmcnt(0)',
                    f'v_cmp_gt_u32 vcc, {tgt}, v{vF}', f's_cbranch_vccnz {lab}']

        def dppred(op, r):
            return [f'{op}_dpp v{r}, v{r}, v{r} {ctl} row_mask:{rm} bank_mask:0xf'
                    for (ctl, rm) in (('row_shr:1', '0xf'), ('row_shr:2', '0xf'), ('row_shr:4', '0xf'), ('row_shr:8', '0xf'),
                                      ('row_bcast:15', '0xa'), ('row_bcast:31', '0xc'))]

        def absmax(dst, regs):
            c = [f'v_max3_f32 v{dst}, abs(v{regs[0]}), abs(v{regs[1]}), abs(v{regs[2]})']
            k = 3
            while k < len(regs):
                b = regs[k + 1] if k + 1 < len(regs) else regs[k]
                c.append(f'v_max3_f32 v{dst}, v{dst}, abs(v{regs[k]}), abs(v{b})')
                k += 2
            return c

        def waitmax(R, off, dst_e):
            nsync[0] += 1
            lab = f'L_csync{nsync[0]}'
            return [f'{lab}:', f'ds_read_b64 {vr(T, 2)}, v{R} offset:{off}', 's_waitcnt lgkmcnt(0)',
                    f'v_cmp_gt_u32 vcc, 4, v{T}', f's_cbranch_vccnz {lab}',
                    f'v_readfirstlane_b32 s{dst_e}, v{T + 1}',
                    f's_lshr_b32 s{dst_e}, s{dst_e}, 23', f's_sub_i32 s{dst_e}, 141, s{dst_e}', f's_min_i32 s{dst_e}, s{dst_e}, 40']

        S_C, S_CNT, S_ST0 = S_R, S_MB, 98
        L = ['L_cin:', f's_and_b32 s{S_T0}, s{S_MB}, 3', f's_mul_i32 s{S_T0}, s{S_T0}, 3', f's_add_u32 s{S_C}, s{S_T0}, s{S_R}',
             f's_sub_u32 s{S_C}, s{S_C}, 6', 's_cbranch_scc1 L_rem',
             f's_and_b32 s{cw}, s{S_WAVE}, 3', f's_lshr_b32 s{S_GRP}, s{S_WAVE}, 2',
             f's_lshl_b32 s{S_GW}, s{S_C}, 3', f's_add_u32 s{S_GW}, s{S_GW}, s{S_WAVE}',
             f's_mul_i32 s{S_T0}, s{S_GW}, {10 * 128}',
             f'v_min_u32 v{T}, 9, v0', f'v_lshlrev_b32 v{T}, 7, v{T}',
             f'v_lshlrev_b32 v{vStg}, 4, v0',
             f's_lshl_b32 s{S_STG}, s{cw}, 10',
             f's_cmp_eq_u32 s{cw}, 2', f's_cselect_b64 s[{S_EX}:{S_EX + 1}], 0x1fffff, -1',
             f's_cmp_eq_u32 s{cw}, 3', f's_cselect_b32 s{S_STG9}, 0, {8 * 4096}',
             f's_add_u32 s{S_STG9}, s{S_STG9}, s{S_STG}',
             f's_mul_i32 s{S_T1}, s{S_C}, 2979', f's_lshr_b32 s{S_ST0}, s{S_T1}, 6', f's_add_u32 s{S_T1}, s{S_T1}, 2979', f's_lshr_b32 s{S_T1}, s{S_T1}, 6',
             f's_sub_u32 s{S_CNT}, s{S_T1}, s{S_ST0}',
             f's_lshl_b32 s{S_RC}, s{S_WAVE}, 2', f's_add_u32 s{S_RC}, s{S_RC}, {RC}',
             f's_and_b32 s{S_T2}, s2, 7', f's_lshl_b32 s{S_PX}, s{S_T2}, 9', f's_add_u32 s{S_PX}, s{S_PX}, s{S_ST0}',
             f's_add_u32 s{S_SAMP}, s{S_PX}, s{S_WAVE}', f's_mul_i32 s{S_SAMP}, s{S_SAMP}, 104',
             f's_sub_u32 s{S_T1}, s{S_CNT}, 40', f's_cmp_lt_u32 s{S_WAVE}, s{S_T1}', f's_cselect_b32 s{S_LOOP}, 6, 5',
             f'v_lshrrev_b32 v{t3}, 3, v0', f'v_min_u32 v{t3}, 6, v{t3}', f'v_lshlrev_b32 v{vXi}, 4, v{t3}',
             f's_mul_i32 s{S_T2}, s{S_T2}, 88', f's_add_u32 s{S_GW}, s{S_GW}, s{S_T2}',
             f's_add_u32 s{S_PW}, s{S_GW}, {o.pfe0 * 832}', f's_lshl_b32 s{S_PW}, s{S_PW}, 7',
             f's_mov_b32 s{S_T3}, {704 * 128}', f'v_min_u32 v{vPWL}, {max(o.pfne - 1, 0)}, v0', f'v_mul_lo_u32 v{vPWL}, s{S_T3}, v{vPWL}',
             f'v_mov_b32 v{vFR}, {L_FLG}', f'v_lshlrev_b32 v{vFA}, 20, v0', f'v_add_u32 v{vFA}, {L_FLG}, v{vFA}',
             f'v_and_b32 v{t4}, 7, v0', f'v_lshlrev_b32 v{vC16}, 4, v{t4}', f'v_and_b32 v{t4}, 15, v0', f'v_lshl_add_u32 v{t4}, v{t4}, 2, v{vFR}',
             f'v_mov_b32 v{vOne}, 0', f'ds_write_b32 v{t4}, v{vOne}',
             f'v_lshrrev_b32 v{half}, 5, v0', f'v_and_b32 v{i32}, 31, v0',
             's_waitcnt lgkmcnt(0)', f'v_mov_b32 v{vOne}, 1']
        L += self.tlb1(t5, 255)
        L += self.build_srd(SRD_CIN, S_CIN, 105456)
        L += [f'buffer_load_dword v255, v{T}, {srd(SRD_CIN)}, s{S_T0} offen']
        L += self.build_srd(SRD_W, S_W1, 1664 * 3328)

        def pfw():
            return [f'buffer_load_dword v255, v{vPWL}, {srd(SRD_W)}, s{S_PW} offen',
                    f's_add_u32 s{S_PW}, s{S_PW}, {o.pfne * 704 * 128}']
        L += ['s_barrier']
        if o.pfs:
            L += [f's_mov_b64 exec, {(1 << o.pfs) - 1}', f'buffer_load_dword v255, v{vPWL}, {srd(SRD_W)}, s{S_PW} offen', 's_mov_b64 exec, -1',
                  f's_add_u32 s{S_PW}, s{S_PW}, {o.pfs * 704 * 128}']
        L += self.build_srd(SRD_IDX, S_IDX, 4096 * 104)

        def pfx_a():
            return [f'buffer_load_dword v{PXR}, v{vPXL}, {srd(SRD_IDX)}, s{S_PX} offen',
                    f's_cmp_eq_u32 s{S_PX}, s{S_PXE}', f's_cselect_b32 s{S_PXE}, 0x7000000, s{S_PXE}',
                    f's_cselect_b32 s{S_PX}, 0x7000000, s{S_PX}',
                    f's_add_u32 s{S_PX}, s{S_PX}, 24', f's_min_u32 s{S_PX}, s{S_PX}, s{S_PXE}']

        def pfx_b():
            return [f'v_lshlrev_b32 v{PXR}, 7, v{PXR}', f'buffer_load_dword v255, v{PXR}, {srd(SRD_TAB)}, 0 offen']

        def xidx(XI=XI, off=0, adv=True):
            c = [f'buffer_load_dwordx4 {vr(XI, 4)}, v{vXi}, {srd(SRD_IDX)}, s{S_SAMP} offen offset:{off}']
            if adv:
                c.append(f's_add_u32 s{S_SAMP}, s{S_SAMP}, {8 * 104}')
            return c

        def xdma(XI=XI, lo=0):
            c = []
            for u in range(4):
                if u == 2:
                    c += ['s_mov_b32 exec_hi, 0x0000ffff']
                c += [f'v_lshl_add_u32 v{XI + u}, v{XI + u}, 7, v{vC16}']
                if u == 3:
                    c += ['s_mov_b32 exec_lo, 0', 's_mov_b32 exec_hi, 0xffff0000', f'v_mov_b32 v{XI + 3}, v{XI + 1}', f'v_mov_b32 v{XI + 2}, v{XI + 1}',
                          's_mov_b32 exec_hi, 0x00ff0000', f'v_mov_b32 v{XI + 2}, v{XI}', 's_mov_b64 exec, -1']
            for u in range(4):
                c += [f's_add_u32 m0, s{S_BCUR}, {u * XPI + lo}']
                if u == 3:
                    c += ['s_mov_b32 exec_hi, 0x00ffffff']
                c.append(I(f'buffer_load_dwordx4 v{XI + u}, {srd(SRD_TAB)}, 0 offen lds', tag='XB'))
                if u == 3:
                    c += ['s_mov_b32 exec_hi, -1']
            return c
        wco = self.build_srd(SRD_WCO, S_WCO, 156) + [f's_mov_b32 m0, {L_WCO}', 's_mov_b64 exec, 0x7ff',
              I(f'buffer_load_dwordx4 v{vStg}, {srd(SRD_WCO)}, 0 offen lds', tag='STG3'),
              's_mov_b64 exec, -1']
        L += self.stamp0()

        def stage(dst, goff, tag):
            st = []
            for m in range(8):
                st.append((f's_add_u32 m0, s{S_STG}, {dst + m * 4096}', f's_add_u32 s{S_TW}, s{S_STG}, {goff + m * 4096}',
                           I(f'buffer_load_dwordx4 v{vStg}, {srd(SRD_CIN)}, s{S_TW} offen lds', tag=tag)))
            st.append((f's_add_u32 m0, s{S_STG9}, {dst}', f's_add_u32 s{S_TW}, s{S_STG9}, {goff}',
                       f's_mov_b64 exec, s[{S_EX}:{S_EX + 1}]',
                       I(f'buffer_load_dwordx4 v{vStg}, {srd(SRD_CIN)}, s{S_TW} offen lds', tag=tag),
                       's_mov_b64 exec, -1'))
            return st

        L += [f's_cmp_lg_u32 s{S_GRP}, 0', 's_cbranch_scc1 L_g1a']
        c0 = self.seq(L)
        st2 = stage(A1, 0, 'STG2') if o.w1first else stage(A2, 35152, 'STG2')
        g0a = self.seq(wco + xidx(XJ, 4 * 104, False) + xidx() + stage(A3, 70304, 'STG3') + st2[:o.sigat] + ['s_branch L_addrc'])
        L = ['L_g1a:', 's_setprio 1',
             f'v_bfe_u32 v{t3}, v0, 2, 2', f'v_lshl_add_u32 v{t3}, v{half}, 3, v{t3}',
             f'v_bfe_u32 v{t4}, v0, 4, 1', f'v_lshlrev_b32 v{t4}, 5, v{t4}',
             f'v_and_b32 v{t5}, 3, v0', f'v_lshl_add_u32 v{t4}, v{t5}, 3, v{t4}',
             f'v_lshl_add_u32 v{vA3}, v{t3}, 6, v{t4}', f'v_add_u32 v{vA3}, {V3OFF}, v{vA3}',
             f's_lshl_b32 s{S_T0}, s{cw}, 6', f's_add_u32 s{S_T0}, s{S_T0}, {A2}',
             f'v_add_u32 v{t4}, s{S_T0}, v{t4}',
             f'v_mul_u32_u24 v{t5}, 1352, v{t3}', f'v_add_u32 v{vBs0}, v{t4}, v{t5}',
             f'v_add_u32 v{t5}, 16, v{t3}', f'v_min_u32 v{t5}, 25, v{t5}',
             f'v_mul_u32_u24 v{t5}, 1352, v{t5}', f'v_add_u32 v{vBs1a}, v{t4}, v{t5}',
             f'v_add_u32 v{t5}, 20, v{t3}', f'v_min_u32 v{t5}, 25, v{t5}',
             f'v_mul_u32_u24 v{t5}, 1352, v{t5}', f'v_add_u32 v{vBs1b}, v{t4}, v{t5}',
             f's_lshl_b32 s{S_T0}, s{cw}, 5', f'v_add_u32 v{vE}, s{S_T0}, v{i32}',
             f'v_mul_u32_u24 v{t3}, 52, v{vE}', f'v_lshl_add_u32 v{t3}, v{half}, 3, v{t3}',
             f'v_add_u32 v{vUw}, {A3}, v{t3}',
             f'v_lshlrev_b32 v{t3}, 1, v{vE}', f'v_add_u32 v{vV2w}, {V2OFF}, v{t3}',
             f'v_mov_b32 v{BT}, 0', f'v_mov_b32 v{BT + 1}, 0',
             f'v_lshlrev_b32 v{t3}, 3, v0', f'v_add_u32 v{t4}, {V3OFF + 26 * 64}, v{t3}',
             's_mov_b32 exec_hi, 0xffff', f'ds_write_b64 v{t4}, {vr(BT, 2)}', 's_mov_b32 exec_hi, -1']
        L += [f'v_lshl_add_u32 v{t3}, v{half}, 7, v{vE}', f's_mov_b32 s{S_T1}, 2521', f's_mov_b32 s{S_T2}, {V3OFF}']
        for p_ in range(3):
            L += [f'v_mul_u32_u24 v{t4}, s{S_T1}, v{t3}', f'v_lshrrev_b32 v{t4}, 16, v{t4}',
                  f'v_mad_u32_u24 v{t4}, v{t4}, 12, s{S_T2}', f'v_lshl_add_u32 v{AD + p_}, v{t3}, 1, v{t4}']
            if p_ < 2:
                L += [f'v_add_u32 v{t3}, 256, v{t3}']
        L += [f'v_mov_b32 v{t4}, 676', f'v_cmp_gt_u32 s[{S_MASK}:{S_MASK + 1}], v{t4}, v{t3}']
        for m in range(6):
            L += [f'v_add_u32 v{t3}, {128 * m}, v{vE}', f'v_mul_u32_u24 v{t4}, s{S_T1}, v{t3}', f'v_lshrrev_b32 v{t4}, 16, v{t4}',
                  f'v_lshl_add_u32 v{t4}, v{t4}, 2, v{vUw}', f'v_add_u32 v{AD + 4 + m}, {m * 6656}, v{t4}']
        L += [f'v_lshlrev_b32 v{AD + 10}, 4, v{half}', f'v_add_u32 v{AD + 10}, {L_WCO + 104}, v{AD + 10}',
              f'v_lshlrev_b32 v{AD + 11}, 1, v0', f'v_add_u32 v{AD + 11}, {L_WCO}, v{AD + 11}',
              f'v_lshlrev_b32 v{AD + 12}, 6, v0', f'v_add_u32 v{AD + 12}, {V3OFF + 52}, v{AD + 12}']
        g1a = self.seq(L)

        N_ = (0, 1, 2, 3)
        classes = []
        for d in ZD:
            for (a, ha, b, hb) in d:
                if cls(a, ha)[1] == N_ and cls(b, hb)[1] != N_ and cls(b, hb)[1] not in classes:
                    classes.append(cls(b, hb)[1])
        assert len(classes) == 5
        base = {(N_, N_): GB}
        for k, c in enumerate(classes):
            base[(N_, c)] = GB + 1 + 2 * k
            base[(c, N_)] = GB + 2 + 2 * k
        SP1, SP2 = GB + 11, GB + 12
        pk4 = lambda t: '0x%08x' % sum((x & 0xff) << (8 * k) for k, x in enumerate(t))
        L = ['L_addrc:',
             f's_and_b32 s{S_T2}, s{S_WAVE}, 1', f's_lshl_b32 s{S_T2}, s{S_T2}, 1', f'v_add_u32 v{vg}, s{S_T2}, v{half}',
             f'v_min_u32 v{t3}, 25, v{i32}',
             f's_mul_i32 s{S_T0}, s{S_GRP}, {UST - 1352}', f's_add_u32 s{S_T0}, s{S_T0}, 1352',
             f's_mul_i32 s{S_T1}, s{S_GRP}, {A3 - A1}', f's_add_u32 s{S_T1}, s{S_T1}, {A1}',
             f'v_mul_u32_u24 v{t4}, s{S_T0}, v{t3}', f'v_add_u32 v{t4}, s{S_T1}, v{t4}',
             f'v_mul_u32_u24 v{vL}, 52, v{t3}', f'v_lshl_add_u32 v{vL}, v{vg}, 1, v{vL}', f'v_add_u32 v{vL}, {V2OFF}, v{vL}',
             f'v_lshlrev_b32 v{vWo}, 1, v{t3}', f'v_add_u32 v{vWo}, {L_WCO}, v{vWo}',
             f'v_mad_u32_u24 v{SP1}, v{vg}, 52, v{t4}',
             f'v_lshl_add_u32 v{SP2}, v{vg}, 1, v{t4}',
             f'v_lshl_add_u32 v{GB}, v{vg}, 1, v{SP1}',
             f'v_lshlrev_b32 v{t3}, 3, v{vg}']
        for k, c in enumerate(classes):
            L += [f's_mov_b32 s{S_T0}, {pk4(c)}', f'v_bfe_i32 v{t5}, s{S_T0}, v{t3}, 8',
                  f'v_lshl_add_u32 v{GB + 1 + 2 * k}, v{t5}, 1, v{SP1}', f'v_mad_i32_i24 v{GB + 2 + 2 * k}, v{t5}, 52, v{SP2}']
        L += [f's_mov_b32 s{S_T0}, {pk4((0, 54, 2, 0))}', f'v_bfe_u32 v{t5}, s{S_T0}, v{t3}, 8', f'v_add_u32 v{SP1}, v{t5}, v{t4}',
              f'v_add_u32 v{SP2}, 52, v{t4}', f'v_mov_b32 v{vm}, {OOB}',
              f'v_cmp_eq_u32 vcc, 3, v{vg}', f'v_cndmask_b32 v{SP1}, v{SP1}, v{vm}, vcc', f'v_cndmask_b32 v{vWo}, v{vm}, v{vWo}, vcc',
              f'v_cmp_eq_u32 vcc, 2, v{vg}', f'v_cndmask_b32 v{SP2}, v{vm}, v{SP2}, vcc',
              f'v_cmp_gt_u32 vcc, 2, v{vg}', f'v_cndmask_b32 v{vL6}, v{vm}, v{vL}, vcc']
        L += [f's_lshr_b32 s{S_T1}, s{cw}, 1', f's_mul_i32 s{S_T1}, s{S_T1}, {6 * 1024}',
              f's_mul_i32 s{S_T0}, s{S_GRP}, {TB - TA}', f's_add_u32 s{S_T0}, s{S_T0}, {TA}',
              f's_lshl_b32 s{S_T2}, s{S_GRP}, 4', f's_sub_u32 s{S_T3}, s{S_T2}, {LL + 1024 + 16 - TC}',
              f'v_lshlrev_b32 v{t5}, 8, v{vg}',
              f'v_lshl_add_u32 v{t3}, v{i32}, 4, v{t5}', f'v_add_u32 v{vWr}, s{S_T0}, v{t3}', f'v_add_u32 v{vLw}, {LL}, v{t3}',
              f'v_bfe_u32 v{t3}, v0, 2, 2', f'v_lshl_add_u32 v{t5}, v{t3}, 4, v{t5}', f'v_and_b32 v{t3}, 3, v0',
              f'v_lshl_add_u32 v{t4}, v{t3}, 6, v{t5}', f'v_add_u32 v{t4}, {LL + 1024 + 16}, v{t4}',
              f'v_cmp_lt_u32 vcc, 15, v{i32}', f'v_cndmask_b32 v{vLw}, v{vLw}, v{t4}, vcc', f'v_add_u32 v{t4}, s{S_T3}, v{t4}',
              f'v_cndmask_b32 v{vWr}, v{vWr}, v{t4}, vcc',
              f'v_lshl_add_u32 v{t4}, v{t3}, 5, v{t5}', f'v_add_u32 v{t4}, {TD - 16}, v{t4}',
              f's_add_u32 s{S_T3}, s{S_T2}, 19', f'v_cmp_lt_u32 vcc, s{S_T3}, v{i32}', f'v_cndmask_b32 v{vWr}, v{vWr}, v{t4}, vcc',
              f'v_add_u32 v{vWr}, s{S_T1}, v{vWr}',
              f'v_cmp_lt_u32 vcc, 25, v{i32}', f'v_cndmask_b32 v{vWr}, v{vWr}, v{vm}, vcc', f'v_cndmask_b32 v{vLw}, v{vLw}, v{vm}, vcc',
              f'v_add_u32 v{vFG}, s{S_T2}, v{vFR}', f'v_add_u32 v{vFGa}, s{S_T2}, v{vFA}', f'v_mov_b32 v{vMx}, 0']
        L += [f's_mul_i32 s{S_BCUR}, s{S_WAVE}, {XBSZ}', f's_add_u32 s{S_BCUR}, s{S_BCUR}, {XB0}', f's_mov_b32 s{S_BD}, {XB1 - XB0}',
              f'v_add_u32 v{aD}, {TA}, v{vStg}',
              f'v_and_b32 v{t3}, 11, v0', f'v_cmp_eq_u32 vcc, 11, v{t3}', f'v_cndmask_b32 v{aC}, v{aD}, v{vm}, vcc',
              f'v_and_b32 v{t3}, 3, v0', f'v_cmp_eq_u32 vcc, 0, v{t3}', f'v_cndmask_b32 v{aLc}, v{aC}, v{vm}, vcc',
              f'v_lshrrev_b32 v{vg}, 4, v0', f'v_bfe_u32 v{t3}, v0, 1, 3', f'v_lshlrev_b32 v{t5}, 4, v{t3}', f'v_add_u32 v{t5}, {TD}, v{t5}',
              f'v_and_b32 v{t3}, 10, v0', f'v_cmp_eq_u32 vcc, 10, v{t3}', f'v_cndmask_b32 v{t5}, v{t5}, v{vm}, vcc',
              f'v_and_b32 v{t4}, 1, v0', f'v_lshl_add_u32 v{aS}, v{vg}, 9, v{t5}', f'v_lshl_add_u32 v{aS}, v{t4}, 2, v{aS}', f'v_add_u32 v{aS}, 1024, v{aS}',
              f'v_lshl_add_u32 v{FT}, v{vg}, 8, v{t5}', f'v_lshl_add_u32 v{FT}, v{t4}, 20, v{FT}',
              f'v_and_b32 v{vm}, 15, v0', f's_mov_b32 s{S_T0}, {XPI}',
              f'v_lshlrev_b32 v{t3}, 1, v{vm}', f'v_add_u32 v{t3}, s{S_BCUR}, v{t3}',
              f'v_mad_u32_u24 v{vRaw}, v{vg}, s{S_T0}, v{t3}',
              f's_lshl_b32 s{S_T0}, s{S_WAVE}, 10', f's_add_u32 s{S_T0}, s{S_T0}, {XCH}',
              f'v_add_u32 v{vXw}, s{S_T0}, v{vStg}',
              f'v_add_u32 v{t3}, 256, v{vStg}', f'v_and_b32 v{t3}, 1023, v{t3}', f'v_add_u32 v{vX1}, s{S_T0}, v{t3}',
              f'v_xor_b32 v{t3}, 512, v{vStg}', f'v_add_u32 v{vX2}, s{S_T0}, v{t3}', f'v_lshlrev_b32 v{vSh}, 4, v{half}']
        L += [f'v_mov_b32 v{r}, 0' for r in list(range(RAW, RAW + 8)) + list(range(BT, BT + 24))]
        L += [f'v_mul_u32_u24 v{t4}, {XPI}, v{vg}',
              f'v_bfe_u32 v{t5}, v0, 2, 2', f'v_lshl_add_u32 v{t4}, v{t5}, 7, v{t4}',
              f'v_and_b32 v{t5}, 3, v0', f'v_lshl_add_u32 v{vLinB}, v{t5}, 3, v{t4}', f'v_add_u32 v{vLin}, s{S_BCUR}, v{vLinB}',
              f'v_and_b32 v{t5}, 1, v0', f's_mov_b32 s{S_T0}, 0xaaaaaaaa', f'v_mul_lo_u32 v{vSI}, s{S_T0}, v{t5}', f'v_or_b32 v{vSI}, 0x44444444, v{vSI}',
              f'v_lshlrev_b32 v{vOr}, 1, v0', f'v_add_u32 v{vOr}, s{S_BCUR}, v{vOr}', f'v_mov_b32 v{vAcc}, 0x3f80',
              f'ds_write_b16 v{vOr}, v{vAcc} offset:{3 * XPI + 7 * 128}', f'v_add_u32 v{vOr}, s{S_BD}, v{vOr}']
        L += [f's_mul_i32 s{S_T3}, s{S_WAVE}, 6', f's_add_u32 s{S_PX}, s{S_PX}, s{S_T3}', f's_mul_i32 s{S_PX}, s{S_PX}, 104',
              f's_add_u32 s{S_PXE}, s{S_PX}, 80', f's_add_u32 s{S_PX}, s{S_PX}, {4 * o.pfx0}',
              f's_mov_b32 s{S_T3}, 10923', f'v_min_u32 v{t3}, 35, v0',
              f'v_mul_u32_u24 v{t4}, s{S_T3}, v{t3}', f'v_lshrrev_b32 v{t4}, 16, v{t4}',
              f'v_mul_u32_u24 v{t4}, {104 - 24}, v{t4}', f'v_lshl_add_u32 v{vPXL}, v{t3}, 2, v{t4}']
        L += self.stamp(14)
        L += [f's_cmp_eq_u32 s{S_GRP}, 0', 's_cbranch_scc1 L_g0pf']
        cc = self.seq(L)

        def bread(m, base):
            b = BALL + m * 8
            return [f'ds_read_b64_tr_b16 {vr(b, 2)}, v{vBs0} offset:{base + m * 256}',
                    f'ds_read_b64_tr_b16 {vr(b + 2, 2)}, v{vBs0} offset:{base + m * 256 + 4 * 1352}',
                    f'ds_read_b64_tr_b16 {vr(b + 4, 2)}, v{vBs1a} offset:{base + m * 256}',
                    f'ds_read_b64_tr_b16 {vr(b + 6, 2)}, v{vBs1b} offset:{base + m * 256}']

        def mm6(base, post=lambda m: []):
            c = []
            for m in range(3):
                c += bread(m, base)
            for m in range(6):
                if m + 3 < 6:
                    c += bread(m + 3, base)
                b = BALL + m * 8
                d = DALL + (m % 4) * 16
                c.append(f'v_mfma_f32_32x32x16_bf16 {vr(d, 16)}, {vr(AFR, 4)}, {vr(b, 4)}, 0')
                c.append(f'v_mfma_f32_32x32x16_bf16 {vr(d, 16)}, {vr(AFR + 4, 4)}, {vr(b + 4, 4)}, {vr(d, 16)}')
                if m >= 2:
                    c += post(m - 2)
            return c + post(4) + post(5)

        L = [f's_add_u32 s{S_SAMP}, s{S_SAMP}, {8 * 104}', f's_add_u32 s{S_PX}, s{S_PX}, 24'] + xidx() + pfx_a() + wait(F_W3, 4) + self.stamp(2)
        for s2 in range(2):
            for rd in range(2):
                L.append(f'ds_read_b64 {vr(AFR + 4 * s2 + 2 * rd, 2)}, v{AD + 10} offset:{s2 * 32 + rd * 8}')
        L += [f'ds_read_u16 v{t5}, v{AD + 11} offset:52']

        def vpost(m):
            p_ = m // 2
            c = [f'v_cvt_pk_bf16_f32 v{V3T + p_}, v{DALL + 16 * (m % 4)}, 0']
            if m % 2:
                c = ['s_mov_b32 exec_lo, 0'] + c + [f's_mov_b64 exec, s[{S_MASK}:{S_MASK + 1}]' if p_ == 2 else 's_mov_b32 exec_lo, -1',
                                                    f'ds_write_b16 v{AD + p_}, v{V3T + p_}']
            return c
        L += mm6(A3 - A2, vpost)
        L += ['s_mov_b64 exec, 0x3ffffff', f'ds_write_b16 v{AD + 12}, v{t5}', 's_mov_b64 exec, -1']
        L += self.stamp(3) + sig(F_W2) + [f'v_cmp_gt_u32 s[{S_MASK}:{S_MASK + 1}], 36, v{vE}']
        L += wait(F_W2, 8) + self.stamp(5)
        for s2 in range(2):
            for rd in range(2):
                L.append(f'ds_read_b64_tr_b16 {vr(AFR + 4 * s2 + 2 * rd, 2)}, v{vA3} offset:{s2 * 1024 + rd * 256}')

        def upost(m):
            c = [f'v_cvt_pk_bf16_f32 v{UP + 8 * m + qq}, v{DALL + 16 * (m % 4) + 2 * qq}, v{DALL + 16 * (m % 4) + 2 * qq + 1}' for qq in range(8)]
            if m == 5:
                c.append(f's_mov_b64 exec, s[{S_MASK}:{S_MASK + 1}]')
            for a in range(3):
                c.append(f'ds_write2_b32 v{AD + 4 + m}, v{UP + 8 * m + 2 * a}, v{UP + 8 * m + 2 * a + 1} offset0:{4 * a} offset1:{4 * a + 1}')
            return c
        L += mm6(0, upost)
        L.append('s_mov_b32 exec_hi, 0')
        for m in (5, 4, 3, 2, 1, 0):
            L.append(f'ds_write_b32 v{AD + 4 + m}, v{UP + 8 * m + 6} offset:48')
            L.append(f'ds_write_b16 v{vV2w}, v{UP + 8 * m + 7} offset:{m * 256}')
            if m == 5:
                L.append('s_mov_b32 exec_lo, -1')
        L += ['s_mov_b64 exec, -1'] + sig(F_RDY, vFGa) + [f's_setprio {o.bprio}', 's_branch L_bld']
        uc = self.seq(L)

        e1 = [f'buffer_load_dword v{XJ + 4}, v{vPXL}, {srd(SRD_IDX)}, s{S_PX} offen',
              f'buffer_load_dword v{XJ + 5}, v{vPXL}, {srd(SRD_IDX)}, s{S_PX} offen offset:{24 * 104}']
        e2 = [f'v_lshlrev_b32 v{XJ + 4}, 7, v{XJ + 4}', f'buffer_load_dword v255, v{XJ + 4}, {srd(SRD_TAB)}, 0 offen',
              f'v_lshlrev_b32 v{XJ + 5}, 7, v{XJ + 5}', f'buffer_load_dword v255, v{XJ + 5}, {srd(SRD_TAB)}, 0 offen']
        st1 = stage(A2, 35152, 'STG1') if o.w1first else stage(A1, 0, 'STG1')
        L = ['L_g0pf:'] + e1 + [f's_add_u32 s{S_PX}, s{S_PX}, 24'] + pfx_a() + sig(F_W3, vm_tags=['STG3']) + self.stamp(1)
        xx = xdma() + xdma(XJ, 4 * XBSZ) + xidx() + e2
        if o.w1first:
            L += st2[o.sigat:] + st1 + sig(F_RDY, vFGa, vm_tags=['STG2']) + xx + sig(F_W2, vm_tags=['STG1']) + self.stamp(3)
        else:
            L += st2[o.sigat:] + st1[:o.sig2] + sig(F_W2, vm_tags=['STG2']) + self.stamp(3) + st1[o.sig2:]
            L += (xx if o.xpos == 0 else []) + sig(F_RDY, vFGa, vm_tags=['STG1']) + (xx if o.xpos == 1 else [])
        g0pf = self.seq(L)

        def chunk(v):
            units = [(n, h) for n in range(24 * v, min(24 * v + 24, 44)) for h in range(2)]
            NB_, BA = 12, o.ba
            reads, maths = [], []
            for ui, (n, h) in enumerate(units):
                a, ha, b, hb = ZD[n][h]
                (fa, ca), (fb, cb) = cls(a, ha), cls(b, hb)
                tb = BT + (ui % NB_) * 2
                dst = SUM + ui
                if ca != N_:
                    R = [f'ds_read_u16_d16_hi v{tb}, v{SP1} offset:{54 * 24}', f'ds_read_u16_d16_hi v{tb + 1}, v{SP2} offset:{54 * 24}']
                    M = [f'v_add_f32 v{dst}, v{tb}, v{tb + 1}']
                elif (a, ha) == (b, hb):
                    R = [f'ds_read_u16_d16_hi v{tb}, v{base[(ca, cb)]} offset:{54 * fa}']
                    M = [f'v_mov_b32 v{dst}, v{tb}']
                else:
                    R = [f'ds_read_u16_d16_hi v{tb}, v{base[(ca, cb)]} offset:{52 * fa + 2 * fb}',
                         f'ds_read_u16_d16_hi v{tb + 1}, v{base[(cb, ca)]} offset:{52 * fb + 2 * fa}']
                    M = [f'v_add_f32 v{dst}, v{tb}, v{tb + 1}']
                if ui % 2:
                    M = M + maths[-1] + [f'v_max3_f32 v{vMx}, v{vMx}, abs(v{dst - 1}), abs(v{dst})']
                    maths[-1] = []
                reads.append(R)
                maths.append(M)
            code = []
            nu = len(units)
            for ui in range(nu + BA):
                if ui < nu:
                    code += reads[ui]
                if ui >= BA:
                    code += maths[ui - BA]
            if v == 1:
                code += [f'ds_read_u16_d16_hi v{BT + e}, v{vL} offset:{8 * e}' for e in range(6)]
                code += [f'ds_read_u16_d16_hi v{BT + 6}, v{vL6} offset:48', f'ds_read_u16_d16_hi v{BT + 7}, v{vWo}']
            return code

        def conv(n):
            return [f'v_fma_mix{"hi" if h else "lo"}_f16 v{OUT + q}, v{SUM + 2 * q + h}, s{S_SC}, 0' for h in range(2) for q in range(4 * n, 4 * n + 4)]
        wr = lambda n: [f'ds_write_b128 v{vWr}, {vr(OUT + 4 * n, 4)} offset:{n * 1024}']
        L = ['L_bld:'] + self.stamp(6) + wait(F_RDY, 4, vFG) + self.stamp(7)
        L += [f's_cmp_ge_u32 s{cw}, 2', 's_cbranch_scc1 L_chunk1']
        bld = self.seq(L)
        ch = [self.seq(chunk(0) + ['s_branch L_conv']), self.seq(['L_chunk1:'] + chunk(1))]
        L = ['L_conv:'] + self.stamp(12) + dppred('v_max_u32', vMx) + [f'v_readlane_b32 s{S_T0}, v{vMx}, 63', f'v_mov_b32 v{vMx}, s{S_T0}',
             f'ds_max_u32 v{vFGa}, v{vMx} offset:{M_X}', WaitTag(vm_tags=['XB']), f'ds_add_u32 v{vFGa}, v{vOne} offset:{F_M}']
        L += waitmax(vFG, F_M, S_T3) + [f's_add_i32 s{S_SC}, s{S_T3}, 127', f's_lshl_b32 s{S_SC}, s{S_SC}, 23'] + self.stamp(13)
        L += conv(0) + conv(1) + waitmax(vFR, F_M, S_T2)
        L += wr(0) + conv(2) + wr(1) + conv(3) + wr(2) + conv(4) + wr(3) + wr(4)
        L += [f's_cmp_ge_u32 s{cw}, 2', 's_cbranch_scc1 L_cvl']
        cv = self.seq(L)
        cv0 = self.seq(conv(5) + wr(5) + ['s_branch L_built'])
        cv1 = self.seq(['L_cvl:', f's_cmp_eq_u32 s{S_GRP}, 0', 's_cbranch_scc1 L_built'])
        L = [f'v_mul_f32 v{BT + e}, s{S_SC}, v{BT + e}' for e in range(8)]
        L += [f'v_cvt_pk_bf16_f32 v{OUT + 20 + q}, v{BT + 2 * q}, v{BT + 2 * q + 1}' for q in range(4)]
        L += [f'ds_write_b128 v{vLw}, {vr(OUT + 20, 4)}']
        cv2 = self.seq(L)

        w0x = self.tlb2(FT) + self.build_srd(SRD_W2, S_W2, 3328)
        w0x += [f'v_lshlrev_b32 v{FT}, 7, v0', f'buffer_load_dword v255, v{FT}, {srd(SRD_W2)}, 0 offen', 's_waitcnt lgkmcnt(0)']

        slot = lambda k: RZ + 4 * (k % 4)
        MF = [('Lb', 0), ('a', 1), ('b', 1), ('d', 1), ('Lc', 0), ('a', 2), ('c', 1), ('b', 2), ('c', 2)]
        for k in range(3, 10):
            MF += ([('S', k)] if k % 2 else []) + [('a', k), ('b', k), ('c', k)]
        MF += [('a', 10), ('b', 10), ('a', 11), ('b', 11), ('c', 10), ('S', 11), ('c', 11)]
        if o.mo == 1:
            MF = [('Lb', 0), ('a', 1), ('d', 1), ('Lc', 0), ('b', 1), ('a', 2), ('c', 1), ('b', 2), ('a', 3), ('c', 2), ('S', 3), ('b', 3), ('c', 3)]
            for k in range(4, 10):
                MF += ([('S', k)] if k % 2 else []) + [('a', k), ('b', k), ('c', k)]
            MF += [('a', 10), ('b', 10), ('c', 10), ('a', 11), ('b', 11), ('S', 11), ('c', 11)]
        if o.mo == 2:
            MF = [('d', 1), ('Lb', 0), ('a', 1), ('Lc', 0), ('b', 1), ('a', 2), ('c', 1), ('b', 2), ('a', 3), ('c', 2), ('S', 3), ('b', 3), ('c', 3)]
            for k in range(4, 12):
                MF += ([('S', k)] if k % 2 else []) + [('a', k), ('b', k), ('c', k)]
        NM = len(MF)
        use = {k: [m for m, (t_, kk) in enumerate(MF) if kk == k or (t_ == 'S' and kk == k + 1)] for k in range(12)}
        pos = lambda t_, k: MF.index((t_, k))

        def mfma(m):
            t_, k = MF[m]
            if t_[0] == 'L':
                d, w = {'b': (Db, WL), 'c': (Dc, WL + 4)}[t_[1]]
                return f'v_mfma_f32_16x16x32_bf16 {vr(d, 4)}, {vr(w, 4)}, {vr(slot(0), 4)}, 0'
            if t_ == 'S':
                return f'v_smfmac_f32_16x16x64_f16 {vr(Ds, 4)}, {vr(WS_ + 2 * (k - 1), 4)}, {vr(slot(k - 1), 8)}, v{vSI}'
            d, w = {'a': (Da, WA), 'b': (Db, WB), 'c': (Dc, WC), 'd': (Ds, WS_)}[t_]
            return f'v_mfma_f32_16x16x32_f16 {vr(d, 4)}, {vr(w + 4 * (k - 1), 4)}, {vr(slot(k), 4)}, {"0" if t_ in "ad" and k == 1 else vr(d, 4)}'

        def wload(m):
            t_, k = MF[m]
            if t_[0] == 'L':
                a, w, off = {'b': (aD, WL, 0), 'c': (aLc, WL + 4, 1024)}[t_[1]]
                return [f'ds_read_b128 {vr(w, 4)}, v{a} offset:{LL - TA + off}']
            if t_ == 'd':
                return [f'ds_read_b128 {vr(WS_, 4)}, v{FT}']
            if t_ == 'S':
                w = WS_ + 2 * (k - 1)
                return [f'ds_read2_b32 {vr(w, 2)}, v{aS} offset0:0 offset1:2', f'ds_read2_b32 {vr(w + 2, 2)}, v{aS} offset0:64 offset1:66',
                        f'v_add_u32 v{aS}, 2048, v{aS}']
            w, a, off = {'a': (WA, aD, 0), 'b': (WB, aD, TB - TA), 'c': (WC, aC, TC - TA)}[t_]
            return [f'ds_read_b128 {vr(w + 4 * (k - 1), 4)}, v{a} offset:{off + (k - 1) * 1024}']

        def zops(n):
            z = slot(n // 4 + 1) + n % 4
            (a, ha, b, hb), (a2, ha2, b2, hb2) = ZD[n]
            if (a, b) == (a2, b2):
                return [f'v_pk_mul_f16 v{z}, v{X + a}, v{X + b} op_sel:[{ha},{hb}] op_sel_hi:[{ha2},{hb2}]']
            return [f'v_mul_f16_sdwa v{z}, v{X + a}, v{X + b} dst_sel:WORD_0 dst_unused:UNUSED_PAD src0_sel:WORD_{ha} src1_sel:WORD_{hb}',
                    f'v_mul_f16_sdwa v{z}, v{X + a2}, v{X + b2} dst_sel:WORD_1 dst_unused:UNUSED_PRESERVE src0_sel:WORD_{ha2} src1_sel:WORD_{hb2}']

        cvt = lambda d, a, b: f'v_cvt_pk_f16_f32 v{d}, v{a}, v{b}'
        LAT = o.lat

        class It:
            def __init__(s, name, G, code, lo, hi, pre):
                s.name, s.G, s.code, s.lo, s.hi, s.pre, s.at = name, G, code, lo, hi, list(pre), None

        NG = 14
        items = {}

        def add(name, G, code, lo=-10**9, hi=10**9, pre=()):
            items[(name, G)] = It(name, G, code, lo, hi, pre)
        usej = lambda j: [n for n, d in enumerate(ZD) if any(a // 4 == j or b // 4 == j for (a, _, b, _) in d)]
        lastz = {j: max(usej(j)) for j in range(3)}
        for G in range(NG):
            c, b0 = G % 4, G * NM
            for r in range(8):
                add(f'raw{r}', G, f'ds_read_u16_d16_hi v{RAW + r}, v{vRaw} offset:{r * 128 + c * 32}', lo=b0 - o.rspan, hi=b0 - o.rlead,
                    pre=[(f'co{q}', G - 1, 0) for q in range(4)] + ([('swr', G, 0)] if c == 0 else []))
            for q in range(4):
                add(f'co{q}', G, cvt(X + q - 1, RAW + q - 1, RAW + q + 2) if q else cvt(X + 3, RAW + 6, RAW + 7), hi=b0 - 4,
                    pre=[(f'raw{r}', G, LAT) for r in range(8)] + [(f'z{lastz[0]}', G - 1, 0)])
            add('wo', G, f'ds_write_b128 v{vXw}, {vr(X, 4)}', hi=b0 - 2, pre=[(f'co{q}', G, 0) for q in range(4)] + [('r2', G - 1, 0)])
            add('r1', G, f'ds_read_b128 {vr(X + 4, 4)}, v{vX1}', hi=b0, pre=[('wo', G, 0)])
            add('r2', G, f'ds_read_b128 {vr(X + 8, 4)}, v{vX2}', hi=b0 + 1, pre=[('r1', G, 0)])
            for q in range(3):
                add(f'al{q}', G, f'v_alignbit_b32 v{X + 8 + q}, v{X + 8 + q}, v{X + 8 + q}, v{vSh}', hi=b0 + 20, pre=[('r2', G, LAT)])
            if c == 0:
                add('swr', G, [f'v_add_u32 v{vRaw}, s{S_BD}, v{vRaw}', WaitTag(vm_tags=['XB'])], lo=b0 - o.rspan - 1, hi=b0 - o.rspan - 1,
                    pre=[(f'raw{r}', G - 1, 0) for r in range(8)])
            for p in range(2):
                add(f'lin{p}', G, f'ds_read_b64_tr_b16 {vr(slot(0) + 2 * p, 2)}, v{vLin} offset:{p * 512 + c * 32}',
                    lo=b0 - NM + max(use[8]), hi=b0 + min(use[0]) - 1 - LAT, pre=[('swl', G, 0)] if c == 0 else [])
            if c == 0:
                add('swl', G, [f's_add_u32 s{S_TW}, s{S_BCUR}, s{S_BD}', f'v_add_u32 v{vLin}, s{S_TW}, v{vLinB}'], lo=b0 - NM + 20, hi=b0 - 12,
                    pre=[(f'lin{p}', G - 1, 0) for p in range(2)])
            for n in range(44):
                k = n // 4 + 1
                js = {x // 4 for (a, _, b, _) in ZD[n] for x in (a, b)}
                pre = [(f'co{q}', G, 0) for q in range(4)] + ([('r1', G, LAT)] if 1 in js else []) + ([(f'al{q}', G, 0) for q in range(3)] if 2 in js else [])
                if n:
                    pre.append((f'z{n - 1}', G, 0))
                if k == 5 and n % 4 < 3:
                    pre.append(('or1', G, 0))
                lo = b0 + max(use[k - 4]) if k >= 4 else b0 - NM + max(use[k + 8])
                if k == 1:
                    lo = max(lo, b0 - o.z1lo)
                zc = zops(n)
                if n == 12:
                    zc = [zops(12)[0], zops(13)[0]]
                if n == 13:
                    zc = [zops(12)[1], zops(13)[1]]
                add(f'z{n}', G, zc, lo=lo, hi=b0 + min(use[k]) - 2, pre=pre)
            s1 = slot(1)
            if c == 1:
                add('or1', G, f'v_or3_b32 v{vOr}, v{s1}, v{s1 + 1}, v{s1 + 2}', hi=b0 + 6, pre=[('z2', G, 0), ('blk', G - 2, 0)])
                add('ck', G, [f'v_and_b32 v{vOr}, 0x60006000, v{vOr}', f'v_cmp_ne_u32 s[{S_CHK}:{S_CHK + 1}], 0, v{vOr}'], hi=b0 + 30, pre=[('or1', G, 0)])
            e = b0 + NM
            rdy = lambda t_: b0 + pos(t_, 11) + o.flo
            for r in range(4):
                add(f'f{r}', G, f'v_{"mul" if c == 0 and r == 0 else "fmac"}_f32 v{vAcc}, v{Da + r}, v{Db + r}', lo=min(rdy('b'), e + pos('Lb', 0) - 1), hi=e + pos('Lb', 0) - 1,
                    pre=[(f'f{r - 1}', G, 0) if r else ('f8', G - 1, 0)] + ([('blk', G - 1, 0)] if c == 0 else []))
            for r in range(2):
                add(f'f{4 + r}', G, f'v_add_f32 v{FT + r}, v{Ds + 2 * r}, v{Ds + 2 * r + 1}', lo=min(rdy('S'), e + pos('d', 1) - 1), hi=e + pos('d', 1) - 1,
                    pre=[('f8', G - 1, 0)] + ([('blk', G - 1, 0)] if c == 0 else []))
            for r, (x, y) in enumerate(((Dc, Dc + 1), (FT, Dc + 2), (FT + 1, Dc + 3))):
                add(f'f{6 + r}', G, f'v_fmac_f32 v{vAcc}, v{x}, v{y}', lo=rdy('c'), hi=e + pos('Lc', 0) - 1, pre=[(f'f{5 + r}', G, 0), ('f3', G, 0), ('f4', G, 0)])
            if c == 3:
                for q, x in enumerate(dppred('v_add_f32', vAcc)):
                    add(f'dp{q}', G, x, hi=e + 7 + 2 * q, pre=[(f'dp{q - 1}', G, 2) if q else ('f8', G, 2)])
                add('blk', G, '@BLK', hi=e + 20, pre=[('dp5', G, 1)])
        order = list(items.values())
        gaps = {}
        isv = lambda x: isinstance(x, str) and x.startswith('v_')
        isl = lambda x: isinstance(x, str) and x.startswith('ds_')
        for gp in range(-NM, NG * NM):
            gaps[gp] = []
            uv = ul = 0
            while True:
                cand = []
                for it in order:
                    if it.at is not None or it.lo > gp:
                        continue
                    ok = True
                    for (nm, G, dist) in it.pre:
                        p = items.get((nm, G))
                        if p is None:
                            continue
                        if p.at is None or p.at + dist > gp:
                            ok = False
                            break
                    if not ok:
                        continue
                    cv_, cl_ = sum(map(isv, flat([it.code]))), sum(map(isl, flat([it.code]))) * (o.wcost if it.name == 'wo' else 1)
                    if it.hi > gp and (uv + cv_ > o.gapv or ul + cl_ > o.gapl or uv + ul + cv_ + cl_ > o.gapt) and cv_ + cl_:
                        continue
                    cand.append((it, cv_, cl_))
                if not cand:
                    break
                it, cv_, cl_ = min(cand, key=lambda x: x[0].hi)
                it.at = gp
                uv += cv_; ul += cl_
                gaps[gp].append(it)
        late = [(it.name, it.G, it.at - it.hi) for it in order if it.at is not None and it.at > it.hi and 4 <= it.G < 12]
        print('late items', late)
        sig_ = lambda G0: [[(it.name, it.G - G0) for it in gaps[G0 * NM + m]] for m in range(4 * NM)]
        assert sig_(4) == sig_(8), 'schedule not periodic'
        for f_ in (isv, isl):
            print('gap load', ''.join(str(sum(sum(map(f_, flat([it.code]))) for it in gaps[4 * NM + m])) + ('|' if m % NM == NM - 1 else '') for m in range(4 * NM)))
        keep = lambda c: [x for x in flat([c]) if not (isinstance(x, str) and any(x.startswith(d) for d in o.drop.split(',') if d))]
        prio = lambda p, lab: [f's_cmp_lg_u32 s{S_GRP}, 0', f's_cbranch_scc1 {lab}', f's_setprio {p}', f'{lab}:'] if o.phi else []

        def sstamp():
            if not (o.stamps and o.itst):
                return []
            return [f's_memtime s[{S_ST}:{S_ST + 1}]', f's_add_u32 s{S_C0}, s{S_LOOP}, 20', 's_waitcnt lgkmcnt(0)',
                    f's_mov_b32 m0, s{S_C0}', f'v_writelane_b32 v252, s{S_ST}, m0']

        pcode = []
        for gp in range(-NM, 4 * NM):
            for it in gaps[gp]:
                if it.G >= 4 and not it.name.startswith(('sw', 'wx')):
                    pcode += flat([it.code])
        PFD = o.pfd
        L = ['L_built:'] + self.stamp(10) + pcode + pfx_b() + pfx_a() + pfw()
        L += ['s_waitcnt lgkmcnt(0)', 's_barrier'] + (['s_setprio 1'] if o.phi else ['s_setprio 0']) + self.stamp(8)
        L += [wload(m) for m in range(PFD)] + prio(2, 'L_prf') + (['s_mov_b32 s100, 15'] if o.gst else [])
        peel2 = None
        for m in range(NM):
            L += [mfma(m)] + (wload(m + PFD) if m + PFD < NM else [])
            for it in gaps[4 * NM + m]:
                if it.code == '@BLK':
                    L += [f'ds_read_b32 v{vF}, v{vFR} offset:{M_X + 16}', f'ds_write_b16 v{vOr}, v{vAcc} offset:{3 * XPI + 7 * 128}']
                    L += xdma(XI, XB1 - XB0) + xidx()
                    L += [f'v_readfirstlane_b32 s{S_T3}, v{vF}',
                          f's_lshr_b32 s{S_T3}, s{S_T3}, 23', f's_sub_i32 s{S_T3}, 141, s{S_T3}', f's_min_i32 s{S_T3}, s{S_T3}, 40',
                          f's_add_i32 s{S_EXP}, s{S_T2}, s{S_T3}', f's_sub_i32 s{S_EXP}, 0, s{S_EXP}', f's_mov_b32 s{S_EXPC}, s{S_EXP}',
                          f's_mov_b32 s{S_PH}, 1', f's_mov_b32 s{S_PREV}, 1'] + self.pubprep_s()
                    L += [f's_cmp_lg_u32 s{S_WAVE}, 7', 's_cbranch_scc1 L_nw0']
                    peel1 = self.seq(L)
                    peelw = self.seq(w0x)
                    L = ['L_nw0:']
                elif it.G >= 4:
                    L += flat([it.code])
        L += [f'ds_add_u32 v{vFA}, v{vOne} offset:{F_PEEL}', 's_branch L_grp1']
        peel2 = self.seq(L)
        prime = self.seq(['L_prime:'] + [f'v_mov_b32 v{r}, 0' for r in range(D, D + 16)] + [f'v_mov_b32 v{FT}, 0', f'v_mov_b32 v{FT + 1}, 0'] + pcode)
        blk_a = ['L_blk:', f's_cmp_eq_u32 s{S_PREV}, 0', 's_cbranch_scc1 L_blkend',
                 f'v_readlane_b32 s{S_TW}, v{vAcc}, 63', f'v_ldexp_f32 v{vAcc}, v{vAcc}, s{S_EXPC}', f'v_mov_b32 v{FT}, s{S_RC}',
                 f's_cmp_eq_u32 s{S_PREV}, 2', 's_cbranch_scc1 L_good',
                 f's_cmp_eq_u64 s[{S_CHK}:{S_CHK + 1}], 0', 's_cbranch_scc1 L_slow',
                 f's_bfe_u32 s{S_TW}, s{S_TW}, 0x80017', f's_cmp_eq_u32 s{S_TW}, 255', 's_cbranch_scc1 L_slow',
                 'L_good:', 's_mov_b32 exec_lo, 0', 's_mov_b32 exec_hi, 0x80000000',
                 f'ds_write_b32 v{FT}, v{vAcc}', 's_mov_b64 exec, -1',
                 f's_add_u32 s{S_RC}, s{S_RC}, 32', f's_sub_u32 s{S_LOOP}, s{S_LOOP}, 1', f's_cmp_eq_u32 s{S_LOOP}, 0', 's_cbranch_scc1 L_cin_done']
        blk_a += [f's_cmp_eq_u32 s{S_LOOP}, 1', 's_cbranch_scc1 L_nodma']
        blk_b = xdma() + xidx()
        blk_b2 = ['L_nodma:'] + [f's_add_u32 s{S_BCUR}, s{S_BCUR}, s{S_BD}', f's_sub_u32 s{S_BD}, 0, s{S_BD}', f's_mov_b32 s{S_EXPC}, s{S_EXP}', f's_mov_b32 s{S_PH}, 1']
        blk_c = ['L_blkend:', f's_mov_b32 s{S_PREV}, s{S_PH}']
        parts = [[], [], [], [], []]
        cur = self.seq(['L_cin_loop:'])
        for m in range(4 * NM):
            if m == NM:
                parts[3] = cur
                cur = self.seq(['L_grp1:'])
            if o.gst and m % NM == 0:
                cur += self.seq([f's_memtime s[{S_ST}:{S_ST + 1}]', 's_add_u32 s100, s100, 1', 's_min_u32 s100, s100, 31', 's_waitcnt lgkmcnt(0)',
                                 's_mov_b32 m0, s100', f'v_writelane_b32 v253, s{S_ST}, m0'])
            if o.phi and m in (0, o.phi):
                cur += self.seq(prio(0 if m else 2, f'L_pr{m}'))
            cur += self.seq([mfma(m % NM)])
            for it in gaps[4 * NM + m]:
                if it.code == '@BLK':
                    parts[0] = cur + self.seq(sstamp() + ['s_waitcnt vmcnt(0)', f's_cmp_le_u32 s{S_LOOP}, {o.pfend}', 's_cbranch_scc1 L_blk'])
                    pfp = self.seq(pfx_b() + pfx_a() + pfw())
                    parts[1] = self.seq(blk_a)
                    parts[2] = self.seq(blk_b)
                    pb2 = self.seq(blk_b2)
                    cur = self.seq(blk_c)
                else:
                    cur += self.seq(keep(it.code))
        cur += self.seq([f's_cmp_lg_u32 s{S_LOOP}, 1', 's_cbranch_scc1 L_cin_loop'])
        parts[4] = cur
        tail = self.seq([it.code for m in range(NM) for it in gaps[4 * NM + m] if it.G == 3 and it.code != '@BLK'] + ['s_branch L_blk'])
        Q = RZ
        rows = [(g, r) for g in range(4) for r in range(8)][:31]
        L = ['L_slow:', f'v_lshlrev_b32 v{FT}, 1, v0', f'v_add_u32 v{FT + 1}, s{S_BCUR}, v{FT}',
             f's_mul_i32 s{S_TW}, s{S_WAVE}, {XBSZ}', f's_add_u32 s{S_TW}, s{S_TW}, {XSP}',
             f'v_add_u32 v{FT}, s{S_TW}, v{FT}', f'v_add_u32 v{vLin}, s{S_TW}, v{vLinB}']
        L += [f'v_subrev_u32 v{vRaw}, s{S_BD}, v{vRaw}'] + wait(F_PEEL, 8)
        L += [f'ds_read_u16 v{Q + n}, v{FT + 1} offset:{g * XPI + r * 128}' for n, (g, r) in enumerate(rows)]
        L += [f'v_lshlrev_b32 v{Q + n}, 16, v{Q + n}' for n in range(31)]
        L += absmax(vAcc, list(range(Q, Q + 31))) + dppred('v_max_u32', vAcc)
        L += [f'v_readlane_b32 s{S_TW}, v{vAcc}, 63', f's_lshr_b32 s{S_TW}, s{S_TW}, 23', f's_sub_i32 s{S_TW}, 134, s{S_TW}',
              f's_min_i32 s{S_TW}, s{S_TW}, 16',
              f's_lshl_b32 s{S_EXPC}, s{S_TW}, 2', f's_sub_i32 s{S_EXPC}, s{S_EXP}, s{S_EXPC}',
              f's_add_i32 s{S_TW}, s{S_TW}, 127', f's_lshl_b32 s{S_TW}, s{S_TW}, 23', f'v_mov_b32 v{Q + 31}, s{S_TW}']
        L += [f'v_mul_f32 v{Q + n}, s{S_TW}, v{Q + n}' for n in range(31)]
        L += [f'ds_write_b16_d16_hi v{FT + 1}, v{Q + n} offset:{g * XPI + r * 128}' for n, (g, r) in enumerate(rows)]
        L += [f'v_mul_f32 v{Q + n}, s{S_TW}, v{Q + n}' for n in range(32)]
        L += [f'ds_write_b16_d16_hi v{FT}, v{Q + n} offset:{g * XPI + r * 128}' for n, (g, r) in enumerate(rows + [(3, 7)])]
        L += [f's_mov_b32 s{S_PREV}, 0', f's_mov_b32 s{S_PH}, 2', 's_waitcnt lgkmcnt(0)', 's_branch L_prime']
        slow = self.seq(L)
        L = ['L_cin_done:'] + self.stamp(9) + self.stamp_flush() + ['s_waitcnt lgkmcnt(0)', 's_barrier',
             f's_cmp_lg_u32 s{S_WAVE}, 7', 's_cbranch_scc1 L_end',
             'v_lshlrev_b32 v3, 2, v0', f'v_add_u32 v2, {RC}, v3', 'ds_read_b32 v1, v2',
             f's_lshl_b32 s{S_T1}, s{S_ST0}, 2', f's_add_u32 s{S_T1}, s{S_T1}, s{S_T0}', f's_add_u32 s{S_T1}, s{S_T1}, {6 * 2048}',
             f's_bfm_b64 s[{S_MASK}:{S_MASK + 1}], s{S_CNT}, 0'] + self.pubprep_v() + [
             f's_mov_b64 exec, s[{S_MASK}:{S_MASK + 1}]', f'buffer_store_dword v1, v3, {srd(SRD_WS)}, s{S_T1} offen sc1', 's_branch L_pub']
        fin_ = self.seq(L)
        rest = parts[3] + parts[4]
        full = parts[0] + pfp + parts[1] + parts[2] + pb2 + rest
        nopf = parts[0] + parts[1] + parts[2] + pb2 + rest
        last = parts[0] + parts[1] + pb2 + rest
        redo = lambda pf: parts[1][:10] + slow + prime + parts[0] + (pfp if pf else []) + parts[1][:3] + rest
        end_ = tail + parts[1][:-2] + fin_ + self.pub
        main = peel2 + parts[4] + full + full + parts[0] + pfp + redo(1) + full + nopf + parts[0] + redo(0) + nopf + last + tail + redo(0) + end_
        main2 = peel2 + parts[4] + parts[0] + pfp + redo(1) + full + nopf + last + end_
        traces = []
        for w in range(8):
            tr = c0 + (g0a + cc + g0pf if w < 4 else g1a + cc + uc) + bld + ch[(w >> 1) & 1] + cv
            tr += (cv1 + (cv2 if w >= 4 else [])) if w & 2 else cv0
            for mn in (main, main2):
                traces.append(tr + peel1 + (peelw if w == 7 else []) + mn)
        return traces

    def build(self):
        pro = self.prologue()
        d = self.dnn()
        cs = self.cin()
        rm = self.rem()
        self.seq(['L_end:', 's_endpgm'])
        traces = [pro + c for c in d + cs + rm]
        for t in traces:
            resolve_waits(t)
        for _ in range(2):
            for t in traces:
                resolve_hazards(t)
        hdr = open(os.path.join(os.path.dirname(os.path.abspath(__file__)), 'header.txt')).read()
        txt = hdr + f'; @launch grid=(256,1,1) block=(512,1,1) lds={LDS_TOTAL}\n'
        txt += f'''.amdgcn_target "amdgcn-amd-amdhsa--gfx950"
{DOC}.text
.globl {KNAME}
.p2align 8
.type {KNAME},@function
{KNAME}:
'''
        body_ = self.P.emit()
        if 'wsame' in self.opt.dbg:
            body_ = body_.replace(f's_add_u32 s{S_WSOFF}, s{S_WSOFF}, {32 * 3328}', f's_xor_b32 s{S_WSOFF}, s{S_WSOFF}, 0')
        if 'xsame' in self.opt.dbg:
            import re as _re
            body_ = _re.sub(r'v_lshl_add_u32 v(2[4-9]|3[01]), v(1[6-9]), 7', r'v_lshl_add_u32 v\1, v16, 7', body_)
            body_ = _re.sub(r'v_lshl_add_u32 v(2[4-9]|3[01]), v(2[0-3]), 7', r'v_lshl_add_u32 v\1, v20, 7', body_)
            body_ = _re.sub(r'v_lshl_add_u32 v(2[4-9]|3[01]), v(9[6-9]), 7', r'v_lshl_add_u32 v\1, v96, 7', body_)
            body_ = _re.sub(r'v_lshl_add_u32 v(2[4-9]|3[01]), v(10[0-3]), 7', r'v_lshl_add_u32 v\1, v100, 7', body_)
            body_ = body_.replace('offen offset:12\n', 'offen offset:0\n').replace('offen offset:844\n', 'offen offset:832\n')
            body_ = body_.replace(f's_mov_b32 s{S_IDXOFF}, 28', f's_mov_b32 s{S_IDXOFF}, 0').replace(f's_add_u32 s{S_IDXOFF}, s{S_IDXOFF}, 16', 's_nop 0')
        if self.opt.align:
            for lab in ('L_dnn_loop0:', 'L_dnn_loop1:', 'L_cin_loop:', 'L_epi:'):
                pad = '  s_nop 0\n' if self.opt.align > 100 else ''
                body_ = body_.replace(lab + '\n', f'.p2align {self.opt.align % 100}\n{pad}{lab}\n')
        txt += body_
        txt += f'''.section .rodata,"a"
.p2align 6
.amdhsa_kernel {KNAME}
  .amdhsa_next_free_vgpr 256
  .amdhsa_next_free_sgpr 102
  .amdhsa_accum_offset 256
  .amdhsa_group_segment_fixed_size 0
  .amdhsa_kernarg_size 88
  .amdhsa_user_sgpr_count 2
  .amdhsa_user_sgpr_kernarg_segment_ptr 1
  .amdhsa_system_sgpr_workgroup_id_x 1
  .amdhsa_float_denorm_mode_32 {self.opt.denorm}
.end_amdhsa_kernel
'''
        return txt


def main():
    ap = argparse.ArgumentParser()
    ap.add_argument('-o', default='standalone__deep_cross_xdeepfm__recsys.s')
    ap.add_argument('--stamps', action='store_true')
    ap.add_argument('--padat', default='')
    ap.add_argument('--padmin', type=int, default=0)
    ap.add_argument('--nodma', action='store_true')
    ap.add_argument('--cpf', type=int, default=1)
    ap.add_argument('--coop', type=int, default=1)
    ap.add_argument('--coopw', type=int, default=2)
    ap.add_argument('--tbpos', type=int, default=0)
    ap.add_argument('--dbar3', type=int, default=1)
    ap.add_argument('--tlb', type=int, default=0)
    ap.add_argument('--tlb2', type=int, default=1)
    ap.add_argument('--itst', type=int, default=0)
    ap.add_argument('--diag', type=int, default=0)
    ap.add_argument('--dbg', default='')
    ap.add_argument('--lead3', type=int, default=1)
    ap.add_argument('--morder', type=int, default=0)
    ap.add_argument('--etlb', type=int, default=21)
    ap.add_argument('--lateb', type=int, default=0)
    ap.add_argument('--wfl', default='')
    ap.add_argument('--xfl', default='')
    ap.add_argument('--tag', type=int, default=0)
    ap.add_argument('--idxfirst', type=int, default=1)
    ap.add_argument('--bpos', type=int, default=2)
    ap.add_argument('--sigat', type=int, default=4)
    ap.add_argument('--epx', type=int, default=1)
    ap.add_argument('--denorm', type=int, default=3)
    ap.add_argument('--mprio', type=int, default=0)
    ap.add_argument('--swap', type=int, default=0)
    ap.add_argument('--bov', type=int, default=1)
    ap.add_argument('--rfirst', type=int, default=0)
    ap.add_argument('--g1x', type=int, default=0)
    ap.add_argument('--ldsred', type=int, default=0)
    ap.add_argument('--csnake', type=int, default=0)
    ap.add_argument('--cswap', type=int, default=0)
    ap.add_argument('--align', type=int, default=0)
    ap.add_argument('--c2', type=int, default=0)
    ap.add_argument('--d1', type=int, default=0)
    ap.add_argument('--cstr', type=int, default=3)
    ap.add_argument('--bearly', type=int, default=1)
    ap.add_argument('--w2late', type=int, default=1)
    ap.add_argument('--aov', type=int, default=5)
    ap.add_argument('--upos', type=int, default=1)
    ap.add_argument('--calt', type=int, default=1)
    ap.add_argument('--pfpos', type=int, default=1)
    ap.add_argument('--wlate', type=int, default=0)
    ap.add_argument('--dbar2', type=int, default=0)
    ap.add_argument('--dbar', type=int, default=0)
    ap.add_argument('--pfw', type=int, default=1)
    ap.add_argument('--pfx', type=int, default=3)
    ap.add_argument('--pfx0', type=int, default=4)
    ap.add_argument('--pfs', type=int, default=14)
    ap.add_argument('--dcoopx', type=int, default=1)
    ap.add_argument('--dcx0', type=int, default=0)
    ap.add_argument('--dcxpos', type=int, default=-1)
    ap.add_argument('--pfe0', type=int, default=2)
    ap.add_argument('--pfne', type=int, default=14)
    ap.add_argument('--prio47', type=int, default=0)
    ap.add_argument('--lookahead', type=int, default=5)
    ap.add_argument('--nz', type=int, default=6)
    ap.add_argument('--nwf', type=int, default=8)
    ap.add_argument('--hiat', type=int, default=4)
    ap.add_argument('--wmerge', type=int, default=0)
    ap.add_argument('--gapv', type=int, default=2)
    ap.add_argument('--lat', type=int, default=5)
    ap.add_argument('--eprio', type=int, default=1)
    ap.add_argument('--nopk', type=int, default=0)
    ap.add_argument('--w1first', type=int, default=0)
    ap.add_argument('--xpos', type=int, default=0)
    ap.add_argument('--z1lo', type=int, default=40)
    ap.add_argument('--pfend', type=int, default=2)
    ap.add_argument('--gst', type=int, default=0)
    ap.add_argument('--gapl', type=int, default=2)
    ap.add_argument('--gapt', type=int, default=2)
    ap.add_argument('--wcost', type=int, default=2)
    ap.add_argument('--bprio', type=int, default=1)
    ap.add_argument('--c1hi', type=int, default=-8)
    ap.add_argument('--c2hi', type=int, default=12)
    ap.add_argument('--rspan', type=int, default=34)
    ap.add_argument('--rlead', type=int, default=16)
    ap.add_argument('--pfd', type=int, default=10)
    ap.add_argument('--mo', type=int, default=2)
    ap.add_argument('--ba', type=int, default=6)
    ap.add_argument('--sig2', type=int, default=4)
    ap.add_argument('--drop', default='')
    ap.add_argument('--al8', type=int, default=0)
    ap.add_argument('--alph', type=int, default=0)
    ap.add_argument('--almm', type=int, default=0)
    ap.add_argument('--phi', type=int, default=123)
    ap.add_argument('--rawlo', type=int, default=8)
    ap.add_argument('--flo', type=int, default=3)
    opt = ap.parse_args()
    resolve_waits.dbg = 'dup' in opt.dbg
    g = Gen(opt)
    txt = g.build()
    if opt.al8:
        import align8
        rg = []
        if opt.al8 & 1:
            rg.append(('L_cin_loop', 'L_slow'))
        if opt.al8 & 2:
            rg += [('L_dnn_loop0', 'L_dnn_h1'), ('L_dnn_loop1', 'L_epi')]
        if opt.al8 & 4:
            rg += [('L_epi', 'L_pub')]
        txt = align8.align(txt, rg, opt.alph, opt.almm)
    open(opt.o, 'w').write(txt)
    print('wrote', opt.o, len(txt), 'bytes')


if __name__ == '__main__':
    main()
```

```python
import sys, os, struct, argparse
sys.path.insert(0, os.path.dirname(os.path.abspath(__file__)))
from cinplan import ZD, cls
from asmlib import I, WaitTag, Prog, resolve_waits, resolve_hazards

KNAME = 'standalone__deep_cross_xdeepfm__recsys_kernel'
LDS_TOTAL = 163840

XSLOT = 16384
WR = 4 * XSLOT
WP = 640
WSLOT = 32 * WP
L_BIAS = WR + 4 * WSLOT
L_W2 = L_BIAS + WP
RB = 2 * XSLOT
RWR = 131072

ASZ = 35264
A1 = 1024
A2 = A1 + ASZ
A3 = A2 + ASZ
UST = 1356
V3OFF = A3 + ASZ
V2OFF = V3OFF + 2048
L_WCO = V2OFF + 1408
L_FLG = L_WCO + 192
RC = L_FLG + 64
XB0 = RC + 512
XPI = 1056
XBSZ = 4 * XPI
XB1 = A3
TA = A1
TC = TA + 11 * 1024
TD = TC + 11 * 1024
TB = A2
LL = TB + 11 * 1024
XSP = A1
XCH = XB0 + 8 * XBSZ
OOB = 0x100000
NCLR = 56
NPOOL = 224
assert XCH + 8192 <= LDS_TOTAL and XB0 % 16 == 0 and A2 % 16 == 0 and A3 % 16 == 0 and L_WCO % 16 == 0
assert LL + 3072 <= A3 and 8 * XBSZ <= ASZ and TD + 11 * 1024 <= A2

S_WAVE = 3
S_IDX, S_TAB, S_CIN, S_WCO, S_W1, S_B1, S_W2, S_BO, S_OUT, S_DBG, S_WS = 4, 6, 8, 10, 12, 14, 16, 18, 20, 22, 24
S_MB, S_R = 26, 27
SRD_IDX, SRD_TAB, SRD_CIN, SRD_WCO, SRD_W, SRD_B1, SRD_W2, SRD_OUT, SRD_WS, SRD_DBG = 28, 32, 36, 40, 44, 48, 52, 56, 60, 64
S_T0, S_T1, S_T2, S_T3 = 68, 69, 70, 71
S_LOOP, S_IDXOFF, S_WSOFF, S_WMB, S_XM0, S_N0, S_C0, S_CW, S_BOUT, S_TW = 72, 73, 74, 75, 76, 77, 78, 79, 80, 81
S_EX = 82
S_GRP, S_RC = 84, 85
S_ST = 86
S_M26, S_MASK = 90, 92
S_SAMP, S_STG, S_STG9, S_TGT = 94, 95, 96, 97
S_M26B = 98
S_GW = 100
S_TAGT = 0
S_TAG = 1
S_PW = 101
S_PX = 77
S_PXE = 73

GELU_C0 = -2.0 * 0.7978845608028654 * 1.4426950408889634
GELU_C1 = GELU_C0 * 0.044715


def f32hex(x):
    return '0x%08x' % struct.unpack('<I', struct.pack('<f', x))[0]


def vr(a, n):
    return f'v[{a}:{a + n - 1}]' if n > 1 else f'v{a}'


def srd(a):
    return f's[{a}:{a + 3}]'


def flat(gs):
    res = []
    for c in gs:
        if isinstance(c, (tuple, list)):
            res += flat(c)
        else:
            res.append(c)
    return res


def interleave(a, b):
    out = []
    ia = ib = 0
    na, nb = len(a), len(b)
    while ia < na or ib < nb:
        if ib >= nb or (ia < na and ia * nb <= ib * na):
            out.append(a[ia]); ia += 1
        else:
            out.append(b[ib]); ib += 1
    return out


assert all((d * 2521) >> 16 == d // 26 for d in range(800))
assert all((d * 10923) >> 16 == d // 6 for d in range(64))
assert all((d * 1561) >> 16 == d // 42 for d in range(176))


DOC = '''; ---------------------------------------------------------------------------------------------
;
;       V3[h,k]  = sum_g wo[52+g] W3[g,h,k]          V2[i,j] = sum_h wo[26+h] W2[h,i,j]
;       U[i,j,k] = sum_h W2[h,i,j] V3[h,k]
;       g1[i]    = wo[i] + sum_j V2[i,j] x_j + sum_jk U[i,j,k] x_j x_k
;   Both quadratic forms use the 351 distinct products x_j x_k (j<=k) with symmetrised weights,
; Work split: per block of 128 samples, 5 workgroups do the DNN branch (128 x 336 output tiles) and
;   3 workgroups the CIN branch; partial logits go through d_ws (sc1) and a counter in d_debug,
;   the last arriver of a block adds them up and writes d_out.
; ---------------------------------------------------------------------------------------------
'''


class Gen:
    def __init__(self, opt):
        self.opt = opt
        self.P = Prog()
        self.role = 'x'

    def seq(self, lines):
        return [self.P.add(l) for l in flat(lines)]

    def build_srd(self, dst, ptr, size):
        return [f's_mov_b32 s{dst}, s{ptr}', f's_and_b32 s{dst + 1}, s{ptr + 1}, 0xffff',
                f's_mov_b32 s{dst + 2}, {size}', f's_mov_b32 s{dst + 3}, 0x20000']

    def stamp(self, slot):
        if self.opt.padat == f'{self.role}{slot}':
            return [f's_memrealtime s[88:89]', 's_waitcnt lgkmcnt(0)']
        if not self.opt.stamps:
            return []
        return [f's_memtime s[{S_ST}:{S_ST + 1}]', f's_memrealtime s[{S_ST + 2}:{S_ST + 3}]', 's_waitcnt lgkmcnt(0)',
                f'v_writelane_b32 v252, s{S_ST}, {slot}', f'v_writelane_b32 v253, s{S_ST + 2}, {slot}']

    def stamp_flush(self):
        if not self.opt.stamps:
            return []
        L = self.build_srd(SRD_WS, S_WS, 0x10000000)
        L += [f's_lshl_b32 s{S_C0}, s2, 3', f's_add_u32 s{S_C0}, s{S_C0}, s{S_WAVE}',
              f's_lshl_b32 s{S_C0}, s{S_C0}, 8', f's_add_u32 s{S_C0}, s{S_C0}, 0x100000',
              'v_lshlrev_b32 v254, 3, v0', 's_mov_b32 exec_hi, 0',
              f'buffer_store_dwordx2 v[252:253], v254, {srd(SRD_WS)}, s{S_C0} offen', 's_mov_b32 exec_hi, -1']
        return L

    def stamp0(self):
        if not self.opt.stamps:
            return []
        return ['v_mov_b32 v252, 0xcdcdcdcd', 'v_mov_b32 v253, 0xcdcdcdcd',
                f'v_writelane_b32 v252, s{S_ST}, 0', f'v_writelane_b32 v253, s{S_ST + 2}, 0'] + self.stamp(15)

    def tlb2(self, t, vflag):
        L = self.build_srd(SRD_WS, S_WS, 0x10000000) + self.build_srd(SRD_DBG, S_DBG, 256)
        L += [f'v_mov_b32 v{t}, 0',
              ('s_mov_b64 exec, 1', f's_mov_b32 s{S_TW}, 0x80000',
               f'buffer_load_dword v255, v{t}, {srd(SRD_WS)}, s{S_TW} offen',
               f'buffer_load_dword v{vflag}, v{t}, {srd(SRD_DBG)}, 0 offen offset:128 sc1',
               's_mov_b64 exec, -1')]
        return L

    def cleared(self, lab, t, vflag):
        return [f'v_readfirstlane_b32 s{S_TW}, v{vflag}', f's_cmp_eq_u32 s{S_TW}, {NCLR}', f's_cbranch_scc1 {lab}_ok', f'v_mov_b32 v{t}, 0', f's_mov_b32 s{S_C0}, 0x200000',
                f'{lab}:', f's_sub_u32 s{S_C0}, s{S_C0}, 1', 's_cbranch_scc1 L_end', f'buffer_load_dword v{vflag}, v{t}, {srd(SRD_DBG)}, 0 offen offset:128 sc1', 's_waitcnt vmcnt(0)',
                f'v_readfirstlane_b32 s{S_TW}, v{vflag}', f's_cmp_lg_u32 s{S_TW}, {NCLR}', f's_cbranch_scc1 {lab}', f'{lab}_ok:']

    def padsig(self):
        o = self.opt
        if not o.padat:
            return []
        return ([f's_not_b32 s88, s88'] if o.padmin else []) + ['v_mov_b32 v7, s88', 'v_mov_b32 v8, 4', 's_mov_b64 exec, 1',
                f'buffer_atomic_umax v7, v8, {srd(SRD_DBG)}, 0 offen', 's_mov_b64 exec, -1']

    def tlb1(self, vtmp, vdst):
        if not self.opt.etlb:
            return self.build_srd(SRD_TAB, S_TAB, 100000 * 128)
        return self.build_srd(SRD_TAB, S_TAB, 100000 * 128) + [
            f'v_mov_b32 v{vtmp}, s{S_BOUT}', f'buffer_load_dword v{vdst}, v{vtmp}, {srd(SRD_TAB)}, 0 offen']

    def prologue(self):
        L = []
        if self.opt.padat == 'start':
            L += ['s_memrealtime s[88:89]']
        elif self.opt.padat:
            L += [f's_mov_b32 s88, {-1 if self.opt.padmin else 0}']
        if self.opt.stamps:
            L += [f's_memtime s[{S_ST}:{S_ST + 1}]', f's_memrealtime s[{S_ST + 2}:{S_ST + 3}]']
        L += ['s_cmp_ge_u32 s2, 256', 's_cbranch_scc1 L_end',
              's_load_dwordx16 s[4:19], s[0:1], 0',
              's_load_dwordx4 s[20:23], s[0:1], 64',
              's_load_dwordx2 s[24:25], s[0:1], 80',
              'v_lshrrev_b32 v1, 6, v0']
        if self.opt.cpf:
            L += [f's_getpc_b64 s[{S_MASK}:{S_MASK + 1}]', 'L_pc:',
                  f's_and_b32 s{S_T0}, s2, 0xf8', f'v_add_u32 v2, s{S_T0}, v1', 'v_lshlrev_b32 v2, 7, v2',
                  f'v_min_u32 v2, L_end-L_pc, v2',
                  f'v_mov_b32 v3, s{S_MASK + 1}',
                  f'v_add_co_u32 v2, vcc, s{S_MASK}, v2', 'v_addc_co_u32 v3, vcc, 0, v3, vcc',
                  'global_load_dword v255, v[2:3], off']
        L += ['v_and_b32 v0, 63, v0',
              f'v_readfirstlane_b32 s{S_WAVE}, v1',
              f's_and_b32 s{S_T0}, s2, 7', f's_lshl_b32 s{S_T0}, s{S_T0}, 2',
              f's_lshr_b32 s{S_MB}, s2, 6', f's_add_u32 s{S_MB}, s{S_MB}, s{S_T0}',
              f's_bfe_u32 s{S_R}, s2, 0x30003',
              f's_and_b32 s{S_BOUT}, s2, 0xf8', f's_add_u32 s{S_BOUT}, s{S_BOUT}, s{S_WAVE}', f's_lshl_b32 s{S_BOUT}, s{S_BOUT}, {self.opt.etlb}',
              f's_cmp_ge_u32 s{S_R}, 5', 's_cbranch_scc1 L_cin']
        return self.seq(L)

    def gelu(self, groups, TB, KC0, KC1, KONE):
        p2 = lambda r: vr(r, 2)
        L = []
        seen = set()
        for k, vals in enumerate(groups):
            tb = TB + (k % 2) * 16
            V_ = [(x, w, s_, tb + 4 * i_, tb + 4 * i_ + 2) for i_, (x, w, s_) in enumerate(vals)]
            for (x, w, s_, t, u) in V_:
                L.append(f'v_pk_mul_f32 {p2(t)}, {p2(x)}, {p2(x)}')
            for (x, w, s_, t, u) in V_:
                L.append(f'v_pk_fma_f32 {p2(t)}, {p2(t)}, {p2(KC1)}, {p2(KC0)}')
            for (x, w, s_, t, u) in V_:
                L.append(f'v_pk_mul_f32 {p2(t)}, {p2(t)}, {p2(x)}')
            for (x, w, s_, t, u) in V_:
                L += [f'v_exp_f32 v{t}, v{t}', f'v_exp_f32 v{t + 1}, v{t + 1}']
            for (x, w, s_, t, u) in V_:
                L.append(f'v_pk_fma_f32 {p2(t)}, {p2(t)}, {p2(w)}, {p2(w)}')
            for (x, w, s_, t, u) in V_:
                L += [f'v_rcp_f32 v{t}, v{t}', f'v_rcp_f32 v{t + 1}, v{t + 1}']
            for (x, w, s_, t, u) in V_:
                if s_ in seen:
                    L.append(f'v_pk_fma_f32 {p2(s_)}, {p2(t)}, {p2(x)}, {p2(s_)}')
                else:
                    L.append(f'v_pk_mul_f32 {p2(s_)}, {p2(t)}, {p2(x)}')
                    seen.add(s_)
        if self.opt.nopk:
            import re as _re
            L2 = []
            for x in L:
                if x.startswith('v_pk_'):
                    mn = x.split()[0].replace('v_pk_', 'v_')
                    rs = [int(r) for r in _re.findall(r'v\[(\d+):', x)]
                    L2 += [f'{mn} ' + ', '.join(f'v{r + h}' for r in rs) for h in range(2)]
                else:
                    L2.append(x)
            L = L2
        return L

    def red4(self, SUMP):
        sm = lambda tm: SUMP + 2 * tm
        L = [f'v_add_f32 v{sm(tm)}, v{sm(tm)}, v{sm(tm) + 1}' for tm in range(4)]
        L += [f'v_permlane32_swap_b32 v{sm(tm)}, v{sm(tm + 2)}' for tm in range(2)]
        L += [f'v_add_f32 v{sm(tm)}, v{sm(tm)}, v{sm(tm + 2)}' for tm in range(2)]
        L += [f'v_permlane16_swap_b32 v{sm(0)}, v{sm(1)}', f'v_add_f32 v{sm(0)}, v{sm(0)}, v{sm(1)}']
        return L

    def kconst(self, KC0, KC1, KONE):
        return [f'v_mov_b32 v{KC0}, {f32hex(GELU_C0)}', f'v_mov_b32 v{KC0 + 1}, {f32hex(GELU_C0)}',
                f'v_mov_b32 v{KC1}, {f32hex(GELU_C1)}', f'v_mov_b32 v{KC1 + 1}, {f32hex(GELU_C1)}',
                f'v_mov_b32 v{KONE}, 0x71800000']

    def winv(self, R, n, KONE):
        return [f'v_rcp_f32 v{R + k}, v{R + k}' for k in range(n)] + [f'v_med3_f32 v{R + k}, v{R + k}, -v{KONE}, v{KONE}' for k in range(n)]

    def dnn(self):
        o = self.opt
        self.role = 'd'
        vW = [[1, 2, 3, 4, 5], [6, 7, 8, 9, 10]]
        vX = [11, 12]
        vIdxOff, vCh = 13, [14, 15]
        ST = [16, 20]
        VO = 24
        vWD = [32, 33, 34]
        vP, vPc, vBL = 35, 36, 37
        WF = 40
        XA = 80
        T = 112
        W2F = 112
        ACC = 140
        PK = 220
        SUMP, KC0, KC1, KONE = 16, 232, 234, 236
        WL = 3

        def acc(tn, tm):
            return ACC + (tn * 4 + tm) * 4

        HH, SL = S_T0, S_T1
        g, i4, q = T + 18, T + 19, T + 20
        PI, vCW = T + 8, T + 12
        nr = o.coopw
        L = [f's_mul_i32 s{S_N0}, s{S_R}, {WP}',
             f's_mul_i32 s{S_T2}, s{S_WAVE}, 7', f'v_min_u32 v{q}, 6, v0', f'v_add_u32 v{q}, s{S_T2}, v{q}', f'v_min_u32 v{q}, 51, v{q}',
             f'v_lshrrev_b32 v{g}, 1, v{q}', f'v_mul_u32_u24 v{g}, 96, v{g}', f'v_lshl_add_u32 v{q}, v{q}, 2, v{g}',
             f's_mul_i32 s{S_C0}, s{S_R}, 26', f's_min_u32 s{S_C0}, s{S_C0}, 102', f's_lshl_b32 s{S_T3}, s{S_MB}, 7',
             f's_add_u32 s{S_C0}, s{S_C0}, s{S_T3}', f's_mul_i32 s{S_C0}, s{S_C0}, 104',
             f's_and_b32 s{S_T2}, s{S_MB}, 3', f's_lshl_b32 s{S_T2}, s{S_T2}, 3', f's_add_u32 s{S_T2}, s{S_T2}, s{S_WAVE}',
             f's_mul_i32 s{S_T2}, s{S_T2}, 3328', f's_add_u32 s{S_TW}, s{S_T2}, s{S_N0}',
             f'v_min_u32 v{vCW}, {8 * nr - 1}, v0', f'v_lshrrev_b32 v{g}, 3, v{vCW}', f's_mov_b32 s{S_T2}, {32 * 3328}',
             f'v_mul_u32_u24 v{g}, s{S_T2}, v{g}',
             f'v_and_b32 v{vCW}, 7, v{vCW}', f'v_min_u32 v{vCW}, 4, v{vCW}', f'v_lshl_add_u32 v{vCW}, v{vCW}, 7, v{g}',
             's_waitcnt lgkmcnt(0)']
        L += self.build_srd(SRD_IDX, S_IDX, 4096 * 104)
        L += [f'buffer_load_dwordx3 {vr(PI, 3)}, v{q}, {srd(SRD_IDX)}, s{S_C0} offen']
        L += self.tlb1(T + 24, 255)
        vec = lambda dst, sr: [f's_mov_b32 m0, {dst}', 's_mov_b32 exec_hi, 0xff',
                               I(f'buffer_load_dwordx4 v{vBL}, {srd(sr)}, s{S_N0} offen lds', tag='BIAS'), 's_mov_b64 exec, -1']
        L += [f'v_lshlrev_b32 v{vBL}, 4, v0'] + self.build_srd(SRD_B1, S_B1, 3328)
        L += self.build_srd(SRD_W, S_W1, 1664 * 3328)
        L += [f'buffer_load_dword v255, v{vCW}, {srd(SRD_W)}, s{S_TW} offen']
        L += vec(L_BIAS, SRD_B1)
        L += self.stamp0()
        L += [f's_lshr_b32 s{HH}, s{S_WAVE}, 2', f's_and_b32 s{SL}, s{S_WAVE}, 3',
              f's_lshl_b32 s{S_T2}, s{S_WAVE}, 4', f's_add_u32 s{S_T2}, s{S_T2}, s{S_T3}',
              f'v_lshrrev_b32 v{T + 16}, 3, v0', f'v_add_u32 v{T + 16}, s{S_T2}, v{T + 16}',
              f'v_mul_u32_u24 v{vIdxOff}, 104, v{T + 16}',
              f's_mul_i32 s{S_T3}, s{HH}, 192', f's_mov_b32 s{S_T2}, 1639', f's_and_b32 s{S_C0}, s{SL}, 1', f's_lshl_b32 s{S_C0}, s{S_C0}, 2',
              f's_mov_b32 s{S_TW}, 3328', f'v_add_u32 v{T + 16}, s{S_T3}, v0']
        for u in range(3):
            ci, rr = T + 16, T + 17
            L += [f'v_mul_u32_u24 v{rr}, s{S_T2}, v{ci}', f'v_lshrrev_b32 v{rr}, 16, v{rr}',
                  f'v_mul_u32_u24 v{q}, 40, v{rr}', f'v_sub_u32 v{q}, v{ci}, v{q}',
                  f'v_and_b32 v{i4}, 2, v{rr}', f'v_or_b32 v{i4}, s{S_C0}, v{i4}', f'v_xor_b32 v{q}, v{q}, v{i4}',
                  f'v_mul_u32_u24 v{rr}, s{S_TW}, v{rr}', f'v_lshl_add_u32 v{vWD[u]}, v{q}, 4, v{rr}']
            if u:
                L += [f'v_subrev_u32 v{vWD[u]}, {1024 * u}, v{vWD[u]}']
            if u < 2:
                L += [f'v_add_u32 v{ci}, 64, v{ci}']
        L += [f's_mul_i32 s{S_T2}, s{SL}, {8 * 3328}', f's_add_u32 s{S_WSOFF}, s{S_T2}, s{S_N0}',
              f's_mul_i32 s{S_WMB}, s{SL}, {8 * WP}', f's_mul_i32 s{S_T2}, s{HH}, 3072', f's_add_u32 s{S_WMB}, s{S_WMB}, s{S_T2}',
              f's_lshl_b32 s{S_XM0}, s{S_WAVE}, 11',
              f'v_and_b32 v{q}, 7, v0', f'v_lshrrev_b32 v{g}, 4, v0',
              f'v_xor_b32 v{q}, v{q}, v{g}', f'v_lshlrev_b32 v{vCh[0]}, 4, v{q}',
              f'v_xor_b32 v{vCh[1]}, 64, v{vCh[0]}']
        L += self.build_srd(SRD_W2, S_W2, 3328)
        L += [f's_lshr_b32 s{S_T2}, s{S_WAVE}, 1', f's_mul_i32 s{S_T3}, s{S_T2}, 5',
              f'v_bfe_u32 v{i4}, v0, 2, 2', f'v_lshl_add_u32 v{q}, v{g}, 3, v{i4}', f'v_mul_u32_u24 v{q}, {WP}, v{q}',
              f'v_and_b32 v{i4}, 3, v0', f'v_lshl_add_u32 v{q}, v{i4}, 3, v{q}', f'v_add_u32 v{q}, {WR}, v{q}',
              f'v_bfe_u32 v{i4}, v0, 3, 2']
        for i in range(5):
            L += [f'v_xor_b32 v{T + 16}, s{S_T3}, v{i4}', f'v_lshl_add_u32 v{vW[0][i]}, v{T + 16}, 5, v{q}',
                  f'v_add_u32 v{vW[1][i]}, {2 * WSLOT}, v{vW[0][i]}', f's_add_u32 s{S_T3}, s{S_T3}, 1']
        L += [f's_mul_i32 s{S_T3}, s{S_T2}, 160', f's_add_u32 s{S_T3}, s{S_T3}, {L_BIAS}',
              f'v_lshlrev_b32 v{q}, 3, v{g}', f'v_add_u32 v{vP}, s{S_T3}, v{q}',
              f'v_and_b32 v{q}, 15, v0', f'v_lshlrev_b32 v{q}, 7, v{q}',
              f'v_bfe_u32 v{i4}, v0, 1, 3', f'v_xor_b32 v{i4}, v{i4}, v{g}',
              f'v_lshl_add_u32 v{q}, v{i4}, 4, v{q}',
              f's_lshl_b32 s{S_T3}, s{S_C0}, 11', f'v_add_u32 v{vX[0]}, s{S_T3}, v{q}', f'v_xor_b32 v{vX[1]}, 64, v{vX[0]}',
              f's_lshl_b32 s{S_T2}, s{S_WAVE}, 8', f's_add_u32 s{S_T2}, s{S_T2}, {RB}',
              f'v_lshlrev_b32 v{vPc}, 2, v0', f'v_add_u32 v{vPc}, s{S_T2}, v{vPc}']

        def wld(u):
            return I(f'buffer_load_dwordx4 v{vWD[u]}, {srd(SRD_W)}, s{S_WSOFF} offen offset:{1024 * u} lds', tag='W')
        wadv = f's_add_u32 s{S_WSOFF}, s{S_WSOFF}, {32 * 3328}'

        def xld(f, pc, tag, slot=None):
            slot = f if slot is None else slot
            return [f's_add_u32 m0, s{S_XM0}, {slot * XSLOT + pc * 1024}',
                    I(f'buffer_load_dwordx4 v{VO + 2 * f + pc}, {srd(SRD_TAB)}, 0 offen lds', tag=tag)]
        pkreads = lambda off: [f'ds_read_b64 {vr(PK + 2 * tn, 2)}, v{vP} offset:{off + 32 * tn}' for tn in range(5)]

        def unp(dst):
            c = []
            for tn in range(5):
                for d in range(2):
                    c += [f'v_lshlrev_b32 v{dst(tn) + 2 * d}, 16, v{PK + 2 * tn + d}', f'v_and_b32 v{dst(tn) + 2 * d + 1}, 0xffff0000, v{PK + 2 * tn + d}']
            return c

        def reads(k8):
            par = k8 % 2
            sl = k8 % 4
            wo = (sl % 2) * WSLOT
            xo = ((k8 // 2) % 4) * XSLOT
            R = [f'ds_read_b128 {vr(XA + 16 * par + 4 * tm, 4)}, v{vX[par]} offset:{xo + tm * 2048}' for tm in range(4)]
            R += [f'ds_read_b64_tr_b16 {vr(WF + 20 * par + 4 * tn + 2 * rd, 2)}, v{vW[sl // 2][tn]} offset:{wo + rd * 4 * WP}' for tn in range(5) for rd in range(2)]
            return R

        trs = [[], []]
        nsk = [0]

        def flush():
            nonlocal L
            c = self.seq(L)
            trs[0] += c; trs[1] += c
            L = []

        def wstage_p(slot):
            nonlocal L
            nsk[0] += 1
            L += [f's_add_u32 m0, s{S_WMB}, {WR + slot * WSLOT}', f's_cmp_lg_u32 s{HH}, 0', wld(0), wld(1), f's_cbranch_scc1 L_wsk{nsk[0]}']
            flush()
            trs[0] += self.seq([wld(2)])
            L += [f'L_wsk{nsk[0]}:', wadv]
        L += [f'v_lshlrev_b32 v{PI}, 7, v{PI}']
        L += [f'buffer_load_dwordx4 {vr(T + 4 * pc, 4)}, v{vIdxOff}, {srd(SRD_IDX)}, 0 offen offset:{pc * 832}' for pc in range(2)] + ['s_barrier']
        L += [f'buffer_load_dword v255, v{PI}, {srd(SRD_TAB)}, 0 offen',
              f'v_lshlrev_b32 v{PI + 2}, 7, v{PI + 2}', f'buffer_load_dword v255, v{PI + 2}, {srd(SRD_TAB)}, 0 offen']
        L += self.stamp(6)
        wstage_p(0)
        L += [WaitTag(vm_tags=['BIAS'])] + pkreads(0) + unp(lambda tn: acc(tn, 0))
        L += [f'v_mov_b64 {vr(acc(tn, tm) + 2 * d, 2)}, {vr(acc(tn, 0) + 2 * d, 2)}' for tn in range(5) for tm in range(1, 4) for d in range(2)]
        for f in range(4):
            for pc in range(2):
                L.append(f'v_lshl_add_u32 v{VO + 2 * f + pc}, v{T + 4 * pc + f}, 7, v{vCh[pc]}')
                if f < 2:
                    L += xld(f, pc, 'X0' if f == 0 else 'X')
            if f == 0:
                L += self.stamp(7) + ['s_barrier']
                wstage_p(1)
        L += [f'buffer_load_dwordx4 {vr(ST[pc], 4)}, v{vIdxOff}, {srd(SRD_IDX)}, 0 offen offset:{pc * 832 + 12}' for pc in range(2)]
        L += [f's_mov_b32 s{S_LOOP}, 0', f's_mov_b32 s{S_IDXOFF}, 28']
        L.append(WaitTag(vm_tags=['X0'], lgkm0=True))
        L += self.stamp(1) + ['s_barrier'] + self.stamp(2)
        L += reads(0)
        wstage_p(2)
        L += xld(2, 0, 'X') + [f'v_mov_b32 v{VO + 7}, v{VO + 5}', f's_cmp_lg_u32 s{HH}, 0', 's_cbranch_scc1 L_dnn_h1']
        flush()

        def mf(tn, tm, par):
            a = acc(tn, tm)
            return f'v_mfma_f32_16x16x32_bf16 {vr(a, 4)}, {vr(WF + 20 * par + 4 * tn, 4)}, {vr(XA + 16 * par + 4 * tm, 4)}, {vr(a, 4)}'

        def step(n, inloop, half):
            n8 = n % 8
            par = n8 % 2
            NW = 3 - half
            M = [mf(tn, tm if tn % 2 == 0 else 3 - tm, par) for tn in range(5) for tm in range(4)]
            R, D_, E, V = [], [], [], []
            wst = lambda slot: [(f's_add_u32 m0, s{S_WMB}, {WR + slot * WSLOT}', wld(0))] + [(wld(u),) for u in range(1, NW - 1)] + [(wld(NW - 1), wadv)]
            if inloop or n < 51:
                R = reads((n8 + 1) % 8)
            if inloop:
                D_ += wst((n8 + WL) % 4)
                f = ((n8 + 7) % 8) // 2
                D_ += [tuple(xld(f, 1 - par, 'X', (f + WL) % 4))]
                if n8 == 0:
                    for ff in range(4):
                        for pc in range(2):
                            (V if half == 1 and o.vin else E).append(f'v_lshl_add_u32 v{VO + 2 * ff + pc}, v{ST[pc] + ff}, 7, v{vCh[pc]}')
                if n8 == 1:
                    for pc in range(2):
                        E.append(f'buffer_load_dwordx4 {vr(ST[pc], 4)}, v{vIdxOff}, {srd(SRD_IDX)}, s{S_IDXOFF} offen offset:{pc * 832}')
                    E.append(f's_add_u32 s{S_IDXOFF}, s{S_IDXOFF}, 16')
                if n8 == 4 and half == 1:
                    E += [tuple(vec(L_W2, SRD_W2))]
                if n8 == 7:
                    E += [f's_add_u32 s{S_LOOP}, s{S_LOOP}, 1', f's_cmp_lt_u32 s{S_LOOP}, 6']
                W_ = [WaitTag(allbut=('W', NW), lgkm0=True)]
            elif n == 48:
                W_ = [WaitTag(allbut=('W', NW), lgkm0=True)]
                D_ += wst(3)
                R = R + pkreads(WP)
                V = self.kconst(KC0, KC1, KONE)
                if half == 0:
                    E += self.tlb2(VO, vBL)
            elif n == 49:
                W_ = [WaitTag(vm0=True, lgkm0=True)]
                V = unp(lambda tn: W2F + 4 * tn) + self.winv(W2F, 20, KONE)[:4]
            elif n == 50:
                W_ = ['s_waitcnt lgkmcnt(0)']
                V = self.winv(W2F, 20, KONE)[4:18]
            else:
                W_ = []
                V = self.winv(W2F, 20, KONE)[18:]
            if V:
                nm_ = len(M) - (o.aov if half == 0 else 1)
                M = [(M[k],) + tuple(V[k * len(V) // nm_:(k + 1) * len(V) // nm_]) for k in range(nm_)] + M[nm_:]
            fill = interleave(R, D_) + E
            S = ['s_barrier'] if (inloop or n < 51) else []
            if half == 0:
                k = o.aov
                S += M[:len(M) - k] + interleave(M[len(M) - k:], fill[:2 * k]) + fill[2 * k:] + W_
            else:
                kb = o.bov
                if n == 51 and not inloop and o.eprio:
                    S += ['s_setprio 3']
                S += fill + M[:len(M) - kb] + W_ + M[len(M) - kb:]
                if n == 51 and not inloop and o.eprio == 1:
                    S += ['s_setprio 0']
            return S

        for half in range(2):
            th = trs[half]
            th += self.seq([f'L_dnn_h{half}:', WaitTag(allbut=('W', 3 - half), lgkm0=True)])
            body = self.seq([f'L_dnn_loop{half}:'])
            for n8 in range(8):
                S = step(n8, True, half)
                if n8 == 7:
                    if o.stamps and o.itst:
                        S = [f's_memtime s[{S_ST}:{S_ST + 1}]', f's_memrealtime s[{S_ST + 2}:{S_ST + 3}]', f's_add_u32 s{S_C0}, s{S_LOOP}, 8', 's_waitcnt lgkmcnt(0)',
                             f's_mov_b32 m0, s{S_C0}', f'v_writelane_b32 v252, s{S_ST}, m0', f'v_writelane_b32 v253, s{S_ST + 2}, m0'] + S
                    S += [f's_cbranch_scc1 L_dnn_loop{half}']
                body += self.seq(S)
            for it in range(6):
                th += body
            for n in range(48, 52):
                th += self.seq(step(n, False, half))
            if half == 0:
                th += self.seq(['s_branch L_epi'])
        p2 = lambda r: vr(r, 2)
        el = lambda tn, tm, d: (acc(tn, tm) + 2 * d, W2F + 4 * tn + 2 * d, SUMP + 2 * tm)
        L = ['L_epi:'] + self.stamp(3)
        L += [f's_lshl_b32 s{S_T1}, s{S_R}, 11', f's_and_b32 s{S_T3}, s{S_MB}, 3', f's_lshl_b32 s{S_T3}, s{S_T3}, 9', f's_add_u32 s{S_T1}, s{S_T1}, s{S_T3}',
              f's_lshr_b32 s{S_T0}, s{S_MB}, 2', f's_lshl_b32 s{S_T0}, s{S_T0}, 14', f's_add_u32 s{S_T1}, s{S_T1}, s{S_T0}',
              'v_lshlrev_b32 v3, 3, v0', f'v_add_u32 v2, {RB}, v3']
        L += self.gelu([[el(tn, tm, d) for tm in range(4)] for tn in range(5) for d in range(2)], WF, KC0, KC1, KONE)
        L += self.red4(SUMP) + [f'ds_write_b32 v{vPc}, v{SUMP}', 's_waitcnt lgkmcnt(0)'] + self.stamp(4) + self.stamp_flush()
        L += [f's_cmp_eq_u32 s{S_WAVE}, 0', 's_cbranch_scc1 L_dpub']
        tr = self.seq(L)
        self.seq(['s_barrier', 's_endpgm'])
        A = 64
        L = ['L_dpub:'] + self.build_srd(SRD_WS, S_WS, 0x10000000) + self.build_srd(SRD_DBG, S_DBG, 256) + self.cleared('L_dclr', 4, vBL) + ['s_barrier'] + self.stamp(17)
        L += [f'ds_read_b64 {vr(A + 2 * qq, 2)}, v2 offset:{qq * 512}' for qq in range(4)]
        L += [f'v_pk_add_f32 {p2(A)}, {p2(A)}, {p2(A + 2)}', f'v_pk_add_f32 {p2(A + 4)}, {p2(A + 4)}, {p2(A + 6)}', f'v_pk_add_f32 {p2(A)}, {p2(A)}, {p2(A + 4)}',
              f'v_and_b32 v{A}, -2, v{A}', f'v_and_b32 v{A + 1}, -2, v{A + 1}',
              f'buffer_store_dwordx2 {vr(A, 2)}, v3, {srd(SRD_WS)}, s{S_T1} offen sc1'] + self.padsig() + ['s_endpgm']
        return [trs[0] + tr + self.seq(L), trs[1] + tr]

    def rem(self):
        o = self.opt
        self.role = 'r'
        vW = [1, 2, 7, 8]
        vX = [11, 12]
        vWD, vCh, vT, VO = 13, [14, 15], 9, 24
        SUMP = 16
        IDX = 32
        XA, WF = 64, 96
        ACC = 160
        W2F, BF = 96, 112
        PK = 224
        KC0, KC1, KONE = 240, 242, 244
        g, i4, q = 246, 247, 248
        S_F = S_IDXOFF
        acc = lambda tn, tm: ACC + (tn * 4 + tm) * 4
        L = ['L_rem:', f's_lshr_b32 s{S_GRP}, s{S_WAVE}, 2', f's_and_b32 s{S_T0}, s2, 7', f's_lshl_b32 s{S_T0}, s{S_T0}, 3', f's_add_u32 s{S_T0}, s{S_T0}, s{S_WAVE}',
             f's_mul_i32 s{S_T0}, s{S_T0}, {64 * 104}', f's_lshl_b32 s{S_XM0}, s{S_WAVE}, 14',
             f'v_lshlrev_b32 v{q}, 4, v0', f'v_lshrrev_b32 v{g}, 4, v0',
             f'v_lshrrev_b32 v{i4}, 3, v0', f'v_mul_u32_u24 v{vWD}, 3328, v{i4}', f'v_and_b32 v{i4}, 2, v{i4}',
             f's_and_b32 s{S_T1}, s{S_WAVE}, 1', f's_lshl_b32 s{S_T1}, s{S_T1}, 2', f'v_or_b32 v{i4}, s{S_T1}, v{i4}',
             f'v_and_b32 v{vT}, 7, v0', f'v_xor_b32 v{i4}, v{i4}, v{vT}', f'v_lshl_add_u32 v{vWD}, v{i4}, 4, v{vWD}',
             f's_mul_i32 s{S_WSOFF}, s{S_WAVE}, {8 * 3328}', f's_add_u32 s{S_WSOFF}, s{S_WSOFF}, 3200',
             f's_lshl_b32 s{S_WMB}, s{S_WAVE}, 10', f's_add_u32 s{S_WMB}, s{S_WMB}, {RWR}',
             's_waitcnt lgkmcnt(0)']
        L += self.build_srd(SRD_IDX, S_IDX, 4096 * 104)
        for u in range(7):
            L += [f's_add_u32 m0, s{S_XM0}, {8192 + u * 1024}', I(f'buffer_load_dwordx4 v{q}, {srd(SRD_IDX)}, s{S_T0} offen lds', tag='I'),
                  f's_add_u32 s{S_T0}, s{S_T0}, 1024']
        L += self.build_srd(SRD_W, S_W1, 1664 * 3328)
        wld = lambda slot: [f's_add_u32 m0, s{S_WMB}, {slot * 8192}', I(f'buffer_load_dwordx4 v{vWD}, {srd(SRD_W)}, s{S_WSOFF} offen lds', tag='W'),
                            f's_add_u32 s{S_WSOFF}, s{S_WSOFF}, {64 * 3328}']
        L += wld(0)
        L += self.build_srd(SRD_B1, S_B1, 3328) + self.build_srd(SRD_W2, S_W2, 3328) + self.build_srd(SRD_TAB, S_TAB, 100000 * 128)
        L += self.stamp0()
        L += [f'v_xor_b32 v{q}, v{vT}, v{g}', f'v_lshlrev_b32 v{vCh[0]}, 4, v{q}', f'v_xor_b32 v{vCh[1]}, 64, v{vCh[0]}',
              f'v_bfe_u32 v{i4}, v0, 2, 2', f'v_lshl_add_u32 v{q}, v{g}, 3, v{i4}', f'v_lshlrev_b32 v{q}, 7, v{q}',
              f'v_and_b32 v{i4}, 3, v0', f'v_lshl_add_u32 v{q}, v{i4}, 3, v{q}', f'v_add_u32 v{q}, {RWR}, v{q}',
              f'v_bfe_u32 v{i4}, v0, 3, 2', f'v_lshl_add_u32 v{vW[0]}, v{i4}, 5, v{q}']
        L += [f'v_xor_b32 v{vW[i]}, {32 * i}, v{vW[0]}' for i in range(1, 4)]
        L += [f'v_and_b32 v{q}, 15, v0', f'v_lshlrev_b32 v{q}, 7, v{q}',
              f'v_bfe_u32 v{i4}, v0, 1, 3', f'v_xor_b32 v{i4}, v{i4}, v{g}', f'v_lshl_add_u32 v{q}, v{i4}, 4, v{q}',
              f'v_add_u32 v{vX[0]}, s{S_XM0}, v{q}', f'v_xor_b32 v{vX[1]}, 64, v{vX[0]}',
              f'v_lshrrev_b32 v{i4}, 3, v0', f'v_lshl_add_u32 v{q}, v{vT}, 3, v{i4}', f'v_mul_u32_u24 v{q}, 104, v{q}', f'v_add_u32 v{q}, s{S_XM0}, v{q}']
        L += self.kconst(KC0, KC1, KONE) + [f'v_mov_b32 v{r}, 0' for r in range(ACC, ACC + 64)] + [WaitTag(vm_tags=['I'])]
        L += [f'ds_read_b64 {vr(IDX + 2 * k, 2)}, v{q} offset:{8192 + 8 * k}' for k in range(13)]

        def xld(src, slot, h=None):
            c = [tuple(f'v_add_u32_dpp v{VO + pc}, v{src}, v{vCh[pc % 2]} row_newbcast:{8 * hh + pc} row_mask:0xf bank_mask:{hex(3 << (2 * hh))}'
                       for hh in range(2) for pc in range(4 * k, 4 * k + 4)) for k in range(2)]
            d = [(f's_add_u32 m0, s{S_XM0}, {slot * 8192 + pc * 1024}',
                  I(f'buffer_load_dwordx4 v{VO + pc}, {srd(SRD_TAB)}, 0 offen lds', tag='X')) for pc in range(8)]
            return c[:1] + d[:4] + c[1:] + d[4:] if h is None else c[h:h + 1] + d[4 * h:4 * h + 4]
        L += [f'v_mov_b32 v{VO + pc}, 0' for pc in range(8)] + [f'v_mov_b32 v{IDX + k}, 0x7f000000' for k in (26, 27)]
        L += [f'v_lshlrev_b32 v{IDX}, 7, v{IDX}'] + xld(IDX, 0)
        L += wld(1) + [f'v_lshlrev_b32 v{IDX + k}, 7, v{IDX + k}' for k in range(25, 0, -1)] + xld(IDX + 1, 1) + wld(2)
        L += [f'v_lshlrev_b32 v{q}, 3, v{g}']

        rdx = lambda fp, h: [f'ds_read_b128 {vr(XA + 16 * h + 8 * t + 4 * par, 4)}, v{vX[par]} offset:{fp * 8192 + (2 * h + t) * 2048}' for t in (1, 0) for par in (1, 0)]
        rdw = lambda fp: [f'ds_read_b64_tr_b16 {vr(WF + 32 * fp + 8 * tn + 4 * par + 2 * rd, 2)}, v{vW[tn]} offset:{fp * 8192 + par * 4096 + rd * 512}'
                          for tn in range(4) for par in range(2) for rd in range(2)]

        def mm(fp, h):
            return [f'v_mfma_f32_16x16x32_bf16 {vr(acc(tn, 2 * h + t), 4)}, {vr(WF + 32 * fp + 8 * tn + 4 * par, 4)}, {vr(XA + 16 * h + 8 * t + 4 * par, 4)}, {vr(acc(tn, 2 * h + t), 4)}'
                    for tn in range(4) for t in range(2) for par in range(2)]
        L += [f's_mov_b32 s{S_F}, 3', f'v_mov_b32 v{vT}, v{IDX + 2}'] + list(xld(vT, 0, 0)[0])
        L += [WaitTag(allbut=('X', 12)), 's_barrier'] + self.stamp(2) + rdx(0, 0) + rdw(0)
        tr = self.seq(L)

        def phase(M, R, Dm, V):
            gp = [[] for _ in M]
            for k, x in enumerate(R):
                gp[k * o.rrd // max(len(R), 1)].append(x)
            for k, x in enumerate(Dm):
                gp[1 + k * 15 // len(Dm)].append(x)
            v0 = o.rrd if R else 0
            for k, x in enumerate(V):
                gp[v0 + k * (16 - v0) // len(V)].append(x)
            return [(m,) + tuple(g_) for m, g_ in zip(M, gp)]
        post = []
        for k in range(8):
            post += [f'v_lshlrev_b32 v{BF + 2 * k}, 16, v{PK + k}', f'v_and_b32 v{BF + 2 * k + 1}, 0xffff0000, v{PK + k}',
                     f'v_lshlrev_b32 v{W2F + 2 * k}, 16, v{PK + 8 + k}', f'v_and_b32 v{W2F + 2 * k + 1}, 0xffff0000, v{PK + 8 + k}']
        post += self.winv(W2F, 16, KONE)
        vld = [f'buffer_load_dwordx2 {vr(PK + 2 * tn, 2)}, v{q}, {srd(SRD_B1)}, 0 offen offset:{3200 + 32 * tn}' for tn in range(4)]
        vld += [f'buffer_load_dwordx2 {vr(PK + 8 + 2 * tn, 2)}, v{q}, {srd(SRD_W2)}, 0 offen offset:{3200 + 32 * tn}' for tn in range(4)]

        def field(fp, last):
            L = [WaitTag(allbut=('W', 0 if last else 1)), WaitTag(allbut=('X', 0 if last and fp else 8))] + ([] if last and fp else ['s_barrier'])
            if fp == 1 and not last:
                L += [f'v_xor_b32 v{vW[i]}, 16384, v{vW[i]}' for i in range(4)]
            sx = (f's_xor_b32 s{S_WMB}, s{S_WMB}, 16384',)
            wl = [sx + tuple(wld(1)) + sx] if fp == 0 else [tuple(wld(0)) + sx]
            rw = rdw(1 - fp)
            mv = [(f's_set_gpr_idx_on s{S_F}, gpr_idx(SRC0)', 's_nop 0', f'v_mov_b32 v{vT}, v{IDX}', 's_set_gpr_idx_off', f's_add_u32 s{S_F}, s{S_F}, 1')]
            if not last:
                L += phase(mm(fp, 0), rdx(fp, 1) + rw[:8], xld(vT, fp, 0)[1:], list(xld(vT, fp, 1)[0]))
                L += [WaitTag(allbut=('X', 8))]
                L += phase(mm(fp, 1), rdx(1 - fp, 0) + rw[8:], xld(vT, fp, 1)[1:] + wl, mv + list(xld(vT, fp, 0)[0]))
            elif fp == 0:
                L += phase(mm(fp, 0), rdx(fp, 1) + rw[:8], vld, [])
                L += [WaitTag(allbut=('X', 4))]
                L += phase(mm(fp, 1), rdx(1 - fp, 0) + rw[8:], [], [])
            else:
                L += phase(mm(fp, 0), rdx(fp, 1), [], []) + phase(mm(fp, 1), [], [], post[:32])
            return L
        L = ['L_rem_loop:'] + field(0, False) + field(1, False) + [f's_cmp_lt_u32 s{S_F}, 27', 's_cbranch_scc1 L_rem_loop']
        L = [x for x in flat(L) if not any((x.text if isinstance(x, I) else x).startswith(d) for d in o.rdrop.split(',') if d)]
        body = self.seq(L)
        body2 = self.seq(field(0, True) + field(1, True))
        el = lambda tn, tm, d: (acc(tn, tm) + 2 * d, W2F + 4 * tn + 2 * d, SUMP + 2 * tm)
        L = self.stamp(3) + self.tlb2(4, 5) + self.build_srd(SRD_OUT, S_OUT, 8192) + [f's_load_dword s{S_BOUT}, s[{S_BO}:{S_BO + 1}], 0',
             f'buffer_load_dword v255, v4, {srd(SRD_OUT)}, 0 offen',
             f's_and_b32 s{S_T2}, s2, 7', f's_lshl_b32 s{S_T0}, s{S_T2}, 14', f's_lshl_b32 s{S_T1}, s{S_WAVE}, 8', f's_add_u32 s{S_T0}, s{S_T0}, s{S_T1}',
             f's_add_u32 s{S_T1}, s{S_T0}, 4096', f's_add_u32 s{S_T3}, s{S_T0}, 8192',
             f's_lshl_b32 s{S_T2}, s{S_T2}, 3', f's_add_u32 s{S_T2}, s{S_T2}, s{S_WAVE}', f's_lshl_b32 s{S_T2}, s{S_T2}, 7',
             'v_lshlrev_b32 v3, 2, v0', 'v_lshlrev_b32 v2, 1, v0', 's_waitcnt lgkmcnt(0)', f's_lshl_b32 s{S_BOUT}, s{S_BOUT}, 16']
        L += post[32:]
        L += [f'v_pk_add_f32 {vr(acc(tn, tm) + 2 * d, 2)}, {vr(acc(tn, tm) + 2 * d, 2)}, {vr(BF + 4 * tn + 2 * d, 2)}' for tn in range(4) for tm in range(4) for d in range(2)]
        L += self.gelu([[el(tn, tm, d) for tm in range(4)] for tn in range(4) for d in range(2)], XA, KC0, KC1, KONE)
        L += self.red4(SUMP) + [f'v_add_f32 v{SUMP}, s{S_BOUT}, v{SUMP}'] + self.stamp(4) + self.cleared('L_rclr', 4, 5) + self.padsig()
        A = 64
        L += [f's_mov_b32 s{S_LOOP}, 0x200000', 'L_poll:', f's_sub_u32 s{S_LOOP}, s{S_LOOP}, 1', 's_cbranch_scc1 L_end']
        L += [f'buffer_load_dword v{A + k}, v3, {srd(SRD_WS)}, s{(S_T0, S_T1, S_T3)[k // 2]} offen offset:{(k % 2) * 2048} sc1' for k in range(6)]
        L += [f'v_max3_u32 v{A + 8}, v{A}, v{A + 1}, v{A + 2}', f'v_max3_u32 v{A + 9}, v{A + 3}, v{A + 4}, v{A + 5}', f'v_max_u32 v{A + 8}, v{A + 8}, v{A + 9}',
              f'v_cmp_eq_u32 vcc, -1, v{A + 8}', 's_cbranch_vccnz L_poll']
        L += [f'v_add_f32 v{A}, v{A}, v{A + 1}', f'v_add_f32 v{A + 2}, v{A + 2}, v{A + 3}', f'v_add_f32 v{A + 4}, v{A + 4}, v{A + 5}',
              f'v_add_f32 v{A}, v{A}, v{A + 2}', f'v_add_f32 v{A + 4}, v{A + 4}, v{SUMP}', f'v_add_f32 v{A}, v{A}, v{A + 4}',
              f'v_cvt_pk_bf16_f32 v{A}, v{A}, v{A}']
        if o.padat:
            L += ['L_padspin:', f'buffer_load_dword v7, v8, {srd(SRD_DBG)}, 0 offen sc1', 's_waitcnt vmcnt(0)', 's_memrealtime s[86:87]',
                  'v_readfirstlane_b32 s88, v7', 's_waitcnt lgkmcnt(0)', 's_cmp_eq_u32 s88, 0', 's_cbranch_scc1 L_padspin'] + (['s_not_b32 s88, s88'] if o.padmin else []) + [
                  's_sub_u32 s86, s86, s88', 's_cmp_lt_i32 s86, 6000', 's_cbranch_scc1 L_padspin']
        L += [f'buffer_store_short v{A}, v2, {srd(SRD_OUT)}, s{S_T2} offen'] + self.stamp(5) + self.stamp_flush() + ['s_endpgm']
        return [tr + body * 3 + body2 + self.seq(L)]

    def cin(self):
        o = self.opt
        self.role = 'c'
        cw = S_CW
        S_BCUR, S_BD, S_EXP, S_EXPC, S_PREV, S_SC, S_PH = 74, 75, 48, 49, 50, 51, 97
        S_CHK = S_M26
        vFA, vFR, vOne, vF, vFG, vFGa = 1, 2, 3, 4, 5, 6
        vRaw, vLin, vLinB, vXw, vX1, vX2, vSh, vAcc, vOr, vSI, vXi, vC16, vPWL, vPXL, PXR = range(7, 22)
        FT, XI, aD, aS, aLc, aC = 22, 24, 28, 29, 30, 31
        RAW, X, RZ, D = 32, 40, 52, 68
        WA, WB, WC, WS_, WL = 84, 128, 172, 216, 240
        Da, Db, Dc, Ds = D, D + 4, D + 8, D + 12
        T = 40
        half, i32, t3, t4, t5, vg, vm = T + 1, T + 2, T + 3, T + 4, T + 5, T + 6, T + 7
        vStg = 48
        GB = 49
        vMx, vWr, vL6, vL, vLw, vWo = range(62, 68)
        AD = 68
        vA3, vBs0, vBs1a, vBs1b, vUw, vV2w, vE, V3T = 240, 241, 242, 243, 244, 245, 246, 81
        BALL, UP, AFR, DALL = 84, 84, 132, 140
        BT, SUM, OUT = 216, 84, 132
        XJ = 204
        F_W3, F_W2, F_RDY, F_M, M_X, F_PEEL = 0, 4, 8, 16, 20, 12
        nsync = [0]

        def sig(off, A=vFA, **kw):
            return [WaitTag(lgkm0=True, **kw), f'ds_add_u32 v{A}, v{vOne} offset:{off}']

        def wait(off, tgt, R=vFR):
            nsync[0] += 1
            lab = f'L_csync{nsync[0]}'
            return [f'{lab}:', f'ds_read_b32 v{vF}, v{R} offset:{off}', 's_waitcnt lgkmcnt(0)',
                    f'v_cmp_gt_u32 vcc, {tgt}, v{vF}', f's_cbranch_vccnz {lab}']

        def dppred(op, r):
            return [f'{op}_dpp v{r}, v{r}, v{r} {ctl} row_mask:{rm} bank_mask:0xf'
                    for (ctl, rm) in (('row_shr:1', '0xf'), ('row_shr:2', '0xf'), ('row_shr:4', '0xf'), ('row_shr:8', '0xf'),
                                      ('row_bcast:15', '0xa'), ('row_bcast:31', '0xc'))]

        def absmax(dst, regs):
            c = [f'v_max3_f32 v{dst}, abs(v{regs[0]}), abs(v{regs[1]}), abs(v{regs[2]})']
            k = 3
            while k < len(regs):
                b = regs[k + 1] if k + 1 < len(regs) else regs[k]
                c.append(f'v_max3_f32 v{dst}, v{dst}, abs(v{regs[k]}), abs(v{b})')
                k += 2
            return c

        def waitmax(R, off, dst_e):
            nsync[0] += 1
            lab = f'L_csync{nsync[0]}'
            return [f'{lab}:', f'ds_read_b64 {vr(T, 2)}, v{R} offset:{off}', 's_waitcnt lgkmcnt(0)',
                    f'v_cmp_gt_u32 vcc, 4, v{T}', f's_cbranch_vccnz {lab}',
                    f'v_readfirstlane_b32 s{dst_e}, v{T + 1}',
                    f's_lshr_b32 s{dst_e}, s{dst_e}, 23', f's_sub_i32 s{dst_e}, 141, s{dst_e}', f's_min_i32 s{dst_e}, s{dst_e}, 40']

        S_C, S_DYN, S_ST0, S_TK = S_R, S_MB, 98, 99
        vTk, vZ = 250, 251
        L = ['L_cin:', f's_and_b32 s{S_T0}, s{S_MB}, 3', f's_mul_i32 s{S_T0}, s{S_T0}, 3', f's_add_u32 s{S_C}, s{S_T0}, s{S_R}',
             f's_sub_u32 s{S_C}, s{S_C}, 6', 's_cbranch_scc1 L_rem',
             f's_and_b32 s{cw}, s{S_WAVE}, 3', f's_lshr_b32 s{S_GRP}, s{S_WAVE}, 2',
             f's_lshl_b32 s{S_GW}, s{S_C}, 3', f's_add_u32 s{S_GW}, s{S_GW}, s{S_WAVE}',
             f's_mul_i32 s{S_T0}, s{S_GW}, {10 * 128}',
             f'v_min_u32 v{T}, 9, v0', f'v_lshlrev_b32 v{T}, 7, v{T}',
             f'v_lshlrev_b32 v{vStg}, 4, v0',
             f's_lshl_b32 s{S_STG}, s{cw}, 10',
             f's_cmp_eq_u32 s{cw}, 2', f's_cselect_b64 s[{S_EX}:{S_EX + 1}], 0x1fffff, -1',
             f's_cmp_eq_u32 s{cw}, 3', f's_cselect_b32 s{S_STG9}, 0, {8 * 4096}',
             f's_add_u32 s{S_STG9}, s{S_STG9}, s{S_STG}',
             f's_mul_i32 s{S_T1}, s{S_C}, 2979', f's_lshr_b32 s{S_T1}, s{S_T1}, 6', f's_mul_i32 s{S_ST0}, s{S_C}, 44',
             f's_and_b32 s{S_T2}, s2, 7', f's_add_u32 s{S_RC}, s{S_ST0}, s{S_WAVE}', f's_lshl_b32 s{S_RC}, s{S_RC}, 2',
             f's_lshl_b32 s{S_ST0}, s{S_T2}, 14', f's_add_u32 s{S_RC}, s{S_RC}, s{S_ST0}', f's_add_u32 s{S_RC}, s{S_RC}, {5 * 2048}', f's_mul_i32 s{S_ST0}, s{S_C}, 44', f's_lshl_b32 s{S_PX}, s{S_T2}, 9', f's_add_u32 s{S_SAMP}, s{S_PX}, s{S_ST0}', f's_add_u32 s{S_PX}, s{S_PX}, s{S_T1}',
             f's_add_u32 s{S_SAMP}, s{S_SAMP}, s{S_WAVE}', f's_mul_i32 s{S_SAMP}, s{S_SAMP}, 104',
             f's_lshl_b32 s{S_ST0}, s{S_C}, 2', f's_add_u32 s{S_ST0}, s{S_ST0}, s{S_WAVE}', f's_add_u32 s{S_ST0}, s{S_ST0}, s{S_T2}', f's_and_b32 s{S_ST0}, s{S_ST0}, 7',
             f's_mul_i32 s{S_ST0}, s{S_ST0}, {16384 + o.shs}', f's_add_u32 s{S_ST0}, s{S_ST0}, {6 * 2048}',
             f's_sub_u32 s{S_LOOP}, 6, s{S_GRP}', f's_lshl_b32 s{S_TK}, s{S_GRP}, 1', f's_mov_b32 s{S_DYN}, -1',
             f'v_lshrrev_b32 v{t3}, 3, v0', f'v_min_u32 v{t3}, 6, v{t3}', f'v_lshlrev_b32 v{vXi}, 4, v{t3}',
             f's_mul_i32 s{S_T2}, s{S_T2}, 88', f's_add_u32 s{S_T2}, s{S_GW}, s{S_T2}', f's_mov_b32 s{S_T3}, 704',
             f'v_mov_b32 v{t4}, s{S_T2}', f'v_mad_u32_u24 v{vPWL}, v0, s{S_T3}, v{t4}',
             f's_mul_i32 s{S_T2}, s{S_GW}, 104', f's_sub_u32 s{S_T2}, s{S_T2}, {13 * 26 - 25}',
             f'v_min_u32 v{t4}, {12 + o.pfr}, v0', f'v_mul_u32_u24 v{t5}, 26, v{t4}', f'v_add_u32 v{t5}, s{S_T2}, v{t5}',
             f'v_cmp_lt_u32 vcc, 12, v{t4}', f'v_cndmask_b32 v{vPWL}, v{vPWL}, v{t5}, vcc', f'v_lshlrev_b32 v{vPWL}, 7, v{vPWL}',
             f's_mov_b32 s{S_PW}, {o.pfe0 * 832 * 128}',
             f'v_mov_b32 v{vFR}, {L_FLG}', f'v_lshlrev_b32 v{vFA}, 20, v0', f'v_add_u32 v{vFA}, {L_FLG}, v{vFA}',
             f'v_and_b32 v{t4}, 7, v0', f'v_lshlrev_b32 v{vC16}, 4, v{t4}', f'v_and_b32 v{t4}, 15, v0', f'v_lshl_add_u32 v{t4}, v{t4}, 2, v{vFR}',
             f'v_mov_b32 v{vOne}, 0', f'ds_write_b32 v{t4}, v{vOne}',
             f'v_lshrrev_b32 v{half}, 5, v0', f'v_and_b32 v{i32}, 31, v0',
             's_waitcnt lgkmcnt(0)', f'v_mov_b32 v{vOne}, 1']
        L += self.tlb1(t5, 255)
        L += self.build_srd(SRD_CIN, S_CIN, 105456)
        L += [f'buffer_load_dword v255, v{T}, {srd(SRD_CIN)}, s{S_T0} offen']
        L += self.build_srd(SRD_W, S_W1, 1664 * 3328)

        def pfw():
            return [f's_mov_b64 exec, {(1 << (13 + o.pfr)) - 1}', f'buffer_load_dword v255, v{vPWL}, {srd(SRD_W)}, s{S_PW} offen', 's_mov_b64 exec, -1',
                    f's_add_u32 s{S_PW}, s{S_PW}, {352 * 3328}']
        L += ['s_barrier'] + pfw()
        L += self.build_srd(SRD_IDX, S_IDX, 4096 * 104)

        def pfx_a():
            return [f'buffer_load_dword v{PXR}, v{vPXL}, {srd(SRD_IDX)}, s{S_PX} offen',
                    f's_cmp_eq_u32 s{S_PX}, s{S_PXE}', f's_cselect_b32 s{S_PXE}, 0x7000000, s{S_PXE}',
                    f's_cselect_b32 s{S_PX}, 0x7000000, s{S_PX}',
                    f's_add_u32 s{S_PX}, s{S_PX}, 24', f's_min_u32 s{S_PX}, s{S_PX}, s{S_PXE}']

        def pfx_b():
            return [f'v_lshlrev_b32 v{PXR}, 7, v{PXR}', f'buffer_load_dword v255, v{PXR}, {srd(SRD_TAB)}, 0 offen']

        def xidx(XI=XI, off=0, adv=True):
            c = [f'buffer_load_dwordx4 {vr(XI, 4)}, v{vXi}, {srd(SRD_IDX)}, s{S_SAMP} offen offset:{off}']
            if adv:
                c.append(f's_add_u32 s{S_SAMP}, s{S_SAMP}, {8 * 104}')
            return c

        def xdma(XI=XI, lo=0):
            c = []
            for u in range(4):
                if u == 2:
                    c += ['s_mov_b32 exec_hi, 0x0000ffff']
                c += [f'v_lshl_add_u32 v{XI + u}, v{XI + u}, 7, v{vC16}']
                if u == 3:
                    c += ['s_mov_b32 exec_lo, 0', 's_mov_b32 exec_hi, 0xffff0000', f'v_mov_b32 v{XI + 3}, v{XI + 1}', f'v_mov_b32 v{XI + 2}, v{XI + 1}',
                          's_mov_b32 exec_hi, 0x00ff0000', f'v_mov_b32 v{XI + 2}, v{XI}', 's_mov_b64 exec, -1']
            for u in range(4):
                c += [f's_add_u32 m0, s{S_BCUR}, {u * XPI + lo}']
                if u == 3:
                    c += ['s_mov_b32 exec_hi, 0x00ffffff']
                c.append(I(f'buffer_load_dwordx4 v{XI + u}, {srd(SRD_TAB)}, 0 offen lds', tag='XB'))
                if u == 3:
                    c += ['s_mov_b32 exec_hi, -1']
            return c
        wco = self.build_srd(SRD_WCO, S_WCO, 156) + [f's_mov_b32 m0, {L_WCO}', 's_mov_b64 exec, 0x7ff',
              I(f'buffer_load_dwordx4 v{vStg}, {srd(SRD_WCO)}, 0 offen lds', tag='STG3'),
              's_mov_b64 exec, -1']
        L += self.stamp0()

        def stage(dst, goff, tag):
            st = []
            for m in range(8):
                st.append((f's_add_u32 m0, s{S_STG}, {dst + m * 4096}', f's_add_u32 s{S_TW}, s{S_STG}, {goff + m * 4096}',
                           I(f'buffer_load_dwordx4 v{vStg}, {srd(SRD_CIN)}, s{S_TW} offen lds', tag=tag)))
            st.append((f's_add_u32 m0, s{S_STG9}, {dst}', f's_add_u32 s{S_TW}, s{S_STG9}, {goff}',
                       f's_mov_b64 exec, s[{S_EX}:{S_EX + 1}]',
                       I(f'buffer_load_dwordx4 v{vStg}, {srd(SRD_CIN)}, s{S_TW} offen lds', tag=tag),
                       's_mov_b64 exec, -1'))
            return st

        L += [f's_cmp_lg_u32 s{S_GRP}, 0', 's_cbranch_scc1 L_g1a']
        c0 = self.seq(L)
        st2 = stage(A1, 0, 'STG2') if o.w1first else stage(A2, 35152, 'STG2')
        g0a = self.seq(wco + xidx(XJ, 4 * 104, False) + xidx() + stage(A3, 70304, 'STG3') + st2[:o.sigat] + ['s_branch L_addrc'])
        L = ['L_g1a:', 's_setprio 1',
             f'v_bfe_u32 v{t3}, v0, 2, 2', f'v_lshl_add_u32 v{t3}, v{half}, 3, v{t3}',
             f'v_bfe_u32 v{t4}, v0, 4, 1', f'v_lshlrev_b32 v{t4}, 5, v{t4}',
             f'v_and_b32 v{t5}, 3, v0', f'v_lshl_add_u32 v{t4}, v{t5}, 3, v{t4}',
             f'v_lshl_add_u32 v{vA3}, v{t3}, 6, v{t4}', f'v_add_u32 v{vA3}, {V3OFF}, v{vA3}',
             f's_lshl_b32 s{S_T0}, s{cw}, 6', f's_add_u32 s{S_T0}, s{S_T0}, {A2}',
             f'v_add_u32 v{t4}, s{S_T0}, v{t4}',
             f'v_mul_u32_u24 v{t5}, 1352, v{t3}', f'v_add_u32 v{vBs0}, v{t4}, v{t5}',
             f'v_add_u32 v{t5}, 16, v{t3}', f'v_min_u32 v{t5}, 25, v{t5}',
             f'v_mul_u32_u24 v{t5}, 1352, v{t5}', f'v_add_u32 v{vBs1a}, v{t4}, v{t5}',
             f'v_add_u32 v{t5}, 20, v{t3}', f'v_min_u32 v{t5}, 25, v{t5}',
             f'v_mul_u32_u24 v{t5}, 1352, v{t5}', f'v_add_u32 v{vBs1b}, v{t4}, v{t5}',
             f's_lshl_b32 s{S_T0}, s{cw}, 5', f'v_add_u32 v{vE}, s{S_T0}, v{i32}',
             f'v_mul_u32_u24 v{t3}, 52, v{vE}', f'v_lshl_add_u32 v{t3}, v{half}, 3, v{t3}',
             f'v_add_u32 v{vUw}, {A3}, v{t3}',
             f'v_lshlrev_b32 v{t3}, 1, v{vE}', f'v_add_u32 v{vV2w}, {V2OFF}, v{t3}',
             f'v_mov_b32 v{BT}, 0', f'v_mov_b32 v{BT + 1}, 0',
             f'v_lshlrev_b32 v{t3}, 3, v0', f'v_add_u32 v{t4}, {V3OFF + 26 * 64}, v{t3}',
             's_mov_b32 exec_hi, 0xffff', f'ds_write_b64 v{t4}, {vr(BT, 2)}', 's_mov_b32 exec_hi, -1']
        L += [f'v_lshl_add_u32 v{t3}, v{half}, 7, v{vE}', f's_mov_b32 s{S_T1}, 2521', f's_mov_b32 s{S_T2}, {V3OFF}']
        for p_ in range(3):
            L += [f'v_mul_u32_u24 v{t4}, s{S_T1}, v{t3}', f'v_lshrrev_b32 v{t4}, 16, v{t4}',
                  f'v_mad_u32_u24 v{t4}, v{t4}, 12, s{S_T2}', f'v_lshl_add_u32 v{AD + p_}, v{t3}, 1, v{t4}']
            if p_ < 2:
                L += [f'v_add_u32 v{t3}, 256, v{t3}']
        L += [f'v_mov_b32 v{t4}, 676', f'v_cmp_gt_u32 s[{S_MASK}:{S_MASK + 1}], v{t4}, v{t3}']
        for m in range(6):
            L += [f'v_add_u32 v{t3}, {128 * m}, v{vE}', f'v_mul_u32_u24 v{t4}, s{S_T1}, v{t3}', f'v_lshrrev_b32 v{t4}, 16, v{t4}',
                  f'v_lshl_add_u32 v{t4}, v{t4}, 2, v{vUw}', f'v_add_u32 v{AD + 4 + m}, {m * 6656}, v{t4}']
        L += [f'v_lshlrev_b32 v{AD + 10}, 4, v{half}', f'v_add_u32 v{AD + 10}, {L_WCO + 104}, v{AD + 10}',
              f'v_lshlrev_b32 v{AD + 11}, 1, v0', f'v_add_u32 v{AD + 11}, {L_WCO}, v{AD + 11}',
              f'v_lshlrev_b32 v{AD + 12}, 6, v0', f'v_add_u32 v{AD + 12}, {V3OFF + 52}, v{AD + 12}']
        g1a = self.seq(L)

        N_ = (0, 1, 2, 3)
        classes = []
        for d in ZD:
            for (a, ha, b, hb) in d:
                if cls(a, ha)[1] == N_ and cls(b, hb)[1] != N_ and cls(b, hb)[1] not in classes:
                    classes.append(cls(b, hb)[1])
        assert len(classes) == 5
        base = {(N_, N_): GB}
        for k, c in enumerate(classes):
            base[(N_, c)] = GB + 1 + 2 * k
            base[(c, N_)] = GB + 2 + 2 * k
        SP1, SP2 = GB + 11, GB + 12
        pk4 = lambda t: '0x%08x' % sum((x & 0xff) << (8 * k) for k, x in enumerate(t))
        L = ['L_addrc:',
             f's_and_b32 s{S_T2}, s{S_WAVE}, 1', f's_lshl_b32 s{S_T2}, s{S_T2}, 1', f'v_add_u32 v{vg}, s{S_T2}, v{half}',
             f'v_min_u32 v{t3}, 25, v{i32}',
             f's_mul_i32 s{S_T0}, s{S_GRP}, {UST - 1352}', f's_add_u32 s{S_T0}, s{S_T0}, 1352',
             f's_mul_i32 s{S_T1}, s{S_GRP}, {A3 - A1}', f's_add_u32 s{S_T1}, s{S_T1}, {A1}',
             f'v_mul_u32_u24 v{t4}, s{S_T0}, v{t3}', f'v_add_u32 v{t4}, s{S_T1}, v{t4}',
             f'v_mul_u32_u24 v{vL}, 52, v{t3}', f'v_lshl_add_u32 v{vL}, v{vg}, 1, v{vL}', f'v_add_u32 v{vL}, {V2OFF}, v{vL}',
             f'v_lshlrev_b32 v{vWo}, 1, v{t3}', f'v_add_u32 v{vWo}, {L_WCO}, v{vWo}',
             f'v_mad_u32_u24 v{SP1}, v{vg}, 52, v{t4}',
             f'v_lshl_add_u32 v{SP2}, v{vg}, 1, v{t4}',
             f'v_lshl_add_u32 v{GB}, v{vg}, 1, v{SP1}',
             f'v_lshlrev_b32 v{t3}, 3, v{vg}']
        for k, c in enumerate(classes):
            L += [f's_mov_b32 s{S_T0}, {pk4(c)}', f'v_bfe_i32 v{t5}, s{S_T0}, v{t3}, 8',
                  f'v_lshl_add_u32 v{GB + 1 + 2 * k}, v{t5}, 1, v{SP1}', f'v_mad_i32_i24 v{GB + 2 + 2 * k}, v{t5}, 52, v{SP2}']
        L += [f's_mov_b32 s{S_T0}, {pk4((0, 54, 2, 0))}', f'v_bfe_u32 v{t5}, s{S_T0}, v{t3}, 8', f'v_add_u32 v{SP1}, v{t5}, v{t4}',
              f'v_add_u32 v{SP2}, 52, v{t4}', f'v_mov_b32 v{vm}, {OOB}',
              f'v_cmp_eq_u32 vcc, 3, v{vg}', f'v_cndmask_b32 v{SP1}, v{SP1}, v{vm}, vcc', f'v_cndmask_b32 v{vWo}, v{vm}, v{vWo}, vcc',
              f'v_cmp_eq_u32 vcc, 2, v{vg}', f'v_cndmask_b32 v{SP2}, v{vm}, v{SP2}, vcc',
              f'v_cmp_gt_u32 vcc, 2, v{vg}', f'v_cndmask_b32 v{vL6}, v{vm}, v{vL}, vcc']
        L += [f's_lshr_b32 s{S_T1}, s{cw}, 1', f's_mul_i32 s{S_T1}, s{S_T1}, {6 * 1024}',
              f's_mul_i32 s{S_T0}, s{S_GRP}, {TB - TA}', f's_add_u32 s{S_T0}, s{S_T0}, {TA}',
              f's_lshl_b32 s{S_T2}, s{S_GRP}, 4', f's_sub_u32 s{S_T3}, s{S_T2}, {LL + 1024 + 16 - TC}',
              f'v_lshlrev_b32 v{t5}, 8, v{vg}',
              f'v_lshl_add_u32 v{t3}, v{i32}, 4, v{t5}', f'v_add_u32 v{vWr}, s{S_T0}, v{t3}', f'v_add_u32 v{vLw}, {LL}, v{t3}',
              f'v_bfe_u32 v{t3}, v0, 2, 2', f'v_lshl_add_u32 v{t5}, v{t3}, 4, v{t5}', f'v_and_b32 v{t3}, 3, v0',
              f'v_lshl_add_u32 v{t4}, v{t3}, 6, v{t5}', f'v_add_u32 v{t4}, {LL + 1024 + 16}, v{t4}',
              f'v_cmp_lt_u32 vcc, 15, v{i32}', f'v_cndmask_b32 v{vLw}, v{vLw}, v{t4}, vcc', f'v_add_u32 v{t4}, s{S_T3}, v{t4}',
              f'v_cndmask_b32 v{vWr}, v{vWr}, v{t4}, vcc',
              f'v_lshl_add_u32 v{t4}, v{t3}, 5, v{t5}', f'v_add_u32 v{t4}, {TD - 16}, v{t4}',
              f's_add_u32 s{S_T3}, s{S_T2}, 19', f'v_cmp_lt_u32 vcc, s{S_T3}, v{i32}', f'v_cndmask_b32 v{vWr}, v{vWr}, v{t4}, vcc',
              f'v_add_u32 v{vWr}, s{S_T1}, v{vWr}',
              f'v_cmp_lt_u32 vcc, 25, v{i32}', f'v_cndmask_b32 v{vWr}, v{vWr}, v{vm}, vcc', f'v_cndmask_b32 v{vLw}, v{vLw}, v{vm}, vcc',
              f'v_add_u32 v{vFG}, s{S_T2}, v{vFR}', f'v_add_u32 v{vFGa}, s{S_T2}, v{vFA}', f'v_mov_b32 v{vMx}, 0']
        L += [f's_mul_i32 s{S_BCUR}, s{S_WAVE}, {XBSZ}', f's_add_u32 s{S_BCUR}, s{S_BCUR}, {XB0}', f's_mov_b32 s{S_BD}, {XB1 - XB0}',
              f'v_add_u32 v{aD}, {TA}, v{vStg}',
              f'v_and_b32 v{t3}, 11, v0', f'v_cmp_eq_u32 vcc, 11, v{t3}', f'v_cndmask_b32 v{aC}, v{aD}, v{vm}, vcc',
              f'v_and_b32 v{t3}, 3, v0', f'v_cmp_eq_u32 vcc, 0, v{t3}', f'v_cndmask_b32 v{aLc}, v{aC}, v{vm}, vcc',
              f'v_lshrrev_b32 v{vg}, 4, v0', f'v_bfe_u32 v{t3}, v0, 1, 3', f'v_lshlrev_b32 v{t5}, 4, v{t3}', f'v_add_u32 v{t5}, {TD}, v{t5}',
              f'v_and_b32 v{t3}, 10, v0', f'v_cmp_eq_u32 vcc, 10, v{t3}', f'v_cndmask_b32 v{t5}, v{t5}, v{vm}, vcc',
              f'v_and_b32 v{t4}, 1, v0', f'v_lshl_add_u32 v{aS}, v{vg}, 9, v{t5}', f'v_lshl_add_u32 v{aS}, v{t4}, 2, v{aS}', f'v_add_u32 v{aS}, 1024, v{aS}',
              f'v_lshl_add_u32 v{FT}, v{vg}, 8, v{t5}', f'v_lshl_add_u32 v{FT}, v{t4}, 20, v{FT}',
              f'v_and_b32 v{vm}, 15, v0', f's_mov_b32 s{S_T0}, {XPI}',
              f'v_lshlrev_b32 v{t3}, 1, v{vm}', f'v_add_u32 v{t3}, s{S_BCUR}, v{t3}',
              f'v_mad_u32_u24 v{vRaw}, v{vg}, s{S_T0}, v{t3}',
              f's_lshl_b32 s{S_T0}, s{S_WAVE}, 10', f's_add_u32 s{S_T0}, s{S_T0}, {XCH}',
              f'v_add_u32 v{vXw}, s{S_T0}, v{vStg}',
              f'v_add_u32 v{t3}, 256, v{vStg}', f'v_and_b32 v{t3}, 1023, v{t3}', f'v_add_u32 v{vX1}, s{S_T0}, v{t3}',
              f'v_xor_b32 v{t3}, 512, v{vStg}', f'v_add_u32 v{vX2}, s{S_T0}, v{t3}', f'v_lshlrev_b32 v{vSh}, 4, v{half}']
        L += [f'v_mov_b32 v{r}, 0' for r in list(range(RAW, RAW + 8)) + list(range(BT, BT + 24))]
        L += [f'v_mul_u32_u24 v{t4}, {XPI}, v{vg}',
              f'v_bfe_u32 v{t5}, v0, 2, 2', f'v_lshl_add_u32 v{t4}, v{t5}, 7, v{t4}',
              f'v_and_b32 v{t5}, 3, v0', f'v_lshl_add_u32 v{vLinB}, v{t5}, 3, v{t4}', f'v_add_u32 v{vLin}, s{S_BCUR}, v{vLinB}',
              f'v_and_b32 v{t5}, 1, v0', f's_mov_b32 s{S_T0}, 0xaaaaaaaa', f'v_mul_lo_u32 v{vSI}, s{S_T0}, v{t5}', f'v_or_b32 v{vSI}, 0x44444444, v{vSI}',
              f'v_lshlrev_b32 v{vOr}, 1, v0', f'v_add_u32 v{vOr}, s{S_BCUR}, v{vOr}', f'v_mov_b32 v{vAcc}, 0x3f80',
              f'ds_write_b16 v{vOr}, v{vAcc} offset:{3 * XPI + 7 * 128}', f'v_add_u32 v{vOr}, s{S_BD}, v{vOr}']
        L += [f's_mul_i32 s{S_T3}, s{S_WAVE}, 6', f's_add_u32 s{S_PX}, s{S_PX}, s{S_T3}', f's_mul_i32 s{S_PX}, s{S_PX}, 104',
              f's_add_u32 s{S_PXE}, s{S_PX}, 80', f's_add_u32 s{S_PX}, s{S_PX}, {4 * o.pfx0}',
              f's_mov_b32 s{S_T3}, 10923', f'v_min_u32 v{t3}, 35, v0',
              f'v_mul_u32_u24 v{t4}, s{S_T3}, v{t3}', f'v_lshrrev_b32 v{t4}, 16, v{t4}',
              f'v_mul_u32_u24 v{t4}, {104 - 24}, v{t4}', f'v_lshl_add_u32 v{vPXL}, v{t3}, 2, v{t4}']
        L += self.stamp(14)
        L += [f's_cmp_eq_u32 s{S_GRP}, 0', 's_cbranch_scc1 L_g0pf']
        cc = self.seq(L)

        def bread(m, base):
            b = BALL + m * 8
            return [f'ds_read_b64_tr_b16 {vr(b, 2)}, v{vBs0} offset:{base + m * 256}',
                    f'ds_read_b64_tr_b16 {vr(b + 2, 2)}, v{vBs0} offset:{base + m * 256 + 4 * 1352}',
                    f'ds_read_b64_tr_b16 {vr(b + 4, 2)}, v{vBs1a} offset:{base + m * 256}',
                    f'ds_read_b64_tr_b16 {vr(b + 6, 2)}, v{vBs1b} offset:{base + m * 256}']

        def mm6(base, post=lambda m: []):
            c = []
            for m in range(3):
                c += bread(m, base)
            for m in range(6):
                if m + 3 < 6:
                    c += bread(m + 3, base)
                b = BALL + m * 8
                d = DALL + (m % 4) * 16
                c.append(f'v_mfma_f32_32x32x16_bf16 {vr(d, 16)}, {vr(AFR, 4)}, {vr(b, 4)}, 0')
                c.append(f'v_mfma_f32_32x32x16_bf16 {vr(d, 16)}, {vr(AFR + 4, 4)}, {vr(b + 4, 4)}, {vr(d, 16)}')
                if m >= 2:
                    c += post(m - 2)
            return c + post(4) + post(5)

        L = []
        if o.epos == 3:
            L += [f's_sub_u32 s{S_T0}, s{S_PX}, {24 * 104}',
                  f'buffer_load_dword v{XJ + 4}, v{vPXL}, {srd(SRD_IDX)}, s{S_T0} offen', f'buffer_load_dword v{XJ + 5}, v{vPXL}, {srd(SRD_IDX)}, s{S_PX} offen']
        L += [f's_add_u32 s{S_SAMP}, s{S_SAMP}, {8 * 104}', f's_add_u32 s{S_PX}, s{S_PX}, 24'] + xidx() + pfx_a()
        L += [f's_cmp_lg_u32 s{S_WAVE}, 7', 's_cbranch_scc1 L_nclr', f's_cmp_ge_u32 s{S_C}, 7', 's_cbranch_scc1 L_nclr']
        L += self.build_srd(SRD_WS, S_WS, 0x10000000) + self.build_srd(SRD_DBG, S_DBG, 256)
        L += [f'v_mov_b32 v{BALL + k}, -1' for k in range(4)]
        L += [f's_and_b32 s{S_T0}, s2, 7', f's_lshl_b32 s{S_T0}, s{S_T0}, 3', f's_add_u32 s{S_T0}, s{S_T0}, s{S_C}', f's_lshl_b32 s{S_T0}, s{S_T0}, 11',
              f'buffer_store_dwordx4 {vr(BALL, 4)}, v{vStg}, {srd(SRD_WS)}, s{S_T0} offen sc1',
              f'buffer_store_dwordx4 {vr(BALL, 4)}, v{vStg}, {srd(SRD_WS)}, s{S_T0} offen offset:1024 sc1',
              's_waitcnt vmcnt(0)', 's_mov_b64 exec, 1', f'buffer_atomic_add v{vOne}, v{vStg}, {srd(SRD_DBG)}, 0 offen offset:128', 's_mov_b64 exec, -1']
        uc0 = self.seq(L[:-len(L) + L.index(f's_cmp_ge_u32 s{S_C}, 7') + 2])
        self.seq(L[L.index(f's_cmp_ge_u32 s{S_C}, 7') + 2:])
        L = ['L_nclr:'] + wait(F_W3, 4) + self.stamp(2)
        if o.epos == 3:
            L += [f'v_lshlrev_b32 v{XJ + 4}, 7, v{XJ + 4}', f'buffer_load_dword v255, v{XJ + 4}, {srd(SRD_TAB)}, 0 offen',
                  f'v_lshlrev_b32 v{XJ + 5}, 7, v{XJ + 5}', f'buffer_load_dword v255, v{XJ + 5}, {srd(SRD_TAB)}, 0 offen']
        for s2 in range(2):
            for rd in range(2):
                L.append(f'ds_read_b64 {vr(AFR + 4 * s2 + 2 * rd, 2)}, v{AD + 10} offset:{s2 * 32 + rd * 8}')
        L += [f'ds_read_u16 v{t5}, v{AD + 11} offset:52']

        def vpost(m):
            p_ = m // 2
            c = [f'v_cvt_pk_bf16_f32 v{V3T + p_}, v{DALL + 16 * (m % 4)}, 0']
            if m % 2:
                c = ['s_mov_b32 exec_lo, 0'] + c + [f's_mov_b64 exec, s[{S_MASK}:{S_MASK + 1}]' if p_ == 2 else 's_mov_b32 exec_lo, -1',
                                                    f'ds_write_b16 v{AD + p_}, v{V3T + p_}']
            return c
        L += mm6(A3 - A2, vpost)
        L += ['s_mov_b64 exec, 0x3ffffff', f'ds_write_b16 v{AD + 12}, v{t5}', 's_mov_b64 exec, -1']
        L += self.stamp(3) + sig(F_W2) + [f'v_cmp_gt_u32 s[{S_MASK}:{S_MASK + 1}], 36, v{vE}']
        L += wait(F_W2, 8) + self.stamp(5)
        for s2 in range(2):
            for rd in range(2):
                L.append(f'ds_read_b64_tr_b16 {vr(AFR + 4 * s2 + 2 * rd, 2)}, v{vA3} offset:{s2 * 1024 + rd * 256}')

        def upost(m):
            c = [f'v_cvt_pk_bf16_f32 v{UP + 8 * m + qq}, v{DALL + 16 * (m % 4) + 2 * qq}, v{DALL + 16 * (m % 4) + 2 * qq + 1}' for qq in range(8)]
            if m == 5:
                c.append(f's_mov_b64 exec, s[{S_MASK}:{S_MASK + 1}]')
            for a in range(3):
                c.append(f'ds_write2_b32 v{AD + 4 + m}, v{UP + 8 * m + 2 * a}, v{UP + 8 * m + 2 * a + 1} offset0:{4 * a} offset1:{4 * a + 1}')
            return c
        L += mm6(0, upost)
        L.append('s_mov_b32 exec_hi, 0')
        for m in (5, 4, 3, 2, 1, 0):
            L.append(f'ds_write_b32 v{AD + 4 + m}, v{UP + 8 * m + 6} offset:48')
            L.append(f'ds_write_b16 v{vV2w}, v{UP + 8 * m + 7} offset:{m * 256}')
            if m == 5:
                L.append('s_mov_b32 exec_lo, -1')
        L += ['s_mov_b64 exec, -1'] + sig(F_RDY, vFGa) + [f's_setprio {o.bprio}', 's_branch L_bld']
        uc = self.seq(L)

        e1 = [f'buffer_load_dword v{XJ + 4}, v{vPXL}, {srd(SRD_IDX)}, s{S_PX} offen',
              f'buffer_load_dword v{XJ + 5}, v{vPXL}, {srd(SRD_IDX)}, s{S_PX} offen offset:{24 * 104}']
        e2 = [f'v_lshlrev_b32 v{XJ + 4}, 7, v{XJ + 4}', f'buffer_load_dword v255, v{XJ + 4}, {srd(SRD_TAB)}, 0 offen',
              f'v_lshlrev_b32 v{XJ + 5}, 7, v{XJ + 5}', f'buffer_load_dword v255, v{XJ + 5}, {srd(SRD_TAB)}, 0 offen']
        st1 = stage(A2, 35152, 'STG1') if o.w1first else stage(A1, 0, 'STG1')
        if o.epos == 3:
            e1, e2 = [], []
        L = ['L_g0pf:'] + e1 + [f's_add_u32 s{S_PX}, s{S_PX}, 24'] + pfx_a() + sig(F_W3, vm_tags=['STG3']) + self.stamp(1) + (e2 if o.epos == 2 else [])
        xx = (e2 if o.epos == 1 else []) + xdma() + xdma(XJ, 4 * XBSZ) + xidx() + (e2 if o.epos == 0 else [])
        if o.w1first:
            L += st2[o.sigat:] + st1 + sig(F_RDY, vFGa, vm_tags=['STG2']) + xx + sig(F_W2, vm_tags=['STG1']) + self.stamp(3)
        else:
            L += st2[o.sigat:] + st1[:o.sig2] + sig(F_W2, vm_tags=['STG2']) + self.stamp(3) + st1[o.sig2:]
            L += (xx if o.xpos == 0 else []) + sig(F_RDY, vFGa, vm_tags=['STG1']) + (xx if o.xpos == 1 else [])
        g0pf = self.seq(L)

        def chunk(v):
            units = [(n, h) for n in range(24 * v, min(24 * v + 24, 44)) for h in range(2)]
            NB_, BA = 12, o.ba
            reads, maths = [], []
            for ui, (n, h) in enumerate(units):
                a, ha, b, hb = ZD[n][h]
                (fa, ca), (fb, cb) = cls(a, ha), cls(b, hb)
                tb = BT + (ui % NB_) * 2
                dst = SUM + ui
                if ca != N_:
                    R = [f'ds_read_u16_d16_hi v{tb}, v{SP1} offset:{54 * 24}', f'ds_read_u16_d16_hi v{tb + 1}, v{SP2} offset:{54 * 24}']
                    M = [f'v_add_f32 v{dst}, v{tb}, v{tb + 1}']
                elif (a, ha) == (b, hb):
                    R = [f'ds_read_u16_d16_hi v{tb}, v{base[(ca, cb)]} offset:{54 * fa}']
                    M = [f'v_mov_b32 v{dst}, v{tb}']
                else:
                    R = [f'ds_read_u16_d16_hi v{tb}, v{base[(ca, cb)]} offset:{52 * fa + 2 * fb}',
                         f'ds_read_u16_d16_hi v{tb + 1}, v{base[(cb, ca)]} offset:{52 * fb + 2 * fa}']
                    M = [f'v_add_f32 v{dst}, v{tb}, v{tb + 1}']
                if ui % 2:
                    M = M + maths[-1] + [f'v_max3_f32 v{vMx}, v{vMx}, abs(v{dst - 1}), abs(v{dst})']
                    maths[-1] = []
                reads.append(R)
                maths.append(M)
            code = []
            nu = len(units)
            for ui in range(nu + BA):
                if ui < nu:
                    code += reads[ui]
                if ui >= BA:
                    code += maths[ui - BA]
            if v == 1:
                code += [f'ds_read_u16_d16_hi v{BT + e}, v{vL} offset:{8 * e}' for e in range(6)]
                code += [f'ds_read_u16_d16_hi v{BT + 6}, v{vL6} offset:48', f'ds_read_u16_d16_hi v{BT + 7}, v{vWo}']
            return code

        def conv(n):
            return [f'v_fma_mix{"hi" if h else "lo"}_f16 v{OUT + q}, v{SUM + 2 * q + h}, s{S_SC}, 0' for h in range(2) for q in range(4 * n, 4 * n + 4)]
        wr = lambda n: [f'ds_write_b128 v{vWr}, {vr(OUT + 4 * n, 4)} offset:{n * 1024}']
        L = ['L_bld:'] + self.stamp(6) + wait(F_RDY, 4, vFG) + self.stamp(7)
        L += [f's_cmp_ge_u32 s{cw}, 2', 's_cbranch_scc1 L_chunk1']
        bld = self.seq(L)
        ch = [self.seq(chunk(0) + ['s_branch L_conv']), self.seq(['L_chunk1:'] + chunk(1))]
        L = ['L_conv:'] + self.stamp(12) + dppred('v_max_u32', vMx) + [f'v_readlane_b32 s{S_T0}, v{vMx}, 63', f'v_mov_b32 v{vMx}, s{S_T0}',
             f'ds_max_u32 v{vFGa}, v{vMx} offset:{M_X}', WaitTag(vm_tags=['XB']), f'ds_add_u32 v{vFGa}, v{vOne} offset:{F_M}']
        L += waitmax(vFG, F_M, S_T3) + [f's_add_i32 s{S_SC}, s{S_T3}, 127', f's_lshl_b32 s{S_SC}, s{S_SC}, 23'] + self.stamp(13)
        L += conv(0) + conv(1) + waitmax(vFR, F_M, S_T2)
        L += wr(0) + conv(2) + wr(1) + conv(3) + wr(2) + conv(4) + wr(3) + wr(4)
        L += [f's_cmp_ge_u32 s{cw}, 2', 's_cbranch_scc1 L_cvl']
        cv = self.seq(L)
        cv0 = self.seq(conv(5) + wr(5) + ['s_branch L_built'])
        cv1 = self.seq(['L_cvl:', f's_cmp_eq_u32 s{S_GRP}, 0', 's_cbranch_scc1 L_built'])
        L = [f'v_mul_f32 v{BT + e}, s{S_SC}, v{BT + e}' for e in range(8)]
        L += [f'v_cvt_pk_bf16_f32 v{OUT + 20 + q}, v{BT + 2 * q}, v{BT + 2 * q + 1}' for q in range(4)]
        L += [f'ds_write_b128 v{vLw}, {vr(OUT + 20, 4)}']
        cv2 = self.seq(L)

        w0x = self.build_srd(SRD_W2, S_W2, 3328) + [f'v_lshlrev_b32 v{FT}, 7, v0', f'buffer_load_dword v255, v{FT}, {srd(SRD_W2)}, 0 offen']

        slot = lambda k: RZ + 4 * (k % 4)
        MF = [('Lb', 0), ('a', 1), ('b', 1), ('d', 1), ('Lc', 0), ('a', 2), ('c', 1), ('b', 2), ('c', 2)]
        for k in range(3, 10):
            MF += ([('S', k)] if k % 2 else []) + [('a', k), ('b', k), ('c', k)]
        MF += [('a', 10), ('b', 10), ('a', 11), ('b', 11), ('c', 10), ('S', 11), ('c', 11)]
        if o.mo == 1:
            MF = [('Lb', 0), ('a', 1), ('d', 1), ('Lc', 0), ('b', 1), ('a', 2), ('c', 1), ('b', 2), ('a', 3), ('c', 2), ('S', 3), ('b', 3), ('c', 3)]
            for k in range(4, 10):
                MF += ([('S', k)] if k % 2 else []) + [('a', k), ('b', k), ('c', k)]
            MF += [('a', 10), ('b', 10), ('c', 10), ('a', 11), ('b', 11), ('S', 11), ('c', 11)]
        if o.mo == 2:
            MF = [('d', 1), ('Lb', 0), ('a', 1), ('Lc', 0), ('b', 1), ('a', 2), ('c', 1), ('b', 2), ('a', 3), ('c', 2), ('S', 3), ('b', 3), ('c', 3)]
            for k in range(4, 12):
                MF += ([('S', k)] if k % 2 else []) + [('a', k), ('b', k), ('c', k)]
        NM = len(MF)
        use = {k: [m for m, (t_, kk) in enumerate(MF) if kk == k or (t_ == 'S' and kk == k + 1)] for k in range(12)}
        pos = lambda t_, k: MF.index((t_, k))

        def mfma(m):
            t_, k = MF[m]
            if t_[0] == 'L':
                d, w = {'b': (Db, WL), 'c': (Dc, WL + 4)}[t_[1]]
                return f'v_mfma_f32_16x16x32_bf16 {vr(d, 4)}, {vr(w, 4)}, {vr(slot(0), 4)}, 0'
            if t_ == 'S':
                return f'v_smfmac_f32_16x16x64_f16 {vr(Ds, 4)}, {vr(WS_ + 2 * (k - 1), 4)}, {vr(slot(k - 1), 8)}, v{vSI}'
            d, w = {'a': (Da, WA), 'b': (Db, WB), 'c': (Dc, WC), 'd': (Ds, WS_)}[t_]
            return f'v_mfma_f32_16x16x32_f16 {vr(d, 4)}, {vr(w + 4 * (k - 1), 4)}, {vr(slot(k), 4)}, {"0" if t_ in "ad" and k == 1 else vr(d, 4)}'

        def wload(m):
            t_, k = MF[m]
            if t_[0] == 'L':
                a, w, off = {'b': (aD, WL, 0), 'c': (aLc, WL + 4, 1024)}[t_[1]]
                return [f'ds_read_b128 {vr(w, 4)}, v{a} offset:{LL - TA + off}']
            if t_ == 'd':
                return [f'ds_read_b128 {vr(WS_, 4)}, v{FT}']
            if t_ == 'S':
                w = WS_ + 2 * (k - 1)
                return [f'ds_read2_b32 {vr(w, 2)}, v{aS} offset0:0 offset1:2', f'ds_read2_b32 {vr(w + 2, 2)}, v{aS} offset0:64 offset1:66',
                        f'v_add_u32 v{aS}, 2048, v{aS}']
            w, a, off = {'a': (WA, aD, 0), 'b': (WB, aD, TB - TA), 'c': (WC, aC, TC - TA)}[t_]
            return [f'ds_read_b128 {vr(w + 4 * (k - 1), 4)}, v{a} offset:{off + (k - 1) * 1024}']

        def zops(n):
            z = slot(n // 4 + 1) + n % 4
            (a, ha, b, hb), (a2, ha2, b2, hb2) = ZD[n]
            if (a, b) == (a2, b2):
                return [f'v_pk_mul_f16 v{z}, v{X + a}, v{X + b} op_sel:[{ha},{hb}] op_sel_hi:[{ha2},{hb2}]']
            return [f'v_mul_f16_sdwa v{z}, v{X + a}, v{X + b} dst_sel:WORD_0 dst_unused:UNUSED_PAD src0_sel:WORD_{ha} src1_sel:WORD_{hb}',
                    f'v_mul_f16_sdwa v{z}, v{X + a2}, v{X + b2} dst_sel:WORD_1 dst_unused:UNUSED_PRESERVE src0_sel:WORD_{ha2} src1_sel:WORD_{hb2}']

        cvt = lambda d, a, b: f'v_cvt_pk_f16_f32 v{d}, v{a}, v{b}'
        LAT = o.lat

        class It:
            def __init__(s, name, G, code, lo, hi, pre):
                s.name, s.G, s.code, s.lo, s.hi, s.pre, s.at = name, G, code, lo, hi, list(pre), None

        NG = 14
        items = {}

        def add(name, G, code, lo=-10**9, hi=10**9, pre=()):
            items[(name, G)] = It(name, G, code, lo, hi, pre)
        usej = lambda j: [n for n, d in enumerate(ZD) if any(a // 4 == j or b // 4 == j for (a, _, b, _) in d)]
        lastz = {j: max(usej(j)) for j in range(3)}
        for G in range(NG):
            c, b0 = G % 4, G * NM
            for r in range(8):
                add(f'raw{r}', G, f'ds_read_u16_d16_hi v{RAW + r}, v{vRaw} offset:{r * 128 + c * 32}', lo=b0 - o.rspan, hi=b0 - o.rlead,
                    pre=[(f'co{q}', G - 1, 0) for q in range(4)] + ([('swr', G, 0)] if c == 0 else []))
            for q in range(4):
                add(f'co{q}', G, cvt(X + q - 1, RAW + q - 1, RAW + q + 2) if q else cvt(X + 3, RAW + 6, RAW + 7), hi=b0 - 4,
                    pre=[(f'raw{r}', G, LAT) for r in range(8)] + [(f'z{lastz[0]}', G - 1, 0)])
            add('wo', G, f'ds_write_b128 v{vXw}, {vr(X, 4)}', hi=b0 - 2, pre=[(f'co{q}', G, 0) for q in range(4)] + [('r2', G - 1, 0)])
            add('r1', G, f'ds_read_b128 {vr(X + 4, 4)}, v{vX1}', hi=b0, pre=[('wo', G, 0)])
            add('r2', G, f'ds_read_b128 {vr(X + 8, 4)}, v{vX2}', hi=b0 + 1, pre=[('r1', G, 0)])
            for q in range(3):
                add(f'al{q}', G, f'v_alignbit_b32 v{X + 8 + q}, v{X + 8 + q}, v{X + 8 + q}, v{vSh}', hi=b0 + 20, pre=[('r2', G, LAT)])
            if c == 0:
                add('swr', G, [f'v_add_u32 v{vRaw}, s{S_BD}, v{vRaw}', WaitTag(vm_tags=['XB'])], lo=b0 - o.rspan - 1, hi=b0 - o.rspan - 1,
                    pre=[(f'raw{r}', G - 1, 0) for r in range(8)])
            for p in range(2):
                add(f'lin{p}', G, f'ds_read_b64_tr_b16 {vr(slot(0) + 2 * p, 2)}, v{vLin} offset:{p * 512 + c * 32}',
                    lo=b0 - NM + max(use[8]), hi=b0 + min(use[0]) - 1 - LAT, pre=[('swl', G, 0)] if c == 0 else [])
            if c == 0:
                add('swl', G, [f's_add_u32 s{S_TW}, s{S_BCUR}, s{S_BD}', f'v_add_u32 v{vLin}, s{S_TW}, v{vLinB}'], lo=b0 - NM + 20, hi=b0 - 12,
                    pre=[(f'lin{p}', G - 1, 0) for p in range(2)])
            for n in range(44):
                k = n // 4 + 1
                js = {x // 4 for (a, _, b, _) in ZD[n] for x in (a, b)}
                pre = [(f'co{q}', G, 0) for q in range(4)] + ([('r1', G, LAT)] if 1 in js else []) + ([(f'al{q}', G, 0) for q in range(3)] if 2 in js else [])
                if n:
                    pre.append((f'z{n - 1}', G, 0))
                if k == 5 and n % 4 < 3:
                    pre.append(('or1', G, 0))
                lo = b0 + max(use[k - 4]) if k >= 4 else b0 - NM + max(use[k + 8])
                if k == 1:
                    lo = max(lo, b0 - o.z1lo)
                zc = zops(n)
                if n == 12:
                    zc = [zops(12)[0], zops(13)[0]]
                if n == 13:
                    zc = [zops(12)[1], zops(13)[1]]
                add(f'z{n}', G, zc, lo=lo, hi=b0 + min(use[k]) - 2, pre=pre)
            s1 = slot(1)
            if c == 1:
                add('or1', G, f'v_or3_b32 v{vOr}, v{s1}, v{s1 + 1}, v{s1 + 2}', hi=b0 + 6, pre=[('z2', G, 0), ('blk', G - 2, 0)])
                add('ck', G, [f'v_and_b32 v{vOr}, 0x60006000, v{vOr}', f'v_cmp_ne_u32 s[{S_CHK}:{S_CHK + 1}], 0, v{vOr}'], hi=b0 + 30, pre=[('or1', G, 0)])
            e = b0 + NM
            rdy = lambda t_: b0 + pos(t_, 11) + o.flo
            for r in range(4):
                add(f'f{r}', G, f'v_{"mul" if c == 0 and r == 0 else "fmac"}_f32 v{vAcc}, v{Da + r}, v{Db + r}', lo=min(rdy('b'), e + pos('Lb', 0) - 1), hi=e + pos('Lb', 0) - 1,
                    pre=[(f'f{r - 1}', G, 0) if r else ('f8', G - 1, 0)] + ([('blk', G - 1, 0)] if c == 0 else []))
            for r in range(2):
                add(f'f{4 + r}', G, f'v_add_f32 v{FT + r}, v{Ds + 2 * r}, v{Ds + 2 * r + 1}', lo=min(rdy('S'), e + pos('d', 1) - 1), hi=e + pos('d', 1) - 1,
                    pre=[('f8', G - 1, 0)] + ([('blk', G - 1, 0)] if c == 0 else []))
            for r, (x, y) in enumerate(((Dc, Dc + 1), (FT, Dc + 2), (FT + 1, Dc + 3))):
                add(f'f{6 + r}', G, f'v_fmac_f32 v{vAcc}, v{x}, v{y}', lo=rdy('c'), hi=e + pos('Lc', 0) - 1, pre=[(f'f{5 + r}', G, 0), ('f3', G, 0), ('f4', G, 0)])
            if c == 3:
                for q, x in enumerate(dppred('v_add_f32', vAcc)):
                    add(f'dp{q}', G, x, hi=e + 7 + 2 * q, pre=[(f'dp{q - 1}', G, 2) if q else ('f8', G, 2)])
                add('blk', G, '@BLK', hi=e + 20, pre=[('dp5', G, 1)])
        order = list(items.values())
        gaps = {}
        isv = lambda x: isinstance(x, str) and x.startswith('v_')
        isl = lambda x: isinstance(x, str) and x.startswith('ds_')
        for gp in range(-NM, NG * NM):
            gaps[gp] = []
            uv = ul = 0
            while True:
                cand = []
                for it in order:
                    if it.at is not None or it.lo > gp:
                        continue
                    ok = True
                    for (nm, G, dist) in it.pre:
                        p = items.get((nm, G))
                        if p is None:
                            continue
                        if p.at is None or p.at + dist > gp:
                            ok = False
                            break
                    if not ok:
                        continue
                    cv_, cl_ = sum(map(isv, flat([it.code]))), sum(map(isl, flat([it.code]))) * (o.wcost if it.name == 'wo' else 1)
                    if it.hi > gp and (uv + cv_ > o.gapv or ul + cl_ > o.gapl or uv + ul + cv_ + cl_ > o.gapt) and cv_ + cl_:
                        continue
                    cand.append((it, cv_, cl_))
                if not cand:
                    break
                it, cv_, cl_ = min(cand, key=lambda x: x[0].hi)
                it.at = gp
                uv += cv_; ul += cl_
                gaps[gp].append(it)
        late = [(it.name, it.G, it.at - it.hi) for it in order if it.at is not None and it.at > it.hi and 4 <= it.G < 12]
        print('late items', late)
        sig_ = lambda G0: [[(it.name, it.G - G0) for it in gaps[G0 * NM + m]] for m in range(4 * NM)]
        assert sig_(4) == sig_(8), 'schedule not periodic'
        for f_ in (isv, isl):
            print('gap load', ''.join(str(sum(sum(map(f_, flat([it.code]))) for it in gaps[4 * NM + m])) + ('|' if m % NM == NM - 1 else '') for m in range(4 * NM)))
        keep = lambda c: [x for x in flat([c]) if not (isinstance(x, str) and any(x.startswith(d) for d in o.drop.split(',') if d))]
        prio = lambda p, lab: [f's_cmp_lg_u32 s{S_GRP}, 0', f's_cbranch_scc1 {lab}', f's_setprio {p}', f'{lab}:'] if o.phi else []

        def sstamp():
            if not (o.stamps and o.itst):
                return []
            return [f's_memtime s[{S_ST}:{S_ST + 1}]', f's_add_u32 s{S_C0}, s{S_LOOP}, 20', 's_waitcnt lgkmcnt(0)',
                    f's_mov_b32 m0, s{S_C0}', f'v_writelane_b32 v252, s{S_ST}, m0']

        pcode = []
        for gp in range(-NM, 4 * NM):
            for it in gaps[gp]:
                if it.G >= 4 and not it.name.startswith(('sw', 'wx')):
                    pcode += flat([it.code])
        PFD = o.pfd
        L = ['L_built:'] + self.stamp(10) + self.tlb2(vZ, vTk) + pcode + pfx_b() + pfx_a() + pfw()
        L += ['s_waitcnt lgkmcnt(0)', 's_barrier'] + (['s_setprio 1'] if o.phi else ['s_setprio 0']) + self.stamp(8)
        L += [wload(m) for m in range(PFD)] + prio(2, 'L_prf') + (['s_mov_b32 s100, 15'] if o.gst else [])
        peel2 = None
        for m in range(NM):
            L += [mfma(m)] + (wload(m + PFD) if m + PFD < NM else [])
            for it in gaps[4 * NM + m]:
                if it.code == '@BLK':
                    L += [f'ds_read_b32 v{vF}, v{vFR} offset:{M_X + 16}', f'ds_write_b16 v{vOr}, v{vAcc} offset:{3 * XPI + 7 * 128}']
                    L += self.cleared('L_cclr', vZ, vTk) + xdma(XI, XB1 - XB0) + (pfw() if o.pfp else [])
                    L += [f'v_readfirstlane_b32 s{S_T3}, v{vF}',
                          f's_lshr_b32 s{S_T3}, s{S_T3}, 23', f's_sub_i32 s{S_T3}, 141, s{S_T3}', f's_min_i32 s{S_T3}, s{S_T3}, 40',
                          f's_add_i32 s{S_EXP}, s{S_T2}, s{S_T3}', f's_sub_i32 s{S_EXP}, 0, s{S_EXP}', f's_mov_b32 s{S_EXPC}, s{S_EXP}',
                          f's_mov_b32 s{S_PH}, 1', f's_mov_b32 s{S_PREV}, 1']
                    L += [f's_cmp_lg_u32 s{S_WAVE}, 7', 's_cbranch_scc1 L_nw0']
                    peel1 = self.seq(L)
                    peelw = self.seq(w0x)
                    L = ['L_nw0:']
                elif it.G >= 4:
                    L += flat([it.code])
        L += [f'ds_add_u32 v{vFA}, v{vOne} offset:{F_PEEL}', 's_branch L_grp1']
        peel2 = self.seq(L)
        prime = self.seq(['L_prime:'] + [f'v_mov_b32 v{r}, 0' for r in range(D, D + 16)] + [f'v_mov_b32 v{FT}, 0', f'v_mov_b32 v{FT + 1}, 0'] + pcode)
        blk_a = ['L_blk:', f's_cmp_eq_u32 s{S_PREV}, 0', 's_cbranch_scc1 L_blkend',
                 f'v_readlane_b32 s{S_TW}, v{vAcc}, 63', f'v_ldexp_f32 v{vAcc}, v{vAcc}, s{S_EXPC}', f'v_and_b32 v{vAcc}, -2, v{vAcc}',
                 f's_cmp_eq_u32 s{S_PREV}, 2', 's_cbranch_scc1 L_good',
                 f's_cmp_eq_u64 s[{S_CHK}:{S_CHK + 1}], 0', 's_cbranch_scc1 L_slow',
                 f's_bfe_u32 s{S_TW}, s{S_TW}, 0x80017', f's_cmp_eq_u32 s{S_TW}, 255', 's_cbranch_scc1 L_slow',
                 'L_good:', 's_mov_b32 exec_lo, 0', 's_mov_b32 exec_hi, 0x80000000',
                 f'buffer_store_dword v{vAcc}, v{vZ}, {srd(SRD_WS)}, s{S_RC} offen sc1', 's_mov_b64 exec, -1',
                 f's_add_u32 s{S_RC}, s{S_RC}, 32', f's_sub_u32 s{S_LOOP}, s{S_LOOP}, 1', f's_cmp_eq_u32 s{S_LOOP}, 0', 's_cbranch_scc1 L_cin_done']
        blk_a += [f's_cmp_eq_u32 s{S_LOOP}, 1', 's_cbranch_scc1 L_lastnext']
        blk_b = xdma() + [f's_add_u32 s{S_SAMP}, s{S_SAMP}, {8 * 104}', f's_cmp_lg_u32 s{S_LOOP}, s{S_TK}', 's_cbranch_scc1 L_nodma']
        blk_t = [f'v_mov_b32 v{vTk}, 1', 's_mov_b64 exec, 1', f'buffer_atomic_add v{vTk}, v{vZ}, {srd(SRD_WS)}, s{S_ST0} offen sc0',
                 's_mov_b64 exec, -1', f's_mov_b32 s{S_TK}, 8', 's_branch L_nodma',
                 'L_lastnext:', f's_cmp_lt_i32 s{S_DYN}, 0', f's_cselect_b32 s{S_RC}, s{S_RC}, s{S_DYN}']
        hook_a = [f's_cmp_lg_u32 s{S_TK}, 8', 's_cbranch_scc1 L_hk']
        hook_t = ['s_waitcnt vmcnt(0)', f'v_readfirstlane_b32 s{S_TW}, v{vTk}', f's_mov_b32 s{S_TK}, 0', f's_add_u32 s{S_TW}, s{S_TW}, 485',
                  f's_cmp_ge_u32 s{S_TW}, 512', 's_cbranch_scc1 L_hk',
                  f's_add_u32 s{S_LOOP}, s{S_LOOP}, 1',
                  f's_lshr_b32 s{S_SAMP}, s{S_ST0}, 14', f's_lshl_b32 s{S_DYN}, s{S_SAMP}, 12', f's_add_u32 s{S_DYN}, s{S_DYN}, s{S_TW}',
                  f's_lshl_b32 s{S_DYN}, s{S_DYN}, 2', f's_add_u32 s{S_DYN}, s{S_DYN}, {5 * 2048}',
                  f's_lshl_b32 s{S_SAMP}, s{S_SAMP}, 9', f's_add_u32 s{S_SAMP}, s{S_SAMP}, s{S_TW}', f's_mul_i32 s{S_SAMP}, s{S_SAMP}, 104']
        hook_b = ['L_hk:'] + xidx(adv=False)
        blk_b2 = ['L_nodma:'] + [f's_add_u32 s{S_BCUR}, s{S_BCUR}, s{S_BD}', f's_sub_u32 s{S_BD}, 0, s{S_BD}', f's_mov_b32 s{S_EXPC}, s{S_EXP}', f's_mov_b32 s{S_PH}, 1']
        blk_c = ['L_blkend:', f's_mov_b32 s{S_PREV}, s{S_PH}']
        parts = [[], [], [], [], []]
        cur = self.seq(['L_cin_loop:'])
        for m in range(4 * NM):
            if m == NM:
                parts[3] = cur
                cur = self.seq(['L_grp1:'])
            if m == o.hook:
                p4a = cur + self.seq(hook_a)
                p4t = self.seq(hook_t)
                cur = self.seq(hook_b)
            if o.gst and m % NM == 0:
                cur += self.seq([f's_memtime s[{S_ST}:{S_ST + 1}]', 's_add_u32 s100, s100, 1', 's_min_u32 s100, s100, 31', 's_waitcnt lgkmcnt(0)',
                                 's_mov_b32 m0, s100', f'v_writelane_b32 v253, s{S_ST}, m0'])
            if o.phi and m in (0, o.phi):
                cur += self.seq(prio(0 if m else 2, f'L_pr{m}'))
            cur += self.seq([mfma(m % NM)])
            for it in gaps[4 * NM + m]:
                if it.code == '@BLK':
                    parts[0] = cur + self.seq(sstamp() + ['s_waitcnt vmcnt(0)', f's_cmp_le_u32 s{S_LOOP}, {o.pfend}', 's_cbranch_scc1 L_blk'])
                    pfp = self.seq(pfx_b() + pfx_a() + pfw())
                    parts[1] = self.seq(blk_a)
                    parts[2] = self.seq(blk_b)
                    pbt = self.seq(blk_t)
                    pb2 = self.seq(blk_b2)
                    cur = self.seq(blk_c)
                else:
                    cur += self.seq(keep(it.code))
        cur += self.seq([f's_cmp_lg_u32 s{S_LOOP}, 1', 's_cbranch_scc1 L_cin_loop'])
        parts[4] = p4a + cur
        p4x = p4a + p4t + cur
        tail = self.seq([it.code for m in range(NM) for it in gaps[4 * NM + m] if it.G == 3 and it.code != '@BLK'] + ['s_branch L_blk'])
        Q = RZ
        rows = [(g, r) for g in range(4) for r in range(8)][:31]
        L = ['L_slow:', f'v_lshlrev_b32 v{FT}, 1, v0', f'v_add_u32 v{FT + 1}, s{S_BCUR}, v{FT}',
             f's_mul_i32 s{S_TW}, s{S_WAVE}, {XBSZ}', f's_add_u32 s{S_TW}, s{S_TW}, {XSP}',
             f'v_add_u32 v{FT}, s{S_TW}, v{FT}', f'v_add_u32 v{vLin}, s{S_TW}, v{vLinB}']
        L += [f'v_subrev_u32 v{vRaw}, s{S_BD}, v{vRaw}'] + wait(F_PEEL, 8)
        L += [f'ds_read_u16 v{Q + n}, v{FT + 1} offset:{g * XPI + r * 128}' for n, (g, r) in enumerate(rows)]
        L += [f'v_lshlrev_b32 v{Q + n}, 16, v{Q + n}' for n in range(31)]
        L += absmax(vAcc, list(range(Q, Q + 31))) + dppred('v_max_u32', vAcc)
        L += [f'v_readlane_b32 s{S_TW}, v{vAcc}, 63', f's_lshr_b32 s{S_TW}, s{S_TW}, 23', f's_sub_i32 s{S_TW}, 134, s{S_TW}',
              f's_min_i32 s{S_TW}, s{S_TW}, 16',
              f's_lshl_b32 s{S_EXPC}, s{S_TW}, 2', f's_sub_i32 s{S_EXPC}, s{S_EXP}, s{S_EXPC}',
              f's_add_i32 s{S_TW}, s{S_TW}, 127', f's_lshl_b32 s{S_TW}, s{S_TW}, 23', f'v_mov_b32 v{Q + 31}, s{S_TW}']
        L += [f'v_mul_f32 v{Q + n}, s{S_TW}, v{Q + n}' for n in range(31)]
        L += [f'ds_write_b16_d16_hi v{FT + 1}, v{Q + n} offset:{g * XPI + r * 128}' for n, (g, r) in enumerate(rows)]
        L += [f'v_mul_f32 v{Q + n}, s{S_TW}, v{Q + n}' for n in range(32)]
        L += [f'ds_write_b16_d16_hi v{FT}, v{Q + n} offset:{g * XPI + r * 128}' for n, (g, r) in enumerate(rows + [(3, 7)])]
        L += [f's_mov_b32 s{S_PREV}, 0', f's_mov_b32 s{S_PH}, 2', 's_waitcnt lgkmcnt(0)', 's_branch L_prime']
        slow = self.seq(L)
        fin_ = self.seq(['L_cin_done:'] + self.stamp(9) + self.stamp_flush() + self.padsig() + ['s_endpgm'])
        rest = parts[3] + parts[4]
        full = parts[0] + pfp + parts[1] + parts[2] + pb2 + rest
        nopf = parts[0] + parts[1] + parts[2] + pbt + pb2 + parts[3] + p4x
        last = parts[0] + parts[1] + pb2 + rest
        redo = lambda pf: parts[1][:10] + slow + prime + parts[0] + (pfp if pf else []) + parts[1][:3] + rest
        end_ = tail + parts[1][:-2] + fin_
        main = peel2 + parts[4] + full + full + parts[0] + pfp + redo(1) + full + nopf + parts[0] + redo(0) + nopf + last + tail + redo(0) + end_
        main2 = peel2 + parts[4] + parts[0] + pfp + redo(1) + full + nopf + last + end_
        traces = []
        for w in range(8):
            tr = c0 + (g0a + cc + g0pf if w < 4 else g1a + cc + uc0 + uc) + bld + ch[(w >> 1) & 1] + cv
            tr += (cv1 + (cv2 if w >= 4 else [])) if w & 2 else cv0
            for mn in (main, main2):
                traces.append(tr + peel1 + (peelw if w == 7 else []) + mn)
        return traces

    def build(self):
        pro = self.prologue()
        d = self.dnn()
        cs = self.cin()
        rm = self.rem()
        self.seq(['L_end:', 's_endpgm'])
        traces = [pro + c for c in d + cs + rm]
        for t in traces:
            resolve_waits(t)
        for _ in range(2):
            for t in traces:
                resolve_hazards(t)
        hdr = open(os.path.join(os.path.dirname(os.path.abspath(__file__)), 'header.txt')).read()
        txt = hdr + f'; @launch grid=(256,1,1) block=(512,1,1) lds={LDS_TOTAL}\n'
        txt += f'''.amdgcn_target "amdgcn-amd-amdhsa--gfx950"
{DOC}.text
.globl {KNAME}
.p2align 8
.type {KNAME},@function
{KNAME}:
'''
        body_ = self.P.emit()
        if 'wsame' in self.opt.dbg:
            body_ = body_.replace(f's_add_u32 s{S_WSOFF}, s{S_WSOFF}, {32 * 3328}', f's_xor_b32 s{S_WSOFF}, s{S_WSOFF}, 0')
        if 'xsame' in self.opt.dbg:
            import re as _re
            body_ = _re.sub(r'v_lshl_add_u32 v(2[4-9]|3[01]), v(1[6-9]), 7', r'v_lshl_add_u32 v\1, v16, 7', body_)
            body_ = _re.sub(r'v_lshl_add_u32 v(2[4-9]|3[01]), v(2[0-3]), 7', r'v_lshl_add_u32 v\1, v20, 7', body_)
            body_ = _re.sub(r'v_lshl_add_u32 v(2[4-9]|3[01]), v(9[6-9]), 7', r'v_lshl_add_u32 v\1, v96, 7', body_)
            body_ = _re.sub(r'v_lshl_add_u32 v(2[4-9]|3[01]), v(10[0-3]), 7', r'v_lshl_add_u32 v\1, v100, 7', body_)
            body_ = body_.replace('offen offset:12\n', 'offen offset:0\n').replace('offen offset:844\n', 'offen offset:832\n')
            body_ = body_.replace(f's_mov_b32 s{S_IDXOFF}, 28', f's_mov_b32 s{S_IDXOFF}, 0').replace(f's_add_u32 s{S_IDXOFF}, s{S_IDXOFF}, 16', 's_nop 0')
        if self.opt.align:
            for lab in ('L_dnn_loop0:', 'L_dnn_loop1:', 'L_cin_loop:', 'L_epi:'):
                pad = '  s_nop 0\n' if self.opt.align > 100 else ''
                body_ = body_.replace(lab + '\n', f'.p2align {self.opt.align % 100}\n{pad}{lab}\n')
        txt += body_
        txt += f'''.section .rodata,"a"
.p2align 6
.amdhsa_kernel {KNAME}
  .amdhsa_next_free_vgpr 256
  .amdhsa_next_free_sgpr 102
  .amdhsa_accum_offset 256
  .amdhsa_group_segment_fixed_size 0
  .amdhsa_kernarg_size 88
  .amdhsa_user_sgpr_count 2
  .amdhsa_user_sgpr_kernarg_segment_ptr 1
  .amdhsa_system_sgpr_workgroup_id_x 1
  .amdhsa_float_denorm_mode_32 {self.opt.denorm}
.end_amdhsa_kernel
'''
        return txt


def main():
    ap = argparse.ArgumentParser()
    ap.add_argument('-o', default='standalone__deep_cross_xdeepfm__recsys.s')
    ap.add_argument('--stamps', action='store_true')
    ap.add_argument('--padat', default='')
    ap.add_argument('--padmin', type=int, default=0)
    ap.add_argument('--nodma', action='store_true')
    ap.add_argument('--cpf', type=int, default=1)
    ap.add_argument('--coop', type=int, default=1)
    ap.add_argument('--coopw', type=int, default=2)
    ap.add_argument('--tbpos', type=int, default=0)
    ap.add_argument('--dbar3', type=int, default=1)
    ap.add_argument('--tlb', type=int, default=0)
    ap.add_argument('--tlb2', type=int, default=1)
    ap.add_argument('--itst', type=int, default=0)
    ap.add_argument('--diag', type=int, default=0)
    ap.add_argument('--dbg', default='')
    ap.add_argument('--lead3', type=int, default=1)
    ap.add_argument('--morder', type=int, default=0)
    ap.add_argument('--etlb', type=int, default=21)
    ap.add_argument('--lateb', type=int, default=0)
    ap.add_argument('--wfl', default='')
    ap.add_argument('--xfl', default='')
    ap.add_argument('--tag', type=int, default=0)
    ap.add_argument('--idxfirst', type=int, default=1)
    ap.add_argument('--bpos', type=int, default=2)
    ap.add_argument('--sigat', type=int, default=4)
    ap.add_argument('--epx', type=int, default=1)
    ap.add_argument('--denorm', type=int, default=3)
    ap.add_argument('--mprio', type=int, default=0)
    ap.add_argument('--swap', type=int, default=0)
    ap.add_argument('--bov', type=int, default=2)
    ap.add_argument('--rfirst', type=int, default=0)
    ap.add_argument('--g1x', type=int, default=0)
    ap.add_argument('--ldsred', type=int, default=0)
    ap.add_argument('--csnake', type=int, default=0)
    ap.add_argument('--cswap', type=int, default=0)
    ap.add_argument('--align', type=int, default=0)
    ap.add_argument('--c2', type=int, default=0)
    ap.add_argument('--d1', type=int, default=0)
    ap.add_argument('--cstr', type=int, default=3)
    ap.add_argument('--bearly', type=int, default=1)
    ap.add_argument('--w2late', type=int, default=1)
    ap.add_argument('--aov', type=int, default=3)
    ap.add_argument('--upos', type=int, default=1)
    ap.add_argument('--calt', type=int, default=1)
    ap.add_argument('--pfpos', type=int, default=1)
    ap.add_argument('--wlate', type=int, default=0)
    ap.add_argument('--dbar2', type=int, default=0)
    ap.add_argument('--dbar', type=int, default=0)
    ap.add_argument('--pfw', type=int, default=1)
    ap.add_argument('--pfx', type=int, default=3)
    ap.add_argument('--pfx0', type=int, default=4)
    ap.add_argument('--pfs', type=int, default=14)
    ap.add_argument('--dcoopx', type=int, default=1)
    ap.add_argument('--dcx0', type=int, default=0)
    ap.add_argument('--dcxpos', type=int, default=-1)
    ap.add_argument('--pfe0', type=int, default=2)
    ap.add_argument('--pfne', type=int, default=14)
    ap.add_argument('--prio47', type=int, default=0)
    ap.add_argument('--lookahead', type=int, default=5)
    ap.add_argument('--nz', type=int, default=6)
    ap.add_argument('--nwf', type=int, default=8)
    ap.add_argument('--hiat', type=int, default=4)
    ap.add_argument('--wmerge', type=int, default=0)
    ap.add_argument('--gapv', type=int, default=2)
    ap.add_argument('--lat', type=int, default=5)
    ap.add_argument('--shs', type=int, default=256)
    ap.add_argument('--pfp', type=int, default=1)
    ap.add_argument('--epos', type=int, default=0)
    ap.add_argument('--hook', type=int, default=100)
    ap.add_argument('--rrd', type=int, default=11)
    ap.add_argument('--rdrop', default='')
    ap.add_argument('--pfr', type=int, default=4)
    ap.add_argument('--vin', type=int, default=1)
    ap.add_argument('--rstag', type=int, default=1)
    ap.add_argument('--eprio', type=int, default=1)
    ap.add_argument('--nopk', type=int, default=0)
    ap.add_argument('--w1first', type=int, default=0)
    ap.add_argument('--xpos', type=int, default=0)
    ap.add_argument('--z1lo', type=int, default=40)
    ap.add_argument('--pfend', type=int, default=3)
    ap.add_argument('--gst', type=int, default=0)
    ap.add_argument('--gapl', type=int, default=2)
    ap.add_argument('--gapt', type=int, default=2)
    ap.add_argument('--wcost', type=int, default=2)
    ap.add_argument('--bprio', type=int, default=1)
    ap.add_argument('--c1hi', type=int, default=-8)
    ap.add_argument('--c2hi', type=int, default=12)
    ap.add_argument('--rspan', type=int, default=34)
    ap.add_argument('--rlead', type=int, default=16)
    ap.add_argument('--pfd', type=int, default=10)
    ap.add_argument('--mo', type=int, default=2)
    ap.add_argument('--ba', type=int, default=6)
    ap.add_argument('--sig2', type=int, default=4)
    ap.add_argument('--drop', default='')
    ap.add_argument('--al8', type=int, default=0)
    ap.add_argument('--alph', type=int, default=0)
    ap.add_argument('--almm', type=int, default=0)
    ap.add_argument('--phi', type=int, default=123)
    ap.add_argument('--rawlo', type=int, default=8)
    ap.add_argument('--flo', type=int, default=3)
    opt = ap.parse_args()
    resolve_waits.dbg = 'dup' in opt.dbg
    g = Gen(opt)
    txt = g.build()
    if opt.al8:
        import align8
        rg = []
        if opt.al8 & 1:
            rg.append(('L_cin_loop', 'L_slow'))
        if opt.al8 & 2:
            rg += [('L_dnn_loop0', 'L_dnn_h1'), ('L_dnn_loop1', 'L_epi')]
        if opt.al8 & 4:
            rg += [('L_epi', 'L_pub')]
        txt = align8.align(txt, rg, opt.alph, opt.almm)
    open(opt.o, 'w').write(txt)
    print('wrote', opt.o, len(txt), 'bytes')


if __name__ == '__main__':
    main()
```

```python
import sys, os, struct, argparse
sys.path.insert(0, os.path.dirname(os.path.abspath(__file__)))
from cinplan import ZD, cls
from asmlib import I, WaitTag, Prog, resolve_waits, resolve_hazards

KNAME = 'standalone__deep_cross_xdeepfm__recsys_kernel'
LDS_TOTAL = 163840

XSLOT = 16384
WR = 4 * XSLOT
WP = 640
WSLOT = 32 * WP
L_BIAS = WR + 4 * WSLOT
L_W2 = L_BIAS + WP
RB = 2 * XSLOT
RWR = 131072

ASZ = 35264
A1 = 1024
A2 = A1 + ASZ
A3 = A2 + ASZ
UST = 1356
V3OFF = A3 + ASZ
V2OFF = V3OFF + 2048
L_WCO = V2OFF + 1408
L_FLG = L_WCO + 192
RC = L_FLG + 64
XB0 = RC + 512
XPI = 1056
XBSZ = 4 * XPI
XB1 = A3
TA = A1
TC = TA + 11 * 1024
TD = TC + 12 * 1024
TB = A2
XSP = A1
XCH = XB0 + 8 * XBSZ
OOB = 0x100000
NCLR = 56
NPOOL = 224
assert XCH + 8192 <= LDS_TOTAL and XB0 % 16 == 0 and A2 % 16 == 0 and A3 % 16 == 0 and L_WCO % 16 == 0
assert 8 * XBSZ <= ASZ and TD + 11 * 1024 <= A2

S_WAVE = 3
S_IDX, S_TAB, S_CIN, S_WCO, S_W1, S_B1, S_W2, S_BO, S_OUT, S_DBG, S_WS = 4, 6, 8, 10, 12, 14, 16, 18, 20, 22, 24
S_MB, S_R = 26, 27
SRD_IDX, SRD_TAB, SRD_CIN, SRD_WCO, SRD_W, SRD_B1, SRD_W2, SRD_OUT, SRD_WS, SRD_DBG = 28, 32, 36, 40, 44, 48, 52, 56, 60, 64
S_T0, S_T1, S_T2, S_T3 = 68, 69, 70, 71
S_LOOP, S_IDXOFF, S_WSOFF, S_WMB, S_XM0, S_N0, S_C0, S_CW, S_BOUT, S_TW = 72, 73, 74, 75, 76, 77, 78, 79, 80, 81
S_EX = 82
S_GRP, S_RC = 84, 85
S_ST = 86
S_M26, S_MASK = 90, 92
S_SAMP, S_STG, S_STG9, S_TGT = 94, 95, 96, 97
S_M26B = 98
S_GW = 100
S_TAGT = 0
S_TAG = 1
S_PW = 101
S_PX = 77
S_PXE = 73

GELU_C0 = -2.0 * 0.7978845608028654 * 1.4426950408889634
GELU_C1 = GELU_C0 * 0.044715


def f32hex(x):
    return '0x%08x' % struct.unpack('<I', struct.pack('<f', x))[0]


def vr(a, n):
    return f'v[{a}:{a + n - 1}]' if n > 1 else f'v{a}'


def srd(a):
    return f's[{a}:{a + 3}]'


def flat(gs):
    res = []
    for c in gs:
        if isinstance(c, (tuple, list)):
            res += flat(c)
        else:
            res.append(c)
    return res


def interleave(a, b):
    out = []
    ia = ib = 0
    na, nb = len(a), len(b)
    while ia < na or ib < nb:
        if ib >= nb or (ia < na and ia * nb <= ib * na):
            out.append(a[ia]); ia += 1
        else:
            out.append(b[ib]); ib += 1
    return out


assert all((d * 2521) >> 16 == d // 26 for d in range(800))
assert all((d * 10923) >> 16 == d // 6 for d in range(64))
assert all((d * 1561) >> 16 == d // 42 for d in range(176))


DOC = '''; ---------------------------------------------------------------------------------------------
;
;       V3[h,k]  = sum_g wo[52+g] W3[g,h,k]          V2[i,j] = sum_h wo[26+h] W2[h,i,j]
;       U[i,j,k] = sum_h W2[h,i,j] V3[h,k]
;       g1[i]    = wo[i] + sum_j V2[i,j] x_j + sum_jk U[i,j,k] x_j x_k
;   Both quadratic forms use the 351 distinct products x_j x_k (j<=k) with symmetrised weights,
; Work split: per block of 128 samples, 5 workgroups do the DNN branch (128 x 336 output tiles) and
;   3 workgroups the CIN branch; partial logits go through d_ws (sc1) and a counter in d_debug,
;   the last arriver of a block adds them up and writes d_out.
; ---------------------------------------------------------------------------------------------
'''


class Gen:
    def __init__(self, opt):
        self.opt = opt
        self.P = Prog()
        self.role = 'x'

    def seq(self, lines):
        return [self.P.add(l) for l in flat(lines)]

    def build_srd(self, dst, ptr, size):
        return [f's_mov_b32 s{dst}, s{ptr}', f's_and_b32 s{dst + 1}, s{ptr + 1}, 0xffff',
                f's_mov_b32 s{dst + 2}, {size}', f's_mov_b32 s{dst + 3}, 0x20000']

    def stamp(self, slot):
        if self.opt.padat == f'{self.role}{slot}':
            return [f's_memrealtime s[88:89]', 's_waitcnt lgkmcnt(0)']
        if not self.opt.stamps:
            return []
        return [f's_memtime s[{S_ST}:{S_ST + 1}]', f's_memrealtime s[{S_ST + 2}:{S_ST + 3}]', 's_waitcnt lgkmcnt(0)',
                f'v_writelane_b32 v252, s{S_ST}, {slot}', f'v_writelane_b32 v253, s{S_ST + 2}, {slot}']

    def stamp_flush(self):
        if not self.opt.stamps:
            return []
        L = self.build_srd(SRD_WS, S_WS, 0x10000000)
        L += [f's_lshl_b32 s{S_C0}, s2, 3', f's_add_u32 s{S_C0}, s{S_C0}, s{S_WAVE}',
              f's_lshl_b32 s{S_C0}, s{S_C0}, 8', f's_add_u32 s{S_C0}, s{S_C0}, 0x100000',
              'v_lshlrev_b32 v254, 3, v0', 's_mov_b32 exec_hi, 0',
              f'buffer_store_dwordx2 v[252:253], v254, {srd(SRD_WS)}, s{S_C0} offen', 's_mov_b32 exec_hi, -1']
        return L

    def stamp0(self):
        if not self.opt.stamps:
            return []
        return ['v_mov_b32 v252, 0xcdcdcdcd', 'v_mov_b32 v253, 0xcdcdcdcd',
                f'v_writelane_b32 v252, s{S_ST}, 0', f'v_writelane_b32 v253, s{S_ST + 2}, 0'] + self.stamp(15)

    def tlb2(self, t, vflag):
        L = self.build_srd(SRD_WS, S_WS, 0x10000000) + self.build_srd(SRD_DBG, S_DBG, 256)
        L += [f'v_lshlrev_b32 v{t}, 2, v0',
              ('s_mov_b64 exec, 0xff', f's_mov_b32 s{S_TW}, 0x80000',
               f'buffer_load_dword v255, v{t}, {srd(SRD_WS)}, s{S_TW} offen',
               f'buffer_load_dword v{vflag}, v{t}, {srd(SRD_DBG)}, 0 offen offset:128 sc1',
               's_mov_b64 exec, -1'), f'v_mov_b32 v{t}, 0']
        return L

    def cleared(self, lab, t, vflag):
        chk = [f'v_cmp_eq_u32 vcc, 0, v{vflag}', 's_and_b32 vcc_lo, vcc_lo, 0xff']
        return chk + [f's_cbranch_scc0 {lab}_ok', f's_mov_b32 s{S_C0}, 0x40000',
                f'{lab}:', f's_sub_u32 s{S_C0}, s{S_C0}, 1', 's_cbranch_scc1 L_end', f'v_lshlrev_b32 v{vflag}, 2, v0', f'v_and_b32 v{vflag}, 31, v{vflag}',
                f'buffer_load_dword v{vflag}, v{vflag}, {srd(SRD_DBG)}, 0 offen offset:128 sc1', 's_waitcnt vmcnt(0)'] + chk + [f's_cbranch_scc1 {lab}', f'{lab}_ok:']

    def padsig(self):
        o = self.opt
        if not o.padat:
            return []
        pre = ['v_mov_b32 v8, 4']
        if (o.padat[0] if o.padat != 'start' else 'd') != self.role:
            return pre
        return pre + [f's_cmp_lg_u32 s{S_WAVE}, 0', 's_cbranch_scc1 L_nosig'] + ([f's_not_b32 s88, s88'] if o.padmin else []) + ['v_mov_b32 v7, s88', 's_mov_b64 exec, 1',
                f'buffer_atomic_umax v7, v8, {srd(SRD_DBG)}, 0 offen', 's_mov_b64 exec, -1', 'L_nosig:']

    def tlb1(self, vtmp, vdst):
        if not self.opt.etlb:
            return self.build_srd(SRD_TAB, S_TAB, 100000 * 128)
        return self.build_srd(SRD_TAB, S_TAB, 100000 * 128) + [
            f'v_mov_b32 v{vtmp}, s{S_BOUT}', f'buffer_load_dword v{vdst}, v{vtmp}, {srd(SRD_TAB)}, 0 offen']

    def prologue(self):
        L = []
        if self.opt.padat == 'start':
            L += ['s_memrealtime s[88:89]']
        elif self.opt.padat:
            L += [f's_mov_b32 s88, {-1 if self.opt.padmin else 0}']
        if self.opt.stamps:
            L += [f's_memtime s[{S_ST}:{S_ST + 1}]', f's_memrealtime s[{S_ST + 2}:{S_ST + 3}]']
        L += ['s_cmp_ge_u32 s2, 256', 's_cbranch_scc1 L_end',
              's_load_dwordx16 s[4:19], s[0:1], 0',
              's_load_dwordx4 s[20:23], s[0:1], 64',
              's_load_dwordx2 s[24:25], s[0:1], 80',
              'v_lshrrev_b32 v1, 6, v0']
        if self.opt.cpf:
            L += [f's_getpc_b64 s[{S_MASK}:{S_MASK + 1}]', 'L_pc:',
                  f's_and_b32 s{S_T0}, s2, 0xf8', f'v_add_u32 v2, s{S_T0}, v1', 'v_lshlrev_b32 v2, 7, v2',
                  f'v_min_u32 v2, L_end-L_pc, v2',
                  f'v_mov_b32 v3, s{S_MASK + 1}',
                  f'v_add_co_u32 v2, vcc, s{S_MASK}, v2', 'v_addc_co_u32 v3, vcc, 0, v3, vcc',
                  'global_load_dword v255, v[2:3], off']
        L += ['v_and_b32 v0, 63, v0',
              f'v_readfirstlane_b32 s{S_WAVE}, v1',
              f's_and_b32 s{S_T0}, s2, 7', f's_lshl_b32 s{S_T0}, s{S_T0}, 2',
              f's_lshr_b32 s{S_MB}, s2, 6', f's_add_u32 s{S_MB}, s{S_MB}, s{S_T0}',
              f's_bfe_u32 s{S_R}, s2, 0x30003',
              f's_and_b32 s{S_BOUT}, s2, 0xf8', f's_add_u32 s{S_BOUT}, s{S_BOUT}, s{S_WAVE}', f's_lshl_b32 s{S_BOUT}, s{S_BOUT}, {self.opt.etlb}',
              f's_cmp_ge_u32 s{S_R}, 5', 's_cbranch_scc1 L_cin']
        return self.seq(L)

    def gelu(self, groups, TB, KC0, KC1, KONE):
        p2 = lambda r: vr(r, 2)
        L = []
        seen = set()
        for k, vals in enumerate(groups):
            tb = TB + (k % 2) * 16
            V_ = [(x, w, s_, tb + 4 * i_, tb + 4 * i_ + 2) for i_, (x, w, s_) in enumerate(vals)]
            for (x, w, s_, t, u) in V_:
                L.append(f'v_pk_mul_f32 {p2(t)}, {p2(x)}, {p2(x)}')
            for (x, w, s_, t, u) in V_:
                L.append(f'v_pk_fma_f32 {p2(t)}, {p2(t)}, {p2(KC1)}, {p2(KC0)}')
            for (x, w, s_, t, u) in V_:
                L.append(f'v_pk_mul_f32 {p2(t)}, {p2(t)}, {p2(x)}')
            for (x, w, s_, t, u) in V_:
                L += [f'v_exp_f32 v{t}, v{t}', f'v_exp_f32 v{t + 1}, v{t + 1}']
            for (x, w, s_, t, u) in V_:
                L.append(f'v_pk_fma_f32 {p2(t)}, {p2(t)}, {p2(w)}, {p2(w)}')
            for (x, w, s_, t, u) in V_:
                L += [f'v_rcp_f32 v{t}, v{t}', f'v_rcp_f32 v{t + 1}, v{t + 1}']
            for (x, w, s_, t, u) in V_:
                if s_ in seen:
                    L.append(f'v_pk_fma_f32 {p2(s_)}, {p2(t)}, {p2(x)}, {p2(s_)}')
                else:
                    L.append(f'v_pk_mul_f32 {p2(s_)}, {p2(t)}, {p2(x)}')
                    seen.add(s_)
        if self.opt.nopk:
            import re as _re
            L2 = []
            for x in L:
                if x.startswith('v_pk_'):
                    mn = x.split()[0].replace('v_pk_', 'v_')
                    rs = [int(r) for r in _re.findall(r'v\[(\d+):', x)]
                    L2 += [f'{mn} ' + ', '.join(f'v{r + h}' for r in rs) for h in range(2)]
                else:
                    L2.append(x)
            L = L2
        return L

    def red4(self, SUMP):
        sm = lambda tm: SUMP + 2 * tm
        L = [f'v_add_f32 v{sm(tm)}, v{sm(tm)}, v{sm(tm) + 1}' for tm in range(4)]
        L += [f'v_permlane32_swap_b32 v{sm(tm)}, v{sm(tm + 2)}' for tm in range(2)]
        L += [f'v_add_f32 v{sm(tm)}, v{sm(tm)}, v{sm(tm + 2)}' for tm in range(2)]
        L += [f'v_permlane16_swap_b32 v{sm(0)}, v{sm(1)}', f'v_add_f32 v{sm(0)}, v{sm(0)}, v{sm(1)}']
        return L

    def kconst(self, KC0, KC1, KONE):
        return [f'v_mov_b32 v{KC0}, {f32hex(GELU_C0)}', f'v_mov_b32 v{KC0 + 1}, {f32hex(GELU_C0)}',
                f'v_mov_b32 v{KC1}, {f32hex(GELU_C1)}', f'v_mov_b32 v{KC1 + 1}, {f32hex(GELU_C1)}',
                f'v_mov_b32 v{KONE}, 0x71800000']

    def winv(self, R, n, KONE):
        return [f'v_rcp_f32 v{R + k}, v{R + k}' for k in range(n)] + [f'v_med3_f32 v{R + k}, v{R + k}, -v{KONE}, v{KONE}' for k in range(n)]

    def dnn(self):
        o = self.opt
        self.role = 'd'
        vW = [[1, 2, 3, 4, 5], [6, 7, 8, 9, 10]]
        vX = [11, 12]
        vIdxOff, vCh = 13, [14, 15]
        ST = [16, 20]
        VO = 24
        vWD = [32, 33, 34]
        vP, vPc, vBL = 35, 36, 37
        WF = 40
        XA = 80
        T = 112
        W2F = 112
        ACC = 140
        PK = 220
        SUMP, KC0, KC1, KONE = 16, 232, 234, 236
        WL = 3

        def acc(tn, tm):
            return ACC + (tn * 4 + tm) * 4

        HH, SL = S_T0, S_T1
        g, i4, q = T + 18, T + 19, T + 20
        PI, vCW = T + 8, T + 12
        nr = o.coopw
        L = [f's_mul_i32 s{S_N0}, s{S_R}, {WP}',
             f's_mul_i32 s{S_T2}, s{S_WAVE}, 7', f'v_min_u32 v{q}, 6, v0', f'v_add_u32 v{q}, s{S_T2}, v{q}', f'v_min_u32 v{q}, 51, v{q}',
             f'v_lshrrev_b32 v{g}, 1, v{q}', f'v_mul_u32_u24 v{g}, 96, v{g}', f'v_lshl_add_u32 v{q}, v{q}, 2, v{g}',
             f's_mul_i32 s{S_C0}, s{S_R}, 26', f's_min_u32 s{S_C0}, s{S_C0}, 102', f's_lshl_b32 s{S_T3}, s{S_MB}, 7',
             f's_add_u32 s{S_C0}, s{S_C0}, s{S_T3}', f's_mul_i32 s{S_C0}, s{S_C0}, 104',
             f's_and_b32 s{S_T2}, s{S_MB}, 3', f's_lshl_b32 s{S_T2}, s{S_T2}, 3', f's_add_u32 s{S_T2}, s{S_T2}, s{S_WAVE}',
             f's_mul_i32 s{S_T2}, s{S_T2}, 3328', f's_add_u32 s{S_TW}, s{S_T2}, s{S_N0}',
             f'v_min_u32 v{vCW}, {8 * nr - 1}, v0', f'v_lshrrev_b32 v{g}, 3, v{vCW}', f's_mov_b32 s{S_T2}, {32 * 3328}',
             f'v_mul_u32_u24 v{g}, s{S_T2}, v{g}',
             f'v_and_b32 v{vCW}, 7, v{vCW}', f'v_min_u32 v{vCW}, 4, v{vCW}', f'v_lshl_add_u32 v{vCW}, v{vCW}, 7, v{g}',
             's_waitcnt lgkmcnt(0)']
        L += self.build_srd(SRD_IDX, S_IDX, 4096 * 104)
        L += [f'buffer_load_dwordx3 {vr(PI, 3)}, v{q}, {srd(SRD_IDX)}, s{S_C0} offen']
        L += self.tlb1(T + 24, 255)
        vec = lambda dst, sr: [f's_mov_b32 m0, {dst}', 's_mov_b32 exec_hi, 0xff',
                               I(f'buffer_load_dwordx4 v{vBL}, {srd(sr)}, s{S_N0} offen lds', tag='BIAS'), 's_mov_b64 exec, -1']
        L += [f'v_lshlrev_b32 v{vBL}, 4, v0'] + self.build_srd(SRD_B1, S_B1, 3328)
        L += self.build_srd(SRD_W, S_W1, 1664 * 3328)
        L += [f'buffer_load_dword v255, v{vCW}, {srd(SRD_W)}, s{S_TW} offen']
        L += vec(L_BIAS, SRD_B1)
        L += self.stamp0()
        L += [f's_lshr_b32 s{HH}, s{S_WAVE}, 2', f's_and_b32 s{SL}, s{S_WAVE}, 3',
              f's_lshl_b32 s{S_T2}, s{S_WAVE}, 4', f's_add_u32 s{S_T2}, s{S_T2}, s{S_T3}',
              f'v_lshrrev_b32 v{T + 16}, 3, v0', f'v_add_u32 v{T + 16}, s{S_T2}, v{T + 16}',
              f'v_mul_u32_u24 v{vIdxOff}, 104, v{T + 16}',
              f's_mul_i32 s{S_T3}, s{HH}, 192', f's_mov_b32 s{S_T2}, 1639', f's_and_b32 s{S_C0}, s{SL}, 1', f's_lshl_b32 s{S_C0}, s{S_C0}, 2',
              f's_mov_b32 s{S_TW}, 3328', f'v_add_u32 v{T + 16}, s{S_T3}, v0']
        for u in range(3):
            ci, rr = T + 16, T + 17
            L += [f'v_mul_u32_u24 v{rr}, s{S_T2}, v{ci}', f'v_lshrrev_b32 v{rr}, 16, v{rr}',
                  f'v_mul_u32_u24 v{q}, 40, v{rr}', f'v_sub_u32 v{q}, v{ci}, v{q}',
                  f'v_and_b32 v{i4}, 2, v{rr}', f'v_or_b32 v{i4}, s{S_C0}, v{i4}', f'v_xor_b32 v{q}, v{q}, v{i4}',
                  f'v_mul_u32_u24 v{rr}, s{S_TW}, v{rr}', f'v_lshl_add_u32 v{vWD[u]}, v{q}, 4, v{rr}']
            if u:
                L += [f'v_subrev_u32 v{vWD[u]}, {1024 * u}, v{vWD[u]}']
            if u < 2:
                L += [f'v_add_u32 v{ci}, 64, v{ci}']
        L += [f's_mul_i32 s{S_T2}, s{SL}, {8 * 3328}', f's_add_u32 s{S_WSOFF}, s{S_T2}, s{S_N0}',
              f's_mul_i32 s{S_WMB}, s{SL}, {8 * WP}', f's_mul_i32 s{S_T2}, s{HH}, 3072', f's_add_u32 s{S_WMB}, s{S_WMB}, s{S_T2}',
              f's_lshl_b32 s{S_XM0}, s{S_WAVE}, 11',
              f'v_and_b32 v{q}, 7, v0', f'v_lshrrev_b32 v{g}, 4, v0',
              f'v_xor_b32 v{q}, v{q}, v{g}', f'v_lshlrev_b32 v{vCh[0]}, 4, v{q}',
              f'v_xor_b32 v{vCh[1]}, 64, v{vCh[0]}']
        L += self.build_srd(SRD_W2, S_W2, 3328)
        L += [f's_lshr_b32 s{S_T2}, s{S_WAVE}, 1', f's_mul_i32 s{S_T3}, s{S_T2}, 5',
              f'v_bfe_u32 v{i4}, v0, 2, 2', f'v_lshl_add_u32 v{q}, v{g}, 3, v{i4}', f'v_mul_u32_u24 v{q}, {WP}, v{q}',
              f'v_and_b32 v{i4}, 3, v0', f'v_lshl_add_u32 v{q}, v{i4}, 3, v{q}', f'v_add_u32 v{q}, {WR}, v{q}',
              f'v_bfe_u32 v{i4}, v0, 3, 2']
        for i in range(5):
            L += [f'v_xor_b32 v{T + 16}, s{S_T3}, v{i4}', f'v_lshl_add_u32 v{vW[0][i]}, v{T + 16}, 5, v{q}',
                  f'v_add_u32 v{vW[1][i]}, {2 * WSLOT}, v{vW[0][i]}', f's_add_u32 s{S_T3}, s{S_T3}, 1']
        L += [f's_mul_i32 s{S_T3}, s{S_T2}, 160', f's_add_u32 s{S_T3}, s{S_T3}, {L_BIAS}',
              f'v_lshlrev_b32 v{q}, 3, v{g}', f'v_add_u32 v{vP}, s{S_T3}, v{q}',
              f'v_and_b32 v{q}, 15, v0', f'v_lshlrev_b32 v{q}, 7, v{q}',
              f'v_bfe_u32 v{i4}, v0, 1, 3', f'v_xor_b32 v{i4}, v{i4}, v{g}',
              f'v_lshl_add_u32 v{q}, v{i4}, 4, v{q}',
              f's_lshl_b32 s{S_T3}, s{S_C0}, 11', f'v_add_u32 v{vX[0]}, s{S_T3}, v{q}', f'v_xor_b32 v{vX[1]}, 64, v{vX[0]}',
              f's_lshl_b32 s{S_T2}, s{S_WAVE}, 8', f's_add_u32 s{S_T2}, s{S_T2}, {RB}',
              f'v_lshlrev_b32 v{vPc}, 2, v0', f'v_add_u32 v{vPc}, s{S_T2}, v{vPc}']

        def wld(u):
            return I(f'buffer_load_dwordx4 v{vWD[u]}, {srd(SRD_W)}, s{S_WSOFF} offen offset:{1024 * u} lds', tag='W')
        wadv = f's_add_u32 s{S_WSOFF}, s{S_WSOFF}, {32 * 3328}'

        def xld(f, pc, tag, slot=None):
            slot = f if slot is None else slot
            return [f's_add_u32 m0, s{S_XM0}, {slot * XSLOT + pc * 1024}',
                    I(f'buffer_load_dwordx4 v{VO + 2 * f + pc}, {srd(SRD_TAB)}, 0 offen lds', tag=tag)]
        pkreads = lambda off: [f'ds_read_b64 {vr(PK + 2 * tn, 2)}, v{vP} offset:{off + 32 * tn}' for tn in range(5)]

        def unp(dst):
            c = []
            for tn in range(5):
                for d in range(2):
                    c += [f'v_lshlrev_b32 v{dst(tn) + 2 * d}, 16, v{PK + 2 * tn + d}', f'v_and_b32 v{dst(tn) + 2 * d + 1}, 0xffff0000, v{PK + 2 * tn + d}']
            return c

        def reads(k8):
            par = k8 % 2
            sl = k8 % 4
            wo = (sl % 2) * WSLOT
            xo = ((k8 // 2) % 4) * XSLOT
            R = [f'ds_read_b128 {vr(XA + 16 * par + 4 * tm, 4)}, v{vX[par]} offset:{xo + tm * 2048}' for tm in range(4)]
            R += [f'ds_read_b64_tr_b16 {vr(WF + 20 * par + 4 * tn + 2 * rd, 2)}, v{vW[sl // 2][tn]} offset:{wo + rd * 4 * WP}' for tn in range(5) for rd in range(2)]
            return R

        trs = [[], []]
        nsk = [0]

        def flush():
            nonlocal L
            c = self.seq(L)
            trs[0] += c; trs[1] += c
            L = []

        def wstage_p(slot):
            nonlocal L
            nsk[0] += 1
            L += [f's_add_u32 m0, s{S_WMB}, {WR + slot * WSLOT}', f's_cmp_lg_u32 s{HH}, 0', wld(0), wld(1), f's_cbranch_scc1 L_wsk{nsk[0]}']
            flush()
            trs[0] += self.seq([wld(2)])
            L += [f'L_wsk{nsk[0]}:', wadv]
        L += [f'v_lshlrev_b32 v{PI}, 7, v{PI}']
        L += [f'buffer_load_dwordx4 {vr(T + 4 * pc, 4)}, v{vIdxOff}, {srd(SRD_IDX)}, 0 offen offset:{pc * 832}' for pc in range(2)] + ['s_barrier']
        L += [f'buffer_load_dword v255, v{PI}, {srd(SRD_TAB)}, 0 offen',
              f'v_lshlrev_b32 v{PI + 2}, 7, v{PI + 2}', f'buffer_load_dword v255, v{PI + 2}, {srd(SRD_TAB)}, 0 offen']
        L += self.stamp(6)
        wstage_p(0)
        L += [WaitTag(vm_tags=['BIAS'])] + pkreads(0) + unp(lambda tn: acc(tn, 0))
        L += [f'v_mov_b64 {vr(acc(tn, tm) + 2 * d, 2)}, {vr(acc(tn, 0) + 2 * d, 2)}' for tn in range(5) for tm in range(1, 4) for d in range(2)]
        for f in range(4):
            for pc in range(2):
                L.append(f'v_lshl_add_u32 v{VO + 2 * f + pc}, v{T + 4 * pc + f}, 7, v{vCh[pc]}')
                if f < 2:
                    L += xld(f, pc, 'X0' if f == 0 else 'X')
            if f == 0:
                L += self.stamp(7) + ['s_barrier']
                wstage_p(1)
        L += [f'buffer_load_dwordx4 {vr(ST[pc], 4)}, v{vIdxOff}, {srd(SRD_IDX)}, 0 offen offset:{pc * 832 + 12}' for pc in range(2)]
        L += [f's_mov_b32 s{S_LOOP}, 0', f's_mov_b32 s{S_IDXOFF}, 28']
        L.append(WaitTag(vm_tags=['X0'], lgkm0=True))
        L += self.stamp(1) + ['s_barrier'] + self.stamp(2)
        L += reads(0)
        wstage_p(2)
        L += xld(2, 0, 'X') + [f'v_mov_b32 v{VO + 7}, v{VO + 5}', f's_cmp_lg_u32 s{HH}, 0', 's_cbranch_scc1 L_dnn_h1']
        flush()

        def mf(tn, tm, par):
            a = acc(tn, tm)
            return f'v_mfma_f32_16x16x32_bf16 {vr(a, 4)}, {vr(WF + 20 * par + 4 * tn, 4)}, {vr(XA + 16 * par + 4 * tm, 4)}, {vr(a, 4)}'

        def step(n, inloop, half):
            n8 = n % 8
            par = n8 % 2
            NW = 3 - half
            M = [mf(tn, tm if tn % 2 == 0 else 3 - tm, par) for tn in range(5) for tm in range(4)]
            R, D_, E, V = [], [], [], []
            wst = lambda slot: [(f's_add_u32 m0, s{S_WMB}, {WR + slot * WSLOT}', wld(0))] + [(wld(u),) for u in range(1, NW - 1)] + [(wld(NW - 1), wadv)]
            if inloop or n < 51:
                R = reads((n8 + 1) % 8)
            if inloop:
                D_ += wst((n8 + WL) % 4)
                f = ((n8 + 7) % 8) // 2
                D_ += [tuple(xld(f, 1 - par, 'X', (f + WL) % 4))]
                if n8 == 0:
                    for ff in range(4):
                        for pc in range(2):
                            (V if half == 1 and o.vin else E).append(f'v_lshl_add_u32 v{VO + 2 * ff + pc}, v{ST[pc] + ff}, 7, v{vCh[pc]}')
                if n8 == 1:
                    for pc in range(2):
                        E.append(f'buffer_load_dwordx4 {vr(ST[pc], 4)}, v{vIdxOff}, {srd(SRD_IDX)}, s{S_IDXOFF} offen offset:{pc * 832}')
                    E.append(f's_add_u32 s{S_IDXOFF}, s{S_IDXOFF}, 16')
                if n8 == 4 and half == 1:
                    E += [tuple(vec(L_W2, SRD_W2))]
                if n8 == 7:
                    E += [f's_add_u32 s{S_LOOP}, s{S_LOOP}, 1', f's_cmp_lt_u32 s{S_LOOP}, 6']
                W_ = [WaitTag(allbut=('W', NW), lgkm0=True)]
            elif n == 48:
                W_ = [WaitTag(allbut=('W', NW), lgkm0=True)]
                D_ += wst(3)
                R = R + pkreads(WP)
                V = self.kconst(KC0, KC1, KONE)
                if half == 0:
                    E += self.tlb2(VO, vBL)
            elif n == 49:
                W_ = [WaitTag(vm0=True, lgkm0=True)]
                V = unp(lambda tn: W2F + 4 * tn) + self.winv(W2F, 20, KONE)[:4]
            elif n == 50:
                W_ = ['s_waitcnt lgkmcnt(0)']
                V = self.winv(W2F, 20, KONE)[4:18]
            else:
                W_ = []
                V = self.winv(W2F, 20, KONE)[18:]
            if V:
                nm_ = len(M) - (o.aov if half == 0 else 1)
                M = [(M[k],) + tuple(V[k * len(V) // nm_:(k + 1) * len(V) // nm_]) for k in range(nm_)] + M[nm_:]
            fill = interleave(R, D_) + E
            S = ['s_barrier'] if (inloop or n < 51) else []
            if half == 0:
                k = o.aov
                S += M[:len(M) - k] + interleave(M[len(M) - k:], fill[:2 * k]) + fill[2 * k:] + W_
            else:
                kb = o.bov
                if n == 51 and not inloop and o.eprio:
                    S += ['s_setprio 3']
                S += fill + M[:len(M) - kb] + W_ + M[len(M) - kb:]
                if n == 51 and not inloop and o.eprio == 1:
                    S += ['s_setprio 0']
            return S

        for half in range(2):
            th = trs[half]
            th += self.seq([f'L_dnn_h{half}:', WaitTag(allbut=('W', 3 - half), lgkm0=True)])
            body = self.seq([f'L_dnn_loop{half}:'])
            for n8 in range(8):
                S = step(n8, True, half)
                if n8 == 7:
                    if o.stamps and o.itst:
                        S = [f's_memtime s[{S_ST}:{S_ST + 1}]', f's_memrealtime s[{S_ST + 2}:{S_ST + 3}]', f's_add_u32 s{S_C0}, s{S_LOOP}, 8', 's_waitcnt lgkmcnt(0)',
                             f's_mov_b32 m0, s{S_C0}', f'v_writelane_b32 v252, s{S_ST}, m0', f'v_writelane_b32 v253, s{S_ST + 2}, m0'] + S
                    S += [f's_cbranch_scc1 L_dnn_loop{half}']
                body += self.seq(S)
            for it in range(6):
                th += body
            for n in range(48, 52):
                th += self.seq(step(n, False, half))
            if half == 0:
                th += self.seq(['s_branch L_epi'])
        p2 = lambda r: vr(r, 2)
        el = lambda tn, tm, d: (acc(tn, tm) + 2 * d, W2F + 4 * tn + 2 * d, SUMP + 2 * tm)
        L = ['L_epi:'] + self.stamp(3)
        L += [f's_lshl_b32 s{S_T1}, s{S_R}, 11', f's_and_b32 s{S_T3}, s{S_MB}, 3', f's_lshl_b32 s{S_T3}, s{S_T3}, 9', f's_add_u32 s{S_T1}, s{S_T1}, s{S_T3}',
              f's_lshr_b32 s{S_T0}, s{S_MB}, 2', f's_lshl_b32 s{S_T0}, s{S_T0}, 14', f's_add_u32 s{S_T1}, s{S_T1}, s{S_T0}',
              'v_lshlrev_b32 v3, 3, v0', f'v_add_u32 v2, {RB}, v3']
        L += self.gelu([[el(tn, tm, d) for tm in range(4)] for tn in range(5) for d in range(2)], WF, KC0, KC1, KONE)
        L += self.red4(SUMP) + [f'ds_write_b32 v{vPc}, v{SUMP}', 's_waitcnt lgkmcnt(0)'] + self.stamp(4) + self.stamp_flush()
        L += [f's_cmp_eq_u32 s{S_WAVE}, 0', 's_cbranch_scc1 L_dpub']
        tr = self.seq(L)
        self.seq(['s_barrier', 's_endpgm'])
        A = 64
        L = ['L_dpub:'] + self.build_srd(SRD_WS, S_WS, 0x10000000) + self.build_srd(SRD_DBG, S_DBG, 256) + self.cleared('L_dclr', 4, vBL) + ['s_barrier'] + self.stamp(17)
        L += [f'ds_read_b64 {vr(A + 2 * qq, 2)}, v2 offset:{qq * 512}' for qq in range(4)]
        L += [f'v_pk_add_f32 {p2(A)}, {p2(A)}, {p2(A + 2)}', f'v_pk_add_f32 {p2(A + 4)}, {p2(A + 4)}, {p2(A + 6)}', f'v_pk_add_f32 {p2(A)}, {p2(A)}, {p2(A + 4)}',
              f'v_and_b32 v{A}, -2, v{A}', f'v_and_b32 v{A + 1}, -2, v{A + 1}',
              f'buffer_store_dwordx2 {vr(A, 2)}, v3, {srd(SRD_WS)}, s{S_T1} offen sc1'] + self.padsig() + ['s_endpgm']
        return [trs[0] + tr + self.seq(L), trs[1] + tr]

    def rem(self):
        o = self.opt
        self.role = 'r'
        vW = [1, 2, 7, 8]
        vX = [11, 12]
        vWD, vCh, vT, VO = 13, [14, 15], 9, 24
        SUMP = 16
        IDX = 32
        XA, WF = 64, 96
        ACC = 160
        W2F, BF = 96, 112
        PK = 224
        KC0, KC1, KONE = 240, 242, 244
        g, i4, q = 246, 247, 248
        S_F = S_IDXOFF
        acc = lambda tn, tm: ACC + (tn * 4 + tm) * 4
        L = ['L_rem:', f's_lshr_b32 s{S_GRP}, s{S_WAVE}, 2', f's_and_b32 s{S_T0}, s2, 7', f's_lshl_b32 s{S_T0}, s{S_T0}, 3', f's_add_u32 s{S_T0}, s{S_T0}, s{S_WAVE}',
             f's_mul_i32 s{S_T0}, s{S_T0}, {64 * 104}', f's_lshl_b32 s{S_XM0}, s{S_WAVE}, 14',
             f'v_lshlrev_b32 v{q}, 4, v0', f'v_lshrrev_b32 v{g}, 4, v0',
             f'v_lshrrev_b32 v{i4}, 3, v0', f'v_mul_u32_u24 v{vWD}, 3328, v{i4}', f'v_and_b32 v{i4}, 2, v{i4}',
             f's_and_b32 s{S_T1}, s{S_WAVE}, 1', f's_lshl_b32 s{S_T1}, s{S_T1}, 2', f'v_or_b32 v{i4}, s{S_T1}, v{i4}',
             f'v_and_b32 v{vT}, 7, v0', f'v_xor_b32 v{i4}, v{i4}, v{vT}', f'v_lshl_add_u32 v{vWD}, v{i4}, 4, v{vWD}',
             f's_mul_i32 s{S_WSOFF}, s{S_WAVE}, {8 * 3328}', f's_add_u32 s{S_WSOFF}, s{S_WSOFF}, 3200',
             f's_lshl_b32 s{S_WMB}, s{S_WAVE}, 10', f's_add_u32 s{S_WMB}, s{S_WMB}, {RWR}',
             's_waitcnt lgkmcnt(0)']
        L += self.build_srd(SRD_IDX, S_IDX, 4096 * 104)
        for u in range(7):
            L += [f's_add_u32 m0, s{S_XM0}, {8192 + u * 1024}', I(f'buffer_load_dwordx4 v{q}, {srd(SRD_IDX)}, s{S_T0} offen lds', tag='I'),
                  f's_add_u32 s{S_T0}, s{S_T0}, 1024']
        L += self.build_srd(SRD_W, S_W1, 1664 * 3328)
        wld = lambda slot: [f's_add_u32 m0, s{S_WMB}, {slot * 8192}', I(f'buffer_load_dwordx4 v{vWD}, {srd(SRD_W)}, s{S_WSOFF} offen lds', tag='W'),
                            f's_add_u32 s{S_WSOFF}, s{S_WSOFF}, {64 * 3328}']
        L += wld(0)
        L += self.build_srd(SRD_WS, S_WS, 0x10000000) + self.build_srd(SRD_DBG, S_DBG, 256) + [f'v_mov_b32 v{XA + k}, -1' for k in range(4)]
        L += [f's_and_b32 s{S_T2}, s2, 7', f's_lshl_b32 s{S_T0}, s{S_T2}, 3', f's_add_u32 s{S_T0}, s{S_T0}, s{S_WAVE}', f's_lshl_b32 s{S_T0}, s{S_T0}, 11', f's_lshl_b32 s{S_T2}, s{S_T2}, 2',
              f'buffer_store_dwordx4 {vr(XA, 4)}, v{q}, {srd(SRD_WS)}, s{S_T0} offen sc1',
              f'buffer_store_dwordx4 {vr(XA, 4)}, v{q}, {srd(SRD_WS)}, s{S_T0} offen offset:1024 sc1']
        L += self.build_srd(SRD_B1, S_B1, 3328) + self.build_srd(SRD_W2, S_W2, 3328) + self.build_srd(SRD_TAB, S_TAB, 100000 * 128)
        L += self.stamp0()
        L += [f'v_xor_b32 v{q}, v{vT}, v{g}', f'v_lshlrev_b32 v{vCh[0]}, 4, v{q}', f'v_xor_b32 v{vCh[1]}, 64, v{vCh[0]}',
              f'v_bfe_u32 v{i4}, v0, 2, 2', f'v_lshl_add_u32 v{q}, v{g}, 3, v{i4}', f'v_lshlrev_b32 v{q}, 7, v{q}',
              f'v_and_b32 v{i4}, 3, v0', f'v_lshl_add_u32 v{q}, v{i4}, 3, v{q}', f'v_add_u32 v{q}, {RWR}, v{q}',
              f'v_bfe_u32 v{i4}, v0, 3, 2', f'v_lshl_add_u32 v{vW[0]}, v{i4}, 5, v{q}']
        L += [f'v_xor_b32 v{vW[i]}, {32 * i}, v{vW[0]}' for i in range(1, 4)]
        L += [f'v_and_b32 v{q}, 15, v0', f'v_lshlrev_b32 v{q}, 7, v{q}',
              f'v_bfe_u32 v{i4}, v0, 1, 3', f'v_xor_b32 v{i4}, v{i4}, v{g}', f'v_lshl_add_u32 v{q}, v{i4}, 4, v{q}',
              f'v_add_u32 v{vX[0]}, s{S_XM0}, v{q}', f'v_xor_b32 v{vX[1]}, 64, v{vX[0]}',
              f'v_lshrrev_b32 v{i4}, 3, v0', f'v_lshl_add_u32 v{q}, v{vT}, 3, v{i4}', f'v_mul_u32_u24 v{q}, 104, v{q}', f'v_add_u32 v{q}, s{S_XM0}, v{q}']
        L += self.kconst(KC0, KC1, KONE) + [f'v_mov_b32 v{r}, 0' for r in range(ACC, ACC + 64)] + ['s_waitcnt vmcnt(0)']
        L += [f'ds_read_b64 {vr(IDX + 2 * k, 2)}, v{q} offset:{8192 + 8 * k}' for k in range(13)]

        def xld(src, slot, h=None):
            c = [tuple(f'v_add_u32_dpp v{VO + pc}, v{src}, v{vCh[pc % 2]} row_newbcast:{8 * hh + pc} row_mask:0xf bank_mask:{hex(3 << (2 * hh))}'
                       for hh in range(2) for pc in range(4 * k, 4 * k + 4)) for k in range(2)]
            d = [(f's_add_u32 m0, s{S_XM0}, {slot * 8192 + pc * 1024}',
                  I(f'buffer_load_dwordx4 v{VO + pc}, {srd(SRD_TAB)}, 0 offen lds', tag='X')) for pc in range(8)]
            return c[:1] + d[:4] + c[1:] + d[4:] if h is None else c[h:h + 1] + d[4 * h:4 * h + 4]
        L += [f'v_mov_b32 v{VO + pc}, 0' for pc in range(8)] + [f'v_mov_b32 v{IDX + k}, 0x7f000000' for k in (26, 27)]
        L += [f'v_lshlrev_b32 v{IDX}, 7, v{IDX}'] + xld(IDX, 0)
        L += wld(1) + [f'v_lshlrev_b32 v{IDX + k}, 7, v{IDX + k}' for k in range(25, 0, -1)] + xld(IDX + 1, 1) + wld(2)
        L += [f'v_lshlrev_b32 v{q}, 3, v{g}']

        rdx = lambda fp, h: [f'ds_read_b128 {vr(XA + 16 * h + 8 * t + 4 * par, 4)}, v{vX[par]} offset:{fp * 8192 + (2 * h + t) * 2048}' for t in (1, 0) for par in (1, 0)]
        rdw = lambda fp: [f'ds_read_b64_tr_b16 {vr(WF + 32 * fp + 8 * tn + 4 * par + 2 * rd, 2)}, v{vW[tn]} offset:{fp * 8192 + par * 4096 + rd * 512}'
                          for tn in range(4) for par in range(2) for rd in range(2)]

        def mm(fp, h):
            return [f'v_mfma_f32_16x16x32_bf16 {vr(acc(tn, 2 * h + t), 4)}, {vr(WF + 32 * fp + 8 * tn + 4 * par, 4)}, {vr(XA + 16 * h + 8 * t + 4 * par, 4)}, {vr(acc(tn, 2 * h + t), 4)}'
                    for tn in range(4) for t in range(2) for par in range(2)]
        L += [f's_mov_b32 s{S_F}, 3', f'v_mov_b32 v{vT}, v{IDX + 2}'] + list(xld(vT, 0, 0)[0])
        L += [WaitTag(allbut=('X', 12)), 's_barrier'] + self.stamp(2) + rdx(0, 0) + rdw(0)
        L += [f's_cmp_lg_u32 s{S_WAVE}, 7', 's_cbranch_scc1 L_rem_loop', 's_mov_b64 exec, 1',
              f'buffer_store_dword v{KC0}, v{vCh[0]}, {srd(SRD_DBG)}, s{S_T2} offen offset:128 sc1', 's_mov_b64 exec, -1']
        tr = self.seq(L)

        def phase(M, R, Dm, V):
            gp = [[] for _ in M]
            for k, x in enumerate(R):
                gp[k * o.rrd // max(len(R), 1)].append(x)
            for k, x in enumerate(Dm):
                gp[1 + k * 15 // len(Dm)].append(x)
            v0 = o.rrd if R else 0
            for k, x in enumerate(V):
                gp[v0 + k * (16 - v0) // len(V)].append(x)
            return [(m,) + tuple(g_) for m, g_ in zip(M, gp)]
        post = []
        for k in range(8):
            post += [f'v_lshlrev_b32 v{BF + 2 * k}, 16, v{PK + k}', f'v_and_b32 v{BF + 2 * k + 1}, 0xffff0000, v{PK + k}',
                     f'v_lshlrev_b32 v{W2F + 2 * k}, 16, v{PK + 8 + k}', f'v_and_b32 v{W2F + 2 * k + 1}, 0xffff0000, v{PK + 8 + k}']
        post += self.winv(W2F, 16, KONE)
        vld = [f'buffer_load_dwordx2 {vr(PK + 2 * tn, 2)}, v{q}, {srd(SRD_B1)}, 0 offen offset:{3200 + 32 * tn}' for tn in range(4)]
        vld += [f'buffer_load_dwordx2 {vr(PK + 8 + 2 * tn, 2)}, v{q}, {srd(SRD_W2)}, 0 offen offset:{3200 + 32 * tn}' for tn in range(4)]

        def field(fp, last):
            L = [WaitTag(allbut=('W', 0 if last else 1)), WaitTag(allbut=('X', 0 if last and fp else 8))] + ([] if last and fp else ['s_barrier'])
            if fp == 1 and not last:
                L += [f'v_xor_b32 v{vW[i]}, 16384, v{vW[i]}' for i in range(4)]
            sx = (f's_xor_b32 s{S_WMB}, s{S_WMB}, 16384',)
            wl = [sx + tuple(wld(1)) + sx] if fp == 0 else [tuple(wld(0)) + sx]
            rw = rdw(1 - fp)
            mv = [(f's_set_gpr_idx_on s{S_F}, gpr_idx(SRC0)', 's_nop 0', f'v_mov_b32 v{vT}, v{IDX}', 's_set_gpr_idx_off', f's_add_u32 s{S_F}, s{S_F}, 1')]
            if not last:
                L += phase(mm(fp, 0), rdx(fp, 1) + rw[:8], xld(vT, fp, 0)[1:], list(xld(vT, fp, 1)[0]))
                L += [WaitTag(allbut=('X', 8))]
                L += phase(mm(fp, 1), rdx(1 - fp, 0) + rw[8:], xld(vT, fp, 1)[1:] + wl, mv + list(xld(vT, fp, 0)[0]))
            elif fp == 0:
                L += phase(mm(fp, 0), rdx(fp, 1) + rw[:8], vld, [])
                L += [WaitTag(allbut=('X', 4))]
                L += phase(mm(fp, 1), rdx(1 - fp, 0) + rw[8:], [], [])
            else:
                L += phase(mm(fp, 0), rdx(fp, 1), [], []) + phase(mm(fp, 1), [], [], post[:32])
            return L
        L = ['L_rem_loop:'] + field(0, False) + field(1, False) + [f's_cmp_lt_u32 s{S_F}, 27', 's_cbranch_scc1 L_rem_loop']
        L = [x for x in flat(L) if not any((x.text if isinstance(x, I) else x).startswith(d) for d in o.rdrop.split(',') if d)]
        body = self.seq(L)
        body2 = self.seq(field(0, True) + field(1, True))
        el = lambda tn, tm, d: (acc(tn, tm) + 2 * d, W2F + 4 * tn + 2 * d, SUMP + 2 * tm)
        L = self.stamp(3) + self.tlb2(4, 5) + self.build_srd(SRD_OUT, S_OUT, 8192) + [f's_load_dword s{S_BOUT}, s[{S_BO}:{S_BO + 1}], 0',
             f'buffer_load_dword v255, v4, {srd(SRD_OUT)}, 0 offen',
             f's_and_b32 s{S_T2}, s2, 7', f's_lshl_b32 s{S_T0}, s{S_T2}, 14', f's_lshl_b32 s{S_T1}, s{S_WAVE}, 8', f's_add_u32 s{S_T0}, s{S_T0}, s{S_T1}',
             f's_add_u32 s{S_T1}, s{S_T0}, 4096', f's_add_u32 s{S_T3}, s{S_T0}, 8192',
             f's_lshl_b32 s{S_T2}, s{S_T2}, 3', f's_add_u32 s{S_T2}, s{S_T2}, s{S_WAVE}', f's_lshl_b32 s{S_T2}, s{S_T2}, 7',
             'v_lshlrev_b32 v3, 2, v0', 'v_lshlrev_b32 v2, 1, v0', 's_waitcnt lgkmcnt(0)', f's_lshl_b32 s{S_BOUT}, s{S_BOUT}, 16']
        L += post[32:]
        L += [f'v_pk_add_f32 {vr(acc(tn, tm) + 2 * d, 2)}, {vr(acc(tn, tm) + 2 * d, 2)}, {vr(BF + 4 * tn + 2 * d, 2)}' for tn in range(4) for tm in range(4) for d in range(2)]
        L += self.gelu([[el(tn, tm, d) for tm in range(4)] for tn in range(4) for d in range(2)], XA, KC0, KC1, KONE)
        L += self.red4(SUMP) + [f'v_add_f32 v{SUMP}, s{S_BOUT}, v{SUMP}'] + self.stamp(4) + self.cleared('L_rclr', 4, 5) + self.padsig()
        A = 64
        L += [f's_mov_b32 s{S_LOOP}, 0x40000', 'L_poll:', f's_sub_u32 s{S_LOOP}, s{S_LOOP}, 1', 's_cbranch_scc1 L_end']
        L += [f'buffer_load_dword v{A + k}, v3, {srd(SRD_WS)}, s{(S_T0, S_T1, S_T3)[k // 2]} offen offset:{(k % 2) * 2048} sc1' for k in range(6)]
        L += [f'v_max3_u32 v{A + 8}, v{A}, v{A + 1}, v{A + 2}', f'v_max3_u32 v{A + 9}, v{A + 3}, v{A + 4}, v{A + 5}', f'v_max_u32 v{A + 8}, v{A + 8}, v{A + 9}',
              f'v_cmp_eq_u32 vcc, -1, v{A + 8}', 's_cbranch_vccnz L_poll']
        L += [f'v_add_f32 v{A}, v{A}, v{A + 1}', f'v_add_f32 v{A + 2}, v{A + 2}, v{A + 3}', f'v_add_f32 v{A + 4}, v{A + 4}, v{A + 5}',
              f'v_add_f32 v{A}, v{A}, v{A + 2}', f'v_add_f32 v{A + 4}, v{A + 4}, v{SUMP}', f'v_add_f32 v{A}, v{A}, v{A + 4}',
              f'v_cvt_pk_bf16_f32 v{A}, v{A}, v{A}']
        if o.padat:
            L += ['L_padspin:', f'buffer_load_dword v7, v8, {srd(SRD_DBG)}, 0 offen sc1', 's_waitcnt vmcnt(0)', 's_memrealtime s[86:87]',
                  'v_readfirstlane_b32 s88, v7', 's_waitcnt lgkmcnt(0)', 's_cmp_eq_u32 s88, 0', 's_cbranch_scc1 L_padspin'] + (['s_not_b32 s88, s88'] if o.padmin else []) + [
                  's_sub_u32 s86, s86, s88', 's_cmp_lt_i32 s86, 6000', 's_cbranch_scc1 L_padspin']
        L += [f'buffer_store_short v{A}, v2, {srd(SRD_OUT)}, s{S_T2} offen'] + self.stamp(5) + self.stamp_flush() + ['s_endpgm']
        return [tr + body * 3 + body2 + self.seq(L)]

    def cin(self):
        o = self.opt
        self.role = 'c'
        cw = S_CW
        S_BCUR, S_BD, S_EXP, S_EXPC, S_PREV, S_SC, S_PH = 74, 75, 48, 49, 50, 51, 97
        S_CHK = S_M26
        vFA, vFR, vOne, vF, vFG, vFGa = 1, 2, 3, 4, 5, 6
        vRaw, vLin, vLinB, vXw, vX1, vX2, vSh, vAcc, vOr, vSI, vXi, vC16, vPWL, vPXL, PXR = range(7, 22)
        FT, XI, aD, aS, aLc, aC = 22, 24, 28, 29, 30, 31
        RAW, X, RZ, D = 32, 40, 52, 68
        WA, WB, WC, WS_, WL = 84, 128, 172, 216, 240
        Da, Db, Dc, Ds = D, D + 4, D + 8, D + 12
        T = 40
        half, i32, t3, t4, t5, vg, vm = T + 1, T + 2, T + 3, T + 4, T + 5, T + 6, T + 7
        vStg = 48
        GB = 49
        vMx, vWr, vL6, vL, vWu, vWo = range(62, 68)
        vDl = 247
        AD = 68
        vA3, vBs0, vBs1a, vBs1b, vUw, vV2w, vE, V3T = 240, 241, 242, 243, 244, 245, 246, 81
        BALL, UP, AFR, DALL = 84, 84, 132, 140
        BT, SUM, OUT = 216, 84, 132
        XJ = 204
        F_W3, F_W2, F_W1, F_PEEL, F_M, F_U, F_V3, F_XB = 0, 4, 8, 12, 16, 24, 32, 36
        nsync = [0]

        def sig(off, A=vFA, **kw):
            return [WaitTag(lgkm0=True, **kw), f'ds_add_u32 v{A}, v{vOne} offset:{off}']

        def wait(off, tgt, R=vFR):
            nsync[0] += 1
            lab = f'L_csync{nsync[0]}'
            return [f'{lab}:', f'ds_read_b32 v{vF}, v{R} offset:{off}', 's_waitcnt lgkmcnt(0)',
                    f'v_cmp_gt_u32 vcc, {tgt}, v{vF}', f's_cbranch_vccnz {lab}']

        def dppred(op, r):
            return [f'{op}_dpp v{r}, v{r}, v{r} {ctl} row_mask:{rm} bank_mask:0xf'
                    for (ctl, rm) in (('row_shr:1', '0xf'), ('row_shr:2', '0xf'), ('row_shr:4', '0xf'), ('row_shr:8', '0xf'),
                                      ('row_bcast:15', '0xa'), ('row_bcast:31', '0xc'))]

        def absmax(dst, regs):
            c = [f'v_max3_f32 v{dst}, abs(v{regs[0]}), abs(v{regs[1]}), abs(v{regs[2]})']
            k = 3
            while k < len(regs):
                b = regs[k + 1] if k + 1 < len(regs) else regs[k]
                c.append(f'v_max3_f32 v{dst}, v{dst}, abs(v{regs[k]}), abs(v{b})')
                k += 2
            return c

        def waitmax(off, dst_e, top, R=vFR):
            nsync[0] += 1
            lab = f'L_csync{nsync[0]}'
            return [f'{lab}:', f'ds_read_b64 {vr(T, 2)}, v{R} offset:{off}', 's_waitcnt lgkmcnt(0)',
                    f'v_cmp_gt_u32 vcc, 4, v{T}', f's_cbranch_vccnz {lab}',
                    f'v_readfirstlane_b32 s{dst_e}, v{T + 1}',
                    f's_lshr_b32 s{dst_e}, s{dst_e}, 23', f's_sub_i32 s{dst_e}, {top}, s{dst_e}', f's_min_i32 s{dst_e}, s{dst_e}, 40']

        def postmax(r, off, **kw):
            return dppred('v_max_u32', r) + [f'v_readlane_b32 s{S_T0}, v{r}, 63', f'v_mov_b32 v{r}, s{S_T0}',
                                             f'ds_max_u32 v{vFA}, v{r} offset:{off + 4}', WaitTag(**kw), f'ds_add_u32 v{vFA}, v{vOne} offset:{off}']
        setsc = lambda e: [f's_add_i32 s{S_SC}, s{e}, 127', f's_lshl_b32 s{S_SC}, s{S_SC}, 23']

        S_C, S_DYN, S_ST0, S_TK = S_R, S_MB, 98, 99
        vTk, vZ = 250, 251
        L = ['L_cin:', f's_and_b32 s{S_T0}, s{S_MB}, 3', f's_mul_i32 s{S_T0}, s{S_T0}, 3', f's_add_u32 s{S_C}, s{S_T0}, s{S_R}',
             f's_sub_u32 s{S_C}, s{S_C}, 6', 's_cbranch_scc1 L_rem',
             f's_and_b32 s{cw}, s{S_WAVE}, 3', f's_lshr_b32 s{S_GRP}, s{S_WAVE}, 2',
             f's_lshl_b32 s{S_GW}, s{S_C}, 3', f's_add_u32 s{S_GW}, s{S_GW}, s{S_WAVE}',
             f's_mul_i32 s{S_T0}, s{S_GW}, {10 * 128}',
             f'v_min_u32 v{T}, 9, v0', f'v_lshlrev_b32 v{T}, 7, v{T}',
             f'v_lshlrev_b32 v{vStg}, 4, v0',
             f's_lshl_b32 s{S_STG}, s{cw}, 10',
             f's_cmp_eq_u32 s{cw}, 2', f's_cselect_b64 s[{S_EX}:{S_EX + 1}], 0x1fffff, -1',
             f's_cmp_eq_u32 s{cw}, 3', f's_cselect_b32 s{S_STG9}, 0, {8 * 4096}',
             f's_add_u32 s{S_STG9}, s{S_STG9}, s{S_STG}',
             f's_mul_i32 s{S_T1}, s{S_C}, 2979', f's_lshr_b32 s{S_T1}, s{S_T1}, 6', f's_mul_i32 s{S_ST0}, s{S_C}, 44',
             f's_and_b32 s{S_T2}, s2, 7', f's_add_u32 s{S_RC}, s{S_ST0}, s{S_WAVE}', f's_lshl_b32 s{S_RC}, s{S_RC}, 2',
             f's_lshl_b32 s{S_ST0}, s{S_T2}, 14', f's_add_u32 s{S_RC}, s{S_RC}, s{S_ST0}', f's_add_u32 s{S_RC}, s{S_RC}, {5 * 2048}', f's_mul_i32 s{S_ST0}, s{S_C}, 44', f's_lshl_b32 s{S_PX}, s{S_T2}, 9', f's_add_u32 s{S_SAMP}, s{S_PX}, s{S_ST0}', f's_add_u32 s{S_PX}, s{S_PX}, s{S_T1}',
             f's_add_u32 s{S_SAMP}, s{S_SAMP}, s{S_WAVE}', f's_mul_i32 s{S_SAMP}, s{S_SAMP}, 104',
             f's_lshl_b32 s{S_ST0}, s{S_C}, 2', f's_add_u32 s{S_ST0}, s{S_ST0}, s{S_WAVE}', f's_add_u32 s{S_ST0}, s{S_ST0}, s{S_T2}', f's_and_b32 s{S_ST0}, s{S_ST0}, 7',
             f's_mul_i32 s{S_ST0}, s{S_ST0}, {16384 + o.shs}', f's_add_u32 s{S_ST0}, s{S_ST0}, {6 * 2048}',
             f's_sub_u32 s{S_LOOP}, 6, s{S_GRP}', f's_lshl_b32 s{S_TK}, s{S_GRP}, 1', f's_mov_b32 s{S_DYN}, -1',
             f'v_lshrrev_b32 v{t3}, 3, v0', f'v_min_u32 v{t3}, 6, v{t3}', f'v_lshlrev_b32 v{vXi}, 4, v{t3}',
             f's_mul_i32 s{S_T2}, s{S_T2}, 88', f's_add_u32 s{S_T2}, s{S_GW}, s{S_T2}', f's_mov_b32 s{S_T3}, 704',
             f'v_mov_b32 v{t4}, s{S_T2}', f'v_mad_u32_u24 v{vPWL}, v0, s{S_T3}, v{t4}',
             f's_mul_i32 s{S_T2}, s{S_GW}, 104', f's_sub_u32 s{S_T2}, s{S_T2}, {13 * 26 - 25}',
             f'v_min_u32 v{t4}, {12 + o.pfr}, v0', f'v_mul_u32_u24 v{t5}, 26, v{t4}', f'v_add_u32 v{t5}, s{S_T2}, v{t5}',
             f'v_cmp_lt_u32 vcc, 12, v{t4}', f'v_cndmask_b32 v{vPWL}, v{vPWL}, v{t5}, vcc', f'v_lshlrev_b32 v{vPWL}, 7, v{vPWL}',
             f's_mov_b32 s{S_PW}, {o.pfe0 * 832 * 128}',
             f'v_mov_b32 v{vFR}, {L_FLG}', f'v_lshlrev_b32 v{vFA}, 20, v0', f'v_add_u32 v{vFA}, {L_FLG}, v{vFA}',
             f'v_and_b32 v{t4}, 7, v0', f'v_lshlrev_b32 v{vC16}, 4, v{t4}', f'v_and_b32 v{t4}, 15, v0', f'v_lshl_add_u32 v{t4}, v{t4}, 2, v{vFR}',
             f'v_mov_b32 v{vOne}, 0', f'ds_write_b32 v{t4}, v{vOne}',
             f'v_lshrrev_b32 v{half}, 5, v0', f'v_and_b32 v{i32}, 31, v0',
             's_waitcnt lgkmcnt(0)', f'v_mov_b32 v{vOne}, 1']
        L += self.tlb1(t5, 255)
        L += self.build_srd(SRD_CIN, S_CIN, 105456)
        L += [f'buffer_load_dword v255, v{T}, {srd(SRD_CIN)}, s{S_T0} offen']
        L += self.build_srd(SRD_W, S_W1, 1664 * 3328)

        def pfw():
            return [f's_mov_b64 exec, {(1 << (13 + o.pfr)) - 1}', f'buffer_load_dword v255, v{vPWL}, {srd(SRD_W)}, s{S_PW} offen', 's_mov_b64 exec, -1',
                    f's_add_u32 s{S_PW}, s{S_PW}, {352 * 3328}']
        L += ['s_barrier'] + pfw()
        L += self.build_srd(SRD_IDX, S_IDX, 4096 * 104)

        def pfx_a():
            return [f'buffer_load_dword v{PXR}, v{vPXL}, {srd(SRD_IDX)}, s{S_PX} offen',
                    f's_cmp_eq_u32 s{S_PX}, s{S_PXE}', f's_cselect_b32 s{S_PXE}, 0x7000000, s{S_PXE}',
                    f's_cselect_b32 s{S_PX}, 0x7000000, s{S_PX}',
                    f's_add_u32 s{S_PX}, s{S_PX}, 24', f's_min_u32 s{S_PX}, s{S_PX}, s{S_PXE}']

        def pfx_b():
            return [f'v_lshlrev_b32 v{PXR}, 7, v{PXR}', f'buffer_load_dword v255, v{PXR}, {srd(SRD_TAB)}, 0 offen']

        def xidx(XI=XI, off=0, adv=True):
            c = [f'buffer_load_dwordx4 {vr(XI, 4)}, v{vXi}, {srd(SRD_IDX)}, s{S_SAMP} offen offset:{off}']
            if adv:
                c.append(f's_add_u32 s{S_SAMP}, s{S_SAMP}, {8 * 104}')
            return c

        def xdma(XI=XI, lo=0):
            c = []
            for u in range(4):
                if u == 2:
                    c += ['s_mov_b32 exec_hi, 0x0000ffff']
                c += [f'v_lshl_add_u32 v{XI + u}, v{XI + u}, 7, v{vC16}']
                if u == 3:
                    c += ['s_mov_b32 exec_lo, 0', 's_mov_b32 exec_hi, 0xffff0000', f'v_mov_b32 v{XI + 3}, v{XI + 1}', f'v_mov_b32 v{XI + 2}, v{XI + 1}',
                          's_mov_b32 exec_hi, 0x00ff0000', f'v_mov_b32 v{XI + 2}, v{XI}', 's_mov_b64 exec, -1']
            for u in range(4):
                c += [f's_add_u32 m0, s{S_BCUR}, {u * XPI + lo}']
                if u == 3:
                    c += ['s_mov_b32 exec_hi, 0x00ffffff']
                c.append(I(f'buffer_load_dwordx4 v{XI + u}, {srd(SRD_TAB)}, 0 offen lds', tag='XB'))
                if u == 3:
                    c += ['s_mov_b32 exec_hi, -1']
            return c
        wco = self.build_srd(SRD_WCO, S_WCO, 156) + [f's_mov_b32 m0, {L_WCO}', 's_mov_b64 exec, 0x7ff',
              I(f'buffer_load_dwordx4 v{vStg}, {srd(SRD_WCO)}, 0 offen lds', tag='STG3'),
              's_mov_b64 exec, -1']
        L += self.stamp0()

        def stage(dst, goff, tag):
            st = []
            for m in range(8):
                st.append((f's_add_u32 m0, s{S_STG}, {dst + m * 4096}', f's_add_u32 s{S_TW}, s{S_STG}, {goff + m * 4096}',
                           I(f'buffer_load_dwordx4 v{vStg}, {srd(SRD_CIN)}, s{S_TW} offen lds', tag=tag)))
            st.append((f's_add_u32 m0, s{S_STG9}, {dst}', f's_add_u32 s{S_TW}, s{S_STG9}, {goff}',
                       f's_mov_b64 exec, s[{S_EX}:{S_EX + 1}]',
                       I(f'buffer_load_dwordx4 v{vStg}, {srd(SRD_CIN)}, s{S_TW} offen lds', tag=tag),
                       's_mov_b64 exec, -1'))
            return st

        L += [f's_cmp_lg_u32 s{S_GRP}, 0', 's_cbranch_scc1 L_g1a']
        c0 = self.seq(L)
        sA, sB = (('1', A1, 0, F_W1), ('2', A2, 35152, F_W2)) if o.w1first else (('2', A2, 35152, F_W2), ('1', A1, 0, F_W1))
        stA, stB = stage(sA[1], sA[2], 'STG' + sA[0]), stage(sB[1], sB[2], 'STG' + sB[0])
        stg = [wco + stage(A3, 70304, 'STG3') + stA[:o.sigat],
               sig(F_W3, vm_tags=['STG3']) + self.stamp(1) + stA[o.sigat:] + stB[:o.sig2],
               sig(sA[3], vm_tags=['STG' + sA[0]]) + stB[o.sig2:]]
        g0a = self.seq(stg[:o.ccpos] + ['s_branch L_addrc'])
        L = ['L_g1a:', 's_setprio 1',
             f'v_bfe_u32 v{t3}, v0, 2, 2', f'v_lshl_add_u32 v{t3}, v{half}, 3, v{t3}',
             f'v_bfe_u32 v{t4}, v0, 4, 1', f'v_lshlrev_b32 v{t4}, 5, v{t4}',
             f'v_and_b32 v{t5}, 3, v0', f'v_lshl_add_u32 v{t4}, v{t5}, 3, v{t4}',
             f'v_lshl_add_u32 v{vA3}, v{t3}, 6, v{t4}', f'v_add_u32 v{vA3}, {V3OFF}, v{vA3}',
             f's_lshl_b32 s{S_T0}, s{cw}, 6', f's_add_u32 s{S_T0}, s{S_T0}, {A2}',
             f'v_add_u32 v{t4}, s{S_T0}, v{t4}',
             f'v_mul_u32_u24 v{t5}, 1352, v{t3}', f'v_add_u32 v{vBs0}, v{t4}, v{t5}',
             f'v_add_u32 v{t5}, 16, v{t3}', f'v_min_u32 v{t5}, 25, v{t5}',
             f'v_mul_u32_u24 v{t5}, 1352, v{t5}', f'v_add_u32 v{vBs1a}, v{t4}, v{t5}',
             f'v_add_u32 v{t5}, 20, v{t3}', f'v_min_u32 v{t5}, 25, v{t5}',
             f'v_mul_u32_u24 v{t5}, 1352, v{t5}', f'v_add_u32 v{vBs1b}, v{t4}, v{t5}',
             f's_lshl_b32 s{S_T0}, s{cw}, 5', f'v_add_u32 v{vE}, s{S_T0}, v{i32}',
             f'v_mul_u32_u24 v{t3}, 52, v{vE}', f'v_lshl_add_u32 v{t3}, v{half}, 3, v{t3}',
             f'v_add_u32 v{vUw}, {A3}, v{t3}',
             f'v_lshlrev_b32 v{t3}, 1, v{vE}', f'v_add_u32 v{vV2w}, {V2OFF}, v{t3}',
             f'v_mov_b32 v{BT}, 0', f'v_mov_b32 v{BT + 1}, 0',
             f'v_lshlrev_b32 v{t3}, 3, v0', f'v_add_u32 v{t4}, {V3OFF}, v{t3}',
             f's_lshl_b32 s{S_T0}, s{cw}, 9', f'v_add_u32 v{t4}, s{S_T0}, v{t4}', f'ds_write_b64 v{t4}, {vr(BT, 2)}']
        L += [f'v_lshl_add_u32 v{t3}, v{half}, 7, v{vE}', f's_mov_b32 s{S_T1}, 2521', f's_mov_b32 s{S_T2}, {V3OFF}']
        for p_ in range(3):
            L += [f'v_mul_u32_u24 v{t4}, s{S_T1}, v{t3}', f'v_lshrrev_b32 v{t4}, 16, v{t4}',
                  f'v_mad_u32_u24 v{t4}, v{t4}, 12, s{S_T2}', f'v_lshl_add_u32 v{AD + p_}, v{t3}, 1, v{t4}']
            if p_ < 2:
                L += [f'v_add_u32 v{t3}, 256, v{t3}']
        L += [f'v_mov_b32 v{t4}, 676', f'v_cmp_gt_u32 s[{S_MASK}:{S_MASK + 1}], v{t4}, v{t3}']
        for m in range(6):
            L += [f'v_add_u32 v{t3}, {128 * m}, v{vE}', f'v_mul_u32_u24 v{t4}, s{S_T1}, v{t3}', f'v_lshrrev_b32 v{t4}, 16, v{t4}',
                  f'v_lshl_add_u32 v{t4}, v{t4}, 2, v{vUw}', f'v_add_u32 v{AD + 4 + m}, {m * 6656}, v{t4}']
        L += [f'v_lshlrev_b32 v{AD + 10}, 4, v{half}', f'v_add_u32 v{AD + 10}, {L_WCO + 104}, v{AD + 10}',
              f'v_lshlrev_b32 v{AD + 11}, 1, v0', f'v_add_u32 v{AD + 11}, {L_WCO}, v{AD + 11}',
              f'v_lshlrev_b32 v{AD + 12}, 6, v0', f'v_add_u32 v{AD + 12}, {V3OFF + 52}, v{AD + 12}']
        g1a = self.seq(L)

        N_ = (0, 1, 2, 3)
        classes = []
        for d in ZD:
            for (a, ha, b, hb) in d:
                if cls(a, ha)[1] == N_ and cls(b, hb)[1] != N_ and cls(b, hb)[1] not in classes:
                    classes.append(cls(b, hb)[1])
        assert len(classes) == 5
        base = {(N_, N_): GB}
        for k, c in enumerate(classes):
            base[(N_, c)] = GB + 1 + 2 * k
            base[(c, N_)] = GB + 2 + 2 * k
        SP1, SP2 = GB + 11, GB + 12
        pk4 = lambda t: '0x%08x' % sum((x & 0xff) << (8 * k) for k, x in enumerate(t))
        L = ['L_addrc:',
             f's_and_b32 s{S_T2}, s{S_WAVE}, 1', f's_lshl_b32 s{S_T2}, s{S_T2}, 1', f'v_add_u32 v{vg}, s{S_T2}, v{half}',
             f'v_min_u32 v{t3}, 25, v{i32}',
             f's_mul_i32 s{S_T0}, s{S_GRP}, {UST - 1352}', f's_add_u32 s{S_T0}, s{S_T0}, 1352',
             f's_mul_i32 s{S_T1}, s{S_GRP}, {A3 - A1}', f's_add_u32 s{S_T1}, s{S_T1}, {A1}',
             f'v_mul_u32_u24 v{t4}, s{S_T0}, v{t3}', f'v_add_u32 v{t4}, s{S_T1}, v{t4}',
             f'v_lshlrev_b32 v{vDl}, 2, v{t3}', f'v_add_u32 v{vDl}, {A3 - A1}, v{vDl}',
             f'v_mul_u32_u24 v{vL}, 52, v{t3}', f'v_lshl_add_u32 v{vL}, v{vg}, 1, v{vL}', f'v_add_u32 v{vL}, {V2OFF}, v{vL}',
             f'v_lshlrev_b32 v{vWo}, 1, v{t3}', f'v_add_u32 v{vWo}, {L_WCO}, v{vWo}',
             f'v_mad_u32_u24 v{SP1}, v{vg}, 52, v{t4}',
             f'v_lshl_add_u32 v{SP2}, v{vg}, 1, v{t4}',
             f'v_lshl_add_u32 v{GB}, v{vg}, 1, v{SP1}',
             f'v_lshlrev_b32 v{t3}, 3, v{vg}']
        for k, c in enumerate(classes):
            L += [f's_mov_b32 s{S_T0}, {pk4(c)}', f'v_bfe_i32 v{t5}, s{S_T0}, v{t3}, 8',
                  f'v_lshl_add_u32 v{GB + 1 + 2 * k}, v{t5}, 1, v{SP1}', f'v_mad_i32_i24 v{GB + 2 + 2 * k}, v{t5}, 52, v{SP2}']
        L += [f's_mov_b32 s{S_T0}, {pk4((0, 54, 2, 0))}', f'v_bfe_u32 v{t5}, s{S_T0}, v{t3}, 8', f'v_add_u32 v{SP1}, v{t5}, v{t4}',
              f'v_add_u32 v{SP2}, 52, v{t4}', f'v_mov_b32 v{vm}, {OOB}',
              f'v_cmp_eq_u32 vcc, 3, v{vg}', f'v_cndmask_b32 v{SP1}, v{SP1}, v{vm}, vcc', f'v_cndmask_b32 v{vWo}, v{vm}, v{vWo}, vcc',
              f'v_cmp_eq_u32 vcc, 2, v{vg}', f'v_cndmask_b32 v{SP2}, v{vm}, v{SP2}, vcc',
              f'v_cmp_gt_u32 vcc, 2, v{vg}', f'v_cndmask_b32 v{vL6}, v{vm}, v{vL}, vcc']
        L += [f's_lshr_b32 s{S_T1}, s{cw}, 1', f's_mul_i32 s{S_T1}, s{S_T1}, {6 * 1024}', f's_mul_i32 s{S_T0}, s{S_GRP}, {6 * 1024}',
              f'v_lshlrev_b32 v{t5}, 8, v{vg}',
              f'v_lshl_add_u32 v{t3}, v{i32}, 4, v{t5}', f'v_add_u32 v{vWr}, {TA}, v{t3}', f'v_add_u32 v{vWu}, {TB}, v{t3}',
              f'v_bfe_u32 v{t3}, v0, 2, 2', f'v_lshl_add_u32 v{t5}, v{t3}, 4, v{t5}', f'v_and_b32 v{t3}, 3, v0',
              f'v_lshl_add_u32 v{t4}, v{t3}, 6, v{t5}', f'v_add_u32 v{t4}, {TC}, v{t4}',
              f'v_cmp_lt_u32 vcc, 15, v{i32}', f'v_cndmask_b32 v{vWr}, v{vWr}, v{t4}, vcc', f'v_add_u32 v{t4}, 16, v{t4}',
              f'v_cndmask_b32 v{vWu}, v{vWu}, v{t4}, vcc',
              f'v_lshl_add_u32 v{t4}, v{t3}, 5, v{t5}', f'v_add_u32 v{t4}, {TD - 16}, v{t4}',
              f'v_cmp_lt_u32 vcc, 19, v{i32}', f'v_cndmask_b32 v{vWr}, v{vWr}, v{t4}, vcc',
              f'v_add_u32 v{vWr}, s{S_T1}, v{vWr}', f'v_add_u32 v{vWu}, s{S_T0}, v{vWu}',
              f'v_cmp_lt_u32 vcc, 25, v{i32}', f'v_cndmask_b32 v{vWr}, v{vWr}, v{vm}, vcc', f'v_cndmask_b32 v{vWu}, v{vWu}, v{vm}, vcc',
              f'v_mov_b32 v{vMx}, 0']
        L += [f's_mul_i32 s{S_BCUR}, s{S_WAVE}, {XBSZ}', f's_add_u32 s{S_BCUR}, s{S_BCUR}, {XB0}', f's_mov_b32 s{S_BD}, {XB1 - XB0}',
              f'v_add_u32 v{aD}, {TA}, v{vStg}',
              f'v_and_b32 v{t3}, 11, v0', f'v_cmp_eq_u32 vcc, 11, v{t3}', f'v_cndmask_b32 v{aC}, v{aD}, v{vm}, vcc',
              f'v_and_b32 v{t3}, 3, v0', f'v_cmp_eq_u32 vcc, 0, v{t3}', f'v_cndmask_b32 v{aLc}, v{aC}, v{vm}, vcc',
              f'v_lshrrev_b32 v{vg}, 4, v0', f'v_bfe_u32 v{t3}, v0, 1, 3', f'v_lshlrev_b32 v{t5}, 4, v{t3}', f'v_add_u32 v{t5}, {TD}, v{t5}',
              f'v_and_b32 v{t3}, 10, v0', f'v_cmp_eq_u32 vcc, 10, v{t3}', f'v_cndmask_b32 v{t5}, v{t5}, v{vm}, vcc',
              f'v_and_b32 v{t4}, 1, v0', f'v_lshl_add_u32 v{aS}, v{vg}, 9, v{t5}', f'v_lshl_add_u32 v{aS}, v{t4}, 2, v{aS}', f'v_add_u32 v{aS}, 1024, v{aS}',
              f'v_lshl_add_u32 v{FT}, v{vg}, 8, v{t5}', f'v_lshl_add_u32 v{FT}, v{t4}, 20, v{FT}',
              f'v_and_b32 v{vm}, 15, v0', f's_mov_b32 s{S_T0}, {XPI}',
              f'v_lshlrev_b32 v{t3}, 1, v{vm}', f'v_add_u32 v{t3}, s{S_BCUR}, v{t3}',
              f'v_mad_u32_u24 v{vRaw}, v{vg}, s{S_T0}, v{t3}',
              f's_lshl_b32 s{S_T0}, s{S_WAVE}, 10', f's_add_u32 s{S_T0}, s{S_T0}, {XCH}',
              f'v_add_u32 v{vXw}, s{S_T0}, v{vStg}',
              f'v_add_u32 v{t3}, 256, v{vStg}', f'v_and_b32 v{t3}, 1023, v{t3}', f'v_add_u32 v{vX1}, s{S_T0}, v{t3}',
              f'v_xor_b32 v{t3}, 512, v{vStg}', f'v_add_u32 v{vX2}, s{S_T0}, v{t3}', f'v_lshlrev_b32 v{vSh}, 4, v{half}']
        L += [f'v_mov_b32 v{r}, 0' for r in list(range(RAW, RAW + 8)) + list(range(BT, BT + 24))]
        L += [f'v_mul_u32_u24 v{t4}, {XPI}, v{vg}',
              f'v_bfe_u32 v{t5}, v0, 2, 2', f'v_lshl_add_u32 v{t4}, v{t5}, 7, v{t4}',
              f'v_and_b32 v{t5}, 3, v0', f'v_lshl_add_u32 v{vLinB}, v{t5}, 3, v{t4}', f'v_add_u32 v{vLin}, s{S_BCUR}, v{vLinB}',
              f'v_and_b32 v{t5}, 1, v0', f's_mov_b32 s{S_T0}, 0xaaaaaaaa', f'v_mul_lo_u32 v{vSI}, s{S_T0}, v{t5}', f'v_or_b32 v{vSI}, 0x44444444, v{vSI}',
              f'v_lshlrev_b32 v{vOr}, 1, v0', f'v_add_u32 v{vOr}, s{S_BCUR}, v{vOr}', f'v_mov_b32 v{vAcc}, 0x3f80',
              f'ds_write_b16 v{vOr}, v{vAcc} offset:{3 * XPI + 7 * 128}', f'v_add_u32 v{vOr}, s{S_BD}, v{vOr}']
        L += [f's_mul_i32 s{S_T3}, s{S_WAVE}, 6', f's_add_u32 s{S_PX}, s{S_PX}, s{S_T3}', f's_mul_i32 s{S_PX}, s{S_PX}, 104',
              f's_add_u32 s{S_PXE}, s{S_PX}, 80', f's_add_u32 s{S_PX}, s{S_PX}, {4 * o.pfx0}',
              f's_mov_b32 s{S_T3}, 10923', f'v_min_u32 v{t3}, 35, v0',
              f'v_mul_u32_u24 v{t4}, s{S_T3}, v{t3}', f'v_lshrrev_b32 v{t4}, 16, v{t4}',
              f'v_mul_u32_u24 v{t4}, {104 - 24}, v{t4}', f'v_lshl_add_u32 v{vPXL}, v{t3}, 2, v{t4}']
        L += self.stamp(14)
        L += [f's_cmp_eq_u32 s{S_GRP}, 0', 's_cbranch_scc1 L_g0pf']
        cc = self.seq(L)

        def bread(m, base):
            b = BALL + m * 8
            return [f'ds_read_b64_tr_b16 {vr(b, 2)}, v{vBs0} offset:{base + m * 256}',
                    f'ds_read_b64_tr_b16 {vr(b + 2, 2)}, v{vBs0} offset:{base + m * 256 + 4 * 1352}',
                    f'ds_read_b64_tr_b16 {vr(b + 4, 2)}, v{vBs1a} offset:{base + m * 256}',
                    f'ds_read_b64_tr_b16 {vr(b + 6, 2)}, v{vBs1b} offset:{base + m * 256}']

        def mm6(base, post=lambda m: []):
            c = []
            for m in range(3 if base is not None else 0):
                c += bread(m, base)
            for m in range(6):
                if m + 3 < 6 and base is not None:
                    c += bread(m + 3, base)
                b = BALL + m * 8
                d = DALL + (m % 4) * 16
                c.append(f'v_mfma_f32_32x32x16_bf16 {vr(d, 16)}, {vr(AFR, 4)}, {vr(b, 4)}, 0')
                c.append(f'v_mfma_f32_32x32x16_bf16 {vr(d, 16)}, {vr(AFR + 4, 4)}, {vr(b + 4, 4)}, {vr(d, 16)}')
                if m >= 2:
                    c += post(m - 2)
            return c + post(4) + post(5)

        e1 = [f's_sub_u32 s{S_T0}, s{S_PX}, {24 * 104}', f'buffer_load_dword v{XJ + 4}, v{vPXL}, {srd(SRD_IDX)}, s{S_T0} offen',
              f'buffer_load_dword v{XJ + 5}, v{vPXL}, {srd(SRD_IDX)}, s{S_PX} offen']
        e2 = [f'v_lshlrev_b32 v{XJ + 4}, 7, v{XJ + 4}', f'buffer_load_dword v255, v{XJ + 4}, {srd(SRD_TAB)}, 0 offen',
              f'v_lshlrev_b32 v{XJ + 5}, 7, v{XJ + 5}', f'buffer_load_dword v255, v{XJ + 5}, {srd(SRD_TAB)}, 0 offen']
        xx = xdma() + xdma(XJ, -4 * XBSZ) + xidx()
        L = sig(F_W3) + [f's_sub_u32 s{S_SAMP}, s{S_SAMP}, {4 * 104}'] + xidx(XJ, 0, False) + [f's_add_u32 s{S_SAMP}, s{S_SAMP}, {4 * 104}'] + xidx()
        L += e1 + [f's_add_u32 s{S_PX}, s{S_PX}, 24'] + pfx_a()
        L += wait(F_W3, 8) + self.stamp(2)
        uc0 = self.seq(L)
        L = []
        for s2 in range(2):
            for rd in range(2):
                L.append(f'ds_read_b64 {vr(AFR + 4 * s2 + 2 * rd, 2)}, v{AD + 10} offset:{s2 * 32 + rd * 8}')
        L += [f'ds_read_u16 v{t5}, v{AD + 11} offset:52']

        def vpost(m):
            p_ = m // 2
            c = [f'v_cvt_pk_bf16_f32 v{V3T + p_}, v{DALL + 16 * (m % 4)}, 0']
            if m % 2:
                c = ['s_mov_b32 exec_lo, 0'] + c + [f's_mov_b64 exec, s[{S_MASK}:{S_MASK + 1}]' if p_ == 2 else 's_mov_b32 exec_lo, -1',
                                                    f'ds_write_b16 v{AD + p_}, v{V3T + p_}']
            return c
        L += mm6(A3 - A2, vpost)
        L += ['s_mov_b64 exec, 0x3ffffff', f'ds_write_b16 v{AD + 12}, v{t5}', 's_mov_b64 exec, -1']
        L += self.stamp(3) + sig(F_V3) + [f'v_cmp_gt_u32 s[{S_MASK}:{S_MASK + 1}], 36, v{vE}']
        L += (e2 if o.epos == 0 else []) + (xx if o.xpos == 0 else []) + (e2 if o.epos == 1 else [])
        L += wait(F_W2, 4) + [bread(m, 0) for m in range(6)] + wait(F_V3, 4) + self.stamp(5) + [f's_setprio {o.uprio}']
        for s2 in range(2):
            for rd in range(2):
                L.append(f'ds_read_b64_tr_b16 {vr(AFR + 4 * s2 + 2 * rd, 2)}, v{vA3} offset:{s2 * 1024 + rd * 256}')

        def upost(m):
            d = DALL + 16 * (m % 4)
            c = [f'v_cvt_pk_bf16_f32 v{UP + 8 * m + qq}, v{d + 2 * qq}, v{d + 2 * qq + 1}' for qq in range(8)]
            if m == 5:
                c.append(f's_mov_b64 exec, s[{S_MASK}:{S_MASK + 1}]')
            w_ = [f'ds_write2_b32 v{AD + 4 + m}, v{UP + 8 * m + 2 * a}, v{UP + 8 * m + 2 * a + 1} offset0:{4 * a} offset1:{4 * a + 1}' for a in range(3)]
            return c + interleave(w_, [f'v_max3_f32 v{vMx}, v{vMx}, abs(v{d + 2 * qq}), abs(v{d + 2 * qq + 1})' for qq in range(7)])
        L += mm6(None, upost)
        L.append('s_mov_b32 exec_hi, 0')
        for m in (5, 4, 3, 2, 1, 0):
            L.append(f'ds_write_b32 v{AD + 4 + m}, v{UP + 8 * m + 6} offset:48')
            L.append(f'ds_write_b16 v{vV2w}, v{UP + 8 * m + 7} offset:{m * 256}')
            if m == 5:
                L.append('s_mov_b32 exec_lo, -1')
        L += ['s_mov_b64 exec, -1'] + postmax(vMx, F_U) + [f's_setprio {o.bprio}'] + (xx if o.xpos == 1 else []) + (e2 if o.epos == 2 else []) + self.stamp(6) + ['s_branch L_uph']
        uc = self.seq(L)

        L = ['L_g0pf:'] + stg[o.ccpos:] + [f's_add_u32 s{S_SAMP}, s{S_SAMP}, {8 * 104}', f's_add_u32 s{S_PX}, s{S_PX}, 24'] + xidx() + pfx_a()
        L += sig(sB[3], vm_tags=['STG' + sB[0]]) + self.stamp(4) + [f's_mov_b32 s{S_PH}, 0'] + wait(F_W1, 4) + self.stamp(2)
        L += [f's_cmp_ge_u32 s{cw}, 2', 's_cbranch_scc1 L_chunk2']
        g0pf = self.seq(L)

        def chunk(k):
            units = [(n, h) for n in range(12 * k, min(12 * k + 12, 44)) for h in range(2)]
            NB_, BA = 12, o.ba
            reads, maths = [], []
            for ui, (n, h) in enumerate(units):
                a, ha, b, hb = ZD[n][h]
                (fa, ca), (fb, cb) = cls(a, ha), cls(b, hb)
                tb = BT + (ui % NB_) * 2
                dst = SUM + 24 * (k % 2) + ui
                if ca != N_:
                    R = [f'ds_read_u16_d16_hi v{tb}, v{SP1} offset:{54 * 24}', f'ds_read_u16_d16_hi v{tb + 1}, v{SP2} offset:{54 * 24}']
                    M = [f'v_add_f32 v{dst}, v{tb}, v{tb + 1}']
                elif (a, ha) == (b, hb):
                    R = [f'ds_read_u16_d16_hi v{tb}, v{base[(ca, cb)]} offset:{54 * fa}']
                    M = [f'v_mov_b32 v{dst}, v{tb}']
                else:
                    R = [f'ds_read_u16_d16_hi v{tb}, v{base[(ca, cb)]} offset:{52 * fa + 2 * fb}',
                         f'ds_read_u16_d16_hi v{tb + 1}, v{base[(cb, ca)]} offset:{52 * fb + 2 * fa}']
                    M = [f'v_add_f32 v{dst}, v{tb}, v{tb + 1}']
                if ui % 2:
                    M = M + maths[-1] + [f'v_max3_f32 v{vMx}, v{vMx}, abs(v{dst - 1}), abs(v{dst})']
                    maths[-1] = []
                reads.append(R)
                maths.append(M)
            code = []
            nu = len(units)
            for ui in range(nu + BA):
                if ui < nu:
                    code += reads[ui]
                if ui == nu and k == 3:
                    code += [f'ds_read_u16_d16_hi v{LT + e}, v{vL} offset:{8 * e}' for e in range(6)]
                    code += [f'ds_read_u16_d16_hi v{LT + 6}, v{vL6} offset:48', f'ds_read_u16_d16_hi v{LT + 7}, v{vWo}']
                if ui >= BA:
                    code += maths[ui - BA]
            return code
        LT = BT + 8
        assert o.ba <= 8

        def conv(n):
            return [f'v_fma_mix{"hi" if h else "lo"}_f16 v{OUT + q}, v{SUM + 2 * q + h}, s{S_SC}, 0' for h in range(2) for q in range(4 * n, 4 * n + 4)]
        wr = lambda n, A: [f'ds_write_b128 v{A}, {vr(OUT + 4 * n, 4)} offset:{n * 1024}']
        ch, chb = [], []
        for k in range(4):
            ch.append(self.seq([f'L_chunk{k}:'] + chunk(k) + [f's_cmp_lg_u32 s{S_PH}, 0', f's_cbranch_scc1 L_uconv{k % 2}']))
            chb.append(self.seq(['s_branch L_w1conv'] if k == 1 else []))
        L = ['L_w1conv:'] + self.stamp(3) + postmax(vMx, F_M)
        L += [f'v_add_u32 v{GB + k}, v{GB + k}, v{vDl}' for k in range(13)]
        L += waitmax(F_M, S_T2, 141) + setsc(S_T2) + self.stamp(5)
        L += conv(0) + conv(1) + wr(0, vWr) + conv(2) + wr(1, vWr) + conv(3) + wr(2, vWr) + conv(4) + wr(3, vWr) + wr(4, vWr)
        L += [f's_cmp_ge_u32 s{cw}, 2', 's_cbranch_scc1 L_w1x']
        w1a = self.seq(L)
        w1b = self.seq(conv(5) + wr(5, vWr))
        w1c = self.seq(['L_w1x:'])
        L = ['L_uph:'] + self.stamp(7) + waitmax(F_U, S_T3, 140) + setsc(S_T3) + self.stamp(12)
        L += [f's_mov_b32 s{S_PH}, 1', f's_lshr_b32 s{S_T1}, s{S_WAVE}, 1',
              f's_cmp_eq_u32 s{S_T1}, 0', 's_cbranch_scc1 L_chunk0', f's_cmp_eq_u32 s{S_T1}, 1', 's_cbranch_scc1 L_chunk1',
              f's_cmp_eq_u32 s{S_T1}, 2', 's_cbranch_scc1 L_chunk2', 's_branch L_chunk3']
        uph = self.seq(L)
        wm1 = lambda: waitmax(F_M, S_T2, 141)
        u0 = self.seq(['L_uconv0:'] + self.stamp(13) + conv(0) + wm1() + wr(0, vWu) + conv(1) + wr(1, vWu) + conv(2) + wr(2, vWu) + ['s_branch L_built'])
        u1a = self.seq(['L_uconv1:'] + self.stamp(13) + conv(3) + wm1() + wr(3, vWu) + conv(4) + wr(4, vWu) + [f's_cmp_lg_u32 s{S_GRP}, 0', 's_cbranch_scc1 L_ulin'])
        u1b = self.seq(conv(5) + wr(5, vWu) + ['s_branch L_built'])
        L = ['L_ulin:'] + [f'v_mul_f32 v{LT + e}, s{S_SC}, v{LT + e}' for e in range(8)]
        L += [f'v_cvt_pk_bf16_f32 v{OUT + 20 + q}, v{LT + 2 * q}, v{LT + 2 * q + 1}' for q in range(4)] + wr(5, vWu)
        u1c = self.seq(L)

        w0x = self.build_srd(SRD_W2, S_W2, 3328) + [f'v_lshlrev_b32 v{FT}, 7, v0', f'buffer_load_dword v255, v{FT}, {srd(SRD_W2)}, 0 offen']

        slot = lambda k: RZ + 4 * (k % 4)
        MF = [('Lb', 0), ('a', 1), ('b', 1), ('d', 1), ('Lc', 0), ('a', 2), ('c', 1), ('b', 2), ('c', 2)]
        for k in range(3, 10):
            MF += ([('S', k)] if k % 2 else []) + [('a', k), ('b', k), ('c', k)]
        MF += [('a', 10), ('b', 10), ('a', 11), ('b', 11), ('c', 10), ('S', 11), ('c', 11)]
        if o.mo == 1:
            MF = [('Lb', 0), ('a', 1), ('d', 1), ('Lc', 0), ('b', 1), ('a', 2), ('c', 1), ('b', 2), ('a', 3), ('c', 2), ('S', 3), ('b', 3), ('c', 3)]
            for k in range(4, 10):
                MF += ([('S', k)] if k % 2 else []) + [('a', k), ('b', k), ('c', k)]
            MF += [('a', 10), ('b', 10), ('c', 10), ('a', 11), ('b', 11), ('S', 11), ('c', 11)]
        if o.mo == 2:
            MF = [('d', 1), ('Lb', 0), ('a', 1), ('Lc', 0), ('b', 1), ('a', 2), ('c', 1), ('b', 2), ('a', 3), ('c', 2), ('S', 3), ('b', 3), ('c', 3)]
            for k in range(4, 12):
                MF += ([('S', k)] if k % 2 else []) + [('a', k), ('b', k), ('c', k)]
        NM = len(MF)
        use = {k: [m for m, (t_, kk) in enumerate(MF) if kk == k or (t_ == 'S' and kk == k + 1)] for k in range(12)}
        pos = lambda t_, k: MF.index((t_, k))

        def mfma(m):
            t_, k = MF[m]
            if t_[0] == 'L':
                d, w = {'b': (Db, WL), 'c': (Dc, WL + 4)}[t_[1]]
                return f'v_mfma_f32_16x16x32_bf16 {vr(d, 4)}, {vr(w, 4)}, {vr(slot(0), 4)}, 0'
            if t_ == 'S':
                return f'v_smfmac_f32_16x16x64_f16 {vr(Ds, 4)}, {vr(WS_ + 2 * (k - 1), 4)}, {vr(slot(k - 1), 8)}, v{vSI}'
            d, w = {'a': (Da, WA), 'b': (Db, WB), 'c': (Dc, WC), 'd': (Ds, WS_)}[t_]
            return f'v_mfma_f32_16x16x32_f16 {vr(d, 4)}, {vr(w + 4 * (k - 1), 4)}, {vr(slot(k), 4)}, {"0" if t_ in "ad" and k == 1 else vr(d, 4)}'

        def wload(m):
            t_, k = MF[m]
            if t_[0] == 'L':
                a, w, off = {'b': (aD, WL, TB), 'c': (aLc, WL + 4, TC)}[t_[1]]
                return [f'ds_read_b128 {vr(w, 4)}, v{a} offset:{off - TA + 11 * 1024}']
            if t_ == 'd':
                return [f'ds_read_b128 {vr(WS_, 4)}, v{FT}']
            if t_ == 'S':
                w = WS_ + 2 * (k - 1)
                return [f'ds_read2_b32 {vr(w, 2)}, v{aS} offset0:0 offset1:2', f'ds_read2_b32 {vr(w + 2, 2)}, v{aS} offset0:64 offset1:66',
                        f'v_add_u32 v{aS}, 2048, v{aS}']
            w, a, off = {'a': (WA, aD, 0), 'b': (WB, aD, TB - TA), 'c': (WC, aC, TC - TA)}[t_]
            return [f'ds_read_b128 {vr(w + 4 * (k - 1), 4)}, v{a} offset:{off + (k - 1) * 1024}']

        def zops(n):
            z = slot(n // 4 + 1) + n % 4
            (a, ha, b, hb), (a2, ha2, b2, hb2) = ZD[n]
            if (a, b) == (a2, b2):
                return [f'v_pk_mul_f16 v{z}, v{X + a}, v{X + b} op_sel:[{ha},{hb}] op_sel_hi:[{ha2},{hb2}]']
            return [f'v_mul_f16_sdwa v{z}, v{X + a}, v{X + b} dst_sel:WORD_0 dst_unused:UNUSED_PAD src0_sel:WORD_{ha} src1_sel:WORD_{hb}',
                    f'v_mul_f16_sdwa v{z}, v{X + a2}, v{X + b2} dst_sel:WORD_1 dst_unused:UNUSED_PRESERVE src0_sel:WORD_{ha2} src1_sel:WORD_{hb2}']

        cvt = lambda d, a, b: f'v_cvt_pk_f16_f32 v{d}, v{a}, v{b}'
        LAT = o.lat

        class It:
            def __init__(s, name, G, code, lo, hi, pre):
                s.name, s.G, s.code, s.lo, s.hi, s.pre, s.at = name, G, code, lo, hi, list(pre), None

        NG = 14
        items = {}

        def add(name, G, code, lo=-10**9, hi=10**9, pre=()):
            items[(name, G)] = It(name, G, code, lo, hi, pre)
        usej = lambda j: [n for n, d in enumerate(ZD) if any(a // 4 == j or b // 4 == j for (a, _, b, _) in d)]
        lastz = {j: max(usej(j)) for j in range(3)}
        for G in range(NG):
            c, b0 = G % 4, G * NM
            for r in range(8):
                add(f'raw{r}', G, f'ds_read_u16_d16_hi v{RAW + r}, v{vRaw} offset:{r * 128 + c * 32}', lo=b0 - o.rspan, hi=b0 - o.rlead,
                    pre=[(f'co{q}', G - 1, 0) for q in range(4)] + ([('swr', G, 0)] if c == 0 else []))
            for q in range(4):
                add(f'co{q}', G, cvt(X + q - 1, RAW + q - 1, RAW + q + 2) if q else cvt(X + 3, RAW + 6, RAW + 7), hi=b0 - 4,
                    pre=[(f'raw{r}', G, LAT) for r in range(8)] + [(f'z{lastz[0]}', G - 1, 0)])
            add('wo', G, f'ds_write_b128 v{vXw}, {vr(X, 4)}', hi=b0 - 2, pre=[(f'co{q}', G, 0) for q in range(4)] + [('r2', G - 1, 0)])
            add('r1', G, f'ds_read_b128 {vr(X + 4, 4)}, v{vX1}', hi=b0, pre=[('wo', G, 0)])
            add('r2', G, f'ds_read_b128 {vr(X + 8, 4)}, v{vX2}', hi=b0 + 1, pre=[('r1', G, 0)])
            for q in range(3):
                add(f'al{q}', G, f'v_alignbit_b32 v{X + 8 + q}, v{X + 8 + q}, v{X + 8 + q}, v{vSh}', hi=b0 + 20, pre=[('r2', G, LAT)])
            if c == 0:
                add('swr', G, [f'v_add_u32 v{vRaw}, s{S_BD}, v{vRaw}', WaitTag(vm_tags=['XB'])], lo=b0 - o.rspan - 1, hi=b0 - o.rspan - 1,
                    pre=[(f'raw{r}', G - 1, 0) for r in range(8)])
            for p in range(2):
                add(f'lin{p}', G, f'ds_read_b64_tr_b16 {vr(slot(0) + 2 * p, 2)}, v{vLin} offset:{p * 512 + c * 32}',
                    lo=b0 - NM + max(use[8]), hi=b0 + min(use[0]) - 1 - LAT, pre=[('swl', G, 0)] if c == 0 else [])
            if c == 0:
                add('swl', G, [f's_add_u32 s{S_TW}, s{S_BCUR}, s{S_BD}', f'v_add_u32 v{vLin}, s{S_TW}, v{vLinB}'], lo=b0 - NM + 20, hi=b0 - 12,
                    pre=[(f'lin{p}', G - 1, 0) for p in range(2)])
            for n in range(44):
                k = n // 4 + 1
                js = {x // 4 for (a, _, b, _) in ZD[n] for x in (a, b)}
                pre = [(f'co{q}', G, 0) for q in range(4)] + ([('r1', G, LAT)] if 1 in js else []) + ([(f'al{q}', G, 0) for q in range(3)] if 2 in js else [])
                if n:
                    pre.append((f'z{n - 1}', G, 0))
                if k == 5 and n % 4 < 3:
                    pre.append(('or1', G, 0))
                lo = b0 + max(use[k - 4]) if k >= 4 else b0 - NM + max(use[k + 8])
                if k == 1:
                    lo = max(lo, b0 - o.z1lo)
                zc = zops(n)
                if n == 12:
                    zc = [zops(12)[0], zops(13)[0]]
                if n == 13:
                    zc = [zops(12)[1], zops(13)[1]]
                add(f'z{n}', G, zc, lo=lo, hi=b0 + min(use[k]) - 2, pre=pre)
            s1 = slot(1)
            if c == 1:
                add('or1', G, f'v_or3_b32 v{vOr}, v{s1}, v{s1 + 1}, v{s1 + 2}', hi=b0 + 6, pre=[('z2', G, 0), ('blk', G - 2, 0)])
                add('ck', G, [f'v_and_b32 v{vOr}, 0x60006000, v{vOr}', f'v_cmp_ne_u32 s[{S_CHK}:{S_CHK + 1}], 0, v{vOr}'], hi=b0 + 30, pre=[('or1', G, 0)])
            e = b0 + NM
            rdy = lambda t_: b0 + pos(t_, 11) + o.flo
            for r in range(4):
                add(f'f{r}', G, f'v_{"mul" if c == 0 and r == 0 else "fmac"}_f32 v{vAcc}, v{Da + r}, v{Db + r}', lo=min(rdy('b'), e + pos('Lb', 0) - 1), hi=e + pos('Lb', 0) - 1,
                    pre=[(f'f{r - 1}', G, 0) if r else ('f8', G - 1, 0)] + ([('blk', G - 1, 0)] if c == 0 else []))
            for r in range(2):
                add(f'f{4 + r}', G, f'v_add_f32 v{FT + r}, v{Ds + 2 * r}, v{Ds + 2 * r + 1}', lo=min(rdy('S'), e + pos('d', 1) - 1), hi=e + pos('d', 1) - 1,
                    pre=[('f8', G - 1, 0)] + ([('blk', G - 1, 0)] if c == 0 else []))
            for r, (x, y) in enumerate(((Dc, Dc + 1), (FT, Dc + 2), (FT + 1, Dc + 3))):
                add(f'f{6 + r}', G, f'v_fmac_f32 v{vAcc}, v{x}, v{y}', lo=rdy('c'), hi=e + pos('Lc', 0) - 1, pre=[(f'f{5 + r}', G, 0), ('f3', G, 0), ('f4', G, 0)])
            if c == 3:
                for q, x in enumerate(dppred('v_add_f32', vAcc)):
                    add(f'dp{q}', G, x, hi=e + 7 + 2 * q, pre=[(f'dp{q - 1}', G, 2) if q else ('f8', G, 2)])
                add('blk', G, '@BLK', hi=e + 20, pre=[('dp5', G, 1)])
        order = list(items.values())
        gaps = {}
        isv = lambda x: isinstance(x, str) and x.startswith('v_')
        isl = lambda x: isinstance(x, str) and x.startswith('ds_')
        for gp in range(-NM, NG * NM):
            gaps[gp] = []
            uv = ul = 0
            while True:
                cand = []
                for it in order:
                    if it.at is not None or it.lo > gp:
                        continue
                    ok = True
                    for (nm, G, dist) in it.pre:
                        p = items.get((nm, G))
                        if p is None:
                            continue
                        if p.at is None or p.at + dist > gp:
                            ok = False
                            break
                    if not ok:
                        continue
                    cv_, cl_ = sum(map(isv, flat([it.code]))), sum(map(isl, flat([it.code]))) * (o.wcost if it.name == 'wo' else 1)
                    if it.hi > gp and (uv + cv_ > o.gapv or ul + cl_ > o.gapl or uv + ul + cv_ + cl_ > o.gapt) and cv_ + cl_:
                        continue
                    cand.append((it, cv_, cl_))
                if not cand:
                    break
                it, cv_, cl_ = min(cand, key=lambda x: x[0].hi)
                it.at = gp
                uv += cv_; ul += cl_
                gaps[gp].append(it)
        late = [(it.name, it.G, it.at - it.hi) for it in order if it.at is not None and it.at > it.hi and 4 <= it.G < 12]
        print('late items', late)
        sig_ = lambda G0: [[(it.name, it.G - G0) for it in gaps[G0 * NM + m]] for m in range(4 * NM)]
        assert sig_(4) == sig_(8), 'schedule not periodic'
        for f_ in (isv, isl):
            print('gap load', ''.join(str(sum(sum(map(f_, flat([it.code]))) for it in gaps[4 * NM + m])) + ('|' if m % NM == NM - 1 else '') for m in range(4 * NM)))
        keep = lambda c: [x for x in flat([c]) if not (isinstance(x, str) and any(x.startswith(d) for d in o.drop.split(',') if d))]
        prio = lambda p, lab: [f's_cmp_lg_u32 s{S_GRP}, 0', f's_cbranch_scc1 {lab}', f's_setprio {p}', f'{lab}:'] if o.phi else []

        def sstamp():
            if not (o.stamps and o.itst):
                return []
            return [f's_memtime s[{S_ST}:{S_ST + 1}]', f's_add_u32 s{S_C0}, s{S_LOOP}, 20', 's_waitcnt lgkmcnt(0)',
                    f's_mov_b32 m0, s{S_C0}', f'v_writelane_b32 v252, s{S_ST}, m0']

        pcode = []
        for gp in range(-NM, 4 * NM):
            for it in gaps[gp]:
                if it.G >= 4 and not it.name.startswith(('sw', 'wx')):
                    pcode += flat([it.code])
        PFD = o.pfd
        L = ['L_built:'] + self.stamp(10) + [WaitTag(vm_tags=['XB']), f'v_mov_b32 v{vF}, s{S_GRP}', f'ds_add_u32 v{vFA}, v{vF} offset:{F_XB}']
        L += self.tlb2(vZ, vTk) + [f's_add_i32 s{S_EXP}, s{S_T2}, s{S_T3}'] + wait(F_XB, 4) + pcode + pfx_b() + pfx_a() + pfw()
        L += ['s_waitcnt lgkmcnt(0)', 's_barrier'] + (['s_setprio 1'] if o.phi else ['s_setprio 0']) + self.stamp(8)
        L += [wload(m) for m in range(PFD)] + prio(2, 'L_prf') + (['s_mov_b32 s100, 15'] if o.gst else [])
        peel2 = None
        for m in range(NM):
            L += [mfma(m)] + (wload(m + PFD) if m + PFD < NM else [])
            for it in gaps[4 * NM + m]:
                if it.code == '@BLK':
                    L += [f'ds_write_b16 v{vOr}, v{vAcc} offset:{3 * XPI + 7 * 128}']
                    L += self.cleared('L_cclr', vZ, vTk) + xdma(XI, XB1 - XB0) + (pfw() if o.pfp else [])
                    L += [f's_sub_i32 s{S_EXP}, 0, s{S_EXP}', f's_mov_b32 s{S_EXPC}, s{S_EXP}',
                          f's_mov_b32 s{S_PH}, 1', f's_mov_b32 s{S_PREV}, 1']
                    L += [f's_cmp_lg_u32 s{S_WAVE}, 7', 's_cbranch_scc1 L_nw0']
                    peel1 = self.seq(L)
                    peelw = self.seq(w0x)
                    L = ['L_nw0:']
                elif it.G >= 4:
                    L += flat([it.code])
        L += [f'ds_add_u32 v{vFA}, v{vOne} offset:{F_PEEL}', 's_branch L_grp1']
        peel2 = self.seq(L)
        prime = self.seq(['L_prime:'] + [f'v_mov_b32 v{r}, 0' for r in range(D, D + 16)] + [f'v_mov_b32 v{FT}, 0', f'v_mov_b32 v{FT + 1}, 0'] + pcode)
        blk_a = ['L_blk:', f's_cmp_eq_u32 s{S_PREV}, 0', 's_cbranch_scc1 L_blkend',
                 f'v_readlane_b32 s{S_TW}, v{vAcc}, 63', f'v_ldexp_f32 v{vAcc}, v{vAcc}, s{S_EXPC}', f'v_and_b32 v{vAcc}, -2, v{vAcc}',
                 f's_cmp_eq_u32 s{S_PREV}, 2', 's_cbranch_scc1 L_good',
                 f's_cmp_eq_u64 s[{S_CHK}:{S_CHK + 1}], 0', 's_cbranch_scc1 L_slow',
                 f's_bfe_u32 s{S_TW}, s{S_TW}, 0x80017', f's_cmp_eq_u32 s{S_TW}, 255', 's_cbranch_scc1 L_slow',
                 'L_good:', 's_mov_b32 exec_lo, 0', 's_mov_b32 exec_hi, 0x80000000',
                 f'buffer_store_dword v{vAcc}, v{vZ}, {srd(SRD_WS)}, s{S_RC} offen sc1', 's_mov_b64 exec, -1',
                 f's_add_u32 s{S_RC}, s{S_RC}, 32', f's_sub_u32 s{S_LOOP}, s{S_LOOP}, 1', f's_cmp_eq_u32 s{S_LOOP}, 0', 's_cbranch_scc1 L_cin_done']
        blk_a += [f's_cmp_eq_u32 s{S_LOOP}, 1', 's_cbranch_scc1 L_lastnext']
        blk_b = xdma() + [f's_add_u32 s{S_SAMP}, s{S_SAMP}, {8 * 104}', f's_cmp_lg_u32 s{S_LOOP}, s{S_TK}', 's_cbranch_scc1 L_nodma']
        blk_t = [f'v_mov_b32 v{vTk}, 1', 's_mov_b64 exec, 1', f'buffer_atomic_add v{vTk}, v{vZ}, {srd(SRD_WS)}, s{S_ST0} offen sc0',
                 's_mov_b64 exec, -1', f's_mov_b32 s{S_TK}, 8', 's_branch L_nodma',
                 'L_lastnext:', f's_cmp_lt_i32 s{S_DYN}, 0', f's_cselect_b32 s{S_RC}, s{S_RC}, s{S_DYN}']
        hook_a = [f's_cmp_lg_u32 s{S_TK}, 8', 's_cbranch_scc1 L_hk']
        hook_t = ['s_waitcnt vmcnt(0)', f'v_readfirstlane_b32 s{S_TW}, v{vTk}', f's_mov_b32 s{S_TK}, 0', f's_add_u32 s{S_TW}, s{S_TW}, 485',
                  f's_cmp_ge_u32 s{S_TW}, 512', 's_cbranch_scc1 L_hk',
                  f's_add_u32 s{S_LOOP}, s{S_LOOP}, 1',
                  f's_lshr_b32 s{S_SAMP}, s{S_ST0}, 14', f's_lshl_b32 s{S_DYN}, s{S_SAMP}, 12', f's_add_u32 s{S_DYN}, s{S_DYN}, s{S_TW}',
                  f's_lshl_b32 s{S_DYN}, s{S_DYN}, 2', f's_add_u32 s{S_DYN}, s{S_DYN}, {5 * 2048}',
                  f's_lshl_b32 s{S_SAMP}, s{S_SAMP}, 9', f's_add_u32 s{S_SAMP}, s{S_SAMP}, s{S_TW}', f's_mul_i32 s{S_SAMP}, s{S_SAMP}, 104']
        hook_b = ['L_hk:'] + xidx(adv=False)
        blk_b2 = ['L_nodma:'] + [f's_add_u32 s{S_BCUR}, s{S_BCUR}, s{S_BD}', f's_sub_u32 s{S_BD}, 0, s{S_BD}', f's_mov_b32 s{S_EXPC}, s{S_EXP}', f's_mov_b32 s{S_PH}, 1']
        blk_c = ['L_blkend:', f's_mov_b32 s{S_PREV}, s{S_PH}']
        parts = [[], [], [], [], []]
        cur = self.seq(['L_cin_loop:'])
        for m in range(4 * NM):
            if m == NM:
                parts[3] = cur
                cur = self.seq(['L_grp1:'])
            if m == o.hook:
                p4a = cur + self.seq(hook_a)
                p4t = self.seq(hook_t)
                cur = self.seq(hook_b)
            if o.gst and m % NM == 0:
                cur += self.seq([f's_memtime s[{S_ST}:{S_ST + 1}]', 's_add_u32 s100, s100, 1', 's_min_u32 s100, s100, 31', 's_waitcnt lgkmcnt(0)',
                                 's_mov_b32 m0, s100', f'v_writelane_b32 v253, s{S_ST}, m0'])
            if o.phi and m in (0, o.phi):
                cur += self.seq(prio(0 if m else 2, f'L_pr{m}'))
            cur += self.seq([mfma(m % NM)])
            for it in gaps[4 * NM + m]:
                if it.code == '@BLK':
                    parts[0] = cur + self.seq(sstamp() + ['s_waitcnt vmcnt(0)', f's_cmp_le_u32 s{S_LOOP}, {o.pfend}', 's_cbranch_scc1 L_blk'])
                    pfp = self.seq(pfx_b() + pfx_a() + pfw())
                    parts[1] = self.seq(blk_a)
                    parts[2] = self.seq(blk_b)
                    pbt = self.seq(blk_t)
                    pb2 = self.seq(blk_b2)
                    cur = self.seq(blk_c)
                else:
                    cur += self.seq(keep(it.code))
        cur += self.seq([f's_cmp_lg_u32 s{S_LOOP}, 1', 's_cbranch_scc1 L_cin_loop'])
        parts[4] = p4a + cur
        p4x = p4a + p4t + cur
        tail = self.seq([it.code for m in range(NM) for it in gaps[4 * NM + m] if it.G == 3 and it.code != '@BLK'] + ['s_branch L_blk'])
        Q = RZ
        rows = [(g, r) for g in range(4) for r in range(8)][:31]
        L = ['L_slow:', f'v_lshlrev_b32 v{FT}, 1, v0', f'v_add_u32 v{FT + 1}, s{S_BCUR}, v{FT}',
             f's_mul_i32 s{S_TW}, s{S_WAVE}, {XBSZ}', f's_add_u32 s{S_TW}, s{S_TW}, {XSP}',
             f'v_add_u32 v{FT}, s{S_TW}, v{FT}', f'v_add_u32 v{vLin}, s{S_TW}, v{vLinB}']
        L += [f'v_subrev_u32 v{vRaw}, s{S_BD}, v{vRaw}'] + wait(F_PEEL, 8)
        L += [f'ds_read_u16 v{Q + n}, v{FT + 1} offset:{g * XPI + r * 128}' for n, (g, r) in enumerate(rows)]
        L += [f'v_lshlrev_b32 v{Q + n}, 16, v{Q + n}' for n in range(31)]
        L += absmax(vAcc, list(range(Q, Q + 31))) + dppred('v_max_u32', vAcc)
        L += [f'v_readlane_b32 s{S_TW}, v{vAcc}, 63', f's_lshr_b32 s{S_TW}, s{S_TW}, 23', f's_sub_i32 s{S_TW}, 134, s{S_TW}',
              f's_min_i32 s{S_TW}, s{S_TW}, 16',
              f's_lshl_b32 s{S_EXPC}, s{S_TW}, 2', f's_sub_i32 s{S_EXPC}, s{S_EXP}, s{S_EXPC}',
              f's_add_i32 s{S_TW}, s{S_TW}, 127', f's_lshl_b32 s{S_TW}, s{S_TW}, 23', f'v_mov_b32 v{Q + 31}, s{S_TW}']
        L += [f'v_mul_f32 v{Q + n}, s{S_TW}, v{Q + n}' for n in range(31)]
        L += [f'ds_write_b16_d16_hi v{FT + 1}, v{Q + n} offset:{g * XPI + r * 128}' for n, (g, r) in enumerate(rows)]
        L += [f'v_mul_f32 v{Q + n}, s{S_TW}, v{Q + n}' for n in range(32)]
        L += [f'ds_write_b16_d16_hi v{FT}, v{Q + n} offset:{g * XPI + r * 128}' for n, (g, r) in enumerate(rows + [(3, 7)])]
        L += [f's_mov_b32 s{S_PREV}, 0', f's_mov_b32 s{S_PH}, 2', 's_waitcnt lgkmcnt(0)', 's_branch L_prime']
        slow = self.seq(L)
        fin_ = self.seq(['L_cin_done:'] + self.stamp(9) + self.stamp_flush() + self.padsig() + ['s_endpgm'])
        rest = parts[3] + parts[4]
        full = parts[0] + pfp + parts[1] + parts[2] + pb2 + rest
        nopf = parts[0] + parts[1] + parts[2] + pbt + pb2 + parts[3] + p4x
        last = parts[0] + parts[1] + pb2 + rest
        redo = lambda pf: parts[1][:10] + slow + prime + parts[0] + (pfp if pf else []) + parts[1][:3] + rest
        end_ = tail + parts[1][:-2] + fin_
        main = peel2 + parts[4] + full + full + parts[0] + pfp + redo(1) + full + nopf + parts[0] + redo(0) + nopf + last + tail + redo(0) + end_
        main2 = peel2 + parts[4] + parts[0] + pfp + redo(1) + full + nopf + last + end_
        traces = []
        for w in range(8):
            if w < 4:
                k0 = w & 2
                tr = c0 + g0a + cc + g0pf + ch[k0] + ch[k0 + 1] + chb[k0 + 1] + w1a + ([] if k0 else w1b) + w1c
            else:
                tr = c0 + g1a + cc + uc0 + uc
            k = w >> 1
            tr += uph + ch[k] + (u0 if k % 2 == 0 else u1a + (u1b if k == 1 else u1c))
            for mn in (main, main2):
                traces.append(tr + peel1 + (peelw if w == 7 else []) + mn)
        return traces

    def build(self):
        pro = self.prologue()
        d = self.dnn()
        cs = self.cin()
        rm = self.rem()
        self.seq(['L_end:', 's_endpgm'])
        traces = [pro + c for c in d + cs + rm]
        for t in traces:
            resolve_waits(t)
        for _ in range(2):
            for t in traces:
                resolve_hazards(t)
        hdr = open(os.path.join(os.path.dirname(os.path.abspath(__file__)), 'header.txt')).read()
        txt = hdr + f'; @launch grid=(256,1,1) block=(512,1,1) lds={LDS_TOTAL}\n'
        txt += f'''.amdgcn_target "amdgcn-amd-amdhsa--gfx950"
{DOC}.text
.globl {KNAME}
.p2align 8
.type {KNAME},@function
{KNAME}:
'''
        body_ = self.P.emit()
        if 'wsame' in self.opt.dbg:
            body_ = body_.replace(f's_add_u32 s{S_WSOFF}, s{S_WSOFF}, {32 * 3328}', f's_xor_b32 s{S_WSOFF}, s{S_WSOFF}, 0')
        if 'xsame' in self.opt.dbg:
            import re as _re
            body_ = _re.sub(r'v_lshl_add_u32 v(2[4-9]|3[01]), v(1[6-9]), 7', r'v_lshl_add_u32 v\1, v16, 7', body_)
            body_ = _re.sub(r'v_lshl_add_u32 v(2[4-9]|3[01]), v(2[0-3]), 7', r'v_lshl_add_u32 v\1, v20, 7', body_)
            body_ = _re.sub(r'v_lshl_add_u32 v(2[4-9]|3[01]), v(9[6-9]), 7', r'v_lshl_add_u32 v\1, v96, 7', body_)
            body_ = _re.sub(r'v_lshl_add_u32 v(2[4-9]|3[01]), v(10[0-3]), 7', r'v_lshl_add_u32 v\1, v100, 7', body_)
            body_ = body_.replace('offen offset:12\n', 'offen offset:0\n').replace('offen offset:844\n', 'offen offset:832\n')
            body_ = body_.replace(f's_mov_b32 s{S_IDXOFF}, 28', f's_mov_b32 s{S_IDXOFF}, 0').replace(f's_add_u32 s{S_IDXOFF}, s{S_IDXOFF}, 16', 's_nop 0')
        if self.opt.align:
            for lab in ('L_dnn_loop0:', 'L_dnn_loop1:', 'L_cin_loop:', 'L_epi:'):
                pad = '  s_nop 0\n' if self.opt.align > 100 else ''
                body_ = body_.replace(lab + '\n', f'.p2align {self.opt.align % 100}\n{pad}{lab}\n')
        txt += body_
        txt += f'''.section .rodata,"a"
.p2align 6
.amdhsa_kernel {KNAME}
  .amdhsa_next_free_vgpr 256
  .amdhsa_next_free_sgpr 102
  .amdhsa_accum_offset 256
  .amdhsa_group_segment_fixed_size 0
  .amdhsa_kernarg_size 88
  .amdhsa_user_sgpr_count 2
  .amdhsa_user_sgpr_kernarg_segment_ptr 1
  .amdhsa_system_sgpr_workgroup_id_x 1
  .amdhsa_float_denorm_mode_32 {self.opt.denorm}
.end_amdhsa_kernel
'''
        return txt


def main():
    ap = argparse.ArgumentParser()
    ap.add_argument('-o', default='standalone__deep_cross_xdeepfm__recsys.s')
    ap.add_argument('--stamps', action='store_true')
    ap.add_argument('--padat', default='')
    ap.add_argument('--padmin', type=int, default=0)
    ap.add_argument('--nodma', action='store_true')
    ap.add_argument('--cpf', type=int, default=1)
    ap.add_argument('--coop', type=int, default=1)
    ap.add_argument('--coopw', type=int, default=2)
    ap.add_argument('--tbpos', type=int, default=0)
    ap.add_argument('--dbar3', type=int, default=1)
    ap.add_argument('--tlb', type=int, default=0)
    ap.add_argument('--tlb2', type=int, default=1)
    ap.add_argument('--itst', type=int, default=0)
    ap.add_argument('--diag', type=int, default=0)
    ap.add_argument('--dbg', default='')
    ap.add_argument('--lead3', type=int, default=1)
    ap.add_argument('--morder', type=int, default=0)
    ap.add_argument('--etlb', type=int, default=21)
    ap.add_argument('--lateb', type=int, default=0)
    ap.add_argument('--wfl', default='')
    ap.add_argument('--xfl', default='')
    ap.add_argument('--tag', type=int, default=0)
    ap.add_argument('--idxfirst', type=int, default=1)
    ap.add_argument('--bpos', type=int, default=2)
    ap.add_argument('--sigat', type=int, default=4)
    ap.add_argument('--epx', type=int, default=1)
    ap.add_argument('--denorm', type=int, default=3)
    ap.add_argument('--mprio', type=int, default=0)
    ap.add_argument('--swap', type=int, default=0)
    ap.add_argument('--bov', type=int, default=2)
    ap.add_argument('--rfirst', type=int, default=0)
    ap.add_argument('--g1x', type=int, default=0)
    ap.add_argument('--ldsred', type=int, default=0)
    ap.add_argument('--csnake', type=int, default=0)
    ap.add_argument('--cswap', type=int, default=0)
    ap.add_argument('--align', type=int, default=0)
    ap.add_argument('--c2', type=int, default=0)
    ap.add_argument('--d1', type=int, default=0)
    ap.add_argument('--cstr', type=int, default=3)
    ap.add_argument('--bearly', type=int, default=1)
    ap.add_argument('--w2late', type=int, default=1)
    ap.add_argument('--aov', type=int, default=3)
    ap.add_argument('--upos', type=int, default=1)
    ap.add_argument('--calt', type=int, default=1)
    ap.add_argument('--pfpos', type=int, default=1)
    ap.add_argument('--wlate', type=int, default=0)
    ap.add_argument('--dbar2', type=int, default=0)
    ap.add_argument('--dbar', type=int, default=0)
    ap.add_argument('--pfw', type=int, default=1)
    ap.add_argument('--pfx', type=int, default=3)
    ap.add_argument('--pfx0', type=int, default=4)
    ap.add_argument('--pfs', type=int, default=14)
    ap.add_argument('--dcoopx', type=int, default=1)
    ap.add_argument('--dcx0', type=int, default=0)
    ap.add_argument('--dcxpos', type=int, default=-1)
    ap.add_argument('--pfe0', type=int, default=2)
    ap.add_argument('--pfne', type=int, default=14)
    ap.add_argument('--prio47', type=int, default=0)
    ap.add_argument('--lookahead', type=int, default=5)
    ap.add_argument('--nz', type=int, default=6)
    ap.add_argument('--nwf', type=int, default=8)
    ap.add_argument('--hiat', type=int, default=4)
    ap.add_argument('--wmerge', type=int, default=0)
    ap.add_argument('--gapv', type=int, default=2)
    ap.add_argument('--lat', type=int, default=5)
    ap.add_argument('--uprio', type=int, default=1)
    ap.add_argument('--ccpos', type=int, default=0)
    ap.add_argument('--s1e', type=int, default=9)
    ap.add_argument('--s2e', type=int, default=0)
    ap.add_argument('--shs', type=int, default=256)
    ap.add_argument('--pfp', type=int, default=1)
    ap.add_argument('--epos', type=int, default=0)
    ap.add_argument('--hook', type=int, default=100)
    ap.add_argument('--rrd', type=int, default=11)
    ap.add_argument('--rdrop', default='')
    ap.add_argument('--pfr', type=int, default=4)
    ap.add_argument('--vin', type=int, default=1)
    ap.add_argument('--rstag', type=int, default=1)
    ap.add_argument('--eprio', type=int, default=1)
    ap.add_argument('--nopk', type=int, default=0)
    ap.add_argument('--w1first', type=int, default=0)
    ap.add_argument('--xpos', type=int, default=1)
    ap.add_argument('--z1lo', type=int, default=40)
    ap.add_argument('--pfend', type=int, default=3)
    ap.add_argument('--gst', type=int, default=0)
    ap.add_argument('--gapl', type=int, default=2)
    ap.add_argument('--gapt', type=int, default=2)
    ap.add_argument('--wcost', type=int, default=2)
    ap.add_argument('--bprio', type=int, default=0)
    ap.add_argument('--c1hi', type=int, default=-8)
    ap.add_argument('--c2hi', type=int, default=12)
    ap.add_argument('--rspan', type=int, default=34)
    ap.add_argument('--rlead', type=int, default=16)
    ap.add_argument('--pfd', type=int, default=10)
    ap.add_argument('--mo', type=int, default=2)
    ap.add_argument('--ba', type=int, default=6)
    ap.add_argument('--sig2', type=int, default=4)
    ap.add_argument('--drop', default='')
    ap.add_argument('--al8', type=int, default=0)
    ap.add_argument('--alph', type=int, default=0)
    ap.add_argument('--almm', type=int, default=0)
    ap.add_argument('--phi', type=int, default=123)
    ap.add_argument('--rawlo', type=int, default=8)
    ap.add_argument('--flo', type=int, default=3)
    opt = ap.parse_args()
    resolve_waits.dbg = 'dup' in opt.dbg
    g = Gen(opt)
    txt = g.build()
    if opt.al8:
        import align8
        rg = []
        if opt.al8 & 1:
            rg.append(('L_cin_loop', 'L_slow'))
        if opt.al8 & 2:
            rg += [('L_dnn_loop0', 'L_dnn_h1'), ('L_dnn_loop1', 'L_epi')]
        if opt.al8 & 4:
            rg += [('L_epi', 'L_pub')]
        txt = align8.align(txt, rg, opt.alph, opt.almm)
    open(opt.o, 'w').write(txt)
    print('wrote', opt.o, len(txt), 'bytes')


if __name__ == '__main__':
    main()
```

```python
import sys, os, struct, argparse
sys.path.insert(0, os.path.dirname(os.path.abspath(__file__)))
from cinplan import ZD, cls
from asmlib import I, WaitTag, Prog, resolve_waits, resolve_hazards

KNAME = 'standalone__deep_cross_xdeepfm__recsys_kernel'
LDS_TOTAL = 163840

XSLOT = 16384
WR = 4 * XSLOT
WP = 640
WSLOT = 32 * WP
L_BIAS = WR + 4 * WSLOT
L_W2 = L_BIAS + WP
RB = 2 * XSLOT
RWR = 131072

ASZ = 35264
A1 = 1024
A2 = A1 + ASZ
A3 = A2 + ASZ
UST = 1356
V3OFF = A3 + ASZ
V2OFF = V3OFF + 2048
L_WCO = V2OFF + 1408
L_FLG = L_WCO + 192
RC = L_FLG + 64
XB0 = RC + 512
XPI = 1056
XBSZ = 4 * XPI
XB1 = A3
TA = A1
TC = TA + 11 * 1024
TD = TC + 11 * 1024
TB = A2
LL = TB + 11 * 1024
XSP = A1
XCH = XB0 + 8 * XBSZ
OOB = 0x100000
NCLR = 56
NPOOL = 224
assert XCH + 8192 <= LDS_TOTAL and XB0 % 16 == 0 and A2 % 16 == 0 and A3 % 16 == 0 and L_WCO % 16 == 0
assert LL + 3072 <= A3 and 8 * XBSZ <= ASZ and TD + 11 * 1024 <= A2

S_WAVE = 3
S_IDX, S_TAB, S_CIN, S_WCO, S_W1, S_B1, S_W2, S_BO, S_OUT, S_DBG, S_WS = 4, 6, 8, 10, 12, 14, 16, 18, 20, 22, 24
S_MB, S_R = 26, 27
SRD_IDX, SRD_TAB, SRD_CIN, SRD_WCO, SRD_W, SRD_B1, SRD_W2, SRD_OUT, SRD_WS, SRD_DBG = 28, 32, 36, 40, 44, 48, 52, 56, 60, 64
S_T0, S_T1, S_T2, S_T3 = 68, 69, 70, 71
S_LOOP, S_IDXOFF, S_WSOFF, S_WMB, S_XM0, S_N0, S_C0, S_CW, S_BOUT, S_TW = 72, 73, 74, 75, 76, 77, 78, 79, 80, 81
S_EX = 82
S_GRP, S_RC = 84, 85
S_ST = 86
S_M26, S_MASK = 90, 92
S_SAMP, S_STG, S_STG9, S_TGT = 94, 95, 96, 97
S_M26B = 98
S_GW = 100
S_TAGT = 0
S_TAG = 1
S_PW = 101
S_PX = 77
S_PXE = 73

GELU_C0 = -2.0 * 0.7978845608028654 * 1.4426950408889634
GELU_C1 = GELU_C0 * 0.044715


def f32hex(x):
    return '0x%08x' % struct.unpack('<I', struct.pack('<f', x))[0]


def vr(a, n):
    return f'v[{a}:{a + n - 1}]' if n > 1 else f'v{a}'


def srd(a):
    return f's[{a}:{a + 3}]'


def flat(gs):
    res = []
    for c in gs:
        if isinstance(c, (tuple, list)):
            res += flat(c)
        else:
            res.append(c)
    return res


def interleave(a, b):
    out = []
    ia = ib = 0
    na, nb = len(a), len(b)
    while ia < na or ib < nb:
        if ib >= nb or (ia < na and ia * nb <= ib * na):
            out.append(a[ia]); ia += 1
        else:
            out.append(b[ib]); ib += 1
    return out


assert all((d * 2521) >> 16 == d // 26 for d in range(800))
assert all((d * 10923) >> 16 == d // 6 for d in range(64))
assert all((d * 1561) >> 16 == d // 42 for d in range(176))


DOC = '''; ---------------------------------------------------------------------------------------------
;
;       V3[h,k]  = sum_g wo[52+g] W3[g,h,k]          V2[i,j] = sum_h wo[26+h] W2[h,i,j]
;       U[i,j,k] = sum_h W2[h,i,j] V3[h,k]
;       g1[i]    = wo[i] + sum_j V2[i,j] x_j + sum_jk U[i,j,k] x_j x_k
;   Both quadratic forms use the 351 distinct products x_j x_k (j<=k) with symmetrised weights,
; Work split: per block of 128 samples, 5 workgroups do the DNN branch (128 x 336 output tiles) and
;   3 workgroups the CIN branch; partial logits go through d_ws (sc1) and a counter in d_debug,
;   the last arriver of a block adds them up and writes d_out.
; ---------------------------------------------------------------------------------------------
'''


class Gen:
    def __init__(self, opt):
        self.opt = opt
        self.P = Prog()
        self.role = 'x'

    def seq(self, lines):
        return [self.P.add(l) for l in flat(lines)]

    def build_srd(self, dst, ptr, size):
        return [f's_mov_b32 s{dst}, s{ptr}', f's_and_b32 s{dst + 1}, s{ptr + 1}, 0xffff',
                f's_mov_b32 s{dst + 2}, {size}', f's_mov_b32 s{dst + 3}, 0x20000']

    def stamp(self, slot):
        if self.opt.padat == f'{self.role}{slot}':
            return [f's_memrealtime s[88:89]', 's_waitcnt lgkmcnt(0)']
        if not self.opt.stamps:
            return []
        return [f's_memtime s[{S_ST}:{S_ST + 1}]', f's_memrealtime s[{S_ST + 2}:{S_ST + 3}]', 's_waitcnt lgkmcnt(0)',
                f'v_writelane_b32 v252, s{S_ST}, {slot}', f'v_writelane_b32 v253, s{S_ST + 2}, {slot}']

    def stamp_flush(self):
        if not self.opt.stamps:
            return []
        L = self.build_srd(SRD_WS, S_WS, 0x10000000)
        L += [f's_lshl_b32 s{S_C0}, s2, 3', f's_add_u32 s{S_C0}, s{S_C0}, s{S_WAVE}',
              f's_lshl_b32 s{S_C0}, s{S_C0}, 8', f's_add_u32 s{S_C0}, s{S_C0}, 0x100000',
              'v_lshlrev_b32 v254, 3, v0', 's_mov_b32 exec_hi, 0',
              f'buffer_store_dwordx2 v[252:253], v254, {srd(SRD_WS)}, s{S_C0} offen', 's_mov_b32 exec_hi, -1']
        return L

    def stamp0(self):
        if not self.opt.stamps:
            return []
        return ['v_mov_b32 v252, 0xcdcdcdcd', 'v_mov_b32 v253, 0xcdcdcdcd',
                f'v_writelane_b32 v252, s{S_ST}, 0', f'v_writelane_b32 v253, s{S_ST + 2}, 0'] + self.stamp(15)

    def tlb2(self, t, vflag):
        L = self.build_srd(SRD_WS, S_WS, 0x10000000) + self.build_srd(SRD_DBG, S_DBG, 256)
        L += [f'v_mov_b32 v{t}, 0',
              ('s_mov_b64 exec, 1', f's_mov_b32 s{S_TW}, 0x80000',
               f'buffer_load_dword v255, v{t}, {srd(SRD_WS)}, s{S_TW} offen',
               f'buffer_load_dword v{vflag}, v{t}, {srd(SRD_DBG)}, 0 offen offset:128 sc1',
               's_mov_b64 exec, -1')]
        return L

    def cleared(self, lab, t, vflag):
        return [f'v_readfirstlane_b32 s{S_TW}, v{vflag}', f's_cmp_ge_u32 s{S_TW}, {NCLR}', f's_cbranch_scc1 {lab}_ok', f'v_mov_b32 v{t}, 0', f's_mov_b32 s{S_C0}, 0x40000',
                f'{lab}:', f's_sub_u32 s{S_C0}, s{S_C0}, 1', 's_cbranch_scc1 L_end', f'buffer_load_dword v{vflag}, v{t}, {srd(SRD_DBG)}, 0 offen offset:128 sc1', 's_waitcnt vmcnt(0)',
                f'v_readfirstlane_b32 s{S_TW}, v{vflag}', f's_cmp_lt_u32 s{S_TW}, {NCLR}', f's_cbranch_scc1 {lab}', f'{lab}_ok:']

    def padsig(self):
        o = self.opt
        if not o.padat:
            return []
        pre = ['v_mov_b32 v8, 4']
        if (o.padat[0] if o.padat != 'start' else 'd') != self.role:
            return pre
        return pre + [f's_cmp_lg_u32 s{S_WAVE}, 0', 's_cbranch_scc1 L_nosig'] + ([f's_not_b32 s88, s88'] if o.padmin else []) + ['v_mov_b32 v7, s88', 's_mov_b64 exec, 1',
                f'buffer_atomic_umax v7, v8, {srd(SRD_DBG)}, 0 offen', 's_mov_b64 exec, -1', 'L_nosig:']

    def tlb1(self, vtmp, vdst):
        if not self.opt.etlb:
            return self.build_srd(SRD_TAB, S_TAB, 100000 * 128)
        return self.build_srd(SRD_TAB, S_TAB, 100000 * 128) + [
            f'v_mov_b32 v{vtmp}, s{S_BOUT}', f'buffer_load_dword v{vdst}, v{vtmp}, {srd(SRD_TAB)}, 0 offen']

    def prologue(self):
        L = []
        if self.opt.padat == 'start':
            L += ['s_memrealtime s[88:89]']
        elif self.opt.padat:
            L += [f's_mov_b32 s88, {-1 if self.opt.padmin else 0}']
        if self.opt.stamps:
            L += [f's_memtime s[{S_ST}:{S_ST + 1}]', f's_memrealtime s[{S_ST + 2}:{S_ST + 3}]']
        L += ['s_cmp_ge_u32 s2, 256', 's_cbranch_scc1 L_end',
              's_load_dwordx16 s[4:19], s[0:1], 0',
              's_load_dwordx4 s[20:23], s[0:1], 64',
              's_load_dwordx2 s[24:25], s[0:1], 80',
              'v_lshrrev_b32 v1, 6, v0']
        if self.opt.cpf:
            L += [f's_getpc_b64 s[{S_MASK}:{S_MASK + 1}]', 'L_pc:',
                  f's_and_b32 s{S_T0}, s2, 0xf8', f'v_add_u32 v2, s{S_T0}, v1', 'v_lshlrev_b32 v2, 7, v2',
                  f'v_min_u32 v2, L_end-L_pc, v2',
                  f'v_mov_b32 v3, s{S_MASK + 1}',
                  f'v_add_co_u32 v2, vcc, s{S_MASK}, v2', 'v_addc_co_u32 v3, vcc, 0, v3, vcc',
                  'global_load_dword v255, v[2:3], off']
        L += ['v_and_b32 v0, 63, v0',
              f'v_readfirstlane_b32 s{S_WAVE}, v1',
              f's_and_b32 s{S_T0}, s2, 7', f's_lshl_b32 s{S_T0}, s{S_T0}, 2',
              f's_lshr_b32 s{S_MB}, s2, 6', f's_add_u32 s{S_MB}, s{S_MB}, s{S_T0}',
              f's_bfe_u32 s{S_R}, s2, 0x30003',
              f's_and_b32 s{S_BOUT}, s2, 0xf8', f's_add_u32 s{S_BOUT}, s{S_BOUT}, s{S_WAVE}', f's_lshl_b32 s{S_BOUT}, s{S_BOUT}, {self.opt.etlb}',
              f's_cmp_ge_u32 s{S_R}, 5', 's_cbranch_scc1 L_cin']
        return self.seq(L)

    def gelu(self, groups, TB, KC0, KC1, KONE):
        p2 = lambda r: vr(r, 2)
        L = []
        seen = set()
        for k, vals in enumerate(groups):
            tb = TB + (k % 2) * 16
            V_ = [(x, w, s_, tb + 4 * i_, tb + 4 * i_ + 2) for i_, (x, w, s_) in enumerate(vals)]
            for (x, w, s_, t, u) in V_:
                L.append(f'v_pk_mul_f32 {p2(t)}, {p2(x)}, {p2(x)}')
            for (x, w, s_, t, u) in V_:
                L.append(f'v_pk_fma_f32 {p2(t)}, {p2(t)}, {p2(KC1)}, {p2(KC0)}')
            for (x, w, s_, t, u) in V_:
                L.append(f'v_pk_mul_f32 {p2(t)}, {p2(t)}, {p2(x)}')
            for (x, w, s_, t, u) in V_:
                L += [f'v_exp_f32 v{t}, v{t}', f'v_exp_f32 v{t + 1}, v{t + 1}']
            for (x, w, s_, t, u) in V_:
                L.append(f'v_pk_fma_f32 {p2(t)}, {p2(t)}, {p2(w)}, {p2(w)}')
            for (x, w, s_, t, u) in V_:
                L += [f'v_rcp_f32 v{t}, v{t}', f'v_rcp_f32 v{t + 1}, v{t + 1}']
            for (x, w, s_, t, u) in V_:
                if s_ in seen:
                    L.append(f'v_pk_fma_f32 {p2(s_)}, {p2(t)}, {p2(x)}, {p2(s_)}')
                else:
                    L.append(f'v_pk_mul_f32 {p2(s_)}, {p2(t)}, {p2(x)}')
                    seen.add(s_)
        if self.opt.nopk:
            import re as _re
            L2 = []
            for x in L:
                if x.startswith('v_pk_'):
                    mn = x.split()[0].replace('v_pk_', 'v_')
                    rs = [int(r) for r in _re.findall(r'v\[(\d+):', x)]
                    L2 += [f'{mn} ' + ', '.join(f'v{r + h}' for r in rs) for h in range(2)]
                else:
                    L2.append(x)
            L = L2
        return L

    def red4(self, SUMP):
        sm = lambda tm: SUMP + 2 * tm
        L = [f'v_add_f32 v{sm(tm)}, v{sm(tm)}, v{sm(tm) + 1}' for tm in range(4)]
        L += [f'v_permlane32_swap_b32 v{sm(tm)}, v{sm(tm + 2)}' for tm in range(2)]
        L += [f'v_add_f32 v{sm(tm)}, v{sm(tm)}, v{sm(tm + 2)}' for tm in range(2)]
        L += [f'v_permlane16_swap_b32 v{sm(0)}, v{sm(1)}', f'v_add_f32 v{sm(0)}, v{sm(0)}, v{sm(1)}']
        return L

    def kconst(self, KC0, KC1, KONE):
        return [f'v_mov_b32 v{KC0}, {f32hex(GELU_C0)}', f'v_mov_b32 v{KC0 + 1}, {f32hex(GELU_C0)}',
                f'v_mov_b32 v{KC1}, {f32hex(GELU_C1)}', f'v_mov_b32 v{KC1 + 1}, {f32hex(GELU_C1)}',
                f'v_mov_b32 v{KONE}, 0x71800000']

    def winv(self, R, n, KONE):
        return [f'v_rcp_f32 v{R + k}, v{R + k}' for k in range(n)] + [f'v_med3_f32 v{R + k}, v{R + k}, -v{KONE}, v{KONE}' for k in range(n)]

    def dnn(self):
        o = self.opt
        self.role = 'd'
        vW = [[1, 2, 3, 4, 5], [6, 7, 8, 9, 10]]
        vX = [11, 12]
        vIdxOff, vCh = 13, [14, 15]
        ST = [16, 20]
        VO = 24
        vWD = [32, 33, 34]
        vP, vPc, vBL = 35, 36, 37
        WF = 40
        XA = 80
        T = 112
        W2F = 112
        ACC = 140
        PK = 220
        SUMP, KC0, KC1, KONE = 16, 232, 234, 236
        WL = 3

        def acc(tn, tm):
            return ACC + (tn * 4 + tm) * 4

        HH, SL = S_T0, S_T1
        g, i4, q = T + 18, T + 19, T + 20
        PI, vCW = T + 8, T + 12
        nr = o.coopw
        L = [f's_mul_i32 s{S_N0}, s{S_R}, {WP}',
             f's_mul_i32 s{S_T2}, s{S_WAVE}, 7', f'v_min_u32 v{q}, 6, v0', f'v_add_u32 v{q}, s{S_T2}, v{q}', f'v_min_u32 v{q}, 51, v{q}',
             f'v_lshrrev_b32 v{g}, 1, v{q}', f'v_mul_u32_u24 v{g}, 96, v{g}', f'v_lshl_add_u32 v{q}, v{q}, 2, v{g}',
             f's_mul_i32 s{S_C0}, s{S_R}, 26', f's_min_u32 s{S_C0}, s{S_C0}, 102', f's_lshl_b32 s{S_T3}, s{S_MB}, 7',
             f's_add_u32 s{S_C0}, s{S_C0}, s{S_T3}', f's_mul_i32 s{S_C0}, s{S_C0}, 104',
             f's_and_b32 s{S_T2}, s{S_MB}, 3', f's_lshl_b32 s{S_T2}, s{S_T2}, 3', f's_add_u32 s{S_T2}, s{S_T2}, s{S_WAVE}',
             f's_mul_i32 s{S_T2}, s{S_T2}, 3328', f's_add_u32 s{S_TW}, s{S_T2}, s{S_N0}',
             f'v_min_u32 v{vCW}, {8 * nr - 1}, v0', f'v_lshrrev_b32 v{g}, 3, v{vCW}', f's_mov_b32 s{S_T2}, {32 * 3328}',
             f'v_mul_u32_u24 v{g}, s{S_T2}, v{g}',
             f'v_and_b32 v{vCW}, 7, v{vCW}', f'v_min_u32 v{vCW}, 4, v{vCW}', f'v_lshl_add_u32 v{vCW}, v{vCW}, 7, v{g}',
             's_waitcnt lgkmcnt(0)']
        L += self.build_srd(SRD_IDX, S_IDX, 4096 * 104)
        L += [f'buffer_load_dwordx3 {vr(PI, 3)}, v{q}, {srd(SRD_IDX)}, s{S_C0} offen']
        L += self.tlb1(T + 24, 255)
        vec = lambda dst, sr: [f's_mov_b32 m0, {dst}', 's_mov_b32 exec_hi, 0xff',
                               I(f'buffer_load_dwordx4 v{vBL}, {srd(sr)}, s{S_N0} offen lds', tag='BIAS'), 's_mov_b64 exec, -1']
        L += [f'v_lshlrev_b32 v{vBL}, 4, v0'] + self.build_srd(SRD_B1, S_B1, 3328)
        L += self.build_srd(SRD_W, S_W1, 1664 * 3328)
        L += [f'buffer_load_dword v255, v{vCW}, {srd(SRD_W)}, s{S_TW} offen']
        L += vec(L_BIAS, SRD_B1)
        L += self.stamp0()
        L += [f's_lshr_b32 s{HH}, s{S_WAVE}, 2', f's_and_b32 s{SL}, s{S_WAVE}, 3',
              f's_lshl_b32 s{S_T2}, s{S_WAVE}, 4', f's_add_u32 s{S_T2}, s{S_T2}, s{S_T3}',
              f'v_lshrrev_b32 v{T + 16}, 3, v0', f'v_add_u32 v{T + 16}, s{S_T2}, v{T + 16}',
              f'v_mul_u32_u24 v{vIdxOff}, 104, v{T + 16}',
              f's_mul_i32 s{S_T3}, s{HH}, 192', f's_mov_b32 s{S_T2}, 1639', f's_and_b32 s{S_C0}, s{SL}, 1', f's_lshl_b32 s{S_C0}, s{S_C0}, 2',
              f's_mov_b32 s{S_TW}, 3328', f'v_add_u32 v{T + 16}, s{S_T3}, v0']
        for u in range(3):
            ci, rr = T + 16, T + 17
            L += [f'v_mul_u32_u24 v{rr}, s{S_T2}, v{ci}', f'v_lshrrev_b32 v{rr}, 16, v{rr}',
                  f'v_mul_u32_u24 v{q}, 40, v{rr}', f'v_sub_u32 v{q}, v{ci}, v{q}',
                  f'v_and_b32 v{i4}, 2, v{rr}', f'v_or_b32 v{i4}, s{S_C0}, v{i4}', f'v_xor_b32 v{q}, v{q}, v{i4}',
                  f'v_mul_u32_u24 v{rr}, s{S_TW}, v{rr}', f'v_lshl_add_u32 v{vWD[u]}, v{q}, 4, v{rr}']
            if u:
                L += [f'v_subrev_u32 v{vWD[u]}, {1024 * u}, v{vWD[u]}']
            if u < 2:
                L += [f'v_add_u32 v{ci}, 64, v{ci}']
        L += [f's_mul_i32 s{S_T2}, s{SL}, {8 * 3328}', f's_add_u32 s{S_WSOFF}, s{S_T2}, s{S_N0}',
              f's_mul_i32 s{S_WMB}, s{SL}, {8 * WP}', f's_mul_i32 s{S_T2}, s{HH}, 3072', f's_add_u32 s{S_WMB}, s{S_WMB}, s{S_T2}',
              f's_lshl_b32 s{S_XM0}, s{S_WAVE}, 11',
              f'v_and_b32 v{q}, 7, v0', f'v_lshrrev_b32 v{g}, 4, v0',
              f'v_xor_b32 v{q}, v{q}, v{g}', f'v_lshlrev_b32 v{vCh[0]}, 4, v{q}',
              f'v_xor_b32 v{vCh[1]}, 64, v{vCh[0]}']
        L += self.build_srd(SRD_W2, S_W2, 3328)
        L += [f's_lshr_b32 s{S_T2}, s{S_WAVE}, 1', f's_mul_i32 s{S_T3}, s{S_T2}, 5',
              f'v_bfe_u32 v{i4}, v0, 2, 2', f'v_lshl_add_u32 v{q}, v{g}, 3, v{i4}', f'v_mul_u32_u24 v{q}, {WP}, v{q}',
              f'v_and_b32 v{i4}, 3, v0', f'v_lshl_add_u32 v{q}, v{i4}, 3, v{q}', f'v_add_u32 v{q}, {WR}, v{q}',
              f'v_bfe_u32 v{i4}, v0, 3, 2']
        for i in range(5):
            L += [f'v_xor_b32 v{T + 16}, s{S_T3}, v{i4}', f'v_lshl_add_u32 v{vW[0][i]}, v{T + 16}, 5, v{q}',
                  f'v_add_u32 v{vW[1][i]}, {2 * WSLOT}, v{vW[0][i]}', f's_add_u32 s{S_T3}, s{S_T3}, 1']
        L += [f's_mul_i32 s{S_T3}, s{S_T2}, 160', f's_add_u32 s{S_T3}, s{S_T3}, {L_BIAS}',
              f'v_lshlrev_b32 v{q}, 3, v{g}', f'v_add_u32 v{vP}, s{S_T3}, v{q}',
              f'v_and_b32 v{q}, 15, v0', f'v_lshlrev_b32 v{q}, 7, v{q}',
              f'v_bfe_u32 v{i4}, v0, 1, 3', f'v_xor_b32 v{i4}, v{i4}, v{g}',
              f'v_lshl_add_u32 v{q}, v{i4}, 4, v{q}',
              f's_lshl_b32 s{S_T3}, s{S_C0}, 11', f'v_add_u32 v{vX[0]}, s{S_T3}, v{q}', f'v_xor_b32 v{vX[1]}, 64, v{vX[0]}',
              f's_lshl_b32 s{S_T2}, s{S_WAVE}, 8', f's_add_u32 s{S_T2}, s{S_T2}, {RB}',
              f'v_lshlrev_b32 v{vPc}, 2, v0', f'v_add_u32 v{vPc}, s{S_T2}, v{vPc}']

        def wld(u):
            return I(f'buffer_load_dwordx4 v{vWD[u]}, {srd(SRD_W)}, s{S_WSOFF} offen offset:{1024 * u} lds', tag='W')
        wadv = f's_add_u32 s{S_WSOFF}, s{S_WSOFF}, {32 * 3328}'

        def xld(f, pc, tag, slot=None):
            slot = f if slot is None else slot
            return [f's_add_u32 m0, s{S_XM0}, {slot * XSLOT + pc * 1024}',
                    I(f'buffer_load_dwordx4 v{VO + 2 * f + pc}, {srd(SRD_TAB)}, 0 offen lds', tag=tag)]
        pkreads = lambda off: [f'ds_read_b64 {vr(PK + 2 * tn, 2)}, v{vP} offset:{off + 32 * tn}' for tn in range(5)]

        def unp(dst):
            c = []
            for tn in range(5):
                for d in range(2):
                    c += [f'v_lshlrev_b32 v{dst(tn) + 2 * d}, 16, v{PK + 2 * tn + d}', f'v_and_b32 v{dst(tn) + 2 * d + 1}, 0xffff0000, v{PK + 2 * tn + d}']
            return c

        def reads(k8):
            par = k8 % 2
            sl = k8 % 4
            wo = (sl % 2) * WSLOT
            xo = ((k8 // 2) % 4) * XSLOT
            R = [f'ds_read_b128 {vr(XA + 16 * par + 4 * tm, 4)}, v{vX[par]} offset:{xo + tm * 2048}' for tm in range(4)]
            R += [f'ds_read_b64_tr_b16 {vr(WF + 20 * par + 4 * tn + 2 * rd, 2)}, v{vW[sl // 2][tn]} offset:{wo + rd * 4 * WP}' for tn in range(5) for rd in range(2)]
            return R

        trs = [[], []]
        nsk = [0]

        def flush():
            nonlocal L
            c = self.seq(L)
            trs[0] += c; trs[1] += c
            L = []

        def wstage_p(slot):
            nonlocal L
            nsk[0] += 1
            L += [f's_add_u32 m0, s{S_WMB}, {WR + slot * WSLOT}', f's_cmp_lg_u32 s{HH}, 0', wld(0), wld(1), f's_cbranch_scc1 L_wsk{nsk[0]}']
            flush()
            trs[0] += self.seq([wld(2)])
            L += [f'L_wsk{nsk[0]}:', wadv]
        L += [f'v_lshlrev_b32 v{PI}, 7, v{PI}']
        L += [f'buffer_load_dwordx4 {vr(T + 4 * pc, 4)}, v{vIdxOff}, {srd(SRD_IDX)}, 0 offen offset:{pc * 832}' for pc in range(2)] + ['s_barrier']
        L += [f'buffer_load_dword v255, v{PI}, {srd(SRD_TAB)}, 0 offen',
              f'v_lshlrev_b32 v{PI + 2}, 7, v{PI + 2}', f'buffer_load_dword v255, v{PI + 2}, {srd(SRD_TAB)}, 0 offen']
        L += self.stamp(6)
        wstage_p(0)
        L += [WaitTag(vm_tags=['BIAS'])] + pkreads(0) + unp(lambda tn: acc(tn, 0))
        L += [f'v_mov_b64 {vr(acc(tn, tm) + 2 * d, 2)}, {vr(acc(tn, 0) + 2 * d, 2)}' for tn in range(5) for tm in range(1, 4) for d in range(2)]
        for f in range(4):
            for pc in range(2):
                L.append(f'v_lshl_add_u32 v{VO + 2 * f + pc}, v{T + 4 * pc + f}, 7, v{vCh[pc]}')
                if f < 2:
                    L += xld(f, pc, 'X0' if f == 0 else 'X')
            if f == 0:
                L += self.stamp(7) + ['s_barrier']
                wstage_p(1)
        L += [f'buffer_load_dwordx4 {vr(ST[pc], 4)}, v{vIdxOff}, {srd(SRD_IDX)}, 0 offen offset:{pc * 832 + 12}' for pc in range(2)]
        L += [f's_mov_b32 s{S_LOOP}, 0', f's_mov_b32 s{S_IDXOFF}, 28']
        L.append(WaitTag(vm_tags=['X0'], lgkm0=True))
        L += self.stamp(1) + ['s_barrier'] + self.stamp(2)
        L += reads(0)
        wstage_p(2)
        L += xld(2, 0, 'X') + [f'v_mov_b32 v{VO + 7}, v{VO + 5}', f's_cmp_lg_u32 s{HH}, 0', 's_cbranch_scc1 L_dnn_h1']
        flush()

        def mf(tn, tm, par):
            a = acc(tn, tm)
            return f'v_mfma_f32_16x16x32_bf16 {vr(a, 4)}, {vr(WF + 20 * par + 4 * tn, 4)}, {vr(XA + 16 * par + 4 * tm, 4)}, {vr(a, 4)}'

        def step(n, inloop, half):
            n8 = n % 8
            par = n8 % 2
            NW = 3 - half
            M = [mf(tn, tm if tn % 2 == 0 else 3 - tm, par) for tn in range(5) for tm in range(4)]
            R, D_, E, V = [], [], [], []
            wst = lambda slot: [(f's_add_u32 m0, s{S_WMB}, {WR + slot * WSLOT}', wld(0))] + [(wld(u),) for u in range(1, NW - 1)] + [(wld(NW - 1), wadv)]
            if inloop or n < 51:
                R = reads((n8 + 1) % 8)
            if inloop:
                D_ += wst((n8 + WL) % 4)
                f = ((n8 + 7) % 8) // 2
                D_ += [tuple(xld(f, 1 - par, 'X', (f + WL) % 4))]
                if n8 == 0:
                    for ff in range(4):
                        for pc in range(2):
                            (V if half == 1 and o.vin else E).append(f'v_lshl_add_u32 v{VO + 2 * ff + pc}, v{ST[pc] + ff}, 7, v{vCh[pc]}')
                if n8 == 1:
                    for pc in range(2):
                        E.append(f'buffer_load_dwordx4 {vr(ST[pc], 4)}, v{vIdxOff}, {srd(SRD_IDX)}, s{S_IDXOFF} offen offset:{pc * 832}')
                    E.append(f's_add_u32 s{S_IDXOFF}, s{S_IDXOFF}, 16')
                if n8 == 4 and half == 1:
                    E += [tuple(vec(L_W2, SRD_W2))]
                if n8 == 7:
                    E += [f's_add_u32 s{S_LOOP}, s{S_LOOP}, 1', f's_cmp_lt_u32 s{S_LOOP}, 6']
                W_ = [WaitTag(allbut=('W', NW), lgkm0=True)]
            elif n == 48:
                W_ = [WaitTag(allbut=('W', NW), lgkm0=True)]
                D_ += wst(3)
                R = R + pkreads(WP)
                V = self.kconst(KC0, KC1, KONE)
                if half == 0:
                    E += self.tlb2(VO, vBL)
            elif n == 49:
                W_ = [WaitTag(vm0=True, lgkm0=True)]
                V = unp(lambda tn: W2F + 4 * tn) + self.winv(W2F, 20, KONE)[:4]
            elif n == 50:
                W_ = ['s_waitcnt lgkmcnt(0)']
                V = self.winv(W2F, 20, KONE)[4:18]
            else:
                W_ = []
                V = self.winv(W2F, 20, KONE)[18:]
            if V:
                nm_ = len(M) - (o.aov if half == 0 else 1)
                M = [(M[k],) + tuple(V[k * len(V) // nm_:(k + 1) * len(V) // nm_]) for k in range(nm_)] + M[nm_:]
            fill = interleave(R, D_) + E
            S = ['s_barrier'] if (inloop or n < 51) else []
            if half == 0:
                k = o.aov
                S += M[:len(M) - k] + interleave(M[len(M) - k:], fill[:2 * k]) + fill[2 * k:] + W_
            else:
                kb = o.bov
                if n == 51 and not inloop and o.eprio:
                    S += ['s_setprio 3']
                S += fill + M[:len(M) - kb] + W_ + M[len(M) - kb:]
                if n == 51 and not inloop and o.eprio == 1:
                    S += ['s_setprio 0']
            return S

        for half in range(2):
            th = trs[half]
            th += self.seq([f'L_dnn_h{half}:', WaitTag(allbut=('W', 3 - half), lgkm0=True)])
            body = self.seq([f'L_dnn_loop{half}:'])
            for n8 in range(8):
                S = step(n8, True, half)
                if n8 == 7:
                    if o.stamps and o.itst:
                        S = [f's_memtime s[{S_ST}:{S_ST + 1}]', f's_memrealtime s[{S_ST + 2}:{S_ST + 3}]', f's_add_u32 s{S_C0}, s{S_LOOP}, 8', 's_waitcnt lgkmcnt(0)',
                             f's_mov_b32 m0, s{S_C0}', f'v_writelane_b32 v252, s{S_ST}, m0', f'v_writelane_b32 v253, s{S_ST + 2}, m0'] + S
                    S += [f's_cbranch_scc1 L_dnn_loop{half}']
                body += self.seq(S)
            for it in range(6):
                th += body
            for n in range(48, 52):
                th += self.seq(step(n, False, half))
            if half == 0:
                th += self.seq(['s_branch L_epi'])
        p2 = lambda r: vr(r, 2)
        el = lambda tn, tm, d: (acc(tn, tm) + 2 * d, W2F + 4 * tn + 2 * d, SUMP + 2 * tm)
        L = ['L_epi:'] + self.stamp(3)
        L += [f's_lshl_b32 s{S_T1}, s{S_R}, 11', f's_and_b32 s{S_T3}, s{S_MB}, 3', f's_lshl_b32 s{S_T3}, s{S_T3}, 9', f's_add_u32 s{S_T1}, s{S_T1}, s{S_T3}',
              f's_lshr_b32 s{S_T0}, s{S_MB}, 2', f's_lshl_b32 s{S_T0}, s{S_T0}, 14', f's_add_u32 s{S_T1}, s{S_T1}, s{S_T0}',
              'v_lshlrev_b32 v3, 3, v0', f'v_add_u32 v2, {RB}, v3']
        L += self.gelu([[el(tn, tm, d) for tm in range(4)] for tn in range(5) for d in range(2)], WF, KC0, KC1, KONE)
        L += self.red4(SUMP) + [f'ds_write_b32 v{vPc}, v{SUMP}', 's_waitcnt lgkmcnt(0)'] + self.stamp(4) + self.stamp_flush()
        L += [f's_cmp_eq_u32 s{S_WAVE}, 0', 's_cbranch_scc1 L_dpub']
        tr = self.seq(L)
        self.seq(['s_barrier', 's_endpgm'])
        A = 64
        L = ['L_dpub:'] + self.build_srd(SRD_WS, S_WS, 0x10000000) + self.build_srd(SRD_DBG, S_DBG, 256) + self.cleared('L_dclr', 4, vBL) + ['s_barrier'] + self.stamp(17)
        L += [f'ds_read_b64 {vr(A + 2 * qq, 2)}, v2 offset:{qq * 512}' for qq in range(4)]
        L += [f'v_pk_add_f32 {p2(A)}, {p2(A)}, {p2(A + 2)}', f'v_pk_add_f32 {p2(A + 4)}, {p2(A + 4)}, {p2(A + 6)}', f'v_pk_add_f32 {p2(A)}, {p2(A)}, {p2(A + 4)}',
              f'v_and_b32 v{A}, -2, v{A}', f'v_and_b32 v{A + 1}, -2, v{A + 1}',
              f'buffer_store_dwordx2 {vr(A, 2)}, v3, {srd(SRD_WS)}, s{S_T1} offen sc1'] + self.padsig() + ['s_endpgm']
        return [trs[0] + tr + self.seq(L), trs[1] + tr]

    def rem(self):
        o = self.opt
        self.role = 'r'
        vW = [1, 2, 7, 8]
        vX = [11, 12]
        vWD, vCh, vT, VO = 13, [14, 15], 9, 24
        SUMP = 16
        IDX = 32
        XA, WF = 64, 96
        ACC = 160
        W2F, BF = 96, 112
        PK = 224
        KC0, KC1, KONE = 240, 242, 244
        g, i4, q = 246, 247, 248
        S_F = S_IDXOFF
        acc = lambda tn, tm: ACC + (tn * 4 + tm) * 4
        L = ['L_rem:', f's_lshr_b32 s{S_GRP}, s{S_WAVE}, 2', f's_and_b32 s{S_T0}, s2, 7', f's_lshl_b32 s{S_T0}, s{S_T0}, 3', f's_add_u32 s{S_T0}, s{S_T0}, s{S_WAVE}',
             f's_mul_i32 s{S_T0}, s{S_T0}, {64 * 104}', f's_lshl_b32 s{S_XM0}, s{S_WAVE}, 14',
             f'v_lshlrev_b32 v{q}, 4, v0', f'v_lshrrev_b32 v{g}, 4, v0',
             f'v_lshrrev_b32 v{i4}, 3, v0', f'v_mul_u32_u24 v{vWD}, 3328, v{i4}', f'v_and_b32 v{i4}, 2, v{i4}',
             f's_and_b32 s{S_T1}, s{S_WAVE}, 1', f's_lshl_b32 s{S_T1}, s{S_T1}, 2', f'v_or_b32 v{i4}, s{S_T1}, v{i4}',
             f'v_and_b32 v{vT}, 7, v0', f'v_xor_b32 v{i4}, v{i4}, v{vT}', f'v_lshl_add_u32 v{vWD}, v{i4}, 4, v{vWD}',
             f's_mul_i32 s{S_WSOFF}, s{S_WAVE}, {8 * 3328}', f's_add_u32 s{S_WSOFF}, s{S_WSOFF}, 3200',
             f's_lshl_b32 s{S_WMB}, s{S_WAVE}, 10', f's_add_u32 s{S_WMB}, s{S_WMB}, {RWR}',
             's_waitcnt lgkmcnt(0)']
        L += self.build_srd(SRD_IDX, S_IDX, 4096 * 104)
        for u in range(7):
            L += [f's_add_u32 m0, s{S_XM0}, {8192 + u * 1024}', I(f'buffer_load_dwordx4 v{q}, {srd(SRD_IDX)}, s{S_T0} offen lds', tag='I'),
                  f's_add_u32 s{S_T0}, s{S_T0}, 1024']
        L += self.build_srd(SRD_W, S_W1, 1664 * 3328)
        wld = lambda slot: [f's_add_u32 m0, s{S_WMB}, {slot * 8192}', I(f'buffer_load_dwordx4 v{vWD}, {srd(SRD_W)}, s{S_WSOFF} offen lds', tag='W'),
                            f's_add_u32 s{S_WSOFF}, s{S_WSOFF}, {64 * 3328}']
        L += wld(0)
        L += self.build_srd(SRD_B1, S_B1, 3328) + self.build_srd(SRD_W2, S_W2, 3328) + self.build_srd(SRD_TAB, S_TAB, 100000 * 128)
        L += self.stamp0()
        L += [f'v_xor_b32 v{q}, v{vT}, v{g}', f'v_lshlrev_b32 v{vCh[0]}, 4, v{q}', f'v_xor_b32 v{vCh[1]}, 64, v{vCh[0]}',
              f'v_bfe_u32 v{i4}, v0, 2, 2', f'v_lshl_add_u32 v{q}, v{g}, 3, v{i4}', f'v_lshlrev_b32 v{q}, 7, v{q}',
              f'v_and_b32 v{i4}, 3, v0', f'v_lshl_add_u32 v{q}, v{i4}, 3, v{q}', f'v_add_u32 v{q}, {RWR}, v{q}',
              f'v_bfe_u32 v{i4}, v0, 3, 2', f'v_lshl_add_u32 v{vW[0]}, v{i4}, 5, v{q}']
        L += [f'v_xor_b32 v{vW[i]}, {32 * i}, v{vW[0]}' for i in range(1, 4)]
        L += [f'v_and_b32 v{q}, 15, v0', f'v_lshlrev_b32 v{q}, 7, v{q}',
              f'v_bfe_u32 v{i4}, v0, 1, 3', f'v_xor_b32 v{i4}, v{i4}, v{g}', f'v_lshl_add_u32 v{q}, v{i4}, 4, v{q}',
              f'v_add_u32 v{vX[0]}, s{S_XM0}, v{q}', f'v_xor_b32 v{vX[1]}, 64, v{vX[0]}',
              f'v_lshrrev_b32 v{i4}, 3, v0', f'v_lshl_add_u32 v{q}, v{vT}, 3, v{i4}', f'v_mul_u32_u24 v{q}, 104, v{q}', f'v_add_u32 v{q}, s{S_XM0}, v{q}']
        L += self.kconst(KC0, KC1, KONE) + [f'v_mov_b32 v{r}, 0' for r in range(ACC, ACC + 64)] + [WaitTag(vm_tags=['I'])]
        L += [f'ds_read_b64 {vr(IDX + 2 * k, 2)}, v{q} offset:{8192 + 8 * k}' for k in range(13)]

        def xld(src, slot, h=None):
            c = [tuple(f'v_add_u32_dpp v{VO + pc}, v{src}, v{vCh[pc % 2]} row_newbcast:{8 * hh + pc} row_mask:0xf bank_mask:{hex(3 << (2 * hh))}'
                       for hh in range(2) for pc in range(4 * k, 4 * k + 4)) for k in range(2)]
            d = [(f's_add_u32 m0, s{S_XM0}, {slot * 8192 + pc * 1024}',
                  I(f'buffer_load_dwordx4 v{VO + pc}, {srd(SRD_TAB)}, 0 offen lds', tag='X')) for pc in range(8)]
            return c[:1] + d[:4] + c[1:] + d[4:] if h is None else c[h:h + 1] + d[4 * h:4 * h + 4]
        L += [f'v_mov_b32 v{VO + pc}, 0' for pc in range(8)] + [f'v_mov_b32 v{IDX + k}, 0x7f000000' for k in (26, 27)]
        L += [f'v_lshlrev_b32 v{IDX}, 7, v{IDX}'] + xld(IDX, 0)
        L += wld(1) + [f'v_lshlrev_b32 v{IDX + k}, 7, v{IDX + k}' for k in range(25, 0, -1)] + xld(IDX + 1, 1) + wld(2)
        L += [f'v_lshlrev_b32 v{q}, 3, v{g}']

        rdx = lambda fp, h: [f'ds_read_b128 {vr(XA + 16 * h + 8 * t + 4 * par, 4)}, v{vX[par]} offset:{fp * 8192 + (2 * h + t) * 2048}' for t in (1, 0) for par in (1, 0)]
        rdw = lambda fp: [f'ds_read_b64_tr_b16 {vr(WF + 32 * fp + 8 * tn + 4 * par + 2 * rd, 2)}, v{vW[tn]} offset:{fp * 8192 + par * 4096 + rd * 512}'
                          for tn in range(4) for par in range(2) for rd in range(2)]

        def mm(fp, h):
            return [f'v_mfma_f32_16x16x32_bf16 {vr(acc(tn, 2 * h + t), 4)}, {vr(WF + 32 * fp + 8 * tn + 4 * par, 4)}, {vr(XA + 16 * h + 8 * t + 4 * par, 4)}, {vr(acc(tn, 2 * h + t), 4)}'
                    for tn in range(4) for t in range(2) for par in range(2)]
        L += [f's_mov_b32 s{S_F}, 3', f'v_mov_b32 v{vT}, v{IDX + 2}'] + list(xld(vT, 0, 0)[0])
        L += [WaitTag(allbut=('X', 12)), 's_barrier'] + self.stamp(2) + rdx(0, 0) + rdw(0)
        tr = self.seq(L)

        def phase(M, R, Dm, V):
            gp = [[] for _ in M]
            for k, x in enumerate(R):
                gp[k * o.rrd // max(len(R), 1)].append(x)
            for k, x in enumerate(Dm):
                gp[1 + k * 15 // len(Dm)].append(x)
            v0 = o.rrd if R else 0
            for k, x in enumerate(V):
                gp[v0 + k * (16 - v0) // len(V)].append(x)
            return [(m,) + tuple(g_) for m, g_ in zip(M, gp)]
        post = []
        for k in range(8):
            post += [f'v_lshlrev_b32 v{BF + 2 * k}, 16, v{PK + k}', f'v_and_b32 v{BF + 2 * k + 1}, 0xffff0000, v{PK + k}',
                     f'v_lshlrev_b32 v{W2F + 2 * k}, 16, v{PK + 8 + k}', f'v_and_b32 v{W2F + 2 * k + 1}, 0xffff0000, v{PK + 8 + k}']
        post += self.winv(W2F, 16, KONE)
        vld = [f'buffer_load_dwordx2 {vr(PK + 2 * tn, 2)}, v{q}, {srd(SRD_B1)}, 0 offen offset:{3200 + 32 * tn}' for tn in range(4)]
        vld += [f'buffer_load_dwordx2 {vr(PK + 8 + 2 * tn, 2)}, v{q}, {srd(SRD_W2)}, 0 offen offset:{3200 + 32 * tn}' for tn in range(4)]

        def field(fp, last):
            L = [WaitTag(allbut=('W', 0 if last else 1)), WaitTag(allbut=('X', 0 if last and fp else 8))] + ([] if last and fp else ['s_barrier'])
            if fp == 1 and not last:
                L += [f'v_xor_b32 v{vW[i]}, 16384, v{vW[i]}' for i in range(4)]
            sx = (f's_xor_b32 s{S_WMB}, s{S_WMB}, 16384',)
            wl = [sx + tuple(wld(1)) + sx] if fp == 0 else [tuple(wld(0)) + sx]
            rw = rdw(1 - fp)
            mv = [(f's_set_gpr_idx_on s{S_F}, gpr_idx(SRC0)', 's_nop 0', f'v_mov_b32 v{vT}, v{IDX}', 's_set_gpr_idx_off', f's_add_u32 s{S_F}, s{S_F}, 1')]
            if not last:
                L += phase(mm(fp, 0), rdx(fp, 1) + rw[:8], xld(vT, fp, 0)[1:], list(xld(vT, fp, 1)[0]))
                L += [WaitTag(allbut=('X', 8))]
                L += phase(mm(fp, 1), rdx(1 - fp, 0) + rw[8:], xld(vT, fp, 1)[1:] + wl, mv + list(xld(vT, fp, 0)[0]))
            elif fp == 0:
                L += phase(mm(fp, 0), rdx(fp, 1) + rw[:8], vld, [])
                L += [WaitTag(allbut=('X', 4))]
                L += phase(mm(fp, 1), rdx(1 - fp, 0) + rw[8:], [], [])
            else:
                L += phase(mm(fp, 0), rdx(fp, 1), [], []) + phase(mm(fp, 1), [], [], post[:32])
            return L
        L = ['L_rem_loop:'] + field(0, False) + field(1, False) + [f's_cmp_lt_u32 s{S_F}, 27', 's_cbranch_scc1 L_rem_loop']
        L = [x for x in flat(L) if not any((x.text if isinstance(x, I) else x).startswith(d) for d in o.rdrop.split(',') if d)]
        body = self.seq(L)
        body2 = self.seq(field(0, True) + field(1, True))
        el = lambda tn, tm, d: (acc(tn, tm) + 2 * d, W2F + 4 * tn + 2 * d, SUMP + 2 * tm)
        L = self.stamp(3) + self.tlb2(4, 5) + self.build_srd(SRD_OUT, S_OUT, 8192) + [f's_load_dword s{S_BOUT}, s[{S_BO}:{S_BO + 1}], 0',
             f'buffer_load_dword v255, v4, {srd(SRD_OUT)}, 0 offen',
             f's_and_b32 s{S_T2}, s2, 7', f's_lshl_b32 s{S_T0}, s{S_T2}, 14', f's_lshl_b32 s{S_T1}, s{S_WAVE}, 8', f's_add_u32 s{S_T0}, s{S_T0}, s{S_T1}',
             f's_add_u32 s{S_T1}, s{S_T0}, 4096', f's_add_u32 s{S_T3}, s{S_T0}, 8192',
             f's_lshl_b32 s{S_T2}, s{S_T2}, 3', f's_add_u32 s{S_T2}, s{S_T2}, s{S_WAVE}', f's_lshl_b32 s{S_T2}, s{S_T2}, 7',
             'v_lshlrev_b32 v3, 2, v0', 'v_lshlrev_b32 v2, 1, v0', 's_waitcnt lgkmcnt(0)', f's_lshl_b32 s{S_BOUT}, s{S_BOUT}, 16']
        L += post[32:]
        L += [f'v_pk_add_f32 {vr(acc(tn, tm) + 2 * d, 2)}, {vr(acc(tn, tm) + 2 * d, 2)}, {vr(BF + 4 * tn + 2 * d, 2)}' for tn in range(4) for tm in range(4) for d in range(2)]
        L += self.gelu([[el(tn, tm, d) for tm in range(4)] for tn in range(4) for d in range(2)], XA, KC0, KC1, KONE)
        L += self.red4(SUMP) + [f'v_add_f32 v{SUMP}, s{S_BOUT}, v{SUMP}'] + self.stamp(4) + self.cleared('L_rclr', 4, 5) + self.padsig()
        A = 64
        L += [f's_mov_b32 s{S_LOOP}, 0x40000', 'L_poll:', f's_sub_u32 s{S_LOOP}, s{S_LOOP}, 1', 's_cbranch_scc1 L_end']
        L += [f'buffer_load_dword v{A + k}, v3, {srd(SRD_WS)}, s{(S_T0, S_T1, S_T3)[k // 2]} offen offset:{(k % 2) * 2048} sc1' for k in range(6)]
        L += [f'v_max3_u32 v{A + 8}, v{A}, v{A + 1}, v{A + 2}', f'v_max3_u32 v{A + 9}, v{A + 3}, v{A + 4}, v{A + 5}', f'v_max_u32 v{A + 8}, v{A + 8}, v{A + 9}',
              f'v_cmp_eq_u32 vcc, -1, v{A + 8}', 's_cbranch_vccnz L_poll']
        L += [f'v_add_f32 v{A}, v{A}, v{A + 1}', f'v_add_f32 v{A + 2}, v{A + 2}, v{A + 3}', f'v_add_f32 v{A + 4}, v{A + 4}, v{A + 5}',
              f'v_add_f32 v{A}, v{A}, v{A + 2}', f'v_add_f32 v{A + 4}, v{A + 4}, v{SUMP}', f'v_add_f32 v{A}, v{A}, v{A + 4}',
              f'v_cvt_pk_bf16_f32 v{A}, v{A}, v{A}']
        if o.padat:
            L += ['L_padspin:', f'buffer_load_dword v7, v8, {srd(SRD_DBG)}, 0 offen sc1', 's_waitcnt vmcnt(0)', 's_memrealtime s[86:87]',
                  'v_readfirstlane_b32 s88, v7', 's_waitcnt lgkmcnt(0)', 's_cmp_eq_u32 s88, 0', 's_cbranch_scc1 L_padspin'] + (['s_not_b32 s88, s88'] if o.padmin else []) + [
                  's_sub_u32 s86, s86, s88', 's_cmp_lt_i32 s86, 6000', 's_cbranch_scc1 L_padspin']
        L += [f'buffer_store_short v{A}, v2, {srd(SRD_OUT)}, s{S_T2} offen'] + self.stamp(5) + self.stamp_flush() + ['s_endpgm']
        return [tr + body * 3 + body2 + self.seq(L)]

    def cin(self):
        o = self.opt
        self.role = 'c'
        cw = S_CW
        S_BCUR, S_BD, S_EXP, S_EXPC, S_PREV, S_SC, S_PH = 74, 75, 48, 49, 50, 51, 97
        S_CHK = S_M26
        vFA, vFR, vOne, vF, vFG, vFGa = 1, 2, 3, 4, 5, 6
        vRaw, vLin, vLinB, vXw, vX1, vX2, vSh, vAcc, vOr, vSI, vXi, vC16, vPWL, vPXL, PXR = range(7, 22)
        FT, XI, aD, aS, aLc, aC = 22, 24, 28, 29, 30, 31
        RAW, X, RZ, D = 32, 40, 52, 68
        WA, WB, WC, WS_, WL = 84, 128, 172, 216, 240
        Da, Db, Dc, Ds = D, D + 4, D + 8, D + 12
        T = 40
        half, i32, t3, t4, t5, vg, vm = T + 1, T + 2, T + 3, T + 4, T + 5, T + 6, T + 7
        vStg = 48
        GB = 49
        vMx, vWr, vL6, vL, vLw, vWo = range(62, 68)
        AD = 68
        vA3, vBs0, vBs1a, vBs1b, vUw, vV2w, vE, V3T = 240, 241, 242, 243, 244, 245, 246, 81
        BALL, UP, AFR, DALL = 84, 84, 132, 140
        BT, SUM, OUT = 216, 84, 132
        XJ = 204
        F_W3, F_W2, F_RDY, F_M, M_X, F_PEEL = 0, 4, 8, 16, 20, 12
        nsync = [0]

        def sig(off, A=vFA, **kw):
            return [WaitTag(lgkm0=True, **kw), f'ds_add_u32 v{A}, v{vOne} offset:{off}']

        def wait(off, tgt, R=vFR):
            nsync[0] += 1
            lab = f'L_csync{nsync[0]}'
            return [f'{lab}:', f'ds_read_b32 v{vF}, v{R} offset:{off}', 's_waitcnt lgkmcnt(0)',
                    f'v_cmp_gt_u32 vcc, {tgt}, v{vF}', f's_cbranch_vccnz {lab}']

        def dppred(op, r):
            return [f'{op}_dpp v{r}, v{r}, v{r} {ctl} row_mask:{rm} bank_mask:0xf'
                    for (ctl, rm) in (('row_shr:1', '0xf'), ('row_shr:2', '0xf'), ('row_shr:4', '0xf'), ('row_shr:8', '0xf'),
                                      ('row_bcast:15', '0xa'), ('row_bcast:31', '0xc'))]

        def absmax(dst, regs):
            c = [f'v_max3_f32 v{dst}, abs(v{regs[0]}), abs(v{regs[1]}), abs(v{regs[2]})']
            k = 3
            while k < len(regs):
                b = regs[k + 1] if k + 1 < len(regs) else regs[k]
                c.append(f'v_max3_f32 v{dst}, v{dst}, abs(v{regs[k]}), abs(v{b})')
                k += 2
            return c

        def waitmax(R, off, dst_e):
            nsync[0] += 1
            lab = f'L_csync{nsync[0]}'
            return [f'{lab}:', f'ds_read_b64 {vr(T, 2)}, v{R} offset:{off}', 's_waitcnt lgkmcnt(0)',
                    f'v_cmp_gt_u32 vcc, 4, v{T}', f's_cbranch_vccnz {lab}',
                    f'v_readfirstlane_b32 s{dst_e}, v{T + 1}',
                    f's_lshr_b32 s{dst_e}, s{dst_e}, 23', f's_sub_i32 s{dst_e}, 141, s{dst_e}', f's_min_i32 s{dst_e}, s{dst_e}, 40']

        S_C, S_DYN, S_ST0, S_TK = S_R, S_MB, 98, 99
        vTk, vZ = 250, 251
        L = ['L_cin:', f's_and_b32 s{S_T0}, s{S_MB}, 3', f's_mul_i32 s{S_T0}, s{S_T0}, 3', f's_add_u32 s{S_C}, s{S_T0}, s{S_R}',
             f's_sub_u32 s{S_C}, s{S_C}, 6', 's_cbranch_scc1 L_rem',
             f's_and_b32 s{cw}, s{S_WAVE}, 3', f's_lshr_b32 s{S_GRP}, s{S_WAVE}, 2',
             f's_lshl_b32 s{S_GW}, s{S_C}, 3', f's_add_u32 s{S_GW}, s{S_GW}, s{S_WAVE}',
             f's_mul_i32 s{S_T0}, s{S_GW}, {10 * 128}',
             f'v_min_u32 v{T}, 9, v0', f'v_lshlrev_b32 v{T}, 7, v{T}',
             f'v_lshlrev_b32 v{vStg}, 4, v0',
             f's_lshl_b32 s{S_STG}, s{cw}, 10',
             f's_cmp_eq_u32 s{cw}, 2', f's_cselect_b64 s[{S_EX}:{S_EX + 1}], 0x1fffff, -1',
             f's_cmp_eq_u32 s{cw}, 3', f's_cselect_b32 s{S_STG9}, 0, {8 * 4096}',
             f's_add_u32 s{S_STG9}, s{S_STG9}, s{S_STG}',
             f's_mul_i32 s{S_T1}, s{S_C}, 2979', f's_lshr_b32 s{S_T1}, s{S_T1}, 6', f's_mul_i32 s{S_ST0}, s{S_C}, 44',
             f's_and_b32 s{S_T2}, s2, 7', f's_add_u32 s{S_RC}, s{S_ST0}, s{S_WAVE}', f's_lshl_b32 s{S_RC}, s{S_RC}, 2',
             f's_lshl_b32 s{S_ST0}, s{S_T2}, 14', f's_add_u32 s{S_RC}, s{S_RC}, s{S_ST0}', f's_add_u32 s{S_RC}, s{S_RC}, {5 * 2048}', f's_mul_i32 s{S_ST0}, s{S_C}, 44', f's_lshl_b32 s{S_PX}, s{S_T2}, 9', f's_add_u32 s{S_SAMP}, s{S_PX}, s{S_ST0}', f's_add_u32 s{S_PX}, s{S_PX}, s{S_T1}',
             f's_add_u32 s{S_SAMP}, s{S_SAMP}, s{S_WAVE}', f's_mul_i32 s{S_SAMP}, s{S_SAMP}, 104',
             f's_lshl_b32 s{S_ST0}, s{S_C}, 2', f's_add_u32 s{S_ST0}, s{S_ST0}, s{S_WAVE}', f's_add_u32 s{S_ST0}, s{S_ST0}, s{S_T2}', f's_and_b32 s{S_ST0}, s{S_ST0}, 7',
             f's_mul_i32 s{S_ST0}, s{S_ST0}, {16384 + o.shs}', f's_add_u32 s{S_ST0}, s{S_ST0}, {6 * 2048}',
             f's_sub_u32 s{S_LOOP}, 6, s{S_GRP}', f's_lshl_b32 s{S_TK}, s{S_GRP}, 1', f's_mov_b32 s{S_DYN}, -1',
             f'v_lshrrev_b32 v{t3}, 3, v0', f'v_min_u32 v{t3}, 6, v{t3}', f'v_lshlrev_b32 v{vXi}, 4, v{t3}',
             f's_mul_i32 s{S_T2}, s{S_T2}, 88', f's_add_u32 s{S_T2}, s{S_GW}, s{S_T2}', f's_mov_b32 s{S_T3}, 704',
             f'v_mov_b32 v{t4}, s{S_T2}', f'v_mad_u32_u24 v{vPWL}, v0, s{S_T3}, v{t4}',
             f's_mul_i32 s{S_T2}, s{S_GW}, 104', f's_sub_u32 s{S_T2}, s{S_T2}, {13 * 26 - 25}',
             f'v_min_u32 v{t4}, {12 + o.pfr}, v0', f'v_mul_u32_u24 v{t5}, 26, v{t4}', f'v_add_u32 v{t5}, s{S_T2}, v{t5}',
             f'v_cmp_lt_u32 vcc, 12, v{t4}', f'v_cndmask_b32 v{vPWL}, v{vPWL}, v{t5}, vcc', f'v_lshlrev_b32 v{vPWL}, 7, v{vPWL}',
             f's_mov_b32 s{S_PW}, {o.pfe0 * 832 * 128}',
             f'v_mov_b32 v{vFR}, {L_FLG}', f'v_lshlrev_b32 v{vFA}, 20, v0', f'v_add_u32 v{vFA}, {L_FLG}, v{vFA}',
             f'v_and_b32 v{t4}, 7, v0', f'v_lshlrev_b32 v{vC16}, 4, v{t4}', f'v_and_b32 v{t4}, 15, v0', f'v_lshl_add_u32 v{t4}, v{t4}, 2, v{vFR}',
             f'v_mov_b32 v{vOne}, 0', f'ds_write_b32 v{t4}, v{vOne}',
             f'v_lshrrev_b32 v{half}, 5, v0', f'v_and_b32 v{i32}, 31, v0',
             's_waitcnt lgkmcnt(0)', f'v_mov_b32 v{vOne}, 1']
        L += self.tlb1(t5, 255)
        L += self.build_srd(SRD_CIN, S_CIN, 105456)
        L += [f'buffer_load_dword v255, v{T}, {srd(SRD_CIN)}, s{S_T0} offen']
        L += self.build_srd(SRD_W, S_W1, 1664 * 3328)

        def pfw():
            return [f's_mov_b64 exec, {(1 << (13 + o.pfr)) - 1}', f'buffer_load_dword v255, v{vPWL}, {srd(SRD_W)}, s{S_PW} offen', 's_mov_b64 exec, -1',
                    f's_add_u32 s{S_PW}, s{S_PW}, {352 * 3328}']
        L += ['s_barrier'] + pfw()
        L += self.build_srd(SRD_IDX, S_IDX, 4096 * 104)

        def pfx_a():
            return [f'buffer_load_dword v{PXR}, v{vPXL}, {srd(SRD_IDX)}, s{S_PX} offen',
                    f's_cmp_eq_u32 s{S_PX}, s{S_PXE}', f's_cselect_b32 s{S_PXE}, 0x7000000, s{S_PXE}',
                    f's_cselect_b32 s{S_PX}, 0x7000000, s{S_PX}',
                    f's_add_u32 s{S_PX}, s{S_PX}, 24', f's_min_u32 s{S_PX}, s{S_PX}, s{S_PXE}']

        def pfx_b():
            return [f'v_lshlrev_b32 v{PXR}, 7, v{PXR}', f'buffer_load_dword v255, v{PXR}, {srd(SRD_TAB)}, 0 offen']

        def xidx(XI=XI, off=0, adv=True):
            c = [f'buffer_load_dwordx4 {vr(XI, 4)}, v{vXi}, {srd(SRD_IDX)}, s{S_SAMP} offen offset:{off}']
            if adv:
                c.append(f's_add_u32 s{S_SAMP}, s{S_SAMP}, {8 * 104}')
            return c

        def xdma(XI=XI, lo=0):
            c = []
            for u in range(4):
                if u == 2:
                    c += ['s_mov_b32 exec_hi, 0x0000ffff']
                c += [f'v_lshl_add_u32 v{XI + u}, v{XI + u}, 7, v{vC16}']
                if u == 3:
                    c += ['s_mov_b32 exec_lo, 0', 's_mov_b32 exec_hi, 0xffff0000', f'v_mov_b32 v{XI + 3}, v{XI + 1}', f'v_mov_b32 v{XI + 2}, v{XI + 1}',
                          's_mov_b32 exec_hi, 0x00ff0000', f'v_mov_b32 v{XI + 2}, v{XI}', 's_mov_b64 exec, -1']
            for u in range(4):
                c += [f's_add_u32 m0, s{S_BCUR}, {u * XPI + lo}']
                if u == 3:
                    c += ['s_mov_b32 exec_hi, 0x00ffffff']
                c.append(I(f'buffer_load_dwordx4 v{XI + u}, {srd(SRD_TAB)}, 0 offen lds', tag='XB'))
                if u == 3:
                    c += ['s_mov_b32 exec_hi, -1']
            return c
        wco = self.build_srd(SRD_WCO, S_WCO, 156) + [f's_mov_b32 m0, {L_WCO}', 's_mov_b64 exec, 0x7ff',
              I(f'buffer_load_dwordx4 v{vStg}, {srd(SRD_WCO)}, 0 offen lds', tag='STG3'),
              's_mov_b64 exec, -1']
        L += self.stamp0()

        def stage(dst, goff, tag):
            st = []
            for m in range(8):
                st.append((f's_add_u32 m0, s{S_STG}, {dst + m * 4096}', f's_add_u32 s{S_TW}, s{S_STG}, {goff + m * 4096}',
                           I(f'buffer_load_dwordx4 v{vStg}, {srd(SRD_CIN)}, s{S_TW} offen lds', tag=tag)))
            st.append((f's_add_u32 m0, s{S_STG9}, {dst}', f's_add_u32 s{S_TW}, s{S_STG9}, {goff}',
                       f's_mov_b64 exec, s[{S_EX}:{S_EX + 1}]',
                       I(f'buffer_load_dwordx4 v{vStg}, {srd(SRD_CIN)}, s{S_TW} offen lds', tag=tag),
                       's_mov_b64 exec, -1'))
            return st

        L += [f's_cmp_lg_u32 s{S_GRP}, 0', 's_cbranch_scc1 L_g1a']
        c0 = self.seq(L)
        st2 = stage(A1, 0, 'STG2') if o.w1first else stage(A2, 35152, 'STG2')
        g0a = self.seq(wco + xidx(XJ, 4 * 104, False) + xidx() + stage(A3, 70304, 'STG3') + st2[:o.sigat] + ['s_branch L_addrc'])
        L = ['L_g1a:', 's_setprio 1',
             f'v_bfe_u32 v{t3}, v0, 2, 2', f'v_lshl_add_u32 v{t3}, v{half}, 3, v{t3}',
             f'v_bfe_u32 v{t4}, v0, 4, 1', f'v_lshlrev_b32 v{t4}, 5, v{t4}',
             f'v_and_b32 v{t5}, 3, v0', f'v_lshl_add_u32 v{t4}, v{t5}, 3, v{t4}',
             f'v_lshl_add_u32 v{vA3}, v{t3}, 6, v{t4}', f'v_add_u32 v{vA3}, {V3OFF}, v{vA3}',
             f's_lshl_b32 s{S_T0}, s{cw}, 6', f's_add_u32 s{S_T0}, s{S_T0}, {A2}',
             f'v_add_u32 v{t4}, s{S_T0}, v{t4}',
             f'v_mul_u32_u24 v{t5}, 1352, v{t3}', f'v_add_u32 v{vBs0}, v{t4}, v{t5}',
             f'v_add_u32 v{t5}, 16, v{t3}', f'v_min_u32 v{t5}, 25, v{t5}',
             f'v_mul_u32_u24 v{t5}, 1352, v{t5}', f'v_add_u32 v{vBs1a}, v{t4}, v{t5}',
             f'v_add_u32 v{t5}, 20, v{t3}', f'v_min_u32 v{t5}, 25, v{t5}',
             f'v_mul_u32_u24 v{t5}, 1352, v{t5}', f'v_add_u32 v{vBs1b}, v{t4}, v{t5}',
             f's_lshl_b32 s{S_T0}, s{cw}, 5', f'v_add_u32 v{vE}, s{S_T0}, v{i32}',
             f'v_mul_u32_u24 v{t3}, 52, v{vE}', f'v_lshl_add_u32 v{t3}, v{half}, 3, v{t3}',
             f'v_add_u32 v{vUw}, {A3}, v{t3}',
             f'v_lshlrev_b32 v{t3}, 1, v{vE}', f'v_add_u32 v{vV2w}, {V2OFF}, v{t3}',
             f'v_mov_b32 v{BT}, 0', f'v_mov_b32 v{BT + 1}, 0',
             f'v_lshlrev_b32 v{t3}, 3, v0', f'v_add_u32 v{t4}, {V3OFF + 26 * 64}, v{t3}',
             's_mov_b32 exec_hi, 0xffff', f'ds_write_b64 v{t4}, {vr(BT, 2)}', 's_mov_b32 exec_hi, -1']
        L += [f'v_lshl_add_u32 v{t3}, v{half}, 7, v{vE}', f's_mov_b32 s{S_T1}, 2521', f's_mov_b32 s{S_T2}, {V3OFF}']
        for p_ in range(3):
            L += [f'v_mul_u32_u24 v{t4}, s{S_T1}, v{t3}', f'v_lshrrev_b32 v{t4}, 16, v{t4}',
                  f'v_mad_u32_u24 v{t4}, v{t4}, 12, s{S_T2}', f'v_lshl_add_u32 v{AD + p_}, v{t3}, 1, v{t4}']
            if p_ < 2:
                L += [f'v_add_u32 v{t3}, 256, v{t3}']
        L += [f'v_mov_b32 v{t4}, 676', f'v_cmp_gt_u32 s[{S_MASK}:{S_MASK + 1}], v{t4}, v{t3}']
        for m in range(6):
            L += [f'v_add_u32 v{t3}, {128 * m}, v{vE}', f'v_mul_u32_u24 v{t4}, s{S_T1}, v{t3}', f'v_lshrrev_b32 v{t4}, 16, v{t4}',
                  f'v_lshl_add_u32 v{t4}, v{t4}, 2, v{vUw}', f'v_add_u32 v{AD + 4 + m}, {m * 6656}, v{t4}']
        L += [f'v_lshlrev_b32 v{AD + 10}, 4, v{half}', f'v_add_u32 v{AD + 10}, {L_WCO + 104}, v{AD + 10}',
              f'v_lshlrev_b32 v{AD + 11}, 1, v0', f'v_add_u32 v{AD + 11}, {L_WCO}, v{AD + 11}',
              f'v_lshlrev_b32 v{AD + 12}, 6, v0', f'v_add_u32 v{AD + 12}, {V3OFF + 52}, v{AD + 12}']
        g1a = self.seq(L)

        N_ = (0, 1, 2, 3)
        classes = []
        for d in ZD:
            for (a, ha, b, hb) in d:
                if cls(a, ha)[1] == N_ and cls(b, hb)[1] != N_ and cls(b, hb)[1] not in classes:
                    classes.append(cls(b, hb)[1])
        assert len(classes) == 5
        base = {(N_, N_): GB}
        for k, c in enumerate(classes):
            base[(N_, c)] = GB + 1 + 2 * k
            base[(c, N_)] = GB + 2 + 2 * k
        SP1, SP2 = GB + 11, GB + 12
        pk4 = lambda t: '0x%08x' % sum((x & 0xff) << (8 * k) for k, x in enumerate(t))
        L = ['L_addrc:',
             f's_and_b32 s{S_T2}, s{S_WAVE}, 1', f's_lshl_b32 s{S_T2}, s{S_T2}, 1', f'v_add_u32 v{vg}, s{S_T2}, v{half}',
             f'v_min_u32 v{t3}, 25, v{i32}',
             f's_mul_i32 s{S_T0}, s{S_GRP}, {UST - 1352}', f's_add_u32 s{S_T0}, s{S_T0}, 1352',
             f's_mul_i32 s{S_T1}, s{S_GRP}, {A3 - A1}', f's_add_u32 s{S_T1}, s{S_T1}, {A1}',
             f'v_mul_u32_u24 v{t4}, s{S_T0}, v{t3}', f'v_add_u32 v{t4}, s{S_T1}, v{t4}',
             f'v_mul_u32_u24 v{vL}, 52, v{t3}', f'v_lshl_add_u32 v{vL}, v{vg}, 1, v{vL}', f'v_add_u32 v{vL}, {V2OFF}, v{vL}',
             f'v_lshlrev_b32 v{vWo}, 1, v{t3}', f'v_add_u32 v{vWo}, {L_WCO}, v{vWo}',
             f'v_mad_u32_u24 v{SP1}, v{vg}, 52, v{t4}',
             f'v_lshl_add_u32 v{SP2}, v{vg}, 1, v{t4}',
             f'v_lshl_add_u32 v{GB}, v{vg}, 1, v{SP1}',
             f'v_lshlrev_b32 v{t3}, 3, v{vg}']
        for k, c in enumerate(classes):
            L += [f's_mov_b32 s{S_T0}, {pk4(c)}', f'v_bfe_i32 v{t5}, s{S_T0}, v{t3}, 8',
                  f'v_lshl_add_u32 v{GB + 1 + 2 * k}, v{t5}, 1, v{SP1}', f'v_mad_i32_i24 v{GB + 2 + 2 * k}, v{t5}, 52, v{SP2}']
        L += [f's_mov_b32 s{S_T0}, {pk4((0, 54, 2, 0))}', f'v_bfe_u32 v{t5}, s{S_T0}, v{t3}, 8', f'v_add_u32 v{SP1}, v{t5}, v{t4}',
              f'v_add_u32 v{SP2}, 52, v{t4}', f'v_mov_b32 v{vm}, {OOB}',
              f'v_cmp_eq_u32 vcc, 3, v{vg}', f'v_cndmask_b32 v{SP1}, v{SP1}, v{vm}, vcc', f'v_cndmask_b32 v{vWo}, v{vm}, v{vWo}, vcc',
              f'v_cmp_eq_u32 vcc, 2, v{vg}', f'v_cndmask_b32 v{SP2}, v{vm}, v{SP2}, vcc',
              f'v_cmp_gt_u32 vcc, 2, v{vg}', f'v_cndmask_b32 v{vL6}, v{vm}, v{vL}, vcc']
        L += [f's_lshr_b32 s{S_T1}, s{cw}, 1', f's_mul_i32 s{S_T1}, s{S_T1}, {6 * 1024}',
              f's_mul_i32 s{S_T0}, s{S_GRP}, {TB - TA}', f's_add_u32 s{S_T0}, s{S_T0}, {TA}',
              f's_lshl_b32 s{S_T2}, s{S_GRP}, 4', f's_sub_u32 s{S_T3}, s{S_T2}, {LL + 1024 + 16 - TC}',
              f'v_lshlrev_b32 v{t5}, 8, v{vg}',
              f'v_lshl_add_u32 v{t3}, v{i32}, 4, v{t5}', f'v_add_u32 v{vWr}, s{S_T0}, v{t3}', f'v_add_u32 v{vLw}, {LL}, v{t3}',
              f'v_bfe_u32 v{t3}, v0, 2, 2', f'v_lshl_add_u32 v{t5}, v{t3}, 4, v{t5}', f'v_and_b32 v{t3}, 3, v0',
              f'v_lshl_add_u32 v{t4}, v{t3}, 6, v{t5}', f'v_add_u32 v{t4}, {LL + 1024 + 16}, v{t4}',
              f'v_cmp_lt_u32 vcc, 15, v{i32}', f'v_cndmask_b32 v{vLw}, v{vLw}, v{t4}, vcc', f'v_add_u32 v{t4}, s{S_T3}, v{t4}',
              f'v_cndmask_b32 v{vWr}, v{vWr}, v{t4}, vcc',
              f'v_lshl_add_u32 v{t4}, v{t3}, 5, v{t5}', f'v_add_u32 v{t4}, {TD - 16}, v{t4}',
              f's_add_u32 s{S_T3}, s{S_T2}, 19', f'v_cmp_lt_u32 vcc, s{S_T3}, v{i32}', f'v_cndmask_b32 v{vWr}, v{vWr}, v{t4}, vcc',
              f'v_add_u32 v{vWr}, s{S_T1}, v{vWr}',
              f'v_cmp_lt_u32 vcc, 25, v{i32}', f'v_cndmask_b32 v{vWr}, v{vWr}, v{vm}, vcc', f'v_cndmask_b32 v{vLw}, v{vLw}, v{vm}, vcc',
              f'v_add_u32 v{vFG}, s{S_T2}, v{vFR}', f'v_add_u32 v{vFGa}, s{S_T2}, v{vFA}', f'v_mov_b32 v{vMx}, 0']
        L += [f's_mul_i32 s{S_BCUR}, s{S_WAVE}, {XBSZ}', f's_add_u32 s{S_BCUR}, s{S_BCUR}, {XB0}', f's_mov_b32 s{S_BD}, {XB1 - XB0}',
              f'v_add_u32 v{aD}, {TA}, v{vStg}',
              f'v_and_b32 v{t3}, 11, v0', f'v_cmp_eq_u32 vcc, 11, v{t3}', f'v_cndmask_b32 v{aC}, v{aD}, v{vm}, vcc',
              f'v_and_b32 v{t3}, 3, v0', f'v_cmp_eq_u32 vcc, 0, v{t3}', f'v_cndmask_b32 v{aLc}, v{aC}, v{vm}, vcc',
              f'v_lshrrev_b32 v{vg}, 4, v0', f'v_bfe_u32 v{t3}, v0, 1, 3', f'v_lshlrev_b32 v{t5}, 4, v{t3}', f'v_add_u32 v{t5}, {TD}, v{t5}',
              f'v_and_b32 v{t3}, 10, v0', f'v_cmp_eq_u32 vcc, 10, v{t3}', f'v_cndmask_b32 v{t5}, v{t5}, v{vm}, vcc',
              f'v_and_b32 v{t4}, 1, v0', f'v_lshl_add_u32 v{aS}, v{vg}, 9, v{t5}', f'v_lshl_add_u32 v{aS}, v{t4}, 2, v{aS}', f'v_add_u32 v{aS}, 1024, v{aS}',
              f'v_lshl_add_u32 v{FT}, v{vg}, 8, v{t5}', f'v_lshl_add_u32 v{FT}, v{t4}, 20, v{FT}',
              f'v_and_b32 v{vm}, 15, v0', f's_mov_b32 s{S_T0}, {XPI}',
              f'v_lshlrev_b32 v{t3}, 1, v{vm}', f'v_add_u32 v{t3}, s{S_BCUR}, v{t3}',
              f'v_mad_u32_u24 v{vRaw}, v{vg}, s{S_T0}, v{t3}',
              f's_lshl_b32 s{S_T0}, s{S_WAVE}, 10', f's_add_u32 s{S_T0}, s{S_T0}, {XCH}',
              f'v_add_u32 v{vXw}, s{S_T0}, v{vStg}',
              f'v_add_u32 v{t3}, 256, v{vStg}', f'v_and_b32 v{t3}, 1023, v{t3}', f'v_add_u32 v{vX1}, s{S_T0}, v{t3}',
              f'v_xor_b32 v{t3}, 512, v{vStg}', f'v_add_u32 v{vX2}, s{S_T0}, v{t3}', f'v_lshlrev_b32 v{vSh}, 4, v{half}']
        L += [f'v_mov_b32 v{r}, 0' for r in list(range(RAW, RAW + 8)) + list(range(BT, BT + 24))]
        L += [f'v_mul_u32_u24 v{t4}, {XPI}, v{vg}',
              f'v_bfe_u32 v{t5}, v0, 2, 2', f'v_lshl_add_u32 v{t4}, v{t5}, 7, v{t4}',
              f'v_and_b32 v{t5}, 3, v0', f'v_lshl_add_u32 v{vLinB}, v{t5}, 3, v{t4}', f'v_add_u32 v{vLin}, s{S_BCUR}, v{vLinB}',
              f'v_and_b32 v{t5}, 1, v0', f's_mov_b32 s{S_T0}, 0xaaaaaaaa', f'v_mul_lo_u32 v{vSI}, s{S_T0}, v{t5}', f'v_or_b32 v{vSI}, 0x44444444, v{vSI}',
              f'v_lshlrev_b32 v{vOr}, 1, v0', f'v_add_u32 v{vOr}, s{S_BCUR}, v{vOr}', f'v_mov_b32 v{vAcc}, 0x3f80',
              f'ds_write_b16 v{vOr}, v{vAcc} offset:{3 * XPI + 7 * 128}', f'v_add_u32 v{vOr}, s{S_BD}, v{vOr}']
        L += [f's_mul_i32 s{S_T3}, s{S_WAVE}, 6', f's_add_u32 s{S_PX}, s{S_PX}, s{S_T3}', f's_mul_i32 s{S_PX}, s{S_PX}, 104',
              f's_add_u32 s{S_PXE}, s{S_PX}, 80', f's_add_u32 s{S_PX}, s{S_PX}, {4 * o.pfx0}',
              f's_mov_b32 s{S_T3}, 10923', f'v_min_u32 v{t3}, 35, v0',
              f'v_mul_u32_u24 v{t4}, s{S_T3}, v{t3}', f'v_lshrrev_b32 v{t4}, 16, v{t4}',
              f'v_mul_u32_u24 v{t4}, {104 - 24}, v{t4}', f'v_lshl_add_u32 v{vPXL}, v{t3}, 2, v{t4}']
        L += self.stamp(14)
        L += [f's_cmp_eq_u32 s{S_GRP}, 0', 's_cbranch_scc1 L_g0pf']
        cc = self.seq(L)

        def bread(m, base):
            b = BALL + m * 8
            return [f'ds_read_b64_tr_b16 {vr(b, 2)}, v{vBs0} offset:{base + m * 256}',
                    f'ds_read_b64_tr_b16 {vr(b + 2, 2)}, v{vBs0} offset:{base + m * 256 + 4 * 1352}',
                    f'ds_read_b64_tr_b16 {vr(b + 4, 2)}, v{vBs1a} offset:{base + m * 256}',
                    f'ds_read_b64_tr_b16 {vr(b + 6, 2)}, v{vBs1b} offset:{base + m * 256}']

        def mm6(base, post=lambda m: []):
            c = []
            for m in range(3):
                c += bread(m, base)
            for m in range(6):
                if m + 3 < 6:
                    c += bread(m + 3, base)
                b = BALL + m * 8
                d = DALL + (m % 4) * 16
                c.append(f'v_mfma_f32_32x32x16_bf16 {vr(d, 16)}, {vr(AFR, 4)}, {vr(b, 4)}, 0')
                c.append(f'v_mfma_f32_32x32x16_bf16 {vr(d, 16)}, {vr(AFR + 4, 4)}, {vr(b + 4, 4)}, {vr(d, 16)}')
                if m >= 2:
                    c += post(m - 2)
            return c + post(4) + post(5)

        L = []
        if o.epos == 3:
            L += [f's_sub_u32 s{S_T0}, s{S_PX}, {24 * 104}',
                  f'buffer_load_dword v{XJ + 4}, v{vPXL}, {srd(SRD_IDX)}, s{S_T0} offen', f'buffer_load_dword v{XJ + 5}, v{vPXL}, {srd(SRD_IDX)}, s{S_PX} offen']
        L += [f's_add_u32 s{S_SAMP}, s{S_SAMP}, {8 * 104}', f's_add_u32 s{S_PX}, s{S_PX}, 24'] + xidx() + pfx_a()
        L += [f's_cmp_lg_u32 s{S_WAVE}, 7', 's_cbranch_scc1 L_nclr', f's_cmp_ge_u32 s{S_C}, 7', 's_cbranch_scc1 L_nclr']
        L += self.build_srd(SRD_WS, S_WS, 0x10000000) + self.build_srd(SRD_DBG, S_DBG, 256)
        L += [f'v_mov_b32 v{BALL + k}, -1' for k in range(4)]
        L += [f's_and_b32 s{S_T0}, s2, 7', f's_lshl_b32 s{S_T0}, s{S_T0}, 3', f's_add_u32 s{S_T0}, s{S_T0}, s{S_C}', f's_lshl_b32 s{S_T0}, s{S_T0}, 11',
              f'buffer_store_dwordx4 {vr(BALL, 4)}, v{vStg}, {srd(SRD_WS)}, s{S_T0} offen sc1',
              f'buffer_store_dwordx4 {vr(BALL, 4)}, v{vStg}, {srd(SRD_WS)}, s{S_T0} offen offset:1024 sc1',
              's_waitcnt vmcnt(0)', 's_mov_b64 exec, 1', f'buffer_atomic_add v{vOne}, v{vStg}, {srd(SRD_DBG)}, 0 offen offset:128', 's_mov_b64 exec, -1']
        uc0 = self.seq(L[:-len(L) + L.index(f's_cmp_ge_u32 s{S_C}, 7') + 2])
        self.seq(L[L.index(f's_cmp_ge_u32 s{S_C}, 7') + 2:])
        L = ['L_nclr:'] + wait(F_W3, 4) + self.stamp(2)
        if o.epos == 3:
            L += [f'v_lshlrev_b32 v{XJ + 4}, 7, v{XJ + 4}', f'buffer_load_dword v255, v{XJ + 4}, {srd(SRD_TAB)}, 0 offen',
                  f'v_lshlrev_b32 v{XJ + 5}, 7, v{XJ + 5}', f'buffer_load_dword v255, v{XJ + 5}, {srd(SRD_TAB)}, 0 offen']
        for s2 in range(2):
            for rd in range(2):
                L.append(f'ds_read_b64 {vr(AFR + 4 * s2 + 2 * rd, 2)}, v{AD + 10} offset:{s2 * 32 + rd * 8}')
        L += [f'ds_read_u16 v{t5}, v{AD + 11} offset:52']

        def vpost(m):
            p_ = m // 2
            c = [f'v_cvt_pk_bf16_f32 v{V3T + p_}, v{DALL + 16 * (m % 4)}, 0']
            if m % 2:
                c = ['s_mov_b32 exec_lo, 0'] + c + [f's_mov_b64 exec, s[{S_MASK}:{S_MASK + 1}]' if p_ == 2 else 's_mov_b32 exec_lo, -1',
                                                    f'ds_write_b16 v{AD + p_}, v{V3T + p_}']
            return c
        L += mm6(A3 - A2, vpost)
        L += ['s_mov_b64 exec, 0x3ffffff', f'ds_write_b16 v{AD + 12}, v{t5}', 's_mov_b64 exec, -1']
        L += self.stamp(3) + sig(F_W2) + [f'v_cmp_gt_u32 s[{S_MASK}:{S_MASK + 1}], 36, v{vE}']
        L += wait(F_W2, 8) + self.stamp(5)
        for s2 in range(2):
            for rd in range(2):
                L.append(f'ds_read_b64_tr_b16 {vr(AFR + 4 * s2 + 2 * rd, 2)}, v{vA3} offset:{s2 * 1024 + rd * 256}')

        def upost(m):
            c = [f'v_cvt_pk_bf16_f32 v{UP + 8 * m + qq}, v{DALL + 16 * (m % 4) + 2 * qq}, v{DALL + 16 * (m % 4) + 2 * qq + 1}' for qq in range(8)]
            if m == 5:
                c.append(f's_mov_b64 exec, s[{S_MASK}:{S_MASK + 1}]')
            for a in range(3):
                c.append(f'ds_write2_b32 v{AD + 4 + m}, v{UP + 8 * m + 2 * a}, v{UP + 8 * m + 2 * a + 1} offset0:{4 * a} offset1:{4 * a + 1}')
            return c
        L += mm6(0, upost)
        L.append('s_mov_b32 exec_hi, 0')
        for m in (5, 4, 3, 2, 1, 0):
            L.append(f'ds_write_b32 v{AD + 4 + m}, v{UP + 8 * m + 6} offset:48')
            L.append(f'ds_write_b16 v{vV2w}, v{UP + 8 * m + 7} offset:{m * 256}')
            if m == 5:
                L.append('s_mov_b32 exec_lo, -1')
        L += ['s_mov_b64 exec, -1'] + sig(F_RDY, vFGa) + [f's_setprio {o.bprio}', 's_branch L_bld']
        uc = self.seq(L)

        e1 = [f'buffer_load_dword v{XJ + 4}, v{vPXL}, {srd(SRD_IDX)}, s{S_PX} offen',
              f'buffer_load_dword v{XJ + 5}, v{vPXL}, {srd(SRD_IDX)}, s{S_PX} offen offset:{24 * 104}']
        e2 = [f'v_lshlrev_b32 v{XJ + 4}, 7, v{XJ + 4}', f'buffer_load_dword v255, v{XJ + 4}, {srd(SRD_TAB)}, 0 offen',
              f'v_lshlrev_b32 v{XJ + 5}, 7, v{XJ + 5}', f'buffer_load_dword v255, v{XJ + 5}, {srd(SRD_TAB)}, 0 offen']
        st1 = stage(A2, 35152, 'STG1') if o.w1first else stage(A1, 0, 'STG1')
        if o.epos == 3:
            e1, e2 = [], []
        L = ['L_g0pf:'] + e1 + [f's_add_u32 s{S_PX}, s{S_PX}, 24'] + pfx_a() + sig(F_W3, vm_tags=['STG3']) + self.stamp(1) + (e2 if o.epos == 2 else [])
        xx = (e2 if o.epos == 1 else []) + xdma() + xdma(XJ, 4 * XBSZ) + xidx() + (e2 if o.epos == 0 else [])
        if o.w1first:
            L += st2[o.sigat:] + st1 + sig(F_RDY, vFGa, vm_tags=['STG2']) + xx + sig(F_W2, vm_tags=['STG1']) + self.stamp(3)
        else:
            L += st2[o.sigat:] + st1[:o.sig2] + sig(F_W2, vm_tags=['STG2']) + self.stamp(3) + st1[o.sig2:]
            L += (xx if o.xpos == 0 else []) + sig(F_RDY, vFGa, vm_tags=['STG1']) + (xx if o.xpos == 1 else [])
        g0pf = self.seq(L)

        def chunk(v):
            units = [(n, h) for n in range(24 * v, min(24 * v + 24, 44)) for h in range(2)]
            NB_, BA = 12, o.ba
            reads, maths = [], []
            for ui, (n, h) in enumerate(units):
                a, ha, b, hb = ZD[n][h]
                (fa, ca), (fb, cb) = cls(a, ha), cls(b, hb)
                tb = BT + (ui % NB_) * 2
                dst = SUM + ui
                if ca != N_:
                    R = [f'ds_read_u16_d16_hi v{tb}, v{SP1} offset:{54 * 24}', f'ds_read_u16_d16_hi v{tb + 1}, v{SP2} offset:{54 * 24}']
                    M = [f'v_add_f32 v{dst}, v{tb}, v{tb + 1}']
                elif (a, ha) == (b, hb):
                    R = [f'ds_read_u16_d16_hi v{tb}, v{base[(ca, cb)]} offset:{54 * fa}']
                    M = [f'v_mov_b32 v{dst}, v{tb}']
                else:
                    R = [f'ds_read_u16_d16_hi v{tb}, v{base[(ca, cb)]} offset:{52 * fa + 2 * fb}',
                         f'ds_read_u16_d16_hi v{tb + 1}, v{base[(cb, ca)]} offset:{52 * fb + 2 * fa}']
                    M = [f'v_add_f32 v{dst}, v{tb}, v{tb + 1}']
                if ui % 2:
                    M = M + maths[-1] + [f'v_max3_f32 v{vMx}, v{vMx}, abs(v{dst - 1}), abs(v{dst})']
                    maths[-1] = []
                reads.append(R)
                maths.append(M)
            code = []
            nu = len(units)
            for ui in range(nu + BA):
                if ui < nu:
                    code += reads[ui]
                if ui >= BA:
                    code += maths[ui - BA]
            if v == 1:
                code += [f'ds_read_u16_d16_hi v{BT + e}, v{vL} offset:{8 * e}' for e in range(6)]
                code += [f'ds_read_u16_d16_hi v{BT + 6}, v{vL6} offset:48', f'ds_read_u16_d16_hi v{BT + 7}, v{vWo}']
            return code

        def conv(n):
            return [f'v_fma_mix{"hi" if h else "lo"}_f16 v{OUT + q}, v{SUM + 2 * q + h}, s{S_SC}, 0' for h in range(2) for q in range(4 * n, 4 * n + 4)]
        wr = lambda n: [f'ds_write_b128 v{vWr}, {vr(OUT + 4 * n, 4)} offset:{n * 1024}']
        L = ['L_bld:'] + self.stamp(6) + wait(F_RDY, 4, vFG) + self.stamp(7)
        L += [f's_cmp_ge_u32 s{cw}, 2', 's_cbranch_scc1 L_chunk1']
        bld = self.seq(L)
        ch = [self.seq(chunk(0) + ['s_branch L_conv']), self.seq(['L_chunk1:'] + chunk(1))]
        L = ['L_conv:'] + self.stamp(12) + dppred('v_max_u32', vMx) + [f'v_readlane_b32 s{S_T0}, v{vMx}, 63', f'v_mov_b32 v{vMx}, s{S_T0}',
             f'ds_max_u32 v{vFGa}, v{vMx} offset:{M_X}', WaitTag(vm_tags=['XB']), f'ds_add_u32 v{vFGa}, v{vOne} offset:{F_M}']
        L += waitmax(vFG, F_M, S_T3) + [f's_add_i32 s{S_SC}, s{S_T3}, 127', f's_lshl_b32 s{S_SC}, s{S_SC}, 23'] + self.stamp(13)
        L += conv(0) + conv(1) + waitmax(vFR, F_M, S_T2)
        L += wr(0) + conv(2) + wr(1) + conv(3) + wr(2) + conv(4) + wr(3) + wr(4)
        L += [f's_cmp_ge_u32 s{cw}, 2', 's_cbranch_scc1 L_cvl']
        cv = self.seq(L)
        cv0 = self.seq(conv(5) + wr(5) + ['s_branch L_built'])
        cv1 = self.seq(['L_cvl:', f's_cmp_eq_u32 s{S_GRP}, 0', 's_cbranch_scc1 L_built'])
        L = [f'v_mul_f32 v{BT + e}, s{S_SC}, v{BT + e}' for e in range(8)]
        L += [f'v_cvt_pk_bf16_f32 v{OUT + 20 + q}, v{BT + 2 * q}, v{BT + 2 * q + 1}' for q in range(4)]
        L += [f'ds_write_b128 v{vLw}, {vr(OUT + 20, 4)}']
        cv2 = self.seq(L)

        w0x = self.build_srd(SRD_W2, S_W2, 3328) + [f'v_lshlrev_b32 v{FT}, 7, v0', f'buffer_load_dword v255, v{FT}, {srd(SRD_W2)}, 0 offen']

        slot = lambda k: RZ + 4 * (k % 4)
        MF = [('Lb', 0), ('a', 1), ('b', 1), ('d', 1), ('Lc', 0), ('a', 2), ('c', 1), ('b', 2), ('c', 2)]
        for k in range(3, 10):
            MF += ([('S', k)] if k % 2 else []) + [('a', k), ('b', k), ('c', k)]
        MF += [('a', 10), ('b', 10), ('a', 11), ('b', 11), ('c', 10), ('S', 11), ('c', 11)]
        if o.mo == 1:
            MF = [('Lb', 0), ('a', 1), ('d', 1), ('Lc', 0), ('b', 1), ('a', 2), ('c', 1), ('b', 2), ('a', 3), ('c', 2), ('S', 3), ('b', 3), ('c', 3)]
            for k in range(4, 10):
                MF += ([('S', k)] if k % 2 else []) + [('a', k), ('b', k), ('c', k)]
            MF += [('a', 10), ('b', 10), ('c', 10), ('a', 11), ('b', 11), ('S', 11), ('c', 11)]
        if o.mo == 2:
            MF = [('d', 1), ('Lb', 0), ('a', 1), ('Lc', 0), ('b', 1), ('a', 2), ('c', 1), ('b', 2), ('a', 3), ('c', 2), ('S', 3), ('b', 3), ('c', 3)]
            for k in range(4, 12):
                MF += ([('S', k)] if k % 2 else []) + [('a', k), ('b', k), ('c', k)]
        NM = len(MF)
        use = {k: [m for m, (t_, kk) in enumerate(MF) if kk == k or (t_ == 'S' and kk == k + 1)] for k in range(12)}
        pos = lambda t_, k: MF.index((t_, k))

        def mfma(m):
            t_, k = MF[m]
            if t_[0] == 'L':
                d, w = {'b': (Db, WL), 'c': (Dc, WL + 4)}[t_[1]]
                return f'v_mfma_f32_16x16x32_bf16 {vr(d, 4)}, {vr(w, 4)}, {vr(slot(0), 4)}, 0'
            if t_ == 'S':
                return f'v_smfmac_f32_16x16x64_f16 {vr(Ds, 4)}, {vr(WS_ + 2 * (k - 1), 4)}, {vr(slot(k - 1), 8)}, v{vSI}'
            d, w = {'a': (Da, WA), 'b': (Db, WB), 'c': (Dc, WC), 'd': (Ds, WS_)}[t_]
            return f'v_mfma_f32_16x16x32_f16 {vr(d, 4)}, {vr(w + 4 * (k - 1), 4)}, {vr(slot(k), 4)}, {"0" if t_ in "ad" and k == 1 else vr(d, 4)}'

        def wload(m):
            t_, k = MF[m]
            if t_[0] == 'L':
                a, w, off = {'b': (aD, WL, 0), 'c': (aLc, WL + 4, 1024)}[t_[1]]
                return [f'ds_read_b128 {vr(w, 4)}, v{a} offset:{LL - TA + off}']
            if t_ == 'd':
                return [f'ds_read_b128 {vr(WS_, 4)}, v{FT}']
            if t_ == 'S':
                w = WS_ + 2 * (k - 1)
                return [f'ds_read2_b32 {vr(w, 2)}, v{aS} offset0:0 offset1:2', f'ds_read2_b32 {vr(w + 2, 2)}, v{aS} offset0:64 offset1:66',
                        f'v_add_u32 v{aS}, 2048, v{aS}']
            w, a, off = {'a': (WA, aD, 0), 'b': (WB, aD, TB - TA), 'c': (WC, aC, TC - TA)}[t_]
            return [f'ds_read_b128 {vr(w + 4 * (k - 1), 4)}, v{a} offset:{off + (k - 1) * 1024}']

        def zops(n):
            z = slot(n // 4 + 1) + n % 4
            (a, ha, b, hb), (a2, ha2, b2, hb2) = ZD[n]
            if (a, b) == (a2, b2):
                return [f'v_pk_mul_f16 v{z}, v{X + a}, v{X + b} op_sel:[{ha},{hb}] op_sel_hi:[{ha2},{hb2}]']
            return [f'v_mul_f16_sdwa v{z}, v{X + a}, v{X + b} dst_sel:WORD_0 dst_unused:UNUSED_PAD src0_sel:WORD_{ha} src1_sel:WORD_{hb}',
                    f'v_mul_f16_sdwa v{z}, v{X + a2}, v{X + b2} dst_sel:WORD_1 dst_unused:UNUSED_PRESERVE src0_sel:WORD_{ha2} src1_sel:WORD_{hb2}']

        cvt = lambda d, a, b: f'v_cvt_pk_f16_f32 v{d}, v{a}, v{b}'
        LAT = o.lat

        class It:
            def __init__(s, name, G, code, lo, hi, pre):
                s.name, s.G, s.code, s.lo, s.hi, s.pre, s.at = name, G, code, lo, hi, list(pre), None

        NG = 14
        items = {}

        def add(name, G, code, lo=-10**9, hi=10**9, pre=()):
            items[(name, G)] = It(name, G, code, lo, hi, pre)
        usej = lambda j: [n for n, d in enumerate(ZD) if any(a // 4 == j or b // 4 == j for (a, _, b, _) in d)]
        lastz = {j: max(usej(j)) for j in range(3)}
        for G in range(NG):
            c, b0 = G % 4, G * NM
            for r in range(8):
                add(f'raw{r}', G, f'ds_read_u16_d16_hi v{RAW + r}, v{vRaw} offset:{r * 128 + c * 32}', lo=b0 - o.rspan, hi=b0 - o.rlead,
                    pre=[(f'co{q}', G - 1, 0) for q in range(4)] + ([('swr', G, 0)] if c == 0 else []))
            for q in range(4):
                add(f'co{q}', G, cvt(X + q - 1, RAW + q - 1, RAW + q + 2) if q else cvt(X + 3, RAW + 6, RAW + 7), hi=b0 - 4,
                    pre=[(f'raw{r}', G, LAT) for r in range(8)] + [(f'z{lastz[0]}', G - 1, 0)])
            add('wo', G, f'ds_write_b128 v{vXw}, {vr(X, 4)}', hi=b0 - 2, pre=[(f'co{q}', G, 0) for q in range(4)] + [('r2', G - 1, 0)])
            add('r1', G, f'ds_read_b128 {vr(X + 4, 4)}, v{vX1}', hi=b0, pre=[('wo', G, 0)])
            add('r2', G, f'ds_read_b128 {vr(X + 8, 4)}, v{vX2}', hi=b0 + 1, pre=[('r1', G, 0)])
            for q in range(3):
                add(f'al{q}', G, f'v_alignbit_b32 v{X + 8 + q}, v{X + 8 + q}, v{X + 8 + q}, v{vSh}', hi=b0 + 20, pre=[('r2', G, LAT)])
            if c == 0:
                add('swr', G, [f'v_add_u32 v{vRaw}, s{S_BD}, v{vRaw}', WaitTag(vm_tags=['XB'])], lo=b0 - o.rspan - 1, hi=b0 - o.rspan - 1,
                    pre=[(f'raw{r}', G - 1, 0) for r in range(8)])
            for p in range(2):
                add(f'lin{p}', G, f'ds_read_b64_tr_b16 {vr(slot(0) + 2 * p, 2)}, v{vLin} offset:{p * 512 + c * 32}',
                    lo=b0 - NM + max(use[8]), hi=b0 + min(use[0]) - 1 - LAT, pre=[('swl', G, 0)] if c == 0 else [])
            if c == 0:
                add('swl', G, [f's_add_u32 s{S_TW}, s{S_BCUR}, s{S_BD}', f'v_add_u32 v{vLin}, s{S_TW}, v{vLinB}'], lo=b0 - NM + 20, hi=b0 - 12,
                    pre=[(f'lin{p}', G - 1, 0) for p in range(2)])
            for n in range(44):
                k = n // 4 + 1
                js = {x // 4 for (a, _, b, _) in ZD[n] for x in (a, b)}
                pre = [(f'co{q}', G, 0) for q in range(4)] + ([('r1', G, LAT)] if 1 in js else []) + ([(f'al{q}', G, 0) for q in range(3)] if 2 in js else [])
                if n:
                    pre.append((f'z{n - 1}', G, 0))
                if k == 5 and n % 4 < 3:
                    pre.append(('or1', G, 0))
                lo = b0 + max(use[k - 4]) if k >= 4 else b0 - NM + max(use[k + 8])
                if k == 1:
                    lo = max(lo, b0 - o.z1lo)
                zc = zops(n)
                if n == 12:
                    zc = [zops(12)[0], zops(13)[0]]
                if n == 13:
                    zc = [zops(12)[1], zops(13)[1]]
                add(f'z{n}', G, zc, lo=lo, hi=b0 + min(use[k]) - 2, pre=pre)
            s1 = slot(1)
            if c == 1:
                add('or1', G, f'v_or3_b32 v{vOr}, v{s1}, v{s1 + 1}, v{s1 + 2}', hi=b0 + 6, pre=[('z2', G, 0), ('blk', G - 2, 0)])
                add('ck', G, [f'v_and_b32 v{vOr}, 0x60006000, v{vOr}', f'v_cmp_ne_u32 s[{S_CHK}:{S_CHK + 1}], 0, v{vOr}'], hi=b0 + 30, pre=[('or1', G, 0)])
            e = b0 + NM
            rdy = lambda t_: b0 + pos(t_, 11) + o.flo
            for r in range(4):
                add(f'f{r}', G, f'v_{"mul" if c == 0 and r == 0 else "fmac"}_f32 v{vAcc}, v{Da + r}, v{Db + r}', lo=min(rdy('b'), e + pos('Lb', 0) - 1), hi=e + pos('Lb', 0) - 1,
                    pre=[(f'f{r - 1}', G, 0) if r else ('f8', G - 1, 0)] + ([('blk', G - 1, 0)] if c == 0 else []))
            for r in range(2):
                add(f'f{4 + r}', G, f'v_add_f32 v{FT + r}, v{Ds + 2 * r}, v{Ds + 2 * r + 1}', lo=min(rdy('S'), e + pos('d', 1) - 1), hi=e + pos('d', 1) - 1,
                    pre=[('f8', G - 1, 0)] + ([('blk', G - 1, 0)] if c == 0 else []))
            for r, (x, y) in enumerate(((Dc, Dc + 1), (FT, Dc + 2), (FT + 1, Dc + 3))):
                add(f'f{6 + r}', G, f'v_fmac_f32 v{vAcc}, v{x}, v{y}', lo=rdy('c'), hi=e + pos('Lc', 0) - 1, pre=[(f'f{5 + r}', G, 0), ('f3', G, 0), ('f4', G, 0)])
            if c == 3:
                for q, x in enumerate(dppred('v_add_f32', vAcc)):
                    add(f'dp{q}', G, x, hi=e + 7 + 2 * q, pre=[(f'dp{q - 1}', G, 2) if q else ('f8', G, 2)])
                add('blk', G, '@BLK', hi=e + 20, pre=[('dp5', G, 1)])
        order = list(items.values())
        gaps = {}
        isv = lambda x: isinstance(x, str) and x.startswith('v_')
        isl = lambda x: isinstance(x, str) and x.startswith('ds_')
        for gp in range(-NM, NG * NM):
            gaps[gp] = []
            uv = ul = 0
            while True:
                cand = []
                for it in order:
                    if it.at is not None or it.lo > gp:
                        continue
                    ok = True
                    for (nm, G, dist) in it.pre:
                        p = items.get((nm, G))
                        if p is None:
                            continue
                        if p.at is None or p.at + dist > gp:
                            ok = False
                            break
                    if not ok:
                        continue
                    cv_, cl_ = sum(map(isv, flat([it.code]))), sum(map(isl, flat([it.code]))) * (o.wcost if it.name == 'wo' else 1)
                    if it.hi > gp and (uv + cv_ > o.gapv or ul + cl_ > o.gapl or uv + ul + cv_ + cl_ > o.gapt) and cv_ + cl_:
                        continue
                    cand.append((it, cv_, cl_))
                if not cand:
                    break
                it, cv_, cl_ = min(cand, key=lambda x: x[0].hi)
                it.at = gp
                uv += cv_; ul += cl_
                gaps[gp].append(it)
        late = [(it.name, it.G, it.at - it.hi) for it in order if it.at is not None and it.at > it.hi and 4 <= it.G < 12]
        print('late items', late)
        sig_ = lambda G0: [[(it.name, it.G - G0) for it in gaps[G0 * NM + m]] for m in range(4 * NM)]
        assert sig_(4) == sig_(8), 'schedule not periodic'
        for f_ in (isv, isl):
            print('gap load', ''.join(str(sum(sum(map(f_, flat([it.code]))) for it in gaps[4 * NM + m])) + ('|' if m % NM == NM - 1 else '') for m in range(4 * NM)))
        keep = lambda c: [x for x in flat([c]) if not (isinstance(x, str) and any(x.startswith(d) for d in o.drop.split(',') if d))]
        prio = lambda p, lab: [f's_cmp_lg_u32 s{S_GRP}, 0', f's_cbranch_scc1 {lab}', f's_setprio {p}', f'{lab}:'] if o.phi else []

        def sstamp():
            if not (o.stamps and o.itst):
                return []
            return [f's_memtime s[{S_ST}:{S_ST + 1}]', f's_add_u32 s{S_C0}, s{S_LOOP}, 20', 's_waitcnt lgkmcnt(0)',
                    f's_mov_b32 m0, s{S_C0}', f'v_writelane_b32 v252, s{S_ST}, m0']

        pcode = []
        for gp in range(-NM, 4 * NM):
            for it in gaps[gp]:
                if it.G >= 4 and not it.name.startswith(('sw', 'wx')):
                    pcode += flat([it.code])
        PFD = o.pfd
        L = ['L_built:'] + self.stamp(10) + self.tlb2(vZ, vTk) + pcode + pfx_b() + pfx_a() + pfw()
        L += ['s_waitcnt lgkmcnt(0)', 's_barrier'] + (['s_setprio 1'] if o.phi else ['s_setprio 0']) + self.stamp(8)
        L += [wload(m) for m in range(PFD)] + prio(2, 'L_prf') + (['s_mov_b32 s100, 15'] if o.gst else [])
        peel2 = None
        for m in range(NM):
            L += [mfma(m)] + (wload(m + PFD) if m + PFD < NM else [])
            for it in gaps[4 * NM + m]:
                if it.code == '@BLK':
                    L += [f'ds_read_b32 v{vF}, v{vFR} offset:{M_X + 16}', f'ds_write_b16 v{vOr}, v{vAcc} offset:{3 * XPI + 7 * 128}']
                    L += self.cleared('L_cclr', vZ, vTk) + xdma(XI, XB1 - XB0) + (pfw() if o.pfp else [])
                    L += [f'v_readfirstlane_b32 s{S_T3}, v{vF}',
                          f's_lshr_b32 s{S_T3}, s{S_T3}, 23', f's_sub_i32 s{S_T3}, 141, s{S_T3}', f's_min_i32 s{S_T3}, s{S_T3}, 40',
                          f's_add_i32 s{S_EXP}, s{S_T2}, s{S_T3}', f's_sub_i32 s{S_EXP}, 0, s{S_EXP}', f's_mov_b32 s{S_EXPC}, s{S_EXP}',
                          f's_mov_b32 s{S_PH}, 1', f's_mov_b32 s{S_PREV}, 1']
                    L += [f's_cmp_lg_u32 s{S_WAVE}, 7', 's_cbranch_scc1 L_nw0']
                    peel1 = self.seq(L)
                    peelw = self.seq(w0x)
                    L = ['L_nw0:']
                elif it.G >= 4:
                    L += flat([it.code])
        L += [f'ds_add_u32 v{vFA}, v{vOne} offset:{F_PEEL}', 's_branch L_grp1']
        peel2 = self.seq(L)
        prime = self.seq(['L_prime:'] + [f'v_mov_b32 v{r}, 0' for r in range(D, D + 16)] + [f'v_mov_b32 v{FT}, 0', f'v_mov_b32 v{FT + 1}, 0'] + pcode)
        blk_a = ['L_blk:', f's_cmp_eq_u32 s{S_PREV}, 0', 's_cbranch_scc1 L_blkend',
                 f'v_readlane_b32 s{S_TW}, v{vAcc}, 63', f'v_ldexp_f32 v{vAcc}, v{vAcc}, s{S_EXPC}', f'v_and_b32 v{vAcc}, -2, v{vAcc}',
                 f's_cmp_eq_u32 s{S_PREV}, 2', 's_cbranch_scc1 L_good',
                 f's_cmp_eq_u64 s[{S_CHK}:{S_CHK + 1}], 0', 's_cbranch_scc1 L_slow',
                 f's_bfe_u32 s{S_TW}, s{S_TW}, 0x80017', f's_cmp_eq_u32 s{S_TW}, 255', 's_cbranch_scc1 L_slow',
                 'L_good:', 's_mov_b32 exec_lo, 0', 's_mov_b32 exec_hi, 0x80000000',
                 f'buffer_store_dword v{vAcc}, v{vZ}, {srd(SRD_WS)}, s{S_RC} offen sc1', 's_mov_b64 exec, -1',
                 f's_add_u32 s{S_RC}, s{S_RC}, 32', f's_sub_u32 s{S_LOOP}, s{S_LOOP}, 1', f's_cmp_eq_u32 s{S_LOOP}, 0', 's_cbranch_scc1 L_cin_done']
        blk_a += [f's_cmp_eq_u32 s{S_LOOP}, 1', 's_cbranch_scc1 L_lastnext']
        blk_b = xdma() + [f's_add_u32 s{S_SAMP}, s{S_SAMP}, {8 * 104}', f's_cmp_lg_u32 s{S_LOOP}, s{S_TK}', 's_cbranch_scc1 L_nodma']
        blk_t = [f'v_mov_b32 v{vTk}, 1', 's_mov_b64 exec, 1', f'buffer_atomic_add v{vTk}, v{vZ}, {srd(SRD_WS)}, s{S_ST0} offen sc0',
                 's_mov_b64 exec, -1', f's_mov_b32 s{S_TK}, 8', 's_branch L_nodma',
                 'L_lastnext:', f's_cmp_lt_i32 s{S_DYN}, 0', f's_cselect_b32 s{S_RC}, s{S_RC}, s{S_DYN}']
        hook_a = [f's_cmp_lg_u32 s{S_TK}, 8', 's_cbranch_scc1 L_hk']
        hook_t = ['s_waitcnt vmcnt(0)', f'v_readfirstlane_b32 s{S_TW}, v{vTk}', f's_mov_b32 s{S_TK}, 0', f's_add_u32 s{S_TW}, s{S_TW}, 485',
                  f's_cmp_ge_u32 s{S_TW}, 512', 's_cbranch_scc1 L_hk',
                  f's_add_u32 s{S_LOOP}, s{S_LOOP}, 1',
                  f's_lshr_b32 s{S_SAMP}, s{S_ST0}, 14', f's_lshl_b32 s{S_DYN}, s{S_SAMP}, 12', f's_add_u32 s{S_DYN}, s{S_DYN}, s{S_TW}',
                  f's_lshl_b32 s{S_DYN}, s{S_DYN}, 2', f's_add_u32 s{S_DYN}, s{S_DYN}, {5 * 2048}',
                  f's_lshl_b32 s{S_SAMP}, s{S_SAMP}, 9', f's_add_u32 s{S_SAMP}, s{S_SAMP}, s{S_TW}', f's_mul_i32 s{S_SAMP}, s{S_SAMP}, 104']
        hook_b = ['L_hk:'] + xidx(adv=False)
        blk_b2 = ['L_nodma:'] + [f's_add_u32 s{S_BCUR}, s{S_BCUR}, s{S_BD}', f's_sub_u32 s{S_BD}, 0, s{S_BD}', f's_mov_b32 s{S_EXPC}, s{S_EXP}', f's_mov_b32 s{S_PH}, 1']
        blk_c = ['L_blkend:', f's_mov_b32 s{S_PREV}, s{S_PH}']
        parts = [[], [], [], [], []]
        cur = self.seq(['L_cin_loop:'])
        for m in range(4 * NM):
            if m == NM:
                parts[3] = cur
                cur = self.seq(['L_grp1:'])
            if m == o.hook:
                p4a = cur + self.seq(hook_a)
                p4t = self.seq(hook_t)
                cur = self.seq(hook_b)
            if o.gst and m % NM == 0:
                cur += self.seq([f's_memtime s[{S_ST}:{S_ST + 1}]', 's_add_u32 s100, s100, 1', 's_min_u32 s100, s100, 31', 's_waitcnt lgkmcnt(0)',
                                 's_mov_b32 m0, s100', f'v_writelane_b32 v253, s{S_ST}, m0'])
            if o.phi and m in (0, o.phi):
                cur += self.seq(prio(0 if m else 2, f'L_pr{m}'))
            cur += self.seq([mfma(m % NM)])
            for it in gaps[4 * NM + m]:
                if it.code == '@BLK':
                    parts[0] = cur + self.seq(sstamp() + ['s_waitcnt vmcnt(0)', f's_cmp_le_u32 s{S_LOOP}, {o.pfend}', 's_cbranch_scc1 L_blk'])
                    pfp = self.seq(pfx_b() + pfx_a() + pfw())
                    parts[1] = self.seq(blk_a)
                    parts[2] = self.seq(blk_b)
                    pbt = self.seq(blk_t)
                    pb2 = self.seq(blk_b2)
                    cur = self.seq(blk_c)
                else:
                    cur += self.seq(keep(it.code))
        cur += self.seq([f's_cmp_lg_u32 s{S_LOOP}, 1', 's_cbranch_scc1 L_cin_loop'])
        parts[4] = p4a + cur
        p4x = p4a + p4t + cur
        tail = self.seq([it.code for m in range(NM) for it in gaps[4 * NM + m] if it.G == 3 and it.code != '@BLK'] + ['s_branch L_blk'])
        Q = RZ
        rows = [(g, r) for g in range(4) for r in range(8)][:31]
        L = ['L_slow:', f'v_lshlrev_b32 v{FT}, 1, v0', f'v_add_u32 v{FT + 1}, s{S_BCUR}, v{FT}',
             f's_mul_i32 s{S_TW}, s{S_WAVE}, {XBSZ}', f's_add_u32 s{S_TW}, s{S_TW}, {XSP}',
             f'v_add_u32 v{FT}, s{S_TW}, v{FT}', f'v_add_u32 v{vLin}, s{S_TW}, v{vLinB}']
        L += [f'v_subrev_u32 v{vRaw}, s{S_BD}, v{vRaw}'] + wait(F_PEEL, 8)
        L += [f'ds_read_u16 v{Q + n}, v{FT + 1} offset:{g * XPI + r * 128}' for n, (g, r) in enumerate(rows)]
        L += [f'v_lshlrev_b32 v{Q + n}, 16, v{Q + n}' for n in range(31)]
        L += absmax(vAcc, list(range(Q, Q + 31))) + dppred('v_max_u32', vAcc)
        L += [f'v_readlane_b32 s{S_TW}, v{vAcc}, 63', f's_lshr_b32 s{S_TW}, s{S_TW}, 23', f's_sub_i32 s{S_TW}, 134, s{S_TW}',
              f's_min_i32 s{S_TW}, s{S_TW}, 16',
              f's_lshl_b32 s{S_EXPC}, s{S_TW}, 2', f's_sub_i32 s{S_EXPC}, s{S_EXP}, s{S_EXPC}',
              f's_add_i32 s{S_TW}, s{S_TW}, 127', f's_lshl_b32 s{S_TW}, s{S_TW}, 23', f'v_mov_b32 v{Q + 31}, s{S_TW}']
        L += [f'v_mul_f32 v{Q + n}, s{S_TW}, v{Q + n}' for n in range(31)]
        L += [f'ds_write_b16_d16_hi v{FT + 1}, v{Q + n} offset:{g * XPI + r * 128}' for n, (g, r) in enumerate(rows)]
        L += [f'v_mul_f32 v{Q + n}, s{S_TW}, v{Q + n}' for n in range(32)]
        L += [f'ds_write_b16_d16_hi v{FT}, v{Q + n} offset:{g * XPI + r * 128}' for n, (g, r) in enumerate(rows + [(3, 7)])]
        L += [f's_mov_b32 s{S_PREV}, 0', f's_mov_b32 s{S_PH}, 2', 's_waitcnt lgkmcnt(0)', 's_branch L_prime']
        slow = self.seq(L)
        fin_ = self.seq(['L_cin_done:'] + self.stamp(9) + self.stamp_flush() + self.padsig() + ['s_endpgm'])
        rest = parts[3] + parts[4]
        full = parts[0] + pfp + parts[1] + parts[2] + pb2 + rest
        nopf = parts[0] + parts[1] + parts[2] + pbt + pb2 + parts[3] + p4x
        last = parts[0] + parts[1] + pb2 + rest
        redo = lambda pf: parts[1][:10] + slow + prime + parts[0] + (pfp if pf else []) + parts[1][:3] + rest
        end_ = tail + parts[1][:-2] + fin_
        main = peel2 + parts[4] + full + full + parts[0] + pfp + redo(1) + full + nopf + parts[0] + redo(0) + nopf + last + tail + redo(0) + end_
        main2 = peel2 + parts[4] + parts[0] + pfp + redo(1) + full + nopf + last + end_
        traces = []
        for w in range(8):
            tr = c0 + (g0a + cc + g0pf if w < 4 else g1a + cc + uc0 + uc) + bld + ch[(w >> 1) & 1] + cv
            tr += (cv1 + (cv2 if w >= 4 else [])) if w & 2 else cv0
            for mn in (main, main2):
                traces.append(tr + peel1 + (peelw if w == 7 else []) + mn)
        return traces

    def build(self):
        pro = self.prologue()
        d = self.dnn()
        cs = self.cin()
        rm = self.rem()
        self.seq(['L_end:', 's_endpgm'])
        traces = [pro + c for c in d + cs + rm]
        for t in traces:
            resolve_waits(t)
        for _ in range(2):
            for t in traces:
                resolve_hazards(t)
        hdr = open(os.path.join(os.path.dirname(os.path.abspath(__file__)), 'header.txt')).read()
        txt = hdr + f'; @launch grid=(256,1,1) block=(512,1,1) lds={LDS_TOTAL}\n'
        txt += f'''.amdgcn_target "amdgcn-amd-amdhsa--gfx950"
{DOC}.text
.globl {KNAME}
.p2align 8
.type {KNAME},@function
{KNAME}:
'''
        body_ = self.P.emit()
        if 'wsame' in self.opt.dbg:
            body_ = body_.replace(f's_add_u32 s{S_WSOFF}, s{S_WSOFF}, {32 * 3328}', f's_xor_b32 s{S_WSOFF}, s{S_WSOFF}, 0')
        if 'xsame' in self.opt.dbg:
            import re as _re
            body_ = _re.sub(r'v_lshl_add_u32 v(2[4-9]|3[01]), v(1[6-9]), 7', r'v_lshl_add_u32 v\1, v16, 7', body_)
            body_ = _re.sub(r'v_lshl_add_u32 v(2[4-9]|3[01]), v(2[0-3]), 7', r'v_lshl_add_u32 v\1, v20, 7', body_)
            body_ = _re.sub(r'v_lshl_add_u32 v(2[4-9]|3[01]), v(9[6-9]), 7', r'v_lshl_add_u32 v\1, v96, 7', body_)
            body_ = _re.sub(r'v_lshl_add_u32 v(2[4-9]|3[01]), v(10[0-3]), 7', r'v_lshl_add_u32 v\1, v100, 7', body_)
            body_ = body_.replace('offen offset:12\n', 'offen offset:0\n').replace('offen offset:844\n', 'offen offset:832\n')
            body_ = body_.replace(f's_mov_b32 s{S_IDXOFF}, 28', f's_mov_b32 s{S_IDXOFF}, 0').replace(f's_add_u32 s{S_IDXOFF}, s{S_IDXOFF}, 16', 's_nop 0')
        if self.opt.align:
            for lab in ('L_dnn_loop0:', 'L_dnn_loop1:', 'L_cin_loop:', 'L_epi:'):
                pad = '  s_nop 0\n' if self.opt.align > 100 else ''
                body_ = body_.replace(lab + '\n', f'.p2align {self.opt.align % 100}\n{pad}{lab}\n')
        txt += body_
        txt += f'''.section .rodata,"a"
.p2align 6
.amdhsa_kernel {KNAME}
  .amdhsa_next_free_vgpr 256
  .amdhsa_next_free_sgpr 102
  .amdhsa_accum_offset 256
  .amdhsa_group_segment_fixed_size 0
  .amdhsa_kernarg_size 88
  .amdhsa_user_sgpr_count 2
  .amdhsa_user_sgpr_kernarg_segment_ptr 1
  .amdhsa_system_sgpr_workgroup_id_x 1
  .amdhsa_float_denorm_mode_32 {self.opt.denorm}
.end_amdhsa_kernel
'''
        return txt


def main():
    ap = argparse.ArgumentParser()
    ap.add_argument('-o', default='standalone__deep_cross_xdeepfm__recsys.s')
    ap.add_argument('--stamps', action='store_true')
    ap.add_argument('--padat', default='')
    ap.add_argument('--padmin', type=int, default=0)
    ap.add_argument('--nodma', action='store_true')
    ap.add_argument('--cpf', type=int, default=1)
    ap.add_argument('--coop', type=int, default=1)
    ap.add_argument('--coopw', type=int, default=2)
    ap.add_argument('--tbpos', type=int, default=0)
    ap.add_argument('--dbar3', type=int, default=1)
    ap.add_argument('--tlb', type=int, default=0)
    ap.add_argument('--tlb2', type=int, default=1)
    ap.add_argument('--itst', type=int, default=0)
    ap.add_argument('--diag', type=int, default=0)
    ap.add_argument('--dbg', default='')
    ap.add_argument('--lead3', type=int, default=1)
    ap.add_argument('--morder', type=int, default=0)
    ap.add_argument('--etlb', type=int, default=21)
    ap.add_argument('--lateb', type=int, default=0)
    ap.add_argument('--wfl', default='')
    ap.add_argument('--xfl', default='')
    ap.add_argument('--tag', type=int, default=0)
    ap.add_argument('--idxfirst', type=int, default=1)
    ap.add_argument('--bpos', type=int, default=2)
    ap.add_argument('--sigat', type=int, default=4)
    ap.add_argument('--epx', type=int, default=1)
    ap.add_argument('--denorm', type=int, default=3)
    ap.add_argument('--mprio', type=int, default=0)
    ap.add_argument('--swap', type=int, default=0)
    ap.add_argument('--bov', type=int, default=2)
    ap.add_argument('--rfirst', type=int, default=0)
    ap.add_argument('--g1x', type=int, default=0)
    ap.add_argument('--ldsred', type=int, default=0)
    ap.add_argument('--csnake', type=int, default=0)
    ap.add_argument('--cswap', type=int, default=0)
    ap.add_argument('--align', type=int, default=0)
    ap.add_argument('--c2', type=int, default=0)
    ap.add_argument('--d1', type=int, default=0)
    ap.add_argument('--cstr', type=int, default=3)
    ap.add_argument('--bearly', type=int, default=1)
    ap.add_argument('--w2late', type=int, default=1)
    ap.add_argument('--aov', type=int, default=3)
    ap.add_argument('--upos', type=int, default=1)
    ap.add_argument('--calt', type=int, default=1)
    ap.add_argument('--pfpos', type=int, default=1)
    ap.add_argument('--wlate', type=int, default=0)
    ap.add_argument('--dbar2', type=int, default=0)
    ap.add_argument('--dbar', type=int, default=0)
    ap.add_argument('--pfw', type=int, default=1)
    ap.add_argument('--pfx', type=int, default=3)
    ap.add_argument('--pfx0', type=int, default=4)
    ap.add_argument('--pfs', type=int, default=14)
    ap.add_argument('--dcoopx', type=int, default=1)
    ap.add_argument('--dcx0', type=int, default=0)
    ap.add_argument('--dcxpos', type=int, default=-1)
    ap.add_argument('--pfe0', type=int, default=2)
    ap.add_argument('--pfne', type=int, default=14)
    ap.add_argument('--prio47', type=int, default=0)
    ap.add_argument('--lookahead', type=int, default=5)
    ap.add_argument('--nz', type=int, default=6)
    ap.add_argument('--nwf', type=int, default=8)
    ap.add_argument('--hiat', type=int, default=4)
    ap.add_argument('--wmerge', type=int, default=0)
    ap.add_argument('--gapv', type=int, default=2)
    ap.add_argument('--lat', type=int, default=5)
    ap.add_argument('--shs', type=int, default=256)
    ap.add_argument('--pfp', type=int, default=1)
    ap.add_argument('--epos', type=int, default=0)
    ap.add_argument('--hook', type=int, default=100)
    ap.add_argument('--rrd', type=int, default=11)
    ap.add_argument('--rdrop', default='')
    ap.add_argument('--pfr', type=int, default=4)
    ap.add_argument('--vin', type=int, default=1)
    ap.add_argument('--rstag', type=int, default=1)
    ap.add_argument('--eprio', type=int, default=1)
    ap.add_argument('--nopk', type=int, default=0)
    ap.add_argument('--w1first', type=int, default=0)
    ap.add_argument('--xpos', type=int, default=0)
    ap.add_argument('--z1lo', type=int, default=40)
    ap.add_argument('--pfend', type=int, default=3)
    ap.add_argument('--gst', type=int, default=0)
    ap.add_argument('--gapl', type=int, default=2)
    ap.add_argument('--gapt', type=int, default=2)
    ap.add_argument('--wcost', type=int, default=2)
    ap.add_argument('--bprio', type=int, default=1)
    ap.add_argument('--c1hi', type=int, default=-8)
    ap.add_argument('--c2hi', type=int, default=12)
    ap.add_argument('--rspan', type=int, default=34)
    ap.add_argument('--rlead', type=int, default=16)
    ap.add_argument('--pfd', type=int, default=10)
    ap.add_argument('--mo', type=int, default=2)
    ap.add_argument('--ba', type=int, default=6)
    ap.add_argument('--sig2', type=int, default=4)
    ap.add_argument('--drop', default='')
    ap.add_argument('--al8', type=int, default=0)
    ap.add_argument('--alph', type=int, default=0)
    ap.add_argument('--almm', type=int, default=0)
    ap.add_argument('--phi', type=int, default=123)
    ap.add_argument('--rawlo', type=int, default=8)
    ap.add_argument('--flo', type=int, default=3)
    opt = ap.parse_args()
    resolve_waits.dbg = 'dup' in opt.dbg
    g = Gen(opt)
    txt = g.build()
    if opt.al8:
        import align8
        rg = []
        if opt.al8 & 1:
            rg.append(('L_cin_loop', 'L_slow'))
        if opt.al8 & 2:
            rg += [('L_dnn_loop0', 'L_dnn_h1'), ('L_dnn_loop1', 'L_epi')]
        if opt.al8 & 4:
            rg += [('L_epi', 'L_pub')]
        txt = align8.align(txt, rg, opt.alph, opt.almm)
    open(opt.o, 'w').write(txt)
    print('wrote', opt.o, len(txt), 'bytes')


if __name__ == '__main__':
    main()
```

```python
import sys, os, struct, argparse
sys.path.insert(0, os.path.dirname(os.path.abspath(__file__)))
from cinplan import ZD, cls
from asmlib import I, WaitTag, Prog, resolve_waits, resolve_hazards

KNAME = 'standalone__deep_cross_xdeepfm__recsys_kernel'
LDS_TOTAL = 163840

XSLOT = 16384
WR = 4 * XSLOT
WP = 640
WSLOT = 32 * WP
L_BIAS = WR + 4 * WSLOT
L_W2 = L_BIAS + WP
RB = 2 * XSLOT
RWR = 131072

ASZ = 35264
A1 = 1024
A2 = A1 + ASZ
A3 = A2 + ASZ
UST = 1356
V3OFF = A3 + ASZ
V2OFF = V3OFF + 2048
L_WCO = V2OFF + 1408
L_FLG = L_WCO + 192
RC = L_FLG + 64
XB0 = RC + 512
XPI = 1056
XBSZ = 4 * XPI
XB1 = A3
TA = A1
TC = TA + 11 * 1024
TD = TC + 12 * 1024
TB = A2
XSP = A1
XCH = XB0 + 8 * XBSZ
OOB = 0x100000
NCLR = 56
NPOOL = 224
assert XCH + 8192 <= LDS_TOTAL and XB0 % 16 == 0 and A2 % 16 == 0 and A3 % 16 == 0 and L_WCO % 16 == 0
assert 8 * XBSZ <= ASZ and TD + 11 * 1024 <= A2

S_WAVE = 3
S_IDX, S_TAB, S_CIN, S_WCO, S_W1, S_B1, S_W2, S_BO, S_OUT, S_DBG, S_WS = 4, 6, 8, 10, 12, 14, 16, 18, 20, 22, 24
S_MB, S_R = 26, 27
SRD_IDX, SRD_TAB, SRD_CIN, SRD_WCO, SRD_W, SRD_B1, SRD_W2, SRD_OUT, SRD_WS, SRD_DBG = 28, 32, 36, 40, 44, 48, 52, 56, 60, 64
S_T0, S_T1, S_T2, S_T3 = 68, 69, 70, 71
S_LOOP, S_IDXOFF, S_WSOFF, S_WMB, S_XM0, S_N0, S_C0, S_CW, S_BOUT, S_TW = 72, 73, 74, 75, 76, 77, 78, 79, 80, 81
S_EX = 82
S_GRP, S_RC = 84, 85
S_ST = 86
S_M26, S_MASK = 90, 92
S_SAMP, S_STG, S_STG9, S_TGT = 94, 95, 96, 97
S_M26B = 98
S_GW = 100
S_TAGT = 0
S_TAG = 1
S_PW = 101
S_PX = 77
S_PXE = 73

GELU_C0 = -2.0 * 0.7978845608028654 * 1.4426950408889634
GELU_C1 = GELU_C0 * 0.044715


def f32hex(x):
    return '0x%08x' % struct.unpack('<I', struct.pack('<f', x))[0]


def vr(a, n):
    return f'v[{a}:{a + n - 1}]' if n > 1 else f'v{a}'


def srd(a):
    return f's[{a}:{a + 3}]'


def flat(gs):
    res = []
    for c in gs:
        if isinstance(c, (tuple, list)):
            res += flat(c)
        else:
            res.append(c)
    return res


def interleave(a, b):
    out = []
    ia = ib = 0
    na, nb = len(a), len(b)
    while ia < na or ib < nb:
        if ib >= nb or (ia < na and ia * nb <= ib * na):
            out.append(a[ia]); ia += 1
        else:
            out.append(b[ib]); ib += 1
    return out


assert all((d * 2521) >> 16 == d // 26 for d in range(800))
assert all((d * 10923) >> 16 == d // 6 for d in range(64))
assert all((d * 1561) >> 16 == d // 42 for d in range(176))


DOC = '''; ---------------------------------------------------------------------------------------------
;
;       V3[h,k]  = sum_g wo[52+g] W3[g,h,k]          V2[i,j] = sum_h wo[26+h] W2[h,i,j]
;       U[i,j,k] = sum_h W2[h,i,j] V3[h,k]
;       g1[i]    = wo[i] + sum_j V2[i,j] x_j + sum_jk U[i,j,k] x_j x_k
;   Both quadratic forms use the 351 distinct products x_j x_k (j<=k) with symmetrised weights,
; Work split: per block of 128 samples, 5 workgroups do the DNN branch (128 x 336 output tiles) and
;   3 workgroups the CIN branch; partial logits go through d_ws (sc1) and a counter in d_debug,
;   the last arriver of a block adds them up and writes d_out.
; ---------------------------------------------------------------------------------------------
'''


class Gen:
    def __init__(self, opt):
        self.opt = opt
        self.P = Prog()
        self.role = 'x'

    def seq(self, lines):
        return [self.P.add(l) for l in flat(lines)]

    def build_srd(self, dst, ptr, size):
        return [f's_mov_b32 s{dst}, s{ptr}', f's_and_b32 s{dst + 1}, s{ptr + 1}, 0xffff',
                f's_mov_b32 s{dst + 2}, {size}', f's_mov_b32 s{dst + 3}, 0x20000']

    def stamp(self, slot):
        if self.opt.padat == f'{self.role}{slot}':
            return [f's_memrealtime s[88:89]', 's_waitcnt lgkmcnt(0)']
        if not self.opt.stamps or (self.opt.lite and f'{self.role}{slot}' not in ('c8', 'c9', 'd2', 'd4', 'r4', 'r5')):
            return []
        return [f's_memtime s[{S_ST}:{S_ST + 1}]', f's_memrealtime s[{S_ST + 2}:{S_ST + 3}]', 's_waitcnt lgkmcnt(0)',
                f'v_writelane_b32 v252, s{S_ST}, {slot}', f'v_writelane_b32 v253, s{S_ST + 2}, {slot}']

    def stamp_flush(self):
        if not self.opt.stamps:
            return []
        L = self.build_srd(SRD_WS, S_WS, 0x10000000)
        L += [f's_lshl_b32 s{S_C0}, s2, 3', f's_add_u32 s{S_C0}, s{S_C0}, s{S_WAVE}',
              f's_lshl_b32 s{S_C0}, s{S_C0}, 8', f's_add_u32 s{S_C0}, s{S_C0}, 0x100000',
              'v_lshlrev_b32 v254, 3, v0', 's_mov_b32 exec_hi, 0',
              f'buffer_store_dwordx2 v[252:253], v254, {srd(SRD_WS)}, s{S_C0} offen', 's_mov_b32 exec_hi, -1']
        return L

    def stamp0(self):
        if not self.opt.stamps:
            return []
        return ['v_mov_b32 v252, 0xcdcdcdcd', 'v_mov_b32 v253, 0xcdcdcdcd',
                f'v_writelane_b32 v252, s{S_ST}, 0', f'v_writelane_b32 v253, s{S_ST + 2}, 0'] + self.stamp(15)

    def tlb2(self, t, vflag):
        L = self.build_srd(SRD_WS, S_WS, 0x10000000) + self.build_srd(SRD_DBG, S_DBG, 256)
        L += [f'v_lshlrev_b32 v{t}, 2, v0',
              ('s_mov_b64 exec, 0xff', f's_mov_b32 s{S_TW}, 0x80000',
               f'buffer_load_dword v255, v{t}, {srd(SRD_WS)}, s{S_TW} offen',
               f'buffer_load_dword v{vflag}, v{t}, {srd(SRD_DBG)}, 0 offen offset:128 sc1',
               's_mov_b64 exec, -1'), f'v_mov_b32 v{t}, 0']
        return L

    def cleared(self, lab, t, vflag):
        chk = [f'v_cmp_eq_u32 vcc, 0, v{vflag}', 's_and_b32 vcc_lo, vcc_lo, 0xff']
        return chk + [f's_cbranch_scc0 {lab}_ok', f's_mov_b32 s{S_C0}, 0x40000',
                f'{lab}:', f's_sub_u32 s{S_C0}, s{S_C0}, 1', f's_cbranch_scc1 {lab}_ok', f'v_lshlrev_b32 v{vflag}, 2, v0', f'v_and_b32 v{vflag}, 31, v{vflag}',
                f'buffer_load_dword v{vflag}, v{vflag}, {srd(SRD_DBG)}, 0 offen offset:128 sc1', 's_waitcnt vmcnt(0)'] + chk + [f's_cbranch_scc1 {lab}', f'{lab}_ok:']

    def padsig(self):
        o = self.opt
        if not o.padat:
            return []
        pre = ['v_mov_b32 v8, 4']
        if (o.padat[0] if o.padat != 'start' else 'd') != self.role:
            return pre
        return pre + [f's_cmp_lg_u32 s{S_WAVE}, 0', 's_cbranch_scc1 L_nosig'] + ([f's_not_b32 s88, s88'] if o.padmin else []) + ['v_mov_b32 v7, s88', 's_mov_b64 exec, 1',
                f'buffer_atomic_umax v7, v8, {srd(SRD_DBG)}, 0 offen', 's_mov_b64 exec, -1', 'L_nosig:']

    def tlb1(self, vtmp, vdst):
        if not self.opt.etlb:
            return self.build_srd(SRD_TAB, S_TAB, 100000 * 128)
        return self.build_srd(SRD_TAB, S_TAB, 100000 * 128) + [
            f'v_mov_b32 v{vtmp}, s{S_BOUT}', f'buffer_load_dword v{vdst}, v{vtmp}, {srd(SRD_TAB)}, 0 offen']

    def prologue(self):
        L = []
        if self.opt.padat == 'start' or self.opt.amp:
            L += ['s_memrealtime s[88:89]']
        elif self.opt.padat:
            L += [f's_mov_b32 s88, {-1 if self.opt.padmin else 0}']
        if self.opt.stamps:
            L += [f's_memtime s[{S_ST}:{S_ST + 1}]', f's_memrealtime s[{S_ST + 2}:{S_ST + 3}]']
        L += ['s_cmp_ge_u32 s2, 256', 's_cbranch_scc1 L_end',
              's_load_dwordx16 s[4:19], s[0:1], 0',
              's_load_dwordx4 s[20:23], s[0:1], 64',
              's_load_dwordx2 s[24:25], s[0:1], 80',
              'v_lshrrev_b32 v1, 6, v0']
        if self.opt.cpf:
            L += [f's_getpc_b64 s[{S_MASK}:{S_MASK + 1}]', 'L_pc:',
                  f's_and_b32 s{S_T0}, s2, 0xf8', f'v_add_u32 v2, s{S_T0}, v1', 'v_lshlrev_b32 v2, 7, v2'] + (['v_and_b32 v3, 1, v0', 'v_lshl_add_u32 v2, v3, 15, v2'] if self.opt.cpf == 2 else []) + [
                  f'v_min_u32 v2, L_end-L_pc, v2',
                  f'v_mov_b32 v3, s{S_MASK + 1}',
                  f'v_add_co_u32 v2, vcc, s{S_MASK}, v2', 'v_addc_co_u32 v3, vcc, 0, v3, vcc',
                  'global_load_dword v255, v[2:3], off']
        L += ['v_and_b32 v0, 63, v0',
              f'v_readfirstlane_b32 s{S_WAVE}, v1',
              f's_and_b32 s{S_T0}, s2, 7', f's_lshl_b32 s{S_T0}, s{S_T0}, 2',
              f's_lshr_b32 s{S_MB}, s2, 6', f's_add_u32 s{S_MB}, s{S_MB}, s{S_T0}',
              f's_bfe_u32 s{S_R}, s2, 0x30003',
              f's_and_b32 s{S_BOUT}, s2, 0xf8', f's_add_u32 s{S_BOUT}, s{S_BOUT}, s{S_WAVE}', f's_lshl_b32 s{S_BOUT}, s{S_BOUT}, {self.opt.etlb}',
              f's_cmp_ge_u32 s{S_R}, 5', 's_cbranch_scc1 L_cin']
        return self.seq(L)

    def gelu(self, groups, TB, KC0, KC1, KONE):
        p2 = lambda r: vr(r, 2)
        L = []
        seen = set()
        for k, vals in enumerate(groups):
            tb = TB + (k % 2) * 16
            V_ = [(x, w, s_, tb + 4 * i_, tb + 4 * i_ + 2) for i_, (x, w, s_) in enumerate(vals)]
            for (x, w, s_, t, u) in V_:
                L.append(f'v_pk_mul_f32 {p2(t)}, {p2(x)}, {p2(x)}')
            for (x, w, s_, t, u) in V_:
                L.append(f'v_pk_fma_f32 {p2(t)}, {p2(t)}, {p2(KC1)}, {p2(KC0)}')
            for (x, w, s_, t, u) in V_:
                L.append(f'v_pk_mul_f32 {p2(t)}, {p2(t)}, {p2(x)}')
            for (x, w, s_, t, u) in V_:
                L += [f'v_exp_f32 v{t}, v{t}', f'v_exp_f32 v{t + 1}, v{t + 1}']
            for (x, w, s_, t, u) in V_:
                L.append(f'v_pk_fma_f32 {p2(t)}, {p2(t)}, {p2(w)}, {p2(w)}')
            for (x, w, s_, t, u) in V_:
                L += [f'v_rcp_f32 v{t}, v{t}', f'v_rcp_f32 v{t + 1}, v{t + 1}']
            for (x, w, s_, t, u) in V_:
                if s_ in seen:
                    L.append(f'v_pk_fma_f32 {p2(s_)}, {p2(t)}, {p2(x)}, {p2(s_)}')
                else:
                    L.append(f'v_pk_mul_f32 {p2(s_)}, {p2(t)}, {p2(x)}')
                    seen.add(s_)
        if self.opt.nopk:
            import re as _re
            L2 = []
            for x in L:
                if x.startswith('v_pk_'):
                    mn = x.split()[0].replace('v_pk_', 'v_')
                    rs = [int(r) for r in _re.findall(r'v\[(\d+):', x)]
                    L2 += [f'{mn} ' + ', '.join(f'v{r + h}' for r in rs) for h in range(2)]
                else:
                    L2.append(x)
            L = L2
        return L

    def red4(self, SUMP):
        sm = lambda tm: SUMP + 2 * tm
        L = [f'v_add_f32 v{sm(tm)}, v{sm(tm)}, v{sm(tm) + 1}' for tm in range(4)]
        L += [f'v_permlane32_swap_b32 v{sm(tm)}, v{sm(tm + 2)}' for tm in range(2)]
        L += [f'v_add_f32 v{sm(tm)}, v{sm(tm)}, v{sm(tm + 2)}' for tm in range(2)]
        L += [f'v_permlane16_swap_b32 v{sm(0)}, v{sm(1)}', f'v_add_f32 v{sm(0)}, v{sm(0)}, v{sm(1)}']
        return L

    def kconst(self, KC0, KC1, KONE):
        return [f'v_mov_b32 v{KC0}, {f32hex(GELU_C0)}', f'v_mov_b32 v{KC0 + 1}, {f32hex(GELU_C0)}',
                f'v_mov_b32 v{KC1}, {f32hex(GELU_C1)}', f'v_mov_b32 v{KC1 + 1}, {f32hex(GELU_C1)}',
                f'v_mov_b32 v{KONE}, 0x71800000']

    def winv(self, R, n, KONE):
        return [f'v_rcp_f32 v{R + k}, v{R + k}' for k in range(n)] + [f'v_med3_f32 v{R + k}, v{R + k}, -v{KONE}, v{KONE}' for k in range(n)]

    def dnn(self):
        o = self.opt
        self.role = 'd'
        vW = [[1, 2, 3, 4, 5], [6, 7, 8, 9, 10]]
        vX = [11, 12]
        vIdxOff, vCh = 13, [14, 15]
        ST = [16, 20]
        VO = 24
        vWD = [32, 33, 34]
        vP, vPc, vBL = 35, 36, 37
        WF = 40
        XA = 80
        T = 112
        W2F = 112
        ACC = 140
        PK = 220
        SUMP, KC0, KC1, KONE = 16, 232, 234, 236
        WL = 3

        def acc(tn, tm):
            return ACC + (tn * 4 + tm) * 4

        HH, SL = S_T0, S_T1
        g, i4, q = T + 18, T + 19, T + 20
        PI, vCW = T + 8, T + 12
        nr = o.coopw
        L = [f's_mul_i32 s{S_N0}, s{S_R}, {WP}',
             f's_mul_i32 s{S_T2}, s{S_WAVE}, 7', f'v_min_u32 v{q}, 6, v0', f'v_add_u32 v{q}, s{S_T2}, v{q}', f'v_min_u32 v{q}, 51, v{q}',
             f'v_lshrrev_b32 v{g}, 1, v{q}', f'v_mul_u32_u24 v{g}, 96, v{g}', f'v_lshl_add_u32 v{q}, v{q}, 2, v{g}',
             f's_mul_i32 s{S_C0}, s{S_R}, 26', f's_min_u32 s{S_C0}, s{S_C0}, 102', f's_lshl_b32 s{S_T3}, s{S_MB}, 7',
             f's_add_u32 s{S_C0}, s{S_C0}, s{S_T3}', f's_mul_i32 s{S_C0}, s{S_C0}, 104',
             f's_and_b32 s{S_T2}, s{S_MB}, 3', f's_lshl_b32 s{S_T2}, s{S_T2}, 3', f's_add_u32 s{S_T2}, s{S_T2}, s{S_WAVE}',
             f's_mul_i32 s{S_T2}, s{S_T2}, 3328', f's_add_u32 s{S_TW}, s{S_T2}, s{S_N0}',
             f'v_min_u32 v{vCW}, {8 * nr - 1}, v0', f'v_lshrrev_b32 v{g}, 3, v{vCW}', f's_mov_b32 s{S_T2}, {32 * 3328}',
             f'v_mul_u32_u24 v{g}, s{S_T2}, v{g}',
             f'v_and_b32 v{vCW}, 7, v{vCW}', f'v_min_u32 v{vCW}, 4, v{vCW}', f'v_lshl_add_u32 v{vCW}, v{vCW}, 7, v{g}',
             's_waitcnt lgkmcnt(0)']
        L += self.build_srd(SRD_IDX, S_IDX, 4096 * 104)
        L += [f'buffer_load_dwordx3 {vr(PI, 3)}, v{q}, {srd(SRD_IDX)}, s{S_C0} offen']
        L += self.tlb1(T + 24, 255)
        vec = lambda dst, sr: [f's_mov_b32 m0, {dst}', 's_mov_b32 exec_hi, 0xff',
                               I(f'buffer_load_dwordx4 v{vBL}, {srd(sr)}, s{S_N0} offen lds', tag='BIAS'), 's_mov_b64 exec, -1']
        L += [f'v_lshlrev_b32 v{vBL}, 4, v0'] + self.build_srd(SRD_B1, S_B1, 3328)
        L += self.build_srd(SRD_W, S_W1, 1664 * 3328)
        L += [f'buffer_load_dword v255, v{vCW}, {srd(SRD_W)}, s{S_TW} offen']
        L += vec(L_BIAS, SRD_B1)
        L += self.stamp0()
        L += [f's_lshr_b32 s{HH}, s{S_WAVE}, 2', f's_and_b32 s{SL}, s{S_WAVE}, 3',
              f's_lshl_b32 s{S_T2}, s{S_WAVE}, 4', f's_add_u32 s{S_T2}, s{S_T2}, s{S_T3}',
              f'v_lshrrev_b32 v{T + 16}, 3, v0', f'v_add_u32 v{T + 16}, s{S_T2}, v{T + 16}',
              f'v_mul_u32_u24 v{vIdxOff}, 104, v{T + 16}',
              f's_mul_i32 s{S_T3}, s{HH}, 192', f's_mov_b32 s{S_T2}, 1639', f's_and_b32 s{S_C0}, s{SL}, 1', f's_lshl_b32 s{S_C0}, s{S_C0}, 2',
              f's_mov_b32 s{S_TW}, 3328', f'v_add_u32 v{T + 16}, s{S_T3}, v0']
        for u in range(3):
            ci, rr = T + 16, T + 17
            L += [f'v_mul_u32_u24 v{rr}, s{S_T2}, v{ci}', f'v_lshrrev_b32 v{rr}, 16, v{rr}',
                  f'v_mul_u32_u24 v{q}, 40, v{rr}', f'v_sub_u32 v{q}, v{ci}, v{q}',
                  f'v_and_b32 v{i4}, 2, v{rr}', f'v_or_b32 v{i4}, s{S_C0}, v{i4}', f'v_xor_b32 v{q}, v{q}, v{i4}',
                  f'v_mul_u32_u24 v{rr}, s{S_TW}, v{rr}', f'v_lshl_add_u32 v{vWD[u]}, v{q}, 4, v{rr}']
            if u:
                L += [f'v_subrev_u32 v{vWD[u]}, {1024 * u}, v{vWD[u]}']
            if u < 2:
                L += [f'v_add_u32 v{ci}, 64, v{ci}']
        L += [f's_mul_i32 s{S_T2}, s{SL}, {8 * 3328}', f's_add_u32 s{S_WSOFF}, s{S_T2}, s{S_N0}',
              f's_mul_i32 s{S_WMB}, s{SL}, {8 * WP}', f's_mul_i32 s{S_T2}, s{HH}, 3072', f's_add_u32 s{S_WMB}, s{S_WMB}, s{S_T2}',
              f's_lshl_b32 s{S_XM0}, s{S_WAVE}, 11',
              f'v_and_b32 v{q}, 7, v0', f'v_lshrrev_b32 v{g}, 4, v0',
              f'v_xor_b32 v{q}, v{q}, v{g}', f'v_lshlrev_b32 v{vCh[0]}, 4, v{q}',
              f'v_xor_b32 v{vCh[1]}, 64, v{vCh[0]}']
        L += self.build_srd(SRD_W2, S_W2, 3328)
        L += [f's_lshr_b32 s{S_T2}, s{S_WAVE}, 1', f's_mul_i32 s{S_T3}, s{S_T2}, 5',
              f'v_bfe_u32 v{i4}, v0, 2, 2', f'v_lshl_add_u32 v{q}, v{g}, 3, v{i4}', f'v_mul_u32_u24 v{q}, {WP}, v{q}',
              f'v_and_b32 v{i4}, 3, v0', f'v_lshl_add_u32 v{q}, v{i4}, 3, v{q}', f'v_add_u32 v{q}, {WR}, v{q}',
              f'v_bfe_u32 v{i4}, v0, 3, 2']
        for i in range(5):
            L += [f'v_xor_b32 v{T + 16}, s{S_T3}, v{i4}', f'v_lshl_add_u32 v{vW[0][i]}, v{T + 16}, 5, v{q}',
                  f'v_add_u32 v{vW[1][i]}, {2 * WSLOT}, v{vW[0][i]}', f's_add_u32 s{S_T3}, s{S_T3}, 1']
        L += [f's_mul_i32 s{S_T3}, s{S_T2}, 160', f's_add_u32 s{S_T3}, s{S_T3}, {L_BIAS}',
              f'v_lshlrev_b32 v{q}, 3, v{g}', f'v_add_u32 v{vP}, s{S_T3}, v{q}',
              f'v_and_b32 v{q}, 15, v0', f'v_lshlrev_b32 v{q}, 7, v{q}',
              f'v_bfe_u32 v{i4}, v0, 1, 3', f'v_xor_b32 v{i4}, v{i4}, v{g}',
              f'v_lshl_add_u32 v{q}, v{i4}, 4, v{q}',
              f's_lshl_b32 s{S_T3}, s{S_C0}, 11', f'v_add_u32 v{vX[0]}, s{S_T3}, v{q}', f'v_xor_b32 v{vX[1]}, 64, v{vX[0]}',
              f's_lshl_b32 s{S_T2}, s{S_WAVE}, 8', f's_add_u32 s{S_T2}, s{S_T2}, {RB}',
              f'v_lshlrev_b32 v{vPc}, 2, v0', f'v_add_u32 v{vPc}, s{S_T2}, v{vPc}']

        def wld(u):
            return I(f'buffer_load_dwordx4 v{vWD[u]}, {srd(SRD_W)}, s{S_WSOFF} offen offset:{1024 * u} lds', tag='W')
        wadv = f's_add_u32 s{S_WSOFF}, s{S_WSOFF}, {32 * 3328}'

        def xld(f, pc, tag, slot=None):
            slot = f if slot is None else slot
            return [f's_add_u32 m0, s{S_XM0}, {slot * XSLOT + pc * 1024}',
                    I(f'buffer_load_dwordx4 v{VO + 2 * f + pc}, {srd(SRD_TAB)}, 0 offen lds', tag=tag)]
        pkreads = lambda off: [f'ds_read_b64 {vr(PK + 2 * tn, 2)}, v{vP} offset:{off + 32 * tn}' for tn in range(5)]

        def unp(dst):
            c = []
            for tn in range(5):
                for d in range(2):
                    c += [f'v_lshlrev_b32 v{dst(tn) + 2 * d}, 16, v{PK + 2 * tn + d}', f'v_and_b32 v{dst(tn) + 2 * d + 1}, 0xffff0000, v{PK + 2 * tn + d}']
            return c

        def reads(k8):
            par = k8 % 2
            sl = k8 % 4
            wo = (sl % 2) * WSLOT
            xo = ((k8 // 2) % 4) * XSLOT
            R = [f'ds_read_b128 {vr(XA + 16 * par + 4 * tm, 4)}, v{vX[par]} offset:{xo + tm * 2048}' for tm in range(4)]
            R += [f'ds_read_b64_tr_b16 {vr(WF + 20 * par + 4 * tn + 2 * rd, 2)}, v{vW[sl // 2][tn]} offset:{wo + rd * 4 * WP}' for tn in range(5) for rd in range(2)]
            return R

        trs = [[], []]
        nsk = [0]

        def flush():
            nonlocal L
            c = self.seq(L)
            trs[0] += c; trs[1] += c
            L = []

        def wstage_p(slot):
            nonlocal L
            nsk[0] += 1
            L += [f's_add_u32 m0, s{S_WMB}, {WR + slot * WSLOT}', f's_cmp_lg_u32 s{HH}, 0', wld(0), wld(1), f's_cbranch_scc1 L_wsk{nsk[0]}']
            flush()
            trs[0] += self.seq([wld(2)])
            L += [f'L_wsk{nsk[0]}:', wadv]
        L += [f'v_lshlrev_b32 v{PI}, 7, v{PI}']
        L += [f'buffer_load_dwordx4 {vr(T + 4 * pc, 4)}, v{vIdxOff}, {srd(SRD_IDX)}, 0 offen offset:{pc * 832}' for pc in range(2)] + ['s_barrier']
        L += [f'buffer_load_dword v255, v{PI}, {srd(SRD_TAB)}, 0 offen',
              f'v_lshlrev_b32 v{PI + 2}, 7, v{PI + 2}', f'buffer_load_dword v255, v{PI + 2}, {srd(SRD_TAB)}, 0 offen']
        L += self.stamp(6)
        wstage_p(0)
        L += [WaitTag(vm_tags=['BIAS'])] + pkreads(0) + unp(lambda tn: acc(tn, 0))
        L += [f'v_mov_b64 {vr(acc(tn, tm) + 2 * d, 2)}, {vr(acc(tn, 0) + 2 * d, 2)}' for tn in range(5) for tm in range(1, 4) for d in range(2)]
        for f in range(4):
            for pc in range(2):
                L.append(f'v_lshl_add_u32 v{VO + 2 * f + pc}, v{T + 4 * pc + f}, 7, v{vCh[pc]}')
                if f < 2:
                    L += xld(f, pc, 'X0' if f == 0 else 'X')
            if f == 0:
                L += self.stamp(7) + ['s_barrier']
                wstage_p(1)
        L += [f'buffer_load_dwordx4 {vr(ST[pc], 4)}, v{vIdxOff}, {srd(SRD_IDX)}, 0 offen offset:{pc * 832 + 12}' for pc in range(2)]
        L += [f's_mov_b32 s{S_LOOP}, 0', f's_mov_b32 s{S_IDXOFF}, 28']
        L.append(WaitTag(vm_tags=['X0'], lgkm0=True))
        L += self.stamp(1) + ['s_barrier'] + self.stamp(2)
        L += reads(0)
        wstage_p(2)
        L += xld(2, 0, 'X') + [f'v_mov_b32 v{VO + 7}, v{VO + 5}', f's_cmp_lg_u32 s{HH}, 0', 's_cbranch_scc1 L_dnn_h1']
        flush()

        def mf(tn, tm, par):
            a = acc(tn, tm)
            return f'v_mfma_f32_16x16x32_bf16 {vr(a, 4)}, {vr(WF + 20 * par + 4 * tn, 4)}, {vr(XA + 16 * par + 4 * tm, 4)}, {vr(a, 4)}'

        def step(n, inloop, half):
            n8 = n % 8
            par = n8 % 2
            NW = 3 - half
            M = [mf(tn, tm if tn % 2 == 0 else 3 - tm, par) for tn in range(5) for tm in range(4)]
            R, D_, E, V = [], [], [], []
            wst = lambda slot: [(f's_add_u32 m0, s{S_WMB}, {WR + slot * WSLOT}', wld(0))] + [(wld(u),) for u in range(1, NW - 1)] + [(wld(NW - 1), wadv)]
            if inloop or n < 51:
                R = reads((n8 + 1) % 8)
            if inloop:
                D_ += wst((n8 + WL) % 4)
                f = ((n8 + 7) % 8) // 2
                D_ += [tuple(xld(f, 1 - par, 'X', (f + WL) % 4))]
                if n8 == 0:
                    for ff in range(4):
                        for pc in range(2):
                            (V if half == 1 and o.vin else E).append(f'v_lshl_add_u32 v{VO + 2 * ff + pc}, v{ST[pc] + ff}, 7, v{vCh[pc]}')
                if n8 == 1:
                    for pc in range(2):
                        E.append(f'buffer_load_dwordx4 {vr(ST[pc], 4)}, v{vIdxOff}, {srd(SRD_IDX)}, s{S_IDXOFF} offen offset:{pc * 832}')
                    E.append(f's_add_u32 s{S_IDXOFF}, s{S_IDXOFF}, 16')
                if n8 == 4 and half == 1:
                    E += [tuple(vec(L_W2, SRD_W2))]
                if n8 == 7:
                    E += [f's_add_u32 s{S_LOOP}, s{S_LOOP}, 1', f's_cmp_lt_u32 s{S_LOOP}, 6']
                W_ = [WaitTag(allbut=('W', NW), lgkm0=True)]
            elif n == 48:
                W_ = [WaitTag(allbut=('W', NW), lgkm0=True)]
                D_ += wst(3)
                R = R + pkreads(WP)
                V = self.kconst(KC0, KC1, KONE)
                if half == 0:
                    E += self.tlb2(VO, vBL)
            elif n == 49:
                W_ = [WaitTag(vm0=True, lgkm0=True)]
                V = unp(lambda tn: W2F + 4 * tn) + self.winv(W2F, 20, KONE)[:4]
            elif n == 50:
                W_ = ['s_waitcnt lgkmcnt(0)']
                V = self.winv(W2F, 20, KONE)[4:18]
            else:
                W_ = []
                V = self.winv(W2F, 20, KONE)[18:]
            if V:
                nm_ = len(M) - (o.aov if half == 0 else 1)
                M = [(M[k],) + tuple(V[k * len(V) // nm_:(k + 1) * len(V) // nm_]) for k in range(nm_)] + M[nm_:]
            fill = interleave(R, D_) + E
            S = ['s_barrier'] if (inloop or n < 51) else []
            if half == 0:
                k = o.aov
                S += M[:len(M) - k] + interleave(M[len(M) - k:], fill[:2 * k]) + fill[2 * k:] + W_
            else:
                kb = o.bov
                if n == 51 and not inloop and o.eprio:
                    S += ['s_setprio 3']
                S += fill + M[:len(M) - kb] + W_ + M[len(M) - kb:]
                if n == 51 and not inloop and o.eprio == 1:
                    S += ['s_setprio 0']
            return S

        for half in range(2):
            th = trs[half]
            th += self.seq([f'L_dnn_h{half}:', WaitTag(allbut=('W', 3 - half), lgkm0=True)])
            body = self.seq([f'L_dnn_loop{half}:'])
            for n8 in range(8):
                S = step(n8, True, half)
                if n8 == 7:
                    if o.stamps and o.itst:
                        S = [f's_memtime s[{S_ST}:{S_ST + 1}]', f's_memrealtime s[{S_ST + 2}:{S_ST + 3}]', f's_add_u32 s{S_C0}, s{S_LOOP}, 8', 's_waitcnt lgkmcnt(0)',
                             f's_mov_b32 m0, s{S_C0}', f'v_writelane_b32 v252, s{S_ST}, m0', f'v_writelane_b32 v253, s{S_ST + 2}, m0'] + S
                    S += [f's_cbranch_scc1 L_dnn_loop{half}']
                body += self.seq(S)
            for it in range(6):
                th += body
            for n in range(48, 52):
                th += self.seq(step(n, False, half))
            if half == 0:
                th += self.seq(['s_branch L_epi'])
        p2 = lambda r: vr(r, 2)
        el = lambda tn, tm, d: (acc(tn, tm) + 2 * d, W2F + 4 * tn + 2 * d, SUMP + 2 * tm)
        L = ['L_epi:'] + self.stamp(3)
        L += [f's_lshl_b32 s{S_T1}, s{S_R}, 11', f's_and_b32 s{S_T3}, s{S_MB}, 3', f's_lshl_b32 s{S_T3}, s{S_T3}, 9', f's_add_u32 s{S_T1}, s{S_T1}, s{S_T3}',
              f's_lshr_b32 s{S_T0}, s{S_MB}, 2', f's_lshl_b32 s{S_T0}, s{S_T0}, 14', f's_add_u32 s{S_T1}, s{S_T1}, s{S_T0}',
              'v_lshlrev_b32 v3, 3, v0', f'v_add_u32 v2, {RB}, v3']
        L += self.gelu([[el(tn, tm, d) for tm in range(4)] for tn in range(5) for d in range(2)], WF, KC0, KC1, KONE)
        L += self.red4(SUMP) + [f'ds_write_b32 v{vPc}, v{SUMP}', 's_waitcnt lgkmcnt(0)'] + self.stamp(4) + self.stamp_flush()
        L += [f's_cmp_eq_u32 s{S_WAVE}, 0', 's_cbranch_scc1 L_dpub']
        tr = self.seq(L)
        self.seq(['s_barrier', 's_endpgm'])
        A = 64
        L = ['L_dpub:'] + self.build_srd(SRD_WS, S_WS, 0x10000000) + self.build_srd(SRD_DBG, S_DBG, 256) + self.cleared('L_dclr', 4, vBL) + ['s_barrier'] + self.stamp(17)
        L += [f'ds_read_b64 {vr(A + 2 * qq, 2)}, v2 offset:{qq * 512}' for qq in range(4)]
        L += [f'v_pk_add_f32 {p2(A)}, {p2(A)}, {p2(A + 2)}', f'v_pk_add_f32 {p2(A + 4)}, {p2(A + 4)}, {p2(A + 6)}', f'v_pk_add_f32 {p2(A)}, {p2(A)}, {p2(A + 4)}',
              f'v_and_b32 v{A}, -2, v{A}', f'v_and_b32 v{A + 1}, -2, v{A + 1}',
              f'buffer_store_dwordx2 {vr(A, 2)}, v3, {srd(SRD_WS)}, s{S_T1} offen sc1'] + self.padsig() + ['s_endpgm']
        return [trs[0] + tr + self.seq(L), trs[1] + tr]

    def rem(self):
        o = self.opt
        self.role = 'r'
        vW = [1, 2, 7, 8]
        vX = [11, 12]
        vWD, vCh, vT, VO = 13, [14, 15], 9, 24
        SUMP = 16
        IDX = 32
        XA, WF = 64, 96
        ACC = 160
        W2F, BF = 96, 112
        PK = 224
        KC0, KC1, KONE = 240, 242, 244
        g, i4, q = 246, 247, 248
        S_F = S_IDXOFF
        acc = lambda tn, tm: ACC + (tn * 4 + tm) * 4
        L = ['L_rem:', f's_lshr_b32 s{S_GRP}, s{S_WAVE}, 2', f's_and_b32 s{S_T0}, s2, 7', f's_lshl_b32 s{S_T0}, s{S_T0}, 3', f's_add_u32 s{S_T0}, s{S_T0}, s{S_WAVE}',
             f's_mul_i32 s{S_T0}, s{S_T0}, {64 * 104}', f's_lshl_b32 s{S_XM0}, s{S_WAVE}, 14',
             f'v_lshlrev_b32 v{q}, 4, v0', f'v_lshrrev_b32 v{g}, 4, v0',
             f'v_lshrrev_b32 v{i4}, 3, v0', f'v_mul_u32_u24 v{vWD}, 3328, v{i4}', f'v_and_b32 v{i4}, 2, v{i4}',
             f's_and_b32 s{S_T1}, s{S_WAVE}, 1', f's_lshl_b32 s{S_T1}, s{S_T1}, 2', f'v_or_b32 v{i4}, s{S_T1}, v{i4}',
             f'v_and_b32 v{vT}, 7, v0', f'v_xor_b32 v{i4}, v{i4}, v{vT}', f'v_lshl_add_u32 v{vWD}, v{i4}, 4, v{vWD}',
             f's_mul_i32 s{S_WSOFF}, s{S_WAVE}, {8 * 3328}', f's_add_u32 s{S_WSOFF}, s{S_WSOFF}, 3200',
             f's_lshl_b32 s{S_WMB}, s{S_WAVE}, 10', f's_add_u32 s{S_WMB}, s{S_WMB}, {RWR}',
             's_waitcnt lgkmcnt(0)']
        L += self.build_srd(SRD_IDX, S_IDX, 4096 * 104)
        for u in range(7):
            L += [f's_add_u32 m0, s{S_XM0}, {8192 + u * 1024}', I(f'buffer_load_dwordx4 v{q}, {srd(SRD_IDX)}, s{S_T0} offen lds', tag='I'),
                  f's_add_u32 s{S_T0}, s{S_T0}, 1024']
        L += self.build_srd(SRD_W, S_W1, 1664 * 3328)
        wld = lambda slot: [f's_add_u32 m0, s{S_WMB}, {slot * 8192}', I(f'buffer_load_dwordx4 v{vWD}, {srd(SRD_W)}, s{S_WSOFF} offen lds', tag='W'),
                            f's_add_u32 s{S_WSOFF}, s{S_WSOFF}, {64 * 3328}']
        L += wld(0)
        L += self.build_srd(SRD_WS, S_WS, 0x10000000) + self.build_srd(SRD_DBG, S_DBG, 256) + [f'v_mov_b32 v{XA + k}, -1' for k in range(4)]
        L += [f's_and_b32 s{S_T2}, s2, 7', f's_lshl_b32 s{S_T0}, s{S_T2}, 3', f's_add_u32 s{S_T0}, s{S_T0}, s{S_WAVE}', f's_lshl_b32 s{S_T0}, s{S_T0}, 11', f's_lshl_b32 s{S_T2}, s{S_T2}, 2',
              f'buffer_store_dwordx4 {vr(XA, 4)}, v{q}, {srd(SRD_WS)}, s{S_T0} offen sc1',
              f'buffer_store_dwordx4 {vr(XA, 4)}, v{q}, {srd(SRD_WS)}, s{S_T0} offen offset:1024 sc1']
        L += self.build_srd(SRD_B1, S_B1, 3328) + self.build_srd(SRD_W2, S_W2, 3328) + self.build_srd(SRD_TAB, S_TAB, 100000 * 128)
        L += self.stamp0()
        L += [f'v_xor_b32 v{q}, v{vT}, v{g}', f'v_lshlrev_b32 v{vCh[0]}, 4, v{q}', f'v_xor_b32 v{vCh[1]}, 64, v{vCh[0]}',
              f'v_bfe_u32 v{i4}, v0, 2, 2', f'v_lshl_add_u32 v{q}, v{g}, 3, v{i4}', f'v_lshlrev_b32 v{q}, 7, v{q}',
              f'v_and_b32 v{i4}, 3, v0', f'v_lshl_add_u32 v{q}, v{i4}, 3, v{q}', f'v_add_u32 v{q}, {RWR}, v{q}',
              f'v_bfe_u32 v{i4}, v0, 3, 2', f'v_lshl_add_u32 v{vW[0]}, v{i4}, 5, v{q}']
        L += [f'v_xor_b32 v{vW[i]}, {32 * i}, v{vW[0]}' for i in range(1, 4)]
        L += [f'v_and_b32 v{q}, 15, v0', f'v_lshlrev_b32 v{q}, 7, v{q}',
              f'v_bfe_u32 v{i4}, v0, 1, 3', f'v_xor_b32 v{i4}, v{i4}, v{g}', f'v_lshl_add_u32 v{q}, v{i4}, 4, v{q}',
              f'v_add_u32 v{vX[0]}, s{S_XM0}, v{q}', f'v_xor_b32 v{vX[1]}, 64, v{vX[0]}',
              f'v_lshrrev_b32 v{i4}, 3, v0', f'v_lshl_add_u32 v{q}, v{vT}, 3, v{i4}', f'v_mul_u32_u24 v{q}, 104, v{q}', f'v_add_u32 v{q}, s{S_XM0}, v{q}']
        L += self.kconst(KC0, KC1, KONE) + [f'v_mov_b32 v{r}, 0' for r in range(ACC, ACC + 64)] + ['s_waitcnt vmcnt(0)']
        L += [f'ds_read_b64 {vr(IDX + 2 * k, 2)}, v{q} offset:{8192 + 8 * k}' for k in range(13)]

        def xld(src, slot, h=None):
            c = [tuple(f'v_add_u32_dpp v{VO + pc}, v{src}, v{vCh[pc % 2]} row_newbcast:{8 * hh + pc} row_mask:0xf bank_mask:{hex(3 << (2 * hh))}'
                       for hh in range(2) for pc in range(4 * k, 4 * k + 4)) for k in range(2)]
            d = [(f's_add_u32 m0, s{S_XM0}, {slot * 8192 + pc * 1024}',
                  I(f'buffer_load_dwordx4 v{VO + pc}, {srd(SRD_TAB)}, 0 offen lds', tag='X')) for pc in range(8)]
            return c[:1] + d[:4] + c[1:] + d[4:] if h is None else c[h:h + 1] + d[4 * h:4 * h + 4]
        L += [f'v_mov_b32 v{VO + pc}, 0' for pc in range(8)] + [f'v_mov_b32 v{IDX + k}, 0x7f000000' for k in (26, 27)]
        L += [f'v_lshlrev_b32 v{IDX}, 7, v{IDX}'] + xld(IDX, 0)
        L += wld(1) + [f'v_lshlrev_b32 v{IDX + k}, 7, v{IDX + k}' for k in range(25, 0, -1)] + xld(IDX + 1, 1) + wld(2)
        L += [f'v_lshlrev_b32 v{q}, 3, v{g}']

        rdx = lambda fp, h: [f'ds_read_b128 {vr(XA + 16 * h + 8 * t + 4 * par, 4)}, v{vX[par]} offset:{fp * 8192 + (2 * h + t) * 2048}' for t in (1, 0) for par in (1, 0)]
        rdw = lambda fp: [f'ds_read_b64_tr_b16 {vr(WF + 32 * fp + 8 * tn + 4 * par + 2 * rd, 2)}, v{vW[tn]} offset:{fp * 8192 + par * 4096 + rd * 512}'
                          for tn in range(4) for par in range(2) for rd in range(2)]

        def mm(fp, h):
            return [f'v_mfma_f32_16x16x32_bf16 {vr(acc(tn, 2 * h + t), 4)}, {vr(WF + 32 * fp + 8 * tn + 4 * par, 4)}, {vr(XA + 16 * h + 8 * t + 4 * par, 4)}, {vr(acc(tn, 2 * h + t), 4)}'
                    for tn in range(4) for t in range(2) for par in range(2)]
        L += [f's_mov_b32 s{S_F}, 3', f'v_mov_b32 v{vT}, v{IDX + 2}'] + list(xld(vT, 0, 0)[0])
        L += [WaitTag(allbut=('X', 12)), 's_barrier'] + self.stamp(2) + rdx(0, 0) + rdw(0)
        L += [f's_cmp_lg_u32 s{S_WAVE}, 7', 's_cbranch_scc1 L_rem_loop', 's_mov_b64 exec, 1',
              f'buffer_store_dword v{KC0}, v{vCh[0]}, {srd(SRD_DBG)}, s{S_T2} offen offset:128 sc1', 's_mov_b64 exec, -1']
        tr = self.seq(L)

        def phase(M, R, Dm, V):
            gp = [[] for _ in M]
            for k, x in enumerate(R):
                gp[k * o.rrd // max(len(R), 1)].append(x)
            for k, x in enumerate(Dm):
                gp[1 + k * 15 // len(Dm)].append(x)
            v0 = o.rrd if R else 0
            for k, x in enumerate(V):
                gp[v0 + k * (16 - v0) // len(V)].append(x)
            return [(m,) + tuple(g_) for m, g_ in zip(M, gp)]
        post = []
        for k in range(8):
            post += [f'v_lshlrev_b32 v{BF + 2 * k}, 16, v{PK + k}', f'v_and_b32 v{BF + 2 * k + 1}, 0xffff0000, v{PK + k}',
                     f'v_lshlrev_b32 v{W2F + 2 * k}, 16, v{PK + 8 + k}', f'v_and_b32 v{W2F + 2 * k + 1}, 0xffff0000, v{PK + 8 + k}']
        post += self.winv(W2F, 16, KONE)
        vld = [f'buffer_load_dwordx2 {vr(PK + 2 * tn, 2)}, v{q}, {srd(SRD_B1)}, 0 offen offset:{3200 + 32 * tn}' for tn in range(4)]
        vld += [f'buffer_load_dwordx2 {vr(PK + 8 + 2 * tn, 2)}, v{q}, {srd(SRD_W2)}, 0 offen offset:{3200 + 32 * tn}' for tn in range(4)]

        def field(fp, last):
            L = [WaitTag(allbut=('W', 0 if last else 1)), WaitTag(allbut=('X', 0 if last and fp else 8))] + ([] if last and fp else ['s_barrier'])
            if fp == 1 and not last:
                L += [f'v_xor_b32 v{vW[i]}, 16384, v{vW[i]}' for i in range(4)]
            sx = (f's_xor_b32 s{S_WMB}, s{S_WMB}, 16384',)
            wl = [sx + tuple(wld(1)) + sx] if fp == 0 else [tuple(wld(0)) + sx]
            rw = rdw(1 - fp)
            mv = [(f's_set_gpr_idx_on s{S_F}, gpr_idx(SRC0)', 's_nop 0', f'v_mov_b32 v{vT}, v{IDX}', 's_set_gpr_idx_off', f's_add_u32 s{S_F}, s{S_F}, 1')]
            if not last:
                L += phase(mm(fp, 0), rdx(fp, 1) + rw[:8], xld(vT, fp, 0)[1:], list(xld(vT, fp, 1)[0]))
                L += [WaitTag(allbut=('X', 8))]
                L += phase(mm(fp, 1), rdx(1 - fp, 0) + rw[8:], xld(vT, fp, 1)[1:] + wl, mv + list(xld(vT, fp, 0)[0]))
            elif fp == 0:
                L += phase(mm(fp, 0), rdx(fp, 1) + rw[:8], vld, [])
                L += [WaitTag(allbut=('X', 4))]
                L += phase(mm(fp, 1), rdx(1 - fp, 0) + rw[8:], [], [])
            else:
                L += phase(mm(fp, 0), rdx(fp, 1), [], []) + phase(mm(fp, 1), [], [], post[:32])
            return L
        L = ['L_rem_loop:'] + field(0, False) + field(1, False) + [f's_cmp_lt_u32 s{S_F}, 27', 's_cbranch_scc1 L_rem_loop']
        L = [x for x in flat(L) if not any((x.text if isinstance(x, I) else x).startswith(d) for d in o.rdrop.split(',') if d)]
        body = self.seq(L)
        body2 = self.seq(field(0, True) + field(1, True))
        el = lambda tn, tm, d: (acc(tn, tm) + 2 * d, W2F + 4 * tn + 2 * d, SUMP + 2 * tm)
        L = self.stamp(3) + self.tlb2(4, 5) + self.build_srd(SRD_OUT, S_OUT, 8192) + [f's_load_dword s{S_BOUT}, s[{S_BO}:{S_BO + 1}], 0',
             f'buffer_load_dword v255, v4, {srd(SRD_OUT)}, 0 offen',
             f's_and_b32 s{S_T2}, s2, 7', f's_lshl_b32 s{S_T0}, s{S_T2}, 14', f's_lshl_b32 s{S_T1}, s{S_WAVE}, 8', f's_add_u32 s{S_T0}, s{S_T0}, s{S_T1}',
             f's_add_u32 s{S_T1}, s{S_T0}, 4096', f's_add_u32 s{S_T3}, s{S_T0}, 8192',
             f's_lshl_b32 s{S_T2}, s{S_T2}, 3', f's_add_u32 s{S_T2}, s{S_T2}, s{S_WAVE}', f's_lshl_b32 s{S_T2}, s{S_T2}, 7',
             'v_lshlrev_b32 v3, 2, v0', 'v_lshlrev_b32 v2, 1, v0', 's_waitcnt lgkmcnt(0)', f's_lshl_b32 s{S_BOUT}, s{S_BOUT}, 16']
        L += post[32:]
        L += [f'v_pk_add_f32 {vr(acc(tn, tm) + 2 * d, 2)}, {vr(acc(tn, tm) + 2 * d, 2)}, {vr(BF + 4 * tn + 2 * d, 2)}' for tn in range(4) for tm in range(4) for d in range(2)]
        L += self.gelu([[el(tn, tm, d) for tm in range(4)] for tn in range(4) for d in range(2)], XA, KC0, KC1, KONE)
        L += self.red4(SUMP) + [f'v_add_f32 v{SUMP}, s{S_BOUT}, v{SUMP}'] + self.stamp(4) + self.cleared('L_rclr', 4, 5) + self.padsig()
        A = 64
        L += [f's_mov_b32 s{S_LOOP}, 0x40000', 'L_poll:', f's_sub_u32 s{S_LOOP}, s{S_LOOP}, 1', 's_cbranch_scc1 L_pollx']
        L += [f'buffer_load_dword v{A + k}, v3, {srd(SRD_WS)}, s{(S_T0, S_T1, S_T3)[k // 2]} offen offset:{(k % 2) * 2048} sc1' for k in range(6)]
        L += [f'v_max3_u32 v{A + 8}, v{A}, v{A + 1}, v{A + 2}', f'v_max3_u32 v{A + 9}, v{A + 3}, v{A + 4}, v{A + 5}', f'v_max_u32 v{A + 8}, v{A + 8}, v{A + 9}',
              f'v_cmp_eq_u32 vcc, -1, v{A + 8}', 's_cbranch_vccnz L_poll', 'L_pollx:']
        L += [f'v_add_f32 v{A}, v{A}, v{A + 1}', f'v_add_f32 v{A + 2}, v{A + 2}, v{A + 3}', f'v_add_f32 v{A + 4}, v{A + 4}, v{A + 5}',
              f'v_add_f32 v{A}, v{A}, v{A + 2}', f'v_add_f32 v{A + 4}, v{A + 4}, v{SUMP}', f'v_add_f32 v{A}, v{A}, v{A + 4}',
              f'v_cvt_pk_bf16_f32 v{A}, v{A}, v{A}']
        if o.amp:
            L += ['s_memrealtime s[86:87]', 's_waitcnt lgkmcnt(0)', 's_sub_u32 s89, s86, s88', 's_min_u32 s89, s89, 10000', 's_lshl_b32 s89, s89, 3',
                  'L_ampspin:', 's_memrealtime s[86:87]', 's_waitcnt lgkmcnt(0)', 's_sub_u32 s86, s86, s88', 's_cmp_lt_u32 s86, s89', 's_cbranch_scc1 L_ampspin']
        if o.padat:
            L += ['L_padspin:', f'buffer_load_dword v7, v8, {srd(SRD_DBG)}, 0 offen sc1', 's_waitcnt vmcnt(0)', 's_memrealtime s[86:87]',
                  'v_readfirstlane_b32 s88, v7', 's_waitcnt lgkmcnt(0)', 's_cmp_eq_u32 s88, 0', 's_cbranch_scc1 L_padspin'] + (['s_not_b32 s88, s88'] if o.padmin else []) + [
                  's_sub_u32 s86, s86, s88', 's_cmp_lt_i32 s86, 6000', 's_cbranch_scc1 L_padspin']
        L += [f'buffer_store_short v{A}, v2, {srd(SRD_OUT)}, s{S_T2} offen{o.ofl}'] + self.stamp(5) + self.stamp_flush() + ['s_endpgm']
        return [tr + body * 3 + body2 + self.seq(L)]

    def cin(self):
        o = self.opt
        self.role = 'c'
        cw = S_CW
        S_BCUR, S_BD, S_EXP, S_EXPC, S_PREV, S_SC, S_PH = 74, 75, 48, 49, 50, 51, 97
        S_CHK = S_M26
        vFA, vFR, vOne, vF, vFG, vFGa = 1, 2, 3, 4, 5, 6
        vRaw, vLin, vLinB, vXw, vX1, vX2, vSh, vAcc, vOr, vSI, vXi, vC16, vPWL, vPXL, PXR = range(7, 22)
        FT, XI, aD, aS, aLc, aC = 22, 24, 28, 29, 30, 31
        RAW, X, RZ, D = 32, 40, 52, 68
        WA, WB, WC, WS_, WL = 84, 128, 172, 216, 240
        Da, Db, Dc, Ds = D, D + 4, D + 8, D + 12
        T = 40
        half, i32, t3, t4, t5, vg, vm = T + 1, T + 2, T + 3, T + 4, T + 5, T + 6, T + 7
        vStg = 48
        GB = 49
        vMx, vWr, vL6, vL, vWu, vWo = range(62, 68)
        vDl = 247
        AD = 68
        vA3, vBs0, vBs1a, vBs1b, vUw, vV2w, vE, V3T = 240, 241, 242, 243, 244, 245, 246, 81
        BALL, UP, AFR, DALL = 84, 84, 132, 140
        BT, SUM, OUT = 216, 84, 132
        XJ = 204
        F_W3, F_W2, F_W1, F_PEEL, F_M, F_U, F_V3, F_XB = 0, 4, 8, 12, 16, 24, 32, 36
        nsync = [0]

        def sig(off, A=vFA, **kw):
            return [WaitTag(lgkm0=True, **kw), f'ds_add_u32 v{A}, v{vOne} offset:{off}']

        def wait(off, tgt, R=vFR):
            nsync[0] += 1
            lab = f'L_csync{nsync[0]}'
            return [f'{lab}:', f'ds_read_b32 v{vF}, v{R} offset:{off}', 's_waitcnt lgkmcnt(0)',
                    f'v_cmp_gt_u32 vcc, {tgt}, v{vF}', f's_cbranch_vccnz {lab}']

        def dppred(op, r):
            return [f'{op}_dpp v{r}, v{r}, v{r} {ctl} row_mask:{rm} bank_mask:0xf'
                    for (ctl, rm) in (('row_shr:1', '0xf'), ('row_shr:2', '0xf'), ('row_shr:4', '0xf'), ('row_shr:8', '0xf'),
                                      ('row_bcast:15', '0xa'), ('row_bcast:31', '0xc'))]

        def absmax(dst, regs):
            c = [f'v_max3_f32 v{dst}, abs(v{regs[0]}), abs(v{regs[1]}), abs(v{regs[2]})']
            k = 3
            while k < len(regs):
                b = regs[k + 1] if k + 1 < len(regs) else regs[k]
                c.append(f'v_max3_f32 v{dst}, v{dst}, abs(v{regs[k]}), abs(v{b})')
                k += 2
            return c

        def waitmax(off, dst_e, top, R=vFR):
            nsync[0] += 1
            lab = f'L_csync{nsync[0]}'
            return [f'{lab}:', f'ds_read_b64 {vr(T, 2)}, v{R} offset:{off}', 's_waitcnt lgkmcnt(0)',
                    f'v_cmp_gt_u32 vcc, 4, v{T}', f's_cbranch_vccnz {lab}',
                    f'v_readfirstlane_b32 s{dst_e}, v{T + 1}',
                    f's_lshr_b32 s{dst_e}, s{dst_e}, 23', f's_sub_i32 s{dst_e}, {top}, s{dst_e}', f's_min_i32 s{dst_e}, s{dst_e}, 40']

        def postmax(r, off, **kw):
            return dppred('v_max_u32', r) + [f'v_readlane_b32 s{S_T0}, v{r}, 63', f'v_mov_b32 v{r}, s{S_T0}',
                                             f'ds_max_u32 v{vFA}, v{r} offset:{off + 4}', WaitTag(**kw), f'ds_add_u32 v{vFA}, v{vOne} offset:{off}']
        setsc = lambda e: [f's_add_i32 s{S_SC}, s{e}, 127', f's_lshl_b32 s{S_SC}, s{S_SC}, 23']

        S_C, S_DYN, S_ST0, S_TK = S_R, S_MB, 98, 99
        vTk, vZ = 250, 251
        L = ['L_cin:', f's_and_b32 s{S_T0}, s{S_MB}, 3', f's_mul_i32 s{S_T0}, s{S_T0}, 3', f's_add_u32 s{S_C}, s{S_T0}, s{S_R}',
             f's_sub_u32 s{S_C}, s{S_C}, 6', 's_cbranch_scc1 L_rem',
             f's_and_b32 s{cw}, s{S_WAVE}, 3', f's_lshr_b32 s{S_GRP}, s{S_WAVE}, 2',
             f's_lshl_b32 s{S_GW}, s{S_C}, 3', f's_add_u32 s{S_GW}, s{S_GW}, s{S_WAVE}',
             f's_mul_i32 s{S_T0}, s{S_GW}, {10 * 128}',
             f'v_min_u32 v{T}, 9, v0', f'v_lshlrev_b32 v{T}, 7, v{T}',
             f'v_lshlrev_b32 v{vStg}, 4, v0',
             f's_lshl_b32 s{S_STG}, s{cw}, 10',
             f's_cmp_eq_u32 s{cw}, 2', f's_cselect_b64 s[{S_EX}:{S_EX + 1}], 0x1fffff, -1',
             f's_cmp_eq_u32 s{cw}, 3', f's_cselect_b32 s{S_STG9}, 0, {8 * 4096}',
             f's_add_u32 s{S_STG9}, s{S_STG9}, s{S_STG}',
             f's_mul_i32 s{S_T1}, s{S_C}, 2979', f's_lshr_b32 s{S_T1}, s{S_T1}, 6', f's_mul_i32 s{S_ST0}, s{S_C}, 44',
             f's_and_b32 s{S_T2}, s2, 7', f's_add_u32 s{S_RC}, s{S_ST0}, s{S_WAVE}', f's_lshl_b32 s{S_RC}, s{S_RC}, 2',
             f's_lshl_b32 s{S_ST0}, s{S_T2}, 14', f's_add_u32 s{S_RC}, s{S_RC}, s{S_ST0}', f's_add_u32 s{S_RC}, s{S_RC}, {5 * 2048}', f's_mul_i32 s{S_ST0}, s{S_C}, 44', f's_lshl_b32 s{S_PX}, s{S_T2}, 9', f's_add_u32 s{S_SAMP}, s{S_PX}, s{S_ST0}', f's_add_u32 s{S_PX}, s{S_PX}, s{S_T1}',
             f's_add_u32 s{S_SAMP}, s{S_SAMP}, s{S_WAVE}', f's_mul_i32 s{S_SAMP}, s{S_SAMP}, 104',
             f's_lshl_b32 s{S_ST0}, s{S_C}, 2', f's_add_u32 s{S_ST0}, s{S_ST0}, s{S_WAVE}', f's_add_u32 s{S_ST0}, s{S_ST0}, s{S_T2}', f's_and_b32 s{S_ST0}, s{S_ST0}, 7',
             f's_mul_i32 s{S_ST0}, s{S_ST0}, {16384 + o.shs}', f's_add_u32 s{S_ST0}, s{S_ST0}, {6 * 2048}',
             f's_sub_u32 s{S_LOOP}, 6, s{S_GRP}', f's_lshl_b32 s{S_TK}, s{S_GRP}, 1', f's_mov_b32 s{S_DYN}, -1',
             f'v_lshrrev_b32 v{t3}, 3, v0', f'v_min_u32 v{t3}, 6, v{t3}', f'v_lshlrev_b32 v{vXi}, 4, v{t3}',
             f's_mul_i32 s{S_T2}, s{S_T2}, 88', f's_add_u32 s{S_T2}, s{S_GW}, s{S_T2}', f's_mov_b32 s{S_T3}, 704',
             f'v_mov_b32 v{t4}, s{S_T2}', f'v_mad_u32_u24 v{vPWL}, v0, s{S_T3}, v{t4}',
             f's_mul_i32 s{S_T2}, s{S_GW}, 104', f's_sub_u32 s{S_T2}, s{S_T2}, {13 * 26 - 25}',
             f'v_min_u32 v{t4}, {12 + o.pfr}, v0', f'v_mul_u32_u24 v{t5}, 26, v{t4}', f'v_add_u32 v{t5}, s{S_T2}, v{t5}',
             f'v_cmp_lt_u32 vcc, 12, v{t4}', f'v_cndmask_b32 v{vPWL}, v{vPWL}, v{t5}, vcc', f'v_lshlrev_b32 v{vPWL}, 7, v{vPWL}',
             f's_mov_b32 s{S_PW}, {o.pfe0 * 832 * 128}',
             f'v_mov_b32 v{vFR}, {L_FLG}', f'v_lshlrev_b32 v{vFA}, 20, v0', f'v_add_u32 v{vFA}, {L_FLG}, v{vFA}',
             f'v_and_b32 v{t4}, 7, v0', f'v_lshlrev_b32 v{vC16}, 4, v{t4}', f'v_and_b32 v{t4}, 15, v0', f'v_lshl_add_u32 v{t4}, v{t4}, 2, v{vFR}',
             f'v_mov_b32 v{vOne}, 0', f'ds_write_b32 v{t4}, v{vOne}',
             f'v_lshrrev_b32 v{half}, 5, v0', f'v_and_b32 v{i32}, 31, v0',
             's_waitcnt lgkmcnt(0)', f'v_mov_b32 v{vOne}, 1']
        L += self.tlb1(t5, 255)
        L += self.build_srd(SRD_CIN, S_CIN, 105456)
        L += [f'buffer_load_dword v255, v{T}, {srd(SRD_CIN)}, s{S_T0} offen'] if o.coop else []
        L += self.build_srd(SRD_W, S_W1, 1664 * 3328)

        def pfw():
            return [f's_mov_b64 exec, {(1 << (13 + o.pfr)) - 1}', f'buffer_load_dword v255, v{vPWL}, {srd(SRD_W)}, s{S_PW} offen', 's_mov_b64 exec, -1',
                    f's_add_u32 s{S_PW}, s{S_PW}, {352 * 3328}']
        L += ['s_barrier'] + (pfw() if o.pf1 == 0 else [])
        L += self.build_srd(SRD_IDX, S_IDX, 4096 * 104)

        def pfx_a():
            return [f'buffer_load_dword v{PXR}, v{vPXL}, {srd(SRD_IDX)}, s{S_PX} offen',
                    f's_cmp_eq_u32 s{S_PX}, s{S_PXE}', f's_cselect_b32 s{S_PXE}, 0x7000000, s{S_PXE}',
                    f's_cselect_b32 s{S_PX}, 0x7000000, s{S_PX}',
                    f's_add_u32 s{S_PX}, s{S_PX}, 24', f's_min_u32 s{S_PX}, s{S_PX}, s{S_PXE}']

        def pfx_b():
            return [f'v_lshlrev_b32 v{PXR}, 7, v{PXR}', f'buffer_load_dword v255, v{PXR}, {srd(SRD_TAB)}, 0 offen']

        def xidx(XI=XI, off=0, adv=True):
            c = [f'buffer_load_dwordx4 {vr(XI, 4)}, v{vXi}, {srd(SRD_IDX)}, s{S_SAMP} offen offset:{off}']
            if adv:
                c.append(f's_add_u32 s{S_SAMP}, s{S_SAMP}, {8 * 104}')
            return c

        def xdma(XI=XI, lo=0):
            c = []
            for u in range(4):
                if u == 2:
                    c += ['s_mov_b32 exec_hi, 0x0000ffff']
                c += [f'v_lshl_add_u32 v{XI + u}, v{XI + u}, 7, v{vC16}']
                if u == 3:
                    c += ['s_mov_b32 exec_lo, 0', 's_mov_b32 exec_hi, 0xffff0000', f'v_mov_b32 v{XI + 3}, v{XI + 1}', f'v_mov_b32 v{XI + 2}, v{XI + 1}',
                          's_mov_b32 exec_hi, 0x00ff0000', f'v_mov_b32 v{XI + 2}, v{XI}', 's_mov_b64 exec, -1']
            for u in range(4):
                c += [f's_add_u32 m0, s{S_BCUR}, {u * XPI + lo}']
                if u == 3:
                    c += ['s_mov_b32 exec_hi, 0x00ffffff']
                c.append(I(f'buffer_load_dwordx4 v{XI + u}, {srd(SRD_TAB)}, 0 offen lds', tag='XB'))
                if u == 3:
                    c += ['s_mov_b32 exec_hi, -1']
            return c
        wco = self.build_srd(SRD_WCO, S_WCO, 156) + [f's_mov_b32 m0, {L_WCO}', 's_mov_b64 exec, 0x7ff',
              I(f'buffer_load_dwordx4 v{vStg}, {srd(SRD_WCO)}, 0 offen lds', tag='STG3'),
              's_mov_b64 exec, -1']
        L += self.stamp0()

        def stage(dst, goff, tag):
            st = []
            for m in range(8):
                st.append((f's_add_u32 m0, s{S_STG}, {dst + m * 4096}', f's_add_u32 s{S_TW}, s{S_STG}, {goff + m * 4096}',
                           I(f'buffer_load_dwordx4 v{vStg}, {srd(SRD_CIN)}, s{S_TW} offen lds', tag=tag)))
            st.append((f's_add_u32 m0, s{S_STG9}, {dst}', f's_add_u32 s{S_TW}, s{S_STG9}, {goff}',
                       f's_mov_b64 exec, s[{S_EX}:{S_EX + 1}]',
                       I(f'buffer_load_dwordx4 v{vStg}, {srd(SRD_CIN)}, s{S_TW} offen lds', tag=tag),
                       's_mov_b64 exec, -1'))
            return st

        L += [f's_cmp_lg_u32 s{S_GRP}, 0', 's_cbranch_scc1 L_g1a']
        c0 = self.seq(L)
        sA, sB = (('1', A1, 0, F_W1), ('2', A2, 35152, F_W2)) if o.w1first else (('2', A2, 35152, F_W2), ('1', A1, 0, F_W1))
        stA, stB = stage(sA[1], sA[2], 'STG' + sA[0]), stage(sB[1], sB[2], 'STG' + sB[0])
        stg = [wco + stage(A3, 70304, 'STG3') + stA[:o.sigat],
               sig(F_W3, vm_tags=['STG3']) + self.stamp(1) + stA[o.sigat:] + stB[:o.sig2],
               sig(sA[3], vm_tags=['STG' + sA[0]]) + stB[o.sig2:]]
        g0a = self.seq(stg[:o.ccpos] + ['s_branch L_addrc'])
        L = ['L_g1a:', 's_setprio 1',
             f'v_bfe_u32 v{t3}, v0, 2, 2', f'v_lshl_add_u32 v{t3}, v{half}, 3, v{t3}',
             f'v_bfe_u32 v{t4}, v0, 4, 1', f'v_lshlrev_b32 v{t4}, 5, v{t4}',
             f'v_and_b32 v{t5}, 3, v0', f'v_lshl_add_u32 v{t4}, v{t5}, 3, v{t4}',
             f'v_lshl_add_u32 v{vA3}, v{t3}, 6, v{t4}', f'v_add_u32 v{vA3}, {V3OFF}, v{vA3}',
             f's_lshl_b32 s{S_T0}, s{cw}, 6', f's_add_u32 s{S_T0}, s{S_T0}, {A2}',
             f'v_add_u32 v{t4}, s{S_T0}, v{t4}',
             f'v_mul_u32_u24 v{t5}, 1352, v{t3}', f'v_add_u32 v{vBs0}, v{t4}, v{t5}',
             f'v_add_u32 v{t5}, 16, v{t3}', f'v_min_u32 v{t5}, 25, v{t5}',
             f'v_mul_u32_u24 v{t5}, 1352, v{t5}', f'v_add_u32 v{vBs1a}, v{t4}, v{t5}',
             f'v_add_u32 v{t5}, 20, v{t3}', f'v_min_u32 v{t5}, 25, v{t5}',
             f'v_mul_u32_u24 v{t5}, 1352, v{t5}', f'v_add_u32 v{vBs1b}, v{t4}, v{t5}',
             f's_lshl_b32 s{S_T0}, s{cw}, 5', f'v_add_u32 v{vE}, s{S_T0}, v{i32}',
             f'v_mul_u32_u24 v{t3}, 52, v{vE}', f'v_lshl_add_u32 v{t3}, v{half}, 3, v{t3}',
             f'v_add_u32 v{vUw}, {A3}, v{t3}',
             f'v_lshlrev_b32 v{t3}, 1, v{vE}', f'v_add_u32 v{vV2w}, {V2OFF}, v{t3}',
             f'v_mov_b32 v{BT}, 0', f'v_mov_b32 v{BT + 1}, 0',
             f'v_lshlrev_b32 v{t3}, 3, v0', f'v_add_u32 v{t4}, {V3OFF}, v{t3}',
             f's_lshl_b32 s{S_T0}, s{cw}, 9', f'v_add_u32 v{t4}, s{S_T0}, v{t4}', f'ds_write_b64 v{t4}, {vr(BT, 2)}']
        L += [f'v_lshl_add_u32 v{t3}, v{half}, 7, v{vE}', f's_mov_b32 s{S_T1}, 2521', f's_mov_b32 s{S_T2}, {V3OFF}']
        for p_ in range(3):
            L += [f'v_mul_u32_u24 v{t4}, s{S_T1}, v{t3}', f'v_lshrrev_b32 v{t4}, 16, v{t4}',
                  f'v_mad_u32_u24 v{t4}, v{t4}, 12, s{S_T2}', f'v_lshl_add_u32 v{AD + p_}, v{t3}, 1, v{t4}']
            if p_ < 2:
                L += [f'v_add_u32 v{t3}, 256, v{t3}']
        L += [f'v_mov_b32 v{t4}, 676', f'v_cmp_gt_u32 s[{S_MASK}:{S_MASK + 1}], v{t4}, v{t3}']
        for m in range(6):
            L += [f'v_add_u32 v{t3}, {128 * m}, v{vE}', f'v_mul_u32_u24 v{t4}, s{S_T1}, v{t3}', f'v_lshrrev_b32 v{t4}, 16, v{t4}',
                  f'v_lshl_add_u32 v{t4}, v{t4}, 2, v{vUw}', f'v_add_u32 v{AD + 4 + m}, {m * 6656}, v{t4}']
        L += [f'v_lshlrev_b32 v{AD + 10}, 4, v{half}', f'v_add_u32 v{AD + 10}, {L_WCO + 104}, v{AD + 10}',
              f'v_lshlrev_b32 v{AD + 11}, 1, v0', f'v_add_u32 v{AD + 11}, {L_WCO}, v{AD + 11}',
              f'v_lshlrev_b32 v{AD + 12}, 6, v0', f'v_add_u32 v{AD + 12}, {V3OFF + 52}, v{AD + 12}']
        g1a = self.seq(L)

        N_ = (0, 1, 2, 3)
        classes = []
        for d in ZD:
            for (a, ha, b, hb) in d:
                if cls(a, ha)[1] == N_ and cls(b, hb)[1] != N_ and cls(b, hb)[1] not in classes:
                    classes.append(cls(b, hb)[1])
        assert len(classes) == 5
        base = {(N_, N_): GB}
        for k, c in enumerate(classes):
            base[(N_, c)] = GB + 1 + 2 * k
            base[(c, N_)] = GB + 2 + 2 * k
        SP1, SP2 = GB + 11, GB + 12
        pk4 = lambda t: '0x%08x' % sum((x & 0xff) << (8 * k) for k, x in enumerate(t))
        L = ['L_addrc:',
             f's_and_b32 s{S_T2}, s{S_WAVE}, 1', f's_lshl_b32 s{S_T2}, s{S_T2}, 1', f'v_add_u32 v{vg}, s{S_T2}, v{half}',
             f'v_min_u32 v{t3}, 25, v{i32}',
             f's_mul_i32 s{S_T0}, s{S_GRP}, {UST - 1352}', f's_add_u32 s{S_T0}, s{S_T0}, 1352',
             f's_mul_i32 s{S_T1}, s{S_GRP}, {A3 - A1}', f's_add_u32 s{S_T1}, s{S_T1}, {A1}',
             f'v_mul_u32_u24 v{t4}, s{S_T0}, v{t3}', f'v_add_u32 v{t4}, s{S_T1}, v{t4}',
             f'v_lshlrev_b32 v{vDl}, 2, v{t3}', f'v_add_u32 v{vDl}, {A3 - A1}, v{vDl}',
             f'v_mul_u32_u24 v{vL}, 52, v{t3}', f'v_lshl_add_u32 v{vL}, v{vg}, 1, v{vL}', f'v_add_u32 v{vL}, {V2OFF}, v{vL}',
             f'v_lshlrev_b32 v{vWo}, 1, v{t3}', f'v_add_u32 v{vWo}, {L_WCO}, v{vWo}',
             f'v_mad_u32_u24 v{SP1}, v{vg}, 52, v{t4}',
             f'v_lshl_add_u32 v{SP2}, v{vg}, 1, v{t4}',
             f'v_lshl_add_u32 v{GB}, v{vg}, 1, v{SP1}',
             f'v_lshlrev_b32 v{t3}, 3, v{vg}']
        for k, c in enumerate(classes):
            L += [f's_mov_b32 s{S_T0}, {pk4(c)}', f'v_bfe_i32 v{t5}, s{S_T0}, v{t3}, 8',
                  f'v_lshl_add_u32 v{GB + 1 + 2 * k}, v{t5}, 1, v{SP1}', f'v_mad_i32_i24 v{GB + 2 + 2 * k}, v{t5}, 52, v{SP2}']
        L += [f's_mov_b32 s{S_T0}, {pk4((0, 54, 2, 0))}', f'v_bfe_u32 v{t5}, s{S_T0}, v{t3}, 8', f'v_add_u32 v{SP1}, v{t5}, v{t4}',
              f'v_add_u32 v{SP2}, 52, v{t4}', f'v_mov_b32 v{vm}, {OOB}',
              f'v_cmp_eq_u32 vcc, 3, v{vg}', f'v_cndmask_b32 v{SP1}, v{SP1}, v{vm}, vcc', f'v_cndmask_b32 v{vWo}, v{vm}, v{vWo}, vcc',
              f'v_cmp_eq_u32 vcc, 2, v{vg}', f'v_cndmask_b32 v{SP2}, v{vm}, v{SP2}, vcc',
              f'v_cmp_gt_u32 vcc, 2, v{vg}', f'v_cndmask_b32 v{vL6}, v{vm}, v{vL}, vcc']
        L += [f's_lshr_b32 s{S_T1}, s{cw}, 1', f's_mul_i32 s{S_T1}, s{S_T1}, {6 * 1024}', f's_mul_i32 s{S_T0}, s{S_GRP}, {6 * 1024}',
              f'v_lshlrev_b32 v{t5}, 8, v{vg}',
              f'v_lshl_add_u32 v{t3}, v{i32}, 4, v{t5}', f'v_add_u32 v{vWr}, {TA}, v{t3}', f'v_add_u32 v{vWu}, {TB}, v{t3}',
              f'v_bfe_u32 v{t3}, v0, 2, 2', f'v_lshl_add_u32 v{t5}, v{t3}, 4, v{t5}', f'v_and_b32 v{t3}, 3, v0',
              f'v_lshl_add_u32 v{t4}, v{t3}, 6, v{t5}', f'v_add_u32 v{t4}, {TC}, v{t4}',
              f'v_cmp_lt_u32 vcc, 15, v{i32}', f'v_cndmask_b32 v{vWr}, v{vWr}, v{t4}, vcc', f'v_add_u32 v{t4}, 16, v{t4}',
              f'v_cndmask_b32 v{vWu}, v{vWu}, v{t4}, vcc',
              f'v_lshl_add_u32 v{t4}, v{t3}, 5, v{t5}', f'v_add_u32 v{t4}, {TD - 16}, v{t4}',
              f'v_cmp_lt_u32 vcc, 19, v{i32}', f'v_cndmask_b32 v{vWr}, v{vWr}, v{t4}, vcc',
              f'v_add_u32 v{vWr}, s{S_T1}, v{vWr}', f'v_add_u32 v{vWu}, s{S_T0}, v{vWu}',
              f'v_cmp_lt_u32 vcc, 25, v{i32}', f'v_cndmask_b32 v{vWr}, v{vWr}, v{vm}, vcc', f'v_cndmask_b32 v{vWu}, v{vWu}, v{vm}, vcc',
              f'v_mov_b32 v{vMx}, 0']
        L += [f's_mul_i32 s{S_BCUR}, s{S_WAVE}, {XBSZ}', f's_add_u32 s{S_BCUR}, s{S_BCUR}, {XB0}', f's_mov_b32 s{S_BD}, {XB1 - XB0}',
              f'v_add_u32 v{aD}, {TA}, v{vStg}',
              f'v_and_b32 v{t3}, 11, v0', f'v_cmp_eq_u32 vcc, 11, v{t3}', f'v_cndmask_b32 v{aC}, v{aD}, v{vm}, vcc',
              f'v_and_b32 v{t3}, 3, v0', f'v_cmp_eq_u32 vcc, 0, v{t3}', f'v_cndmask_b32 v{aLc}, v{aC}, v{vm}, vcc',
              f'v_lshrrev_b32 v{vg}, 4, v0', f'v_bfe_u32 v{t3}, v0, 1, 3', f'v_lshlrev_b32 v{t5}, 4, v{t3}', f'v_add_u32 v{t5}, {TD}, v{t5}',
              f'v_and_b32 v{t3}, 10, v0', f'v_cmp_eq_u32 vcc, 10, v{t3}', f'v_cndmask_b32 v{t5}, v{t5}, v{vm}, vcc',
              f'v_and_b32 v{t4}, 1, v0', f'v_lshl_add_u32 v{aS}, v{vg}, 9, v{t5}', f'v_lshl_add_u32 v{aS}, v{t4}, 2, v{aS}', f'v_add_u32 v{aS}, 1024, v{aS}',
              f'v_lshl_add_u32 v{FT}, v{vg}, 8, v{t5}', f'v_lshl_add_u32 v{FT}, v{t4}, 20, v{FT}',
              f'v_and_b32 v{vm}, 15, v0', f's_mov_b32 s{S_T0}, {XPI}',
              f'v_lshlrev_b32 v{t3}, 1, v{vm}', f'v_add_u32 v{t3}, s{S_BCUR}, v{t3}',
              f'v_mad_u32_u24 v{vRaw}, v{vg}, s{S_T0}, v{t3}',
              f's_lshl_b32 s{S_T0}, s{S_WAVE}, 10', f's_add_u32 s{S_T0}, s{S_T0}, {XCH}',
              f'v_add_u32 v{vXw}, s{S_T0}, v{vStg}',
              f'v_add_u32 v{t3}, 256, v{vStg}', f'v_and_b32 v{t3}, 1023, v{t3}', f'v_add_u32 v{vX1}, s{S_T0}, v{t3}',
              f'v_xor_b32 v{t3}, 512, v{vStg}', f'v_add_u32 v{vX2}, s{S_T0}, v{t3}', f'v_lshlrev_b32 v{vSh}, 4, v{half}']
        L += [f'v_mov_b32 v{r}, 0' for r in list(range(RAW, RAW + 8)) + list(range(BT, BT + 24))]
        L += [f'v_mul_u32_u24 v{t4}, {XPI}, v{vg}',
              f'v_bfe_u32 v{t5}, v0, 2, 2', f'v_lshl_add_u32 v{t4}, v{t5}, 7, v{t4}',
              f'v_and_b32 v{t5}, 3, v0', f'v_lshl_add_u32 v{vLinB}, v{t5}, 3, v{t4}', f'v_add_u32 v{vLin}, s{S_BCUR}, v{vLinB}',
              f'v_and_b32 v{t5}, 1, v0', f's_mov_b32 s{S_T0}, 0xaaaaaaaa', f'v_mul_lo_u32 v{vSI}, s{S_T0}, v{t5}', f'v_or_b32 v{vSI}, 0x44444444, v{vSI}',
              f'v_lshlrev_b32 v{vOr}, 1, v0', f'v_add_u32 v{vOr}, s{S_BCUR}, v{vOr}', f'v_mov_b32 v{vAcc}, 0x3f80',
              f'ds_write_b16 v{vOr}, v{vAcc} offset:{3 * XPI + 7 * 128}', f'v_add_u32 v{vOr}, s{S_BD}, v{vOr}']
        L += [f's_mul_i32 s{S_T3}, s{S_WAVE}, 6', f's_add_u32 s{S_PX}, s{S_PX}, s{S_T3}', f's_mul_i32 s{S_PX}, s{S_PX}, 104',
              f's_add_u32 s{S_PXE}, s{S_PX}, 80', f's_add_u32 s{S_PX}, s{S_PX}, {4 * o.pfx0}',
              f's_mov_b32 s{S_T3}, 10923', f'v_min_u32 v{t3}, 35, v0',
              f'v_mul_u32_u24 v{t4}, s{S_T3}, v{t3}', f'v_lshrrev_b32 v{t4}, 16, v{t4}',
              f'v_mul_u32_u24 v{t4}, {104 - 24}, v{t4}', f'v_lshl_add_u32 v{vPXL}, v{t3}, 2, v{t4}']
        L += self.stamp(14) + (pfw() if o.pf1 == 1 else [])
        L += [f's_cmp_eq_u32 s{S_GRP}, 0', 's_cbranch_scc1 L_g0pf']
        cc = self.seq(L)

        def bread(m, base):
            b = BALL + m * 8
            return [f'ds_read_b64_tr_b16 {vr(b, 2)}, v{vBs0} offset:{base + m * 256}',
                    f'ds_read_b64_tr_b16 {vr(b + 2, 2)}, v{vBs0} offset:{base + m * 256 + 4 * 1352}',
                    f'ds_read_b64_tr_b16 {vr(b + 4, 2)}, v{vBs1a} offset:{base + m * 256}',
                    f'ds_read_b64_tr_b16 {vr(b + 6, 2)}, v{vBs1b} offset:{base + m * 256}']

        def mm6(base, post=lambda m: []):
            c = []
            for m in range(3 if base is not None else 0):
                c += bread(m, base)
            for m in range(6):
                if m + 3 < 6 and base is not None:
                    c += bread(m + 3, base)
                b = BALL + m * 8
                d = DALL + (m % 4) * 16
                c.append(f'v_mfma_f32_32x32x16_bf16 {vr(d, 16)}, {vr(AFR, 4)}, {vr(b, 4)}, 0')
                c.append(f'v_mfma_f32_32x32x16_bf16 {vr(d, 16)}, {vr(AFR + 4, 4)}, {vr(b + 4, 4)}, {vr(d, 16)}')
                if m >= 2:
                    c += post(m - 2)
            return c + post(4) + post(5)

        e1 = [f's_sub_u32 s{S_T0}, s{S_PX}, {24 * 104}', f'buffer_load_dword v{XJ + 4}, v{vPXL}, {srd(SRD_IDX)}, s{S_T0} offen',
              f'buffer_load_dword v{XJ + 5}, v{vPXL}, {srd(SRD_IDX)}, s{S_PX} offen']
        e2 = [f'v_lshlrev_b32 v{XJ + 4}, 7, v{XJ + 4}', f'buffer_load_dword v255, v{XJ + 4}, {srd(SRD_TAB)}, 0 offen',
              f'v_lshlrev_b32 v{XJ + 5}, 7, v{XJ + 5}', f'buffer_load_dword v255, v{XJ + 5}, {srd(SRD_TAB)}, 0 offen']
        xx = xdma() + xdma(XJ, -4 * XBSZ) + xidx()
        L = sig(F_W3) + [f's_sub_u32 s{S_SAMP}, s{S_SAMP}, {4 * 104}'] + xidx(XJ, 0, False) + [f's_add_u32 s{S_SAMP}, s{S_SAMP}, {4 * 104}'] + xidx()
        L += e1 + [f's_add_u32 s{S_PX}, s{S_PX}, 24'] + pfx_a()
        L += wait(F_W3, 8) + self.stamp(2)
        uc0 = self.seq(L)
        L = []
        for s2 in range(2):
            for rd in range(2):
                L.append(f'ds_read_b64 {vr(AFR + 4 * s2 + 2 * rd, 2)}, v{AD + 10} offset:{s2 * 32 + rd * 8}')
        L += [f'ds_read_u16 v{t5}, v{AD + 11} offset:52']

        def vpost(m):
            p_ = m // 2
            c = [f'v_cvt_pk_bf16_f32 v{V3T + p_}, v{DALL + 16 * (m % 4)}, 0']
            if m % 2:
                c = ['s_mov_b32 exec_lo, 0'] + c + [f's_mov_b64 exec, s[{S_MASK}:{S_MASK + 1}]' if p_ == 2 else 's_mov_b32 exec_lo, -1',
                                                    f'ds_write_b16 v{AD + p_}, v{V3T + p_}']
            return c
        L += mm6(A3 - A2, vpost)
        L += ['s_mov_b64 exec, 0x3ffffff', f'ds_write_b16 v{AD + 12}, v{t5}', 's_mov_b64 exec, -1']
        L += self.stamp(3) + sig(F_V3) + (pfw() if o.pf1 == 2 else []) + [f'v_cmp_gt_u32 s[{S_MASK}:{S_MASK + 1}], 36, v{vE}']
        L += (e2 if o.epos == 0 else []) + (xx if o.xpos == 0 else []) + (e2 if o.epos == 1 else [])
        L += wait(F_W2, 4) + [bread(m, 0) for m in range(6)] + wait(F_V3, 4) + self.stamp(5) + [f's_setprio {o.uprio}']
        for s2 in range(2):
            for rd in range(2):
                L.append(f'ds_read_b64_tr_b16 {vr(AFR + 4 * s2 + 2 * rd, 2)}, v{vA3} offset:{s2 * 1024 + rd * 256}')

        def upost(m):
            d = DALL + 16 * (m % 4)
            c = [f'v_cvt_pk_bf16_f32 v{UP + 8 * m + qq}, v{d + 2 * qq}, v{d + 2 * qq + 1}' for qq in range(8)]
            if m == 5:
                c.append(f's_mov_b64 exec, s[{S_MASK}:{S_MASK + 1}]')
            w_ = [f'ds_write2_b32 v{AD + 4 + m}, v{UP + 8 * m + 2 * a}, v{UP + 8 * m + 2 * a + 1} offset0:{4 * a} offset1:{4 * a + 1}' for a in range(3)]
            return c + interleave(w_, [f'v_max3_f32 v{vMx}, v{vMx}, abs(v{d + 2 * qq}), abs(v{d + 2 * qq + 1})' for qq in range(7)])
        L += mm6(None, upost)
        L.append('s_mov_b32 exec_hi, 0')
        for m in (5, 4, 3, 2, 1, 0):
            L.append(f'ds_write_b32 v{AD + 4 + m}, v{UP + 8 * m + 6} offset:48')
            L.append(f'ds_write_b16 v{vV2w}, v{UP + 8 * m + 7} offset:{m * 256}')
            if m == 5:
                L.append('s_mov_b32 exec_lo, -1')
        L += ['s_mov_b64 exec, -1'] + postmax(vMx, F_U) + [f's_setprio {o.bprio}'] + (xx if o.xpos == 1 else []) + (e2 if o.epos == 2 else []) + self.stamp(6) + ['s_branch L_uph']
        uc = self.seq(L)

        L = ['L_g0pf:'] + stg[o.ccpos:] + [f's_add_u32 s{S_SAMP}, s{S_SAMP}, {8 * 104}', f's_add_u32 s{S_PX}, s{S_PX}, 24'] + xidx() + pfx_a()
        L += (pfw() if o.pf1 == 2 else []) + sig(sB[3], vm_tags=['STG' + sB[0]]) + self.stamp(4) + [f's_mov_b32 s{S_PH}, 0'] + wait(F_W1, 4) + self.stamp(2)
        L += [f's_cmp_ge_u32 s{cw}, 2', 's_cbranch_scc1 L_chunk2']
        g0pf = self.seq(L)

        def chunk(k):
            units = [(n, h) for n in range(12 * k, min(12 * k + 12, 44)) for h in range(2)]
            NB_, BA = 12, o.ba
            reads, maths = [], []
            for ui, (n, h) in enumerate(units):
                a, ha, b, hb = ZD[n][h]
                (fa, ca), (fb, cb) = cls(a, ha), cls(b, hb)
                tb = BT + (ui % NB_) * 2
                dst = SUM + 24 * (k % 2) + ui
                if ca != N_:
                    R = [f'ds_read_u16_d16_hi v{tb}, v{SP1} offset:{54 * 24}', f'ds_read_u16_d16_hi v{tb + 1}, v{SP2} offset:{54 * 24}']
                    M = [f'v_add_f32 v{dst}, v{tb}, v{tb + 1}']
                elif (a, ha) == (b, hb):
                    R = [f'ds_read_u16_d16_hi v{tb}, v{base[(ca, cb)]} offset:{54 * fa}']
                    M = [f'v_mov_b32 v{dst}, v{tb}']
                else:
                    R = [f'ds_read_u16_d16_hi v{tb}, v{base[(ca, cb)]} offset:{52 * fa + 2 * fb}',
                         f'ds_read_u16_d16_hi v{tb + 1}, v{base[(cb, ca)]} offset:{52 * fb + 2 * fa}']
                    M = [f'v_add_f32 v{dst}, v{tb}, v{tb + 1}']
                if ui % 2:
                    M = M + maths[-1] + [f'v_max3_f32 v{vMx}, v{vMx}, abs(v{dst - 1}), abs(v{dst})']
                    maths[-1] = []
                reads.append(R)
                maths.append(M)
            code = []
            nu = len(units)
            for ui in range(nu + BA):
                if ui < nu:
                    code += reads[ui]
                if ui == nu and k == 3:
                    code += [f'ds_read_u16_d16_hi v{LT + e}, v{vL} offset:{8 * e}' for e in range(6)]
                    code += [f'ds_read_u16_d16_hi v{LT + 6}, v{vL6} offset:48', f'ds_read_u16_d16_hi v{LT + 7}, v{vWo}']
                if ui >= BA:
                    code += maths[ui - BA]
            return code
        LT = BT + 8
        assert o.ba <= 8

        def conv(n):
            return [f'v_fma_mix{"hi" if h else "lo"}_f16 v{OUT + q}, v{SUM + 2 * q + h}, s{S_SC}, 0' for h in range(2) for q in range(4 * n, 4 * n + 4)]
        wr = lambda n, A: [f'ds_write_b128 v{A}, {vr(OUT + 4 * n, 4)} offset:{n * 1024}']
        ch, chb = [], []
        for k in range(4):
            ch.append(self.seq([f'L_chunk{k}:'] + chunk(k) + [f's_cmp_lg_u32 s{S_PH}, 0', f's_cbranch_scc1 L_uconv{k % 2}']))
            chb.append(self.seq(['s_branch L_w1conv'] if k == 1 else []))
        L = ['L_w1conv:'] + self.stamp(3) + postmax(vMx, F_M)
        L += [f'v_add_u32 v{GB + k}, v{GB + k}, v{vDl}' for k in range(13)]
        L += waitmax(F_M, S_T2, 141) + setsc(S_T2) + self.stamp(5)
        L += conv(0) + conv(1) + wr(0, vWr) + conv(2) + wr(1, vWr) + conv(3) + wr(2, vWr) + conv(4) + wr(3, vWr) + wr(4, vWr)
        L += [f's_cmp_ge_u32 s{cw}, 2', 's_cbranch_scc1 L_w1x']
        w1a = self.seq(L)
        w1b = self.seq(conv(5) + wr(5, vWr))
        w1c = self.seq(['L_w1x:'])
        L = ['L_uph:'] + self.stamp(7) + waitmax(F_U, S_T3, 140) + setsc(S_T3) + self.stamp(12)
        L += [f's_mov_b32 s{S_PH}, 1', f's_lshr_b32 s{S_T1}, s{S_WAVE}, 1',
              f's_cmp_eq_u32 s{S_T1}, 0', 's_cbranch_scc1 L_chunk0', f's_cmp_eq_u32 s{S_T1}, 1', 's_cbranch_scc1 L_chunk1',
              f's_cmp_eq_u32 s{S_T1}, 2', 's_cbranch_scc1 L_chunk2', 's_branch L_chunk3']
        uph = self.seq(L)
        wm1 = lambda: waitmax(F_M, S_T2, 141)
        u0 = self.seq(['L_uconv0:'] + self.stamp(13) + conv(0) + wm1() + wr(0, vWu) + conv(1) + wr(1, vWu) + conv(2) + wr(2, vWu) + ['s_branch L_built'])
        u1a = self.seq(['L_uconv1:'] + self.stamp(13) + conv(3) + wm1() + wr(3, vWu) + conv(4) + wr(4, vWu) + [f's_cmp_lg_u32 s{S_GRP}, 0', 's_cbranch_scc1 L_ulin'])
        u1b = self.seq(conv(5) + wr(5, vWu) + ['s_branch L_built'])
        L = ['L_ulin:'] + [f'v_mul_f32 v{LT + e}, s{S_SC}, v{LT + e}' for e in range(8)]
        L += [f'v_cvt_pk_bf16_f32 v{OUT + 20 + q}, v{LT + 2 * q}, v{LT + 2 * q + 1}' for q in range(4)] + wr(5, vWu)
        u1c = self.seq(L)

        w0x = self.build_srd(SRD_W2, S_W2, 3328) + [f'v_lshlrev_b32 v{FT}, 7, v0', f'buffer_load_dword v255, v{FT}, {srd(SRD_W2)}, 0 offen']

        slot = lambda k: RZ + 4 * (k % 4)
        MF = [('Lb', 0), ('a', 1), ('b', 1), ('d', 1), ('Lc', 0), ('a', 2), ('c', 1), ('b', 2), ('c', 2)]
        for k in range(3, 10):
            MF += ([('S', k)] if k % 2 else []) + [('a', k), ('b', k), ('c', k)]
        MF += [('a', 10), ('b', 10), ('a', 11), ('b', 11), ('c', 10), ('S', 11), ('c', 11)]
        if o.mo == 1:
            MF = [('Lb', 0), ('a', 1), ('d', 1), ('Lc', 0), ('b', 1), ('a', 2), ('c', 1), ('b', 2), ('a', 3), ('c', 2), ('S', 3), ('b', 3), ('c', 3)]
            for k in range(4, 10):
                MF += ([('S', k)] if k % 2 else []) + [('a', k), ('b', k), ('c', k)]
            MF += [('a', 10), ('b', 10), ('c', 10), ('a', 11), ('b', 11), ('S', 11), ('c', 11)]
        if o.mo == 2:
            MF = [('d', 1), ('Lb', 0), ('a', 1), ('Lc', 0), ('b', 1), ('a', 2), ('c', 1), ('b', 2), ('a', 3), ('c', 2), ('S', 3), ('b', 3), ('c', 3)]
            for k in range(4, 12):
                MF += ([('S', k)] if k % 2 else []) + [('a', k), ('b', k), ('c', k)]
        if o.mo == 3:
            MF = [('d', 1), ('Lb', 0), ('b', 1), ('a', 1), ('Lc', 0), ('c', 1)]
            for k in range(2, 12, 2):
                MF += [('c', k), ('c', k + 1), ('S', k + 1), ('a', k), ('a', k + 1), ('b', k), ('b', k + 1)] if k % 4 == 2 and k < 10 else \
                      [('b', k), ('b', k + 1), ('S', k + 1), ('a', k), ('a', k + 1), ('c', k), ('c', k + 1)]
        NM = len(MF)
        use = {k: [m for m, (t_, kk) in enumerate(MF) if kk == k or (t_ == 'S' and kk == k + 1)] for k in range(12)}
        pos = lambda t_, k: MF.index((t_, k))

        def mfma(m):
            t_, k = MF[m]
            if t_[0] == 'L':
                d, w = {'b': (Db, WL), 'c': (Dc, WL + 4)}[t_[1]]
                return f'v_mfma_f32_16x16x32_bf16 {vr(d, 4)}, {vr(w, 4)}, {vr(slot(0), 4)}, 0'
            if t_ == 'S':
                return f'v_smfmac_f32_16x16x64_f16 {vr(Ds, 4)}, {vr(WS_ + 2 * (k - 1), 4)}, {vr(slot(k - 1), 8)}, v{vSI}'
            d, w = {'a': (Da, WA), 'b': (Db, WB), 'c': (Dc, WC), 'd': (Ds, WS_)}[t_]
            return f'v_mfma_f32_16x16x32_f16 {vr(d, 4)}, {vr(w + 4 * (k - 1), 4)}, {vr(slot(k), 4)}, {"0" if t_ in "ad" and k == 1 else vr(d, 4)}'

        def wload(m):
            t_, k = MF[m]
            if t_[0] == 'L':
                a, w, off = {'b': (aD, WL, TB), 'c': (aLc, WL + 4, TC)}[t_[1]]
                return [f'ds_read_b128 {vr(w, 4)}, v{a} offset:{off - TA + 11 * 1024}']
            if t_ == 'd':
                return [f'ds_read_b128 {vr(WS_, 4)}, v{FT}']
            if t_ == 'S':
                w = WS_ + 2 * (k - 1)
                return [f'ds_read2_b32 {vr(w, 2)}, v{aS} offset0:0 offset1:2', f'ds_read2_b32 {vr(w + 2, 2)}, v{aS} offset0:64 offset1:66',
                        f'v_add_u32 v{aS}, 2048, v{aS}']
            w, a, off = {'a': (WA, aD, 0), 'b': (WB, aD, TB - TA), 'c': (WC, aC, TC - TA)}[t_]
            return [f'ds_read_b128 {vr(w + 4 * (k - 1), 4)}, v{a} offset:{off + (k - 1) * 1024}']

        def zops(n):
            z = slot(n // 4 + 1) + n % 4
            (a, ha, b, hb), (a2, ha2, b2, hb2) = ZD[n]
            if (a, b) == (a2, b2):
                return [f'v_pk_mul_f16 v{z}, v{X + a}, v{X + b} op_sel:[{ha},{hb}] op_sel_hi:[{ha2},{hb2}]']
            return [f'v_mul_f16_sdwa v{z}, v{X + a}, v{X + b} dst_sel:WORD_0 dst_unused:UNUSED_PAD src0_sel:WORD_{ha} src1_sel:WORD_{hb}',
                    f'v_mul_f16_sdwa v{z}, v{X + a2}, v{X + b2} dst_sel:WORD_1 dst_unused:UNUSED_PRESERVE src0_sel:WORD_{ha2} src1_sel:WORD_{hb2}']

        cvt = lambda d, a, b: f'v_cvt_pk_f16_f32 v{d}, v{a}, v{b}'
        LAT = o.lat

        class It:
            def __init__(s, name, G, code, lo, hi, pre):
                s.name, s.G, s.code, s.lo, s.hi, s.pre, s.at = name, G, code, lo, hi, list(pre), None

        NG = 14
        items = {}

        def add(name, G, code, lo=-10**9, hi=10**9, pre=()):
            items[(name, G)] = It(name, G, code, lo, hi, pre)
        usej = lambda j: [n for n, d in enumerate(ZD) if any(a // 4 == j or b // 4 == j for (a, _, b, _) in d)]
        lastz = {j: max(usej(j)) for j in range(3)}
        for G in range(NG):
            c, b0 = G % 4, G * NM
            for r in range(8):
                add(f'raw{r}', G, f'ds_read_u16_d16_hi v{RAW + r}, v{vRaw} offset:{r * 128 + c * 32}', lo=b0 - o.rspan, hi=b0 - o.rlead,
                    pre=[(f'co{q}', G - 1, 0) for q in range(4)] + ([('swr', G, 0)] if c == 0 else []))
            for q in range(4):
                add(f'co{q}', G, cvt(X + q - 1, RAW + q - 1, RAW + q + 2) if q else cvt(X + 3, RAW + 6, RAW + 7), hi=b0 - 4,
                    pre=[(f'raw{r}', G, LAT) for r in range(8)] + [(f'z{lastz[0]}', G - 1, 0)])
            add('wo', G, f'ds_write_b128 v{vXw}, {vr(X, 4)}', hi=b0 - 2, pre=[(f'co{q}', G, 0) for q in range(4)] + [('r2', G - 1, 0)])
            add('r1', G, f'ds_read_b128 {vr(X + 4, 4)}, v{vX1}', hi=b0, pre=[('wo', G, 0)])
            add('r2', G, f'ds_read_b128 {vr(X + 8, 4)}, v{vX2}', hi=b0 + 1, pre=[('r1', G, 0)])
            for q in range(3):
                add(f'al{q}', G, f'v_alignbit_b32 v{X + 8 + q}, v{X + 8 + q}, v{X + 8 + q}, v{vSh}', hi=b0 + 20, pre=[('r2', G, LAT)])
            if c == 0:
                add('swr', G, [f'v_add_u32 v{vRaw}, s{S_BD}, v{vRaw}', WaitTag(vm_tags=['XB'])], lo=b0 - o.rspan - 1, hi=b0 - o.rspan - 1,
                    pre=[(f'raw{r}', G - 1, 0) for r in range(8)])
            for p in range(2):
                add(f'lin{p}', G, f'ds_read_b64_tr_b16 {vr(slot(0) + 2 * p, 2)}, v{vLin} offset:{p * 512 + c * 32}',
                    lo=b0 - NM + max(use[8]), hi=b0 + min(use[0]) - 1 - LAT, pre=[('swl', G, 0)] if c == 0 else [])
            if c == 0:
                add('swl', G, [f's_add_u32 s{S_TW}, s{S_BCUR}, s{S_BD}', f'v_add_u32 v{vLin}, s{S_TW}, v{vLinB}'], lo=b0 - NM + 20, hi=b0 - 12,
                    pre=[(f'lin{p}', G - 1, 0) for p in range(2)])
            for n in range(44):
                k = n // 4 + 1
                js = {x // 4 for (a, _, b, _) in ZD[n] for x in (a, b)}
                pre = [(f'co{q}', G, 0) for q in range(4)] + ([('r1', G, LAT)] if 1 in js else []) + ([(f'al{q}', G, 0) for q in range(3)] if 2 in js else [])
                if n:
                    pre.append((f'z{n - 1}', G, 0))
                if k == 5 and n % 4 < 3:
                    pre.append(('or1', G, 0))
                lo = b0 + max(use[k - 4]) if k >= 4 else b0 - NM + max(use[k + 8])
                if k == 1:
                    lo = max(lo, b0 - o.z1lo)
                zc = zops(n)
                if n == 12:
                    zc = [zops(12)[0], zops(13)[0]]
                if n == 13:
                    zc = [zops(12)[1], zops(13)[1]]
                add(f'z{n}', G, zc, lo=lo, hi=b0 + min(use[k]) - 2, pre=pre)
            s1 = slot(1)
            if c == 1:
                add('or1', G, f'v_or3_b32 v{vOr}, v{s1}, v{s1 + 1}, v{s1 + 2}', hi=b0 + 6, pre=[('z2', G, 0), ('blk', G - 2, 0)])
                add('ck', G, [f'v_and_b32 v{vOr}, 0x60006000, v{vOr}', f'v_cmp_ne_u32 s[{S_CHK}:{S_CHK + 1}], 0, v{vOr}'], hi=b0 + 30, pre=[('or1', G, 0)])
            e = b0 + NM
            rdy = lambda t_: b0 + pos(t_, 11) + o.flo
            for r in range(4):
                add(f'f{r}', G, f'v_{"mul" if c == 0 and r == 0 else "fmac"}_f32 v{vAcc}, v{Da + r}, v{Db + r}', lo=min(max(rdy('a'), rdy('b')), e + pos('Lb', 0) - 1), hi=e + pos('Lb', 0) - 1,
                    pre=[(f'f{r - 1}', G, 0) if r else ('f8', G - 1, 0)] + ([('blk', G - 1, 0)] if c == 0 else []))
            for r in range(2):
                add(f'f{4 + r}', G, f'v_add_f32 v{FT + r}, v{Ds + 2 * r}, v{Ds + 2 * r + 1}', lo=min(rdy('S'), e + pos('d', 1) - 1), hi=e + pos('d', 1) - 1,
                    pre=[('f8', G - 1, 0)] + ([('blk', G - 1, 0)] if c == 0 else []))
            for r, (x, y) in enumerate(((Dc, Dc + 1), (FT, Dc + 2), (FT + 1, Dc + 3))):
                add(f'f{6 + r}', G, f'v_fmac_f32 v{vAcc}, v{x}, v{y}', lo=rdy('c'), hi=e + pos('Lc', 0) - 1, pre=[(f'f{5 + r}', G, 0), ('f3', G, 0), ('f4', G, 0)])
            if c == 3:
                for q, x in enumerate(dppred('v_add_f32', vAcc)):
                    add(f'dp{q}', G, x, hi=e + 7 + 2 * q, pre=[(f'dp{q - 1}', G, 2) if q else ('f8', G, 2)])
                add('blk', G, '@BLK', hi=e + 20, pre=[('dp5', G, 1)])
        order = list(items.values())
        gaps = {}
        isv = lambda x: isinstance(x, str) and x.startswith('v_')
        isl = lambda x: isinstance(x, str) and x.startswith('ds_')
        for gp in range(-NM, NG * NM):
            gaps[gp] = []
            uv = ul = 0
            while True:
                cand = []
                for it in order:
                    if it.at is not None or it.lo > gp:
                        continue
                    ok = True
                    for (nm, G, dist) in it.pre:
                        p = items.get((nm, G))
                        if p is None:
                            continue
                        if p.at is None or p.at + dist > gp:
                            ok = False
                            break
                    if not ok:
                        continue
                    cv_, cl_ = sum(map(isv, flat([it.code]))), sum(map(isl, flat([it.code]))) * (o.wcost if it.name == 'wo' else 1)
                    if it.hi > gp and (uv + cv_ > o.gapv or ul + cl_ > o.gapl or uv + ul + cv_ + cl_ > o.gapt) and cv_ + cl_:
                        continue
                    cand.append((it, cv_, cl_))
                if not cand:
                    break
                it, cv_, cl_ = min(cand, key=lambda x: x[0].hi)
                it.at = gp
                uv += cv_; ul += cl_
                gaps[gp].append(it)
        late = [(it.name, it.G, it.at - it.hi) for it in order if it.at is not None and it.at > it.hi and 4 <= it.G < 12]
        print('late items', late)
        sig_ = lambda G0: [[(it.name, it.G - G0) for it in gaps[G0 * NM + m]] for m in range(4 * NM)]
        assert sig_(4) == sig_(8), 'schedule not periodic'
        for f_ in (isv, isl):
            print('gap load', ''.join(str(sum(sum(map(f_, flat([it.code]))) for it in gaps[4 * NM + m])) + ('|' if m % NM == NM - 1 else '') for m in range(4 * NM)))
        keep = lambda c: [x for x in flat([c]) if not (isinstance(x, str) and any(x.startswith(d) for d in o.drop.split(',') if d))]
        prio = lambda p, lab: [f's_cmp_lg_u32 s{S_GRP}, 0', f's_cbranch_scc1 {lab}', f's_setprio {p}', f'{lab}:'] if o.phi else []

        def sstamp():
            if not (o.stamps and o.itst):
                return []
            return [f's_memtime s[{S_ST}:{S_ST + 1}]', f's_add_u32 s{S_C0}, s{S_LOOP}, 20', 's_waitcnt lgkmcnt(0)',
                    f's_mov_b32 m0, s{S_C0}', f'v_writelane_b32 v252, s{S_ST}, m0']

        pcode = []
        for gp in range(-NM, 4 * NM):
            for it in gaps[gp]:
                if it.G >= 4 and not it.name.startswith(('sw', 'wx')):
                    pcode += flat([it.code])
        PFD = o.pfd
        L = ['L_built:'] + self.stamp(10) + [WaitTag(vm_tags=['XB']), f'v_mov_b32 v{vF}, s{S_GRP}', f'ds_add_u32 v{vFA}, v{vF} offset:{F_XB}']
        L += self.tlb2(vZ, vTk) + [f's_add_i32 s{S_EXP}, s{S_T2}, s{S_T3}'] + wait(F_XB, 4) + pcode + pfx_b() + pfx_a() + pfw()
        L += ['s_waitcnt lgkmcnt(0)', 's_barrier'] + (['s_setprio 1'] if o.phi else ['s_setprio 0']) + self.stamp(8)
        L += [wload(m) for m in range(PFD)] + prio(2, 'L_prf') + (['s_mov_b32 s100, 15'] if o.gst else [])
        peel2 = None
        for m in range(NM):
            L += [mfma(m)] + (wload(m + PFD) if m + PFD < NM else [])
            for it in gaps[4 * NM + m]:
                if it.code == '@BLK':
                    L += [f'ds_write_b16 v{vOr}, v{vAcc} offset:{3 * XPI + 7 * 128}']
                    L += self.cleared('L_cclr', vZ, vTk) + xdma(XI, XB1 - XB0) + (pfw() if o.pfp else [])
                    L += [f's_sub_i32 s{S_EXP}, 0, s{S_EXP}', f's_mov_b32 s{S_EXPC}, s{S_EXP}',
                          f's_mov_b32 s{S_PH}, 1', f's_mov_b32 s{S_PREV}, 1']
                    L += [f's_cmp_lg_u32 s{S_WAVE}, 7', 's_cbranch_scc1 L_nw0']
                    peel1 = self.seq(L)
                    peelw = self.seq(w0x)
                    L = ['L_nw0:']
                elif it.G >= 4:
                    L += flat([it.code])
        L += [f'ds_add_u32 v{vFA}, v{vOne} offset:{F_PEEL}', 's_branch L_grp1']
        peel2 = self.seq(L)
        prime = self.seq(['L_prime:'] + [f'v_mov_b32 v{r}, 0' for r in range(D, D + 16)] + [f'v_mov_b32 v{FT}, 0', f'v_mov_b32 v{FT + 1}, 0'] + pcode)
        blk_a = ['L_blk:', f's_cmp_eq_u32 s{S_PREV}, 0', 's_cbranch_scc1 L_blkend',
                 f'v_readlane_b32 s{S_TW}, v{vAcc}, 63', f'v_ldexp_f32 v{vAcc}, v{vAcc}, s{S_EXPC}', f'v_and_b32 v{vAcc}, -2, v{vAcc}',
                 f's_cmp_eq_u32 s{S_PREV}, 2', 's_cbranch_scc1 L_good',
                 f's_cmp_eq_u64 s[{S_CHK}:{S_CHK + 1}], 0', 's_cbranch_scc1 L_slow',
                 f's_bfe_u32 s{S_TW}, s{S_TW}, 0x80017', f's_cmp_eq_u32 s{S_TW}, 255', 's_cbranch_scc1 L_slow',
                 'L_good:', 's_mov_b32 exec_lo, 0', 's_mov_b32 exec_hi, 0x80000000',
                 f'buffer_store_dword v{vAcc}, v{vZ}, {srd(SRD_WS)}, s{S_RC} offen sc1', 's_mov_b64 exec, -1',
                 f's_add_u32 s{S_RC}, s{S_RC}, 32', f's_sub_u32 s{S_LOOP}, s{S_LOOP}, 1', f's_cmp_eq_u32 s{S_LOOP}, 0', 's_cbranch_scc1 L_cin_done']
        blk_a += [f's_cmp_eq_u32 s{S_LOOP}, 1', 's_cbranch_scc1 L_lastnext']
        blk_b = xdma() + [f's_add_u32 s{S_SAMP}, s{S_SAMP}, {8 * 104}', f's_cmp_lg_u32 s{S_LOOP}, s{S_TK}', 's_cbranch_scc1 L_nodma']
        blk_t = [f'v_mov_b32 v{vTk}, 1', 's_mov_b64 exec, 1', f'buffer_atomic_add v{vTk}, v{vZ}, {srd(SRD_WS)}, s{S_ST0} offen sc0',
                 's_mov_b64 exec, -1', f's_mov_b32 s{S_TK}, 8', 's_branch L_nodma',
                 'L_lastnext:', f's_cmp_lt_i32 s{S_DYN}, 0', f's_cselect_b32 s{S_RC}, s{S_RC}, s{S_DYN}']
        hook_a = [f's_cmp_lg_u32 s{S_TK}, 8', 's_cbranch_scc1 L_hk']
        hook_t = ['s_waitcnt vmcnt(0)', f'v_readfirstlane_b32 s{S_TW}, v{vTk}', f's_mov_b32 s{S_TK}, 0', f's_add_u32 s{S_TW}, s{S_TW}, 485',
                  f's_cmp_ge_u32 s{S_TW}, 512', 's_cbranch_scc1 L_hk',
                  f's_add_u32 s{S_LOOP}, s{S_LOOP}, 1',
                  f's_lshr_b32 s{S_SAMP}, s{S_ST0}, 14', f's_lshl_b32 s{S_DYN}, s{S_SAMP}, 12', f's_add_u32 s{S_DYN}, s{S_DYN}, s{S_TW}',
                  f's_lshl_b32 s{S_DYN}, s{S_DYN}, 2', f's_add_u32 s{S_DYN}, s{S_DYN}, {5 * 2048}',
                  f's_lshl_b32 s{S_SAMP}, s{S_SAMP}, 9', f's_add_u32 s{S_SAMP}, s{S_SAMP}, s{S_TW}', f's_mul_i32 s{S_SAMP}, s{S_SAMP}, 104']
        hook_b = ['L_hk:'] + xidx(adv=False)
        blk_b2 = ['L_nodma:'] + [f's_add_u32 s{S_BCUR}, s{S_BCUR}, s{S_BD}', f's_sub_u32 s{S_BD}, 0, s{S_BD}', f's_mov_b32 s{S_EXPC}, s{S_EXP}', f's_mov_b32 s{S_PH}, 1']
        blk_c = ['L_blkend:', f's_mov_b32 s{S_PREV}, s{S_PH}']
        parts = [[], [], [], [], []]
        cur = self.seq(['L_cin_loop:'])
        for m in range(4 * NM):
            if m == NM:
                parts[3] = cur
                cur = self.seq(['L_grp1:'])
            if m == o.hook:
                p4a = cur + self.seq(hook_a)
                p4t = self.seq(hook_t)
                cur = self.seq(hook_b)
            if o.gst and m % NM == 0:
                cur += self.seq([f's_memtime s[{S_ST}:{S_ST + 1}]', 's_add_u32 s100, s100, 1', 's_min_u32 s100, s100, 31', 's_waitcnt lgkmcnt(0)',
                                 's_mov_b32 m0, s100', f'v_writelane_b32 v253, s{S_ST}, m0'])
            if o.phi and m in (0, o.phi):
                cur += self.seq(prio(0 if m else 2, f'L_pr{m}'))
            cur += self.seq([mfma(m % NM)])
            for it in gaps[4 * NM + m]:
                if it.code == '@BLK':
                    parts[0] = cur + self.seq(sstamp() + ['s_waitcnt vmcnt(0)', f's_cmp_le_u32 s{S_LOOP}, {o.pfend}', 's_cbranch_scc1 L_blk'])
                    pfp = self.seq(pfx_b() + pfx_a() + pfw())
                    parts[1] = self.seq(blk_a)
                    parts[2] = self.seq(blk_b)
                    pbt = self.seq(blk_t)
                    pb2 = self.seq(blk_b2)
                    cur = self.seq(blk_c)
                else:
                    cur += self.seq(keep(it.code))
        cur += self.seq([f's_cmp_lg_u32 s{S_LOOP}, 1', 's_cbranch_scc1 L_cin_loop'])
        parts[4] = p4a + cur
        p4x = p4a + p4t + cur
        tail = self.seq([it.code for m in range(NM) for it in gaps[4 * NM + m] if it.G == 3 and it.code != '@BLK'] + ['s_branch L_blk'])
        Q = RZ
        rows = [(g, r) for g in range(4) for r in range(8)][:31]
        L = ['L_slow:', f'v_lshlrev_b32 v{FT}, 1, v0', f'v_add_u32 v{FT + 1}, s{S_BCUR}, v{FT}',
             f's_mul_i32 s{S_TW}, s{S_WAVE}, {XBSZ}', f's_add_u32 s{S_TW}, s{S_TW}, {XSP}',
             f'v_add_u32 v{FT}, s{S_TW}, v{FT}', f'v_add_u32 v{vLin}, s{S_TW}, v{vLinB}']
        L += [f'v_subrev_u32 v{vRaw}, s{S_BD}, v{vRaw}'] + wait(F_PEEL, 8)
        L += [f'ds_read_u16 v{Q + n}, v{FT + 1} offset:{g * XPI + r * 128}' for n, (g, r) in enumerate(rows)]
        L += [f'v_lshlrev_b32 v{Q + n}, 16, v{Q + n}' for n in range(31)]
        L += absmax(vAcc, list(range(Q, Q + 31))) + dppred('v_max_u32', vAcc)
        L += [f'v_readlane_b32 s{S_TW}, v{vAcc}, 63', f's_lshr_b32 s{S_TW}, s{S_TW}, 23', f's_sub_i32 s{S_TW}, 134, s{S_TW}',
              f's_min_i32 s{S_TW}, s{S_TW}, 16',
              f's_lshl_b32 s{S_EXPC}, s{S_TW}, 2', f's_sub_i32 s{S_EXPC}, s{S_EXP}, s{S_EXPC}',
              f's_add_i32 s{S_TW}, s{S_TW}, 127', f's_lshl_b32 s{S_TW}, s{S_TW}, 23', f'v_mov_b32 v{Q + 31}, s{S_TW}']
        L += [f'v_mul_f32 v{Q + n}, s{S_TW}, v{Q + n}' for n in range(31)]
        L += [f'ds_write_b16_d16_hi v{FT + 1}, v{Q + n} offset:{g * XPI + r * 128}' for n, (g, r) in enumerate(rows)]
        L += [f'v_mul_f32 v{Q + n}, s{S_TW}, v{Q + n}' for n in range(32)]
        L += [f'ds_write_b16_d16_hi v{FT}, v{Q + n} offset:{g * XPI + r * 128}' for n, (g, r) in enumerate(rows + [(3, 7)])]
        L += [f's_mov_b32 s{S_PREV}, 0', f's_mov_b32 s{S_PH}, 2', 's_waitcnt lgkmcnt(0)', 's_branch L_prime']
        slow = self.seq(L)
        fin_ = self.seq(['L_cin_done:'] + self.stamp(9) + self.stamp_flush() + self.padsig() + ['s_endpgm'])
        rest = parts[3] + parts[4]
        full = parts[0] + pfp + parts[1] + parts[2] + pb2 + rest
        nopf = parts[0] + parts[1] + parts[2] + pbt + pb2 + parts[3] + p4x
        last = parts[0] + parts[1] + pb2 + rest
        redo = lambda pf: parts[1][:10] + slow + prime + parts[0] + (pfp if pf else []) + parts[1][:3] + rest
        end_ = tail + parts[1][:-2] + fin_
        main = peel2 + parts[4] + full + full + parts[0] + pfp + redo(1) + full + nopf + parts[0] + redo(0) + nopf + last + tail + redo(0) + end_
        main2 = peel2 + parts[4] + parts[0] + pfp + redo(1) + full + nopf + last + end_
        traces = []
        for w in range(8):
            if w < 4:
                k0 = w & 2
                tr = c0 + g0a + cc + g0pf + ch[k0] + ch[k0 + 1] + chb[k0 + 1] + w1a + ([] if k0 else w1b) + w1c
            else:
                tr = c0 + g1a + cc + uc0 + uc
            k = w >> 1
            tr += uph + ch[k] + (u0 if k % 2 == 0 else u1a + (u1b if k == 1 else u1c))
            for mn in (main, main2):
                traces.append(tr + peel1 + (peelw if w == 7 else []) + mn)
        return traces

    def build(self):
        pro = self.prologue()
        d = self.dnn()
        cs = self.cin()
        rm = self.rem()
        self.seq(['L_end:', 's_endpgm'])
        traces = [pro + c for c in d + cs + rm]
        for t in traces:
            resolve_waits(t)
        for _ in range(2):
            for t in traces:
                resolve_hazards(t)
        hdr = open(os.path.join(os.path.dirname(os.path.abspath(__file__)), 'header.txt')).read()
        txt = hdr + f'; @launch grid=(256,1,1) block=(512,1,1) lds={LDS_TOTAL}\n'
        txt += f'''.amdgcn_target "amdgcn-amd-amdhsa--gfx950"
{DOC}.text
.globl {KNAME}
.p2align 8
.type {KNAME},@function
{KNAME}:
'''
        body_ = self.P.emit()
        if 'wsame' in self.opt.dbg:
            body_ = body_.replace(f's_add_u32 s{S_WSOFF}, s{S_WSOFF}, {32 * 3328}', f's_xor_b32 s{S_WSOFF}, s{S_WSOFF}, 0')
        if 'xsame' in self.opt.dbg:
            import re as _re
            body_ = _re.sub(r'v_lshl_add_u32 v(2[4-9]|3[01]), v(1[6-9]), 7', r'v_lshl_add_u32 v\1, v16, 7', body_)
            body_ = _re.sub(r'v_lshl_add_u32 v(2[4-9]|3[01]), v(2[0-3]), 7', r'v_lshl_add_u32 v\1, v20, 7', body_)
            body_ = _re.sub(r'v_lshl_add_u32 v(2[4-9]|3[01]), v(9[6-9]), 7', r'v_lshl_add_u32 v\1, v96, 7', body_)
            body_ = _re.sub(r'v_lshl_add_u32 v(2[4-9]|3[01]), v(10[0-3]), 7', r'v_lshl_add_u32 v\1, v100, 7', body_)
            body_ = body_.replace('offen offset:12\n', 'offen offset:0\n').replace('offen offset:844\n', 'offen offset:832\n')
            body_ = body_.replace(f's_mov_b32 s{S_IDXOFF}, 28', f's_mov_b32 s{S_IDXOFF}, 0').replace(f's_add_u32 s{S_IDXOFF}, s{S_IDXOFF}, 16', 's_nop 0')
        if self.opt.align:
            for lab in ('L_dnn_loop0:', 'L_dnn_loop1:', 'L_cin_loop:', 'L_epi:'):
                pad = '  s_nop 0\n' if self.opt.align > 100 else ''
                body_ = body_.replace(lab + '\n', f'.p2align {self.opt.align % 100}\n{pad}{lab}\n')
        txt += body_
        txt += f'''.section .rodata,"a"
.p2align 6
.amdhsa_kernel {KNAME}
  .amdhsa_next_free_vgpr 256
  .amdhsa_next_free_sgpr 102
  .amdhsa_accum_offset 256
  .amdhsa_group_segment_fixed_size 0
  .amdhsa_kernarg_size 88
  .amdhsa_user_sgpr_count 2
  .amdhsa_user_sgpr_kernarg_segment_ptr 1
  .amdhsa_system_sgpr_workgroup_id_x 1
  .amdhsa_float_denorm_mode_32 {self.opt.denorm}
.end_amdhsa_kernel
'''
        return txt


def main():
    ap = argparse.ArgumentParser()
    ap.add_argument('-o', default='standalone__deep_cross_xdeepfm__recsys.s')
    ap.add_argument('--stamps', action='store_true')
    ap.add_argument('--padat', default='')
    ap.add_argument('--padmin', type=int, default=0)
    ap.add_argument('--nodma', action='store_true')
    ap.add_argument('--cpf', type=int, default=2)
    ap.add_argument('--coop', type=int, default=1)
    ap.add_argument('--coopw', type=int, default=2)
    ap.add_argument('--tbpos', type=int, default=0)
    ap.add_argument('--dbar3', type=int, default=1)
    ap.add_argument('--tlb', type=int, default=0)
    ap.add_argument('--tlb2', type=int, default=1)
    ap.add_argument('--itst', type=int, default=0)
    ap.add_argument('--diag', type=int, default=0)
    ap.add_argument('--dbg', default='')
    ap.add_argument('--lead3', type=int, default=1)
    ap.add_argument('--morder', type=int, default=0)
    ap.add_argument('--etlb', type=int, default=21)
    ap.add_argument('--lateb', type=int, default=0)
    ap.add_argument('--wfl', default='')
    ap.add_argument('--xfl', default='')
    ap.add_argument('--tag', type=int, default=0)
    ap.add_argument('--idxfirst', type=int, default=1)
    ap.add_argument('--bpos', type=int, default=2)
    ap.add_argument('--sigat', type=int, default=4)
    ap.add_argument('--epx', type=int, default=1)
    ap.add_argument('--denorm', type=int, default=3)
    ap.add_argument('--mprio', type=int, default=0)
    ap.add_argument('--swap', type=int, default=0)
    ap.add_argument('--bov', type=int, default=2)
    ap.add_argument('--rfirst', type=int, default=0)
    ap.add_argument('--g1x', type=int, default=0)
    ap.add_argument('--ldsred', type=int, default=0)
    ap.add_argument('--csnake', type=int, default=0)
    ap.add_argument('--cswap', type=int, default=0)
    ap.add_argument('--align', type=int, default=0)
    ap.add_argument('--c2', type=int, default=0)
    ap.add_argument('--d1', type=int, default=0)
    ap.add_argument('--cstr', type=int, default=3)
    ap.add_argument('--bearly', type=int, default=1)
    ap.add_argument('--w2late', type=int, default=1)
    ap.add_argument('--aov', type=int, default=3)
    ap.add_argument('--upos', type=int, default=1)
    ap.add_argument('--calt', type=int, default=1)
    ap.add_argument('--pfpos', type=int, default=1)
    ap.add_argument('--wlate', type=int, default=0)
    ap.add_argument('--dbar2', type=int, default=0)
    ap.add_argument('--dbar', type=int, default=0)
    ap.add_argument('--pfw', type=int, default=1)
    ap.add_argument('--pfx', type=int, default=3)
    ap.add_argument('--pfx0', type=int, default=4)
    ap.add_argument('--pfs', type=int, default=14)
    ap.add_argument('--dcoopx', type=int, default=1)
    ap.add_argument('--dcx0', type=int, default=0)
    ap.add_argument('--dcxpos', type=int, default=-1)
    ap.add_argument('--pfe0', type=int, default=2)
    ap.add_argument('--pfne', type=int, default=14)
    ap.add_argument('--prio47', type=int, default=0)
    ap.add_argument('--lookahead', type=int, default=5)
    ap.add_argument('--nz', type=int, default=6)
    ap.add_argument('--nwf', type=int, default=8)
    ap.add_argument('--hiat', type=int, default=4)
    ap.add_argument('--wmerge', type=int, default=0)
    ap.add_argument('--gapv', type=int, default=2)
    ap.add_argument('--lat', type=int, default=5)
    ap.add_argument('--lite', type=int, default=0)
    ap.add_argument('--pf1', type=int, default=2)
    ap.add_argument('--amp', type=int, default=0)
    ap.add_argument('--ofl', default='')
    ap.add_argument('--uprio', type=int, default=1)
    ap.add_argument('--ccpos', type=int, default=1)
    ap.add_argument('--s1e', type=int, default=9)
    ap.add_argument('--s2e', type=int, default=0)
    ap.add_argument('--shs', type=int, default=256)
    ap.add_argument('--pfp', type=int, default=1)
    ap.add_argument('--epos', type=int, default=0)
    ap.add_argument('--hook', type=int, default=100)
    ap.add_argument('--rrd', type=int, default=11)
    ap.add_argument('--rdrop', default='')
    ap.add_argument('--pfr', type=int, default=4)
    ap.add_argument('--vin', type=int, default=1)
    ap.add_argument('--rstag', type=int, default=1)
    ap.add_argument('--eprio', type=int, default=1)
    ap.add_argument('--nopk', type=int, default=0)
    ap.add_argument('--w1first', type=int, default=0)
    ap.add_argument('--xpos', type=int, default=1)
    ap.add_argument('--z1lo', type=int, default=40)
    ap.add_argument('--pfend', type=int, default=3)
    ap.add_argument('--gst', type=int, default=0)
    ap.add_argument('--gapl', type=int, default=2)
    ap.add_argument('--gapt', type=int, default=2)
    ap.add_argument('--wcost', type=int, default=2)
    ap.add_argument('--bprio', type=int, default=0)
    ap.add_argument('--c1hi', type=int, default=-8)
    ap.add_argument('--c2hi', type=int, default=12)
    ap.add_argument('--rspan', type=int, default=30)
    ap.add_argument('--rlead', type=int, default=14)
    ap.add_argument('--pfd', type=int, default=10)
    ap.add_argument('--mo', type=int, default=3)
    ap.add_argument('--ba', type=int, default=6)
    ap.add_argument('--sig2', type=int, default=4)
    ap.add_argument('--drop', default='')
    ap.add_argument('--al8', type=int, default=4)
    ap.add_argument('--alph', type=int, default=0)
    ap.add_argument('--almm', type=int, default=0)
    ap.add_argument('--phi', type=int, default=123)
    ap.add_argument('--rawlo', type=int, default=8)
    ap.add_argument('--flo', type=int, default=3)
    opt = ap.parse_args()
    resolve_waits.dbg = 'dup' in opt.dbg
    g = Gen(opt)
    txt = g.build()
    if opt.al8:
        import align8
        rg = []
        if opt.al8 & 1:
            rg.append(('L_cin_loop', 'L_slow'))
        if opt.al8 & 2:
            rg += [('L_dnn_loop0', 'L_dnn_h1'), ('L_dnn_loop1', 'L_epi')]
        if opt.al8 & 4:
            rg += [('L_epi', 'L_dpub')]
        txt = align8.align(txt, rg, opt.alph, opt.almm)
    open(opt.o, 'w').write(txt)
    print('wrote', opt.o, len(txt), 'bytes')


if __name__ == '__main__':
    main()
```

```python
import sys, os, struct, argparse
sys.path.insert(0, os.path.dirname(os.path.abspath(__file__)))
from cinplan import ZD, cls
from asmlib import I, WaitTag, Prog, resolve_waits, resolve_hazards

KNAME = 'standalone__deep_cross_xdeepfm__recsys_kernel'
LDS_TOTAL = 163840

XSLOT = 8192
WR = 4 * XSLOT
WP = 640
WSLOT = 32 * WP
L_BIAS = WR + 6 * WSLOT
L_W2 = L_BIAS + WP
RB = L_W2 + WP
assert RB + 2048 <= LDS_TOTAL
RWR = 131072

ASZ = 35264
A1 = 1024
A2 = A1 + ASZ
A3 = A2 + ASZ
UST = 1356
V3OFF = A3 + ASZ
V2OFF = V3OFF + 2048
L_WCO = V2OFF + 1408
L_FLG = L_WCO + 192
RC = L_FLG + 64
XB0 = RC + 512
XPI = 1056
XBSZ = 4 * XPI
XB1 = A3
TA = A1
TC = TA + 11 * 1024
TD = TC + 12 * 1024
TB = A2
XSP = A1
XCH = XB0 + 8 * XBSZ
OOB = 0x100000
NCLR = 56
NPOOL = 224
assert XCH + 8192 <= LDS_TOTAL and XB0 % 16 == 0 and A2 % 16 == 0 and A3 % 16 == 0 and L_WCO % 16 == 0
assert 8 * XBSZ <= ASZ and TD + 11 * 1024 <= A2

S_WAVE = 3
S_IDX, S_TAB, S_CIN, S_WCO, S_W1, S_B1, S_W2, S_BO, S_OUT, S_DBG, S_WS = 4, 6, 8, 10, 12, 14, 16, 18, 20, 22, 24
S_MB, S_R = 26, 27
SRD_IDX, SRD_TAB, SRD_CIN, SRD_WCO, SRD_W, SRD_B1, SRD_W2, SRD_OUT, SRD_WS, SRD_DBG = 28, 32, 36, 40, 44, 48, 52, 56, 60, 64
S_T0, S_T1, S_T2, S_T3 = 68, 69, 70, 71
S_LOOP, S_IDXOFF, S_WSOFF, S_WMB, S_XM0, S_N0, S_C0, S_CW, S_BOUT, S_TW = 72, 73, 74, 75, 76, 77, 78, 79, 80, 81
S_EX = 82
S_GRP, S_RC = 84, 85
S_ST = 86
S_M26, S_MASK = 90, 92
S_SAMP, S_STG, S_STG9, S_TGT = 94, 95, 96, 97
S_M26B = 98
S_GW = 100
S_TAGT = 0
S_TAG = 1
S_PW = 101
S_PX = 77
S_PXE = 73

GELU_C0 = -2.0 * 0.7978845608028654 * 1.4426950408889634
GELU_C1 = GELU_C0 * 0.044715


def f32hex(x):
    return '0x%08x' % struct.unpack('<I', struct.pack('<f', x))[0]


def vr(a, n):
    return f'v[{a}:{a + n - 1}]' if n > 1 else f'v{a}'


def srd(a):
    return f's[{a}:{a + 3}]'


def flat(gs):
    res = []
    for c in gs:
        if isinstance(c, (tuple, list)):
            res += flat(c)
        else:
            res.append(c)
    return res


def interleave(a, b):
    out = []
    ia = ib = 0
    na, nb = len(a), len(b)
    while ia < na or ib < nb:
        if ib >= nb or (ia < na and ia * nb <= ib * na):
            out.append(a[ia]); ia += 1
        else:
            out.append(b[ib]); ib += 1
    return out


assert all((d * 2521) >> 16 == d // 26 for d in range(800))
assert all((d * 10923) >> 16 == d // 6 for d in range(64))
assert all((d * 1561) >> 16 == d // 42 for d in range(176))


DOC = '''; ---------------------------------------------------------------------------------------------
;
;       V3[h,k]  = sum_g wo[52+g] W3[g,h,k]          V2[i,j] = sum_h wo[26+h] W2[h,i,j]
;       U[i,j,k] = sum_h W2[h,i,j] V3[h,k]
;       g1[i]    = wo[i] + sum_j V2[i,j] x_j + sum_jk U[i,j,k] x_j x_k
;   Both quadratic forms use the 351 distinct products x_j x_k (j<=k) with symmetrised weights,
; Work split: per block of 128 samples, 5 workgroups do the DNN branch (128 x 336 output tiles) and
;   3 workgroups the CIN branch; partial logits go through d_ws (sc1) and a counter in d_debug,
;   the last arriver of a block adds them up and writes d_out.
; ---------------------------------------------------------------------------------------------
'''


class Gen:
    def __init__(self, opt):
        self.opt = opt
        self.P = Prog()
        self.role = 'x'

    def seq(self, lines):
        return [self.P.add(l) for l in flat(lines)]

    def build_srd(self, dst, ptr, size):
        return [f's_mov_b32 s{dst}, s{ptr}', f's_and_b32 s{dst + 1}, s{ptr + 1}, 0xffff',
                f's_mov_b32 s{dst + 2}, {size}', f's_mov_b32 s{dst + 3}, 0x20000']

    def stamp(self, slot):
        if self.opt.padat == f'{self.role}{slot}':
            return [f's_memrealtime s[88:89]', 's_waitcnt lgkmcnt(0)']
        if not self.opt.stamps or (self.opt.lite and f'{self.role}{slot}' not in ('c8', 'c9', 'd2', 'd4', 'r4', 'r5')):
            return []
        return [f's_memtime s[{S_ST}:{S_ST + 1}]', f's_memrealtime s[{S_ST + 2}:{S_ST + 3}]', 's_waitcnt lgkmcnt(0)',
                f'v_writelane_b32 v252, s{S_ST}, {slot}', f'v_writelane_b32 v253, s{S_ST + 2}, {slot}']

    def stamp_flush(self):
        if not self.opt.stamps:
            return []
        L = self.build_srd(SRD_WS, S_WS, 0x10000000)
        L += [f's_lshl_b32 s{S_C0}, s2, 3', f's_add_u32 s{S_C0}, s{S_C0}, s{S_WAVE}',
              f's_lshl_b32 s{S_C0}, s{S_C0}, 8', f's_add_u32 s{S_C0}, s{S_C0}, 0x100000',
              'v_lshlrev_b32 v254, 3, v0', 's_mov_b32 exec_hi, 0',
              f'buffer_store_dwordx2 v[252:253], v254, {srd(SRD_WS)}, s{S_C0} offen', 's_mov_b32 exec_hi, -1']
        return L

    def stamp0(self):
        if not self.opt.stamps:
            return []
        return ['v_mov_b32 v252, 0xcdcdcdcd', 'v_mov_b32 v253, 0xcdcdcdcd',
                f'v_writelane_b32 v252, s{S_ST}, 0', f'v_writelane_b32 v253, s{S_ST + 2}, 0'] + self.stamp(15)

    def tlb2(self, t, vflag):
        L = self.build_srd(SRD_WS, S_WS, 0x10000000) + self.build_srd(SRD_DBG, S_DBG, 256)
        L += [f'v_lshlrev_b32 v{t}, 2, v0',
              ('s_mov_b64 exec, 0xff', f's_mov_b32 s{S_TW}, 0x80000',
               f'buffer_load_dword v255, v{t}, {srd(SRD_WS)}, s{S_TW} offen',
               f'buffer_load_dword v{vflag}, v{t}, {srd(SRD_DBG)}, 0 offen offset:128 sc1',
               's_mov_b64 exec, -1'), f'v_mov_b32 v{t}, 0']
        return L

    def cleared(self, lab, t, vflag):
        chk = [f'v_cmp_eq_u32 vcc, 0, v{vflag}', 's_and_b32 vcc_lo, vcc_lo, 0xff']
        return chk + [f's_cbranch_scc0 {lab}_ok', f's_mov_b32 s{S_C0}, 0x40000',
                f'{lab}:', f's_sub_u32 s{S_C0}, s{S_C0}, 1', f's_cbranch_scc1 {lab}_ok', f'v_lshlrev_b32 v{vflag}, 2, v0', f'v_and_b32 v{vflag}, 31, v{vflag}',
                f'buffer_load_dword v{vflag}, v{vflag}, {srd(SRD_DBG)}, 0 offen offset:128 sc1', 's_waitcnt vmcnt(0)'] + chk + [f's_cbranch_scc1 {lab}', f'{lab}_ok:']

    def padsig(self):
        o = self.opt
        if not o.padat:
            return []
        pre = ['v_mov_b32 v8, 4']
        if (o.padat[0] if o.padat != 'start' else 'd') != self.role:
            return pre
        return pre + [f's_cmp_lg_u32 s{S_WAVE}, 0', 's_cbranch_scc1 L_nosig'] + ([f's_not_b32 s88, s88'] if o.padmin else []) + ['v_mov_b32 v7, s88', 's_mov_b64 exec, 1',
                f'buffer_atomic_umax v7, v8, {srd(SRD_DBG)}, 0 offen', 's_mov_b64 exec, -1', 'L_nosig:']

    def tlb1(self, vtmp, vdst):
        if not self.opt.etlb:
            return self.build_srd(SRD_TAB, S_TAB, 100000 * 128)
        return self.build_srd(SRD_TAB, S_TAB, 100000 * 128) + [
            f'v_mov_b32 v{vtmp}, s{S_BOUT}', f'buffer_load_dword v{vdst}, v{vtmp}, {srd(SRD_TAB)}, 0 offen']

    def prologue(self):
        L = []
        if self.opt.padat == 'start' or self.opt.amp:
            L += ['s_memrealtime s[88:89]']
        elif self.opt.padat:
            L += [f's_mov_b32 s88, {-1 if self.opt.padmin else 0}']
        if self.opt.stamps:
            L += [f's_memtime s[{S_ST}:{S_ST + 1}]', f's_memrealtime s[{S_ST + 2}:{S_ST + 3}]']
        L += ['s_cmp_ge_u32 s2, 256', 's_cbranch_scc1 L_end',
              's_load_dwordx16 s[4:19], s[0:1], 0',
              's_load_dwordx4 s[20:23], s[0:1], 64',
              's_load_dwordx2 s[24:25], s[0:1], 80',
              'v_lshrrev_b32 v1, 6, v0']
        if self.opt.cpf:
            L += [f's_getpc_b64 s[{S_MASK}:{S_MASK + 1}]', 'L_pc:',
                  f's_and_b32 s{S_T0}, s2, 0xf8', f'v_add_u32 v2, s{S_T0}, v1', 'v_lshlrev_b32 v2, 7, v2'] + (['v_and_b32 v3, 1, v0', 'v_lshl_add_u32 v2, v3, 15, v2'] if self.opt.cpf == 2 else []) + [
                  f'v_min_u32 v2, L_end-L_pc, v2',
                  f'v_mov_b32 v3, s{S_MASK + 1}',
                  f'v_add_co_u32 v2, vcc, s{S_MASK}, v2', 'v_addc_co_u32 v3, vcc, 0, v3, vcc',
                  'global_load_dword v255, v[2:3], off']
        L += ['v_and_b32 v0, 63, v0',
              f'v_readfirstlane_b32 s{S_WAVE}, v1',
              f's_and_b32 s{S_T0}, s2, 7', f's_lshl_b32 s{S_T0}, s{S_T0}, 2',
              f's_lshr_b32 s{S_MB}, s2, 6', f's_add_u32 s{S_MB}, s{S_MB}, s{S_T0}',
              f's_bfe_u32 s{S_R}, s2, 0x30003',
              f's_and_b32 s{S_BOUT}, s2, 0xf8', f's_add_u32 s{S_BOUT}, s{S_BOUT}, s{S_WAVE}', f's_lshl_b32 s{S_BOUT}, s{S_BOUT}, {self.opt.etlb}',
              f's_cmp_ge_u32 s{S_R}, 5', 's_cbranch_scc1 L_cin']
        return self.seq(L)

    def gelu(self, groups, TB, KC0, KC1, KONE):
        p2 = lambda r: vr(r, 2)
        L = []
        seen = set()
        for k, vals in enumerate(groups):
            tb = TB + (k % 2) * 16
            V_ = [(x, w, s_, tb + 4 * i_, tb + 4 * i_ + 2) for i_, (x, w, s_) in enumerate(vals)]
            for (x, w, s_, t, u) in V_:
                L.append(f'v_pk_mul_f32 {p2(t)}, {p2(x)}, {p2(x)}')
            for (x, w, s_, t, u) in V_:
                L.append(f'v_pk_fma_f32 {p2(t)}, {p2(t)}, {p2(KC1)}, {p2(KC0)}')
            for (x, w, s_, t, u) in V_:
                L.append(f'v_pk_mul_f32 {p2(t)}, {p2(t)}, {p2(x)}')
            for (x, w, s_, t, u) in V_:
                L += [f'v_exp_f32 v{t}, v{t}', f'v_exp_f32 v{t + 1}, v{t + 1}']
            for (x, w, s_, t, u) in V_:
                L.append(f'v_pk_fma_f32 {p2(t)}, {p2(t)}, {p2(w)}, {p2(w)}')
            for (x, w, s_, t, u) in V_:
                L += [f'v_rcp_f32 v{t}, v{t}', f'v_rcp_f32 v{t + 1}, v{t + 1}']
            for (x, w, s_, t, u) in V_:
                if s_ in seen:
                    L.append(f'v_pk_fma_f32 {p2(s_)}, {p2(t)}, {p2(x)}, {p2(s_)}')
                else:
                    L.append(f'v_pk_mul_f32 {p2(s_)}, {p2(t)}, {p2(x)}')
                    seen.add(s_)
        if self.opt.nopk:
            import re as _re
            L2 = []
            for x in L:
                if x.startswith('v_pk_'):
                    mn = x.split()[0].replace('v_pk_', 'v_')
                    rs = [int(r) for r in _re.findall(r'v\[(\d+):', x)]
                    L2 += [f'{mn} ' + ', '.join(f'v{r + h}' for r in rs) for h in range(2)]
                else:
                    L2.append(x)
            L = L2
        return L

    def red4(self, SUMP):
        sm = lambda tm: SUMP + 2 * tm
        L = [f'v_add_f32 v{sm(tm)}, v{sm(tm)}, v{sm(tm) + 1}' for tm in range(4)]
        L += [f'v_permlane32_swap_b32 v{sm(tm)}, v{sm(tm + 2)}' for tm in range(2)]
        L += [f'v_add_f32 v{sm(tm)}, v{sm(tm)}, v{sm(tm + 2)}' for tm in range(2)]
        L += [f'v_permlane16_swap_b32 v{sm(0)}, v{sm(1)}', f'v_add_f32 v{sm(0)}, v{sm(0)}, v{sm(1)}']
        return L

    def kconst(self, KC0, KC1, KONE):
        return [f'v_mov_b32 v{KC0}, {f32hex(GELU_C0)}', f'v_mov_b32 v{KC0 + 1}, {f32hex(GELU_C0)}',
                f'v_mov_b32 v{KC1}, {f32hex(GELU_C1)}', f'v_mov_b32 v{KC1 + 1}, {f32hex(GELU_C1)}',
                f'v_mov_b32 v{KONE}, 0x71800000']

    def winv(self, R, n, KONE):
        return [f'v_rcp_f32 v{R + k}, v{R + k}' for k in range(n)] + [f'v_med3_f32 v{R + k}, v{R + k}, -v{KONE}, v{KONE}' for k in range(n)]

    def dnn(self):
        o = self.opt
        self.role = 'd'
        vW = [[1, 2, 3, 4, 5], [6, 7, 8, 9, 10]]
        vX = [11, 12]
        vIdxOff, vCh = 13, [14, 15]
        ST = [[16, 20], [24, 240]]
        VO = [28, 34]
        vWD = [29, 30, 31, 32, 33]
        vP, vPc, vBL = 35, 36, 37
        WF = 40
        XA = 80
        T = 112
        W2F = 112
        ACC = 140
        PK = 220
        SUMP, KC0, KC1, KONE = 16, 232, 234, 236

        def acc(tn, tm):
            return ACC + (tn * 4 + tm) * 4

        HH, SL = S_T0, S_T1
        g, i4, q = T + 18, T + 19, T + 20
        PI, vCW = T + 8, T + 12
        nr = o.coopw
        L = [f's_mul_i32 s{S_N0}, s{S_R}, {WP}',
             f's_mul_i32 s{S_T2}, s{S_WAVE}, 7', f'v_min_u32 v{q}, 6, v0', f'v_add_u32 v{q}, s{S_T2}, v{q}', f'v_min_u32 v{q}, 51, v{q}',
             f'v_lshrrev_b32 v{g}, 1, v{q}', f'v_mul_u32_u24 v{g}, 96, v{g}', f'v_lshl_add_u32 v{q}, v{q}, 2, v{g}',
             f's_mul_i32 s{S_C0}, s{S_R}, 26', f's_min_u32 s{S_C0}, s{S_C0}, 102', f's_lshl_b32 s{S_T3}, s{S_MB}, 7',
             f's_add_u32 s{S_C0}, s{S_C0}, s{S_T3}', f's_mul_i32 s{S_C0}, s{S_C0}, 104',
             f's_and_b32 s{S_T2}, s{S_MB}, 3', f's_lshl_b32 s{S_T2}, s{S_T2}, 3', f's_add_u32 s{S_T2}, s{S_T2}, s{S_WAVE}',
             f's_mul_i32 s{S_T2}, s{S_T2}, 3328', f's_add_u32 s{S_TW}, s{S_T2}, s{S_N0}',
             f'v_min_u32 v{vCW}, {8 * nr - 1}, v0', f'v_lshrrev_b32 v{g}, 3, v{vCW}', f's_mov_b32 s{S_T2}, {32 * 3328}',
             f'v_mul_u32_u24 v{g}, s{S_T2}, v{g}',
             f'v_and_b32 v{vCW}, 7, v{vCW}', f'v_min_u32 v{vCW}, 4, v{vCW}', f'v_lshl_add_u32 v{vCW}, v{vCW}, 7, v{g}',
             's_waitcnt lgkmcnt(0)']
        L += self.build_srd(SRD_IDX, S_IDX, 4096 * 104)
        L += [f'buffer_load_dwordx3 {vr(PI, 3)}, v{q}, {srd(SRD_IDX)}, s{S_C0} offen']
        L += self.tlb1(T + 24, 255)
        vec = lambda dst, sr: [f's_mov_b32 m0, {dst}', 's_mov_b32 exec_hi, 0xff',
                               I(f'buffer_load_dwordx4 v{vBL}, {srd(sr)}, s{S_N0} offen lds', tag='BIAS'), 's_mov_b64 exec, -1']
        L += [f'v_lshlrev_b32 v{vBL}, 4, v0'] + self.build_srd(SRD_B1, S_B1, 3328)
        L += self.build_srd(SRD_W, S_W1, 1664 * 3328)
        L += [f'buffer_load_dword v255, v{vCW}, {srd(SRD_W)}, s{S_TW} offen']
        dpf = [f's_mul_i32 s{S_TW}, s{S_MB}, 5', f's_add_u32 s{S_TW}, s{S_TW}, s{S_R}', f's_lshl_b32 s{S_TW}, s{S_TW}, 3', f's_add_u32 s{S_TW}, s{S_TW}, s{S_WAVE}',
               f's_add_u32 s{S_TW}, s{S_TW}, {2 * 832}', f's_lshl_b32 s{S_TW}, s{S_TW}, 7', f'v_min_u32 v{vCW}, {o.dpn - 1}, v0', f'v_mul_u32_u24 v{vCW}, {1280 * 128}, v{vCW}',
               f'buffer_load_dword v255, v{vCW}, {srd(SRD_W)}, s{S_TW} offen']
        L += vec(L_BIAS, SRD_B1) + (dpf if o.dpf == 1 else [])
        L += self.stamp0()
        L += [f's_lshr_b32 s{HH}, s{S_WAVE}, 2', f's_and_b32 s{SL}, s{S_WAVE}, 3',
              f's_xor_b32 s{S_T2}, s{S_WAVE}, 4', f's_lshl_b32 s{S_T2}, s{S_T2}, 4', f's_add_u32 s{S_T2}, s{S_T2}, s{S_T3}',
              f'v_lshrrev_b32 v{T + 16}, 3, v0', f'v_add_u32 v{T + 16}, s{S_T2}, v{T + 16}',
              f'v_mul_u32_u24 v{vIdxOff}, 104, v{T + 16}',
              f's_mov_b32 s{S_T2}, 1639', f's_and_b32 s{S_C0}, s{SL}, 1', f's_lshl_b32 s{S_C0}, s{S_C0}, 2',
              f's_mov_b32 s{S_TW}, 3328', f'v_mov_b32 v{T + 16}, v0']
        for u in range(5):
            ci, rr = T + 16, T + 17
            L += [f'v_mul_u32_u24 v{rr}, s{S_T2}, v{ci}', f'v_lshrrev_b32 v{rr}, 16, v{rr}',
                  f'v_mul_u32_u24 v{q}, 40, v{rr}', f'v_sub_u32 v{q}, v{ci}, v{q}',
                  f'v_and_b32 v{i4}, 2, v{rr}', f'v_or_b32 v{i4}, s{S_C0}, v{i4}', f'v_xor_b32 v{q}, v{q}, v{i4}',
                  f'v_mul_u32_u24 v{rr}, s{S_TW}, v{rr}', f'v_lshl_add_u32 v{vWD[u]}, v{q}, 4, v{rr}']
            if u % 4:
                L += [f'v_subrev_u32 v{vWD[u]}, {1024 * u}, v{vWD[u]}']
            if u < 4:
                L += [f'v_add_u32 v{ci}, 64, v{ci}']
        L += [f's_mul_i32 s{S_T2}, s{S_WAVE}, {8 * 3328}', f's_add_u32 s{S_WSOFF}, s{S_T2}, s{S_N0}',
              f's_mul_i32 s{S_WMB}, s{S_WAVE}, {8 * WP}', f's_add_u32 s{S_WMB}, s{S_WMB}, {WR}',
              f's_lshl_b32 s{S_T3}, s{HH}, 14', f's_lshl_b32 s{S_XM0}, s{SL}, 11', f's_add_u32 s{S_XM0}, s{S_XM0}, s{S_T3}', f's_xor_b32 s{S_XM0}, s{S_XM0}, {2 * XSLOT}',
              f'v_and_b32 v{q}, 7, v0', f'v_lshrrev_b32 v{g}, 4, v0',
              f'v_xor_b32 v{q}, v{q}, v{g}', f'v_lshlrev_b32 v{vCh[0]}, 4, v{q}',
              f'v_xor_b32 v{vCh[1]}, 64, v{vCh[0]}',
              f'v_and_b32 v{q}, 15, v0', f'v_lshlrev_b32 v{q}, 7, v{q}',
              f'v_bfe_u32 v{i4}, v0, 1, 3', f'v_xor_b32 v{i4}, v{i4}, v{g}', f'v_lshl_add_u32 v{q}, v{i4}, 4, v{q}',
              f'v_add_u32 v{vX[0]}, s{S_T3}, v{q}', f'v_xor_b32 v{vX[1]}, 64, v{vX[0]}']
        L += self.build_srd(SRD_W2, S_W2, 3328)
        L += [f's_mul_i32 s{S_T3}, s{SL}, 5',
              f'v_bfe_u32 v{i4}, v0, 2, 2', f'v_lshl_add_u32 v{q}, v{g}, 3, v{i4}', f'v_mul_u32_u24 v{q}, {WP}, v{q}',
              f'v_and_b32 v{i4}, 3, v0', f'v_lshl_add_u32 v{q}, v{i4}, 3, v{q}', f'v_add_u32 v{q}, {WR}, v{q}',
              f'v_bfe_u32 v{i4}, v0, 3, 2']
        for i in range(5):
            L += [f'v_xor_b32 v{T + 16}, s{S_T3}, v{i4}', f'v_lshl_add_u32 v{vW[0][i]}, v{T + 16}, 5, v{q}',
                  f'v_add_u32 v{vW[1][i]}, {3 * WSLOT}, v{vW[0][i]}', f's_add_u32 s{S_T3}, s{S_T3}, 1']
        L += [f's_mul_i32 s{S_T3}, s{SL}, 160', f's_add_u32 s{S_T3}, s{S_T3}, {L_BIAS}',
              f'v_lshlrev_b32 v{q}, 3, v{g}', f'v_add_u32 v{vP}, s{S_T3}, v{q}',
              f's_lshl_b32 s{S_T2}, s{SL}, 1', f's_add_u32 s{S_T2}, s{S_T2}, s{HH}', f's_lshl_b32 s{S_T2}, s{S_T2}, 8', f's_add_u32 s{S_T2}, s{S_T2}, {RB}',
              f'v_lshlrev_b32 v{vPc}, 2, v0', f'v_add_u32 v{vPc}, s{S_T2}, v{vPc}']

        def wld(u):
            return I(f'buffer_load_dwordx4 v{vWD[u]}, {srd(SRD_W)}, s{S_WSOFF} offen offset:{1024 * (u % 4)} lds', tag='W')

        def wst(stage):
            return [(f's_add_u32 m0, s{S_WMB}, {(stage % 3) * 2 * WSLOT}', wld(0)), (wld(1),), (wld(2),), (wld(3),),
                    ('s_add_u32 m0, m0, 4096', wld(4), f's_add_u32 s{S_WSOFF}, s{S_WSOFF}, {64 * 3328}')]

        def xld(v, m0, tag='X'):
            return (m0, I(f'buffer_load_dwordx4 v{v}, {srd(SRD_TAB)}, 0 offen lds', tag=tag))
        pkreads = lambda off: [f'ds_read_b64 {vr(PK + 2 * tn, 2)}, v{vP} offset:{off + 32 * tn}' for tn in range(5)]

        def unp(dst):
            c = []
            for tn in range(5):
                for d in range(2):
                    c += [f'v_lshlrev_b32 v{dst(tn) + 2 * d}, 16, v{PK + 2 * tn + d}', f'v_and_b32 v{dst(tn) + 2 * d + 1}, 0xffff0000, v{PK + 2 * tn + d}']
            return c

        def reads(st):
            def rdw(tn):
                c = []
                for par in range(2):
                    sl = (st % 3) * 2 + par
                    c += [f'ds_read_b64_tr_b16 {vr(WF + 8 * tn + 4 * par + 2 * rd, 2)}, v{vW[sl // 3][tn]} offset:{(sl % 3) * WSLOT + rd * 4 * WP}' for rd in range(2)]
                return c
            rdx = [f'ds_read_b128 {vr(XA + 8 * tm + 4 * par, 4)}, v{vX[par]} offset:{(st % 2) * XSLOT + tm * 2048}' for tm in range(4) for par in range(2)]
            return rdw(0) + rdw(1) + rdw(2) + rdw(3) + rdx + rdw(4) if o.ro == 0 else rdw(0) + rdx + rdw(1) + rdw(2) + rdw(3) + rdw(4)

        def xst(src, f, tag='X'):
            vo = lambda pc: (f'v_lshl_add_u32 v{VO[pc]}, v{src(pc)}, 7, v{vCh[pc]}',)
            return [vo(1) + vo(0) + xld(VO[0], f's_add_u32 m0, s{S_XM0}, {(f % 2) * XSLOT}', tag), xld(VO[1], 's_add_u32 m0, m0, 1024', tag)]
        idxl = lambda k: [f'buffer_load_dwordx3 {vr(ST[k][pc], 3)}, v{vIdxOff}, {srd(SRD_IDX)}, s{S_IDXOFF} offen offset:{pc * 832}' for pc in range(2)] + [f's_add_u32 s{S_IDXOFF}, s{S_IDXOFF}, 12']

        L += [f'v_lshlrev_b32 v{PI}, 7, v{PI}']
        L += [f'buffer_load_dwordx2 {vr(T + 4 * pc, 2)}, v{vIdxOff}, {srd(SRD_IDX)}, 0 offen offset:{pc * 832}' for pc in range(2)] + ['s_barrier']
        L += [f'buffer_load_dword v255, v{PI}, {srd(SRD_TAB)}, 0 offen',
              f'v_lshlrev_b32 v{PI + 2}, 7, v{PI + 2}', f'buffer_load_dword v255, v{PI + 2}, {srd(SRD_TAB)}, 0 offen']
        L += (dpf if o.dpf == 2 else []) + self.stamp(6) + wst(0)
        L += [WaitTag(vm_tags=['BIAS'])] + pkreads(0) + unp(lambda tn: acc(tn, 0))
        L += [f'v_mov_b64 {vr(acc(tn, tm) + 2 * d, 2)}, {vr(acc(tn, 0) + 2 * d, 2)}' for tn in range(5) for tm in range(1, 4) for d in range(2)]
        L += xst(lambda pc: T + 4 * pc, 0, 'X0') + self.stamp(7) + ['s_barrier'] + (dpf if o.dpf == 3 else [])
        L += [f's_lshl_b32 s{S_IDXOFF}, s{HH}, 2', f's_add_u32 s{S_IDXOFF}, s{S_IDXOFF}, 4'] + idxl(0)
        L += [f's_mov_b32 s{S_LOOP}, 0', f's_cmp_lg_u32 s{HH}, 0', 's_cbranch_scc1 L_dnn_h1']
        pro = self.seq(L)

        def mf(tn, tm, par):
            a = acc(tn, tm)
            return f'v_mfma_f32_16x16x32_bf16 {vr(a, 4)}, {vr(WF + 8 * tn + 4 * par, 4)}, {vr(XA + 8 * tm + 4 * par, 4)}, {vr(a, 4)}'
        MM = [mf(tn, j if tn % 2 == 0 else 3 - j, par) for tn in range(5) for j in range(4) for par in range(2)]
        kb = o.bov
        wi = self.winv(W2F, 20, KONE)
        trs = []
        for half in range(2):
            def fill(st, w=True, x=True, extra=(), rextra=()):
                D_ = (wst(st + 2) if w else []) + (xst(lambda pc: ST[(st // 3) % 2][pc] + st % 3, st + 1 + half) if x else [])
                return interleave(reads(st) + list(rextra), D_) + list(extra)

            def M(V=(), b=True, last=False, nw=5):
                gp = [[] for _ in MM]
                V = list(V)
                n_ = len(MM) - kb - 1
                for k, x in enumerate(V):
                    gp[k * n_ // len(V)].append(x)
                m = [(x,) + tuple(y) for x, y in zip(MM, gp)]
                return ['s_setprio 0'] * b + m[:len(m) - kb] + (['s_setprio 2'] + ([WaitTag(allbut=('W', nw))] if half == 0 else []) + ['s_barrier'] if b else []) + m[len(m) - kb:] + ['s_setprio 0'] * last
            wF = lambda nw=5, nx=2: [WaitTag(vm_tags=['X0'], allbut=('X', nx), lgkm0=True)] + ([WaitTag(allbut=('W', nw))] if half else []) + ['s_barrier']
            L = [f'L_dnn_h{half}:']
            pre = (xst(lambda pc: T + 4 * pc + 1, 1) if half else []) + wst(1) + idxl(1)
            if half == 0:
                L += pre[:o.q0] + [WaitTag(allbut=('W', min(o.q0, 5)), lgkm0=True)] + self.stamp(1) + ['s_barrier'] + self.stamp(2) + pre[o.q0:]
            else:
                L += pre[:o.q1] + [WaitTag(vm_tags=['X0'], lgkm0=True)] + self.stamp(1) + ['s_barrier'] + self.stamp(2) + pre[o.q1:] + ['s_barrier']
            th = pro + self.seq(L)
            L = [f'L_dnn_loop{half}:']
            for st in range(6):
                ex = []
                if st % 3 == 2:
                    ex += idxl(st // 3)
                if st == 4 and half == 1:
                    ex += [tuple(vec(L_W2, SRD_W2))]
                if o.stamps and o.itst == 2 and st % 2:
                    ex += [(f's_memtime s[{S_ST}:{S_ST + 1}]', f's_memrealtime s[{S_ST + 2}:{S_ST + 3}]', f's_mul_i32 s{S_TW}, s{S_LOOP}, 3', f's_add_u32 s{S_TW}, s{S_TW}, {8 + st // 2}',
                           f's_min_u32 s{S_TW}, s{S_TW}, 14', 's_waitcnt lgkmcnt(0)',
                           f's_mov_b32 m0, s{S_TW}', f'v_writelane_b32 v252, s{S_ST}, m0', f'v_writelane_b32 v253, s{S_ST + 2}, m0')]
                if o.stamps and o.itst == 1 and st in (1, 4):
                    ex += [(f's_memtime s[{S_ST}:{S_ST + 1}]', f's_memrealtime s[{S_ST + 2}:{S_ST + 3}]', f's_lshl_b32 s{S_TW}, s{S_LOOP}, 1', f's_add_u32 s{S_TW}, s{S_TW}, {6 + st // 3}',
                           f's_max_u32 s{S_TW}, s{S_TW}, 8', 's_waitcnt lgkmcnt(0)',
                           f's_mov_b32 m0, s{S_TW}', f'v_writelane_b32 v252, s{S_ST}, m0', f'v_writelane_b32 v253, s{S_ST + 2}, m0')]
                L += fill(st, extra=ex) + wF() + M([f's_add_u32 s{S_LOOP}, s{S_LOOP}, 1', f's_cmp_lt_u32 s{S_LOOP}, 4'] if st == 5 else [])
            L += [f's_cbranch_scc1 L_dnn_loop{half}']
            body = self.seq(L)
            th += body * 3
            L = fill(24, w=False, x=half == 0, rextra=pkreads(WP), extra=self.tlb2(VO[0], vBL) if half == 0 else []) + wF(0, 2 - 2 * half)
            L += M(self.kconst(KC0, KC1, KONE) + unp(lambda tn: W2F + 4 * tn) + wi[:14], nw=0)
            L += fill(25, w=False, x=False) + wF(0, 0) + M(wi[14:], b=half == 0, last=True)
            if half == 0:
                L += ['s_branch L_epi']
            trs.append(th + self.seq(L))
        p2 = lambda r: vr(r, 2)
        el = lambda tn, tm, d: (acc(tn, tm) + 2 * d, W2F + 4 * tn + 2 * d, SUMP + 2 * tm)
        L = ['L_epi:'] + self.stamp(3)
        L += [f's_lshl_b32 s{S_T1}, s{S_R}, 11', f's_and_b32 s{S_T3}, s{S_MB}, 3', f's_lshl_b32 s{S_T3}, s{S_T3}, 9', f's_add_u32 s{S_T1}, s{S_T1}, s{S_T3}',
              f's_lshr_b32 s{S_T0}, s{S_MB}, 2', f's_lshl_b32 s{S_T0}, s{S_T0}, 14', f's_add_u32 s{S_T1}, s{S_T1}, s{S_T0}',
              'v_lshlrev_b32 v3, 3, v0', f'v_add_u32 v2, {RB}, v3']
        L += self.gelu([[el(tn, tm, d) for tm in range(4)] for tn in range(5) for d in range(2)], WF, KC0, KC1, KONE)
        L += self.red4(SUMP) + [f'ds_write_b32 v{vPc}, v{SUMP}', 's_waitcnt lgkmcnt(0)'] + self.stamp(4) + self.stamp_flush()
        L += [f's_cmp_eq_u32 s{S_WAVE}, 0', 's_cbranch_scc1 L_dpub']
        tr = self.seq(L)
        self.seq(['s_barrier', 's_endpgm'])
        A = 64
        L = ['L_dpub:'] + self.build_srd(SRD_WS, S_WS, 0x10000000) + self.build_srd(SRD_DBG, S_DBG, 256) + self.cleared('L_dclr', 4, vBL) + ['s_barrier'] + self.stamp(17)
        L += [f'ds_read_b64 {vr(A + 2 * qq, 2)}, v2 offset:{qq * 512}' for qq in range(4)]
        L += [f'v_pk_add_f32 {p2(A)}, {p2(A)}, {p2(A + 2)}', f'v_pk_add_f32 {p2(A + 4)}, {p2(A + 4)}, {p2(A + 6)}', f'v_pk_add_f32 {p2(A)}, {p2(A)}, {p2(A + 4)}',
              f'v_and_b32 v{A}, -2, v{A}', f'v_and_b32 v{A + 1}, -2, v{A + 1}',
              f'buffer_store_dwordx2 {vr(A, 2)}, v3, {srd(SRD_WS)}, s{S_T1} offen sc1'] + self.padsig() + ['s_endpgm']
        return [trs[0] + tr + self.seq(L), trs[1] + tr]

    def rem(self):
        o = self.opt
        self.role = 'r'
        vW = [1, 2, 7, 8]
        vX = [11, 12]
        vWD, vCh, vT, VO = 13, [14, 15], 9, 24
        SUMP = 16
        IDX = 32
        XA, WF = 64, 96
        ACC = 160
        W2F, BF = 96, 112
        PK = 224
        KC0, KC1, KONE = 240, 242, 244
        g, i4, q = 246, 247, 248
        S_F = S_IDXOFF
        acc = lambda tn, tm: ACC + (tn * 4 + tm) * 4
        L = ['L_rem:', f's_lshr_b32 s{S_GRP}, s{S_WAVE}, 2', f's_and_b32 s{S_T0}, s2, 7', f's_lshl_b32 s{S_T0}, s{S_T0}, 3', f's_add_u32 s{S_T0}, s{S_T0}, s{S_WAVE}',
             f's_mul_i32 s{S_T0}, s{S_T0}, {64 * 104}', f's_lshl_b32 s{S_XM0}, s{S_WAVE}, 14',
             f'v_lshlrev_b32 v{q}, 4, v0', f'v_lshrrev_b32 v{g}, 4, v0',
             f'v_lshrrev_b32 v{i4}, 3, v0', f'v_mul_u32_u24 v{vWD}, 3328, v{i4}', f'v_and_b32 v{i4}, 2, v{i4}',
             f's_and_b32 s{S_T1}, s{S_WAVE}, 1', f's_lshl_b32 s{S_T1}, s{S_T1}, 2', f'v_or_b32 v{i4}, s{S_T1}, v{i4}',
             f'v_and_b32 v{vT}, 7, v0', f'v_xor_b32 v{i4}, v{i4}, v{vT}', f'v_lshl_add_u32 v{vWD}, v{i4}, 4, v{vWD}',
             f's_mul_i32 s{S_WSOFF}, s{S_WAVE}, {8 * 3328}', f's_add_u32 s{S_WSOFF}, s{S_WSOFF}, 3200',
             f's_lshl_b32 s{S_WMB}, s{S_WAVE}, 10', f's_add_u32 s{S_WMB}, s{S_WMB}, {RWR}',
             's_waitcnt lgkmcnt(0)']
        L += self.build_srd(SRD_IDX, S_IDX, 4096 * 104)
        for u in range(7):
            L += [f's_add_u32 m0, s{S_XM0}, {8192 + u * 1024}', I(f'buffer_load_dwordx4 v{q}, {srd(SRD_IDX)}, s{S_T0} offen lds', tag='I'),
                  f's_add_u32 s{S_T0}, s{S_T0}, 1024']
        L += self.build_srd(SRD_W, S_W1, 1664 * 3328)
        wld = lambda slot: [f's_add_u32 m0, s{S_WMB}, {slot * 8192}', I(f'buffer_load_dwordx4 v{vWD}, {srd(SRD_W)}, s{S_WSOFF} offen lds', tag='W'),
                            f's_add_u32 s{S_WSOFF}, s{S_WSOFF}, {64 * 3328}']
        L += wld(0)
        L += self.build_srd(SRD_WS, S_WS, 0x10000000) + self.build_srd(SRD_DBG, S_DBG, 256) + [f'v_mov_b32 v{XA + k}, -1' for k in range(4)]
        L += [f's_and_b32 s{S_T2}, s2, 7', f's_lshl_b32 s{S_T0}, s{S_T2}, 3', f's_add_u32 s{S_T0}, s{S_T0}, s{S_WAVE}', f's_lshl_b32 s{S_T0}, s{S_T0}, 11', f's_lshl_b32 s{S_T2}, s{S_T2}, 2',
              f'buffer_store_dwordx4 {vr(XA, 4)}, v{q}, {srd(SRD_WS)}, s{S_T0} offen sc1',
              f'buffer_store_dwordx4 {vr(XA, 4)}, v{q}, {srd(SRD_WS)}, s{S_T0} offen offset:1024 sc1']
        L += self.build_srd(SRD_B1, S_B1, 3328) + self.build_srd(SRD_W2, S_W2, 3328) + self.build_srd(SRD_TAB, S_TAB, 100000 * 128)
        L += self.stamp0()
        L += [f'v_xor_b32 v{q}, v{vT}, v{g}', f'v_lshlrev_b32 v{vCh[0]}, 4, v{q}', f'v_xor_b32 v{vCh[1]}, 64, v{vCh[0]}',
              f'v_bfe_u32 v{i4}, v0, 2, 2', f'v_lshl_add_u32 v{q}, v{g}, 3, v{i4}', f'v_lshlrev_b32 v{q}, 7, v{q}',
              f'v_and_b32 v{i4}, 3, v0', f'v_lshl_add_u32 v{q}, v{i4}, 3, v{q}', f'v_add_u32 v{q}, {RWR}, v{q}',
              f'v_bfe_u32 v{i4}, v0, 3, 2', f'v_lshl_add_u32 v{vW[0]}, v{i4}, 5, v{q}']
        L += [f'v_xor_b32 v{vW[i]}, {32 * i}, v{vW[0]}' for i in range(1, 4)]
        L += [f'v_and_b32 v{q}, 15, v0', f'v_lshlrev_b32 v{q}, 7, v{q}',
              f'v_bfe_u32 v{i4}, v0, 1, 3', f'v_xor_b32 v{i4}, v{i4}, v{g}', f'v_lshl_add_u32 v{q}, v{i4}, 4, v{q}',
              f'v_add_u32 v{vX[0]}, s{S_XM0}, v{q}', f'v_xor_b32 v{vX[1]}, 64, v{vX[0]}',
              f'v_lshrrev_b32 v{i4}, 3, v0', f'v_lshl_add_u32 v{q}, v{vT}, 3, v{i4}', f'v_mul_u32_u24 v{q}, 104, v{q}', f'v_add_u32 v{q}, s{S_XM0}, v{q}']
        L += self.kconst(KC0, KC1, KONE) + [f'v_mov_b32 v{r}, 0' for r in range(ACC, ACC + 64)] + ['s_waitcnt vmcnt(0)']
        L += [f'ds_read_b64 {vr(IDX + 2 * k, 2)}, v{q} offset:{8192 + 8 * k}' for k in range(13)]

        def xld(src, slot, h=None):
            c = [tuple(f'v_add_u32_dpp v{VO + pc}, v{src}, v{vCh[pc % 2]} row_newbcast:{8 * hh + pc} row_mask:0xf bank_mask:{hex(3 << (2 * hh))}'
                       for hh in range(2) for pc in range(4 * k, 4 * k + 4)) for k in range(2)]
            d = [(f's_add_u32 m0, s{S_XM0}, {slot * 8192 + pc * 1024}',
                  I(f'buffer_load_dwordx4 v{VO + pc}, {srd(SRD_TAB)}, 0 offen lds', tag='X')) for pc in range(8)]
            return c[:1] + d[:4] + c[1:] + d[4:] if h is None else c[h:h + 1] + d[4 * h:4 * h + 4]
        L += [f'v_mov_b32 v{VO + pc}, 0' for pc in range(8)] + [f'v_mov_b32 v{IDX + k}, 0x7f000000' for k in (26, 27)]
        L += [f'v_lshlrev_b32 v{IDX}, 7, v{IDX}'] + xld(IDX, 0)
        L += wld(1) + [f'v_lshlrev_b32 v{IDX + k}, 7, v{IDX + k}' for k in range(25, 0, -1)] + xld(IDX + 1, 1) + wld(2)
        L += [f'v_lshlrev_b32 v{q}, 3, v{g}']

        rdx = lambda fp, h: [f'ds_read_b128 {vr(XA + 16 * h + 8 * t + 4 * par, 4)}, v{vX[par]} offset:{fp * 8192 + (2 * h + t) * 2048}' for t in (1, 0) for par in (1, 0)]
        rdw = lambda fp: [f'ds_read_b64_tr_b16 {vr(WF + 32 * fp + 8 * tn + 4 * par + 2 * rd, 2)}, v{vW[tn]} offset:{fp * 8192 + par * 4096 + rd * 512}'
                          for tn in range(4) for par in range(2) for rd in range(2)]

        def mm(fp, h):
            return [f'v_mfma_f32_16x16x32_bf16 {vr(acc(tn, 2 * h + t), 4)}, {vr(WF + 32 * fp + 8 * tn + 4 * par, 4)}, {vr(XA + 16 * h + 8 * t + 4 * par, 4)}, {vr(acc(tn, 2 * h + t), 4)}'
                    for tn in range(4) for t in range(2) for par in range(2)]
        L += [f's_mov_b32 s{S_F}, 3', f'v_mov_b32 v{vT}, v{IDX + 2}'] + list(xld(vT, 0, 0)[0])
        L += [WaitTag(allbut=('X', 12)), 's_barrier'] + self.stamp(2) + rdx(0, 0) + rdw(0)
        L += [f's_cmp_lg_u32 s{S_WAVE}, 7', 's_cbranch_scc1 L_rem_loop', 's_mov_b64 exec, 1',
              f'buffer_store_dword v{KC0}, v{vCh[0]}, {srd(SRD_DBG)}, s{S_T2} offen offset:128 sc1', 's_mov_b64 exec, -1']
        tr = self.seq(L)

        def phase(M, R, Dm, V):
            gp = [[] for _ in M]
            for k, x in enumerate(R):
                gp[k * o.rrd // max(len(R), 1)].append(x)
            for k, x in enumerate(Dm):
                gp[1 + k * 15 // len(Dm)].append(x)
            v0 = o.rrd if R else 0
            for k, x in enumerate(V):
                gp[v0 + k * (16 - v0) // len(V)].append(x)
            return [(m,) + tuple(g_) for m, g_ in zip(M, gp)]
        post = []
        for k in range(8):
            post += [f'v_lshlrev_b32 v{BF + 2 * k}, 16, v{PK + k}', f'v_and_b32 v{BF + 2 * k + 1}, 0xffff0000, v{PK + k}',
                     f'v_lshlrev_b32 v{W2F + 2 * k}, 16, v{PK + 8 + k}', f'v_and_b32 v{W2F + 2 * k + 1}, 0xffff0000, v{PK + 8 + k}']
        post += self.winv(W2F, 16, KONE)
        vld = [f'buffer_load_dwordx2 {vr(PK + 2 * tn, 2)}, v{q}, {srd(SRD_B1)}, 0 offen offset:{3200 + 32 * tn}' for tn in range(4)]
        vld += [f'buffer_load_dwordx2 {vr(PK + 8 + 2 * tn, 2)}, v{q}, {srd(SRD_W2)}, 0 offen offset:{3200 + 32 * tn}' for tn in range(4)]

        def field(fp, last):
            L = [WaitTag(allbut=('W', 0 if last else 1)), WaitTag(allbut=('X', 0 if last and fp else 8))] + ([] if last and fp else ['s_barrier'])
            if fp == 1 and not last:
                L += [f'v_xor_b32 v{vW[i]}, 16384, v{vW[i]}' for i in range(4)]
            sx = (f's_xor_b32 s{S_WMB}, s{S_WMB}, 16384',)
            wl = [sx + tuple(wld(1)) + sx] if fp == 0 else [tuple(wld(0)) + sx]
            rw = rdw(1 - fp)
            mv = [(f's_set_gpr_idx_on s{S_F}, gpr_idx(SRC0)', 's_nop 0', f'v_mov_b32 v{vT}, v{IDX}', 's_set_gpr_idx_off', f's_add_u32 s{S_F}, s{S_F}, 1')]
            if not last:
                L += phase(mm(fp, 0), rdx(fp, 1) + rw[:8], xld(vT, fp, 0)[1:], list(xld(vT, fp, 1)[0]))
                L += [WaitTag(allbut=('X', 8))]
                L += phase(mm(fp, 1), rdx(1 - fp, 0) + rw[8:], xld(vT, fp, 1)[1:] + wl, mv + list(xld(vT, fp, 0)[0]))
            elif fp == 0:
                L += phase(mm(fp, 0), rdx(fp, 1) + rw[:8], vld, [])
                L += [WaitTag(allbut=('X', 4))]
                L += phase(mm(fp, 1), rdx(1 - fp, 0) + rw[8:], [], [])
            else:
                L += phase(mm(fp, 0), rdx(fp, 1), [], []) + phase(mm(fp, 1), [], [], post[:32])
            return L
        L = ['L_rem_loop:'] + field(0, False) + field(1, False) + [f's_cmp_lt_u32 s{S_F}, 27', 's_cbranch_scc1 L_rem_loop']
        L = [x for x in flat(L) if not any((x.text if isinstance(x, I) else x).startswith(d) for d in o.rdrop.split(',') if d)]
        body = self.seq(L)
        body2 = self.seq(field(0, True) + field(1, True))
        el = lambda tn, tm, d: (acc(tn, tm) + 2 * d, W2F + 4 * tn + 2 * d, SUMP + 2 * tm)
        L = self.stamp(3) + self.tlb2(4, 5) + self.build_srd(SRD_OUT, S_OUT, 8192) + [f's_load_dword s{S_BOUT}, s[{S_BO}:{S_BO + 1}], 0',
             f'buffer_load_dword v255, v4, {srd(SRD_OUT)}, 0 offen',
             f's_and_b32 s{S_T2}, s2, 7', f's_lshl_b32 s{S_T0}, s{S_T2}, 14', f's_lshl_b32 s{S_T1}, s{S_WAVE}, 8', f's_add_u32 s{S_T0}, s{S_T0}, s{S_T1}',
             f's_add_u32 s{S_T1}, s{S_T0}, 4096', f's_add_u32 s{S_T3}, s{S_T0}, 8192',
             f's_lshl_b32 s{S_T2}, s{S_T2}, 3', f's_add_u32 s{S_T2}, s{S_T2}, s{S_WAVE}', f's_lshl_b32 s{S_T2}, s{S_T2}, 7',
             'v_lshlrev_b32 v3, 2, v0', 'v_lshlrev_b32 v2, 1, v0', 's_waitcnt lgkmcnt(0)', f's_lshl_b32 s{S_BOUT}, s{S_BOUT}, 16']
        L += post[32:]
        L += [f'v_pk_add_f32 {vr(acc(tn, tm) + 2 * d, 2)}, {vr(acc(tn, tm) + 2 * d, 2)}, {vr(BF + 4 * tn + 2 * d, 2)}' for tn in range(4) for tm in range(4) for d in range(2)]
        L += self.gelu([[el(tn, tm, d) for tm in range(4)] for tn in range(4) for d in range(2)], XA, KC0, KC1, KONE)
        L += self.red4(SUMP) + [f'v_add_f32 v{SUMP}, s{S_BOUT}, v{SUMP}'] + self.stamp(4) + self.cleared('L_rclr', 4, 5) + self.padsig()
        A = 64
        L += [f's_mov_b32 s{S_LOOP}, 0x40000', 'L_poll:', f's_sub_u32 s{S_LOOP}, s{S_LOOP}, 1', 's_cbranch_scc1 L_pollx']
        L += [f'buffer_load_dword v{A + k}, v3, {srd(SRD_WS)}, s{(S_T0, S_T1, S_T3)[k // 2]} offen offset:{(k % 2) * 2048} sc1' for k in range(6)]
        L += [f'v_max3_u32 v{A + 8}, v{A}, v{A + 1}, v{A + 2}', f'v_max3_u32 v{A + 9}, v{A + 3}, v{A + 4}, v{A + 5}', f'v_max_u32 v{A + 8}, v{A + 8}, v{A + 9}',
              f'v_cmp_eq_u32 vcc, -1, v{A + 8}', 's_cbranch_vccnz L_poll', 'L_pollx:']
        L += [f'v_add_f32 v{A}, v{A}, v{A + 1}', f'v_add_f32 v{A + 2}, v{A + 2}, v{A + 3}', f'v_add_f32 v{A + 4}, v{A + 4}, v{A + 5}',
              f'v_add_f32 v{A}, v{A}, v{A + 2}', f'v_add_f32 v{A + 4}, v{A + 4}, v{SUMP}', f'v_add_f32 v{A}, v{A}, v{A + 4}',
              f'v_cvt_pk_bf16_f32 v{A}, v{A}, v{A}']
        if o.amp:
            L += ['s_memrealtime s[86:87]', 's_waitcnt lgkmcnt(0)', 's_sub_u32 s89, s86, s88', 's_min_u32 s89, s89, 10000', 's_lshl_b32 s89, s89, 3',
                  'L_ampspin:', 's_memrealtime s[86:87]', 's_waitcnt lgkmcnt(0)', 's_sub_u32 s86, s86, s88', 's_cmp_lt_u32 s86, s89', 's_cbranch_scc1 L_ampspin']
        if o.padat:
            L += ['L_padspin:', f'buffer_load_dword v7, v8, {srd(SRD_DBG)}, 0 offen sc1', 's_waitcnt vmcnt(0)', 's_memrealtime s[86:87]',
                  'v_readfirstlane_b32 s88, v7', 's_waitcnt lgkmcnt(0)', 's_cmp_eq_u32 s88, 0', 's_cbranch_scc1 L_padspin'] + (['s_not_b32 s88, s88'] if o.padmin else []) + [
                  's_sub_u32 s86, s86, s88', 's_cmp_lt_i32 s86, 6000', 's_cbranch_scc1 L_padspin']
        L += [f'buffer_store_short v{A}, v2, {srd(SRD_OUT)}, s{S_T2} offen{o.ofl}'] + self.stamp(5) + self.stamp_flush() + ['s_endpgm']
        return [tr + body * 3 + body2 + self.seq(L)]

    def cin(self):
        o = self.opt
        self.role = 'c'
        cw = S_CW
        S_BCUR, S_BD, S_EXP, S_EXPC, S_PREV, S_SC, S_PH = 74, 75, 48, 49, 50, 51, 97
        S_CHK = S_M26
        vFA, vFR, vOne, vF, vFG, vFGa = 1, 2, 3, 4, 5, 6
        vRaw, vLin, vLinB, vXw, vX1, vX2, vSh, vAcc, vOr, vSI, vXi, vC16, vPWL, vPXL, PXR = range(7, 22)
        FT, XI, aD, aS, aLc, aC = 22, 24, 28, 29, 30, 31
        RAW, X, RZ, D = 32, 40, 52, 68
        WA, WB, WC, WS_, WL = 84, 128, 172, 216, 240
        Da, Db, Dc, Ds = D, D + 4, D + 8, D + 12
        T = 40
        half, i32, t3, t4, t5, vg, vm = T + 1, T + 2, T + 3, T + 4, T + 5, T + 6, T + 7
        vStg = 48
        GB = 49
        vMx, vWr, vL6, vL, vWu, vWo = range(62, 68)
        vDl = 247
        AD = 68
        vA3, vBs0, vBs1a, vBs1b, vUw, vV2w, vE, V3T = 240, 241, 242, 243, 244, 245, 246, 81
        BALL, UP, AFR, DALL = 84, 84, 132, 140
        BT, SUM, OUT = 216, 84, 132
        XJ = 204
        F_W3, F_W2, F_W1, F_PEEL, F_M, F_U, F_V3, F_XB = 0, 4, 8, 12, 16, 24, 32, 36
        nsync = [0]

        def sig(off, A=vFA, **kw):
            return [WaitTag(lgkm0=True, **kw), f'ds_add_u32 v{A}, v{vOne} offset:{off}']

        def wait(off, tgt, R=vFR):
            nsync[0] += 1
            lab = f'L_csync{nsync[0]}'
            return [f'{lab}:', f'ds_read_b32 v{vF}, v{R} offset:{off}', 's_waitcnt lgkmcnt(0)',
                    f'v_cmp_gt_u32 vcc, {tgt}, v{vF}', f's_cbranch_vccnz {lab}']

        def dppred(op, r):
            return [f'{op}_dpp v{r}, v{r}, v{r} {ctl} row_mask:{rm} bank_mask:0xf'
                    for (ctl, rm) in (('row_shr:1', '0xf'), ('row_shr:2', '0xf'), ('row_shr:4', '0xf'), ('row_shr:8', '0xf'),
                                      ('row_bcast:15', '0xa'), ('row_bcast:31', '0xc'))]

        def absmax(dst, regs):
            c = [f'v_max3_f32 v{dst}, abs(v{regs[0]}), abs(v{regs[1]}), abs(v{regs[2]})']
            k = 3
            while k < len(regs):
                b = regs[k + 1] if k + 1 < len(regs) else regs[k]
                c.append(f'v_max3_f32 v{dst}, v{dst}, abs(v{regs[k]}), abs(v{b})')
                k += 2
            return c

        def waitmax(off, dst_e, top, R=vFR):
            nsync[0] += 1
            lab = f'L_csync{nsync[0]}'
            return [f'{lab}:', f'ds_read_b64 {vr(T, 2)}, v{R} offset:{off}', 's_waitcnt lgkmcnt(0)',
                    f'v_cmp_gt_u32 vcc, 4, v{T}', f's_cbranch_vccnz {lab}',
                    f'v_readfirstlane_b32 s{dst_e}, v{T + 1}',
                    f's_lshr_b32 s{dst_e}, s{dst_e}, 23', f's_sub_i32 s{dst_e}, {top}, s{dst_e}', f's_min_i32 s{dst_e}, s{dst_e}, 40']

        def postmax(r, off, **kw):
            return dppred('v_max_u32', r) + [f'v_readlane_b32 s{S_T0}, v{r}, 63', f'v_mov_b32 v{r}, s{S_T0}',
                                             f'ds_max_u32 v{vFA}, v{r} offset:{off + 4}', WaitTag(**kw), f'ds_add_u32 v{vFA}, v{vOne} offset:{off}']
        setsc = lambda e: [f's_add_i32 s{S_SC}, s{e}, 127', f's_lshl_b32 s{S_SC}, s{S_SC}, 23']

        S_C, S_DYN, S_ST0, S_TK = S_R, S_MB, 98, 99
        vTk, vZ = 250, 251
        L = ['L_cin:', f's_and_b32 s{S_T0}, s{S_MB}, 3', f's_mul_i32 s{S_T0}, s{S_T0}, 3', f's_add_u32 s{S_C}, s{S_T0}, s{S_R}',
             f's_sub_u32 s{S_C}, s{S_C}, 6', 's_cbranch_scc1 L_rem',
             f's_and_b32 s{cw}, s{S_WAVE}, 3', f's_lshr_b32 s{S_GRP}, s{S_WAVE}, 2',
             f's_lshl_b32 s{S_GW}, s{S_C}, 3', f's_add_u32 s{S_GW}, s{S_GW}, s{S_WAVE}',
             f's_mul_i32 s{S_T0}, s{S_GW}, {10 * 128}',
             f'v_min_u32 v{T}, 9, v0', f'v_lshlrev_b32 v{T}, 7, v{T}',
             f'v_lshlrev_b32 v{vStg}, 4, v0',
             f's_lshl_b32 s{S_STG}, s{cw}, 10',
             f's_cmp_eq_u32 s{cw}, 2', f's_cselect_b64 s[{S_EX}:{S_EX + 1}], 0x1fffff, -1',
             f's_cmp_eq_u32 s{cw}, 3', f's_cselect_b32 s{S_STG9}, 0, {8 * 4096}',
             f's_add_u32 s{S_STG9}, s{S_STG9}, s{S_STG}',
             f's_mul_i32 s{S_T1}, s{S_C}, 2979', f's_lshr_b32 s{S_T1}, s{S_T1}, 6', f's_mul_i32 s{S_ST0}, s{S_C}, 44',
             f's_and_b32 s{S_T2}, s2, 7', f's_add_u32 s{S_RC}, s{S_ST0}, s{S_WAVE}', f's_lshl_b32 s{S_RC}, s{S_RC}, 2',
             f's_lshl_b32 s{S_ST0}, s{S_T2}, 14', f's_add_u32 s{S_RC}, s{S_RC}, s{S_ST0}', f's_add_u32 s{S_RC}, s{S_RC}, {5 * 2048}', f's_mul_i32 s{S_ST0}, s{S_C}, 44', f's_lshl_b32 s{S_PX}, s{S_T2}, 9', f's_add_u32 s{S_SAMP}, s{S_PX}, s{S_ST0}', f's_add_u32 s{S_PX}, s{S_PX}, s{S_T1}',
             f's_add_u32 s{S_SAMP}, s{S_SAMP}, s{S_WAVE}', f's_mul_i32 s{S_SAMP}, s{S_SAMP}, 104',
             f's_lshl_b32 s{S_ST0}, s{S_C}, 2', f's_add_u32 s{S_ST0}, s{S_ST0}, s{S_WAVE}', f's_add_u32 s{S_ST0}, s{S_ST0}, s{S_T2}', f's_and_b32 s{S_ST0}, s{S_ST0}, 7',
             f's_mul_i32 s{S_ST0}, s{S_ST0}, {16384 + o.shs}', f's_add_u32 s{S_ST0}, s{S_ST0}, {6 * 2048}',
             f's_sub_u32 s{S_LOOP}, 6, s{S_GRP}', f's_lshl_b32 s{S_TK}, s{S_GRP}, 1', f's_mov_b32 s{S_DYN}, -1',
             f'v_lshrrev_b32 v{t3}, 3, v0', f'v_min_u32 v{t3}, 6, v{t3}', f'v_lshlrev_b32 v{vXi}, 4, v{t3}',
             f's_mul_i32 s{S_T2}, s{S_T2}, 88', f's_add_u32 s{S_T2}, s{S_GW}, s{S_T2}', f's_mov_b32 s{S_T3}, 704',
             f'v_mov_b32 v{t4}, s{S_T2}', f'v_mad_u32_u24 v{vPWL}, v0, s{S_T3}, v{t4}',
             f's_mul_i32 s{S_T2}, s{S_GW}, 104', f's_sub_u32 s{S_T2}, s{S_T2}, {13 * 26 - 25}',
             f'v_min_u32 v{t4}, {12 + o.pfr}, v0', f'v_mul_u32_u24 v{t5}, 26, v{t4}', f'v_add_u32 v{t5}, s{S_T2}, v{t5}',
             f'v_cmp_lt_u32 vcc, 12, v{t4}', f'v_cndmask_b32 v{vPWL}, v{vPWL}, v{t5}, vcc', f'v_lshlrev_b32 v{vPWL}, 7, v{vPWL}',
             f's_mov_b32 s{S_PW}, {o.pfe0 * 832 * 128}',
             f'v_mov_b32 v{vFR}, {L_FLG}', f'v_lshlrev_b32 v{vFA}, 20, v0', f'v_add_u32 v{vFA}, {L_FLG}, v{vFA}',
             f'v_and_b32 v{t4}, 7, v0', f'v_lshlrev_b32 v{vC16}, 4, v{t4}', f'v_and_b32 v{t4}, 15, v0', f'v_lshl_add_u32 v{t4}, v{t4}, 2, v{vFR}',
             f'v_mov_b32 v{vOne}, 0', f'ds_write_b32 v{t4}, v{vOne}',
             f'v_lshrrev_b32 v{half}, 5, v0', f'v_and_b32 v{i32}, 31, v0',
             's_waitcnt lgkmcnt(0)', f'v_mov_b32 v{vOne}, 1']
        L += self.tlb1(t5, 255)
        L += self.build_srd(SRD_CIN, S_CIN, 105456)
        L += [f'buffer_load_dword v255, v{T}, {srd(SRD_CIN)}, s{S_T0} offen'] if o.coop else []
        L += self.build_srd(SRD_W, S_W1, 1664 * 3328)

        def pfw():
            return [f's_mov_b64 exec, {(1 << (13 + o.pfr)) - 1}', f'buffer_load_dword v255, v{vPWL}, {srd(SRD_W)}, s{S_PW} offen', 's_mov_b64 exec, -1',
                    f's_add_u32 s{S_PW}, s{S_PW}, {352 * 3328}']
        L += ['s_barrier'] + (pfw() if o.pf1 in (0, 3) else [])
        L += self.build_srd(SRD_IDX, S_IDX, 4096 * 104)

        def pfx_a():
            return [f'buffer_load_dword v{PXR}, v{vPXL}, {srd(SRD_IDX)}, s{S_PX} offen',
                    f's_cmp_eq_u32 s{S_PX}, s{S_PXE}', f's_cselect_b32 s{S_PXE}, 0x7000000, s{S_PXE}',
                    f's_cselect_b32 s{S_PX}, 0x7000000, s{S_PX}',
                    f's_add_u32 s{S_PX}, s{S_PX}, 24', f's_min_u32 s{S_PX}, s{S_PX}, s{S_PXE}']

        def pfx_b():
            return [f'v_lshlrev_b32 v{PXR}, 7, v{PXR}', f'buffer_load_dword v255, v{PXR}, {srd(SRD_TAB)}, 0 offen']

        def xidx(XI=XI, off=0, adv=True):
            c = [f'buffer_load_dwordx4 {vr(XI, 4)}, v{vXi}, {srd(SRD_IDX)}, s{S_SAMP} offen offset:{off}']
            if adv:
                c.append(f's_add_u32 s{S_SAMP}, s{S_SAMP}, {8 * 104}')
            return c

        def xdma(XI=XI, lo=0):
            c = []
            for u in range(4):
                if u == 2:
                    c += ['s_mov_b32 exec_hi, 0x0000ffff']
                c += [f'v_lshl_add_u32 v{XI + u}, v{XI + u}, 7, v{vC16}']
                if u == 3:
                    c += ['s_mov_b32 exec_lo, 0', 's_mov_b32 exec_hi, 0xffff0000', f'v_mov_b32 v{XI + 3}, v{XI + 1}', f'v_mov_b32 v{XI + 2}, v{XI + 1}',
                          's_mov_b32 exec_hi, 0x00ff0000', f'v_mov_b32 v{XI + 2}, v{XI}', 's_mov_b64 exec, -1']
            for u in range(4):
                c += [f's_add_u32 m0, s{S_BCUR}, {u * XPI + lo}']
                if u == 3:
                    c += ['s_mov_b32 exec_hi, 0x00ffffff']
                c.append(I(f'buffer_load_dwordx4 v{XI + u}, {srd(SRD_TAB)}, 0 offen lds', tag='XB'))
                if u == 3:
                    c += ['s_mov_b32 exec_hi, -1']
            return c
        wco = self.build_srd(SRD_WCO, S_WCO, 156) + [f's_mov_b32 m0, {L_WCO}', 's_mov_b64 exec, 0x7ff',
              I(f'buffer_load_dwordx4 v{vStg}, {srd(SRD_WCO)}, 0 offen lds', tag='STG3'),
              's_mov_b64 exec, -1']
        L += self.stamp0()

        def stage(dst, goff, tag):
            st = []
            for m in range(8):
                st.append((f's_add_u32 m0, s{S_STG}, {dst + m * 4096}', f's_add_u32 s{S_TW}, s{S_STG}, {goff + m * 4096}',
                           I(f'buffer_load_dwordx4 v{vStg}, {srd(SRD_CIN)}, s{S_TW} offen lds', tag=tag)))
            st.append((f's_add_u32 m0, s{S_STG9}, {dst}', f's_add_u32 s{S_TW}, s{S_STG9}, {goff}',
                       f's_mov_b64 exec, s[{S_EX}:{S_EX + 1}]',
                       I(f'buffer_load_dwordx4 v{vStg}, {srd(SRD_CIN)}, s{S_TW} offen lds', tag=tag),
                       's_mov_b64 exec, -1'))
            return st

        L += [f's_cmp_lg_u32 s{S_GRP}, 0', 's_cbranch_scc1 L_g1a']
        c0 = self.seq(L)
        sA, sB = (('1', A1, 0, F_W1), ('2', A2, 35152, F_W2)) if o.w1first else (('2', A2, 35152, F_W2), ('1', A1, 0, F_W1))
        stA, stB = stage(sA[1], sA[2], 'STG' + sA[0]), stage(sB[1], sB[2], 'STG' + sB[0])
        stg = [wco + stage(A3, 70304, 'STG3') + stA[:o.sigat],
               sig(F_W3, vm_tags=['STG3']) + self.stamp(1) + stA[o.sigat:] + stB[:o.sig2],
               sig(sA[3], vm_tags=['STG' + sA[0]]) + stB[o.sig2:]]
        g0a = self.seq(stg[:o.ccpos] + ['s_branch L_addrc'])
        L = ['L_g1a:', 's_setprio 1',
             f'v_bfe_u32 v{t3}, v0, 2, 2', f'v_lshl_add_u32 v{t3}, v{half}, 3, v{t3}',
             f'v_bfe_u32 v{t4}, v0, 4, 1', f'v_lshlrev_b32 v{t4}, 5, v{t4}',
             f'v_and_b32 v{t5}, 3, v0', f'v_lshl_add_u32 v{t4}, v{t5}, 3, v{t4}',
             f'v_lshl_add_u32 v{vA3}, v{t3}, 6, v{t4}', f'v_add_u32 v{vA3}, {V3OFF}, v{vA3}',
             f's_lshl_b32 s{S_T0}, s{cw}, 6', f's_add_u32 s{S_T0}, s{S_T0}, {A2}',
             f'v_add_u32 v{t4}, s{S_T0}, v{t4}',
             f'v_mul_u32_u24 v{t5}, 1352, v{t3}', f'v_add_u32 v{vBs0}, v{t4}, v{t5}',
             f'v_add_u32 v{t5}, 16, v{t3}', f'v_min_u32 v{t5}, 25, v{t5}',
             f'v_mul_u32_u24 v{t5}, 1352, v{t5}', f'v_add_u32 v{vBs1a}, v{t4}, v{t5}',
             f'v_add_u32 v{t5}, 20, v{t3}', f'v_min_u32 v{t5}, 25, v{t5}',
             f'v_mul_u32_u24 v{t5}, 1352, v{t5}', f'v_add_u32 v{vBs1b}, v{t4}, v{t5}',
             f's_lshl_b32 s{S_T0}, s{cw}, 5', f'v_add_u32 v{vE}, s{S_T0}, v{i32}',
             f'v_mul_u32_u24 v{t3}, 52, v{vE}', f'v_lshl_add_u32 v{t3}, v{half}, 3, v{t3}',
             f'v_add_u32 v{vUw}, {A3}, v{t3}',
             f'v_lshlrev_b32 v{t3}, 1, v{vE}', f'v_add_u32 v{vV2w}, {V2OFF}, v{t3}',
             f'v_mov_b32 v{BT}, 0', f'v_mov_b32 v{BT + 1}, 0',
             f'v_lshlrev_b32 v{t3}, 3, v0', f'v_add_u32 v{t4}, {V3OFF}, v{t3}',
             f's_lshl_b32 s{S_T0}, s{cw}, 9', f'v_add_u32 v{t4}, s{S_T0}, v{t4}', f'ds_write_b64 v{t4}, {vr(BT, 2)}']
        L += [f'v_lshl_add_u32 v{t3}, v{half}, 7, v{vE}', f's_mov_b32 s{S_T1}, 2521', f's_mov_b32 s{S_T2}, {V3OFF}']
        for p_ in range(3):
            L += [f'v_mul_u32_u24 v{t4}, s{S_T1}, v{t3}', f'v_lshrrev_b32 v{t4}, 16, v{t4}',
                  f'v_mad_u32_u24 v{t4}, v{t4}, 12, s{S_T2}', f'v_lshl_add_u32 v{AD + p_}, v{t3}, 1, v{t4}']
            if p_ < 2:
                L += [f'v_add_u32 v{t3}, 256, v{t3}']
        L += [f'v_mov_b32 v{t4}, 676', f'v_cmp_gt_u32 s[{S_MASK}:{S_MASK + 1}], v{t4}, v{t3}']
        for m in range(6):
            L += [f'v_add_u32 v{t3}, {128 * m}, v{vE}', f'v_mul_u32_u24 v{t4}, s{S_T1}, v{t3}', f'v_lshrrev_b32 v{t4}, 16, v{t4}',
                  f'v_lshl_add_u32 v{t4}, v{t4}, 2, v{vUw}', f'v_add_u32 v{AD + 4 + m}, {m * 6656}, v{t4}']
        L += [f'v_lshlrev_b32 v{AD + 10}, 4, v{half}', f'v_add_u32 v{AD + 10}, {L_WCO + 104}, v{AD + 10}',
              f'v_lshlrev_b32 v{AD + 11}, 1, v0', f'v_add_u32 v{AD + 11}, {L_WCO}, v{AD + 11}',
              f'v_lshlrev_b32 v{AD + 12}, 6, v0', f'v_add_u32 v{AD + 12}, {V3OFF + 52}, v{AD + 12}']
        g1a = self.seq(L)

        N_ = (0, 1, 2, 3)
        classes = []
        for d in ZD:
            for (a, ha, b, hb) in d:
                if cls(a, ha)[1] == N_ and cls(b, hb)[1] != N_ and cls(b, hb)[1] not in classes:
                    classes.append(cls(b, hb)[1])
        assert len(classes) == 5
        base = {(N_, N_): GB}
        for k, c in enumerate(classes):
            base[(N_, c)] = GB + 1 + 2 * k
            base[(c, N_)] = GB + 2 + 2 * k
        SP1, SP2 = GB + 11, GB + 12
        pk4 = lambda t: '0x%08x' % sum((x & 0xff) << (8 * k) for k, x in enumerate(t))
        L = ['L_addrc:',
             f's_and_b32 s{S_T2}, s{S_WAVE}, 1', f's_lshl_b32 s{S_T2}, s{S_T2}, 1', f'v_add_u32 v{vg}, s{S_T2}, v{half}',
             f'v_min_u32 v{t3}, 25, v{i32}',
             f's_mul_i32 s{S_T0}, s{S_GRP}, {UST - 1352}', f's_add_u32 s{S_T0}, s{S_T0}, 1352',
             f's_mul_i32 s{S_T1}, s{S_GRP}, {A3 - A1}', f's_add_u32 s{S_T1}, s{S_T1}, {A1}',
             f'v_mul_u32_u24 v{t4}, s{S_T0}, v{t3}', f'v_add_u32 v{t4}, s{S_T1}, v{t4}',
             f'v_lshlrev_b32 v{vDl}, 2, v{t3}', f'v_add_u32 v{vDl}, {A3 - A1}, v{vDl}',
             f'v_mul_u32_u24 v{vL}, 52, v{t3}', f'v_lshl_add_u32 v{vL}, v{vg}, 1, v{vL}', f'v_add_u32 v{vL}, {V2OFF}, v{vL}',
             f'v_lshlrev_b32 v{vWo}, 1, v{t3}', f'v_add_u32 v{vWo}, {L_WCO}, v{vWo}',
             f'v_mad_u32_u24 v{SP1}, v{vg}, 52, v{t4}',
             f'v_lshl_add_u32 v{SP2}, v{vg}, 1, v{t4}',
             f'v_lshl_add_u32 v{GB}, v{vg}, 1, v{SP1}',
             f'v_lshlrev_b32 v{t3}, 3, v{vg}']
        for k, c in enumerate(classes):
            L += [f's_mov_b32 s{S_T0}, {pk4(c)}', f'v_bfe_i32 v{t5}, s{S_T0}, v{t3}, 8',
                  f'v_lshl_add_u32 v{GB + 1 + 2 * k}, v{t5}, 1, v{SP1}', f'v_mad_i32_i24 v{GB + 2 + 2 * k}, v{t5}, 52, v{SP2}']
        L += [f's_mov_b32 s{S_T0}, {pk4((0, 54, 2, 0))}', f'v_bfe_u32 v{t5}, s{S_T0}, v{t3}, 8', f'v_add_u32 v{SP1}, v{t5}, v{t4}',
              f'v_add_u32 v{SP2}, 52, v{t4}', f'v_mov_b32 v{vm}, {OOB}',
              f'v_cmp_eq_u32 vcc, 3, v{vg}', f'v_cndmask_b32 v{SP1}, v{SP1}, v{vm}, vcc', f'v_cndmask_b32 v{vWo}, v{vm}, v{vWo}, vcc',
              f'v_cmp_eq_u32 vcc, 2, v{vg}', f'v_cndmask_b32 v{SP2}, v{vm}, v{SP2}, vcc',
              f'v_cmp_gt_u32 vcc, 2, v{vg}', f'v_cndmask_b32 v{vL6}, v{vm}, v{vL}, vcc']
        L += [f's_lshr_b32 s{S_T1}, s{cw}, 1', f's_mul_i32 s{S_T1}, s{S_T1}, {6 * 1024}', f's_mul_i32 s{S_T0}, s{S_GRP}, {6 * 1024}',
              f'v_lshlrev_b32 v{t5}, 8, v{vg}',
              f'v_lshl_add_u32 v{t3}, v{i32}, 4, v{t5}', f'v_add_u32 v{vWr}, {TA}, v{t3}', f'v_add_u32 v{vWu}, {TB}, v{t3}',
              f'v_bfe_u32 v{t3}, v0, 2, 2', f'v_lshl_add_u32 v{t5}, v{t3}, 4, v{t5}', f'v_and_b32 v{t3}, 3, v0',
              f'v_lshl_add_u32 v{t4}, v{t3}, 6, v{t5}', f'v_add_u32 v{t4}, {TC}, v{t4}',
              f'v_cmp_lt_u32 vcc, 15, v{i32}', f'v_cndmask_b32 v{vWr}, v{vWr}, v{t4}, vcc', f'v_add_u32 v{t4}, 16, v{t4}',
              f'v_cndmask_b32 v{vWu}, v{vWu}, v{t4}, vcc',
              f'v_lshl_add_u32 v{t4}, v{t3}, 5, v{t5}', f'v_add_u32 v{t4}, {TD - 16}, v{t4}',
              f'v_cmp_lt_u32 vcc, 19, v{i32}', f'v_cndmask_b32 v{vWr}, v{vWr}, v{t4}, vcc',
              f'v_add_u32 v{vWr}, s{S_T1}, v{vWr}', f'v_add_u32 v{vWu}, s{S_T0}, v{vWu}',
              f'v_cmp_lt_u32 vcc, 25, v{i32}', f'v_cndmask_b32 v{vWr}, v{vWr}, v{vm}, vcc', f'v_cndmask_b32 v{vWu}, v{vWu}, v{vm}, vcc',
              f'v_mov_b32 v{vMx}, 0']
        L += [f's_mul_i32 s{S_BCUR}, s{S_WAVE}, {XBSZ}', f's_add_u32 s{S_BCUR}, s{S_BCUR}, {XB0}', f's_mov_b32 s{S_BD}, {XB1 - XB0}',
              f'v_add_u32 v{aD}, {TA}, v{vStg}',
              f'v_and_b32 v{t3}, 11, v0', f'v_cmp_eq_u32 vcc, 11, v{t3}', f'v_cndmask_b32 v{aC}, v{aD}, v{vm}, vcc',
              f'v_and_b32 v{t3}, 3, v0', f'v_cmp_eq_u32 vcc, 0, v{t3}', f'v_cndmask_b32 v{aLc}, v{aC}, v{vm}, vcc',
              f'v_lshrrev_b32 v{vg}, 4, v0', f'v_bfe_u32 v{t3}, v0, 1, 3', f'v_lshlrev_b32 v{t5}, 4, v{t3}', f'v_add_u32 v{t5}, {TD}, v{t5}',
              f'v_and_b32 v{t3}, 10, v0', f'v_cmp_eq_u32 vcc, 10, v{t3}', f'v_cndmask_b32 v{t5}, v{t5}, v{vm}, vcc',
              f'v_and_b32 v{t4}, 1, v0', f'v_lshl_add_u32 v{aS}, v{vg}, 9, v{t5}', f'v_lshl_add_u32 v{aS}, v{t4}, 2, v{aS}', f'v_add_u32 v{aS}, 1024, v{aS}',
              f'v_lshl_add_u32 v{FT}, v{vg}, 8, v{t5}', f'v_lshl_add_u32 v{FT}, v{t4}, 20, v{FT}',
              f'v_and_b32 v{vm}, 15, v0', f's_mov_b32 s{S_T0}, {XPI}',
              f'v_lshlrev_b32 v{t3}, 1, v{vm}', f'v_add_u32 v{t3}, s{S_BCUR}, v{t3}',
              f'v_mad_u32_u24 v{vRaw}, v{vg}, s{S_T0}, v{t3}',
              f's_lshl_b32 s{S_T0}, s{S_WAVE}, 10', f's_add_u32 s{S_T0}, s{S_T0}, {XCH}',
              f'v_add_u32 v{vXw}, s{S_T0}, v{vStg}',
              f'v_add_u32 v{t3}, 256, v{vStg}', f'v_and_b32 v{t3}, 1023, v{t3}', f'v_add_u32 v{vX1}, s{S_T0}, v{t3}',
              f'v_xor_b32 v{t3}, 512, v{vStg}', f'v_add_u32 v{vX2}, s{S_T0}, v{t3}', f'v_lshlrev_b32 v{vSh}, 4, v{half}']
        L += [f'v_mov_b32 v{r}, 0' for r in list(range(RAW, RAW + 8)) + list(range(BT, BT + 24))]
        L += [f'v_mul_u32_u24 v{t4}, {XPI}, v{vg}',
              f'v_bfe_u32 v{t5}, v0, 2, 2', f'v_lshl_add_u32 v{t4}, v{t5}, 7, v{t4}',
              f'v_and_b32 v{t5}, 3, v0', f'v_lshl_add_u32 v{vLinB}, v{t5}, 3, v{t4}', f'v_add_u32 v{vLin}, s{S_BCUR}, v{vLinB}',
              f'v_and_b32 v{t5}, 1, v0', f's_mov_b32 s{S_T0}, 0xaaaaaaaa', f'v_mul_lo_u32 v{vSI}, s{S_T0}, v{t5}', f'v_or_b32 v{vSI}, 0x44444444, v{vSI}',
              f'v_lshlrev_b32 v{vOr}, 1, v0', f'v_add_u32 v{vOr}, s{S_BCUR}, v{vOr}', f'v_mov_b32 v{vAcc}, 0x3f80',
              f'ds_write_b16 v{vOr}, v{vAcc} offset:{3 * XPI + 7 * 128}', f'v_add_u32 v{vOr}, s{S_BD}, v{vOr}']
        L += [f's_mul_i32 s{S_T3}, s{S_WAVE}, 6', f's_add_u32 s{S_PX}, s{S_PX}, s{S_T3}', f's_mul_i32 s{S_PX}, s{S_PX}, 104',
              f's_add_u32 s{S_PXE}, s{S_PX}, 80', f's_add_u32 s{S_PX}, s{S_PX}, {4 * o.pfx0}',
              f's_mov_b32 s{S_T3}, 10923', f'v_min_u32 v{t3}, 35, v0',
              f'v_mul_u32_u24 v{t4}, s{S_T3}, v{t3}', f'v_lshrrev_b32 v{t4}, 16, v{t4}',
              f'v_mul_u32_u24 v{t4}, {104 - 24}, v{t4}', f'v_lshl_add_u32 v{vPXL}, v{t3}, 2, v{t4}']
        L += self.stamp(14) + (pfw() if o.pf1 == 1 else [])
        L += [f's_cmp_eq_u32 s{S_GRP}, 0', 's_cbranch_scc1 L_g0pf']
        cc = self.seq(L)

        def bread(m, base):
            b = BALL + m * 8
            return [f'ds_read_b64_tr_b16 {vr(b, 2)}, v{vBs0} offset:{base + m * 256}',
                    f'ds_read_b64_tr_b16 {vr(b + 2, 2)}, v{vBs0} offset:{base + m * 256 + 4 * 1352}',
                    f'ds_read_b64_tr_b16 {vr(b + 4, 2)}, v{vBs1a} offset:{base + m * 256}',
                    f'ds_read_b64_tr_b16 {vr(b + 6, 2)}, v{vBs1b} offset:{base + m * 256}']

        def mm6(base, post=lambda m: []):
            c = []
            for m in range(3 if base is not None else 0):
                c += bread(m, base)
            for m in range(6):
                if m + 3 < 6 and base is not None:
                    c += bread(m + 3, base)
                b = BALL + m * 8
                d = DALL + (m % 4) * 16
                c.append(f'v_mfma_f32_32x32x16_bf16 {vr(d, 16)}, {vr(AFR, 4)}, {vr(b, 4)}, 0')
                c.append(f'v_mfma_f32_32x32x16_bf16 {vr(d, 16)}, {vr(AFR + 4, 4)}, {vr(b + 4, 4)}, {vr(d, 16)}')
                if m >= 2:
                    c += post(m - 2)
            return c + post(4) + post(5)

        e1 = [f's_sub_u32 s{S_T0}, s{S_PX}, {24 * 104}', f'buffer_load_dword v{XJ + 4}, v{vPXL}, {srd(SRD_IDX)}, s{S_T0} offen',
              f'buffer_load_dword v{XJ + 5}, v{vPXL}, {srd(SRD_IDX)}, s{S_PX} offen']
        e2 = [f'v_lshlrev_b32 v{XJ + 4}, 7, v{XJ + 4}', f'buffer_load_dword v255, v{XJ + 4}, {srd(SRD_TAB)}, 0 offen',
              f'v_lshlrev_b32 v{XJ + 5}, 7, v{XJ + 5}', f'buffer_load_dword v255, v{XJ + 5}, {srd(SRD_TAB)}, 0 offen']
        xx = xdma() + xdma(XJ, -4 * XBSZ) + xidx()
        L = sig(F_W3) + [f's_sub_u32 s{S_SAMP}, s{S_SAMP}, {4 * 104}'] + xidx(XJ, 0, False) + [f's_add_u32 s{S_SAMP}, s{S_SAMP}, {4 * 104}'] + xidx()
        L += e1 + [f's_add_u32 s{S_PX}, s{S_PX}, 24'] + pfx_a()
        L += wait(F_W3, 8) + self.stamp(2)
        uc0 = self.seq(L)
        L = []
        for s2 in range(2):
            for rd in range(2):
                L.append(f'ds_read_b64 {vr(AFR + 4 * s2 + 2 * rd, 2)}, v{AD + 10} offset:{s2 * 32 + rd * 8}')
        L += [f'ds_read_u16 v{t5}, v{AD + 11} offset:52']

        def vpost(m):
            p_ = m // 2
            c = [f'v_cvt_pk_bf16_f32 v{V3T + p_}, v{DALL + 16 * (m % 4)}, 0']
            if m % 2:
                c = ['s_mov_b32 exec_lo, 0'] + c + [f's_mov_b64 exec, s[{S_MASK}:{S_MASK + 1}]' if p_ == 2 else 's_mov_b32 exec_lo, -1',
                                                    f'ds_write_b16 v{AD + p_}, v{V3T + p_}']
            return c
        L += mm6(A3 - A2, vpost)
        L += ['s_mov_b64 exec, 0x3ffffff', f'ds_write_b16 v{AD + 12}, v{t5}', 's_mov_b64 exec, -1']
        L += self.stamp(3) + sig(F_V3) + (pfw() if o.pf1 in (2, 3) else []) + [f'v_cmp_gt_u32 s[{S_MASK}:{S_MASK + 1}], 36, v{vE}']
        L += (e2 if o.epos == 0 else []) + (xx if o.xpos == 0 else []) + (e2 if o.epos == 1 else [])
        L += wait(F_W2, 4) + [bread(m, 0) for m in range(6)] + wait(F_V3, 4) + self.stamp(5) + [f's_setprio {o.uprio}']
        for s2 in range(2):
            for rd in range(2):
                L.append(f'ds_read_b64_tr_b16 {vr(AFR + 4 * s2 + 2 * rd, 2)}, v{vA3} offset:{s2 * 1024 + rd * 256}')

        def upost(m):
            d = DALL + 16 * (m % 4)
            c = [f'v_cvt_pk_bf16_f32 v{UP + 8 * m + qq}, v{d + 2 * qq}, v{d + 2 * qq + 1}' for qq in range(8)]
            if m == 5:
                c.append(f's_mov_b64 exec, s[{S_MASK}:{S_MASK + 1}]')
            w_ = [f'ds_write2_b32 v{AD + 4 + m}, v{UP + 8 * m + 2 * a}, v{UP + 8 * m + 2 * a + 1} offset0:{4 * a} offset1:{4 * a + 1}' for a in range(3)]
            return c + interleave(w_, [f'v_max3_f32 v{vMx}, v{vMx}, abs(v{d + 2 * qq}), abs(v{d + 2 * qq + 1})' for qq in range(7)])
        L += mm6(None, upost)
        L.append('s_mov_b32 exec_hi, 0')
        for m in (5, 4, 3, 2, 1, 0):
            L.append(f'ds_write_b32 v{AD + 4 + m}, v{UP + 8 * m + 6} offset:48')
            L.append(f'ds_write_b16 v{vV2w}, v{UP + 8 * m + 7} offset:{m * 256}')
            if m == 5:
                L.append('s_mov_b32 exec_lo, -1')
        L += ['s_mov_b64 exec, -1'] + postmax(vMx, F_U) + [f's_setprio {o.bprio}'] + (xx if o.xpos == 1 else []) + (e2 if o.epos == 2 else []) + self.stamp(6) + ['s_branch L_uph']
        uc = self.seq(L)

        L = ['L_g0pf:'] + stg[o.ccpos:] + [f's_add_u32 s{S_SAMP}, s{S_SAMP}, {8 * 104}', f's_add_u32 s{S_PX}, s{S_PX}, 24'] + xidx() + pfx_a()
        L += (pfw() if o.pf1 in (2, 3) else []) + sig(sB[3], vm_tags=['STG' + sB[0]]) + self.stamp(4) + [f's_mov_b32 s{S_PH}, 0'] + wait(F_W1, 4) + self.stamp(2)
        L += [f's_cmp_ge_u32 s{cw}, 2', 's_cbranch_scc1 L_chunk2']
        g0pf = self.seq(L)

        def chunk(k):
            units = [(n, h) for n in range(12 * k, min(12 * k + 12, 44)) for h in range(2)]
            NB_, BA = 12, o.ba
            reads, maths = [], []
            for ui, (n, h) in enumerate(units):
                a, ha, b, hb = ZD[n][h]
                (fa, ca), (fb, cb) = cls(a, ha), cls(b, hb)
                tb = BT + (ui % NB_) * 2
                dst = SUM + 24 * (k % 2) + ui
                if ca != N_:
                    R = [f'ds_read_u16_d16_hi v{tb}, v{SP1} offset:{54 * 24}', f'ds_read_u16_d16_hi v{tb + 1}, v{SP2} offset:{54 * 24}']
                    M = [f'v_add_f32 v{dst}, v{tb}, v{tb + 1}']
                elif (a, ha) == (b, hb):
                    R = [f'ds_read_u16_d16_hi v{tb}, v{base[(ca, cb)]} offset:{54 * fa}']
                    M = [f'v_mov_b32 v{dst}, v{tb}']
                else:
                    R = [f'ds_read_u16_d16_hi v{tb}, v{base[(ca, cb)]} offset:{52 * fa + 2 * fb}',
                         f'ds_read_u16_d16_hi v{tb + 1}, v{base[(cb, ca)]} offset:{52 * fb + 2 * fa}']
                    M = [f'v_add_f32 v{dst}, v{tb}, v{tb + 1}']
                if ui % 2:
                    M = M + maths[-1] + [f'v_max3_f32 v{vMx}, v{vMx}, abs(v{dst - 1}), abs(v{dst})']
                    maths[-1] = []
                reads.append(R)
                maths.append(M)
            code = []
            nu = len(units)
            for ui in range(nu + BA):
                if ui < nu:
                    code += reads[ui]
                if ui == nu and k == 3:
                    code += [f'ds_read_u16_d16_hi v{LT + e}, v{vL} offset:{8 * e}' for e in range(6)]
                    code += [f'ds_read_u16_d16_hi v{LT + 6}, v{vL6} offset:48', f'ds_read_u16_d16_hi v{LT + 7}, v{vWo}']
                if ui >= BA:
                    code += maths[ui - BA]
            return code
        LT = BT + 8
        assert o.ba <= 8

        def conv(n):
            return [f'v_fma_mix{"hi" if h else "lo"}_f16 v{OUT + q}, v{SUM + 2 * q + h}, s{S_SC}, 0' for h in range(2) for q in range(4 * n, 4 * n + 4)]
        wr = lambda n, A: [f'ds_write_b128 v{A}, {vr(OUT + 4 * n, 4)} offset:{n * 1024}']
        ch, chb = [], []
        for k in range(4):
            ch.append(self.seq([f'L_chunk{k}:'] + chunk(k) + [f's_cmp_lg_u32 s{S_PH}, 0', f's_cbranch_scc1 L_uconv{k % 2}']))
            chb.append(self.seq(['s_branch L_w1conv'] if k == 1 else []))
        L = ['L_w1conv:'] + self.stamp(3) + postmax(vMx, F_M)
        L += [f'v_add_u32 v{GB + k}, v{GB + k}, v{vDl}' for k in range(13)]
        L += waitmax(F_M, S_T2, 141) + setsc(S_T2) + self.stamp(5)
        L += conv(0) + conv(1) + wr(0, vWr) + conv(2) + wr(1, vWr) + conv(3) + wr(2, vWr) + conv(4) + wr(3, vWr) + wr(4, vWr)
        L += [f's_cmp_ge_u32 s{cw}, 2', 's_cbranch_scc1 L_w1x']
        w1a = self.seq(L)
        w1b = self.seq(conv(5) + wr(5, vWr))
        w1c = self.seq(['L_w1x:'])
        L = ['L_uph:'] + self.stamp(7) + waitmax(F_U, S_T3, 140) + setsc(S_T3) + self.stamp(12)
        L += [f's_mov_b32 s{S_PH}, 1', f's_lshr_b32 s{S_T1}, s{S_WAVE}, 1',
              f's_cmp_eq_u32 s{S_T1}, 0', 's_cbranch_scc1 L_chunk0', f's_cmp_eq_u32 s{S_T1}, 1', 's_cbranch_scc1 L_chunk1',
              f's_cmp_eq_u32 s{S_T1}, 2', 's_cbranch_scc1 L_chunk2', 's_branch L_chunk3']
        uph = self.seq(L)
        wm1 = lambda: waitmax(F_M, S_T2, 141)
        u0 = self.seq(['L_uconv0:'] + self.stamp(13) + conv(0) + wm1() + wr(0, vWu) + conv(1) + wr(1, vWu) + conv(2) + wr(2, vWu) + ['s_branch L_built'])
        u1a = self.seq(['L_uconv1:'] + self.stamp(13) + conv(3) + wm1() + wr(3, vWu) + conv(4) + wr(4, vWu) + [f's_cmp_lg_u32 s{S_GRP}, 0', 's_cbranch_scc1 L_ulin'])
        u1b = self.seq(conv(5) + wr(5, vWu) + ['s_branch L_built'])
        L = ['L_ulin:'] + [f'v_mul_f32 v{LT + e}, s{S_SC}, v{LT + e}' for e in range(8)]
        L += [f'v_cvt_pk_bf16_f32 v{OUT + 20 + q}, v{LT + 2 * q}, v{LT + 2 * q + 1}' for q in range(4)] + wr(5, vWu)
        u1c = self.seq(L)

        w0x = self.build_srd(SRD_W2, S_W2, 3328) + [f'v_lshlrev_b32 v{FT}, 7, v0', f'buffer_load_dword v255, v{FT}, {srd(SRD_W2)}, 0 offen']

        slot = lambda k: RZ + 4 * (k % 4)
        MF = [('Lb', 0), ('a', 1), ('b', 1), ('d', 1), ('Lc', 0), ('a', 2), ('c', 1), ('b', 2), ('c', 2)]
        for k in range(3, 10):
            MF += ([('S', k)] if k % 2 else []) + [('a', k), ('b', k), ('c', k)]
        MF += [('a', 10), ('b', 10), ('a', 11), ('b', 11), ('c', 10), ('S', 11), ('c', 11)]
        if o.mo == 1:
            MF = [('Lb', 0), ('a', 1), ('d', 1), ('Lc', 0), ('b', 1), ('a', 2), ('c', 1), ('b', 2), ('a', 3), ('c', 2), ('S', 3), ('b', 3), ('c', 3)]
            for k in range(4, 10):
                MF += ([('S', k)] if k % 2 else []) + [('a', k), ('b', k), ('c', k)]
            MF += [('a', 10), ('b', 10), ('c', 10), ('a', 11), ('b', 11), ('S', 11), ('c', 11)]
        if o.mo == 2:
            MF = [('d', 1), ('Lb', 0), ('a', 1), ('Lc', 0), ('b', 1), ('a', 2), ('c', 1), ('b', 2), ('a', 3), ('c', 2), ('S', 3), ('b', 3), ('c', 3)]
            for k in range(4, 12):
                MF += ([('S', k)] if k % 2 else []) + [('a', k), ('b', k), ('c', k)]
        if o.mo == 3:
            MF = [('d', 1), ('Lb', 0), ('b', 1), ('a', 1), ('Lc', 0), ('c', 1)]
            for k in range(2, 12, 2):
                MF += [('c', k), ('c', k + 1), ('S', k + 1), ('a', k), ('a', k + 1), ('b', k), ('b', k + 1)] if k % 4 == 2 and k < 10 else \
                      [('b', k), ('b', k + 1), ('S', k + 1), ('a', k), ('a', k + 1), ('c', k), ('c', k + 1)]
        NM = len(MF)
        use = {k: [m for m, (t_, kk) in enumerate(MF) if kk == k or (t_ == 'S' and kk == k + 1)] for k in range(12)}
        pos = lambda t_, k: MF.index((t_, k))

        def mfma(m):
            t_, k = MF[m]
            if t_[0] == 'L':
                d, w = {'b': (Db, WL), 'c': (Dc, WL + 4)}[t_[1]]
                return f'v_mfma_f32_16x16x32_bf16 {vr(d, 4)}, {vr(w, 4)}, {vr(slot(0), 4)}, 0'
            if t_ == 'S':
                return f'v_smfmac_f32_16x16x64_f16 {vr(Ds, 4)}, {vr(WS_ + 2 * (k - 1), 4)}, {vr(slot(k - 1), 8)}, v{vSI}'
            d, w = {'a': (Da, WA), 'b': (Db, WB), 'c': (Dc, WC), 'd': (Ds, WS_)}[t_]
            return f'v_mfma_f32_16x16x32_f16 {vr(d, 4)}, {vr(w + 4 * (k - 1), 4)}, {vr(slot(k), 4)}, {"0" if t_ in "ad" and k == 1 else vr(d, 4)}'

        def wload(m):
            t_, k = MF[m]
            if t_[0] == 'L':
                a, w, off = {'b': (aD, WL, TB), 'c': (aLc, WL + 4, TC)}[t_[1]]
                return [f'ds_read_b128 {vr(w, 4)}, v{a} offset:{off - TA + 11 * 1024}']
            if t_ == 'd':
                return [f'ds_read_b128 {vr(WS_, 4)}, v{FT}']
            if t_ == 'S':
                w = WS_ + 2 * (k - 1)
                return [f'ds_read2_b32 {vr(w, 2)}, v{aS} offset0:0 offset1:2', f'ds_read2_b32 {vr(w + 2, 2)}, v{aS} offset0:64 offset1:66',
                        f'v_add_u32 v{aS}, 2048, v{aS}']
            w, a, off = {'a': (WA, aD, 0), 'b': (WB, aD, TB - TA), 'c': (WC, aC, TC - TA)}[t_]
            return [f'ds_read_b128 {vr(w + 4 * (k - 1), 4)}, v{a} offset:{off + (k - 1) * 1024}']

        def zops(n):
            z = slot(n // 4 + 1) + n % 4
            (a, ha, b, hb), (a2, ha2, b2, hb2) = ZD[n]
            if (a, b) == (a2, b2):
                return [f'v_pk_mul_f16 v{z}, v{X + a}, v{X + b} op_sel:[{ha},{hb}] op_sel_hi:[{ha2},{hb2}]']
            return [f'v_mul_f16_sdwa v{z}, v{X + a}, v{X + b} dst_sel:WORD_0 dst_unused:UNUSED_PAD src0_sel:WORD_{ha} src1_sel:WORD_{hb}',
                    f'v_mul_f16_sdwa v{z}, v{X + a2}, v{X + b2} dst_sel:WORD_1 dst_unused:UNUSED_PRESERVE src0_sel:WORD_{ha2} src1_sel:WORD_{hb2}']

        cvt = lambda d, a, b: f'v_cvt_pk_f16_f32 v{d}, v{a}, v{b}'
        LAT = o.lat

        class It:
            def __init__(s, name, G, code, lo, hi, pre):
                s.name, s.G, s.code, s.lo, s.hi, s.pre, s.at = name, G, code, lo, hi, list(pre), None

        NG = 14
        items = {}

        def add(name, G, code, lo=-10**9, hi=10**9, pre=()):
            items[(name, G)] = It(name, G, code, lo, hi, pre)
        usej = lambda j: [n for n, d in enumerate(ZD) if any(a // 4 == j or b // 4 == j for (a, _, b, _) in d)]
        lastz = {j: max(usej(j)) for j in range(3)}
        for G in range(NG):
            c, b0 = G % 4, G * NM
            for r in range(8):
                add(f'raw{r}', G, f'ds_read_u16_d16_hi v{RAW + r}, v{vRaw} offset:{r * 128 + c * 32}', lo=b0 - o.rspan, hi=b0 - o.rlead,
                    pre=[(f'co{q}', G - 1, 0) for q in range(4)] + ([('swr', G, 0)] if c == 0 else []))
            for q in range(4):
                add(f'co{q}', G, cvt(X + q - 1, RAW + q - 1, RAW + q + 2) if q else cvt(X + 3, RAW + 6, RAW + 7), hi=b0 - 4,
                    pre=[(f'raw{r}', G, LAT) for r in range(8)] + [(f'z{lastz[0]}', G - 1, 0)])
            add('wo', G, f'ds_write_b128 v{vXw}, {vr(X, 4)}', hi=b0 - 2, pre=[(f'co{q}', G, 0) for q in range(4)] + [('r2', G - 1, 0)])
            add('r1', G, f'ds_read_b128 {vr(X + 4, 4)}, v{vX1}', hi=b0, pre=[('wo', G, 0)])
            add('r2', G, f'ds_read_b128 {vr(X + 8, 4)}, v{vX2}', hi=b0 + 1, pre=[('r1', G, 0)])
            for q in range(3):
                add(f'al{q}', G, f'v_alignbit_b32 v{X + 8 + q}, v{X + 8 + q}, v{X + 8 + q}, v{vSh}', hi=b0 + 20, pre=[('r2', G, LAT)])
            if c == 0:
                add('swr', G, [f'v_add_u32 v{vRaw}, s{S_BD}, v{vRaw}', WaitTag(vm_tags=['XB'])], lo=b0 - o.rspan - 1, hi=b0 - o.rspan - 1,
                    pre=[(f'raw{r}', G - 1, 0) for r in range(8)])
            for p in range(2):
                add(f'lin{p}', G, f'ds_read_b64_tr_b16 {vr(slot(0) + 2 * p, 2)}, v{vLin} offset:{p * 512 + c * 32}',
                    lo=b0 - NM + max(use[8]), hi=b0 + min(use[0]) - 1 - LAT, pre=[('swl', G, 0)] if c == 0 else [])
            if c == 0:
                add('swl', G, [f's_add_u32 s{S_TW}, s{S_BCUR}, s{S_BD}', f'v_add_u32 v{vLin}, s{S_TW}, v{vLinB}'], lo=b0 - NM + 20, hi=b0 - 12,
                    pre=[(f'lin{p}', G - 1, 0) for p in range(2)])
            for n in range(44):
                k = n // 4 + 1
                js = {x // 4 for (a, _, b, _) in ZD[n] for x in (a, b)}
                pre = [(f'co{q}', G, 0) for q in range(4)] + ([('r1', G, LAT)] if 1 in js else []) + ([(f'al{q}', G, 0) for q in range(3)] if 2 in js else [])
                if n:
                    pre.append((f'z{n - 1}', G, 0))
                if k == 5 and n % 4 < 3:
                    pre.append(('or1', G, 0))
                lo = b0 + max(use[k - 4]) if k >= 4 else b0 - NM + max(use[k + 8])
                if k == 1:
                    lo = max(lo, b0 - o.z1lo)
                zc = zops(n)
                if n == 12:
                    zc = [zops(12)[0], zops(13)[0]]
                if n == 13:
                    zc = [zops(12)[1], zops(13)[1]]
                add(f'z{n}', G, zc, lo=lo, hi=b0 + min(use[k]) - 2, pre=pre)
            s1 = slot(1)
            if c == 1:
                add('or1', G, f'v_or3_b32 v{vOr}, v{s1}, v{s1 + 1}, v{s1 + 2}', hi=b0 + 6, pre=[('z2', G, 0), ('blk', G - 2, 0)])
                add('ck', G, [f'v_and_b32 v{vOr}, 0x60006000, v{vOr}', f'v_cmp_ne_u32 s[{S_CHK}:{S_CHK + 1}], 0, v{vOr}'], hi=b0 + 30, pre=[('or1', G, 0)])
            e = b0 + NM
            rdy = lambda t_: b0 + pos(t_, 11) + o.flo
            for r in range(4):
                add(f'f{r}', G, f'v_{"mul" if c == 0 and r == 0 else "fmac"}_f32 v{vAcc}, v{Da + r}, v{Db + r}', lo=min(max(rdy('a'), rdy('b')), e + pos('Lb', 0) - 1), hi=e + pos('Lb', 0) - 1,
                    pre=[(f'f{r - 1}', G, 0) if r else ('f8', G - 1, 0)] + ([('blk', G - 1, 0)] if c == 0 else []))
            for r in range(2):
                add(f'f{4 + r}', G, f'v_add_f32 v{FT + r}, v{Ds + 2 * r}, v{Ds + 2 * r + 1}', lo=min(rdy('S'), e + pos('d', 1) - 1), hi=e + pos('d', 1) - 1,
                    pre=[('f8', G - 1, 0)] + ([('blk', G - 1, 0)] if c == 0 else []))
            for r, (x, y) in enumerate(((Dc, Dc + 1), (FT, Dc + 2), (FT + 1, Dc + 3))):
                add(f'f{6 + r}', G, f'v_fmac_f32 v{vAcc}, v{x}, v{y}', lo=rdy('c'), hi=e + pos('Lc', 0) - 1, pre=[(f'f{5 + r}', G, 0), ('f3', G, 0), ('f4', G, 0)])
            if c == 3:
                for q, x in enumerate(dppred('v_add_f32', vAcc)):
                    add(f'dp{q}', G, x, hi=e + 7 + 2 * q, pre=[(f'dp{q - 1}', G, 2) if q else ('f8', G, 2)])
                add('blk', G, '@BLK', hi=e + 20, pre=[('dp5', G, 1)])
        order = list(items.values())
        gaps = {}
        isv = lambda x: isinstance(x, str) and x.startswith('v_')
        isl = lambda x: isinstance(x, str) and x.startswith('ds_')
        for gp in range(-NM, NG * NM):
            gaps[gp] = []
            uv = ul = 0
            while True:
                cand = []
                for it in order:
                    if it.at is not None or it.lo > gp:
                        continue
                    ok = True
                    for (nm, G, dist) in it.pre:
                        p = items.get((nm, G))
                        if p is None:
                            continue
                        if p.at is None or p.at + dist > gp:
                            ok = False
                            break
                    if not ok:
                        continue
                    cv_, cl_ = sum(map(isv, flat([it.code]))), sum(map(isl, flat([it.code]))) * (o.wcost if it.name == 'wo' else 1)
                    if it.hi > gp and (uv + cv_ > o.gapv or ul + cl_ > o.gapl or uv + ul + cv_ + cl_ > o.gapt) and cv_ + cl_:
                        continue
                    cand.append((it, cv_, cl_))
                if not cand:
                    break
                it, cv_, cl_ = min(cand, key=lambda x: x[0].hi)
                it.at = gp
                uv += cv_; ul += cl_
                gaps[gp].append(it)
        late = [(it.name, it.G, it.at - it.hi) for it in order if it.at is not None and it.at > it.hi and 4 <= it.G < 12]
        print('late items', late)
        sig_ = lambda G0: [[(it.name, it.G - G0) for it in gaps[G0 * NM + m]] for m in range(4 * NM)]
        assert sig_(4) == sig_(8), 'schedule not periodic'
        for f_ in (isv, isl):
            print('gap load', ''.join(str(sum(sum(map(f_, flat([it.code]))) for it in gaps[4 * NM + m])) + ('|' if m % NM == NM - 1 else '') for m in range(4 * NM)))
        keep = lambda c: [x for x in flat([c]) if not (isinstance(x, str) and any(x.startswith(d) for d in o.drop.split(',') if d))]
        prio = lambda p, lab: [f's_cmp_lg_u32 s{S_GRP}, 0', f's_cbranch_scc1 {lab}', f's_setprio {p}', f'{lab}:'] if o.phi else []

        def sstamp():
            if not (o.stamps and o.itst):
                return []
            return [f's_memtime s[{S_ST}:{S_ST + 1}]', f's_add_u32 s{S_C0}, s{S_LOOP}, 20', 's_waitcnt lgkmcnt(0)',
                    f's_mov_b32 m0, s{S_C0}', f'v_writelane_b32 v252, s{S_ST}, m0']

        pcode = []
        for gp in range(-NM, 4 * NM):
            for it in gaps[gp]:
                if it.G >= 4 and not it.name.startswith(('sw', 'wx')):
                    pcode += flat([it.code])
        PFD = o.pfd
        L = ['L_built:'] + self.stamp(10) + [WaitTag(vm_tags=['XB']), f'v_mov_b32 v{vF}, s{S_GRP}', f'ds_add_u32 v{vFA}, v{vF} offset:{F_XB}']
        L += self.tlb2(vZ, vTk) + [f's_add_i32 s{S_EXP}, s{S_T2}, s{S_T3}'] + wait(F_XB, 4) + pcode + pfx_b() + pfx_a() + pfw()
        L += ['s_waitcnt lgkmcnt(0)', 's_barrier'] + (['s_setprio 1'] if o.phi else ['s_setprio 0']) + self.stamp(8)
        L += [wload(m) for m in range(PFD)] + prio(2, 'L_prf') + (['s_mov_b32 s100, 15'] if o.gst else [])
        peel2 = None
        for m in range(NM):
            L += [mfma(m)] + (wload(m + PFD) if m + PFD < NM else [])
            for it in gaps[4 * NM + m]:
                if it.code == '@BLK':
                    L += [f'ds_write_b16 v{vOr}, v{vAcc} offset:{3 * XPI + 7 * 128}']
                    L += self.cleared('L_cclr', vZ, vTk) + xdma(XI, XB1 - XB0) + (pfw() if o.pfp else [])
                    L += [f's_sub_i32 s{S_EXP}, 0, s{S_EXP}', f's_mov_b32 s{S_EXPC}, s{S_EXP}',
                          f's_mov_b32 s{S_PH}, 1', f's_mov_b32 s{S_PREV}, 1']
                    L += [f's_cmp_lg_u32 s{S_WAVE}, 7', 's_cbranch_scc1 L_nw0']
                    peel1 = self.seq(L)
                    peelw = self.seq(w0x)
                    L = ['L_nw0:']
                elif it.G >= 4:
                    L += flat([it.code])
        L += [f'ds_add_u32 v{vFA}, v{vOne} offset:{F_PEEL}', 's_branch L_grp1']
        peel2 = self.seq(L)
        prime = self.seq(['L_prime:'] + [f'v_mov_b32 v{r}, 0' for r in range(D, D + 16)] + [f'v_mov_b32 v{FT}, 0', f'v_mov_b32 v{FT + 1}, 0'] + pcode)
        blk_a = ['L_blk:', f's_cmp_eq_u32 s{S_PREV}, 0', 's_cbranch_scc1 L_blkend',
                 f'v_readlane_b32 s{S_TW}, v{vAcc}, 63', f'v_ldexp_f32 v{vAcc}, v{vAcc}, s{S_EXPC}', f'v_and_b32 v{vAcc}, -2, v{vAcc}',
                 f's_cmp_eq_u32 s{S_PREV}, 2', 's_cbranch_scc1 L_good',
                 f's_cmp_eq_u64 s[{S_CHK}:{S_CHK + 1}], 0', 's_cbranch_scc1 L_slow',
                 f's_bfe_u32 s{S_TW}, s{S_TW}, 0x80017', f's_cmp_eq_u32 s{S_TW}, 255', 's_cbranch_scc1 L_slow',
                 'L_good:', 's_mov_b32 exec_lo, 0', 's_mov_b32 exec_hi, 0x80000000',
                 f'buffer_store_dword v{vAcc}, v{vZ}, {srd(SRD_WS)}, s{S_RC} offen sc1', 's_mov_b64 exec, -1',
                 f's_add_u32 s{S_RC}, s{S_RC}, 32', f's_sub_u32 s{S_LOOP}, s{S_LOOP}, 1', f's_cmp_eq_u32 s{S_LOOP}, 0', 's_cbranch_scc1 L_cin_done']
        blk_a += [f's_cmp_eq_u32 s{S_LOOP}, 1', 's_cbranch_scc1 L_lastnext']
        blk_b = xdma() + [f's_add_u32 s{S_SAMP}, s{S_SAMP}, {8 * 104}', f's_cmp_lg_u32 s{S_LOOP}, s{S_TK}', 's_cbranch_scc1 L_nodma']
        blk_t = [f'v_mov_b32 v{vTk}, 1', 's_mov_b64 exec, 1', f'buffer_atomic_add v{vTk}, v{vZ}, {srd(SRD_WS)}, s{S_ST0} offen sc0',
                 's_mov_b64 exec, -1', f's_mov_b32 s{S_TK}, 8', 's_branch L_nodma',
                 'L_lastnext:', f's_cmp_lt_i32 s{S_DYN}, 0', f's_cselect_b32 s{S_RC}, s{S_RC}, s{S_DYN}']
        hook_a = [f's_cmp_lg_u32 s{S_TK}, 8', 's_cbranch_scc1 L_hk']
        hook_t = ['s_waitcnt vmcnt(0)', f'v_readfirstlane_b32 s{S_TW}, v{vTk}', f's_mov_b32 s{S_TK}, 0', f's_add_u32 s{S_TW}, s{S_TW}, 485',
                  f's_cmp_ge_u32 s{S_TW}, 512', 's_cbranch_scc1 L_hk',
                  f's_add_u32 s{S_LOOP}, s{S_LOOP}, 1',
                  f's_lshr_b32 s{S_SAMP}, s{S_ST0}, 14', f's_lshl_b32 s{S_DYN}, s{S_SAMP}, 12', f's_add_u32 s{S_DYN}, s{S_DYN}, s{S_TW}',
                  f's_lshl_b32 s{S_DYN}, s{S_DYN}, 2', f's_add_u32 s{S_DYN}, s{S_DYN}, {5 * 2048}',
                  f's_lshl_b32 s{S_SAMP}, s{S_SAMP}, 9', f's_add_u32 s{S_SAMP}, s{S_SAMP}, s{S_TW}', f's_mul_i32 s{S_SAMP}, s{S_SAMP}, 104']
        hook_b = ['L_hk:'] + xidx(adv=False)
        blk_b2 = ['L_nodma:'] + [f's_add_u32 s{S_BCUR}, s{S_BCUR}, s{S_BD}', f's_sub_u32 s{S_BD}, 0, s{S_BD}', f's_mov_b32 s{S_EXPC}, s{S_EXP}', f's_mov_b32 s{S_PH}, 1']
        blk_c = ['L_blkend:', f's_mov_b32 s{S_PREV}, s{S_PH}']
        parts = [[], [], [], [], []]
        cur = self.seq(['L_cin_loop:'])
        for m in range(4 * NM):
            if m == NM:
                parts[3] = cur
                cur = self.seq(['L_grp1:'])
            if m == o.hook:
                p4a = cur + self.seq(hook_a)
                p4t = self.seq(hook_t)
                cur = self.seq(hook_b)
            if o.gst and m % NM == 0:
                cur += self.seq([f's_memtime s[{S_ST}:{S_ST + 1}]', 's_add_u32 s100, s100, 1', 's_min_u32 s100, s100, 31', 's_waitcnt lgkmcnt(0)',
                                 's_mov_b32 m0, s100', f'v_writelane_b32 v253, s{S_ST}, m0'])
            if o.phi and m in (0, o.phi):
                cur += self.seq(prio(0 if m else 2, f'L_pr{m}'))
            cur += self.seq([mfma(m % NM)])
            for it in gaps[4 * NM + m]:
                if it.code == '@BLK':
                    parts[0] = cur + self.seq(sstamp() + ['s_waitcnt vmcnt(0)', f's_cmp_le_u32 s{S_LOOP}, {o.pfend}', 's_cbranch_scc1 L_blk'])
                    pfp = self.seq(pfx_b() + pfx_a() + pfw())
                    parts[1] = self.seq(blk_a)
                    parts[2] = self.seq(blk_b)
                    pbt = self.seq(blk_t)
                    pb2 = self.seq(blk_b2)
                    cur = self.seq(blk_c)
                else:
                    cur += self.seq(keep(it.code))
        cur += self.seq([f's_cmp_lg_u32 s{S_LOOP}, 1', 's_cbranch_scc1 L_cin_loop'])
        parts[4] = p4a + cur
        p4x = p4a + p4t + cur
        tail = self.seq([it.code for m in range(NM) for it in gaps[4 * NM + m] if it.G == 3 and it.code != '@BLK'] + ['s_branch L_blk'])
        Q = RZ
        rows = [(g, r) for g in range(4) for r in range(8)][:31]
        L = ['L_slow:', f'v_lshlrev_b32 v{FT}, 1, v0', f'v_add_u32 v{FT + 1}, s{S_BCUR}, v{FT}',
             f's_mul_i32 s{S_TW}, s{S_WAVE}, {XBSZ}', f's_add_u32 s{S_TW}, s{S_TW}, {XSP}',
             f'v_add_u32 v{FT}, s{S_TW}, v{FT}', f'v_add_u32 v{vLin}, s{S_TW}, v{vLinB}']
        L += [f'v_subrev_u32 v{vRaw}, s{S_BD}, v{vRaw}'] + wait(F_PEEL, 8)
        L += [f'ds_read_u16 v{Q + n}, v{FT + 1} offset:{g * XPI + r * 128}' for n, (g, r) in enumerate(rows)]
        L += [f'v_lshlrev_b32 v{Q + n}, 16, v{Q + n}' for n in range(31)]
        L += absmax(vAcc, list(range(Q, Q + 31))) + dppred('v_max_u32', vAcc)
        L += [f'v_readlane_b32 s{S_TW}, v{vAcc}, 63', f's_lshr_b32 s{S_TW}, s{S_TW}, 23', f's_sub_i32 s{S_TW}, 134, s{S_TW}',
              f's_min_i32 s{S_TW}, s{S_TW}, 16',
              f's_lshl_b32 s{S_EXPC}, s{S_TW}, 2', f's_sub_i32 s{S_EXPC}, s{S_EXP}, s{S_EXPC}',
              f's_add_i32 s{S_TW}, s{S_TW}, 127', f's_lshl_b32 s{S_TW}, s{S_TW}, 23', f'v_mov_b32 v{Q + 31}, s{S_TW}']
        L += [f'v_mul_f32 v{Q + n}, s{S_TW}, v{Q + n}' for n in range(31)]
        L += [f'ds_write_b16_d16_hi v{FT + 1}, v{Q + n} offset:{g * XPI + r * 128}' for n, (g, r) in enumerate(rows)]
        L += [f'v_mul_f32 v{Q + n}, s{S_TW}, v{Q + n}' for n in range(32)]
        L += [f'ds_write_b16_d16_hi v{FT}, v{Q + n} offset:{g * XPI + r * 128}' for n, (g, r) in enumerate(rows + [(3, 7)])]
        L += [f's_mov_b32 s{S_PREV}, 0', f's_mov_b32 s{S_PH}, 2', 's_waitcnt lgkmcnt(0)', 's_branch L_prime']
        slow = self.seq(L)
        fin_ = self.seq(['L_cin_done:'] + self.stamp(9) + self.stamp_flush() + self.padsig() + ['s_endpgm'])
        rest = parts[3] + parts[4]
        full = parts[0] + pfp + parts[1] + parts[2] + pb2 + rest
        nopf = parts[0] + parts[1] + parts[2] + pbt + pb2 + parts[3] + p4x
        last = parts[0] + parts[1] + pb2 + rest
        redo = lambda pf: parts[1][:10] + slow + prime + parts[0] + (pfp if pf else []) + parts[1][:3] + rest
        end_ = tail + parts[1][:-2] + fin_
        main = peel2 + parts[4] + full + full + parts[0] + pfp + redo(1) + full + nopf + parts[0] + redo(0) + nopf + last + tail + redo(0) + end_
        main2 = peel2 + parts[4] + parts[0] + pfp + redo(1) + full + nopf + last + end_
        traces = []
        for w in range(8):
            if w < 4:
                k0 = w & 2
                tr = c0 + g0a + cc + g0pf + ch[k0] + ch[k0 + 1] + chb[k0 + 1] + w1a + ([] if k0 else w1b) + w1c
            else:
                tr = c0 + g1a + cc + uc0 + uc
            k = w >> 1
            tr += uph + ch[k] + (u0 if k % 2 == 0 else u1a + (u1b if k == 1 else u1c))
            for mn in (main, main2):
                traces.append(tr + peel1 + (peelw if w == 7 else []) + mn)
        return traces

    def build(self):
        pro = self.prologue()
        d = self.dnn()
        cs = self.cin()
        rm = self.rem()
        self.seq(['L_end:', 's_endpgm'])
        traces = [pro + c for c in d + cs + rm]
        for t in traces:
            resolve_waits(t)
        for _ in range(2):
            for t in traces:
                resolve_hazards(t)
        hdr = open(os.path.join(os.path.dirname(os.path.abspath(__file__)), 'header.txt')).read()
        txt = hdr + f'; @launch grid=(256,1,1) block=(512,1,1) lds={LDS_TOTAL}\n'
        txt += f'''.amdgcn_target "amdgcn-amd-amdhsa--gfx950"
{DOC}.text
.globl {KNAME}
.p2align 8
.type {KNAME},@function
{KNAME}:
'''
        body_ = self.P.emit()
        if 'wsame' in self.opt.dbg:
            body_ = body_.replace(f's_add_u32 s{S_WSOFF}, s{S_WSOFF}, {32 * 3328}', f's_xor_b32 s{S_WSOFF}, s{S_WSOFF}, 0')
        if 'xsame' in self.opt.dbg:
            import re as _re
            body_ = _re.sub(r'v_lshl_add_u32 v(2[4-9]|3[01]), v(1[6-9]), 7', r'v_lshl_add_u32 v\1, v16, 7', body_)
            body_ = _re.sub(r'v_lshl_add_u32 v(2[4-9]|3[01]), v(2[0-3]), 7', r'v_lshl_add_u32 v\1, v20, 7', body_)
            body_ = _re.sub(r'v_lshl_add_u32 v(2[4-9]|3[01]), v(9[6-9]), 7', r'v_lshl_add_u32 v\1, v96, 7', body_)
            body_ = _re.sub(r'v_lshl_add_u32 v(2[4-9]|3[01]), v(10[0-3]), 7', r'v_lshl_add_u32 v\1, v100, 7', body_)
            body_ = body_.replace('offen offset:12\n', 'offen offset:0\n').replace('offen offset:844\n', 'offen offset:832\n')
            body_ = body_.replace(f's_mov_b32 s{S_IDXOFF}, 28', f's_mov_b32 s{S_IDXOFF}, 0').replace(f's_add_u32 s{S_IDXOFF}, s{S_IDXOFF}, 16', 's_nop 0')
        if self.opt.align:
            for lab in ('L_dnn_loop0:', 'L_dnn_loop1:', 'L_cin_loop:', 'L_epi:'):
                pad = '  s_nop 0\n' if self.opt.align > 100 else ''
                body_ = body_.replace(lab + '\n', f'.p2align {self.opt.align % 100}\n{pad}{lab}\n')
        txt += body_
        txt += f'''.section .rodata,"a"
.p2align 6
.amdhsa_kernel {KNAME}
  .amdhsa_next_free_vgpr 256
  .amdhsa_next_free_sgpr 102
  .amdhsa_accum_offset 256
  .amdhsa_group_segment_fixed_size 0
  .amdhsa_kernarg_size 88
  .amdhsa_user_sgpr_count 2
  .amdhsa_user_sgpr_kernarg_segment_ptr 1
  .amdhsa_system_sgpr_workgroup_id_x 1
  .amdhsa_float_denorm_mode_32 {self.opt.denorm}
.end_amdhsa_kernel
'''
        return txt


def main():
    ap = argparse.ArgumentParser()
    ap.add_argument('-o', default='standalone__deep_cross_xdeepfm__recsys.s')
    ap.add_argument('--stamps', action='store_true')
    ap.add_argument('--padat', default='')
    ap.add_argument('--padmin', type=int, default=0)
    ap.add_argument('--nodma', action='store_true')
    ap.add_argument('--cpf', type=int, default=2)
    ap.add_argument('--coop', type=int, default=1)
    ap.add_argument('--coopw', type=int, default=2)
    ap.add_argument('--tbpos', type=int, default=0)
    ap.add_argument('--dbar3', type=int, default=1)
    ap.add_argument('--tlb', type=int, default=0)
    ap.add_argument('--tlb2', type=int, default=1)
    ap.add_argument('--itst', type=int, default=0)
    ap.add_argument('--diag', type=int, default=0)
    ap.add_argument('--dbg', default='')
    ap.add_argument('--lead3', type=int, default=1)
    ap.add_argument('--morder', type=int, default=0)
    ap.add_argument('--etlb', type=int, default=21)
    ap.add_argument('--lateb', type=int, default=0)
    ap.add_argument('--wfl', default='')
    ap.add_argument('--xfl', default='')
    ap.add_argument('--tag', type=int, default=0)
    ap.add_argument('--idxfirst', type=int, default=1)
    ap.add_argument('--bpos', type=int, default=2)
    ap.add_argument('--sigat', type=int, default=4)
    ap.add_argument('--epx', type=int, default=1)
    ap.add_argument('--denorm', type=int, default=3)
    ap.add_argument('--mprio', type=int, default=0)
    ap.add_argument('--swap', type=int, default=0)
    ap.add_argument('--bov', type=int, default=1)
    ap.add_argument('--rfirst', type=int, default=0)
    ap.add_argument('--g1x', type=int, default=0)
    ap.add_argument('--ldsred', type=int, default=0)
    ap.add_argument('--csnake', type=int, default=0)
    ap.add_argument('--cswap', type=int, default=0)
    ap.add_argument('--align', type=int, default=0)
    ap.add_argument('--c2', type=int, default=0)
    ap.add_argument('--d1', type=int, default=0)
    ap.add_argument('--cstr', type=int, default=3)
    ap.add_argument('--bearly', type=int, default=1)
    ap.add_argument('--w2late', type=int, default=1)
    ap.add_argument('--aov', type=int, default=3)
    ap.add_argument('--upos', type=int, default=1)
    ap.add_argument('--calt', type=int, default=1)
    ap.add_argument('--pfpos', type=int, default=1)
    ap.add_argument('--wlate', type=int, default=0)
    ap.add_argument('--dbar2', type=int, default=0)
    ap.add_argument('--dbar', type=int, default=0)
    ap.add_argument('--pfw', type=int, default=1)
    ap.add_argument('--pfx', type=int, default=3)
    ap.add_argument('--pfx0', type=int, default=4)
    ap.add_argument('--pfs', type=int, default=14)
    ap.add_argument('--dcoopx', type=int, default=1)
    ap.add_argument('--dcx0', type=int, default=0)
    ap.add_argument('--dcxpos', type=int, default=-1)
    ap.add_argument('--pfe0', type=int, default=2)
    ap.add_argument('--pfne', type=int, default=14)
    ap.add_argument('--prio47', type=int, default=0)
    ap.add_argument('--lookahead', type=int, default=5)
    ap.add_argument('--nz', type=int, default=6)
    ap.add_argument('--nwf', type=int, default=8)
    ap.add_argument('--hiat', type=int, default=4)
    ap.add_argument('--wmerge', type=int, default=0)
    ap.add_argument('--gapv', type=int, default=2)
    ap.add_argument('--lat', type=int, default=5)
    ap.add_argument('--dpf', type=int, default=0)
    ap.add_argument('--dpn', type=int, default=4)
    ap.add_argument('--mord', type=int, default=0)
    ap.add_argument('--q0', type=int, default=5)
    ap.add_argument('--q1', type=int, default=7)
    ap.add_argument('--u0', type=int, default=8)
    ap.add_argument('--un', type=int, default=26)
    ap.add_argument('--ro', type=int, default=0)
    ap.add_argument('--dfirst', type=int, default=0)
    ap.add_argument('--er0', type=int, default=0)
    ap.add_argument('--er1', type=int, default=0)
    ap.add_argument('--lg0', type=int, default=0)
    ap.add_argument('--fprio', type=int, default=1)
    ap.add_argument('--lite', type=int, default=0)
    ap.add_argument('--pf1', type=int, default=0)
    ap.add_argument('--amp', type=int, default=0)
    ap.add_argument('--ofl', default='')
    ap.add_argument('--uprio', type=int, default=1)
    ap.add_argument('--ccpos', type=int, default=1)
    ap.add_argument('--s1e', type=int, default=9)
    ap.add_argument('--s2e', type=int, default=0)
    ap.add_argument('--shs', type=int, default=256)
    ap.add_argument('--pfp', type=int, default=1)
    ap.add_argument('--epos', type=int, default=0)
    ap.add_argument('--hook', type=int, default=100)
    ap.add_argument('--rrd', type=int, default=11)
    ap.add_argument('--rdrop', default='')
    ap.add_argument('--pfr', type=int, default=4)
    ap.add_argument('--vin', type=int, default=1)
    ap.add_argument('--rstag', type=int, default=1)
    ap.add_argument('--eprio', type=int, default=1)
    ap.add_argument('--nopk', type=int, default=0)
    ap.add_argument('--w1first', type=int, default=0)
    ap.add_argument('--xpos', type=int, default=1)
    ap.add_argument('--z1lo', type=int, default=40)
    ap.add_argument('--pfend', type=int, default=3)
    ap.add_argument('--gst', type=int, default=0)
    ap.add_argument('--gapl', type=int, default=2)
    ap.add_argument('--gapt', type=int, default=2)
    ap.add_argument('--wcost', type=int, default=2)
    ap.add_argument('--bprio', type=int, default=0)
    ap.add_argument('--c1hi', type=int, default=-8)
    ap.add_argument('--c2hi', type=int, default=12)
    ap.add_argument('--rspan', type=int, default=30)
    ap.add_argument('--rlead', type=int, default=14)
    ap.add_argument('--pfd', type=int, default=10)
    ap.add_argument('--mo', type=int, default=3)
    ap.add_argument('--ba', type=int, default=6)
    ap.add_argument('--sig2', type=int, default=4)
    ap.add_argument('--drop', default='')
    ap.add_argument('--al8', type=int, default=4)
    ap.add_argument('--alph', type=int, default=0)
    ap.add_argument('--almm', type=int, default=0)
    ap.add_argument('--phi', type=int, default=123)
    ap.add_argument('--rawlo', type=int, default=8)
    ap.add_argument('--flo', type=int, default=3)
    opt = ap.parse_args()
    resolve_waits.dbg = 'dup' in opt.dbg
    g = Gen(opt)
    txt = g.build()
    if opt.al8:
        import align8
        rg = []
        if opt.al8 & 1:
            rg.append(('L_cin_loop', 'L_slow'))
        if opt.al8 & 2:
            rg += [('L_dnn_loop0', 'L_dnn_h1'), ('L_dnn_loop1', 'L_epi')]
        if opt.al8 & 4:
            rg += [('L_epi', 'L_dpub')]
        txt = align8.align(txt, rg, opt.alph, opt.almm)
    open(opt.o, 'w').write(txt)
    print('wrote', opt.o, len(txt), 'bytes')


if __name__ == '__main__':
    main()
```

```python
import sys, os, struct, argparse
sys.path.insert(0, os.path.dirname(os.path.abspath(__file__)))
from cinplan import ZD, cls
from asmlib import I, WaitTag, Prog, resolve_waits, resolve_hazards

KNAME = 'standalone__deep_cross_xdeepfm__recsys_kernel'
LDS_TOTAL = 163840

XSLOT = 8192
WR = 4 * XSLOT
WP = 640
WSLOT = 32 * WP
L_BIAS = WR + 6 * WSLOT
L_W2 = L_BIAS + WP
RB = L_W2 + WP
assert RB + 2048 <= LDS_TOTAL
RWR = 131072

ASZ = 35264
A1 = 1024
A2 = A1 + ASZ
A3 = A2 + ASZ
UST = 1356
V3OFF = A3 + ASZ
V2OFF = V3OFF + 2048
L_WCO = V2OFF + 1408
L_FLG = L_WCO + 192
RC = L_FLG + 64
XB0 = RC + 512
XPI = 1056
XBSZ = 4 * XPI
XB1 = A3
TA = A1
TC = TA + 11 * 1024
TD = TC + 12 * 1024
TB = A2
XSP = A1
XCH = XB0 + 8 * XBSZ
OOB = 0x100000
NCLR = 56
NPOOL = 224
assert XCH + 8192 <= LDS_TOTAL and XB0 % 16 == 0 and A2 % 16 == 0 and A3 % 16 == 0 and L_WCO % 16 == 0
assert 8 * XBSZ <= ASZ and TD + 11 * 1024 <= A2

S_WAVE = 3
S_IDX, S_TAB, S_CIN, S_WCO, S_W1, S_B1, S_W2, S_BO, S_OUT, S_DBG, S_WS = 4, 6, 8, 10, 12, 14, 16, 18, 20, 22, 24
S_MB, S_R = 26, 27
SRD_IDX, SRD_TAB, SRD_CIN, SRD_WCO, SRD_W, SRD_B1, SRD_W2, SRD_OUT, SRD_WS, SRD_DBG = 28, 32, 36, 40, 44, 48, 52, 56, 60, 64
S_T0, S_T1, S_T2, S_T3 = 68, 69, 70, 71
S_LOOP, S_IDXOFF, S_WSOFF, S_WMB, S_XM0, S_N0, S_C0, S_CW, S_BOUT, S_TW = 72, 73, 74, 75, 76, 77, 78, 79, 80, 81
S_EX = 82
S_GRP, S_RC = 84, 85
S_ST = 86
S_M26, S_MASK = 90, 92
S_SAMP, S_STG, S_STG9, S_TGT = 94, 95, 96, 97
S_M26B = 98
S_GW = 100
S_TAGT = 0
S_TAG = 1
S_PW = 101
S_PX = 77
S_PXE = 73

GELU_C0 = -2.0 * 0.7978845608028654 * 1.4426950408889634
GELU_C1 = GELU_C0 * 0.044715


def f32hex(x):
    return '0x%08x' % struct.unpack('<I', struct.pack('<f', x))[0]


def vr(a, n):
    return f'v[{a}:{a + n - 1}]' if n > 1 else f'v{a}'


def srd(a):
    return f's[{a}:{a + 3}]'


def flat(gs):
    res = []
    for c in gs:
        if isinstance(c, (tuple, list)):
            res += flat(c)
        else:
            res.append(c)
    return res


def interleave(a, b):
    out = []
    ia = ib = 0
    na, nb = len(a), len(b)
    while ia < na or ib < nb:
        if ib >= nb or (ia < na and ia * nb <= ib * na):
            out.append(a[ia]); ia += 1
        else:
            out.append(b[ib]); ib += 1
    return out


assert all((d * 2521) >> 16 == d // 26 for d in range(800))
assert all((d * 10923) >> 16 == d // 6 for d in range(64))
assert all((d * 1561) >> 16 == d // 42 for d in range(176))


DOC = '''; ---------------------------------------------------------------------------------------------
;
;       V3[h,k]  = sum_g wo[52+g] W3[g,h,k]          V2[i,j] = sum_h wo[26+h] W2[h,i,j]
;       U[i,j,k] = sum_h W2[h,i,j] V3[h,k]
;       g1[i]    = wo[i] + sum_j V2[i,j] x_j + sum_jk U[i,j,k] x_j x_k
;   Both quadratic forms use the 351 distinct products x_j x_k (j<=k) with symmetrised weights,
; Work split: per block of 128 samples, 5 workgroups do the DNN branch (128 x 336 output tiles) and
;   3 workgroups the CIN branch; partial logits go through d_ws (sc1) and a counter in d_debug,
;   the last arriver of a block adds them up and writes d_out.
; ---------------------------------------------------------------------------------------------
'''


class Gen:
    def __init__(self, opt):
        self.opt = opt
        self.P = Prog()
        self.role = 'x'

    def seq(self, lines):
        return [self.P.add(l) for l in flat(lines)]

    def build_srd(self, dst, ptr, size):
        return [f's_mov_b32 s{dst}, s{ptr}', f's_and_b32 s{dst + 1}, s{ptr + 1}, 0xffff',
                f's_mov_b32 s{dst + 2}, {size}', f's_mov_b32 s{dst + 3}, 0x20000']

    def stamp(self, slot):
        if self.opt.padat == f'{self.role}{slot}':
            return [f's_memrealtime s[88:89]', 's_waitcnt lgkmcnt(0)']
        if not self.opt.stamps or (self.opt.lite and f'{self.role}{slot}' not in ('c8', 'c9', 'd2', 'd4', 'r4', 'r5')):
            return []
        return [f's_memtime s[{S_ST}:{S_ST + 1}]', f's_memrealtime s[{S_ST + 2}:{S_ST + 3}]', 's_waitcnt lgkmcnt(0)',
                f'v_writelane_b32 v252, s{S_ST}, {slot}', f'v_writelane_b32 v253, s{S_ST + 2}, {slot}']

    def stamp_flush(self):
        if not self.opt.stamps:
            return []
        L = self.build_srd(SRD_WS, S_WS, 0x10000000)
        L += [f's_lshl_b32 s{S_C0}, s2, 3', f's_add_u32 s{S_C0}, s{S_C0}, s{S_WAVE}',
              f's_lshl_b32 s{S_C0}, s{S_C0}, 8', f's_add_u32 s{S_C0}, s{S_C0}, 0x100000',
              'v_lshlrev_b32 v254, 3, v0', 's_mov_b32 exec_hi, 0',
              f'buffer_store_dwordx2 v[252:253], v254, {srd(SRD_WS)}, s{S_C0} offen', 's_mov_b32 exec_hi, -1']
        return L

    def stamp0(self):
        if not self.opt.stamps:
            return []
        return ['v_mov_b32 v252, 0xcdcdcdcd', 'v_mov_b32 v253, 0xcdcdcdcd',
                f'v_writelane_b32 v252, s{S_ST}, 0', f'v_writelane_b32 v253, s{S_ST + 2}, 0'] + self.stamp(15)

    def tlb2(self, t, vflag):
        L = self.build_srd(SRD_WS, S_WS, 0x10000000) + self.build_srd(SRD_DBG, S_DBG, 256)
        L += [f'v_lshlrev_b32 v{t}, 2, v0',
              ('s_mov_b64 exec, 0xff', f's_mov_b32 s{S_TW}, 0x80000',
               f'buffer_load_dword v255, v{t}, {srd(SRD_WS)}, s{S_TW} offen',
               f'buffer_load_dword v{vflag}, v{t}, {srd(SRD_DBG)}, 0 offen offset:128 sc1',
               's_mov_b64 exec, -1'), f'v_mov_b32 v{t}, 0']
        return L

    def cleared(self, lab, t, vflag):
        chk = [f'v_cmp_eq_u32 vcc, 0, v{vflag}', 's_and_b32 vcc_lo, vcc_lo, 0xff']
        return chk + [f's_cbranch_scc0 {lab}_ok', f's_mov_b32 s{S_C0}, 0x40000',
                f'{lab}:', f's_sub_u32 s{S_C0}, s{S_C0}, 1', f's_cbranch_scc1 {lab}_ok', f'v_lshlrev_b32 v{vflag}, 2, v0', f'v_and_b32 v{vflag}, 31, v{vflag}',
                f'buffer_load_dword v{vflag}, v{vflag}, {srd(SRD_DBG)}, 0 offen offset:128 sc1', 's_waitcnt vmcnt(0)'] + chk + [f's_cbranch_scc1 {lab}', f'{lab}_ok:']

    def padsig(self):
        o = self.opt
        if not o.padat:
            return []
        pre = ['v_mov_b32 v8, 4']
        if (o.padat[0] if o.padat != 'start' else 'd') != self.role:
            return pre
        return pre + [f's_cmp_lg_u32 s{S_WAVE}, 0', 's_cbranch_scc1 L_nosig'] + ([f's_not_b32 s88, s88'] if o.padmin else []) + ['v_mov_b32 v7, s88', 's_mov_b64 exec, 1',
                f'buffer_atomic_umax v7, v8, {srd(SRD_DBG)}, 0 offen', 's_mov_b64 exec, -1', 'L_nosig:']

    def tlb1(self, vtmp, vdst):
        if not self.opt.etlb:
            return self.build_srd(SRD_TAB, S_TAB, 100000 * 128)
        return self.build_srd(SRD_TAB, S_TAB, 100000 * 128) + [
            f'v_mov_b32 v{vtmp}, s{S_BOUT}', f'buffer_load_dword v{vdst}, v{vtmp}, {srd(SRD_TAB)}, 0 offen']

    def prologue(self):
        L = []
        if self.opt.padat == 'start' or self.opt.amp in (1, 2, 3):
            L += ['s_memrealtime s[88:89]']
        elif self.opt.padat:
            L += [f's_mov_b32 s88, {-1 if self.opt.padmin else 0}']
        if self.opt.stamps:
            L += [f's_memtime s[{S_ST}:{S_ST + 1}]', f's_memrealtime s[{S_ST + 2}:{S_ST + 3}]']
        L += ['s_cmp_ge_u32 s2, 256', 's_cbranch_scc1 L_end',
              's_load_dwordx16 s[4:19], s[0:1], 0',
              's_load_dwordx4 s[20:23], s[0:1], 64',
              's_load_dwordx2 s[24:25], s[0:1], 80',
              'v_lshrrev_b32 v1, 6, v0']
        if self.opt.cpf:
            L += [f's_getpc_b64 s[{S_MASK}:{S_MASK + 1}]', 'L_pc:',
                  f's_and_b32 s{S_T0}, s2, 0xf8', f'v_add_u32 v2, s{S_T0}, v1', 'v_lshlrev_b32 v2, 7, v2'] + (['v_and_b32 v3, 1, v0', 'v_lshl_add_u32 v2, v3, 15, v2'] if self.opt.cpf == 2 else []) + [
                  f'v_min_u32 v2, L_end-L_pc, v2',
                  f'v_mov_b32 v3, s{S_MASK + 1}',
                  f'v_add_co_u32 v2, vcc, s{S_MASK}, v2', 'v_addc_co_u32 v3, vcc, 0, v3, vcc',
                  'global_load_dword v255, v[2:3], off']
        L += ['v_and_b32 v0, 63, v0',
              f'v_readfirstlane_b32 s{S_WAVE}, v1',
              f's_and_b32 s{S_T0}, s2, 7', f's_lshl_b32 s{S_T0}, s{S_T0}, 2',
              f's_lshr_b32 s{S_MB}, s2, 6', f's_add_u32 s{S_MB}, s{S_MB}, s{S_T0}',
              f's_bfe_u32 s{S_R}, s2, 0x30003',
              f's_and_b32 s{S_BOUT}, s2, 0xf8', f's_add_u32 s{S_BOUT}, s{S_BOUT}, s{S_WAVE}', f's_lshl_b32 s{S_BOUT}, s{S_BOUT}, {self.opt.etlb}',
              f's_cmp_ge_u32 s{S_R}, 5', 's_cbranch_scc1 L_cin']
        return self.seq(L)

    def gelu(self, groups, TB, KC0, KC1, KONE):
        p2 = lambda r: vr(r, 2)
        L = []
        seen = set()
        for k, vals in enumerate(groups):
            tb = TB + (k % 2) * 16
            V_ = [(x, w, s_, tb + 4 * i_, tb + 4 * i_ + 2) for i_, (x, w, s_) in enumerate(vals)]
            for (x, w, s_, t, u) in V_:
                L.append(f'v_pk_mul_f32 {p2(t)}, {p2(x)}, {p2(x)}')
            for (x, w, s_, t, u) in V_:
                L.append(f'v_pk_fma_f32 {p2(t)}, {p2(t)}, {p2(KC1)}, {p2(KC0)}')
            for (x, w, s_, t, u) in V_:
                L.append(f'v_pk_mul_f32 {p2(t)}, {p2(t)}, {p2(x)}')
            for (x, w, s_, t, u) in V_:
                L += [f'v_exp_f32 v{t}, v{t}', f'v_exp_f32 v{t + 1}, v{t + 1}']
            for (x, w, s_, t, u) in V_:
                L.append(f'v_pk_fma_f32 {p2(t)}, {p2(t)}, {p2(w)}, {p2(w)}')
            for (x, w, s_, t, u) in V_:
                L += [f'v_rcp_f32 v{t}, v{t}', f'v_rcp_f32 v{t + 1}, v{t + 1}']
            for (x, w, s_, t, u) in V_:
                if s_ in seen:
                    L.append(f'v_pk_fma_f32 {p2(s_)}, {p2(t)}, {p2(x)}, {p2(s_)}')
                else:
                    L.append(f'v_pk_mul_f32 {p2(s_)}, {p2(t)}, {p2(x)}')
                    seen.add(s_)
        if self.opt.nopk:
            import re as _re
            L2 = []
            for x in L:
                if x.startswith('v_pk_'):
                    mn = x.split()[0].replace('v_pk_', 'v_')
                    rs = [int(r) for r in _re.findall(r'v\[(\d+):', x)]
                    L2 += [f'{mn} ' + ', '.join(f'v{r + h}' for r in rs) for h in range(2)]
                else:
                    L2.append(x)
            L = L2
        return L

    def red4(self, SUMP):
        sm = lambda tm: SUMP + 2 * tm
        L = [f'v_add_f32 v{sm(tm)}, v{sm(tm)}, v{sm(tm) + 1}' for tm in range(4)]
        L += [f'v_permlane32_swap_b32 v{sm(tm)}, v{sm(tm + 2)}' for tm in range(2)]
        L += [f'v_add_f32 v{sm(tm)}, v{sm(tm)}, v{sm(tm + 2)}' for tm in range(2)]
        L += [f'v_permlane16_swap_b32 v{sm(0)}, v{sm(1)}', f'v_add_f32 v{sm(0)}, v{sm(0)}, v{sm(1)}']
        return L

    def kconst(self, KC0, KC1, KONE):
        return [f'v_mov_b32 v{KC0}, {f32hex(GELU_C0)}', f'v_mov_b32 v{KC0 + 1}, {f32hex(GELU_C0)}',
                f'v_mov_b32 v{KC1}, {f32hex(GELU_C1)}', f'v_mov_b32 v{KC1 + 1}, {f32hex(GELU_C1)}',
                f'v_mov_b32 v{KONE}, 0x71800000']

    def winv(self, R, n, KONE):
        return [f'v_rcp_f32 v{R + k}, v{R + k}' for k in range(n)] + [f'v_med3_f32 v{R + k}, v{R + k}, -v{KONE}, v{KONE}' for k in range(n)]

    def dnn(self):
        o = self.opt
        self.role = 'd'
        vW = [[1, 2, 3, 4, 5], [6, 7, 8, 9, 10]]
        vX = [11, 12]
        vIdxOff, vCh = 13, [14, 15]
        ST = [[16, 20], [24, 240]]
        VO = [28, 34]
        vWD = [29, 30, 31, 32, 33]
        vP, vPc, vBL = 35, 36, 37
        WF = 40
        XA = 80
        T = 112
        W2F = 112
        ACC = 140
        PK = 220
        SUMP, KC0, KC1, KONE = 16, 232, 234, 236

        def acc(tn, tm):
            return ACC + (tn * 4 + tm) * 4

        HH, SL = S_T0, S_T1
        g, i4, q = T + 18, T + 19, T + 20
        PI, vCW = T + 8, T + 12
        nr = o.coopw
        L = [f's_mul_i32 s{S_N0}, s{S_R}, {WP}',
             f's_mul_i32 s{S_T2}, s{S_WAVE}, 7', f'v_min_u32 v{q}, 6, v0', f'v_add_u32 v{q}, s{S_T2}, v{q}', f'v_min_u32 v{q}, 51, v{q}',
             f'v_lshrrev_b32 v{g}, 1, v{q}', f'v_mul_u32_u24 v{g}, 96, v{g}', f'v_lshl_add_u32 v{q}, v{q}, 2, v{g}',
             f's_mul_i32 s{S_C0}, s{S_R}, 26', f's_min_u32 s{S_C0}, s{S_C0}, 102', f's_lshl_b32 s{S_T3}, s{S_MB}, 7',
             f's_add_u32 s{S_C0}, s{S_C0}, s{S_T3}', f's_mul_i32 s{S_C0}, s{S_C0}, 104',
             f's_and_b32 s{S_T2}, s{S_MB}, 3', f's_lshl_b32 s{S_T2}, s{S_T2}, 3', f's_add_u32 s{S_T2}, s{S_T2}, s{S_WAVE}',
             f's_mul_i32 s{S_T2}, s{S_T2}, 3328', f's_add_u32 s{S_TW}, s{S_T2}, s{S_N0}',
             f'v_min_u32 v{vCW}, {8 * nr - 1}, v0', f'v_lshrrev_b32 v{g}, 3, v{vCW}', f's_mov_b32 s{S_T2}, {32 * 3328}',
             f'v_mul_u32_u24 v{g}, s{S_T2}, v{g}',
             f'v_and_b32 v{vCW}, 7, v{vCW}', f'v_min_u32 v{vCW}, 4, v{vCW}', f'v_lshl_add_u32 v{vCW}, v{vCW}, 7, v{g}',
             f's_xor_b32 s{S_T2}, s{S_WAVE}, 4', f's_lshl_b32 s{S_T2}, s{S_T2}, 4', f's_add_u32 s{S_T2}, s{S_T2}, s{S_T3}',
              f'v_lshrrev_b32 v{T + 16}, 3, v0', f'v_add_u32 v{T + 16}, s{S_T2}, v{T + 16}',
              f'v_mul_u32_u24 v{vIdxOff}, 104, v{T + 16}',
             's_waitcnt lgkmcnt(0)']
        L += self.build_srd(SRD_IDX, S_IDX, 4096 * 104)
        own = [f'buffer_load_dwordx2 {vr(T + 4 * pc, 2)}, v{vIdxOff}, {srd(SRD_IDX)}, 0 offen offset:{pc * 832}' for pc in range(2)]
        L += (own if o.idx1 == 2 else []) + [f'buffer_load_dwordx3 {vr(PI, 3)}, v{q}, {srd(SRD_IDX)}, s{S_C0} offen'] + (own if o.idx1 == 1 else [])
        L += self.tlb1(T + 24, 255)
        vec = lambda dst, sr: [f's_mov_b32 m0, {dst}', 's_mov_b32 exec_hi, 0xff',
                               I(f'buffer_load_dwordx4 v{vBL}, {srd(sr)}, s{S_N0} offen lds', tag='BIAS'), 's_mov_b64 exec, -1']
        L += [f'v_lshlrev_b32 v{vBL}, 4, v0'] + self.build_srd(SRD_B1, S_B1, 3328)
        L += self.build_srd(SRD_W, S_W1, 1664 * 3328)
        L += [f'buffer_load_dword v255, v{vCW}, {srd(SRD_W)}, s{S_TW} offen']
        dpf = [f's_mul_i32 s{S_TW}, s{S_MB}, 5', f's_add_u32 s{S_TW}, s{S_TW}, s{S_R}', f's_lshl_b32 s{S_TW}, s{S_TW}, 3', f's_add_u32 s{S_TW}, s{S_TW}, s{S_WAVE}',
               f's_add_u32 s{S_TW}, s{S_TW}, {2 * 832}', f's_lshl_b32 s{S_TW}, s{S_TW}, 7', f'v_min_u32 v{vCW}, {o.dpn - 1}, v0', f'v_mul_u32_u24 v{vCW}, {1280 * 128}, v{vCW}',
               f'buffer_load_dword v255, v{vCW}, {srd(SRD_W)}, s{S_TW} offen']
        L += vec(L_BIAS, SRD_B1) + (dpf if o.dpf == 1 else [])
        L += self.stamp0()
        L += [f's_lshr_b32 s{HH}, s{S_WAVE}, 2', f's_and_b32 s{SL}, s{S_WAVE}, 3',
              f's_mov_b32 s{S_T2}, 1639', f's_and_b32 s{S_C0}, s{SL}, 1', f's_lshl_b32 s{S_C0}, s{S_C0}, 2',
              f's_mov_b32 s{S_TW}, 3328', f'v_mov_b32 v{T + 16}, v0']
        for u in range(5):
            ci, rr = T + 16, T + 17
            L += [f'v_mul_u32_u24 v{rr}, s{S_T2}, v{ci}', f'v_lshrrev_b32 v{rr}, 16, v{rr}',
                  f'v_mul_u32_u24 v{q}, 40, v{rr}', f'v_sub_u32 v{q}, v{ci}, v{q}',
                  f'v_and_b32 v{i4}, 2, v{rr}', f'v_or_b32 v{i4}, s{S_C0}, v{i4}', f'v_xor_b32 v{q}, v{q}, v{i4}',
                  f'v_mul_u32_u24 v{rr}, s{S_TW}, v{rr}', f'v_lshl_add_u32 v{vWD[u]}, v{q}, 4, v{rr}']
            if u % 4:
                L += [f'v_subrev_u32 v{vWD[u]}, {1024 * u}, v{vWD[u]}']
            if u < 4:
                L += [f'v_add_u32 v{ci}, 64, v{ci}']
        L += [f's_mul_i32 s{S_T2}, s{S_WAVE}, {8 * 3328}', f's_add_u32 s{S_WSOFF}, s{S_T2}, s{S_N0}',
              f's_mul_i32 s{S_WMB}, s{S_WAVE}, {8 * WP}', f's_add_u32 s{S_WMB}, s{S_WMB}, {WR}',
              f's_lshl_b32 s{S_T3}, s{HH}, 14', f's_lshl_b32 s{S_XM0}, s{SL}, 11', f's_add_u32 s{S_XM0}, s{S_XM0}, s{S_T3}', f's_xor_b32 s{S_XM0}, s{S_XM0}, {2 * XSLOT}',
              f'v_and_b32 v{q}, 7, v0', f'v_lshrrev_b32 v{g}, 4, v0',
              f'v_xor_b32 v{q}, v{q}, v{g}', f'v_lshlrev_b32 v{vCh[0]}, 4, v{q}',
              f'v_xor_b32 v{vCh[1]}, 64, v{vCh[0]}',
              f'v_and_b32 v{q}, 15, v0', f'v_lshlrev_b32 v{q}, 7, v{q}',
              f'v_bfe_u32 v{i4}, v0, 1, 3', f'v_xor_b32 v{i4}, v{i4}, v{g}', f'v_lshl_add_u32 v{q}, v{i4}, 4, v{q}',
              f'v_add_u32 v{vX[0]}, s{S_T3}, v{q}', f'v_xor_b32 v{vX[1]}, 64, v{vX[0]}']
        L += self.build_srd(SRD_W2, S_W2, 3328)
        L += [f's_mul_i32 s{S_T3}, s{SL}, 5',
              f'v_bfe_u32 v{i4}, v0, 2, 2', f'v_lshl_add_u32 v{q}, v{g}, 3, v{i4}', f'v_mul_u32_u24 v{q}, {WP}, v{q}',
              f'v_and_b32 v{i4}, 3, v0', f'v_lshl_add_u32 v{q}, v{i4}, 3, v{q}', f'v_add_u32 v{q}, {WR}, v{q}',
              f'v_bfe_u32 v{i4}, v0, 3, 2']
        for i in range(5):
            L += [f'v_xor_b32 v{T + 16}, s{S_T3}, v{i4}', f'v_lshl_add_u32 v{vW[0][i]}, v{T + 16}, 5, v{q}',
                  f'v_add_u32 v{vW[1][i]}, {3 * WSLOT}, v{vW[0][i]}', f's_add_u32 s{S_T3}, s{S_T3}, 1']
        L += [f's_mul_i32 s{S_T3}, s{SL}, 160', f's_add_u32 s{S_T3}, s{S_T3}, {L_BIAS}',
              f'v_lshlrev_b32 v{q}, 3, v{g}', f'v_add_u32 v{vP}, s{S_T3}, v{q}',
              f's_lshl_b32 s{S_T2}, s{SL}, 1', f's_add_u32 s{S_T2}, s{S_T2}, s{HH}', f's_lshl_b32 s{S_T2}, s{S_T2}, 8', f's_add_u32 s{S_T2}, s{S_T2}, {RB}',
              f'v_lshlrev_b32 v{vPc}, 2, v0', f'v_add_u32 v{vPc}, s{S_T2}, v{vPc}']

        def wld(u):
            return I(f'buffer_load_dwordx4 v{vWD[u]}, {srd(SRD_W)}, s{S_WSOFF} offen offset:{1024 * (u % 4)} lds', tag='W')

        def wst(stage):
            return [(f's_add_u32 m0, s{S_WMB}, {(stage % 3) * 2 * WSLOT}', wld(0)), (wld(1),), (wld(2),), (wld(3),),
                    ('s_add_u32 m0, m0, 4096', wld(4), f's_add_u32 s{S_WSOFF}, s{S_WSOFF}, {64 * 3328}')]

        def xld(v, m0, tag='X'):
            return (m0, I(f'buffer_load_dwordx4 v{v}, {srd(SRD_TAB)}, 0 offen lds', tag=tag))
        pkreads = lambda off: [f'ds_read_b64 {vr(PK + 2 * tn, 2)}, v{vP} offset:{off + 32 * tn}' for tn in range(5)]

        def unp(dst):
            c = []
            for tn in range(5):
                for d in range(2):
                    c += [f'v_lshlrev_b32 v{dst(tn) + 2 * d}, 16, v{PK + 2 * tn + d}', f'v_and_b32 v{dst(tn) + 2 * d + 1}, 0xffff0000, v{PK + 2 * tn + d}']
            return c

        def reads(st):
            def rdw(tn):
                c = []
                for par in range(2):
                    sl = (st % 3) * 2 + par
                    c += [f'ds_read_b64_tr_b16 {vr(WF + 8 * tn + 4 * par + 2 * rd, 2)}, v{vW[sl // 3][tn]} offset:{(sl % 3) * WSLOT + rd * 4 * WP}' for rd in range(2)]
                return c
            rdx = [f'ds_read_b128 {vr(XA + 8 * tm + 4 * par, 4)}, v{vX[par]} offset:{(st % 2) * XSLOT + tm * 2048}' for tm in range(4) for par in range(2)]
            return rdw(0) + rdw(1) + rdw(2) + rdw(3) + rdx + rdw(4) if o.ro == 0 else rdw(0) + rdx + rdw(1) + rdw(2) + rdw(3) + rdw(4)

        def xst(src, f, tag='X'):
            vo = lambda pc: (f'v_lshl_add_u32 v{VO[pc]}, v{src(pc)}, 7, v{vCh[pc]}',)
            return [vo(1) + vo(0) + xld(VO[0], f's_add_u32 m0, s{S_XM0}, {(f % 2) * XSLOT}', tag), xld(VO[1], 's_add_u32 m0, m0, 1024', tag)]
        idxl = lambda k: [f'buffer_load_dwordx3 {vr(ST[k][pc], 3)}, v{vIdxOff}, {srd(SRD_IDX)}, s{S_IDXOFF} offen offset:{pc * 832}' for pc in range(2)] + [f's_add_u32 s{S_IDXOFF}, s{S_IDXOFF}, 12']

        tA = [f'buffer_load_dword v255, v{PI}, {srd(SRD_TAB)}, 0 offen']
        tB = [f'v_lshlrev_b32 v{PI + 2}, 7, v{PI + 2}', f'buffer_load_dword v255, v{PI + 2}, {srd(SRD_TAB)}, 0 offen']
        ini = [WaitTag(vm_tags=['BIAS'])] + pkreads(0) + unp(lambda tn: acc(tn, 0))
        ini += [f'v_mov_b64 {vr(acc(tn, tm) + 2 * d, 2)}, {vr(acc(tn, 0) + 2 * d, 2)}' for tn in range(5) for tm in range(1, 4) for d in range(2)]
        x0 = xst(lambda pc: T + 4 * pc, 0, 'X0')
        tBl = []
        if o.tbl:
            tBl, tB = tB, []
        b1 = ['s_barrier'] if o.pb & 1 else []
        b2 = ['s_barrier'] if o.pb & 2 else []
        sh = [f'v_lshlrev_b32 v{PI}, 7, v{PI}']
        if o.sv == 0:
            L += sh + (own if not o.idx1 else []) + b1 + tA + tB + self.stamp(6) + wst(0) + ini + x0 + self.stamp(7) + b2
        elif o.sv == 1:
            L += wst(0) + sh + (own if not o.idx1 else []) + b1 + tA + self.stamp(6) + x0 + tB + b2 + ini + self.stamp(7)
        elif o.sv == 2:
            L += sh + (own if not o.idx1 else []) + b1 + tA + self.stamp(6) + x0 + wst(0) + tB + b2 + ini + self.stamp(7)
        elif o.sv == 3:
            L += wst(0) + (own if not o.idx1 else []) + x0 + self.stamp(6) + sh + tA + tB + b2 + ini + self.stamp(7)
        L += [f's_lshl_b32 s{S_IDXOFF}, s{HH}, 2', f's_add_u32 s{S_IDXOFF}, s{S_IDXOFF}, 4'] + idxl(0)
        L += [f's_mov_b32 s{S_LOOP}, 0', f's_cmp_lg_u32 s{HH}, 0', 's_cbranch_scc1 L_dnn_h1']
        pro = self.seq(L)

        def mf(tn, tm, par):
            a = acc(tn, tm)
            return f'v_mfma_f32_16x16x32_bf16 {vr(a, 4)}, {vr(WF + 8 * tn + 4 * par, 4)}, {vr(XA + 8 * tm + 4 * par, 4)}, {vr(a, 4)}'
        MM = [mf(tn, j if tn % 2 == 0 else 3 - j, par) for tn in range(5) for j in range(4) for par in range(2)]
        kb = o.bov
        wi = self.winv(W2F, 20, KONE)
        trs = []
        for half in range(2):
            def fill(st, w=True, x=True, extra=(), rextra=()):
                D_ = (wst(st + 2) if w else []) + (xst(lambda pc: ST[(st // 3) % 2][pc] + st % 3, st + 1 + half) if x else [])
                return interleave(reads(st) + list(rextra), D_) + list(extra)

            def M(V=(), b=True, last=False, nw=5):
                gp = [[] for _ in MM]
                V = list(V)
                n_ = len(MM) - kb - 1
                for k, x in enumerate(V):
                    gp[k * n_ // len(V)].append(x)
                m = [(x,) + tuple(y) for x, y in zip(MM, gp)]
                return ['s_setprio 0'] * b + m[:len(m) - kb] + (['s_setprio 2'] + ([WaitTag(allbut=('W', nw))] if half == 0 else []) + ['s_barrier'] if b else []) + m[len(m) - kb:] + ['s_setprio 0'] * last
            wF = lambda nw=5, nx=2: [WaitTag(vm_tags=['X0'], allbut=('X', nx), lgkm0=True)] + ([WaitTag(allbut=('W', nw))] if half else []) + ['s_barrier']
            L = [f'L_dnn_h{half}:']
            pre = (xst(lambda pc: T + 4 * pc + 1, 1) if half else []) + wst(1) + tBl + idxl(1)
            if half == 0:
                L += pre[:o.q0] + [WaitTag(allbut=('W', min(o.q0, 5)), lgkm0=True)] + self.stamp(1) + ['s_barrier'] + self.stamp(2) + pre[o.q0:]
            else:
                L += pre[:o.q1] + [WaitTag(allbut=('W', max(0, min(o.q1 - 2, 5)))), WaitTag(vm_tags=['X0'], lgkm0=True)] + self.stamp(1) + ['s_barrier'] + self.stamp(2) + pre[o.q1:] + ['s_barrier']
            th = pro + self.seq(L)
            L = [f'L_dnn_loop{half}:']
            for st in range(6):
                ex = []
                if st % 3 == 2:
                    ex += idxl(st // 3)
                if st == 4 and half == 1:
                    ex += [tuple(vec(L_W2, SRD_W2))]
                if o.padat.startswith('dl') and int(o.padat[2:]) % 6 == st:
                    ex += [('s_memrealtime s[86:87]', 's_waitcnt lgkmcnt(0)', f's_cmp_eq_u32 s{S_LOOP}, {int(o.padat[2:]) // 6}', 's_cselect_b32 s88, s86, s88')]
                if o.stamps and o.itst == 2 and st % 2:
                    ex += [(f's_memtime s[{S_ST}:{S_ST + 1}]', f's_memrealtime s[{S_ST + 2}:{S_ST + 3}]', f's_mul_i32 s{S_TW}, s{S_LOOP}, 3', f's_add_u32 s{S_TW}, s{S_TW}, {8 + st // 2}',
                           f's_min_u32 s{S_TW}, s{S_TW}, 14', 's_waitcnt lgkmcnt(0)',
                           f's_mov_b32 m0, s{S_TW}', f'v_writelane_b32 v252, s{S_ST}, m0', f'v_writelane_b32 v253, s{S_ST + 2}, m0')]
                if o.stamps and o.itst == 1 and st in (1, 4):
                    ex += [(f's_memtime s[{S_ST}:{S_ST + 1}]', f's_memrealtime s[{S_ST + 2}:{S_ST + 3}]', f's_lshl_b32 s{S_TW}, s{S_LOOP}, 1', f's_add_u32 s{S_TW}, s{S_TW}, {6 + st // 3}',
                           f's_max_u32 s{S_TW}, s{S_TW}, 8', 's_waitcnt lgkmcnt(0)',
                           f's_mov_b32 m0, s{S_TW}', f'v_writelane_b32 v252, s{S_ST}, m0', f'v_writelane_b32 v253, s{S_ST + 2}, m0')]
                L += fill(st, extra=ex) + wF() + M([f's_add_u32 s{S_LOOP}, s{S_LOOP}, 1', f's_cmp_lt_u32 s{S_LOOP}, 4'] if st == 5 else [])
            L += [f's_cbranch_scc1 L_dnn_loop{half}']
            body = self.seq(L)
            th += body * 3
            L = fill(24, w=False, x=half == 0, rextra=pkreads(WP), extra=self.tlb2(VO[0], vBL) if half == 0 else []) + wF(0, 2 - 2 * half)
            L += M(self.kconst(KC0, KC1, KONE) + unp(lambda tn: W2F + 4 * tn) + wi[:14], nw=0)
            L += fill(25, w=False, x=False) + wF(0, 0) + M(wi[14:], b=half == 0, last=True)
            if half == 0:
                L += ['s_branch L_epi']
            trs.append(th + self.seq(L))
        p2 = lambda r: vr(r, 2)
        el = lambda tn, tm, d: (acc(tn, tm) + 2 * d, W2F + 4 * tn + 2 * d, SUMP + 2 * tm)
        L = ['L_epi:'] + self.stamp(3)
        L += [f's_lshl_b32 s{S_T1}, s{S_R}, 11', f's_and_b32 s{S_T3}, s{S_MB}, 3', f's_lshl_b32 s{S_T3}, s{S_T3}, 9', f's_add_u32 s{S_T1}, s{S_T1}, s{S_T3}',
              f's_lshr_b32 s{S_T0}, s{S_MB}, 2', f's_lshl_b32 s{S_T0}, s{S_T0}, 14', f's_add_u32 s{S_T1}, s{S_T1}, s{S_T0}',
              'v_lshlrev_b32 v3, 3, v0', f'v_add_u32 v2, {RB}, v3']
        L += self.gelu([[el(tn, tm, d) for tm in range(4)] for tn in range(5) for d in range(2)], WF, KC0, KC1, KONE)
        L += self.red4(SUMP) + [f'ds_write_b32 v{vPc}, v{SUMP}', 's_waitcnt lgkmcnt(0)'] + self.stamp(4) + self.stamp_flush()
        L += [f's_cmp_eq_u32 s{S_WAVE}, 0', 's_cbranch_scc1 L_dpub']
        tr = self.seq(L)
        self.seq(['s_barrier', 's_endpgm'])
        A = 64
        L = ['L_dpub:'] + self.build_srd(SRD_WS, S_WS, 0x10000000) + self.build_srd(SRD_DBG, S_DBG, 256) + self.cleared('L_dclr', 4, vBL) + ['s_barrier'] + self.stamp(17)
        L += [f'ds_read_b64 {vr(A + 2 * qq, 2)}, v2 offset:{qq * 512}' for qq in range(4)]
        L += [f'v_pk_add_f32 {p2(A)}, {p2(A)}, {p2(A + 2)}', f'v_pk_add_f32 {p2(A + 4)}, {p2(A + 4)}, {p2(A + 6)}', f'v_pk_add_f32 {p2(A)}, {p2(A)}, {p2(A + 4)}',
              f'v_and_b32 v{A}, -2, v{A}', f'v_and_b32 v{A + 1}, -2, v{A + 1}',
              f'buffer_store_dwordx2 {vr(A, 2)}, v3, {srd(SRD_WS)}, s{S_T1} offen sc1'] + self.padsig() + ['s_endpgm']
        return [trs[0] + tr + self.seq(L), trs[1] + tr]

    def rem(self):
        o = self.opt
        self.role = 'r'
        vW = [1, 2, 7, 8]
        vX = [11, 12]
        vWD, vCh, vT, VO = 13, [14, 15], 9, 24
        SUMP = 16
        IDX = 32
        XA, WF = 64, 96
        ACC = 160
        W2F, BF = 96, 112
        PK = 224
        KC0, KC1, KONE = 240, 242, 244
        g, i4, q = 246, 247, 248
        S_F = S_IDXOFF
        acc = lambda tn, tm: ACC + (tn * 4 + tm) * 4
        L = ['L_rem:'] + (['s_memrealtime s[82:83]'] if o.amp == 4 else []) + [f's_lshr_b32 s{S_GRP}, s{S_WAVE}, 2', f's_and_b32 s{S_T0}, s2, 7', f's_lshl_b32 s{S_T0}, s{S_T0}, 3', f's_add_u32 s{S_T0}, s{S_T0}, s{S_WAVE}',
             f's_mul_i32 s{S_T0}, s{S_T0}, {64 * 104}', f's_lshl_b32 s{S_XM0}, s{S_WAVE}, 14',
             f'v_lshlrev_b32 v{q}, 4, v0', f'v_lshrrev_b32 v{g}, 4, v0',
             f'v_lshrrev_b32 v{i4}, 3, v0', f'v_mul_u32_u24 v{vWD}, 3328, v{i4}', f'v_and_b32 v{i4}, 2, v{i4}',
             f's_and_b32 s{S_T1}, s{S_WAVE}, 1', f's_lshl_b32 s{S_T1}, s{S_T1}, 2', f'v_or_b32 v{i4}, s{S_T1}, v{i4}',
             f'v_and_b32 v{vT}, 7, v0', f'v_xor_b32 v{i4}, v{i4}, v{vT}', f'v_lshl_add_u32 v{vWD}, v{i4}, 4, v{vWD}',
             f's_mul_i32 s{S_WSOFF}, s{S_WAVE}, {8 * 3328}', f's_add_u32 s{S_WSOFF}, s{S_WSOFF}, 3200',
             f's_lshl_b32 s{S_WMB}, s{S_WAVE}, 10', f's_add_u32 s{S_WMB}, s{S_WMB}, {RWR}',
             's_waitcnt lgkmcnt(0)']
        L += self.build_srd(SRD_IDX, S_IDX, 4096 * 104)
        for u in range(7):
            L += [f's_add_u32 m0, s{S_XM0}, {8192 + u * 1024}', I(f'buffer_load_dwordx4 v{q}, {srd(SRD_IDX)}, s{S_T0} offen lds', tag='I'),
                  f's_add_u32 s{S_T0}, s{S_T0}, 1024']
        L += self.build_srd(SRD_W, S_W1, 1664 * 3328)
        wld = lambda slot: [f's_add_u32 m0, s{S_WMB}, {slot * 8192}', I(f'buffer_load_dwordx4 v{vWD}, {srd(SRD_W)}, s{S_WSOFF} offen lds', tag='W'),
                            f's_add_u32 s{S_WSOFF}, s{S_WSOFF}, {64 * 3328}']
        L += wld(0)
        L += self.build_srd(SRD_WS, S_WS, 0x10000000) + self.build_srd(SRD_DBG, S_DBG, 256) + [f'v_mov_b32 v{XA + k}, -1' for k in range(4)]
        L += [f's_and_b32 s{S_T2}, s2, 7', f's_lshl_b32 s{S_T0}, s{S_T2}, 3', f's_add_u32 s{S_T0}, s{S_T0}, s{S_WAVE}', f's_lshl_b32 s{S_T0}, s{S_T0}, 11', f's_lshl_b32 s{S_T2}, s{S_T2}, 2',
              f'buffer_store_dwordx4 {vr(XA, 4)}, v{q}, {srd(SRD_WS)}, s{S_T0} offen sc1',
              f'buffer_store_dwordx4 {vr(XA, 4)}, v{q}, {srd(SRD_WS)}, s{S_T0} offen offset:1024 sc1']
        L += self.build_srd(SRD_B1, S_B1, 3328) + self.build_srd(SRD_W2, S_W2, 3328) + self.build_srd(SRD_TAB, S_TAB, 100000 * 128)
        L += self.stamp0()
        L += [f'v_xor_b32 v{q}, v{vT}, v{g}', f'v_lshlrev_b32 v{vCh[0]}, 4, v{q}', f'v_xor_b32 v{vCh[1]}, 64, v{vCh[0]}',
              f'v_bfe_u32 v{i4}, v0, 2, 2', f'v_lshl_add_u32 v{q}, v{g}, 3, v{i4}', f'v_lshlrev_b32 v{q}, 7, v{q}',
              f'v_and_b32 v{i4}, 3, v0', f'v_lshl_add_u32 v{q}, v{i4}, 3, v{q}', f'v_add_u32 v{q}, {RWR}, v{q}',
              f'v_bfe_u32 v{i4}, v0, 3, 2', f'v_lshl_add_u32 v{vW[0]}, v{i4}, 5, v{q}']
        L += [f'v_xor_b32 v{vW[i]}, {32 * i}, v{vW[0]}' for i in range(1, 4)]
        L += [f'v_and_b32 v{q}, 15, v0', f'v_lshlrev_b32 v{q}, 7, v{q}',
              f'v_bfe_u32 v{i4}, v0, 1, 3', f'v_xor_b32 v{i4}, v{i4}, v{g}', f'v_lshl_add_u32 v{q}, v{i4}, 4, v{q}',
              f'v_add_u32 v{vX[0]}, s{S_XM0}, v{q}', f'v_xor_b32 v{vX[1]}, 64, v{vX[0]}',
              f'v_lshrrev_b32 v{i4}, 3, v0', f'v_lshl_add_u32 v{q}, v{vT}, 3, v{i4}', f'v_mul_u32_u24 v{q}, 104, v{q}', f'v_add_u32 v{q}, s{S_XM0}, v{q}']
        L += self.kconst(KC0, KC1, KONE) + [f'v_mov_b32 v{r}, 0' for r in range(ACC, ACC + 64)] + ['s_waitcnt vmcnt(0)']
        L += [f'ds_read_b64 {vr(IDX + 2 * k, 2)}, v{q} offset:{8192 + 8 * k}' for k in range(13)]

        def xld(src, slot, h=None):
            c = [tuple(f'v_add_u32_dpp v{VO + pc}, v{src}, v{vCh[pc % 2]} row_newbcast:{8 * hh + pc} row_mask:0xf bank_mask:{hex(3 << (2 * hh))}'
                       for hh in range(2) for pc in range(4 * k, 4 * k + 4)) for k in range(2)]
            d = [(f's_add_u32 m0, s{S_XM0}, {slot * 8192 + pc * 1024}',
                  I(f'buffer_load_dwordx4 v{VO + pc}, {srd(SRD_TAB)}, 0 offen lds', tag='X')) for pc in range(8)]
            return c[:1] + d[:4] + c[1:] + d[4:] if h is None else c[h:h + 1] + d[4 * h:4 * h + 4]
        L += [f'v_mov_b32 v{VO + pc}, 0' for pc in range(8)] + [f'v_mov_b32 v{IDX + k}, 0x7f000000' for k in (26, 27)]
        L += [f'v_lshlrev_b32 v{IDX}, 7, v{IDX}'] + xld(IDX, 0)
        L += wld(1) + [f'v_lshlrev_b32 v{IDX + k}, 7, v{IDX + k}' for k in range(25, 0, -1)] + xld(IDX + 1, 1) + wld(2)
        L += [f'v_lshlrev_b32 v{q}, 3, v{g}']

        rdx = lambda fp, h: [f'ds_read_b128 {vr(XA + 16 * h + 8 * t + 4 * par, 4)}, v{vX[par]} offset:{fp * 8192 + (2 * h + t) * 2048}' for t in (1, 0) for par in (1, 0)]
        rdw = lambda fp: [f'ds_read_b64_tr_b16 {vr(WF + 32 * fp + 8 * tn + 4 * par + 2 * rd, 2)}, v{vW[tn]} offset:{fp * 8192 + par * 4096 + rd * 512}'
                          for tn in range(4) for par in range(2) for rd in range(2)]

        def mm(fp, h):
            return [f'v_mfma_f32_16x16x32_bf16 {vr(acc(tn, 2 * h + t), 4)}, {vr(WF + 32 * fp + 8 * tn + 4 * par, 4)}, {vr(XA + 16 * h + 8 * t + 4 * par, 4)}, {vr(acc(tn, 2 * h + t), 4)}'
                    for tn in range(4) for t in range(2) for par in range(2)]
        L += [f's_mov_b32 s{S_F}, 3', f'v_mov_b32 v{vT}, v{IDX + 2}'] + list(xld(vT, 0, 0)[0])
        L += [WaitTag(allbut=('X', 12)), 's_barrier'] + self.stamp(2) + rdx(0, 0) + rdw(0)
        L += [f's_cmp_lg_u32 s{S_WAVE}, 7', 's_cbranch_scc1 L_rem_loop', 's_mov_b64 exec, 1',
              f'buffer_store_dword v{KC0}, v{vCh[0]}, {srd(SRD_DBG)}, s{S_T2} offen offset:128 sc1', 's_mov_b64 exec, -1']
        tr = self.seq(L)

        def phase(M, R, Dm, V):
            gp = [[] for _ in M]
            for k, x in enumerate(R):
                gp[k * o.rrd // max(len(R), 1)].append(x)
            for k, x in enumerate(Dm):
                gp[1 + k * 15 // len(Dm)].append(x)
            v0 = o.rrd if R else 0
            for k, x in enumerate(V):
                gp[v0 + k * (16 - v0) // len(V)].append(x)
            return [(m,) + tuple(g_) for m, g_ in zip(M, gp)]
        post = []
        for k in range(8):
            post += [f'v_lshlrev_b32 v{BF + 2 * k}, 16, v{PK + k}', f'v_and_b32 v{BF + 2 * k + 1}, 0xffff0000, v{PK + k}',
                     f'v_lshlrev_b32 v{W2F + 2 * k}, 16, v{PK + 8 + k}', f'v_and_b32 v{W2F + 2 * k + 1}, 0xffff0000, v{PK + 8 + k}']
        post += self.winv(W2F, 16, KONE)
        vld = [f'buffer_load_dwordx2 {vr(PK + 2 * tn, 2)}, v{q}, {srd(SRD_B1)}, 0 offen offset:{3200 + 32 * tn}' for tn in range(4)]
        vld += [f'buffer_load_dwordx2 {vr(PK + 8 + 2 * tn, 2)}, v{q}, {srd(SRD_W2)}, 0 offen offset:{3200 + 32 * tn}' for tn in range(4)]

        def field(fp, last):
            L = [WaitTag(allbut=('W', 0 if last else 1)), WaitTag(allbut=('X', 0 if last and fp else 8))] + ([] if last and fp else ['s_barrier'])
            if fp == 1 and not last:
                L += [f'v_xor_b32 v{vW[i]}, 16384, v{vW[i]}' for i in range(4)]
            sx = (f's_xor_b32 s{S_WMB}, s{S_WMB}, 16384',)
            wl = [sx + tuple(wld(1)) + sx] if fp == 0 else [tuple(wld(0)) + sx]
            rw = rdw(1 - fp)
            mv = [(f's_set_gpr_idx_on s{S_F}, gpr_idx(SRC0)', 's_nop 0', f'v_mov_b32 v{vT}, v{IDX}', 's_set_gpr_idx_off', f's_add_u32 s{S_F}, s{S_F}, 1')]
            if not last:
                L += phase(mm(fp, 0), rdx(fp, 1) + rw[:8], xld(vT, fp, 0)[1:], list(xld(vT, fp, 1)[0]))
                L += [WaitTag(allbut=('X', 8))]
                L += phase(mm(fp, 1), rdx(1 - fp, 0) + rw[8:], xld(vT, fp, 1)[1:] + wl, mv + list(xld(vT, fp, 0)[0]))
            elif fp == 0:
                L += phase(mm(fp, 0), rdx(fp, 1) + rw[:8], vld, [])
                L += [WaitTag(allbut=('X', 4))]
                L += phase(mm(fp, 1), rdx(1 - fp, 0) + rw[8:], [], [])
            else:
                L += phase(mm(fp, 0), rdx(fp, 1), [], []) + phase(mm(fp, 1), [], [], post[:32])
            return L
        L = ['L_rem_loop:'] + field(0, False) + field(1, False) + [f's_cmp_lt_u32 s{S_F}, 27', 's_cbranch_scc1 L_rem_loop']
        L = [x for x in flat(L) if not any((x.text if isinstance(x, I) else x).startswith(d) for d in o.rdrop.split(',') if d)]
        body = self.seq(L)
        body2 = self.seq(field(0, True) + field(1, True))
        el = lambda tn, tm, d: (acc(tn, tm) + 2 * d, W2F + 4 * tn + 2 * d, SUMP + 2 * tm)
        L = self.stamp(3) + self.tlb2(4, 5) + self.build_srd(SRD_OUT, S_OUT, 8192) + [f's_load_dword s{S_BOUT}, s[{S_BO}:{S_BO + 1}], 0',
             f'buffer_load_dword v255, v4, {srd(SRD_OUT)}, 0 offen',
             f's_and_b32 s{S_T2}, s2, 7', f's_lshl_b32 s{S_T0}, s{S_T2}, 14', f's_lshl_b32 s{S_T1}, s{S_WAVE}, 8', f's_add_u32 s{S_T0}, s{S_T0}, s{S_T1}',
             f's_add_u32 s{S_T1}, s{S_T0}, 4096', f's_add_u32 s{S_T3}, s{S_T0}, 8192',
             f's_lshl_b32 s{S_T2}, s{S_T2}, 3', f's_add_u32 s{S_T2}, s{S_T2}, s{S_WAVE}', f's_lshl_b32 s{S_T2}, s{S_T2}, 7',
             'v_lshlrev_b32 v3, 2, v0', 'v_lshlrev_b32 v2, 1, v0', 's_waitcnt lgkmcnt(0)', f's_lshl_b32 s{S_BOUT}, s{S_BOUT}, 16',
             f's_lshl_b32 s{S_TW}, s{S_WAVE}, 6', f'v_add_u32 v1, s{S_TW}, v0', f'v_cmp_lt_u32 vcc, {483 + o.n4}, v1', 'v_add_u32 v1, 4096, v3', 'v_mov_b32 v6, 0x7f000000',
             'v_cndmask_b32 v1, v6, v1, vcc']
        L += post[32:]
        L += [f'v_pk_add_f32 {vr(acc(tn, tm) + 2 * d, 2)}, {vr(acc(tn, tm) + 2 * d, 2)}, {vr(BF + 4 * tn + 2 * d, 2)}' for tn in range(4) for tm in range(4) for d in range(2)]
        L += self.gelu([[el(tn, tm, d) for tm in range(4)] for tn in range(4) for d in range(2)], XA, KC0, KC1, KONE)
        L += self.red4(SUMP) + [f'v_add_f32 v{SUMP}, s{S_BOUT}, v{SUMP}'] + self.stamp(4) + self.cleared('L_rclr', 4, 5) + self.padsig()
        A = 64
        tk = ['s_memrealtime s[86:87]', 's_waitcnt lgkmcnt(0)', 's_sub_u32 s89, s86, s88', 's_min_u32 s89, s89, 10000', 's_lshl_b32 s89, s89, 3']
        if o.amp == 2:
            L += [f's_mov_b32 s{S_LOOP}, 0x40000', 'L_polla:', f's_sub_u32 s{S_LOOP}, s{S_LOOP}, 1', 's_cbranch_scc1 L_pollax']
            L += [f'buffer_load_dword v{A + k}, v3, {srd(SRD_WS)}, s{(S_T0, S_T1, S_T3)[k // 2]} offen offset:{(k % 2) * 2048} sc1' for k in range(5)]
            L += [f'v_max3_u32 v{A + 8}, v{A}, v{A + 1}, v{A + 2}', f'v_max3_u32 v{A + 8}, v{A + 3}, v{A + 4}, v{A + 8}',
                  f'v_cmp_eq_u32 vcc, -1, v{A + 8}', 's_cbranch_vccnz L_polla', 'L_pollax:']
        if o.amp in (2, 3):
            L += tk
        L += [f's_mov_b32 s{S_LOOP}, 0x40000', 'L_poll:', f's_sub_u32 s{S_LOOP}, s{S_LOOP}, 1', 's_cbranch_scc1 L_pollx']
        L += [f'buffer_load_dword v{A + k}, v3, {srd(SRD_WS)}, s{(S_T0, S_T1, S_T3)[k // 2]} offen offset:{(k % 2) * 2048} sc1' for k in range(6)]
        L += [f'buffer_load_dword v{A + 6}, v1, {srd(SRD_WS)}, s{S_T3} offen sc1']
        L += [f'v_max3_u32 v{A + 8}, v{A}, v{A + 1}, v{A + 2}', f'v_max3_u32 v{A + 9}, v{A + 3}, v{A + 4}, v{A + 5}', f'v_max3_u32 v{A + 8}, v{A + 8}, v{A + 9}, v{A + 6}',
              f'v_cmp_eq_u32 vcc, -1, v{A + 8}', 's_cbranch_vccnz L_poll', 'L_pollx:']
        L += [f'v_add_f32 v{A}, v{A}, v{A + 1}', f'v_add_f32 v{A + 2}, v{A + 2}, v{A + 3}', f'v_add_f32 v{A + 4}, v{A + 4}, v{A + 5}',
              f'v_add_f32 v{SUMP}, v{SUMP}, v{A + 6}', f'v_add_f32 v{A}, v{A}, v{A + 2}', f'v_add_f32 v{A + 4}, v{A + 4}, v{SUMP}', f'v_add_f32 v{A}, v{A}, v{A + 4}',
              f'v_cvt_pk_bf16_f32 v{A}, v{A}, v{A}']
        if o.amp and o.amp < 4:
            L += (tk if o.amp == 1 else []) + [
                  'L_ampspin:', 's_memrealtime s[86:87]', 's_waitcnt lgkmcnt(0)', 's_sub_u32 s86, s86, s88', 's_cmp_lt_u32 s86, s89', 's_cbranch_scc1 L_ampspin']
        if o.padat:
            L += ['L_padspin:', f'buffer_load_dword v7, v8, {srd(SRD_DBG)}, 0 offen sc1', 's_waitcnt vmcnt(0)', 's_memrealtime s[86:87]',
                  'v_readfirstlane_b32 s88, v7', 's_waitcnt lgkmcnt(0)', 's_cmp_eq_u32 s88, 0', 's_cbranch_scc1 L_padspin'] + (['s_not_b32 s88, s88'] if o.padmin else []) + [
                  's_sub_u32 s86, s86, s88', 's_cmp_lt_i32 s86, 6000', 's_cbranch_scc1 L_padspin'] if o.amp != 4 else [
                  f's_mov_b32 s{S_LOOP}, 0x40000', 'L_padspin:', f's_sub_u32 s{S_LOOP}, s{S_LOOP}, 1', 's_cbranch_scc1 L_padx',
                  f'buffer_load_dword v7, v8, {srd(SRD_DBG)}, 0 offen sc1', 's_waitcnt vmcnt(0)', 's_memrealtime s[86:87]',
                  'v_readfirstlane_b32 s88, v7', 's_waitcnt lgkmcnt(0)'] + (['s_not_b32 s88, s88'] if o.padmin else []) + [
                  's_sub_u32 s88, s88, s82', 's_min_u32 s88, s88, 5000', 's_lshl_b32 s88, s88, 3', 's_add_u32 s88, s88, 5000',
                  's_sub_u32 s86, s86, s82', 's_cmp_lt_u32 s86, s88', 's_cbranch_scc1 L_padspin', 'L_padx:']
        L += [f'buffer_store_short v{A}, v2, {srd(SRD_OUT)}, s{S_T2} offen{o.ofl}'] + self.stamp(5) + self.stamp_flush() + ['s_endpgm']
        return [tr + body * 3 + body2 + self.seq(L)]

    def cin(self):
        o = self.opt
        self.role = 'c'
        cw = S_CW
        S_BCUR, S_BD, S_EXP, S_EXPC, S_PREV, S_SC, S_PH = 74, 75, 48, 49, 50, 51, 97
        S_CHK = S_M26
        vFA, vFR, vOne, vF, vFG, vFGa = 1, 2, 3, 4, 5, 6
        vRaw, vLin, vLinB, vXw, vX1, vX2, vSh, vAcc, vOr, vSI, vXi, vC16, vPWL, vPXL, PXR = range(7, 22)
        FT, XI, aD, aS, aLc, aC = 22, 24, 28, 29, 30, 31
        RAW, X, RZ, D = 32, 40, 52, 68
        WA, WB, WC, WS_, WL = 84, 128, 172, 216, 240
        Da, Db, Dc, Ds = D, D + 4, D + 8, D + 12
        T = 40
        half, i32, t3, t4, t5, vg, vm = T + 1, T + 2, T + 3, T + 4, T + 5, T + 6, T + 7
        vStg = 48
        GB = 49
        vMx, vWr, vL6, vL, vWu, vWo = range(62, 68)
        vDl = 247
        AD = 68
        vA3, vBs0, vBs1a, vBs1b, vUw, vV2w, vE, V3T = 240, 241, 242, 243, 244, 245, 246, 81
        BALL, UP, AFR, DALL = 84, 84, 132, 140
        BT, SUM, OUT = 216, 84, 132
        XJ = 204
        F_W3, F_W2, F_W1, F_PEEL, F_M, F_U, F_V3, F_XB = 0, 4, 8, 12, 16, 24, 32, 36
        nsync = [0]

        def sig(off, A=vFA, **kw):
            return [WaitTag(lgkm0=True, **kw), f'ds_add_u32 v{A}, v{vOne} offset:{off}']

        def wait(off, tgt, R=vFR):
            nsync[0] += 1
            lab = f'L_csync{nsync[0]}'
            return [f'{lab}:', f'ds_read_b32 v{vF}, v{R} offset:{off}', 's_waitcnt lgkmcnt(0)',
                    f'v_cmp_gt_u32 vcc, {tgt}, v{vF}', f's_cbranch_vccnz {lab}']

        def dppred(op, r):
            return [f'{op}_dpp v{r}, v{r}, v{r} {ctl} row_mask:{rm} bank_mask:0xf'
                    for (ctl, rm) in (('row_shr:1', '0xf'), ('row_shr:2', '0xf'), ('row_shr:4', '0xf'), ('row_shr:8', '0xf'),
                                      ('row_bcast:15', '0xa'), ('row_bcast:31', '0xc'))]

        def absmax(dst, regs):
            c = [f'v_max3_f32 v{dst}, abs(v{regs[0]}), abs(v{regs[1]}), abs(v{regs[2]})']
            k = 3
            while k < len(regs):
                b = regs[k + 1] if k + 1 < len(regs) else regs[k]
                c.append(f'v_max3_f32 v{dst}, v{dst}, abs(v{regs[k]}), abs(v{b})')
                k += 2
            return c

        def waitmax(off, dst_e, top, R=vFR):
            nsync[0] += 1
            lab = f'L_csync{nsync[0]}'
            return [f'{lab}:', f'ds_read_b64 {vr(T, 2)}, v{R} offset:{off}', 's_waitcnt lgkmcnt(0)',
                    f'v_cmp_gt_u32 vcc, 4, v{T}', f's_cbranch_vccnz {lab}',
                    f'v_readfirstlane_b32 s{dst_e}, v{T + 1}',
                    f's_lshr_b32 s{dst_e}, s{dst_e}, 23', f's_sub_i32 s{dst_e}, {top}, s{dst_e}', f's_min_i32 s{dst_e}, s{dst_e}, 40']

        def postmax(r, off, **kw):
            return dppred('v_max_u32', r) + [f'v_readlane_b32 s{S_T0}, v{r}, 63', f'v_mov_b32 v{r}, s{S_T0}',
                                             f'ds_max_u32 v{vFA}, v{r} offset:{off + 4}', WaitTag(**kw), f'ds_add_u32 v{vFA}, v{vOne} offset:{off}']
        setsc = lambda e: [f's_add_i32 s{S_SC}, s{e}, 127', f's_lshl_b32 s{S_SC}, s{S_SC}, 23']

        S_C, S_DYN, S_ST0, S_TK = S_R, S_MB, 98, 99
        vTk, vZ = 250, 251
        S_HALF = S_STG9
        L = ['L_cin:', f's_and_b32 s{S_T0}, s{S_MB}, 3', f's_mul_i32 s{S_T0}, s{S_T0}, 3', f's_add_u32 s{S_C}, s{S_T0}, s{S_R}',
             f's_sub_u32 s{S_C}, s{S_C}, 6', 's_cbranch_scc1 L_rem',
             f's_and_b32 s{cw}, s{S_WAVE}, 3', f's_lshr_b32 s{S_GRP}, s{S_WAVE}, 2',
             f's_lshl_b32 s{S_GW}, s{S_C}, 3', f's_add_u32 s{S_GW}, s{S_GW}, s{S_WAVE}',
             f's_mul_i32 s{S_T0}, s{S_GW}, {10 * 128}',
             f'v_min_u32 v{T}, 9, v0', f'v_lshlrev_b32 v{T}, 7, v{T}',
             f'v_lshlrev_b32 v{vStg}, 4, v0',
             f's_lshl_b32 s{S_STG}, s{cw}, 10',
             f's_cmp_eq_u32 s{cw}, 2', f's_cselect_b64 s[{S_EX}:{S_EX + 1}], 0x1fffff, -1',
             f's_cmp_eq_u32 s{cw}, 3', f's_cselect_b32 s{S_STG9}, 0, {8 * 4096}',
             f's_add_u32 s{S_STG9}, s{S_STG9}, s{S_STG}',
             f's_mul_i32 s{S_T1}, s{S_C}, 2979', f's_lshr_b32 s{S_T1}, s{S_T1}, 6', f's_mul_i32 s{S_ST0}, s{S_C}, 44',
             f's_and_b32 s{S_T2}, s2, 7', f's_add_u32 s{S_RC}, s{S_ST0}, s{S_WAVE}', f's_lshl_b32 s{S_RC}, s{S_RC}, 2',
             f's_lshl_b32 s{S_ST0}, s{S_T2}, 14', f's_add_u32 s{S_RC}, s{S_RC}, s{S_ST0}', f's_add_u32 s{S_RC}, s{S_RC}, {5 * 2048}', f's_mul_i32 s{S_ST0}, s{S_C}, 44', f's_lshl_b32 s{S_PX}, s{S_T2}, 9', f's_add_u32 s{S_SAMP}, s{S_PX}, s{S_ST0}', f's_add_u32 s{S_PX}, s{S_PX}, s{S_T1}',
             f's_add_u32 s{S_SAMP}, s{S_SAMP}, s{S_WAVE}', f's_mul_i32 s{S_SAMP}, s{S_SAMP}, 104',
             f's_lshl_b32 s{S_ST0}, s{S_C}, 2', f's_add_u32 s{S_ST0}, s{S_ST0}, s{S_WAVE}', f's_add_u32 s{S_ST0}, s{S_ST0}, s{S_T2}', f's_and_b32 s{S_ST0}, s{S_ST0}, 7',
             f's_mul_i32 s{S_ST0}, s{S_ST0}, {16384 + o.shs}', f's_add_u32 s{S_ST0}, s{S_ST0}, {6 * 2048}',
             f's_sub_u32 s{S_LOOP}, 6, s{S_GRP}', f's_lshl_b32 s{S_TK}, s{S_GRP}, 1', f's_mov_b32 s{S_DYN}, -1',
             f'v_lshrrev_b32 v{t3}, 3, v0', f'v_min_u32 v{t3}, 6, v{t3}', f'v_lshlrev_b32 v{vXi}, 4, v{t3}',
             f's_mul_i32 s{S_T2}, s{S_T2}, 88', f's_add_u32 s{S_T2}, s{S_GW}, s{S_T2}', f's_mov_b32 s{S_T3}, 704',
             f'v_mov_b32 v{t4}, s{S_T2}', f'v_mad_u32_u24 v{vPWL}, v0, s{S_T3}, v{t4}',
             f's_mul_i32 s{S_T2}, s{S_GW}, 104', f's_sub_u32 s{S_T2}, s{S_T2}, {13 * 26 - 25}',
             f'v_min_u32 v{t4}, {12 + o.pfr}, v0', f'v_mul_u32_u24 v{t5}, 26, v{t4}', f'v_add_u32 v{t5}, s{S_T2}, v{t5}',
             f'v_cmp_lt_u32 vcc, 12, v{t4}', f'v_cndmask_b32 v{vPWL}, v{vPWL}, v{t5}, vcc', f'v_lshlrev_b32 v{vPWL}, 7, v{vPWL}',
             f's_mov_b32 s{S_PW}, {o.pfe0 * 832 * 128}',
             f'v_mov_b32 v{vFR}, {L_FLG}', f'v_lshlrev_b32 v{vFA}, 20, v0', f'v_add_u32 v{vFA}, {L_FLG}, v{vFA}',
             f'v_and_b32 v{t4}, 7, v0', f'v_lshlrev_b32 v{vC16}, 4, v{t4}', f'v_and_b32 v{t4}, 15, v0', f'v_lshl_add_u32 v{t4}, v{t4}, 2, v{vFR}',
             f'v_mov_b32 v{vOne}, 0', f'ds_write_b32 v{t4}, v{vOne}',
             f'v_lshrrev_b32 v{half}, 5, v0', f'v_and_b32 v{i32}, 31, v0',
             's_waitcnt lgkmcnt(0)', f'v_mov_b32 v{vOne}, 1']
        L += self.tlb1(t5, 255)
        L += self.build_srd(SRD_CIN, S_CIN, 105456)
        L += [f'buffer_load_dword v255, v{T}, {srd(SRD_CIN)}, s{S_T0} offen'] if o.coop else []
        L += self.build_srd(SRD_W, S_W1, 1664 * 3328)

        def pfw():
            if o.nopf & 4:
                return []
            return [f's_mov_b64 exec, {((1 << (13 + o.pfr)) - 1) & ~(0x1fff if o.nopf & 1 else 0)}', f'buffer_load_dword v255, v{vPWL}, {srd(SRD_W)}, s{S_PW} offen', 's_mov_b64 exec, -1',
                    f's_add_u32 s{S_PW}, s{S_PW}, {352 * 3328}']
        L += ['s_barrier'] + (pfw() if o.pf1 in (0, 3) else [])
        L += self.build_srd(SRD_IDX, S_IDX, 4096 * 104)

        def pfx_a():
            return [] if o.nopf & 2 else [f'buffer_load_dword v{PXR}, v{vPXL}, {srd(SRD_IDX)}, s{S_PX} offen',
                    f's_cmp_eq_u32 s{S_PX}, s{S_PXE}', f's_cselect_b32 s{S_PXE}, 0x7000000, s{S_PXE}',
                    f's_cselect_b32 s{S_PX}, 0x7000000, s{S_PX}',
                    f's_add_u32 s{S_PX}, s{S_PX}, 24', f's_min_u32 s{S_PX}, s{S_PX}, s{S_PXE}']

        def pfx_b():
            return [] if o.nopf & 2 else [f'v_lshlrev_b32 v{PXR}, 7, v{PXR}', f'buffer_load_dword v255, v{PXR}, {srd(SRD_TAB)}, 0 offen']

        def xidx(XI=XI, off=0, adv=True):
            c = [f'buffer_load_dwordx4 {vr(XI, 4)}, v{vXi}, {srd(SRD_IDX)}, s{S_SAMP} offen offset:{off}']
            if adv:
                c.append(f's_add_u32 s{S_SAMP}, s{S_SAMP}, {8 * 104}')
            return c

        def xdma(XI=XI, lo=0):
            c = []
            for u in range(4):
                if u == 2:
                    c += ['s_mov_b32 exec_hi, 0x0000ffff']
                c += [f'v_lshl_add_u32 v{XI + u}, v{XI + u}, 7, v{vC16}']
                if u == 3:
                    c += ['s_mov_b32 exec_lo, 0', 's_mov_b32 exec_hi, 0xffff0000', f'v_mov_b32 v{XI + 3}, v{XI + 1}', f'v_mov_b32 v{XI + 2}, v{XI + 1}',
                          's_mov_b32 exec_hi, 0x00ff0000', f'v_mov_b32 v{XI + 2}, v{XI}', 's_mov_b64 exec, -1']
            for u in range(4):
                c += [f's_add_u32 m0, s{S_BCUR}, {u * XPI + lo}']
                if u == 3:
                    c += ['s_mov_b32 exec_hi, 0x00ffffff']
                c.append(I(f'buffer_load_dwordx4 v{XI + u}, {srd(SRD_TAB)}, 0 offen lds', tag='XB'))
                if u == 3:
                    c += ['s_mov_b32 exec_hi, -1']
            return c
        wco = self.build_srd(SRD_WCO, S_WCO, 156) + [f's_mov_b32 m0, {L_WCO}', 's_mov_b64 exec, 0x7ff',
              I(f'buffer_load_dwordx4 v{vStg}, {srd(SRD_WCO)}, 0 offen lds', tag='STG3'),
              's_mov_b64 exec, -1']
        L += self.stamp0()

        def stage(dst, goff, tag):
            st = []
            for m in range(8):
                st.append((f's_add_u32 m0, s{S_STG}, {dst + m * 4096}', f's_add_u32 s{S_TW}, s{S_STG}, {goff + m * 4096}',
                           I(f'buffer_load_dwordx4 v{vStg}, {srd(SRD_CIN)}, s{S_TW} offen lds', tag=tag)))
            st.append((f's_add_u32 m0, s{S_STG9}, {dst}', f's_add_u32 s{S_TW}, s{S_STG9}, {goff}',
                       f's_mov_b64 exec, s[{S_EX}:{S_EX + 1}]',
                       I(f'buffer_load_dwordx4 v{vStg}, {srd(SRD_CIN)}, s{S_TW} offen lds', tag=tag),
                       's_mov_b64 exec, -1'))
            return st

        L += [f's_cmp_lg_u32 s{S_GRP}, 0', 's_cbranch_scc1 L_g1a']
        c0 = self.seq(L)
        sA, sB = (('1', A1, 0, F_W1), ('2', A2, 35152, F_W2)) if o.w1first else (('2', A2, 35152, F_W2), ('1', A1, 0, F_W1))
        stA, stB = stage(sA[1], sA[2], 'STG' + sA[0]), stage(sB[1], sB[2], 'STG' + sB[0])
        stg = [wco + stage(A3, 70304, 'STG3') + stA[:o.sigat],
               sig(F_W3, vm_tags=['STG3']) + self.stamp(1) + stA[o.sigat:] + stB[:o.sig2],
               sig(sA[3], vm_tags=['STG' + sA[0]]) + stB[o.sig2:]]
        g0a = self.seq(stg[:o.ccpos] + ['s_branch L_addrc'])
        L = ['L_g1a:', 's_setprio 1',
             f'v_bfe_u32 v{t3}, v0, 2, 2', f'v_lshl_add_u32 v{t3}, v{half}, 3, v{t3}',
             f'v_bfe_u32 v{t4}, v0, 4, 1', f'v_lshlrev_b32 v{t4}, 5, v{t4}',
             f'v_and_b32 v{t5}, 3, v0', f'v_lshl_add_u32 v{t4}, v{t5}, 3, v{t4}',
             f'v_lshl_add_u32 v{vA3}, v{t3}, 6, v{t4}', f'v_add_u32 v{vA3}, {V3OFF}, v{vA3}',
             f's_lshl_b32 s{S_T0}, s{cw}, 6', f's_add_u32 s{S_T0}, s{S_T0}, {A2}',
             f'v_add_u32 v{t4}, s{S_T0}, v{t4}',
             f'v_mul_u32_u24 v{t5}, 1352, v{t3}', f'v_add_u32 v{vBs0}, v{t4}, v{t5}',
             f'v_add_u32 v{t5}, 16, v{t3}', f'v_min_u32 v{t5}, 25, v{t5}',
             f'v_mul_u32_u24 v{t5}, 1352, v{t5}', f'v_add_u32 v{vBs1a}, v{t4}, v{t5}',
             f'v_add_u32 v{t5}, 20, v{t3}', f'v_min_u32 v{t5}, 25, v{t5}',
             f'v_mul_u32_u24 v{t5}, 1352, v{t5}', f'v_add_u32 v{vBs1b}, v{t4}, v{t5}',
             f's_lshl_b32 s{S_T0}, s{cw}, 5', f'v_add_u32 v{vE}, s{S_T0}, v{i32}',
             f'v_mul_u32_u24 v{t3}, 52, v{vE}', f'v_lshl_add_u32 v{t3}, v{half}, 3, v{t3}',
             f'v_add_u32 v{vUw}, {A3}, v{t3}',
             f'v_lshlrev_b32 v{t3}, 1, v{vE}', f'v_add_u32 v{vV2w}, {V2OFF}, v{t3}',
             f'v_mov_b32 v{BT}, 0', f'v_mov_b32 v{BT + 1}, 0',
             f'v_lshlrev_b32 v{t3}, 3, v0', f'v_add_u32 v{t4}, {V3OFF}, v{t3}',
             f's_lshl_b32 s{S_T0}, s{cw}, 9', f'v_add_u32 v{t4}, s{S_T0}, v{t4}', f'ds_write_b64 v{t4}, {vr(BT, 2)}']
        L += [f'v_lshl_add_u32 v{t3}, v{half}, 7, v{vE}', f's_mov_b32 s{S_T1}, 2521', f's_mov_b32 s{S_T2}, {V3OFF}']
        for p_ in range(3):
            L += [f'v_mul_u32_u24 v{t4}, s{S_T1}, v{t3}', f'v_lshrrev_b32 v{t4}, 16, v{t4}',
                  f'v_mad_u32_u24 v{t4}, v{t4}, 12, s{S_T2}', f'v_lshl_add_u32 v{AD + p_}, v{t3}, 1, v{t4}']
            if p_ < 2:
                L += [f'v_add_u32 v{t3}, 256, v{t3}']
        L += [f'v_mov_b32 v{t4}, 676', f'v_cmp_gt_u32 s[{S_MASK}:{S_MASK + 1}], v{t4}, v{t3}']
        for m in range(6):
            L += [f'v_add_u32 v{t3}, {128 * m}, v{vE}', f'v_mul_u32_u24 v{t4}, s{S_T1}, v{t3}', f'v_lshrrev_b32 v{t4}, 16, v{t4}',
                  f'v_lshl_add_u32 v{t4}, v{t4}, 2, v{vUw}', f'v_add_u32 v{AD + 4 + m}, {m * 6656}, v{t4}']
        L += [f'v_lshlrev_b32 v{AD + 10}, 4, v{half}', f'v_add_u32 v{AD + 10}, {L_WCO + 104}, v{AD + 10}',
              f'v_lshlrev_b32 v{AD + 11}, 1, v0', f'v_add_u32 v{AD + 11}, {L_WCO}, v{AD + 11}',
              f'v_lshlrev_b32 v{AD + 12}, 6, v0', f'v_add_u32 v{AD + 12}, {V3OFF + 52}, v{AD + 12}']
        g1a = self.seq(L)

        N_ = (0, 1, 2, 3)
        classes = []
        for d in ZD:
            for (a, ha, b, hb) in d:
                if cls(a, ha)[1] == N_ and cls(b, hb)[1] != N_ and cls(b, hb)[1] not in classes:
                    classes.append(cls(b, hb)[1])
        assert len(classes) == 5
        base = {(N_, N_): GB}
        for k, c in enumerate(classes):
            base[(N_, c)] = GB + 1 + 2 * k
            base[(c, N_)] = GB + 2 + 2 * k
        SP1, SP2 = GB + 11, GB + 12
        pk4 = lambda t: '0x%08x' % sum((x & 0xff) << (8 * k) for k, x in enumerate(t))
        L = ['L_addrc:',
             f's_and_b32 s{S_T2}, s{S_WAVE}, 1', f's_lshl_b32 s{S_T2}, s{S_T2}, 1', f'v_add_u32 v{vg}, s{S_T2}, v{half}',
             f'v_min_u32 v{t3}, 25, v{i32}',
             f's_mul_i32 s{S_T0}, s{S_GRP}, {UST - 1352}', f's_add_u32 s{S_T0}, s{S_T0}, 1352',
             f's_mul_i32 s{S_T1}, s{S_GRP}, {A3 - A1}', f's_add_u32 s{S_T1}, s{S_T1}, {A1}',
             f'v_mul_u32_u24 v{t4}, s{S_T0}, v{t3}', f'v_add_u32 v{t4}, s{S_T1}, v{t4}',
             f'v_lshlrev_b32 v{vDl}, 2, v{t3}', f'v_add_u32 v{vDl}, {A3 - A1}, v{vDl}',
             f'v_mul_u32_u24 v{vL}, 52, v{t3}', f'v_lshl_add_u32 v{vL}, v{vg}, 1, v{vL}', f'v_add_u32 v{vL}, {V2OFF}, v{vL}',
             f'v_lshlrev_b32 v{vWo}, 1, v{t3}', f'v_add_u32 v{vWo}, {L_WCO}, v{vWo}',
             f'v_mad_u32_u24 v{SP1}, v{vg}, 52, v{t4}',
             f'v_lshl_add_u32 v{SP2}, v{vg}, 1, v{t4}',
             f'v_lshl_add_u32 v{GB}, v{vg}, 1, v{SP1}',
             f'v_lshlrev_b32 v{t3}, 3, v{vg}']
        for k, c in enumerate(classes):
            L += [f's_mov_b32 s{S_T0}, {pk4(c)}', f'v_bfe_i32 v{t5}, s{S_T0}, v{t3}, 8',
                  f'v_lshl_add_u32 v{GB + 1 + 2 * k}, v{t5}, 1, v{SP1}', f'v_mad_i32_i24 v{GB + 2 + 2 * k}, v{t5}, 52, v{SP2}']
        L += [f's_mov_b32 s{S_T0}, {pk4((0, 54, 2, 0))}', f'v_bfe_u32 v{t5}, s{S_T0}, v{t3}, 8', f'v_add_u32 v{SP1}, v{t5}, v{t4}',
              f'v_add_u32 v{SP2}, 52, v{t4}', f'v_mov_b32 v{vm}, {OOB}',
              f'v_cmp_eq_u32 vcc, 3, v{vg}', f'v_cndmask_b32 v{SP1}, v{SP1}, v{vm}, vcc', f'v_cndmask_b32 v{vWo}, v{vm}, v{vWo}, vcc',
              f'v_cmp_eq_u32 vcc, 2, v{vg}', f'v_cndmask_b32 v{SP2}, v{vm}, v{SP2}, vcc',
              f'v_cmp_gt_u32 vcc, 2, v{vg}', f'v_cndmask_b32 v{vL6}, v{vm}, v{vL}, vcc']
        L += [f's_lshr_b32 s{S_T1}, s{cw}, 1', f's_mul_i32 s{S_T1}, s{S_T1}, {6 * 1024}', f's_mul_i32 s{S_T0}, s{S_GRP}, {6 * 1024}',
              f'v_lshlrev_b32 v{t5}, 8, v{vg}',
              f'v_lshl_add_u32 v{t3}, v{i32}, 4, v{t5}', f'v_add_u32 v{vWr}, {TA}, v{t3}', f'v_add_u32 v{vWu}, {TB}, v{t3}',
              f'v_bfe_u32 v{t3}, v0, 2, 2', f'v_lshl_add_u32 v{t5}, v{t3}, 4, v{t5}', f'v_and_b32 v{t3}, 3, v0',
              f'v_lshl_add_u32 v{t4}, v{t3}, 6, v{t5}', f'v_add_u32 v{t4}, {TC}, v{t4}',
              f'v_cmp_lt_u32 vcc, 15, v{i32}', f'v_cndmask_b32 v{vWr}, v{vWr}, v{t4}, vcc', f'v_add_u32 v{t4}, 16, v{t4}',
              f'v_cndmask_b32 v{vWu}, v{vWu}, v{t4}, vcc',
              f'v_lshl_add_u32 v{t4}, v{t3}, 5, v{t5}', f'v_add_u32 v{t4}, {TD - 16}, v{t4}',
              f'v_cmp_lt_u32 vcc, 19, v{i32}', f'v_cndmask_b32 v{vWr}, v{vWr}, v{t4}, vcc',
              f'v_add_u32 v{vWr}, s{S_T1}, v{vWr}', f'v_add_u32 v{vWu}, s{S_T0}, v{vWu}',
              f'v_cmp_lt_u32 vcc, 25, v{i32}', f'v_cndmask_b32 v{vWr}, v{vWr}, v{vm}, vcc', f'v_cndmask_b32 v{vWu}, v{vWu}, v{vm}, vcc',
              f'v_mov_b32 v{vMx}, 0']
        L += [f's_mul_i32 s{S_BCUR}, s{S_WAVE}, {XBSZ}', f's_add_u32 s{S_BCUR}, s{S_BCUR}, {XB0}', f's_mov_b32 s{S_BD}, {XB1 - XB0}',
              f'v_add_u32 v{aD}, {TA}, v{vStg}',
              f'v_and_b32 v{t3}, 11, v0', f'v_cmp_eq_u32 vcc, 11, v{t3}', f'v_cndmask_b32 v{aC}, v{aD}, v{vm}, vcc',
              f'v_and_b32 v{t3}, 3, v0', f'v_cmp_eq_u32 vcc, 0, v{t3}', f'v_cndmask_b32 v{aLc}, v{aC}, v{vm}, vcc',
              f'v_lshrrev_b32 v{vg}, 4, v0', f'v_bfe_u32 v{t3}, v0, 1, 3', f'v_lshlrev_b32 v{t5}, 4, v{t3}', f'v_add_u32 v{t5}, {TD}, v{t5}',
              f'v_and_b32 v{t3}, 10, v0', f'v_cmp_eq_u32 vcc, 10, v{t3}', f'v_cndmask_b32 v{t5}, v{t5}, v{vm}, vcc',
              f'v_and_b32 v{t4}, 1, v0', f'v_lshl_add_u32 v{aS}, v{vg}, 9, v{t5}', f'v_lshl_add_u32 v{aS}, v{t4}, 2, v{aS}', f'v_add_u32 v{aS}, 1024, v{aS}',
              f'v_lshl_add_u32 v{FT}, v{vg}, 8, v{t5}', f'v_lshl_add_u32 v{FT}, v{t4}, 20, v{FT}',
              f'v_and_b32 v{vm}, 15, v0', f's_mov_b32 s{S_T0}, {XPI}',
              f'v_lshlrev_b32 v{t3}, 1, v{vm}', f'v_add_u32 v{t3}, s{S_BCUR}, v{t3}',
              f'v_mad_u32_u24 v{vRaw}, v{vg}, s{S_T0}, v{t3}',
              f's_lshl_b32 s{S_T0}, s{S_WAVE}, 10', f's_add_u32 s{S_T0}, s{S_T0}, {XCH}',
              f'v_add_u32 v{vXw}, s{S_T0}, v{vStg}',
              f'v_add_u32 v{t3}, 256, v{vStg}', f'v_and_b32 v{t3}, 1023, v{t3}', f'v_add_u32 v{vX1}, s{S_T0}, v{t3}',
              f'v_xor_b32 v{t3}, 512, v{vStg}', f'v_add_u32 v{vX2}, s{S_T0}, v{t3}', f'v_lshlrev_b32 v{vSh}, 4, v{half}']
        L += [f'v_mov_b32 v{r}, 0' for r in list(range(RAW, RAW + 8)) + list(range(BT, BT + 24))]
        L += [f'v_mul_u32_u24 v{t4}, {XPI}, v{vg}',
              f'v_bfe_u32 v{t5}, v0, 2, 2', f'v_lshl_add_u32 v{t4}, v{t5}, 7, v{t4}',
              f'v_and_b32 v{t5}, 3, v0', f'v_lshl_add_u32 v{vLinB}, v{t5}, 3, v{t4}', f'v_add_u32 v{vLin}, s{S_BCUR}, v{vLinB}',
              f'v_and_b32 v{t5}, 1, v0', f's_mov_b32 s{S_T0}, 0xaaaaaaaa', f'v_mul_lo_u32 v{vSI}, s{S_T0}, v{t5}', f'v_or_b32 v{vSI}, 0x44444444, v{vSI}',
              f'v_lshlrev_b32 v{vOr}, 1, v0', f'v_add_u32 v{vOr}, s{S_BCUR}, v{vOr}', f'v_mov_b32 v{vAcc}, 0x3f80',
              f'ds_write_b16 v{vOr}, v{vAcc} offset:{3 * XPI + 7 * 128}', f'v_add_u32 v{vOr}, s{S_BD}, v{vOr}']
        L += [f's_mul_i32 s{S_T3}, s{S_WAVE}, 6', f's_add_u32 s{S_PX}, s{S_PX}, s{S_T3}', f's_mul_i32 s{S_PX}, s{S_PX}, 104',
              f's_add_u32 s{S_PXE}, s{S_PX}, 80', f's_add_u32 s{S_PX}, s{S_PX}, {4 * o.pfx0}',
              f's_mov_b32 s{S_T3}, 10923', f'v_min_u32 v{t3}, 35, v0',
              f'v_mul_u32_u24 v{t4}, s{S_T3}, v{t3}', f'v_lshrrev_b32 v{t4}, 16, v{t4}',
              f'v_mul_u32_u24 v{t4}, {104 - 24}, v{t4}', f'v_lshl_add_u32 v{vPXL}, v{t3}, 2, v{t4}']
        L += self.stamp(14) + (pfw() if o.pf1 == 1 else [])
        L += [f's_cmp_eq_u32 s{S_GRP}, 0', 's_cbranch_scc1 L_g0pf']
        cc = self.seq(L)

        def bread(m, base):
            b = BALL + m * 8
            return [f'ds_read_b64_tr_b16 {vr(b, 2)}, v{vBs0} offset:{base + m * 256}',
                    f'ds_read_b64_tr_b16 {vr(b + 2, 2)}, v{vBs0} offset:{base + m * 256 + 4 * 1352}',
                    f'ds_read_b64_tr_b16 {vr(b + 4, 2)}, v{vBs1a} offset:{base + m * 256}',
                    f'ds_read_b64_tr_b16 {vr(b + 6, 2)}, v{vBs1b} offset:{base + m * 256}']

        def mm6(base, post=lambda m: []):
            c = []
            for m in range(3 if base is not None else 0):
                c += bread(m, base)
            for m in range(6):
                if m + 3 < 6 and base is not None:
                    c += bread(m + 3, base)
                b = BALL + m * 8
                d = DALL + (m % 4) * 16
                c.append(f'v_mfma_f32_32x32x16_bf16 {vr(d, 16)}, {vr(AFR, 4)}, {vr(b, 4)}, 0')
                c.append(f'v_mfma_f32_32x32x16_bf16 {vr(d, 16)}, {vr(AFR + 4, 4)}, {vr(b + 4, 4)}, {vr(d, 16)}')
                if m >= 2:
                    c += post(m - 2)
            return c + post(4) + post(5)

        e1 = [f's_sub_u32 s{S_T0}, s{S_PX}, {24 * 104}', f'buffer_load_dword v{XJ + 4}, v{vPXL}, {srd(SRD_IDX)}, s{S_T0} offen',
              f'buffer_load_dword v{XJ + 5}, v{vPXL}, {srd(SRD_IDX)}, s{S_PX} offen']
        e2 = [f'v_lshlrev_b32 v{XJ + 4}, 7, v{XJ + 4}', f'buffer_load_dword v255, v{XJ + 4}, {srd(SRD_TAB)}, 0 offen',
              f'v_lshlrev_b32 v{XJ + 5}, 7, v{XJ + 5}', f'buffer_load_dword v255, v{XJ + 5}, {srd(SRD_TAB)}, 0 offen']
        if o.nopf & 8:
            e1, e2 = [], []
        xx = xdma() + xdma(XJ, -4 * XBSZ) + xidx()
        L = sig(F_W3) + [f's_sub_u32 s{S_SAMP}, s{S_SAMP}, {4 * 104}'] + xidx(XJ, 0, False) + [f's_add_u32 s{S_SAMP}, s{S_SAMP}, {4 * 104}'] + xidx()
        L += e1 + [f's_add_u32 s{S_PX}, s{S_PX}, 24'] + pfx_a()
        L += wait(F_W3, 8) + self.stamp(2)
        uc0 = self.seq(L)
        L = []
        for s2 in range(2):
            for rd in range(2):
                L.append(f'ds_read_b64 {vr(AFR + 4 * s2 + 2 * rd, 2)}, v{AD + 10} offset:{s2 * 32 + rd * 8}')
        L += [f'ds_read_u16 v{t5}, v{AD + 11} offset:52']

        def vpost(m):
            p_ = m // 2
            c = [f'v_cvt_pk_bf16_f32 v{V3T + p_}, v{DALL + 16 * (m % 4)}, 0']
            if m % 2:
                c = ['s_mov_b32 exec_lo, 0'] + c + [f's_mov_b64 exec, s[{S_MASK}:{S_MASK + 1}]' if p_ == 2 else 's_mov_b32 exec_lo, -1',
                                                    f'ds_write_b16 v{AD + p_}, v{V3T + p_}']
            return c
        L += mm6(A3 - A2, vpost)
        L += ['s_mov_b64 exec, 0x3ffffff', f'ds_write_b16 v{AD + 12}, v{t5}', 's_mov_b64 exec, -1']
        L += self.stamp(3) + sig(F_V3) + (pfw() if o.pf1 in (2, 3) else []) + [f'v_cmp_gt_u32 s[{S_MASK}:{S_MASK + 1}], 36, v{vE}']
        L += (e2 if o.epos == 0 else []) + (xx if o.xpos == 0 else []) + (e2 if o.epos == 1 else [])
        L += wait(F_W2, 4) + [bread(m, 0) for m in range(6)] + wait(F_V3, 4) + self.stamp(5) + [f's_setprio {o.uprio}']
        for s2 in range(2):
            for rd in range(2):
                L.append(f'ds_read_b64_tr_b16 {vr(AFR + 4 * s2 + 2 * rd, 2)}, v{vA3} offset:{s2 * 1024 + rd * 256}')

        def upost(m):
            d = DALL + 16 * (m % 4)
            c = [f'v_cvt_pk_bf16_f32 v{UP + 8 * m + qq}, v{d + 2 * qq}, v{d + 2 * qq + 1}' for qq in range(8)]
            if m == 5:
                c.append(f's_mov_b64 exec, s[{S_MASK}:{S_MASK + 1}]')
            w_ = [f'ds_write2_b32 v{AD + 4 + m}, v{UP + 8 * m + 2 * a}, v{UP + 8 * m + 2 * a + 1} offset0:{4 * a} offset1:{4 * a + 1}' for a in range(3)]
            return c + interleave(w_, [f'v_max3_f32 v{vMx}, v{vMx}, abs(v{d + 2 * qq}), abs(v{d + 2 * qq + 1})' for qq in range(7)])
        L += mm6(None, upost)
        L.append('s_mov_b32 exec_hi, 0')
        for m in (5, 4, 3, 2, 1, 0):
            L.append(f'ds_write_b32 v{AD + 4 + m}, v{UP + 8 * m + 6} offset:48')
            L.append(f'ds_write_b16 v{vV2w}, v{UP + 8 * m + 7} offset:{m * 256}')
            if m == 5:
                L.append('s_mov_b32 exec_lo, -1')
        L += ['s_mov_b64 exec, -1'] + postmax(vMx, F_U) + [f's_setprio {o.bprio}'] + (xx if o.xpos == 1 else []) + (e2 if o.epos == 2 else []) + self.stamp(6) + ['s_branch L_uph']
        uc = self.seq(L)

        L = ['L_g0pf:'] + stg[o.ccpos:] + [f's_add_u32 s{S_SAMP}, s{S_SAMP}, {8 * 104}', f's_add_u32 s{S_PX}, s{S_PX}, 24'] + xidx() + pfx_a()
        L += (pfw() if o.pf1 in (2, 3) else []) + sig(sB[3], vm_tags=['STG' + sB[0]]) + self.stamp(4) + [f's_mov_b32 s{S_PH}, 0'] + wait(F_W1, 4) + self.stamp(2)
        L += [f's_cmp_ge_u32 s{cw}, 2', 's_cbranch_scc1 L_chunk2']
        g0pf = self.seq(L)

        def chunk(k):
            units = [(n, h) for n in range(12 * k, min(12 * k + 12, 44)) for h in range(2)]
            NB_, BA = 12, o.ba
            reads, maths = [], []
            for ui, (n, h) in enumerate(units):
                a, ha, b, hb = ZD[n][h]
                (fa, ca), (fb, cb) = cls(a, ha), cls(b, hb)
                tb = BT + (ui % NB_) * 2
                dst = SUM + 24 * (k % 2) + ui
                if ca != N_:
                    R = [f'ds_read_u16_d16_hi v{tb}, v{SP1} offset:{54 * 24}', f'ds_read_u16_d16_hi v{tb + 1}, v{SP2} offset:{54 * 24}']
                    M = [f'v_add_f32 v{dst}, v{tb}, v{tb + 1}']
                elif (a, ha) == (b, hb):
                    R = [f'ds_read_u16_d16_hi v{tb}, v{base[(ca, cb)]} offset:{54 * fa}']
                    M = [f'v_mov_b32 v{dst}, v{tb}']
                else:
                    R = [f'ds_read_u16_d16_hi v{tb}, v{base[(ca, cb)]} offset:{52 * fa + 2 * fb}',
                         f'ds_read_u16_d16_hi v{tb + 1}, v{base[(cb, ca)]} offset:{52 * fb + 2 * fa}']
                    M = [f'v_add_f32 v{dst}, v{tb}, v{tb + 1}']
                if ui % 2:
                    M = M + maths[-1] + [f'v_max3_f32 v{vMx}, v{vMx}, abs(v{dst - 1}), abs(v{dst})']
                    maths[-1] = []
                reads.append(R)
                maths.append(M)
            code = []
            nu = len(units)
            for ui in range(nu + BA):
                if ui < nu:
                    code += reads[ui]
                if ui == nu and k == 3:
                    code += [f'ds_read_u16_d16_hi v{LT + e}, v{vL} offset:{8 * e}' for e in range(6)]
                    code += [f'ds_read_u16_d16_hi v{LT + 6}, v{vL6} offset:48', f'ds_read_u16_d16_hi v{LT + 7}, v{vWo}']
                if ui >= BA:
                    code += maths[ui - BA]
            return code
        LT = BT + 8
        assert o.ba <= 8

        def conv(n):
            return [f'v_fma_mix{"hi" if h else "lo"}_f16 v{OUT + q}, v{SUM + 2 * q + h}, s{S_SC}, 0' for h in range(2) for q in range(4 * n, 4 * n + 4)]
        wr = lambda n, A: [f'ds_write_b128 v{A}, {vr(OUT + 4 * n, 4)} offset:{n * 1024}']
        ch, chb = [], []
        for k in range(4):
            ch.append(self.seq([f'L_chunk{k}:'] + chunk(k) + [f's_cmp_lg_u32 s{S_PH}, 0', f's_cbranch_scc1 L_uconv{k % 2}']))
            chb.append(self.seq(['s_branch L_w1conv'] if k == 1 else []))
        L = ['L_w1conv:'] + self.stamp(3) + postmax(vMx, F_M)
        L += [f'v_add_u32 v{GB + k}, v{GB + k}, v{vDl}' for k in range(13)]
        L += waitmax(F_M, S_T2, 141) + setsc(S_T2) + self.stamp(5)
        L += conv(0) + conv(1) + wr(0, vWr) + conv(2) + wr(1, vWr) + conv(3) + wr(2, vWr) + conv(4) + wr(3, vWr) + wr(4, vWr)
        L += [f's_cmp_ge_u32 s{cw}, 2', 's_cbranch_scc1 L_w1x']
        w1a = self.seq(L)
        w1b = self.seq(conv(5) + wr(5, vWr))
        w1c = self.seq(['L_w1x:'])
        L = ['L_uph:'] + self.stamp(7) + waitmax(F_U, S_T3, 140) + setsc(S_T3) + self.stamp(12)
        L += [f's_mov_b32 s{S_PH}, 1', f's_lshr_b32 s{S_T1}, s{S_WAVE}, 1',
              f's_cmp_eq_u32 s{S_T1}, 0', 's_cbranch_scc1 L_chunk0', f's_cmp_eq_u32 s{S_T1}, 1', 's_cbranch_scc1 L_chunk1',
              f's_cmp_eq_u32 s{S_T1}, 2', 's_cbranch_scc1 L_chunk2', 's_branch L_chunk3']
        uph = self.seq(L)
        wm1 = lambda: waitmax(F_M, S_T2, 141)
        u0 = self.seq(['L_uconv0:'] + self.stamp(13) + conv(0) + wm1() + wr(0, vWu) + conv(1) + wr(1, vWu) + conv(2) + wr(2, vWu) + ['s_branch L_built'])
        u1a = self.seq(['L_uconv1:'] + self.stamp(13) + conv(3) + wm1() + wr(3, vWu) + conv(4) + wr(4, vWu) + [f's_cmp_lg_u32 s{S_GRP}, 0', 's_cbranch_scc1 L_ulin'])
        u1b = self.seq(conv(5) + wr(5, vWu) + ['s_branch L_built'])
        L = ['L_ulin:'] + [f'v_mul_f32 v{LT + e}, s{S_SC}, v{LT + e}' for e in range(8)]
        L += [f'v_cvt_pk_bf16_f32 v{OUT + 20 + q}, v{LT + 2 * q}, v{LT + 2 * q + 1}' for q in range(4)] + wr(5, vWu)
        u1c = self.seq(L)

        w0x = self.build_srd(SRD_W2, S_W2, 3328) + [f'v_lshlrev_b32 v{FT}, 7, v0', f'buffer_load_dword v255, v{FT}, {srd(SRD_W2)}, 0 offen']

        slot = lambda k: RZ + 4 * (k % 4)
        MF = [('Lb', 0), ('a', 1), ('b', 1), ('d', 1), ('Lc', 0), ('a', 2), ('c', 1), ('b', 2), ('c', 2)]
        for k in range(3, 10):
            MF += ([('S', k)] if k % 2 else []) + [('a', k), ('b', k), ('c', k)]
        MF += [('a', 10), ('b', 10), ('a', 11), ('b', 11), ('c', 10), ('S', 11), ('c', 11)]
        if o.mo == 1:
            MF = [('Lb', 0), ('a', 1), ('d', 1), ('Lc', 0), ('b', 1), ('a', 2), ('c', 1), ('b', 2), ('a', 3), ('c', 2), ('S', 3), ('b', 3), ('c', 3)]
            for k in range(4, 10):
                MF += ([('S', k)] if k % 2 else []) + [('a', k), ('b', k), ('c', k)]
            MF += [('a', 10), ('b', 10), ('c', 10), ('a', 11), ('b', 11), ('S', 11), ('c', 11)]
        if o.mo == 2:
            MF = [('d', 1), ('Lb', 0), ('a', 1), ('Lc', 0), ('b', 1), ('a', 2), ('c', 1), ('b', 2), ('a', 3), ('c', 2), ('S', 3), ('b', 3), ('c', 3)]
            for k in range(4, 12):
                MF += ([('S', k)] if k % 2 else []) + [('a', k), ('b', k), ('c', k)]
        if o.mo == 3:
            MF = [('d', 1), ('Lb', 0), ('b', 1), ('a', 1), ('Lc', 0), ('c', 1)]
            for k in range(2, 12, 2):
                MF += [('c', k), ('c', k + 1), ('S', k + 1), ('a', k), ('a', k + 1), ('b', k), ('b', k + 1)] if k % 4 == 2 and k < 10 else \
                      [('b', k), ('b', k + 1), ('S', k + 1), ('a', k), ('a', k + 1), ('c', k), ('c', k + 1)]
        NM = len(MF)
        use = {k: [m for m, (t_, kk) in enumerate(MF) if kk == k or (t_ == 'S' and kk == k + 1)] for k in range(12)}
        pos = lambda t_, k: MF.index((t_, k))

        def mfma(m):
            t_, k = MF[m]
            if t_[0] == 'L':
                d, w = {'b': (Db, WL), 'c': (Dc, WL + 4)}[t_[1]]
                return f'v_mfma_f32_16x16x32_bf16 {vr(d, 4)}, {vr(w, 4)}, {vr(slot(0), 4)}, 0'
            if t_ == 'S':
                return f'v_smfmac_f32_16x16x64_f16 {vr(Ds, 4)}, {vr(WS_ + 2 * (k - 1), 4)}, {vr(slot(k - 1), 8)}, v{vSI}'
            d, w = {'a': (Da, WA), 'b': (Db, WB), 'c': (Dc, WC), 'd': (Ds, WS_)}[t_]
            return f'v_mfma_f32_16x16x32_f16 {vr(d, 4)}, {vr(w + 4 * (k - 1), 4)}, {vr(slot(k), 4)}, {"0" if t_ in "ad" and k == 1 else vr(d, 4)}'

        def wload(m):
            t_, k = MF[m]
            if t_[0] == 'L':
                a, w, off = {'b': (aD, WL, TB), 'c': (aLc, WL + 4, TC)}[t_[1]]
                return [f'ds_read_b128 {vr(w, 4)}, v{a} offset:{off - TA + 11 * 1024}']
            if t_ == 'd':
                return [f'ds_read_b128 {vr(WS_, 4)}, v{FT}']
            if t_ == 'S':
                w = WS_ + 2 * (k - 1)
                return [f'ds_read2_b32 {vr(w, 2)}, v{aS} offset0:0 offset1:2', f'ds_read2_b32 {vr(w + 2, 2)}, v{aS} offset0:64 offset1:66',
                        f'v_add_u32 v{aS}, 2048, v{aS}']
            w, a, off = {'a': (WA, aD, 0), 'b': (WB, aD, TB - TA), 'c': (WC, aC, TC - TA)}[t_]
            return [f'ds_read_b128 {vr(w + 4 * (k - 1), 4)}, v{a} offset:{off + (k - 1) * 1024}']

        def zops(n):
            z = slot(n // 4 + 1) + n % 4
            (a, ha, b, hb), (a2, ha2, b2, hb2) = ZD[n]
            if (a, b) == (a2, b2):
                return [f'v_pk_mul_f16 v{z}, v{X + a}, v{X + b} op_sel:[{ha},{hb}] op_sel_hi:[{ha2},{hb2}]']
            return [f'v_mul_f16_sdwa v{z}, v{X + a}, v{X + b} dst_sel:WORD_0 dst_unused:UNUSED_PAD src0_sel:WORD_{ha} src1_sel:WORD_{hb}',
                    f'v_mul_f16_sdwa v{z}, v{X + a2}, v{X + b2} dst_sel:WORD_1 dst_unused:UNUSED_PRESERVE src0_sel:WORD_{ha2} src1_sel:WORD_{hb2}']

        cvt = lambda d, a, b: f'v_cvt_pk_f16_f32 v{d}, v{a}, v{b}'
        LAT = o.lat

        class It:
            def __init__(s, name, G, code, lo, hi, pre):
                s.name, s.G, s.code, s.lo, s.hi, s.pre, s.at = name, G, code, lo, hi, list(pre), None

        NG = 14
        items = {}

        def add(name, G, code, lo=-10**9, hi=10**9, pre=()):
            items[(name, G)] = It(name, G, code, lo, hi, pre)
        usej = lambda j: [n for n, d in enumerate(ZD) if any(a // 4 == j or b // 4 == j for (a, _, b, _) in d)]
        lastz = {j: max(usej(j)) for j in range(3)}
        for G in range(NG):
            c, b0 = G % 4, G * NM
            for r in range(8):
                add(f'raw{r}', G, f'ds_read_u16_d16_hi v{RAW + r}, v{vRaw} offset:{r * 128 + c * 32}', lo=b0 - o.rspan, hi=b0 - o.rlead,
                    pre=[(f'co{q}', G - 1, 0) for q in range(4)] + ([('swr', G, 0)] if c == 0 else []))
            for q in range(4):
                add(f'co{q}', G, cvt(X + q - 1, RAW + q - 1, RAW + q + 2) if q else cvt(X + 3, RAW + 6, RAW + 7), hi=b0 - 4,
                    pre=[(f'raw{r}', G, LAT) for r in range(8)] + [(f'z{lastz[0]}', G - 1, 0)])
            add('wo', G, f'ds_write_b128 v{vXw}, {vr(X, 4)}', hi=b0 - 2, pre=[(f'co{q}', G, 0) for q in range(4)] + [('r2', G - 1, 0)])
            add('r1', G, f'ds_read_b128 {vr(X + 4, 4)}, v{vX1}', hi=b0, pre=[('wo', G, 0)])
            add('r2', G, f'ds_read_b128 {vr(X + 8, 4)}, v{vX2}', hi=b0 + 1, pre=[('r1', G, 0)])
            for q in range(3):
                add(f'al{q}', G, f'v_alignbit_b32 v{X + 8 + q}, v{X + 8 + q}, v{X + 8 + q}, v{vSh}', hi=b0 + 20, pre=[('r2', G, LAT)])
            if c == 0:
                add('swr', G, [f'v_add_u32 v{vRaw}, s{S_BD}, v{vRaw}', WaitTag(vm_tags=['XB'])], lo=b0 - o.rspan - 1, hi=b0 - o.rspan - 1,
                    pre=[(f'raw{r}', G - 1, 0) for r in range(8)])
            for p in range(2):
                add(f'lin{p}', G, f'ds_read_b64_tr_b16 {vr(slot(0) + 2 * p, 2)}, v{vLin} offset:{p * 512 + c * 32}',
                    lo=b0 - NM + max(use[8]), hi=b0 + min(use[0]) - 1 - LAT, pre=[('swl', G, 0)] if c == 0 else [])
            if c == 0:
                add('swl', G, [f's_add_u32 s{S_TW}, s{S_BCUR}, s{S_BD}', f'v_add_u32 v{vLin}, s{S_TW}, v{vLinB}'], lo=b0 - NM + 20, hi=b0 - 12,
                    pre=[(f'lin{p}', G - 1, 0) for p in range(2)])
            for n in range(44):
                k = n // 4 + 1
                js = {x // 4 for (a, _, b, _) in ZD[n] for x in (a, b)}
                pre = [(f'co{q}', G, 0) for q in range(4)] + ([('r1', G, LAT)] if 1 in js else []) + ([(f'al{q}', G, 0) for q in range(3)] if 2 in js else [])
                if n:
                    pre.append((f'z{n - 1}', G, 0))
                if k == 5 and n % 4 < 3:
                    pre.append(('or1', G, 0))
                lo = b0 + max(use[k - 4]) if k >= 4 else b0 - NM + max(use[k + 8])
                if k == 1:
                    lo = max(lo, b0 - o.z1lo)
                zc = zops(n)
                if n == 12:
                    zc = [zops(12)[0], zops(13)[0]]
                if n == 13:
                    zc = [zops(12)[1], zops(13)[1]]
                add(f'z{n}', G, zc, lo=lo, hi=b0 + min(use[k]) - 2, pre=pre)
            s1 = slot(1)
            if c == 1:
                add('or1', G, f'v_or3_b32 v{vOr}, v{s1}, v{s1 + 1}, v{s1 + 2}', hi=b0 + 6, pre=[('z2', G, 0), ('blk', G - 2, 0)])
                add('ck', G, [f'v_and_b32 v{vOr}, 0x60006000, v{vOr}', f'v_cmp_ne_u32 s[{S_CHK}:{S_CHK + 1}], 0, v{vOr}'], hi=b0 + 30, pre=[('or1', G, 0)])
            e = b0 + NM
            rdy = lambda t_: b0 + pos(t_, 11) + o.flo
            for r in range(4):
                add(f'f{r}', G, f'v_{"mul" if c == 0 and r == 0 else "fmac"}_f32 v{vAcc}, v{Da + r}, v{Db + r}', lo=min(max(rdy('a'), rdy('b')), e + pos('Lb', 0) - 1), hi=e + pos('Lb', 0) - 1,
                    pre=[(f'f{r - 1}', G, 0) if r else ('f8', G - 1, 0)] + ([('blk', G - 1, 0)] if c == 0 else []))
            for r in range(2):
                add(f'f{4 + r}', G, f'v_add_f32 v{FT + r}, v{Ds + 2 * r}, v{Ds + 2 * r + 1}', lo=min(rdy('S'), e + pos('d', 1) - 1), hi=e + pos('d', 1) - 1,
                    pre=[('f8', G - 1, 0)] + ([('blk', G - 1, 0)] if c == 0 else []))
            for r, (x, y) in enumerate(((Dc, Dc + 1), (FT, Dc + 2), (FT + 1, Dc + 3))):
                add(f'f{6 + r}', G, f'v_fmac_f32 v{vAcc}, v{x}, v{y}', lo=rdy('c'), hi=e + pos('Lc', 0) - 1, pre=[(f'f{5 + r}', G, 0), ('f3', G, 0), ('f4', G, 0)])
            if c == 3:
                for q, x in enumerate(dppred('v_add_f32', vAcc)):
                    add(f'dp{q}', G, x, hi=e + 7 + 2 * q, pre=[(f'dp{q - 1}', G, 2) if q else ('f8', G, 2)])
                add('blk', G, '@BLK', hi=e + 20, pre=[('dp5', G, 1)])
        order = list(items.values())
        gaps = {}
        isv = lambda x: isinstance(x, str) and x.startswith('v_')
        isl = lambda x: isinstance(x, str) and x.startswith('ds_')
        for gp in range(-NM, NG * NM):
            gaps[gp] = []
            uv = ul = 0
            while True:
                cand = []
                for it in order:
                    if it.at is not None or it.lo > gp:
                        continue
                    ok = True
                    for (nm, G, dist) in it.pre:
                        p = items.get((nm, G))
                        if p is None:
                            continue
                        if p.at is None or p.at + dist > gp:
                            ok = False
                            break
                    if not ok:
                        continue
                    cv_, cl_ = sum(map(isv, flat([it.code]))), sum(map(isl, flat([it.code]))) * (o.wcost if it.name == 'wo' else 1)
                    if it.hi > gp and (uv + cv_ > o.gapv or ul + cl_ > o.gapl or uv + ul + cv_ + cl_ > o.gapt) and cv_ + cl_:
                        continue
                    cand.append((it, cv_, cl_))
                if not cand:
                    break
                it, cv_, cl_ = min(cand, key=lambda x: x[0].hi)
                it.at = gp
                uv += cv_; ul += cl_
                gaps[gp].append(it)
        late = [(it.name, it.G, it.at - it.hi) for it in order if it.at is not None and it.at > it.hi and 4 <= it.G < 12]
        print('late items', late)
        sig_ = lambda G0: [[(it.name, it.G - G0) for it in gaps[G0 * NM + m]] for m in range(4 * NM)]
        assert sig_(4) == sig_(8), 'schedule not periodic'
        for f_ in (isv, isl):
            print('gap load', ''.join(str(sum(sum(map(f_, flat([it.code]))) for it in gaps[4 * NM + m])) + ('|' if m % NM == NM - 1 else '') for m in range(4 * NM)))
        keep = lambda c: [x for x in flat([c]) if not (isinstance(x, str) and any(x.startswith(d) for d in o.drop.split(',') if d))]
        prio = lambda p, lab: [f's_cmp_lg_u32 s{S_GRP}, 0', f's_cbranch_scc1 {lab}', f's_setprio {p}', f'{lab}:'] if o.phi else []

        def sstamp():
            if not (o.stamps and o.itst):
                return []
            return [f's_memtime s[{S_ST}:{S_ST + 1}]', f's_add_u32 s{S_C0}, s{S_LOOP}, 20', 's_waitcnt lgkmcnt(0)',
                    f's_mov_b32 m0, s{S_C0}', f'v_writelane_b32 v252, s{S_ST}, m0']

        pcode = []
        for gp in range(-NM, 4 * NM):
            for it in gaps[gp]:
                if it.G >= 4 and not it.name.startswith(('sw', 'wx')):
                    pcode += flat([it.code])
        PFD = o.pfd
        L = ['L_built:'] + self.stamp(10) + [WaitTag(vm_tags=['XB']), f'v_mov_b32 v{vF}, s{S_GRP}', f'ds_add_u32 v{vFA}, v{vF} offset:{F_XB}']
        L += self.tlb2(vZ, vTk) + [f's_add_i32 s{S_EXP}, s{S_T2}, s{S_T3}'] + wait(F_XB, 4) + pcode + pfx_b() + ([] if o.nopf & 16 else pfx_a()) + pfw()
        L += ['s_waitcnt lgkmcnt(0)', 's_barrier'] + (['s_setprio 1'] if o.phi else ['s_setprio 0']) + self.stamp(8)
        L += [wload(m) for m in range(PFD)] + prio(2, 'L_prf') + (['s_mov_b32 s100, 15'] if o.gst else [])
        peel2 = None
        for m in range(NM):
            L += [mfma(m)] + (wload(m + PFD) if m + PFD < NM else [])
            for it in gaps[4 * NM + m]:
                if it.code == '@BLK':
                    L += [f'ds_write_b16 v{vOr}, v{vAcc} offset:{3 * XPI + 7 * 128}']
                    L += self.cleared('L_cclr', vZ, vTk) + xdma(XI, XB1 - XB0) + (pfw() if o.pfp else [])
                    L += [f's_sub_i32 s{S_EXP}, 0, s{S_EXP}', f's_mov_b32 s{S_EXPC}, s{S_EXP}',
                          f's_mov_b32 s{S_PH}, 1', f's_mov_b32 s{S_PREV}, 1', f's_mov_b32 s{S_HALF}, 0']
                    L += [f's_cmp_lg_u32 s{S_WAVE}, 7', 's_cbranch_scc1 L_nw0']
                    peel1 = self.seq(L)
                    peelw = self.seq(w0x)
                    L = ['L_nw0:']
                elif it.G >= 4:
                    L += flat([it.code])
        L += [f'ds_add_u32 v{vFA}, v{vOne} offset:{F_PEEL}', 's_branch L_grp1']
        peel2 = self.seq(L)
        prime = self.seq(['L_prime:'] + [f'v_mov_b32 v{r}, 0' for r in range(D, D + 16)] + [f'v_mov_b32 v{FT}, 0', f'v_mov_b32 v{FT + 1}, 0'] + pcode)
        blk_a = ['L_blk:', f's_cmp_eq_u32 s{S_PREV}, 0', 's_cbranch_scc1 L_blkend',
                 f'v_readlane_b32 s{S_TW}, v{vAcc}, 63', f'v_ldexp_f32 v{vAcc}, v{vAcc}, s{S_EXPC}', f'v_and_b32 v{vAcc}, -2, v{vAcc}',
                 f's_cmp_eq_u32 s{S_PREV}, 2', 's_cbranch_scc1 L_good',
                 f's_cmp_eq_u64 s[{S_CHK}:{S_CHK + 1}], 0', 's_cbranch_scc1 L_slow',
                 f's_bfe_u32 s{S_TW}, s{S_TW}, 0x80017', f's_cmp_eq_u32 s{S_TW}, 255', 's_cbranch_scc1 L_slow',
                 'L_good:', 's_mov_b32 exec_lo, 0', 's_mov_b32 exec_hi, 0x80000000',
                 f'buffer_store_dword v{vAcc}, v{vZ}, {srd(SRD_WS)}, s{S_RC} offen sc1', 's_mov_b64 exec, -1',
                 f's_add_u32 s{S_RC}, s{S_RC}, 32', f's_sub_u32 s{S_LOOP}, s{S_LOOP}, 1', f's_cmp_eq_u32 s{S_LOOP}, 0', 's_cbranch_scc1 L_cin_done']
        blk_a += [f's_cmp_eq_u32 s{S_LOOP}, 1', 's_cbranch_scc1 L_lastnext']
        blk_b = xdma() + [f's_add_u32 s{S_SAMP}, s{S_SAMP}, {8 * 104}', f's_cmp_lg_u32 s{S_LOOP}, s{S_TK}', 's_cbranch_scc1 L_nodma']
        blk_t = [f'v_mov_b32 v{vTk}, 1', 's_mov_b64 exec, 1', f'buffer_atomic_add v{vTk}, v{vZ}, {srd(SRD_WS)}, s{S_ST0} offen sc0',
                 's_mov_b64 exec, -1', f's_mov_b32 s{S_TK}, 8', 's_branch L_nodma',
                 'L_lastnext:', f's_cmp_lt_i32 s{S_DYN}, 0', f's_cselect_b32 s{S_RC}, s{S_RC}, s{S_DYN}']
        hook_a = [f's_cmp_lg_u32 s{S_TK}, 8', 's_cbranch_scc1 L_hk']
        n4 = o.n4
        hook_t = ['s_waitcnt vmcnt(0)', f'v_readfirstlane_b32 s{S_TW}, v{vTk}', f's_mov_b32 s{S_TK}, 0', f's_add_u32 s{S_TW}, s{S_TW}, 1',
                  f's_cmp_ge_u32 s{S_TW}, {56 - n4}', 's_cbranch_scc1 L_hk',
                  f's_add_u32 s{S_LOOP}, s{S_LOOP}, 1', f's_mov_b32 s{S_DYN}, {5 * 2048}',
                  f's_cmp_lt_u32 s{S_TW}, {n4}', 's_cbranch_scc1 L_hkf',
                  f's_add_u32 s{S_TW}, s{S_TW}, {n4}', f's_and_b32 s{S_SAMP}, s{S_TW}, 1', f's_lshr_b32 s{S_TW}, s{S_TW}, 1', f's_mov_b32 s{S_HALF}, 1',
                  f's_lshl_b32 s{S_SAMP}, s{S_SAMP}, 6', f'v_xor_b32 v{vC16}, s{S_SAMP}, v{vC16}',
                  f's_lshl_b32 s{S_SAMP}, s{S_SAMP}, 5', f's_add_u32 s{S_DYN}, s{S_DYN}, s{S_SAMP}',
                  'L_hkf:', f's_add_u32 s{S_TW}, s{S_TW}, 484', f's_lshl_b32 s{S_SAMP}, s{S_TW}, 2', f's_add_u32 s{S_DYN}, s{S_DYN}, s{S_SAMP}',
                  f's_andn2_b32 s{S_SAMP}, s{S_ST0}, 0x3fff', f's_add_u32 s{S_DYN}, s{S_DYN}, s{S_SAMP}',
                  f's_lshr_b32 s{S_SAMP}, s{S_SAMP}, 5', f's_add_u32 s{S_SAMP}, s{S_SAMP}, s{S_TW}', f's_mul_i32 s{S_SAMP}, s{S_SAMP}, 104']
        hook_b = ['L_hk:'] + xidx(adv=False)
        blk_b2 = ['L_nodma:'] + [f's_add_u32 s{S_BCUR}, s{S_BCUR}, s{S_BD}', f's_sub_u32 s{S_BD}, 0, s{S_BD}', f's_mov_b32 s{S_EXPC}, s{S_EXP}', f's_mov_b32 s{S_PH}, 1']
        blk_c = ['L_blkend:', f's_mov_b32 s{S_PREV}, s{S_PH}']
        parts = [[], [], [], [], []]
        cur = self.seq(['L_cin_loop:'])
        for m in range(4 * NM):
            if m == NM:
                parts[3] = cur
                cur = self.seq(['L_grp1:'])
            if m == 2 * NM:
                cur += self.seq([f's_cmp_eq_u32 s{S_LOOP}, s{S_HALF}', 's_cbranch_scc1 L_htail'])
                p4h = list(cur)
            if m == o.hook:
                p4a = cur + self.seq(hook_a)
                p4t = self.seq(hook_t)
                cur = self.seq(hook_b)
            if o.gst and m % NM == 0:
                cur += self.seq([f's_memtime s[{S_ST}:{S_ST + 1}]', 's_add_u32 s100, s100, 1', 's_min_u32 s100, s100, 31', 's_waitcnt lgkmcnt(0)',
                                 's_mov_b32 m0, s100', f'v_writelane_b32 v253, s{S_ST}, m0'])
            if o.phi and m in (0, o.phi):
                cur += self.seq(prio(0 if m else 2, f'L_pr{m}'))
            cur += self.seq([mfma(m % NM)])
            for it in gaps[4 * NM + m]:
                if it.code == '@BLK':
                    parts[0] = cur + self.seq(sstamp() + ['s_waitcnt vmcnt(0)', f's_cmp_le_u32 s{S_LOOP}, {o.pfend}', 's_cbranch_scc1 L_blk'])
                    pfp = self.seq(([] if o.nopf & 16 else pfx_b() + pfx_a()) + pfw())
                    parts[1] = self.seq(blk_a)
                    parts[2] = self.seq(blk_b)
                    pbt = self.seq(blk_t)
                    pb2 = self.seq(blk_b2)
                    cur = self.seq(blk_c)
                else:
                    cur += self.seq(keep(it.code))
        cur += self.seq([f's_cmp_lg_u32 s{S_LOOP}, 1', 's_cbranch_scc1 L_cin_loop'])
        parts[4] = p4a + cur
        p4x = p4a + p4t + cur
        tail = self.seq([it.code for m in range(NM) for it in gaps[4 * NM + m] if it.G == 3 and it.code != '@BLK'] + ['s_branch L_blk'])
        assert o.hook > 2 * NM
        htail = self.seq(['L_htail:'] + [it.code for m in range(NM) for it in gaps[6 * NM + m] if it.G == 5] + dppred('v_add_f32', vAcc)
                         + [f'v_add_u32 v{vRaw}, s{S_BD}, v{vRaw}', 's_branch L_blk'])
        Q = RZ
        rows = [(g, r) for g in range(4) for r in range(8)][:31]
        L = ['L_slow:', f'v_lshlrev_b32 v{FT}, 1, v0', f'v_add_u32 v{FT + 1}, s{S_BCUR}, v{FT}',
             f's_mul_i32 s{S_TW}, s{S_WAVE}, {XBSZ}', f's_add_u32 s{S_TW}, s{S_TW}, {XSP}',
             f'v_add_u32 v{FT}, s{S_TW}, v{FT}', f'v_add_u32 v{vLin}, s{S_TW}, v{vLinB}']
        L += [f'v_subrev_u32 v{vRaw}, s{S_BD}, v{vRaw}'] + wait(F_PEEL, 8)
        L += [f'ds_read_u16 v{Q + n}, v{FT + 1} offset:{g * XPI + r * 128}' for n, (g, r) in enumerate(rows)]
        L += [f'v_lshlrev_b32 v{Q + n}, 16, v{Q + n}' for n in range(31)]
        L += absmax(vAcc, list(range(Q, Q + 31))) + dppred('v_max_u32', vAcc)
        L += [f'v_readlane_b32 s{S_TW}, v{vAcc}, 63', f's_lshr_b32 s{S_TW}, s{S_TW}, 23', f's_sub_i32 s{S_TW}, 134, s{S_TW}',
              f's_min_i32 s{S_TW}, s{S_TW}, 16',
              f's_lshl_b32 s{S_EXPC}, s{S_TW}, 2', f's_sub_i32 s{S_EXPC}, s{S_EXP}, s{S_EXPC}',
              f's_add_i32 s{S_TW}, s{S_TW}, 127', f's_lshl_b32 s{S_TW}, s{S_TW}, 23', f'v_mov_b32 v{Q + 31}, s{S_TW}']
        L += [f'v_mul_f32 v{Q + n}, s{S_TW}, v{Q + n}' for n in range(31)]
        L += [f'ds_write_b16_d16_hi v{FT + 1}, v{Q + n} offset:{g * XPI + r * 128}' for n, (g, r) in enumerate(rows)]
        L += [f'v_mul_f32 v{Q + n}, s{S_TW}, v{Q + n}' for n in range(32)]
        L += [f'ds_write_b16_d16_hi v{FT}, v{Q + n} offset:{g * XPI + r * 128}' for n, (g, r) in enumerate(rows + [(3, 7)])]
        L += [f's_mov_b32 s{S_PREV}, 0', f's_mov_b32 s{S_PH}, 2', 's_waitcnt lgkmcnt(0)', 's_branch L_prime']
        slow = self.seq(L)
        fin_ = self.seq(['L_cin_done:'] + self.stamp(9) + self.stamp_flush() + self.padsig() + ['s_endpgm'])
        rest = parts[3] + parts[4]
        full = parts[0] + pfp + parts[1] + parts[2] + pb2 + rest
        nopf = parts[0] + parts[1] + parts[2] + pbt + pb2 + parts[3] + p4x
        last = parts[0] + parts[1] + pb2 + rest
        redo = lambda pf: parts[1][:10] + slow + prime + parts[0] + (pfp if pf else []) + parts[1][:3] + rest
        end_ = tail + parts[1][:-2] + fin_
        main = peel2 + parts[4] + full + full + parts[0] + pfp + redo(1) + full + nopf + parts[0] + redo(0) + nopf + last + tail + redo(0) + end_
        hl = parts[3] + p4h + htail
        main2 = peel2 + parts[4] + parts[0] + pfp + redo(1) + full + nopf + parts[0] + parts[1] + pb2 + hl + parts[1][:10] + slow + prime + parts[0] + parts[1][:3] + hl + parts[1][:-2] + fin_
        traces = []
        for w in range(8):
            if w < 4:
                k0 = w & 2
                tr = c0 + g0a + cc + g0pf + ch[k0] + ch[k0 + 1] + chb[k0 + 1] + w1a + ([] if k0 else w1b) + w1c
            else:
                tr = c0 + g1a + cc + uc0 + uc
            k = w >> 1
            tr += uph + ch[k] + (u0 if k % 2 == 0 else u1a + (u1b if k == 1 else u1c))
            for mn in (main, main2):
                traces.append(tr + peel1 + (peelw if w == 7 else []) + mn)
        return traces

    def build(self):
        pro = self.prologue()
        d = self.dnn()
        cs = self.cin()
        rm = self.rem()
        self.seq(['L_end:', 's_endpgm'])
        traces = [pro + c for c in d + cs + rm]
        for t in traces:
            resolve_waits(t)
        for _ in range(2):
            for t in traces:
                resolve_hazards(t)
        hdr = open(os.path.join(os.path.dirname(os.path.abspath(__file__)), 'header.txt')).read()
        txt = hdr + f'; @launch grid=(256,1,1) block=(512,1,1) lds={LDS_TOTAL}\n'
        txt += f'''.amdgcn_target "amdgcn-amd-amdhsa--gfx950"
{DOC}.text
.globl {KNAME}
.p2align 8
.type {KNAME},@function
{KNAME}:
'''
        body_ = self.P.emit()
        if 'wsame' in self.opt.dbg:
            body_ = body_.replace(f's_add_u32 s{S_WSOFF}, s{S_WSOFF}, {32 * 3328}', f's_xor_b32 s{S_WSOFF}, s{S_WSOFF}, 0')
        if 'xsame' in self.opt.dbg:
            import re as _re
            body_ = _re.sub(r'v_lshl_add_u32 v(2[4-9]|3[01]), v(1[6-9]), 7', r'v_lshl_add_u32 v\1, v16, 7', body_)
            body_ = _re.sub(r'v_lshl_add_u32 v(2[4-9]|3[01]), v(2[0-3]), 7', r'v_lshl_add_u32 v\1, v20, 7', body_)
            body_ = _re.sub(r'v_lshl_add_u32 v(2[4-9]|3[01]), v(9[6-9]), 7', r'v_lshl_add_u32 v\1, v96, 7', body_)
            body_ = _re.sub(r'v_lshl_add_u32 v(2[4-9]|3[01]), v(10[0-3]), 7', r'v_lshl_add_u32 v\1, v100, 7', body_)
            body_ = body_.replace('offen offset:12\n', 'offen offset:0\n').replace('offen offset:844\n', 'offen offset:832\n')
            body_ = body_.replace(f's_mov_b32 s{S_IDXOFF}, 28', f's_mov_b32 s{S_IDXOFF}, 0').replace(f's_add_u32 s{S_IDXOFF}, s{S_IDXOFF}, 16', 's_nop 0')
        if self.opt.align:
            for lab in ('L_dnn_loop0:', 'L_dnn_loop1:', 'L_cin_loop:', 'L_epi:'):
                pad = '  s_nop 0\n' if self.opt.align > 100 else ''
                body_ = body_.replace(lab + '\n', f'.p2align {self.opt.align % 100}\n{pad}{lab}\n')
        txt += body_
        txt += f'''.section .rodata,"a"
.p2align 6
.amdhsa_kernel {KNAME}
  .amdhsa_next_free_vgpr 256
  .amdhsa_next_free_sgpr 102
  .amdhsa_accum_offset 256
  .amdhsa_group_segment_fixed_size 0
  .amdhsa_kernarg_size 88
  .amdhsa_user_sgpr_count 2
  .amdhsa_user_sgpr_kernarg_segment_ptr 1
  .amdhsa_system_sgpr_workgroup_id_x 1
  .amdhsa_float_denorm_mode_32 {self.opt.denorm}
.end_amdhsa_kernel
'''
        return txt


def main():
    ap = argparse.ArgumentParser()
    ap.add_argument('-o', default='standalone__deep_cross_xdeepfm__recsys.s')
    ap.add_argument('--stamps', action='store_true')
    ap.add_argument('--padat', default='')
    ap.add_argument('--padmin', type=int, default=0)
    ap.add_argument('--nodma', action='store_true')
    ap.add_argument('--cpf', type=int, default=2)
    ap.add_argument('--coop', type=int, default=1)
    ap.add_argument('--coopw', type=int, default=2)
    ap.add_argument('--tbpos', type=int, default=0)
    ap.add_argument('--dbar3', type=int, default=1)
    ap.add_argument('--tlb', type=int, default=0)
    ap.add_argument('--tlb2', type=int, default=1)
    ap.add_argument('--itst', type=int, default=0)
    ap.add_argument('--diag', type=int, default=0)
    ap.add_argument('--dbg', default='')
    ap.add_argument('--lead3', type=int, default=1)
    ap.add_argument('--morder', type=int, default=0)
    ap.add_argument('--etlb', type=int, default=21)
    ap.add_argument('--lateb', type=int, default=0)
    ap.add_argument('--wfl', default='')
    ap.add_argument('--xfl', default='')
    ap.add_argument('--tag', type=int, default=0)
    ap.add_argument('--idxfirst', type=int, default=1)
    ap.add_argument('--bpos', type=int, default=2)
    ap.add_argument('--sigat', type=int, default=4)
    ap.add_argument('--epx', type=int, default=1)
    ap.add_argument('--denorm', type=int, default=3)
    ap.add_argument('--mprio', type=int, default=0)
    ap.add_argument('--swap', type=int, default=0)
    ap.add_argument('--bov', type=int, default=1)
    ap.add_argument('--rfirst', type=int, default=0)
    ap.add_argument('--g1x', type=int, default=0)
    ap.add_argument('--ldsred', type=int, default=0)
    ap.add_argument('--csnake', type=int, default=0)
    ap.add_argument('--cswap', type=int, default=0)
    ap.add_argument('--align', type=int, default=0)
    ap.add_argument('--c2', type=int, default=0)
    ap.add_argument('--d1', type=int, default=0)
    ap.add_argument('--cstr', type=int, default=3)
    ap.add_argument('--bearly', type=int, default=1)
    ap.add_argument('--w2late', type=int, default=1)
    ap.add_argument('--aov', type=int, default=3)
    ap.add_argument('--upos', type=int, default=1)
    ap.add_argument('--calt', type=int, default=1)
    ap.add_argument('--pfpos', type=int, default=1)
    ap.add_argument('--wlate', type=int, default=0)
    ap.add_argument('--dbar2', type=int, default=0)
    ap.add_argument('--dbar', type=int, default=0)
    ap.add_argument('--pfw', type=int, default=1)
    ap.add_argument('--pfx', type=int, default=3)
    ap.add_argument('--pfx0', type=int, default=4)
    ap.add_argument('--pfs', type=int, default=14)
    ap.add_argument('--dcoopx', type=int, default=1)
    ap.add_argument('--dcx0', type=int, default=0)
    ap.add_argument('--dcxpos', type=int, default=-1)
    ap.add_argument('--pfe0', type=int, default=2)
    ap.add_argument('--pfne', type=int, default=14)
    ap.add_argument('--prio47', type=int, default=0)
    ap.add_argument('--lookahead', type=int, default=5)
    ap.add_argument('--nz', type=int, default=6)
    ap.add_argument('--nwf', type=int, default=8)
    ap.add_argument('--hiat', type=int, default=4)
    ap.add_argument('--wmerge', type=int, default=0)
    ap.add_argument('--gapv', type=int, default=2)
    ap.add_argument('--lat', type=int, default=5)
    ap.add_argument('--n4', type=int, default=16)
    ap.add_argument('--tbl', type=int, default=0)
    ap.add_argument('--nopf', type=int, default=16)
    ap.add_argument('--idx1', type=int, default=1)
    ap.add_argument('--sv', type=int, default=1)
    ap.add_argument('--pb', type=int, default=3)
    ap.add_argument('--dpf', type=int, default=0)
    ap.add_argument('--dpn', type=int, default=4)
    ap.add_argument('--mord', type=int, default=0)
    ap.add_argument('--q0', type=int, default=5)
    ap.add_argument('--q1', type=int, default=7)
    ap.add_argument('--u0', type=int, default=8)
    ap.add_argument('--un', type=int, default=26)
    ap.add_argument('--ro', type=int, default=0)
    ap.add_argument('--dfirst', type=int, default=0)
    ap.add_argument('--er0', type=int, default=0)
    ap.add_argument('--er1', type=int, default=0)
    ap.add_argument('--lg0', type=int, default=0)
    ap.add_argument('--fprio', type=int, default=1)
    ap.add_argument('--lite', type=int, default=0)
    ap.add_argument('--pf1', type=int, default=3)
    ap.add_argument('--amp', type=int, default=0)
    ap.add_argument('--ofl', default='')
    ap.add_argument('--uprio', type=int, default=1)
    ap.add_argument('--ccpos', type=int, default=1)
    ap.add_argument('--s1e', type=int, default=9)
    ap.add_argument('--s2e', type=int, default=0)
    ap.add_argument('--shs', type=int, default=256)
    ap.add_argument('--pfp', type=int, default=1)
    ap.add_argument('--epos', type=int, default=0)
    ap.add_argument('--hook', type=int, default=100)
    ap.add_argument('--rrd', type=int, default=11)
    ap.add_argument('--rdrop', default='')
    ap.add_argument('--pfr', type=int, default=4)
    ap.add_argument('--vin', type=int, default=1)
    ap.add_argument('--rstag', type=int, default=1)
    ap.add_argument('--eprio', type=int, default=1)
    ap.add_argument('--nopk', type=int, default=0)
    ap.add_argument('--w1first', type=int, default=0)
    ap.add_argument('--xpos', type=int, default=1)
    ap.add_argument('--z1lo', type=int, default=40)
    ap.add_argument('--pfend', type=int, default=3)
    ap.add_argument('--gst', type=int, default=0)
    ap.add_argument('--gapl', type=int, default=2)
    ap.add_argument('--gapt', type=int, default=2)
    ap.add_argument('--wcost', type=int, default=2)
    ap.add_argument('--bprio', type=int, default=0)
    ap.add_argument('--c1hi', type=int, default=-8)
    ap.add_argument('--c2hi', type=int, default=12)
    ap.add_argument('--rspan', type=int, default=30)
    ap.add_argument('--rlead', type=int, default=14)
    ap.add_argument('--pfd', type=int, default=10)
    ap.add_argument('--mo', type=int, default=3)
    ap.add_argument('--ba', type=int, default=6)
    ap.add_argument('--sig2', type=int, default=4)
    ap.add_argument('--drop', default='')
    ap.add_argument('--al8', type=int, default=4)
    ap.add_argument('--alph', type=int, default=0)
    ap.add_argument('--almm', type=int, default=0)
    ap.add_argument('--phi', type=int, default=110)
    ap.add_argument('--rawlo', type=int, default=8)
    ap.add_argument('--flo', type=int, default=3)
    opt = ap.parse_args()
    resolve_waits.dbg = 'dup' in opt.dbg
    g = Gen(opt)
    txt = g.build()
    if opt.al8:
        import align8
        rg = []
        if opt.al8 & 1:
            rg.append(('L_cin_loop', 'L_slow'))
        if opt.al8 & 2:
            rg += [('L_dnn_loop0', 'L_dnn_h1'), ('L_dnn_loop1', 'L_epi')]
        if opt.al8 & 4:
            rg += [('L_epi', 'L_dpub')]
        txt = align8.align(txt, rg, opt.alph, opt.almm)
    open(opt.o, 'w').write(txt)
    print('wrote', opt.o, len(txt), 'bytes')


if __name__ == '__main__':
    main()
```

```python
import sys, os, struct, argparse
sys.path.insert(0, os.path.dirname(os.path.abspath(__file__)))
from cinplan import ZD, cls
from asmlib import I, WaitTag, Prog, resolve_waits, resolve_hazards

KNAME = 'standalone__deep_cross_xdeepfm__recsys_kernel'
LDS_TOTAL = 163840

XSLOT = 8192
WR = 4 * XSLOT
WP = 640
WSLOT = 32 * WP
L_BIAS = WR + 6 * WSLOT
L_W2 = L_BIAS + WP
RB = L_W2 + WP
assert RB + 2048 <= LDS_TOTAL
RWR = 131072

ASZ = 35264
A1 = 1024
A2 = A1 + ASZ
A3 = A2 + ASZ
UST = 1356
V3OFF = A3 + ASZ
V2OFF = V3OFF + 2048
L_WCO = V2OFF + 1408
L_FLG = L_WCO + 192
RC = L_FLG + 64
XB0 = RC + 512
XPI = 1056
XBSZ = 4 * XPI
XB1 = A3
TA = A1
TC = TA + 11 * 1024
TD = TC + 12 * 1024
TB = A2
XSP = A1
XCH = XB0 + 8 * XBSZ
OOB = 0x100000
NCLR = 56
NPOOL = 224
assert XCH + 8192 <= LDS_TOTAL and XB0 % 16 == 0 and A2 % 16 == 0 and A3 % 16 == 0 and L_WCO % 16 == 0
assert 8 * XBSZ <= ASZ and TD + 11 * 1024 <= A2

S_WAVE = 3
S_IDX, S_TAB, S_CIN, S_WCO, S_W1, S_B1, S_W2, S_BO, S_OUT, S_DBG, S_WS = 4, 6, 8, 10, 12, 14, 16, 18, 20, 22, 24
S_MB, S_R = 26, 27
SRD_IDX, SRD_TAB, SRD_CIN, SRD_WCO, SRD_W, SRD_B1, SRD_W2, SRD_OUT, SRD_WS, SRD_DBG = 28, 32, 36, 40, 44, 48, 52, 56, 60, 64
S_T0, S_T1, S_T2, S_T3 = 68, 69, 70, 71
S_LOOP, S_IDXOFF, S_WSOFF, S_WMB, S_XM0, S_N0, S_C0, S_CW, S_BOUT, S_TW = 72, 73, 74, 75, 76, 77, 78, 79, 80, 81
S_EX = 82
S_GRP, S_RC = 84, 85
S_ST = 86
S_M26, S_MASK = 90, 92
S_SAMP, S_STG, S_STG9, S_TGT = 94, 95, 96, 97
S_M26B = 98
S_GW = 100
S_TAGT = 0
S_TAG = 1
S_PW = 101
S_PX = 77
S_PXE = 73

GELU_C0 = -2.0 * 0.7978845608028654 * 1.4426950408889634
GELU_C1 = GELU_C0 * 0.044715


def f32hex(x):
    return '0x%08x' % struct.unpack('<I', struct.pack('<f', x))[0]


def vr(a, n):
    return f'v[{a}:{a + n - 1}]' if n > 1 else f'v{a}'


def srd(a):
    return f's[{a}:{a + 3}]'


def flat(gs):
    res = []
    for c in gs:
        if isinstance(c, (tuple, list)):
            res += flat(c)
        else:
            res.append(c)
    return res


def interleave(a, b):
    out = []
    ia = ib = 0
    na, nb = len(a), len(b)
    while ia < na or ib < nb:
        if ib >= nb or (ia < na and ia * nb <= ib * na):
            out.append(a[ia]); ia += 1
        else:
            out.append(b[ib]); ib += 1
    return out


assert all((d * 2521) >> 16 == d // 26 for d in range(800))
assert all((d * 10923) >> 16 == d // 6 for d in range(64))
assert all((d * 1561) >> 16 == d // 42 for d in range(176))


DOC = '''; ---------------------------------------------------------------------------------------------
;
;       V3[h,k]  = sum_g wo[52+g] W3[g,h,k]          V2[i,j] = sum_h wo[26+h] W2[h,i,j]
;       U[i,j,k] = sum_h W2[h,i,j] V3[h,k]
;       g1[i]    = wo[i] + sum_j V2[i,j] x_j + sum_jk U[i,j,k] x_j x_k
;   Both quadratic forms use the 351 distinct products x_j x_k (j<=k) with symmetrised weights on fp16 MFMA
;   (fp32 accumulate).  Range is handled with power-of-two scales derived from the data on every launch:
; Work split per group of 512 samples (32 workgroups): 20 workgroups do 128 x 320 tiles of the DNN GEMM,
;   Partial logits go through d_ws (sc1): the 64-column workgroup resets the slots at its start (announced in
;   d_debug), later polls until every slot is filled, adds up and writes d_out.
; ---------------------------------------------------------------------------------------------
'''


class Gen:
    def __init__(self, opt):
        self.opt = opt
        self.P = Prog()
        self.role = 'x'

    def seq(self, lines):
        return [self.P.add(l) for l in flat(lines)]

    def build_srd(self, dst, ptr, size):
        return [f's_mov_b32 s{dst}, s{ptr}', f's_and_b32 s{dst + 1}, s{ptr + 1}, 0xffff',
                f's_mov_b32 s{dst + 2}, {size}', f's_mov_b32 s{dst + 3}, 0x20000']

    def stamp(self, slot):
        if self.opt.padat == f'{self.role}{slot}':
            return [f's_memrealtime s[88:89]', 's_waitcnt lgkmcnt(0)']
        if not self.opt.stamps or (self.opt.lite and f'{self.role}{slot}' not in ('c8', 'c9', 'd2', 'd4', 'r4', 'r5')):
            return []
        return [f's_memtime s[{S_ST}:{S_ST + 1}]', f's_memrealtime s[{S_ST + 2}:{S_ST + 3}]', 's_waitcnt lgkmcnt(0)',
                f'v_writelane_b32 v252, s{S_ST}, {slot}', f'v_writelane_b32 v253, s{S_ST + 2}, {slot}']

    def stamp_flush(self):
        if not self.opt.stamps:
            return []
        L = self.build_srd(SRD_WS, S_WS, 0x10000000)
        L += [f's_lshl_b32 s{S_C0}, s2, 3', f's_add_u32 s{S_C0}, s{S_C0}, s{S_WAVE}',
              f's_lshl_b32 s{S_C0}, s{S_C0}, 8', f's_add_u32 s{S_C0}, s{S_C0}, 0x100000',
              'v_lshlrev_b32 v254, 3, v0', 's_mov_b32 exec_hi, 0',
              f'buffer_store_dwordx2 v[252:253], v254, {srd(SRD_WS)}, s{S_C0} offen', 's_mov_b32 exec_hi, -1']
        return L

    def stamp0(self):
        if not self.opt.stamps:
            return []
        return ['v_mov_b32 v252, 0xcdcdcdcd', 'v_mov_b32 v253, 0xcdcdcdcd',
                f'v_writelane_b32 v252, s{S_ST}, 0', f'v_writelane_b32 v253, s{S_ST + 2}, 0'] + self.stamp(15)

    def tlb2(self, t, vflag):
        L = self.build_srd(SRD_WS, S_WS, 0x10000000) + self.build_srd(SRD_DBG, S_DBG, 256)
        L += [f'v_lshlrev_b32 v{t}, 2, v0',
              ('s_mov_b64 exec, 0xff', f's_mov_b32 s{S_TW}, 0x80000',
               f'buffer_load_dword v255, v{t}, {srd(SRD_WS)}, s{S_TW} offen',
               f'buffer_load_dword v{vflag}, v{t}, {srd(SRD_DBG)}, 0 offen offset:128 sc1',
               's_mov_b64 exec, -1'), f'v_mov_b32 v{t}, 0']
        return L

    def cleared(self, lab, t, vflag):
        chk = [f'v_cmp_eq_u32 vcc, 0, v{vflag}', 's_and_b32 vcc_lo, vcc_lo, 0xff']
        return chk + [f's_cbranch_scc0 {lab}_ok', f's_mov_b32 s{S_C0}, 0x40000',
                f'{lab}:', f's_sub_u32 s{S_C0}, s{S_C0}, 1', f's_cbranch_scc1 {lab}_ok', f'v_lshlrev_b32 v{vflag}, 2, v0', f'v_and_b32 v{vflag}, 31, v{vflag}',
                f'buffer_load_dword v{vflag}, v{vflag}, {srd(SRD_DBG)}, 0 offen offset:128 sc1', 's_waitcnt vmcnt(0)'] + chk + [f's_cbranch_scc1 {lab}', f'{lab}_ok:']

    def padsig(self):
        o = self.opt
        if not o.padat:
            return []
        pre = ['v_mov_b32 v8, 4']
        if (o.padat[0] if o.padat != 'start' else 'd') != self.role:
            return pre
        return pre + [f's_cmp_lg_u32 s{S_WAVE}, 0', 's_cbranch_scc1 L_nosig'] + ([f's_not_b32 s88, s88'] if o.padmin else []) + ['v_mov_b32 v7, s88', 's_mov_b64 exec, 1',
                f'buffer_atomic_umax v7, v8, {srd(SRD_DBG)}, 0 offen', 's_mov_b64 exec, -1', 'L_nosig:']

    def tlb1(self, vtmp, vdst):
        if not self.opt.etlb:
            return self.build_srd(SRD_TAB, S_TAB, 100000 * 128)
        return self.build_srd(SRD_TAB, S_TAB, 100000 * 128) + [
            f'v_mov_b32 v{vtmp}, s{S_BOUT}', f'buffer_load_dword v{vdst}, v{vtmp}, {srd(SRD_TAB)}, 0 offen']

    def prologue(self):
        L = []
        if self.opt.padat == 'start' or self.opt.amp in (1, 2, 3):
            L += ['s_memrealtime s[88:89]']
        elif self.opt.padat:
            L += [f's_mov_b32 s88, {-1 if self.opt.padmin else 0}']
        if self.opt.stamps:
            L += [f's_memtime s[{S_ST}:{S_ST + 1}]', f's_memrealtime s[{S_ST + 2}:{S_ST + 3}]']
        L += ['s_cmp_ge_u32 s2, 256', 's_cbranch_scc1 L_end',
              's_load_dwordx16 s[4:19], s[0:1], 0',
              's_load_dwordx4 s[20:23], s[0:1], 64',
              's_load_dwordx2 s[24:25], s[0:1], 80',
              'v_lshrrev_b32 v1, 6, v0']
        if self.opt.cpf:
            L += [f's_getpc_b64 s[{S_MASK}:{S_MASK + 1}]', 'L_pc:',
                  f's_and_b32 s{S_T0}, s2, 0xf8', f'v_add_u32 v2, s{S_T0}, v1', 'v_lshlrev_b32 v2, 7, v2'] + (['v_and_b32 v3, 1, v0', 'v_lshl_add_u32 v2, v3, 15, v2'] if self.opt.cpf == 2 else []) + [
                  f'v_min_u32 v2, L_end-L_pc, v2',
                  f'v_mov_b32 v3, s{S_MASK + 1}',
                  f'v_add_co_u32 v2, vcc, s{S_MASK}, v2', 'v_addc_co_u32 v3, vcc, 0, v3, vcc',
                  'global_load_dword v255, v[2:3], off']
        L += ['v_and_b32 v0, 63, v0',
              f'v_readfirstlane_b32 s{S_WAVE}, v1',
              f's_and_b32 s{S_T0}, s2, 7', f's_lshl_b32 s{S_T0}, s{S_T0}, 2',
              f's_lshr_b32 s{S_MB}, s2, 6', f's_add_u32 s{S_MB}, s{S_MB}, s{S_T0}',
              f's_bfe_u32 s{S_R}, s2, 0x30003',
              f's_and_b32 s{S_BOUT}, s2, 0xf8', f's_add_u32 s{S_BOUT}, s{S_BOUT}, s{S_WAVE}', f's_lshl_b32 s{S_BOUT}, s{S_BOUT}, {self.opt.etlb}',
              f's_cmp_ge_u32 s{S_R}, 5', 's_cbranch_scc1 L_cin']
        return self.seq(L)

    def gelu(self, groups, TB, KC0, KC1, KONE):
        p2 = lambda r: vr(r, 2)
        L = []
        seen = set()
        for k, vals in enumerate(groups):
            tb = TB + (k % 2) * 16
            V_ = [(x, w, s_, tb + 4 * i_, tb + 4 * i_ + 2) for i_, (x, w, s_) in enumerate(vals)]
            for (x, w, s_, t, u) in V_:
                L.append(f'v_pk_mul_f32 {p2(t)}, {p2(x)}, {p2(x)}')
            for (x, w, s_, t, u) in V_:
                L.append(f'v_pk_fma_f32 {p2(t)}, {p2(t)}, {p2(KC1)}, {p2(KC0)}')
            for (x, w, s_, t, u) in V_:
                L.append(f'v_pk_mul_f32 {p2(t)}, {p2(t)}, {p2(x)}')
            for (x, w, s_, t, u) in V_:
                L += [f'v_exp_f32 v{t}, v{t}', f'v_exp_f32 v{t + 1}, v{t + 1}']
            for (x, w, s_, t, u) in V_:
                L.append(f'v_pk_fma_f32 {p2(t)}, {p2(t)}, {p2(w)}, {p2(w)}')
            for (x, w, s_, t, u) in V_:
                L += [f'v_rcp_f32 v{t}, v{t}', f'v_rcp_f32 v{t + 1}, v{t + 1}']
            for (x, w, s_, t, u) in V_:
                if s_ in seen:
                    L.append(f'v_pk_fma_f32 {p2(s_)}, {p2(t)}, {p2(x)}, {p2(s_)}')
                else:
                    L.append(f'v_pk_mul_f32 {p2(s_)}, {p2(t)}, {p2(x)}')
                    seen.add(s_)
        if self.opt.nopk:
            import re as _re
            L2 = []
            for x in L:
                if x.startswith('v_pk_'):
                    mn = x.split()[0].replace('v_pk_', 'v_')
                    rs = [int(r) for r in _re.findall(r'v\[(\d+):', x)]
                    L2 += [f'{mn} ' + ', '.join(f'v{r + h}' for r in rs) for h in range(2)]
                else:
                    L2.append(x)
            L = L2
        return L

    def red4(self, SUMP):
        sm = lambda tm: SUMP + 2 * tm
        L = [f'v_add_f32 v{sm(tm)}, v{sm(tm)}, v{sm(tm) + 1}' for tm in range(4)]
        L += [f'v_permlane32_swap_b32 v{sm(tm)}, v{sm(tm + 2)}' for tm in range(2)]
        L += [f'v_add_f32 v{sm(tm)}, v{sm(tm)}, v{sm(tm + 2)}' for tm in range(2)]
        L += [f'v_permlane16_swap_b32 v{sm(0)}, v{sm(1)}', f'v_add_f32 v{sm(0)}, v{sm(0)}, v{sm(1)}']
        return L

    def kconst(self, KC0, KC1, KONE):
        return [f'v_mov_b32 v{KC0}, {f32hex(GELU_C0)}', f'v_mov_b32 v{KC0 + 1}, {f32hex(GELU_C0)}',
                f'v_mov_b32 v{KC1}, {f32hex(GELU_C1)}', f'v_mov_b32 v{KC1 + 1}, {f32hex(GELU_C1)}',
                f'v_mov_b32 v{KONE}, 0x71800000']

    def winv(self, R, n, KONE):
        return [f'v_rcp_f32 v{R + k}, v{R + k}' for k in range(n)] + [f'v_med3_f32 v{R + k}, v{R + k}, -v{KONE}, v{KONE}' for k in range(n)]

    def dnn(self):
        o = self.opt
        self.role = 'd'
        vW = [[1, 2, 3, 4, 5], [6, 7, 8, 9, 10]]
        vX = [11, 12]
        vIdxOff, vCh = 13, [14, 15]
        ST = [[16, 20], [24, 240]]
        VO = [28, 34]
        vWD = [29, 30, 31, 32, 33]
        vP, vPc, vBL = 35, 36, 37
        WF = 40
        XA = 80
        T = 112
        W2F = 112
        ACC = 140
        PK = 220
        SUMP, KC0, KC1, KONE = 16, 232, 234, 236

        def acc(tn, tm):
            return ACC + (tn * 4 + tm) * 4

        HH, SL = S_T0, S_T1
        g, i4, q = T + 18, T + 19, T + 20
        PI, vCW = T + 8, T + 12
        nr = o.coopw
        L = [f's_mul_i32 s{S_N0}, s{S_R}, {WP}',
             f's_mul_i32 s{S_T2}, s{S_WAVE}, 7', f'v_min_u32 v{q}, 6, v0', f'v_add_u32 v{q}, s{S_T2}, v{q}', f'v_min_u32 v{q}, 51, v{q}',
             f'v_lshrrev_b32 v{g}, 1, v{q}', f'v_mul_u32_u24 v{g}, 96, v{g}', f'v_lshl_add_u32 v{q}, v{q}, 2, v{g}',
             f's_mul_i32 s{S_C0}, s{S_R}, 26', f's_min_u32 s{S_C0}, s{S_C0}, 102', f's_lshl_b32 s{S_T3}, s{S_MB}, 7',
             f's_add_u32 s{S_C0}, s{S_C0}, s{S_T3}', f's_mul_i32 s{S_C0}, s{S_C0}, 104',
             f's_and_b32 s{S_T2}, s{S_MB}, 3', f's_lshl_b32 s{S_T2}, s{S_T2}, 3', f's_add_u32 s{S_T2}, s{S_T2}, s{S_WAVE}',
             f's_mul_i32 s{S_T2}, s{S_T2}, 3328', f's_add_u32 s{S_TW}, s{S_T2}, s{S_N0}',
             f'v_min_u32 v{vCW}, {8 * nr - 1}, v0', f'v_lshrrev_b32 v{g}, 3, v{vCW}', f's_mov_b32 s{S_T2}, {32 * 3328}',
             f'v_mul_u32_u24 v{g}, s{S_T2}, v{g}',
             f'v_and_b32 v{vCW}, 7, v{vCW}', f'v_min_u32 v{vCW}, 4, v{vCW}', f'v_lshl_add_u32 v{vCW}, v{vCW}, 7, v{g}',
             f's_xor_b32 s{S_T2}, s{S_WAVE}, 4', f's_lshl_b32 s{S_T2}, s{S_T2}, 4', f's_add_u32 s{S_T2}, s{S_T2}, s{S_T3}',
              f'v_lshrrev_b32 v{T + 16}, 3, v0', f'v_add_u32 v{T + 16}, s{S_T2}, v{T + 16}',
              f'v_mul_u32_u24 v{vIdxOff}, 104, v{T + 16}',
             's_waitcnt lgkmcnt(0)']
        L += self.build_srd(SRD_IDX, S_IDX, 4096 * 104)
        own = [f'buffer_load_dwordx2 {vr(T + 4 * pc, 2)}, v{vIdxOff}, {srd(SRD_IDX)}, 0 offen offset:{pc * 832}' for pc in range(2)]
        L += (own if o.idx1 == 2 else []) + [f'buffer_load_dwordx3 {vr(PI, 3)}, v{q}, {srd(SRD_IDX)}, s{S_C0} offen'] + (own if o.idx1 == 1 else [])
        L += self.tlb1(T + 24, 255)
        vec = lambda dst, sr: [f's_mov_b32 m0, {dst}', 's_mov_b32 exec_hi, 0xff',
                               I(f'buffer_load_dwordx4 v{vBL}, {srd(sr)}, s{S_N0} offen lds', tag='BIAS'), 's_mov_b64 exec, -1']
        L += [f'v_lshlrev_b32 v{vBL}, 4, v0'] + self.build_srd(SRD_B1, S_B1, 3328)
        L += self.build_srd(SRD_W, S_W1, 1664 * 3328)
        L += [f'buffer_load_dword v255, v{vCW}, {srd(SRD_W)}, s{S_TW} offen']
        dpf = [f's_mul_i32 s{S_TW}, s{S_MB}, 5', f's_add_u32 s{S_TW}, s{S_TW}, s{S_R}', f's_lshl_b32 s{S_TW}, s{S_TW}, 3', f's_add_u32 s{S_TW}, s{S_TW}, s{S_WAVE}',
               f's_add_u32 s{S_TW}, s{S_TW}, {2 * 832}', f's_lshl_b32 s{S_TW}, s{S_TW}, 7', f'v_min_u32 v{vCW}, {o.dpn - 1}, v0', f'v_mul_u32_u24 v{vCW}, {1280 * 128}, v{vCW}',
               f'buffer_load_dword v255, v{vCW}, {srd(SRD_W)}, s{S_TW} offen']
        L += vec(L_BIAS, SRD_B1) + (dpf if o.dpf == 1 else [])
        L += self.stamp0()
        L += [f's_lshr_b32 s{HH}, s{S_WAVE}, 2', f's_and_b32 s{SL}, s{S_WAVE}, 3',
              f's_mov_b32 s{S_T2}, 1639', f's_and_b32 s{S_C0}, s{SL}, 1', f's_lshl_b32 s{S_C0}, s{S_C0}, 2',
              f's_mov_b32 s{S_TW}, 3328', f'v_mov_b32 v{T + 16}, v0']
        for u in range(5):
            ci, rr = T + 16, T + 17
            L += [f'v_mul_u32_u24 v{rr}, s{S_T2}, v{ci}', f'v_lshrrev_b32 v{rr}, 16, v{rr}',
                  f'v_mul_u32_u24 v{q}, 40, v{rr}', f'v_sub_u32 v{q}, v{ci}, v{q}',
                  f'v_and_b32 v{i4}, 2, v{rr}', f'v_or_b32 v{i4}, s{S_C0}, v{i4}', f'v_xor_b32 v{q}, v{q}, v{i4}',
                  f'v_mul_u32_u24 v{rr}, s{S_TW}, v{rr}', f'v_lshl_add_u32 v{vWD[u]}, v{q}, 4, v{rr}']
            if u % 4:
                L += [f'v_subrev_u32 v{vWD[u]}, {1024 * u}, v{vWD[u]}']
            if u < 4:
                L += [f'v_add_u32 v{ci}, 64, v{ci}']
        L += [f's_mul_i32 s{S_T2}, s{S_WAVE}, {8 * 3328}', f's_add_u32 s{S_WSOFF}, s{S_T2}, s{S_N0}',
              f's_mul_i32 s{S_WMB}, s{S_WAVE}, {8 * WP}', f's_add_u32 s{S_WMB}, s{S_WMB}, {WR}',
              f's_lshl_b32 s{S_T3}, s{HH}, 14', f's_lshl_b32 s{S_XM0}, s{SL}, 11', f's_add_u32 s{S_XM0}, s{S_XM0}, s{S_T3}', f's_xor_b32 s{S_XM0}, s{S_XM0}, {2 * XSLOT}',
              f'v_and_b32 v{q}, 7, v0', f'v_lshrrev_b32 v{g}, 4, v0',
              f'v_xor_b32 v{q}, v{q}, v{g}', f'v_lshlrev_b32 v{vCh[0]}, 4, v{q}',
              f'v_xor_b32 v{vCh[1]}, 64, v{vCh[0]}',
              f'v_and_b32 v{q}, 15, v0', f'v_lshlrev_b32 v{q}, 7, v{q}',
              f'v_bfe_u32 v{i4}, v0, 1, 3', f'v_xor_b32 v{i4}, v{i4}, v{g}', f'v_lshl_add_u32 v{q}, v{i4}, 4, v{q}',
              f'v_add_u32 v{vX[0]}, s{S_T3}, v{q}', f'v_xor_b32 v{vX[1]}, 64, v{vX[0]}']
        L += self.build_srd(SRD_W2, S_W2, 3328)
        L += [f's_mul_i32 s{S_T3}, s{SL}, 5',
              f'v_bfe_u32 v{i4}, v0, 2, 2', f'v_lshl_add_u32 v{q}, v{g}, 3, v{i4}', f'v_mul_u32_u24 v{q}, {WP}, v{q}',
              f'v_and_b32 v{i4}, 3, v0', f'v_lshl_add_u32 v{q}, v{i4}, 3, v{q}', f'v_add_u32 v{q}, {WR}, v{q}',
              f'v_bfe_u32 v{i4}, v0, 3, 2']
        for i in range(5):
            L += [f'v_xor_b32 v{T + 16}, s{S_T3}, v{i4}', f'v_lshl_add_u32 v{vW[0][i]}, v{T + 16}, 5, v{q}',
                  f'v_add_u32 v{vW[1][i]}, {3 * WSLOT}, v{vW[0][i]}', f's_add_u32 s{S_T3}, s{S_T3}, 1']
        L += [f's_mul_i32 s{S_T3}, s{SL}, 160', f's_add_u32 s{S_T3}, s{S_T3}, {L_BIAS}',
              f'v_lshlrev_b32 v{q}, 3, v{g}', f'v_add_u32 v{vP}, s{S_T3}, v{q}',
              f's_lshl_b32 s{S_T2}, s{SL}, 1', f's_add_u32 s{S_T2}, s{S_T2}, s{HH}', f's_lshl_b32 s{S_T2}, s{S_T2}, 8', f's_add_u32 s{S_T2}, s{S_T2}, {RB}',
              f'v_lshlrev_b32 v{vPc}, 2, v0', f'v_add_u32 v{vPc}, s{S_T2}, v{vPc}']

        def wld(u):
            return I(f'buffer_load_dwordx4 v{vWD[u]}, {srd(SRD_W)}, s{S_WSOFF} offen offset:{1024 * (u % 4)} lds', tag='W')

        def wst(stage):
            return [(f's_add_u32 m0, s{S_WMB}, {(stage % 3) * 2 * WSLOT}', wld(0)), (wld(1),), (wld(2),), (wld(3),),
                    ('s_add_u32 m0, m0, 4096', wld(4), f's_add_u32 s{S_WSOFF}, s{S_WSOFF}, {64 * 3328}')]

        def xld(v, m0, tag='X'):
            return (m0, I(f'buffer_load_dwordx4 v{v}, {srd(SRD_TAB)}, 0 offen lds', tag=tag))
        pkreads = lambda off: [f'ds_read_b64 {vr(PK + 2 * tn, 2)}, v{vP} offset:{off + 32 * tn}' for tn in range(5)]

        def unp(dst):
            c = []
            for tn in range(5):
                for d in range(2):
                    c += [f'v_lshlrev_b32 v{dst(tn) + 2 * d}, 16, v{PK + 2 * tn + d}', f'v_and_b32 v{dst(tn) + 2 * d + 1}, 0xffff0000, v{PK + 2 * tn + d}']
            return c

        def reads(st):
            def rdw(tn):
                c = []
                for par in range(2):
                    sl = (st % 3) * 2 + par
                    c += [f'ds_read_b64_tr_b16 {vr(WF + 8 * tn + 4 * par + 2 * rd, 2)}, v{vW[sl // 3][tn]} offset:{(sl % 3) * WSLOT + rd * 4 * WP}' for rd in range(2)]
                return c
            rdx = [f'ds_read_b128 {vr(XA + 8 * tm + 4 * par, 4)}, v{vX[par]} offset:{(st % 2) * XSLOT + tm * 2048}' for tm in range(4) for par in range(2)]
            return rdw(0) + rdw(1) + rdw(2) + rdw(3) + rdx + rdw(4) if o.ro == 0 else rdw(0) + rdx + rdw(1) + rdw(2) + rdw(3) + rdw(4)

        def xst(src, f, tag='X'):
            vo = lambda pc: (f'v_lshl_add_u32 v{VO[pc]}, v{src(pc)}, 7, v{vCh[pc]}',)
            return [vo(1) + vo(0) + xld(VO[0], f's_add_u32 m0, s{S_XM0}, {(f % 2) * XSLOT}', tag), xld(VO[1], 's_add_u32 m0, m0, 1024', tag)]
        idxl = lambda k: [f'buffer_load_dwordx3 {vr(ST[k][pc], 3)}, v{vIdxOff}, {srd(SRD_IDX)}, s{S_IDXOFF} offen offset:{pc * 832}' for pc in range(2)] + [f's_add_u32 s{S_IDXOFF}, s{S_IDXOFF}, 12']

        tA = [f'buffer_load_dword v255, v{PI}, {srd(SRD_TAB)}, 0 offen']
        tB = [f'v_lshlrev_b32 v{PI + 2}, 7, v{PI + 2}', f'buffer_load_dword v255, v{PI + 2}, {srd(SRD_TAB)}, 0 offen']
        ini = [WaitTag(vm_tags=['BIAS'])] + pkreads(0) + unp(lambda tn: acc(tn, 0))
        ini += [f'v_mov_b64 {vr(acc(tn, tm) + 2 * d, 2)}, {vr(acc(tn, 0) + 2 * d, 2)}' for tn in range(5) for tm in range(1, 4) for d in range(2)]
        x0 = xst(lambda pc: T + 4 * pc, 0, 'X0')
        tBl = []
        if o.tbl:
            tBl, tB = tB, []
        b1 = ['s_barrier'] if o.pb & 1 else []
        b2 = ['s_barrier'] if o.pb & 2 else []
        sh = [f'v_lshlrev_b32 v{PI}, 7, v{PI}']
        if o.sv == 0:
            L += sh + (own if not o.idx1 else []) + b1 + tA + tB + self.stamp(6) + wst(0) + ini + x0 + self.stamp(7) + b2
        elif o.sv == 1:
            L += wst(0) + sh + (own if not o.idx1 else []) + b1 + tA + self.stamp(6) + x0 + tB + b2 + ini + self.stamp(7)
        elif o.sv == 2:
            L += sh + (own if not o.idx1 else []) + b1 + tA + self.stamp(6) + x0 + wst(0) + tB + b2 + ini + self.stamp(7)
        elif o.sv == 3:
            L += wst(0) + (own if not o.idx1 else []) + x0 + self.stamp(6) + sh + tA + tB + b2 + ini + self.stamp(7)
        L += [f's_lshl_b32 s{S_IDXOFF}, s{HH}, 2', f's_add_u32 s{S_IDXOFF}, s{S_IDXOFF}, 4'] + idxl(0)
        L += [f's_mov_b32 s{S_LOOP}, 0', f's_cmp_lg_u32 s{HH}, 0', 's_cbranch_scc1 L_dnn_h1']
        pro = self.seq(L)

        def mf(tn, tm, par):
            a = acc(tn, tm)
            return f'v_mfma_f32_16x16x32_bf16 {vr(a, 4)}, {vr(WF + 8 * tn + 4 * par, 4)}, {vr(XA + 8 * tm + 4 * par, 4)}, {vr(a, 4)}'
        MM = [mf(tn, j if tn % 2 == 0 else 3 - j, par) for tn in range(5) for j in range(4) for par in range(2)]
        kb = o.bov
        wi = self.winv(W2F, 20, KONE)
        trs = []
        for half in range(2):
            def fill(st, w=True, x=True, extra=(), rextra=()):
                D_ = (wst(st + 2) if w else []) + (xst(lambda pc: ST[(st // 3) % 2][pc] + st % 3, st + 1 + half) if x else [])
                return interleave(reads(st) + list(rextra), D_) + list(extra)

            def M(V=(), b=True, last=False, nw=5):
                gp = [[] for _ in MM]
                V = list(V)
                n_ = len(MM) - kb - 1
                for k, x in enumerate(V):
                    gp[k * n_ // len(V)].append(x)
                m = [(x,) + tuple(y) for x, y in zip(MM, gp)]
                return ['s_setprio 0'] * b + m[:len(m) - kb] + (['s_setprio 2'] + ([WaitTag(allbut=('W', nw))] if half == 0 else []) + ['s_barrier'] if b else []) + m[len(m) - kb:] + ['s_setprio 0'] * last
            wF = lambda nw=5, nx=2: [WaitTag(vm_tags=['X0'], allbut=('X', nx), lgkm0=True)] + ([WaitTag(allbut=('W', nw))] if half else []) + ['s_barrier']
            L = [f'L_dnn_h{half}:']
            pre = (xst(lambda pc: T + 4 * pc + 1, 1) if half else []) + wst(1) + tBl + idxl(1)
            if half == 0:
                L += pre[:o.q0] + [WaitTag(allbut=('W', min(o.q0, 5)), lgkm0=True)] + self.stamp(1) + ['s_barrier'] + self.stamp(2) + pre[o.q0:]
            else:
                L += pre[:o.q1] + [WaitTag(allbut=('W', max(0, min(o.q1 - 2, 5)))), WaitTag(vm_tags=['X0'], lgkm0=True)] + self.stamp(1) + ['s_barrier'] + self.stamp(2) + pre[o.q1:] + ['s_barrier']
            th = pro + self.seq(L)
            L = [f'L_dnn_loop{half}:']
            for st in range(6):
                ex = []
                if st % 3 == 2:
                    ex += idxl(st // 3)
                if st == 4 and half == 1:
                    ex += [tuple(vec(L_W2, SRD_W2))]
                if o.padat.startswith('dl') and int(o.padat[2:]) % 6 == st:
                    ex += [('s_memrealtime s[86:87]', 's_waitcnt lgkmcnt(0)', f's_cmp_eq_u32 s{S_LOOP}, {int(o.padat[2:]) // 6}', 's_cselect_b32 s88, s86, s88')]
                if o.stamps and o.itst == 2 and st % 2:
                    ex += [(f's_memtime s[{S_ST}:{S_ST + 1}]', f's_memrealtime s[{S_ST + 2}:{S_ST + 3}]', f's_mul_i32 s{S_TW}, s{S_LOOP}, 3', f's_add_u32 s{S_TW}, s{S_TW}, {8 + st // 2}',
                           f's_min_u32 s{S_TW}, s{S_TW}, 14', 's_waitcnt lgkmcnt(0)',
                           f's_mov_b32 m0, s{S_TW}', f'v_writelane_b32 v252, s{S_ST}, m0', f'v_writelane_b32 v253, s{S_ST + 2}, m0')]
                if o.stamps and o.itst == 1 and st in (1, 4):
                    ex += [(f's_memtime s[{S_ST}:{S_ST + 1}]', f's_memrealtime s[{S_ST + 2}:{S_ST + 3}]', f's_lshl_b32 s{S_TW}, s{S_LOOP}, 1', f's_add_u32 s{S_TW}, s{S_TW}, {6 + st // 3}',
                           f's_max_u32 s{S_TW}, s{S_TW}, 8', 's_waitcnt lgkmcnt(0)',
                           f's_mov_b32 m0, s{S_TW}', f'v_writelane_b32 v252, s{S_ST}, m0', f'v_writelane_b32 v253, s{S_ST + 2}, m0')]
                L += fill(st, extra=ex) + wF() + M([f's_add_u32 s{S_LOOP}, s{S_LOOP}, 1', f's_cmp_lt_u32 s{S_LOOP}, 4'] if st == 5 else [])
            L += [f's_cbranch_scc1 L_dnn_loop{half}']
            body = self.seq(L)
            th += body * 3
            L = fill(24, w=False, x=half == 0, rextra=pkreads(WP), extra=self.tlb2(VO[0], vBL) if half == 0 else []) + wF(0, 2 - 2 * half)
            L += M(self.kconst(KC0, KC1, KONE) + unp(lambda tn: W2F + 4 * tn) + wi[:14], nw=0)
            L += fill(25, w=False, x=False) + wF(0, 0) + M(wi[14:], b=half == 0, last=True)
            if half == 0:
                L += ['s_branch L_epi']
            trs.append(th + self.seq(L))
        p2 = lambda r: vr(r, 2)
        el = lambda tn, tm, d: (acc(tn, tm) + 2 * d, W2F + 4 * tn + 2 * d, SUMP + 2 * tm)
        L = ['L_epi:'] + self.stamp(3)
        L += [f's_lshl_b32 s{S_T1}, s{S_R}, 11', f's_and_b32 s{S_T3}, s{S_MB}, 3', f's_lshl_b32 s{S_T3}, s{S_T3}, 9', f's_add_u32 s{S_T1}, s{S_T1}, s{S_T3}',
              f's_lshr_b32 s{S_T0}, s{S_MB}, 2', f's_lshl_b32 s{S_T0}, s{S_T0}, 14', f's_add_u32 s{S_T1}, s{S_T1}, s{S_T0}',
              'v_lshlrev_b32 v3, 3, v0', f'v_add_u32 v2, {RB}, v3']
        L += self.gelu([[el(tn, tm, d) for tm in range(4)] for tn in range(5) for d in range(2)], WF, KC0, KC1, KONE)
        L += self.red4(SUMP) + [f'ds_write_b32 v{vPc}, v{SUMP}', 's_waitcnt lgkmcnt(0)'] + self.stamp(4) + self.stamp_flush()
        L += [f's_cmp_eq_u32 s{S_WAVE}, 0', 's_cbranch_scc1 L_dpub']
        tr = self.seq(L)
        self.seq(['s_barrier', 's_endpgm'])
        A = 64
        L = ['L_dpub:'] + self.build_srd(SRD_WS, S_WS, 0x10000000) + self.build_srd(SRD_DBG, S_DBG, 256) + self.cleared('L_dclr', 4, vBL) + ['s_barrier'] + self.stamp(17)
        L += [f'ds_read_b64 {vr(A + 2 * qq, 2)}, v2 offset:{qq * 512}' for qq in range(4)]
        L += [f'v_pk_add_f32 {p2(A)}, {p2(A)}, {p2(A + 2)}', f'v_pk_add_f32 {p2(A + 4)}, {p2(A + 4)}, {p2(A + 6)}', f'v_pk_add_f32 {p2(A)}, {p2(A)}, {p2(A + 4)}',
              f'v_and_b32 v{A}, -2, v{A}', f'v_and_b32 v{A + 1}, -2, v{A + 1}',
              f'buffer_store_dwordx2 {vr(A, 2)}, v3, {srd(SRD_WS)}, s{S_T1} offen sc1'] + self.padsig() + ['s_endpgm']
        return [trs[0] + tr + self.seq(L), trs[1] + tr]

    def rem(self):
        o = self.opt
        self.role = 'r'
        vW = [1, 2, 7, 8]
        vX = [11, 12]
        vWD, vCh, vT, VO = 13, [14, 15], 9, 24
        SUMP = 16
        IDX = 32
        XA, WF = 64, 96
        ACC = 160
        W2F, BF = 96, 112
        PK = 224
        KC0, KC1, KONE = 240, 242, 244
        g, i4, q = 246, 247, 248
        S_F = S_IDXOFF
        acc = lambda tn, tm: ACC + (tn * 4 + tm) * 4
        L = ['L_rem:'] + (['s_memrealtime s[82:83]'] if o.amp == 4 else []) + [f's_lshr_b32 s{S_GRP}, s{S_WAVE}, 2', f's_and_b32 s{S_T0}, s2, 7', f's_lshl_b32 s{S_T0}, s{S_T0}, 3', f's_add_u32 s{S_T0}, s{S_T0}, s{S_WAVE}',
             f's_mul_i32 s{S_T0}, s{S_T0}, {64 * 104}', f's_lshl_b32 s{S_XM0}, s{S_WAVE}, 14',
             f'v_lshlrev_b32 v{q}, 4, v0', f'v_lshrrev_b32 v{g}, 4, v0',
             f'v_lshrrev_b32 v{i4}, 3, v0', f'v_mul_u32_u24 v{vWD}, 3328, v{i4}', f'v_and_b32 v{i4}, 2, v{i4}',
             f's_and_b32 s{S_T1}, s{S_WAVE}, 1', f's_lshl_b32 s{S_T1}, s{S_T1}, 2', f'v_or_b32 v{i4}, s{S_T1}, v{i4}',
             f'v_and_b32 v{vT}, 7, v0', f'v_xor_b32 v{i4}, v{i4}, v{vT}', f'v_lshl_add_u32 v{vWD}, v{i4}, 4, v{vWD}',
             f's_mul_i32 s{S_WSOFF}, s{S_WAVE}, {8 * 3328}', f's_add_u32 s{S_WSOFF}, s{S_WSOFF}, 3200',
             f's_lshl_b32 s{S_WMB}, s{S_WAVE}, 10', f's_add_u32 s{S_WMB}, s{S_WMB}, {RWR}',
             's_waitcnt lgkmcnt(0)']
        L += self.build_srd(SRD_IDX, S_IDX, 4096 * 104)
        for u in range(7):
            L += [f's_add_u32 m0, s{S_XM0}, {8192 + u * 1024}', I(f'buffer_load_dwordx4 v{q}, {srd(SRD_IDX)}, s{S_T0} offen lds', tag='I'),
                  f's_add_u32 s{S_T0}, s{S_T0}, 1024']
        L += self.build_srd(SRD_W, S_W1, 1664 * 3328)
        wld = lambda slot: [f's_add_u32 m0, s{S_WMB}, {slot * 8192}', I(f'buffer_load_dwordx4 v{vWD}, {srd(SRD_W)}, s{S_WSOFF} offen lds', tag='W'),
                            f's_add_u32 s{S_WSOFF}, s{S_WSOFF}, {64 * 3328}']
        L += wld(0)
        L += self.build_srd(SRD_WS, S_WS, 0x10000000) + self.build_srd(SRD_DBG, S_DBG, 256) + [f'v_mov_b32 v{XA + k}, -1' for k in range(4)]
        L += [f's_and_b32 s{S_T2}, s2, 7', f's_lshl_b32 s{S_T0}, s{S_T2}, 3', f's_add_u32 s{S_T0}, s{S_T0}, s{S_WAVE}', f's_lshl_b32 s{S_T0}, s{S_T0}, 11', f's_lshl_b32 s{S_T2}, s{S_T2}, 2',
              f'buffer_store_dwordx4 {vr(XA, 4)}, v{q}, {srd(SRD_WS)}, s{S_T0} offen sc1',
              f'buffer_store_dwordx4 {vr(XA, 4)}, v{q}, {srd(SRD_WS)}, s{S_T0} offen offset:1024 sc1']
        L += self.build_srd(SRD_B1, S_B1, 3328) + self.build_srd(SRD_W2, S_W2, 3328) + self.build_srd(SRD_TAB, S_TAB, 100000 * 128)
        L += self.stamp0()
        L += [f'v_xor_b32 v{q}, v{vT}, v{g}', f'v_lshlrev_b32 v{vCh[0]}, 4, v{q}', f'v_xor_b32 v{vCh[1]}, 64, v{vCh[0]}',
              f'v_bfe_u32 v{i4}, v0, 2, 2', f'v_lshl_add_u32 v{q}, v{g}, 3, v{i4}', f'v_lshlrev_b32 v{q}, 7, v{q}',
              f'v_and_b32 v{i4}, 3, v0', f'v_lshl_add_u32 v{q}, v{i4}, 3, v{q}', f'v_add_u32 v{q}, {RWR}, v{q}',
              f'v_bfe_u32 v{i4}, v0, 3, 2', f'v_lshl_add_u32 v{vW[0]}, v{i4}, 5, v{q}']
        L += [f'v_xor_b32 v{vW[i]}, {32 * i}, v{vW[0]}' for i in range(1, 4)]
        L += [f'v_and_b32 v{q}, 15, v0', f'v_lshlrev_b32 v{q}, 7, v{q}',
              f'v_bfe_u32 v{i4}, v0, 1, 3', f'v_xor_b32 v{i4}, v{i4}, v{g}', f'v_lshl_add_u32 v{q}, v{i4}, 4, v{q}',
              f'v_add_u32 v{vX[0]}, s{S_XM0}, v{q}', f'v_xor_b32 v{vX[1]}, 64, v{vX[0]}',
              f'v_lshrrev_b32 v{i4}, 3, v0', f'v_lshl_add_u32 v{q}, v{vT}, 3, v{i4}', f'v_mul_u32_u24 v{q}, 104, v{q}', f'v_add_u32 v{q}, s{S_XM0}, v{q}']
        L += self.kconst(KC0, KC1, KONE) + [f'v_mov_b32 v{r}, 0' for r in range(ACC, ACC + 64)] + ['s_waitcnt vmcnt(0)']
        L += [f'ds_read_b64 {vr(IDX + 2 * k, 2)}, v{q} offset:{8192 + 8 * k}' for k in range(13)]

        def xld(src, slot, h=None):
            c = [tuple(f'v_add_u32_dpp v{VO + pc}, v{src}, v{vCh[pc % 2]} row_newbcast:{8 * hh + pc} row_mask:0xf bank_mask:{hex(3 << (2 * hh))}'
                       for hh in range(2) for pc in range(4 * k, 4 * k + 4)) for k in range(2)]
            d = [(f's_add_u32 m0, s{S_XM0}, {slot * 8192 + pc * 1024}',
                  I(f'buffer_load_dwordx4 v{VO + pc}, {srd(SRD_TAB)}, 0 offen lds', tag='X')) for pc in range(8)]
            return c[:1] + d[:4] + c[1:] + d[4:] if h is None else c[h:h + 1] + d[4 * h:4 * h + 4]
        L += [f'v_mov_b32 v{VO + pc}, 0' for pc in range(8)] + [f'v_mov_b32 v{IDX + k}, 0x7f000000' for k in (26, 27)]
        L += [f'v_lshlrev_b32 v{IDX}, 7, v{IDX}'] + xld(IDX, 0)
        L += wld(1) + [f'v_lshlrev_b32 v{IDX + k}, 7, v{IDX + k}' for k in range(25, 0, -1)] + xld(IDX + 1, 1) + wld(2)
        L += [f'v_lshlrev_b32 v{q}, 3, v{g}']

        rdx = lambda fp, h: [f'ds_read_b128 {vr(XA + 16 * h + 8 * t + 4 * par, 4)}, v{vX[par]} offset:{fp * 8192 + (2 * h + t) * 2048}' for t in (1, 0) for par in (1, 0)]
        rdw = lambda fp: [f'ds_read_b64_tr_b16 {vr(WF + 32 * fp + 8 * tn + 4 * par + 2 * rd, 2)}, v{vW[tn]} offset:{fp * 8192 + par * 4096 + rd * 512}'
                          for tn in range(4) for par in range(2) for rd in range(2)]

        def mm(fp, h):
            return [f'v_mfma_f32_16x16x32_bf16 {vr(acc(tn, 2 * h + t), 4)}, {vr(WF + 32 * fp + 8 * tn + 4 * par, 4)}, {vr(XA + 16 * h + 8 * t + 4 * par, 4)}, {vr(acc(tn, 2 * h + t), 4)}'
                    for tn in range(4) for t in range(2) for par in range(2)]
        L += [f's_mov_b32 s{S_F}, 3', f'v_mov_b32 v{vT}, v{IDX + 2}'] + list(xld(vT, 0, 0)[0])
        L += [WaitTag(allbut=('X', 12)), 's_barrier'] + self.stamp(2) + rdx(0, 0) + rdw(0)
        L += [f's_cmp_lg_u32 s{S_WAVE}, 7', 's_cbranch_scc1 L_rem_loop', 's_mov_b64 exec, 1',
              f'buffer_store_dword v{KC0}, v{vCh[0]}, {srd(SRD_DBG)}, s{S_T2} offen offset:128 sc1', 's_mov_b64 exec, -1']
        tr = self.seq(L)

        def phase(M, R, Dm, V):
            gp = [[] for _ in M]
            for k, x in enumerate(R):
                gp[k * o.rrd // max(len(R), 1)].append(x)
            for k, x in enumerate(Dm):
                gp[1 + k * 15 // len(Dm)].append(x)
            v0 = o.rrd if R else 0
            for k, x in enumerate(V):
                gp[v0 + k * (16 - v0) // len(V)].append(x)
            return [(m,) + tuple(g_) for m, g_ in zip(M, gp)]
        post = []
        for k in range(8):
            post += [f'v_lshlrev_b32 v{BF + 2 * k}, 16, v{PK + k}', f'v_and_b32 v{BF + 2 * k + 1}, 0xffff0000, v{PK + k}',
                     f'v_lshlrev_b32 v{W2F + 2 * k}, 16, v{PK + 8 + k}', f'v_and_b32 v{W2F + 2 * k + 1}, 0xffff0000, v{PK + 8 + k}']
        post += self.winv(W2F, 16, KONE)
        vld = [f'buffer_load_dwordx2 {vr(PK + 2 * tn, 2)}, v{q}, {srd(SRD_B1)}, 0 offen offset:{3200 + 32 * tn}' for tn in range(4)]
        vld += [f'buffer_load_dwordx2 {vr(PK + 8 + 2 * tn, 2)}, v{q}, {srd(SRD_W2)}, 0 offen offset:{3200 + 32 * tn}' for tn in range(4)]

        def field(fp, last):
            L = [WaitTag(allbut=('W', 0 if last else 1)), WaitTag(allbut=('X', 0 if last and fp else 8))] + ([] if last and fp else ['s_barrier'])
            if fp == 1 and not last:
                L += [f'v_xor_b32 v{vW[i]}, 16384, v{vW[i]}' for i in range(4)]
            sx = (f's_xor_b32 s{S_WMB}, s{S_WMB}, 16384',)
            wl = [sx + tuple(wld(1)) + sx] if fp == 0 else [tuple(wld(0)) + sx]
            rw = rdw(1 - fp)
            mv = [(f's_set_gpr_idx_on s{S_F}, gpr_idx(SRC0)', 's_nop 0', f'v_mov_b32 v{vT}, v{IDX}', 's_set_gpr_idx_off', f's_add_u32 s{S_F}, s{S_F}, 1')]
            if not last:
                L += phase(mm(fp, 0), rdx(fp, 1) + rw[:8], xld(vT, fp, 0)[1:], list(xld(vT, fp, 1)[0]))
                L += [WaitTag(allbut=('X', 8))]
                L += phase(mm(fp, 1), rdx(1 - fp, 0) + rw[8:], xld(vT, fp, 1)[1:] + wl, mv + list(xld(vT, fp, 0)[0]))
            elif fp == 0:
                L += phase(mm(fp, 0), rdx(fp, 1) + rw[:8], vld, [])
                L += [WaitTag(allbut=('X', 4))]
                L += phase(mm(fp, 1), rdx(1 - fp, 0) + rw[8:], [], [])
            else:
                L += phase(mm(fp, 0), rdx(fp, 1), [], []) + phase(mm(fp, 1), [], [], post[:32])
            return L
        L = ['L_rem_loop:'] + field(0, False) + field(1, False) + [f's_cmp_lt_u32 s{S_F}, 27', 's_cbranch_scc1 L_rem_loop']
        L = [x for x in flat(L) if not any((x.text if isinstance(x, I) else x).startswith(d) for d in o.rdrop.split(',') if d)]
        body = self.seq(L)
        body2 = self.seq(field(0, True) + field(1, True))
        el = lambda tn, tm, d: (acc(tn, tm) + 2 * d, W2F + 4 * tn + 2 * d, SUMP + 2 * tm)
        L = self.stamp(3) + self.tlb2(4, 5) + self.build_srd(SRD_OUT, S_OUT, 8192) + [f's_load_dword s{S_BOUT}, s[{S_BO}:{S_BO + 1}], 0',
             f'buffer_load_dword v255, v4, {srd(SRD_OUT)}, 0 offen',
             f's_and_b32 s{S_T2}, s2, 7', f's_lshl_b32 s{S_T0}, s{S_T2}, 14', f's_lshl_b32 s{S_T1}, s{S_WAVE}, 8', f's_add_u32 s{S_T0}, s{S_T0}, s{S_T1}',
             f's_add_u32 s{S_T1}, s{S_T0}, 4096', f's_add_u32 s{S_T3}, s{S_T0}, 8192',
             f's_lshl_b32 s{S_T2}, s{S_T2}, 3', f's_add_u32 s{S_T2}, s{S_T2}, s{S_WAVE}', f's_lshl_b32 s{S_T2}, s{S_T2}, 7',
             'v_lshlrev_b32 v3, 2, v0', 'v_lshlrev_b32 v2, 1, v0', 's_waitcnt lgkmcnt(0)', f's_lshl_b32 s{S_BOUT}, s{S_BOUT}, 16',
             f's_lshl_b32 s{S_TW}, s{S_WAVE}, 6', f'v_add_u32 v1, s{S_TW}, v0', f'v_cmp_lt_u32 vcc, {(439 if o.sym else 483) + o.n4}, v1', 'v_add_u32 v1, 4096, v3', 'v_mov_b32 v6, 0x7f000000',
             'v_cndmask_b32 v1, v6, v1, vcc']
        L += post[32:]
        L += [f'v_pk_add_f32 {vr(acc(tn, tm) + 2 * d, 2)}, {vr(acc(tn, tm) + 2 * d, 2)}, {vr(BF + 4 * tn + 2 * d, 2)}' for tn in range(4) for tm in range(4) for d in range(2)]
        L += self.gelu([[el(tn, tm, d) for tm in range(4)] for tn in range(4) for d in range(2)], XA, KC0, KC1, KONE)
        L += self.red4(SUMP) + [f'v_add_f32 v{SUMP}, s{S_BOUT}, v{SUMP}'] + self.stamp(4) + self.cleared('L_rclr', 4, 5) + self.padsig()
        A = 64
        tk = ['s_memrealtime s[86:87]', 's_waitcnt lgkmcnt(0)', 's_sub_u32 s89, s86, s88', 's_min_u32 s89, s89, 10000', 's_lshl_b32 s89, s89, 3']
        if o.amp == 2:
            L += [f's_mov_b32 s{S_LOOP}, 0x40000', 'L_polla:', f's_sub_u32 s{S_LOOP}, s{S_LOOP}, 1', 's_cbranch_scc1 L_pollax']
            L += [f'buffer_load_dword v{A + k}, v3, {srd(SRD_WS)}, s{(S_T0, S_T1, S_T3)[k // 2]} offen offset:{(k % 2) * 2048} sc1' for k in range(5)]
            L += [f'v_max3_u32 v{A + 8}, v{A}, v{A + 1}, v{A + 2}', f'v_max3_u32 v{A + 8}, v{A + 3}, v{A + 4}, v{A + 8}',
                  f'v_cmp_eq_u32 vcc, -1, v{A + 8}', 's_cbranch_vccnz L_polla', 'L_pollax:']
        if o.amp in (2, 3):
            L += tk
        L += [f's_mov_b32 s{S_LOOP}, 0x40000', 'L_poll:', f's_sub_u32 s{S_LOOP}, s{S_LOOP}, 1', 's_cbranch_scc1 L_pollx']
        L += [f'buffer_load_dword v{A + k}, v3, {srd(SRD_WS)}, s{(S_T0, S_T1, S_T3)[k // 2]} offen offset:{(k % 2) * 2048} sc1' for k in range(6)]
        L += [f'buffer_load_dword v{A + 6}, v1, {srd(SRD_WS)}, s{S_T3} offen sc1']
        L += [f'v_max3_u32 v{A + 8}, v{A}, v{A + 1}, v{A + 2}', f'v_max3_u32 v{A + 9}, v{A + 3}, v{A + 4}, v{A + 5}', f'v_max3_u32 v{A + 8}, v{A + 8}, v{A + 9}, v{A + 6}',
              f'v_cmp_eq_u32 vcc, -1, v{A + 8}', 's_cbranch_vccnz L_poll', 'L_pollx:']
        L += [f'v_add_f32 v{A}, v{A}, v{A + 1}', f'v_add_f32 v{A + 2}, v{A + 2}, v{A + 3}', f'v_add_f32 v{A + 4}, v{A + 4}, v{A + 5}',
              f'v_add_f32 v{SUMP}, v{SUMP}, v{A + 6}', f'v_add_f32 v{A}, v{A}, v{A + 2}', f'v_add_f32 v{A + 4}, v{A + 4}, v{SUMP}', f'v_add_f32 v{A}, v{A}, v{A + 4}',
              f'v_cvt_pk_bf16_f32 v{A}, v{A}, v{A}']
        if o.amp and o.amp < 4:
            L += (tk if o.amp == 1 else []) + [
                  'L_ampspin:', 's_memrealtime s[86:87]', 's_waitcnt lgkmcnt(0)', 's_sub_u32 s86, s86, s88', 's_cmp_lt_u32 s86, s89', 's_cbranch_scc1 L_ampspin']
        if o.padat:
            L += ['L_padspin:', f'buffer_load_dword v7, v8, {srd(SRD_DBG)}, 0 offen sc1', 's_waitcnt vmcnt(0)', 's_memrealtime s[86:87]',
                  'v_readfirstlane_b32 s88, v7', 's_waitcnt lgkmcnt(0)', 's_cmp_eq_u32 s88, 0', 's_cbranch_scc1 L_padspin'] + (['s_not_b32 s88, s88'] if o.padmin else []) + [
                  's_sub_u32 s86, s86, s88', 's_cmp_lt_i32 s86, 6000', 's_cbranch_scc1 L_padspin'] if o.amp != 4 else [
                  f's_mov_b32 s{S_LOOP}, 0x40000', 'L_padspin:', f's_sub_u32 s{S_LOOP}, s{S_LOOP}, 1', 's_cbranch_scc1 L_padx',
                  f'buffer_load_dword v7, v8, {srd(SRD_DBG)}, 0 offen sc1', 's_waitcnt vmcnt(0)', 's_memrealtime s[86:87]',
                  'v_readfirstlane_b32 s88, v7', 's_waitcnt lgkmcnt(0)'] + (['s_not_b32 s88, s88'] if o.padmin else []) + [
                  's_sub_u32 s88, s88, s82', 's_min_u32 s88, s88, 5000', 's_lshl_b32 s88, s88, 3', 's_add_u32 s88, s88, 5000',
                  's_sub_u32 s86, s86, s82', 's_cmp_lt_u32 s86, s88', 's_cbranch_scc1 L_padspin', 'L_padx:']
        L += [f'buffer_store_short v{A}, v2, {srd(SRD_OUT)}, s{S_T2} offen{o.ofl}'] + self.stamp(5) + self.stamp_flush() + ['s_endpgm']
        return [tr + body * 3 + body2 + self.seq(L)]

    def cin(self):
        o = self.opt
        self.role = 'c'
        cw = S_CW
        S_BCUR, S_BD, S_EXP, S_EXPC, S_PREV, S_SC, S_PH = 74, 75, 48, 49, 50, 51, 97
        S_CHK = S_M26
        vFA, vFR, vOne, vF, vFG, vFGa = 1, 2, 3, 4, 5, 6
        vRaw, vLin, vLinB, vXw, vX1, vX2, vSh, vAcc, vOr, vSI, vXi, vC16, vPWL, vPXL, PXR = range(7, 22)
        FT, XI, aD, aS, aLc, aC = 22, 24, 28, 29, 30, 31
        RAW, X, RZ, D = 32, 40, 52, 68
        WA, WB, WC, WS_, WL = 84, 128, 172, 216, 240
        Da, Db, Dc, Ds = D, D + 4, D + 8, D + 12
        T = 40
        half, i32, t3, t4, t5, vg, vm = T + 1, T + 2, T + 3, T + 4, T + 5, T + 6, T + 7
        vStg = 48
        GB = 49
        vMx, vWr, vL6, vL, vWu, vWo = range(62, 68)
        vDl = 247
        AD = 68
        vA3, vBs0, vBs1a, vBs1b, vUw, vV2w, vE, V3T = 240, 241, 242, 243, 244, 245, 246, 81
        BALL, UP, AFR, DALL = 84, 84, 132, 140
        BT, SUM, OUT = 216, 84, 132
        XJ = 204
        F_W3, F_W2, F_W1, F_PEEL, F_M, F_U, F_V3, F_XB = 0, 4, 8, 12, 16, 24, 32, 36
        nsync = [0]

        def sig(off, A=vFA, **kw):
            return [WaitTag(lgkm0=True, **kw), f'ds_add_u32 v{A}, v{vOne} offset:{off}']

        def wait(off, tgt, R=vFR):
            nsync[0] += 1
            lab = f'L_csync{nsync[0]}'
            return [f'{lab}:', f'ds_read_b32 v{vF}, v{R} offset:{off}', 's_waitcnt lgkmcnt(0)',
                    f'v_cmp_gt_u32 vcc, {tgt}, v{vF}', f's_cbranch_vccnz {lab}']

        def dppred(op, r):
            return [f'{op}_dpp v{r}, v{r}, v{r} {ctl} row_mask:{rm} bank_mask:0xf'
                    for (ctl, rm) in (('row_shr:1', '0xf'), ('row_shr:2', '0xf'), ('row_shr:4', '0xf'), ('row_shr:8', '0xf'),
                                      ('row_bcast:15', '0xa'), ('row_bcast:31', '0xc'))]

        def absmax(dst, regs):
            c = [f'v_max3_f32 v{dst}, abs(v{regs[0]}), abs(v{regs[1]}), abs(v{regs[2]})']
            k = 3
            while k < len(regs):
                b = regs[k + 1] if k + 1 < len(regs) else regs[k]
                c.append(f'v_max3_f32 v{dst}, v{dst}, abs(v{regs[k]}), abs(v{b})')
                k += 2
            return c

        def waitmax(off, dst_e, top, R=vFR):
            nsync[0] += 1
            lab = f'L_csync{nsync[0]}'
            return [f'{lab}:', f'ds_read_b64 {vr(T, 2)}, v{R} offset:{off}', 's_waitcnt lgkmcnt(0)',
                    f'v_cmp_gt_u32 vcc, 4, v{T}', f's_cbranch_vccnz {lab}',
                    f'v_readfirstlane_b32 s{dst_e}, v{T + 1}',
                    f's_lshr_b32 s{dst_e}, s{dst_e}, 23', f's_sub_i32 s{dst_e}, {top}, s{dst_e}', f's_min_i32 s{dst_e}, s{dst_e}, 40']

        def postmax(r, off, **kw):
            return dppred('v_max_u32', r) + [f'v_readlane_b32 s{S_T0}, v{r}, 63', f'v_mov_b32 v{r}, s{S_T0}',
                                             f'ds_max_u32 v{vFA}, v{r} offset:{off + 4}', WaitTag(**kw), f'ds_add_u32 v{vFA}, v{vOne} offset:{off}']
        setsc = lambda e: [f's_add_i32 s{S_SC}, s{e}, 127', f's_lshl_b32 s{S_SC}, s{S_SC}, 23']

        S_C, S_DYN, S_ST0, S_TK = S_R, S_MB, 98, 99
        NST = 40 if o.sym else 44
        PB = 11 * NST
        assert 2 * (512 - PB) - o.n4 <= (88 if o.sym else 44)
        vTk, vZ = 250, 251
        S_HALF = S_STG9
        L = ['L_cin:', f's_and_b32 s{S_T0}, s{S_MB}, 3', f's_mul_i32 s{S_T0}, s{S_T0}, 3', f's_add_u32 s{S_C}, s{S_T0}, s{S_R}',
             f's_sub_u32 s{S_C}, s{S_C}, 6', 's_cbranch_scc1 L_rem',
             f's_and_b32 s{cw}, s{S_WAVE}, 3', f's_lshr_b32 s{S_GRP}, s{S_WAVE}, 2',
             f's_lshl_b32 s{S_GW}, s{S_C}, 3', f's_add_u32 s{S_GW}, s{S_GW}, s{S_WAVE}',
             f's_mul_i32 s{S_T0}, s{S_GW}, {10 * 128}',
             f'v_min_u32 v{T}, 9, v0', f'v_lshlrev_b32 v{T}, 7, v{T}',
             f'v_lshlrev_b32 v{vStg}, 4, v0',
             f's_lshl_b32 s{S_STG}, s{cw}, 10',
             f's_cmp_eq_u32 s{cw}, 2', f's_cselect_b64 s[{S_EX}:{S_EX + 1}], 0x1fffff, -1',
             f's_cmp_eq_u32 s{cw}, 3', f's_cselect_b32 s{S_STG9}, 0, {8 * 4096}',
             f's_add_u32 s{S_STG9}, s{S_STG9}, s{S_STG}',
             f's_mul_i32 s{S_T1}, s{S_C}, 2979', f's_lshr_b32 s{S_T1}, s{S_T1}, 6', f's_mul_i32 s{S_ST0}, s{S_C}, {NST}',
             f's_and_b32 s{S_T2}, s2, 7', f's_add_u32 s{S_RC}, s{S_ST0}, s{S_WAVE}', f's_lshl_b32 s{S_RC}, s{S_RC}, 2',
             f's_lshl_b32 s{S_ST0}, s{S_T2}, 14', f's_add_u32 s{S_RC}, s{S_RC}, s{S_ST0}', f's_add_u32 s{S_RC}, s{S_RC}, {5 * 2048}', f's_mul_i32 s{S_ST0}, s{S_C}, {NST}', f's_lshl_b32 s{S_PX}, s{S_T2}, 9', f's_add_u32 s{S_SAMP}, s{S_PX}, s{S_ST0}', f's_add_u32 s{S_PX}, s{S_PX}, s{S_T1}',
             f's_add_u32 s{S_SAMP}, s{S_SAMP}, s{S_WAVE}', f's_mul_i32 s{S_SAMP}, s{S_SAMP}, 104',
] + ([f's_lshl_b32 s{S_ST0}, s{S_C}, 2', f's_add_u32 s{S_ST0}, s{S_ST0}, s{S_WAVE}', f's_add_u32 s{S_ST0}, s{S_ST0}, s{S_T2}', f's_and_b32 s{S_ST0}, s{S_ST0}, 7'] if not o.sym else [
             f's_add_u32 s{S_ST0}, s{S_WAVE}, s{S_T2}', f's_and_b32 s{S_ST0}, s{S_ST0}, 3', f's_lshl_b32 s{S_TK}, s{S_GRP}, 2', f's_add_u32 s{S_ST0}, s{S_ST0}, s{S_TK}']) + [
             f's_mul_i32 s{S_ST0}, s{S_ST0}, {16384 + o.shs}', f's_add_u32 s{S_ST0}, s{S_ST0}, {6 * 2048}',
] + ([f's_sub_u32 s{S_LOOP}, 6, s{S_GRP}', f's_lshl_b32 s{S_TK}, s{S_GRP}, 1'] if not o.sym else [f's_mov_b32 s{S_LOOP}, 5', f's_mov_b32 s{S_TK}, 2']) + [f's_mov_b32 s{S_DYN}, -1',
             f'v_lshrrev_b32 v{t3}, 3, v0', f'v_min_u32 v{t3}, 6, v{t3}', f'v_lshlrev_b32 v{vXi}, 4, v{t3}',
             f's_mul_i32 s{S_T2}, s{S_T2}, 88', f's_add_u32 s{S_T2}, s{S_GW}, s{S_T2}', f's_mov_b32 s{S_T3}, 704',
             f'v_mov_b32 v{t4}, s{S_T2}', f'v_mad_u32_u24 v{vPWL}, v0, s{S_T3}, v{t4}',
             f's_mul_i32 s{S_T2}, s{S_GW}, 104', f's_sub_u32 s{S_T2}, s{S_T2}, {13 * 26 - 25}',
             f'v_min_u32 v{t4}, {12 + o.pfr}, v0', f'v_mul_u32_u24 v{t5}, 26, v{t4}', f'v_add_u32 v{t5}, s{S_T2}, v{t5}',
             f'v_cmp_lt_u32 vcc, 12, v{t4}', f'v_cndmask_b32 v{vPWL}, v{vPWL}, v{t5}, vcc', f'v_lshlrev_b32 v{vPWL}, 7, v{vPWL}',
             f's_mov_b32 s{S_PW}, {o.pfe0 * 832 * 128}',
             f'v_mov_b32 v{vFR}, {L_FLG}', f'v_lshlrev_b32 v{vFA}, 20, v0', f'v_add_u32 v{vFA}, {L_FLG}, v{vFA}',
             f'v_and_b32 v{t4}, 7, v0', f'v_lshlrev_b32 v{vC16}, 4, v{t4}', f'v_and_b32 v{t4}, 15, v0', f'v_lshl_add_u32 v{t4}, v{t4}, 2, v{vFR}',
             f'v_mov_b32 v{vOne}, 0', f'ds_write_b32 v{t4}, v{vOne}',
             f'v_lshrrev_b32 v{half}, 5, v0', f'v_and_b32 v{i32}, 31, v0',
             's_waitcnt lgkmcnt(0)', f'v_mov_b32 v{vOne}, 1']
        L += self.tlb1(t5, 255)
        L += self.build_srd(SRD_CIN, S_CIN, 105456)
        L += [f'buffer_load_dword v255, v{T}, {srd(SRD_CIN)}, s{S_T0} offen'] if o.coop else []
        L += self.build_srd(SRD_W, S_W1, 1664 * 3328)

        def pfw():
            if o.nopf & 4:
                return []
            return [f's_mov_b64 exec, {((1 << (13 + o.pfr)) - 1) & ~(0x1fff if o.nopf & 1 else 0)}', f'buffer_load_dword v255, v{vPWL}, {srd(SRD_W)}, s{S_PW} offen', 's_mov_b64 exec, -1',
                    f's_add_u32 s{S_PW}, s{S_PW}, {352 * 3328}']
        L += ['s_barrier'] + (pfw() if o.pf1 in (0, 3) else [])
        L += self.build_srd(SRD_IDX, S_IDX, 4096 * 104)

        def pfx_a():
            return [] if o.nopf & 2 else [f'buffer_load_dword v{PXR}, v{vPXL}, {srd(SRD_IDX)}, s{S_PX} offen',
                    f's_cmp_eq_u32 s{S_PX}, s{S_PXE}', f's_cselect_b32 s{S_PXE}, 0x7000000, s{S_PXE}',
                    f's_cselect_b32 s{S_PX}, 0x7000000, s{S_PX}',
                    f's_add_u32 s{S_PX}, s{S_PX}, 24', f's_min_u32 s{S_PX}, s{S_PX}, s{S_PXE}']

        def pfx_b():
            return [] if o.nopf & 2 else [f'v_lshlrev_b32 v{PXR}, 7, v{PXR}', f'buffer_load_dword v255, v{PXR}, {srd(SRD_TAB)}, 0 offen']

        def xidx(XI=XI, off=0, adv=True):
            c = [f'buffer_load_dwordx4 {vr(XI, 4)}, v{vXi}, {srd(SRD_IDX)}, s{S_SAMP} offen offset:{off}']
            if adv:
                c.append(f's_add_u32 s{S_SAMP}, s{S_SAMP}, {8 * 104}')
            return c

        def xdma(XI=XI, lo=0):
            c = []
            for u in range(4):
                if u == 2:
                    c += ['s_mov_b32 exec_hi, 0x0000ffff']
                c += [f'v_lshl_add_u32 v{XI + u}, v{XI + u}, 7, v{vC16}']
                if u == 3:
                    c += ['s_mov_b32 exec_lo, 0', 's_mov_b32 exec_hi, 0xffff0000', f'v_mov_b32 v{XI + 3}, v{XI + 1}', f'v_mov_b32 v{XI + 2}, v{XI + 1}',
                          's_mov_b32 exec_hi, 0x00ff0000', f'v_mov_b32 v{XI + 2}, v{XI}', 's_mov_b64 exec, -1']
            for u in range(4):
                c += [f's_add_u32 m0, s{S_BCUR}, {u * XPI + lo}']
                if u == 3:
                    c += ['s_mov_b32 exec_hi, 0x00ffffff']
                c.append(I(f'buffer_load_dwordx4 v{XI + u}, {srd(SRD_TAB)}, 0 offen lds', tag='XB'))
                if u == 3:
                    c += ['s_mov_b32 exec_hi, -1']
            return c
        wco = self.build_srd(SRD_WCO, S_WCO, 156) + [f's_mov_b32 m0, {L_WCO}', 's_mov_b64 exec, 0x7ff',
              I(f'buffer_load_dwordx4 v{vStg}, {srd(SRD_WCO)}, 0 offen lds', tag='STG3'),
              's_mov_b64 exec, -1']
        L += self.stamp0()

        def stage(dst, goff, tag):
            st = []
            for m in range(8):
                st.append((f's_add_u32 m0, s{S_STG}, {dst + m * 4096}', f's_add_u32 s{S_TW}, s{S_STG}, {goff + m * 4096}',
                           I(f'buffer_load_dwordx4 v{vStg}, {srd(SRD_CIN)}, s{S_TW} offen lds', tag=tag)))
            st.append((f's_add_u32 m0, s{S_STG9}, {dst}', f's_add_u32 s{S_TW}, s{S_STG9}, {goff}',
                       f's_mov_b64 exec, s[{S_EX}:{S_EX + 1}]',
                       I(f'buffer_load_dwordx4 v{vStg}, {srd(SRD_CIN)}, s{S_TW} offen lds', tag=tag),
                       's_mov_b64 exec, -1'))
            return st

        L += [f's_cmp_lg_u32 s{S_GRP}, 0', 's_cbranch_scc1 L_g1a']
        c0 = self.seq(L)
        sA, sB = (('1', A1, 0, F_W1), ('2', A2, 35152, F_W2)) if o.w1first else (('2', A2, 35152, F_W2), ('1', A1, 0, F_W1))
        stA, stB = stage(sA[1], sA[2], 'STG' + sA[0]), stage(sB[1], sB[2], 'STG' + sB[0])
        stg = [wco + stage(A3, 70304, 'STG3') + stA[:o.sigat],
               sig(F_W3, vm_tags=['STG3']) + self.stamp(1) + stA[o.sigat:] + stB[:o.sig2],
               sig(sA[3], vm_tags=['STG' + sA[0]]) + stB[o.sig2:]]
        g0a = self.seq(stg[:o.ccpos] + ['s_branch L_addrc'])
        L = ['L_g1a:', 's_setprio 1',
             f'v_bfe_u32 v{t3}, v0, 2, 2', f'v_lshl_add_u32 v{t3}, v{half}, 3, v{t3}',
             f'v_bfe_u32 v{t4}, v0, 4, 1', f'v_lshlrev_b32 v{t4}, 5, v{t4}',
             f'v_and_b32 v{t5}, 3, v0', f'v_lshl_add_u32 v{t4}, v{t5}, 3, v{t4}',
             f'v_lshl_add_u32 v{vA3}, v{t3}, 6, v{t4}', f'v_add_u32 v{vA3}, {V3OFF}, v{vA3}',
             f's_lshl_b32 s{S_T0}, s{cw}, 6', f's_add_u32 s{S_T0}, s{S_T0}, {A2}',
             f'v_add_u32 v{t4}, s{S_T0}, v{t4}',
             f'v_mul_u32_u24 v{t5}, 1352, v{t3}', f'v_add_u32 v{vBs0}, v{t4}, v{t5}',
             f'v_add_u32 v{t5}, 16, v{t3}', f'v_min_u32 v{t5}, 25, v{t5}',
             f'v_mul_u32_u24 v{t5}, 1352, v{t5}', f'v_add_u32 v{vBs1a}, v{t4}, v{t5}',
             f'v_add_u32 v{t5}, 20, v{t3}', f'v_min_u32 v{t5}, 25, v{t5}',
             f'v_mul_u32_u24 v{t5}, 1352, v{t5}', f'v_add_u32 v{vBs1b}, v{t4}, v{t5}',
             f's_lshl_b32 s{S_T0}, s{cw}, 5', f'v_add_u32 v{vE}, s{S_T0}, v{i32}',
             f'v_mul_u32_u24 v{t3}, 52, v{vE}', f'v_lshl_add_u32 v{t3}, v{half}, 3, v{t3}',
             f'v_add_u32 v{vUw}, {A3}, v{t3}',
             f'v_lshlrev_b32 v{t3}, 1, v{vE}', f'v_add_u32 v{vV2w}, {V2OFF}, v{t3}',
             f'v_mov_b32 v{BT}, 0', f'v_mov_b32 v{BT + 1}, 0',
             f'v_lshlrev_b32 v{t3}, 3, v0', f'v_add_u32 v{t4}, {V3OFF}, v{t3}',
             f's_lshl_b32 s{S_T0}, s{cw}, 9', f'v_add_u32 v{t4}, s{S_T0}, v{t4}', f'ds_write_b64 v{t4}, {vr(BT, 2)}']
        L += [f'v_lshl_add_u32 v{t3}, v{half}, 7, v{vE}', f's_mov_b32 s{S_T1}, 2521', f's_mov_b32 s{S_T2}, {V3OFF}']
        for p_ in range(3):
            L += [f'v_mul_u32_u24 v{t4}, s{S_T1}, v{t3}', f'v_lshrrev_b32 v{t4}, 16, v{t4}',
                  f'v_mad_u32_u24 v{t4}, v{t4}, 12, s{S_T2}', f'v_lshl_add_u32 v{AD + p_}, v{t3}, 1, v{t4}']
            if p_ < 2:
                L += [f'v_add_u32 v{t3}, 256, v{t3}']
        L += [f'v_mov_b32 v{t4}, 676', f'v_cmp_gt_u32 s[{S_MASK}:{S_MASK + 1}], v{t4}, v{t3}']
        for m in range(6):
            L += [f'v_add_u32 v{t3}, {128 * m}, v{vE}', f'v_mul_u32_u24 v{t4}, s{S_T1}, v{t3}', f'v_lshrrev_b32 v{t4}, 16, v{t4}',
                  f'v_lshl_add_u32 v{t4}, v{t4}, 2, v{vUw}', f'v_add_u32 v{AD + 4 + m}, {m * 6656}, v{t4}']
        L += [f'v_lshlrev_b32 v{AD + 10}, 4, v{half}', f'v_add_u32 v{AD + 10}, {L_WCO + 104}, v{AD + 10}',
              f'v_lshlrev_b32 v{AD + 11}, 1, v0', f'v_add_u32 v{AD + 11}, {L_WCO}, v{AD + 11}',
              f'v_lshlrev_b32 v{AD + 12}, 6, v0', f'v_add_u32 v{AD + 12}, {V3OFF + 52}, v{AD + 12}']
        g1a = self.seq(L)

        N_ = (0, 1, 2, 3)
        classes = []
        for d in ZD:
            for (a, ha, b, hb) in d:
                if cls(a, ha)[1] == N_ and cls(b, hb)[1] != N_ and cls(b, hb)[1] not in classes:
                    classes.append(cls(b, hb)[1])
        assert len(classes) == 5
        base = {(N_, N_): GB}
        for k, c in enumerate(classes):
            base[(N_, c)] = GB + 1 + 2 * k
            base[(c, N_)] = GB + 2 + 2 * k
        SP1, SP2 = GB + 11, GB + 12
        pk4 = lambda t: '0x%08x' % sum((x & 0xff) << (8 * k) for k, x in enumerate(t))
        L = ['L_addrc:',
             f's_and_b32 s{S_T2}, s{S_WAVE}, 1', f's_lshl_b32 s{S_T2}, s{S_T2}, 1', f'v_add_u32 v{vg}, s{S_T2}, v{half}',
             f'v_min_u32 v{t3}, 25, v{i32}',
             f's_mul_i32 s{S_T0}, s{S_GRP}, {UST - 1352}', f's_add_u32 s{S_T0}, s{S_T0}, 1352',
             f's_mul_i32 s{S_T1}, s{S_GRP}, {A3 - A1}', f's_add_u32 s{S_T1}, s{S_T1}, {A1}',
             f'v_mul_u32_u24 v{t4}, s{S_T0}, v{t3}', f'v_add_u32 v{t4}, s{S_T1}, v{t4}',
             f'v_lshlrev_b32 v{vDl}, 2, v{t3}', f'v_add_u32 v{vDl}, {A3 - A1}, v{vDl}',
             f'v_mul_u32_u24 v{vL}, 52, v{t3}', f'v_lshl_add_u32 v{vL}, v{vg}, 1, v{vL}', f'v_add_u32 v{vL}, {V2OFF}, v{vL}',
             f'v_lshlrev_b32 v{vWo}, 1, v{t3}', f'v_add_u32 v{vWo}, {L_WCO}, v{vWo}',
             f'v_mad_u32_u24 v{SP1}, v{vg}, 52, v{t4}',
             f'v_lshl_add_u32 v{SP2}, v{vg}, 1, v{t4}',
             f'v_lshl_add_u32 v{GB}, v{vg}, 1, v{SP1}',
             f'v_lshlrev_b32 v{t3}, 3, v{vg}']
        for k, c in enumerate(classes):
            L += [f's_mov_b32 s{S_T0}, {pk4(c)}', f'v_bfe_i32 v{t5}, s{S_T0}, v{t3}, 8',
                  f'v_lshl_add_u32 v{GB + 1 + 2 * k}, v{t5}, 1, v{SP1}', f'v_mad_i32_i24 v{GB + 2 + 2 * k}, v{t5}, 52, v{SP2}']
        L += [f's_mov_b32 s{S_T0}, {pk4((0, 54, 2, 0))}', f'v_bfe_u32 v{t5}, s{S_T0}, v{t3}, 8', f'v_add_u32 v{SP1}, v{t5}, v{t4}',
              f'v_add_u32 v{SP2}, 52, v{t4}', f'v_mov_b32 v{vm}, {OOB}',
              f'v_cmp_eq_u32 vcc, 3, v{vg}', f'v_cndmask_b32 v{SP1}, v{SP1}, v{vm}, vcc', f'v_cndmask_b32 v{vWo}, v{vm}, v{vWo}, vcc',
              f'v_cmp_eq_u32 vcc, 2, v{vg}', f'v_cndmask_b32 v{SP2}, v{vm}, v{SP2}, vcc',
              f'v_cmp_gt_u32 vcc, 2, v{vg}', f'v_cndmask_b32 v{vL6}, v{vm}, v{vL}, vcc']
        L += [f's_lshr_b32 s{S_T1}, s{cw}, 1', f's_mul_i32 s{S_T1}, s{S_T1}, {6 * 1024}', f's_mul_i32 s{S_T0}, s{S_GRP}, {6 * 1024}',
              f'v_lshlrev_b32 v{t5}, 8, v{vg}',
              f'v_lshl_add_u32 v{t3}, v{i32}, 4, v{t5}', f'v_add_u32 v{vWr}, {TA}, v{t3}', f'v_add_u32 v{vWu}, {TB}, v{t3}',
              f'v_bfe_u32 v{t3}, v0, 2, 2', f'v_lshl_add_u32 v{t5}, v{t3}, 4, v{t5}', f'v_and_b32 v{t3}, 3, v0',
              f'v_lshl_add_u32 v{t4}, v{t3}, 6, v{t5}', f'v_add_u32 v{t4}, {TC}, v{t4}',
              f'v_cmp_lt_u32 vcc, 15, v{i32}', f'v_cndmask_b32 v{vWr}, v{vWr}, v{t4}, vcc', f'v_add_u32 v{t4}, 16, v{t4}',
              f'v_cndmask_b32 v{vWu}, v{vWu}, v{t4}, vcc',
              f'v_lshl_add_u32 v{t4}, v{t3}, 5, v{t5}', f'v_add_u32 v{t4}, {TD - 16}, v{t4}',
              f'v_cmp_lt_u32 vcc, 19, v{i32}', f'v_cndmask_b32 v{vWr}, v{vWr}, v{t4}, vcc',
              f'v_add_u32 v{vWr}, s{S_T1}, v{vWr}', f'v_add_u32 v{vWu}, s{S_T0}, v{vWu}',
              f'v_cmp_lt_u32 vcc, 25, v{i32}', f'v_cndmask_b32 v{vWr}, v{vWr}, v{vm}, vcc', f'v_cndmask_b32 v{vWu}, v{vWu}, v{vm}, vcc',
              f'v_mov_b32 v{vMx}, 0']
        L += [f's_mul_i32 s{S_BCUR}, s{S_WAVE}, {XBSZ}', f's_add_u32 s{S_BCUR}, s{S_BCUR}, {XB0}', f's_mov_b32 s{S_BD}, {XB1 - XB0}',
              f'v_add_u32 v{aD}, {TA}, v{vStg}',
              f'v_and_b32 v{t3}, 11, v0', f'v_cmp_eq_u32 vcc, 11, v{t3}', f'v_cndmask_b32 v{aC}, v{aD}, v{vm}, vcc',
              f'v_and_b32 v{t3}, 3, v0', f'v_cmp_eq_u32 vcc, 0, v{t3}', f'v_cndmask_b32 v{aLc}, v{aC}, v{vm}, vcc',
              f'v_lshrrev_b32 v{vg}, 4, v0', f'v_bfe_u32 v{t3}, v0, 1, 3', f'v_lshlrev_b32 v{t5}, 4, v{t3}', f'v_add_u32 v{t5}, {TD}, v{t5}',
              f'v_and_b32 v{t3}, 10, v0', f'v_cmp_eq_u32 vcc, 10, v{t3}', f'v_cndmask_b32 v{t5}, v{t5}, v{vm}, vcc',
              f'v_and_b32 v{t4}, 1, v0', f'v_lshl_add_u32 v{aS}, v{vg}, 9, v{t5}', f'v_lshl_add_u32 v{aS}, v{t4}, 2, v{aS}', f'v_add_u32 v{aS}, 1024, v{aS}',
              f'v_lshl_add_u32 v{FT}, v{vg}, 8, v{t5}', f'v_lshl_add_u32 v{FT}, v{t4}, 20, v{FT}',
              f'v_and_b32 v{vm}, 15, v0', f's_mov_b32 s{S_T0}, {XPI}',
              f'v_lshlrev_b32 v{t3}, 1, v{vm}', f'v_add_u32 v{t3}, s{S_BCUR}, v{t3}',
              f'v_mad_u32_u24 v{vRaw}, v{vg}, s{S_T0}, v{t3}',
              f's_lshl_b32 s{S_T0}, s{S_WAVE}, 10', f's_add_u32 s{S_T0}, s{S_T0}, {XCH}',
              f'v_add_u32 v{vXw}, s{S_T0}, v{vStg}',
              f'v_add_u32 v{t3}, 256, v{vStg}', f'v_and_b32 v{t3}, 1023, v{t3}', f'v_add_u32 v{vX1}, s{S_T0}, v{t3}',
              f'v_xor_b32 v{t3}, 512, v{vStg}', f'v_add_u32 v{vX2}, s{S_T0}, v{t3}', f'v_lshlrev_b32 v{vSh}, 4, v{half}']
        L += [f'v_mov_b32 v{r}, 0' for r in list(range(RAW, RAW + 8)) + list(range(BT, BT + 24))]
        L += [f'v_mul_u32_u24 v{t4}, {XPI}, v{vg}',
              f'v_bfe_u32 v{t5}, v0, 2, 2', f'v_lshl_add_u32 v{t4}, v{t5}, 7, v{t4}',
              f'v_and_b32 v{t5}, 3, v0', f'v_lshl_add_u32 v{vLinB}, v{t5}, 3, v{t4}', f'v_add_u32 v{vLin}, s{S_BCUR}, v{vLinB}',
              f'v_and_b32 v{t5}, 1, v0', f's_mov_b32 s{S_T0}, 0xaaaaaaaa', f'v_mul_lo_u32 v{vSI}, s{S_T0}, v{t5}', f'v_or_b32 v{vSI}, 0x44444444, v{vSI}',
              f'v_lshlrev_b32 v{vOr}, 1, v0', f'v_add_u32 v{vOr}, s{S_BCUR}, v{vOr}', f'v_mov_b32 v{vAcc}, 0x3f80',
              f'ds_write_b16 v{vOr}, v{vAcc} offset:{3 * XPI + 7 * 128}', f'v_add_u32 v{vOr}, s{S_BD}, v{vOr}']
        L += [f's_mul_i32 s{S_T3}, s{S_WAVE}, 6', f's_add_u32 s{S_PX}, s{S_PX}, s{S_T3}', f's_mul_i32 s{S_PX}, s{S_PX}, 104',
              f's_add_u32 s{S_PXE}, s{S_PX}, 80', f's_add_u32 s{S_PX}, s{S_PX}, {4 * o.pfx0}',
              f's_mov_b32 s{S_T3}, 10923', f'v_min_u32 v{t3}, 35, v0',
              f'v_mul_u32_u24 v{t4}, s{S_T3}, v{t3}', f'v_lshrrev_b32 v{t4}, 16, v{t4}',
              f'v_mul_u32_u24 v{t4}, {104 - 24}, v{t4}', f'v_lshl_add_u32 v{vPXL}, v{t3}, 2, v{t4}']
        L += self.stamp(14) + (pfw() if o.pf1 == 1 else [])
        L += [f's_cmp_eq_u32 s{S_GRP}, 0', 's_cbranch_scc1 L_g0pf']
        cc = self.seq(L)

        def bread(m, base):
            b = BALL + m * 8
            return [f'ds_read_b64_tr_b16 {vr(b, 2)}, v{vBs0} offset:{base + m * 256}',
                    f'ds_read_b64_tr_b16 {vr(b + 2, 2)}, v{vBs0} offset:{base + m * 256 + 4 * 1352}',
                    f'ds_read_b64_tr_b16 {vr(b + 4, 2)}, v{vBs1a} offset:{base + m * 256}',
                    f'ds_read_b64_tr_b16 {vr(b + 6, 2)}, v{vBs1b} offset:{base + m * 256}']

        def mm6(base, post=lambda m: []):
            c = []
            for m in range(3 if base is not None else 0):
                c += bread(m, base)
            for m in range(6):
                if m + 3 < 6 and base is not None:
                    c += bread(m + 3, base)
                b = BALL + m * 8
                d = DALL + (m % 4) * 16
                c.append(f'v_mfma_f32_32x32x16_bf16 {vr(d, 16)}, {vr(AFR, 4)}, {vr(b, 4)}, 0')
                c.append(f'v_mfma_f32_32x32x16_bf16 {vr(d, 16)}, {vr(AFR + 4, 4)}, {vr(b + 4, 4)}, {vr(d, 16)}')
                if m >= 2:
                    c += post(m - 2)
            return c + post(4) + post(5)

        e1 = [f's_sub_u32 s{S_T0}, s{S_PX}, {24 * 104}', f'buffer_load_dword v{XJ + 4}, v{vPXL}, {srd(SRD_IDX)}, s{S_T0} offen',
              f'buffer_load_dword v{XJ + 5}, v{vPXL}, {srd(SRD_IDX)}, s{S_PX} offen']
        e2 = [f'v_lshlrev_b32 v{XJ + 4}, 7, v{XJ + 4}', f'buffer_load_dword v255, v{XJ + 4}, {srd(SRD_TAB)}, 0 offen',
              f'v_lshlrev_b32 v{XJ + 5}, 7, v{XJ + 5}', f'buffer_load_dword v255, v{XJ + 5}, {srd(SRD_TAB)}, 0 offen']
        if o.nopf & 8:
            e1, e2 = [], []
        xx = xdma() + xdma(XJ, -4 * XBSZ) + xidx()
        L = sig(F_W3) + [f's_sub_u32 s{S_SAMP}, s{S_SAMP}, {4 * 104}'] + xidx(XJ, 0, False) + [f's_add_u32 s{S_SAMP}, s{S_SAMP}, {4 * 104}'] + xidx()
        L += e1 + [f's_add_u32 s{S_PX}, s{S_PX}, 24'] + pfx_a()
        L += wait(F_W3, 8) + self.stamp(2)
        uc0 = self.seq(L)
        L = []
        for s2 in range(2):
            for rd in range(2):
                L.append(f'ds_read_b64 {vr(AFR + 4 * s2 + 2 * rd, 2)}, v{AD + 10} offset:{s2 * 32 + rd * 8}')
        L += [f'ds_read_u16 v{t5}, v{AD + 11} offset:52']

        def vpost(m):
            p_ = m // 2
            c = [f'v_cvt_pk_bf16_f32 v{V3T + p_}, v{DALL + 16 * (m % 4)}, 0']
            if m % 2:
                c = ['s_mov_b32 exec_lo, 0'] + c + [f's_mov_b64 exec, s[{S_MASK}:{S_MASK + 1}]' if p_ == 2 else 's_mov_b32 exec_lo, -1',
                                                    f'ds_write_b16 v{AD + p_}, v{V3T + p_}']
            return c
        L += mm6(A3 - A2, vpost)
        L += ['s_mov_b64 exec, 0x3ffffff', f'ds_write_b16 v{AD + 12}, v{t5}', 's_mov_b64 exec, -1']
        L += self.stamp(3) + sig(F_V3) + (pfw() if o.pf1 in (2, 3) else []) + [f'v_cmp_gt_u32 s[{S_MASK}:{S_MASK + 1}], 36, v{vE}']
        L += (e2 if o.epos == 0 else []) + (xx if o.xpos == 0 else []) + (e2 if o.epos == 1 else [])
        L += wait(F_W2, 4) + [bread(m, 0) for m in range(6)] + wait(F_V3, 4) + self.stamp(5) + [f's_setprio {o.uprio}']
        for s2 in range(2):
            for rd in range(2):
                L.append(f'ds_read_b64_tr_b16 {vr(AFR + 4 * s2 + 2 * rd, 2)}, v{vA3} offset:{s2 * 1024 + rd * 256}')

        def upost(m):
            d = DALL + 16 * (m % 4)
            c = [f'v_cvt_pk_bf16_f32 v{UP + 8 * m + qq}, v{d + 2 * qq}, v{d + 2 * qq + 1}' for qq in range(8)]
            if m == 5:
                c.append(f's_mov_b64 exec, s[{S_MASK}:{S_MASK + 1}]')
            w_ = [f'ds_write2_b32 v{AD + 4 + m}, v{UP + 8 * m + 2 * a}, v{UP + 8 * m + 2 * a + 1} offset0:{4 * a} offset1:{4 * a + 1}' for a in range(3)]
            return c + interleave(w_, [f'v_max3_f32 v{vMx}, v{vMx}, abs(v{d + 2 * qq}), abs(v{d + 2 * qq + 1})' for qq in range(7)])
        L += mm6(None, upost)
        L.append('s_mov_b32 exec_hi, 0')
        for m in (5, 4, 3, 2, 1, 0):
            L.append(f'ds_write_b32 v{AD + 4 + m}, v{UP + 8 * m + 6} offset:48')
            L.append(f'ds_write_b16 v{vV2w}, v{UP + 8 * m + 7} offset:{m * 256}')
            if m == 5:
                L.append('s_mov_b32 exec_lo, -1')
        L += ['s_mov_b64 exec, -1'] + postmax(vMx, F_U) + [f's_setprio {o.bprio}'] + (xx if o.xpos == 1 else []) + (e2 if o.epos == 2 else []) + self.stamp(6) + ['s_branch L_uph']
        uc = self.seq(L)

        L = ['L_g0pf:'] + stg[o.ccpos:] + [f's_add_u32 s{S_SAMP}, s{S_SAMP}, {8 * 104}', f's_add_u32 s{S_PX}, s{S_PX}, 24'] + xidx() + pfx_a()
        L += (pfw() if o.pf1 in (2, 3) else []) + sig(sB[3], vm_tags=['STG' + sB[0]]) + self.stamp(4) + [f's_mov_b32 s{S_PH}, 0'] + wait(F_W1, 4) + self.stamp(2)
        L += [f's_cmp_ge_u32 s{cw}, 2', 's_cbranch_scc1 L_chunk2']
        g0pf = self.seq(L)

        def chunk(k):
            units = [(n, h) for n in range(12 * k, min(12 * k + 12, 44)) for h in range(2)]
            NB_, BA = 12, o.ba
            reads, maths = [], []
            for ui, (n, h) in enumerate(units):
                a, ha, b, hb = ZD[n][h]
                (fa, ca), (fb, cb) = cls(a, ha), cls(b, hb)
                tb = BT + (ui % NB_) * 2
                dst = SUM + 24 * (k % 2) + ui
                if ca != N_:
                    R = [f'ds_read_u16_d16_hi v{tb}, v{SP1} offset:{54 * 24}', f'ds_read_u16_d16_hi v{tb + 1}, v{SP2} offset:{54 * 24}']
                    M = [f'v_add_f32 v{dst}, v{tb}, v{tb + 1}']
                elif (a, ha) == (b, hb):
                    R = [f'ds_read_u16_d16_hi v{tb}, v{base[(ca, cb)]} offset:{54 * fa}']
                    M = [f'v_mov_b32 v{dst}, v{tb}']
                else:
                    R = [f'ds_read_u16_d16_hi v{tb}, v{base[(ca, cb)]} offset:{52 * fa + 2 * fb}',
                         f'ds_read_u16_d16_hi v{tb + 1}, v{base[(cb, ca)]} offset:{52 * fb + 2 * fa}']
                    M = [f'v_add_f32 v{dst}, v{tb}, v{tb + 1}']
                if ui % 2:
                    M = M + maths[-1] + [f'v_max3_f32 v{vMx}, v{vMx}, abs(v{dst - 1}), abs(v{dst})']
                    maths[-1] = []
                reads.append(R)
                maths.append(M)
            code = []
            nu = len(units)
            for ui in range(nu + BA):
                if ui < nu:
                    code += reads[ui]
                if ui == nu and k == 3:
                    code += [f'ds_read_u16_d16_hi v{LT + e}, v{vL} offset:{8 * e}' for e in range(6)]
                    code += [f'ds_read_u16_d16_hi v{LT + 6}, v{vL6} offset:48', f'ds_read_u16_d16_hi v{LT + 7}, v{vWo}']
                if ui >= BA:
                    code += maths[ui - BA]
            return code
        LT = BT + 8
        assert o.ba <= 8

        def conv(n):
            return [f'v_fma_mix{"hi" if h else "lo"}_f16 v{OUT + q}, v{SUM + 2 * q + h}, s{S_SC}, 0' for h in range(2) for q in range(4 * n, 4 * n + 4)]
        wr = lambda n, A: [f'ds_write_b128 v{A}, {vr(OUT + 4 * n, 4)} offset:{n * 1024}']
        ch, chb = [], []
        for k in range(4):
            ch.append(self.seq([f'L_chunk{k}:'] + chunk(k) + [f's_cmp_lg_u32 s{S_PH}, 0', f's_cbranch_scc1 L_uconv{k % 2}']))
            chb.append(self.seq(['s_branch L_w1conv'] if k == 1 else []))
        L = ['L_w1conv:'] + self.stamp(3) + postmax(vMx, F_M)
        L += [f'v_add_u32 v{GB + k}, v{GB + k}, v{vDl}' for k in range(13)]
        L += waitmax(F_M, S_T2, 141) + setsc(S_T2) + self.stamp(5)
        L += conv(0) + conv(1) + wr(0, vWr) + conv(2) + wr(1, vWr) + conv(3) + wr(2, vWr) + conv(4) + wr(3, vWr) + wr(4, vWr)
        L += [f's_cmp_ge_u32 s{cw}, 2', 's_cbranch_scc1 L_w1x']
        w1a = self.seq(L)
        w1b = self.seq(conv(5) + wr(5, vWr))
        w1c = self.seq(['L_w1x:'])
        xbsig = lambda: [WaitTag(vm_tags=['XB']), f'v_mov_b32 v{vF}, s{S_GRP}', f'ds_add_u32 v{vFA}, v{vF} offset:{F_XB}']
        L = ['L_uph:'] + self.stamp(7) + (self.tlb2(vZ, vTk) if o.lb else []) + waitmax(F_U, S_T3, 140) + setsc(S_T3) + self.stamp(12)
        L += [f's_mov_b32 s{S_PH}, 1', f's_lshr_b32 s{S_T1}, s{S_WAVE}, 1',
              f's_cmp_eq_u32 s{S_T1}, 0', 's_cbranch_scc1 L_chunk0', f's_cmp_eq_u32 s{S_T1}, 1', 's_cbranch_scc1 L_chunk1',
              f's_cmp_eq_u32 s{S_T1}, 2', 's_cbranch_scc1 L_chunk2', 's_branch L_chunk3']
        uph = self.seq(L)
        wm1 = lambda: (xbsig() if o.lb else []) + waitmax(F_M, S_T2, 141)
        u0 = self.seq(['L_uconv0:'] + self.stamp(13) + conv(0) + wm1() + wr(0, vWu) + conv(1) + wr(1, vWu) + conv(2) + wr(2, vWu) + ['s_branch L_built'])
        u1a = self.seq(['L_uconv1:'] + self.stamp(13) + conv(3) + wm1() + wr(3, vWu) + conv(4) + wr(4, vWu) + [f's_cmp_lg_u32 s{S_GRP}, 0', 's_cbranch_scc1 L_ulin'])
        u1b = self.seq(conv(5) + wr(5, vWu) + ['s_branch L_built'])
        L = ['L_ulin:'] + [f'v_mul_f32 v{LT + e}, s{S_SC}, v{LT + e}' for e in range(8)]
        L += [f'v_cvt_pk_bf16_f32 v{OUT + 20 + q}, v{LT + 2 * q}, v{LT + 2 * q + 1}' for q in range(4)] + wr(5, vWu)
        u1c = self.seq(L)

        w0x = self.build_srd(SRD_W2, S_W2, 3328) + [f'v_lshlrev_b32 v{FT}, 7, v0', f'buffer_load_dword v255, v{FT}, {srd(SRD_W2)}, 0 offen']

        slot = lambda k: RZ + 4 * (k % 4)
        MF = [('Lb', 0), ('a', 1), ('b', 1), ('d', 1), ('Lc', 0), ('a', 2), ('c', 1), ('b', 2), ('c', 2)]
        for k in range(3, 10):
            MF += ([('S', k)] if k % 2 else []) + [('a', k), ('b', k), ('c', k)]
        MF += [('a', 10), ('b', 10), ('a', 11), ('b', 11), ('c', 10), ('S', 11), ('c', 11)]
        if o.mo == 1:
            MF = [('Lb', 0), ('a', 1), ('d', 1), ('Lc', 0), ('b', 1), ('a', 2), ('c', 1), ('b', 2), ('a', 3), ('c', 2), ('S', 3), ('b', 3), ('c', 3)]
            for k in range(4, 10):
                MF += ([('S', k)] if k % 2 else []) + [('a', k), ('b', k), ('c', k)]
            MF += [('a', 10), ('b', 10), ('c', 10), ('a', 11), ('b', 11), ('S', 11), ('c', 11)]
        if o.mo == 2:
            MF = [('d', 1), ('Lb', 0), ('a', 1), ('Lc', 0), ('b', 1), ('a', 2), ('c', 1), ('b', 2), ('a', 3), ('c', 2), ('S', 3), ('b', 3), ('c', 3)]
            for k in range(4, 12):
                MF += ([('S', k)] if k % 2 else []) + [('a', k), ('b', k), ('c', k)]
        if o.mo == 3:
            MF = [('d', 1), ('Lb', 0), ('b', 1), ('a', 1), ('Lc', 0), ('c', 1)]
            for k in range(2, 12, 2):
                MF += [('c', k), ('c', k + 1), ('S', k + 1), ('a', k), ('a', k + 1), ('b', k), ('b', k + 1)] if k % 4 == 2 and k < 10 else \
                      [('b', k), ('b', k + 1), ('S', k + 1), ('a', k), ('a', k + 1), ('c', k), ('c', k + 1)]
        NM = len(MF)
        use = {k: [m for m, (t_, kk) in enumerate(MF) if kk == k or (t_ == 'S' and kk == k + 1)] for k in range(12)}
        pos = lambda t_, k: MF.index((t_, k))

        def mfma(m):
            t_, k = MF[m]
            if t_[0] == 'L':
                d, w = {'b': (Db, WL), 'c': (Dc, WL + 4)}[t_[1]]
                return f'v_mfma_f32_16x16x32_bf16 {vr(d, 4)}, {vr(w, 4)}, {vr(slot(0), 4)}, 0'
            if t_ == 'S':
                return f'v_smfmac_f32_16x16x64_f16 {vr(Ds, 4)}, {vr(WS_ + 2 * (k - 1), 4)}, {vr(slot(k - 1), 8)}, v{vSI}'
            d, w = {'a': (Da, WA), 'b': (Db, WB), 'c': (Dc, WC), 'd': (Ds, WS_)}[t_]
            return f'v_mfma_f32_16x16x32_f16 {vr(d, 4)}, {vr(w + 4 * (k - 1), 4)}, {vr(slot(k), 4)}, {"0" if t_ in "ad" and k == 1 else vr(d, 4)}'

        def wload(m):
            t_, k = MF[m]
            if t_[0] == 'L':
                a, w, off = {'b': (aD, WL, TB), 'c': (aLc, WL + 4, TC)}[t_[1]]
                return [f'ds_read_b128 {vr(w, 4)}, v{a} offset:{off - TA + 11 * 1024}']
            if t_ == 'd':
                return [f'ds_read_b128 {vr(WS_, 4)}, v{FT}']
            if t_ == 'S':
                w = WS_ + 2 * (k - 1)
                return [f'ds_read2_b32 {vr(w, 2)}, v{aS} offset0:0 offset1:2', f'ds_read2_b32 {vr(w + 2, 2)}, v{aS} offset0:64 offset1:66',
                        f'v_add_u32 v{aS}, 2048, v{aS}']
            w, a, off = {'a': (WA, aD, 0), 'b': (WB, aD, TB - TA), 'c': (WC, aC, TC - TA)}[t_]
            return [f'ds_read_b128 {vr(w + 4 * (k - 1), 4)}, v{a} offset:{off + (k - 1) * 1024}']

        def zops(n):
            z = slot(n // 4 + 1) + n % 4
            (a, ha, b, hb), (a2, ha2, b2, hb2) = ZD[n]
            if (a, b) == (a2, b2):
                return [f'v_pk_mul_f16 v{z}, v{X + a}, v{X + b} op_sel:[{ha},{hb}] op_sel_hi:[{ha2},{hb2}]']
            return [f'v_mul_f16_sdwa v{z}, v{X + a}, v{X + b} dst_sel:WORD_0 dst_unused:UNUSED_PAD src0_sel:WORD_{ha} src1_sel:WORD_{hb}',
                    f'v_mul_f16_sdwa v{z}, v{X + a2}, v{X + b2} dst_sel:WORD_1 dst_unused:UNUSED_PRESERVE src0_sel:WORD_{ha2} src1_sel:WORD_{hb2}']

        cvt = lambda d, a, b: f'v_cvt_pk_f16_f32 v{d}, v{a}, v{b}'
        LAT = o.lat

        class It:
            def __init__(s, name, G, code, lo, hi, pre):
                s.name, s.G, s.code, s.lo, s.hi, s.pre, s.at = name, G, code, lo, hi, list(pre), None

        NG = 14
        items = {}

        def add(name, G, code, lo=-10**9, hi=10**9, pre=()):
            items[(name, G)] = It(name, G, code, lo, hi, pre)
        usej = lambda j: [n for n, d in enumerate(ZD) if any(a // 4 == j or b // 4 == j for (a, _, b, _) in d)]
        lastz = {j: max(usej(j)) for j in range(3)}
        for G in range(NG):
            c, b0 = G % 4, G * NM
            for r in range(8):
                add(f'raw{r}', G, f'ds_read_u16_d16_hi v{RAW + r}, v{vRaw} offset:{r * 128 + c * 32}', lo=b0 - o.rspan, hi=b0 - o.rlead,
                    pre=[(f'co{q}', G - 1, 0) for q in range(4)] + ([('swr', G, 0)] if c == 0 else []))
            for q in range(4):
                add(f'co{q}', G, cvt(X + q - 1, RAW + q - 1, RAW + q + 2) if q else cvt(X + 3, RAW + 6, RAW + 7), hi=b0 - 4,
                    pre=[(f'raw{r}', G, LAT) for r in range(8)] + [(f'z{lastz[0]}', G - 1, 0)])
            add('wo', G, f'ds_write_b128 v{vXw}, {vr(X, 4)}', hi=b0 - 2, pre=[(f'co{q}', G, 0) for q in range(4)] + [('r2', G - 1, 0)])
            add('r1', G, f'ds_read_b128 {vr(X + 4, 4)}, v{vX1}', hi=b0, pre=[('wo', G, 0)])
            add('r2', G, f'ds_read_b128 {vr(X + 8, 4)}, v{vX2}', hi=b0 + 1, pre=[('r1', G, 0)])
            for q in range(3):
                add(f'al{q}', G, f'v_alignbit_b32 v{X + 8 + q}, v{X + 8 + q}, v{X + 8 + q}, v{vSh}', hi=b0 + 20, pre=[('r2', G, LAT)])
            if c == 0:
                add('swr', G, [f'v_add_u32 v{vRaw}, s{S_BD}, v{vRaw}', WaitTag(vm_tags=['XB'])], lo=b0 - o.rspan - 1, hi=b0 - o.rspan - 1,
                    pre=[(f'raw{r}', G - 1, 0) for r in range(8)])
            for p in range(2):
                add(f'lin{p}', G, f'ds_read_b64_tr_b16 {vr(slot(0) + 2 * p, 2)}, v{vLin} offset:{p * 512 + c * 32}',
                    lo=b0 - NM + max(use[8]), hi=b0 + min(use[0]) - 1 - LAT, pre=[('swl', G, 0)] if c == 0 else [])
            if c == 0:
                add('swl', G, [f's_add_u32 s{S_TW}, s{S_BCUR}, s{S_BD}', f'v_add_u32 v{vLin}, s{S_TW}, v{vLinB}'], lo=b0 - NM + 20, hi=b0 - 12,
                    pre=[(f'lin{p}', G - 1, 0) for p in range(2)])
            for n in range(44):
                k = n // 4 + 1
                js = {x // 4 for (a, _, b, _) in ZD[n] for x in (a, b)}
                pre = [(f'co{q}', G, 0) for q in range(4)] + ([('r1', G, LAT)] if 1 in js else []) + ([(f'al{q}', G, 0) for q in range(3)] if 2 in js else [])
                if n:
                    pre.append((f'z{n - 1}', G, 0))
                if k == 5 and n % 4 < 3:
                    pre.append(('or1', G, 0))
                lo = b0 + max(use[k - 4]) if k >= 4 else b0 - NM + max(use[k + 8])
                if k == 1:
                    lo = max(lo, b0 - o.z1lo)
                zc = zops(n)
                if n == 12:
                    zc = [zops(12)[0], zops(13)[0]]
                if n == 13:
                    zc = [zops(12)[1], zops(13)[1]]
                add(f'z{n}', G, zc, lo=lo, hi=b0 + min(use[k]) - 2, pre=pre)
            s1 = slot(1)
            if c == 1:
                add('or1', G, f'v_or3_b32 v{vOr}, v{s1}, v{s1 + 1}, v{s1 + 2}', hi=b0 + 6, pre=[('z2', G, 0), ('blk', G - 2, 0)])
                add('ck', G, [f'v_and_b32 v{vOr}, 0x60006000, v{vOr}', f'v_cmp_ne_u32 s[{S_CHK}:{S_CHK + 1}], 0, v{vOr}'], hi=b0 + 30, pre=[('or1', G, 0)])
            e = b0 + NM
            rdy = lambda t_: b0 + pos(t_, 11) + o.flo
            for r in range(4):
                add(f'f{r}', G, f'v_{"mul" if c == 0 and r == 0 else "fmac"}_f32 v{vAcc}, v{Da + r}, v{Db + r}', lo=min(max(rdy('a'), rdy('b')), e + pos('Lb', 0) - 1), hi=e + pos('Lb', 0) - 1,
                    pre=[(f'f{r - 1}', G, 0) if r else ('f8', G - 1, 0)] + ([('blk', G - 1, 0)] if c == 0 else []))
            for r in range(2):
                add(f'f{4 + r}', G, f'v_add_f32 v{FT + r}, v{Ds + 2 * r}, v{Ds + 2 * r + 1}', lo=min(rdy('S'), e + pos('d', 1) - 1), hi=e + pos('d', 1) - 1,
                    pre=[('f8', G - 1, 0)] + ([('blk', G - 1, 0)] if c == 0 else []))
            for r, (x, y) in enumerate(((Dc, Dc + 1), (FT, Dc + 2), (FT + 1, Dc + 3))):
                add(f'f{6 + r}', G, f'v_fmac_f32 v{vAcc}, v{x}, v{y}', lo=rdy('c'), hi=e + pos('Lc', 0) - 1, pre=[(f'f{5 + r}', G, 0), ('f3', G, 0), ('f4', G, 0)])
            if c == 3:
                for q, x in enumerate(dppred('v_add_f32', vAcc)):
                    add(f'dp{q}', G, x, hi=e + 7 + 2 * q, pre=[(f'dp{q - 1}', G, 2) if q else ('f8', G, 2)])
                add('blk', G, '@BLK', hi=e + 20, pre=[('dp5', G, 1)])
        order = list(items.values())
        gaps = {}
        isv = lambda x: isinstance(x, str) and x.startswith('v_')
        isl = lambda x: isinstance(x, str) and x.startswith('ds_')
        for gp in range(-NM, NG * NM):
            gaps[gp] = []
            uv = ul = 0
            while True:
                cand = []
                for it in order:
                    if it.at is not None or it.lo > gp:
                        continue
                    ok = True
                    for (nm, G, dist) in it.pre:
                        p = items.get((nm, G))
                        if p is None:
                            continue
                        if p.at is None or p.at + dist > gp:
                            ok = False
                            break
                    if not ok:
                        continue
                    cv_, cl_ = sum(map(isv, flat([it.code]))), sum(map(isl, flat([it.code]))) * (o.wcost if it.name == 'wo' else 1)
                    if it.hi > gp and (uv + cv_ > o.gapv or ul + cl_ > o.gapl or uv + ul + cv_ + cl_ > o.gapt) and cv_ + cl_:
                        continue
                    cand.append((it, cv_, cl_))
                if not cand:
                    break
                it, cv_, cl_ = min(cand, key=lambda x: x[0].hi)
                it.at = gp
                uv += cv_; ul += cl_
                gaps[gp].append(it)
        late = [(it.name, it.G, it.at - it.hi) for it in order if it.at is not None and it.at > it.hi and 4 <= it.G < 12]
        print('late items', late)
        sig_ = lambda G0: [[(it.name, it.G - G0) for it in gaps[G0 * NM + m]] for m in range(4 * NM)]
        assert sig_(4) == sig_(8), 'schedule not periodic'
        for f_ in (isv, isl):
            print('gap load', ''.join(str(sum(sum(map(f_, flat([it.code]))) for it in gaps[4 * NM + m])) + ('|' if m % NM == NM - 1 else '') for m in range(4 * NM)))
        keep = lambda c: [x for x in flat([c]) if not (isinstance(x, str) and any(x.startswith(d) for d in o.drop.split(',') if d))]
        prio = lambda p, lab: [f's_cmp_lg_u32 s{S_GRP}, 0', f's_cbranch_scc1 {lab}', f's_setprio {p}', f'{lab}:'] if o.phi else []

        def sstamp():
            if not (o.stamps and o.itst):
                return []
            return [f's_memtime s[{S_ST}:{S_ST + 1}]', f's_add_u32 s{S_C0}, s{S_LOOP}, 20', 's_waitcnt lgkmcnt(0)',
                    f's_mov_b32 m0, s{S_C0}', f'v_writelane_b32 v252, s{S_ST}, m0']

        pcode = []
        for gp in range(-NM, 4 * NM):
            for it in gaps[gp]:
                if it.G >= 4 and not it.name.startswith(('sw', 'wx')):
                    pcode += flat([it.code])
        PFD = o.pfd
        pfl = pfx_b() + ([] if o.nopf & 16 else pfx_a()) + pfw()
        L = ['L_built:'] + self.stamp(10) + ([] if o.lb else xbsig() + self.tlb2(vZ, vTk))
        L += [f's_add_i32 s{S_EXP}, s{S_T2}, s{S_T3}'] + wait(F_XB, 4) + pcode + (pfl if o.lb < 2 else [])
        L += ['s_waitcnt lgkmcnt(0)', 's_barrier'] + (['s_setprio 1'] if o.phi else ['s_setprio 0']) + self.stamp(8)
        L += [wload(m) for m in range(PFD)] + prio(2, 'L_prf') + (['s_mov_b32 s100, 15'] if o.gst else [])
        peel2 = None
        for m in range(NM):
            L += [mfma(m)] + (wload(m + PFD) if m + PFD < NM else [])
            for it in gaps[4 * NM + m]:
                if it.code == '@BLK':
                    L += [f'ds_write_b16 v{vOr}, v{vAcc} offset:{3 * XPI + 7 * 128}']
                    L += self.cleared('L_cclr', vZ, vTk) + xdma(XI, XB1 - XB0) + (pfl if o.lb == 2 else []) + (pfw() if o.pfp else [])
                    L += [f's_sub_i32 s{S_EXP}, 0, s{S_EXP}', f's_mov_b32 s{S_EXPC}, s{S_EXP}',
                          f's_mov_b32 s{S_PH}, 1', f's_mov_b32 s{S_PREV}, 1', f's_mov_b32 s{S_HALF}, 0']
                    L += [f's_cmp_lg_u32 s{S_WAVE}, 7', 's_cbranch_scc1 L_nw0']
                    peel1 = self.seq(L)
                    peelw = self.seq(w0x)
                    L = ['L_nw0:']
                elif it.G >= 4:
                    L += flat([it.code])
        L += [f'ds_add_u32 v{vFA}, v{vOne} offset:{F_PEEL}', 's_branch L_grp1']
        peel2 = self.seq(L)
        prime = self.seq(['L_prime:'] + [f'v_mov_b32 v{r}, 0' for r in range(D, D + 16)] + [f'v_mov_b32 v{FT}, 0', f'v_mov_b32 v{FT + 1}, 0'] + pcode)
        blk_a = ['L_blk:', f's_cmp_eq_u32 s{S_PREV}, 0', 's_cbranch_scc1 L_blkend',
                 f'v_readlane_b32 s{S_TW}, v{vAcc}, 63', f'v_ldexp_f32 v{vAcc}, v{vAcc}, s{S_EXPC}', f'v_and_b32 v{vAcc}, -2, v{vAcc}',
                 f's_cmp_ge_u32 s{S_PREV}, 2', 's_cbranch_scc1 L_good',
                 f's_cmp_eq_u64 s[{S_CHK}:{S_CHK + 1}], 0', 's_cbranch_scc1 L_slow',
                 f's_bfe_u32 s{S_TW}, s{S_TW}, 0x80017', f's_cmp_eq_u32 s{S_TW}, 255', 's_cbranch_scc1 L_slow',
                 'L_good:', 's_mov_b32 exec_lo, 0', 's_mov_b32 exec_hi, 0x80000000',
                 f'buffer_store_dword v{vAcc}, v{vZ}, {srd(SRD_WS)}, s{S_RC} offen sc1', 's_mov_b64 exec, -1',
                 f's_add_u32 s{S_RC}, s{S_RC}, 32', f's_sub_u32 s{S_LOOP}, s{S_LOOP}, 1', f's_cmp_eq_u32 s{S_LOOP}, 0', 's_cbranch_scc1 L_cin_done']
        blk_a += [f's_cmp_eq_u32 s{S_LOOP}, 1', 's_cbranch_scc1 L_lastnext']
        blk_b = xdma() + [f's_add_u32 s{S_SAMP}, s{S_SAMP}, {8 * 104}', f's_cmp_lg_u32 s{S_LOOP}, s{S_TK}', 's_cbranch_scc1 L_nodma']
        blk_t = [f'v_mov_b32 v{vTk}, 1', 's_mov_b64 exec, 1', f'buffer_atomic_add v{vTk}, v{vZ}, {srd(SRD_WS)}, s{S_ST0} offen sc0',
                 's_mov_b64 exec, -1', f's_mov_b32 s{S_TK}, 8', 's_branch L_nodma',
                 'L_lastnext:', f's_cmp_lt_i32 s{S_DYN}, 0', f's_cselect_b32 s{S_RC}, s{S_RC}, s{S_DYN}']
        hook_a = [f's_cmp_lg_u32 s{S_TK}, 8', 's_cbranch_scc1 L_hk']
        n4 = o.n4
        hook_t = ['s_waitcnt vmcnt(0)', f'v_readfirstlane_b32 s{S_TW}, v{vTk}', f's_mov_b32 s{S_TK}, 0', f's_add_u32 s{S_TW}, s{S_TW}, 1',
                  f's_cmp_ge_u32 s{S_TW}, {2 * (512 - PB) - n4}', 's_cbranch_scc1 L_hk',
                  f's_add_u32 s{S_LOOP}, s{S_LOOP}, 1', f's_mov_b32 s{S_DYN}, {5 * 2048}',
                  f's_cmp_lt_u32 s{S_TW}, {n4}', 's_cbranch_scc1 L_hkf',
                  f's_add_u32 s{S_TW}, s{S_TW}, {n4}', f's_and_b32 s{S_SAMP}, s{S_TW}, 1', f's_lshr_b32 s{S_TW}, s{S_TW}, 1', f's_mov_b32 s{S_HALF}, 1',
                  f's_lshl_b32 s{S_SAMP}, s{S_SAMP}, 6', f'v_xor_b32 v{vC16}, s{S_SAMP}, v{vC16}',
                  f's_lshl_b32 s{S_SAMP}, s{S_SAMP}, 5', f's_add_u32 s{S_DYN}, s{S_DYN}, s{S_SAMP}',
                  'L_hkf:', f's_add_u32 s{S_TW}, s{S_TW}, {PB}', f's_lshl_b32 s{S_SAMP}, s{S_TW}, 2', f's_add_u32 s{S_DYN}, s{S_DYN}, s{S_SAMP}',
                  f's_andn2_b32 s{S_SAMP}, s{S_ST0}, 0x3fff', f's_add_u32 s{S_DYN}, s{S_DYN}, s{S_SAMP}',
                  f's_lshr_b32 s{S_SAMP}, s{S_SAMP}, 5', f's_add_u32 s{S_SAMP}, s{S_SAMP}, s{S_TW}', f's_mul_i32 s{S_SAMP}, s{S_SAMP}, 104']
        hook_b = ['L_hk:'] + xidx(adv=False)
        blk_b2 = ['L_nodma:'] + [f's_add_u32 s{S_BCUR}, s{S_BCUR}, s{S_BD}', f's_sub_u32 s{S_BD}, 0, s{S_BD}', f's_mov_b32 s{S_EXPC}, s{S_EXP}', f's_mov_b32 s{S_PH}, 1',
                  f's_cmp_eq_u32 s{S_PREV}, 3', 's_cbranch_scc1 L_slow2']
        blk_c = ['L_blkend:', f's_mov_b32 s{S_PREV}, s{S_PH}']
        parts = [[], [], [], [], []]
        cur = self.seq(['L_cin_loop:'])
        for m in range(4 * NM):
            if m == NM:
                parts[3] = cur
                cur = self.seq(['L_grp1:'])
            if m == 2 * NM:
                cur += self.seq([f's_cmp_eq_u32 s{S_LOOP}, s{S_HALF}', 's_cbranch_scc1 L_htail'])
                p4h = list(cur)
            if m == o.hook:
                p4a = cur + self.seq(hook_a)
                p4t = self.seq(hook_t)
                cur = self.seq(hook_b)
            if o.gst and m % NM == 0:
                cur += self.seq([f's_memtime s[{S_ST}:{S_ST + 1}]', 's_add_u32 s100, s100, 1', 's_min_u32 s100, s100, 31', 's_waitcnt lgkmcnt(0)',
                                 's_mov_b32 m0, s100', f'v_writelane_b32 v253, s{S_ST}, m0'])
            if o.phi and m in (0, o.phi):
                cur += self.seq(prio(0 if m else 2, f'L_pr{m}'))
            cur += self.seq([mfma(m % NM)])
            for it in gaps[4 * NM + m]:
                if it.code == '@BLK':
                    parts[0] = cur + self.seq(sstamp() + ['s_waitcnt vmcnt(0)', f's_cmp_le_u32 s{S_LOOP}, {o.pfend}', 's_cbranch_scc1 L_blk'])
                    pfp = self.seq(([] if o.nopf & 16 else pfx_b() + pfx_a()) + pfw())
                    parts[1] = self.seq(blk_a)
                    parts[2] = self.seq(blk_b)
                    pbt = self.seq(blk_t)
                    pb2 = self.seq(blk_b2)
                    cur = self.seq(blk_c)
                else:
                    cur += self.seq(keep(it.code))
        cur += self.seq([f's_cmp_lg_u32 s{S_LOOP}, 1', 's_cbranch_scc1 L_cin_loop'])
        parts[4] = p4a + cur
        p4x = p4a + p4t + cur
        tail = self.seq([it.code for m in range(NM) for it in gaps[4 * NM + m] if it.G == 3 and it.code != '@BLK'] + ['s_branch L_blk'])
        assert o.hook > 2 * NM
        htail = self.seq(['L_htail:'] + [it.code for m in range(NM) for it in gaps[6 * NM + m] if it.G == 5] + dppred('v_add_f32', vAcc)
                         + [f'v_add_u32 v{vRaw}, s{S_BD}, v{vRaw}', 's_branch L_blk'])
        Q = RZ
        rows = [(g, r) for g in range(4) for r in range(8)][:31]
        L = ['L_slow:', f'v_subrev_u32 v{vRaw}, s{S_BD}, v{vRaw}', 'L_slow2:', f'v_lshlrev_b32 v{FT}, 1, v0', f'v_add_u32 v{FT + 1}, s{S_BCUR}, v{FT}',
             f's_mul_i32 s{S_TW}, s{S_WAVE}, {XBSZ}', f's_add_u32 s{S_TW}, s{S_TW}, {XSP}',
             f'v_add_u32 v{FT}, s{S_TW}, v{FT}', f'v_add_u32 v{vLin}, s{S_TW}, v{vLinB}']
        L += wait(F_PEEL, 8)
        L += [f'ds_read_u16 v{Q + n}, v{FT + 1} offset:{g * XPI + r * 128}' for n, (g, r) in enumerate(rows)]
        L += [f'v_lshlrev_b32 v{Q + n}, 16, v{Q + n}' for n in range(31)]
        L += absmax(vAcc, list(range(Q, Q + 31))) + dppred('v_max_u32', vAcc)
        L += [f'v_readlane_b32 s{S_TW}, v{vAcc}, 63', f's_lshr_b32 s{S_TW}, s{S_TW}, 23', f's_sub_i32 s{S_TW}, 134, s{S_TW}',
              f's_cmp_le_u32 s{S_TW}, 9', f's_cselect_b32 s{S_PH}, 2, 3', f's_min_i32 s{S_TW}, s{S_TW}, 16',
              f's_lshl_b32 s{S_EXPC}, s{S_TW}, 2', f's_sub_i32 s{S_EXPC}, s{S_EXP}, s{S_EXPC}',
              f's_add_i32 s{S_TW}, s{S_TW}, 127', f's_lshl_b32 s{S_TW}, s{S_TW}, 23', f'v_mov_b32 v{Q + 31}, s{S_TW}']
        L += [f'v_mul_f32 v{Q + n}, s{S_TW}, v{Q + n}' for n in range(31)]
        L += [f'ds_write_b16_d16_hi v{FT + 1}, v{Q + n} offset:{g * XPI + r * 128}' for n, (g, r) in enumerate(rows)]
        L += [f'v_mul_f32 v{Q + n}, s{S_TW}, v{Q + n}' for n in range(32)]
        L += [f'ds_write_b16_d16_hi v{FT}, v{Q + n} offset:{g * XPI + r * 128}' for n, (g, r) in enumerate(rows + [(3, 7)])]
        L += [f's_mov_b32 s{S_PREV}, 0', 's_waitcnt lgkmcnt(0)', 's_branch L_prime']
        slow = self.seq(L)
        fin_ = self.seq(['L_cin_done:'] + self.stamp(9) + self.stamp_flush() + self.padsig() + ['s_endpgm'])
        rest = parts[3] + parts[4]
        full = parts[0] + pfp + parts[1] + parts[2] + pb2 + rest
        nopf = parts[0] + parts[1] + parts[2] + pbt + pb2 + parts[3] + p4x
        last = parts[0] + parts[1] + pb2 + rest
        redo = lambda pf: parts[1][:10] + slow + prime + parts[0] + (pfp if pf else []) + parts[1][:3] + rest
        end_ = tail + parts[1][:-2] + fin_
        main = peel2 + parts[4] + full + full + parts[0] + pfp + redo(1) + full + nopf + parts[0] + redo(0) + nopf + last + tail + redo(0) + end_
        main = main[:-len(end_)] + parts[0] + parts[1] + parts[2] + pb2 + slow[2:] + prime + parts[0] + parts[1][:3] + rest + end_
        hl = parts[3] + p4h + htail
        main2 = peel2 + parts[4] + parts[0] + pfp + redo(1) + full + nopf + parts[0] + parts[1] + pb2 + hl + parts[1][:10] + slow + prime + parts[0] + parts[1][:3] + hl + parts[1][:-2] + fin_
        traces = []
        for w in range(8):
            if w < 4:
                k0 = w & 2
                tr = c0 + g0a + cc + g0pf + ch[k0] + ch[k0 + 1] + chb[k0 + 1] + w1a + ([] if k0 else w1b) + w1c
            else:
                tr = c0 + g1a + cc + uc0 + uc
            k = w >> 1
            tr += uph + ch[k] + (u0 if k % 2 == 0 else u1a + (u1b if k == 1 else u1c))
            for mn in (main, main2):
                traces.append(tr + peel1 + (peelw if w == 7 else []) + mn)
        return traces

    def build(self):
        pro = self.prologue()
        d = self.dnn()
        cs = self.cin()
        rm = self.rem()
        self.seq(['L_end:', 's_endpgm'])
        traces = [pro + c for c in d + cs + rm]
        for t in traces:
            resolve_waits(t)
        for _ in range(2):
            for t in traces:
                resolve_hazards(t)
        hdr = open(os.path.join(os.path.dirname(os.path.abspath(__file__)), 'header.txt')).read()
        txt = hdr + f'; @launch grid=(256,1,1) block=(512,1,1) lds={LDS_TOTAL}\n'
        txt += f'''.amdgcn_target "amdgcn-amd-amdhsa--gfx950"
{DOC}.text
.globl {KNAME}
.p2align 8
.type {KNAME},@function
{KNAME}:
'''
        body_ = self.P.emit()
        if 'wsame' in self.opt.dbg:
            body_ = body_.replace(f's_add_u32 s{S_WSOFF}, s{S_WSOFF}, {32 * 3328}', f's_xor_b32 s{S_WSOFF}, s{S_WSOFF}, 0')
        if 'xsame' in self.opt.dbg:
            import re as _re
            body_ = _re.sub(r'v_lshl_add_u32 v(2[4-9]|3[01]), v(1[6-9]), 7', r'v_lshl_add_u32 v\1, v16, 7', body_)
            body_ = _re.sub(r'v_lshl_add_u32 v(2[4-9]|3[01]), v(2[0-3]), 7', r'v_lshl_add_u32 v\1, v20, 7', body_)
            body_ = _re.sub(r'v_lshl_add_u32 v(2[4-9]|3[01]), v(9[6-9]), 7', r'v_lshl_add_u32 v\1, v96, 7', body_)
            body_ = _re.sub(r'v_lshl_add_u32 v(2[4-9]|3[01]), v(10[0-3]), 7', r'v_lshl_add_u32 v\1, v100, 7', body_)
            body_ = body_.replace('offen offset:12\n', 'offen offset:0\n').replace('offen offset:844\n', 'offen offset:832\n')
            body_ = body_.replace(f's_mov_b32 s{S_IDXOFF}, 28', f's_mov_b32 s{S_IDXOFF}, 0').replace(f's_add_u32 s{S_IDXOFF}, s{S_IDXOFF}, 16', 's_nop 0')
        if self.opt.align:
            for lab in ('L_dnn_loop0:', 'L_dnn_loop1:', 'L_cin_loop:', 'L_epi:'):
                pad = '  s_nop 0\n' if self.opt.align > 100 else ''
                body_ = body_.replace(lab + '\n', f'.p2align {self.opt.align % 100}\n{pad}{lab}\n')
        txt += body_
        txt += f'''.section .rodata,"a"
.p2align 6
.amdhsa_kernel {KNAME}
  .amdhsa_next_free_vgpr 256
  .amdhsa_next_free_sgpr 102
  .amdhsa_accum_offset 256
  .amdhsa_group_segment_fixed_size 0
  .amdhsa_kernarg_size 88
  .amdhsa_user_sgpr_count 2
  .amdhsa_user_sgpr_kernarg_segment_ptr 1
  .amdhsa_system_sgpr_workgroup_id_x 1
  .amdhsa_float_denorm_mode_32 {self.opt.denorm}
.end_amdhsa_kernel
'''
        return txt


def main():
    ap = argparse.ArgumentParser()
    ap.add_argument('-o', default='standalone__deep_cross_xdeepfm__recsys.s')
    ap.add_argument('--stamps', action='store_true')
    ap.add_argument('--padat', default='')
    ap.add_argument('--padmin', type=int, default=0)
    ap.add_argument('--nodma', action='store_true')
    ap.add_argument('--cpf', type=int, default=2)
    ap.add_argument('--coop', type=int, default=1)
    ap.add_argument('--coopw', type=int, default=2)
    ap.add_argument('--tbpos', type=int, default=0)
    ap.add_argument('--dbar3', type=int, default=1)
    ap.add_argument('--tlb', type=int, default=0)
    ap.add_argument('--tlb2', type=int, default=1)
    ap.add_argument('--itst', type=int, default=0)
    ap.add_argument('--diag', type=int, default=0)
    ap.add_argument('--dbg', default='')
    ap.add_argument('--lead3', type=int, default=1)
    ap.add_argument('--morder', type=int, default=0)
    ap.add_argument('--etlb', type=int, default=21)
    ap.add_argument('--lateb', type=int, default=0)
    ap.add_argument('--wfl', default='')
    ap.add_argument('--xfl', default='')
    ap.add_argument('--tag', type=int, default=0)
    ap.add_argument('--idxfirst', type=int, default=1)
    ap.add_argument('--bpos', type=int, default=2)
    ap.add_argument('--sigat', type=int, default=4)
    ap.add_argument('--epx', type=int, default=1)
    ap.add_argument('--denorm', type=int, default=3)
    ap.add_argument('--mprio', type=int, default=0)
    ap.add_argument('--swap', type=int, default=0)
    ap.add_argument('--bov', type=int, default=1)
    ap.add_argument('--rfirst', type=int, default=0)
    ap.add_argument('--g1x', type=int, default=0)
    ap.add_argument('--ldsred', type=int, default=0)
    ap.add_argument('--csnake', type=int, default=0)
    ap.add_argument('--cswap', type=int, default=0)
    ap.add_argument('--align', type=int, default=0)
    ap.add_argument('--c2', type=int, default=0)
    ap.add_argument('--d1', type=int, default=0)
    ap.add_argument('--cstr', type=int, default=3)
    ap.add_argument('--bearly', type=int, default=1)
    ap.add_argument('--w2late', type=int, default=1)
    ap.add_argument('--aov', type=int, default=3)
    ap.add_argument('--upos', type=int, default=1)
    ap.add_argument('--calt', type=int, default=1)
    ap.add_argument('--pfpos', type=int, default=1)
    ap.add_argument('--wlate', type=int, default=0)
    ap.add_argument('--dbar2', type=int, default=0)
    ap.add_argument('--dbar', type=int, default=0)
    ap.add_argument('--pfw', type=int, default=1)
    ap.add_argument('--pfx', type=int, default=3)
    ap.add_argument('--pfx0', type=int, default=4)
    ap.add_argument('--pfs', type=int, default=14)
    ap.add_argument('--dcoopx', type=int, default=1)
    ap.add_argument('--dcx0', type=int, default=0)
    ap.add_argument('--dcxpos', type=int, default=-1)
    ap.add_argument('--pfe0', type=int, default=2)
    ap.add_argument('--pfne', type=int, default=14)
    ap.add_argument('--prio47', type=int, default=0)
    ap.add_argument('--lookahead', type=int, default=5)
    ap.add_argument('--nz', type=int, default=6)
    ap.add_argument('--nwf', type=int, default=8)
    ap.add_argument('--hiat', type=int, default=4)
    ap.add_argument('--wmerge', type=int, default=0)
    ap.add_argument('--gapv', type=int, default=2)
    ap.add_argument('--lat', type=int, default=5)
    ap.add_argument('--lb', type=int, default=0)
    ap.add_argument('--sym', type=int, default=0)
    ap.add_argument('--n4', type=int, default=20)
    ap.add_argument('--tbl', type=int, default=0)
    ap.add_argument('--nopf', type=int, default=16)
    ap.add_argument('--idx1', type=int, default=1)
    ap.add_argument('--sv', type=int, default=1)
    ap.add_argument('--pb', type=int, default=3)
    ap.add_argument('--dpf', type=int, default=0)
    ap.add_argument('--dpn', type=int, default=4)
    ap.add_argument('--mord', type=int, default=0)
    ap.add_argument('--q0', type=int, default=5)
    ap.add_argument('--q1', type=int, default=7)
    ap.add_argument('--u0', type=int, default=8)
    ap.add_argument('--un', type=int, default=26)
    ap.add_argument('--ro', type=int, default=0)
    ap.add_argument('--dfirst', type=int, default=0)
    ap.add_argument('--er0', type=int, default=0)
    ap.add_argument('--er1', type=int, default=0)
    ap.add_argument('--lg0', type=int, default=0)
    ap.add_argument('--fprio', type=int, default=1)
    ap.add_argument('--lite', type=int, default=0)
    ap.add_argument('--pf1', type=int, default=3)
    ap.add_argument('--amp', type=int, default=0)
    ap.add_argument('--ofl', default='')
    ap.add_argument('--uprio', type=int, default=1)
    ap.add_argument('--ccpos', type=int, default=1)
    ap.add_argument('--s1e', type=int, default=9)
    ap.add_argument('--s2e', type=int, default=0)
    ap.add_argument('--shs', type=int, default=256)
    ap.add_argument('--pfp', type=int, default=1)
    ap.add_argument('--epos', type=int, default=0)
    ap.add_argument('--hook', type=int, default=100)
    ap.add_argument('--rrd', type=int, default=11)
    ap.add_argument('--rdrop', default='')
    ap.add_argument('--pfr', type=int, default=4)
    ap.add_argument('--vin', type=int, default=1)
    ap.add_argument('--rstag', type=int, default=1)
    ap.add_argument('--eprio', type=int, default=1)
    ap.add_argument('--nopk', type=int, default=0)
    ap.add_argument('--w1first', type=int, default=0)
    ap.add_argument('--xpos', type=int, default=1)
    ap.add_argument('--z1lo', type=int, default=40)
    ap.add_argument('--pfend', type=int, default=3)
    ap.add_argument('--gst', type=int, default=0)
    ap.add_argument('--gapl', type=int, default=2)
    ap.add_argument('--gapt', type=int, default=2)
    ap.add_argument('--wcost', type=int, default=2)
    ap.add_argument('--bprio', type=int, default=0)
    ap.add_argument('--c1hi', type=int, default=-8)
    ap.add_argument('--c2hi', type=int, default=12)
    ap.add_argument('--rspan', type=int, default=30)
    ap.add_argument('--rlead', type=int, default=14)
    ap.add_argument('--pfd', type=int, default=10)
    ap.add_argument('--mo', type=int, default=3)
    ap.add_argument('--ba', type=int, default=6)
    ap.add_argument('--sig2', type=int, default=4)
    ap.add_argument('--drop', default='')
    ap.add_argument('--al8', type=int, default=4)
    ap.add_argument('--alph', type=int, default=0)
    ap.add_argument('--almm', type=int, default=0)
    ap.add_argument('--phi', type=int, default=110)
    ap.add_argument('--rawlo', type=int, default=8)
    ap.add_argument('--flo', type=int, default=3)
    opt = ap.parse_args()
    resolve_waits.dbg = 'dup' in opt.dbg
    g = Gen(opt)
    txt = g.build()
    if opt.al8:
        import align8
        rg = []
        if opt.al8 & 1:
            rg.append(('L_cin_loop', 'L_slow'))
        if opt.al8 & 2:
            rg += [('L_dnn_loop0', 'L_dnn_h1'), ('L_dnn_loop1', 'L_epi')]
        if opt.al8 & 4:
            rg += [('L_epi', 'L_dpub')]
        txt = align8.align(txt, rg, opt.alph, opt.almm)
    open(opt.o, 'w').write(txt)
    print('wrote', opt.o, len(txt), 'bytes')


if __name__ == '__main__':
    main()
```

```python
import sys, os, struct, argparse
sys.path.insert(0, os.path.dirname(os.path.abspath(__file__)))
from cinplan import ZD, cls
from asmlib import I, WaitTag, Prog, resolve_waits, resolve_hazards

KNAME = 'standalone__deep_cross_xdeepfm__recsys_kernel'
LDS_TOTAL = 163840

XSLOT = 16384
WR = 4 * XSLOT
WP = 640
WSLOT = 32 * WP
L_BIAS = WR + 4 * WSLOT
L_W2 = L_BIAS + WP
RB = 2 * XSLOT
RWR = 131072

ASZ = 35264
A1 = 1024
A2 = A1 + ASZ
A3 = A2 + ASZ
UST = 1356
V3OFF = A3 + ASZ
V2OFF = V3OFF + 2048
L_WCO = V2OFF + 1408
L_FLG = L_WCO + 192
RC = L_FLG + 64
XB0 = RC + 512
XPI = 1056
XBSZ = 4 * XPI
XB1 = A3
TA = A1
TC = TA + 11 * 1024
TD = TC + 12 * 1024
TB = A2
XSP = A1
XCH = XB0 + 8 * XBSZ
OOB = 0x100000
NCLR = 56
NPOOL = 224
assert XCH + 8192 <= LDS_TOTAL and XB0 % 16 == 0 and A2 % 16 == 0 and A3 % 16 == 0 and L_WCO % 16 == 0
assert 8 * XBSZ <= ASZ and TD + 11 * 1024 <= A2

S_WAVE = 3
S_IDX, S_TAB, S_CIN, S_WCO, S_W1, S_B1, S_W2, S_BO, S_OUT, S_DBG, S_WS = 4, 6, 8, 10, 12, 14, 16, 18, 20, 22, 24
S_MB, S_R = 26, 27
SRD_IDX, SRD_TAB, SRD_CIN, SRD_WCO, SRD_W, SRD_B1, SRD_W2, SRD_OUT, SRD_WS, SRD_DBG = 28, 32, 36, 40, 44, 48, 52, 56, 60, 64
S_T0, S_T1, S_T2, S_T3 = 68, 69, 70, 71
S_LOOP, S_IDXOFF, S_WSOFF, S_WMB, S_XM0, S_N0, S_C0, S_CW, S_BOUT, S_TW = 72, 73, 74, 75, 76, 77, 78, 79, 80, 81
S_EX = 82
S_GRP, S_RC = 84, 85
S_ST = 86
S_M26, S_MASK = 90, 92
S_SAMP, S_STG, S_STG9, S_TGT = 94, 95, 96, 97
S_M26B = 98
S_GW = 100
S_TAGT = 0
S_TAG = 1
S_PW = 101
S_PX = 77
S_PXE = 73

GELU_C0 = -2.0 * 0.7978845608028654 * 1.4426950408889634
GELU_C1 = GELU_C0 * 0.044715


def f32hex(x):
    return '0x%08x' % struct.unpack('<I', struct.pack('<f', x))[0]


def vr(a, n):
    return f'v[{a}:{a + n - 1}]' if n > 1 else f'v{a}'


def srd(a):
    return f's[{a}:{a + 3}]'


def flat(gs):
    res = []
    for c in gs:
        if isinstance(c, (tuple, list)):
            res += flat(c)
        else:
            res.append(c)
    return res


def interleave(a, b):
    out = []
    ia = ib = 0
    na, nb = len(a), len(b)
    while ia < na or ib < nb:
        if ib >= nb or (ia < na and ia * nb <= ib * na):
            out.append(a[ia]); ia += 1
        else:
            out.append(b[ib]); ib += 1
    return out


assert all((d * 2521) >> 16 == d // 26 for d in range(800))
assert all((d * 10923) >> 16 == d // 6 for d in range(64))
assert all((d * 1561) >> 16 == d // 42 for d in range(176))


DOC = '''; ---------------------------------------------------------------------------------------------
;
;       V3[h,k]  = sum_g wo[52+g] W3[g,h,k]          V2[i,j] = sum_h wo[26+h] W2[h,i,j]
;       U[i,j,k] = sum_h W2[h,i,j] V3[h,k]
;       g1[i]    = wo[i] + sum_j V2[i,j] x_j + sum_jk U[i,j,k] x_j x_k
;   Both quadratic forms use the 351 distinct products x_j x_k (j<=k) with symmetrised weights,
; Work split: per block of 128 samples, 5 workgroups do the DNN branch (128 x 336 output tiles) and
;   3 workgroups the CIN branch; partial logits go through d_ws (sc1) and a counter in d_debug,
;   the last arriver of a block adds them up and writes d_out.
; ---------------------------------------------------------------------------------------------
'''


class Gen:
    def __init__(self, opt):
        self.opt = opt
        self.P = Prog()
        self.role = 'x'

    def seq(self, lines):
        return [self.P.add(l) for l in flat(lines)]

    def build_srd(self, dst, ptr, size):
        return [f's_mov_b32 s{dst}, s{ptr}', f's_and_b32 s{dst + 1}, s{ptr + 1}, 0xffff',
                f's_mov_b32 s{dst + 2}, {size}', f's_mov_b32 s{dst + 3}, 0x20000']

    def stamp(self, slot):
        if self.opt.padat == f'{self.role}{slot}':
            return [f's_memrealtime s[88:89]', 's_waitcnt lgkmcnt(0)']
        if not self.opt.stamps:
            return []
        return [f's_memtime s[{S_ST}:{S_ST + 1}]', f's_memrealtime s[{S_ST + 2}:{S_ST + 3}]', 's_waitcnt lgkmcnt(0)',
                f'v_writelane_b32 v252, s{S_ST}, {slot}', f'v_writelane_b32 v253, s{S_ST + 2}, {slot}']

    def stamp_flush(self):
        if not self.opt.stamps:
            return []
        L = self.build_srd(SRD_WS, S_WS, 0x10000000)
        L += [f's_lshl_b32 s{S_C0}, s2, 3', f's_add_u32 s{S_C0}, s{S_C0}, s{S_WAVE}',
              f's_lshl_b32 s{S_C0}, s{S_C0}, 8', f's_add_u32 s{S_C0}, s{S_C0}, 0x100000',
              'v_lshlrev_b32 v254, 3, v0', 's_mov_b32 exec_hi, 0',
              f'buffer_store_dwordx2 v[252:253], v254, {srd(SRD_WS)}, s{S_C0} offen', 's_mov_b32 exec_hi, -1']
        return L

    def stamp0(self):
        if not self.opt.stamps:
            return []
        return ['v_mov_b32 v252, 0xcdcdcdcd', 'v_mov_b32 v253, 0xcdcdcdcd',
                f'v_writelane_b32 v252, s{S_ST}, 0', f'v_writelane_b32 v253, s{S_ST + 2}, 0'] + self.stamp(15)

    def tlb2(self, t, vflag):
        L = self.build_srd(SRD_WS, S_WS, 0x10000000) + self.build_srd(SRD_DBG, S_DBG, 256)
        L += [f'v_lshlrev_b32 v{t}, 2, v0',
              ('s_mov_b64 exec, 0xff', f's_mov_b32 s{S_TW}, 0x80000',
               f'buffer_load_dword v255, v{t}, {srd(SRD_WS)}, s{S_TW} offen',
               f'buffer_load_dword v{vflag}, v{t}, {srd(SRD_DBG)}, 0 offen offset:128 sc1',
               's_mov_b64 exec, -1'), f'v_mov_b32 v{t}, 0']
        return L

    def cleared(self, lab, t, vflag):
        chk = [f'v_cmp_eq_u32 vcc, 0, v{vflag}', 's_and_b32 vcc_lo, vcc_lo, 0xff']
        return chk + [f's_cbranch_scc0 {lab}_ok', f's_mov_b32 s{S_C0}, 0x40000',
                f'{lab}:', f's_sub_u32 s{S_C0}, s{S_C0}, 1', 's_cbranch_scc1 L_end', f'v_lshlrev_b32 v{vflag}, 2, v0', f'v_and_b32 v{vflag}, 31, v{vflag}',
                f'buffer_load_dword v{vflag}, v{vflag}, {srd(SRD_DBG)}, 0 offen offset:128 sc1', 's_waitcnt vmcnt(0)'] + chk + [f's_cbranch_scc1 {lab}', f'{lab}_ok:']

    def padsig(self):
        o = self.opt
        if not o.padat:
            return []
        pre = ['v_mov_b32 v8, 4']
        if (o.padat[0] if o.padat != 'start' else 'd') != self.role:
            return pre
        return pre + [f's_cmp_lg_u32 s{S_WAVE}, 0', 's_cbranch_scc1 L_nosig'] + ([f's_not_b32 s88, s88'] if o.padmin else []) + ['v_mov_b32 v7, s88', 's_mov_b64 exec, 1',
                f'buffer_atomic_umax v7, v8, {srd(SRD_DBG)}, 0 offen', 's_mov_b64 exec, -1', 'L_nosig:']

    def tlb1(self, vtmp, vdst):
        if not self.opt.etlb:
            return self.build_srd(SRD_TAB, S_TAB, 100000 * 128)
        return self.build_srd(SRD_TAB, S_TAB, 100000 * 128) + [
            f'v_mov_b32 v{vtmp}, s{S_BOUT}', f'buffer_load_dword v{vdst}, v{vtmp}, {srd(SRD_TAB)}, 0 offen']

    def prologue(self):
        L = []
        if self.opt.padat == 'start' or self.opt.amp:
            L += ['s_memrealtime s[88:89]']
        elif self.opt.padat:
            L += [f's_mov_b32 s88, {-1 if self.opt.padmin else 0}']
        if self.opt.stamps:
            L += [f's_memtime s[{S_ST}:{S_ST + 1}]', f's_memrealtime s[{S_ST + 2}:{S_ST + 3}]']
        L += ['s_cmp_ge_u32 s2, 256', 's_cbranch_scc1 L_end',
              's_load_dwordx16 s[4:19], s[0:1], 0',
              's_load_dwordx4 s[20:23], s[0:1], 64',
              's_load_dwordx2 s[24:25], s[0:1], 80',
              'v_lshrrev_b32 v1, 6, v0']
        if self.opt.cpf:
            L += [f's_getpc_b64 s[{S_MASK}:{S_MASK + 1}]', 'L_pc:',
                  f's_and_b32 s{S_T0}, s2, 0xf8', f'v_add_u32 v2, s{S_T0}, v1', 'v_lshlrev_b32 v2, 7, v2'] + (['v_and_b32 v3, 1, v0', 'v_lshl_add_u32 v2, v3, 15, v2'] if self.opt.cpf == 2 else []) + [
                  f'v_min_u32 v2, L_end-L_pc, v2',
                  f'v_mov_b32 v3, s{S_MASK + 1}',
                  f'v_add_co_u32 v2, vcc, s{S_MASK}, v2', 'v_addc_co_u32 v3, vcc, 0, v3, vcc',
                  'global_load_dword v255, v[2:3], off']
        L += ['v_and_b32 v0, 63, v0',
              f'v_readfirstlane_b32 s{S_WAVE}, v1',
              f's_and_b32 s{S_T0}, s2, 7', f's_lshl_b32 s{S_T0}, s{S_T0}, 2',
              f's_lshr_b32 s{S_MB}, s2, 6', f's_add_u32 s{S_MB}, s{S_MB}, s{S_T0}',
              f's_bfe_u32 s{S_R}, s2, 0x30003',
              f's_and_b32 s{S_BOUT}, s2, 0xf8', f's_add_u32 s{S_BOUT}, s{S_BOUT}, s{S_WAVE}', f's_lshl_b32 s{S_BOUT}, s{S_BOUT}, {self.opt.etlb}',
              f's_cmp_ge_u32 s{S_R}, 5', 's_cbranch_scc1 L_cin']
        return self.seq(L)

    def gelu(self, groups, TB, KC0, KC1, KONE):
        p2 = lambda r: vr(r, 2)
        L = []
        seen = set()
        for k, vals in enumerate(groups):
            tb = TB + (k % 2) * 16
            V_ = [(x, w, s_, tb + 4 * i_, tb + 4 * i_ + 2) for i_, (x, w, s_) in enumerate(vals)]
            for (x, w, s_, t, u) in V_:
                L.append(f'v_pk_mul_f32 {p2(t)}, {p2(x)}, {p2(x)}')
            for (x, w, s_, t, u) in V_:
                L.append(f'v_pk_fma_f32 {p2(t)}, {p2(t)}, {p2(KC1)}, {p2(KC0)}')
            for (x, w, s_, t, u) in V_:
                L.append(f'v_pk_mul_f32 {p2(t)}, {p2(t)}, {p2(x)}')
            for (x, w, s_, t, u) in V_:
                L += [f'v_exp_f32 v{t}, v{t}', f'v_exp_f32 v{t + 1}, v{t + 1}']
            for (x, w, s_, t, u) in V_:
                L.append(f'v_pk_fma_f32 {p2(t)}, {p2(t)}, {p2(w)}, {p2(w)}')
            for (x, w, s_, t, u) in V_:
                L += [f'v_rcp_f32 v{t}, v{t}', f'v_rcp_f32 v{t + 1}, v{t + 1}']
            for (x, w, s_, t, u) in V_:
                if s_ in seen:
                    L.append(f'v_pk_fma_f32 {p2(s_)}, {p2(t)}, {p2(x)}, {p2(s_)}')
                else:
                    L.append(f'v_pk_mul_f32 {p2(s_)}, {p2(t)}, {p2(x)}')
                    seen.add(s_)
        if self.opt.nopk:
            import re as _re
            L2 = []
            for x in L:
                if x.startswith('v_pk_'):
                    mn = x.split()[0].replace('v_pk_', 'v_')
                    rs = [int(r) for r in _re.findall(r'v\[(\d+):', x)]
                    L2 += [f'{mn} ' + ', '.join(f'v{r + h}' for r in rs) for h in range(2)]
                else:
                    L2.append(x)
            L = L2
        return L

    def red4(self, SUMP):
        sm = lambda tm: SUMP + 2 * tm
        L = [f'v_add_f32 v{sm(tm)}, v{sm(tm)}, v{sm(tm) + 1}' for tm in range(4)]
        L += [f'v_permlane32_swap_b32 v{sm(tm)}, v{sm(tm + 2)}' for tm in range(2)]
        L += [f'v_add_f32 v{sm(tm)}, v{sm(tm)}, v{sm(tm + 2)}' for tm in range(2)]
        L += [f'v_permlane16_swap_b32 v{sm(0)}, v{sm(1)}', f'v_add_f32 v{sm(0)}, v{sm(0)}, v{sm(1)}']
        return L

    def kconst(self, KC0, KC1, KONE):
        return [f'v_mov_b32 v{KC0}, {f32hex(GELU_C0)}', f'v_mov_b32 v{KC0 + 1}, {f32hex(GELU_C0)}',
                f'v_mov_b32 v{KC1}, {f32hex(GELU_C1)}', f'v_mov_b32 v{KC1 + 1}, {f32hex(GELU_C1)}',
                f'v_mov_b32 v{KONE}, 0x71800000']

    def winv(self, R, n, KONE):
        return [f'v_rcp_f32 v{R + k}, v{R + k}' for k in range(n)] + [f'v_med3_f32 v{R + k}, v{R + k}, -v{KONE}, v{KONE}' for k in range(n)]

    def dnn(self):
        o = self.opt
        self.role = 'd'
        vW = [[1, 2, 3, 4, 5], [6, 7, 8, 9, 10]]
        vX = [11, 12]
        vIdxOff, vCh = 13, [14, 15]
        ST = [16, 20]
        VO = 24
        vWD = [32, 33, 34]
        vP, vPc, vBL = 35, 36, 37
        WF = 40
        XA = 80
        T = 112
        W2F = 112
        ACC = 140
        PK = 220
        SUMP, KC0, KC1, KONE = 16, 232, 234, 236
        WL = 3

        def acc(tn, tm):
            return ACC + (tn * 4 + tm) * 4

        HH, SL = S_T0, S_T1
        g, i4, q = T + 18, T + 19, T + 20
        PI, vCW = T + 8, T + 12
        nr = o.coopw
        L = [f's_mul_i32 s{S_N0}, s{S_R}, {WP}',
             f's_mul_i32 s{S_T2}, s{S_WAVE}, 7', f'v_min_u32 v{q}, 6, v0', f'v_add_u32 v{q}, s{S_T2}, v{q}', f'v_min_u32 v{q}, 51, v{q}',
             f'v_lshrrev_b32 v{g}, 1, v{q}', f'v_mul_u32_u24 v{g}, 96, v{g}', f'v_lshl_add_u32 v{q}, v{q}, 2, v{g}',
             f's_mul_i32 s{S_C0}, s{S_R}, 26', f's_min_u32 s{S_C0}, s{S_C0}, 102', f's_lshl_b32 s{S_T3}, s{S_MB}, 7',
             f's_add_u32 s{S_C0}, s{S_C0}, s{S_T3}', f's_mul_i32 s{S_C0}, s{S_C0}, 104',
             f's_and_b32 s{S_T2}, s{S_MB}, 3', f's_lshl_b32 s{S_T2}, s{S_T2}, 3', f's_add_u32 s{S_T2}, s{S_T2}, s{S_WAVE}',
             f's_mul_i32 s{S_T2}, s{S_T2}, 3328', f's_add_u32 s{S_TW}, s{S_T2}, s{S_N0}',
             f'v_min_u32 v{vCW}, {8 * nr - 1}, v0', f'v_lshrrev_b32 v{g}, 3, v{vCW}', f's_mov_b32 s{S_T2}, {32 * 3328}',
             f'v_mul_u32_u24 v{g}, s{S_T2}, v{g}',
             f'v_and_b32 v{vCW}, 7, v{vCW}', f'v_min_u32 v{vCW}, 4, v{vCW}', f'v_lshl_add_u32 v{vCW}, v{vCW}, 7, v{g}',
             's_waitcnt lgkmcnt(0)']
        L += self.build_srd(SRD_IDX, S_IDX, 4096 * 104)
        L += [f'buffer_load_dwordx3 {vr(PI, 3)}, v{q}, {srd(SRD_IDX)}, s{S_C0} offen']
        L += self.tlb1(T + 24, 255)
        vec = lambda dst, sr: [f's_mov_b32 m0, {dst}', 's_mov_b32 exec_hi, 0xff',
                               I(f'buffer_load_dwordx4 v{vBL}, {srd(sr)}, s{S_N0} offen lds', tag='BIAS'), 's_mov_b64 exec, -1']
        L += [f'v_lshlrev_b32 v{vBL}, 4, v0'] + self.build_srd(SRD_B1, S_B1, 3328)
        L += self.build_srd(SRD_W, S_W1, 1664 * 3328)
        L += [f'buffer_load_dword v255, v{vCW}, {srd(SRD_W)}, s{S_TW} offen']
        L += vec(L_BIAS, SRD_B1)
        L += self.stamp0()
        L += [f's_lshr_b32 s{HH}, s{S_WAVE}, 2', f's_and_b32 s{SL}, s{S_WAVE}, 3',
              f's_lshl_b32 s{S_T2}, s{S_WAVE}, 4', f's_add_u32 s{S_T2}, s{S_T2}, s{S_T3}',
              f'v_lshrrev_b32 v{T + 16}, 3, v0', f'v_add_u32 v{T + 16}, s{S_T2}, v{T + 16}',
              f'v_mul_u32_u24 v{vIdxOff}, 104, v{T + 16}',
              f's_mul_i32 s{S_T3}, s{HH}, 192', f's_mov_b32 s{S_T2}, 1639', f's_and_b32 s{S_C0}, s{SL}, 1', f's_lshl_b32 s{S_C0}, s{S_C0}, 2',
              f's_mov_b32 s{S_TW}, 3328', f'v_add_u32 v{T + 16}, s{S_T3}, v0']
        for u in range(3):
            ci, rr = T + 16, T + 17
            L += [f'v_mul_u32_u24 v{rr}, s{S_T2}, v{ci}', f'v_lshrrev_b32 v{rr}, 16, v{rr}',
                  f'v_mul_u32_u24 v{q}, 40, v{rr}', f'v_sub_u32 v{q}, v{ci}, v{q}',
                  f'v_and_b32 v{i4}, 2, v{rr}', f'v_or_b32 v{i4}, s{S_C0}, v{i4}', f'v_xor_b32 v{q}, v{q}, v{i4}',
                  f'v_mul_u32_u24 v{rr}, s{S_TW}, v{rr}', f'v_lshl_add_u32 v{vWD[u]}, v{q}, 4, v{rr}']
            if u:
                L += [f'v_subrev_u32 v{vWD[u]}, {1024 * u}, v{vWD[u]}']
            if u < 2:
                L += [f'v_add_u32 v{ci}, 64, v{ci}']
        L += [f's_mul_i32 s{S_T2}, s{SL}, {8 * 3328}', f's_add_u32 s{S_WSOFF}, s{S_T2}, s{S_N0}',
              f's_mul_i32 s{S_WMB}, s{SL}, {8 * WP}', f's_mul_i32 s{S_T2}, s{HH}, 3072', f's_add_u32 s{S_WMB}, s{S_WMB}, s{S_T2}',
              f's_lshl_b32 s{S_XM0}, s{S_WAVE}, 11',
              f'v_and_b32 v{q}, 7, v0', f'v_lshrrev_b32 v{g}, 4, v0',
              f'v_xor_b32 v{q}, v{q}, v{g}', f'v_lshlrev_b32 v{vCh[0]}, 4, v{q}',
              f'v_xor_b32 v{vCh[1]}, 64, v{vCh[0]}']
        L += self.build_srd(SRD_W2, S_W2, 3328)
        L += [f's_lshr_b32 s{S_T2}, s{S_WAVE}, 1', f's_mul_i32 s{S_T3}, s{S_T2}, 5',
              f'v_bfe_u32 v{i4}, v0, 2, 2', f'v_lshl_add_u32 v{q}, v{g}, 3, v{i4}', f'v_mul_u32_u24 v{q}, {WP}, v{q}',
              f'v_and_b32 v{i4}, 3, v0', f'v_lshl_add_u32 v{q}, v{i4}, 3, v{q}', f'v_add_u32 v{q}, {WR}, v{q}',
              f'v_bfe_u32 v{i4}, v0, 3, 2']
        for i in range(5):
            L += [f'v_xor_b32 v{T + 16}, s{S_T3}, v{i4}', f'v_lshl_add_u32 v{vW[0][i]}, v{T + 16}, 5, v{q}',
                  f'v_add_u32 v{vW[1][i]}, {2 * WSLOT}, v{vW[0][i]}', f's_add_u32 s{S_T3}, s{S_T3}, 1']
        L += [f's_mul_i32 s{S_T3}, s{S_T2}, 160', f's_add_u32 s{S_T3}, s{S_T3}, {L_BIAS}',
              f'v_lshlrev_b32 v{q}, 3, v{g}', f'v_add_u32 v{vP}, s{S_T3}, v{q}',
              f'v_and_b32 v{q}, 15, v0', f'v_lshlrev_b32 v{q}, 7, v{q}',
              f'v_bfe_u32 v{i4}, v0, 1, 3', f'v_xor_b32 v{i4}, v{i4}, v{g}',
              f'v_lshl_add_u32 v{q}, v{i4}, 4, v{q}',
              f's_lshl_b32 s{S_T3}, s{S_C0}, 11', f'v_add_u32 v{vX[0]}, s{S_T3}, v{q}', f'v_xor_b32 v{vX[1]}, 64, v{vX[0]}',
              f's_lshl_b32 s{S_T2}, s{S_WAVE}, 8', f's_add_u32 s{S_T2}, s{S_T2}, {RB}',
              f'v_lshlrev_b32 v{vPc}, 2, v0', f'v_add_u32 v{vPc}, s{S_T2}, v{vPc}']

        def wld(u):
            return I(f'buffer_load_dwordx4 v{vWD[u]}, {srd(SRD_W)}, s{S_WSOFF} offen offset:{1024 * u} lds', tag='W')
        wadv = f's_add_u32 s{S_WSOFF}, s{S_WSOFF}, {32 * 3328}'

        def xld(f, pc, tag, slot=None):
            slot = f if slot is None else slot
            return [f's_add_u32 m0, s{S_XM0}, {slot * XSLOT + pc * 1024}',
                    I(f'buffer_load_dwordx4 v{VO + 2 * f + pc}, {srd(SRD_TAB)}, 0 offen lds', tag=tag)]
        pkreads = lambda off: [f'ds_read_b64 {vr(PK + 2 * tn, 2)}, v{vP} offset:{off + 32 * tn}' for tn in range(5)]

        def unp(dst):
            c = []
            for tn in range(5):
                for d in range(2):
                    c += [f'v_lshlrev_b32 v{dst(tn) + 2 * d}, 16, v{PK + 2 * tn + d}', f'v_and_b32 v{dst(tn) + 2 * d + 1}, 0xffff0000, v{PK + 2 * tn + d}']
            return c

        def reads(k8):
            par = k8 % 2
            sl = k8 % 4
            wo = (sl % 2) * WSLOT
            xo = ((k8 // 2) % 4) * XSLOT
            R = [f'ds_read_b128 {vr(XA + 16 * par + 4 * tm, 4)}, v{vX[par]} offset:{xo + tm * 2048}' for tm in range(4)]
            R += [f'ds_read_b64_tr_b16 {vr(WF + 20 * par + 4 * tn + 2 * rd, 2)}, v{vW[sl // 2][tn]} offset:{wo + rd * 4 * WP}' for tn in range(5) for rd in range(2)]
            return R

        trs = [[], []]
        nsk = [0]

        def flush():
            nonlocal L
            c = self.seq(L)
            trs[0] += c; trs[1] += c
            L = []

        def wstage_p(slot):
            nonlocal L
            nsk[0] += 1
            L += [f's_add_u32 m0, s{S_WMB}, {WR + slot * WSLOT}', f's_cmp_lg_u32 s{HH}, 0', wld(0), wld(1), f's_cbranch_scc1 L_wsk{nsk[0]}']
            flush()
            trs[0] += self.seq([wld(2)])
            L += [f'L_wsk{nsk[0]}:', wadv]
        L += [f'v_lshlrev_b32 v{PI}, 7, v{PI}']
        L += [f'buffer_load_dwordx4 {vr(T + 4 * pc, 4)}, v{vIdxOff}, {srd(SRD_IDX)}, 0 offen offset:{pc * 832}' for pc in range(2)] + ['s_barrier']
        L += [f'buffer_load_dword v255, v{PI}, {srd(SRD_TAB)}, 0 offen',
              f'v_lshlrev_b32 v{PI + 2}, 7, v{PI + 2}', f'buffer_load_dword v255, v{PI + 2}, {srd(SRD_TAB)}, 0 offen']
        L += self.stamp(6)
        wstage_p(0)
        L += [WaitTag(vm_tags=['BIAS'])] + pkreads(0) + unp(lambda tn: acc(tn, 0))
        L += [f'v_mov_b64 {vr(acc(tn, tm) + 2 * d, 2)}, {vr(acc(tn, 0) + 2 * d, 2)}' for tn in range(5) for tm in range(1, 4) for d in range(2)]
        for f in range(4):
            for pc in range(2):
                L.append(f'v_lshl_add_u32 v{VO + 2 * f + pc}, v{T + 4 * pc + f}, 7, v{vCh[pc]}')
                if f < 2:
                    L += xld(f, pc, 'X0' if f == 0 else 'X')
            if f == 0:
                L += self.stamp(7) + ['s_barrier']
                wstage_p(1)
        L += [f'buffer_load_dwordx4 {vr(ST[pc], 4)}, v{vIdxOff}, {srd(SRD_IDX)}, 0 offen offset:{pc * 832 + 12}' for pc in range(2)]
        L += [f's_mov_b32 s{S_LOOP}, 0', f's_mov_b32 s{S_IDXOFF}, 28']
        L.append(WaitTag(vm_tags=['X0'], lgkm0=True))
        L += self.stamp(1) + ['s_barrier'] + self.stamp(2)
        L += reads(0)
        wstage_p(2)
        L += xld(2, 0, 'X') + [f'v_mov_b32 v{VO + 7}, v{VO + 5}', f's_cmp_lg_u32 s{HH}, 0', 's_cbranch_scc1 L_dnn_h1']
        flush()

        def mf(tn, tm, par):
            a = acc(tn, tm)
            return f'v_mfma_f32_16x16x32_bf16 {vr(a, 4)}, {vr(WF + 20 * par + 4 * tn, 4)}, {vr(XA + 16 * par + 4 * tm, 4)}, {vr(a, 4)}'

        def step(n, inloop, half):
            n8 = n % 8
            par = n8 % 2
            NW = 3 - half
            M = [mf(tn, tm if tn % 2 == 0 else 3 - tm, par) for tn in range(5) for tm in range(4)]
            R, D_, E, V = [], [], [], []
            wst = lambda slot: [(f's_add_u32 m0, s{S_WMB}, {WR + slot * WSLOT}', wld(0))] + [(wld(u),) for u in range(1, NW - 1)] + [(wld(NW - 1), wadv)]
            if inloop or n < 51:
                R = reads((n8 + 1) % 8)
            if inloop:
                D_ += wst((n8 + WL) % 4)
                f = ((n8 + 7) % 8) // 2
                D_ += [tuple(xld(f, 1 - par, 'X', (f + WL) % 4))]
                if n8 == 0:
                    for ff in range(4):
                        for pc in range(2):
                            (V if half == 1 and o.vin else E).append(f'v_lshl_add_u32 v{VO + 2 * ff + pc}, v{ST[pc] + ff}, 7, v{vCh[pc]}')
                if n8 == 1:
                    for pc in range(2):
                        E.append(f'buffer_load_dwordx4 {vr(ST[pc], 4)}, v{vIdxOff}, {srd(SRD_IDX)}, s{S_IDXOFF} offen offset:{pc * 832}')
                    E.append(f's_add_u32 s{S_IDXOFF}, s{S_IDXOFF}, 16')
                if n8 == 4 and half == 1:
                    E += [tuple(vec(L_W2, SRD_W2))]
                if n8 == 7:
                    E += [f's_add_u32 s{S_LOOP}, s{S_LOOP}, 1', f's_cmp_lt_u32 s{S_LOOP}, 6']
                W_ = [WaitTag(allbut=('W', NW), lgkm0=True)]
            elif n == 48:
                W_ = [WaitTag(allbut=('W', NW), lgkm0=True)]
                D_ += wst(3)
                R = R + pkreads(WP)
                V = self.kconst(KC0, KC1, KONE)
                if half == 0:
                    E += self.tlb2(VO, vBL)
            elif n == 49:
                W_ = [WaitTag(vm0=True, lgkm0=True)]
                V = unp(lambda tn: W2F + 4 * tn) + self.winv(W2F, 20, KONE)[:4]
            elif n == 50:
                W_ = ['s_waitcnt lgkmcnt(0)']
                V = self.winv(W2F, 20, KONE)[4:18]
            else:
                W_ = []
                V = self.winv(W2F, 20, KONE)[18:]
            if V:
                nm_ = len(M) - (o.aov if half == 0 else 1)
                M = [(M[k],) + tuple(V[k * len(V) // nm_:(k + 1) * len(V) // nm_]) for k in range(nm_)] + M[nm_:]
            fill = interleave(R, D_) + E
            S = ['s_barrier'] if (inloop or n < 51) else []
            if half == 0:
                k = o.aov
                S += M[:len(M) - k] + interleave(M[len(M) - k:], fill[:2 * k]) + fill[2 * k:] + W_
            else:
                kb = o.bov
                if n == 51 and not inloop and o.eprio:
                    S += ['s_setprio 3']
                S += fill + M[:len(M) - kb] + W_ + M[len(M) - kb:]
                if n == 51 and not inloop and o.eprio == 1:
                    S += ['s_setprio 0']
            return S

        for half in range(2):
            th = trs[half]
            th += self.seq([f'L_dnn_h{half}:', WaitTag(allbut=('W', 3 - half), lgkm0=True)])
            body = self.seq([f'L_dnn_loop{half}:'])
            for n8 in range(8):
                S = step(n8, True, half)
                if n8 == 7:
                    if o.stamps and o.itst:
                        S = [f's_memtime s[{S_ST}:{S_ST + 1}]', f's_memrealtime s[{S_ST + 2}:{S_ST + 3}]', f's_add_u32 s{S_C0}, s{S_LOOP}, 8', 's_waitcnt lgkmcnt(0)',
                             f's_mov_b32 m0, s{S_C0}', f'v_writelane_b32 v252, s{S_ST}, m0', f'v_writelane_b32 v253, s{S_ST + 2}, m0'] + S
                    S += [f's_cbranch_scc1 L_dnn_loop{half}']
                body += self.seq(S)
            for it in range(6):
                th += body
            for n in range(48, 52):
                th += self.seq(step(n, False, half))
            if half == 0:
                th += self.seq(['s_branch L_epi'])
        p2 = lambda r: vr(r, 2)
        el = lambda tn, tm, d: (acc(tn, tm) + 2 * d, W2F + 4 * tn + 2 * d, SUMP + 2 * tm)
        L = ['L_epi:'] + self.stamp(3)
        L += [f's_lshl_b32 s{S_T1}, s{S_R}, 11', f's_and_b32 s{S_T3}, s{S_MB}, 3', f's_lshl_b32 s{S_T3}, s{S_T3}, 9', f's_add_u32 s{S_T1}, s{S_T1}, s{S_T3}',
              f's_lshr_b32 s{S_T0}, s{S_MB}, 2', f's_lshl_b32 s{S_T0}, s{S_T0}, 14', f's_add_u32 s{S_T1}, s{S_T1}, s{S_T0}',
              'v_lshlrev_b32 v3, 3, v0', f'v_add_u32 v2, {RB}, v3']
        L += self.gelu([[el(tn, tm, d) for tm in range(4)] for tn in range(5) for d in range(2)], WF, KC0, KC1, KONE)
        L += self.red4(SUMP) + [f'ds_write_b32 v{vPc}, v{SUMP}', 's_waitcnt lgkmcnt(0)'] + self.stamp(4) + self.stamp_flush()
        L += [f's_cmp_eq_u32 s{S_WAVE}, 0', 's_cbranch_scc1 L_dpub']
        tr = self.seq(L)
        self.seq(['s_barrier', 's_endpgm'])
        A = 64
        L = ['L_dpub:'] + self.build_srd(SRD_WS, S_WS, 0x10000000) + self.build_srd(SRD_DBG, S_DBG, 256) + self.cleared('L_dclr', 4, vBL) + ['s_barrier'] + self.stamp(17)
        L += [f'ds_read_b64 {vr(A + 2 * qq, 2)}, v2 offset:{qq * 512}' for qq in range(4)]
        L += [f'v_pk_add_f32 {p2(A)}, {p2(A)}, {p2(A + 2)}', f'v_pk_add_f32 {p2(A + 4)}, {p2(A + 4)}, {p2(A + 6)}', f'v_pk_add_f32 {p2(A)}, {p2(A)}, {p2(A + 4)}',
              f'v_and_b32 v{A}, -2, v{A}', f'v_and_b32 v{A + 1}, -2, v{A + 1}',
              f'buffer_store_dwordx2 {vr(A, 2)}, v3, {srd(SRD_WS)}, s{S_T1} offen sc1'] + self.padsig() + ['s_endpgm']
        return [trs[0] + tr + self.seq(L), trs[1] + tr]

    def rem(self):
        o = self.opt
        self.role = 'r'
        vW = [1, 2, 7, 8]
        vX = [11, 12]
        vWD, vCh, vT, VO = 13, [14, 15], 9, 24
        SUMP = 16
        IDX = 32
        XA, WF = 64, 96
        ACC = 160
        W2F, BF = 96, 112
        PK = 224
        KC0, KC1, KONE = 240, 242, 244
        g, i4, q = 246, 247, 248
        S_F = S_IDXOFF
        acc = lambda tn, tm: ACC + (tn * 4 + tm) * 4
        L = ['L_rem:', f's_lshr_b32 s{S_GRP}, s{S_WAVE}, 2', f's_and_b32 s{S_T0}, s2, 7', f's_lshl_b32 s{S_T0}, s{S_T0}, 3', f's_add_u32 s{S_T0}, s{S_T0}, s{S_WAVE}',
             f's_mul_i32 s{S_T0}, s{S_T0}, {64 * 104}', f's_lshl_b32 s{S_XM0}, s{S_WAVE}, 14',
             f'v_lshlrev_b32 v{q}, 4, v0', f'v_lshrrev_b32 v{g}, 4, v0',
             f'v_lshrrev_b32 v{i4}, 3, v0', f'v_mul_u32_u24 v{vWD}, 3328, v{i4}', f'v_and_b32 v{i4}, 2, v{i4}',
             f's_and_b32 s{S_T1}, s{S_WAVE}, 1', f's_lshl_b32 s{S_T1}, s{S_T1}, 2', f'v_or_b32 v{i4}, s{S_T1}, v{i4}',
             f'v_and_b32 v{vT}, 7, v0', f'v_xor_b32 v{i4}, v{i4}, v{vT}', f'v_lshl_add_u32 v{vWD}, v{i4}, 4, v{vWD}',
             f's_mul_i32 s{S_WSOFF}, s{S_WAVE}, {8 * 3328}', f's_add_u32 s{S_WSOFF}, s{S_WSOFF}, 3200',
             f's_lshl_b32 s{S_WMB}, s{S_WAVE}, 10', f's_add_u32 s{S_WMB}, s{S_WMB}, {RWR}',
             's_waitcnt lgkmcnt(0)']
        L += self.build_srd(SRD_IDX, S_IDX, 4096 * 104)
        for u in range(7):
            L += [f's_add_u32 m0, s{S_XM0}, {8192 + u * 1024}', I(f'buffer_load_dwordx4 v{q}, {srd(SRD_IDX)}, s{S_T0} offen lds', tag='I'),
                  f's_add_u32 s{S_T0}, s{S_T0}, 1024']
        L += self.build_srd(SRD_W, S_W1, 1664 * 3328)
        wld = lambda slot: [f's_add_u32 m0, s{S_WMB}, {slot * 8192}', I(f'buffer_load_dwordx4 v{vWD}, {srd(SRD_W)}, s{S_WSOFF} offen lds', tag='W'),
                            f's_add_u32 s{S_WSOFF}, s{S_WSOFF}, {64 * 3328}']
        L += wld(0)
        L += self.build_srd(SRD_WS, S_WS, 0x10000000) + self.build_srd(SRD_DBG, S_DBG, 256) + [f'v_mov_b32 v{XA + k}, -1' for k in range(4)]
        L += [f's_and_b32 s{S_T2}, s2, 7', f's_lshl_b32 s{S_T0}, s{S_T2}, 3', f's_add_u32 s{S_T0}, s{S_T0}, s{S_WAVE}', f's_lshl_b32 s{S_T0}, s{S_T0}, 11', f's_lshl_b32 s{S_T2}, s{S_T2}, 2',
              f'buffer_store_dwordx4 {vr(XA, 4)}, v{q}, {srd(SRD_WS)}, s{S_T0} offen sc1',
              f'buffer_store_dwordx4 {vr(XA, 4)}, v{q}, {srd(SRD_WS)}, s{S_T0} offen offset:1024 sc1']
        L += self.build_srd(SRD_B1, S_B1, 3328) + self.build_srd(SRD_W2, S_W2, 3328) + self.build_srd(SRD_TAB, S_TAB, 100000 * 128)
        L += self.stamp0()
        L += [f'v_xor_b32 v{q}, v{vT}, v{g}', f'v_lshlrev_b32 v{vCh[0]}, 4, v{q}', f'v_xor_b32 v{vCh[1]}, 64, v{vCh[0]}',
              f'v_bfe_u32 v{i4}, v0, 2, 2', f'v_lshl_add_u32 v{q}, v{g}, 3, v{i4}', f'v_lshlrev_b32 v{q}, 7, v{q}',
              f'v_and_b32 v{i4}, 3, v0', f'v_lshl_add_u32 v{q}, v{i4}, 3, v{q}', f'v_add_u32 v{q}, {RWR}, v{q}',
              f'v_bfe_u32 v{i4}, v0, 3, 2', f'v_lshl_add_u32 v{vW[0]}, v{i4}, 5, v{q}']
        L += [f'v_xor_b32 v{vW[i]}, {32 * i}, v{vW[0]}' for i in range(1, 4)]
        L += [f'v_and_b32 v{q}, 15, v0', f'v_lshlrev_b32 v{q}, 7, v{q}',
              f'v_bfe_u32 v{i4}, v0, 1, 3', f'v_xor_b32 v{i4}, v{i4}, v{g}', f'v_lshl_add_u32 v{q}, v{i4}, 4, v{q}',
              f'v_add_u32 v{vX[0]}, s{S_XM0}, v{q}', f'v_xor_b32 v{vX[1]}, 64, v{vX[0]}',
              f'v_lshrrev_b32 v{i4}, 3, v0', f'v_lshl_add_u32 v{q}, v{vT}, 3, v{i4}', f'v_mul_u32_u24 v{q}, 104, v{q}', f'v_add_u32 v{q}, s{S_XM0}, v{q}']
        L += self.kconst(KC0, KC1, KONE) + [f'v_mov_b32 v{r}, 0' for r in range(ACC, ACC + 64)] + ['s_waitcnt vmcnt(0)']
        L += [f'ds_read_b64 {vr(IDX + 2 * k, 2)}, v{q} offset:{8192 + 8 * k}' for k in range(13)]

        def xld(src, slot, h=None):
            c = [tuple(f'v_add_u32_dpp v{VO + pc}, v{src}, v{vCh[pc % 2]} row_newbcast:{8 * hh + pc} row_mask:0xf bank_mask:{hex(3 << (2 * hh))}'
                       for hh in range(2) for pc in range(4 * k, 4 * k + 4)) for k in range(2)]
            d = [(f's_add_u32 m0, s{S_XM0}, {slot * 8192 + pc * 1024}',
                  I(f'buffer_load_dwordx4 v{VO + pc}, {srd(SRD_TAB)}, 0 offen lds', tag='X')) for pc in range(8)]
            return c[:1] + d[:4] + c[1:] + d[4:] if h is None else c[h:h + 1] + d[4 * h:4 * h + 4]
        L += [f'v_mov_b32 v{VO + pc}, 0' for pc in range(8)] + [f'v_mov_b32 v{IDX + k}, 0x7f000000' for k in (26, 27)]
        L += [f'v_lshlrev_b32 v{IDX}, 7, v{IDX}'] + xld(IDX, 0)
        L += wld(1) + [f'v_lshlrev_b32 v{IDX + k}, 7, v{IDX + k}' for k in range(25, 0, -1)] + xld(IDX + 1, 1) + wld(2)
        L += [f'v_lshlrev_b32 v{q}, 3, v{g}']

        rdx = lambda fp, h: [f'ds_read_b128 {vr(XA + 16 * h + 8 * t + 4 * par, 4)}, v{vX[par]} offset:{fp * 8192 + (2 * h + t) * 2048}' for t in (1, 0) for par in (1, 0)]
        rdw = lambda fp: [f'ds_read_b64_tr_b16 {vr(WF + 32 * fp + 8 * tn + 4 * par + 2 * rd, 2)}, v{vW[tn]} offset:{fp * 8192 + par * 4096 + rd * 512}'
                          for tn in range(4) for par in range(2) for rd in range(2)]

        def mm(fp, h):
            return [f'v_mfma_f32_16x16x32_bf16 {vr(acc(tn, 2 * h + t), 4)}, {vr(WF + 32 * fp + 8 * tn + 4 * par, 4)}, {vr(XA + 16 * h + 8 * t + 4 * par, 4)}, {vr(acc(tn, 2 * h + t), 4)}'
                    for tn in range(4) for t in range(2) for par in range(2)]
        L += [f's_mov_b32 s{S_F}, 3', f'v_mov_b32 v{vT}, v{IDX + 2}'] + list(xld(vT, 0, 0)[0])
        L += [WaitTag(allbut=('X', 12)), 's_barrier'] + self.stamp(2) + rdx(0, 0) + rdw(0)
        L += [f's_cmp_lg_u32 s{S_WAVE}, 7', 's_cbranch_scc1 L_rem_loop', 's_mov_b64 exec, 1',
              f'buffer_store_dword v{KC0}, v{vCh[0]}, {srd(SRD_DBG)}, s{S_T2} offen offset:128 sc1', 's_mov_b64 exec, -1']
        tr = self.seq(L)

        def phase(M, R, Dm, V):
            gp = [[] for _ in M]
            for k, x in enumerate(R):
                gp[k * o.rrd // max(len(R), 1)].append(x)
            for k, x in enumerate(Dm):
                gp[1 + k * 15 // len(Dm)].append(x)
            v0 = o.rrd if R else 0
            for k, x in enumerate(V):
                gp[v0 + k * (16 - v0) // len(V)].append(x)
            return [(m,) + tuple(g_) for m, g_ in zip(M, gp)]
        post = []
        for k in range(8):
            post += [f'v_lshlrev_b32 v{BF + 2 * k}, 16, v{PK + k}', f'v_and_b32 v{BF + 2 * k + 1}, 0xffff0000, v{PK + k}',
                     f'v_lshlrev_b32 v{W2F + 2 * k}, 16, v{PK + 8 + k}', f'v_and_b32 v{W2F + 2 * k + 1}, 0xffff0000, v{PK + 8 + k}']
        post += self.winv(W2F, 16, KONE)
        vld = [f'buffer_load_dwordx2 {vr(PK + 2 * tn, 2)}, v{q}, {srd(SRD_B1)}, 0 offen offset:{3200 + 32 * tn}' for tn in range(4)]
        vld += [f'buffer_load_dwordx2 {vr(PK + 8 + 2 * tn, 2)}, v{q}, {srd(SRD_W2)}, 0 offen offset:{3200 + 32 * tn}' for tn in range(4)]

        def field(fp, last):
            L = [WaitTag(allbut=('W', 0 if last else 1)), WaitTag(allbut=('X', 0 if last and fp else 8))] + ([] if last and fp else ['s_barrier'])
            if fp == 1 and not last:
                L += [f'v_xor_b32 v{vW[i]}, 16384, v{vW[i]}' for i in range(4)]
            sx = (f's_xor_b32 s{S_WMB}, s{S_WMB}, 16384',)
            wl = [sx + tuple(wld(1)) + sx] if fp == 0 else [tuple(wld(0)) + sx]
            rw = rdw(1 - fp)
            mv = [(f's_set_gpr_idx_on s{S_F}, gpr_idx(SRC0)', 's_nop 0', f'v_mov_b32 v{vT}, v{IDX}', 's_set_gpr_idx_off', f's_add_u32 s{S_F}, s{S_F}, 1')]
            if not last:
                L += phase(mm(fp, 0), rdx(fp, 1) + rw[:8], xld(vT, fp, 0)[1:], list(xld(vT, fp, 1)[0]))
                L += [WaitTag(allbut=('X', 8))]
                L += phase(mm(fp, 1), rdx(1 - fp, 0) + rw[8:], xld(vT, fp, 1)[1:] + wl, mv + list(xld(vT, fp, 0)[0]))
            elif fp == 0:
                L += phase(mm(fp, 0), rdx(fp, 1) + rw[:8], vld, [])
                L += [WaitTag(allbut=('X', 4))]
                L += phase(mm(fp, 1), rdx(1 - fp, 0) + rw[8:], [], [])
            else:
                L += phase(mm(fp, 0), rdx(fp, 1), [], []) + phase(mm(fp, 1), [], [], post[:32])
            return L
        L = ['L_rem_loop:'] + field(0, False) + field(1, False) + [f's_cmp_lt_u32 s{S_F}, 27', 's_cbranch_scc1 L_rem_loop']
        L = [x for x in flat(L) if not any((x.text if isinstance(x, I) else x).startswith(d) for d in o.rdrop.split(',') if d)]
        body = self.seq(L)
        body2 = self.seq(field(0, True) + field(1, True))
        el = lambda tn, tm, d: (acc(tn, tm) + 2 * d, W2F + 4 * tn + 2 * d, SUMP + 2 * tm)
        L = self.stamp(3) + self.tlb2(4, 5) + self.build_srd(SRD_OUT, S_OUT, 8192) + [f's_load_dword s{S_BOUT}, s[{S_BO}:{S_BO + 1}], 0',
             f'buffer_load_dword v255, v4, {srd(SRD_OUT)}, 0 offen',
             f's_and_b32 s{S_T2}, s2, 7', f's_lshl_b32 s{S_T0}, s{S_T2}, 14', f's_lshl_b32 s{S_T1}, s{S_WAVE}, 8', f's_add_u32 s{S_T0}, s{S_T0}, s{S_T1}',
             f's_add_u32 s{S_T1}, s{S_T0}, 4096', f's_add_u32 s{S_T3}, s{S_T0}, 8192',
             f's_lshl_b32 s{S_T2}, s{S_T2}, 3', f's_add_u32 s{S_T2}, s{S_T2}, s{S_WAVE}', f's_lshl_b32 s{S_T2}, s{S_T2}, 7',
             'v_lshlrev_b32 v3, 2, v0', 'v_lshlrev_b32 v2, 1, v0', 's_waitcnt lgkmcnt(0)', f's_lshl_b32 s{S_BOUT}, s{S_BOUT}, 16']
        L += post[32:]
        L += [f'v_pk_add_f32 {vr(acc(tn, tm) + 2 * d, 2)}, {vr(acc(tn, tm) + 2 * d, 2)}, {vr(BF + 4 * tn + 2 * d, 2)}' for tn in range(4) for tm in range(4) for d in range(2)]
        L += self.gelu([[el(tn, tm, d) for tm in range(4)] for tn in range(4) for d in range(2)], XA, KC0, KC1, KONE)
        L += self.red4(SUMP) + [f'v_add_f32 v{SUMP}, s{S_BOUT}, v{SUMP}'] + self.stamp(4) + self.cleared('L_rclr', 4, 5) + self.padsig()
        A = 64
        L += [f's_mov_b32 s{S_LOOP}, 0x40000', 'L_poll:', f's_sub_u32 s{S_LOOP}, s{S_LOOP}, 1', 's_cbranch_scc1 L_end']
        L += [f'buffer_load_dword v{A + k}, v3, {srd(SRD_WS)}, s{(S_T0, S_T1, S_T3)[k // 2]} offen offset:{(k % 2) * 2048} sc1' for k in range(6)]
        L += [f'v_max3_u32 v{A + 8}, v{A}, v{A + 1}, v{A + 2}', f'v_max3_u32 v{A + 9}, v{A + 3}, v{A + 4}, v{A + 5}', f'v_max_u32 v{A + 8}, v{A + 8}, v{A + 9}',
              f'v_cmp_eq_u32 vcc, -1, v{A + 8}', 's_cbranch_vccnz L_poll']
        L += [f'v_add_f32 v{A}, v{A}, v{A + 1}', f'v_add_f32 v{A + 2}, v{A + 2}, v{A + 3}', f'v_add_f32 v{A + 4}, v{A + 4}, v{A + 5}',
              f'v_add_f32 v{A}, v{A}, v{A + 2}', f'v_add_f32 v{A + 4}, v{A + 4}, v{SUMP}', f'v_add_f32 v{A}, v{A}, v{A + 4}',
              f'v_cvt_pk_bf16_f32 v{A}, v{A}, v{A}']
        if o.amp:
            L += ['s_memrealtime s[86:87]', 's_waitcnt lgkmcnt(0)', 's_sub_u32 s89, s86, s88', 's_lshl_b32 s89, s89, 3',
                  'L_ampspin:', 's_memrealtime s[86:87]', 's_waitcnt lgkmcnt(0)', 's_sub_u32 s86, s86, s88', 's_cmp_lt_u32 s86, s89', 's_cbranch_scc1 L_ampspin']
        if o.padat:
            L += ['L_padspin:', f'buffer_load_dword v7, v8, {srd(SRD_DBG)}, 0 offen sc1', 's_waitcnt vmcnt(0)', 's_memrealtime s[86:87]',
                  'v_readfirstlane_b32 s88, v7', 's_waitcnt lgkmcnt(0)', 's_cmp_eq_u32 s88, 0', 's_cbranch_scc1 L_padspin'] + (['s_not_b32 s88, s88'] if o.padmin else []) + [
                  's_sub_u32 s86, s86, s88', 's_cmp_lt_i32 s86, 6000', 's_cbranch_scc1 L_padspin']
        L += [f'buffer_store_short v{A}, v2, {srd(SRD_OUT)}, s{S_T2} offen{o.ofl}'] + self.stamp(5) + self.stamp_flush() + ['s_endpgm']
        return [tr + body * 3 + body2 + self.seq(L)]

    def cin(self):
        o = self.opt
        self.role = 'c'
        cw = S_CW
        S_BCUR, S_BD, S_EXP, S_EXPC, S_PREV, S_SC, S_PH = 74, 75, 48, 49, 50, 51, 97
        S_CHK = S_M26
        vFA, vFR, vOne, vF, vFG, vFGa = 1, 2, 3, 4, 5, 6
        vRaw, vLin, vLinB, vXw, vX1, vX2, vSh, vAcc, vOr, vSI, vXi, vC16, vPWL, vPXL, PXR = range(7, 22)
        FT, XI, aD, aS, aLc, aC = 22, 24, 28, 29, 30, 31
        RAW, X, RZ, D = 32, 40, 52, 68
        WA, WB, WC, WS_, WL = 84, 128, 172, 216, 240
        Da, Db, Dc, Ds = D, D + 4, D + 8, D + 12
        T = 40
        half, i32, t3, t4, t5, vg, vm = T + 1, T + 2, T + 3, T + 4, T + 5, T + 6, T + 7
        vStg = 48
        GB = 49
        vMx, vWr, vL6, vL, vWu, vWo = range(62, 68)
        vDl = 247
        AD = 68
        vA3, vBs0, vBs1a, vBs1b, vUw, vV2w, vE, V3T = 240, 241, 242, 243, 244, 245, 246, 81
        BALL, UP, AFR, DALL = 84, 84, 132, 140
        BT, SUM, OUT = 216, 84, 132
        XJ = 204
        F_W3, F_W2, F_W1, F_PEEL, F_M, F_U, F_V3, F_XB = 0, 4, 8, 12, 16, 24, 32, 36
        nsync = [0]

        def sig(off, A=vFA, **kw):
            return [WaitTag(lgkm0=True, **kw), f'ds_add_u32 v{A}, v{vOne} offset:{off}']

        def wait(off, tgt, R=vFR):
            nsync[0] += 1
            lab = f'L_csync{nsync[0]}'
            return [f'{lab}:', f'ds_read_b32 v{vF}, v{R} offset:{off}', 's_waitcnt lgkmcnt(0)',
                    f'v_cmp_gt_u32 vcc, {tgt}, v{vF}', f's_cbranch_vccnz {lab}']

        def dppred(op, r):
            return [f'{op}_dpp v{r}, v{r}, v{r} {ctl} row_mask:{rm} bank_mask:0xf'
                    for (ctl, rm) in (('row_shr:1', '0xf'), ('row_shr:2', '0xf'), ('row_shr:4', '0xf'), ('row_shr:8', '0xf'),
                                      ('row_bcast:15', '0xa'), ('row_bcast:31', '0xc'))]

        def absmax(dst, regs):
            c = [f'v_max3_f32 v{dst}, abs(v{regs[0]}), abs(v{regs[1]}), abs(v{regs[2]})']
            k = 3
            while k < len(regs):
                b = regs[k + 1] if k + 1 < len(regs) else regs[k]
                c.append(f'v_max3_f32 v{dst}, v{dst}, abs(v{regs[k]}), abs(v{b})')
                k += 2
            return c

        def waitmax(off, dst_e, top, R=vFR):
            nsync[0] += 1
            lab = f'L_csync{nsync[0]}'
            return [f'{lab}:', f'ds_read_b64 {vr(T, 2)}, v{R} offset:{off}', 's_waitcnt lgkmcnt(0)',
                    f'v_cmp_gt_u32 vcc, 4, v{T}', f's_cbranch_vccnz {lab}',
                    f'v_readfirstlane_b32 s{dst_e}, v{T + 1}',
                    f's_lshr_b32 s{dst_e}, s{dst_e}, 23', f's_sub_i32 s{dst_e}, {top}, s{dst_e}', f's_min_i32 s{dst_e}, s{dst_e}, 40']

        def postmax(r, off, **kw):
            return dppred('v_max_u32', r) + [f'v_readlane_b32 s{S_T0}, v{r}, 63', f'v_mov_b32 v{r}, s{S_T0}',
                                             f'ds_max_u32 v{vFA}, v{r} offset:{off + 4}', WaitTag(**kw), f'ds_add_u32 v{vFA}, v{vOne} offset:{off}']
        setsc = lambda e: [f's_add_i32 s{S_SC}, s{e}, 127', f's_lshl_b32 s{S_SC}, s{S_SC}, 23']

        S_C, S_DYN, S_ST0, S_TK = S_R, S_MB, 98, 99
        vTk, vZ = 250, 251
        L = ['L_cin:', f's_and_b32 s{S_T0}, s{S_MB}, 3', f's_mul_i32 s{S_T0}, s{S_T0}, 3', f's_add_u32 s{S_C}, s{S_T0}, s{S_R}',
             f's_sub_u32 s{S_C}, s{S_C}, 6', 's_cbranch_scc1 L_rem',
             f's_and_b32 s{cw}, s{S_WAVE}, 3', f's_lshr_b32 s{S_GRP}, s{S_WAVE}, 2',
             f's_lshl_b32 s{S_GW}, s{S_C}, 3', f's_add_u32 s{S_GW}, s{S_GW}, s{S_WAVE}',
             f's_mul_i32 s{S_T0}, s{S_GW}, {10 * 128}',
             f'v_min_u32 v{T}, 9, v0', f'v_lshlrev_b32 v{T}, 7, v{T}',
             f'v_lshlrev_b32 v{vStg}, 4, v0',
             f's_lshl_b32 s{S_STG}, s{cw}, 10',
             f's_cmp_eq_u32 s{cw}, 2', f's_cselect_b64 s[{S_EX}:{S_EX + 1}], 0x1fffff, -1',
             f's_cmp_eq_u32 s{cw}, 3', f's_cselect_b32 s{S_STG9}, 0, {8 * 4096}',
             f's_add_u32 s{S_STG9}, s{S_STG9}, s{S_STG}',
             f's_mul_i32 s{S_T1}, s{S_C}, 2979', f's_lshr_b32 s{S_T1}, s{S_T1}, 6', f's_mul_i32 s{S_ST0}, s{S_C}, 44',
             f's_and_b32 s{S_T2}, s2, 7', f's_add_u32 s{S_RC}, s{S_ST0}, s{S_WAVE}', f's_lshl_b32 s{S_RC}, s{S_RC}, 2',
             f's_lshl_b32 s{S_ST0}, s{S_T2}, 14', f's_add_u32 s{S_RC}, s{S_RC}, s{S_ST0}', f's_add_u32 s{S_RC}, s{S_RC}, {5 * 2048}', f's_mul_i32 s{S_ST0}, s{S_C}, 44', f's_lshl_b32 s{S_PX}, s{S_T2}, 9', f's_add_u32 s{S_SAMP}, s{S_PX}, s{S_ST0}', f's_add_u32 s{S_PX}, s{S_PX}, s{S_T1}',
             f's_add_u32 s{S_SAMP}, s{S_SAMP}, s{S_WAVE}', f's_mul_i32 s{S_SAMP}, s{S_SAMP}, 104',
             f's_lshl_b32 s{S_ST0}, s{S_C}, 2', f's_add_u32 s{S_ST0}, s{S_ST0}, s{S_WAVE}', f's_add_u32 s{S_ST0}, s{S_ST0}, s{S_T2}', f's_and_b32 s{S_ST0}, s{S_ST0}, 7',
             f's_mul_i32 s{S_ST0}, s{S_ST0}, {16384 + o.shs}', f's_add_u32 s{S_ST0}, s{S_ST0}, {6 * 2048}',
             f's_sub_u32 s{S_LOOP}, 6, s{S_GRP}', f's_lshl_b32 s{S_TK}, s{S_GRP}, 1', f's_mov_b32 s{S_DYN}, -1',
             f'v_lshrrev_b32 v{t3}, 3, v0', f'v_min_u32 v{t3}, 6, v{t3}', f'v_lshlrev_b32 v{vXi}, 4, v{t3}',
             f's_mul_i32 s{S_T2}, s{S_T2}, 88', f's_add_u32 s{S_T2}, s{S_GW}, s{S_T2}', f's_mov_b32 s{S_T3}, 704',
             f'v_mov_b32 v{t4}, s{S_T2}', f'v_mad_u32_u24 v{vPWL}, v0, s{S_T3}, v{t4}',
             f's_mul_i32 s{S_T2}, s{S_GW}, 104', f's_sub_u32 s{S_T2}, s{S_T2}, {13 * 26 - 25}',
             f'v_min_u32 v{t4}, {12 + o.pfr}, v0', f'v_mul_u32_u24 v{t5}, 26, v{t4}', f'v_add_u32 v{t5}, s{S_T2}, v{t5}',
             f'v_cmp_lt_u32 vcc, 12, v{t4}', f'v_cndmask_b32 v{vPWL}, v{vPWL}, v{t5}, vcc', f'v_lshlrev_b32 v{vPWL}, 7, v{vPWL}',
             f's_mov_b32 s{S_PW}, {o.pfe0 * 832 * 128}',
             f'v_mov_b32 v{vFR}, {L_FLG}', f'v_lshlrev_b32 v{vFA}, 20, v0', f'v_add_u32 v{vFA}, {L_FLG}, v{vFA}',
             f'v_and_b32 v{t4}, 7, v0', f'v_lshlrev_b32 v{vC16}, 4, v{t4}', f'v_and_b32 v{t4}, 15, v0', f'v_lshl_add_u32 v{t4}, v{t4}, 2, v{vFR}',
             f'v_mov_b32 v{vOne}, 0', f'ds_write_b32 v{t4}, v{vOne}',
             f'v_lshrrev_b32 v{half}, 5, v0', f'v_and_b32 v{i32}, 31, v0',
             's_waitcnt lgkmcnt(0)', f'v_mov_b32 v{vOne}, 1']
        L += self.tlb1(t5, 255)
        L += self.build_srd(SRD_CIN, S_CIN, 105456)
        L += [f'buffer_load_dword v255, v{T}, {srd(SRD_CIN)}, s{S_T0} offen']
        L += self.build_srd(SRD_W, S_W1, 1664 * 3328)

        def pfw():
            return [f's_mov_b64 exec, {(1 << (13 + o.pfr)) - 1}', f'buffer_load_dword v255, v{vPWL}, {srd(SRD_W)}, s{S_PW} offen', 's_mov_b64 exec, -1',
                    f's_add_u32 s{S_PW}, s{S_PW}, {352 * 3328}']
        L += ['s_barrier'] + pfw()
        L += self.build_srd(SRD_IDX, S_IDX, 4096 * 104)

        def pfx_a():
            return [f'buffer_load_dword v{PXR}, v{vPXL}, {srd(SRD_IDX)}, s{S_PX} offen',
                    f's_cmp_eq_u32 s{S_PX}, s{S_PXE}', f's_cselect_b32 s{S_PXE}, 0x7000000, s{S_PXE}',
                    f's_cselect_b32 s{S_PX}, 0x7000000, s{S_PX}',
                    f's_add_u32 s{S_PX}, s{S_PX}, 24', f's_min_u32 s{S_PX}, s{S_PX}, s{S_PXE}']

        def pfx_b():
            return [f'v_lshlrev_b32 v{PXR}, 7, v{PXR}', f'buffer_load_dword v255, v{PXR}, {srd(SRD_TAB)}, 0 offen']

        def xidx(XI=XI, off=0, adv=True):
            c = [f'buffer_load_dwordx4 {vr(XI, 4)}, v{vXi}, {srd(SRD_IDX)}, s{S_SAMP} offen offset:{off}']
            if adv:
                c.append(f's_add_u32 s{S_SAMP}, s{S_SAMP}, {8 * 104}')
            return c

        def xdma(XI=XI, lo=0):
            c = []
            for u in range(4):
                if u == 2:
                    c += ['s_mov_b32 exec_hi, 0x0000ffff']
                c += [f'v_lshl_add_u32 v{XI + u}, v{XI + u}, 7, v{vC16}']
                if u == 3:
                    c += ['s_mov_b32 exec_lo, 0', 's_mov_b32 exec_hi, 0xffff0000', f'v_mov_b32 v{XI + 3}, v{XI + 1}', f'v_mov_b32 v{XI + 2}, v{XI + 1}',
                          's_mov_b32 exec_hi, 0x00ff0000', f'v_mov_b32 v{XI + 2}, v{XI}', 's_mov_b64 exec, -1']
            for u in range(4):
                c += [f's_add_u32 m0, s{S_BCUR}, {u * XPI + lo}']
                if u == 3:
                    c += ['s_mov_b32 exec_hi, 0x00ffffff']
                c.append(I(f'buffer_load_dwordx4 v{XI + u}, {srd(SRD_TAB)}, 0 offen lds', tag='XB'))
                if u == 3:
                    c += ['s_mov_b32 exec_hi, -1']
            return c
        wco = self.build_srd(SRD_WCO, S_WCO, 156) + [f's_mov_b32 m0, {L_WCO}', 's_mov_b64 exec, 0x7ff',
              I(f'buffer_load_dwordx4 v{vStg}, {srd(SRD_WCO)}, 0 offen lds', tag='STG3'),
              's_mov_b64 exec, -1']
        L += self.stamp0()

        def stage(dst, goff, tag):
            st = []
            for m in range(8):
                st.append((f's_add_u32 m0, s{S_STG}, {dst + m * 4096}', f's_add_u32 s{S_TW}, s{S_STG}, {goff + m * 4096}',
                           I(f'buffer_load_dwordx4 v{vStg}, {srd(SRD_CIN)}, s{S_TW} offen lds', tag=tag)))
            st.append((f's_add_u32 m0, s{S_STG9}, {dst}', f's_add_u32 s{S_TW}, s{S_STG9}, {goff}',
                       f's_mov_b64 exec, s[{S_EX}:{S_EX + 1}]',
                       I(f'buffer_load_dwordx4 v{vStg}, {srd(SRD_CIN)}, s{S_TW} offen lds', tag=tag),
                       's_mov_b64 exec, -1'))
            return st

        L += [f's_cmp_lg_u32 s{S_GRP}, 0', 's_cbranch_scc1 L_g1a']
        c0 = self.seq(L)
        sA, sB = (('1', A1, 0, F_W1), ('2', A2, 35152, F_W2)) if o.w1first else (('2', A2, 35152, F_W2), ('1', A1, 0, F_W1))
        stA, stB = stage(sA[1], sA[2], 'STG' + sA[0]), stage(sB[1], sB[2], 'STG' + sB[0])
        stg = [wco + stage(A3, 70304, 'STG3') + stA[:o.sigat],
               sig(F_W3, vm_tags=['STG3']) + self.stamp(1) + stA[o.sigat:] + stB[:o.sig2],
               sig(sA[3], vm_tags=['STG' + sA[0]]) + stB[o.sig2:]]
        g0a = self.seq(stg[:o.ccpos] + ['s_branch L_addrc'])
        L = ['L_g1a:', 's_setprio 1',
             f'v_bfe_u32 v{t3}, v0, 2, 2', f'v_lshl_add_u32 v{t3}, v{half}, 3, v{t3}',
             f'v_bfe_u32 v{t4}, v0, 4, 1', f'v_lshlrev_b32 v{t4}, 5, v{t4}',
             f'v_and_b32 v{t5}, 3, v0', f'v_lshl_add_u32 v{t4}, v{t5}, 3, v{t4}',
             f'v_lshl_add_u32 v{vA3}, v{t3}, 6, v{t4}', f'v_add_u32 v{vA3}, {V3OFF}, v{vA3}',
             f's_lshl_b32 s{S_T0}, s{cw}, 6', f's_add_u32 s{S_T0}, s{S_T0}, {A2}',
             f'v_add_u32 v{t4}, s{S_T0}, v{t4}',
             f'v_mul_u32_u24 v{t5}, 1352, v{t3}', f'v_add_u32 v{vBs0}, v{t4}, v{t5}',
             f'v_add_u32 v{t5}, 16, v{t3}', f'v_min_u32 v{t5}, 25, v{t5}',
             f'v_mul_u32_u24 v{t5}, 1352, v{t5}', f'v_add_u32 v{vBs1a}, v{t4}, v{t5}',
             f'v_add_u32 v{t5}, 20, v{t3}', f'v_min_u32 v{t5}, 25, v{t5}',
             f'v_mul_u32_u24 v{t5}, 1352, v{t5}', f'v_add_u32 v{vBs1b}, v{t4}, v{t5}',
             f's_lshl_b32 s{S_T0}, s{cw}, 5', f'v_add_u32 v{vE}, s{S_T0}, v{i32}',
             f'v_mul_u32_u24 v{t3}, 52, v{vE}', f'v_lshl_add_u32 v{t3}, v{half}, 3, v{t3}',
             f'v_add_u32 v{vUw}, {A3}, v{t3}',
             f'v_lshlrev_b32 v{t3}, 1, v{vE}', f'v_add_u32 v{vV2w}, {V2OFF}, v{t3}',
             f'v_mov_b32 v{BT}, 0', f'v_mov_b32 v{BT + 1}, 0',
             f'v_lshlrev_b32 v{t3}, 3, v0', f'v_add_u32 v{t4}, {V3OFF}, v{t3}',
             f's_lshl_b32 s{S_T0}, s{cw}, 9', f'v_add_u32 v{t4}, s{S_T0}, v{t4}', f'ds_write_b64 v{t4}, {vr(BT, 2)}']
        L += [f'v_lshl_add_u32 v{t3}, v{half}, 7, v{vE}', f's_mov_b32 s{S_T1}, 2521', f's_mov_b32 s{S_T2}, {V3OFF}']
        for p_ in range(3):
            L += [f'v_mul_u32_u24 v{t4}, s{S_T1}, v{t3}', f'v_lshrrev_b32 v{t4}, 16, v{t4}',
                  f'v_mad_u32_u24 v{t4}, v{t4}, 12, s{S_T2}', f'v_lshl_add_u32 v{AD + p_}, v{t3}, 1, v{t4}']
            if p_ < 2:
                L += [f'v_add_u32 v{t3}, 256, v{t3}']
        L += [f'v_mov_b32 v{t4}, 676', f'v_cmp_gt_u32 s[{S_MASK}:{S_MASK + 1}], v{t4}, v{t3}']
        for m in range(6):
            L += [f'v_add_u32 v{t3}, {128 * m}, v{vE}', f'v_mul_u32_u24 v{t4}, s{S_T1}, v{t3}', f'v_lshrrev_b32 v{t4}, 16, v{t4}',
                  f'v_lshl_add_u32 v{t4}, v{t4}, 2, v{vUw}', f'v_add_u32 v{AD + 4 + m}, {m * 6656}, v{t4}']
        L += [f'v_lshlrev_b32 v{AD + 10}, 4, v{half}', f'v_add_u32 v{AD + 10}, {L_WCO + 104}, v{AD + 10}',
              f'v_lshlrev_b32 v{AD + 11}, 1, v0', f'v_add_u32 v{AD + 11}, {L_WCO}, v{AD + 11}',
              f'v_lshlrev_b32 v{AD + 12}, 6, v0', f'v_add_u32 v{AD + 12}, {V3OFF + 52}, v{AD + 12}']
        g1a = self.seq(L)

        N_ = (0, 1, 2, 3)
        classes = []
        for d in ZD:
            for (a, ha, b, hb) in d:
                if cls(a, ha)[1] == N_ and cls(b, hb)[1] != N_ and cls(b, hb)[1] not in classes:
                    classes.append(cls(b, hb)[1])
        assert len(classes) == 5
        base = {(N_, N_): GB}
        for k, c in enumerate(classes):
            base[(N_, c)] = GB + 1 + 2 * k
            base[(c, N_)] = GB + 2 + 2 * k
        SP1, SP2 = GB + 11, GB + 12
        pk4 = lambda t: '0x%08x' % sum((x & 0xff) << (8 * k) for k, x in enumerate(t))
        L = ['L_addrc:',
             f's_and_b32 s{S_T2}, s{S_WAVE}, 1', f's_lshl_b32 s{S_T2}, s{S_T2}, 1', f'v_add_u32 v{vg}, s{S_T2}, v{half}',
             f'v_min_u32 v{t3}, 25, v{i32}',
             f's_mul_i32 s{S_T0}, s{S_GRP}, {UST - 1352}', f's_add_u32 s{S_T0}, s{S_T0}, 1352',
             f's_mul_i32 s{S_T1}, s{S_GRP}, {A3 - A1}', f's_add_u32 s{S_T1}, s{S_T1}, {A1}',
             f'v_mul_u32_u24 v{t4}, s{S_T0}, v{t3}', f'v_add_u32 v{t4}, s{S_T1}, v{t4}',
             f'v_lshlrev_b32 v{vDl}, 2, v{t3}', f'v_add_u32 v{vDl}, {A3 - A1}, v{vDl}',
             f'v_mul_u32_u24 v{vL}, 52, v{t3}', f'v_lshl_add_u32 v{vL}, v{vg}, 1, v{vL}', f'v_add_u32 v{vL}, {V2OFF}, v{vL}',
             f'v_lshlrev_b32 v{vWo}, 1, v{t3}', f'v_add_u32 v{vWo}, {L_WCO}, v{vWo}',
             f'v_mad_u32_u24 v{SP1}, v{vg}, 52, v{t4}',
             f'v_lshl_add_u32 v{SP2}, v{vg}, 1, v{t4}',
             f'v_lshl_add_u32 v{GB}, v{vg}, 1, v{SP1}',
             f'v_lshlrev_b32 v{t3}, 3, v{vg}']
        for k, c in enumerate(classes):
            L += [f's_mov_b32 s{S_T0}, {pk4(c)}', f'v_bfe_i32 v{t5}, s{S_T0}, v{t3}, 8',
                  f'v_lshl_add_u32 v{GB + 1 + 2 * k}, v{t5}, 1, v{SP1}', f'v_mad_i32_i24 v{GB + 2 + 2 * k}, v{t5}, 52, v{SP2}']
        L += [f's_mov_b32 s{S_T0}, {pk4((0, 54, 2, 0))}', f'v_bfe_u32 v{t5}, s{S_T0}, v{t3}, 8', f'v_add_u32 v{SP1}, v{t5}, v{t4}',
              f'v_add_u32 v{SP2}, 52, v{t4}', f'v_mov_b32 v{vm}, {OOB}',
              f'v_cmp_eq_u32 vcc, 3, v{vg}', f'v_cndmask_b32 v{SP1}, v{SP1}, v{vm}, vcc', f'v_cndmask_b32 v{vWo}, v{vm}, v{vWo}, vcc',
              f'v_cmp_eq_u32 vcc, 2, v{vg}', f'v_cndmask_b32 v{SP2}, v{vm}, v{SP2}, vcc',
              f'v_cmp_gt_u32 vcc, 2, v{vg}', f'v_cndmask_b32 v{vL6}, v{vm}, v{vL}, vcc']
        L += [f's_lshr_b32 s{S_T1}, s{cw}, 1', f's_mul_i32 s{S_T1}, s{S_T1}, {6 * 1024}', f's_mul_i32 s{S_T0}, s{S_GRP}, {6 * 1024}',
              f'v_lshlrev_b32 v{t5}, 8, v{vg}',
              f'v_lshl_add_u32 v{t3}, v{i32}, 4, v{t5}', f'v_add_u32 v{vWr}, {TA}, v{t3}', f'v_add_u32 v{vWu}, {TB}, v{t3}',
              f'v_bfe_u32 v{t3}, v0, 2, 2', f'v_lshl_add_u32 v{t5}, v{t3}, 4, v{t5}', f'v_and_b32 v{t3}, 3, v0',
              f'v_lshl_add_u32 v{t4}, v{t3}, 6, v{t5}', f'v_add_u32 v{t4}, {TC}, v{t4}',
              f'v_cmp_lt_u32 vcc, 15, v{i32}', f'v_cndmask_b32 v{vWr}, v{vWr}, v{t4}, vcc', f'v_add_u32 v{t4}, 16, v{t4}',
              f'v_cndmask_b32 v{vWu}, v{vWu}, v{t4}, vcc',
              f'v_lshl_add_u32 v{t4}, v{t3}, 5, v{t5}', f'v_add_u32 v{t4}, {TD - 16}, v{t4}',
              f'v_cmp_lt_u32 vcc, 19, v{i32}', f'v_cndmask_b32 v{vWr}, v{vWr}, v{t4}, vcc',
              f'v_add_u32 v{vWr}, s{S_T1}, v{vWr}', f'v_add_u32 v{vWu}, s{S_T0}, v{vWu}',
              f'v_cmp_lt_u32 vcc, 25, v{i32}', f'v_cndmask_b32 v{vWr}, v{vWr}, v{vm}, vcc', f'v_cndmask_b32 v{vWu}, v{vWu}, v{vm}, vcc',
              f'v_mov_b32 v{vMx}, 0']
        L += [f's_mul_i32 s{S_BCUR}, s{S_WAVE}, {XBSZ}', f's_add_u32 s{S_BCUR}, s{S_BCUR}, {XB0}', f's_mov_b32 s{S_BD}, {XB1 - XB0}',
              f'v_add_u32 v{aD}, {TA}, v{vStg}',
              f'v_and_b32 v{t3}, 11, v0', f'v_cmp_eq_u32 vcc, 11, v{t3}', f'v_cndmask_b32 v{aC}, v{aD}, v{vm}, vcc',
              f'v_and_b32 v{t3}, 3, v0', f'v_cmp_eq_u32 vcc, 0, v{t3}', f'v_cndmask_b32 v{aLc}, v{aC}, v{vm}, vcc',
              f'v_lshrrev_b32 v{vg}, 4, v0', f'v_bfe_u32 v{t3}, v0, 1, 3', f'v_lshlrev_b32 v{t5}, 4, v{t3}', f'v_add_u32 v{t5}, {TD}, v{t5}',
              f'v_and_b32 v{t3}, 10, v0', f'v_cmp_eq_u32 vcc, 10, v{t3}', f'v_cndmask_b32 v{t5}, v{t5}, v{vm}, vcc',
              f'v_and_b32 v{t4}, 1, v0', f'v_lshl_add_u32 v{aS}, v{vg}, 9, v{t5}', f'v_lshl_add_u32 v{aS}, v{t4}, 2, v{aS}', f'v_add_u32 v{aS}, 1024, v{aS}',
              f'v_lshl_add_u32 v{FT}, v{vg}, 8, v{t5}', f'v_lshl_add_u32 v{FT}, v{t4}, 20, v{FT}',
              f'v_and_b32 v{vm}, 15, v0', f's_mov_b32 s{S_T0}, {XPI}',
              f'v_lshlrev_b32 v{t3}, 1, v{vm}', f'v_add_u32 v{t3}, s{S_BCUR}, v{t3}',
              f'v_mad_u32_u24 v{vRaw}, v{vg}, s{S_T0}, v{t3}',
              f's_lshl_b32 s{S_T0}, s{S_WAVE}, 10', f's_add_u32 s{S_T0}, s{S_T0}, {XCH}',
              f'v_add_u32 v{vXw}, s{S_T0}, v{vStg}',
              f'v_add_u32 v{t3}, 256, v{vStg}', f'v_and_b32 v{t3}, 1023, v{t3}', f'v_add_u32 v{vX1}, s{S_T0}, v{t3}',
              f'v_xor_b32 v{t3}, 512, v{vStg}', f'v_add_u32 v{vX2}, s{S_T0}, v{t3}', f'v_lshlrev_b32 v{vSh}, 4, v{half}']
        L += [f'v_mov_b32 v{r}, 0' for r in list(range(RAW, RAW + 8)) + list(range(BT, BT + 24))]
        L += [f'v_mul_u32_u24 v{t4}, {XPI}, v{vg}',
              f'v_bfe_u32 v{t5}, v0, 2, 2', f'v_lshl_add_u32 v{t4}, v{t5}, 7, v{t4}',
              f'v_and_b32 v{t5}, 3, v0', f'v_lshl_add_u32 v{vLinB}, v{t5}, 3, v{t4}', f'v_add_u32 v{vLin}, s{S_BCUR}, v{vLinB}',
              f'v_and_b32 v{t5}, 1, v0', f's_mov_b32 s{S_T0}, 0xaaaaaaaa', f'v_mul_lo_u32 v{vSI}, s{S_T0}, v{t5}', f'v_or_b32 v{vSI}, 0x44444444, v{vSI}',
              f'v_lshlrev_b32 v{vOr}, 1, v0', f'v_add_u32 v{vOr}, s{S_BCUR}, v{vOr}', f'v_mov_b32 v{vAcc}, 0x3f80',
              f'ds_write_b16 v{vOr}, v{vAcc} offset:{3 * XPI + 7 * 128}', f'v_add_u32 v{vOr}, s{S_BD}, v{vOr}']
        L += [f's_mul_i32 s{S_T3}, s{S_WAVE}, 6', f's_add_u32 s{S_PX}, s{S_PX}, s{S_T3}', f's_mul_i32 s{S_PX}, s{S_PX}, 104',
              f's_add_u32 s{S_PXE}, s{S_PX}, 80', f's_add_u32 s{S_PX}, s{S_PX}, {4 * o.pfx0}',
              f's_mov_b32 s{S_T3}, 10923', f'v_min_u32 v{t3}, 35, v0',
              f'v_mul_u32_u24 v{t4}, s{S_T3}, v{t3}', f'v_lshrrev_b32 v{t4}, 16, v{t4}',
              f'v_mul_u32_u24 v{t4}, {104 - 24}, v{t4}', f'v_lshl_add_u32 v{vPXL}, v{t3}, 2, v{t4}']
        L += self.stamp(14)
        L += [f's_cmp_eq_u32 s{S_GRP}, 0', 's_cbranch_scc1 L_g0pf']
        cc = self.seq(L)

        def bread(m, base):
            b = BALL + m * 8
            return [f'ds_read_b64_tr_b16 {vr(b, 2)}, v{vBs0} offset:{base + m * 256}',
                    f'ds_read_b64_tr_b16 {vr(b + 2, 2)}, v{vBs0} offset:{base + m * 256 + 4 * 1352}',
                    f'ds_read_b64_tr_b16 {vr(b + 4, 2)}, v{vBs1a} offset:{base + m * 256}',
                    f'ds_read_b64_tr_b16 {vr(b + 6, 2)}, v{vBs1b} offset:{base + m * 256}']

        def mm6(base, post=lambda m: []):
            c = []
            for m in range(3 if base is not None else 0):
                c += bread(m, base)
            for m in range(6):
                if m + 3 < 6 and base is not None:
                    c += bread(m + 3, base)
                b = BALL + m * 8
                d = DALL + (m % 4) * 16
                c.append(f'v_mfma_f32_32x32x16_bf16 {vr(d, 16)}, {vr(AFR, 4)}, {vr(b, 4)}, 0')
                c.append(f'v_mfma_f32_32x32x16_bf16 {vr(d, 16)}, {vr(AFR + 4, 4)}, {vr(b + 4, 4)}, {vr(d, 16)}')
                if m >= 2:
                    c += post(m - 2)
            return c + post(4) + post(5)

        e1 = [f's_sub_u32 s{S_T0}, s{S_PX}, {24 * 104}', f'buffer_load_dword v{XJ + 4}, v{vPXL}, {srd(SRD_IDX)}, s{S_T0} offen',
              f'buffer_load_dword v{XJ + 5}, v{vPXL}, {srd(SRD_IDX)}, s{S_PX} offen']
        e2 = [f'v_lshlrev_b32 v{XJ + 4}, 7, v{XJ + 4}', f'buffer_load_dword v255, v{XJ + 4}, {srd(SRD_TAB)}, 0 offen',
              f'v_lshlrev_b32 v{XJ + 5}, 7, v{XJ + 5}', f'buffer_load_dword v255, v{XJ + 5}, {srd(SRD_TAB)}, 0 offen']
        xx = xdma() + xdma(XJ, -4 * XBSZ) + xidx()
        L = sig(F_W3) + [f's_sub_u32 s{S_SAMP}, s{S_SAMP}, {4 * 104}'] + xidx(XJ, 0, False) + [f's_add_u32 s{S_SAMP}, s{S_SAMP}, {4 * 104}'] + xidx()
        L += e1 + [f's_add_u32 s{S_PX}, s{S_PX}, 24'] + pfx_a()
        L += wait(F_W3, 8) + self.stamp(2)
        uc0 = self.seq(L)
        L = []
        for s2 in range(2):
            for rd in range(2):
                L.append(f'ds_read_b64 {vr(AFR + 4 * s2 + 2 * rd, 2)}, v{AD + 10} offset:{s2 * 32 + rd * 8}')
        L += [f'ds_read_u16 v{t5}, v{AD + 11} offset:52']

        def vpost(m):
            p_ = m // 2
            c = [f'v_cvt_pk_bf16_f32 v{V3T + p_}, v{DALL + 16 * (m % 4)}, 0']
            if m % 2:
                c = ['s_mov_b32 exec_lo, 0'] + c + [f's_mov_b64 exec, s[{S_MASK}:{S_MASK + 1}]' if p_ == 2 else 's_mov_b32 exec_lo, -1',
                                                    f'ds_write_b16 v{AD + p_}, v{V3T + p_}']
            return c
        L += mm6(A3 - A2, vpost)
        L += ['s_mov_b64 exec, 0x3ffffff', f'ds_write_b16 v{AD + 12}, v{t5}', 's_mov_b64 exec, -1']
        L += self.stamp(3) + sig(F_V3) + [f'v_cmp_gt_u32 s[{S_MASK}:{S_MASK + 1}], 36, v{vE}']
        L += (e2 if o.epos == 0 else []) + (xx if o.xpos == 0 else []) + (e2 if o.epos == 1 else [])
        L += wait(F_W2, 4) + [bread(m, 0) for m in range(6)] + wait(F_V3, 4) + self.stamp(5) + [f's_setprio {o.uprio}']
        for s2 in range(2):
            for rd in range(2):
                L.append(f'ds_read_b64_tr_b16 {vr(AFR + 4 * s2 + 2 * rd, 2)}, v{vA3} offset:{s2 * 1024 + rd * 256}')

        def upost(m):
            d = DALL + 16 * (m % 4)
            c = [f'v_cvt_pk_bf16_f32 v{UP + 8 * m + qq}, v{d + 2 * qq}, v{d + 2 * qq + 1}' for qq in range(8)]
            if m == 5:
                c.append(f's_mov_b64 exec, s[{S_MASK}:{S_MASK + 1}]')
            w_ = [f'ds_write2_b32 v{AD + 4 + m}, v{UP + 8 * m + 2 * a}, v{UP + 8 * m + 2 * a + 1} offset0:{4 * a} offset1:{4 * a + 1}' for a in range(3)]
            return c + interleave(w_, [f'v_max3_f32 v{vMx}, v{vMx}, abs(v{d + 2 * qq}), abs(v{d + 2 * qq + 1})' for qq in range(7)])
        L += mm6(None, upost)
        L.append('s_mov_b32 exec_hi, 0')
        for m in (5, 4, 3, 2, 1, 0):
            L.append(f'ds_write_b32 v{AD + 4 + m}, v{UP + 8 * m + 6} offset:48')
            L.append(f'ds_write_b16 v{vV2w}, v{UP + 8 * m + 7} offset:{m * 256}')
            if m == 5:
                L.append('s_mov_b32 exec_lo, -1')
        L += ['s_mov_b64 exec, -1'] + postmax(vMx, F_U) + [f's_setprio {o.bprio}'] + (xx if o.xpos == 1 else []) + (e2 if o.epos == 2 else []) + self.stamp(6) + ['s_branch L_uph']
        uc = self.seq(L)

        L = ['L_g0pf:'] + stg[o.ccpos:] + [f's_add_u32 s{S_SAMP}, s{S_SAMP}, {8 * 104}', f's_add_u32 s{S_PX}, s{S_PX}, 24'] + xidx() + pfx_a()
        L += sig(sB[3], vm_tags=['STG' + sB[0]]) + self.stamp(4) + [f's_mov_b32 s{S_PH}, 0'] + wait(F_W1, 4) + self.stamp(2)
        L += [f's_cmp_ge_u32 s{cw}, 2', 's_cbranch_scc1 L_chunk2']
        g0pf = self.seq(L)

        def chunk(k):
            units = [(n, h) for n in range(12 * k, min(12 * k + 12, 44)) for h in range(2)]
            NB_, BA = 12, o.ba
            reads, maths = [], []
            for ui, (n, h) in enumerate(units):
                a, ha, b, hb = ZD[n][h]
                (fa, ca), (fb, cb) = cls(a, ha), cls(b, hb)
                tb = BT + (ui % NB_) * 2
                dst = SUM + 24 * (k % 2) + ui
                if ca != N_:
                    R = [f'ds_read_u16_d16_hi v{tb}, v{SP1} offset:{54 * 24}', f'ds_read_u16_d16_hi v{tb + 1}, v{SP2} offset:{54 * 24}']
                    M = [f'v_add_f32 v{dst}, v{tb}, v{tb + 1}']
                elif (a, ha) == (b, hb):
                    R = [f'ds_read_u16_d16_hi v{tb}, v{base[(ca, cb)]} offset:{54 * fa}']
                    M = [f'v_mov_b32 v{dst}, v{tb}']
                else:
                    R = [f'ds_read_u16_d16_hi v{tb}, v{base[(ca, cb)]} offset:{52 * fa + 2 * fb}',
                         f'ds_read_u16_d16_hi v{tb + 1}, v{base[(cb, ca)]} offset:{52 * fb + 2 * fa}']
                    M = [f'v_add_f32 v{dst}, v{tb}, v{tb + 1}']
                if ui % 2:
                    M = M + maths[-1] + [f'v_max3_f32 v{vMx}, v{vMx}, abs(v{dst - 1}), abs(v{dst})']
                    maths[-1] = []
                reads.append(R)
                maths.append(M)
            code = []
            nu = len(units)
            for ui in range(nu + BA):
                if ui < nu:
                    code += reads[ui]
                if ui == nu and k == 3:
                    code += [f'ds_read_u16_d16_hi v{LT + e}, v{vL} offset:{8 * e}' for e in range(6)]
                    code += [f'ds_read_u16_d16_hi v{LT + 6}, v{vL6} offset:48', f'ds_read_u16_d16_hi v{LT + 7}, v{vWo}']
                if ui >= BA:
                    code += maths[ui - BA]
            return code
        LT = BT + 8
        assert o.ba <= 8

        def conv(n):
            return [f'v_fma_mix{"hi" if h else "lo"}_f16 v{OUT + q}, v{SUM + 2 * q + h}, s{S_SC}, 0' for h in range(2) for q in range(4 * n, 4 * n + 4)]
        wr = lambda n, A: [f'ds_write_b128 v{A}, {vr(OUT + 4 * n, 4)} offset:{n * 1024}']
        ch, chb = [], []
        for k in range(4):
            ch.append(self.seq([f'L_chunk{k}:'] + chunk(k) + [f's_cmp_lg_u32 s{S_PH}, 0', f's_cbranch_scc1 L_uconv{k % 2}']))
            chb.append(self.seq(['s_branch L_w1conv'] if k == 1 else []))
        L = ['L_w1conv:'] + self.stamp(3) + postmax(vMx, F_M)
        L += [f'v_add_u32 v{GB + k}, v{GB + k}, v{vDl}' for k in range(13)]
        L += waitmax(F_M, S_T2, 141) + setsc(S_T2) + self.stamp(5)
        L += conv(0) + conv(1) + wr(0, vWr) + conv(2) + wr(1, vWr) + conv(3) + wr(2, vWr) + conv(4) + wr(3, vWr) + wr(4, vWr)
        L += [f's_cmp_ge_u32 s{cw}, 2', 's_cbranch_scc1 L_w1x']
        w1a = self.seq(L)
        w1b = self.seq(conv(5) + wr(5, vWr))
        w1c = self.seq(['L_w1x:'])
        L = ['L_uph:'] + self.stamp(7) + waitmax(F_U, S_T3, 140) + setsc(S_T3) + self.stamp(12)
        L += [f's_mov_b32 s{S_PH}, 1', f's_lshr_b32 s{S_T1}, s{S_WAVE}, 1',
              f's_cmp_eq_u32 s{S_T1}, 0', 's_cbranch_scc1 L_chunk0', f's_cmp_eq_u32 s{S_T1}, 1', 's_cbranch_scc1 L_chunk1',
              f's_cmp_eq_u32 s{S_T1}, 2', 's_cbranch_scc1 L_chunk2', 's_branch L_chunk3']
        uph = self.seq(L)
        wm1 = lambda: waitmax(F_M, S_T2, 141)
        u0 = self.seq(['L_uconv0:'] + self.stamp(13) + conv(0) + wm1() + wr(0, vWu) + conv(1) + wr(1, vWu) + conv(2) + wr(2, vWu) + ['s_branch L_built'])
        u1a = self.seq(['L_uconv1:'] + self.stamp(13) + conv(3) + wm1() + wr(3, vWu) + conv(4) + wr(4, vWu) + [f's_cmp_lg_u32 s{S_GRP}, 0', 's_cbranch_scc1 L_ulin'])
        u1b = self.seq(conv(5) + wr(5, vWu) + ['s_branch L_built'])
        L = ['L_ulin:'] + [f'v_mul_f32 v{LT + e}, s{S_SC}, v{LT + e}' for e in range(8)]
        L += [f'v_cvt_pk_bf16_f32 v{OUT + 20 + q}, v{LT + 2 * q}, v{LT + 2 * q + 1}' for q in range(4)] + wr(5, vWu)
        u1c = self.seq(L)

        w0x = self.build_srd(SRD_W2, S_W2, 3328) + [f'v_lshlrev_b32 v{FT}, 7, v0', f'buffer_load_dword v255, v{FT}, {srd(SRD_W2)}, 0 offen']

        slot = lambda k: RZ + 4 * (k % 4)
        MF = [('Lb', 0), ('a', 1), ('b', 1), ('d', 1), ('Lc', 0), ('a', 2), ('c', 1), ('b', 2), ('c', 2)]
        for k in range(3, 10):
            MF += ([('S', k)] if k % 2 else []) + [('a', k), ('b', k), ('c', k)]
        MF += [('a', 10), ('b', 10), ('a', 11), ('b', 11), ('c', 10), ('S', 11), ('c', 11)]
        if o.mo == 1:
            MF = [('Lb', 0), ('a', 1), ('d', 1), ('Lc', 0), ('b', 1), ('a', 2), ('c', 1), ('b', 2), ('a', 3), ('c', 2), ('S', 3), ('b', 3), ('c', 3)]
            for k in range(4, 10):
                MF += ([('S', k)] if k % 2 else []) + [('a', k), ('b', k), ('c', k)]
            MF += [('a', 10), ('b', 10), ('c', 10), ('a', 11), ('b', 11), ('S', 11), ('c', 11)]
        if o.mo == 2:
            MF = [('d', 1), ('Lb', 0), ('a', 1), ('Lc', 0), ('b', 1), ('a', 2), ('c', 1), ('b', 2), ('a', 3), ('c', 2), ('S', 3), ('b', 3), ('c', 3)]
            for k in range(4, 12):
                MF += ([('S', k)] if k % 2 else []) + [('a', k), ('b', k), ('c', k)]
        NM = len(MF)
        use = {k: [m for m, (t_, kk) in enumerate(MF) if kk == k or (t_ == 'S' and kk == k + 1)] for k in range(12)}
        pos = lambda t_, k: MF.index((t_, k))

        def mfma(m):
            t_, k = MF[m]
            if t_[0] == 'L':
                d, w = {'b': (Db, WL), 'c': (Dc, WL + 4)}[t_[1]]
                return f'v_mfma_f32_16x16x32_bf16 {vr(d, 4)}, {vr(w, 4)}, {vr(slot(0), 4)}, 0'
            if t_ == 'S':
                return f'v_smfmac_f32_16x16x64_f16 {vr(Ds, 4)}, {vr(WS_ + 2 * (k - 1), 4)}, {vr(slot(k - 1), 8)}, v{vSI}'
            d, w = {'a': (Da, WA), 'b': (Db, WB), 'c': (Dc, WC), 'd': (Ds, WS_)}[t_]
            return f'v_mfma_f32_16x16x32_f16 {vr(d, 4)}, {vr(w + 4 * (k - 1), 4)}, {vr(slot(k), 4)}, {"0" if t_ in "ad" and k == 1 else vr(d, 4)}'

        def wload(m):
            t_, k = MF[m]
            if t_[0] == 'L':
                a, w, off = {'b': (aD, WL, TB), 'c': (aLc, WL + 4, TC)}[t_[1]]
                return [f'ds_read_b128 {vr(w, 4)}, v{a} offset:{off - TA + 11 * 1024}']
            if t_ == 'd':
                return [f'ds_read_b128 {vr(WS_, 4)}, v{FT}']
            if t_ == 'S':
                w = WS_ + 2 * (k - 1)
                return [f'ds_read2_b32 {vr(w, 2)}, v{aS} offset0:0 offset1:2', f'ds_read2_b32 {vr(w + 2, 2)}, v{aS} offset0:64 offset1:66',
                        f'v_add_u32 v{aS}, 2048, v{aS}']
            w, a, off = {'a': (WA, aD, 0), 'b': (WB, aD, TB - TA), 'c': (WC, aC, TC - TA)}[t_]
            return [f'ds_read_b128 {vr(w + 4 * (k - 1), 4)}, v{a} offset:{off + (k - 1) * 1024}']

        def zops(n):
            z = slot(n // 4 + 1) + n % 4
            (a, ha, b, hb), (a2, ha2, b2, hb2) = ZD[n]
            if (a, b) == (a2, b2):
                return [f'v_pk_mul_f16 v{z}, v{X + a}, v{X + b} op_sel:[{ha},{hb}] op_sel_hi:[{ha2},{hb2}]']
            return [f'v_mul_f16_sdwa v{z}, v{X + a}, v{X + b} dst_sel:WORD_0 dst_unused:UNUSED_PAD src0_sel:WORD_{ha} src1_sel:WORD_{hb}',
                    f'v_mul_f16_sdwa v{z}, v{X + a2}, v{X + b2} dst_sel:WORD_1 dst_unused:UNUSED_PRESERVE src0_sel:WORD_{ha2} src1_sel:WORD_{hb2}']

        cvt = lambda d, a, b: f'v_cvt_pk_f16_f32 v{d}, v{a}, v{b}'
        LAT = o.lat

        class It:
            def __init__(s, name, G, code, lo, hi, pre):
                s.name, s.G, s.code, s.lo, s.hi, s.pre, s.at = name, G, code, lo, hi, list(pre), None

        NG = 14
        items = {}

        def add(name, G, code, lo=-10**9, hi=10**9, pre=()):
            items[(name, G)] = It(name, G, code, lo, hi, pre)
        usej = lambda j: [n for n, d in enumerate(ZD) if any(a // 4 == j or b // 4 == j for (a, _, b, _) in d)]
        lastz = {j: max(usej(j)) for j in range(3)}
        for G in range(NG):
            c, b0 = G % 4, G * NM
            for r in range(8):
                add(f'raw{r}', G, f'ds_read_u16_d16_hi v{RAW + r}, v{vRaw} offset:{r * 128 + c * 32}', lo=b0 - o.rspan, hi=b0 - o.rlead,
                    pre=[(f'co{q}', G - 1, 0) for q in range(4)] + ([('swr', G, 0)] if c == 0 else []))
            for q in range(4):
                add(f'co{q}', G, cvt(X + q - 1, RAW + q - 1, RAW + q + 2) if q else cvt(X + 3, RAW + 6, RAW + 7), hi=b0 - 4,
                    pre=[(f'raw{r}', G, LAT) for r in range(8)] + [(f'z{lastz[0]}', G - 1, 0)])
            add('wo', G, f'ds_write_b128 v{vXw}, {vr(X, 4)}', hi=b0 - 2, pre=[(f'co{q}', G, 0) for q in range(4)] + [('r2', G - 1, 0)])
            add('r1', G, f'ds_read_b128 {vr(X + 4, 4)}, v{vX1}', hi=b0, pre=[('wo', G, 0)])
            add('r2', G, f'ds_read_b128 {vr(X + 8, 4)}, v{vX2}', hi=b0 + 1, pre=[('r1', G, 0)])
            for q in range(3):
                add(f'al{q}', G, f'v_alignbit_b32 v{X + 8 + q}, v{X + 8 + q}, v{X + 8 + q}, v{vSh}', hi=b0 + 20, pre=[('r2', G, LAT)])
            if c == 0:
                add('swr', G, [f'v_add_u32 v{vRaw}, s{S_BD}, v{vRaw}', WaitTag(vm_tags=['XB'])], lo=b0 - o.rspan - 1, hi=b0 - o.rspan - 1,
                    pre=[(f'raw{r}', G - 1, 0) for r in range(8)])
            for p in range(2):
                add(f'lin{p}', G, f'ds_read_b64_tr_b16 {vr(slot(0) + 2 * p, 2)}, v{vLin} offset:{p * 512 + c * 32}',
                    lo=b0 - NM + max(use[8]), hi=b0 + min(use[0]) - 1 - LAT, pre=[('swl', G, 0)] if c == 0 else [])
            if c == 0:
                add('swl', G, [f's_add_u32 s{S_TW}, s{S_BCUR}, s{S_BD}', f'v_add_u32 v{vLin}, s{S_TW}, v{vLinB}'], lo=b0 - NM + 20, hi=b0 - 12,
                    pre=[(f'lin{p}', G - 1, 0) for p in range(2)])
            for n in range(44):
                k = n // 4 + 1
                js = {x // 4 for (a, _, b, _) in ZD[n] for x in (a, b)}
                pre = [(f'co{q}', G, 0) for q in range(4)] + ([('r1', G, LAT)] if 1 in js else []) + ([(f'al{q}', G, 0) for q in range(3)] if 2 in js else [])
                if n:
                    pre.append((f'z{n - 1}', G, 0))
                if k == 5 and n % 4 < 3:
                    pre.append(('or1', G, 0))
                lo = b0 + max(use[k - 4]) if k >= 4 else b0 - NM + max(use[k + 8])
                if k == 1:
                    lo = max(lo, b0 - o.z1lo)
                zc = zops(n)
                if n == 12:
                    zc = [zops(12)[0], zops(13)[0]]
                if n == 13:
                    zc = [zops(12)[1], zops(13)[1]]
                add(f'z{n}', G, zc, lo=lo, hi=b0 + min(use[k]) - 2, pre=pre)
            s1 = slot(1)
            if c == 1:
                add('or1', G, f'v_or3_b32 v{vOr}, v{s1}, v{s1 + 1}, v{s1 + 2}', hi=b0 + 6, pre=[('z2', G, 0), ('blk', G - 2, 0)])
                add('ck', G, [f'v_and_b32 v{vOr}, 0x60006000, v{vOr}', f'v_cmp_ne_u32 s[{S_CHK}:{S_CHK + 1}], 0, v{vOr}'], hi=b0 + 30, pre=[('or1', G, 0)])
            e = b0 + NM
            rdy = lambda t_: b0 + pos(t_, 11) + o.flo
            for r in range(4):
                add(f'f{r}', G, f'v_{"mul" if c == 0 and r == 0 else "fmac"}_f32 v{vAcc}, v{Da + r}, v{Db + r}', lo=min(rdy('b'), e + pos('Lb', 0) - 1), hi=e + pos('Lb', 0) - 1,
                    pre=[(f'f{r - 1}', G, 0) if r else ('f8', G - 1, 0)] + ([('blk', G - 1, 0)] if c == 0 else []))
            for r in range(2):
                add(f'f{4 + r}', G, f'v_add_f32 v{FT + r}, v{Ds + 2 * r}, v{Ds + 2 * r + 1}', lo=min(rdy('S'), e + pos('d', 1) - 1), hi=e + pos('d', 1) - 1,
                    pre=[('f8', G - 1, 0)] + ([('blk', G - 1, 0)] if c == 0 else []))
            for r, (x, y) in enumerate(((Dc, Dc + 1), (FT, Dc + 2), (FT + 1, Dc + 3))):
                add(f'f{6 + r}', G, f'v_fmac_f32 v{vAcc}, v{x}, v{y}', lo=rdy('c'), hi=e + pos('Lc', 0) - 1, pre=[(f'f{5 + r}', G, 0), ('f3', G, 0), ('f4', G, 0)])
            if c == 3:
                for q, x in enumerate(dppred('v_add_f32', vAcc)):
                    add(f'dp{q}', G, x, hi=e + 7 + 2 * q, pre=[(f'dp{q - 1}', G, 2) if q else ('f8', G, 2)])
                add('blk', G, '@BLK', hi=e + 20, pre=[('dp5', G, 1)])
        order = list(items.values())
        gaps = {}
        isv = lambda x: isinstance(x, str) and x.startswith('v_')
        isl = lambda x: isinstance(x, str) and x.startswith('ds_')
        for gp in range(-NM, NG * NM):
            gaps[gp] = []
            uv = ul = 0
            while True:
                cand = []
                for it in order:
                    if it.at is not None or it.lo > gp:
                        continue
                    ok = True
                    for (nm, G, dist) in it.pre:
                        p = items.get((nm, G))
                        if p is None:
                            continue
                        if p.at is None or p.at + dist > gp:
                            ok = False
                            break
                    if not ok:
                        continue
                    cv_, cl_ = sum(map(isv, flat([it.code]))), sum(map(isl, flat([it.code]))) * (o.wcost if it.name == 'wo' else 1)
                    if it.hi > gp and (uv + cv_ > o.gapv or ul + cl_ > o.gapl or uv + ul + cv_ + cl_ > o.gapt) and cv_ + cl_:
                        continue
                    cand.append((it, cv_, cl_))
                if not cand:
                    break
                it, cv_, cl_ = min(cand, key=lambda x: x[0].hi)
                it.at = gp
                uv += cv_; ul += cl_
                gaps[gp].append(it)
        late = [(it.name, it.G, it.at - it.hi) for it in order if it.at is not None and it.at > it.hi and 4 <= it.G < 12]
        print('late items', late)
        sig_ = lambda G0: [[(it.name, it.G - G0) for it in gaps[G0 * NM + m]] for m in range(4 * NM)]
        assert sig_(4) == sig_(8), 'schedule not periodic'
        for f_ in (isv, isl):
            print('gap load', ''.join(str(sum(sum(map(f_, flat([it.code]))) for it in gaps[4 * NM + m])) + ('|' if m % NM == NM - 1 else '') for m in range(4 * NM)))
        keep = lambda c: [x for x in flat([c]) if not (isinstance(x, str) and any(x.startswith(d) for d in o.drop.split(',') if d))]
        prio = lambda p, lab: [f's_cmp_lg_u32 s{S_GRP}, 0', f's_cbranch_scc1 {lab}', f's_setprio {p}', f'{lab}:'] if o.phi else []

        def sstamp():
            if not (o.stamps and o.itst):
                return []
            return [f's_memtime s[{S_ST}:{S_ST + 1}]', f's_add_u32 s{S_C0}, s{S_LOOP}, 20', 's_waitcnt lgkmcnt(0)',
                    f's_mov_b32 m0, s{S_C0}', f'v_writelane_b32 v252, s{S_ST}, m0']

        pcode = []
        for gp in range(-NM, 4 * NM):
            for it in gaps[gp]:
                if it.G >= 4 and not it.name.startswith(('sw', 'wx')):
                    pcode += flat([it.code])
        PFD = o.pfd
        L = ['L_built:'] + self.stamp(10) + [WaitTag(vm_tags=['XB']), f'v_mov_b32 v{vF}, s{S_GRP}', f'ds_add_u32 v{vFA}, v{vF} offset:{F_XB}']
        L += self.tlb2(vZ, vTk) + [f's_add_i32 s{S_EXP}, s{S_T2}, s{S_T3}'] + wait(F_XB, 4) + pcode + pfx_b() + pfx_a() + pfw()
        L += ['s_waitcnt lgkmcnt(0)', 's_barrier'] + (['s_setprio 1'] if o.phi else ['s_setprio 0']) + self.stamp(8)
        L += [wload(m) for m in range(PFD)] + prio(2, 'L_prf') + (['s_mov_b32 s100, 15'] if o.gst else [])
        peel2 = None
        for m in range(NM):
            L += [mfma(m)] + (wload(m + PFD) if m + PFD < NM else [])
            for it in gaps[4 * NM + m]:
                if it.code == '@BLK':
                    L += [f'ds_write_b16 v{vOr}, v{vAcc} offset:{3 * XPI + 7 * 128}']
                    L += self.cleared('L_cclr', vZ, vTk) + xdma(XI, XB1 - XB0) + (pfw() if o.pfp else [])
                    L += [f's_sub_i32 s{S_EXP}, 0, s{S_EXP}', f's_mov_b32 s{S_EXPC}, s{S_EXP}',
                          f's_mov_b32 s{S_PH}, 1', f's_mov_b32 s{S_PREV}, 1']
                    L += [f's_cmp_lg_u32 s{S_WAVE}, 7', 's_cbranch_scc1 L_nw0']
                    peel1 = self.seq(L)
                    peelw = self.seq(w0x)
                    L = ['L_nw0:']
                elif it.G >= 4:
                    L += flat([it.code])
        L += [f'ds_add_u32 v{vFA}, v{vOne} offset:{F_PEEL}', 's_branch L_grp1']
        peel2 = self.seq(L)
        prime = self.seq(['L_prime:'] + [f'v_mov_b32 v{r}, 0' for r in range(D, D + 16)] + [f'v_mov_b32 v{FT}, 0', f'v_mov_b32 v{FT + 1}, 0'] + pcode)
        blk_a = ['L_blk:', f's_cmp_eq_u32 s{S_PREV}, 0', 's_cbranch_scc1 L_blkend',
                 f'v_readlane_b32 s{S_TW}, v{vAcc}, 63', f'v_ldexp_f32 v{vAcc}, v{vAcc}, s{S_EXPC}', f'v_and_b32 v{vAcc}, -2, v{vAcc}',
                 f's_cmp_eq_u32 s{S_PREV}, 2', 's_cbranch_scc1 L_good',
                 f's_cmp_eq_u64 s[{S_CHK}:{S_CHK + 1}], 0', 's_cbranch_scc1 L_slow',
                 f's_bfe_u32 s{S_TW}, s{S_TW}, 0x80017', f's_cmp_eq_u32 s{S_TW}, 255', 's_cbranch_scc1 L_slow',
                 'L_good:', 's_mov_b32 exec_lo, 0', 's_mov_b32 exec_hi, 0x80000000',
                 f'buffer_store_dword v{vAcc}, v{vZ}, {srd(SRD_WS)}, s{S_RC} offen sc1', 's_mov_b64 exec, -1',
                 f's_add_u32 s{S_RC}, s{S_RC}, 32', f's_sub_u32 s{S_LOOP}, s{S_LOOP}, 1', f's_cmp_eq_u32 s{S_LOOP}, 0', 's_cbranch_scc1 L_cin_done']
        blk_a += [f's_cmp_eq_u32 s{S_LOOP}, 1', 's_cbranch_scc1 L_lastnext']
        blk_b = xdma() + [f's_add_u32 s{S_SAMP}, s{S_SAMP}, {8 * 104}', f's_cmp_lg_u32 s{S_LOOP}, s{S_TK}', 's_cbranch_scc1 L_nodma']
        blk_t = [f'v_mov_b32 v{vTk}, 1', 's_mov_b64 exec, 1', f'buffer_atomic_add v{vTk}, v{vZ}, {srd(SRD_WS)}, s{S_ST0} offen sc0',
                 's_mov_b64 exec, -1', f's_mov_b32 s{S_TK}, 8', 's_branch L_nodma',
                 'L_lastnext:', f's_cmp_lt_i32 s{S_DYN}, 0', f's_cselect_b32 s{S_RC}, s{S_RC}, s{S_DYN}']
        hook_a = [f's_cmp_lg_u32 s{S_TK}, 8', 's_cbranch_scc1 L_hk']
        hook_t = ['s_waitcnt vmcnt(0)', f'v_readfirstlane_b32 s{S_TW}, v{vTk}', f's_mov_b32 s{S_TK}, 0', f's_add_u32 s{S_TW}, s{S_TW}, 485',
                  f's_cmp_ge_u32 s{S_TW}, 512', 's_cbranch_scc1 L_hk',
                  f's_add_u32 s{S_LOOP}, s{S_LOOP}, 1',
                  f's_lshr_b32 s{S_SAMP}, s{S_ST0}, 14', f's_lshl_b32 s{S_DYN}, s{S_SAMP}, 12', f's_add_u32 s{S_DYN}, s{S_DYN}, s{S_TW}',
                  f's_lshl_b32 s{S_DYN}, s{S_DYN}, 2', f's_add_u32 s{S_DYN}, s{S_DYN}, {5 * 2048}',
                  f's_lshl_b32 s{S_SAMP}, s{S_SAMP}, 9', f's_add_u32 s{S_SAMP}, s{S_SAMP}, s{S_TW}', f's_mul_i32 s{S_SAMP}, s{S_SAMP}, 104']
        hook_b = ['L_hk:'] + xidx(adv=False)
        blk_b2 = ['L_nodma:'] + [f's_add_u32 s{S_BCUR}, s{S_BCUR}, s{S_BD}', f's_sub_u32 s{S_BD}, 0, s{S_BD}', f's_mov_b32 s{S_EXPC}, s{S_EXP}', f's_mov_b32 s{S_PH}, 1']
        blk_c = ['L_blkend:', f's_mov_b32 s{S_PREV}, s{S_PH}']
        parts = [[], [], [], [], []]
        cur = self.seq(['L_cin_loop:'])
        for m in range(4 * NM):
            if m == NM:
                parts[3] = cur
                cur = self.seq(['L_grp1:'])
            if m == o.hook:
                p4a = cur + self.seq(hook_a)
                p4t = self.seq(hook_t)
                cur = self.seq(hook_b)
            if o.gst and m % NM == 0:
                cur += self.seq([f's_memtime s[{S_ST}:{S_ST + 1}]', 's_add_u32 s100, s100, 1', 's_min_u32 s100, s100, 31', 's_waitcnt lgkmcnt(0)',
                                 's_mov_b32 m0, s100', f'v_writelane_b32 v253, s{S_ST}, m0'])
            if o.phi and m in (0, o.phi):
                cur += self.seq(prio(0 if m else 2, f'L_pr{m}'))
            cur += self.seq([mfma(m % NM)])
            for it in gaps[4 * NM + m]:
                if it.code == '@BLK':
                    parts[0] = cur + self.seq(sstamp() + ['s_waitcnt vmcnt(0)', f's_cmp_le_u32 s{S_LOOP}, {o.pfend}', 's_cbranch_scc1 L_blk'])
                    pfp = self.seq(pfx_b() + pfx_a() + pfw())
                    parts[1] = self.seq(blk_a)
                    parts[2] = self.seq(blk_b)
                    pbt = self.seq(blk_t)
                    pb2 = self.seq(blk_b2)
                    cur = self.seq(blk_c)
                else:
                    cur += self.seq(keep(it.code))
        cur += self.seq([f's_cmp_lg_u32 s{S_LOOP}, 1', 's_cbranch_scc1 L_cin_loop'])
        parts[4] = p4a + cur
        p4x = p4a + p4t + cur
        tail = self.seq([it.code for m in range(NM) for it in gaps[4 * NM + m] if it.G == 3 and it.code != '@BLK'] + ['s_branch L_blk'])
        Q = RZ
        rows = [(g, r) for g in range(4) for r in range(8)][:31]
        L = ['L_slow:', f'v_lshlrev_b32 v{FT}, 1, v0', f'v_add_u32 v{FT + 1}, s{S_BCUR}, v{FT}',
             f's_mul_i32 s{S_TW}, s{S_WAVE}, {XBSZ}', f's_add_u32 s{S_TW}, s{S_TW}, {XSP}',
             f'v_add_u32 v{FT}, s{S_TW}, v{FT}', f'v_add_u32 v{vLin}, s{S_TW}, v{vLinB}']
        L += [f'v_subrev_u32 v{vRaw}, s{S_BD}, v{vRaw}'] + wait(F_PEEL, 8)
        L += [f'ds_read_u16 v{Q + n}, v{FT + 1} offset:{g * XPI + r * 128}' for n, (g, r) in enumerate(rows)]
        L += [f'v_lshlrev_b32 v{Q + n}, 16, v{Q + n}' for n in range(31)]
        L += absmax(vAcc, list(range(Q, Q + 31))) + dppred('v_max_u32', vAcc)
        L += [f'v_readlane_b32 s{S_TW}, v{vAcc}, 63', f's_lshr_b32 s{S_TW}, s{S_TW}, 23', f's_sub_i32 s{S_TW}, 134, s{S_TW}',
              f's_min_i32 s{S_TW}, s{S_TW}, 16',
              f's_lshl_b32 s{S_EXPC}, s{S_TW}, 2', f's_sub_i32 s{S_EXPC}, s{S_EXP}, s{S_EXPC}',
              f's_add_i32 s{S_TW}, s{S_TW}, 127', f's_lshl_b32 s{S_TW}, s{S_TW}, 23', f'v_mov_b32 v{Q + 31}, s{S_TW}']
        L += [f'v_mul_f32 v{Q + n}, s{S_TW}, v{Q + n}' for n in range(31)]
        L += [f'ds_write_b16_d16_hi v{FT + 1}, v{Q + n} offset:{g * XPI + r * 128}' for n, (g, r) in enumerate(rows)]
        L += [f'v_mul_f32 v{Q + n}, s{S_TW}, v{Q + n}' for n in range(32)]
        L += [f'ds_write_b16_d16_hi v{FT}, v{Q + n} offset:{g * XPI + r * 128}' for n, (g, r) in enumerate(rows + [(3, 7)])]
        L += [f's_mov_b32 s{S_PREV}, 0', f's_mov_b32 s{S_PH}, 2', 's_waitcnt lgkmcnt(0)', 's_branch L_prime']
        slow = self.seq(L)
        fin_ = self.seq(['L_cin_done:'] + self.stamp(9) + self.stamp_flush() + self.padsig() + ['s_endpgm'])
        rest = parts[3] + parts[4]
        full = parts[0] + pfp + parts[1] + parts[2] + pb2 + rest
        nopf = parts[0] + parts[1] + parts[2] + pbt + pb2 + parts[3] + p4x
        last = parts[0] + parts[1] + pb2 + rest
        redo = lambda pf: parts[1][:10] + slow + prime + parts[0] + (pfp if pf else []) + parts[1][:3] + rest
        end_ = tail + parts[1][:-2] + fin_
        main = peel2 + parts[4] + full + full + parts[0] + pfp + redo(1) + full + nopf + parts[0] + redo(0) + nopf + last + tail + redo(0) + end_
        main2 = peel2 + parts[4] + parts[0] + pfp + redo(1) + full + nopf + last + end_
        traces = []
        for w in range(8):
            if w < 4:
                k0 = w & 2
                tr = c0 + g0a + cc + g0pf + ch[k0] + ch[k0 + 1] + chb[k0 + 1] + w1a + ([] if k0 else w1b) + w1c
            else:
                tr = c0 + g1a + cc + uc0 + uc
            k = w >> 1
            tr += uph + ch[k] + (u0 if k % 2 == 0 else u1a + (u1b if k == 1 else u1c))
            for mn in (main, main2):
                traces.append(tr + peel1 + (peelw if w == 7 else []) + mn)
        return traces

    def build(self):
        pro = self.prologue()
        d = self.dnn()
        cs = self.cin()
        rm = self.rem()
        self.seq(['L_end:', 's_endpgm'])
        traces = [pro + c for c in d + cs + rm]
        for t in traces:
            resolve_waits(t)
        for _ in range(2):
            for t in traces:
                resolve_hazards(t)
        hdr = open(os.path.join(os.path.dirname(os.path.abspath(__file__)), 'header.txt')).read()
        txt = hdr + f'; @launch grid=(256,1,1) block=(512,1,1) lds={LDS_TOTAL}\n'
        txt += f'''.amdgcn_target "amdgcn-amd-amdhsa--gfx950"
{DOC}.text
.globl {KNAME}
.p2align 8
.type {KNAME},@function
{KNAME}:
'''
        body_ = self.P.emit()
        if 'wsame' in self.opt.dbg:
            body_ = body_.replace(f's_add_u32 s{S_WSOFF}, s{S_WSOFF}, {32 * 3328}', f's_xor_b32 s{S_WSOFF}, s{S_WSOFF}, 0')
        if 'xsame' in self.opt.dbg:
            import re as _re
            body_ = _re.sub(r'v_lshl_add_u32 v(2[4-9]|3[01]), v(1[6-9]), 7', r'v_lshl_add_u32 v\1, v16, 7', body_)
            body_ = _re.sub(r'v_lshl_add_u32 v(2[4-9]|3[01]), v(2[0-3]), 7', r'v_lshl_add_u32 v\1, v20, 7', body_)
            body_ = _re.sub(r'v_lshl_add_u32 v(2[4-9]|3[01]), v(9[6-9]), 7', r'v_lshl_add_u32 v\1, v96, 7', body_)
            body_ = _re.sub(r'v_lshl_add_u32 v(2[4-9]|3[01]), v(10[0-3]), 7', r'v_lshl_add_u32 v\1, v100, 7', body_)
            body_ = body_.replace('offen offset:12\n', 'offen offset:0\n').replace('offen offset:844\n', 'offen offset:832\n')
            body_ = body_.replace(f's_mov_b32 s{S_IDXOFF}, 28', f's_mov_b32 s{S_IDXOFF}, 0').replace(f's_add_u32 s{S_IDXOFF}, s{S_IDXOFF}, 16', 's_nop 0')
        if self.opt.align:
            for lab in ('L_dnn_loop0:', 'L_dnn_loop1:', 'L_cin_loop:', 'L_epi:'):
                pad = '  s_nop 0\n' if self.opt.align > 100 else ''
                body_ = body_.replace(lab + '\n', f'.p2align {self.opt.align % 100}\n{pad}{lab}\n')
        txt += body_
        txt += f'''.section .rodata,"a"
.p2align 6
.amdhsa_kernel {KNAME}
  .amdhsa_next_free_vgpr 256
  .amdhsa_next_free_sgpr 102
  .amdhsa_accum_offset 256
  .amdhsa_group_segment_fixed_size 0
  .amdhsa_kernarg_size 88
  .amdhsa_user_sgpr_count 2
  .amdhsa_user_sgpr_kernarg_segment_ptr 1
  .amdhsa_system_sgpr_workgroup_id_x 1
  .amdhsa_float_denorm_mode_32 {self.opt.denorm}
.end_amdhsa_kernel
'''
        return txt


def main():
    ap = argparse.ArgumentParser()
    ap.add_argument('-o', default='standalone__deep_cross_xdeepfm__recsys.s')
    ap.add_argument('--stamps', action='store_true')
    ap.add_argument('--padat', default='')
    ap.add_argument('--padmin', type=int, default=0)
    ap.add_argument('--nodma', action='store_true')
    ap.add_argument('--cpf', type=int, default=2)
    ap.add_argument('--coop', type=int, default=1)
    ap.add_argument('--coopw', type=int, default=2)
    ap.add_argument('--tbpos', type=int, default=0)
    ap.add_argument('--dbar3', type=int, default=1)
    ap.add_argument('--tlb', type=int, default=0)
    ap.add_argument('--tlb2', type=int, default=1)
    ap.add_argument('--itst', type=int, default=0)
    ap.add_argument('--diag', type=int, default=0)
    ap.add_argument('--dbg', default='')
    ap.add_argument('--lead3', type=int, default=1)
    ap.add_argument('--morder', type=int, default=0)
    ap.add_argument('--etlb', type=int, default=21)
    ap.add_argument('--lateb', type=int, default=0)
    ap.add_argument('--wfl', default='')
    ap.add_argument('--xfl', default='')
    ap.add_argument('--tag', type=int, default=0)
    ap.add_argument('--idxfirst', type=int, default=1)
    ap.add_argument('--bpos', type=int, default=2)
    ap.add_argument('--sigat', type=int, default=4)
    ap.add_argument('--epx', type=int, default=1)
    ap.add_argument('--denorm', type=int, default=3)
    ap.add_argument('--mprio', type=int, default=0)
    ap.add_argument('--swap', type=int, default=0)
    ap.add_argument('--bov', type=int, default=2)
    ap.add_argument('--rfirst', type=int, default=0)
    ap.add_argument('--g1x', type=int, default=0)
    ap.add_argument('--ldsred', type=int, default=0)
    ap.add_argument('--csnake', type=int, default=0)
    ap.add_argument('--cswap', type=int, default=0)
    ap.add_argument('--align', type=int, default=0)
    ap.add_argument('--c2', type=int, default=0)
    ap.add_argument('--d1', type=int, default=0)
    ap.add_argument('--cstr', type=int, default=3)
    ap.add_argument('--bearly', type=int, default=1)
    ap.add_argument('--w2late', type=int, default=1)
    ap.add_argument('--aov', type=int, default=3)
    ap.add_argument('--upos', type=int, default=1)
    ap.add_argument('--calt', type=int, default=1)
    ap.add_argument('--pfpos', type=int, default=1)
    ap.add_argument('--wlate', type=int, default=0)
    ap.add_argument('--dbar2', type=int, default=0)
    ap.add_argument('--dbar', type=int, default=0)
    ap.add_argument('--pfw', type=int, default=1)
    ap.add_argument('--pfx', type=int, default=3)
    ap.add_argument('--pfx0', type=int, default=4)
    ap.add_argument('--pfs', type=int, default=14)
    ap.add_argument('--dcoopx', type=int, default=1)
    ap.add_argument('--dcx0', type=int, default=0)
    ap.add_argument('--dcxpos', type=int, default=-1)
    ap.add_argument('--pfe0', type=int, default=2)
    ap.add_argument('--pfne', type=int, default=14)
    ap.add_argument('--prio47', type=int, default=0)
    ap.add_argument('--lookahead', type=int, default=5)
    ap.add_argument('--nz', type=int, default=6)
    ap.add_argument('--nwf', type=int, default=8)
    ap.add_argument('--hiat', type=int, default=4)
    ap.add_argument('--wmerge', type=int, default=0)
    ap.add_argument('--gapv', type=int, default=2)
    ap.add_argument('--lat', type=int, default=5)
    ap.add_argument('--amp', type=int, default=0)
    ap.add_argument('--ofl', default='')
    ap.add_argument('--uprio', type=int, default=1)
    ap.add_argument('--ccpos', type=int, default=1)
    ap.add_argument('--s1e', type=int, default=9)
    ap.add_argument('--s2e', type=int, default=0)
    ap.add_argument('--shs', type=int, default=256)
    ap.add_argument('--pfp', type=int, default=1)
    ap.add_argument('--epos', type=int, default=0)
    ap.add_argument('--hook', type=int, default=100)
    ap.add_argument('--rrd', type=int, default=11)
    ap.add_argument('--rdrop', default='')
    ap.add_argument('--pfr', type=int, default=4)
    ap.add_argument('--vin', type=int, default=1)
    ap.add_argument('--rstag', type=int, default=1)
    ap.add_argument('--eprio', type=int, default=1)
    ap.add_argument('--nopk', type=int, default=0)
    ap.add_argument('--w1first', type=int, default=0)
    ap.add_argument('--xpos', type=int, default=1)
    ap.add_argument('--z1lo', type=int, default=40)
    ap.add_argument('--pfend', type=int, default=3)
    ap.add_argument('--gst', type=int, default=0)
    ap.add_argument('--gapl', type=int, default=2)
    ap.add_argument('--gapt', type=int, default=2)
    ap.add_argument('--wcost', type=int, default=2)
    ap.add_argument('--bprio', type=int, default=0)
    ap.add_argument('--c1hi', type=int, default=-8)
    ap.add_argument('--c2hi', type=int, default=12)
    ap.add_argument('--rspan', type=int, default=34)
    ap.add_argument('--rlead', type=int, default=16)
    ap.add_argument('--pfd', type=int, default=10)
    ap.add_argument('--mo', type=int, default=2)
    ap.add_argument('--ba', type=int, default=6)
    ap.add_argument('--sig2', type=int, default=4)
    ap.add_argument('--drop', default='')
    ap.add_argument('--al8', type=int, default=4)
    ap.add_argument('--alph', type=int, default=0)
    ap.add_argument('--almm', type=int, default=0)
    ap.add_argument('--phi', type=int, default=123)
    ap.add_argument('--rawlo', type=int, default=8)
    ap.add_argument('--flo', type=int, default=3)
    opt = ap.parse_args()
    resolve_waits.dbg = 'dup' in opt.dbg
    g = Gen(opt)
    txt = g.build()
    if opt.al8:
        import align8
        rg = []
        if opt.al8 & 1:
            rg.append(('L_cin_loop', 'L_slow'))
        if opt.al8 & 2:
            rg += [('L_dnn_loop0', 'L_dnn_h1'), ('L_dnn_loop1', 'L_epi')]
        if opt.al8 & 4:
            rg += [('L_epi', 'L_dpub')]
        txt = align8.align(txt, rg, opt.alph, opt.almm)
    open(opt.o, 'w').write(txt)
    print('wrote', opt.o, len(txt), 'bytes')


if __name__ == '__main__':
    main()
```

```python
import sys, os, struct, argparse
sys.path.insert(0, os.path.dirname(os.path.abspath(__file__)))
from cinplan import ZD, cls
from asmlib import I, WaitTag, Prog, resolve_waits, resolve_hazards

KNAME = 'standalone__deep_cross_xdeepfm__recsys_kernel'
LDS_TOTAL = 163840

XSLOT = 8192
WR = 4 * XSLOT
WP = 640
WSLOT = 32 * WP
L_BIAS = WR + 6 * WSLOT
L_W2 = L_BIAS + WP
RB = L_W2 + WP
assert RB + 2048 <= LDS_TOTAL
RWR = 131072

ASZ = 35264
A1 = 1024
A2 = A1 + ASZ
A3 = A2 + ASZ
UST = 1356
V3OFF = A3 + ASZ
V2OFF = V3OFF + 2048
L_WCO = V2OFF + 1408
L_FLG = L_WCO + 192
RC = L_FLG + 64
XB0 = RC + 512
XPI = 1056
XBSZ = 4 * XPI
XB1 = A3
TA = A1
TC = TA + 11 * 1024
TD = TC + 12 * 1024
TB = A2
XSP = A1
XCH = XB0 + 8 * XBSZ
OOB = 0x100000
NCLR = 56
NPOOL = 224
assert XCH + 8192 <= LDS_TOTAL and XB0 % 16 == 0 and A2 % 16 == 0 and A3 % 16 == 0 and L_WCO % 16 == 0
assert 8 * XBSZ <= ASZ and TD + 11 * 1024 <= A2

S_WAVE = 3
S_IDX, S_TAB, S_CIN, S_WCO, S_W1, S_B1, S_W2, S_BO, S_OUT, S_DBG, S_WS = 4, 6, 8, 10, 12, 14, 16, 18, 20, 22, 24
S_MB, S_R = 26, 27
SRD_IDX, SRD_TAB, SRD_CIN, SRD_WCO, SRD_W, SRD_B1, SRD_W2, SRD_OUT, SRD_WS, SRD_DBG = 28, 32, 36, 40, 44, 48, 52, 56, 60, 64
S_T0, S_T1, S_T2, S_T3 = 68, 69, 70, 71
S_LOOP, S_IDXOFF, S_WSOFF, S_WMB, S_XM0, S_N0, S_C0, S_CW, S_BOUT, S_TW = 72, 73, 74, 75, 76, 77, 78, 79, 80, 81
S_EX = 82
S_GRP, S_RC = 84, 85
S_ST = 86
S_M26, S_MASK = 90, 92
S_SAMP, S_STG, S_STG9, S_TGT = 94, 95, 96, 97
S_M26B = 98
S_GW = 100
S_TAGT = 0
S_TAG = 1
S_PW = 101
S_PX = 77
S_PXE = 73

GELU_C0 = -2.0 * 0.7978845608028654 * 1.4426950408889634
GELU_C1 = GELU_C0 * 0.044715


def f32hex(x):
    return '0x%08x' % struct.unpack('<I', struct.pack('<f', x))[0]


def vr(a, n):
    return f'v[{a}:{a + n - 1}]' if n > 1 else f'v{a}'


def srd(a):
    return f's[{a}:{a + 3}]'


def flat(gs):
    res = []
    for c in gs:
        if isinstance(c, (tuple, list)):
            res += flat(c)
        else:
            res.append(c)
    return res


def interleave(a, b):
    out = []
    ia = ib = 0
    na, nb = len(a), len(b)
    while ia < na or ib < nb:
        if ib >= nb or (ia < na and ia * nb <= ib * na):
            out.append(a[ia]); ia += 1
        else:
            out.append(b[ib]); ib += 1
    return out


assert all((d * 2521) >> 16 == d // 26 for d in range(800))
assert all((d * 10923) >> 16 == d // 6 for d in range(64))
assert all((d * 1561) >> 16 == d // 42 for d in range(176))


DOC = '''; ---------------------------------------------------------------------------------------------
;
;       V3[h,k]  = sum_g wo[52+g] W3[g,h,k]          V2[i,j] = sum_h wo[26+h] W2[h,i,j]
;       U[i,j,k] = sum_h W2[h,i,j] V3[h,k]
;       g1[i]    = wo[i] + sum_j V2[i,j] x_j + sum_jk U[i,j,k] x_j x_k
;   Both quadratic forms use the 351 distinct products x_j x_k (j<=k) with symmetrised weights on fp16 MFMA
;   (fp32 accumulate).  Range is handled with power-of-two scales derived from the data on every launch:
; Work split per group of 512 samples (32 workgroups): 20 workgroups do 128 x 320 tiles of the DNN GEMM,
;   Partial logits go through d_ws (sc1): the 64-column workgroup resets the slots at its start (announced in
;   d_debug), later polls until every slot is filled, adds up and writes d_out.
; ---------------------------------------------------------------------------------------------
'''


class Gen:
    def __init__(self, opt):
        self.opt = opt
        self.P = Prog()
        self.role = 'x'

    def seq(self, lines):
        return [self.P.add(l) for l in flat(lines)]

    def build_srd(self, dst, ptr, size):
        return [f's_mov_b32 s{dst}, s{ptr}', f's_and_b32 s{dst + 1}, s{ptr + 1}, 0xffff',
                f's_mov_b32 s{dst + 2}, {size}', f's_mov_b32 s{dst + 3}, 0x20000']

    def stamp(self, slot):
        if self.opt.padat == f'{self.role}{slot}':
            return [f's_memrealtime s[88:89]', 's_waitcnt lgkmcnt(0)']
        if not self.opt.stamps or (self.opt.lite and f'{self.role}{slot}' not in ('c8', 'c9', 'd2', 'd4', 'r2', 'r4', 'r5')):
            return []
        return [f's_memtime s[{S_ST}:{S_ST + 1}]', f's_memrealtime s[{S_ST + 2}:{S_ST + 3}]', 's_waitcnt lgkmcnt(0)',
                f'v_writelane_b32 v252, s{S_ST}, {slot}', f'v_writelane_b32 v253, s{S_ST + 2}, {slot}']

    def stamp_flush(self):
        if not self.opt.stamps:
            return []
        L = self.build_srd(SRD_WS, S_WS, 0x10000000)
        L += [f's_lshl_b32 s{S_C0}, s2, 3', f's_add_u32 s{S_C0}, s{S_C0}, s{S_WAVE}',
              f's_lshl_b32 s{S_C0}, s{S_C0}, 8', f's_add_u32 s{S_C0}, s{S_C0}, 0x100000',
              'v_lshlrev_b32 v254, 3, v0', 's_mov_b32 exec_hi, 0',
              f'buffer_store_dwordx2 v[252:253], v254, {srd(SRD_WS)}, s{S_C0} offen', 's_mov_b32 exec_hi, -1']
        return L

    def stamp0(self):
        if not self.opt.stamps:
            return self.stamp(15)
        return ['v_mov_b32 v252, 0xcdcdcdcd', 'v_mov_b32 v253, 0xcdcdcdcd',
                f'v_writelane_b32 v252, s{S_ST}, 0', f'v_writelane_b32 v253, s{S_ST + 2}, 0'] + self.stamp(15)

    def tlb2(self, t, vflag):
        L = self.build_srd(SRD_WS, S_WS, 0x10000000) + self.build_srd(SRD_DBG, S_DBG, 256)
        L += [f'v_lshlrev_b32 v{t}, 2, v0',
              ('s_mov_b64 exec, 0xff', f's_mov_b32 s{S_TW}, 0x80000',
               f'buffer_load_dword v255, v{t}, {srd(SRD_WS)}, s{S_TW} offen',
               f'buffer_load_dword v{vflag}, v{t}, {srd(SRD_DBG)}, 0 offen offset:128 sc1',
               's_mov_b64 exec, -1'), f'v_mov_b32 v{t}, 0']
        return L

    def cleared(self, lab, grp, vflag):
        chk = [f'v_cmp_eq_u32 vcc, 0, v{vflag}', f's_bitcmp1_b32 vcc_lo, s{S_TW}']
        return grp + chk + [f's_cbranch_scc0 {lab}_ok', f's_mov_b32 s{S_C0}, 0x40000',
                f'{lab}:', f's_sub_u32 s{S_C0}, s{S_C0}, 1', f's_cbranch_scc1 {lab}_ok', f'v_lshlrev_b32 v{vflag}, 2, v0', f'v_and_b32 v{vflag}, 31, v{vflag}',
                f'buffer_load_dword v{vflag}, v{vflag}, {srd(SRD_DBG)}, 0 offen offset:128 sc1', 's_waitcnt vmcnt(0)'] + chk + [f's_cbranch_scc1 {lab}', f'{lab}_ok:']

    def padsig(self):
        o = self.opt
        if not o.padat:
            return []
        pre = ['v_mov_b32 v8, 4']
        if (o.padat[0] if o.padat != 'start' else 'd') != self.role:
            return pre
        return pre + [f's_cmp_lg_u32 s{S_WAVE}, 0', 's_cbranch_scc1 L_nosig'] + ([f's_not_b32 s88, s88'] if o.padmin else []) + ['v_mov_b32 v7, s88', 's_mov_b64 exec, 1',
                f'buffer_atomic_umax v7, v8, {srd(SRD_DBG)}, 0 offen', 's_mov_b64 exec, -1', 'L_nosig:']

    def tlb1(self, vtmp, vdst):
        if not self.opt.etlb:
            return self.build_srd(SRD_TAB, S_TAB, 100000 * 128)
        return self.build_srd(SRD_TAB, S_TAB, 100000 * 128) + [
            f'v_mov_b32 v{vtmp}, s{S_BOUT}', f'buffer_load_dword v{vdst}, v{vtmp}, {srd(SRD_TAB)}, 0 offen']

    def prologue(self):
        L = []
        if self.opt.padat == 'start' or self.opt.amp in (1, 2, 3):
            L += ['s_memrealtime s[88:89]']
        elif self.opt.padat:
            L += [f's_mov_b32 s88, {-1 if self.opt.padmin else 0}']
        if self.opt.stamps:
            L += [f's_memtime s[{S_ST}:{S_ST + 1}]', f's_memrealtime s[{S_ST + 2}:{S_ST + 3}]']
        L += ['s_cmp_ge_u32 s2, 256', 's_cbranch_scc1 L_end',
              's_load_dwordx16 s[4:19], s[0:1], 0',
              's_load_dwordx4 s[20:23], s[0:1], 64',
              's_load_dwordx2 s[24:25], s[0:1], 80',
              'v_lshrrev_b32 v1, 6, v0']
        if self.opt.cpf:
            L += [f's_getpc_b64 s[{S_MASK}:{S_MASK + 1}]', 'L_pc:',
                  f's_and_b32 s{S_T0}, s2, 0xf8', f'v_add_u32 v2, s{S_T0}, v1', 'v_lshlrev_b32 v2, 7, v2'] + (['v_and_b32 v3, 1, v0', 'v_lshl_add_u32 v2, v3, 15, v2'] if self.opt.cpf == 2 else []) + [
                  f'v_min_u32 v2, L_end-L_pc, v2',
                  f'v_mov_b32 v3, s{S_MASK + 1}',
                  f'v_add_co_u32 v2, vcc, s{S_MASK}, v2', 'v_addc_co_u32 v3, vcc, 0, v3, vcc',
                  'global_load_dword v255, v[2:3], off']
        L += ['v_and_b32 v0, 63, v0',
              f'v_readfirstlane_b32 s{S_WAVE}, v1',
              f's_and_b32 s{S_T0}, s2, 7', f's_lshl_b32 s{S_T0}, s{S_T0}, 2',
              f's_lshr_b32 s{S_MB}, s2, 6', f's_add_u32 s{S_MB}, s{S_MB}, s{S_T0}',
              f's_bfe_u32 s{S_R}, s2, 0x30003',
              f's_and_b32 s{S_BOUT}, s2, 0xf8', f's_add_u32 s{S_BOUT}, s{S_BOUT}, s{S_WAVE}', f's_lshl_b32 s{S_BOUT}, s{S_BOUT}, {self.opt.etlb}',
              f's_lshr_b32 s{S_T0}, s2, 3', f's_cmp_eq_u32 s{S_T0}, 5', 's_cbranch_scc1 L_rem',
              f's_cmp_ge_u32 s{S_R}, 5', 's_cbranch_scc1 L_cin']
        return self.seq(L)

    def gelu(self, groups, TB, KC0, KC1, KONE, seen=()):
        p2 = lambda r: vr(r, 2)
        L = []
        seen = set(seen)
        for k, vals in enumerate(groups):
            tb = TB + (k % 2) * 16
            V_ = [(x, w, s_, tb + 4 * i_, tb + 4 * i_ + 2) for i_, (x, w, s_) in enumerate(vals)]
            for (x, w, s_, t, u) in V_:
                L.append(f'v_pk_mul_f32 {p2(t)}, {p2(x)}, {p2(x)}')
            for (x, w, s_, t, u) in V_:
                L.append(f'v_pk_fma_f32 {p2(t)}, {p2(t)}, {p2(KC1)}, {p2(KC0)}')
            for (x, w, s_, t, u) in V_:
                L.append(f'v_pk_mul_f32 {p2(t)}, {p2(t)}, {p2(x)}')
            for (x, w, s_, t, u) in V_:
                L += [f'v_exp_f32 v{t}, v{t}', f'v_exp_f32 v{t + 1}, v{t + 1}']
            for (x, w, s_, t, u) in V_:
                L.append(f'v_pk_fma_f32 {p2(t)}, {p2(t)}, {p2(w)}, {p2(w)}')
            for (x, w, s_, t, u) in V_:
                L += [f'v_rcp_f32 v{t}, v{t}', f'v_rcp_f32 v{t + 1}, v{t + 1}']
            for (x, w, s_, t, u) in V_:
                if s_ in seen:
                    L.append(f'v_pk_fma_f32 {p2(s_)}, {p2(t)}, {p2(x)}, {p2(s_)}')
                else:
                    L.append(f'v_pk_mul_f32 {p2(s_)}, {p2(t)}, {p2(x)}')
                    seen.add(s_)
        if self.opt.nopk:
            import re as _re
            L2 = []
            for x in L:
                if x.startswith('v_pk_'):
                    mn = x.split()[0].replace('v_pk_', 'v_')
                    rs = [int(r) for r in _re.findall(r'v\[(\d+):', x)]
                    L2 += [f'{mn} ' + ', '.join(f'v{r + h}' for r in rs) for h in range(2)]
                else:
                    L2.append(x)
            L = L2
        return L

    def gelu2(self, groups, TB, KC0, KC1, KSH):
        p2 = lambda r: vr(r, 2)
        L = []
        seen = set()
        for k, vals in enumerate(groups):
            tb = TB + (k % 2) * 24
            H = [(x + 2 * d, tb + 6 * i_ + 2 * d, k0[d], k1[d]) for i_, (x, k0, k1, s_) in enumerate(vals) for d in range(2)]
            F = [(x, tb + 6 * i_, s_) for i_, (x, k0, k1, s_) in enumerate(vals)]
            L += [f'v_pk_mul_f32 {p2(t)}, {p2(x)}, {p2(x)}' for (x, t, k0, k1) in H]
            L += [f'v_pk_fma_f32 {p2(t)}, {p2(t)}, {p2(KC1)}, {p2(KC0)}' for (x, t, k0, k1) in H]
            L += [f'v_pk_fma_f32 {p2(t)}, {p2(t)}, {p2(x)}, {p2(KSH)}' for (x, t, k0, k1) in H]
            L += [f'v_exp_f32 v{t + h}, v{t + h} clamp' for (x, t, k0, k1) in H for h in range(2)]
            L += [f'v_pk_fma_f32 {p2(t)}, {p2(t)}, {p2(k1)}, {p2(k0)}' for (x, t, k0, k1) in H]
            L += [f'v_pk_mul_f32 {p2(t + 4)}, {p2(x)}, {p2(t + 2)}' for (x, t, s_) in F]
            L += [f'v_pk_fma_f32 {p2(t + 4)}, {p2(x + 2)}, {p2(t)}, {p2(t + 4)}' for (x, t, s_) in F]
            L += [f'v_pk_mul_f32 {p2(t)}, {p2(t)}, {p2(t + 2)}' for (x, t, s_) in F]
            L += [f'v_rcp_f32 v{t + h}, v{t + h}' for (x, t, s_) in F for h in range(2)]
            for (x, t, s_) in F:
                L.append(f'v_pk_fma_f32 {p2(s_)}, {p2(t)}, {p2(t + 4)}, {p2(s_)}' if s_ in seen else f'v_pk_mul_f32 {p2(s_)}, {p2(t)}, {p2(t + 4)}')
                seen.add(s_)
        return L

    def winv2(self, R, n, K1, KL, SC):
        L = [f'v_mov_b32 v{SC}, 0x21800000', f'v_mov_b32 v{KL}, 0x30800000']
        L += [f'v_max3_f32 v{SC}, v{SC}, abs(v{R + k}), abs(v{R + k + 1})' for k in range(0, n, 2)]
        L += [f'v_and_b32 v{SC}, 0x7f800000, v{SC}', f'v_mul_f32 v{SC}, 0x22000000, v{SC}']
        L += [f'v_rcp_f32 v{R + k}, v{R + k}' for k in range(n)] + [f'v_mul_f32 v{R + k}, v{SC}, v{R + k}' for k in range(n)]
        L += [f'v_med3_f32 v{R + k}, v{R + k}, -v{KL}, v{KL}' for k in range(n)] + [f'v_mul_f32 v{K1[k]}, 0x6c800000, v{R + k}' for k in range(n)]
        return L

    def red4(self, SUMP, SC=None):
        sm = lambda tm: SUMP + 2 * tm
        L = [f'v_add_f32 v{sm(tm)}, v{sm(tm)}, v{sm(tm) + 1}' for tm in range(4)]
        if SC is not None:
            L += [f'v_mul_f32 v{sm(tm)}, v{SC}, v{sm(tm)}' for tm in range(4)]
        L += [f'v_permlane32_swap_b32 v{sm(tm)}, v{sm(tm + 2)}' for tm in range(2)]
        L += [f'v_add_f32 v{sm(tm)}, v{sm(tm)}, v{sm(tm + 2)}' for tm in range(2)]
        L += [f'v_permlane16_swap_b32 v{sm(0)}, v{sm(1)}', f'v_add_f32 v{sm(0)}, v{sm(0)}, v{sm(1)}']
        return L

    def kconst(self, KC0, KC1, KONE, pr=None):
        return [f'v_mov_b32 v{KC0}, {f32hex(GELU_C0)}', f'v_mov_b32 v{KC0 + 1}, {f32hex(GELU_C0)}',
                f'v_mov_b32 v{KC1}, {f32hex(GELU_C1)}', f'v_mov_b32 v{KC1 + 1}, {f32hex(GELU_C1)}',
                ] + ([f'v_mov_b32 v{KONE}, 0x71800000'] if not (self.opt.pr if pr is None else pr) else [f'v_mov_b32 v{KONE}, {f32hex(-90.0)}', f'v_mov_b32 v{KONE + 1}, {f32hex(-90.0)}'])

    def winv(self, R, n, KONE):
        return [f'v_rcp_f32 v{R + k}, v{R + k}' for k in range(n)] + [f'v_med3_f32 v{R + k}, v{R + k}, -v{KONE}, v{KONE}' for k in range(n)]

    def dnn(self):
        o = self.opt
        self.role = 'd'
        vW = [[1, 2, 3, 4, 5], [6, 7, 8, 9, 10]]
        vX = [11, 12]
        vIdxOff, vCh = 13, [14, 15]
        ST = [[16, 20], [24, 240]]
        VO = [28, 34]
        vWD = [29, 30, 31, 32, 33]
        vP, vPc, vBL = 35, 36, 37
        WF = 40
        XA = 80
        T = 44
        W2F = 112
        ACC = 140
        PK = 220
        SUMP, KC0, KC1, KONE = 16, 232, 234, 236

        def acc(tn, tm):
            return ACC + (tn * 4 + tm) * 4

        HH, SL = S_T0, S_T1
        g, i4, q = T + 18, T + 19, T + 20
        PI, vCW = T + 8, T + 12
        nr = o.coopw
        L = [f's_mul_i32 s{S_N0}, s{S_R}, {WP}',
             f's_mul_i32 s{S_T2}, s{S_WAVE}, 7', f'v_min_u32 v{q}, 6, v0', f'v_add_u32 v{q}, s{S_T2}, v{q}', f'v_min_u32 v{q}, 51, v{q}',
             f'v_lshrrev_b32 v{g}, 1, v{q}', f'v_mul_u32_u24 v{g}, 96, v{g}', f'v_lshl_add_u32 v{q}, v{q}, 2, v{g}',
             f's_mul_i32 s{S_C0}, s{S_R}, 26', f's_min_u32 s{S_C0}, s{S_C0}, 102', f's_lshl_b32 s{S_T3}, s{S_MB}, 7',
             f's_add_u32 s{S_C0}, s{S_C0}, s{S_T3}', f's_mul_i32 s{S_C0}, s{S_C0}, 104',
             f's_and_b32 s{S_T2}, s{S_MB}, 3', f's_lshl_b32 s{S_T2}, s{S_T2}, 3', f's_add_u32 s{S_T2}, s{S_T2}, s{S_WAVE}',
             f's_mul_i32 s{S_T2}, s{S_T2}, 3328', f's_add_u32 s{S_TW}, s{S_T2}, s{S_N0}',
             f'v_min_u32 v{vCW}, {8 * nr - 1}, v0', f'v_lshrrev_b32 v{g}, 3, v{vCW}', f's_mov_b32 s{S_T2}, {32 * 3328}',
             f'v_mul_u32_u24 v{g}, s{S_T2}, v{g}',
             f'v_and_b32 v{vCW}, 7, v{vCW}', f'v_min_u32 v{vCW}, 4, v{vCW}', f'v_lshl_add_u32 v{vCW}, v{vCW}, 7, v{g}',
             f's_xor_b32 s{S_T2}, s{S_WAVE}, 4', f's_lshl_b32 s{S_T2}, s{S_T2}, 4', f's_add_u32 s{S_T2}, s{S_T2}, s{S_T3}',
              f'v_lshrrev_b32 v{T + 16}, 3, v0', f'v_add_u32 v{T + 16}, s{S_T2}, v{T + 16}',
              f'v_mul_u32_u24 v{vIdxOff}, 104, v{T + 16}',
             's_waitcnt lgkmcnt(0)']
        L += self.build_srd(SRD_IDX, S_IDX, 4096 * 104)
        own = [f'buffer_load_dwordx2 {vr(T + 4 * pc, 2)}, v{vIdxOff}, {srd(SRD_IDX)}, 0 offen offset:{pc * 832}' for pc in range(2)]
        L += (own if o.idx1 == 2 else []) + [f'buffer_load_dwordx3 {vr(PI, 3)}, v{q}, {srd(SRD_IDX)}, s{S_C0} offen'] + (own if o.idx1 == 1 else [])
        L += self.tlb1(T + 24, 255)
        vec = lambda dst, sr: [f's_mov_b32 m0, {dst}', 's_mov_b32 exec_hi, 0xff',
                               I(f'buffer_load_dwordx4 v{vBL}, {srd(sr)}, s{S_N0} offen lds', tag='BIAS'), 's_mov_b64 exec, -1']
        L += [f'v_lshlrev_b32 v{vBL}, 4, v0'] + self.build_srd(SRD_B1, S_B1, 3328)
        L += self.build_srd(SRD_W, S_W1, 1664 * 3328)
        L += [f'buffer_load_dword v255, v{vCW}, {srd(SRD_W)}, s{S_TW} offen']
        dpf = [f's_mul_i32 s{S_TW}, s{S_MB}, 5', f's_add_u32 s{S_TW}, s{S_TW}, s{S_R}', f's_lshl_b32 s{S_TW}, s{S_TW}, 3', f's_add_u32 s{S_TW}, s{S_TW}, s{S_WAVE}',
               f's_add_u32 s{S_TW}, s{S_TW}, {2 * 832}', f's_lshl_b32 s{S_TW}, s{S_TW}, 7', f'v_min_u32 v{vCW}, {o.dpn - 1}, v0', f'v_mul_u32_u24 v{vCW}, {1280 * 128}, v{vCW}',
               f'buffer_load_dword v255, v{vCW}, {srd(SRD_W)}, s{S_TW} offen']
        L += vec(L_BIAS, SRD_B1) + (self.build_srd(SRD_W2, S_W2, 3328) + vec(L_W2, SRD_W2) if o.w2e else []) + (dpf if o.dpf == 1 else [])
        L += self.stamp0()
        L += [f's_lshr_b32 s{HH}, s{S_WAVE}, 2', f's_and_b32 s{SL}, s{S_WAVE}, 3',
              f's_mov_b32 s{S_T2}, 1639', f's_and_b32 s{S_C0}, s{SL}, 1', f's_lshl_b32 s{S_C0}, s{S_C0}, 2',
              f's_mov_b32 s{S_TW}, 3328', f'v_mov_b32 v{T + 16}, v0']
        for u in range(5):
            ci, rr = T + 16, T + 17
            L += [f'v_mul_u32_u24 v{rr}, s{S_T2}, v{ci}', f'v_lshrrev_b32 v{rr}, 16, v{rr}',
                  f'v_mul_u32_u24 v{q}, 40, v{rr}', f'v_sub_u32 v{q}, v{ci}, v{q}',
                  f'v_and_b32 v{i4}, 2, v{rr}', f'v_or_b32 v{i4}, s{S_C0}, v{i4}', f'v_xor_b32 v{q}, v{q}, v{i4}',
                  f'v_mul_u32_u24 v{rr}, s{S_TW}, v{rr}', f'v_lshl_add_u32 v{vWD[u]}, v{q}, 4, v{rr}']
            if u % 4:
                L += [f'v_subrev_u32 v{vWD[u]}, {1024 * u}, v{vWD[u]}']
            if u < 4:
                L += [f'v_add_u32 v{ci}, 64, v{ci}']
        L += [f's_mul_i32 s{S_T2}, s{S_WAVE}, {8 * 3328}', f's_add_u32 s{S_WSOFF}, s{S_T2}, s{S_N0}',
              f's_mul_i32 s{S_WMB}, s{S_WAVE}, {8 * WP}', f's_add_u32 s{S_WMB}, s{S_WMB}, {WR}',
              f's_lshl_b32 s{S_T3}, s{HH}, 14', f's_lshl_b32 s{S_XM0}, s{SL}, 11', f's_add_u32 s{S_XM0}, s{S_XM0}, s{S_T3}', f's_xor_b32 s{S_XM0}, s{S_XM0}, {2 * XSLOT}',
              f'v_and_b32 v{q}, 7, v0', f'v_lshrrev_b32 v{g}, 4, v0',
              f'v_xor_b32 v{q}, v{q}, v{g}', f'v_lshlrev_b32 v{vCh[0]}, 4, v{q}',
              f'v_xor_b32 v{vCh[1]}, 64, v{vCh[0]}']
        LAB = L
        L = [f'v_and_b32 v{q}, 15, v0', f'v_lshlrev_b32 v{q}, 7, v{q}', f's_lshl_b32 s{S_T3}, s{HH}, 14',
              f'v_bfe_u32 v{i4}, v0, 1, 3', f'v_xor_b32 v{i4}, v{i4}, v{g}', f'v_lshl_add_u32 v{q}, v{i4}, 4, v{q}',
              f'v_add_u32 v{vX[0]}, s{S_T3}, v{q}', f'v_xor_b32 v{vX[1]}, 64, v{vX[0]}']
        L += self.build_srd(SRD_W2, S_W2, 3328)
        L += [f's_mul_i32 s{S_T3}, s{SL}, 5',
              f'v_bfe_u32 v{i4}, v0, 2, 2', f'v_lshl_add_u32 v{q}, v{g}, 3, v{i4}', f'v_mul_u32_u24 v{q}, {WP}, v{q}',
              f'v_and_b32 v{i4}, 3, v0', f'v_lshl_add_u32 v{q}, v{i4}, 3, v{q}', f'v_add_u32 v{q}, {WR}, v{q}',
              f'v_bfe_u32 v{i4}, v0, 3, 2']
        for i in range(5):
            L += [f'v_xor_b32 v{T + 16}, s{S_T3}, v{i4}', f'v_lshl_add_u32 v{vW[0][i]}, v{T + 16}, 5, v{q}',
                  f'v_add_u32 v{vW[1][i]}, {3 * WSLOT}, v{vW[0][i]}', f's_add_u32 s{S_T3}, s{S_T3}, 1']
        L += [f's_mul_i32 s{S_T3}, s{SL}, 160', f's_add_u32 s{S_T3}, s{S_T3}, {L_BIAS}',
              f'v_lshlrev_b32 v{q}, 3, v{g}', f'v_add_u32 v{vP}, s{S_T3}, v{q}',
              f's_lshl_b32 s{S_T2}, s{SL}, 1', f's_add_u32 s{S_T2}, s{S_T2}, s{HH}', f's_lshl_b32 s{S_T2}, s{S_T2}, 8', f's_add_u32 s{S_T2}, s{S_T2}, {RB}',
              f'v_lshlrev_b32 v{vPc}, 2, v0', f'v_add_u32 v{vPc}, s{S_T2}, v{vPc}']
        LC, L = (L, LAB) if o.lc else ([], LAB + L)

        def wld(u):
            return I(f'buffer_load_dwordx4 v{vWD[u]}, {srd(SRD_W)}, s{S_WSOFF} offen offset:{1024 * (u % 4)}{o.wfl} lds', tag='W')

        def wst(stage):
            return [(f's_add_u32 m0, s{S_WMB}, {(stage % 3) * 2 * WSLOT}', wld(0)), (wld(1),), (wld(2),), (wld(3),),
                    ('s_add_u32 m0, m0, 4096', wld(4), f's_add_u32 s{S_WSOFF}, s{S_WSOFF}, {64 * 3328}')]

        def xld(v, m0, tag='X'):
            return (m0, I(f'buffer_load_dwordx4 v{v}, {srd(SRD_TAB)}, 0 offen{o.xfl} lds', tag=tag))
        pkreads = lambda off: [f'ds_read_b64 {vr(PK + 2 * tn, 2)}, v{vP} offset:{off + 32 * tn}' for tn in range(5)]

        def unp(dst):
            c = []
            for tn in range(5):
                for d in range(2):
                    c += [f'v_lshlrev_b32 v{dst(tn) + 2 * d}, 16, v{PK + 2 * tn + d}', f'v_and_b32 v{dst(tn) + 2 * d + 1}, 0xffff0000, v{PK + 2 * tn + d}']
            return c

        def reads(st):
            def rdw(tn):
                c = []
                for par in range(2):
                    sl = (st % 3) * 2 + par
                    c += [f'ds_read_b64_tr_b16 {vr(WF + 8 * tn + 4 * par + 2 * rd, 2)}, v{vW[sl // 3][tn]} offset:{(sl % 3) * WSLOT + rd * 4 * WP}' for rd in range(2)]
                return c
            rdx = [f'ds_read_b128 {vr(XA + 8 * tm + 4 * par, 4)}, v{vX[par]} offset:{(st % 2) * XSLOT + tm * 2048}' for tm in range(4) for par in range(2)]
            if o.x64:
                rdx = [f'ds_read_b64 {vr(XA + 8 * tm + 4 * par + 2 * h, 2)}, v{vX[par]} offset:{(st % 2) * XSLOT + tm * 2048 + 8 * h}' for tm in range(4) for par in range(2) for h in range(2)]
            return rdw(0) + rdw(1) + rdw(2) + rdw(3) + rdx + rdw(4) if o.ro == 0 else rdw(0) + rdx + rdw(1) + rdw(2) + rdw(3) + rdw(4)

        def xst(src, f, tag='X'):
            vo = lambda pc: (f'v_lshl_add_u32 v{VO[pc]}, v{src(pc)}, 7, v{vCh[pc]}',)
            return [vo(1) + vo(0) + xld(VO[0], f's_add_u32 m0, s{S_XM0}, {(f % 2) * XSLOT}', tag), xld(VO[1], 's_add_u32 m0, m0, 1024', tag)]
        idxl = lambda k: [f'buffer_load_dwordx3 {vr(ST[k][pc], 3)}, v{vIdxOff}, {srd(SRD_IDX)}, s{S_IDXOFF} offen offset:{pc * 832}' for pc in range(2)] + [f's_add_u32 s{S_IDXOFF}, s{S_IDXOFF}, 12']

        tA = [f'buffer_load_dword v255, v{PI}, {srd(SRD_TAB)}, 0 offen']
        tB = [f'v_lshlrev_b32 v{PI + 2}, 7, v{PI + 2}', f'buffer_load_dword v255, v{PI + 2}, {srd(SRD_TAB)}, 0 offen']
        ini = LC + [WaitTag(vm_tags=['BIAS'])] + pkreads(0) + unp(lambda tn: acc(tn, 0))
        ini += [f'v_mov_b64 {vr(acc(tn, tm) + 2 * d, 2)}, {vr(acc(tn, 0) + 2 * d, 2)}' for tn in range(5) for tm in range(1, 4) for d in range(2)]
        x0 = xst(lambda pc: T + 4 * pc, 0, 'X0')
        tBl = []
        if o.tbl:
            tBl, tB = tB, []
        b1 = ['s_barrier'] if o.pb & 1 else []
        b2 = ['s_barrier'] if o.pb & 2 else []
        sh = [f'v_lshlrev_b32 v{PI}, 7, v{PI}']
        if o.sv == 0:
            L += sh + (own if not o.idx1 else []) + b1 + tA + tB + self.stamp(6) + wst(0) + ini + x0 + self.stamp(7) + b2
        elif o.sv == 1:
            L += self.stamp(19) + wst(0) + sh + (own if not o.idx1 else []) + b1 + tA + self.stamp(6) + x0 + tB + b2 + ini + self.stamp(7)
        elif o.sv == 2:
            L += sh + (own if not o.idx1 else []) + b1 + tA + self.stamp(6) + x0 + wst(0) + tB + b2 + ini + self.stamp(7)
        elif o.sv == 3:
            L += wst(0) + (own if not o.idx1 else []) + x0 + self.stamp(6) + sh + tA + tB + b2 + ini + self.stamp(7)
        L += [f's_lshl_b32 s{S_IDXOFF}, s{HH}, 2', f's_add_u32 s{S_IDXOFF}, s{S_IDXOFF}, 4'] + idxl(0)
        L += [f's_mov_b32 s{S_LOOP}, 0', f's_cmp_lg_u32 s{HH}, 0', 's_cbranch_scc1 L_dnn_h1']
        pro = self.seq(L)

        def mf(tn, tm, par):
            a = acc(tn, tm)
            return f'v_mfma_f32_16x16x32_bf16 {vr(a, 4)}, {vr(WF + 8 * tn + 4 * par, 4)}, {vr(XA + 8 * tm + 4 * par, 4)}, {vr(a, 4)}'
        MM = [mf(tn, j if tn % 2 == 0 else 3 - j, par) for tn in range(5) for j in range(4) for par in range(2)]
        kb = o.bov
        wi = self.winv(W2F, 20, KONE)
        K1 = list(range(132, 140)) + list(range(220, 232))
        KL, SC = 238, 239
        nw_ = 14
        if o.pr:
            wi = self.winv2(W2F, 20, K1, KL, SC)
            nw_ = 30
        trs = []
        for half in range(2):
            def fill(st, w=True, x=True, extra=(), rextra=()):
                D_ = (wst(st + 2) if w else []) + (xst(lambda pc: ST[(st // 3) % 2][pc] + st % 3, st + 1 + half) if x else [])
                return interleave(reads(st) + list(rextra), D_) + list(extra)

            def M(V=(), b=True, last=False, nw=5, g0=0):
                gp = [[] for _ in MM]
                V = list(V)
                n_ = len(MM) - kb - 1
                wt = [2 if isinstance(x, str) and x.startswith(('v_exp', 'v_rcp')) else 1 for x in V]
                cum = 0
                for x, w_ in zip(V, wt):
                    gp[g0 + cum * (n_ - g0) // sum(wt)].append(x)
                    cum += w_
                m = [(x,) + tuple(y) for x, y in zip(MM, gp)]
                return ['s_setprio 0'] * b + m[:len(m) - kb] + (['s_setprio 2'] + ([WaitTag(allbut=('W', nw))] if half == 0 else []) + ['s_barrier'] if b else []) + m[len(m) - kb:] + ['s_setprio 0'] * last
            wF = lambda nw=5, nx=2: [WaitTag(vm_tags=['X0'], allbut=('X', nx), lgkm0=True)] + ([WaitTag(allbut=('W', nw))] if half else []) + ['s_barrier']
            L = [f'L_dnn_h{half}:']
            pre = (xst(lambda pc: T + 4 * pc + 1, 1) if half else []) + wst(1) + tBl + idxl(1)
            wset = pkreads(WP) + self.kconst(KC0, KC1, KONE) + unp(lambda tn: W2F + 4 * tn) + wi if o.w2e else []
            if half == 0:
                L += pre[:o.q0] + wset + [WaitTag(allbut=('W', min(o.q0, 5)), lgkm0=True)] + self.stamp(1) + ['s_barrier'] + self.stamp(2) + pre[o.q0:]
            else:
                L += pre[:o.q1] + [WaitTag(allbut=('W', max(0, min(o.q1 - 2, 5)))), WaitTag(vm_tags=['X0'], lgkm0=True)] + self.stamp(1) + ['s_barrier'] + self.stamp(2) + pre[o.q1:] + wset + ['s_barrier']
            th = pro + self.seq(L)
            L = [f'L_dnn_loop{half}:']
            for st in range(6):
                ex = []
                if st % 3 == 2:
                    ex += idxl(st // 3)
                if st == 4 and half == 1 and not o.w2e:
                    ex += [tuple(vec(L_W2, SRD_W2))]
                if o.padat.startswith('dl') and int(o.padat[2:]) % 6 == st:
                    ex += [('s_memrealtime s[86:87]', 's_waitcnt lgkmcnt(0)', f's_cmp_eq_u32 s{S_LOOP}, {int(o.padat[2:]) // 6}', 's_cselect_b32 s88, s86, s88')]
                if o.stamps and o.itst == 2 and st % 2:
                    ex += [(f's_memtime s[{S_ST}:{S_ST + 1}]', f's_memrealtime s[{S_ST + 2}:{S_ST + 3}]', f's_mul_i32 s{S_TW}, s{S_LOOP}, 3', f's_add_u32 s{S_TW}, s{S_TW}, {8 + st // 2}',
                           f's_min_u32 s{S_TW}, s{S_TW}, 14', 's_waitcnt lgkmcnt(0)',
                           f's_mov_b32 m0, s{S_TW}', f'v_writelane_b32 v252, s{S_ST}, m0', f'v_writelane_b32 v253, s{S_ST + 2}, m0')]
                if o.stamps and o.itst == 1 and st in (1, 4):
                    ex += [(f's_memtime s[{S_ST}:{S_ST + 1}]', f's_memrealtime s[{S_ST + 2}:{S_ST + 3}]', f's_lshl_b32 s{S_TW}, s{S_LOOP}, 1', f's_add_u32 s{S_TW}, s{S_TW}, {6 + st // 3}',
                           f's_max_u32 s{S_TW}, s{S_TW}, 8', 's_waitcnt lgkmcnt(0)',
                           f's_mov_b32 m0, s{S_TW}', f'v_writelane_b32 v252, s{S_ST}, m0', f'v_writelane_b32 v253, s{S_ST + 2}, m0')]
                L += fill(st, extra=ex) + wF() + M([f's_add_u32 s{S_LOOP}, s{S_LOOP}, 1', f's_cmp_lt_u32 s{S_LOOP}, 4'] if st == 5 else [])
            L += [f's_cbranch_scc1 L_dnn_loop{half}']
            body = self.seq(L)
            th += body * 3
            if o.t2:
                E_ = [(acc(0, tm) + h, WF + 2 * tm + h, W2F + h, SUMP + 2 * tm + h) for tm in range(o.t2) for h in range(2)]
                ev = [f'v_mul_f32 v{t}, v{x}, v{x}' for (x, t, w, s_) in E_] + [f'v_fma_f32 v{t}, v{t}, v{KC1}, v{KC0}' for (x, t, w, s_) in E_]
                ev += [f'v_mul_f32 v{t}, v{t}, v{x}' for (x, t, w, s_) in E_] + [f'v_exp_f32 v{t}, v{t}' for (x, t, w, s_) in E_]
                ev += [f'v_fma_f32 v{t}, v{t}, v{w}, v{w}' for (x, t, w, s_) in E_] + [f'v_rcp_f32 v{t}, v{t}' for (x, t, w, s_) in E_]
                ev += [f'v_mul_f32 v{s_}, v{t}, v{x}' for (x, t, w, s_) in E_]
                L = pkreads(WP) + fill(24, w=False, x=half == 0, extra=(self.tlb2(VO[0], vBL) if half == 0 else []) + unp(lambda tn: W2F + 4 * tn)) + wF(0, 2 - 2 * half)
                L += M(self.kconst(KC0, KC1, KONE) + wi, nw=0)
                L += fill(25, w=False, x=False) + wF(0, 0) + M(ev, b=half == 0, last=True, g0=o.t2g)
            else:
                L = fill(24, w=False, x=half == 0, rextra=pkreads(WP) if not o.w2e else [], extra=self.tlb2(VO[0], vBL) if half == 0 else []) + wF(0, 2 - 2 * half)
                L += M(self.kconst(KC0, KC1, KONE) + unp(lambda tn: W2F + 4 * tn) + wi[:nw_] if not o.w2e else [], nw=0)
                L += fill(25, w=False, x=False) + wF(0, 0) + M(wi[nw_:] if not o.w2e else [], b=half == 0, last=True)
            if half == 0:
                L += ['s_branch L_epi']
            trs.append(th + self.seq(L))
        p2 = lambda r: vr(r, 2)
        el = lambda tn, tm, d: (acc(tn, tm) + 2 * d, W2F + 4 * tn + 2 * d, SUMP + 2 * tm)
        L = ['L_epi:'] + self.stamp(3)
        L += [f's_lshl_b32 s{S_T1}, s{S_R}, 11', f's_and_b32 s{S_T3}, s{S_MB}, 3', f's_lshl_b32 s{S_T3}, s{S_T3}, 9', f's_add_u32 s{S_T1}, s{S_T1}, s{S_T3}',
              f's_lshr_b32 s{S_T0}, s{S_MB}, 2', f's_lshl_b32 s{S_T0}, s{S_T0}, 14', f's_add_u32 s{S_T1}, s{S_T1}, s{S_T0}',
              'v_lshlrev_b32 v3, 3, v0', f'v_add_u32 v2, {RB}, v3']
        if o.pr:
            L += self.gelu2([[(acc(tn, tm), (W2F + 4 * tn, W2F + 4 * tn + 2), (K1[4 * tn], K1[4 * tn + 2]), SUMP + 2 * tm) for tm in range(4)] for tn in range(5)], WF, KC0, KC1, KONE)
        else:
            gr = [[el(tn, tm, d) for tm in range(4) if tn or d or tm >= o.t2] for tn in range(5) for d in range(2)]
            L += self.gelu([x for x in gr if x], WF, KC0, KC1, KONE, [SUMP + 2 * tm for tm in range(o.t2)])
        L += self.red4(SUMP, SC if o.pr else None) + [f'ds_write_b32 v{vPc}, v{SUMP}', 's_waitcnt lgkmcnt(0)'] + self.stamp(4) + self.stamp_flush()
        L += [f's_cmp_eq_u32 s{S_WAVE}, 0', 's_cbranch_scc1 L_dpub']
        tr = self.seq(L)
        self.seq(['s_barrier', 's_endpgm'])
        A = 64
        L = ['L_dpub:'] + self.build_srd(SRD_WS, S_WS, 0x10000000) + self.build_srd(SRD_DBG, S_DBG, 256) + self.cleared('L_dclr', [f's_and_b32 s{S_TW}, s2, 7'], vBL) + ['s_barrier'] + self.stamp(17)
        L += [f'ds_read_b64 {vr(A + 2 * qq, 2)}, v2 offset:{qq * 512}' for qq in range(4)]
        L += [f'v_pk_add_f32 {p2(A)}, {p2(A)}, {p2(A + 2)}', f'v_pk_add_f32 {p2(A + 4)}, {p2(A + 4)}, {p2(A + 6)}', f'v_pk_add_f32 {p2(A)}, {p2(A)}, {p2(A + 4)}',
              f'v_and_b32 v{A}, -2, v{A}', f'v_and_b32 v{A + 1}, -2, v{A + 1}',
              f'buffer_store_dwordx2 {vr(A, 2)}, v3, {srd(SRD_WS)}, s{S_T1} offen sc1'] + self.padsig() + ['s_endpgm']
        return [trs[0] + tr + self.seq(L), trs[1] + tr]

    def rem(self):
        o = self.opt
        self.role = 'r'
        vW = [1, 2, 7, 8]
        vX = [11, 12]
        vWD, vCh, vT, VO = 13, [14, 15], 9, 24
        SUMP = 16
        IDX = 32
        XA, WF = 64, 96
        ACC = 160
        BF, W2F = 32, 48
        PK = 224
        KC0, KC1, KONE = 240, 242, 244
        g, i4, q = 246, 247, 248
        S_F = S_IDXOFF
        acc = lambda tn, tm: ACC + (tn * 4 + tm) * 4
        L = ['L_rem:'] + (['s_memrealtime s[82:83]'] if o.amp == 4 else []) + [f's_lshr_b32 s{S_GRP}, s{S_WAVE}, 2', f's_and_b32 s{S_T0}, s2, 7', f's_lshl_b32 s{S_T0}, s{S_T0}, 3', f's_add_u32 s{S_T0}, s{S_T0}, s{S_WAVE}',
             f's_mul_i32 s{S_T0}, s{S_T0}, {64 * 104}', f's_lshl_b32 s{S_XM0}, s{S_WAVE}, 14',
             f'v_lshlrev_b32 v{q}, 4, v0', f'v_lshrrev_b32 v{g}, 4, v0',
             f'v_lshrrev_b32 v{i4}, 3, v0', f'v_mul_u32_u24 v{vWD}, 3328, v{i4}', f'v_and_b32 v{i4}, 2, v{i4}',
             f's_and_b32 s{S_T1}, s{S_WAVE}, 1', f's_lshl_b32 s{S_T1}, s{S_T1}, 2', f'v_or_b32 v{i4}, s{S_T1}, v{i4}',
             f'v_and_b32 v{vT}, 7, v0', f'v_xor_b32 v{i4}, v{i4}, v{vT}', f'v_lshl_add_u32 v{vWD}, v{i4}, 4, v{vWD}',
             f's_mul_i32 s{S_WSOFF}, s{S_WAVE}, {8 * 3328}', f's_add_u32 s{S_WSOFF}, s{S_WSOFF}, 3200',
             f's_lshl_b32 s{S_WMB}, s{S_WAVE}, 10', f's_add_u32 s{S_WMB}, s{S_WMB}, {RWR}',
             's_waitcnt lgkmcnt(0)']
        L += [f's_load_dword s{S_BOUT}, s[{S_BO}:{S_BO + 1}], 0'] + self.build_srd(SRD_IDX, S_IDX, 4096 * 104)
        for u in range(7):
            L += [f's_add_u32 m0, s{S_XM0}, {8192 + u * 1024}', I(f'buffer_load_dwordx4 v{q}, {srd(SRD_IDX)}, s{S_T0} offen lds', tag='I'),
                  f's_add_u32 s{S_T0}, s{S_T0}, 1024']
        L += self.build_srd(SRD_W, S_W1, 1664 * 3328)
        wld = lambda slot: [f's_add_u32 m0, s{S_WMB}, {slot * 8192}', I(f'buffer_load_dwordx4 v{vWD}, {srd(SRD_W)}, s{S_WSOFF} offen lds', tag='W'),
                            f's_add_u32 s{S_WSOFF}, s{S_WSOFF}, {64 * 3328}']
        L += wld(0)
        L += self.build_srd(SRD_WS, S_WS, 0x10000000) + self.build_srd(SRD_DBG, S_DBG, 256) + [f'v_mov_b32 v{XA + k}, -1' for k in range(4)]
        L += [f's_and_b32 s{S_T2}, s2, 7', f's_lshl_b32 s{S_T0}, s{S_T2}, 3', f's_add_u32 s{S_T0}, s{S_T0}, s{S_WAVE}', f's_lshl_b32 s{S_T0}, s{S_T0}, 11', f's_lshl_b32 s{S_T2}, s{S_T2}, 2',
              f'buffer_store_dwordx4 {vr(XA, 4)}, v{q}, {srd(SRD_WS)}, s{S_T0} offen sc1',
              f'buffer_store_dwordx4 {vr(XA, 4)}, v{q}, {srd(SRD_WS)}, s{S_T0} offen offset:1024 sc1']
        L += self.build_srd(SRD_B1, S_B1, 3328) + self.build_srd(SRD_W2, S_W2, 3328) + self.build_srd(SRD_TAB, S_TAB, 100000 * 128)
        L += self.stamp0()
        L += [f'v_xor_b32 v{q}, v{vT}, v{g}', f'v_lshlrev_b32 v{vCh[0]}, 4, v{q}', f'v_xor_b32 v{vCh[1]}, 64, v{vCh[0]}',
              f'v_bfe_u32 v{i4}, v0, 2, 2', f'v_lshl_add_u32 v{q}, v{g}, 3, v{i4}', f'v_lshlrev_b32 v{q}, 7, v{q}',
              f'v_and_b32 v{i4}, 3, v0', f'v_lshl_add_u32 v{q}, v{i4}, 3, v{q}', f'v_add_u32 v{q}, {RWR}, v{q}',
              f'v_bfe_u32 v{i4}, v0, 3, 2', f'v_lshl_add_u32 v{vW[0]}, v{i4}, 5, v{q}']
        L += [f'v_xor_b32 v{vW[i]}, {32 * i}, v{vW[0]}' for i in range(1, 4)]
        L += [f'v_and_b32 v{q}, 15, v0', f'v_lshlrev_b32 v{q}, 7, v{q}',
              f'v_bfe_u32 v{i4}, v0, 1, 3', f'v_xor_b32 v{i4}, v{i4}, v{g}', f'v_lshl_add_u32 v{q}, v{i4}, 4, v{q}',
              f'v_add_u32 v{vX[0]}, s{S_XM0}, v{q}', f'v_xor_b32 v{vX[1]}, 64, v{vX[0]}',
              f'v_lshrrev_b32 v{i4}, 3, v0', f'v_lshl_add_u32 v{q}, v{vT}, 3, v{i4}', f'v_mul_u32_u24 v{q}, 104, v{q}', f'v_add_u32 v{q}, s{S_XM0}, v{q}']
        S_OO = S_N0
        L += self.build_srd(SRD_OUT, S_OUT, 8192) + [
             f's_and_b32 s{S_OO}, s2, 7', f's_lshl_b32 s{S_T0}, s{S_OO}, 14', f's_lshl_b32 s{S_T1}, s{S_WAVE}, 8', f's_add_u32 s{S_T0}, s{S_T0}, s{S_T1}',
             f's_add_u32 s{S_T1}, s{S_T0}, 4096', f's_add_u32 s{S_T3}, s{S_T0}, 8192',
             f's_lshl_b32 s{S_OO}, s{S_OO}, 3', f's_add_u32 s{S_OO}, s{S_OO}, s{S_WAVE}', f's_lshl_b32 s{S_OO}, s{S_OO}, 7',
             'v_lshlrev_b32 v3, 2, v0', 'v_lshlrev_b32 v4, 1, v0',
             f's_lshl_b32 s{S_TW}, s{S_WAVE}, 6', f'v_add_u32 v5, s{S_TW}, v0', f'v_cmp_lt_u32 vcc, {(439 if o.sym else 483) + o.n4}, v5', 'v_add_u32 v5, 4096, v3', 'v_mov_b32 v6, 0x7f000000',
             'v_cndmask_b32 v5, v6, v5, vcc']
        L += self.kconst(KC0, KC1, KONE, o.rpr) + [f'v_mov_b32 v{r}, 0' for r in range(ACC, ACC + 64)] + ['s_waitcnt vmcnt(0) lgkmcnt(0)', f's_lshl_b32 s{S_BOUT}, s{S_BOUT}, 16']
        L += [f'ds_read_b64 {vr(IDX + 2 * k, 2)}, v{q} offset:{8192 + 8 * k}' for k in range(13)]

        def xld(src, slot, h=None):
            c = [tuple(f'v_add_u32_dpp v{VO + pc}, v{src}, v{vCh[pc % 2]} row_newbcast:{8 * hh + pc} row_mask:0xf bank_mask:{hex(3 << (2 * hh))}'
                       for hh in range(2) for pc in range(4 * k, 4 * k + 4)) for k in range(2)]
            d = [(f's_add_u32 m0, s{S_XM0}, {slot * 8192 + pc * 1024}',
                  I(f'buffer_load_dwordx4 v{VO + pc}, {srd(SRD_TAB)}, 0 offen lds', tag='X')) for pc in range(8)]
            return c[:1] + d[:4] + c[1:] + d[4:] if h is None else c[h:h + 1] + d[4 * h:4 * h + 4]
        L += [f'v_mov_b32 v{VO + pc}, 0' for pc in range(8)] + [f'v_mov_b32 v{IDX + k}, 0x7f000000' for k in (26, 27)]
        L += [f'v_lshlrev_b32 v{IDX}, 7, v{IDX}'] + xld(IDX, 0)
        L += wld(1) + [f'v_lshlrev_b32 v{IDX + k}, 7, v{IDX + k}' for k in range(25, 0, -1)] + xld(IDX + 1, 1) + wld(2)
        L += [f'v_lshlrev_b32 v{q}, 3, v{g}']

        rdx = lambda fp, h: [f'ds_read_b128 {vr(XA + 16 * h + 8 * t + 4 * par, 4)}, v{vX[par]} offset:{fp * 8192 + (2 * h + t) * 2048}' for t in (1, 0) for par in (1, 0)]
        rdw = lambda fp: [f'ds_read_b64_tr_b16 {vr(WF + 32 * fp + 8 * tn + 4 * par + 2 * rd, 2)}, v{vW[tn]} offset:{fp * 8192 + par * 4096 + rd * 512}'
                          for tn in range(4) for par in range(2) for rd in range(2)]

        def mm(fp, h):
            return [f'v_mfma_f32_16x16x32_bf16 {vr(acc(tn, 2 * h + t), 4)}, {vr(WF + 32 * fp + 8 * tn + 4 * par, 4)}, {vr(XA + 16 * h + 8 * t + 4 * par, 4)}, {vr(acc(tn, 2 * h + t), 4)}'
                    for tn in range(4) for t in range(2) for par in range(2)]
        L += [f's_mov_b32 s{S_F}, 3', f'v_mov_b32 v{vT}, v{IDX + 2}'] + list(xld(vT, 0, 0)[0])
        L += [WaitTag(allbut=('X', 12)), 's_barrier'] + self.stamp(2) + rdx(0, 0) + rdw(0)
        L += [f's_cmp_lg_u32 s{S_WAVE}, 7', 's_cbranch_scc1 L_rem_loop', 's_mov_b64 exec, 1',
              ] + (['s_or_b32 s86, s88, 1', 'v_mov_b32 v10, s86'] if o.gs else []) + [
              f'buffer_store_dword v{10 if o.gs else KC0}, v{vCh[0]}, {srd(SRD_DBG)}, s{S_T2} offen offset:128 sc1', 's_mov_b64 exec, -1']
        tr = self.seq(L)

        def phase(M, R, Dm, V, V2=()):
            gp = [[] for _ in M]
            for k, x in enumerate(R):
                gp[k * o.rrd // max(len(R), 1)].append(x)
            for k, x in enumerate(Dm):
                gp[1 + k * 15 // len(Dm)].append(x)
            v0 = o.rrd if R else 0
            for k, x in enumerate(V):
                gp[v0 + k * (16 - v0) // len(V)].append(x)
            for k, x in enumerate(V2):
                gp[3 + k * 12 // len(V2)].append(x)
            return [(m,) + tuple(g_) for m, g_ in zip(M, gp)]
        assert not o.rpr
        ub = [x for k in range(8) for x in (f'v_lshlrev_b32 v{BF + 2 * k}, 16, v{PK + k}', f'v_and_b32 v{BF + 2 * k + 1}, 0xffff0000, v{PK + k}')]
        uw = [x for k in range(8) for x in (f'v_lshlrev_b32 v{W2F + 2 * k}, 16, v{PK + 8 + k}', f'v_and_b32 v{W2F + 2 * k + 1}, 0xffff0000, v{PK + 8 + k}')]
        wi = self.winv(W2F, 16, KONE)
        badd = lambda h: [f'v_add_f32 v{acc(tn, 2 * h + t) + r}, v{BF + 4 * tn + r}, v{acc(tn, 2 * h + t) + r}' for tn in range(4) for t in range(2) for r in range(4)]
        vld = [f'buffer_load_dwordx2 {vr(PK + 2 * tn, 2)}, v{q}, {srd(SRD_B1)}, 0 offen offset:{3200 + 32 * tn}' for tn in range(4)]
        vld += [f'buffer_load_dwordx2 {vr(PK + 8 + 2 * tn, 2)}, v{q}, {srd(SRD_W2)}, 0 offen offset:{3200 + 32 * tn}' for tn in range(4)]

        def field(fp, last):
            L = [WaitTag(allbut=('W', 1)), WaitTag(allbut=('X', 0 if last and fp else 8))] + ([] if last and fp else ['s_barrier'])
            if fp == 1 and not last:
                L += [f'v_xor_b32 v{vW[i]}, 16384, v{vW[i]}' for i in range(4)]
            sx = (f's_xor_b32 s{S_WMB}, s{S_WMB}, 16384',)
            wl = [sx + tuple(wld(1)) + sx] if fp == 0 else [tuple(wld(0)) + sx]
            rw = rdw(1 - fp)
            mv = [(f's_set_gpr_idx_on s{S_F}, gpr_idx(SRC0)', 's_nop 0', f'v_mov_b32 v{vT}, v{IDX}', 's_set_gpr_idx_off', f's_add_u32 s{S_F}, s{S_F}, 1')]
            if not last:
                L += phase(mm(fp, 0), rdx(fp, 1) + rw[:8], xld(vT, fp, 0)[1:], list(xld(vT, fp, 1)[0]))
                L += [WaitTag(allbut=('X', 8))]
                L += phase(mm(fp, 1), rdx(1 - fp, 0) + rw[8:], xld(vT, fp, 1)[1:] + wl, mv + list(xld(vT, fp, 0)[0]))
            elif not o.rv:
                if fp == 0:
                    L += phase(mm(fp, 0), rdx(fp, 1) + rw[:8], vld + [f'buffer_load_dword v255, v3, {srd(SRD_OUT)}, s{S_OO} offen'], []) + [WaitTag(allbut=('X', 4))]
                    L += phase(mm(fp, 1), rdx(1 - fp, 0) + rw[8:], [], [])
                else:
                    L += phase(mm(fp, 0), rdx(fp, 1), [], [], uw + ub[:6]) + phase(mm(fp, 1), [], [], ub[6:] + wi[:o.rwi])
            elif fp == 0:
                L += phase(mm(fp, 0), rdx(fp, 1) + rw[:8], [], [], ub) + [WaitTag(allbut=('X', 4))]
                L += phase(mm(fp, 1), rdx(1 - fp, 0) + rw[8:], [], [], uw)
            else:
                L += phase(mm(fp, 0), rdx(fp, 1), [], [], badd(1)) + phase(mm(fp, 1), [], [], [], badd(0))
            return L
        L = ['L_rem_loop:'] + field(0, False) + ([f's_cmp_lg_u32 s{S_F}, 26', 's_cbranch_scc1 L_rnv'] if o.rv else [])
        bodya = self.seq(L)
        bodyv = self.seq(vld + [f'buffer_load_dword v255, v3, {srd(SRD_OUT)}, s{S_OO} offen']) if o.rv else []
        L = ['L_rnv:'] + field(1, False) + [f's_cmp_lt_u32 s{S_F}, 27', 's_cbranch_scc1 L_rem_loop']
        L = [x for x in flat(L) if not any((x.text if isinstance(x, I) else x).startswith(d) for d in o.rdrop.split(',') if d)]
        body = self.seq(L)
        body2 = self.seq(field(0, True) + field(1, True))
        el = lambda tn, tm, d: (acc(tn, tm) + 2 * d, W2F + 4 * tn + 2 * d, SUMP + 2 * tm)
        A = 128
        pld = [f'buffer_load_dword v{A + k}, v3, {srd(SRD_WS)}, s{(S_T0, S_T1, S_T3)[k // 2]} offen offset:{(k % 2) * 2048} sc1' for k in range(6)]
        pld += [f'buffer_load_dword v{A + 6}, v5, {srd(SRD_WS)}, s{S_T3} offen sc1']
        L = self.stamp(3) + ['L_repi:'] + (wi if o.rv else wi[o.rwi:] + [f'v_pk_add_f32 {vr(acc(tn, tm) + 2 * d, 2)}, {vr(acc(tn, tm) + 2 * d, 2)}, {vr(BF + 4 * tn + 2 * d, 2)}'
                                                                        for tn in range(4) for tm in range(4) for d in range(2)])
        ge = self.gelu([[el(tn, tm, d) for tm in range(4)] for tn in range(4) for d in range(2)], XA, KC0, KC1, KONE)
        early = o.epoll and o.amp not in (2, 3)
        cut = len(ge) - o.epoll * len(ge) // 8
        L += ge[:cut] + (pld if early else []) + ge[cut:]
        L += self.red4(SUMP) + [f'v_add_f32 v{SUMP}, s{S_BOUT}, v{SUMP}', 'L_rclr:'] + self.stamp(4) + self.padsig()
        gsl = []
        if o.gs:
            gsl = [f'buffer_load_dword v10, v3, {srd(SRD_DBG)}, 0 offen offset:128 sc1', 's_waitcnt vmcnt(0)', 's_mov_b32 s83, 0']
            for k in range(8):
                gsl += [f'v_readlane_b32 s82, v10, {k}', 's_nop 1', 's_sub_u32 s82, s82, s88', 's_min_i32 s83, s83, s82']
            gsl += ['s_max_i32 s83, s83, -1000', 's_add_u32 s88, s88, s83']
        tk = ['s_memrealtime s[86:87]', 's_waitcnt lgkmcnt(0)'] + gsl + ['s_sub_u32 s89, s86, s88', 's_min_u32 s89, s89, 10000', 's_lshl_b32 s89, s89, 3']
        if o.amp == 2:
            L += [f's_mov_b32 s{S_LOOP}, 0x40000', 'L_polla:', f's_sub_u32 s{S_LOOP}, s{S_LOOP}, 1', 's_cbranch_scc1 L_pollax']
            L += [f'buffer_load_dword v{A + k}, v3, {srd(SRD_WS)}, s{(S_T0, S_T1, S_T3)[k // 2]} offen offset:{(k % 2) * 2048} sc1' for k in range(5)]
            L += [f'v_max3_u32 v{A + 8}, v{A}, v{A + 1}, v{A + 2}', f'v_max3_u32 v{A + 8}, v{A + 3}, v{A + 4}, v{A + 8}',
                  f'v_cmp_eq_u32 vcc, -1, v{A + 8}', 's_cbranch_vccnz L_polla', 'L_pollax:']
        if o.amp in (2, 3):
            L += tk
        L += [f's_mov_b32 s{S_LOOP}, 0x40000'] + (['s_branch L_pchk'] if early else [])
        tl1 = self.seq(L)
        tl2 = self.seq(['L_poll:', f's_sub_u32 s{S_LOOP}, s{S_LOOP}, 1', 's_cbranch_scc1 L_pollx'] + pld)
        L = ['L_pchk:', 's_waitcnt vmcnt(0)']
        L += [f'v_max3_u32 v{A + 8}, v{A}, v{A + 1}, v{A + 2}', f'v_max3_u32 v{A + 9}, v{A + 3}, v{A + 4}, v{A + 5}', f'v_max3_u32 v{A + 8}, v{A + 8}, v{A + 9}, v{A + 6}',
              f'v_cmp_eq_u32 vcc, -1, v{A + 8}', 's_cbranch_vccnz L_poll', 'L_pollx:']
        L += [f'v_add_f32 v{A}, v{A}, v{A + 1}', f'v_add_f32 v{A + 2}, v{A + 2}, v{A + 3}', f'v_add_f32 v{A + 4}, v{A + 4}, v{A + 5}',
              f'v_add_f32 v{SUMP}, v{SUMP}, v{A + 6}', f'v_add_f32 v{A}, v{A}, v{A + 2}', f'v_add_f32 v{A + 4}, v{A + 4}, v{SUMP}', f'v_add_f32 v{A}, v{A}, v{A + 4}',
              f'v_cvt_pk_bf16_f32 v{A}, v{A}, v{A}']
        if o.amp and o.amp < 4:
            L += (tk if o.amp == 1 else []) + [
                  'L_ampspin:', 's_memrealtime s[86:87]', 's_waitcnt lgkmcnt(0)', 's_sub_u32 s86, s86, s88', 's_cmp_lt_u32 s86, s89', 's_cbranch_scc1 L_ampspin']
        if o.padat:
            L += ['L_padspin:', f'buffer_load_dword v7, v8, {srd(SRD_DBG)}, 0 offen sc1', 's_waitcnt vmcnt(0)', 's_memrealtime s[86:87]',
                  'v_readfirstlane_b32 s88, v7', 's_waitcnt lgkmcnt(0)', 's_cmp_eq_u32 s88, 0', 's_cbranch_scc1 L_padspin'] + (['s_not_b32 s88, s88'] if o.padmin else []) + [
                  's_sub_u32 s86, s86, s88', 's_cmp_lt_i32 s86, 6000', 's_cbranch_scc1 L_padspin'] if o.amp != 4 else [
                  f's_mov_b32 s{S_LOOP}, 0x40000', 'L_padspin:', f's_sub_u32 s{S_LOOP}, s{S_LOOP}, 1', 's_cbranch_scc1 L_padx',
                  f'buffer_load_dword v7, v8, {srd(SRD_DBG)}, 0 offen sc1', 's_waitcnt vmcnt(0)', 's_memrealtime s[86:87]',
                  'v_readfirstlane_b32 s88, v7', 's_waitcnt lgkmcnt(0)'] + (['s_not_b32 s88, s88'] if o.padmin else []) + [
                  's_sub_u32 s88, s88, s82', 's_min_u32 s88, s88, 5000', 's_lshl_b32 s88, s88, 3', 's_add_u32 s88, s88, 5000',
                  's_sub_u32 s86, s86, s82', 's_cmp_lt_u32 s86, s88', 's_cbranch_scc1 L_padspin', 'L_padx:']
        L += [f'buffer_store_short v{A}, v4, {srd(SRD_OUT)}, s{S_OO} offen{o.ofl}'] + self.stamp(5) + self.stamp_flush() + ['s_endpgm']
        return [tr + (bodya + body) * 3 + bodya + bodyv + body + body2 + tl1 + ([] if early else tl2) + self.seq(L)]

    def cin(self):
        o = self.opt
        self.role = 'c'
        cw = S_CW
        S_BCUR, S_BD, S_EXP, S_EXPC, S_PREV, S_SC, S_PH = 74, 75, 48, 49, 50, 51, 97
        S_CHK = S_M26
        vFA, vFR, vOne, vF, vFG, vFGa = 1, 2, 3, 4, 5, 6
        vRaw, vLin, vLinB, vXw, vX1, vX2, vSh, vAcc, vOr, vSI, vXi, vC16, vPWL, vPXL, PXR = range(7, 22)
        FT, XI, aD, aS, aLc, aC = 22, 24, 28, 29, 30, 31
        RAW, X, RZ, D = 32, 40, 52, 68
        WA, WB, WC, WS_, WL = 84, 128, 172, 216, 240
        Da, Db, Dc, Ds = D, D + 4, D + 8, D + 12
        T = 40
        half, i32, t3, t4, t5, vg, vm = T + 1, T + 2, T + 3, T + 4, T + 5, T + 6, T + 7
        vStg = 48
        GB = 49
        vMx, vWr, vL6, vL, vWu, vWo = range(62, 68)
        vDl = 247
        AD = 68
        vA3, vBs0, vBs1a, vBs1b, vUw, vV2w, vE, V3T = 240, 241, 242, 243, 244, 245, 246, 81
        BALL, UP, AFR, DALL = 84, 84, 132, 140
        BT, SUM, OUT = 216, 84, 132
        XJ = 204
        F_W3, F_W2, F_W1, F_PEEL, F_M, F_U, F_V3, F_XB = 0, 4, 8, 12, 16, 24, 32, 36
        nsync = [0]

        def sig(off, A=vFA, **kw):
            return [WaitTag(lgkm0=True, **kw), f'ds_add_u32 v{A}, v{vOne} offset:{off}']

        def wait(off, tgt, R=vFR):
            nsync[0] += 1
            lab = f'L_csync{nsync[0]}'
            return [f'{lab}:', f'ds_read_b32 v{vF}, v{R} offset:{off}', 's_waitcnt lgkmcnt(0)',
                    f'v_cmp_gt_u32 vcc, {tgt}, v{vF}', f's_cbranch_vccnz {lab}']

        def dppred(op, r):
            return [f'{op}_dpp v{r}, v{r}, v{r} {ctl} row_mask:{rm} bank_mask:0xf'
                    for (ctl, rm) in (('row_shr:1', '0xf'), ('row_shr:2', '0xf'), ('row_shr:4', '0xf'), ('row_shr:8', '0xf'),
                                      ('row_bcast:15', '0xa'), ('row_bcast:31', '0xc'))]

        def absmax(dst, regs):
            c = [f'v_max3_f32 v{dst}, abs(v{regs[0]}), abs(v{regs[1]}), abs(v{regs[2]})']
            k = 3
            while k < len(regs):
                b = regs[k + 1] if k + 1 < len(regs) else regs[k]
                c.append(f'v_max3_f32 v{dst}, v{dst}, abs(v{regs[k]}), abs(v{b})')
                k += 2
            return c

        def waitmax(off, dst_e, top, R=vFR):
            nsync[0] += 1
            lab = f'L_csync{nsync[0]}'
            return [f'{lab}:', f'ds_read_b64 {vr(T, 2)}, v{R} offset:{off}', 's_waitcnt lgkmcnt(0)',
                    f'v_cmp_gt_u32 vcc, 4, v{T}', f's_cbranch_vccnz {lab}',
                    f'v_readfirstlane_b32 s{dst_e}, v{T + 1}',
                    f's_lshr_b32 s{dst_e}, s{dst_e}, 23', f's_sub_i32 s{dst_e}, {top}, s{dst_e}', f's_min_i32 s{dst_e}, s{dst_e}, 40']

        def postmax(r, off, **kw):
            return dppred('v_max_u32', r) + [f'v_readlane_b32 s{S_T0}, v{r}, 63', f'v_mov_b32 v{r}, s{S_T0}',
                                             f'ds_max_u32 v{vFA}, v{r} offset:{off + 4}', WaitTag(**kw), f'ds_add_u32 v{vFA}, v{vOne} offset:{off}']
        setsc = lambda e: [f's_add_i32 s{S_SC}, s{e}, 127', f's_lshl_b32 s{S_SC}, s{S_SC}, 23']

        S_C, S_DYN, S_ST0, S_TK = S_R, S_MB, 98, 99
        NST = 40 if o.sym else 44
        PB = 11 * NST
        assert 2 * (512 - PB) - o.n4 <= (88 if o.sym else 44)
        vFl, vTk, vZ = 249, 250, 251
        S_HALF = S_STG9
        L = ['L_cin:', f's_and_b32 s{S_T0}, s{S_MB}, 3', f's_mul_i32 s{S_T0}, s{S_T0}, 3', f's_add_u32 s{S_C}, s{S_T0}, s{S_R}',
             f's_sub_u32 s{S_C}, s{S_C}, 6',
             f's_and_b32 s{cw}, s{S_WAVE}, 3', f's_lshr_b32 s{S_GRP}, s{S_WAVE}, 2',
             f's_lshl_b32 s{S_GW}, s{S_C}, 3', f's_add_u32 s{S_GW}, s{S_GW}, s{S_WAVE}',
             f's_mul_i32 s{S_T0}, s{S_GW}, {10 * 128}',
             f'v_min_u32 v{T}, 9, v0', f'v_lshlrev_b32 v{T}, 7, v{T}',
             f'v_lshlrev_b32 v{vStg}, 4, v0',
             f's_lshl_b32 s{S_STG}, s{cw}, 10',
             f's_cmp_eq_u32 s{cw}, 2', f's_cselect_b64 s[{S_EX}:{S_EX + 1}], 0x3fffff, -1',
             f's_cmp_eq_u32 s{cw}, 3', f's_cselect_b32 s{S_STG9}, 0, {8 * 4096}',
             f's_add_u32 s{S_STG9}, s{S_STG9}, s{S_STG}',
             f's_mul_i32 s{S_T1}, s{S_C}, 2979', f's_lshr_b32 s{S_T1}, s{S_T1}, 6', f's_mul_i32 s{S_ST0}, s{S_C}, {NST}',
             f's_and_b32 s{S_T2}, s2, 7', f's_add_u32 s{S_RC}, s{S_ST0}, s{S_WAVE}', f's_lshl_b32 s{S_RC}, s{S_RC}, 2',
             f's_lshl_b32 s{S_ST0}, s{S_T2}, 14', f's_add_u32 s{S_RC}, s{S_RC}, s{S_ST0}', f's_add_u32 s{S_RC}, s{S_RC}, {5 * 2048}', f's_mul_i32 s{S_ST0}, s{S_C}, {NST}', f's_lshl_b32 s{S_PX}, s{S_T2}, 9', f's_add_u32 s{S_SAMP}, s{S_PX}, s{S_ST0}', f's_add_u32 s{S_PX}, s{S_PX}, s{S_T1}',
             f's_add_u32 s{S_SAMP}, s{S_SAMP}, s{S_WAVE}', f's_mul_i32 s{S_SAMP}, s{S_SAMP}, 104',
] + ([f's_lshl_b32 s{S_ST0}, s{S_C}, 2', f's_add_u32 s{S_ST0}, s{S_ST0}, s{S_WAVE}', f's_add_u32 s{S_ST0}, s{S_ST0}, s{S_T2}', f's_and_b32 s{S_ST0}, s{S_ST0}, 7'] if not o.sym else [
             f's_add_u32 s{S_ST0}, s{S_WAVE}, s{S_T2}', f's_and_b32 s{S_ST0}, s{S_ST0}, 3', f's_lshl_b32 s{S_TK}, s{S_GRP}, 2', f's_add_u32 s{S_ST0}, s{S_ST0}, s{S_TK}']) + [
             f's_mul_i32 s{S_ST0}, s{S_ST0}, {16384 + o.shs}', f's_add_u32 s{S_ST0}, s{S_ST0}, {6 * 2048}',
] + ([f's_sub_u32 s{S_LOOP}, 6, s{S_GRP}', f's_lshl_b32 s{S_TK}, s{S_GRP}, 1'] if not o.sym else [f's_mov_b32 s{S_LOOP}, 5', f's_mov_b32 s{S_TK}, 2']) + [f's_mov_b32 s{S_DYN}, -1',
             f'v_lshrrev_b32 v{t3}, 3, v0', f'v_min_u32 v{t3}, 6, v{t3}', f'v_lshlrev_b32 v{vXi}, 4, v{t3}',
             f's_mul_i32 s{S_T2}, s{S_T2}, 88', f's_add_u32 s{S_T2}, s{S_GW}, s{S_T2}', f's_mov_b32 s{S_T3}, 704',
             f'v_mov_b32 v{t4}, s{S_T2}', f'v_mad_u32_u24 v{vPWL}, v0, s{S_T3}, v{t4}',
             f's_mul_i32 s{S_T2}, s{S_GW}, 104', f's_sub_u32 s{S_T2}, s{S_T2}, {13 * 26 - 25}',
             f'v_min_u32 v{t4}, {12 + o.pfr}, v0', f'v_mul_u32_u24 v{t5}, 26, v{t4}', f'v_add_u32 v{t5}, s{S_T2}, v{t5}',
             f'v_cmp_lt_u32 vcc, 12, v{t4}', f'v_cndmask_b32 v{vPWL}, v{vPWL}, v{t5}, vcc', f'v_lshlrev_b32 v{vPWL}, 7, v{vPWL}',
             f's_mov_b32 s{S_PW}, {o.pfe0 * 832 * 128}',
             f'v_mov_b32 v{vFR}, {L_FLG}', f'v_lshlrev_b32 v{vFA}, 20, v0', f'v_add_u32 v{vFA}, {L_FLG}, v{vFA}',
             f'v_and_b32 v{t4}, 7, v0', f'v_lshlrev_b32 v{vC16}, 4, v{t4}', f'v_and_b32 v{t4}, 15, v0', f'v_lshl_add_u32 v{t4}, v{t4}, 2, v{vFR}',
             f'v_mov_b32 v{vOne}, 0', f'ds_write_b32 v{t4}, v{vOne}',
             f'v_lshrrev_b32 v{half}, 5, v0', f'v_and_b32 v{i32}, 31, v0',
             's_waitcnt lgkmcnt(0)', f'v_mov_b32 v{vOne}, 1']
        L += self.tlb1(t5, 255)
        L += self.build_srd(SRD_CIN, S_CIN, 105456)
        L += [f'buffer_load_dword v255, v{T}, {srd(SRD_CIN)}, s{S_T0} offen'] if o.coop else []
        L += self.build_srd(SRD_W, S_W1, 1664 * 3328)

        def pfw():
            if o.nopf & 4:
                return []
            return [f's_mov_b64 exec, {((1 << (13 + o.pfr)) - 1) & ~(0x1fff if o.nopf & 1 else 0)}', f'buffer_load_dword v255, v{vPWL}, {srd(SRD_W)}, s{S_PW} offen', 's_mov_b64 exec, -1',
                    f's_add_u32 s{S_PW}, s{S_PW}, {352 * 3328}']
        L += ['s_barrier'] + (pfw() if o.pf1 in (0, 3) else [])
        L += self.build_srd(SRD_IDX, S_IDX, 4096 * 104)

        def pfx_a():
            return [] if o.nopf & 2 else [f'buffer_load_dword v{PXR}, v{vPXL}, {srd(SRD_IDX)}, s{S_PX} offen',
                    f's_cmp_eq_u32 s{S_PX}, s{S_PXE}', f's_cselect_b32 s{S_PXE}, 0x7000000, s{S_PXE}',
                    f's_cselect_b32 s{S_PX}, 0x7000000, s{S_PX}',
                    f's_add_u32 s{S_PX}, s{S_PX}, 24', f's_min_u32 s{S_PX}, s{S_PX}, s{S_PXE}']

        def pfx_b():
            return [] if o.nopf & 2 else [f'v_lshlrev_b32 v{PXR}, 7, v{PXR}', f'buffer_load_dword v255, v{PXR}, {srd(SRD_TAB)}, 0 offen']

        def xidx(XI=XI, off=0, adv=True):
            c = [f'buffer_load_dwordx4 {vr(XI, 4)}, v{vXi}, {srd(SRD_IDX)}, s{S_SAMP} offen offset:{off}']
            if adv:
                c.append(f's_add_u32 s{S_SAMP}, s{S_SAMP}, {8 * 104}')
            return c

        def xdma(XI=XI, lo=0):
            c = []
            for u in range(4):
                if u == 2:
                    c += ['s_mov_b32 exec_hi, 0x0000ffff']
                c += [f'v_lshl_add_u32 v{XI + u}, v{XI + u}, 7, v{vC16}']
                if u == 3:
                    c += ['s_mov_b32 exec_lo, 0', 's_mov_b32 exec_hi, 0xffff0000', f'v_mov_b32 v{XI + 3}, v{XI + 1}', f'v_mov_b32 v{XI + 2}, v{XI + 1}',
                          's_mov_b32 exec_hi, 0x00ff0000', f'v_mov_b32 v{XI + 2}, v{XI}', 's_mov_b64 exec, -1']
            for u in range(4):
                c += [f's_add_u32 m0, s{S_BCUR}, {u * XPI + lo}']
                if u == 3:
                    c += ['s_mov_b32 exec_hi, 0x00ffffff']
                c.append(I(f'buffer_load_dwordx4 v{XI + u}, {srd(SRD_TAB)}, 0 offen lds', tag='XB'))
                if u == 3:
                    c += ['s_mov_b32 exec_hi, -1']
            return c
        wco = self.build_srd(SRD_WCO, S_WCO, 156) + [f's_mov_b32 m0, {L_WCO}', 's_mov_b64 exec, 0x7ff',
              I(f'buffer_load_dwordx4 v{vStg}, {srd(SRD_WCO)}, 0 offen lds', tag='STG3'),
              's_mov_b64 exec, -1']
        L += self.stamp0()

        def stage(dst, goff, tag):
            sh = o.w1s and dst == A1
            st = []
            for m in range(8):
                st.append((f's_add_u32 m0, s{S_STG}, {dst + m * 4096}', f's_add_u32 s{S_TW}, s{S_STG}, {goff + m * 4096 - (4 if sh and m >= 5 else 0)}',
                           I(f'buffer_load_dwordx4 v{vStX if sh and m == 5 else vStg}, {srd(SRD_CIN)}, s{S_TW} offen lds', tag=tag)))
            g9 = (f's_add_u32 s{S_TW}, s{S_STG9}, {goff}',) if not sh else (f's_lshr_b32 s{S_TW}, s{S_STG9}, 13', f's_sub_u32 s{S_TW}, s{S_STG9}, s{S_TW}')
            st.append((f's_add_u32 m0, s{S_STG9}, {dst}',) + g9 + (f's_mov_b64 exec, s[{S_EX}:{S_EX + 1}]',
                       I(f'buffer_load_dwordx4 v{vStg}, {srd(SRD_CIN)}, s{S_TW} offen lds', tag=tag),
                       's_mov_b64 exec, -1'))
            return st
        vStX = 248
        if o.w1s:
            L += [f'v_add_u32 v{vStX}, s{S_STG}, v{vStg}', f'v_cmp_gt_u32 vcc, {16 * 1352 - 5 * 4096}, v{vStX}', f'v_cndmask_b32 v{vStX}, 0, 4, vcc',
                  f'v_add_u32 v{vStX}, v{vStX}, v{vStg}']

        L += [f's_cmp_lg_u32 s{S_GRP}, 0', 's_cbranch_scc1 L_g1a']
        c0 = self.seq(L)
        sA, sB = (('1', A1, 0, F_W1), ('2', A2, 35152, F_W2)) if o.w1first else (('2', A2, 35152, F_W2), ('1', A1, 0, F_W1))
        stA, stB = stage(sA[1], sA[2], 'STG' + sA[0]), stage(sB[1], sB[2], 'STG' + sB[0])
        stg = [wco + stage(A3, 70304, 'STG3') + stA[:o.sigat],
               sig(F_W3, vm_tags=['STG3']) + self.stamp(1) + stA[o.sigat:] + stB[:o.sig2],
               sig(sA[3], vm_tags=['STG' + sA[0]]) + stB[o.sig2:]]
        g0a = self.seq(stg[:o.ccpos] + ['s_branch L_addrc'])
        L = ['L_g1a:', 's_setprio 1',
             f'v_bfe_u32 v{t3}, v0, 2, 2', f'v_lshl_add_u32 v{t3}, v{half}, 3, v{t3}',
             f'v_bfe_u32 v{t4}, v0, 4, 1', f'v_lshlrev_b32 v{t4}, 5, v{t4}',
             f'v_and_b32 v{t5}, 3, v0', f'v_lshl_add_u32 v{t4}, v{t5}, 3, v{t4}',
             f'v_lshl_add_u32 v{vA3}, v{t3}, 6, v{t4}', f'v_add_u32 v{vA3}, {V3OFF}, v{vA3}',
             f's_lshl_b32 s{S_T0}, s{cw}, 6', f's_add_u32 s{S_T0}, s{S_T0}, {A2}',
             f'v_add_u32 v{t4}, s{S_T0}, v{t4}',
             f'v_mul_u32_u24 v{t5}, 1352, v{t3}', f'v_add_u32 v{vBs0}, v{t4}, v{t5}',
             f'v_add_u32 v{t5}, 16, v{t3}', f'v_min_u32 v{t5}, 25, v{t5}',
             f'v_mul_u32_u24 v{t5}, 1352, v{t5}', f'v_add_u32 v{vBs1a}, v{t4}, v{t5}',
             f'v_add_u32 v{t5}, 20, v{t3}', f'v_min_u32 v{t5}, 25, v{t5}',
             f'v_mul_u32_u24 v{t5}, 1352, v{t5}', f'v_add_u32 v{vBs1b}, v{t4}, v{t5}',
             f's_lshl_b32 s{S_T0}, s{cw}, 5', f'v_add_u32 v{vE}, s{S_T0}, v{i32}',
             f'v_mul_u32_u24 v{t3}, 52, v{vE}', f'v_lshl_add_u32 v{t3}, v{half}, 3, v{t3}',
             f'v_add_u32 v{vUw}, {A3}, v{t3}',
             f'v_lshlrev_b32 v{t3}, 1, v{vE}', f'v_add_u32 v{vV2w}, {V2OFF}, v{t3}',
             f'v_mov_b32 v{BT}, 0', f'v_mov_b32 v{BT + 1}, 0',
             f'v_lshlrev_b32 v{t3}, 3, v0', f'v_add_u32 v{t4}, {V3OFF}, v{t3}',
             f's_lshl_b32 s{S_T0}, s{cw}, 9', f'v_add_u32 v{t4}, s{S_T0}, v{t4}', f'ds_write_b64 v{t4}, {vr(BT, 2)}']
        L += [f'v_lshl_add_u32 v{t3}, v{half}, 7, v{vE}', f's_mov_b32 s{S_T1}, 2521', f's_mov_b32 s{S_T2}, {V3OFF}']
        for p_ in range(3):
            L += [f'v_mul_u32_u24 v{t4}, s{S_T1}, v{t3}', f'v_lshrrev_b32 v{t4}, 16, v{t4}',
                  f'v_mad_u32_u24 v{t4}, v{t4}, 12, s{S_T2}', f'v_lshl_add_u32 v{AD + p_}, v{t3}, 1, v{t4}']
            if p_ < 2:
                L += [f'v_add_u32 v{t3}, 256, v{t3}']
        L += [f'v_mov_b32 v{t4}, 676', f'v_cmp_gt_u32 s[{S_MASK}:{S_MASK + 1}], v{t4}, v{t3}']
        for m in range(6):
            L += [f'v_add_u32 v{t3}, {128 * m}, v{vE}', f'v_mul_u32_u24 v{t4}, s{S_T1}, v{t3}', f'v_lshrrev_b32 v{t4}, 16, v{t4}',
                  f'v_lshl_add_u32 v{t4}, v{t4}, 2, v{vUw}', f'v_add_u32 v{AD + 4 + m}, {m * 6656}, v{t4}']
        L += [f'v_lshlrev_b32 v{AD + 10}, 4, v{half}', f'v_add_u32 v{AD + 10}, {L_WCO + 104}, v{AD + 10}',
              f'v_lshlrev_b32 v{AD + 11}, 1, v0', f'v_add_u32 v{AD + 11}, {L_WCO}, v{AD + 11}',
              f'v_lshlrev_b32 v{AD + 12}, 6, v0', f'v_add_u32 v{AD + 12}, {V3OFF + 52}, v{AD + 12}']
        g1a = self.seq(L)

        N_ = (0, 1, 2, 3)
        classes = []
        for d in ZD:
            for (a, ha, b, hb) in d:
                if cls(a, ha)[1] == N_ and cls(b, hb)[1] != N_ and cls(b, hb)[1] not in classes:
                    classes.append(cls(b, hb)[1])
        assert len(classes) == 5
        base = {(N_, N_): GB}
        for k, c in enumerate(classes):
            base[(N_, c)] = GB + 1 + 2 * k
            base[(c, N_)] = GB + 2 + 2 * k
        SP1, SP2 = GB + 11, GB + 12
        pk4 = lambda t: '0x%08x' % sum((x & 0xff) << (8 * k) for k, x in enumerate(t))
        L = ['L_addrc:',
             f's_and_b32 s{S_T2}, s{S_WAVE}, 1', f's_lshl_b32 s{S_T2}, s{S_T2}, 1', f'v_add_u32 v{vg}, s{S_T2}, v{half}',
             f'v_min_u32 v{t3}, 25, v{i32}',
             f's_mul_i32 s{S_T0}, s{S_GRP}, {UST - 1352}', f's_add_u32 s{S_T0}, s{S_T0}, 1352',
             f's_mul_i32 s{S_T1}, s{S_GRP}, {A3 - A1}', f's_add_u32 s{S_T1}, s{S_T1}, {A1}',
             f'v_mul_u32_u24 v{t4}, s{S_T0}, v{t3}', f'v_add_u32 v{t4}, s{S_T1}, v{t4}',
             f'v_lshlrev_b32 v{vDl}, 2, v{t3}', f'v_add_u32 v{vDl}, {A3 - A1}, v{vDl}'] + ([
             f's_lshl_b32 s{S_T0}, s{S_GRP}, 2', f's_xor_b32 s{S_T0}, s{S_T0}, 4', f'v_lshrrev_b32 v{t5}, 2, v{t3}', f'v_and_b32 v{t5}, s{S_T0}, v{t5}',
             f'v_add_u32 v{t4}, v{t4}, v{t5}', f'v_sub_u32 v{vDl}, v{vDl}, v{t5}'] if o.w1s else []) + [
             f'v_mul_u32_u24 v{vL}, 52, v{t3}', f'v_lshl_add_u32 v{vL}, v{vg}, 1, v{vL}', f'v_add_u32 v{vL}, {V2OFF}, v{vL}',
             f'v_lshlrev_b32 v{vWo}, 1, v{t3}', f'v_add_u32 v{vWo}, {L_WCO}, v{vWo}',
             f'v_mad_u32_u24 v{SP1}, v{vg}, 52, v{t4}',
             f'v_lshl_add_u32 v{SP2}, v{vg}, 1, v{t4}',
             f'v_lshl_add_u32 v{GB}, v{vg}, 1, v{SP1}',
             f'v_lshlrev_b32 v{t3}, 3, v{vg}']
        for k, c in enumerate(classes):
            L += [f's_mov_b32 s{S_T0}, {pk4(c)}', f'v_bfe_i32 v{t5}, s{S_T0}, v{t3}, 8',
                  f'v_lshl_add_u32 v{GB + 1 + 2 * k}, v{t5}, 1, v{SP1}', f'v_mad_i32_i24 v{GB + 2 + 2 * k}, v{t5}, 52, v{SP2}']
        L += [f's_mov_b32 s{S_T0}, {pk4((0, 54, 2, 0))}', f'v_bfe_u32 v{t5}, s{S_T0}, v{t3}, 8', f'v_add_u32 v{SP1}, v{t5}, v{t4}',
              f'v_add_u32 v{SP2}, 52, v{t4}', f'v_mov_b32 v{vm}, {OOB}',
              f'v_cmp_eq_u32 vcc, 3, v{vg}', f'v_cndmask_b32 v{SP1}, v{SP1}, v{vm}, vcc', f'v_cndmask_b32 v{vWo}, v{vm}, v{vWo}, vcc',
              f'v_cmp_eq_u32 vcc, 2, v{vg}', f'v_cndmask_b32 v{SP2}, v{vm}, v{SP2}, vcc',
              f'v_cmp_gt_u32 vcc, 2, v{vg}', f'v_cndmask_b32 v{vL6}, v{vm}, v{vL}, vcc']
        L += [f's_lshr_b32 s{S_T1}, s{cw}, 1', f's_mul_i32 s{S_T1}, s{S_T1}, {6 * 1024}', f's_mul_i32 s{S_T0}, s{S_GRP}, {6 * 1024}',
              f'v_lshlrev_b32 v{t5}, 8, v{vg}',
              f'v_lshl_add_u32 v{t3}, v{i32}, 4, v{t5}', f'v_add_u32 v{vWr}, {TA}, v{t3}', f'v_add_u32 v{vWu}, {TB}, v{t3}',
              f'v_bfe_u32 v{t3}, v0, 2, 2', f'v_lshl_add_u32 v{t5}, v{t3}, 4, v{t5}', f'v_and_b32 v{t3}, 3, v0',
              f'v_lshl_add_u32 v{t4}, v{t3}, 6, v{t5}', f'v_add_u32 v{t4}, {TC}, v{t4}',
              f'v_cmp_lt_u32 vcc, 15, v{i32}', f'v_cndmask_b32 v{vWr}, v{vWr}, v{t4}, vcc', f'v_add_u32 v{t4}, 16, v{t4}',
              f'v_cndmask_b32 v{vWu}, v{vWu}, v{t4}, vcc',
              f'v_lshl_add_u32 v{t4}, v{t3}, 5, v{t5}', f'v_add_u32 v{t4}, {TD - 16}, v{t4}',
              f'v_cmp_lt_u32 vcc, 19, v{i32}', f'v_cndmask_b32 v{vWr}, v{vWr}, v{t4}, vcc',
              f'v_add_u32 v{vWr}, s{S_T1}, v{vWr}', f'v_add_u32 v{vWu}, s{S_T0}, v{vWu}',
              f'v_cmp_lt_u32 vcc, 25, v{i32}', f'v_cndmask_b32 v{vWr}, v{vWr}, v{vm}, vcc', f'v_cndmask_b32 v{vWu}, v{vWu}, v{vm}, vcc',
              f'v_mov_b32 v{vMx}, 0']
        L += [f's_mul_i32 s{S_BCUR}, s{S_WAVE}, {XBSZ}', f's_add_u32 s{S_BCUR}, s{S_BCUR}, {XB0}', f's_mov_b32 s{S_BD}, {XB1 - XB0}',
              f'v_add_u32 v{aD}, {TA}, v{vStg}',
              f'v_and_b32 v{t3}, 11, v0', f'v_cmp_eq_u32 vcc, 11, v{t3}', f'v_cndmask_b32 v{aC}, v{aD}, v{vm}, vcc',
              f'v_and_b32 v{t3}, 3, v0', f'v_cmp_eq_u32 vcc, 0, v{t3}', f'v_cndmask_b32 v{aLc}, v{aC}, v{vm}, vcc',
              f'v_lshrrev_b32 v{vg}, 4, v0', f'v_bfe_u32 v{t3}, v0, 1, 3', f'v_lshlrev_b32 v{t5}, 4, v{t3}', f'v_add_u32 v{t5}, {TD}, v{t5}',
              f'v_and_b32 v{t3}, 10, v0', f'v_cmp_eq_u32 vcc, 10, v{t3}', f'v_cndmask_b32 v{t5}, v{t5}, v{vm}, vcc',
              f'v_and_b32 v{t4}, 1, v0', f'v_lshl_add_u32 v{aS}, v{vg}, 9, v{t5}', f'v_lshl_add_u32 v{aS}, v{t4}, 2, v{aS}', f'v_add_u32 v{aS}, 1024, v{aS}',
              f'v_lshl_add_u32 v{FT}, v{vg}, 8, v{t5}', f'v_lshl_add_u32 v{FT}, v{t4}, 20, v{FT}',
              f'v_and_b32 v{vm}, 15, v0', f's_mov_b32 s{S_T0}, {XPI}',
              f'v_lshlrev_b32 v{t3}, 1, v{vm}', f'v_add_u32 v{t3}, s{S_BCUR}, v{t3}',
              f'v_mad_u32_u24 v{vRaw}, v{vg}, s{S_T0}, v{t3}',
              f's_lshl_b32 s{S_T0}, s{S_WAVE}, 10', f's_add_u32 s{S_T0}, s{S_T0}, {XCH}',
              f'v_add_u32 v{vXw}, s{S_T0}, v{vStg}',
              f'v_add_u32 v{t3}, 256, v{vStg}', f'v_and_b32 v{t3}, 1023, v{t3}', f'v_add_u32 v{vX1}, s{S_T0}, v{t3}',
              f'v_xor_b32 v{t3}, 512, v{vStg}', f'v_add_u32 v{vX2}, s{S_T0}, v{t3}', f'v_lshlrev_b32 v{vSh}, 4, v{half}']
        L += [f'v_mov_b32 v{r}, 0' for r in list(range(RAW, RAW + 8)) + list(range(BT, BT + 24))]
        L += [f'v_mul_u32_u24 v{t4}, {XPI}, v{vg}',
              f'v_bfe_u32 v{t5}, v0, 2, 2', f'v_lshl_add_u32 v{t4}, v{t5}, 7, v{t4}',
              f'v_and_b32 v{t5}, 3, v0', f'v_lshl_add_u32 v{vLinB}, v{t5}, 3, v{t4}', f'v_add_u32 v{vLin}, s{S_BCUR}, v{vLinB}',
              f'v_and_b32 v{t5}, 1, v0', f's_mov_b32 s{S_T0}, 0xaaaaaaaa', f'v_mul_lo_u32 v{vSI}, s{S_T0}, v{t5}', f'v_or_b32 v{vSI}, 0x44444444, v{vSI}',
              f'v_lshlrev_b32 v{vOr}, 1, v0', f'v_add_u32 v{vOr}, s{S_BCUR}, v{vOr}', f'v_mov_b32 v{vAcc}, 0x3f80',
              f'ds_write_b16 v{vOr}, v{vAcc} offset:{3 * XPI + 7 * 128}', f'v_add_u32 v{vOr}, s{S_BD}, v{vOr}']
        L += [f's_mul_i32 s{S_T3}, s{S_WAVE}, 6', f's_add_u32 s{S_PX}, s{S_PX}, s{S_T3}', f's_mul_i32 s{S_PX}, s{S_PX}, 104',
              f's_add_u32 s{S_PXE}, s{S_PX}, 80', f's_add_u32 s{S_PX}, s{S_PX}, {4 * o.pfx0}',
              f's_mov_b32 s{S_T3}, 10923', f'v_min_u32 v{t3}, 35, v0',
              f'v_mul_u32_u24 v{t4}, s{S_T3}, v{t3}', f'v_lshrrev_b32 v{t4}, 16, v{t4}',
              f'v_mul_u32_u24 v{t4}, {104 - 24}, v{t4}', f'v_lshl_add_u32 v{vPXL}, v{t3}, 2, v{t4}']
        L += self.stamp(14) + (pfw() if o.pf1 == 1 else [])
        L += [f's_cmp_eq_u32 s{S_GRP}, 0', 's_cbranch_scc1 L_g0pf']
        cc = self.seq(L)

        def bread(m, base):
            b = BALL + m * 8
            return [f'ds_read_b64_tr_b16 {vr(b, 2)}, v{vBs0} offset:{base + m * 256}',
                    f'ds_read_b64_tr_b16 {vr(b + 2, 2)}, v{vBs0} offset:{base + m * 256 + 4 * 1352}',
                    f'ds_read_b64_tr_b16 {vr(b + 4, 2)}, v{vBs1a} offset:{base + m * 256}',
                    f'ds_read_b64_tr_b16 {vr(b + 6, 2)}, v{vBs1b} offset:{base + m * 256}']

        def mm6(base, post=lambda m: []):
            c = []
            for m in range(3 if base is not None else 0):
                c += bread(m, base)
            for m in range(6):
                if m + 3 < 6 and base is not None:
                    c += bread(m + 3, base)
                b = BALL + m * 8
                d = DALL + (m % 4) * 16
                c.append(f'v_mfma_f32_32x32x16_bf16 {vr(d, 16)}, {vr(AFR, 4)}, {vr(b, 4)}, 0')
                c.append(f'v_mfma_f32_32x32x16_bf16 {vr(d, 16)}, {vr(AFR + 4, 4)}, {vr(b + 4, 4)}, {vr(d, 16)}')
                if m >= 2:
                    c += post(m - 2)
            return c + post(4) + post(5)

        e1 = [f's_sub_u32 s{S_T0}, s{S_PX}, {24 * 104}', f'buffer_load_dword v{XJ + 4}, v{vPXL}, {srd(SRD_IDX)}, s{S_T0} offen',
              f'buffer_load_dword v{XJ + 5}, v{vPXL}, {srd(SRD_IDX)}, s{S_PX} offen']
        e2 = [f'v_lshlrev_b32 v{XJ + 4}, 7, v{XJ + 4}', f'buffer_load_dword v255, v{XJ + 4}, {srd(SRD_TAB)}, 0 offen',
              f'v_lshlrev_b32 v{XJ + 5}, 7, v{XJ + 5}', f'buffer_load_dword v255, v{XJ + 5}, {srd(SRD_TAB)}, 0 offen']
        if o.nopf & 8:
            e1, e2 = [], []
        xx = xdma() + xdma(XJ, -4 * XBSZ) + xidx()
        L = sig(F_W3) + [f's_sub_u32 s{S_SAMP}, s{S_SAMP}, {4 * 104}'] + xidx(XJ, 0, False) + [f's_add_u32 s{S_SAMP}, s{S_SAMP}, {4 * 104}'] + xidx()
        L += e1 + [f's_add_u32 s{S_PX}, s{S_PX}, 24'] + pfx_a()
        L += wait(F_W3, 8) + self.stamp(2)
        uc0 = self.seq(L)
        L = []
        for s2 in range(2):
            for rd in range(2):
                L.append(f'ds_read_b64 {vr(AFR + 4 * s2 + 2 * rd, 2)}, v{AD + 10} offset:{s2 * 32 + rd * 8}')
        L += [f'ds_read_u16 v{t5}, v{AD + 11} offset:52']

        def vpost(m):
            p_ = m // 2
            c = [f'v_cvt_pk_bf16_f32 v{V3T + p_}, v{DALL + 16 * (m % 4)}, 0']
            if m % 2:
                c = ['s_mov_b32 exec_lo, 0'] + c + [f's_mov_b64 exec, s[{S_MASK}:{S_MASK + 1}]' if p_ == 2 else 's_mov_b32 exec_lo, -1',
                                                    f'ds_write_b16 v{AD + p_}, v{V3T + p_}']
            return c
        L += mm6(A3 - A2, vpost)
        L += ['s_mov_b64 exec, 0x3ffffff', f'ds_write_b16 v{AD + 12}, v{t5}', 's_mov_b64 exec, -1']
        L += self.stamp(3) + sig(F_V3) + (pfw() if o.pf1 in (2, 3) and o.epos != 3 else []) + [f'v_cmp_gt_u32 s[{S_MASK}:{S_MASK + 1}], 36, v{vE}']
        L += (e2 if o.epos == 0 else []) + (xx if o.xpos == 0 else []) + (e2 if o.epos == 1 else [])
        L += wait(F_W2, 4) + [bread(m, 0) for m in range(6)] + wait(F_V3, 4) + self.stamp(5) + [f's_setprio {o.uprio}'] + (e2 + (pfw() if o.pf1 in (2, 3) else []) if o.epos == 3 else [])
        for s2 in range(2):
            for rd in range(2):
                L.append(f'ds_read_b64_tr_b16 {vr(AFR + 4 * s2 + 2 * rd, 2)}, v{vA3} offset:{s2 * 1024 + rd * 256}')

        def upost(m):
            d = DALL + 16 * (m % 4)
            c = [f'v_cvt_pk_bf16_f32 v{UP + 8 * m + qq}, v{d + 2 * qq}, v{d + 2 * qq + 1}' for qq in range(8)]
            if m == 5:
                c.append(f's_mov_b64 exec, s[{S_MASK}:{S_MASK + 1}]')
            w_ = [f'ds_write2_b32 v{AD + 4 + m}, v{UP + 8 * m + 2 * a}, v{UP + 8 * m + 2 * a + 1} offset0:{4 * a} offset1:{4 * a + 1}' for a in range(3)]
            return c + interleave(w_, [f'v_max3_f32 v{vMx}, v{vMx}, abs(v{d + 2 * qq}), abs(v{d + 2 * qq + 1})' for qq in range(7)])
        L += mm6(None, upost)
        L.append('s_mov_b32 exec_hi, 0')
        for m in (5, 4, 3, 2, 1, 0):
            L.append(f'ds_write_b32 v{AD + 4 + m}, v{UP + 8 * m + 6} offset:48')
            L.append(f'ds_write_b16 v{vV2w}, v{UP + 8 * m + 7} offset:{m * 256}')
            if m == 5:
                L.append('s_mov_b32 exec_lo, -1')
        L += ['s_mov_b64 exec, -1'] + postmax(vMx, F_U) + [f's_setprio {o.bprio}'] + (xx if o.xpos == 1 else []) + (e2 if o.epos == 2 else []) + self.stamp(6) + ['s_branch L_uph']
        uc = self.seq(L)

        L = ['L_g0pf:'] + stg[o.ccpos:] + [f's_add_u32 s{S_SAMP}, s{S_SAMP}, {8 * 104}', f's_add_u32 s{S_PX}, s{S_PX}, 24'] + xidx() + pfx_a()
        L += (pfw() if o.pf1 in (2, 3) else []) + sig(sB[3], vm_tags=['STG' + sB[0]]) + self.stamp(4) + [f's_mov_b32 s{S_PH}, 0'] + wait(F_W1, 4) + self.stamp(2)
        L += [f's_cmp_ge_u32 s{cw}, 2', 's_cbranch_scc1 L_chunk2']
        g0pf = self.seq(L)

        def chunk(k):
            units = [(n, h) for n in range(12 * k, min(12 * k + 12, 44)) for h in range(2)]
            NB_, BA = 12, o.ba
            reads, maths = [], []
            for ui, (n, h) in enumerate(units):
                a, ha, b, hb = ZD[n][h]
                (fa, ca), (fb, cb) = cls(a, ha), cls(b, hb)
                tb = BT + (ui % NB_) * 2
                dst = SUM + 24 * (k % 2) + ui
                if ca != N_:
                    R = [f'ds_read_u16_d16_hi v{tb}, v{SP1} offset:{54 * 24}', f'ds_read_u16_d16_hi v{tb + 1}, v{SP2} offset:{54 * 24}']
                    M = [f'v_add_f32 v{dst}, v{tb}, v{tb + 1}']
                elif (a, ha) == (b, hb):
                    R = [f'ds_read_u16_d16_hi v{tb}, v{base[(ca, cb)]} offset:{54 * fa}']
                    M = [f'v_mov_b32 v{dst}, v{tb}']
                else:
                    R = [f'ds_read_u16_d16_hi v{tb}, v{base[(ca, cb)]} offset:{52 * fa + 2 * fb}',
                         f'ds_read_u16_d16_hi v{tb + 1}, v{base[(cb, ca)]} offset:{52 * fb + 2 * fa}']
                    M = [f'v_add_f32 v{dst}, v{tb}, v{tb + 1}']
                if ui % 2:
                    M = M + maths[-1] + [f'v_max3_f32 v{vMx}, v{vMx}, abs(v{dst - 1}), abs(v{dst})']
                    maths[-1] = []
                reads.append(R)
                maths.append(M)
            code = []
            nu = len(units)
            for ui in range(nu + BA):
                if ui < nu:
                    code += reads[ui]
                if ui == nu and k == 3:
                    code += [f'ds_read_u16_d16_hi v{LT + e}, v{vL} offset:{8 * e}' for e in range(6)]
                    code += [f'ds_read_u16_d16_hi v{LT + 6}, v{vL6} offset:48', f'ds_read_u16_d16_hi v{LT + 7}, v{vWo}']
                if ui >= BA:
                    code += maths[ui - BA]
            return code
        LT = BT + 8
        assert o.ba <= 8

        def conv(n):
            c = [f'v_fma_mix{"hi" if h else "lo"}_f16 v{OUT + q}, v{SUM + 2 * q + h}, s{S_SC}, 0' for h in range(2) for q in range(4 * n, 4 * n + 4)]
            if o.wr8:
                m_ = (1 << o.wr8) - 1
                c += [f'v_add_u32 v{OUT + q}, {(1 << (o.wr8 - 1)) * 0x10001}, v{OUT + q}' for q in range(4 * n, 4 * n + 4)]
                c += [f'v_and_b32 v{OUT + q}, {0xffffffff ^ (m_ * 0x10001)}, v{OUT + q}' for q in range(4 * n, 4 * n + 4)]
            return c
        wr = lambda n, A: [f'ds_write_b128 v{A}, {vr(OUT + 4 * n, 4)} offset:{n * 1024}']
        ch, chb = [], []
        for k in range(4):
            ch.append(self.seq([f'L_chunk{k}:'] + chunk(k) + [f's_cmp_lg_u32 s{S_PH}, 0', f's_cbranch_scc1 L_uconv{k % 2}']))
            chb.append(self.seq(['s_branch L_w1conv'] if k == 1 else []))
        L = ['L_w1conv:'] + self.stamp(3) + postmax(vMx, F_M)
        L += [f'v_add_u32 v{GB + k}, v{GB + k}, v{vDl}' for k in range(13)]
        L += waitmax(F_M, S_T2, 141) + setsc(S_T2) + self.stamp(5)
        L += conv(0) + conv(1) + wr(0, vWr) + conv(2) + wr(1, vWr) + conv(3) + wr(2, vWr) + conv(4) + wr(3, vWr) + wr(4, vWr)
        L += [f's_cmp_ge_u32 s{cw}, 2', 's_cbranch_scc1 L_w1x']
        w1a = self.seq(L)
        w1b = self.seq(conv(5) + wr(5, vWr))
        w1c = self.seq(['L_w1x:'])
        xbsig = lambda: [WaitTag(vm_tags=['XB']), f'v_mov_b32 v{vF}, s{S_GRP}', f'ds_add_u32 v{vFA}, v{vF} offset:{F_XB}']
        L = ['L_uph:'] + self.stamp(7) + (self.tlb2(vZ, vFl) if o.lb else []) + waitmax(F_U, S_T3, 140) + setsc(S_T3) + self.stamp(12)
        L += [f's_mov_b32 s{S_PH}, 1', f's_lshr_b32 s{S_T1}, s{S_WAVE}, 1',
              f's_cmp_eq_u32 s{S_T1}, 0', 's_cbranch_scc1 L_chunk0', f's_cmp_eq_u32 s{S_T1}, 1', 's_cbranch_scc1 L_chunk1',
              f's_cmp_eq_u32 s{S_T1}, 2', 's_cbranch_scc1 L_chunk2', 's_branch L_chunk3']
        uph = self.seq(L)
        wm1 = lambda: (xbsig() if o.lb else []) + waitmax(F_M, S_T2, 141)
        u0 = self.seq(['L_uconv0:'] + self.stamp(13) + conv(0) + wm1() + wr(0, vWu) + conv(1) + wr(1, vWu) + conv(2) + wr(2, vWu) + ['s_branch L_built'])
        u1a = self.seq(['L_uconv1:'] + self.stamp(13) + conv(3) + wm1() + wr(3, vWu) + conv(4) + wr(4, vWu) + [f's_cmp_lg_u32 s{S_GRP}, 0', 's_cbranch_scc1 L_ulin'])
        u1b = self.seq(conv(5) + wr(5, vWu) + ['s_branch L_built'])
        L = ['L_ulin:'] + [f'v_mul_f32 v{LT + e}, s{S_SC}, v{LT + e}' for e in range(8)]
        L += [f'v_cvt_pk_bf16_f32 v{OUT + 20 + q}, v{LT + 2 * q}, v{LT + 2 * q + 1}' for q in range(4)] + wr(5, vWu)
        u1c = self.seq(L)

        w0x = self.build_srd(SRD_W2, S_W2, 3328) + [f'v_lshlrev_b32 v{FT}, 7, v0', f'buffer_load_dword v255, v{FT}, {srd(SRD_W2)}, 0 offen']

        slot = lambda k: RZ + 4 * (k % 4)
        MF = [('Lb', 0), ('a', 1), ('b', 1), ('d', 1), ('Lc', 0), ('a', 2), ('c', 1), ('b', 2), ('c', 2)]
        for k in range(3, 10):
            MF += ([('S', k)] if k % 2 else []) + [('a', k), ('b', k), ('c', k)]
        MF += [('a', 10), ('b', 10), ('a', 11), ('b', 11), ('c', 10), ('S', 11), ('c', 11)]
        if o.mo == 1:
            MF = [('Lb', 0), ('a', 1), ('d', 1), ('Lc', 0), ('b', 1), ('a', 2), ('c', 1), ('b', 2), ('a', 3), ('c', 2), ('S', 3), ('b', 3), ('c', 3)]
            for k in range(4, 10):
                MF += ([('S', k)] if k % 2 else []) + [('a', k), ('b', k), ('c', k)]
            MF += [('a', 10), ('b', 10), ('c', 10), ('a', 11), ('b', 11), ('S', 11), ('c', 11)]
        if o.mo == 2:
            MF = [('d', 1), ('Lb', 0), ('a', 1), ('Lc', 0), ('b', 1), ('a', 2), ('c', 1), ('b', 2), ('a', 3), ('c', 2), ('S', 3), ('b', 3), ('c', 3)]
            for k in range(4, 12):
                MF += ([('S', k)] if k % 2 else []) + [('a', k), ('b', k), ('c', k)]
        if o.mo == 3:
            MF = [('d', 1), ('Lb', 0), ('b', 1), ('a', 1), ('Lc', 0), ('c', 1)]
            for k in range(2, 12, 2):
                MF += [('c', k), ('c', k + 1), ('S', k + 1), ('a', k), ('a', k + 1), ('b', k), ('b', k + 1)] if k % 4 == 2 and k < 10 else \
                      [('b', k), ('b', k + 1), ('S', k + 1), ('a', k), ('a', k + 1), ('c', k), ('c', k + 1)]
        if o.mo == 4:
            MF = [('Lb', 0), ('b', 1), ('a', 1), ('d', 1), ('Lc', 0), ('c', 1)]
            for k, od in zip(range(2, 12, 2), ('cSab', 'bSca', 'aSbc', 'cSba', 'abSc')):
                for t_ in od:
                    MF += [('S', k + 1)] if t_ == 'S' else [(t_, k), (t_, k + 1)]
        NM = len(MF)
        use = {k: [m for m, (t_, kk) in enumerate(MF) if kk == k or (t_ == 'S' and kk == k + 1)] for k in range(12)}
        pos = lambda t_, k: MF.index((t_, k))

        def mfma(m):
            t_, k = MF[m]
            if t_[0] == 'L':
                d, w = {'b': (Db, WL), 'c': (Dc, WL + 4)}[t_[1]]
                return f'v_mfma_f32_16x16x32_bf16 {vr(d, 4)}, {vr(w, 4)}, {vr(slot(0), 4)}, 0'
            if t_ == 'S':
                return f'v_smfmac_f32_16x16x64_f16 {vr(Ds, 4)}, {vr(WS_ + 2 * (k - 1), 4)}, {vr(slot(k - 1), 8)}, v{vSI}'
            d, w = {'a': (Da, WA), 'b': (Db, WB), 'c': (Dc, WC), 'd': (Ds, WS_)}[t_]
            return f'v_mfma_f32_16x16x32_f16 {vr(d, 4)}, {vr(w + 4 * (k - 1), 4)}, {vr(slot(k), 4)}, {"0" if t_ in "ad" and k == 1 else vr(d, 4)}'

        def wload(m):
            t_, k = MF[m]
            if t_[0] == 'L':
                a, w, off = {'b': (aD, WL, TB), 'c': (aLc, WL + 4, TC)}[t_[1]]
                return [f'ds_read_b128 {vr(w, 4)}, v{a} offset:{off - TA + 11 * 1024}']
            if t_ == 'd':
                return [f'ds_read_b128 {vr(WS_, 4)}, v{FT}']
            if t_ == 'S':
                w = WS_ + 2 * (k - 1)
                return [f'ds_read2_b32 {vr(w, 2)}, v{aS} offset0:0 offset1:2', f'ds_read2_b32 {vr(w + 2, 2)}, v{aS} offset0:64 offset1:66',
                        f'v_add_u32 v{aS}, 2048, v{aS}']
            w, a, off = {'a': (WA, aD, 0), 'b': (WB, aD, TB - TA), 'c': (WC, aC, TC - TA)}[t_]
            return [f'ds_read_b128 {vr(w + 4 * (k - 1), 4)}, v{a} offset:{off + (k - 1) * 1024}']

        def zops(n):
            z = slot(n // 4 + 1) + n % 4
            (a, ha, b, hb), (a2, ha2, b2, hb2) = ZD[n]
            if (a, b) == (a2, b2):
                return [f'v_pk_mul_f16 v{z}, v{X + a}, v{X + b} op_sel:[{ha},{hb}] op_sel_hi:[{ha2},{hb2}]']
            return [f'v_mul_f16_sdwa v{z}, v{X + a}, v{X + b} dst_sel:WORD_0 dst_unused:UNUSED_PAD src0_sel:WORD_{ha} src1_sel:WORD_{hb}',
                    f'v_mul_f16_sdwa v{z}, v{X + a2}, v{X + b2} dst_sel:WORD_1 dst_unused:UNUSED_PRESERVE src0_sel:WORD_{ha2} src1_sel:WORD_{hb2}']

        cvt = lambda d, a, b: f'v_cvt_pk_f16_f32 v{d}, v{a}, v{b}'
        LAT = o.lat

        class It:
            def __init__(s, name, G, code, lo, hi, pre):
                s.name, s.G, s.code, s.lo, s.hi, s.pre, s.at = name, G, code, lo, hi, list(pre), None

        NG = 14
        items = {}

        def add(name, G, code, lo=-10**9, hi=10**9, pre=()):
            items[(name, G)] = It(name, G, code, lo, hi, pre)
        usej = lambda j: [n for n, d in enumerate(ZD) if any(a // 4 == j or b // 4 == j for (a, _, b, _) in d)]
        lastz = {j: max(usej(j)) for j in range(3)}
        for G in range(NG):
            c, b0 = G % 4, G * NM
            for r in range(8):
                add(f'raw{r}', G, f'ds_read_u16_d16_hi v{RAW + r}, v{vRaw} offset:{r * 128 + c * 32}', lo=b0 - o.rspan, hi=b0 - o.rlead,
                    pre=[(f'co{q}', G - 1, 0) for q in range(4)] + ([('swr', G, 0)] if c == 0 else []) + ([('lin1', G - 1, 0)] if o.w2 else []))
            for q in range(4):
                add(f'co{q}', G, cvt(X + q - 1, RAW + q - 1, RAW + q + 2) if q else cvt(X + 3, RAW + 6, RAW + 7), hi=b0 - 4 if not o.w2 else b0 - 9,
                    pre=[(f'raw{r}', G, LAT) for r in range(8)] + [(f'z{lastz[0]}', G - 1, 0)])
            add('wo', G, f'ds_write_b128 v{vXw}, {vr(X, 4)}', hi=b0 - 2 if not o.w2 else b0 - 8, pre=[(f'co{q}', G, 0) for q in range(4)] + [('r2', G - 1, 0)])
            add('r1', G, f'ds_read_b128 {vr(X + 4, 4)}, v{vX1}', hi=b0 if not o.w2 else b0 - 7, pre=[('wo', G, o.wgap)])
            add('r2', G, f'ds_read_b128 {vr(X + 8, 4)}, v{vX2}', hi=b0 + 1 if not o.w2 else b0 - 7, pre=[('r1', G, 0)])
            for q in range(3):
                add(f'al{q}', G, f'v_alignbit_b32 v{X + 8 + q}, v{X + 8 + q}, v{X + 8 + q}, v{vSh}', lo=b0 + min(use[0]) if o.w2 else -10**9, hi=b0 + 20, pre=[('r2', G, LAT)])
            if c == 0:
                add('swr', G, [f'v_add_u32 v{vRaw}, s{S_BD}, v{vRaw}', WaitTag(vm_tags=['XB'])], lo=b0 - o.rspan - 1, hi=b0 - o.rspan - 1,
                    pre=[(f'raw{r}', G - 1, 0) for r in range(8)])
            for p in range(2):
                add(f'lin{p}', G, f'ds_read_b64_tr_b16 {vr(slot(0) + 2 * p, 2)}, v{vLin} offset:{p * 512 + c * 32}',
                    lo=b0 - NM + max(use[8]), hi=b0 + min(use[0]) - 1 - LAT, pre=([('swl', G, 0)] if c == 0 else []) + ([('r2', G, 0)] if o.w2 else []))
            if c == 0:
                add('swl', G, [f's_add_u32 s{S_TW}, s{S_BCUR}, s{S_BD}', f'v_add_u32 v{vLin}, s{S_TW}, v{vLinB}'], lo=b0 - NM + 20, hi=b0 - 12,
                    pre=[(f'lin{p}', G - 1, 0) for p in range(2)])
            for n in range(44):
                k = n // 4 + 1
                js = {x // 4 for (a, _, b, _) in ZD[n] for x in (a, b)}
                pre = [(f'co{q}', G, 0) for q in range(4)] + ([('r1', G, LAT)] if 1 in js else []) + ([(f'al{q}', G, 0) for q in range(3)] if 2 in js else [])
                if n:
                    pre.append((f'z{n - 1}', G, 0))
                if k == 5 and n % 4 < 3:
                    pre.append(('or1', G, 0))
                lo = b0 + max(use[k - 4]) if k >= 4 else b0 - NM + max(use[k + 8])
                if k == 1:
                    lo = max(lo, b0 - o.z1lo)
                zc = zops(n)
                if n == 12:
                    zc = [zops(12)[0], zops(13)[0]]
                if n == 13:
                    zc = [zops(12)[1], zops(13)[1]]
                add(f'z{n}', G, zc, lo=lo, hi=b0 + min(use[k]) - 2, pre=pre)
            s1 = slot(1)
            if c == 1:
                add('or1', G, f'v_or3_b32 v{vOr}, v{s1}, v{s1 + 1}, v{s1 + 2}', hi=b0 + 6, pre=[('z2', G, 0), ('blk', G - 2, 0)])
                add('ck', G, [f'v_and_b32 v{vOr}, 0x60006000, v{vOr}', f'v_cmp_ne_u32 s[{S_CHK}:{S_CHK + 1}], 0, v{vOr}'], hi=b0 + 30, pre=[('or1', G, 0)])
            e = b0 + NM
            rdy = lambda t_: b0 + pos(t_, 11) + o.flo
            for r in range(4):
                add(f'f{r}', G, f'v_{"mul" if c == 0 and r == 0 else "fmac"}_f32 v{vAcc}, v{Da + r}, v{Db + r}', lo=min(max(rdy('a'), rdy('b')), e + pos('Lb', 0) - 1), hi=e + pos('Lb', 0) - 1,
                    pre=[(f'f{r - 1}', G, 0) if r else ('f8', G - 1, 0)] + ([('blk', G - 1, 0)] if c == 0 else []))
            for r in range(2):
                add(f'f{4 + r}', G, f'v_add_f32 v{FT + r}, v{Ds + 2 * r}, v{Ds + 2 * r + 1}', lo=min(rdy('S'), e + pos('d', 1) - 1), hi=e + pos('d', 1) - 1,
                    pre=[('f8', G - 1, 0)] + ([('blk', G - 1, 0)] if c == 0 else []))
            for r, (x, y) in enumerate(((Dc, Dc + 1), (FT, Dc + 2), (FT + 1, Dc + 3))):
                add(f'f{6 + r}', G, f'v_fmac_f32 v{vAcc}, v{x}, v{y}', lo=rdy('c'), hi=e + pos('Lc', 0) - 1, pre=[(f'f{5 + r}', G, 0), ('f3', G, 0), ('f4', G, 0)])
            if c == 3:
                for q, x in enumerate(dppred('v_add_f32', vAcc)):
                    add(f'dp{q}', G, x, hi=e + 7 + 2 * q, pre=[(f'dp{q - 1}', G, 2) if q else ('f8', G, 2)])
                add('blk', G, '@BLK', hi=e + 20, pre=[('dp5', G, 1)])
        order = list(items.values())
        gaps = {}
        isv = lambda x: isinstance(x, str) and x.startswith('v_')
        isl = lambda x: isinstance(x, str) and x.startswith('ds_')
        for gp in range(-NM, NG * NM):
            gaps[gp] = []
            uv = ul = 0
            if o.cw and (gp + 1 - min(use[0])) % NM == 0:
                ul = 1
            if any(it.name == 'wo' for d_ in range(1, o.wgap) for it in gaps.get(gp - d_, [])):
                ul = 2
            while True:
                cand = []
                for it in order:
                    if it.at is not None or it.lo > gp:
                        continue
                    ok = True
                    for (nm, G, dist) in it.pre:
                        p = items.get((nm, G))
                        if p is None:
                            continue
                        if p.at is None or p.at + dist > gp:
                            ok = False
                            break
                    if not ok:
                        continue
                    cv_, cl_ = sum(map(isv, flat([it.code]))), sum(map(isl, flat([it.code]))) * (o.wcost if it.name == 'wo' else 1) + (1 if o.cw and it.name == 'co0' else 0)
                    if it.hi > gp and (uv + cv_ > o.gapv or ul + cl_ > o.gapl or uv + ul + cv_ + cl_ > o.gapt) and cv_ + cl_:
                        continue
                    cand.append((it, cv_, cl_))
                if not cand:
                    break
                it, cv_, cl_ = min(cand, key=lambda x: x[0].hi)
                it.at = gp
                uv += cv_; ul += cl_
                gaps[gp].append(it)
        late = [(it.name, it.G, it.at - it.hi) for it in order if it.at is not None and it.at > it.hi and 4 <= it.G < 12]
        print('late items', late)
        sig_ = lambda G0: [[(it.name, it.G - G0) for it in gaps[G0 * NM + m]] for m in range(4 * NM)]
        assert sig_(4) == sig_(8), 'schedule not periodic'
        for f_ in (isv, isl):
            print('gap load', ''.join(str(sum(sum(map(f_, flat([it.code]))) for it in gaps[4 * NM + m])) + ('|' if m % NM == NM - 1 else '') for m in range(4 * NM)))
        keep = lambda c: [x for x in flat([c]) if not (isinstance(x, str) and any(x.startswith(d) for d in o.drop.split(',') if d))]
        prio = lambda p, lab: [f's_cmp_lg_u32 s{S_GRP}, 0', f's_cbranch_scc1 {lab}', f's_setprio {p}', f'{lab}:'] if o.phi else []

        def sstamp():
            if not (o.stamps and o.itst):
                return []
            return [f's_memtime s[{S_ST}:{S_ST + 1}]', f's_add_u32 s{S_C0}, s{S_LOOP}, 20', 's_waitcnt lgkmcnt(0)',
                    f's_mov_b32 m0, s{S_C0}', f'v_writelane_b32 v252, s{S_ST}, m0']

        pcode = []
        for gp in range(-NM, 4 * NM):
            for it in gaps[gp]:
                if it.G >= 4 and not it.name.startswith(('sw', 'wx')):
                    pcode += flat([it.code])
        PFD = o.pfd
        pfl = pfx_b() + ([] if o.nopf & 16 else pfx_a()) + pfw()
        L = ['L_built:'] + self.stamp(10) + ([] if o.lb else xbsig() + self.tlb2(vZ, vFl))
        L += [f's_add_i32 s{S_EXP}, s{S_T2}, s{S_T3}'] + wait(F_XB, 4) + pcode + (pfl if o.lb < 2 else [])
        L += ['s_waitcnt lgkmcnt(0)', 's_barrier'] + (['s_setprio 1'] if o.phi else ['s_setprio 0']) + self.stamp(8)
        L += [wload(m) for m in range(PFD)] + prio(o.pp0, 'L_prf') + (['s_mov_b32 s100, 15'] if o.gst else [])
        peel2 = None
        for m in range(NM):
            L += [mfma(m)] + (wload(m + PFD) if m + PFD < NM else [])
            for it in gaps[4 * NM + m]:
                if it.code == '@BLK':
                    L += [f'ds_write_b16 v{vOr}, v{vAcc} offset:{3 * XPI + 7 * 128}']
                    L += self.cleared('L_cclr', [f's_and_b32 s{S_TW}, s2, 7'], vFl) + xdma(XI, XB1 - XB0) + (pfl if o.lb == 2 else []) + (pfw() if o.pfp else [])
                    L += [f's_sub_i32 s{S_EXP}, 0, s{S_EXP}', f's_mov_b32 s{S_EXPC}, s{S_EXP}',
                          f's_mov_b32 s{S_PH}, 1', f's_mov_b32 s{S_PREV}, 1', f's_mov_b32 s{S_HALF}, 0']
                    L += [f's_cmp_lg_u32 s{S_WAVE}, 7', 's_cbranch_scc1 L_nw0']
                    peel1 = self.seq(L)
                    peelw = self.seq(w0x)
                    L = ['L_nw0:']
                elif it.G >= 4:
                    L += flat([it.code])
        L += (prio(o.pp1, 'L_prg') if o.pp1 != o.pp0 else []) + [f'ds_add_u32 v{vFA}, v{vOne} offset:{F_PEEL}', 's_branch L_grp1']
        peel2 = self.seq(L)
        prime = self.seq(['L_prime:'] + [f'v_mov_b32 v{r}, 0' for r in range(D, D + 16)] + [f'v_mov_b32 v{FT}, 0', f'v_mov_b32 v{FT + 1}, 0'] + pcode)
        blk_a = ['L_blk:', f's_cmp_eq_u32 s{S_PREV}, 0', 's_cbranch_scc1 L_blkend',
                 f'v_readlane_b32 s{S_TW}, v{vAcc}, 63', f'v_ldexp_f32 v{vAcc}, v{vAcc}, s{S_EXPC}', f'v_and_b32 v{vAcc}, -2, v{vAcc}',
                 f's_cmp_ge_u32 s{S_PREV}, 2', 's_cbranch_scc1 L_good',
                 f's_cmp_eq_u64 s[{S_CHK}:{S_CHK + 1}], 0', 's_cbranch_scc1 L_slow',
                 f's_bfe_u32 s{S_TW}, s{S_TW}, 0x80017', f's_cmp_eq_u32 s{S_TW}, 255', 's_cbranch_scc1 L_slow',
                 'L_good:', 's_mov_b32 exec_lo, 0', 's_mov_b32 exec_hi, 0x80000000',
                 f'buffer_store_dword v{vAcc}, v{vZ}, {srd(SRD_WS)}, s{S_RC} offen sc1', 's_mov_b64 exec, -1',
                 f's_add_u32 s{S_RC}, s{S_RC}, 32', f's_sub_u32 s{S_LOOP}, s{S_LOOP}, 1', f's_cmp_eq_u32 s{S_LOOP}, 0', 's_cbranch_scc1 L_cin_done']
        blk_a += [f's_cmp_eq_u32 s{S_LOOP}, 1', 's_cbranch_scc1 L_lastnext']
        blk_b = xdma() + [f's_add_u32 s{S_SAMP}, s{S_SAMP}, {8 * 104}', f's_cmp_lg_u32 s{S_LOOP}, s{S_TK}', 's_cbranch_scc1 L_nodma']
        blk_t = self.cleared('L_tclr', [f's_lshr_b32 s{S_TW}, s{S_ST0}, 14'], vFl) + [f'v_mov_b32 v{vTk}, 1', 's_mov_b64 exec, 1', f'buffer_atomic_add v{vTk}, v{vZ}, {srd(SRD_WS)}, s{S_ST0} offen sc0',
                 's_mov_b64 exec, -1', f's_mov_b32 s{S_TK}, 8', 's_branch L_nodma',
                 'L_lastnext:', f's_cmp_lt_i32 s{S_DYN}, 0', f's_cselect_b32 s{S_RC}, s{S_RC}, s{S_DYN}']
        hook_a = [f's_cmp_lg_u32 s{S_TK}, 8', 's_cbranch_scc1 L_hk']
        n4 = o.n4
        hook_t = ['s_waitcnt vmcnt(0)', f'v_readfirstlane_b32 s{S_TW}, v{vTk}', f's_mov_b32 s{S_TK}, 0', f's_add_u32 s{S_TW}, s{S_TW}, 1',
                  ] + ([f's_cmp_lt_u32 s{S_TW}, {n4}', 's_cbranch_scc1 L_hky', 's_setprio 0', 'L_hky:'] if o.y1 else []) + [
                  f's_cmp_ge_u32 s{S_TW}, {2 * (512 - PB) - n4}', 's_cbranch_scc1 L_hk',
                  f's_add_u32 s{S_LOOP}, s{S_LOOP}, 1', f's_mov_b32 s{S_DYN}, {5 * 2048}',
                  f's_cmp_lt_u32 s{S_TW}, {n4}', 's_cbranch_scc1 L_hkf',
                  f's_add_u32 s{S_TW}, s{S_TW}, {n4}', f's_and_b32 s{S_SAMP}, s{S_TW}, 1', f's_lshr_b32 s{S_TW}, s{S_TW}, 1', f's_mov_b32 s{S_HALF}, 1',
                  f's_lshl_b32 s{S_SAMP}, s{S_SAMP}, 6', f'v_xor_b32 v{vC16}, s{S_SAMP}, v{vC16}',
                  f's_lshl_b32 s{S_SAMP}, s{S_SAMP}, 5', f's_add_u32 s{S_DYN}, s{S_DYN}, s{S_SAMP}',
                  'L_hkf:', f's_add_u32 s{S_TW}, s{S_TW}, {PB}', f's_lshl_b32 s{S_SAMP}, s{S_TW}, 2', f's_add_u32 s{S_DYN}, s{S_DYN}, s{S_SAMP}',
                  f's_andn2_b32 s{S_SAMP}, s{S_ST0}, 0x3fff', f's_add_u32 s{S_DYN}, s{S_DYN}, s{S_SAMP}',
                  f's_lshr_b32 s{S_SAMP}, s{S_SAMP}, 5', f's_add_u32 s{S_SAMP}, s{S_SAMP}, s{S_TW}', f's_mul_i32 s{S_SAMP}, s{S_SAMP}, 104']
        if o.wgt:
            F_CNT, F_RNK = 40, 44
            blk_b = [f'ds_add_rtn_u32 v{vF}, v{vFA}, v{vOne} offset:{F_CNT}'] + xdma() + [f's_add_u32 s{S_SAMP}, s{S_SAMP}, {8 * 104}',
                     f'v_readfirstlane_b32 s{S_TW}, v{vF}', f's_cmp_lg_u32 s{S_TW}, {o.wgt - 1}', 's_cbranch_scc1 L_nodma']
            allc = [x.replace(f's_bitcmp1_b32 vcc_lo, s{S_TW}', 's_and_b32 vcc_lo, vcc_lo, 0xff') for x in self.cleared('L_tclr', [], vFl)]
            blk_t = allc + [f'v_mov_b32 v{vTk}, 1', f's_mov_b32 s{S_TW}, {6 * 2048}', 's_mov_b64 exec, 1', f'buffer_atomic_add v{vTk}, v{vZ}, {srd(SRD_WS)}, s{S_TW} offen sc0',
                            's_mov_b64 exec, -1', 's_waitcnt vmcnt(0)', f'v_add_u32 v{vTk}, 2, v{vTk}', f'v_max_u32 v{vTk}, 1, v{vTk}',
                            f'ds_write_b32 v{vFA}, v{vTk} offset:{F_RNK}', 's_branch L_nodma'] + blk_t[-3:]
            hook_a = [f's_cmp_lg_u32 s{S_LOOP}, s{S_TK}', 's_cbranch_scc1 L_hk']
            hook_t = wait(F_RNK, 1) + [f'v_readfirstlane_b32 s{S_TW}, v{vF}', f's_mov_b32 s{S_TK}, 0', f's_sub_u32 s{S_TW}, s{S_TW}, 1', f's_min_u32 s{S_TW}, s{S_TW}, 255',
                      f's_lshl_b32 s{S_TW}, s{S_TW}, 2', f's_add_u32 s{S_TW}, s{S_TW}, s{cw}',
                      f's_cmp_ge_u32 s{S_TW}, {8 * (56 - n4)}', 's_cbranch_scc1 L_hk',
                      f's_add_u32 s{S_LOOP}, s{S_LOOP}, 1', f's_mov_b32 s{S_DYN}, {5 * 2048 + 4 * PB}',
                      f's_cmp_lt_u32 s{S_TW}, {8 * n4}', 's_cbranch_scc1 L_hkf',
                      f's_add_u32 s{S_TW}, s{S_TW}, {8 * n4}', f's_and_b32 s{S_SAMP}, s{S_TW}, 1', f's_lshr_b32 s{S_TW}, s{S_TW}, 1', f's_mov_b32 s{S_HALF}, 1',
                      f's_lshl_b32 s{S_SAMP}, s{S_SAMP}, 6', f'v_xor_b32 v{vC16}, s{S_SAMP}, v{vC16}',
                      f's_lshl_b32 s{S_SAMP}, s{S_SAMP}, 5', f's_add_u32 s{S_DYN}, s{S_DYN}, s{S_SAMP}',
                      'L_hkf:', f's_and_b32 s{S_ST0}, s{S_TW}, 7', f's_lshr_b32 s{S_TW}, s{S_TW}, 3',
                      f's_lshl_b32 s{S_SAMP}, s{S_ST0}, 12', f's_add_u32 s{S_SAMP}, s{S_SAMP}, s{S_TW}', f's_lshl_b32 s{S_SAMP}, s{S_SAMP}, 2', f's_add_u32 s{S_DYN}, s{S_DYN}, s{S_SAMP}',
                      f's_lshl_b32 s{S_SAMP}, s{S_ST0}, 9', f's_add_u32 s{S_SAMP}, s{S_SAMP}, s{S_TW}', f's_add_u32 s{S_SAMP}, s{S_SAMP}, {PB}', f's_mul_i32 s{S_SAMP}, s{S_SAMP}, 104']
        hook_b = ['L_hk:'] + xidx(adv=False)
        blk_b2 = ['L_nodma:'] + [f's_add_u32 s{S_BCUR}, s{S_BCUR}, s{S_BD}', f's_sub_u32 s{S_BD}, 0, s{S_BD}', f's_mov_b32 s{S_EXPC}, s{S_EXP}', f's_mov_b32 s{S_PH}, 1',
                  f's_cmp_eq_u32 s{S_PREV}, 3', 's_cbranch_scc1 L_slow2']
        blk_c = ['L_blkend:', f's_mov_b32 s{S_PREV}, s{S_PH}']
        parts = [[], [], [], [], []]
        cur = self.seq(['L_cin_loop:'])
        for m in range(4 * NM):
            if m == NM:
                parts[3] = cur
                cur = self.seq(['L_grp1:'])
            if m == 2 * NM:
                cur += self.seq([f's_cmp_eq_u32 s{S_LOOP}, s{S_HALF}', 's_cbranch_scc1 L_htail'])
                p4h = list(cur)
            if m == o.hook:
                p4a = cur + self.seq(hook_a)
                p4t = self.seq(hook_t)
                cur = self.seq(hook_b)
            if o.y1 and m == o.hook + o.y1:
                cur += self.seq([f's_cmp_eq_u32 s{S_HALF}, 0', 's_cbranch_scc1 L_y1', 's_setprio 1', 'L_y1:'])
            if o.y1 and m == o.hook + o.y2:
                cur += self.seq([f's_cmp_eq_u32 s{S_GRP}, 0', 's_cbranch_scc1 L_y2', 's_setprio 1', 'L_y2:'])
            if o.gst and m % NM == 0:
                cur += self.seq([f's_memtime s[{S_ST}:{S_ST + 1}]', 's_add_u32 s100, s100, 1', 's_min_u32 s100, s100, 31', 's_waitcnt lgkmcnt(0)',
                                 's_mov_b32 m0, s100', f'v_writelane_b32 v253, s{S_ST}, m0'])
            if o.phi and m in (o.phh, o.phi):
                cur += self.seq(prio(0 if m == o.phi else 2, f'L_pr{m}'))
            cur += self.seq([mfma(m % NM)])
            for it in gaps[4 * NM + m]:
                if it.code == '@BLK':
                    if o.pfa:
                        parts[0] = cur + self.seq(sstamp() + ['s_waitcnt vmcnt(0)'])
                        pfp = []
                    else:
                        parts[0] = cur + self.seq(sstamp() + ['s_waitcnt vmcnt(0)', f's_cmp_le_u32 s{S_LOOP}, {o.pfend}', 's_cbranch_scc1 L_blk'])
                        pfp = self.seq(([] if o.nopf & 16 else pfx_b() + pfx_a()) + pfw())
                    parts[1] = self.seq(blk_a)
                    parts[2] = self.seq(blk_b)
                    pbt = self.seq(blk_t)
                    pb2 = self.seq(blk_b2)
                    cur = self.seq(blk_c)
                    if o.pfa:
                        cur += self.seq([f's_cmp_ge_u32 s{S_PW}, {1664 * 3328}', 's_cbranch_scc1 L_npf'])
                        self.seq(pfw())
                        cur += self.seq(['L_npf:'])
                else:
                    cur += self.seq(keep(it.code))
        cur += self.seq([f's_cmp_lg_u32 s{S_LOOP}, 1', 's_cbranch_scc1 L_cin_loop'])
        parts[4] = p4a + cur
        p4x = p4a + p4t + cur
        tail = self.seq([it.code for m in range(NM) for it in gaps[4 * NM + m] if it.G == 3 and it.code != '@BLK'] + ['s_branch L_blk'])
        assert o.hook > 2 * NM and items[('swr', 8)].at >= 6 * NM and items[('swl', 8)].at >= 6 * NM
        htail = self.seq(['L_htail:'] + [it.code for m in range(NM) for it in gaps[6 * NM + m] if it.G == 5] + dppred('v_add_f32', vAcc)
                         + [f'v_add_u32 v{vRaw}, s{S_BD}, v{vRaw}', 's_branch L_blk'])
        Q = RZ
        rows = [(g, r) for g in range(4) for r in range(8)][:31]
        L = ['L_slow:', f'v_subrev_u32 v{vRaw}, s{S_BD}, v{vRaw}', 'L_slow2:', f'v_lshlrev_b32 v{FT}, 1, v0', f'v_add_u32 v{FT + 1}, s{S_BCUR}, v{FT}',
             f's_mul_i32 s{S_TW}, s{S_WAVE}, {XBSZ}', f's_add_u32 s{S_TW}, s{S_TW}, {XSP}',
             f'v_add_u32 v{FT}, s{S_TW}, v{FT}', f'v_add_u32 v{vLin}, s{S_TW}, v{vLinB}']
        L += wait(F_PEEL, 8)
        L += [f'ds_read_u16 v{Q + n}, v{FT + 1} offset:{g * XPI + r * 128}' for n, (g, r) in enumerate(rows)]
        L += [f'v_lshlrev_b32 v{Q + n}, 16, v{Q + n}' for n in range(31)]
        L += absmax(vAcc, list(range(Q, Q + 31))) + dppred('v_max_u32', vAcc)
        L += [f'v_readlane_b32 s{S_TW}, v{vAcc}, 63', f's_lshr_b32 s{S_TW}, s{S_TW}, 23', f's_sub_i32 s{S_TW}, 134, s{S_TW}',
              f's_cmp_le_u32 s{S_TW}, 9', f's_cselect_b32 s{S_PH}, 2, 3', f's_min_i32 s{S_TW}, s{S_TW}, 16',
              f's_lshl_b32 s{S_EXPC}, s{S_TW}, 2', f's_sub_i32 s{S_EXPC}, s{S_EXP}, s{S_EXPC}',
              f's_add_i32 s{S_TW}, s{S_TW}, 127', f's_lshl_b32 s{S_TW}, s{S_TW}, 23', f'v_mov_b32 v{Q + 31}, s{S_TW}']
        L += [f'v_mul_f32 v{Q + n}, s{S_TW}, v{Q + n}' for n in range(31)]
        L += [f'ds_write_b16_d16_hi v{FT + 1}, v{Q + n} offset:{g * XPI + r * 128}' for n, (g, r) in enumerate(rows)]
        L += [f'v_mul_f32 v{Q + n}, s{S_TW}, v{Q + n}' for n in range(32)]
        L += [f'ds_write_b16_d16_hi v{FT}, v{Q + n} offset:{g * XPI + r * 128}' for n, (g, r) in enumerate(rows + [(3, 7)])]
        L += [f's_mov_b32 s{S_PREV}, 0', 's_waitcnt lgkmcnt(0)', 's_branch L_prime']
        slow = self.seq(L)
        fin_ = self.seq(['L_cin_done:'] + self.stamp(9) + self.stamp_flush() + self.padsig() + ['s_endpgm'])
        rest = parts[3] + parts[4]
        full = parts[0] + pfp + parts[1] + parts[2] + pb2 + rest
        nopf = parts[0] + parts[1] + parts[2] + pbt + pb2 + parts[3] + p4x
        last = parts[0] + parts[1] + pb2 + rest
        redo = lambda pf: parts[1][:10] + slow + prime + parts[0] + (pfp if pf else []) + parts[1][:3] + rest
        end_ = tail + parts[1][:-2] + fin_
        main = peel2 + parts[4] + full + full + parts[0] + pfp + redo(1) + full + nopf + parts[0] + redo(0) + nopf + last + tail + redo(0) + end_
        main = main[:-len(end_)] + parts[0] + parts[1] + parts[2] + pb2 + slow[2:] + prime + parts[0] + parts[1][:3] + rest + end_
        hl = parts[3] + p4h + htail
        main2 = peel2 + parts[4] + parts[0] + pfp + redo(1) + full + nopf + parts[0] + parts[1] + pb2 + hl + parts[1][:10] + slow + prime + parts[0] + parts[1][:3] + hl + parts[1][:-2] + fin_
        traces = []
        for w in range(8):
            if w < 4:
                k0 = w & 2
                tr = c0 + g0a + cc + g0pf + ch[k0] + ch[k0 + 1] + chb[k0 + 1] + w1a + ([] if k0 else w1b) + w1c
            else:
                tr = c0 + g1a + cc + uc0 + uc
            k = w >> 1
            tr += uph + ch[k] + (u0 if k % 2 == 0 else u1a + (u1b if k == 1 else u1c))
            for mn in (main, main2):
                traces.append(tr + peel1 + (peelw if w == 7 else []) + mn)
        return traces

    def build(self):
        pro = self.prologue()
        d = self.dnn()
        cs = self.cin()
        rm = self.rem()
        self.seq(['L_end:', 's_endpgm'])
        traces = [pro + c for c in d + cs + rm]
        for t in traces:
            resolve_waits(t)
        for _ in range(2):
            for t in traces:
                resolve_hazards(t)
        hdr = open(os.path.join(os.path.dirname(os.path.abspath(__file__)), 'header.txt')).read()
        txt = hdr + f'; @launch grid=(256,1,1) block=(512,1,1) lds={LDS_TOTAL}\n'
        txt += f'''.amdgcn_target "amdgcn-amd-amdhsa--gfx950"
{DOC}.text
.globl {KNAME}
.p2align 8
.type {KNAME},@function
{KNAME}:
'''
        body_ = self.P.emit()
        if 'wsame' in self.opt.dbg:
            body_ = body_.replace(f's_add_u32 s{S_WSOFF}, s{S_WSOFF}, {32 * 3328}', f's_xor_b32 s{S_WSOFF}, s{S_WSOFF}, 0')
        if 'xsame' in self.opt.dbg:
            import re as _re
            body_ = _re.sub(r'v_lshl_add_u32 v(2[4-9]|3[01]), v(1[6-9]), 7', r'v_lshl_add_u32 v\1, v16, 7', body_)
            body_ = _re.sub(r'v_lshl_add_u32 v(2[4-9]|3[01]), v(2[0-3]), 7', r'v_lshl_add_u32 v\1, v20, 7', body_)
            body_ = _re.sub(r'v_lshl_add_u32 v(2[4-9]|3[01]), v(9[6-9]), 7', r'v_lshl_add_u32 v\1, v96, 7', body_)
            body_ = _re.sub(r'v_lshl_add_u32 v(2[4-9]|3[01]), v(10[0-3]), 7', r'v_lshl_add_u32 v\1, v100, 7', body_)
            body_ = body_.replace('offen offset:12\n', 'offen offset:0\n').replace('offen offset:844\n', 'offen offset:832\n')
            body_ = body_.replace(f's_mov_b32 s{S_IDXOFF}, 28', f's_mov_b32 s{S_IDXOFF}, 0').replace(f's_add_u32 s{S_IDXOFF}, s{S_IDXOFF}, 16', 's_nop 0')
        if self.opt.align:
            for lab in ('L_dnn_loop0:', 'L_dnn_loop1:', 'L_cin_loop:', 'L_epi:'):
                pad = '  s_nop 0\n' if self.opt.align > 100 else ''
                body_ = body_.replace(lab + '\n', f'.p2align {self.opt.align % 100}\n{pad}{lab}\n')
        txt += body_
        txt += f'''.section .rodata,"a"
.p2align 6
.amdhsa_kernel {KNAME}
  .amdhsa_next_free_vgpr 256
  .amdhsa_next_free_sgpr 102
  .amdhsa_accum_offset 256
  .amdhsa_group_segment_fixed_size 0
  .amdhsa_kernarg_size 88
  .amdhsa_user_sgpr_count 2
  .amdhsa_user_sgpr_kernarg_segment_ptr 1
  .amdhsa_system_sgpr_workgroup_id_x 1
  .amdhsa_float_denorm_mode_32 {self.opt.denorm}
.end_amdhsa_kernel
'''
        return txt


def main():
    ap = argparse.ArgumentParser()
    ap.add_argument('-o', default='standalone__deep_cross_xdeepfm__recsys.s')
    ap.add_argument('--stamps', action='store_true')
    ap.add_argument('--padat', default='')
    ap.add_argument('--padmin', type=int, default=0)
    ap.add_argument('--nodma', action='store_true')
    ap.add_argument('--cpf', type=int, default=2)
    ap.add_argument('--coop', type=int, default=1)
    ap.add_argument('--coopw', type=int, default=2)
    ap.add_argument('--tbpos', type=int, default=0)
    ap.add_argument('--dbar3', type=int, default=1)
    ap.add_argument('--tlb', type=int, default=0)
    ap.add_argument('--tlb2', type=int, default=1)
    ap.add_argument('--itst', type=int, default=0)
    ap.add_argument('--diag', type=int, default=0)
    ap.add_argument('--dbg', default='')
    ap.add_argument('--lead3', type=int, default=1)
    ap.add_argument('--morder', type=int, default=0)
    ap.add_argument('--etlb', type=int, default=21)
    ap.add_argument('--lateb', type=int, default=0)
    ap.add_argument('--wfl', default='')
    ap.add_argument('--xfl', default='')
    ap.add_argument('--tag', type=int, default=0)
    ap.add_argument('--idxfirst', type=int, default=1)
    ap.add_argument('--bpos', type=int, default=2)
    ap.add_argument('--sigat', type=int, default=4)
    ap.add_argument('--epx', type=int, default=1)
    ap.add_argument('--denorm', type=int, default=3)
    ap.add_argument('--mprio', type=int, default=0)
    ap.add_argument('--swap', type=int, default=0)
    ap.add_argument('--bov', type=int, default=1)
    ap.add_argument('--rfirst', type=int, default=0)
    ap.add_argument('--g1x', type=int, default=0)
    ap.add_argument('--ldsred', type=int, default=0)
    ap.add_argument('--csnake', type=int, default=0)
    ap.add_argument('--cswap', type=int, default=0)
    ap.add_argument('--align', type=int, default=0)
    ap.add_argument('--c2', type=int, default=0)
    ap.add_argument('--d1', type=int, default=0)
    ap.add_argument('--cstr', type=int, default=3)
    ap.add_argument('--bearly', type=int, default=1)
    ap.add_argument('--w2late', type=int, default=1)
    ap.add_argument('--aov', type=int, default=3)
    ap.add_argument('--upos', type=int, default=1)
    ap.add_argument('--calt', type=int, default=1)
    ap.add_argument('--pfpos', type=int, default=1)
    ap.add_argument('--wlate', type=int, default=0)
    ap.add_argument('--dbar2', type=int, default=0)
    ap.add_argument('--dbar', type=int, default=0)
    ap.add_argument('--pfw', type=int, default=1)
    ap.add_argument('--pfx', type=int, default=3)
    ap.add_argument('--pfx0', type=int, default=4)
    ap.add_argument('--pfs', type=int, default=14)
    ap.add_argument('--dcoopx', type=int, default=1)
    ap.add_argument('--dcx0', type=int, default=0)
    ap.add_argument('--dcxpos', type=int, default=-1)
    ap.add_argument('--pfe0', type=int, default=2)
    ap.add_argument('--pfne', type=int, default=14)
    ap.add_argument('--prio47', type=int, default=0)
    ap.add_argument('--lookahead', type=int, default=5)
    ap.add_argument('--nz', type=int, default=6)
    ap.add_argument('--nwf', type=int, default=8)
    ap.add_argument('--hiat', type=int, default=4)
    ap.add_argument('--wmerge', type=int, default=0)
    ap.add_argument('--gapv', type=int, default=2)
    ap.add_argument('--lat', type=int, default=3)
    ap.add_argument('--phh', type=int, default=0)
    ap.add_argument('--wgt', type=int, default=0)
    ap.add_argument('--gs', type=int, default=0)
    ap.add_argument('--t2', type=int, default=0)
    ap.add_argument('--t2g', type=int, default=9)
    ap.add_argument('--lc', type=int, default=0)
    ap.add_argument('--x64', type=int, default=0)
    ap.add_argument('--rv', type=int, default=0)
    ap.add_argument('--rwi', type=int, default=10)
    ap.add_argument('--epoll', type=int, default=2)
    ap.add_argument('--w1s', type=int, default=1)
    ap.add_argument('--cal', type=int, default=-1)
    ap.add_argument('--pfa', type=int, default=1)
    ap.add_argument('--w2e', type=int, default=0)
    ap.add_argument('--rpr', type=int, default=0)
    ap.add_argument('--pr', type=int, default=1)
    ap.add_argument('--y1', type=int, default=0)
    ap.add_argument('--y2', type=int, default=40)
    ap.add_argument('--pp0', type=int, default=2)
    ap.add_argument('--pp1', type=int, default=2)
    ap.add_argument('--w2', type=int, default=1)
    ap.add_argument('--cw', type=int, default=1)
    ap.add_argument('--wgap', type=int, default=2)
    ap.add_argument('--psl', type=int, default=0)
    ap.add_argument('--wr8', type=int, default=0)
    ap.add_argument('--lb', type=int, default=0)
    ap.add_argument('--sym', type=int, default=0)
    ap.add_argument('--n4', type=int, default=20)
    ap.add_argument('--tbl', type=int, default=0)
    ap.add_argument('--nopf', type=int, default=16)
    ap.add_argument('--idx1', type=int, default=1)
    ap.add_argument('--sv', type=int, default=1)
    ap.add_argument('--pb', type=int, default=3)
    ap.add_argument('--dpf', type=int, default=0)
    ap.add_argument('--dpn', type=int, default=4)
    ap.add_argument('--mord', type=int, default=0)
    ap.add_argument('--q0', type=int, default=5)
    ap.add_argument('--q1', type=int, default=7)
    ap.add_argument('--u0', type=int, default=8)
    ap.add_argument('--un', type=int, default=26)
    ap.add_argument('--ro', type=int, default=0)
    ap.add_argument('--dfirst', type=int, default=0)
    ap.add_argument('--er0', type=int, default=0)
    ap.add_argument('--er1', type=int, default=0)
    ap.add_argument('--lg0', type=int, default=0)
    ap.add_argument('--fprio', type=int, default=1)
    ap.add_argument('--lite', type=int, default=0)
    ap.add_argument('--pf1', type=int, default=3)
    ap.add_argument('--amp', type=int, default=0)
    ap.add_argument('--ofl', default='')
    ap.add_argument('--uprio', type=int, default=0)
    ap.add_argument('--ccpos', type=int, default=1)
    ap.add_argument('--s1e', type=int, default=9)
    ap.add_argument('--s2e', type=int, default=0)
    ap.add_argument('--shs', type=int, default=256)
    ap.add_argument('--pfp', type=int, default=1)
    ap.add_argument('--epos', type=int, default=3)
    ap.add_argument('--hook', type=int, default=100)
    ap.add_argument('--rrd', type=int, default=11)
    ap.add_argument('--rdrop', default='')
    ap.add_argument('--pfr', type=int, default=4)
    ap.add_argument('--vin', type=int, default=1)
    ap.add_argument('--rstag', type=int, default=1)
    ap.add_argument('--eprio', type=int, default=1)
    ap.add_argument('--nopk', type=int, default=0)
    ap.add_argument('--w1first', type=int, default=0)
    ap.add_argument('--xpos', type=int, default=1)
    ap.add_argument('--z1lo', type=int, default=40)
    ap.add_argument('--pfend', type=int, default=3)
    ap.add_argument('--gst', type=int, default=0)
    ap.add_argument('--gapl', type=int, default=2)
    ap.add_argument('--gapt', type=int, default=2)
    ap.add_argument('--wcost', type=int, default=2)
    ap.add_argument('--bprio', type=int, default=0)
    ap.add_argument('--c1hi', type=int, default=-8)
    ap.add_argument('--c2hi', type=int, default=12)
    ap.add_argument('--rspan', type=int, default=48)
    ap.add_argument('--rlead', type=int, default=14)
    ap.add_argument('--pfd', type=int, default=16)
    ap.add_argument('--mo', type=int, default=4)
    ap.add_argument('--ba', type=int, default=8)
    ap.add_argument('--sig2', type=int, default=4)
    ap.add_argument('--drop', default='')
    ap.add_argument('--al8', type=int, default=4)
    ap.add_argument('--alph', type=int, default=0)
    ap.add_argument('--almm', type=int, default=0)
    ap.add_argument('--phi', type=int, default=110)
    ap.add_argument('--rawlo', type=int, default=8)
    ap.add_argument('--flo', type=int, default=2)
    opt = ap.parse_args()
    resolve_waits.dbg = 'dup' in opt.dbg
    g = Gen(opt)
    txt = g.build()
    if opt.al8:
        import align8
        rg = []
        if opt.al8 & 1:
            rg.append(('L_cin_loop', 'L_slow'))
        if opt.al8 & 2:
            rg += [('L_dnn_loop0', 'L_dnn_h1'), ('L_dnn_loop1', 'L_epi')]
        if opt.al8 & 4:
            rg += [('L_epi', 'L_dpub'), ('L_repi', 'L_rclr')]
        txt = align8.align(txt, rg, opt.alph, opt.almm)
    if opt.cal >= 0:
        txt = txt.replace('L_cin_loop:\n', '.p2align 6\n' + '  s_nop 0\n' * (opt.cal // 4) + 'L_cin_loop:\n' , 1)
        txt = txt.replace('L_rem:\n', '.p2align 3\nL_rem:\n', 1)
    open(opt.o, 'w').write(txt)
    print('wrote', opt.o, len(txt), 'bytes')


if __name__ == '__main__':
    main()
```

```python
import sys, os, struct, argparse
sys.path.insert(0, os.path.dirname(os.path.abspath(__file__)))
from cinplan import ZD, cls
from asmlib import I, WaitTag, Prog, resolve_waits, resolve_hazards

KNAME = 'standalone__deep_cross_xdeepfm__recsys_kernel'
LDS_TOTAL = 163840

XSLOT = 8192
WR = 4 * XSLOT
WP = 640
WSLOT = 32 * WP
L_BIAS = WR + 6 * WSLOT
L_W2 = L_BIAS + WP
RB = L_W2 + WP
assert RB + 2048 <= LDS_TOTAL
RWR = 131072

ASZ = 35264
A1 = 1024
A2 = A1 + ASZ
A3 = A2 + ASZ
UST = 1356
V3OFF = A3 + ASZ
V2OFF = V3OFF + 2048
L_WCO = V2OFF + 1408
L_FLG = L_WCO + 192
RC = L_FLG + 64
XB0 = RC + 512
XPI = 1056
XBSZ = 4 * XPI
XB1 = A3
TA = A1
TC = TA + 11 * 1024
TD = TC + 12 * 1024
TB = A2
XSP = A1
XCH = XB0 + 8 * XBSZ
OOB = 0x100000
NCLR = 56
NPOOL = 224
assert XCH + 8192 <= LDS_TOTAL and XB0 % 16 == 0 and A2 % 16 == 0 and A3 % 16 == 0 and L_WCO % 16 == 0
assert 8 * XBSZ <= ASZ and TD + 11 * 1024 <= A2

S_WAVE = 3
S_IDX, S_TAB, S_CIN, S_WCO, S_W1, S_B1, S_W2, S_BO, S_OUT, S_DBG, S_WS = 4, 6, 8, 10, 12, 14, 16, 18, 20, 22, 24
S_MB, S_R = 26, 27
SRD_IDX, SRD_TAB, SRD_CIN, SRD_WCO, SRD_W, SRD_B1, SRD_W2, SRD_OUT, SRD_WS, SRD_DBG = 28, 32, 36, 40, 44, 48, 52, 56, 60, 64
S_T0, S_T1, S_T2, S_T3 = 68, 69, 70, 71
S_LOOP, S_IDXOFF, S_WSOFF, S_WMB, S_XM0, S_N0, S_C0, S_CW, S_BOUT, S_TW = 72, 73, 74, 75, 76, 77, 78, 79, 80, 81
S_EX = 82
S_GRP, S_RC = 84, 85
S_ST = 86
S_M26, S_MASK = 90, 92
S_SAMP, S_STG, S_STG9, S_TGT = 94, 95, 96, 97
S_M26B = 98
S_GW = 100
S_TAGT = 0
S_TAG = 1
S_PW = 101
S_PX = 77
S_PXE = 73

GELU_C0 = -2.0 * 0.7978845608028654 * 1.4426950408889634
GELU_C1 = GELU_C0 * 0.044715


def f32hex(x):
    return '0x%08x' % struct.unpack('<I', struct.pack('<f', x))[0]


def vr(a, n):
    return f'v[{a}:{a + n - 1}]' if n > 1 else f'v{a}'


def srd(a):
    return f's[{a}:{a + 3}]'


def flat(gs):
    res = []
    for c in gs:
        if isinstance(c, (tuple, list)):
            res += flat(c)
        else:
            res.append(c)
    return res


def interleave(a, b):
    out = []
    ia = ib = 0
    na, nb = len(a), len(b)
    while ia < na or ib < nb:
        if ib >= nb or (ia < na and ia * nb <= ib * na):
            out.append(a[ia]); ia += 1
        else:
            out.append(b[ib]); ib += 1
    return out


assert all((d * 2521) >> 16 == d // 26 for d in range(800))
assert all((d * 10923) >> 16 == d // 6 for d in range(64))
assert all((d * 1561) >> 16 == d // 42 for d in range(176))


DOC = '''; ---------------------------------------------------------------------------------------------
;
;       V3[h,k]  = sum_g wo[52+g] W3[g,h,k]          V2[i,j] = sum_h wo[26+h] W2[h,i,j]
;       U[i,j,k] = sum_h W2[h,i,j] V3[h,k]
;       g1[i]    = wo[i] + sum_j V2[i,j] x_j + sum_jk U[i,j,k] x_j x_k
;   Both quadratic forms use the 351 distinct products x_j x_k (j<=k) with symmetrised weights on fp16 MFMA
;   (fp32 accumulate).  Range is handled with power-of-two scales derived from the data on every launch:
; Work split per group of 512 samples (32 workgroups): 20 workgroups do 128 x 320 tiles of the DNN GEMM,
;   Partial logits go through d_ws (sc1): the 64-column workgroup resets the slots at its start (announced in
;   d_debug), later polls until every slot is filled, adds up and writes d_out.
; ---------------------------------------------------------------------------------------------
'''


class Gen:
    def __init__(self, opt):
        self.opt = opt
        self.P = Prog()
        self.role = 'x'

    def seq(self, lines):
        return [self.P.add(l) for l in flat(lines)]

    def build_srd(self, dst, ptr, size):
        return [f's_mov_b32 s{dst}, s{ptr}', f's_and_b32 s{dst + 1}, s{ptr + 1}, 0xffff',
                f's_mov_b32 s{dst + 2}, {size}', f's_mov_b32 s{dst + 3}, 0x20000']

    def stamp(self, slot):
        if self.opt.padat == f'{self.role}{slot}':
            return [f's_memrealtime s[88:89]', 's_waitcnt lgkmcnt(0)']
        if not self.opt.stamps or (self.opt.lite and f'{self.role}{slot}' not in ('c8', 'c9', 'd2', 'd4', 'r2', 'r4', 'r5')):
            return []
        return [f's_memtime s[{S_ST}:{S_ST + 1}]', f's_memrealtime s[{S_ST + 2}:{S_ST + 3}]', 's_waitcnt lgkmcnt(0)',
                f'v_writelane_b32 v252, s{S_ST}, {slot}', f'v_writelane_b32 v253, s{S_ST + 2}, {slot}']

    def stamp_flush(self):
        if not self.opt.stamps:
            return []
        L = self.build_srd(SRD_WS, S_WS, 0x10000000)
        L += [f's_lshl_b32 s{S_C0}, s2, 3', f's_add_u32 s{S_C0}, s{S_C0}, s{S_WAVE}',
              f's_lshl_b32 s{S_C0}, s{S_C0}, 8', f's_add_u32 s{S_C0}, s{S_C0}, 0x100000',
              'v_lshlrev_b32 v254, 3, v0', 's_mov_b32 exec_hi, 0',
              f'buffer_store_dwordx2 v[252:253], v254, {srd(SRD_WS)}, s{S_C0} offen', 's_mov_b32 exec_hi, -1']
        return L

    def stamp0(self):
        if not self.opt.stamps:
            return self.stamp(15)
        return ['v_mov_b32 v252, 0xcdcdcdcd', 'v_mov_b32 v253, 0xcdcdcdcd',
                f'v_writelane_b32 v252, s{S_ST}, 0', f'v_writelane_b32 v253, s{S_ST + 2}, 0'] + self.stamp(15)

    def tlb2(self, t, vflag):
        L = self.build_srd(SRD_WS, S_WS, 0x10000000) + self.build_srd(SRD_DBG, S_DBG, 256)
        L += [f'v_lshlrev_b32 v{t}, 2, v0',
              ('s_mov_b64 exec, 0xff', f's_mov_b32 s{S_TW}, 0x80000',
               f'buffer_load_dword v255, v{t}, {srd(SRD_WS)}, s{S_TW} offen',
               f'buffer_load_dword v{vflag}, v{t}, {srd(SRD_DBG)}, 0 offen offset:128 sc1',
               's_mov_b64 exec, -1'), f'v_mov_b32 v{t}, 0']
        return L

    def cleared(self, lab, grp, vflag):
        chk = [f'v_cmp_eq_u32 vcc, 0, v{vflag}', f's_bitcmp1_b32 vcc_lo, s{S_TW}']
        return grp + chk + [f's_cbranch_scc0 {lab}_ok', f's_mov_b32 s{S_C0}, 0x40000',
                f'{lab}:', f's_sub_u32 s{S_C0}, s{S_C0}, 1', f's_cbranch_scc1 {lab}_ok', f'v_lshlrev_b32 v{vflag}, 2, v0', f'v_and_b32 v{vflag}, 31, v{vflag}',
                f'buffer_load_dword v{vflag}, v{vflag}, {srd(SRD_DBG)}, 0 offen offset:128 sc1', 's_waitcnt vmcnt(0)'] + chk + [f's_cbranch_scc1 {lab}', f'{lab}_ok:']

    def padsig(self):
        o = self.opt
        if not o.padat:
            return []
        pre = ['v_mov_b32 v8, 4']
        if (o.padat[0] if o.padat != 'start' else 'd') != self.role:
            return pre
        return pre + [f's_cmp_lg_u32 s{S_WAVE}, 0', 's_cbranch_scc1 L_nosig'] + ([f's_not_b32 s88, s88'] if o.padmin else []) + ['v_mov_b32 v7, s88', 's_mov_b64 exec, 1',
                f'buffer_atomic_umax v7, v8, {srd(SRD_DBG)}, 0 offen', 's_mov_b64 exec, -1', 'L_nosig:']

    def tlb1(self, vtmp, vdst):
        if not self.opt.etlb:
            return self.build_srd(SRD_TAB, S_TAB, 100000 * 128)
        return self.build_srd(SRD_TAB, S_TAB, 100000 * 128) + [
            f'v_mov_b32 v{vtmp}, s{S_BOUT}', f'buffer_load_dword v{vdst}, v{vtmp}, {srd(SRD_TAB)}, 0 offen']

    def prologue(self):
        L = []
        if self.opt.padat == 'start' or self.opt.amp in (1, 2, 3):
            L += ['s_memrealtime s[88:89]']
        elif self.opt.padat:
            L += [f's_mov_b32 s88, {-1 if self.opt.padmin else 0}']
        if self.opt.stamps:
            L += [f's_memtime s[{S_ST}:{S_ST + 1}]', f's_memrealtime s[{S_ST + 2}:{S_ST + 3}]']
        L += ['s_cmp_ge_u32 s2, 256', 's_cbranch_scc1 L_end',
              's_load_dwordx16 s[4:19], s[0:1], 0',
              's_load_dwordx4 s[20:23], s[0:1], 64',
              's_load_dwordx2 s[24:25], s[0:1], 80',
              'v_lshrrev_b32 v1, 6, v0']
        if self.opt.cpf:
            L += [f's_getpc_b64 s[{S_MASK}:{S_MASK + 1}]', 'L_pc:',
                  f's_and_b32 s{S_T0}, s2, 0xf8', f'v_add_u32 v2, s{S_T0}, v1', 'v_lshlrev_b32 v2, 7, v2'] + (['v_and_b32 v3, 1, v0', 'v_lshl_add_u32 v2, v3, 15, v2'] if self.opt.cpf == 2 else []) + [
                  f'v_min_u32 v2, L_end-L_pc, v2',
                  f'v_mov_b32 v3, s{S_MASK + 1}',
                  f'v_add_co_u32 v2, vcc, s{S_MASK}, v2', 'v_addc_co_u32 v3, vcc, 0, v3, vcc',
                  'global_load_dword v255, v[2:3], off']
        L += ['v_and_b32 v0, 63, v0',
              f'v_readfirstlane_b32 s{S_WAVE}, v1',
              f's_and_b32 s{S_T0}, s2, 7', f's_lshl_b32 s{S_T0}, s{S_T0}, 2',
              f's_lshr_b32 s{S_MB}, s2, 6', f's_add_u32 s{S_MB}, s{S_MB}, s{S_T0}',
              f's_bfe_u32 s{S_R}, s2, 0x30003',
              f's_and_b32 s{S_BOUT}, s2, 0xf8', f's_add_u32 s{S_BOUT}, s{S_BOUT}, s{S_WAVE}', f's_lshl_b32 s{S_BOUT}, s{S_BOUT}, {self.opt.etlb}',
              f's_lshr_b32 s{S_T0}, s2, 3', f's_cmp_eq_u32 s{S_T0}, 5', 's_cbranch_scc1 L_rem',
              f's_cmp_ge_u32 s{S_R}, 5', 's_cbranch_scc1 L_cin']
        return self.seq(L)

    def gelu(self, groups, TB, KC0, KC1, KONE, seen=()):
        p2 = lambda r: vr(r, 2)
        L = []
        seen = set(seen)
        for k, vals in enumerate(groups):
            tb = TB + (k % 2) * 16
            V_ = [(x, w, s_, tb + 4 * i_, tb + 4 * i_ + 2) for i_, (x, w, s_) in enumerate(vals)]
            for (x, w, s_, t, u) in V_:
                L.append(f'v_pk_mul_f32 {p2(t)}, {p2(x)}, {p2(x)}')
            for (x, w, s_, t, u) in V_:
                L.append(f'v_pk_fma_f32 {p2(t)}, {p2(t)}, {p2(KC1)}, {p2(KC0)}')
            for (x, w, s_, t, u) in V_:
                L.append(f'v_pk_mul_f32 {p2(t)}, {p2(t)}, {p2(x)}')
            for (x, w, s_, t, u) in V_:
                L += [f'v_exp_f32 v{t}, v{t}', f'v_exp_f32 v{t + 1}, v{t + 1}']
            for (x, w, s_, t, u) in V_:
                L.append(f'v_pk_fma_f32 {p2(t)}, {p2(t)}, {p2(w)}, {p2(w)}')
            for (x, w, s_, t, u) in V_:
                L += [f'v_rcp_f32 v{t}, v{t}', f'v_rcp_f32 v{t + 1}, v{t + 1}']
            for (x, w, s_, t, u) in V_:
                if s_ in seen:
                    L.append(f'v_pk_fma_f32 {p2(s_)}, {p2(t)}, {p2(x)}, {p2(s_)}')
                else:
                    L.append(f'v_pk_mul_f32 {p2(s_)}, {p2(t)}, {p2(x)}')
                    seen.add(s_)
        if self.opt.nopk:
            import re as _re
            L2 = []
            for x in L:
                if x.startswith('v_pk_'):
                    mn = x.split()[0].replace('v_pk_', 'v_')
                    rs = [int(r) for r in _re.findall(r'v\[(\d+):', x)]
                    L2 += [f'{mn} ' + ', '.join(f'v{r + h}' for r in rs) for h in range(2)]
                else:
                    L2.append(x)
            L = L2
        return L

    def gelu2(self, groups, TB, KC0, KC1, KSH):
        p2 = lambda r: vr(r, 2)
        L = []
        seen = set()
        for k, vals in enumerate(groups):
            tb = TB + (k % 2) * 24
            H = [(x + 2 * d, tb + 6 * i_ + 2 * d, k0[d], k1[d]) for i_, (x, k0, k1, s_) in enumerate(vals) for d in range(2)]
            F = [(x, tb + 6 * i_, s_) for i_, (x, k0, k1, s_) in enumerate(vals)]
            L += [f'v_pk_mul_f32 {p2(t)}, {p2(x)}, {p2(x)}' for (x, t, k0, k1) in H]
            L += [f'v_pk_fma_f32 {p2(t)}, {p2(t)}, {p2(KC1)}, {p2(KC0)}' for (x, t, k0, k1) in H]
            L += [f'v_pk_fma_f32 {p2(t)}, {p2(t)}, {p2(x)}, {p2(KSH)}' for (x, t, k0, k1) in H]
            L += [f'v_exp_f32 v{t + h}, v{t + h} clamp' for (x, t, k0, k1) in H for h in range(2)]
            L += [f'v_pk_fma_f32 {p2(t)}, {p2(t)}, {p2(k1)}, {p2(k0)}' for (x, t, k0, k1) in H]
            L += [f'v_pk_mul_f32 {p2(t + 4)}, {p2(x)}, {p2(t + 2)}' for (x, t, s_) in F]
            L += [f'v_pk_fma_f32 {p2(t + 4)}, {p2(x + 2)}, {p2(t)}, {p2(t + 4)}' for (x, t, s_) in F]
            L += [f'v_pk_mul_f32 {p2(t)}, {p2(t)}, {p2(t + 2)}' for (x, t, s_) in F]
            L += [f'v_rcp_f32 v{t + h}, v{t + h}' for (x, t, s_) in F for h in range(2)]
            for (x, t, s_) in F:
                L.append(f'v_pk_fma_f32 {p2(s_)}, {p2(t)}, {p2(t + 4)}, {p2(s_)}' if s_ in seen else f'v_pk_mul_f32 {p2(s_)}, {p2(t)}, {p2(t + 4)}')
                seen.add(s_)
        return L

    def winv2(self, R, n, K1, KL, SC):
        L = [f'v_mov_b32 v{SC}, 0x21800000', f'v_mov_b32 v{KL}, 0x30800000']
        L += [f'v_max3_f32 v{SC}, v{SC}, abs(v{R + k}), abs(v{R + k + 1})' for k in range(0, n, 2)]
        L += [f'v_and_b32 v{SC}, 0x7f800000, v{SC}', f'v_mul_f32 v{SC}, 0x22000000, v{SC}']
        L += [f'v_rcp_f32 v{R + k}, v{R + k}' for k in range(n)] + [f'v_mul_f32 v{R + k}, v{SC}, v{R + k}' for k in range(n)]
        L += [f'v_med3_f32 v{R + k}, v{R + k}, -v{KL}, v{KL}' for k in range(n)] + [f'v_mul_f32 v{K1[k]}, 0x6c800000, v{R + k}' for k in range(n)]
        return L

    def red4(self, SUMP, SC=None):
        sm = lambda tm: SUMP + 2 * tm
        L = [f'v_add_f32 v{sm(tm)}, v{sm(tm)}, v{sm(tm) + 1}' for tm in range(4)]
        if SC is not None:
            L += [f'v_mul_f32 v{sm(tm)}, v{SC}, v{sm(tm)}' for tm in range(4)]
        L += [f'v_permlane32_swap_b32 v{sm(tm)}, v{sm(tm + 2)}' for tm in range(2)]
        L += [f'v_add_f32 v{sm(tm)}, v{sm(tm)}, v{sm(tm + 2)}' for tm in range(2)]
        L += [f'v_permlane16_swap_b32 v{sm(0)}, v{sm(1)}', f'v_add_f32 v{sm(0)}, v{sm(0)}, v{sm(1)}']
        return L

    def kconst(self, KC0, KC1, KONE, pr=None):
        return [f'v_mov_b32 v{KC0}, {f32hex(GELU_C0)}', f'v_mov_b32 v{KC0 + 1}, {f32hex(GELU_C0)}',
                f'v_mov_b32 v{KC1}, {f32hex(GELU_C1)}', f'v_mov_b32 v{KC1 + 1}, {f32hex(GELU_C1)}',
                ] + ([f'v_mov_b32 v{KONE}, 0x71800000'] if not (self.opt.pr if pr is None else pr) else [f'v_mov_b32 v{KONE}, {f32hex(-90.0)}', f'v_mov_b32 v{KONE + 1}, {f32hex(-90.0)}'])

    def winv(self, R, n, KONE):
        return [f'v_rcp_f32 v{R + k}, v{R + k}' for k in range(n)] + [f'v_med3_f32 v{R + k}, v{R + k}, -v{KONE}, v{KONE}' for k in range(n)]

    def dnn(self):
        o = self.opt
        self.role = 'd'
        vW = [[1, 2, 3, 4, 5], [6, 7, 8, 9, 10]]
        vX = [11, 12]
        vIdxOff, vCh = 13, [14, 15]
        ST = [[16, 20], [24, 240]]
        VO = [28, 34]
        vWD = [29, 30, 31, 32, 33]
        vP, vPc, vBL = 35, 36, 37
        WF = 40
        XA = 80
        T = 44
        W2F = 112
        ACC = 140
        PK = 220
        SUMP, KC0, KC1, KONE = 16, 232, 234, 236

        def acc(tn, tm):
            return ACC + (tn * 4 + tm) * 4

        HH, SL = S_T0, S_T1
        g, i4, q = T + 18, T + 19, T + 20
        PI, vCW = T + 8, T + 12
        nr = o.coopw
        L = [f's_mul_i32 s{S_N0}, s{S_R}, {WP}',
             f's_mul_i32 s{S_T2}, s{S_WAVE}, 7', f'v_min_u32 v{q}, 6, v0', f'v_add_u32 v{q}, s{S_T2}, v{q}', f'v_min_u32 v{q}, 51, v{q}',
             f'v_lshrrev_b32 v{g}, 1, v{q}', f'v_mul_u32_u24 v{g}, 96, v{g}', f'v_lshl_add_u32 v{q}, v{q}, 2, v{g}',
             f's_mul_i32 s{S_C0}, s{S_R}, 26', f's_min_u32 s{S_C0}, s{S_C0}, 102', f's_lshl_b32 s{S_T3}, s{S_MB}, 7',
             f's_add_u32 s{S_C0}, s{S_C0}, s{S_T3}', f's_mul_i32 s{S_C0}, s{S_C0}, 104',
             f's_and_b32 s{S_T2}, s{S_MB}, 3', f's_lshl_b32 s{S_T2}, s{S_T2}, 3', f's_add_u32 s{S_T2}, s{S_T2}, s{S_WAVE}',
             f's_mul_i32 s{S_T2}, s{S_T2}, 3328', f's_add_u32 s{S_TW}, s{S_T2}, s{S_N0}',
             f'v_min_u32 v{vCW}, {8 * nr - 1}, v0', f'v_lshrrev_b32 v{g}, 3, v{vCW}', f's_mov_b32 s{S_T2}, {32 * 3328}',
             f'v_mul_u32_u24 v{g}, s{S_T2}, v{g}',
             f'v_and_b32 v{vCW}, 7, v{vCW}', f'v_min_u32 v{vCW}, 4, v{vCW}', f'v_lshl_add_u32 v{vCW}, v{vCW}, 7, v{g}',
             f's_xor_b32 s{S_T2}, s{S_WAVE}, 4', f's_lshl_b32 s{S_T2}, s{S_T2}, 4', f's_add_u32 s{S_T2}, s{S_T2}, s{S_T3}',
              f'v_lshrrev_b32 v{T + 16}, 3, v0', f'v_add_u32 v{T + 16}, s{S_T2}, v{T + 16}',
              f'v_mul_u32_u24 v{vIdxOff}, 104, v{T + 16}',
             's_waitcnt lgkmcnt(0)']
        L += self.build_srd(SRD_IDX, S_IDX, 4096 * 104)
        own = [f'buffer_load_dwordx2 {vr(T + 4 * pc, 2)}, v{vIdxOff}, {srd(SRD_IDX)}, 0 offen offset:{pc * 832}' for pc in range(2)]
        L += (own if o.idx1 == 2 else []) + [f'buffer_load_dwordx3 {vr(PI, 3)}, v{q}, {srd(SRD_IDX)}, s{S_C0} offen'] + (own if o.idx1 == 1 else [])
        L += self.tlb1(T + 24, 255)
        vec = lambda dst, sr: [f's_mov_b32 m0, {dst}', 's_mov_b32 exec_hi, 0xff',
                               I(f'buffer_load_dwordx4 v{vBL}, {srd(sr)}, s{S_N0} offen lds', tag='BIAS'), 's_mov_b64 exec, -1']
        L += [f'v_lshlrev_b32 v{vBL}, 4, v0'] + self.build_srd(SRD_B1, S_B1, 3328)
        L += self.build_srd(SRD_W, S_W1, 1664 * 3328)
        L += [f'buffer_load_dword v255, v{vCW}, {srd(SRD_W)}, s{S_TW} offen']
        dpf = [f's_mul_i32 s{S_TW}, s{S_MB}, 5', f's_add_u32 s{S_TW}, s{S_TW}, s{S_R}', f's_lshl_b32 s{S_TW}, s{S_TW}, 3', f's_add_u32 s{S_TW}, s{S_TW}, s{S_WAVE}',
               f's_add_u32 s{S_TW}, s{S_TW}, {2 * 832}', f's_lshl_b32 s{S_TW}, s{S_TW}, 7', f'v_min_u32 v{vCW}, {o.dpn - 1}, v0', f'v_mul_u32_u24 v{vCW}, {1280 * 128}, v{vCW}',
               f'buffer_load_dword v255, v{vCW}, {srd(SRD_W)}, s{S_TW} offen']
        L += vec(L_BIAS, SRD_B1) + (self.build_srd(SRD_W2, S_W2, 3328) + vec(L_W2, SRD_W2) if o.w2e else []) + (dpf if o.dpf == 1 else [])
        L += self.stamp0()
        L += [f's_lshr_b32 s{HH}, s{S_WAVE}, 2', f's_and_b32 s{SL}, s{S_WAVE}, 3',
              f's_mov_b32 s{S_T2}, 1639', f's_and_b32 s{S_C0}, s{SL}, 1', f's_lshl_b32 s{S_C0}, s{S_C0}, 2',
              f's_mov_b32 s{S_TW}, 3328', f'v_mov_b32 v{T + 16}, v0']
        for u in range(5):
            ci, rr = T + 16, T + 17
            L += [f'v_mul_u32_u24 v{rr}, s{S_T2}, v{ci}', f'v_lshrrev_b32 v{rr}, 16, v{rr}',
                  f'v_mul_u32_u24 v{q}, 40, v{rr}', f'v_sub_u32 v{q}, v{ci}, v{q}',
                  f'v_and_b32 v{i4}, 2, v{rr}', f'v_or_b32 v{i4}, s{S_C0}, v{i4}', f'v_xor_b32 v{q}, v{q}, v{i4}',
                  f'v_mul_u32_u24 v{rr}, s{S_TW}, v{rr}', f'v_lshl_add_u32 v{vWD[u]}, v{q}, 4, v{rr}']
            if u % 4:
                L += [f'v_subrev_u32 v{vWD[u]}, {1024 * u}, v{vWD[u]}']
            if u < 4:
                L += [f'v_add_u32 v{ci}, 64, v{ci}']
        L += [f's_mul_i32 s{S_T2}, s{S_WAVE}, {8 * 3328}', f's_add_u32 s{S_WSOFF}, s{S_T2}, s{S_N0}',
              f's_mul_i32 s{S_WMB}, s{S_WAVE}, {8 * WP}', f's_add_u32 s{S_WMB}, s{S_WMB}, {WR}',
              f's_lshl_b32 s{S_T3}, s{HH}, 14', f's_lshl_b32 s{S_XM0}, s{SL}, 11', f's_add_u32 s{S_XM0}, s{S_XM0}, s{S_T3}', f's_xor_b32 s{S_XM0}, s{S_XM0}, {2 * XSLOT}',
              f'v_and_b32 v{q}, 7, v0', f'v_lshrrev_b32 v{g}, 4, v0',
              f'v_xor_b32 v{q}, v{q}, v{g}', f'v_lshlrev_b32 v{vCh[0]}, 4, v{q}',
              f'v_xor_b32 v{vCh[1]}, 64, v{vCh[0]}']
        LAB = L
        L = [f'v_and_b32 v{q}, 15, v0', f'v_lshlrev_b32 v{q}, 7, v{q}', f's_lshl_b32 s{S_T3}, s{HH}, 14',
              f'v_bfe_u32 v{i4}, v0, 1, 3', f'v_xor_b32 v{i4}, v{i4}, v{g}', f'v_lshl_add_u32 v{q}, v{i4}, 4, v{q}',
              f'v_add_u32 v{vX[0]}, s{S_T3}, v{q}', f'v_xor_b32 v{vX[1]}, 64, v{vX[0]}']
        L += self.build_srd(SRD_W2, S_W2, 3328)
        L += [f's_mul_i32 s{S_T3}, s{SL}, 5',
              f'v_bfe_u32 v{i4}, v0, 2, 2', f'v_lshl_add_u32 v{q}, v{g}, 3, v{i4}', f'v_mul_u32_u24 v{q}, {WP}, v{q}',
              f'v_and_b32 v{i4}, 3, v0', f'v_lshl_add_u32 v{q}, v{i4}, 3, v{q}', f'v_add_u32 v{q}, {WR}, v{q}',
              f'v_bfe_u32 v{i4}, v0, 3, 2']
        for i in range(5):
            L += [f'v_xor_b32 v{T + 16}, s{S_T3}, v{i4}', f'v_lshl_add_u32 v{vW[0][i]}, v{T + 16}, 5, v{q}',
                  f'v_add_u32 v{vW[1][i]}, {3 * WSLOT}, v{vW[0][i]}', f's_add_u32 s{S_T3}, s{S_T3}, 1']
        L += [f's_mul_i32 s{S_T3}, s{SL}, 160', f's_add_u32 s{S_T3}, s{S_T3}, {L_BIAS}',
              f'v_lshlrev_b32 v{q}, 3, v{g}', f'v_add_u32 v{vP}, s{S_T3}, v{q}',
              f's_lshl_b32 s{S_T2}, s{SL}, 1', f's_add_u32 s{S_T2}, s{S_T2}, s{HH}', f's_lshl_b32 s{S_T2}, s{S_T2}, 8', f's_add_u32 s{S_T2}, s{S_T2}, {RB}',
              f'v_lshlrev_b32 v{vPc}, 2, v0', f'v_add_u32 v{vPc}, s{S_T2}, v{vPc}']
        LC, L = (L, LAB) if o.lc else ([], LAB + L)

        def wld(u):
            return I(f'buffer_load_dwordx4 v{vWD[u]}, {srd(SRD_W)}, s{S_WSOFF} offen offset:{1024 * (u % 4)}{o.wfl} lds', tag='W')

        def wst(stage):
            return [(f's_add_u32 m0, s{S_WMB}, {(stage % 3) * 2 * WSLOT}', wld(0)), (wld(1),), (wld(2),), (wld(3),),
                    ('s_add_u32 m0, m0, 4096', wld(4), f's_add_u32 s{S_WSOFF}, s{S_WSOFF}, {64 * 3328}')]

        def xld(v, m0, tag='X'):
            return (m0, I(f'buffer_load_dwordx4 v{v}, {srd(SRD_TAB)}, 0 offen{o.xfl} lds', tag=tag))
        pkreads = lambda off: [f'ds_read_b64 {vr(PK + 2 * tn, 2)}, v{vP} offset:{off + 32 * tn}' for tn in range(5)]

        def unp(dst):
            c = []
            for tn in range(5):
                for d in range(2):
                    c += [f'v_lshlrev_b32 v{dst(tn) + 2 * d}, 16, v{PK + 2 * tn + d}', f'v_and_b32 v{dst(tn) + 2 * d + 1}, 0xffff0000, v{PK + 2 * tn + d}']
            return c

        def reads(st):
            def rdw(tn):
                c = []
                for par in range(2):
                    sl = (st % 3) * 2 + par
                    c += [f'ds_read_b64_tr_b16 {vr(WF + 8 * tn + 4 * par + 2 * rd, 2)}, v{vW[sl // 3][tn]} offset:{(sl % 3) * WSLOT + rd * 4 * WP}' for rd in range(2)]
                return c
            rdx = [f'ds_read_b128 {vr(XA + 8 * tm + 4 * par, 4)}, v{vX[par]} offset:{(st % 2) * XSLOT + tm * 2048}' for tm in range(4) for par in range(2)]
            if o.x64:
                rdx = [f'ds_read_b64 {vr(XA + 8 * tm + 4 * par + 2 * h, 2)}, v{vX[par]} offset:{(st % 2) * XSLOT + tm * 2048 + 8 * h}' for tm in range(4) for par in range(2) for h in range(2)]
            return rdw(0) + rdw(1) + rdw(2) + rdw(3) + rdx + rdw(4) if o.ro == 0 else rdw(0) + rdx + rdw(1) + rdw(2) + rdw(3) + rdw(4)

        def xst(src, f, tag='X'):
            vo = lambda pc: (f'v_lshl_add_u32 v{VO[pc]}, v{src(pc)}, 7, v{vCh[pc]}',)
            return [vo(1) + vo(0) + xld(VO[0], f's_add_u32 m0, s{S_XM0}, {(f % 2) * XSLOT}', tag), xld(VO[1], 's_add_u32 m0, m0, 1024', tag)]
        idxl = lambda k: [f'buffer_load_dwordx3 {vr(ST[k][pc], 3)}, v{vIdxOff}, {srd(SRD_IDX)}, s{S_IDXOFF} offen offset:{pc * 832}' for pc in range(2)] + [f's_add_u32 s{S_IDXOFF}, s{S_IDXOFF}, 12']

        tA = [f'buffer_load_dword v255, v{PI}, {srd(SRD_TAB)}, 0 offen']
        tB = [f'v_lshlrev_b32 v{PI + 2}, 7, v{PI + 2}', f'buffer_load_dword v255, v{PI + 2}, {srd(SRD_TAB)}, 0 offen']
        ini = LC + [WaitTag(vm_tags=['BIAS'])] + pkreads(0) + unp(lambda tn: acc(tn, 0))
        ini += [f'v_mov_b64 {vr(acc(tn, tm) + 2 * d, 2)}, {vr(acc(tn, 0) + 2 * d, 2)}' for tn in range(5) for tm in range(1, 4) for d in range(2)]
        x0 = xst(lambda pc: T + 4 * pc, 0, 'X0')
        tBl = []
        if o.tbl:
            tBl, tB = tB, []
        b1 = ['s_barrier'] if o.pb & 1 else []
        b2 = ['s_barrier'] if o.pb & 2 else []
        sh = [f'v_lshlrev_b32 v{PI}, 7, v{PI}']
        if o.sv == 0:
            L += sh + (own if not o.idx1 else []) + b1 + tA + tB + self.stamp(6) + wst(0) + ini + x0 + self.stamp(7) + b2
        elif o.sv == 1:
            L += self.stamp(19) + wst(0) + sh + (own if not o.idx1 else []) + b1 + tA + self.stamp(6) + x0 + tB + b2 + ini + self.stamp(7)
        elif o.sv == 2:
            L += sh + (own if not o.idx1 else []) + b1 + tA + self.stamp(6) + x0 + wst(0) + tB + b2 + ini + self.stamp(7)
        elif o.sv == 3:
            L += wst(0) + (own if not o.idx1 else []) + x0 + self.stamp(6) + sh + tA + tB + b2 + ini + self.stamp(7)
        L += [f's_lshl_b32 s{S_IDXOFF}, s{HH}, 2', f's_add_u32 s{S_IDXOFF}, s{S_IDXOFF}, 4'] + idxl(0)
        L += [f's_mov_b32 s{S_LOOP}, 0', f's_cmp_lg_u32 s{HH}, 0', 's_cbranch_scc1 L_dnn_h1']
        pro = self.seq(L)

        def mf(tn, tm, par):
            a = acc(tn, tm)
            return f'v_mfma_f32_16x16x32_bf16 {vr(a, 4)}, {vr(WF + 8 * tn + 4 * par, 4)}, {vr(XA + 8 * tm + 4 * par, 4)}, {vr(a, 4)}'
        MM = [mf(tn, j if tn % 2 == 0 else 3 - j, par) for tn in range(5) for j in range(4) for par in range(2)]
        kb = o.bov
        wi = self.winv(W2F, 20, KONE)
        K1 = list(range(132, 140)) + list(range(220, 232))
        KL, SC = 238, 239
        nw_ = 14
        if o.pr:
            wi = self.winv2(W2F, 20, K1, KL, SC)
            nw_ = 30
        trs = []
        for half in range(2):
            def fill(st, w=True, x=True, extra=(), rextra=()):
                D_ = (wst(st + 2) if w else []) + (xst(lambda pc: ST[(st // 3) % 2][pc] + st % 3, st + 1 + half) if x else [])
                return interleave(reads(st) + list(rextra), D_) + list(extra)

            def M(V=(), b=True, last=False, nw=5, g0=0):
                gp = [[] for _ in MM]
                V = list(V)
                n_ = len(MM) - kb - 1
                wt = [2 if isinstance(x, str) and x.startswith(('v_exp', 'v_rcp')) else 1 for x in V]
                cum = 0
                for x, w_ in zip(V, wt):
                    gp[g0 + cum * (n_ - g0) // sum(wt)].append(x)
                    cum += w_
                m = [(x,) + tuple(y) for x, y in zip(MM, gp)]
                return ['s_setprio 0'] * b + m[:len(m) - kb] + (['s_setprio 2'] + ([WaitTag(allbut=('W', nw))] if half == 0 else []) + ['s_barrier'] if b else []) + m[len(m) - kb:] + ['s_setprio 0'] * last
            wF = lambda nw=5, nx=2: [WaitTag(vm_tags=['X0'], allbut=('X', nx), lgkm0=True)] + ([WaitTag(allbut=('W', nw))] if half else []) + ['s_barrier']
            L = [f'L_dnn_h{half}:']
            pre = (xst(lambda pc: T + 4 * pc + 1, 1) if half else []) + wst(1) + tBl + idxl(1)
            wset = pkreads(WP) + self.kconst(KC0, KC1, KONE) + unp(lambda tn: W2F + 4 * tn) + wi if o.w2e else []
            if half == 0:
                L += pre[:o.q0] + wset + [WaitTag(allbut=('W', min(o.q0, 5)), lgkm0=True)] + self.stamp(1) + ['s_barrier'] + self.stamp(2) + pre[o.q0:]
            else:
                L += pre[:o.q1] + [WaitTag(allbut=('W', max(0, min(o.q1 - 2, 5)))), WaitTag(vm_tags=['X0'], lgkm0=True)] + self.stamp(1) + ['s_barrier'] + self.stamp(2) + pre[o.q1:] + wset + ['s_barrier']
            th = pro + self.seq(L)
            L = [f'L_dnn_loop{half}:']
            for st in range(6):
                ex = []
                if st % 3 == 2:
                    ex += idxl(st // 3)
                if st == 4 and half == 1 and not o.w2e:
                    ex += [tuple(vec(L_W2, SRD_W2))]
                if o.padat.startswith('dl') and int(o.padat[2:]) % 6 == st:
                    ex += [('s_memrealtime s[86:87]', 's_waitcnt lgkmcnt(0)', f's_cmp_eq_u32 s{S_LOOP}, {int(o.padat[2:]) // 6}', 's_cselect_b32 s88, s86, s88')]
                if o.stamps and o.itst == 2 and st % 2:
                    ex += [(f's_memtime s[{S_ST}:{S_ST + 1}]', f's_memrealtime s[{S_ST + 2}:{S_ST + 3}]', f's_mul_i32 s{S_TW}, s{S_LOOP}, 3', f's_add_u32 s{S_TW}, s{S_TW}, {8 + st // 2}',
                           f's_min_u32 s{S_TW}, s{S_TW}, 14', 's_waitcnt lgkmcnt(0)',
                           f's_mov_b32 m0, s{S_TW}', f'v_writelane_b32 v252, s{S_ST}, m0', f'v_writelane_b32 v253, s{S_ST + 2}, m0')]
                if o.stamps and o.itst == 1 and st in (1, 4):
                    ex += [(f's_memtime s[{S_ST}:{S_ST + 1}]', f's_memrealtime s[{S_ST + 2}:{S_ST + 3}]', f's_lshl_b32 s{S_TW}, s{S_LOOP}, 1', f's_add_u32 s{S_TW}, s{S_TW}, {6 + st // 3}',
                           f's_max_u32 s{S_TW}, s{S_TW}, 8', 's_waitcnt lgkmcnt(0)',
                           f's_mov_b32 m0, s{S_TW}', f'v_writelane_b32 v252, s{S_ST}, m0', f'v_writelane_b32 v253, s{S_ST + 2}, m0')]
                L += fill(st, extra=ex) + wF() + M([f's_add_u32 s{S_LOOP}, s{S_LOOP}, 1', f's_cmp_lt_u32 s{S_LOOP}, 4'] if st == 5 else [])
            L += [f's_cbranch_scc1 L_dnn_loop{half}']
            body = self.seq(L)
            th += body * 3
            if o.t2:
                E_ = [(acc(0, tm) + h, WF + 2 * tm + h, W2F + h, SUMP + 2 * tm + h) for tm in range(o.t2) for h in range(2)]
                ev = [f'v_mul_f32 v{t}, v{x}, v{x}' for (x, t, w, s_) in E_] + [f'v_fma_f32 v{t}, v{t}, v{KC1}, v{KC0}' for (x, t, w, s_) in E_]
                ev += [f'v_mul_f32 v{t}, v{t}, v{x}' for (x, t, w, s_) in E_] + [f'v_exp_f32 v{t}, v{t}' for (x, t, w, s_) in E_]
                ev += [f'v_fma_f32 v{t}, v{t}, v{w}, v{w}' for (x, t, w, s_) in E_] + [f'v_rcp_f32 v{t}, v{t}' for (x, t, w, s_) in E_]
                ev += [f'v_mul_f32 v{s_}, v{t}, v{x}' for (x, t, w, s_) in E_]
                L = pkreads(WP) + fill(24, w=False, x=half == 0, extra=(self.tlb2(VO[0], vBL) if half == 0 else []) + unp(lambda tn: W2F + 4 * tn)) + wF(0, 2 - 2 * half)
                L += M(self.kconst(KC0, KC1, KONE) + wi, nw=0)
                L += fill(25, w=False, x=False) + wF(0, 0) + M(ev, b=half == 0, last=True, g0=o.t2g)
            else:
                L = fill(24, w=False, x=half == 0, rextra=pkreads(WP) if not o.w2e else [], extra=self.tlb2(VO[0], vBL) if half == 0 else []) + wF(0, 2 - 2 * half)
                L += M(self.kconst(KC0, KC1, KONE) + unp(lambda tn: W2F + 4 * tn) + wi[:nw_] if not o.w2e else [], nw=0)
                L += fill(25, w=False, x=False) + wF(0, 0) + M(wi[nw_:] if not o.w2e else [], b=half == 0, last=True)
            if half == 0:
                L += ['s_branch L_epi']
            trs.append(th + self.seq(L))
        p2 = lambda r: vr(r, 2)
        el = lambda tn, tm, d: (acc(tn, tm) + 2 * d, W2F + 4 * tn + 2 * d, SUMP + 2 * tm)
        L = ['L_epi:'] + self.stamp(3)
        L += [f's_lshl_b32 s{S_T1}, s{S_R}, 11', f's_and_b32 s{S_T3}, s{S_MB}, 3', f's_lshl_b32 s{S_T3}, s{S_T3}, 9', f's_add_u32 s{S_T1}, s{S_T1}, s{S_T3}',
              f's_lshr_b32 s{S_T0}, s{S_MB}, 2', f's_lshl_b32 s{S_T0}, s{S_T0}, 14', f's_add_u32 s{S_T1}, s{S_T1}, s{S_T0}',
              'v_lshlrev_b32 v3, 3, v0', f'v_add_u32 v2, {RB}, v3']
        if o.pr:
            L += self.gelu2([[(acc(tn, tm), (W2F + 4 * tn, W2F + 4 * tn + 2), (K1[4 * tn], K1[4 * tn + 2]), SUMP + 2 * tm) for tm in range(4)] for tn in range(5)], WF, KC0, KC1, KONE)
        else:
            gr = [[el(tn, tm, d) for tm in range(4) if tn or d or tm >= o.t2] for tn in range(5) for d in range(2)]
            L += self.gelu([x for x in gr if x], WF, KC0, KC1, KONE, [SUMP + 2 * tm for tm in range(o.t2)])
        L += self.red4(SUMP, SC if o.pr else None) + [f'ds_write_b32 v{vPc}, v{SUMP}', 's_waitcnt lgkmcnt(0)'] + self.stamp(4) + self.stamp_flush()
        L += [f's_cmp_eq_u32 s{S_WAVE}, 0', 's_cbranch_scc1 L_dpub']
        tr = self.seq(L)
        self.seq(['s_barrier', 's_endpgm'])
        A = 64
        L = ['L_dpub:'] + self.build_srd(SRD_WS, S_WS, 0x10000000) + self.build_srd(SRD_DBG, S_DBG, 256) + self.cleared('L_dclr', [f's_and_b32 s{S_TW}, s2, 7'], vBL) + ['s_barrier'] + self.stamp(17)
        L += [f'ds_read_b64 {vr(A + 2 * qq, 2)}, v2 offset:{qq * 512}' for qq in range(4)]
        L += [f'v_pk_add_f32 {p2(A)}, {p2(A)}, {p2(A + 2)}', f'v_pk_add_f32 {p2(A + 4)}, {p2(A + 4)}, {p2(A + 6)}', f'v_pk_add_f32 {p2(A)}, {p2(A)}, {p2(A + 4)}',
              f'v_and_b32 v{A}, -2, v{A}', f'v_and_b32 v{A + 1}, -2, v{A + 1}',
              f'buffer_store_dwordx2 {vr(A, 2)}, v3, {srd(SRD_WS)}, s{S_T1} offen sc1'] + self.padsig() + ['s_endpgm']
        return [trs[0] + tr + self.seq(L), trs[1] + tr]

    def rem(self):
        o = self.opt
        self.role = 'r'
        vW = [1, 2, 7, 8]
        vX = [11, 12]
        vWD, vCh, vT, VO = 13, [14, 15], 9, 24
        SUMP = 16
        IDX = 32
        XA, WF = 64, 96
        ACC = 160
        BF, W2F = 32, 48
        PK = 224
        KC0, KC1, KONE = 240, 242, 244
        g, i4, q = 246, 247, 248
        S_F = S_IDXOFF
        acc = lambda tn, tm: ACC + (tn * 4 + tm) * 4
        L = ['L_rem:'] + (['s_memrealtime s[82:83]'] if o.amp == 4 else []) + [f's_lshr_b32 s{S_GRP}, s{S_WAVE}, 2', f's_and_b32 s{S_T0}, s2, 7', f's_lshl_b32 s{S_T0}, s{S_T0}, 3', f's_add_u32 s{S_T0}, s{S_T0}, s{S_WAVE}',
             f's_mul_i32 s{S_T0}, s{S_T0}, {64 * 104}', f's_lshl_b32 s{S_XM0}, s{S_WAVE}, 14',
             f'v_lshlrev_b32 v{q}, 4, v0', f'v_lshrrev_b32 v{g}, 4, v0',
             f'v_lshrrev_b32 v{i4}, 3, v0', f'v_mul_u32_u24 v{vWD}, 3328, v{i4}', f'v_and_b32 v{i4}, 2, v{i4}',
             f's_and_b32 s{S_T1}, s{S_WAVE}, 1', f's_lshl_b32 s{S_T1}, s{S_T1}, 2', f'v_or_b32 v{i4}, s{S_T1}, v{i4}',
             f'v_and_b32 v{vT}, 7, v0', f'v_xor_b32 v{i4}, v{i4}, v{vT}', f'v_lshl_add_u32 v{vWD}, v{i4}, 4, v{vWD}',
             f's_mul_i32 s{S_WSOFF}, s{S_WAVE}, {8 * 3328}', f's_add_u32 s{S_WSOFF}, s{S_WSOFF}, 3200',
             f's_lshl_b32 s{S_WMB}, s{S_WAVE}, 10', f's_add_u32 s{S_WMB}, s{S_WMB}, {RWR}',
             's_waitcnt lgkmcnt(0)']
        L += [f's_load_dword s{S_BOUT}, s[{S_BO}:{S_BO + 1}], 0'] + self.build_srd(SRD_IDX, S_IDX, 4096 * 104)
        for u in range(7):
            L += [f's_add_u32 m0, s{S_XM0}, {8192 + u * 1024}', I(f'buffer_load_dwordx4 v{q}, {srd(SRD_IDX)}, s{S_T0} offen lds', tag='I'),
                  f's_add_u32 s{S_T0}, s{S_T0}, 1024']
        L += self.build_srd(SRD_W, S_W1, 1664 * 3328)
        wld = lambda slot: [f's_add_u32 m0, s{S_WMB}, {slot * 8192}', I(f'buffer_load_dwordx4 v{vWD}, {srd(SRD_W)}, s{S_WSOFF} offen lds', tag='W'),
                            f's_add_u32 s{S_WSOFF}, s{S_WSOFF}, {64 * 3328}']
        L += wld(0)
        L += self.build_srd(SRD_WS, S_WS, 0x10000000) + self.build_srd(SRD_DBG, S_DBG, 256) + [f'v_mov_b32 v{XA + k}, -1' for k in range(4)]
        L += [f's_and_b32 s{S_T2}, s2, 7', f's_lshl_b32 s{S_T0}, s{S_T2}, 3', f's_add_u32 s{S_T0}, s{S_T0}, s{S_WAVE}', f's_lshl_b32 s{S_T0}, s{S_T0}, 11', f's_lshl_b32 s{S_T2}, s{S_T2}, 2',
              f'buffer_store_dwordx4 {vr(XA, 4)}, v{q}, {srd(SRD_WS)}, s{S_T0} offen sc1',
              f'buffer_store_dwordx4 {vr(XA, 4)}, v{q}, {srd(SRD_WS)}, s{S_T0} offen offset:1024 sc1']
        L += self.build_srd(SRD_B1, S_B1, 3328) + self.build_srd(SRD_W2, S_W2, 3328) + self.build_srd(SRD_TAB, S_TAB, 100000 * 128)
        L += self.stamp0()
        L += [f'v_xor_b32 v{q}, v{vT}, v{g}', f'v_lshlrev_b32 v{vCh[0]}, 4, v{q}', f'v_xor_b32 v{vCh[1]}, 64, v{vCh[0]}',
              f'v_bfe_u32 v{i4}, v0, 2, 2', f'v_lshl_add_u32 v{q}, v{g}, 3, v{i4}', f'v_lshlrev_b32 v{q}, 7, v{q}',
              f'v_and_b32 v{i4}, 3, v0', f'v_lshl_add_u32 v{q}, v{i4}, 3, v{q}', f'v_add_u32 v{q}, {RWR}, v{q}',
              f'v_bfe_u32 v{i4}, v0, 3, 2', f'v_lshl_add_u32 v{vW[0]}, v{i4}, 5, v{q}']
        L += [f'v_xor_b32 v{vW[i]}, {32 * i}, v{vW[0]}' for i in range(1, 4)]
        L += [f'v_and_b32 v{q}, 15, v0', f'v_lshlrev_b32 v{q}, 7, v{q}',
              f'v_bfe_u32 v{i4}, v0, 1, 3', f'v_xor_b32 v{i4}, v{i4}, v{g}', f'v_lshl_add_u32 v{q}, v{i4}, 4, v{q}',
              f'v_add_u32 v{vX[0]}, s{S_XM0}, v{q}', f'v_xor_b32 v{vX[1]}, 64, v{vX[0]}',
              f'v_lshrrev_b32 v{i4}, 3, v0', f'v_lshl_add_u32 v{q}, v{vT}, 3, v{i4}', f'v_mul_u32_u24 v{q}, 104, v{q}', f'v_add_u32 v{q}, s{S_XM0}, v{q}']
        S_OO = S_N0
        L += self.build_srd(SRD_OUT, S_OUT, 8192) + [
             f's_and_b32 s{S_OO}, s2, 7', f's_lshl_b32 s{S_T0}, s{S_OO}, 14', f's_lshl_b32 s{S_T1}, s{S_WAVE}, 8', f's_add_u32 s{S_T0}, s{S_T0}, s{S_T1}',
             f's_add_u32 s{S_T1}, s{S_T0}, 4096', f's_add_u32 s{S_T3}, s{S_T0}, 8192',
             f's_lshl_b32 s{S_OO}, s{S_OO}, 3', f's_add_u32 s{S_OO}, s{S_OO}, s{S_WAVE}', f's_lshl_b32 s{S_OO}, s{S_OO}, 7',
             'v_lshlrev_b32 v3, 2, v0', 'v_lshlrev_b32 v4, 1, v0',
             f's_lshl_b32 s{S_TW}, s{S_WAVE}, 6', f'v_add_u32 v5, s{S_TW}, v0', f'v_cmp_lt_u32 vcc, {(439 if o.sym else 483) + o.n4}, v5', 'v_add_u32 v5, 4096, v3', 'v_mov_b32 v6, 0x7f000000',
             'v_cndmask_b32 v5, v6, v5, vcc']
        L += self.kconst(KC0, KC1, KONE, o.rpr) + [f'v_mov_b32 v{r}, 0' for r in range(ACC, ACC + 64)] + ['s_waitcnt vmcnt(0) lgkmcnt(0)', f's_lshl_b32 s{S_BOUT}, s{S_BOUT}, 16']
        L += [f'ds_read_b64 {vr(IDX + 2 * k, 2)}, v{q} offset:{8192 + 8 * k}' for k in range(13)]

        def xld(src, slot, h=None):
            c = [tuple(f'v_add_u32_dpp v{VO + pc}, v{src}, v{vCh[pc % 2]} row_newbcast:{8 * hh + pc} row_mask:0xf bank_mask:{hex(3 << (2 * hh))}'
                       for hh in range(2) for pc in range(4 * k, 4 * k + 4)) for k in range(2)]
            d = [(f's_add_u32 m0, s{S_XM0}, {slot * 8192 + pc * 1024}',
                  I(f'buffer_load_dwordx4 v{VO + pc}, {srd(SRD_TAB)}, 0 offen lds', tag='X')) for pc in range(8)]
            return c[:1] + d[:4] + c[1:] + d[4:] if h is None else c[h:h + 1] + d[4 * h:4 * h + 4]
        L += [f'v_mov_b32 v{VO + pc}, 0' for pc in range(8)] + [f'v_mov_b32 v{IDX + k}, 0x7f000000' for k in (26, 27)]
        L += [f'v_lshlrev_b32 v{IDX}, 7, v{IDX}'] + xld(IDX, 0)
        L += wld(1) + [f'v_lshlrev_b32 v{IDX + k}, 7, v{IDX + k}' for k in range(25, 0, -1)] + xld(IDX + 1, 1) + wld(2)
        L += [f'v_lshlrev_b32 v{q}, 3, v{g}']

        rdx = lambda fp, h: [f'ds_read_b128 {vr(XA + 16 * h + 8 * t + 4 * par, 4)}, v{vX[par]} offset:{fp * 8192 + (2 * h + t) * 2048}' for t in (1, 0) for par in (1, 0)]
        rdw = lambda fp: [f'ds_read_b64_tr_b16 {vr(WF + 32 * fp + 8 * tn + 4 * par + 2 * rd, 2)}, v{vW[tn]} offset:{fp * 8192 + par * 4096 + rd * 512}'
                          for tn in range(4) for par in range(2) for rd in range(2)]

        def mm(fp, h):
            return [f'v_mfma_f32_16x16x32_bf16 {vr(acc(tn, 2 * h + t), 4)}, {vr(WF + 32 * fp + 8 * tn + 4 * par, 4)}, {vr(XA + 16 * h + 8 * t + 4 * par, 4)}, {vr(acc(tn, 2 * h + t), 4)}'
                    for tn in range(4) for t in range(2) for par in range(2)]
        L += [f's_mov_b32 s{S_F}, 3', f'v_mov_b32 v{vT}, v{IDX + 2}'] + list(xld(vT, 0, 0)[0])
        L += [WaitTag(allbut=('X', 12)), 's_barrier'] + self.stamp(2) + rdx(0, 0) + rdw(0)
        L += [f's_cmp_lg_u32 s{S_WAVE}, 7', 's_cbranch_scc1 L_rem_loop', 's_mov_b64 exec, 1',
              ] + (['s_or_b32 s86, s88, 1', 'v_mov_b32 v10, s86'] if o.gs else []) + [
              f'buffer_store_dword v{10 if o.gs else KC0}, v{vCh[0]}, {srd(SRD_DBG)}, s{S_T2} offen offset:128 sc1', 's_mov_b64 exec, -1']
        tr = self.seq(L)

        def phase(M, R, Dm, V, V2=()):
            gp = [[] for _ in M]
            for k, x in enumerate(R):
                gp[k * o.rrd // max(len(R), 1)].append(x)
            for k, x in enumerate(Dm):
                gp[1 + k * 15 // len(Dm)].append(x)
            v0 = o.rrd if R else 0
            for k, x in enumerate(V):
                gp[v0 + k * (16 - v0) // len(V)].append(x)
            for k, x in enumerate(V2):
                gp[3 + k * 12 // len(V2)].append(x)
            return [(m,) + tuple(g_) for m, g_ in zip(M, gp)]
        assert not o.rpr
        ub = [x for k in range(8) for x in (f'v_lshlrev_b32 v{BF + 2 * k}, 16, v{PK + k}', f'v_and_b32 v{BF + 2 * k + 1}, 0xffff0000, v{PK + k}')]
        uw = [x for k in range(8) for x in (f'v_lshlrev_b32 v{W2F + 2 * k}, 16, v{PK + 8 + k}', f'v_and_b32 v{W2F + 2 * k + 1}, 0xffff0000, v{PK + 8 + k}')]
        wi = self.winv(W2F, 16, KONE)
        badd = lambda h: [f'v_add_f32 v{acc(tn, 2 * h + t) + r}, v{BF + 4 * tn + r}, v{acc(tn, 2 * h + t) + r}' for tn in range(4) for t in range(2) for r in range(4)]
        vld = [f'buffer_load_dwordx2 {vr(PK + 2 * tn, 2)}, v{q}, {srd(SRD_B1)}, 0 offen offset:{3200 + 32 * tn}' for tn in range(4)]
        vld += [f'buffer_load_dwordx2 {vr(PK + 8 + 2 * tn, 2)}, v{q}, {srd(SRD_W2)}, 0 offen offset:{3200 + 32 * tn}' for tn in range(4)]

        def field(fp, last):
            L = [WaitTag(allbut=('W', 1)), WaitTag(allbut=('X', 0 if last and fp else 8))] + ([] if last and fp else ['s_barrier'])
            if fp == 1 and not last:
                L += [f'v_xor_b32 v{vW[i]}, 16384, v{vW[i]}' for i in range(4)]
            sx = (f's_xor_b32 s{S_WMB}, s{S_WMB}, 16384',)
            wl = [sx + tuple(wld(1)) + sx] if fp == 0 else [tuple(wld(0)) + sx]
            rw = rdw(1 - fp)
            mv = [(f's_set_gpr_idx_on s{S_F}, gpr_idx(SRC0)', 's_nop 0', f'v_mov_b32 v{vT}, v{IDX}', 's_set_gpr_idx_off', f's_add_u32 s{S_F}, s{S_F}, 1')]
            if not last:
                L += phase(mm(fp, 0), rdx(fp, 1) + rw[:8], xld(vT, fp, 0)[1:], list(xld(vT, fp, 1)[0]))
                L += [WaitTag(allbut=('X', 8))]
                L += phase(mm(fp, 1), rdx(1 - fp, 0) + rw[8:], xld(vT, fp, 1)[1:] + wl, mv + list(xld(vT, fp, 0)[0]))
            elif not o.rv:
                if fp == 0:
                    L += phase(mm(fp, 0), rdx(fp, 1) + rw[:8], vld + [f'buffer_load_dword v255, v3, {srd(SRD_OUT)}, s{S_OO} offen'], []) + [WaitTag(allbut=('X', 4))]
                    L += phase(mm(fp, 1), rdx(1 - fp, 0) + rw[8:], [], [])
                else:
                    L += phase(mm(fp, 0), rdx(fp, 1), [], [], uw + ub[:6]) + phase(mm(fp, 1), [], [], ub[6:] + wi[:o.rwi])
            elif fp == 0:
                L += phase(mm(fp, 0), rdx(fp, 1) + rw[:8], [], [], ub) + [WaitTag(allbut=('X', 4))]
                L += phase(mm(fp, 1), rdx(1 - fp, 0) + rw[8:], [], [], uw)
            else:
                L += phase(mm(fp, 0), rdx(fp, 1), [], [], badd(1)) + phase(mm(fp, 1), [], [], [], badd(0))
            return L
        L = ['L_rem_loop:'] + field(0, False) + ([f's_cmp_lg_u32 s{S_F}, 26', 's_cbranch_scc1 L_rnv'] if o.rv else [])
        bodya = self.seq(L)
        bodyv = self.seq(vld + [f'buffer_load_dword v255, v3, {srd(SRD_OUT)}, s{S_OO} offen']) if o.rv else []
        L = ['L_rnv:'] + field(1, False) + [f's_cmp_lt_u32 s{S_F}, 27', 's_cbranch_scc1 L_rem_loop']
        L = [x for x in flat(L) if not any((x.text if isinstance(x, I) else x).startswith(d) for d in o.rdrop.split(',') if d)]
        body = self.seq(L)
        body2 = self.seq(field(0, True) + field(1, True))
        el = lambda tn, tm, d: (acc(tn, tm) + 2 * d, W2F + 4 * tn + 2 * d, SUMP + 2 * tm)
        A = 128
        pld = [f'buffer_load_dword v{A + k}, v3, {srd(SRD_WS)}, s{(S_T0, S_T1, S_T3)[k // 2]} offen offset:{(k % 2) * 2048} sc1' for k in range(6)]
        pld += [f'buffer_load_dword v{A + 6}, v5, {srd(SRD_WS)}, s{S_T3} offen sc1']
        L = self.stamp(3) + ['L_repi:'] + (wi if o.rv else wi[o.rwi:] + [f'v_pk_add_f32 {vr(acc(tn, tm) + 2 * d, 2)}, {vr(acc(tn, tm) + 2 * d, 2)}, {vr(BF + 4 * tn + 2 * d, 2)}'
                                                                        for tn in range(4) for tm in range(4) for d in range(2)])
        ge = self.gelu([[el(tn, tm, d) for tm in range(4)] for tn in range(4) for d in range(2)], XA, KC0, KC1, KONE)
        early = o.epoll and o.amp not in (2, 3)
        cut = len(ge) - o.epoll * len(ge) // 8
        L += ge[:cut] + (pld if early else []) + ge[cut:]
        L += self.red4(SUMP) + [f'v_add_f32 v{SUMP}, s{S_BOUT}, v{SUMP}', 'L_rclr:'] + self.stamp(4) + self.padsig()
        gsl = []
        if o.gs:
            gsl = [f'buffer_load_dword v10, v3, {srd(SRD_DBG)}, 0 offen offset:128 sc1', 's_waitcnt vmcnt(0)', 's_mov_b32 s83, 0']
            for k in range(8):
                gsl += [f'v_readlane_b32 s82, v10, {k}', 's_nop 1', 's_sub_u32 s82, s82, s88', 's_min_i32 s83, s83, s82']
            gsl += ['s_max_i32 s83, s83, -1000', 's_add_u32 s88, s88, s83']
        tk = ['s_memrealtime s[86:87]', 's_waitcnt lgkmcnt(0)'] + gsl + ['s_sub_u32 s89, s86, s88', 's_min_u32 s89, s89, 10000', 's_lshl_b32 s89, s89, 3']
        if o.amp == 2:
            L += [f's_mov_b32 s{S_LOOP}, 0x40000', 'L_polla:', f's_sub_u32 s{S_LOOP}, s{S_LOOP}, 1', 's_cbranch_scc1 L_pollax']
            L += [f'buffer_load_dword v{A + k}, v3, {srd(SRD_WS)}, s{(S_T0, S_T1, S_T3)[k // 2]} offen offset:{(k % 2) * 2048} sc1' for k in range(5)]
            L += [f'v_max3_u32 v{A + 8}, v{A}, v{A + 1}, v{A + 2}', f'v_max3_u32 v{A + 8}, v{A + 3}, v{A + 4}, v{A + 8}',
                  f'v_cmp_eq_u32 vcc, -1, v{A + 8}', 's_cbranch_vccnz L_polla', 'L_pollax:']
        if o.amp in (2, 3):
            L += tk
        L += [f's_mov_b32 s{S_LOOP}, 0x40000'] + (['s_branch L_pchk'] if early else [])
        tl1 = self.seq(L)
        tl2 = self.seq(['L_poll:', f's_sub_u32 s{S_LOOP}, s{S_LOOP}, 1', 's_cbranch_scc1 L_pollx'] + pld)
        L = ['L_pchk:', 's_waitcnt vmcnt(0)']
        L += [f'v_max3_u32 v{A + 8}, v{A}, v{A + 1}, v{A + 2}', f'v_max3_u32 v{A + 9}, v{A + 3}, v{A + 4}, v{A + 5}', f'v_max3_u32 v{A + 8}, v{A + 8}, v{A + 9}, v{A + 6}',
              f'v_cmp_eq_u32 vcc, -1, v{A + 8}', 's_cbranch_vccnz L_poll', 'L_pollx:']
        L += [f'v_add_f32 v{A}, v{A}, v{A + 1}', f'v_add_f32 v{A + 2}, v{A + 2}, v{A + 3}', f'v_add_f32 v{A + 4}, v{A + 4}, v{A + 5}',
              f'v_add_f32 v{SUMP}, v{SUMP}, v{A + 6}', f'v_add_f32 v{A}, v{A}, v{A + 2}', f'v_add_f32 v{A + 4}, v{A + 4}, v{SUMP}', f'v_add_f32 v{A}, v{A}, v{A + 4}',
              f'v_cvt_pk_bf16_f32 v{A}, v{A}, v{A}']
        if o.amp and o.amp < 4:
            L += (tk if o.amp == 1 else []) + [
                  'L_ampspin:', 's_memrealtime s[86:87]', 's_waitcnt lgkmcnt(0)', 's_sub_u32 s86, s86, s88', 's_cmp_lt_u32 s86, s89', 's_cbranch_scc1 L_ampspin']
        if o.padat:
            L += ['L_padspin:', f'buffer_load_dword v7, v8, {srd(SRD_DBG)}, 0 offen sc1', 's_waitcnt vmcnt(0)', 's_memrealtime s[86:87]',
                  'v_readfirstlane_b32 s88, v7', 's_waitcnt lgkmcnt(0)', 's_cmp_eq_u32 s88, 0', 's_cbranch_scc1 L_padspin'] + (['s_not_b32 s88, s88'] if o.padmin else []) + [
                  's_sub_u32 s86, s86, s88', 's_cmp_lt_i32 s86, 6000', 's_cbranch_scc1 L_padspin'] if o.amp != 4 else [
                  f's_mov_b32 s{S_LOOP}, 0x40000', 'L_padspin:', f's_sub_u32 s{S_LOOP}, s{S_LOOP}, 1', 's_cbranch_scc1 L_padx',
                  f'buffer_load_dword v7, v8, {srd(SRD_DBG)}, 0 offen sc1', 's_waitcnt vmcnt(0)', 's_memrealtime s[86:87]',
                  'v_readfirstlane_b32 s88, v7', 's_waitcnt lgkmcnt(0)'] + (['s_not_b32 s88, s88'] if o.padmin else []) + [
                  's_sub_u32 s88, s88, s82', 's_min_u32 s88, s88, 5000', 's_lshl_b32 s88, s88, 3', 's_add_u32 s88, s88, 5000',
                  's_sub_u32 s86, s86, s82', 's_cmp_lt_u32 s86, s88', 's_cbranch_scc1 L_padspin', 'L_padx:']
        L += [f'buffer_store_short v{A}, v4, {srd(SRD_OUT)}, s{S_OO} offen{o.ofl}'] + self.stamp(5) + self.stamp_flush() + ['s_endpgm']
        return [tr + (bodya + body) * 3 + bodya + bodyv + body + body2 + tl1 + ([] if early else tl2) + self.seq(L)]

    def cin(self):
        o = self.opt
        self.role = 'c'
        cw = S_CW
        S_BCUR, S_BD, S_EXP, S_EXPC, S_PREV, S_SC, S_PH = 74, 75, 48, 49, 50, 51, 97
        S_CHK = S_M26
        vFA, vFR, vOne, vF, vFG, vFGa = 1, 2, 3, 4, 5, 6
        vRaw, vLin, vLinB, vXw, vX1, vX2, vSh, vAcc, vOr, vSI, vXi, vC16, vPWL, vPXL, PXR = range(7, 22)
        FT, XI, aD, aS, aLc, aC = 22, 24, 28, 29, 30, 31
        RAW, X, RZ, D = 32, 40, 52, 68
        WA, WB, WC, WS_, WL = 84, 128, 172, 216, 240
        Da, Db, Dc, Ds = D, D + 4, D + 8, D + 12
        T = 40
        half, i32, t3, t4, t5, vg, vm = T + 1, T + 2, T + 3, T + 4, T + 5, T + 6, T + 7
        vStg = 48
        GB = 49
        vMx, vWr, vL6, vL, vWu, vWo = range(62, 68)
        vDl = 247
        AD = 68
        vA3, vBs0, vBs1a, vBs1b, vUw, vV2w, vE, V3T = 240, 241, 242, 243, 244, 245, 246, 81
        BALL, UP, AFR, DALL = 84, 84, 132, 140
        BT, SUM, OUT = 216, 84, 132
        XJ = 204
        F_W3, F_W2, F_W1, F_PEEL, F_M, F_U, F_V3, F_XB = 0, 4, 8, 12, 16, 24, 32, 36
        nsync = [0]

        def sig(off, A=vFA, **kw):
            return [WaitTag(lgkm0=True, **kw), f'ds_add_u32 v{A}, v{vOne} offset:{off}']

        def wait(off, tgt, R=vFR):
            nsync[0] += 1
            lab = f'L_csync{nsync[0]}'
            return [f'{lab}:', f'ds_read_b32 v{vF}, v{R} offset:{off}', 's_waitcnt lgkmcnt(0)',
                    f'v_cmp_gt_u32 vcc, {tgt}, v{vF}', f's_cbranch_vccnz {lab}']

        def dppred(op, r):
            return [f'{op}_dpp v{r}, v{r}, v{r} {ctl} row_mask:{rm} bank_mask:0xf'
                    for (ctl, rm) in (('row_shr:1', '0xf'), ('row_shr:2', '0xf'), ('row_shr:4', '0xf'), ('row_shr:8', '0xf'),
                                      ('row_bcast:15', '0xa'), ('row_bcast:31', '0xc'))]

        def absmax(dst, regs):
            c = [f'v_max3_f32 v{dst}, abs(v{regs[0]}), abs(v{regs[1]}), abs(v{regs[2]})']
            k = 3
            while k < len(regs):
                b = regs[k + 1] if k + 1 < len(regs) else regs[k]
                c.append(f'v_max3_f32 v{dst}, v{dst}, abs(v{regs[k]}), abs(v{b})')
                k += 2
            return c

        def waitmax(off, dst_e, top, R=vFR):
            nsync[0] += 1
            lab = f'L_csync{nsync[0]}'
            return [f'{lab}:', f'ds_read_b64 {vr(T, 2)}, v{R} offset:{off}', 's_waitcnt lgkmcnt(0)',
                    f'v_cmp_gt_u32 vcc, 4, v{T}', f's_cbranch_vccnz {lab}',
                    f'v_readfirstlane_b32 s{dst_e}, v{T + 1}',
                    f's_lshr_b32 s{dst_e}, s{dst_e}, 23', f's_sub_i32 s{dst_e}, {top}, s{dst_e}', f's_min_i32 s{dst_e}, s{dst_e}, 40']

        def postmax(r, off, **kw):
            return dppred('v_max_u32', r) + [f'v_readlane_b32 s{S_T0}, v{r}, 63', f'v_mov_b32 v{r}, s{S_T0}',
                                             f'ds_max_u32 v{vFA}, v{r} offset:{off + 4}', WaitTag(**kw), f'ds_add_u32 v{vFA}, v{vOne} offset:{off}']
        setsc = lambda e: [f's_add_i32 s{S_SC}, s{e}, 127', f's_lshl_b32 s{S_SC}, s{S_SC}, 23']

        S_C, S_DYN, S_ST0, S_TK = S_R, S_MB, 98, 99
        NST = 40 if o.sym else 44
        PB = 11 * NST
        assert 2 * (512 - PB) - o.n4 <= (88 if o.sym else 44)
        vFl, vTk, vZ = 249, 250, 251
        S_HALF = S_STG9
        L = ['L_cin:', f's_and_b32 s{S_T0}, s{S_MB}, 3', f's_mul_i32 s{S_T0}, s{S_T0}, 3', f's_add_u32 s{S_C}, s{S_T0}, s{S_R}',
             f's_sub_u32 s{S_C}, s{S_C}, 6',
             f's_and_b32 s{cw}, s{S_WAVE}, 3', f's_lshr_b32 s{S_GRP}, s{S_WAVE}, 2',
             f's_lshl_b32 s{S_GW}, s{S_C}, 3', f's_add_u32 s{S_GW}, s{S_GW}, s{S_WAVE}',
             f's_mul_i32 s{S_T0}, s{S_GW}, {10 * 128}',
             f'v_min_u32 v{T}, 9, v0', f'v_lshlrev_b32 v{T}, 7, v{T}',
             f'v_lshlrev_b32 v{vStg}, 4, v0',
             f's_lshl_b32 s{S_STG}, s{cw}, 10',
             f's_cmp_eq_u32 s{cw}, 2', f's_cselect_b64 s[{S_EX}:{S_EX + 1}], 0x3fffff, -1',
             f's_cmp_eq_u32 s{cw}, 3', f's_cselect_b32 s{S_STG9}, 0, {8 * 4096}',
             f's_add_u32 s{S_STG9}, s{S_STG9}, s{S_STG}',
             f's_mul_i32 s{S_T1}, s{S_C}, 2979', f's_lshr_b32 s{S_T1}, s{S_T1}, 6', f's_mul_i32 s{S_ST0}, s{S_C}, {NST}',
             f's_and_b32 s{S_T2}, s2, 7', f's_add_u32 s{S_RC}, s{S_ST0}, s{S_WAVE}', f's_lshl_b32 s{S_RC}, s{S_RC}, 2',
             f's_lshl_b32 s{S_ST0}, s{S_T2}, 14', f's_add_u32 s{S_RC}, s{S_RC}, s{S_ST0}', f's_add_u32 s{S_RC}, s{S_RC}, {5 * 2048}', f's_mul_i32 s{S_ST0}, s{S_C}, {NST}', f's_lshl_b32 s{S_PX}, s{S_T2}, 9', f's_add_u32 s{S_SAMP}, s{S_PX}, s{S_ST0}', f's_add_u32 s{S_PX}, s{S_PX}, s{S_T1}',
             f's_add_u32 s{S_SAMP}, s{S_SAMP}, s{S_WAVE}', f's_mul_i32 s{S_SAMP}, s{S_SAMP}, 104',
] + ([f's_lshl_b32 s{S_ST0}, s{S_C}, 2', f's_add_u32 s{S_ST0}, s{S_ST0}, s{S_WAVE}', f's_add_u32 s{S_ST0}, s{S_ST0}, s{S_T2}', f's_and_b32 s{S_ST0}, s{S_ST0}, 7'] if not o.sym else [
             f's_add_u32 s{S_ST0}, s{S_WAVE}, s{S_T2}', f's_and_b32 s{S_ST0}, s{S_ST0}, 3', f's_lshl_b32 s{S_TK}, s{S_GRP}, 2', f's_add_u32 s{S_ST0}, s{S_ST0}, s{S_TK}']) + [
             f's_mul_i32 s{S_ST0}, s{S_ST0}, {16384 + o.shs}', f's_add_u32 s{S_ST0}, s{S_ST0}, {6 * 2048}',
] + ([f's_sub_u32 s{S_LOOP}, 6, s{S_GRP}', f's_lshl_b32 s{S_TK}, s{S_GRP}, 1'] if not o.sym else [f's_mov_b32 s{S_LOOP}, 5', f's_mov_b32 s{S_TK}, 2']) + [f's_mov_b32 s{S_DYN}, -1',
             f'v_lshrrev_b32 v{t3}, 3, v0', f'v_min_u32 v{t3}, 6, v{t3}', f'v_lshlrev_b32 v{vXi}, 4, v{t3}',
             f's_mul_i32 s{S_T2}, s{S_T2}, 88', f's_add_u32 s{S_T2}, s{S_GW}, s{S_T2}', f's_mov_b32 s{S_T3}, 704',
             f'v_mov_b32 v{t4}, s{S_T2}', f'v_mad_u32_u24 v{vPWL}, v0, s{S_T3}, v{t4}',
             f's_mul_i32 s{S_T2}, s{S_GW}, 104', f's_sub_u32 s{S_T2}, s{S_T2}, {13 * 26 - 25}',
             f'v_min_u32 v{t4}, {12 + o.pfr}, v0', f'v_mul_u32_u24 v{t5}, 26, v{t4}', f'v_add_u32 v{t5}, s{S_T2}, v{t5}',
             f'v_cmp_lt_u32 vcc, 12, v{t4}', f'v_cndmask_b32 v{vPWL}, v{vPWL}, v{t5}, vcc', f'v_lshlrev_b32 v{vPWL}, 7, v{vPWL}',
             f's_mov_b32 s{S_PW}, {o.pfe0 * 832 * 128}',
             f'v_mov_b32 v{vFR}, {L_FLG}', f'v_lshlrev_b32 v{vFA}, 20, v0', f'v_add_u32 v{vFA}, {L_FLG}, v{vFA}',
             f'v_and_b32 v{t4}, 7, v0', f'v_lshlrev_b32 v{vC16}, 4, v{t4}', f'v_and_b32 v{t4}, 15, v0', f'v_lshl_add_u32 v{t4}, v{t4}, 2, v{vFR}',
             f'v_mov_b32 v{vOne}, 0', f'ds_write_b32 v{t4}, v{vOne}',
             f'v_lshrrev_b32 v{half}, 5, v0', f'v_and_b32 v{i32}, 31, v0',
             's_waitcnt lgkmcnt(0)', f'v_mov_b32 v{vOne}, 1']
        L += self.tlb1(t5, 255)
        L += self.build_srd(SRD_CIN, S_CIN, 105456)
        L += [f'buffer_load_dword v255, v{T}, {srd(SRD_CIN)}, s{S_T0} offen'] if o.coop else []
        L += self.build_srd(SRD_W, S_W1, 1664 * 3328)

        def pfw():
            if o.nopf & 4:
                return []
            return [f's_mov_b64 exec, {((1 << (13 + o.pfr)) - 1) & ~(0x1fff if o.nopf & 1 else 0)}', f'buffer_load_dword v255, v{vPWL}, {srd(SRD_W)}, s{S_PW} offen', 's_mov_b64 exec, -1',
                    f's_add_u32 s{S_PW}, s{S_PW}, {352 * 3328}']
        L += ['s_barrier'] + (pfw() if o.pf1 in (0, 3) else [])
        L += self.build_srd(SRD_IDX, S_IDX, 4096 * 104)

        def pfx_a():
            return [] if o.nopf & 2 else [f'buffer_load_dword v{PXR}, v{vPXL}, {srd(SRD_IDX)}, s{S_PX} offen',
                    f's_cmp_eq_u32 s{S_PX}, s{S_PXE}', f's_cselect_b32 s{S_PXE}, 0x7000000, s{S_PXE}',
                    f's_cselect_b32 s{S_PX}, 0x7000000, s{S_PX}',
                    f's_add_u32 s{S_PX}, s{S_PX}, 24', f's_min_u32 s{S_PX}, s{S_PX}, s{S_PXE}']

        def pfx_b():
            return [] if o.nopf & 2 else [f'v_lshlrev_b32 v{PXR}, 7, v{PXR}', f'buffer_load_dword v255, v{PXR}, {srd(SRD_TAB)}, 0 offen']

        def xidx(XI=XI, off=0, adv=True):
            c = [f'buffer_load_dwordx4 {vr(XI, 4)}, v{vXi}, {srd(SRD_IDX)}, s{S_SAMP} offen offset:{off}']
            if adv:
                c.append(f's_add_u32 s{S_SAMP}, s{S_SAMP}, {8 * 104}')
            return c

        def xdma(XI=XI, lo=0):
            c = []
            for u in range(4):
                if u == 2:
                    c += ['s_mov_b32 exec_hi, 0x0000ffff']
                c += [f'v_lshl_add_u32 v{XI + u}, v{XI + u}, 7, v{vC16}']
                if u == 3:
                    c += ['s_mov_b32 exec_lo, 0', 's_mov_b32 exec_hi, 0xffff0000', f'v_mov_b32 v{XI + 3}, v{XI + 1}', f'v_mov_b32 v{XI + 2}, v{XI + 1}',
                          's_mov_b32 exec_hi, 0x00ff0000', f'v_mov_b32 v{XI + 2}, v{XI}', 's_mov_b64 exec, -1']
            for u in range(4):
                c += [f's_add_u32 m0, s{S_BCUR}, {u * XPI + lo}']
                if u == 3:
                    c += ['s_mov_b32 exec_hi, 0x00ffffff']
                c.append(I(f'buffer_load_dwordx4 v{XI + u}, {srd(SRD_TAB)}, 0 offen lds', tag='XB'))
                if u == 3:
                    c += ['s_mov_b32 exec_hi, -1']
            return c
        wco = self.build_srd(SRD_WCO, S_WCO, 156) + [f's_mov_b32 m0, {L_WCO}', 's_mov_b64 exec, 0x7ff',
              I(f'buffer_load_dwordx4 v{vStg}, {srd(SRD_WCO)}, 0 offen lds', tag='STG3'),
              's_mov_b64 exec, -1']
        L += self.stamp0()

        def stage(dst, goff, tag):
            sh = o.w1s and dst == A1
            st = []
            for m in range(8):
                st.append((f's_add_u32 m0, s{S_STG}, {dst + m * 4096}', f's_add_u32 s{S_TW}, s{S_STG}, {goff + m * 4096 - (4 if sh and m >= 5 else 0)}',
                           I(f'buffer_load_dwordx4 v{vStX if sh and m == 5 else vStg}, {srd(SRD_CIN)}, s{S_TW} offen lds', tag=tag)))
            g9 = (f's_add_u32 s{S_TW}, s{S_STG9}, {goff}',) if not sh else (f's_lshr_b32 s{S_TW}, s{S_STG9}, 13', f's_sub_u32 s{S_TW}, s{S_STG9}, s{S_TW}')
            st.append((f's_add_u32 m0, s{S_STG9}, {dst}',) + g9 + (f's_mov_b64 exec, s[{S_EX}:{S_EX + 1}]',
                       I(f'buffer_load_dwordx4 v{vStg}, {srd(SRD_CIN)}, s{S_TW} offen lds', tag=tag),
                       's_mov_b64 exec, -1'))
            return st
        vStX = 248
        if o.w1s:
            L += [f'v_add_u32 v{vStX}, s{S_STG}, v{vStg}', f'v_cmp_gt_u32 vcc, {16 * 1352 - 5 * 4096}, v{vStX}', f'v_cndmask_b32 v{vStX}, 0, 4, vcc',
                  f'v_add_u32 v{vStX}, v{vStX}, v{vStg}']

        L += [f's_cmp_lg_u32 s{S_GRP}, 0', 's_cbranch_scc1 L_g1a']
        c0 = self.seq(L)
        sA, sB = (('1', A1, 0, F_W1), ('2', A2, 35152, F_W2)) if o.w1first else (('2', A2, 35152, F_W2), ('1', A1, 0, F_W1))
        stA, stB = stage(sA[1], sA[2], 'STG' + sA[0]), stage(sB[1], sB[2], 'STG' + sB[0])
        stg = [wco + stage(A3, 70304, 'STG3') + stA[:o.sigat],
               sig(F_W3, vm_tags=['STG3']) + self.stamp(1) + stA[o.sigat:] + stB[:o.sig2],
               sig(sA[3], vm_tags=['STG' + sA[0]]) + stB[o.sig2:]]
        g0a = self.seq(stg[:o.ccpos] + ['s_branch L_addrc'])
        L = ['L_g1a:', 's_setprio 1',
             f'v_bfe_u32 v{t3}, v0, 2, 2', f'v_lshl_add_u32 v{t3}, v{half}, 3, v{t3}',
             f'v_bfe_u32 v{t4}, v0, 4, 1', f'v_lshlrev_b32 v{t4}, 5, v{t4}',
             f'v_and_b32 v{t5}, 3, v0', f'v_lshl_add_u32 v{t4}, v{t5}, 3, v{t4}',
             f'v_lshl_add_u32 v{vA3}, v{t3}, 6, v{t4}', f'v_add_u32 v{vA3}, {V3OFF}, v{vA3}',
             f's_lshl_b32 s{S_T0}, s{cw}, 6', f's_add_u32 s{S_T0}, s{S_T0}, {A2}',
             f'v_add_u32 v{t4}, s{S_T0}, v{t4}',
             f'v_mul_u32_u24 v{t5}, 1352, v{t3}', f'v_add_u32 v{vBs0}, v{t4}, v{t5}',
             f'v_add_u32 v{t5}, 16, v{t3}', f'v_min_u32 v{t5}, 25, v{t5}',
             f'v_mul_u32_u24 v{t5}, 1352, v{t5}', f'v_add_u32 v{vBs1a}, v{t4}, v{t5}',
             f'v_add_u32 v{t5}, 20, v{t3}', f'v_min_u32 v{t5}, 25, v{t5}',
             f'v_mul_u32_u24 v{t5}, 1352, v{t5}', f'v_add_u32 v{vBs1b}, v{t4}, v{t5}',
             f's_lshl_b32 s{S_T0}, s{cw}, 5', f'v_add_u32 v{vE}, s{S_T0}, v{i32}',
             f'v_mul_u32_u24 v{t3}, 52, v{vE}', f'v_lshl_add_u32 v{t3}, v{half}, 3, v{t3}',
             f'v_add_u32 v{vUw}, {A3}, v{t3}',
             f'v_lshlrev_b32 v{t3}, 1, v{vE}', f'v_add_u32 v{vV2w}, {V2OFF}, v{t3}',
             f'v_mov_b32 v{BT}, 0', f'v_mov_b32 v{BT + 1}, 0',
             f'v_lshlrev_b32 v{t3}, 3, v0', f'v_add_u32 v{t4}, {V3OFF}, v{t3}',
             f's_lshl_b32 s{S_T0}, s{cw}, 9', f'v_add_u32 v{t4}, s{S_T0}, v{t4}', f'ds_write_b64 v{t4}, {vr(BT, 2)}']
        L += [f'v_lshl_add_u32 v{t3}, v{half}, 7, v{vE}', f's_mov_b32 s{S_T1}, 2521', f's_mov_b32 s{S_T2}, {V3OFF}']
        for p_ in range(3):
            L += [f'v_mul_u32_u24 v{t4}, s{S_T1}, v{t3}', f'v_lshrrev_b32 v{t4}, 16, v{t4}',
                  f'v_mad_u32_u24 v{t4}, v{t4}, 12, s{S_T2}', f'v_lshl_add_u32 v{AD + p_}, v{t3}, 1, v{t4}']
            if p_ < 2:
                L += [f'v_add_u32 v{t3}, 256, v{t3}']
        L += [f'v_mov_b32 v{t4}, 676', f'v_cmp_gt_u32 s[{S_MASK}:{S_MASK + 1}], v{t4}, v{t3}']
        for m in range(6):
            L += [f'v_add_u32 v{t3}, {128 * m}, v{vE}', f'v_mul_u32_u24 v{t4}, s{S_T1}, v{t3}', f'v_lshrrev_b32 v{t4}, 16, v{t4}',
                  f'v_lshl_add_u32 v{t4}, v{t4}, 2, v{vUw}', f'v_add_u32 v{AD + 4 + m}, {m * 6656}, v{t4}']
        L += [f'v_lshlrev_b32 v{AD + 10}, 4, v{half}', f'v_add_u32 v{AD + 10}, {L_WCO + 104}, v{AD + 10}',
              f'v_lshlrev_b32 v{AD + 11}, 1, v0', f'v_add_u32 v{AD + 11}, {L_WCO}, v{AD + 11}',
              f'v_lshlrev_b32 v{AD + 12}, 6, v0', f'v_add_u32 v{AD + 12}, {V3OFF + 52}, v{AD + 12}']
        g1a = self.seq(L)

        N_ = (0, 1, 2, 3)
        classes = []
        for d in ZD:
            for (a, ha, b, hb) in d:
                if cls(a, ha)[1] == N_ and cls(b, hb)[1] != N_ and cls(b, hb)[1] not in classes:
                    classes.append(cls(b, hb)[1])
        assert len(classes) == 5
        base = {(N_, N_): GB}
        for k, c in enumerate(classes):
            base[(N_, c)] = GB + 1 + 2 * k
            base[(c, N_)] = GB + 2 + 2 * k
        SP1, SP2 = GB + 11, GB + 12
        pk4 = lambda t: '0x%08x' % sum((x & 0xff) << (8 * k) for k, x in enumerate(t))
        L = ['L_addrc:',
             f's_and_b32 s{S_T2}, s{S_WAVE}, 1', f's_lshl_b32 s{S_T2}, s{S_T2}, 1', f'v_add_u32 v{vg}, s{S_T2}, v{half}',
             f'v_min_u32 v{t3}, 25, v{i32}',
             f's_mul_i32 s{S_T0}, s{S_GRP}, {UST - 1352}', f's_add_u32 s{S_T0}, s{S_T0}, 1352',
             f's_mul_i32 s{S_T1}, s{S_GRP}, {A3 - A1}', f's_add_u32 s{S_T1}, s{S_T1}, {A1}',
             f'v_mul_u32_u24 v{t4}, s{S_T0}, v{t3}', f'v_add_u32 v{t4}, s{S_T1}, v{t4}',
             f'v_lshlrev_b32 v{vDl}, 2, v{t3}', f'v_add_u32 v{vDl}, {A3 - A1}, v{vDl}'] + ([
             f's_lshl_b32 s{S_T0}, s{S_GRP}, 2', f's_xor_b32 s{S_T0}, s{S_T0}, 4', f'v_lshrrev_b32 v{t5}, 2, v{t3}', f'v_and_b32 v{t5}, s{S_T0}, v{t5}',
             f'v_add_u32 v{t4}, v{t4}, v{t5}', f'v_sub_u32 v{vDl}, v{vDl}, v{t5}'] if o.w1s else []) + [
             f'v_mul_u32_u24 v{vL}, 52, v{t3}', f'v_lshl_add_u32 v{vL}, v{vg}, 1, v{vL}', f'v_add_u32 v{vL}, {V2OFF}, v{vL}',
             f'v_lshlrev_b32 v{vWo}, 1, v{t3}', f'v_add_u32 v{vWo}, {L_WCO}, v{vWo}',
             f'v_mad_u32_u24 v{SP1}, v{vg}, 52, v{t4}',
             f'v_lshl_add_u32 v{SP2}, v{vg}, 1, v{t4}',
             f'v_lshl_add_u32 v{GB}, v{vg}, 1, v{SP1}',
             f'v_lshlrev_b32 v{t3}, 3, v{vg}']
        for k, c in enumerate(classes):
            L += [f's_mov_b32 s{S_T0}, {pk4(c)}', f'v_bfe_i32 v{t5}, s{S_T0}, v{t3}, 8',
                  f'v_lshl_add_u32 v{GB + 1 + 2 * k}, v{t5}, 1, v{SP1}', f'v_mad_i32_i24 v{GB + 2 + 2 * k}, v{t5}, 52, v{SP2}']
        L += [f's_mov_b32 s{S_T0}, {pk4((0, 54, 2, 0))}', f'v_bfe_u32 v{t5}, s{S_T0}, v{t3}, 8', f'v_add_u32 v{SP1}, v{t5}, v{t4}',
              f'v_add_u32 v{SP2}, 52, v{t4}', f'v_mov_b32 v{vm}, {OOB}',
              f'v_cmp_eq_u32 vcc, 3, v{vg}', f'v_cndmask_b32 v{SP1}, v{SP1}, v{vm}, vcc', f'v_cndmask_b32 v{vWo}, v{vm}, v{vWo}, vcc',
              f'v_cmp_eq_u32 vcc, 2, v{vg}', f'v_cndmask_b32 v{SP2}, v{vm}, v{SP2}, vcc',
              f'v_cmp_gt_u32 vcc, 2, v{vg}', f'v_cndmask_b32 v{vL6}, v{vm}, v{vL}, vcc']
        L += [f's_lshr_b32 s{S_T1}, s{cw}, 1', f's_mul_i32 s{S_T1}, s{S_T1}, {6 * 1024}', f's_mul_i32 s{S_T0}, s{S_GRP}, {6 * 1024}',
              f'v_lshlrev_b32 v{t5}, 8, v{vg}',
              f'v_lshl_add_u32 v{t3}, v{i32}, 4, v{t5}', f'v_add_u32 v{vWr}, {TA}, v{t3}', f'v_add_u32 v{vWu}, {TB}, v{t3}',
              f'v_bfe_u32 v{t3}, v0, 2, 2', f'v_lshl_add_u32 v{t5}, v{t3}, 4, v{t5}', f'v_and_b32 v{t3}, 3, v0',
              f'v_lshl_add_u32 v{t4}, v{t3}, 6, v{t5}', f'v_add_u32 v{t4}, {TC}, v{t4}',
              f'v_cmp_lt_u32 vcc, 15, v{i32}', f'v_cndmask_b32 v{vWr}, v{vWr}, v{t4}, vcc', f'v_add_u32 v{t4}, 16, v{t4}',
              f'v_cndmask_b32 v{vWu}, v{vWu}, v{t4}, vcc',
              f'v_lshl_add_u32 v{t4}, v{t3}, 5, v{t5}', f'v_add_u32 v{t4}, {TD - 16}, v{t4}',
              f'v_cmp_lt_u32 vcc, 19, v{i32}', f'v_cndmask_b32 v{vWr}, v{vWr}, v{t4}, vcc',
              f'v_add_u32 v{vWr}, s{S_T1}, v{vWr}', f'v_add_u32 v{vWu}, s{S_T0}, v{vWu}',
              f'v_cmp_lt_u32 vcc, 25, v{i32}', f'v_cndmask_b32 v{vWr}, v{vWr}, v{vm}, vcc', f'v_cndmask_b32 v{vWu}, v{vWu}, v{vm}, vcc',
              f'v_mov_b32 v{vMx}, 0']
        L += [f's_mul_i32 s{S_BCUR}, s{S_WAVE}, {XBSZ}', f's_add_u32 s{S_BCUR}, s{S_BCUR}, {XB0}', f's_mov_b32 s{S_BD}, {XB1 - XB0}',
              f'v_add_u32 v{aD}, {TA}, v{vStg}',
              f'v_and_b32 v{t3}, 11, v0', f'v_cmp_eq_u32 vcc, 11, v{t3}', f'v_cndmask_b32 v{aC}, v{aD}, v{vm}, vcc',
              f'v_and_b32 v{t3}, 3, v0', f'v_cmp_eq_u32 vcc, 0, v{t3}', f'v_cndmask_b32 v{aLc}, v{aC}, v{vm}, vcc',
              f'v_lshrrev_b32 v{vg}, 4, v0', f'v_bfe_u32 v{t3}, v0, 1, 3', f'v_lshlrev_b32 v{t5}, 4, v{t3}', f'v_add_u32 v{t5}, {TD}, v{t5}',
              f'v_and_b32 v{t3}, 10, v0', f'v_cmp_eq_u32 vcc, 10, v{t3}', f'v_cndmask_b32 v{t5}, v{t5}, v{vm}, vcc',
              f'v_and_b32 v{t4}, 1, v0', f'v_lshl_add_u32 v{aS}, v{vg}, 9, v{t5}', f'v_lshl_add_u32 v{aS}, v{t4}, 2, v{aS}', f'v_add_u32 v{aS}, 1024, v{aS}',
              f'v_lshl_add_u32 v{FT}, v{vg}, 8, v{t5}', f'v_lshl_add_u32 v{FT}, v{t4}, 20, v{FT}',
              f'v_and_b32 v{vm}, 15, v0', f's_mov_b32 s{S_T0}, {XPI}',
              f'v_lshlrev_b32 v{t3}, 1, v{vm}', f'v_add_u32 v{t3}, s{S_BCUR}, v{t3}',
              f'v_mad_u32_u24 v{vRaw}, v{vg}, s{S_T0}, v{t3}',
              f's_lshl_b32 s{S_T0}, s{S_WAVE}, 10', f's_add_u32 s{S_T0}, s{S_T0}, {XCH}',
              f'v_add_u32 v{vXw}, s{S_T0}, v{vStg}',
              f'v_add_u32 v{t3}, 256, v{vStg}', f'v_and_b32 v{t3}, 1023, v{t3}', f'v_add_u32 v{vX1}, s{S_T0}, v{t3}',
              f'v_xor_b32 v{t3}, 512, v{vStg}', f'v_add_u32 v{vX2}, s{S_T0}, v{t3}', f'v_lshlrev_b32 v{vSh}, 4, v{half}']
        L += [f'v_mov_b32 v{r}, 0' for r in list(range(RAW, RAW + 8)) + list(range(BT, BT + 24))]
        L += [f'v_mul_u32_u24 v{t4}, {XPI}, v{vg}',
              f'v_bfe_u32 v{t5}, v0, 2, 2', f'v_lshl_add_u32 v{t4}, v{t5}, 7, v{t4}',
              f'v_and_b32 v{t5}, 3, v0', f'v_lshl_add_u32 v{vLinB}, v{t5}, 3, v{t4}', f'v_add_u32 v{vLin}, s{S_BCUR}, v{vLinB}',
              f'v_and_b32 v{t5}, 1, v0', f's_mov_b32 s{S_T0}, 0xaaaaaaaa', f'v_mul_lo_u32 v{vSI}, s{S_T0}, v{t5}', f'v_or_b32 v{vSI}, 0x44444444, v{vSI}',
              f'v_lshlrev_b32 v{vOr}, 1, v0', f'v_add_u32 v{vOr}, s{S_BCUR}, v{vOr}', f'v_mov_b32 v{vAcc}, 0x3f80',
              f'ds_write_b16 v{vOr}, v{vAcc} offset:{3 * XPI + 7 * 128}', f'v_add_u32 v{vOr}, s{S_BD}, v{vOr}']
        L += [f's_mul_i32 s{S_T3}, s{S_WAVE}, 6', f's_add_u32 s{S_PX}, s{S_PX}, s{S_T3}', f's_mul_i32 s{S_PX}, s{S_PX}, 104',
              f's_add_u32 s{S_PXE}, s{S_PX}, 80', f's_add_u32 s{S_PX}, s{S_PX}, {4 * o.pfx0}',
              f's_mov_b32 s{S_T3}, 10923', f'v_min_u32 v{t3}, 35, v0',
              f'v_mul_u32_u24 v{t4}, s{S_T3}, v{t3}', f'v_lshrrev_b32 v{t4}, 16, v{t4}',
              f'v_mul_u32_u24 v{t4}, {104 - 24}, v{t4}', f'v_lshl_add_u32 v{vPXL}, v{t3}, 2, v{t4}']
        L += self.stamp(14) + (pfw() if o.pf1 == 1 else [])
        L += [f's_cmp_eq_u32 s{S_GRP}, 0', 's_cbranch_scc1 L_g0pf']
        cc = self.seq(L)

        def bread(m, base):
            b = BALL + m * 8
            return [f'ds_read_b64_tr_b16 {vr(b, 2)}, v{vBs0} offset:{base + m * 256}',
                    f'ds_read_b64_tr_b16 {vr(b + 2, 2)}, v{vBs0} offset:{base + m * 256 + 4 * 1352}',
                    f'ds_read_b64_tr_b16 {vr(b + 4, 2)}, v{vBs1a} offset:{base + m * 256}',
                    f'ds_read_b64_tr_b16 {vr(b + 6, 2)}, v{vBs1b} offset:{base + m * 256}']

        def mm6(base, post=lambda m: []):
            c = []
            for m in range(3 if base is not None else 0):
                c += bread(m, base)
            for m in range(6):
                if m + 3 < 6 and base is not None:
                    c += bread(m + 3, base)
                b = BALL + m * 8
                d = DALL + (m % 4) * 16
                c.append(f'v_mfma_f32_32x32x16_bf16 {vr(d, 16)}, {vr(AFR, 4)}, {vr(b, 4)}, 0')
                c.append(f'v_mfma_f32_32x32x16_bf16 {vr(d, 16)}, {vr(AFR + 4, 4)}, {vr(b + 4, 4)}, {vr(d, 16)}')
                if m >= 2:
                    c += post(m - 2)
            return c + post(4) + post(5)

        e1 = [f's_sub_u32 s{S_T0}, s{S_PX}, {24 * 104}', f'buffer_load_dword v{XJ + 4}, v{vPXL}, {srd(SRD_IDX)}, s{S_T0} offen',
              f'buffer_load_dword v{XJ + 5}, v{vPXL}, {srd(SRD_IDX)}, s{S_PX} offen']
        e2 = [f'v_lshlrev_b32 v{XJ + 4}, 7, v{XJ + 4}', f'buffer_load_dword v255, v{XJ + 4}, {srd(SRD_TAB)}, 0 offen',
              f'v_lshlrev_b32 v{XJ + 5}, 7, v{XJ + 5}', f'buffer_load_dword v255, v{XJ + 5}, {srd(SRD_TAB)}, 0 offen']
        if o.nopf & 8:
            e1, e2 = [], []
        xx = xdma() + xdma(XJ, -4 * XBSZ) + xidx()
        L = sig(F_W3) + [f's_sub_u32 s{S_SAMP}, s{S_SAMP}, {4 * 104}'] + xidx(XJ, 0, False) + [f's_add_u32 s{S_SAMP}, s{S_SAMP}, {4 * 104}'] + xidx()
        L += e1 + [f's_add_u32 s{S_PX}, s{S_PX}, 24'] + pfx_a()
        L += wait(F_W3, 8) + self.stamp(2)
        uc0 = self.seq(L)
        L = []
        for s2 in range(2):
            for rd in range(2):
                L.append(f'ds_read_b64 {vr(AFR + 4 * s2 + 2 * rd, 2)}, v{AD + 10} offset:{s2 * 32 + rd * 8}')
        L += [f'ds_read_u16 v{t5}, v{AD + 11} offset:52']

        def vpost(m):
            p_ = m // 2
            c = [f'v_cvt_pk_bf16_f32 v{V3T + p_}, v{DALL + 16 * (m % 4)}, 0']
            if m % 2:
                c = ['s_mov_b32 exec_lo, 0'] + c + [f's_mov_b64 exec, s[{S_MASK}:{S_MASK + 1}]' if p_ == 2 else 's_mov_b32 exec_lo, -1',
                                                    f'ds_write_b16 v{AD + p_}, v{V3T + p_}']
            return c
        L += mm6(A3 - A2, vpost)
        L += ['s_mov_b64 exec, 0x3ffffff', f'ds_write_b16 v{AD + 12}, v{t5}', 's_mov_b64 exec, -1']
        L += self.stamp(3) + sig(F_V3) + (pfw() if o.pf1 in (2, 3) and o.epos != 3 else []) + [f'v_cmp_gt_u32 s[{S_MASK}:{S_MASK + 1}], 36, v{vE}']
        L += (e2 if o.epos == 0 else []) + (xx if o.xpos == 0 else []) + (e2 if o.epos == 1 else [])
        L += wait(F_W2, 4) + [bread(m, 0) for m in range(6)] + wait(F_V3, 4) + self.stamp(5) + [f's_setprio {o.uprio}'] + (e2 + (pfw() if o.pf1 in (2, 3) else []) if o.epos == 3 else [])
        for s2 in range(2):
            for rd in range(2):
                L.append(f'ds_read_b64_tr_b16 {vr(AFR + 4 * s2 + 2 * rd, 2)}, v{vA3} offset:{s2 * 1024 + rd * 256}')

        def upost(m):
            d = DALL + 16 * (m % 4)
            c = [f'v_cvt_pk_bf16_f32 v{UP + 8 * m + qq}, v{d + 2 * qq}, v{d + 2 * qq + 1}' for qq in range(8)]
            if m == 5:
                c.append(f's_mov_b64 exec, s[{S_MASK}:{S_MASK + 1}]')
            w_ = [f'ds_write2_b32 v{AD + 4 + m}, v{UP + 8 * m + 2 * a}, v{UP + 8 * m + 2 * a + 1} offset0:{4 * a} offset1:{4 * a + 1}' for a in range(3)]
            return c + interleave(w_, [f'v_max3_f32 v{vMx}, v{vMx}, abs(v{d + 2 * qq}), abs(v{d + 2 * qq + 1})' for qq in range(7)])
        L += mm6(None, upost)
        L.append('s_mov_b32 exec_hi, 0')
        for m in (5, 4, 3, 2, 1, 0):
            L.append(f'ds_write_b32 v{AD + 4 + m}, v{UP + 8 * m + 6} offset:48')
            L.append(f'ds_write_b16 v{vV2w}, v{UP + 8 * m + 7} offset:{m * 256}')
            if m == 5:
                L.append('s_mov_b32 exec_lo, -1')
        L += ['s_mov_b64 exec, -1'] + postmax(vMx, F_U) + [f's_setprio {o.bprio}'] + (xx if o.xpos == 1 else []) + (e2 if o.epos == 2 else []) + self.stamp(6) + ['s_branch L_uph']
        uc = self.seq(L)

        L = ['L_g0pf:'] + stg[o.ccpos:] + [f's_add_u32 s{S_SAMP}, s{S_SAMP}, {8 * 104}', f's_add_u32 s{S_PX}, s{S_PX}, 24'] + xidx() + pfx_a()
        L += (pfw() if o.pf1 in (2, 3) else []) + sig(sB[3], vm_tags=['STG' + sB[0]]) + self.stamp(4) + [f's_mov_b32 s{S_PH}, 0'] + wait(F_W1, 4) + self.stamp(2)
        L += [f's_cmp_ge_u32 s{cw}, 2', 's_cbranch_scc1 L_chunk2']
        g0pf = self.seq(L)

        def chunk(k):
            units = [(n, h) for n in range(12 * k, min(12 * k + 12, 44)) for h in range(2)]
            NB_, BA = 12, o.ba
            reads, maths = [], []
            for ui, (n, h) in enumerate(units):
                a, ha, b, hb = ZD[n][h]
                (fa, ca), (fb, cb) = cls(a, ha), cls(b, hb)
                tb = BT + (ui % NB_) * 2
                dst = SUM + 24 * (k % 2) + ui
                if ca != N_:
                    R = [f'ds_read_u16_d16_hi v{tb}, v{SP1} offset:{54 * 24}', f'ds_read_u16_d16_hi v{tb + 1}, v{SP2} offset:{54 * 24}']
                    M = [f'v_add_f32 v{dst}, v{tb}, v{tb + 1}']
                elif (a, ha) == (b, hb):
                    R = [f'ds_read_u16_d16_hi v{tb}, v{base[(ca, cb)]} offset:{54 * fa}']
                    M = [f'v_mov_b32 v{dst}, v{tb}']
                else:
                    R = [f'ds_read_u16_d16_hi v{tb}, v{base[(ca, cb)]} offset:{52 * fa + 2 * fb}',
                         f'ds_read_u16_d16_hi v{tb + 1}, v{base[(cb, ca)]} offset:{52 * fb + 2 * fa}']
                    M = [f'v_add_f32 v{dst}, v{tb}, v{tb + 1}']
                if ui % 2:
                    M = M + maths[-1] + [f'v_max3_f32 v{vMx}, v{vMx}, abs(v{dst - 1}), abs(v{dst})']
                    maths[-1] = []
                reads.append(R)
                maths.append(M)
            code = []
            nu = len(units)
            for ui in range(nu + BA):
                if ui < nu:
                    code += reads[ui]
                if ui == nu and k == 3:
                    code += [f'ds_read_u16_d16_hi v{LT + e}, v{vL} offset:{8 * e}' for e in range(6)]
                    code += [f'ds_read_u16_d16_hi v{LT + 6}, v{vL6} offset:48', f'ds_read_u16_d16_hi v{LT + 7}, v{vWo}']
                if ui >= BA:
                    code += maths[ui - BA]
            return code
        LT = BT + 8
        assert o.ba <= 8

        def conv(n):
            c = [f'v_fma_mix{"hi" if h else "lo"}_f16 v{OUT + q}, v{SUM + 2 * q + h}, s{S_SC}, 0' for h in range(2) for q in range(4 * n, 4 * n + 4)]
            if o.wr8:
                m_ = (1 << o.wr8) - 1
                c += [f'v_add_u32 v{OUT + q}, {(1 << (o.wr8 - 1)) * 0x10001}, v{OUT + q}' for q in range(4 * n, 4 * n + 4)]
                c += [f'v_and_b32 v{OUT + q}, {0xffffffff ^ (m_ * 0x10001)}, v{OUT + q}' for q in range(4 * n, 4 * n + 4)]
            return c
        wr = lambda n, A: [f'ds_write_b128 v{A}, {vr(OUT + 4 * n, 4)} offset:{n * 1024}']
        ch, chb = [], []
        for k in range(4):
            ch.append(self.seq([f'L_chunk{k}:'] + chunk(k) + [f's_cmp_lg_u32 s{S_PH}, 0', f's_cbranch_scc1 L_uconv{k % 2}']))
            chb.append(self.seq(['s_branch L_w1conv'] if k == 1 else []))
        L = ['L_w1conv:'] + self.stamp(3) + postmax(vMx, F_M)
        L += [f'v_add_u32 v{GB + k}, v{GB + k}, v{vDl}' for k in range(13)]
        L += waitmax(F_M, S_T2, 141) + setsc(S_T2) + self.stamp(5)
        L += conv(0) + conv(1) + wr(0, vWr) + conv(2) + wr(1, vWr) + conv(3) + wr(2, vWr) + conv(4) + wr(3, vWr) + wr(4, vWr)
        L += [f's_cmp_ge_u32 s{cw}, 2', 's_cbranch_scc1 L_w1x']
        w1a = self.seq(L)
        w1b = self.seq(conv(5) + wr(5, vWr))
        w1c = self.seq(['L_w1x:'])
        xbsig = lambda: [WaitTag(vm_tags=['XB']), f'v_mov_b32 v{vF}, s{S_GRP}', f'ds_add_u32 v{vFA}, v{vF} offset:{F_XB}']
        L = ['L_uph:'] + self.stamp(7) + (self.tlb2(vZ, vFl) if o.lb else []) + waitmax(F_U, S_T3, 140) + setsc(S_T3) + self.stamp(12)
        L += [f's_mov_b32 s{S_PH}, 1', f's_lshr_b32 s{S_T1}, s{S_WAVE}, 1',
              f's_cmp_eq_u32 s{S_T1}, 0', 's_cbranch_scc1 L_chunk0', f's_cmp_eq_u32 s{S_T1}, 1', 's_cbranch_scc1 L_chunk1',
              f's_cmp_eq_u32 s{S_T1}, 2', 's_cbranch_scc1 L_chunk2', 's_branch L_chunk3']
        uph = self.seq(L)
        wm1 = lambda: (xbsig() if o.lb else []) + waitmax(F_M, S_T2, 141)
        u0 = self.seq(['L_uconv0:'] + self.stamp(13) + conv(0) + wm1() + wr(0, vWu) + conv(1) + wr(1, vWu) + conv(2) + wr(2, vWu) + ['s_branch L_built'])
        u1a = self.seq(['L_uconv1:'] + self.stamp(13) + conv(3) + wm1() + wr(3, vWu) + conv(4) + wr(4, vWu) + [f's_cmp_lg_u32 s{S_GRP}, 0', 's_cbranch_scc1 L_ulin'])
        u1b = self.seq(conv(5) + wr(5, vWu) + ['s_branch L_built'])
        L = ['L_ulin:'] + [f'v_mul_f32 v{LT + e}, s{S_SC}, v{LT + e}' for e in range(8)]
        L += [f'v_cvt_pk_bf16_f32 v{OUT + 20 + q}, v{LT + 2 * q}, v{LT + 2 * q + 1}' for q in range(4)] + wr(5, vWu)
        u1c = self.seq(L)

        w0x = self.build_srd(SRD_W2, S_W2, 3328) + [f'v_lshlrev_b32 v{FT}, 7, v0', f'buffer_load_dword v255, v{FT}, {srd(SRD_W2)}, 0 offen']

        slot = lambda k: RZ + 4 * (k % 4)
        MF = [('Lb', 0), ('a', 1), ('b', 1), ('d', 1), ('Lc', 0), ('a', 2), ('c', 1), ('b', 2), ('c', 2)]
        for k in range(3, 10):
            MF += ([('S', k)] if k % 2 else []) + [('a', k), ('b', k), ('c', k)]
        MF += [('a', 10), ('b', 10), ('a', 11), ('b', 11), ('c', 10), ('S', 11), ('c', 11)]
        if o.mo == 1:
            MF = [('Lb', 0), ('a', 1), ('d', 1), ('Lc', 0), ('b', 1), ('a', 2), ('c', 1), ('b', 2), ('a', 3), ('c', 2), ('S', 3), ('b', 3), ('c', 3)]
            for k in range(4, 10):
                MF += ([('S', k)] if k % 2 else []) + [('a', k), ('b', k), ('c', k)]
            MF += [('a', 10), ('b', 10), ('c', 10), ('a', 11), ('b', 11), ('S', 11), ('c', 11)]
        if o.mo == 2:
            MF = [('d', 1), ('Lb', 0), ('a', 1), ('Lc', 0), ('b', 1), ('a', 2), ('c', 1), ('b', 2), ('a', 3), ('c', 2), ('S', 3), ('b', 3), ('c', 3)]
            for k in range(4, 12):
                MF += ([('S', k)] if k % 2 else []) + [('a', k), ('b', k), ('c', k)]
        if o.mo == 3:
            MF = [('d', 1), ('Lb', 0), ('b', 1), ('a', 1), ('Lc', 0), ('c', 1)]
            for k in range(2, 12, 2):
                MF += [('c', k), ('c', k + 1), ('S', k + 1), ('a', k), ('a', k + 1), ('b', k), ('b', k + 1)] if k % 4 == 2 and k < 10 else \
                      [('b', k), ('b', k + 1), ('S', k + 1), ('a', k), ('a', k + 1), ('c', k), ('c', k + 1)]
        if o.mo == 4:
            MF = [('Lb', 0), ('b', 1), ('a', 1), ('d', 1), ('Lc', 0), ('c', 1)]
            for k, od in zip(range(2, 12, 2), ('cSab', 'bSca', 'aSbc', 'cSba', 'abSc')):
                for t_ in od:
                    MF += [('S', k + 1)] if t_ == 'S' else [(t_, k), (t_, k + 1)]
        NM = len(MF)
        use = {k: [m for m, (t_, kk) in enumerate(MF) if kk == k or (t_ == 'S' and kk == k + 1)] for k in range(12)}
        pos = lambda t_, k: MF.index((t_, k))

        def mfma(m):
            t_, k = MF[m]
            if t_[0] == 'L':
                d, w = {'b': (Db, WL), 'c': (Dc, WL + 4)}[t_[1]]
                return f'v_mfma_f32_16x16x32_bf16 {vr(d, 4)}, {vr(w, 4)}, {vr(slot(0), 4)}, 0'
            if t_ == 'S':
                return f'v_smfmac_f32_16x16x64_f16 {vr(Ds, 4)}, {vr(WS_ + 2 * (k - 1), 4)}, {vr(slot(k - 1), 8)}, v{vSI}'
            d, w = {'a': (Da, WA), 'b': (Db, WB), 'c': (Dc, WC), 'd': (Ds, WS_)}[t_]
            return f'v_mfma_f32_16x16x32_f16 {vr(d, 4)}, {vr(w + 4 * (k - 1), 4)}, {vr(slot(k), 4)}, {"0" if t_ in "ad" and k == 1 else vr(d, 4)}'

        def wload(m):
            t_, k = MF[m]
            if t_[0] == 'L':
                a, w, off = {'b': (aD, WL, TB), 'c': (aLc, WL + 4, TC)}[t_[1]]
                return [f'ds_read_b128 {vr(w, 4)}, v{a} offset:{off - TA + 11 * 1024}']
            if t_ == 'd':
                return [f'ds_read_b128 {vr(WS_, 4)}, v{FT}']
            if t_ == 'S':
                w = WS_ + 2 * (k - 1)
                return [f'ds_read2_b32 {vr(w, 2)}, v{aS} offset0:0 offset1:2', f'ds_read2_b32 {vr(w + 2, 2)}, v{aS} offset0:64 offset1:66',
                        f'v_add_u32 v{aS}, 2048, v{aS}']
            w, a, off = {'a': (WA, aD, 0), 'b': (WB, aD, TB - TA), 'c': (WC, aC, TC - TA)}[t_]
            return [f'ds_read_b128 {vr(w + 4 * (k - 1), 4)}, v{a} offset:{off + (k - 1) * 1024}']

        def zops(n):
            z = slot(n // 4 + 1) + n % 4
            (a, ha, b, hb), (a2, ha2, b2, hb2) = ZD[n]
            if (a, b) == (a2, b2):
                return [f'v_pk_mul_f16 v{z}, v{X + a}, v{X + b} op_sel:[{ha},{hb}] op_sel_hi:[{ha2},{hb2}]']
            return [f'v_mul_f16_sdwa v{z}, v{X + a}, v{X + b} dst_sel:WORD_0 dst_unused:UNUSED_PAD src0_sel:WORD_{ha} src1_sel:WORD_{hb}',
                    f'v_mul_f16_sdwa v{z}, v{X + a2}, v{X + b2} dst_sel:WORD_1 dst_unused:UNUSED_PRESERVE src0_sel:WORD_{ha2} src1_sel:WORD_{hb2}']

        cvt = lambda d, a, b: f'v_cvt_pk_f16_f32 v{d}, v{a}, v{b}'
        LAT = o.lat

        class It:
            def __init__(s, name, G, code, lo, hi, pre):
                s.name, s.G, s.code, s.lo, s.hi, s.pre, s.at = name, G, code, lo, hi, list(pre), None

        NG = 14
        items = {}

        def add(name, G, code, lo=-10**9, hi=10**9, pre=()):
            items[(name, G)] = It(name, G, code, lo, hi, pre)
        usej = lambda j: [n for n, d in enumerate(ZD) if any(a // 4 == j or b // 4 == j for (a, _, b, _) in d)]
        lastz = {j: max(usej(j)) for j in range(3)}
        for G in range(NG):
            c, b0 = G % 4, G * NM
            for r in range(8):
                add(f'raw{r}', G, f'ds_read_u16_d16_hi v{RAW + r}, v{vRaw} offset:{r * 128 + c * 32}', lo=b0 - o.rspan, hi=b0 - o.rlead,
                    pre=[(f'co{q}', G - 1, 0) for q in range(4)] + ([('swr', G, 0)] if c == 0 else []) + ([('lin1', G - 1, 0)] if o.w2 else []))
            for q in range(4):
                add(f'co{q}', G, cvt(X + q - 1, RAW + q - 1, RAW + q + 2) if q else cvt(X + 3, RAW + 6, RAW + 7), hi=b0 - 4 if not o.w2 else b0 - 9,
                    pre=[(f'raw{r}', G, LAT) for r in range(8)] + [(f'z{lastz[0]}', G - 1, 0)])
            add('wo', G, f'ds_write_b128 v{vXw}, {vr(X, 4)}', hi=b0 - 2 if not o.w2 else b0 - 8, pre=[(f'co{q}', G, 0) for q in range(4)] + [('r2', G - 1, 0)])
            add('r1', G, f'ds_read_b128 {vr(X + 4, 4)}, v{vX1}', hi=b0 if not o.w2 else b0 - 7, pre=[('wo', G, o.wgap)])
            add('r2', G, f'ds_read_b128 {vr(X + 8, 4)}, v{vX2}', hi=b0 + 1 if not o.w2 else b0 - 7, pre=[('r1', G, 0)])
            for q in range(3):
                add(f'al{q}', G, f'v_alignbit_b32 v{X + 8 + q}, v{X + 8 + q}, v{X + 8 + q}, v{vSh}', lo=b0 + min(use[0]) if o.w2 else -10**9, hi=b0 + 20, pre=[('r2', G, LAT)])
            if c == 0:
                add('swr', G, [f'v_add_u32 v{vRaw}, s{S_BD}, v{vRaw}', WaitTag(vm_tags=['XB'])], lo=b0 - o.rspan - 1, hi=b0 - o.rspan - 1,
                    pre=[(f'raw{r}', G - 1, 0) for r in range(8)])
            for p in range(2):
                add(f'lin{p}', G, f'ds_read_b64_tr_b16 {vr(slot(0) + 2 * p, 2)}, v{vLin} offset:{p * 512 + c * 32}',
                    lo=b0 - NM + max(use[8]), hi=b0 + min(use[0]) - 1 - LAT, pre=([('swl', G, 0)] if c == 0 else []) + ([('r2', G, 0)] if o.w2 else []))
            if c == 0:
                add('swl', G, [f's_add_u32 s{S_TW}, s{S_BCUR}, s{S_BD}', f'v_add_u32 v{vLin}, s{S_TW}, v{vLinB}'], lo=b0 - NM + 20, hi=b0 - 12,
                    pre=[(f'lin{p}', G - 1, 0) for p in range(2)])
            for n in range(44):
                k = n // 4 + 1
                js = {x // 4 for (a, _, b, _) in ZD[n] for x in (a, b)}
                pre = [(f'co{q}', G, 0) for q in range(4)] + ([('r1', G, LAT)] if 1 in js else []) + ([(f'al{q}', G, 0) for q in range(3)] if 2 in js else [])
                if n:
                    pre.append((f'z{n - 1}', G, 0))
                if k == 5 and n % 4 < 3:
                    pre.append(('or1', G, 0))
                lo = b0 + max(use[k - 4]) if k >= 4 else b0 - NM + max(use[k + 8])
                if k == 1:
                    lo = max(lo, b0 - o.z1lo)
                zc = zops(n)
                if n == 12:
                    zc = [zops(12)[0], zops(13)[0]]
                if n == 13:
                    zc = [zops(12)[1], zops(13)[1]]
                add(f'z{n}', G, zc, lo=lo, hi=b0 + min(use[k]) - 2, pre=pre)
            s1 = slot(1)
            if c == 1:
                add('or1', G, f'v_or3_b32 v{vOr}, v{s1}, v{s1 + 1}, v{s1 + 2}', hi=b0 + 6, pre=[('z2', G, 0), ('blk', G - 2, 0)])
                add('ck', G, [f'v_and_b32 v{vOr}, 0x60006000, v{vOr}', f'v_cmp_ne_u32 s[{S_CHK}:{S_CHK + 1}], 0, v{vOr}'], hi=b0 + 30, pre=[('or1', G, 0)])
            e = b0 + NM
            rdy = lambda t_: b0 + pos(t_, 11) + o.flo
            for r in range(4):
                add(f'f{r}', G, f'v_{"mul" if c == 0 and r == 0 else "fmac"}_f32 v{vAcc}, v{Da + r}, v{Db + r}', lo=min(max(rdy('a'), rdy('b')), e + pos('Lb', 0) - 1), hi=e + pos('Lb', 0) - 1,
                    pre=[(f'f{r - 1}', G, 0) if r else ('f8', G - 1, 0)] + ([('blk', G - 1, 0)] if c == 0 else []))
            for r in range(2):
                add(f'f{4 + r}', G, f'v_add_f32 v{FT + r}, v{Ds + 2 * r}, v{Ds + 2 * r + 1}', lo=min(rdy('S'), e + pos('d', 1) - 1), hi=e + pos('d', 1) - 1,
                    pre=[('f8', G - 1, 0)] + ([('blk', G - 1, 0)] if c == 0 else []))
            for r, (x, y) in enumerate(((Dc, Dc + 1), (FT, Dc + 2), (FT + 1, Dc + 3))):
                add(f'f{6 + r}', G, f'v_fmac_f32 v{vAcc}, v{x}, v{y}', lo=rdy('c'), hi=e + pos('Lc', 0) - 1, pre=[(f'f{5 + r}', G, 0), ('f3', G, 0), ('f4', G, 0)])
            if c == 3:
                for q, x in enumerate(dppred('v_add_f32', vAcc)):
                    add(f'dp{q}', G, x, hi=e + 7 + 2 * q, pre=[(f'dp{q - 1}', G, 2) if q else ('f8', G, 2)])
                add('blk', G, '@BLK', hi=e + 20, pre=[('dp5', G, 1)])
        order = list(items.values())
        gaps = {}
        isv = lambda x: isinstance(x, str) and x.startswith('v_')
        isl = lambda x: isinstance(x, str) and x.startswith('ds_')
        for gp in range(-NM, NG * NM):
            gaps[gp] = []
            uv = ul = 0
            if o.cw and (gp + 1 - min(use[0])) % NM == 0:
                ul = 1
            if any(it.name == 'wo' for d_ in range(1, o.wgap) for it in gaps.get(gp - d_, [])):
                ul = 2
            while True:
                cand = []
                for it in order:
                    if it.at is not None or it.lo > gp:
                        continue
                    ok = True
                    for (nm, G, dist) in it.pre:
                        p = items.get((nm, G))
                        if p is None:
                            continue
                        if p.at is None or p.at + dist > gp:
                            ok = False
                            break
                    if not ok:
                        continue
                    cv_, cl_ = sum(map(isv, flat([it.code]))), sum(map(isl, flat([it.code]))) * (o.wcost if it.name == 'wo' else 1) + (1 if o.cw and it.name == 'co0' else 0)
                    if it.hi > gp and (uv + cv_ > o.gapv or ul + cl_ > o.gapl or uv + ul + cv_ + cl_ > o.gapt) and cv_ + cl_:
                        continue
                    cand.append((it, cv_, cl_))
                if not cand:
                    break
                it, cv_, cl_ = min(cand, key=lambda x: x[0].hi)
                it.at = gp
                uv += cv_; ul += cl_
                gaps[gp].append(it)
        late = [(it.name, it.G, it.at - it.hi) for it in order if it.at is not None and it.at > it.hi and 4 <= it.G < 12]
        print('late items', late)
        sig_ = lambda G0: [[(it.name, it.G - G0) for it in gaps[G0 * NM + m]] for m in range(4 * NM)]
        assert sig_(4) == sig_(8), 'schedule not periodic'
        for f_ in (isv, isl):
            print('gap load', ''.join(str(sum(sum(map(f_, flat([it.code]))) for it in gaps[4 * NM + m])) + ('|' if m % NM == NM - 1 else '') for m in range(4 * NM)))
        keep = lambda c: [x for x in flat([c]) if not (isinstance(x, str) and any(x.startswith(d) for d in o.drop.split(',') if d))]
        prio = lambda p, lab: [f's_cmp_lg_u32 s{S_GRP}, 0', f's_cbranch_scc1 {lab}', f's_setprio {p}', f'{lab}:'] if o.phi else []

        def sstamp():
            if not (o.stamps and o.itst):
                return []
            return [f's_memtime s[{S_ST}:{S_ST + 1}]', f's_add_u32 s{S_C0}, s{S_LOOP}, 20', 's_waitcnt lgkmcnt(0)',
                    f's_mov_b32 m0, s{S_C0}', f'v_writelane_b32 v252, s{S_ST}, m0']

        pcode = []
        for gp in range(-NM, 4 * NM):
            for it in gaps[gp]:
                if it.G >= 4 and not it.name.startswith(('sw', 'wx')):
                    pcode += flat([it.code])
        PFD = o.pfd
        pfl = pfx_b() + ([] if o.nopf & 16 else pfx_a()) + pfw()
        L = ['L_built:'] + self.stamp(10) + ([] if o.lb else xbsig() + self.tlb2(vZ, vFl))
        L += [f's_add_i32 s{S_EXP}, s{S_T2}, s{S_T3}'] + wait(F_XB, 4) + pcode + (pfl if o.lb < 2 else [])
        L += ['s_waitcnt lgkmcnt(0)', 's_barrier'] + (['s_setprio 1'] if o.phi else ['s_setprio 0']) + self.stamp(8)
        L += [wload(m) for m in range(PFD)] + prio(o.pp0, 'L_prf') + (['s_mov_b32 s100, 15'] if o.gst else [])
        peel2 = None
        for m in range(NM):
            L += [mfma(m)] + (wload(m + PFD) if m + PFD < NM else [])
            for it in gaps[4 * NM + m]:
                if it.code == '@BLK':
                    L += [f'ds_write_b16 v{vOr}, v{vAcc} offset:{3 * XPI + 7 * 128}']
                    L += self.cleared('L_cclr', [f's_and_b32 s{S_TW}, s2, 7'], vFl) + xdma(XI, XB1 - XB0) + (pfl if o.lb == 2 else []) + (pfw() if o.pfp else [])
                    L += [f's_sub_i32 s{S_EXP}, 0, s{S_EXP}', f's_mov_b32 s{S_EXPC}, s{S_EXP}',
                          f's_mov_b32 s{S_PH}, 1', f's_mov_b32 s{S_PREV}, 1', f's_mov_b32 s{S_HALF}, 0']
                    L += [f's_cmp_lg_u32 s{S_WAVE}, 7', 's_cbranch_scc1 L_nw0']
                    peel1 = self.seq(L)
                    peelw = self.seq(w0x)
                    L = ['L_nw0:']
                elif it.G >= 4:
                    L += flat([it.code])
        L += (prio(o.pp1, 'L_prg') if o.pp1 != o.pp0 else []) + [f'ds_add_u32 v{vFA}, v{vOne} offset:{F_PEEL}', 's_branch L_grp1']
        peel2 = self.seq(L)
        prime = self.seq(['L_prime:'] + [f'v_mov_b32 v{r}, 0' for r in range(D, D + 16)] + [f'v_mov_b32 v{FT}, 0', f'v_mov_b32 v{FT + 1}, 0'] + pcode)
        blk_a = ['L_blk:', f's_cmp_eq_u32 s{S_PREV}, 0', 's_cbranch_scc1 L_blkend',
                 f'v_readlane_b32 s{S_TW}, v{vAcc}, 63', f'v_ldexp_f32 v{vAcc}, v{vAcc}, s{S_EXPC}', f'v_and_b32 v{vAcc}, -2, v{vAcc}',
                 f's_cmp_ge_u32 s{S_PREV}, 2', 's_cbranch_scc1 L_good',
                 f's_cmp_eq_u64 s[{S_CHK}:{S_CHK + 1}], 0', 's_cbranch_scc1 L_slow',
                 f's_bfe_u32 s{S_TW}, s{S_TW}, 0x80017', f's_cmp_eq_u32 s{S_TW}, 255', 's_cbranch_scc1 L_slow',
                 'L_good:', 's_mov_b32 exec_lo, 0', 's_mov_b32 exec_hi, 0x80000000',
                 f'buffer_store_dword v{vAcc}, v{vZ}, {srd(SRD_WS)}, s{S_RC} offen sc1', 's_mov_b64 exec, -1',
                 f's_add_u32 s{S_RC}, s{S_RC}, 32', f's_sub_u32 s{S_LOOP}, s{S_LOOP}, 1', f's_cmp_eq_u32 s{S_LOOP}, 0', 's_cbranch_scc1 L_cin_done']
        blk_a += [f's_cmp_eq_u32 s{S_LOOP}, 1', 's_cbranch_scc1 L_lastnext']
        blk_b = xdma() + [f's_add_u32 s{S_SAMP}, s{S_SAMP}, {8 * 104}', f's_cmp_lg_u32 s{S_LOOP}, s{S_TK}', 's_cbranch_scc1 L_nodma']
        blk_t = self.cleared('L_tclr', [f's_lshr_b32 s{S_TW}, s{S_ST0}, 14'], vFl) + [f'v_mov_b32 v{vTk}, 1', 's_mov_b64 exec, 1', f'buffer_atomic_add v{vTk}, v{vZ}, {srd(SRD_WS)}, s{S_ST0} offen sc0',
                 's_mov_b64 exec, -1', f's_mov_b32 s{S_TK}, 8', 's_branch L_nodma',
                 'L_lastnext:', f's_cmp_lt_i32 s{S_DYN}, 0', f's_cselect_b32 s{S_RC}, s{S_RC}, s{S_DYN}']
        hook_a = [f's_cmp_lg_u32 s{S_TK}, 8', 's_cbranch_scc1 L_hk']
        n4 = o.n4
        hook_t = ['s_waitcnt vmcnt(0)', f'v_readfirstlane_b32 s{S_TW}, v{vTk}', f's_mov_b32 s{S_TK}, 0', f's_add_u32 s{S_TW}, s{S_TW}, 1',
                  ] + ([f's_cmp_lt_u32 s{S_TW}, {n4}', 's_cbranch_scc1 L_hky', 's_setprio 0', 'L_hky:'] if o.y1 else []) + [
                  f's_cmp_ge_u32 s{S_TW}, {2 * (512 - PB) - n4}', 's_cbranch_scc1 L_hk',
                  f's_add_u32 s{S_LOOP}, s{S_LOOP}, 1', f's_mov_b32 s{S_DYN}, {5 * 2048}',
                  f's_cmp_lt_u32 s{S_TW}, {n4}', 's_cbranch_scc1 L_hkf',
                  f's_add_u32 s{S_TW}, s{S_TW}, {n4}', f's_and_b32 s{S_SAMP}, s{S_TW}, 1', f's_lshr_b32 s{S_TW}, s{S_TW}, 1', f's_mov_b32 s{S_HALF}, 1',
                  f's_lshl_b32 s{S_SAMP}, s{S_SAMP}, 6', f'v_xor_b32 v{vC16}, s{S_SAMP}, v{vC16}',
                  f's_lshl_b32 s{S_SAMP}, s{S_SAMP}, 5', f's_add_u32 s{S_DYN}, s{S_DYN}, s{S_SAMP}',
                  'L_hkf:', f's_add_u32 s{S_TW}, s{S_TW}, {PB}', f's_lshl_b32 s{S_SAMP}, s{S_TW}, 2', f's_add_u32 s{S_DYN}, s{S_DYN}, s{S_SAMP}',
                  f's_andn2_b32 s{S_SAMP}, s{S_ST0}, 0x3fff', f's_add_u32 s{S_DYN}, s{S_DYN}, s{S_SAMP}',
                  f's_lshr_b32 s{S_SAMP}, s{S_SAMP}, 5', f's_add_u32 s{S_SAMP}, s{S_SAMP}, s{S_TW}', f's_mul_i32 s{S_SAMP}, s{S_SAMP}, 104']
        hook_b = ['L_hk:'] + xidx(adv=False)
        blk_b2 = ['L_nodma:'] + [f's_add_u32 s{S_BCUR}, s{S_BCUR}, s{S_BD}', f's_sub_u32 s{S_BD}, 0, s{S_BD}', f's_mov_b32 s{S_EXPC}, s{S_EXP}', f's_mov_b32 s{S_PH}, 1',
                  f's_cmp_eq_u32 s{S_PREV}, 3', 's_cbranch_scc1 L_slow2']
        blk_c = ['L_blkend:', f's_mov_b32 s{S_PREV}, s{S_PH}']
        parts = [[], [], [], [], []]
        cur = self.seq(['L_cin_loop:'])
        for m in range(4 * NM):
            if m == NM:
                parts[3] = cur
                cur = self.seq(['L_grp1:'])
            if m == 2 * NM:
                cur += self.seq([f's_cmp_eq_u32 s{S_LOOP}, s{S_HALF}', 's_cbranch_scc1 L_htail'])
                p4h = list(cur)
            if m == o.hook:
                p4a = cur + self.seq(hook_a)
                p4t = self.seq(hook_t)
                cur = self.seq(hook_b)
            if o.y1 and m == o.hook + o.y1:
                cur += self.seq([f's_cmp_eq_u32 s{S_HALF}, 0', 's_cbranch_scc1 L_y1', 's_setprio 1', 'L_y1:'])
            if o.y1 and m == o.hook + o.y2:
                cur += self.seq([f's_cmp_eq_u32 s{S_GRP}, 0', 's_cbranch_scc1 L_y2', 's_setprio 1', 'L_y2:'])
            if o.gst and m % NM == 0:
                cur += self.seq([f's_memtime s[{S_ST}:{S_ST + 1}]', 's_add_u32 s100, s100, 1', 's_min_u32 s100, s100, 31', 's_waitcnt lgkmcnt(0)',
                                 's_mov_b32 m0, s100', f'v_writelane_b32 v253, s{S_ST}, m0'])
            if o.phi and m in (0, o.phi):
                cur += self.seq(prio(0 if m else 2, f'L_pr{m}'))
            cur += self.seq([mfma(m % NM)])
            for it in gaps[4 * NM + m]:
                if it.code == '@BLK':
                    if o.pfa:
                        parts[0] = cur + self.seq(sstamp() + ['s_waitcnt vmcnt(0)'])
                        pfp = []
                    else:
                        parts[0] = cur + self.seq(sstamp() + ['s_waitcnt vmcnt(0)', f's_cmp_le_u32 s{S_LOOP}, {o.pfend}', 's_cbranch_scc1 L_blk'])
                        pfp = self.seq(([] if o.nopf & 16 else pfx_b() + pfx_a()) + pfw())
                    parts[1] = self.seq(blk_a)
                    parts[2] = self.seq(blk_b)
                    pbt = self.seq(blk_t)
                    pb2 = self.seq(blk_b2)
                    cur = self.seq(blk_c)
                    if o.pfa:
                        cur += self.seq([f's_cmp_ge_u32 s{S_PW}, {1664 * 3328}', 's_cbranch_scc1 L_npf'])
                        self.seq(pfw())
                        cur += self.seq(['L_npf:'])
                else:
                    cur += self.seq(keep(it.code))
        cur += self.seq([f's_cmp_lg_u32 s{S_LOOP}, 1', 's_cbranch_scc1 L_cin_loop'])
        parts[4] = p4a + cur
        p4x = p4a + p4t + cur
        tail = self.seq([it.code for m in range(NM) for it in gaps[4 * NM + m] if it.G == 3 and it.code != '@BLK'] + ['s_branch L_blk'])
        assert o.hook > 2 * NM and items[('swr', 8)].at >= 6 * NM and items[('swl', 8)].at >= 6 * NM
        htail = self.seq(['L_htail:'] + [it.code for m in range(NM) for it in gaps[6 * NM + m] if it.G == 5] + dppred('v_add_f32', vAcc)
                         + [f'v_add_u32 v{vRaw}, s{S_BD}, v{vRaw}', 's_branch L_blk'])
        Q = RZ
        rows = [(g, r) for g in range(4) for r in range(8)][:31]
        L = ['L_slow:', f'v_subrev_u32 v{vRaw}, s{S_BD}, v{vRaw}', 'L_slow2:', f'v_lshlrev_b32 v{FT}, 1, v0', f'v_add_u32 v{FT + 1}, s{S_BCUR}, v{FT}',
             f's_mul_i32 s{S_TW}, s{S_WAVE}, {XBSZ}', f's_add_u32 s{S_TW}, s{S_TW}, {XSP}',
             f'v_add_u32 v{FT}, s{S_TW}, v{FT}', f'v_add_u32 v{vLin}, s{S_TW}, v{vLinB}']
        L += wait(F_PEEL, 8)
        L += [f'ds_read_u16 v{Q + n}, v{FT + 1} offset:{g * XPI + r * 128}' for n, (g, r) in enumerate(rows)]
        L += [f'v_lshlrev_b32 v{Q + n}, 16, v{Q + n}' for n in range(31)]
        L += absmax(vAcc, list(range(Q, Q + 31))) + dppred('v_max_u32', vAcc)
        L += [f'v_readlane_b32 s{S_TW}, v{vAcc}, 63', f's_lshr_b32 s{S_TW}, s{S_TW}, 23', f's_sub_i32 s{S_TW}, 134, s{S_TW}',
              f's_cmp_le_u32 s{S_TW}, 9', f's_cselect_b32 s{S_PH}, 2, 3', f's_min_i32 s{S_TW}, s{S_TW}, 16',
              f's_lshl_b32 s{S_EXPC}, s{S_TW}, 2', f's_sub_i32 s{S_EXPC}, s{S_EXP}, s{S_EXPC}',
              f's_add_i32 s{S_TW}, s{S_TW}, 127', f's_lshl_b32 s{S_TW}, s{S_TW}, 23', f'v_mov_b32 v{Q + 31}, s{S_TW}']
        L += [f'v_mul_f32 v{Q + n}, s{S_TW}, v{Q + n}' for n in range(31)]
        L += [f'ds_write_b16_d16_hi v{FT + 1}, v{Q + n} offset:{g * XPI + r * 128}' for n, (g, r) in enumerate(rows)]
        L += [f'v_mul_f32 v{Q + n}, s{S_TW}, v{Q + n}' for n in range(32)]
        L += [f'ds_write_b16_d16_hi v{FT}, v{Q + n} offset:{g * XPI + r * 128}' for n, (g, r) in enumerate(rows + [(3, 7)])]
        L += [f's_mov_b32 s{S_PREV}, 0', 's_waitcnt lgkmcnt(0)', 's_branch L_prime']
        slow = self.seq(L)
        fin_ = self.seq(['L_cin_done:'] + self.stamp(9) + self.stamp_flush() + self.padsig() + ['s_endpgm'])
        rest = parts[3] + parts[4]
        full = parts[0] + pfp + parts[1] + parts[2] + pb2 + rest
        nopf = parts[0] + parts[1] + parts[2] + pbt + pb2 + parts[3] + p4x
        last = parts[0] + parts[1] + pb2 + rest
        redo = lambda pf: parts[1][:10] + slow + prime + parts[0] + (pfp if pf else []) + parts[1][:3] + rest
        end_ = tail + parts[1][:-2] + fin_
        main = peel2 + parts[4] + full + full + parts[0] + pfp + redo(1) + full + nopf + parts[0] + redo(0) + nopf + last + tail + redo(0) + end_
        main = main[:-len(end_)] + parts[0] + parts[1] + parts[2] + pb2 + slow[2:] + prime + parts[0] + parts[1][:3] + rest + end_
        hl = parts[3] + p4h + htail
        main2 = peel2 + parts[4] + parts[0] + pfp + redo(1) + full + nopf + parts[0] + parts[1] + pb2 + hl + parts[1][:10] + slow + prime + parts[0] + parts[1][:3] + hl + parts[1][:-2] + fin_
        traces = []
        for w in range(8):
            if w < 4:
                k0 = w & 2
                tr = c0 + g0a + cc + g0pf + ch[k0] + ch[k0 + 1] + chb[k0 + 1] + w1a + ([] if k0 else w1b) + w1c
            else:
                tr = c0 + g1a + cc + uc0 + uc
            k = w >> 1
            tr += uph + ch[k] + (u0 if k % 2 == 0 else u1a + (u1b if k == 1 else u1c))
            for mn in (main, main2):
                traces.append(tr + peel1 + (peelw if w == 7 else []) + mn)
        return traces

    def build(self):
        pro = self.prologue()
        d = self.dnn()
        cs = self.cin()
        rm = self.rem()
        self.seq(['L_end:', 's_endpgm'])
        traces = [pro + c for c in d + cs + rm]
        for t in traces:
            resolve_waits(t)
        for _ in range(2):
            for t in traces:
                resolve_hazards(t)
        hdr = open(os.path.join(os.path.dirname(os.path.abspath(__file__)), 'header.txt')).read()
        txt = hdr + f'; @launch grid=(256,1,1) block=(512,1,1) lds={LDS_TOTAL}\n'
        txt += f'''.amdgcn_target "amdgcn-amd-amdhsa--gfx950"
{DOC}.text
.globl {KNAME}
.p2align 8
.type {KNAME},@function
{KNAME}:
'''
        body_ = self.P.emit()
        if 'wsame' in self.opt.dbg:
            body_ = body_.replace(f's_add_u32 s{S_WSOFF}, s{S_WSOFF}, {32 * 3328}', f's_xor_b32 s{S_WSOFF}, s{S_WSOFF}, 0')
        if 'xsame' in self.opt.dbg:
            import re as _re
            body_ = _re.sub(r'v_lshl_add_u32 v(2[4-9]|3[01]), v(1[6-9]), 7', r'v_lshl_add_u32 v\1, v16, 7', body_)
            body_ = _re.sub(r'v_lshl_add_u32 v(2[4-9]|3[01]), v(2[0-3]), 7', r'v_lshl_add_u32 v\1, v20, 7', body_)
            body_ = _re.sub(r'v_lshl_add_u32 v(2[4-9]|3[01]), v(9[6-9]), 7', r'v_lshl_add_u32 v\1, v96, 7', body_)
            body_ = _re.sub(r'v_lshl_add_u32 v(2[4-9]|3[01]), v(10[0-3]), 7', r'v_lshl_add_u32 v\1, v100, 7', body_)
            body_ = body_.replace('offen offset:12\n', 'offen offset:0\n').replace('offen offset:844\n', 'offen offset:832\n')
            body_ = body_.replace(f's_mov_b32 s{S_IDXOFF}, 28', f's_mov_b32 s{S_IDXOFF}, 0').replace(f's_add_u32 s{S_IDXOFF}, s{S_IDXOFF}, 16', 's_nop 0')
        if self.opt.align:
            for lab in ('L_dnn_loop0:', 'L_dnn_loop1:', 'L_cin_loop:', 'L_epi:'):
                pad = '  s_nop 0\n' if self.opt.align > 100 else ''
                body_ = body_.replace(lab + '\n', f'.p2align {self.opt.align % 100}\n{pad}{lab}\n')
        txt += body_
        txt += f'''.section .rodata,"a"
.p2align 6
.amdhsa_kernel {KNAME}
  .amdhsa_next_free_vgpr 256
  .amdhsa_next_free_sgpr 102
  .amdhsa_accum_offset 256
  .amdhsa_group_segment_fixed_size 0
  .amdhsa_kernarg_size 88
  .amdhsa_user_sgpr_count 2
  .amdhsa_user_sgpr_kernarg_segment_ptr 1
  .amdhsa_system_sgpr_workgroup_id_x 1
  .amdhsa_float_denorm_mode_32 {self.opt.denorm}
.end_amdhsa_kernel
'''
        return txt


def main():
    ap = argparse.ArgumentParser()
    ap.add_argument('-o', default='standalone__deep_cross_xdeepfm__recsys.s')
    ap.add_argument('--stamps', action='store_true')
    ap.add_argument('--padat', default='')
    ap.add_argument('--padmin', type=int, default=0)
    ap.add_argument('--nodma', action='store_true')
    ap.add_argument('--cpf', type=int, default=2)
    ap.add_argument('--coop', type=int, default=1)
    ap.add_argument('--coopw', type=int, default=2)
    ap.add_argument('--tbpos', type=int, default=0)
    ap.add_argument('--dbar3', type=int, default=1)
    ap.add_argument('--tlb', type=int, default=0)
    ap.add_argument('--tlb2', type=int, default=1)
    ap.add_argument('--itst', type=int, default=0)
    ap.add_argument('--diag', type=int, default=0)
    ap.add_argument('--dbg', default='')
    ap.add_argument('--lead3', type=int, default=1)
    ap.add_argument('--morder', type=int, default=0)
    ap.add_argument('--etlb', type=int, default=21)
    ap.add_argument('--lateb', type=int, default=0)
    ap.add_argument('--wfl', default='')
    ap.add_argument('--xfl', default='')
    ap.add_argument('--tag', type=int, default=0)
    ap.add_argument('--idxfirst', type=int, default=1)
    ap.add_argument('--bpos', type=int, default=2)
    ap.add_argument('--sigat', type=int, default=4)
    ap.add_argument('--epx', type=int, default=1)
    ap.add_argument('--denorm', type=int, default=3)
    ap.add_argument('--mprio', type=int, default=0)
    ap.add_argument('--swap', type=int, default=0)
    ap.add_argument('--bov', type=int, default=1)
    ap.add_argument('--rfirst', type=int, default=0)
    ap.add_argument('--g1x', type=int, default=0)
    ap.add_argument('--ldsred', type=int, default=0)
    ap.add_argument('--csnake', type=int, default=0)
    ap.add_argument('--cswap', type=int, default=0)
    ap.add_argument('--align', type=int, default=0)
    ap.add_argument('--c2', type=int, default=0)
    ap.add_argument('--d1', type=int, default=0)
    ap.add_argument('--cstr', type=int, default=3)
    ap.add_argument('--bearly', type=int, default=1)
    ap.add_argument('--w2late', type=int, default=1)
    ap.add_argument('--aov', type=int, default=3)
    ap.add_argument('--upos', type=int, default=1)
    ap.add_argument('--calt', type=int, default=1)
    ap.add_argument('--pfpos', type=int, default=1)
    ap.add_argument('--wlate', type=int, default=0)
    ap.add_argument('--dbar2', type=int, default=0)
    ap.add_argument('--dbar', type=int, default=0)
    ap.add_argument('--pfw', type=int, default=1)
    ap.add_argument('--pfx', type=int, default=3)
    ap.add_argument('--pfx0', type=int, default=4)
    ap.add_argument('--pfs', type=int, default=14)
    ap.add_argument('--dcoopx', type=int, default=1)
    ap.add_argument('--dcx0', type=int, default=0)
    ap.add_argument('--dcxpos', type=int, default=-1)
    ap.add_argument('--pfe0', type=int, default=2)
    ap.add_argument('--pfne', type=int, default=14)
    ap.add_argument('--prio47', type=int, default=0)
    ap.add_argument('--lookahead', type=int, default=5)
    ap.add_argument('--nz', type=int, default=6)
    ap.add_argument('--nwf', type=int, default=8)
    ap.add_argument('--hiat', type=int, default=4)
    ap.add_argument('--wmerge', type=int, default=0)
    ap.add_argument('--gapv', type=int, default=2)
    ap.add_argument('--lat', type=int, default=3)
    ap.add_argument('--gs', type=int, default=0)
    ap.add_argument('--t2', type=int, default=0)
    ap.add_argument('--t2g', type=int, default=9)
    ap.add_argument('--lc', type=int, default=0)
    ap.add_argument('--x64', type=int, default=0)
    ap.add_argument('--rv', type=int, default=0)
    ap.add_argument('--rwi', type=int, default=10)
    ap.add_argument('--epoll', type=int, default=2)
    ap.add_argument('--w1s', type=int, default=1)
    ap.add_argument('--cal', type=int, default=-1)
    ap.add_argument('--pfa', type=int, default=1)
    ap.add_argument('--w2e', type=int, default=0)
    ap.add_argument('--rpr', type=int, default=0)
    ap.add_argument('--pr', type=int, default=1)
    ap.add_argument('--y1', type=int, default=0)
    ap.add_argument('--y2', type=int, default=40)
    ap.add_argument('--pp0', type=int, default=2)
    ap.add_argument('--pp1', type=int, default=2)
    ap.add_argument('--w2', type=int, default=1)
    ap.add_argument('--cw', type=int, default=1)
    ap.add_argument('--wgap', type=int, default=2)
    ap.add_argument('--psl', type=int, default=0)
    ap.add_argument('--wr8', type=int, default=0)
    ap.add_argument('--lb', type=int, default=0)
    ap.add_argument('--sym', type=int, default=0)
    ap.add_argument('--n4', type=int, default=20)
    ap.add_argument('--tbl', type=int, default=0)
    ap.add_argument('--nopf', type=int, default=16)
    ap.add_argument('--idx1', type=int, default=1)
    ap.add_argument('--sv', type=int, default=1)
    ap.add_argument('--pb', type=int, default=3)
    ap.add_argument('--dpf', type=int, default=0)
    ap.add_argument('--dpn', type=int, default=4)
    ap.add_argument('--mord', type=int, default=0)
    ap.add_argument('--q0', type=int, default=5)
    ap.add_argument('--q1', type=int, default=7)
    ap.add_argument('--u0', type=int, default=8)
    ap.add_argument('--un', type=int, default=26)
    ap.add_argument('--ro', type=int, default=0)
    ap.add_argument('--dfirst', type=int, default=0)
    ap.add_argument('--er0', type=int, default=0)
    ap.add_argument('--er1', type=int, default=0)
    ap.add_argument('--lg0', type=int, default=0)
    ap.add_argument('--fprio', type=int, default=1)
    ap.add_argument('--lite', type=int, default=0)
    ap.add_argument('--pf1', type=int, default=3)
    ap.add_argument('--amp', type=int, default=0)
    ap.add_argument('--ofl', default='')
    ap.add_argument('--uprio', type=int, default=0)
    ap.add_argument('--ccpos', type=int, default=1)
    ap.add_argument('--s1e', type=int, default=9)
    ap.add_argument('--s2e', type=int, default=0)
    ap.add_argument('--shs', type=int, default=256)
    ap.add_argument('--pfp', type=int, default=1)
    ap.add_argument('--epos', type=int, default=3)
    ap.add_argument('--hook', type=int, default=100)
    ap.add_argument('--rrd', type=int, default=11)
    ap.add_argument('--rdrop', default='')
    ap.add_argument('--pfr', type=int, default=4)
    ap.add_argument('--vin', type=int, default=1)
    ap.add_argument('--rstag', type=int, default=1)
    ap.add_argument('--eprio', type=int, default=1)
    ap.add_argument('--nopk', type=int, default=0)
    ap.add_argument('--w1first', type=int, default=0)
    ap.add_argument('--xpos', type=int, default=1)
    ap.add_argument('--z1lo', type=int, default=40)
    ap.add_argument('--pfend', type=int, default=3)
    ap.add_argument('--gst', type=int, default=0)
    ap.add_argument('--gapl', type=int, default=2)
    ap.add_argument('--gapt', type=int, default=2)
    ap.add_argument('--wcost', type=int, default=2)
    ap.add_argument('--bprio', type=int, default=0)
    ap.add_argument('--c1hi', type=int, default=-8)
    ap.add_argument('--c2hi', type=int, default=12)
    ap.add_argument('--rspan', type=int, default=48)
    ap.add_argument('--rlead', type=int, default=14)
    ap.add_argument('--pfd', type=int, default=16)
    ap.add_argument('--mo', type=int, default=4)
    ap.add_argument('--ba', type=int, default=8)
    ap.add_argument('--sig2', type=int, default=4)
    ap.add_argument('--drop', default='')
    ap.add_argument('--al8', type=int, default=4)
    ap.add_argument('--alph', type=int, default=0)
    ap.add_argument('--almm', type=int, default=0)
    ap.add_argument('--phi', type=int, default=110)
    ap.add_argument('--rawlo', type=int, default=8)
    ap.add_argument('--flo', type=int, default=2)
    opt = ap.parse_args()
    resolve_waits.dbg = 'dup' in opt.dbg
    g = Gen(opt)
    txt = g.build()
    if opt.al8:
        import align8
        rg = []
        if opt.al8 & 1:
            rg.append(('L_cin_loop', 'L_slow'))
        if opt.al8 & 2:
            rg += [('L_dnn_loop0', 'L_dnn_h1'), ('L_dnn_loop1', 'L_epi')]
        if opt.al8 & 4:
            rg += [('L_epi', 'L_dpub'), ('L_repi', 'L_rclr')]
        txt = align8.align(txt, rg, opt.alph, opt.almm)
    if opt.cal >= 0:
        txt = txt.replace('L_cin_loop:\n', '.p2align 6\n' + '  s_nop 0\n' * (opt.cal // 4) + 'L_cin_loop:\n' , 1)
        txt = txt.replace('L_rem:\n', '.p2align 3\nL_rem:\n', 1)
    open(opt.o, 'w').write(txt)
    print('wrote', opt.o, len(txt), 'bytes')


if __name__ == '__main__':
    main()
```

```python
import sys, os, struct, argparse
sys.path.insert(0, os.path.dirname(os.path.abspath(__file__)))
from cinplan import ZD, cls
from asmlib import I, WaitTag, Prog, resolve_waits, resolve_hazards

KNAME = 'standalone__deep_cross_xdeepfm__recsys_kernel'
LDS_TOTAL = 163840

XSLOT = 8192
WR = 4 * XSLOT
WP = 640
WSLOT = 32 * WP
L_BIAS = WR + 6 * WSLOT
L_W2 = L_BIAS + WP
RB = L_W2 + WP
assert RB + 2048 <= LDS_TOTAL
RWR = 131072

ASZ = 35264
A1 = 1024
A2 = A1 + ASZ
A3 = A2 + ASZ
UST = 1356
V3OFF = A3 + ASZ
V2OFF = V3OFF + 2048
L_WCO = V2OFF + 1408
L_FLG = L_WCO + 192
RC = L_FLG + 64
XB0 = RC + 512
XPI = 1056
XBSZ = 4 * XPI
XB1 = A3
TA = A1
TC = TA + 11 * 1024
TD = TC + 12 * 1024
TB = A2
XSP = A1
XCH = XB0 + 8 * XBSZ
OOB = 0x100000
NCLR = 56
NPOOL = 224
assert XCH + 8192 <= LDS_TOTAL and XB0 % 16 == 0 and A2 % 16 == 0 and A3 % 16 == 0 and L_WCO % 16 == 0
assert 8 * XBSZ <= ASZ and TD + 11 * 1024 <= A2

S_WAVE = 3
S_IDX, S_TAB, S_CIN, S_WCO, S_W1, S_B1, S_W2, S_BO, S_OUT, S_DBG, S_WS = 4, 6, 8, 10, 12, 14, 16, 18, 20, 22, 24
S_MB, S_R = 26, 27
SRD_IDX, SRD_TAB, SRD_CIN, SRD_WCO, SRD_W, SRD_B1, SRD_W2, SRD_OUT, SRD_WS, SRD_DBG = 28, 32, 36, 40, 44, 48, 52, 56, 60, 64
S_T0, S_T1, S_T2, S_T3 = 68, 69, 70, 71
S_LOOP, S_IDXOFF, S_WSOFF, S_WMB, S_XM0, S_N0, S_C0, S_CW, S_BOUT, S_TW = 72, 73, 74, 75, 76, 77, 78, 79, 80, 81
S_EX = 82
S_GRP, S_RC = 84, 85
S_ST = 86
S_M26, S_MASK = 90, 92
S_SAMP, S_STG, S_STG9, S_TGT = 94, 95, 96, 97
S_M26B = 98
S_GW = 100
S_TAGT = 0
S_TAG = 1
S_PW = 101
S_PX = 77
S_PXE = 73

GELU_C0 = -2.0 * 0.7978845608028654 * 1.4426950408889634
GELU_C1 = GELU_C0 * 0.044715


def f32hex(x):
    return '0x%08x' % struct.unpack('<I', struct.pack('<f', x))[0]


def vr(a, n):
    return f'v[{a}:{a + n - 1}]' if n > 1 else f'v{a}'


def srd(a):
    return f's[{a}:{a + 3}]'


def flat(gs):
    res = []
    for c in gs:
        if isinstance(c, (tuple, list)):
            res += flat(c)
        else:
            res.append(c)
    return res


def interleave(a, b):
    out = []
    ia = ib = 0
    na, nb = len(a), len(b)
    while ia < na or ib < nb:
        if ib >= nb or (ia < na and ia * nb <= ib * na):
            out.append(a[ia]); ia += 1
        else:
            out.append(b[ib]); ib += 1
    return out


assert all((d * 2521) >> 16 == d // 26 for d in range(800))
assert all((d * 10923) >> 16 == d // 6 for d in range(64))
assert all((d * 1561) >> 16 == d // 42 for d in range(176))


DOC = '''; ---------------------------------------------------------------------------------------------
;
;       V3[h,k]  = sum_g wo[52+g] W3[g,h,k]          V2[i,j] = sum_h wo[26+h] W2[h,i,j]
;       U[i,j,k] = sum_h W2[h,i,j] V3[h,k]
;       g1[i]    = wo[i] + sum_j V2[i,j] x_j + sum_jk U[i,j,k] x_j x_k
;   Both quadratic forms use the 351 distinct products x_j x_k (j<=k) with symmetrised weights on fp16 MFMA
;   (fp32 accumulate).  Range is handled with power-of-two scales derived from the data on every launch:
; Work split per group of 512 samples (32 workgroups): 20 workgroups do 128 x 320 tiles of the DNN GEMM,
;   Partial logits go through d_ws (sc1): the 64-column workgroup resets the slots at its start (announced in
;   d_debug), later polls until every slot is filled, adds up and writes d_out.
; ---------------------------------------------------------------------------------------------
'''


class Gen:
    def __init__(self, opt):
        self.opt = opt
        self.P = Prog()
        self.role = 'x'

    def seq(self, lines):
        return [self.P.add(l) for l in flat(lines)]

    def build_srd(self, dst, ptr, size):
        return [f's_mov_b32 s{dst}, s{ptr}', f's_and_b32 s{dst + 1}, s{ptr + 1}, 0xffff',
                f's_mov_b32 s{dst + 2}, {size}', f's_mov_b32 s{dst + 3}, 0x20000']

    def stamp(self, slot):
        if self.opt.padat == f'{self.role}{slot}':
            return [f's_memrealtime s[88:89]', 's_waitcnt lgkmcnt(0)']
        if not self.opt.stamps or (self.opt.lite and f'{self.role}{slot}' not in ('c8', 'c9', 'd2', 'd4', 'r2', 'r4', 'r5')):
            return []
        return [f's_memtime s[{S_ST}:{S_ST + 1}]', f's_memrealtime s[{S_ST + 2}:{S_ST + 3}]', 's_waitcnt lgkmcnt(0)',
                f'v_writelane_b32 v252, s{S_ST}, {slot}', f'v_writelane_b32 v253, s{S_ST + 2}, {slot}']

    def stamp_flush(self):
        if not self.opt.stamps:
            return []
        L = self.build_srd(SRD_WS, S_WS, 0x10000000)
        L += [f's_lshl_b32 s{S_C0}, s2, 3', f's_add_u32 s{S_C0}, s{S_C0}, s{S_WAVE}',
              f's_lshl_b32 s{S_C0}, s{S_C0}, 8', f's_add_u32 s{S_C0}, s{S_C0}, 0x100000',
              'v_lshlrev_b32 v254, 3, v0', 's_mov_b32 exec_hi, 0',
              f'buffer_store_dwordx2 v[252:253], v254, {srd(SRD_WS)}, s{S_C0} offen', 's_mov_b32 exec_hi, -1']
        return L

    def stamp0(self):
        if not self.opt.stamps:
            return self.stamp(15)
        return ['v_mov_b32 v252, 0xcdcdcdcd', 'v_mov_b32 v253, 0xcdcdcdcd',
                f'v_writelane_b32 v252, s{S_ST}, 0', f'v_writelane_b32 v253, s{S_ST + 2}, 0'] + self.stamp(15)

    def tlb2(self, t, vflag):
        L = self.build_srd(SRD_WS, S_WS, 0x10000000) + self.build_srd(SRD_DBG, S_DBG, 256)
        L += [f'v_lshlrev_b32 v{t}, 2, v0',
              ('s_mov_b64 exec, 0xff', f's_mov_b32 s{S_TW}, 0x80000',
               f'buffer_load_dword v255, v{t}, {srd(SRD_WS)}, s{S_TW} offen',
               f'buffer_load_dword v{vflag}, v{t}, {srd(SRD_DBG)}, 0 offen offset:128 sc1',
               's_mov_b64 exec, -1'), f'v_mov_b32 v{t}, 0']
        return L

    def cleared(self, lab, grp, vflag):
        chk = [f'v_cmp_eq_u32 vcc, 0, v{vflag}', f's_bitcmp1_b32 vcc_lo, s{S_TW}']
        return grp + chk + [f's_cbranch_scc0 {lab}_ok', f's_mov_b32 s{S_C0}, 0x40000',
                f'{lab}:', f's_sub_u32 s{S_C0}, s{S_C0}, 1', f's_cbranch_scc1 {lab}_ok', f'v_lshlrev_b32 v{vflag}, 2, v0', f'v_and_b32 v{vflag}, 31, v{vflag}',
                f'buffer_load_dword v{vflag}, v{vflag}, {srd(SRD_DBG)}, 0 offen offset:128 sc1', 's_waitcnt vmcnt(0)'] + chk + [f's_cbranch_scc1 {lab}', f'{lab}_ok:']

    def padsig(self):
        o = self.opt
        if not o.padat:
            return []
        pre = ['v_mov_b32 v8, 4']
        if (o.padat[0] if o.padat != 'start' else 'd') != self.role:
            return pre
        return pre + [f's_cmp_lg_u32 s{S_WAVE}, 0', 's_cbranch_scc1 L_nosig'] + ([f's_not_b32 s88, s88'] if o.padmin else []) + ['v_mov_b32 v7, s88', 's_mov_b64 exec, 1',
                f'buffer_atomic_umax v7, v8, {srd(SRD_DBG)}, 0 offen', 's_mov_b64 exec, -1', 'L_nosig:']

    def tlb1(self, vtmp, vdst):
        if not self.opt.etlb:
            return self.build_srd(SRD_TAB, S_TAB, 100000 * 128)
        return self.build_srd(SRD_TAB, S_TAB, 100000 * 128) + [
            f'v_mov_b32 v{vtmp}, s{S_BOUT}', f'buffer_load_dword v{vdst}, v{vtmp}, {srd(SRD_TAB)}, 0 offen']

    def prologue(self):
        L = []
        if self.opt.padat == 'start' or self.opt.amp in (1, 2, 3):
            L += ['s_memrealtime s[88:89]']
        elif self.opt.padat:
            L += [f's_mov_b32 s88, {-1 if self.opt.padmin else 0}']
        if self.opt.stamps:
            L += [f's_memtime s[{S_ST}:{S_ST + 1}]', f's_memrealtime s[{S_ST + 2}:{S_ST + 3}]']
        L += ['s_cmp_ge_u32 s2, 256', 's_cbranch_scc1 L_end',
              's_load_dwordx16 s[4:19], s[0:1], 0',
              's_load_dwordx4 s[20:23], s[0:1], 64',
              's_load_dwordx2 s[24:25], s[0:1], 80',
              'v_lshrrev_b32 v1, 6, v0']
        if self.opt.cpf:
            L += [f's_getpc_b64 s[{S_MASK}:{S_MASK + 1}]', 'L_pc:',
                  f's_and_b32 s{S_T0}, s2, 0xf8', f'v_add_u32 v2, s{S_T0}, v1', 'v_lshlrev_b32 v2, 7, v2'] + (['v_and_b32 v3, 1, v0', 'v_lshl_add_u32 v2, v3, 15, v2'] if self.opt.cpf == 2 else []) + [
                  f'v_min_u32 v2, L_end-L_pc, v2',
                  f'v_mov_b32 v3, s{S_MASK + 1}',
                  f'v_add_co_u32 v2, vcc, s{S_MASK}, v2', 'v_addc_co_u32 v3, vcc, 0, v3, vcc',
                  'global_load_dword v255, v[2:3], off']
        L += ['v_and_b32 v0, 63, v0',
              f'v_readfirstlane_b32 s{S_WAVE}, v1',
              f's_and_b32 s{S_T0}, s2, 7', f's_lshl_b32 s{S_T0}, s{S_T0}, 2',
              f's_lshr_b32 s{S_MB}, s2, 6', f's_add_u32 s{S_MB}, s{S_MB}, s{S_T0}',
              f's_bfe_u32 s{S_R}, s2, 0x30003',
              f's_and_b32 s{S_BOUT}, s2, 0xf8', f's_add_u32 s{S_BOUT}, s{S_BOUT}, s{S_WAVE}', f's_lshl_b32 s{S_BOUT}, s{S_BOUT}, {self.opt.etlb}',
              f's_lshr_b32 s{S_T0}, s2, 3', f's_cmp_eq_u32 s{S_T0}, 5', 's_cbranch_scc1 L_rem',
              f's_cmp_ge_u32 s{S_R}, 5', 's_cbranch_scc1 L_cin']
        return self.seq(L)

    def gelu(self, groups, TB, KC0, KC1, KONE, seen=()):
        p2 = lambda r: vr(r, 2)
        L = []
        seen = set(seen)
        for k, vals in enumerate(groups):
            tb = TB + (k % 2) * 16
            V_ = [(x, w, s_, tb + 4 * i_, tb + 4 * i_ + 2) for i_, (x, w, s_) in enumerate(vals)]
            for (x, w, s_, t, u) in V_:
                L.append(f'v_pk_mul_f32 {p2(t)}, {p2(x)}, {p2(x)}')
            for (x, w, s_, t, u) in V_:
                L.append(f'v_pk_fma_f32 {p2(t)}, {p2(t)}, {p2(KC1)}, {p2(KC0)}')
            for (x, w, s_, t, u) in V_:
                L.append(f'v_pk_mul_f32 {p2(t)}, {p2(t)}, {p2(x)}')
            for (x, w, s_, t, u) in V_:
                L += [f'v_exp_f32 v{t}, v{t}', f'v_exp_f32 v{t + 1}, v{t + 1}']
            for (x, w, s_, t, u) in V_:
                L.append(f'v_pk_fma_f32 {p2(t)}, {p2(t)}, {p2(w)}, {p2(w)}')
            for (x, w, s_, t, u) in V_:
                L += [f'v_rcp_f32 v{t}, v{t}', f'v_rcp_f32 v{t + 1}, v{t + 1}']
            for (x, w, s_, t, u) in V_:
                if s_ in seen:
                    L.append(f'v_pk_fma_f32 {p2(s_)}, {p2(t)}, {p2(x)}, {p2(s_)}')
                else:
                    L.append(f'v_pk_mul_f32 {p2(s_)}, {p2(t)}, {p2(x)}')
                    seen.add(s_)
        if self.opt.nopk:
            import re as _re
            L2 = []
            for x in L:
                if x.startswith('v_pk_'):
                    mn = x.split()[0].replace('v_pk_', 'v_')
                    rs = [int(r) for r in _re.findall(r'v\[(\d+):', x)]
                    L2 += [f'{mn} ' + ', '.join(f'v{r + h}' for r in rs) for h in range(2)]
                else:
                    L2.append(x)
            L = L2
        return L

    def gelu2(self, groups, TB, KC0, KC1, KSH):
        p2 = lambda r: vr(r, 2)
        L = []
        seen = set()
        for k, vals in enumerate(groups):
            tb = TB + (k % 2) * 24
            H = [(x + 2 * d, tb + 6 * i_ + 2 * d, k0[d], k1[d]) for i_, (x, k0, k1, s_) in enumerate(vals) for d in range(2)]
            F = [(x, tb + 6 * i_, s_) for i_, (x, k0, k1, s_) in enumerate(vals)]
            L += [f'v_pk_mul_f32 {p2(t)}, {p2(x)}, {p2(x)}' for (x, t, k0, k1) in H]
            L += [f'v_pk_fma_f32 {p2(t)}, {p2(t)}, {p2(KC1)}, {p2(KC0)}' for (x, t, k0, k1) in H]
            L += [f'v_pk_fma_f32 {p2(t)}, {p2(t)}, {p2(x)}, {p2(KSH)}' for (x, t, k0, k1) in H]
            L += [f'v_exp_f32 v{t + h}, v{t + h} clamp' for (x, t, k0, k1) in H for h in range(2)]
            L += [f'v_pk_fma_f32 {p2(t)}, {p2(t)}, {p2(k1)}, {p2(k0)}' for (x, t, k0, k1) in H]
            L += [f'v_pk_mul_f32 {p2(t + 4)}, {p2(x)}, {p2(t + 2)}' for (x, t, s_) in F]
            L += [f'v_pk_fma_f32 {p2(t + 4)}, {p2(x + 2)}, {p2(t)}, {p2(t + 4)}' for (x, t, s_) in F]
            L += [f'v_pk_mul_f32 {p2(t)}, {p2(t)}, {p2(t + 2)}' for (x, t, s_) in F]
            L += [f'v_rcp_f32 v{t + h}, v{t + h}' for (x, t, s_) in F for h in range(2)]
            for (x, t, s_) in F:
                L.append(f'v_pk_fma_f32 {p2(s_)}, {p2(t)}, {p2(t + 4)}, {p2(s_)}' if s_ in seen else f'v_pk_mul_f32 {p2(s_)}, {p2(t)}, {p2(t + 4)}')
                seen.add(s_)
        return L

    def winv2(self, R, n, K1, KL, SC):
        L = [f'v_mov_b32 v{SC}, 0x21800000', f'v_mov_b32 v{KL}, 0x30800000']
        L += [f'v_max3_f32 v{SC}, v{SC}, abs(v{R + k}), abs(v{R + k + 1})' for k in range(0, n, 2)]
        L += [f'v_and_b32 v{SC}, 0x7f800000, v{SC}', f'v_mul_f32 v{SC}, 0x22000000, v{SC}']
        L += [f'v_rcp_f32 v{R + k}, v{R + k}' for k in range(n)] + [f'v_mul_f32 v{R + k}, v{SC}, v{R + k}' for k in range(n)]
        L += [f'v_med3_f32 v{R + k}, v{R + k}, -v{KL}, v{KL}' for k in range(n)] + [f'v_mul_f32 v{K1[k]}, 0x6c800000, v{R + k}' for k in range(n)]
        return L

    def red4(self, SUMP, SC=None):
        sm = lambda tm: SUMP + 2 * tm
        L = [f'v_add_f32 v{sm(tm)}, v{sm(tm)}, v{sm(tm) + 1}' for tm in range(4)]
        if SC is not None:
            L += [f'v_mul_f32 v{sm(tm)}, v{SC}, v{sm(tm)}' for tm in range(4)]
        L += [f'v_permlane32_swap_b32 v{sm(tm)}, v{sm(tm + 2)}' for tm in range(2)]
        L += [f'v_add_f32 v{sm(tm)}, v{sm(tm)}, v{sm(tm + 2)}' for tm in range(2)]
        L += [f'v_permlane16_swap_b32 v{sm(0)}, v{sm(1)}', f'v_add_f32 v{sm(0)}, v{sm(0)}, v{sm(1)}']
        return L

    def kconst(self, KC0, KC1, KONE, pr=None):
        return [f'v_mov_b32 v{KC0}, {f32hex(GELU_C0)}', f'v_mov_b32 v{KC0 + 1}, {f32hex(GELU_C0)}',
                f'v_mov_b32 v{KC1}, {f32hex(GELU_C1)}', f'v_mov_b32 v{KC1 + 1}, {f32hex(GELU_C1)}',
                ] + ([f'v_mov_b32 v{KONE}, 0x71800000'] if not (self.opt.pr if pr is None else pr) else [f'v_mov_b32 v{KONE}, {f32hex(-90.0)}', f'v_mov_b32 v{KONE + 1}, {f32hex(-90.0)}'])

    def winv(self, R, n, KONE):
        return [f'v_rcp_f32 v{R + k}, v{R + k}' for k in range(n)] + [f'v_med3_f32 v{R + k}, v{R + k}, -v{KONE}, v{KONE}' for k in range(n)]

    def dnn(self):
        o = self.opt
        self.role = 'd'
        vW = [[1, 2, 3, 4, 5], [6, 7, 8, 9, 10]]
        vX = [11, 12]
        vIdxOff, vCh = 13, [14, 15]
        ST = [[16, 20], [24, 240]]
        VO = [28, 34]
        vWD = [29, 30, 31, 32, 33]
        vP, vPc, vBL = 35, 36, 37
        WF = 40
        XA = 80
        T = 44
        W2F = 112
        ACC = 140
        PK = 220
        SUMP, KC0, KC1, KONE = 16, 232, 234, 236

        def acc(tn, tm):
            return ACC + (tn * 4 + tm) * 4

        HH, SL = S_T0, S_T1
        g, i4, q = T + 18, T + 19, T + 20
        PI, vCW = T + 8, T + 12
        nr = o.coopw
        L = [f's_mul_i32 s{S_N0}, s{S_R}, {WP}',
             f's_mul_i32 s{S_T2}, s{S_WAVE}, 7', f'v_min_u32 v{q}, 6, v0', f'v_add_u32 v{q}, s{S_T2}, v{q}', f'v_min_u32 v{q}, 51, v{q}',
             f'v_lshrrev_b32 v{g}, 1, v{q}', f'v_mul_u32_u24 v{g}, 96, v{g}', f'v_lshl_add_u32 v{q}, v{q}, 2, v{g}',
             f's_mul_i32 s{S_C0}, s{S_R}, 26', f's_min_u32 s{S_C0}, s{S_C0}, 102', f's_lshl_b32 s{S_T3}, s{S_MB}, 7',
             f's_add_u32 s{S_C0}, s{S_C0}, s{S_T3}', f's_mul_i32 s{S_C0}, s{S_C0}, 104',
             f's_and_b32 s{S_T2}, s{S_MB}, 3', f's_lshl_b32 s{S_T2}, s{S_T2}, 3', f's_add_u32 s{S_T2}, s{S_T2}, s{S_WAVE}',
             f's_mul_i32 s{S_T2}, s{S_T2}, 3328', f's_add_u32 s{S_TW}, s{S_T2}, s{S_N0}',
             f'v_min_u32 v{vCW}, {8 * nr - 1}, v0', f'v_lshrrev_b32 v{g}, 3, v{vCW}', f's_mov_b32 s{S_T2}, {32 * 3328}',
             f'v_mul_u32_u24 v{g}, s{S_T2}, v{g}',
             f'v_and_b32 v{vCW}, 7, v{vCW}', f'v_min_u32 v{vCW}, 4, v{vCW}', f'v_lshl_add_u32 v{vCW}, v{vCW}, 7, v{g}',
             f's_xor_b32 s{S_T2}, s{S_WAVE}, 4', f's_lshl_b32 s{S_T2}, s{S_T2}, 4', f's_add_u32 s{S_T2}, s{S_T2}, s{S_T3}',
              f'v_lshrrev_b32 v{T + 16}, 3, v0', f'v_add_u32 v{T + 16}, s{S_T2}, v{T + 16}',
              f'v_mul_u32_u24 v{vIdxOff}, 104, v{T + 16}',
             's_waitcnt lgkmcnt(0)']
        L += self.build_srd(SRD_IDX, S_IDX, 4096 * 104)
        own = [f'buffer_load_dwordx2 {vr(T + 4 * pc, 2)}, v{vIdxOff}, {srd(SRD_IDX)}, 0 offen offset:{pc * 832}' for pc in range(2)]
        L += (own if o.idx1 == 2 else []) + [f'buffer_load_dwordx3 {vr(PI, 3)}, v{q}, {srd(SRD_IDX)}, s{S_C0} offen'] + (own if o.idx1 == 1 else [])
        L += self.tlb1(T + 24, 255)
        vec = lambda dst, sr: [f's_mov_b32 m0, {dst}', 's_mov_b32 exec_hi, 0xff',
                               I(f'buffer_load_dwordx4 v{vBL}, {srd(sr)}, s{S_N0} offen lds', tag='BIAS'), 's_mov_b64 exec, -1']
        L += [f'v_lshlrev_b32 v{vBL}, 4, v0'] + self.build_srd(SRD_B1, S_B1, 3328)
        L += self.build_srd(SRD_W, S_W1, 1664 * 3328)
        L += [f'buffer_load_dword v255, v{vCW}, {srd(SRD_W)}, s{S_TW} offen']
        dpf = [f's_mul_i32 s{S_TW}, s{S_MB}, 5', f's_add_u32 s{S_TW}, s{S_TW}, s{S_R}', f's_lshl_b32 s{S_TW}, s{S_TW}, 3', f's_add_u32 s{S_TW}, s{S_TW}, s{S_WAVE}',
               f's_add_u32 s{S_TW}, s{S_TW}, {2 * 832}', f's_lshl_b32 s{S_TW}, s{S_TW}, 7', f'v_min_u32 v{vCW}, {o.dpn - 1}, v0', f'v_mul_u32_u24 v{vCW}, {1280 * 128}, v{vCW}',
               f'buffer_load_dword v255, v{vCW}, {srd(SRD_W)}, s{S_TW} offen']
        L += vec(L_BIAS, SRD_B1) + (self.build_srd(SRD_W2, S_W2, 3328) + vec(L_W2, SRD_W2) if o.w2e else []) + (dpf if o.dpf == 1 else [])
        L += self.stamp0()
        L += [f's_lshr_b32 s{HH}, s{S_WAVE}, 2', f's_and_b32 s{SL}, s{S_WAVE}, 3',
              f's_mov_b32 s{S_T2}, 1639', f's_and_b32 s{S_C0}, s{SL}, 1', f's_lshl_b32 s{S_C0}, s{S_C0}, 2',
              f's_mov_b32 s{S_TW}, 3328', f'v_mov_b32 v{T + 16}, v0']
        for u in range(5):
            ci, rr = T + 16, T + 17
            L += [f'v_mul_u32_u24 v{rr}, s{S_T2}, v{ci}', f'v_lshrrev_b32 v{rr}, 16, v{rr}',
                  f'v_mul_u32_u24 v{q}, 40, v{rr}', f'v_sub_u32 v{q}, v{ci}, v{q}',
                  f'v_and_b32 v{i4}, 2, v{rr}', f'v_or_b32 v{i4}, s{S_C0}, v{i4}', f'v_xor_b32 v{q}, v{q}, v{i4}',
                  f'v_mul_u32_u24 v{rr}, s{S_TW}, v{rr}', f'v_lshl_add_u32 v{vWD[u]}, v{q}, 4, v{rr}']
            if u % 4:
                L += [f'v_subrev_u32 v{vWD[u]}, {1024 * u}, v{vWD[u]}']
            if u < 4:
                L += [f'v_add_u32 v{ci}, 64, v{ci}']
        L += [f's_mul_i32 s{S_T2}, s{S_WAVE}, {8 * 3328}', f's_add_u32 s{S_WSOFF}, s{S_T2}, s{S_N0}',
              f's_mul_i32 s{S_WMB}, s{S_WAVE}, {8 * WP}', f's_add_u32 s{S_WMB}, s{S_WMB}, {WR}',
              f's_lshl_b32 s{S_T3}, s{HH}, 14', f's_lshl_b32 s{S_XM0}, s{SL}, 11', f's_add_u32 s{S_XM0}, s{S_XM0}, s{S_T3}', f's_xor_b32 s{S_XM0}, s{S_XM0}, {2 * XSLOT}',
              f'v_and_b32 v{q}, 7, v0', f'v_lshrrev_b32 v{g}, 4, v0',
              f'v_xor_b32 v{q}, v{q}, v{g}', f'v_lshlrev_b32 v{vCh[0]}, 4, v{q}',
              f'v_xor_b32 v{vCh[1]}, 64, v{vCh[0]}']
        LAB = L
        L = [f'v_and_b32 v{q}, 15, v0', f'v_lshlrev_b32 v{q}, 7, v{q}', f's_lshl_b32 s{S_T3}, s{HH}, 14',
              f'v_bfe_u32 v{i4}, v0, 1, 3', f'v_xor_b32 v{i4}, v{i4}, v{g}', f'v_lshl_add_u32 v{q}, v{i4}, 4, v{q}',
              f'v_add_u32 v{vX[0]}, s{S_T3}, v{q}', f'v_xor_b32 v{vX[1]}, 64, v{vX[0]}']
        L += self.build_srd(SRD_W2, S_W2, 3328)
        L += [f's_mul_i32 s{S_T3}, s{SL}, 5',
              f'v_bfe_u32 v{i4}, v0, 2, 2', f'v_lshl_add_u32 v{q}, v{g}, 3, v{i4}', f'v_mul_u32_u24 v{q}, {WP}, v{q}',
              f'v_and_b32 v{i4}, 3, v0', f'v_lshl_add_u32 v{q}, v{i4}, 3, v{q}', f'v_add_u32 v{q}, {WR}, v{q}',
              f'v_bfe_u32 v{i4}, v0, 3, 2']
        for i in range(5):
            L += [f'v_xor_b32 v{T + 16}, s{S_T3}, v{i4}', f'v_lshl_add_u32 v{vW[0][i]}, v{T + 16}, 5, v{q}',
                  f'v_add_u32 v{vW[1][i]}, {3 * WSLOT}, v{vW[0][i]}', f's_add_u32 s{S_T3}, s{S_T3}, 1']
        L += [f's_mul_i32 s{S_T3}, s{SL}, 160', f's_add_u32 s{S_T3}, s{S_T3}, {L_BIAS}',
              f'v_lshlrev_b32 v{q}, 3, v{g}', f'v_add_u32 v{vP}, s{S_T3}, v{q}',
              f's_lshl_b32 s{S_T2}, s{SL}, 1', f's_add_u32 s{S_T2}, s{S_T2}, s{HH}', f's_lshl_b32 s{S_T2}, s{S_T2}, 8', f's_add_u32 s{S_T2}, s{S_T2}, {RB}',
              f'v_lshlrev_b32 v{vPc}, 2, v0', f'v_add_u32 v{vPc}, s{S_T2}, v{vPc}']
        LC, L = (L, LAB) if o.lc else ([], LAB + L)

        def wld(u):
            return I(f'buffer_load_dwordx4 v{vWD[u]}, {srd(SRD_W)}, s{S_WSOFF} offen offset:{1024 * (u % 4)}{o.wfl} lds', tag='W')

        def wst(stage):
            return [(f's_add_u32 m0, s{S_WMB}, {(stage % 3) * 2 * WSLOT}', wld(0)), (wld(1),), (wld(2),), (wld(3),),
                    ('s_add_u32 m0, m0, 4096', wld(4), f's_add_u32 s{S_WSOFF}, s{S_WSOFF}, {64 * 3328}')]

        def xld(v, m0, tag='X'):
            return (m0, I(f'buffer_load_dwordx4 v{v}, {srd(SRD_TAB)}, 0 offen{o.xfl} lds', tag=tag))
        pkreads = lambda off: [f'ds_read_b64 {vr(PK + 2 * tn, 2)}, v{vP} offset:{off + 32 * tn}' for tn in range(5)]

        def unp(dst):
            c = []
            for tn in range(5):
                for d in range(2):
                    c += [f'v_lshlrev_b32 v{dst(tn) + 2 * d}, 16, v{PK + 2 * tn + d}', f'v_and_b32 v{dst(tn) + 2 * d + 1}, 0xffff0000, v{PK + 2 * tn + d}']
            return c

        def reads(st):
            def rdw(tn):
                c = []
                for par in range(2):
                    sl = (st % 3) * 2 + par
                    c += [f'ds_read_b64_tr_b16 {vr(WF + 8 * tn + 4 * par + 2 * rd, 2)}, v{vW[sl // 3][tn]} offset:{(sl % 3) * WSLOT + rd * 4 * WP}' for rd in range(2)]
                return c
            rdx = [f'ds_read_b128 {vr(XA + 8 * tm + 4 * par, 4)}, v{vX[par]} offset:{(st % 2) * XSLOT + tm * 2048}' for tm in range(4) for par in range(2)]
            if o.x64:
                rdx = [f'ds_read_b64 {vr(XA + 8 * tm + 4 * par + 2 * h, 2)}, v{vX[par]} offset:{(st % 2) * XSLOT + tm * 2048 + 8 * h}' for tm in range(4) for par in range(2) for h in range(2)]
            return rdw(0) + rdw(1) + rdw(2) + rdw(3) + rdx + rdw(4) if o.ro == 0 else rdw(0) + rdx + rdw(1) + rdw(2) + rdw(3) + rdw(4)

        def xst(src, f, tag='X'):
            vo = lambda pc: (f'v_lshl_add_u32 v{VO[pc]}, v{src(pc)}, 7, v{vCh[pc]}',)
            return [vo(1) + vo(0) + xld(VO[0], f's_add_u32 m0, s{S_XM0}, {(f % 2) * XSLOT}', tag), xld(VO[1], 's_add_u32 m0, m0, 1024', tag)]
        idxl = lambda k: [f'buffer_load_dwordx3 {vr(ST[k][pc], 3)}, v{vIdxOff}, {srd(SRD_IDX)}, s{S_IDXOFF} offen offset:{pc * 832}' for pc in range(2)] + [f's_add_u32 s{S_IDXOFF}, s{S_IDXOFF}, 12']

        tA = [f'buffer_load_dword v255, v{PI}, {srd(SRD_TAB)}, 0 offen']
        tB = [f'v_lshlrev_b32 v{PI + 2}, 7, v{PI + 2}', f'buffer_load_dword v255, v{PI + 2}, {srd(SRD_TAB)}, 0 offen']
        ini = LC + [WaitTag(vm_tags=['BIAS'])] + pkreads(0) + unp(lambda tn: acc(tn, 0))
        ini += [f'v_mov_b64 {vr(acc(tn, tm) + 2 * d, 2)}, {vr(acc(tn, 0) + 2 * d, 2)}' for tn in range(5) for tm in range(1, 4) for d in range(2)]
        x0 = xst(lambda pc: T + 4 * pc, 0, 'X0')
        tBl = []
        if o.tbl:
            tBl, tB = tB, []
        b1 = ['s_barrier'] if o.pb & 1 else []
        b2 = ['s_barrier'] if o.pb & 2 else []
        sh = [f'v_lshlrev_b32 v{PI}, 7, v{PI}']
        if o.sv == 0:
            L += sh + (own if not o.idx1 else []) + b1 + tA + tB + self.stamp(6) + wst(0) + ini + x0 + self.stamp(7) + b2
        elif o.sv == 1:
            L += self.stamp(19) + wst(0) + sh + (own if not o.idx1 else []) + b1 + tA + self.stamp(6) + x0 + tB + (dpf if o.dpf == 2 else []) + b2 + ini + self.stamp(7)
        elif o.sv == 2:
            L += sh + (own if not o.idx1 else []) + b1 + tA + self.stamp(6) + x0 + wst(0) + tB + b2 + ini + self.stamp(7)
        elif o.sv == 3:
            L += wst(0) + (own if not o.idx1 else []) + x0 + self.stamp(6) + sh + tA + tB + b2 + ini + self.stamp(7)
        L += [f's_lshl_b32 s{S_IDXOFF}, s{HH}, 2', f's_add_u32 s{S_IDXOFF}, s{S_IDXOFF}, 4'] + idxl(0)
        L += [f's_mov_b32 s{S_LOOP}, 0', f's_cmp_lg_u32 s{HH}, 0', 's_cbranch_scc1 L_dnn_h1']
        pro = self.seq(L)

        def mf(tn, tm, par):
            a = acc(tn, tm)
            return f'v_mfma_f32_16x16x32_bf16 {vr(a, 4)}, {vr(WF + 8 * tn + 4 * par, 4)}, {vr(XA + 8 * tm + 4 * par, 4)}, {vr(a, 4)}'
        MM = [mf(tn, j if tn % 2 == 0 else 3 - j, par) for tn in range(5) for j in range(4) for par in range(2)]
        kb = o.bov
        wi = self.winv(W2F, 20, KONE)
        K1 = list(range(132, 140)) + list(range(220, 232))
        KL, SC = 238, 239
        nw_ = 14
        if o.pr:
            wi = self.winv2(W2F, 20, K1, KL, SC)
            nw_ = 30
        trs = []
        for half in range(2):
            def fill(st, w=True, x=True, extra=(), rextra=()):
                D_ = (wst(st + 2) if w else []) + (xst(lambda pc: ST[(st // 3) % 2][pc] + st % 3, st + 1 + half) if x else [])
                return interleave(reads(st) + list(rextra), D_) + list(extra)

            def M(V=(), b=True, last=False, nw=5, g0=0):
                gp = [[] for _ in MM]
                V = list(V)
                n_ = len(MM) - kb - 1
                wt = [2 if isinstance(x, str) and x.startswith(('v_exp', 'v_rcp')) else 1 for x in V]
                cum = 0
                for x, w_ in zip(V, wt):
                    gp[g0 + cum * (n_ - g0) // sum(wt)].append(x)
                    cum += w_
                m = [(x,) + tuple(y) for x, y in zip(MM, gp)]
                return ['s_setprio 0'] * b + m[:len(m) - kb] + (['s_setprio 2'] + ([WaitTag(allbut=('W', nw))] if half == 0 else []) + ['s_barrier'] if b else []) + m[len(m) - kb:] + ['s_setprio 0'] * last
            wF = lambda nw=5, nx=2: [WaitTag(vm_tags=['X0'], allbut=('X', nx), lgkm0=True)] + ([WaitTag(allbut=('W', nw))] if half else []) + ['s_barrier']
            L = [f'L_dnn_h{half}:']
            pre = (xst(lambda pc: T + 4 * pc + 1, 1) if half else []) + wst(1) + tBl + idxl(1)
            wset = pkreads(WP) + self.kconst(KC0, KC1, KONE) + unp(lambda tn: W2F + 4 * tn) + wi if o.w2e else []
            if half == 0:
                L += pre[:o.q0] + wset + [WaitTag(allbut=('W', min(o.q0, 5)), lgkm0=True)] + self.stamp(1) + ['s_barrier'] + self.stamp(2) + pre[o.q0:]
            else:
                L += pre[:o.q1] + [WaitTag(allbut=('W', max(0, min(o.q1 - 2, 5)))), WaitTag(vm_tags=['X0'], lgkm0=True)] + self.stamp(1) + ['s_barrier'] + self.stamp(2) + pre[o.q1:] + wset + ['s_barrier']
            th = pro + self.seq(L)
            L = [f'L_dnn_loop{half}:']
            for st in range(6):
                ex = []
                if st % 3 == 2:
                    ex += idxl(st // 3)
                if st == 4 and half == 1 and not o.w2e:
                    ex += [tuple(vec(L_W2, SRD_W2))]
                if o.padat.startswith('dl') and int(o.padat[2:]) % 6 == st:
                    ex += [('s_memrealtime s[86:87]', 's_waitcnt lgkmcnt(0)', f's_cmp_eq_u32 s{S_LOOP}, {int(o.padat[2:]) // 6}', 's_cselect_b32 s88, s86, s88')]
                if o.stamps and o.itst == 2 and st % 2:
                    ex += [(f's_memtime s[{S_ST}:{S_ST + 1}]', f's_memrealtime s[{S_ST + 2}:{S_ST + 3}]', f's_mul_i32 s{S_TW}, s{S_LOOP}, 3', f's_add_u32 s{S_TW}, s{S_TW}, {8 + st // 2}',
                           f's_min_u32 s{S_TW}, s{S_TW}, 14', 's_waitcnt lgkmcnt(0)',
                           f's_mov_b32 m0, s{S_TW}', f'v_writelane_b32 v252, s{S_ST}, m0', f'v_writelane_b32 v253, s{S_ST + 2}, m0')]
                if o.stamps and o.itst == 1 and st in (1, 4):
                    ex += [(f's_memtime s[{S_ST}:{S_ST + 1}]', f's_memrealtime s[{S_ST + 2}:{S_ST + 3}]', f's_lshl_b32 s{S_TW}, s{S_LOOP}, 1', f's_add_u32 s{S_TW}, s{S_TW}, {6 + st // 3}',
                           f's_max_u32 s{S_TW}, s{S_TW}, 8', 's_waitcnt lgkmcnt(0)',
                           f's_mov_b32 m0, s{S_TW}', f'v_writelane_b32 v252, s{S_ST}, m0', f'v_writelane_b32 v253, s{S_ST + 2}, m0')]
                L += fill(st, extra=ex) + wF() + M([f's_add_u32 s{S_LOOP}, s{S_LOOP}, 1', f's_cmp_lt_u32 s{S_LOOP}, 4'] if st == 5 else [])
            L += [f's_cbranch_scc1 L_dnn_loop{half}']
            body = self.seq(L)
            th += body * 3
            if o.t2:
                E_ = [(acc(0, tm) + h, WF + 2 * tm + h, W2F + h, SUMP + 2 * tm + h) for tm in range(o.t2) for h in range(2)]
                ev = [f'v_mul_f32 v{t}, v{x}, v{x}' for (x, t, w, s_) in E_] + [f'v_fma_f32 v{t}, v{t}, v{KC1}, v{KC0}' for (x, t, w, s_) in E_]
                ev += [f'v_mul_f32 v{t}, v{t}, v{x}' for (x, t, w, s_) in E_] + [f'v_exp_f32 v{t}, v{t}' for (x, t, w, s_) in E_]
                ev += [f'v_fma_f32 v{t}, v{t}, v{w}, v{w}' for (x, t, w, s_) in E_] + [f'v_rcp_f32 v{t}, v{t}' for (x, t, w, s_) in E_]
                ev += [f'v_mul_f32 v{s_}, v{t}, v{x}' for (x, t, w, s_) in E_]
                L = pkreads(WP) + fill(24, w=False, x=half == 0, extra=(self.tlb2(VO[0], vBL) if half == 0 else []) + unp(lambda tn: W2F + 4 * tn)) + wF(0, 2 - 2 * half)
                L += M(self.kconst(KC0, KC1, KONE) + wi, nw=0)
                L += fill(25, w=False, x=False) + wF(0, 0) + M(ev, b=half == 0, last=True, g0=o.t2g)
            else:
                L = fill(24, w=False, x=half == 0, rextra=pkreads(WP) if not o.w2e else [], extra=self.tlb2(VO[0], vBL) if half == 0 else []) + wF(0, 2 - 2 * half)
                L += M(self.kconst(KC0, KC1, KONE) + unp(lambda tn: W2F + 4 * tn) + wi[:nw_] if not o.w2e else [], nw=0)
                L += fill(25, w=False, x=False) + wF(0, 0) + M(wi[nw_:] if not o.w2e else [], b=half == 0, last=True)
            if half == 0:
                L += ['s_branch L_epi']
            trs.append(th + self.seq(L))
        p2 = lambda r: vr(r, 2)
        el = lambda tn, tm, d: (acc(tn, tm) + 2 * d, W2F + 4 * tn + 2 * d, SUMP + 2 * tm)
        L = ['L_epi:'] + self.stamp(3)
        L += [f's_lshl_b32 s{S_T1}, s{S_R}, 11', f's_and_b32 s{S_T3}, s{S_MB}, 3', f's_lshl_b32 s{S_T3}, s{S_T3}, 9', f's_add_u32 s{S_T1}, s{S_T1}, s{S_T3}',
              f's_lshr_b32 s{S_T0}, s{S_MB}, 2', f's_lshl_b32 s{S_T0}, s{S_T0}, 14', f's_add_u32 s{S_T1}, s{S_T1}, s{S_T0}',
              'v_lshlrev_b32 v3, 3, v0', f'v_add_u32 v2, {RB}, v3']
        if o.pr:
            L += self.gelu2([[(acc(tn, tm), (W2F + 4 * tn, W2F + 4 * tn + 2), (K1[4 * tn], K1[4 * tn + 2]), SUMP + 2 * tm) for tm in range(4)] for tn in range(5)], WF, KC0, KC1, KONE)
        else:
            gr = [[el(tn, tm, d) for tm in range(4) if tn or d or tm >= o.t2] for tn in range(5) for d in range(2)]
            L += self.gelu([x for x in gr if x], WF, KC0, KC1, KONE, [SUMP + 2 * tm for tm in range(o.t2)])
        L += self.red4(SUMP, SC if o.pr else None) + [f'ds_write_b32 v{vPc}, v{SUMP}', 's_waitcnt lgkmcnt(0)'] + self.stamp(4) + self.stamp_flush()
        L += [f's_cmp_eq_u32 s{S_WAVE}, 0', 's_cbranch_scc1 L_dpub']
        tr = self.seq(L)
        self.seq(['s_barrier', 's_endpgm'])
        A = 64
        L = ['L_dpub:'] + self.build_srd(SRD_WS, S_WS, 0x10000000) + self.build_srd(SRD_DBG, S_DBG, 256) + self.cleared('L_dclr', [f's_and_b32 s{S_TW}, s2, 7'], vBL) + ['s_barrier'] + self.stamp(17)
        L += [f'ds_read_b64 {vr(A + 2 * qq, 2)}, v2 offset:{qq * 512}' for qq in range(4)]
        L += [f'v_pk_add_f32 {p2(A)}, {p2(A)}, {p2(A + 2)}', f'v_pk_add_f32 {p2(A + 4)}, {p2(A + 4)}, {p2(A + 6)}', f'v_pk_add_f32 {p2(A)}, {p2(A)}, {p2(A + 4)}',
              f'v_and_b32 v{A}, -2, v{A}', f'v_and_b32 v{A + 1}, -2, v{A + 1}',
              f'buffer_store_dwordx2 {vr(A, 2)}, v3, {srd(SRD_WS)}, s{S_T1} offen sc1'] + self.padsig() + ['s_endpgm']
        return [trs[0] + tr + self.seq(L), trs[1] + tr]

    def rem(self):
        o = self.opt
        self.role = 'r'
        vW = [1, 2, 7, 8]
        vX = [11, 12]
        vWD, vCh, vT, VO = 13, [14, 15], 9, 24
        SUMP = 16
        IDX = 32
        XA, WF = 64, 96
        ACC = 160
        BF, W2F = 32, 48
        PK = 224
        KC0, KC1, KONE = 240, 242, 244
        g, i4, q = 246, 247, 248
        S_F = S_IDXOFF
        acc = lambda tn, tm: ACC + (tn * 4 + tm) * 4
        L = ['L_rem:'] + (['s_memrealtime s[82:83]'] if o.amp == 4 else []) + [f's_lshr_b32 s{S_GRP}, s{S_WAVE}, 2', f's_and_b32 s{S_T0}, s2, 7', f's_lshl_b32 s{S_T0}, s{S_T0}, 3', f's_add_u32 s{S_T0}, s{S_T0}, s{S_WAVE}',
             f's_mul_i32 s{S_T0}, s{S_T0}, {64 * 104}', f's_lshl_b32 s{S_XM0}, s{S_WAVE}, 14',
             f'v_lshlrev_b32 v{q}, 4, v0', f'v_lshrrev_b32 v{g}, 4, v0',
             f'v_lshrrev_b32 v{i4}, 3, v0', f'v_mul_u32_u24 v{vWD}, 3328, v{i4}', f'v_and_b32 v{i4}, 2, v{i4}',
             f's_and_b32 s{S_T1}, s{S_WAVE}, 1', f's_lshl_b32 s{S_T1}, s{S_T1}, 2', f'v_or_b32 v{i4}, s{S_T1}, v{i4}',
             f'v_and_b32 v{vT}, 7, v0', f'v_xor_b32 v{i4}, v{i4}, v{vT}', f'v_lshl_add_u32 v{vWD}, v{i4}, 4, v{vWD}',
             f's_mul_i32 s{S_WSOFF}, s{S_WAVE}, {8 * 3328}', f's_add_u32 s{S_WSOFF}, s{S_WSOFF}, 3200',
             f's_lshl_b32 s{S_WMB}, s{S_WAVE}, 10', f's_add_u32 s{S_WMB}, s{S_WMB}, {RWR}',
             's_waitcnt lgkmcnt(0)']
        L += [f's_load_dword s{S_BOUT}, s[{S_BO}:{S_BO + 1}], 0'] + self.build_srd(SRD_IDX, S_IDX, 4096 * 104)
        for u in range(7):
            L += [f's_add_u32 m0, s{S_XM0}, {8192 + u * 1024}', I(f'buffer_load_dwordx4 v{q}, {srd(SRD_IDX)}, s{S_T0} offen lds', tag='I'),
                  f's_add_u32 s{S_T0}, s{S_T0}, 1024']
        L += self.build_srd(SRD_W, S_W1, 1664 * 3328)
        wld = lambda slot: [f's_add_u32 m0, s{S_WMB}, {slot * 8192}', I(f'buffer_load_dwordx4 v{vWD}, {srd(SRD_W)}, s{S_WSOFF} offen lds', tag='W'),
                            f's_add_u32 s{S_WSOFF}, s{S_WSOFF}, {64 * 3328}']
        L += wld(0)
        L += self.build_srd(SRD_WS, S_WS, 0x10000000) + self.build_srd(SRD_DBG, S_DBG, 256) + [f'v_mov_b32 v{XA + k}, -1' for k in range(4)]
        L += [f's_and_b32 s{S_T2}, s2, 7', f's_lshl_b32 s{S_T0}, s{S_T2}, 3', f's_add_u32 s{S_T0}, s{S_T0}, s{S_WAVE}', f's_lshl_b32 s{S_T0}, s{S_T0}, 11', f's_lshl_b32 s{S_T2}, s{S_T2}, 2',
              f'buffer_store_dwordx4 {vr(XA, 4)}, v{q}, {srd(SRD_WS)}, s{S_T0} offen sc1',
              f'buffer_store_dwordx4 {vr(XA, 4)}, v{q}, {srd(SRD_WS)}, s{S_T0} offen offset:1024 sc1']
        L += self.build_srd(SRD_B1, S_B1, 3328) + self.build_srd(SRD_W2, S_W2, 3328) + self.build_srd(SRD_TAB, S_TAB, 100000 * 128)
        L += self.stamp0()
        L += [f'v_xor_b32 v{q}, v{vT}, v{g}', f'v_lshlrev_b32 v{vCh[0]}, 4, v{q}', f'v_xor_b32 v{vCh[1]}, 64, v{vCh[0]}',
              f'v_bfe_u32 v{i4}, v0, 2, 2', f'v_lshl_add_u32 v{q}, v{g}, 3, v{i4}', f'v_lshlrev_b32 v{q}, 7, v{q}',
              f'v_and_b32 v{i4}, 3, v0', f'v_lshl_add_u32 v{q}, v{i4}, 3, v{q}', f'v_add_u32 v{q}, {RWR}, v{q}',
              f'v_bfe_u32 v{i4}, v0, 3, 2', f'v_lshl_add_u32 v{vW[0]}, v{i4}, 5, v{q}']
        L += [f'v_xor_b32 v{vW[i]}, {32 * i}, v{vW[0]}' for i in range(1, 4)]
        L += [f'v_and_b32 v{q}, 15, v0', f'v_lshlrev_b32 v{q}, 7, v{q}',
              f'v_bfe_u32 v{i4}, v0, 1, 3', f'v_xor_b32 v{i4}, v{i4}, v{g}', f'v_lshl_add_u32 v{q}, v{i4}, 4, v{q}',
              f'v_add_u32 v{vX[0]}, s{S_XM0}, v{q}', f'v_xor_b32 v{vX[1]}, 64, v{vX[0]}',
              f'v_lshrrev_b32 v{i4}, 3, v0', f'v_lshl_add_u32 v{q}, v{vT}, 3, v{i4}', f'v_mul_u32_u24 v{q}, 104, v{q}', f'v_add_u32 v{q}, s{S_XM0}, v{q}']
        S_OO = S_N0
        L += self.build_srd(SRD_OUT, S_OUT, 8192) + [
             f's_and_b32 s{S_OO}, s2, 7', f's_lshl_b32 s{S_T0}, s{S_OO}, 14', f's_lshl_b32 s{S_T1}, s{S_WAVE}, 8', f's_add_u32 s{S_T0}, s{S_T0}, s{S_T1}',
             f's_add_u32 s{S_T1}, s{S_T0}, 4096', f's_add_u32 s{S_T3}, s{S_T0}, 8192',
             f's_lshl_b32 s{S_OO}, s{S_OO}, 3', f's_add_u32 s{S_OO}, s{S_OO}, s{S_WAVE}', f's_lshl_b32 s{S_OO}, s{S_OO}, 7',
             'v_lshlrev_b32 v3, 2, v0', 'v_lshlrev_b32 v4, 1, v0',
             f's_lshl_b32 s{S_TW}, s{S_WAVE}, 6', f'v_add_u32 v5, s{S_TW}, v0', f'v_cmp_lt_u32 vcc, {(439 if o.sym else 483) + o.n4}, v5', 'v_add_u32 v5, 4096, v3', 'v_mov_b32 v6, 0x7f000000',
             'v_cndmask_b32 v5, v6, v5, vcc']
        L += self.kconst(KC0, KC1, KONE, o.rpr) + [f'v_mov_b32 v{r}, 0' for r in range(ACC, ACC + 64)] + ['s_waitcnt vmcnt(0) lgkmcnt(0)', f's_lshl_b32 s{S_BOUT}, s{S_BOUT}, 16']
        L += [f'ds_read_b64 {vr(IDX + 2 * k, 2)}, v{q} offset:{8192 + 8 * k}' for k in range(13)]

        def xld(src, slot, h=None):
            c = [tuple(f'v_add_u32_dpp v{VO + pc}, v{src}, v{vCh[pc % 2]} row_newbcast:{8 * hh + pc} row_mask:0xf bank_mask:{hex(3 << (2 * hh))}'
                       for hh in range(2) for pc in range(4 * k, 4 * k + 4)) for k in range(2)]
            d = [(f's_add_u32 m0, s{S_XM0}, {slot * 8192 + pc * 1024}',
                  I(f'buffer_load_dwordx4 v{VO + pc}, {srd(SRD_TAB)}, 0 offen lds', tag='X')) for pc in range(8)]
            return c[:1] + d[:4] + c[1:] + d[4:] if h is None else c[h:h + 1] + d[4 * h:4 * h + 4]
        L += [f'v_mov_b32 v{VO + pc}, 0' for pc in range(8)] + [f'v_mov_b32 v{IDX + k}, 0x7f000000' for k in (26, 27)]
        L += [f'v_lshlrev_b32 v{IDX}, 7, v{IDX}'] + xld(IDX, 0)
        L += wld(1) + [f'v_lshlrev_b32 v{IDX + k}, 7, v{IDX + k}' for k in range(25, 0, -1)] + xld(IDX + 1, 1) + wld(2)
        L += [f'v_lshlrev_b32 v{q}, 3, v{g}']

        rdx = lambda fp, h: [f'ds_read_b128 {vr(XA + 16 * h + 8 * t + 4 * par, 4)}, v{vX[par]} offset:{fp * 8192 + (2 * h + t) * 2048}' for t in (1, 0) for par in (1, 0)]
        rdw = lambda fp: [f'ds_read_b64_tr_b16 {vr(WF + 32 * fp + 8 * tn + 4 * par + 2 * rd, 2)}, v{vW[tn]} offset:{fp * 8192 + par * 4096 + rd * 512}'
                          for tn in range(4) for par in range(2) for rd in range(2)]

        def mm(fp, h):
            return [f'v_mfma_f32_16x16x32_bf16 {vr(acc(tn, 2 * h + t), 4)}, {vr(WF + 32 * fp + 8 * tn + 4 * par, 4)}, {vr(XA + 16 * h + 8 * t + 4 * par, 4)}, {vr(acc(tn, 2 * h + t), 4)}'
                    for tn in range(4) for t in range(2) for par in range(2)]
        L += [f's_mov_b32 s{S_F}, 3', f'v_mov_b32 v{vT}, v{IDX + 2}'] + list(xld(vT, 0, 0)[0])
        L += [WaitTag(allbut=('X', 12)), 's_barrier'] + self.stamp(2) + rdx(0, 0) + rdw(0)
        L += [f's_cmp_lg_u32 s{S_WAVE}, 7', 's_cbranch_scc1 L_rem_loop', 's_mov_b64 exec, 1',
              ] + (['s_or_b32 s86, s88, 1', 'v_mov_b32 v10, s86'] if o.gs else []) + [
              f'buffer_store_dword v{10 if o.gs else KC0}, v{vCh[0]}, {srd(SRD_DBG)}, s{S_T2} offen offset:128 sc1', 's_mov_b64 exec, -1']
        tr = self.seq(L)

        def phase(M, R, Dm, V, V2=()):
            gp = [[] for _ in M]
            for k, x in enumerate(R):
                gp[k * o.rrd // max(len(R), 1)].append(x)
            for k, x in enumerate(Dm):
                gp[1 + k * 15 // len(Dm)].append(x)
            v0 = o.rrd if R else 0
            for k, x in enumerate(V):
                gp[v0 + k * (16 - v0) // len(V)].append(x)
            for k, x in enumerate(V2):
                gp[3 + k * 12 // len(V2)].append(x)
            return [(m,) + tuple(g_) for m, g_ in zip(M, gp)]
        assert not o.rpr
        ub = [x for k in range(8) for x in (f'v_lshlrev_b32 v{BF + 2 * k}, 16, v{PK + k}', f'v_and_b32 v{BF + 2 * k + 1}, 0xffff0000, v{PK + k}')]
        uw = [x for k in range(8) for x in (f'v_lshlrev_b32 v{W2F + 2 * k}, 16, v{PK + 8 + k}', f'v_and_b32 v{W2F + 2 * k + 1}, 0xffff0000, v{PK + 8 + k}')]
        wi = self.winv(W2F, 16, KONE)
        badd = lambda h: [f'v_add_f32 v{acc(tn, 2 * h + t) + r}, v{BF + 4 * tn + r}, v{acc(tn, 2 * h + t) + r}' for tn in range(4) for t in range(2) for r in range(4)]
        vld = [f'buffer_load_dwordx2 {vr(PK + 2 * tn, 2)}, v{q}, {srd(SRD_B1)}, 0 offen offset:{3200 + 32 * tn}' for tn in range(4)]
        vld += [f'buffer_load_dwordx2 {vr(PK + 8 + 2 * tn, 2)}, v{q}, {srd(SRD_W2)}, 0 offen offset:{3200 + 32 * tn}' for tn in range(4)]

        def field(fp, last):
            L = [WaitTag(allbut=('W', 1)), WaitTag(allbut=('X', 0 if last and fp else 8))] + ([] if last and fp else ['s_barrier'])
            if fp == 1 and not last:
                L += [f'v_xor_b32 v{vW[i]}, 16384, v{vW[i]}' for i in range(4)]
            sx = (f's_xor_b32 s{S_WMB}, s{S_WMB}, 16384',)
            wl = [sx + tuple(wld(1)) + sx] if fp == 0 else [tuple(wld(0)) + sx]
            rw = rdw(1 - fp)
            mv = [(f's_set_gpr_idx_on s{S_F}, gpr_idx(SRC0)', 's_nop 0', f'v_mov_b32 v{vT}, v{IDX}', 's_set_gpr_idx_off', f's_add_u32 s{S_F}, s{S_F}, 1')]
            if not last:
                L += phase(mm(fp, 0), rdx(fp, 1) + rw[:8], xld(vT, fp, 0)[1:], list(xld(vT, fp, 1)[0]))
                L += [WaitTag(allbut=('X', 8))]
                L += phase(mm(fp, 1), rdx(1 - fp, 0) + rw[8:], xld(vT, fp, 1)[1:] + wl, mv + list(xld(vT, fp, 0)[0]))
            elif not o.rv:
                if fp == 0:
                    L += phase(mm(fp, 0), rdx(fp, 1) + rw[:8], vld + [f'buffer_load_dword v255, v3, {srd(SRD_OUT)}, s{S_OO} offen'], []) + [WaitTag(allbut=('X', 4))]
                    L += phase(mm(fp, 1), rdx(1 - fp, 0) + rw[8:], [], [])
                else:
                    L += phase(mm(fp, 0), rdx(fp, 1), [], [], uw + ub[:6]) + phase(mm(fp, 1), [], [], ub[6:] + wi[:o.rwi])
            elif fp == 0:
                L += phase(mm(fp, 0), rdx(fp, 1) + rw[:8], [], [], ub) + [WaitTag(allbut=('X', 4))]
                L += phase(mm(fp, 1), rdx(1 - fp, 0) + rw[8:], [], [], uw)
            else:
                L += phase(mm(fp, 0), rdx(fp, 1), [], [], badd(1)) + phase(mm(fp, 1), [], [], [], badd(0))
            return L
        L = ['L_rem_loop:'] + field(0, False) + ([f's_cmp_lg_u32 s{S_F}, 26', 's_cbranch_scc1 L_rnv'] if o.rv else [])
        bodya = self.seq(L)
        bodyv = self.seq(vld + [f'buffer_load_dword v255, v3, {srd(SRD_OUT)}, s{S_OO} offen']) if o.rv else []
        L = ['L_rnv:'] + field(1, False) + [f's_cmp_lt_u32 s{S_F}, 27', 's_cbranch_scc1 L_rem_loop']
        L = [x for x in flat(L) if not any((x.text if isinstance(x, I) else x).startswith(d) for d in o.rdrop.split(',') if d)]
        body = self.seq(L)
        body2 = self.seq(field(0, True) + field(1, True))
        el = lambda tn, tm, d: (acc(tn, tm) + 2 * d, W2F + 4 * tn + 2 * d, SUMP + 2 * tm)
        A = 128
        pld = [f'buffer_load_dword v{A + k}, v3, {srd(SRD_WS)}, s{(S_T0, S_T1, S_T3)[k // 2]} offen offset:{(k % 2) * 2048} sc1' for k in range(6)]
        pld += [f'buffer_load_dword v{A + 6}, v5, {srd(SRD_WS)}, s{S_T3} offen sc1']
        L = self.stamp(3) + ['L_repi:'] + (wi if o.rv else wi[o.rwi:] + [f'v_pk_add_f32 {vr(acc(tn, tm) + 2 * d, 2)}, {vr(acc(tn, tm) + 2 * d, 2)}, {vr(BF + 4 * tn + 2 * d, 2)}'
                                                                        for tn in range(4) for tm in range(4) for d in range(2)])
        ge = self.gelu([[el(tn, tm, d) for tm in range(4)] for tn in range(4) for d in range(2)], XA, KC0, KC1, KONE)
        early = o.epoll and o.amp not in (2, 3)
        cut = len(ge) - o.epoll * len(ge) // 8
        L += ge[:cut] + (pld if early else []) + ge[cut:]
        L += self.red4(SUMP) + [f'v_add_f32 v{SUMP}, s{S_BOUT}, v{SUMP}', 'L_rclr:'] + self.stamp(4) + self.padsig()
        gsl = []
        if o.gs:
            gsl = [f'buffer_load_dword v10, v3, {srd(SRD_DBG)}, 0 offen offset:128 sc1', 's_waitcnt vmcnt(0)', 's_mov_b32 s83, 0']
            for k in range(8):
                gsl += [f'v_readlane_b32 s82, v10, {k}', 's_nop 1', 's_sub_u32 s82, s82, s88', 's_min_i32 s83, s83, s82']
            gsl += ['s_max_i32 s83, s83, -1000', 's_add_u32 s88, s88, s83']
        tk = ['s_memrealtime s[86:87]', 's_waitcnt lgkmcnt(0)'] + gsl + ['s_sub_u32 s89, s86, s88', 's_min_u32 s89, s89, 10000', 's_lshl_b32 s89, s89, 3']
        if o.amp == 2:
            L += [f's_mov_b32 s{S_LOOP}, 0x40000', 'L_polla:', f's_sub_u32 s{S_LOOP}, s{S_LOOP}, 1', 's_cbranch_scc1 L_pollax']
            L += [f'buffer_load_dword v{A + k}, v3, {srd(SRD_WS)}, s{(S_T0, S_T1, S_T3)[k // 2]} offen offset:{(k % 2) * 2048} sc1' for k in range(5)]
            L += [f'v_max3_u32 v{A + 8}, v{A}, v{A + 1}, v{A + 2}', f'v_max3_u32 v{A + 8}, v{A + 3}, v{A + 4}, v{A + 8}',
                  f'v_cmp_eq_u32 vcc, -1, v{A + 8}', 's_cbranch_vccnz L_polla', 'L_pollax:']
        if o.amp in (2, 3):
            L += tk
        L += [f's_mov_b32 s{S_LOOP}, 0x40000'] + (['s_branch L_pchk'] if early else [])
        tl1 = self.seq(L)
        tl2 = self.seq(['L_poll:', f's_sub_u32 s{S_LOOP}, s{S_LOOP}, 1', 's_cbranch_scc1 L_pollx'] + pld)
        L = ['L_pchk:', 's_waitcnt vmcnt(0)']
        L += [f'v_max3_u32 v{A + 8}, v{A}, v{A + 1}, v{A + 2}', f'v_max3_u32 v{A + 9}, v{A + 3}, v{A + 4}, v{A + 5}', f'v_max3_u32 v{A + 8}, v{A + 8}, v{A + 9}, v{A + 6}',
              f'v_cmp_eq_u32 vcc, -1, v{A + 8}', 's_cbranch_vccnz L_poll', 'L_pollx:']
        L += [f'v_add_f32 v{A}, v{A}, v{A + 1}', f'v_add_f32 v{A + 2}, v{A + 2}, v{A + 3}', f'v_add_f32 v{A + 4}, v{A + 4}, v{A + 5}',
              f'v_add_f32 v{SUMP}, v{SUMP}, v{A + 6}', f'v_add_f32 v{A}, v{A}, v{A + 2}', f'v_add_f32 v{A + 4}, v{A + 4}, v{SUMP}', f'v_add_f32 v{A}, v{A}, v{A + 4}',
              f'v_cvt_pk_bf16_f32 v{A}, v{A}, v{A}']
        if o.amp and o.amp < 4:
            L += (tk if o.amp == 1 else []) + [
                  'L_ampspin:', 's_memrealtime s[86:87]', 's_waitcnt lgkmcnt(0)', 's_sub_u32 s86, s86, s88', 's_cmp_lt_u32 s86, s89', 's_cbranch_scc1 L_ampspin']
        if o.padat:
            L += ['L_padspin:', f'buffer_load_dword v7, v8, {srd(SRD_DBG)}, 0 offen sc1', 's_waitcnt vmcnt(0)', 's_memrealtime s[86:87]',
                  'v_readfirstlane_b32 s88, v7', 's_waitcnt lgkmcnt(0)', 's_cmp_eq_u32 s88, 0', 's_cbranch_scc1 L_padspin'] + (['s_not_b32 s88, s88'] if o.padmin else []) + [
                  's_sub_u32 s86, s86, s88', 's_cmp_lt_i32 s86, 6000', 's_cbranch_scc1 L_padspin'] if o.amp != 4 else [
                  f's_mov_b32 s{S_LOOP}, 0x40000', 'L_padspin:', f's_sub_u32 s{S_LOOP}, s{S_LOOP}, 1', 's_cbranch_scc1 L_padx',
                  f'buffer_load_dword v7, v8, {srd(SRD_DBG)}, 0 offen sc1', 's_waitcnt vmcnt(0)', 's_memrealtime s[86:87]',
                  'v_readfirstlane_b32 s88, v7', 's_waitcnt lgkmcnt(0)'] + (['s_not_b32 s88, s88'] if o.padmin else []) + [
                  's_sub_u32 s88, s88, s82', 's_min_u32 s88, s88, 5000', 's_lshl_b32 s88, s88, 3', 's_add_u32 s88, s88, 5000',
                  's_sub_u32 s86, s86, s82', 's_cmp_lt_u32 s86, s88', 's_cbranch_scc1 L_padspin', 'L_padx:']
        L += [f'buffer_store_short v{A}, v4, {srd(SRD_OUT)}, s{S_OO} offen{o.ofl}'] + self.stamp(5) + self.stamp_flush() + ['s_endpgm']
        return [tr + (bodya + body) * 3 + bodya + bodyv + body + body2 + tl1 + ([] if early else tl2) + self.seq(L)]

    def cin(self):
        o = self.opt
        self.role = 'c'
        cw = S_CW
        S_BCUR, S_BD, S_EXP, S_EXPC, S_PREV, S_SC, S_PH = 74, 75, 48, 49, 50, 51, 97
        S_CHK = S_M26
        vFA, vFR, vOne, vF, vFG, vFGa = 1, 2, 3, 4, 5, 6
        vRaw, vLin, vLinB, vXw, vX1, vX2, vSh, vAcc, vOr, vSI, vXi, vC16, vPWL, vPXL, PXR = range(7, 22)
        FT, XI, aD, aS, aLc, aC = 22, 24, 28, 29, 30, 31
        RAW, X, RZ, D = 32, 40, 52, 68
        WA, WB, WC, WS_, WL = 84, 128, 172, 216, 240
        Da, Db, Dc, Ds = D, D + 4, D + 8, D + 12
        T = 40
        half, i32, t3, t4, t5, vg, vm = T + 1, T + 2, T + 3, T + 4, T + 5, T + 6, T + 7
        vStg = 48
        GB = 49
        vMx, vWr, vL6, vL, vWu, vWo = range(62, 68)
        vDl = 247
        AD = 68
        vA3, vBs0, vBs1a, vBs1b, vUw, vV2w, vE, V3T = 240, 241, 242, 243, 244, 245, 246, 81
        BALL, UP, AFR, DALL = 84, 84, 132, 140
        BT, SUM, OUT = 216, 84, 132
        XJ = 204
        F_W3, F_W2, F_W1, F_PEEL, F_M, F_U, F_V3, F_XB = 0, 4, 8, 12, 16, 24, 32, 36
        nsync = [0]

        def sig(off, A=vFA, **kw):
            return [WaitTag(lgkm0=True, **kw), f'ds_add_u32 v{A}, v{vOne} offset:{off}']

        def wait(off, tgt, R=vFR):
            nsync[0] += 1
            lab = f'L_csync{nsync[0]}'
            return [f'{lab}:', f'ds_read_b32 v{vF}, v{R} offset:{off}', 's_waitcnt lgkmcnt(0)',
                    f'v_cmp_gt_u32 vcc, {tgt}, v{vF}', f's_cbranch_vccnz {lab}']

        def dppred(op, r):
            return [f'{op}_dpp v{r}, v{r}, v{r} {ctl} row_mask:{rm} bank_mask:0xf'
                    for (ctl, rm) in (('row_shr:1', '0xf'), ('row_shr:2', '0xf'), ('row_shr:4', '0xf'), ('row_shr:8', '0xf'),
                                      ('row_bcast:15', '0xa'), ('row_bcast:31', '0xc'))]

        def absmax(dst, regs):
            c = [f'v_max3_f32 v{dst}, abs(v{regs[0]}), abs(v{regs[1]}), abs(v{regs[2]})']
            k = 3
            while k < len(regs):
                b = regs[k + 1] if k + 1 < len(regs) else regs[k]
                c.append(f'v_max3_f32 v{dst}, v{dst}, abs(v{regs[k]}), abs(v{b})')
                k += 2
            return c

        def waitmax(off, dst_e, top, R=vFR):
            nsync[0] += 1
            lab = f'L_csync{nsync[0]}'
            return [f'{lab}:', f'ds_read_b64 {vr(T, 2)}, v{R} offset:{off}', 's_waitcnt lgkmcnt(0)',
                    f'v_cmp_gt_u32 vcc, 4, v{T}', f's_cbranch_vccnz {lab}',
                    f'v_readfirstlane_b32 s{dst_e}, v{T + 1}',
                    f's_lshr_b32 s{dst_e}, s{dst_e}, 23', f's_sub_i32 s{dst_e}, {top}, s{dst_e}', f's_min_i32 s{dst_e}, s{dst_e}, 40']

        def postmax(r, off, **kw):
            return dppred('v_max_u32', r) + [f'v_readlane_b32 s{S_T0}, v{r}, 63', f'v_mov_b32 v{r}, s{S_T0}',
                                             f'ds_max_u32 v{vFA}, v{r} offset:{off + 4}', WaitTag(**kw), f'ds_add_u32 v{vFA}, v{vOne} offset:{off}']
        setsc = lambda e: [f's_add_i32 s{S_SC}, s{e}, 127', f's_lshl_b32 s{S_SC}, s{S_SC}, 23']

        S_C, S_DYN, S_ST0, S_TK = S_R, S_MB, 98, 99
        NST = 40 if o.sym else 44
        PB = 11 * NST
        assert 2 * (512 - PB) - o.n4 <= (88 if o.sym else 44)
        vFl, vTk, vZ = 249, 250, 251
        S_HALF = S_STG9
        L = ['L_cin:', f's_and_b32 s{S_T0}, s{S_MB}, 3', f's_mul_i32 s{S_T0}, s{S_T0}, 3', f's_add_u32 s{S_C}, s{S_T0}, s{S_R}',
             f's_sub_u32 s{S_C}, s{S_C}, 6',
             f's_and_b32 s{cw}, s{S_WAVE}, 3', f's_lshr_b32 s{S_GRP}, s{S_WAVE}, 2',
             f's_lshl_b32 s{S_GW}, s{S_C}, 3', f's_add_u32 s{S_GW}, s{S_GW}, s{S_WAVE}',
             f's_mul_i32 s{S_T0}, s{S_GW}, {10 * 128}',
             f'v_min_u32 v{T}, 9, v0', f'v_lshlrev_b32 v{T}, 7, v{T}',
             f'v_lshlrev_b32 v{vStg}, 4, v0',
             f's_lshl_b32 s{S_STG}, s{cw}, 10',
             f's_cmp_eq_u32 s{cw}, 2', f's_cselect_b64 s[{S_EX}:{S_EX + 1}], 0x3fffff, -1',
             f's_cmp_eq_u32 s{cw}, 3', f's_cselect_b32 s{S_STG9}, 0, {8 * 4096}',
             f's_add_u32 s{S_STG9}, s{S_STG9}, s{S_STG}',
             f's_mul_i32 s{S_T1}, s{S_C}, 2979', f's_lshr_b32 s{S_T1}, s{S_T1}, 6', f's_mul_i32 s{S_ST0}, s{S_C}, {NST}',
             f's_and_b32 s{S_T2}, s2, 7', f's_add_u32 s{S_RC}, s{S_ST0}, s{S_WAVE}', f's_lshl_b32 s{S_RC}, s{S_RC}, 2',
             f's_lshl_b32 s{S_ST0}, s{S_T2}, 14', f's_add_u32 s{S_RC}, s{S_RC}, s{S_ST0}', f's_add_u32 s{S_RC}, s{S_RC}, {5 * 2048}', f's_mul_i32 s{S_ST0}, s{S_C}, {NST}', f's_lshl_b32 s{S_PX}, s{S_T2}, 9', f's_add_u32 s{S_SAMP}, s{S_PX}, s{S_ST0}', f's_add_u32 s{S_PX}, s{S_PX}, s{S_T1}',
             f's_add_u32 s{S_SAMP}, s{S_SAMP}, s{S_WAVE}', f's_mul_i32 s{S_SAMP}, s{S_SAMP}, 104',
] + ([f's_lshl_b32 s{S_ST0}, s{S_C}, 2', f's_add_u32 s{S_ST0}, s{S_ST0}, s{S_WAVE}', f's_add_u32 s{S_ST0}, s{S_ST0}, s{S_T2}', f's_and_b32 s{S_ST0}, s{S_ST0}, 7'] if not o.sym else [
             f's_add_u32 s{S_ST0}, s{S_WAVE}, s{S_T2}', f's_and_b32 s{S_ST0}, s{S_ST0}, 3', f's_lshl_b32 s{S_TK}, s{S_GRP}, 2', f's_add_u32 s{S_ST0}, s{S_ST0}, s{S_TK}']) + [
             f's_mul_i32 s{S_ST0}, s{S_ST0}, {16384 + o.shs}', f's_add_u32 s{S_ST0}, s{S_ST0}, {6 * 2048}',
] + ([f's_sub_u32 s{S_LOOP}, 6, s{S_GRP}', f's_lshl_b32 s{S_TK}, s{S_GRP}, 1'] if not o.sym else [f's_mov_b32 s{S_LOOP}, 5', f's_mov_b32 s{S_TK}, 2']) + [f's_mov_b32 s{S_DYN}, -1',
             f'v_lshrrev_b32 v{t3}, 3, v0', f'v_min_u32 v{t3}, 6, v{t3}', f'v_lshlrev_b32 v{vXi}, 4, v{t3}',
             f's_mul_i32 s{S_T2}, s{S_T2}, 88', f's_add_u32 s{S_T2}, s{S_GW}, s{S_T2}', f's_mov_b32 s{S_T3}, 704',
             f'v_mov_b32 v{t4}, s{S_T2}', f'v_mad_u32_u24 v{vPWL}, v0, s{S_T3}, v{t4}',
             f's_mul_i32 s{S_T2}, s{S_GW}, 104', f's_sub_u32 s{S_T2}, s{S_T2}, {13 * 26 - 25}',
             f'v_min_u32 v{t4}, {12 + o.pfr}, v0', f'v_mul_u32_u24 v{t5}, 26, v{t4}', f'v_add_u32 v{t5}, s{S_T2}, v{t5}',
             f'v_cmp_lt_u32 vcc, 12, v{t4}', f'v_cndmask_b32 v{vPWL}, v{vPWL}, v{t5}, vcc', f'v_lshlrev_b32 v{vPWL}, 7, v{vPWL}',
             f's_mov_b32 s{S_PW}, {o.pfe0 * 832 * 128}',
             f'v_mov_b32 v{vFR}, {L_FLG}', f'v_lshlrev_b32 v{vFA}, 20, v0', f'v_add_u32 v{vFA}, {L_FLG}, v{vFA}',
             f'v_and_b32 v{t4}, 7, v0', f'v_lshlrev_b32 v{vC16}, 4, v{t4}', f'v_and_b32 v{t4}, 15, v0', f'v_lshl_add_u32 v{t4}, v{t4}, 2, v{vFR}',
             f'v_mov_b32 v{vOne}, 0', f'ds_write_b32 v{t4}, v{vOne}',
             f'v_lshrrev_b32 v{half}, 5, v0', f'v_and_b32 v{i32}, 31, v0',
             's_waitcnt lgkmcnt(0)', f'v_mov_b32 v{vOne}, 1']
        L += self.tlb1(t5, 255)
        L += self.build_srd(SRD_CIN, S_CIN, 105456)
        L += [f'buffer_load_dword v255, v{T}, {srd(SRD_CIN)}, s{S_T0} offen'] if o.coop else []
        L += self.build_srd(SRD_W, S_W1, 1664 * 3328)

        def pfw():
            if o.nopf & 4:
                return []
            return [f's_mov_b64 exec, {((1 << (13 + o.pfr)) - 1) & ~(0x1fff if o.nopf & 1 else 0)}', f'buffer_load_dword v255, v{vPWL}, {srd(SRD_W)}, s{S_PW} offen', 's_mov_b64 exec, -1',
                    f's_add_u32 s{S_PW}, s{S_PW}, {352 * 3328}']
        L += ['s_barrier'] + (pfw() if o.pf1 in (0, 3) else [])
        L += self.build_srd(SRD_IDX, S_IDX, 4096 * 104)

        def pfx_a():
            return [] if o.nopf & 2 else [f'buffer_load_dword v{PXR}, v{vPXL}, {srd(SRD_IDX)}, s{S_PX} offen',
                    f's_cmp_eq_u32 s{S_PX}, s{S_PXE}', f's_cselect_b32 s{S_PXE}, 0x7000000, s{S_PXE}',
                    f's_cselect_b32 s{S_PX}, 0x7000000, s{S_PX}',
                    f's_add_u32 s{S_PX}, s{S_PX}, 24', f's_min_u32 s{S_PX}, s{S_PX}, s{S_PXE}']

        def pfx_b():
            return [] if o.nopf & 2 else [f'v_lshlrev_b32 v{PXR}, 7, v{PXR}', f'buffer_load_dword v255, v{PXR}, {srd(SRD_TAB)}, 0 offen']

        def xidx(XI=XI, off=0, adv=True):
            c = [f'buffer_load_dwordx4 {vr(XI, 4)}, v{vXi}, {srd(SRD_IDX)}, s{S_SAMP} offen offset:{off}']
            if adv:
                c.append(f's_add_u32 s{S_SAMP}, s{S_SAMP}, {8 * 104}')
            return c

        def xdma(XI=XI, lo=0):
            c = []
            for u in range(4):
                if u == 2:
                    c += ['s_mov_b32 exec_hi, 0x0000ffff']
                c += [f'v_lshl_add_u32 v{XI + u}, v{XI + u}, 7, v{vC16}']
                if u == 3:
                    c += ['s_mov_b32 exec_lo, 0', 's_mov_b32 exec_hi, 0xffff0000', f'v_mov_b32 v{XI + 3}, v{XI + 1}', f'v_mov_b32 v{XI + 2}, v{XI + 1}',
                          's_mov_b32 exec_hi, 0x00ff0000', f'v_mov_b32 v{XI + 2}, v{XI}', 's_mov_b64 exec, -1']
            for u in range(4):
                c += [f's_add_u32 m0, s{S_BCUR}, {u * XPI + lo}']
                if u == 3:
                    c += ['s_mov_b32 exec_hi, 0x00ffffff']
                c.append(I(f'buffer_load_dwordx4 v{XI + u}, {srd(SRD_TAB)}, 0 offen lds', tag='XB'))
                if u == 3:
                    c += ['s_mov_b32 exec_hi, -1']
            return c
        wco = self.build_srd(SRD_WCO, S_WCO, 156) + [f's_mov_b32 m0, {L_WCO}', 's_mov_b64 exec, 0x7ff',
              I(f'buffer_load_dwordx4 v{vStg}, {srd(SRD_WCO)}, 0 offen lds', tag='STG3'),
              's_mov_b64 exec, -1']
        L += self.stamp0()

        def stage(dst, goff, tag):
            sh = o.w1s and dst == A1
            st = []
            for m in range(8):
                st.append((f's_add_u32 m0, s{S_STG}, {dst + m * 4096}', f's_add_u32 s{S_TW}, s{S_STG}, {goff + m * 4096 - (4 if sh and m >= 5 else 0)}',
                           I(f'buffer_load_dwordx4 v{vStX if sh and m == 5 else vStg}, {srd(SRD_CIN)}, s{S_TW} offen lds', tag=tag)))
            g9 = (f's_add_u32 s{S_TW}, s{S_STG9}, {goff}',) if not sh else (f's_lshr_b32 s{S_TW}, s{S_STG9}, 13', f's_sub_u32 s{S_TW}, s{S_STG9}, s{S_TW}')
            st.append((f's_add_u32 m0, s{S_STG9}, {dst}',) + g9 + (f's_mov_b64 exec, s[{S_EX}:{S_EX + 1}]',
                       I(f'buffer_load_dwordx4 v{vStg}, {srd(SRD_CIN)}, s{S_TW} offen lds', tag=tag),
                       's_mov_b64 exec, -1'))
            return st
        vStX = 248
        if o.w1s:
            L += [f'v_add_u32 v{vStX}, s{S_STG}, v{vStg}', f'v_cmp_gt_u32 vcc, {16 * 1352 - 5 * 4096}, v{vStX}', f'v_cndmask_b32 v{vStX}, 0, 4, vcc',
                  f'v_add_u32 v{vStX}, v{vStX}, v{vStg}']

        L += [f's_cmp_lg_u32 s{S_GRP}, 0', 's_cbranch_scc1 L_g1a']
        c0 = self.seq(L)
        sA, sB = (('1', A1, 0, F_W1), ('2', A2, 35152, F_W2)) if o.w1first else (('2', A2, 35152, F_W2), ('1', A1, 0, F_W1))
        stA, stB = stage(sA[1], sA[2], 'STG' + sA[0]), stage(sB[1], sB[2], 'STG' + sB[0])
        stg = [wco + stage(A3, 70304, 'STG3') + stA[:o.sigat],
               sig(F_W3, vm_tags=['STG3']) + self.stamp(1) + stA[o.sigat:] + stB[:o.sig2],
               sig(sA[3], vm_tags=['STG' + sA[0]]) + stB[o.sig2:]]
        g0a = self.seq(stg[:o.ccpos] + ['s_branch L_addrc'])
        L = ['L_g1a:', 's_setprio 1',
             f'v_bfe_u32 v{t3}, v0, 2, 2', f'v_lshl_add_u32 v{t3}, v{half}, 3, v{t3}',
             f'v_bfe_u32 v{t4}, v0, 4, 1', f'v_lshlrev_b32 v{t4}, 5, v{t4}',
             f'v_and_b32 v{t5}, 3, v0', f'v_lshl_add_u32 v{t4}, v{t5}, 3, v{t4}',
             f'v_lshl_add_u32 v{vA3}, v{t3}, 6, v{t4}', f'v_add_u32 v{vA3}, {V3OFF}, v{vA3}',
             f's_lshl_b32 s{S_T0}, s{cw}, 6', f's_add_u32 s{S_T0}, s{S_T0}, {A2}',
             f'v_add_u32 v{t4}, s{S_T0}, v{t4}',
             f'v_mul_u32_u24 v{t5}, 1352, v{t3}', f'v_add_u32 v{vBs0}, v{t4}, v{t5}',
             f'v_add_u32 v{t5}, 16, v{t3}', f'v_min_u32 v{t5}, 25, v{t5}',
             f'v_mul_u32_u24 v{t5}, 1352, v{t5}', f'v_add_u32 v{vBs1a}, v{t4}, v{t5}',
             f'v_add_u32 v{t5}, 20, v{t3}', f'v_min_u32 v{t5}, 25, v{t5}',
             f'v_mul_u32_u24 v{t5}, 1352, v{t5}', f'v_add_u32 v{vBs1b}, v{t4}, v{t5}',
             f's_lshl_b32 s{S_T0}, s{cw}, 5', f'v_add_u32 v{vE}, s{S_T0}, v{i32}',
             f'v_mul_u32_u24 v{t3}, 52, v{vE}', f'v_lshl_add_u32 v{t3}, v{half}, 3, v{t3}',
             f'v_add_u32 v{vUw}, {A3}, v{t3}',
             f'v_lshlrev_b32 v{t3}, 1, v{vE}', f'v_add_u32 v{vV2w}, {V2OFF}, v{t3}',
             f'v_mov_b32 v{BT}, 0', f'v_mov_b32 v{BT + 1}, 0',
             f'v_lshlrev_b32 v{t3}, 3, v0', f'v_add_u32 v{t4}, {V3OFF}, v{t3}',
             f's_lshl_b32 s{S_T0}, s{cw}, 9', f'v_add_u32 v{t4}, s{S_T0}, v{t4}', f'ds_write_b64 v{t4}, {vr(BT, 2)}']
        L += [f'v_lshl_add_u32 v{t3}, v{half}, 7, v{vE}', f's_mov_b32 s{S_T1}, 2521', f's_mov_b32 s{S_T2}, {V3OFF}']
        for p_ in range(3):
            L += [f'v_mul_u32_u24 v{t4}, s{S_T1}, v{t3}', f'v_lshrrev_b32 v{t4}, 16, v{t4}',
                  f'v_mad_u32_u24 v{t4}, v{t4}, 12, s{S_T2}', f'v_lshl_add_u32 v{AD + p_}, v{t3}, 1, v{t4}']
            if p_ < 2:
                L += [f'v_add_u32 v{t3}, 256, v{t3}']
        L += [f'v_mov_b32 v{t4}, 676', f'v_cmp_gt_u32 s[{S_MASK}:{S_MASK + 1}], v{t4}, v{t3}']
        for m in range(6):
            L += [f'v_add_u32 v{t3}, {128 * m}, v{vE}', f'v_mul_u32_u24 v{t4}, s{S_T1}, v{t3}', f'v_lshrrev_b32 v{t4}, 16, v{t4}',
                  f'v_lshl_add_u32 v{t4}, v{t4}, 2, v{vUw}', f'v_add_u32 v{AD + 4 + m}, {m * 6656}, v{t4}']
        L += [f'v_lshlrev_b32 v{AD + 10}, 4, v{half}', f'v_add_u32 v{AD + 10}, {L_WCO + 104}, v{AD + 10}',
              f'v_lshlrev_b32 v{AD + 11}, 1, v0', f'v_add_u32 v{AD + 11}, {L_WCO}, v{AD + 11}',
              f'v_lshlrev_b32 v{AD + 12}, 6, v0', f'v_add_u32 v{AD + 12}, {V3OFF + 52}, v{AD + 12}']
        g1a = self.seq(L)

        N_ = (0, 1, 2, 3)
        classes = []
        for d in ZD:
            for (a, ha, b, hb) in d:
                if cls(a, ha)[1] == N_ and cls(b, hb)[1] != N_ and cls(b, hb)[1] not in classes:
                    classes.append(cls(b, hb)[1])
        assert len(classes) == 5
        base = {(N_, N_): GB}
        for k, c in enumerate(classes):
            base[(N_, c)] = GB + 1 + 2 * k
            base[(c, N_)] = GB + 2 + 2 * k
        SP1, SP2 = GB + 11, GB + 12
        pk4 = lambda t: '0x%08x' % sum((x & 0xff) << (8 * k) for k, x in enumerate(t))
        L = ['L_addrc:',
             f's_and_b32 s{S_T2}, s{S_WAVE}, 1', f's_lshl_b32 s{S_T2}, s{S_T2}, 1', f'v_add_u32 v{vg}, s{S_T2}, v{half}',
             f'v_min_u32 v{t3}, 25, v{i32}',
             f's_mul_i32 s{S_T0}, s{S_GRP}, {UST - 1352}', f's_add_u32 s{S_T0}, s{S_T0}, 1352',
             f's_mul_i32 s{S_T1}, s{S_GRP}, {A3 - A1}', f's_add_u32 s{S_T1}, s{S_T1}, {A1}',
             f'v_mul_u32_u24 v{t4}, s{S_T0}, v{t3}', f'v_add_u32 v{t4}, s{S_T1}, v{t4}',
             f'v_lshlrev_b32 v{vDl}, 2, v{t3}', f'v_add_u32 v{vDl}, {A3 - A1}, v{vDl}'] + ([
             f's_lshl_b32 s{S_T0}, s{S_GRP}, 2', f's_xor_b32 s{S_T0}, s{S_T0}, 4', f'v_lshrrev_b32 v{t5}, 2, v{t3}', f'v_and_b32 v{t5}, s{S_T0}, v{t5}',
             f'v_add_u32 v{t4}, v{t4}, v{t5}', f'v_sub_u32 v{vDl}, v{vDl}, v{t5}'] if o.w1s else []) + [
             f'v_mul_u32_u24 v{vL}, 52, v{t3}', f'v_lshl_add_u32 v{vL}, v{vg}, 1, v{vL}', f'v_add_u32 v{vL}, {V2OFF}, v{vL}',
             f'v_lshlrev_b32 v{vWo}, 1, v{t3}', f'v_add_u32 v{vWo}, {L_WCO}, v{vWo}',
             f'v_mad_u32_u24 v{SP1}, v{vg}, 52, v{t4}',
             f'v_lshl_add_u32 v{SP2}, v{vg}, 1, v{t4}',
             f'v_lshl_add_u32 v{GB}, v{vg}, 1, v{SP1}',
             f'v_lshlrev_b32 v{t3}, 3, v{vg}']
        for k, c in enumerate(classes):
            L += [f's_mov_b32 s{S_T0}, {pk4(c)}', f'v_bfe_i32 v{t5}, s{S_T0}, v{t3}, 8',
                  f'v_lshl_add_u32 v{GB + 1 + 2 * k}, v{t5}, 1, v{SP1}', f'v_mad_i32_i24 v{GB + 2 + 2 * k}, v{t5}, 52, v{SP2}']
        L += [f's_mov_b32 s{S_T0}, {pk4((0, 54, 2, 0))}', f'v_bfe_u32 v{t5}, s{S_T0}, v{t3}, 8', f'v_add_u32 v{SP1}, v{t5}, v{t4}',
              f'v_add_u32 v{SP2}, 52, v{t4}', f'v_mov_b32 v{vm}, {OOB}',
              f'v_cmp_eq_u32 vcc, 3, v{vg}', f'v_cndmask_b32 v{SP1}, v{SP1}, v{vm}, vcc', f'v_cndmask_b32 v{vWo}, v{vm}, v{vWo}, vcc',
              f'v_cmp_eq_u32 vcc, 2, v{vg}', f'v_cndmask_b32 v{SP2}, v{vm}, v{SP2}, vcc',
              f'v_cmp_gt_u32 vcc, 2, v{vg}', f'v_cndmask_b32 v{vL6}, v{vm}, v{vL}, vcc']
        L += [f's_lshr_b32 s{S_T1}, s{cw}, 1', f's_mul_i32 s{S_T1}, s{S_T1}, {6 * 1024}', f's_mul_i32 s{S_T0}, s{S_GRP}, {6 * 1024}',
              f'v_lshlrev_b32 v{t5}, 8, v{vg}',
              f'v_lshl_add_u32 v{t3}, v{i32}, 4, v{t5}', f'v_add_u32 v{vWr}, {TA}, v{t3}', f'v_add_u32 v{vWu}, {TB}, v{t3}',
              f'v_bfe_u32 v{t3}, v0, 2, 2', f'v_lshl_add_u32 v{t5}, v{t3}, 4, v{t5}', f'v_and_b32 v{t3}, 3, v0',
              f'v_lshl_add_u32 v{t4}, v{t3}, 6, v{t5}', f'v_add_u32 v{t4}, {TC}, v{t4}',
              f'v_cmp_lt_u32 vcc, 15, v{i32}', f'v_cndmask_b32 v{vWr}, v{vWr}, v{t4}, vcc', f'v_add_u32 v{t4}, 16, v{t4}',
              f'v_cndmask_b32 v{vWu}, v{vWu}, v{t4}, vcc',
              f'v_lshl_add_u32 v{t4}, v{t3}, 5, v{t5}', f'v_add_u32 v{t4}, {TD - 16}, v{t4}',
              f'v_cmp_lt_u32 vcc, 19, v{i32}', f'v_cndmask_b32 v{vWr}, v{vWr}, v{t4}, vcc',
              f'v_add_u32 v{vWr}, s{S_T1}, v{vWr}', f'v_add_u32 v{vWu}, s{S_T0}, v{vWu}',
              f'v_cmp_lt_u32 vcc, 25, v{i32}', f'v_cndmask_b32 v{vWr}, v{vWr}, v{vm}, vcc', f'v_cndmask_b32 v{vWu}, v{vWu}, v{vm}, vcc',
              f'v_mov_b32 v{vMx}, 0']
        L += [f's_mul_i32 s{S_BCUR}, s{S_WAVE}, {XBSZ}', f's_add_u32 s{S_BCUR}, s{S_BCUR}, {XB0}', f's_mov_b32 s{S_BD}, {XB1 - XB0}',
              f'v_add_u32 v{aD}, {TA}, v{vStg}',
              f'v_and_b32 v{t3}, 11, v0', f'v_cmp_eq_u32 vcc, 11, v{t3}', f'v_cndmask_b32 v{aC}, v{aD}, v{vm}, vcc',
              f'v_and_b32 v{t3}, 3, v0', f'v_cmp_eq_u32 vcc, 0, v{t3}', f'v_cndmask_b32 v{aLc}, v{aC}, v{vm}, vcc',
              f'v_lshrrev_b32 v{vg}, 4, v0', f'v_bfe_u32 v{t3}, v0, 1, 3', f'v_lshlrev_b32 v{t5}, 4, v{t3}', f'v_add_u32 v{t5}, {TD}, v{t5}',
              f'v_and_b32 v{t3}, 10, v0', f'v_cmp_eq_u32 vcc, 10, v{t3}', f'v_cndmask_b32 v{t5}, v{t5}, v{vm}, vcc',
              f'v_and_b32 v{t4}, 1, v0', f'v_lshl_add_u32 v{aS}, v{vg}, 9, v{t5}', f'v_lshl_add_u32 v{aS}, v{t4}, 2, v{aS}', f'v_add_u32 v{aS}, 1024, v{aS}',
              f'v_lshl_add_u32 v{FT}, v{vg}, 8, v{t5}', f'v_lshl_add_u32 v{FT}, v{t4}, 20, v{FT}',
              f'v_and_b32 v{vm}, 15, v0', f's_mov_b32 s{S_T0}, {XPI}',
              f'v_lshlrev_b32 v{t3}, 1, v{vm}', f'v_add_u32 v{t3}, s{S_BCUR}, v{t3}',
              f'v_mad_u32_u24 v{vRaw}, v{vg}, s{S_T0}, v{t3}',
              f's_lshl_b32 s{S_T0}, s{S_WAVE}, 10', f's_add_u32 s{S_T0}, s{S_T0}, {XCH}',
              f'v_add_u32 v{vXw}, s{S_T0}, v{vStg}',
              f'v_add_u32 v{t3}, 256, v{vStg}', f'v_and_b32 v{t3}, 1023, v{t3}', f'v_add_u32 v{vX1}, s{S_T0}, v{t3}',
              f'v_xor_b32 v{t3}, 512, v{vStg}', f'v_add_u32 v{vX2}, s{S_T0}, v{t3}', f'v_lshlrev_b32 v{vSh}, 4, v{half}']
        L += [f'v_mov_b32 v{r}, 0' for r in list(range(RAW, RAW + 8)) + list(range(BT, BT + 24))]
        L += [f'v_mul_u32_u24 v{t4}, {XPI}, v{vg}',
              f'v_bfe_u32 v{t5}, v0, 2, 2', f'v_lshl_add_u32 v{t4}, v{t5}, 7, v{t4}',
              f'v_and_b32 v{t5}, 3, v0', f'v_lshl_add_u32 v{vLinB}, v{t5}, 3, v{t4}', f'v_add_u32 v{vLin}, s{S_BCUR}, v{vLinB}',
              f'v_and_b32 v{t5}, 1, v0', f's_mov_b32 s{S_T0}, 0xaaaaaaaa', f'v_mul_lo_u32 v{vSI}, s{S_T0}, v{t5}', f'v_or_b32 v{vSI}, 0x44444444, v{vSI}',
              f'v_lshlrev_b32 v{vOr}, 1, v0', f'v_add_u32 v{vOr}, s{S_BCUR}, v{vOr}', f'v_mov_b32 v{vAcc}, 0x3f80',
              f'ds_write_b16 v{vOr}, v{vAcc} offset:{3 * XPI + 7 * 128}', f'v_add_u32 v{vOr}, s{S_BD}, v{vOr}']
        L += [f's_mul_i32 s{S_T3}, s{S_WAVE}, 6', f's_add_u32 s{S_PX}, s{S_PX}, s{S_T3}', f's_mul_i32 s{S_PX}, s{S_PX}, 104',
              f's_add_u32 s{S_PXE}, s{S_PX}, 80', f's_add_u32 s{S_PX}, s{S_PX}, {4 * o.pfx0}',
              f's_mov_b32 s{S_T3}, 10923', f'v_min_u32 v{t3}, 35, v0',
              f'v_mul_u32_u24 v{t4}, s{S_T3}, v{t3}', f'v_lshrrev_b32 v{t4}, 16, v{t4}',
              f'v_mul_u32_u24 v{t4}, {104 - 24}, v{t4}', f'v_lshl_add_u32 v{vPXL}, v{t3}, 2, v{t4}']
        L += self.stamp(14) + (pfw() if o.pf1 == 1 else [])
        L += [f's_cmp_eq_u32 s{S_GRP}, 0', 's_cbranch_scc1 L_g0pf']
        cc = self.seq(L)

        def bread(m, base):
            b = BALL + m * 8
            return [f'ds_read_b64_tr_b16 {vr(b, 2)}, v{vBs0} offset:{base + m * 256}',
                    f'ds_read_b64_tr_b16 {vr(b + 2, 2)}, v{vBs0} offset:{base + m * 256 + 4 * 1352}',
                    f'ds_read_b64_tr_b16 {vr(b + 4, 2)}, v{vBs1a} offset:{base + m * 256}',
                    f'ds_read_b64_tr_b16 {vr(b + 6, 2)}, v{vBs1b} offset:{base + m * 256}']

        def mm6(base, post=lambda m: []):
            c = []
            for m in range(3 if base is not None else 0):
                c += bread(m, base)
            for m in range(6):
                if m + 3 < 6 and base is not None:
                    c += bread(m + 3, base)
                b = BALL + m * 8
                d = DALL + (m % 4) * 16
                c.append(f'v_mfma_f32_32x32x16_bf16 {vr(d, 16)}, {vr(AFR, 4)}, {vr(b, 4)}, 0')
                c.append(f'v_mfma_f32_32x32x16_bf16 {vr(d, 16)}, {vr(AFR + 4, 4)}, {vr(b + 4, 4)}, {vr(d, 16)}')
                if m >= 2:
                    c += post(m - 2)
            return c + post(4) + post(5)

        e1 = [f's_sub_u32 s{S_T0}, s{S_PX}, {24 * 104}', f'buffer_load_dword v{XJ + 4}, v{vPXL}, {srd(SRD_IDX)}, s{S_T0} offen',
              f'buffer_load_dword v{XJ + 5}, v{vPXL}, {srd(SRD_IDX)}, s{S_PX} offen']
        e2 = [f'v_lshlrev_b32 v{XJ + 4}, 7, v{XJ + 4}', f'buffer_load_dword v255, v{XJ + 4}, {srd(SRD_TAB)}, 0 offen',
              f'v_lshlrev_b32 v{XJ + 5}, 7, v{XJ + 5}', f'buffer_load_dword v255, v{XJ + 5}, {srd(SRD_TAB)}, 0 offen']
        if o.nopf & 8:
            e1, e2 = [], []
        xx = xdma() + xdma(XJ, -4 * XBSZ) + xidx()
        L = sig(F_W3) + [f's_sub_u32 s{S_SAMP}, s{S_SAMP}, {4 * 104}'] + xidx(XJ, 0, False) + [f's_add_u32 s{S_SAMP}, s{S_SAMP}, {4 * 104}'] + xidx()
        L += e1 + [f's_add_u32 s{S_PX}, s{S_PX}, 24'] + pfx_a()
        L += wait(F_W3, 8) + self.stamp(2)
        uc0 = self.seq(L)
        L = []
        for s2 in range(2):
            for rd in range(2):
                L.append(f'ds_read_b64 {vr(AFR + 4 * s2 + 2 * rd, 2)}, v{AD + 10} offset:{s2 * 32 + rd * 8}')
        L += [f'ds_read_u16 v{t5}, v{AD + 11} offset:52']

        def vpost(m):
            p_ = m // 2
            c = [f'v_cvt_pk_bf16_f32 v{V3T + p_}, v{DALL + 16 * (m % 4)}, 0']
            if m % 2:
                c = ['s_mov_b32 exec_lo, 0'] + c + [f's_mov_b64 exec, s[{S_MASK}:{S_MASK + 1}]' if p_ == 2 else 's_mov_b32 exec_lo, -1',
                                                    f'ds_write_b16 v{AD + p_}, v{V3T + p_}']
            return c
        L += mm6(A3 - A2, vpost)
        L += ['s_mov_b64 exec, 0x3ffffff', f'ds_write_b16 v{AD + 12}, v{t5}', 's_mov_b64 exec, -1']
        L += self.stamp(3) + sig(F_V3) + (pfw() if o.pf1 in (2, 3) and o.epos != 3 else []) + [f'v_cmp_gt_u32 s[{S_MASK}:{S_MASK + 1}], 36, v{vE}']
        L += (e2 if o.epos == 0 else []) + (xx if o.xpos == 0 else []) + (e2 if o.epos == 1 else [])
        L += wait(F_W2, 4) + [bread(m, 0) for m in range(6)] + wait(F_V3, 4) + self.stamp(5) + [f's_setprio {o.uprio}'] + (e2 + (pfw() if o.pf1 in (2, 3) else []) if o.epos == 3 else [])
        for s2 in range(2):
            for rd in range(2):
                L.append(f'ds_read_b64_tr_b16 {vr(AFR + 4 * s2 + 2 * rd, 2)}, v{vA3} offset:{s2 * 1024 + rd * 256}')

        def upost(m):
            d = DALL + 16 * (m % 4)
            c = [f'v_cvt_pk_bf16_f32 v{UP + 8 * m + qq}, v{d + 2 * qq}, v{d + 2 * qq + 1}' for qq in range(8)]
            if m == 5:
                c.append(f's_mov_b64 exec, s[{S_MASK}:{S_MASK + 1}]')
            w_ = [f'ds_write2_b32 v{AD + 4 + m}, v{UP + 8 * m + 2 * a}, v{UP + 8 * m + 2 * a + 1} offset0:{4 * a} offset1:{4 * a + 1}' for a in range(3)]
            return c + interleave(w_, [f'v_max3_f32 v{vMx}, v{vMx}, abs(v{d + 2 * qq}), abs(v{d + 2 * qq + 1})' for qq in range(7)])
        L += mm6(None, upost)
        L.append('s_mov_b32 exec_hi, 0')
        for m in (5, 4, 3, 2, 1, 0):
            L.append(f'ds_write_b32 v{AD + 4 + m}, v{UP + 8 * m + 6} offset:48')
            L.append(f'ds_write_b16 v{vV2w}, v{UP + 8 * m + 7} offset:{m * 256}')
            if m == 5:
                L.append('s_mov_b32 exec_lo, -1')
        L += ['s_mov_b64 exec, -1'] + postmax(vMx, F_U) + [f's_setprio {o.bprio}'] + (xx if o.xpos == 1 else []) + (e2 if o.epos == 2 else []) + self.stamp(6) + ['s_branch L_uph']
        uc = self.seq(L)

        L = ['L_g0pf:'] + stg[o.ccpos:] + [f's_add_u32 s{S_SAMP}, s{S_SAMP}, {8 * 104}', f's_add_u32 s{S_PX}, s{S_PX}, 24'] + xidx() + pfx_a()
        L += (pfw() if o.pf1 in (2, 3) else []) + sig(sB[3], vm_tags=['STG' + sB[0]]) + self.stamp(4) + [f's_mov_b32 s{S_PH}, 0'] + wait(F_W1, 4) + self.stamp(2)
        L += [f's_cmp_ge_u32 s{cw}, 2', 's_cbranch_scc1 L_chunk2']
        g0pf = self.seq(L)

        def chunk(k):
            units = [(n, h) for n in range(12 * k, min(12 * k + 12, 44)) for h in range(2)]
            NB_, BA = 12, o.ba
            reads, maths = [], []
            for ui, (n, h) in enumerate(units):
                a, ha, b, hb = ZD[n][h]
                (fa, ca), (fb, cb) = cls(a, ha), cls(b, hb)
                tb = BT + (ui % NB_) * 2
                dst = SUM + 24 * (k % 2) + ui
                if ca != N_:
                    R = [f'ds_read_u16_d16_hi v{tb}, v{SP1} offset:{54 * 24}', f'ds_read_u16_d16_hi v{tb + 1}, v{SP2} offset:{54 * 24}']
                    M = [f'v_add_f32 v{dst}, v{tb}, v{tb + 1}']
                elif (a, ha) == (b, hb):
                    R = [f'ds_read_u16_d16_hi v{tb}, v{base[(ca, cb)]} offset:{54 * fa}']
                    M = [f'v_mov_b32 v{dst}, v{tb}']
                else:
                    R = [f'ds_read_u16_d16_hi v{tb}, v{base[(ca, cb)]} offset:{52 * fa + 2 * fb}',
                         f'ds_read_u16_d16_hi v{tb + 1}, v{base[(cb, ca)]} offset:{52 * fb + 2 * fa}']
                    M = [f'v_add_f32 v{dst}, v{tb}, v{tb + 1}']
                if ui % 2:
                    M = M + maths[-1] + [f'v_max3_f32 v{vMx}, v{vMx}, abs(v{dst - 1}), abs(v{dst})']
                    maths[-1] = []
                reads.append(R)
                maths.append(M)
            code = []
            nu = len(units)
            for ui in range(nu + BA):
                if ui < nu:
                    code += reads[ui]
                if ui == nu and k == 3:
                    code += [f'ds_read_u16_d16_hi v{LT + e}, v{vL} offset:{8 * e}' for e in range(6)]
                    code += [f'ds_read_u16_d16_hi v{LT + 6}, v{vL6} offset:48', f'ds_read_u16_d16_hi v{LT + 7}, v{vWo}']
                if ui >= BA:
                    code += maths[ui - BA]
            return code
        LT = BT + 8
        assert o.ba <= 8

        def conv(n):
            c = [f'v_fma_mix{"hi" if h else "lo"}_f16 v{OUT + q}, v{SUM + 2 * q + h}, s{S_SC}, 0' for h in range(2) for q in range(4 * n, 4 * n + 4)]
            if o.wr8:
                m_ = (1 << o.wr8) - 1
                c += [f'v_add_u32 v{OUT + q}, {(1 << (o.wr8 - 1)) * 0x10001}, v{OUT + q}' for q in range(4 * n, 4 * n + 4)]
                c += [f'v_and_b32 v{OUT + q}, {0xffffffff ^ (m_ * 0x10001)}, v{OUT + q}' for q in range(4 * n, 4 * n + 4)]
            return c
        wr = lambda n, A: [f'ds_write_b128 v{A}, {vr(OUT + 4 * n, 4)} offset:{n * 1024}']
        ch, chb = [], []
        for k in range(4):
            ch.append(self.seq([f'L_chunk{k}:'] + chunk(k) + [f's_cmp_lg_u32 s{S_PH}, 0', f's_cbranch_scc1 L_uconv{k % 2}']))
            chb.append(self.seq(['s_branch L_w1conv'] if k == 1 else []))
        L = ['L_w1conv:'] + self.stamp(3) + postmax(vMx, F_M)
        L += [f'v_add_u32 v{GB + k}, v{GB + k}, v{vDl}' for k in range(13)]
        L += waitmax(F_M, S_T2, 141) + setsc(S_T2) + self.stamp(5)
        L += conv(0) + conv(1) + wr(0, vWr) + conv(2) + wr(1, vWr) + conv(3) + wr(2, vWr) + conv(4) + wr(3, vWr) + wr(4, vWr)
        L += [f's_cmp_ge_u32 s{cw}, 2', 's_cbranch_scc1 L_w1x']
        w1a = self.seq(L)
        w1b = self.seq(conv(5) + wr(5, vWr))
        w1c = self.seq(['L_w1x:'])
        xbsig = lambda: [WaitTag(vm_tags=['XB']), f'v_mov_b32 v{vF}, s{S_GRP}', f'ds_add_u32 v{vFA}, v{vF} offset:{F_XB}']
        L = ['L_uph:'] + self.stamp(7) + (self.tlb2(vZ, vFl) if o.lb else []) + waitmax(F_U, S_T3, 140) + setsc(S_T3) + self.stamp(12)
        L += [f's_mov_b32 s{S_PH}, 1', f's_lshr_b32 s{S_T1}, s{S_WAVE}, 1',
              f's_cmp_eq_u32 s{S_T1}, 0', 's_cbranch_scc1 L_chunk0', f's_cmp_eq_u32 s{S_T1}, 1', 's_cbranch_scc1 L_chunk1',
              f's_cmp_eq_u32 s{S_T1}, 2', 's_cbranch_scc1 L_chunk2', 's_branch L_chunk3']
        uph = self.seq(L)
        wm1 = lambda: (xbsig() if o.lb else []) + waitmax(F_M, S_T2, 141)
        u0 = self.seq(['L_uconv0:'] + self.stamp(13) + conv(0) + wm1() + wr(0, vWu) + conv(1) + wr(1, vWu) + conv(2) + wr(2, vWu) + ['s_branch L_built'])
        u1a = self.seq(['L_uconv1:'] + self.stamp(13) + conv(3) + wm1() + wr(3, vWu) + conv(4) + wr(4, vWu) + [f's_cmp_lg_u32 s{S_GRP}, 0', 's_cbranch_scc1 L_ulin'])
        u1b = self.seq(conv(5) + wr(5, vWu) + ['s_branch L_built'])
        L = ['L_ulin:'] + [f'v_mul_f32 v{LT + e}, s{S_SC}, v{LT + e}' for e in range(8)]
        L += [f'v_cvt_pk_bf16_f32 v{OUT + 20 + q}, v{LT + 2 * q}, v{LT + 2 * q + 1}' for q in range(4)] + wr(5, vWu)
        u1c = self.seq(L)

        w0x = self.build_srd(SRD_W2, S_W2, 3328) + [f'v_lshlrev_b32 v{FT}, 7, v0', f'buffer_load_dword v255, v{FT}, {srd(SRD_W2)}, 0 offen']

        slot = lambda k: RZ + 4 * (k % 4)
        MF = [('Lb', 0), ('a', 1), ('b', 1), ('d', 1), ('Lc', 0), ('a', 2), ('c', 1), ('b', 2), ('c', 2)]
        for k in range(3, 10):
            MF += ([('S', k)] if k % 2 else []) + [('a', k), ('b', k), ('c', k)]
        MF += [('a', 10), ('b', 10), ('a', 11), ('b', 11), ('c', 10), ('S', 11), ('c', 11)]
        if o.mo == 1:
            MF = [('Lb', 0), ('a', 1), ('d', 1), ('Lc', 0), ('b', 1), ('a', 2), ('c', 1), ('b', 2), ('a', 3), ('c', 2), ('S', 3), ('b', 3), ('c', 3)]
            for k in range(4, 10):
                MF += ([('S', k)] if k % 2 else []) + [('a', k), ('b', k), ('c', k)]
            MF += [('a', 10), ('b', 10), ('c', 10), ('a', 11), ('b', 11), ('S', 11), ('c', 11)]
        if o.mo == 2:
            MF = [('d', 1), ('Lb', 0), ('a', 1), ('Lc', 0), ('b', 1), ('a', 2), ('c', 1), ('b', 2), ('a', 3), ('c', 2), ('S', 3), ('b', 3), ('c', 3)]
            for k in range(4, 12):
                MF += ([('S', k)] if k % 2 else []) + [('a', k), ('b', k), ('c', k)]
        if o.mo == 3:
            MF = [('d', 1), ('Lb', 0), ('b', 1), ('a', 1), ('Lc', 0), ('c', 1)]
            for k in range(2, 12, 2):
                MF += [('c', k), ('c', k + 1), ('S', k + 1), ('a', k), ('a', k + 1), ('b', k), ('b', k + 1)] if k % 4 == 2 and k < 10 else \
                      [('b', k), ('b', k + 1), ('S', k + 1), ('a', k), ('a', k + 1), ('c', k), ('c', k + 1)]
        if o.mo == 4:
            MF = [('Lb', 0), ('b', 1), ('a', 1), ('d', 1), ('Lc', 0), ('c', 1)]
            for k, od in zip(range(2, 12, 2), ('cSab', 'bSca', 'aSbc', 'cSba', 'abSc')):
                for t_ in od:
                    MF += [('S', k + 1)] if t_ == 'S' else [(t_, k), (t_, k + 1)]
        NM = len(MF)
        use = {k: [m for m, (t_, kk) in enumerate(MF) if kk == k or (t_ == 'S' and kk == k + 1)] for k in range(12)}
        pos = lambda t_, k: MF.index((t_, k))

        def mfma(m):
            t_, k = MF[m]
            if t_[0] == 'L':
                d, w = {'b': (Db, WL), 'c': (Dc, WL + 4)}[t_[1]]
                return f'v_mfma_f32_16x16x32_bf16 {vr(d, 4)}, {vr(w, 4)}, {vr(slot(0), 4)}, 0'
            if t_ == 'S':
                return f'v_smfmac_f32_16x16x64_f16 {vr(Ds, 4)}, {vr(WS_ + 2 * (k - 1), 4)}, {vr(slot(k - 1), 8)}, v{vSI}'
            d, w = {'a': (Da, WA), 'b': (Db, WB), 'c': (Dc, WC), 'd': (Ds, WS_)}[t_]
            return f'v_mfma_f32_16x16x32_f16 {vr(d, 4)}, {vr(w + 4 * (k - 1), 4)}, {vr(slot(k), 4)}, {"0" if t_ in "ad" and k == 1 else vr(d, 4)}'

        def wload(m):
            t_, k = MF[m]
            if t_[0] == 'L':
                a, w, off = {'b': (aD, WL, TB), 'c': (aLc, WL + 4, TC)}[t_[1]]
                return [f'ds_read_b128 {vr(w, 4)}, v{a} offset:{off - TA + 11 * 1024}']
            if t_ == 'd':
                return [f'ds_read_b128 {vr(WS_, 4)}, v{FT}']
            if t_ == 'S':
                w = WS_ + 2 * (k - 1)
                return [f'ds_read2_b32 {vr(w, 2)}, v{aS} offset0:0 offset1:2', f'ds_read2_b32 {vr(w + 2, 2)}, v{aS} offset0:64 offset1:66',
                        f'v_add_u32 v{aS}, 2048, v{aS}']
            w, a, off = {'a': (WA, aD, 0), 'b': (WB, aD, TB - TA), 'c': (WC, aC, TC - TA)}[t_]
            return [f'ds_read_b128 {vr(w + 4 * (k - 1), 4)}, v{a} offset:{off + (k - 1) * 1024}']

        def zops(n):
            z = slot(n // 4 + 1) + n % 4
            (a, ha, b, hb), (a2, ha2, b2, hb2) = ZD[n]
            if (a, b) == (a2, b2):
                return [f'v_pk_mul_f16 v{z}, v{X + a}, v{X + b} op_sel:[{ha},{hb}] op_sel_hi:[{ha2},{hb2}]']
            return [f'v_mul_f16_sdwa v{z}, v{X + a}, v{X + b} dst_sel:WORD_0 dst_unused:UNUSED_PAD src0_sel:WORD_{ha} src1_sel:WORD_{hb}',
                    f'v_mul_f16_sdwa v{z}, v{X + a2}, v{X + b2} dst_sel:WORD_1 dst_unused:UNUSED_PRESERVE src0_sel:WORD_{ha2} src1_sel:WORD_{hb2}']

        cvt = lambda d, a, b: f'v_cvt_pk_f16_f32 v{d}, v{a}, v{b}'
        LAT = o.lat

        class It:
            def __init__(s, name, G, code, lo, hi, pre):
                s.name, s.G, s.code, s.lo, s.hi, s.pre, s.at = name, G, code, lo, hi, list(pre), None

        NG = 14
        items = {}

        def add(name, G, code, lo=-10**9, hi=10**9, pre=()):
            items[(name, G)] = It(name, G, code, lo, hi, pre)
        usej = lambda j: [n for n, d in enumerate(ZD) if any(a // 4 == j or b // 4 == j for (a, _, b, _) in d)]
        lastz = {j: max(usej(j)) for j in range(3)}
        for G in range(NG):
            c, b0 = G % 4, G * NM
            for r in range(8):
                add(f'raw{r}', G, f'ds_read_u16_d16_hi v{RAW + r}, v{vRaw} offset:{r * 128 + c * 32}', lo=b0 - o.rspan, hi=b0 - o.rlead,
                    pre=[(f'co{q}', G - 1, 0) for q in range(4)] + ([('swr', G, 0)] if c == 0 else []) + ([('lin1', G - 1, 0)] if o.w2 else []))
            for q in range(4):
                add(f'co{q}', G, cvt(X + q - 1, RAW + q - 1, RAW + q + 2) if q else cvt(X + 3, RAW + 6, RAW + 7), hi=b0 - 4 if not o.w2 else b0 - 9,
                    pre=[(f'raw{r}', G, LAT) for r in range(8)] + [(f'z{lastz[0]}', G - 1, 0)])
            add('wo', G, f'ds_write_b128 v{vXw}, {vr(X, 4)}', hi=b0 - 2 if not o.w2 else b0 - 8, pre=[(f'co{q}', G, 0) for q in range(4)] + [('r2', G - 1, 0)])
            add('r1', G, f'ds_read_b128 {vr(X + 4, 4)}, v{vX1}', hi=b0 if not o.w2 else b0 - 7, pre=[('wo', G, o.wgap)])
            add('r2', G, f'ds_read_b128 {vr(X + 8, 4)}, v{vX2}', hi=b0 + 1 if not o.w2 else b0 - 7, pre=[('r1', G, 0)])
            for q in range(3):
                add(f'al{q}', G, f'v_alignbit_b32 v{X + 8 + q}, v{X + 8 + q}, v{X + 8 + q}, v{vSh}', lo=b0 + min(use[0]) if o.w2 else -10**9, hi=b0 + 20, pre=[('r2', G, LAT)])
            if c == 0:
                add('swr', G, [f'v_add_u32 v{vRaw}, s{S_BD}, v{vRaw}', WaitTag(vm_tags=['XB'])], lo=b0 - o.rspan - 1, hi=b0 - o.rspan - 1,
                    pre=[(f'raw{r}', G - 1, 0) for r in range(8)])
            for p in range(2):
                add(f'lin{p}', G, f'ds_read_b64_tr_b16 {vr(slot(0) + 2 * p, 2)}, v{vLin} offset:{p * 512 + c * 32}',
                    lo=b0 - NM + max(use[8]), hi=b0 + min(use[0]) - 1 - LAT, pre=([('swl', G, 0)] if c == 0 else []) + ([('r2', G, 0)] if o.w2 else []))
            if c == 0:
                add('swl', G, [f's_add_u32 s{S_TW}, s{S_BCUR}, s{S_BD}', f'v_add_u32 v{vLin}, s{S_TW}, v{vLinB}'], lo=b0 - NM + 20, hi=b0 - 12,
                    pre=[(f'lin{p}', G - 1, 0) for p in range(2)])
            for n in range(44):
                k = n // 4 + 1
                js = {x // 4 for (a, _, b, _) in ZD[n] for x in (a, b)}
                pre = [(f'co{q}', G, 0) for q in range(4)] + ([('r1', G, LAT)] if 1 in js else []) + ([(f'al{q}', G, 0) for q in range(3)] if 2 in js else [])
                if n:
                    pre.append((f'z{n - 1}', G, 0))
                if k == 5 and n % 4 < 3:
                    pre.append(('or1', G, 0))
                lo = b0 + max(use[k - 4]) if k >= 4 else b0 - NM + max(use[k + 8])
                if k == 1:
                    lo = max(lo, b0 - o.z1lo)
                zc = zops(n)
                if n == 12:
                    zc = [zops(12)[0], zops(13)[0]]
                if n == 13:
                    zc = [zops(12)[1], zops(13)[1]]
                add(f'z{n}', G, zc, lo=lo, hi=b0 + min(use[k]) - 2, pre=pre)
            s1 = slot(1)
            if c == 1:
                add('or1', G, f'v_or3_b32 v{vOr}, v{s1}, v{s1 + 1}, v{s1 + 2}', hi=b0 + 6, pre=[('z2', G, 0), ('blk', G - 2, 0)])
                add('ck', G, [f'v_and_b32 v{vOr}, 0x60006000, v{vOr}', f'v_cmp_ne_u32 s[{S_CHK}:{S_CHK + 1}], 0, v{vOr}'], hi=b0 + 30, pre=[('or1', G, 0)])
            e = b0 + NM
            rdy = lambda t_: b0 + pos(t_, 11) + o.flo
            for r in range(4):
                add(f'f{r}', G, f'v_{"mul" if c == 0 and r == 0 else "fmac"}_f32 v{vAcc}, v{Da + r}, v{Db + r}', lo=min(max(rdy('a'), rdy('b')), e + pos('Lb', 0) - 1), hi=e + pos('Lb', 0) - 1,
                    pre=[(f'f{r - 1}', G, 0) if r else ('f8', G - 1, 0)] + ([('blk', G - 1, 0)] if c == 0 else []))
            for r in range(2):
                add(f'f{4 + r}', G, f'v_add_f32 v{FT + r}, v{Ds + 2 * r}, v{Ds + 2 * r + 1}', lo=min(rdy('S'), e + pos('d', 1) - 1), hi=e + pos('d', 1) - 1,
                    pre=[('f8', G - 1, 0)] + ([('blk', G - 1, 0)] if c == 0 else []))
            for r, (x, y) in enumerate(((Dc, Dc + 1), (FT, Dc + 2), (FT + 1, Dc + 3))):
                add(f'f{6 + r}', G, f'v_fmac_f32 v{vAcc}, v{x}, v{y}', lo=rdy('c'), hi=e + pos('Lc', 0) - 1, pre=[(f'f{5 + r}', G, 0), ('f3', G, 0), ('f4', G, 0)])
            if c == 3:
                for q, x in enumerate(dppred('v_add_f32', vAcc)):
                    add(f'dp{q}', G, x, hi=e + 7 + 2 * q, pre=[(f'dp{q - 1}', G, 2) if q else ('f8', G, 2)])
                add('blk', G, '@BLK', hi=e + 20, pre=[('dp5', G, 1)])
        order = list(items.values())
        gaps = {}
        isv = lambda x: isinstance(x, str) and x.startswith('v_')
        isl = lambda x: isinstance(x, str) and x.startswith('ds_')
        for gp in range(-NM, NG * NM):
            gaps[gp] = []
            uv = ul = 0
            if o.cw and (gp + 1 - min(use[0])) % NM == 0:
                ul = 1
            if any(it.name == 'wo' for d_ in range(1, o.wgap) for it in gaps.get(gp - d_, [])):
                ul = 2
            while True:
                cand = []
                for it in order:
                    if it.at is not None or it.lo > gp:
                        continue
                    ok = True
                    for (nm, G, dist) in it.pre:
                        p = items.get((nm, G))
                        if p is None:
                            continue
                        if p.at is None or p.at + dist > gp:
                            ok = False
                            break
                    if not ok:
                        continue
                    cv_, cl_ = sum(map(isv, flat([it.code]))), sum(map(isl, flat([it.code]))) * (o.wcost if it.name == 'wo' else 1) + (1 if o.cw and it.name == 'co0' else 0)
                    if it.hi > gp and (uv + cv_ > o.gapv or ul + cl_ > o.gapl or uv + ul + cv_ + cl_ > o.gapt) and cv_ + cl_:
                        continue
                    cand.append((it, cv_, cl_))
                if not cand:
                    break
                it, cv_, cl_ = min(cand, key=lambda x: x[0].hi)
                it.at = gp
                uv += cv_; ul += cl_
                gaps[gp].append(it)
        late = [(it.name, it.G, it.at - it.hi) for it in order if it.at is not None and it.at > it.hi and 4 <= it.G < 12]
        print('late items', late)
        sig_ = lambda G0: [[(it.name, it.G - G0) for it in gaps[G0 * NM + m]] for m in range(4 * NM)]
        assert sig_(4) == sig_(8), 'schedule not periodic'
        for f_ in (isv, isl):
            print('gap load', ''.join(str(sum(sum(map(f_, flat([it.code]))) for it in gaps[4 * NM + m])) + ('|' if m % NM == NM - 1 else '') for m in range(4 * NM)))
        keep = lambda c: [x for x in flat([c]) if not (isinstance(x, str) and any(x.startswith(d) for d in o.drop.split(',') if d))]
        prio = lambda p, lab: [f's_cmp_lg_u32 s{S_GRP}, 0', f's_cbranch_scc1 {lab}', f's_setprio {p}', f'{lab}:'] if o.phi else []

        def sstamp():
            if not (o.stamps and o.itst):
                return []
            return [f's_memtime s[{S_ST}:{S_ST + 1}]', f's_add_u32 s{S_C0}, s{S_LOOP}, 20', 's_waitcnt lgkmcnt(0)',
                    f's_mov_b32 m0, s{S_C0}', f'v_writelane_b32 v252, s{S_ST}, m0']

        pcode = []
        for gp in range(-NM, 4 * NM):
            for it in gaps[gp]:
                if it.G >= 4 and not it.name.startswith(('sw', 'wx')):
                    pcode += flat([it.code])
        PFD = o.pfd
        pfl = pfx_b() + ([] if o.nopf & 16 else pfx_a()) + pfw()
        L = ['L_built:'] + self.stamp(10) + ([] if o.lb else xbsig() + self.tlb2(vZ, vFl))
        L += [f's_add_i32 s{S_EXP}, s{S_T2}, s{S_T3}'] + wait(F_XB, 4) + pcode + (pfl if o.lb < 2 else [])
        L += ['s_waitcnt lgkmcnt(0)', 's_barrier'] + (['s_setprio 1'] if o.phi else ['s_setprio 0']) + self.stamp(8)
        L += [wload(m) for m in range(PFD)] + prio(o.pp0, 'L_prf') + (['s_mov_b32 s100, 15'] if o.gst else [])
        peel2 = None
        for m in range(NM):
            L += [mfma(m)] + (wload(m + PFD) if m + PFD < NM else [])
            for it in gaps[4 * NM + m]:
                if it.code == '@BLK':
                    L += [f'ds_write_b16 v{vOr}, v{vAcc} offset:{3 * XPI + 7 * 128}']
                    L += self.cleared('L_cclr', [f's_and_b32 s{S_TW}, s2, 7'], vFl) + xdma(XI, XB1 - XB0) + (pfl if o.lb == 2 else []) + (pfw() if o.pfp else [])
                    L += [f's_sub_i32 s{S_EXP}, 0, s{S_EXP}', f's_mov_b32 s{S_EXPC}, s{S_EXP}',
                          f's_mov_b32 s{S_PH}, 1', f's_mov_b32 s{S_PREV}, 1', f's_mov_b32 s{S_HALF}, 0']
                    L += [f's_cmp_lg_u32 s{S_WAVE}, 7', 's_cbranch_scc1 L_nw0']
                    peel1 = self.seq(L)
                    peelw = self.seq(w0x)
                    L = ['L_nw0:']
                elif it.G >= 4:
                    L += flat([it.code])
        L += (prio(o.pp1, 'L_prg') if o.pp1 != o.pp0 else []) + [f'ds_add_u32 v{vFA}, v{vOne} offset:{F_PEEL}', 's_branch L_grp1']
        peel2 = self.seq(L)
        prime = self.seq(['L_prime:'] + [f'v_mov_b32 v{r}, 0' for r in range(D, D + 16)] + [f'v_mov_b32 v{FT}, 0', f'v_mov_b32 v{FT + 1}, 0'] + pcode)
        blk_a = ['L_blk:', f's_cmp_eq_u32 s{S_PREV}, 0', 's_cbranch_scc1 L_blkend',
                 f'v_readlane_b32 s{S_TW}, v{vAcc}, 63', f'v_ldexp_f32 v{vAcc}, v{vAcc}, s{S_EXPC}', f'v_and_b32 v{vAcc}, -2, v{vAcc}',
                 f's_cmp_ge_u32 s{S_PREV}, 2', 's_cbranch_scc1 L_good',
                 f's_cmp_eq_u64 s[{S_CHK}:{S_CHK + 1}], 0', 's_cbranch_scc1 L_slow',
                 f's_bfe_u32 s{S_TW}, s{S_TW}, 0x80017', f's_cmp_eq_u32 s{S_TW}, 255', 's_cbranch_scc1 L_slow',
                 'L_good:', 's_mov_b32 exec_lo, 0', 's_mov_b32 exec_hi, 0x80000000',
                 f'buffer_store_dword v{vAcc}, v{vZ}, {srd(SRD_WS)}, s{S_RC} offen sc1', 's_mov_b64 exec, -1',
                 f's_add_u32 s{S_RC}, s{S_RC}, 32', f's_sub_u32 s{S_LOOP}, s{S_LOOP}, 1', f's_cmp_eq_u32 s{S_LOOP}, 0', 's_cbranch_scc1 L_cin_done']
        blk_a += [f's_cmp_eq_u32 s{S_LOOP}, 1', 's_cbranch_scc1 L_lastnext']
        blk_b = xdma() + [f's_add_u32 s{S_SAMP}, s{S_SAMP}, {8 * 104}', f's_cmp_lg_u32 s{S_LOOP}, s{S_TK}', 's_cbranch_scc1 L_nodma']
        blk_t = self.cleared('L_tclr', [f's_lshr_b32 s{S_TW}, s{S_ST0}, 14'], vFl) + [f'v_mov_b32 v{vTk}, 1', 's_mov_b64 exec, 1', f'buffer_atomic_add v{vTk}, v{vZ}, {srd(SRD_WS)}, s{S_ST0} offen sc0',
                 's_mov_b64 exec, -1', f's_mov_b32 s{S_TK}, 8', 's_branch L_nodma',
                 'L_lastnext:', f's_cmp_lt_i32 s{S_DYN}, 0', f's_cselect_b32 s{S_RC}, s{S_RC}, s{S_DYN}']
        hook_a = [f's_cmp_lg_u32 s{S_TK}, 8', 's_cbranch_scc1 L_hk']
        n4 = o.n4
        hook_t = ['s_waitcnt vmcnt(0)', f'v_readfirstlane_b32 s{S_TW}, v{vTk}', f's_mov_b32 s{S_TK}, 0', f's_add_u32 s{S_TW}, s{S_TW}, 1',
                  ] + ([f's_cmp_lt_u32 s{S_TW}, {n4}', 's_cbranch_scc1 L_hky', 's_setprio 0', 'L_hky:'] if o.y1 else []) + [
                  f's_cmp_ge_u32 s{S_TW}, {2 * (512 - PB) - n4}', 's_cbranch_scc1 L_hk',
                  f's_add_u32 s{S_LOOP}, s{S_LOOP}, 1', f's_mov_b32 s{S_DYN}, {5 * 2048}',
                  f's_cmp_lt_u32 s{S_TW}, {n4}', 's_cbranch_scc1 L_hkf',
                  f's_add_u32 s{S_TW}, s{S_TW}, {n4}', f's_and_b32 s{S_SAMP}, s{S_TW}, 1', f's_lshr_b32 s{S_TW}, s{S_TW}, 1', f's_mov_b32 s{S_HALF}, 1',
                  f's_lshl_b32 s{S_SAMP}, s{S_SAMP}, 6', f'v_xor_b32 v{vC16}, s{S_SAMP}, v{vC16}',
                  f's_lshl_b32 s{S_SAMP}, s{S_SAMP}, 5', f's_add_u32 s{S_DYN}, s{S_DYN}, s{S_SAMP}',
                  'L_hkf:', f's_add_u32 s{S_TW}, s{S_TW}, {PB}', f's_lshl_b32 s{S_SAMP}, s{S_TW}, 2', f's_add_u32 s{S_DYN}, s{S_DYN}, s{S_SAMP}',
                  f's_andn2_b32 s{S_SAMP}, s{S_ST0}, 0x3fff', f's_add_u32 s{S_DYN}, s{S_DYN}, s{S_SAMP}',
                  f's_lshr_b32 s{S_SAMP}, s{S_SAMP}, 5', f's_add_u32 s{S_SAMP}, s{S_SAMP}, s{S_TW}', f's_mul_i32 s{S_SAMP}, s{S_SAMP}, 104']
        if o.wgt:
            F_CNT, F_RNK = 40, 44
            blk_b = [f'ds_add_rtn_u32 v{vF}, v{vFA}, v{vOne} offset:{F_CNT}'] + xdma() + [f's_add_u32 s{S_SAMP}, s{S_SAMP}, {8 * 104}',
                     f'v_readfirstlane_b32 s{S_TW}, v{vF}', f's_cmp_lg_u32 s{S_TW}, {o.wgt - 1}', 's_cbranch_scc1 L_nodma']
            allc = [x.replace(f's_bitcmp1_b32 vcc_lo, s{S_TW}', 's_and_b32 vcc_lo, vcc_lo, 0xff') for x in self.cleared('L_tclr', [], vFl)]
            blk_t = allc + [f'v_mov_b32 v{vTk}, 1', f's_mov_b32 s{S_TW}, {6 * 2048}', 's_mov_b64 exec, 1', f'buffer_atomic_add v{vTk}, v{vZ}, {srd(SRD_WS)}, s{S_TW} offen sc0',
                            's_mov_b64 exec, -1', 's_waitcnt vmcnt(0)', f'v_add_u32 v{vTk}, 2, v{vTk}', f'v_max_u32 v{vTk}, 1, v{vTk}',
                            f'ds_write_b32 v{vFA}, v{vTk} offset:{F_RNK}', 's_branch L_nodma'] + blk_t[-3:]
            hook_a = [f's_cmp_lg_u32 s{S_LOOP}, s{S_TK}', 's_cbranch_scc1 L_hk']
            hook_t = wait(F_RNK, 1) + [f'v_readfirstlane_b32 s{S_TW}, v{vF}', f's_mov_b32 s{S_TK}, 0', f's_sub_u32 s{S_TW}, s{S_TW}, 1', f's_min_u32 s{S_TW}, s{S_TW}, 255',
                      f's_lshl_b32 s{S_TW}, s{S_TW}, 2', f's_add_u32 s{S_TW}, s{S_TW}, s{cw}',
                      f's_cmp_ge_u32 s{S_TW}, {8 * (56 - n4)}', 's_cbranch_scc1 L_hk',
                      f's_add_u32 s{S_LOOP}, s{S_LOOP}, 1', f's_mov_b32 s{S_DYN}, {5 * 2048 + 4 * PB}',
                      f's_cmp_lt_u32 s{S_TW}, {8 * n4}', 's_cbranch_scc1 L_hkf',
                      f's_add_u32 s{S_TW}, s{S_TW}, {8 * n4}', f's_and_b32 s{S_SAMP}, s{S_TW}, 1', f's_lshr_b32 s{S_TW}, s{S_TW}, 1', f's_mov_b32 s{S_HALF}, 1',
                      f's_lshl_b32 s{S_SAMP}, s{S_SAMP}, 6', f'v_xor_b32 v{vC16}, s{S_SAMP}, v{vC16}',
                      f's_lshl_b32 s{S_SAMP}, s{S_SAMP}, 5', f's_add_u32 s{S_DYN}, s{S_DYN}, s{S_SAMP}',
                      'L_hkf:', f's_and_b32 s{S_ST0}, s{S_TW}, 7', f's_lshr_b32 s{S_TW}, s{S_TW}, 3',
                      f's_lshl_b32 s{S_SAMP}, s{S_ST0}, 12', f's_add_u32 s{S_SAMP}, s{S_SAMP}, s{S_TW}', f's_lshl_b32 s{S_SAMP}, s{S_SAMP}, 2', f's_add_u32 s{S_DYN}, s{S_DYN}, s{S_SAMP}',
                      f's_lshl_b32 s{S_SAMP}, s{S_ST0}, 9', f's_add_u32 s{S_SAMP}, s{S_SAMP}, s{S_TW}', f's_add_u32 s{S_SAMP}, s{S_SAMP}, {PB}', f's_mul_i32 s{S_SAMP}, s{S_SAMP}, 104']
        hook_b = ['L_hk:'] + xidx(adv=False)
        blk_b2 = ['L_nodma:'] + [f's_add_u32 s{S_BCUR}, s{S_BCUR}, s{S_BD}', f's_sub_u32 s{S_BD}, 0, s{S_BD}', f's_mov_b32 s{S_EXPC}, s{S_EXP}', f's_mov_b32 s{S_PH}, 1',
                  f's_cmp_eq_u32 s{S_PREV}, 3', 's_cbranch_scc1 L_slow2']
        blk_c = ['L_blkend:', f's_mov_b32 s{S_PREV}, s{S_PH}']
        parts = [[], [], [], [], []]
        cur = self.seq(['L_cin_loop:'])
        for m in range(4 * NM):
            if m == NM:
                parts[3] = cur
                cur = self.seq(['L_grp1:'])
            if m == 2 * NM:
                cur += self.seq([f's_cmp_eq_u32 s{S_LOOP}, s{S_HALF}', 's_cbranch_scc1 L_htail'])
                p4h = list(cur)
            if m == o.hook:
                p4a = cur + self.seq(hook_a)
                p4t = self.seq(hook_t)
                cur = self.seq(hook_b)
            if o.y1 and m == o.hook + o.y1:
                cur += self.seq([f's_cmp_eq_u32 s{S_HALF}, 0', 's_cbranch_scc1 L_y1', 's_setprio 1', 'L_y1:'])
            if o.y1 and m == o.hook + o.y2:
                cur += self.seq([f's_cmp_eq_u32 s{S_GRP}, 0', 's_cbranch_scc1 L_y2', 's_setprio 1', 'L_y2:'])
            if o.gst and m % NM == 0:
                cur += self.seq([f's_memtime s[{S_ST}:{S_ST + 1}]', 's_add_u32 s100, s100, 1', 's_min_u32 s100, s100, 31', 's_waitcnt lgkmcnt(0)',
                                 's_mov_b32 m0, s100', f'v_writelane_b32 v253, s{S_ST}, m0'])
            if o.phi and m in (o.phh, o.phi):
                cur += self.seq(prio(0 if m == o.phi else 2, f'L_pr{m}'))
            cur += self.seq([mfma(m % NM)])
            for it in gaps[4 * NM + m]:
                if it.code == '@BLK':
                    if o.pfa:
                        parts[0] = cur + self.seq(sstamp() + ['s_waitcnt vmcnt(0)'])
                        pfp = []
                    else:
                        parts[0] = cur + self.seq(sstamp() + ['s_waitcnt vmcnt(0)', f's_cmp_le_u32 s{S_LOOP}, {o.pfend}', 's_cbranch_scc1 L_blk'])
                        pfp = self.seq(([] if o.nopf & 16 else pfx_b() + pfx_a()) + pfw())
                    parts[1] = self.seq(blk_a)
                    parts[2] = self.seq(blk_b)
                    pbt = self.seq(blk_t)
                    pb2 = self.seq(blk_b2)
                    cur = self.seq(blk_c)
                    if o.pfa:
                        cur += self.seq([f's_cmp_ge_u32 s{S_PW}, {1664 * 3328}', 's_cbranch_scc1 L_npf'])
                        self.seq(pfw())
                        cur += self.seq(['L_npf:'])
                else:
                    cur += self.seq(keep(it.code))
        cur += self.seq([f's_cmp_lg_u32 s{S_LOOP}, 1', 's_cbranch_scc1 L_cin_loop'])
        parts[4] = p4a + cur
        p4x = p4a + p4t + cur
        tail = self.seq([it.code for m in range(NM) for it in gaps[4 * NM + m] if it.G == 3 and it.code != '@BLK'] + ['s_branch L_blk'])
        assert o.hook > 2 * NM and items[('swr', 8)].at >= 6 * NM and items[('swl', 8)].at >= 6 * NM
        htail = self.seq(['L_htail:'] + [it.code for m in range(NM) for it in gaps[6 * NM + m] if it.G == 5] + dppred('v_add_f32', vAcc)
                         + [f'v_add_u32 v{vRaw}, s{S_BD}, v{vRaw}', 's_branch L_blk'])
        Q = RZ
        rows = [(g, r) for g in range(4) for r in range(8)][:31]
        L = ['L_slow:', f'v_subrev_u32 v{vRaw}, s{S_BD}, v{vRaw}', 'L_slow2:', f'v_lshlrev_b32 v{FT}, 1, v0', f'v_add_u32 v{FT + 1}, s{S_BCUR}, v{FT}',
             f's_mul_i32 s{S_TW}, s{S_WAVE}, {XBSZ}', f's_add_u32 s{S_TW}, s{S_TW}, {XSP}',
             f'v_add_u32 v{FT}, s{S_TW}, v{FT}', f'v_add_u32 v{vLin}, s{S_TW}, v{vLinB}']
        L += wait(F_PEEL, 8)
        L += [f'ds_read_u16 v{Q + n}, v{FT + 1} offset:{g * XPI + r * 128}' for n, (g, r) in enumerate(rows)]
        L += [f'v_lshlrev_b32 v{Q + n}, 16, v{Q + n}' for n in range(31)]
        L += absmax(vAcc, list(range(Q, Q + 31))) + dppred('v_max_u32', vAcc)
        L += [f'v_readlane_b32 s{S_TW}, v{vAcc}, 63', f's_lshr_b32 s{S_TW}, s{S_TW}, 23', f's_sub_i32 s{S_TW}, 134, s{S_TW}',
              f's_cmp_le_u32 s{S_TW}, 9', f's_cselect_b32 s{S_PH}, 2, 3', f's_min_i32 s{S_TW}, s{S_TW}, 16',
              f's_lshl_b32 s{S_EXPC}, s{S_TW}, 2', f's_sub_i32 s{S_EXPC}, s{S_EXP}, s{S_EXPC}',
              f's_add_i32 s{S_TW}, s{S_TW}, 127', f's_lshl_b32 s{S_TW}, s{S_TW}, 23', f'v_mov_b32 v{Q + 31}, s{S_TW}']
        L += [f'v_mul_f32 v{Q + n}, s{S_TW}, v{Q + n}' for n in range(31)]
        L += [f'ds_write_b16_d16_hi v{FT + 1}, v{Q + n} offset:{g * XPI + r * 128}' for n, (g, r) in enumerate(rows)]
        L += [f'v_mul_f32 v{Q + n}, s{S_TW}, v{Q + n}' for n in range(32)]
        L += [f'ds_write_b16_d16_hi v{FT}, v{Q + n} offset:{g * XPI + r * 128}' for n, (g, r) in enumerate(rows + [(3, 7)])]
        L += [f's_mov_b32 s{S_PREV}, 0', 's_waitcnt lgkmcnt(0)', 's_branch L_prime']
        slow = self.seq(L)
        fin_ = self.seq(['L_cin_done:'] + self.stamp(9) + self.stamp_flush() + self.padsig() + ['s_endpgm'])
        rest = parts[3] + parts[4]
        full = parts[0] + pfp + parts[1] + parts[2] + pb2 + rest
        nopf = parts[0] + parts[1] + parts[2] + pbt + pb2 + parts[3] + p4x
        last = parts[0] + parts[1] + pb2 + rest
        redo = lambda pf: parts[1][:10] + slow + prime + parts[0] + (pfp if pf else []) + parts[1][:3] + rest
        end_ = tail + parts[1][:-2] + fin_
        main = peel2 + parts[4] + full + full + parts[0] + pfp + redo(1) + full + nopf + parts[0] + redo(0) + nopf + last + tail + redo(0) + end_
        main = main[:-len(end_)] + parts[0] + parts[1] + parts[2] + pb2 + slow[2:] + prime + parts[0] + parts[1][:3] + rest + end_
        hl = parts[3] + p4h + htail
        main2 = peel2 + parts[4] + parts[0] + pfp + redo(1) + full + nopf + parts[0] + parts[1] + pb2 + hl + parts[1][:10] + slow + prime + parts[0] + parts[1][:3] + hl + parts[1][:-2] + fin_
        traces = []
        for w in range(8):
            if w < 4:
                k0 = w & 2
                tr = c0 + g0a + cc + g0pf + ch[k0] + ch[k0 + 1] + chb[k0 + 1] + w1a + ([] if k0 else w1b) + w1c
            else:
                tr = c0 + g1a + cc + uc0 + uc
            k = w >> 1
            tr += uph + ch[k] + (u0 if k % 2 == 0 else u1a + (u1b if k == 1 else u1c))
            for mn in (main, main2):
                traces.append(tr + peel1 + (peelw if w == 7 else []) + mn)
        return traces

    def build(self):
        pro = self.prologue()
        d = self.dnn()
        cs = self.cin()
        rm = self.rem()
        self.seq(['L_end:', 's_endpgm'])
        traces = [pro + c for c in d + cs + rm]
        for t in traces:
            resolve_waits(t)
        for _ in range(2):
            for t in traces:
                resolve_hazards(t)
        hdr = open(os.path.join(os.path.dirname(os.path.abspath(__file__)), 'header.txt')).read()
        txt = hdr + f'; @launch grid=(256,1,1) block=(512,1,1) lds={LDS_TOTAL}\n'
        txt += f'''.amdgcn_target "amdgcn-amd-amdhsa--gfx950"
{DOC}.text
.globl {KNAME}
.p2align 8
.type {KNAME},@function
{KNAME}:
'''
        body_ = self.P.emit()
        if 'wsame' in self.opt.dbg:
            body_ = body_.replace(f's_add_u32 s{S_WSOFF}, s{S_WSOFF}, {32 * 3328}', f's_xor_b32 s{S_WSOFF}, s{S_WSOFF}, 0')
        if 'xsame' in self.opt.dbg:
            import re as _re
            body_ = _re.sub(r'v_lshl_add_u32 v(2[4-9]|3[01]), v(1[6-9]), 7', r'v_lshl_add_u32 v\1, v16, 7', body_)
            body_ = _re.sub(r'v_lshl_add_u32 v(2[4-9]|3[01]), v(2[0-3]), 7', r'v_lshl_add_u32 v\1, v20, 7', body_)
            body_ = _re.sub(r'v_lshl_add_u32 v(2[4-9]|3[01]), v(9[6-9]), 7', r'v_lshl_add_u32 v\1, v96, 7', body_)
            body_ = _re.sub(r'v_lshl_add_u32 v(2[4-9]|3[01]), v(10[0-3]), 7', r'v_lshl_add_u32 v\1, v100, 7', body_)
            body_ = body_.replace('offen offset:12\n', 'offen offset:0\n').replace('offen offset:844\n', 'offen offset:832\n')
            body_ = body_.replace(f's_mov_b32 s{S_IDXOFF}, 28', f's_mov_b32 s{S_IDXOFF}, 0').replace(f's_add_u32 s{S_IDXOFF}, s{S_IDXOFF}, 16', 's_nop 0')
        if self.opt.align:
            for lab in ('L_dnn_loop0:', 'L_dnn_loop1:', 'L_cin_loop:', 'L_epi:'):
                pad = '  s_nop 0\n' if self.opt.align > 100 else ''
                body_ = body_.replace(lab + '\n', f'.p2align {self.opt.align % 100}\n{pad}{lab}\n')
        txt += body_
        txt += f'''.section .rodata,"a"
.p2align 6
.amdhsa_kernel {KNAME}
  .amdhsa_next_free_vgpr 256
  .amdhsa_next_free_sgpr 102
  .amdhsa_accum_offset 256
  .amdhsa_group_segment_fixed_size 0
  .amdhsa_kernarg_size 88
  .amdhsa_user_sgpr_count 2
  .amdhsa_user_sgpr_kernarg_segment_ptr 1
  .amdhsa_system_sgpr_workgroup_id_x 1
  .amdhsa_float_denorm_mode_32 {self.opt.denorm}
.end_amdhsa_kernel
'''
        return txt


def main():
    ap = argparse.ArgumentParser()
    ap.add_argument('-o', default='standalone__deep_cross_xdeepfm__recsys.s')
    ap.add_argument('--stamps', action='store_true')
    ap.add_argument('--padat', default='')
    ap.add_argument('--padmin', type=int, default=0)
    ap.add_argument('--nodma', action='store_true')
    ap.add_argument('--cpf', type=int, default=2)
    ap.add_argument('--coop', type=int, default=1)
    ap.add_argument('--coopw', type=int, default=2)
    ap.add_argument('--tbpos', type=int, default=0)
    ap.add_argument('--dbar3', type=int, default=1)
    ap.add_argument('--tlb', type=int, default=0)
    ap.add_argument('--tlb2', type=int, default=1)
    ap.add_argument('--itst', type=int, default=0)
    ap.add_argument('--diag', type=int, default=0)
    ap.add_argument('--dbg', default='')
    ap.add_argument('--lead3', type=int, default=1)
    ap.add_argument('--morder', type=int, default=0)
    ap.add_argument('--etlb', type=int, default=21)
    ap.add_argument('--lateb', type=int, default=0)
    ap.add_argument('--wfl', default='')
    ap.add_argument('--xfl', default='')
    ap.add_argument('--tag', type=int, default=0)
    ap.add_argument('--idxfirst', type=int, default=1)
    ap.add_argument('--bpos', type=int, default=2)
    ap.add_argument('--sigat', type=int, default=4)
    ap.add_argument('--epx', type=int, default=1)
    ap.add_argument('--denorm', type=int, default=3)
    ap.add_argument('--mprio', type=int, default=0)
    ap.add_argument('--swap', type=int, default=0)
    ap.add_argument('--bov', type=int, default=1)
    ap.add_argument('--rfirst', type=int, default=0)
    ap.add_argument('--g1x', type=int, default=0)
    ap.add_argument('--ldsred', type=int, default=0)
    ap.add_argument('--csnake', type=int, default=0)
    ap.add_argument('--cswap', type=int, default=0)
    ap.add_argument('--align', type=int, default=0)
    ap.add_argument('--c2', type=int, default=0)
    ap.add_argument('--d1', type=int, default=0)
    ap.add_argument('--cstr', type=int, default=3)
    ap.add_argument('--bearly', type=int, default=1)
    ap.add_argument('--w2late', type=int, default=1)
    ap.add_argument('--aov', type=int, default=3)
    ap.add_argument('--upos', type=int, default=1)
    ap.add_argument('--calt', type=int, default=1)
    ap.add_argument('--pfpos', type=int, default=1)
    ap.add_argument('--wlate', type=int, default=0)
    ap.add_argument('--dbar2', type=int, default=0)
    ap.add_argument('--dbar', type=int, default=0)
    ap.add_argument('--pfw', type=int, default=1)
    ap.add_argument('--pfx', type=int, default=3)
    ap.add_argument('--pfx0', type=int, default=4)
    ap.add_argument('--pfs', type=int, default=14)
    ap.add_argument('--dcoopx', type=int, default=1)
    ap.add_argument('--dcx0', type=int, default=0)
    ap.add_argument('--dcxpos', type=int, default=-1)
    ap.add_argument('--pfe0', type=int, default=2)
    ap.add_argument('--pfne', type=int, default=14)
    ap.add_argument('--prio47', type=int, default=0)
    ap.add_argument('--lookahead', type=int, default=5)
    ap.add_argument('--nz', type=int, default=6)
    ap.add_argument('--nwf', type=int, default=8)
    ap.add_argument('--hiat', type=int, default=4)
    ap.add_argument('--wmerge', type=int, default=0)
    ap.add_argument('--gapv', type=int, default=2)
    ap.add_argument('--lat', type=int, default=3)
    ap.add_argument('--phh', type=int, default=0)
    ap.add_argument('--wgt', type=int, default=0)
    ap.add_argument('--gs', type=int, default=0)
    ap.add_argument('--t2', type=int, default=0)
    ap.add_argument('--t2g', type=int, default=9)
    ap.add_argument('--lc', type=int, default=0)
    ap.add_argument('--x64', type=int, default=0)
    ap.add_argument('--rv', type=int, default=0)
    ap.add_argument('--rwi', type=int, default=10)
    ap.add_argument('--epoll', type=int, default=2)
    ap.add_argument('--w1s', type=int, default=1)
    ap.add_argument('--cal', type=int, default=-1)
    ap.add_argument('--pfa', type=int, default=1)
    ap.add_argument('--w2e', type=int, default=0)
    ap.add_argument('--rpr', type=int, default=0)
    ap.add_argument('--pr', type=int, default=1)
    ap.add_argument('--y1', type=int, default=0)
    ap.add_argument('--y2', type=int, default=40)
    ap.add_argument('--pp0', type=int, default=2)
    ap.add_argument('--pp1', type=int, default=2)
    ap.add_argument('--w2', type=int, default=1)
    ap.add_argument('--cw', type=int, default=1)
    ap.add_argument('--wgap', type=int, default=2)
    ap.add_argument('--psl', type=int, default=0)
    ap.add_argument('--wr8', type=int, default=0)
    ap.add_argument('--lb', type=int, default=0)
    ap.add_argument('--sym', type=int, default=0)
    ap.add_argument('--n4', type=int, default=20)
    ap.add_argument('--tbl', type=int, default=0)
    ap.add_argument('--nopf', type=int, default=16)
    ap.add_argument('--idx1', type=int, default=1)
    ap.add_argument('--sv', type=int, default=1)
    ap.add_argument('--pb', type=int, default=3)
    ap.add_argument('--dpf', type=int, default=0)
    ap.add_argument('--dpn', type=int, default=4)
    ap.add_argument('--mord', type=int, default=0)
    ap.add_argument('--q0', type=int, default=5)
    ap.add_argument('--q1', type=int, default=7)
    ap.add_argument('--u0', type=int, default=8)
    ap.add_argument('--un', type=int, default=26)
    ap.add_argument('--ro', type=int, default=0)
    ap.add_argument('--dfirst', type=int, default=0)
    ap.add_argument('--er0', type=int, default=0)
    ap.add_argument('--er1', type=int, default=0)
    ap.add_argument('--lg0', type=int, default=0)
    ap.add_argument('--fprio', type=int, default=1)
    ap.add_argument('--lite', type=int, default=0)
    ap.add_argument('--pf1', type=int, default=3)
    ap.add_argument('--amp', type=int, default=0)
    ap.add_argument('--ofl', default='')
    ap.add_argument('--uprio', type=int, default=0)
    ap.add_argument('--ccpos', type=int, default=1)
    ap.add_argument('--s1e', type=int, default=9)
    ap.add_argument('--s2e', type=int, default=0)
    ap.add_argument('--shs', type=int, default=256)
    ap.add_argument('--pfp', type=int, default=1)
    ap.add_argument('--epos', type=int, default=3)
    ap.add_argument('--hook', type=int, default=100)
    ap.add_argument('--rrd', type=int, default=11)
    ap.add_argument('--rdrop', default='')
    ap.add_argument('--pfr', type=int, default=4)
    ap.add_argument('--vin', type=int, default=1)
    ap.add_argument('--rstag', type=int, default=1)
    ap.add_argument('--eprio', type=int, default=1)
    ap.add_argument('--nopk', type=int, default=0)
    ap.add_argument('--w1first', type=int, default=0)
    ap.add_argument('--xpos', type=int, default=1)
    ap.add_argument('--z1lo', type=int, default=40)
    ap.add_argument('--pfend', type=int, default=3)
    ap.add_argument('--gst', type=int, default=0)
    ap.add_argument('--gapl', type=int, default=2)
    ap.add_argument('--gapt', type=int, default=2)
    ap.add_argument('--wcost', type=int, default=2)
    ap.add_argument('--bprio', type=int, default=0)
    ap.add_argument('--c1hi', type=int, default=-8)
    ap.add_argument('--c2hi', type=int, default=12)
    ap.add_argument('--rspan', type=int, default=48)
    ap.add_argument('--rlead', type=int, default=14)
    ap.add_argument('--pfd', type=int, default=16)
    ap.add_argument('--mo', type=int, default=4)
    ap.add_argument('--ba', type=int, default=8)
    ap.add_argument('--sig2', type=int, default=4)
    ap.add_argument('--drop', default='')
    ap.add_argument('--al8', type=int, default=4)
    ap.add_argument('--alph', type=int, default=0)
    ap.add_argument('--almm', type=int, default=0)
    ap.add_argument('--phi', type=int, default=110)
    ap.add_argument('--rawlo', type=int, default=8)
    ap.add_argument('--flo', type=int, default=2)
    opt = ap.parse_args()
    resolve_waits.dbg = 'dup' in opt.dbg
    g = Gen(opt)
    txt = g.build()
    if opt.al8:
        import align8
        rg = []
        if opt.al8 & 1:
            rg.append(('L_cin_loop', 'L_slow'))
        if opt.al8 & 2:
            rg += [('L_dnn_loop0', 'L_dnn_h1'), ('L_dnn_loop1', 'L_epi')]
        if opt.al8 & 4:
            rg += [('L_epi', 'L_dpub'), ('L_repi', 'L_rclr')]
        txt = align8.align(txt, rg, opt.alph, opt.almm)
    if opt.cal >= 0:
        txt = txt.replace('L_cin_loop:\n', '.p2align 6\n' + '  s_nop 0\n' * (opt.cal // 4) + 'L_cin_loop:\n' , 1)
        txt = txt.replace('L_rem:\n', '.p2align 3\nL_rem:\n', 1)
    open(opt.o, 'w').write(txt)
    print('wrote', opt.o, len(txt), 'bytes')


if __name__ == '__main__':
    main()
```

```python
import sys, os, struct, argparse
sys.path.insert(0, os.path.dirname(os.path.abspath(__file__)))
from cinplan import ZD, cls
from asmlib import I, WaitTag, Prog, resolve_waits, resolve_hazards

KNAME = 'standalone__deep_cross_xdeepfm__recsys_kernel'
LDS_TOTAL = 163840

XSLOT = 8192
WR = 4 * XSLOT
WP = 640
WSLOT = 32 * WP
L_BIAS = WR + 6 * WSLOT
L_W2 = L_BIAS + WP
RB = L_W2 + WP
assert RB + 2048 <= LDS_TOTAL
RWR = 131072

ASZ = 35264
A1 = 1024
A2 = A1 + ASZ
A3 = A2 + ASZ
UST = 1356
V3OFF = A3 + ASZ
V2OFF = V3OFF + 2048
L_WCO = V2OFF + 1408
L_FLG = L_WCO + 192
RC = L_FLG + 64
XB0 = RC + 512
XPI = 1056
XBSZ = 4 * XPI
XB1 = A3
TA = A1
TC = TA + 11 * 1024
TD = TC + 12 * 1024
TB = A2
XSP = A1
XCH = XB0 + 8 * XBSZ
OOB = 0x100000
NCLR = 56
NPOOL = 224
assert XCH + 8192 <= LDS_TOTAL and XB0 % 16 == 0 and A2 % 16 == 0 and A3 % 16 == 0 and L_WCO % 16 == 0
assert 8 * XBSZ <= ASZ and TD + 11 * 1024 <= A2

S_WAVE = 3
S_IDX, S_TAB, S_CIN, S_WCO, S_W1, S_B1, S_W2, S_BO, S_OUT, S_DBG, S_WS = 4, 6, 8, 10, 12, 14, 16, 18, 20, 22, 24
S_MB, S_R = 26, 27
SRD_IDX, SRD_TAB, SRD_CIN, SRD_WCO, SRD_W, SRD_B1, SRD_W2, SRD_OUT, SRD_WS, SRD_DBG = 28, 32, 36, 40, 44, 48, 52, 56, 60, 64
S_T0, S_T1, S_T2, S_T3 = 68, 69, 70, 71
S_LOOP, S_IDXOFF, S_WSOFF, S_WMB, S_XM0, S_N0, S_C0, S_CW, S_BOUT, S_TW = 72, 73, 74, 75, 76, 77, 78, 79, 80, 81
S_EX = 82
S_GRP, S_RC = 84, 85
S_ST = 86
S_M26, S_MASK = 90, 92
S_SAMP, S_STG, S_STG9, S_TGT = 94, 95, 96, 97
S_M26B = 98
S_GW = 100
S_TAGT = 0
S_TAG = 1
S_PW = 101
S_PX = 77
S_PXE = 73

GELU_C0 = -2.0 * 0.7978845608028654 * 1.4426950408889634
GELU_C1 = GELU_C0 * 0.044715


def f32hex(x):
    return '0x%08x' % struct.unpack('<I', struct.pack('<f', x))[0]


def vr(a, n):
    return f'v[{a}:{a + n - 1}]' if n > 1 else f'v{a}'


def srd(a):
    return f's[{a}:{a + 3}]'


def flat(gs):
    res = []
    for c in gs:
        if isinstance(c, (tuple, list)):
            res += flat(c)
        else:
            res.append(c)
    return res


def interleave(a, b):
    out = []
    ia = ib = 0
    na, nb = len(a), len(b)
    while ia < na or ib < nb:
        if ib >= nb or (ia < na and ia * nb <= ib * na):
            out.append(a[ia]); ia += 1
        else:
            out.append(b[ib]); ib += 1
    return out


assert all((d * 2521) >> 16 == d // 26 for d in range(800))
assert all((d * 10923) >> 16 == d // 6 for d in range(64))
assert all((d * 1561) >> 16 == d // 42 for d in range(176))


DOC = '''; ---------------------------------------------------------------------------------------------
;
;       V3[h,k]  = sum_g wo[52+g] W3[g,h,k]          V2[i,j] = sum_h wo[26+h] W2[h,i,j]
;       U[i,j,k] = sum_h W2[h,i,j] V3[h,k]
;       g1[i]    = wo[i] + sum_j V2[i,j] x_j + sum_jk U[i,j,k] x_j x_k
;   Both quadratic forms use the 351 distinct products x_j x_k (j<=k) with symmetrised weights on fp16 MFMA
;   (fp32 accumulate).  Range is handled with power-of-two scales derived from the data on every launch:
; Work split per group of 512 samples (32 workgroups): 20 workgroups do 128 x 320 tiles of the DNN GEMM,
;   Partial logits go through d_ws (sc1): the 64-column workgroup resets the slots at its start (announced in
;   d_debug), later polls until every slot is filled, adds up and writes d_out.
; ---------------------------------------------------------------------------------------------
'''


class Gen:
    def __init__(self, opt):
        self.opt = opt
        self.P = Prog()
        self.role = 'x'

    def seq(self, lines):
        return [self.P.add(l) for l in flat(lines)]

    def build_srd(self, dst, ptr, size):
        return [f's_mov_b32 s{dst}, s{ptr}', f's_and_b32 s{dst + 1}, s{ptr + 1}, 0xffff',
                f's_mov_b32 s{dst + 2}, {size}', f's_mov_b32 s{dst + 3}, 0x20000']

    def stamp(self, slot):
        if self.opt.cyc:
            a_, b_ = self.opt.cyc.split(',')
            if f'{self.role}{slot}' == a_:
                return ['s_memtime s[86:87]', 's_waitcnt lgkmcnt(0)', 's_mov_b32 s89, s86']
            if f'{self.role}{slot}' == b_:
                return ['s_memtime s[86:87]', 's_waitcnt lgkmcnt(0)', 's_sub_u32 s88, s86, s89' if a_ != 'go' else 's_sub_u32 s88, s86, s88']
        if self.opt.padat == f'{self.role}{slot}':
            return [f's_memrealtime s[88:89]', 's_waitcnt lgkmcnt(0)']
        if not self.opt.stamps or (self.opt.lite and f'{self.role}{slot}' not in ('c8', 'c9', 'd2', 'd4', 'r2', 'r4', 'r5')):
            return []
        return [f's_memtime s[{S_ST}:{S_ST + 1}]', f's_memrealtime s[{S_ST + 2}:{S_ST + 3}]', 's_waitcnt lgkmcnt(0)',
                f'v_writelane_b32 v252, s{S_ST}, {slot}', f'v_writelane_b32 v253, s{S_ST + 2}, {slot}']

    def stamp_flush(self):
        if not self.opt.stamps:
            return []
        L = self.build_srd(SRD_WS, S_WS, 0x10000000)
        L += [f's_lshl_b32 s{S_C0}, s2, 3', f's_add_u32 s{S_C0}, s{S_C0}, s{S_WAVE}',
              f's_lshl_b32 s{S_C0}, s{S_C0}, 8', f's_add_u32 s{S_C0}, s{S_C0}, 0x100000',
              'v_lshlrev_b32 v254, 3, v0', 's_mov_b32 exec_hi, 0',
              f'buffer_store_dwordx2 v[252:253], v254, {srd(SRD_WS)}, s{S_C0} offen', 's_mov_b32 exec_hi, -1']
        return L

    def stamp0(self):
        if not self.opt.stamps:
            return self.stamp(15)
        return ['v_mov_b32 v252, 0xcdcdcdcd', 'v_mov_b32 v253, 0xcdcdcdcd',
                f'v_writelane_b32 v252, s{S_ST}, 0', f'v_writelane_b32 v253, s{S_ST + 2}, 0'] + self.stamp(15)

    def tlb2(self, t, vflag):
        L = self.build_srd(SRD_WS, S_WS, 0x10000000) + self.build_srd(SRD_DBG, S_DBG, 256)
        L += [f'v_lshlrev_b32 v{t}, 2, v0',
              ('s_mov_b64 exec, 0xff', f's_mov_b32 s{S_TW}, 0x80000',
               f'buffer_load_dword v255, v{t}, {srd(SRD_WS)}, s{S_TW} offen',
               f'buffer_load_dword v{vflag}, v{t}, {srd(SRD_DBG)}, 0 offen offset:128 sc1',
               's_mov_b64 exec, -1'), f'v_mov_b32 v{t}, 0']
        return L

    def cleared(self, lab, grp, vflag):
        chk = [f'v_cmp_eq_u32 vcc, 0, v{vflag}', f's_bitcmp1_b32 vcc_lo, s{S_TW}']
        return grp + chk + [f's_cbranch_scc0 {lab}_ok', f's_mov_b32 s{S_C0}, 0x40000',
                f'{lab}:', f's_sub_u32 s{S_C0}, s{S_C0}, 1', f's_cbranch_scc1 {lab}_ok', f'v_lshlrev_b32 v{vflag}, 2, v0', f'v_and_b32 v{vflag}, 31, v{vflag}',
                f'buffer_load_dword v{vflag}, v{vflag}, {srd(SRD_DBG)}, 0 offen offset:128 sc1', 's_waitcnt vmcnt(0)'] + chk + [f's_cbranch_scc1 {lab}', f'{lab}_ok:']

    def padsig(self):
        o = self.opt
        if not o.padat:
            return []
        pre = ['v_mov_b32 v8, 4']
        if (o.padat[0] if o.padat != 'start' else 'd') != self.role:
            return pre
        return pre + [f's_cmp_lg_u32 s{S_WAVE}, 0', 's_cbranch_scc1 L_nosig'] + ([f's_not_b32 s88, s88'] if o.padmin else []) + ['v_mov_b32 v7, s88', 's_mov_b64 exec, 1',
                f'buffer_atomic_umax v7, v8, {srd(SRD_DBG)}, 0 offen', 's_mov_b64 exec, -1', 'L_nosig:']

    def tlb1(self, vtmp, vdst):
        if not self.opt.etlb:
            return self.build_srd(SRD_TAB, S_TAB, 100000 * 128)
        return self.build_srd(SRD_TAB, S_TAB, 100000 * 128) + [
            f'v_mov_b32 v{vtmp}, s{S_BOUT}', f'buffer_load_dword v{vdst}, v{vtmp}, {srd(SRD_TAB)}, 0 offen']

    def prologue(self):
        L = []
        if self.opt.cyc.startswith('go'):
            L += ['s_memtime s[88:89]']
        elif self.opt.padat == 'start' or self.opt.amp in (1, 2, 3):
            L += ['s_memrealtime s[88:89]']
        elif self.opt.padat:
            L += [f's_mov_b32 s88, {-1 if self.opt.padmin else 0}']
        if self.opt.stamps:
            L += [f's_memtime s[{S_ST}:{S_ST + 1}]', f's_memrealtime s[{S_ST + 2}:{S_ST + 3}]']
        L += ['s_cmp_ge_u32 s2, 256', 's_cbranch_scc1 L_end',
              's_load_dwordx16 s[4:19], s[0:1], 0',
              's_load_dwordx4 s[20:23], s[0:1], 64',
              's_load_dwordx2 s[24:25], s[0:1], 80',
              'v_lshrrev_b32 v1, 6, v0']
        if self.opt.cpf:
            L += [f's_getpc_b64 s[{S_MASK}:{S_MASK + 1}]', 'L_pc:',
                  f's_and_b32 s{S_T0}, s2, 0xf8', f'v_add_u32 v2, s{S_T0}, v1', 'v_lshlrev_b32 v2, 7, v2'] + (['v_and_b32 v3, 1, v0', 'v_lshl_add_u32 v2, v3, 15, v2'] if self.opt.cpf == 2 else []) + [
                  f'v_min_u32 v2, L_end-L_pc, v2',
                  f'v_mov_b32 v3, s{S_MASK + 1}',
                  f'v_add_co_u32 v2, vcc, s{S_MASK}, v2', 'v_addc_co_u32 v3, vcc, 0, v3, vcc',
                  'global_load_dword v255, v[2:3], off']
        L += ['v_and_b32 v0, 63, v0',
              f'v_readfirstlane_b32 s{S_WAVE}, v1',
              f's_and_b32 s{S_T0}, s2, 7', f's_lshl_b32 s{S_T0}, s{S_T0}, 2',
              f's_lshr_b32 s{S_MB}, s2, 6', f's_add_u32 s{S_MB}, s{S_MB}, s{S_T0}',
              f's_bfe_u32 s{S_R}, s2, 0x30003',
              f's_and_b32 s{S_BOUT}, s2, 0xf8', f's_add_u32 s{S_BOUT}, s{S_BOUT}, s{S_WAVE}', f's_lshl_b32 s{S_BOUT}, s{S_BOUT}, {self.opt.etlb}',
              f's_lshr_b32 s{S_T0}, s2, 3', f's_cmp_eq_u32 s{S_T0}, 5', 's_cbranch_scc1 L_rem',
              f's_cmp_ge_u32 s{S_R}, 5', 's_cbranch_scc1 L_cin']
        return self.seq(L)

    def gelu(self, groups, TB, KC0, KC1, KONE, seen=()):
        p2 = lambda r: vr(r, 2)
        L = []
        seen = set(seen)
        for k, vals in enumerate(groups):
            tb = TB + (k % 2) * 16
            V_ = [(x, w, s_, tb + 4 * i_, tb + 4 * i_ + 2) for i_, (x, w, s_) in enumerate(vals)]
            for (x, w, s_, t, u) in V_:
                L.append(f'v_pk_mul_f32 {p2(t)}, {p2(x)}, {p2(x)}')
            for (x, w, s_, t, u) in V_:
                L.append(f'v_pk_fma_f32 {p2(t)}, {p2(t)}, {p2(KC1)}, {p2(KC0)}')
            for (x, w, s_, t, u) in V_:
                L.append(f'v_pk_mul_f32 {p2(t)}, {p2(t)}, {p2(x)}')
            for (x, w, s_, t, u) in V_:
                L += [f'v_exp_f32 v{t}, v{t}', f'v_exp_f32 v{t + 1}, v{t + 1}']
            for (x, w, s_, t, u) in V_:
                L.append(f'v_pk_fma_f32 {p2(t)}, {p2(t)}, {p2(w)}, {p2(w)}')
            for (x, w, s_, t, u) in V_:
                L += [f'v_rcp_f32 v{t}, v{t}', f'v_rcp_f32 v{t + 1}, v{t + 1}']
            for (x, w, s_, t, u) in V_:
                if s_ in seen:
                    L.append(f'v_pk_fma_f32 {p2(s_)}, {p2(t)}, {p2(x)}, {p2(s_)}')
                else:
                    L.append(f'v_pk_mul_f32 {p2(s_)}, {p2(t)}, {p2(x)}')
                    seen.add(s_)
        if self.opt.nopk:
            import re as _re
            L2 = []
            for x in L:
                if x.startswith('v_pk_'):
                    mn = x.split()[0].replace('v_pk_', 'v_')
                    rs = [int(r) for r in _re.findall(r'v\[(\d+):', x)]
                    L2 += [f'{mn} ' + ', '.join(f'v{r + h}' for r in rs) for h in range(2)]
                else:
                    L2.append(x)
            L = L2
        return L

    def gelu2(self, groups, TB, KC0, KC1, KSH):
        p2 = lambda r: vr(r, 2)
        L = []
        seen = set()
        for k, vals in enumerate(groups):
            tb = TB + (k % 2) * 24
            H = [(x + 2 * d, tb + 6 * i_ + 2 * d, k0[d], k1[d]) for i_, (x, k0, k1, s_) in enumerate(vals) for d in range(2)]
            F = [(x, tb + 6 * i_, s_) for i_, (x, k0, k1, s_) in enumerate(vals)]
            L += [f'v_pk_mul_f32 {p2(t)}, {p2(x)}, {p2(x)}' for (x, t, k0, k1) in H]
            L += [f'v_pk_fma_f32 {p2(t)}, {p2(t)}, {p2(KC1)}, {p2(KC0)}' for (x, t, k0, k1) in H]
            L += [f'v_pk_fma_f32 {p2(t)}, {p2(t)}, {p2(x)}, {p2(KSH)}' for (x, t, k0, k1) in H]
            L += [f'v_exp_f32 v{t + h}, v{t + h} clamp' for (x, t, k0, k1) in H for h in range(2)]
            L += [f'v_pk_fma_f32 {p2(t)}, {p2(t)}, {p2(k1)}, {p2(k0)}' for (x, t, k0, k1) in H]
            L += [f'v_pk_mul_f32 {p2(t + 4)}, {p2(x)}, {p2(t + 2)}' for (x, t, s_) in F]
            L += [f'v_pk_fma_f32 {p2(t + 4)}, {p2(x + 2)}, {p2(t)}, {p2(t + 4)}' for (x, t, s_) in F]
            L += [f'v_pk_mul_f32 {p2(t)}, {p2(t)}, {p2(t + 2)}' for (x, t, s_) in F]
            L += [f'v_rcp_f32 v{t + h}, v{t + h}' for (x, t, s_) in F for h in range(2)]
            for (x, t, s_) in F:
                L.append(f'v_pk_fma_f32 {p2(s_)}, {p2(t)}, {p2(t + 4)}, {p2(s_)}' if s_ in seen else f'v_pk_mul_f32 {p2(s_)}, {p2(t)}, {p2(t + 4)}')
                seen.add(s_)
        return L

    def winv2(self, R, n, K1, KL, SC):
        L = [f'v_mov_b32 v{SC}, 0x21800000', f'v_mov_b32 v{KL}, 0x30800000']
        L += [f'v_max3_f32 v{SC}, v{SC}, abs(v{R + k}), abs(v{R + k + 1})' for k in range(0, n, 2)]
        L += [f'v_and_b32 v{SC}, 0x7f800000, v{SC}', f'v_mul_f32 v{SC}, 0x22000000, v{SC}']
        L += [f'v_rcp_f32 v{R + k}, v{R + k}' for k in range(n)] + [f'v_mul_f32 v{R + k}, v{SC}, v{R + k}' for k in range(n)]
        L += [f'v_med3_f32 v{R + k}, v{R + k}, -v{KL}, v{KL}' for k in range(n)] + [f'v_mul_f32 v{K1[k]}, 0x6c800000, v{R + k}' for k in range(n)]
        return L

    def red4(self, SUMP, SC=None):
        sm = lambda tm: SUMP + 2 * tm
        L = [f'v_add_f32 v{sm(tm)}, v{sm(tm)}, v{sm(tm) + 1}' for tm in range(4)]
        if SC is not None:
            L += [f'v_mul_f32 v{sm(tm)}, v{SC}, v{sm(tm)}' for tm in range(4)]
        L += [f'v_permlane32_swap_b32 v{sm(tm)}, v{sm(tm + 2)}' for tm in range(2)]
        L += [f'v_add_f32 v{sm(tm)}, v{sm(tm)}, v{sm(tm + 2)}' for tm in range(2)]
        L += [f'v_permlane16_swap_b32 v{sm(0)}, v{sm(1)}', f'v_add_f32 v{sm(0)}, v{sm(0)}, v{sm(1)}']
        return L

    def kconst(self, KC0, KC1, KONE, pr=None):
        return [f'v_mov_b32 v{KC0}, {f32hex(GELU_C0)}', f'v_mov_b32 v{KC0 + 1}, {f32hex(GELU_C0)}',
                f'v_mov_b32 v{KC1}, {f32hex(GELU_C1)}', f'v_mov_b32 v{KC1 + 1}, {f32hex(GELU_C1)}',
                ] + ([f'v_mov_b32 v{KONE}, 0x71800000'] if not (self.opt.pr if pr is None else pr) else [f'v_mov_b32 v{KONE}, {f32hex(-90.0)}', f'v_mov_b32 v{KONE + 1}, {f32hex(-90.0)}'])

    def winv(self, R, n, KONE):
        return [f'v_rcp_f32 v{R + k}, v{R + k}' for k in range(n)] + [f'v_med3_f32 v{R + k}, v{R + k}, -v{KONE}, v{KONE}' for k in range(n)]

    def dnn(self):
        o = self.opt
        self.role = 'd'
        vW = [[1, 2, 3, 4, 5], [6, 7, 8, 9, 10]]
        vX = [11, 12]
        vIdxOff, vCh = 13, [14, 15]
        ST = [[16, 20], [24, 240]]
        VO = [28, 34]
        vWD = [29, 30, 31, 32, 33]
        vP, vPc, vBL = 35, 36, 37
        WF = 40
        XA = 80
        T = 44
        W2F = 112
        ACC = 140
        PK = 220
        SUMP, KC0, KC1, KONE = 16, 232, 234, 236

        def acc(tn, tm):
            return ACC + (tn * 4 + tm) * 4

        HH, SL = S_T0, S_T1
        g, i4, q = T + 18, T + 19, T + 20
        PI, vCW = T + 8, T + 12
        nr = o.coopw
        L = [f's_mul_i32 s{S_N0}, s{S_R}, {WP}',
             f's_mul_i32 s{S_T2}, s{S_WAVE}, 7', f'v_min_u32 v{q}, 6, v0', f'v_add_u32 v{q}, s{S_T2}, v{q}', f'v_min_u32 v{q}, 51, v{q}',
             f'v_lshrrev_b32 v{g}, 1, v{q}', f'v_mul_u32_u24 v{g}, 96, v{g}', f'v_lshl_add_u32 v{q}, v{q}, 2, v{g}',
             f's_mul_i32 s{S_C0}, s{S_R}, 26', f's_min_u32 s{S_C0}, s{S_C0}, 102', f's_lshl_b32 s{S_T3}, s{S_MB}, 7',
             f's_add_u32 s{S_C0}, s{S_C0}, s{S_T3}', f's_mul_i32 s{S_C0}, s{S_C0}, 104',
             f's_and_b32 s{S_T2}, s{S_MB}, 3', f's_lshl_b32 s{S_T2}, s{S_T2}, 3', f's_add_u32 s{S_T2}, s{S_T2}, s{S_WAVE}',
             f's_mul_i32 s{S_T2}, s{S_T2}, 3328', f's_add_u32 s{S_TW}, s{S_T2}, s{S_N0}',
             f'v_min_u32 v{vCW}, {8 * nr - 1}, v0', f'v_lshrrev_b32 v{g}, 3, v{vCW}', f's_mov_b32 s{S_T2}, {32 * 3328}',
             f'v_mul_u32_u24 v{g}, s{S_T2}, v{g}',
             f'v_and_b32 v{vCW}, 7, v{vCW}', f'v_min_u32 v{vCW}, 4, v{vCW}', f'v_lshl_add_u32 v{vCW}, v{vCW}, 7, v{g}',
             f's_xor_b32 s{S_T2}, s{S_WAVE}, 4', f's_lshl_b32 s{S_T2}, s{S_T2}, 4', f's_add_u32 s{S_T2}, s{S_T2}, s{S_T3}',
              f'v_lshrrev_b32 v{T + 16}, 3, v0', f'v_add_u32 v{T + 16}, s{S_T2}, v{T + 16}',
              f'v_mul_u32_u24 v{vIdxOff}, 104, v{T + 16}',
             's_waitcnt lgkmcnt(0)']
        L += self.build_srd(SRD_IDX, S_IDX, 4096 * 104)
        own = [f'buffer_load_dwordx2 {vr(T + 4 * pc, 2)}, v{vIdxOff}, {srd(SRD_IDX)}, 0 offen offset:{pc * 832}' for pc in range(2)]
        L += (own if o.idx1 == 2 else []) + [f'buffer_load_dwordx3 {vr(PI, 3)}, v{q}, {srd(SRD_IDX)}, s{S_C0} offen'] + (own if o.idx1 == 1 else []) + ([f'buffer_load_dword v{T + 14}, v{q}, {srd(SRD_IDX)}, s{S_C0} offen offset:16'] if o.tc else [])
        L += self.tlb1(T + 24, 255)
        vec = lambda dst, sr: [f's_mov_b32 m0, {dst}', 's_mov_b32 exec_hi, 0xff',
                               I(f'buffer_load_dwordx4 v{vBL}, {srd(sr)}, s{S_N0} offen lds', tag='BIAS'), 's_mov_b64 exec, -1']
        L += [f'v_lshlrev_b32 v{vBL}, 4, v0'] + self.build_srd(SRD_B1, S_B1, 3328)
        L += self.build_srd(SRD_W, S_W1, 1664 * 3328)
        L += [f'buffer_load_dword v255, v{vCW}, {srd(SRD_W)}, s{S_TW} offen']
        spf = []
        if o.spf:
            L += [f's_add_u32 s90, s{S_W1}, s{S_TW}', f's_addc_u32 s91, s{S_W1 + 1}, 0']
            st0, nst, two = o.spf // 100, o.spf // 10 % 10, o.spf % 10
            spf = [f's_load_dword s92, s[90:91], {(64 * st_ + 32 * k) * 3328 + 128 * ln + 64 * hh}' for st_ in range(st0, st0 + nst) for k in range(2) for ln in range(5) for hh in range(two)]
        if o.co2:
            L += [f'v_mov_b32 v{T + 13}, v{vCW}', f's_add_u32 s85, s{S_TW}, {64 * 3328}']
        co2 = [f'buffer_load_dword v255, v{T + 13}, {srd(SRD_W)}, s85 offen', f's_add_u32 s85, s85, {64 * 3328}']
        dpf = [f's_mul_i32 s{S_TW}, s{S_MB}, 5', f's_add_u32 s{S_TW}, s{S_TW}, s{S_R}', f's_lshl_b32 s{S_TW}, s{S_TW}, 3', f's_add_u32 s{S_TW}, s{S_TW}, s{S_WAVE}',
               f's_add_u32 s{S_TW}, s{S_TW}, {o.dp0 * 832}', f's_lshl_b32 s{S_TW}, s{S_TW}, 7', f'v_min_u32 v{vCW}, {o.dpn - 1}, v0', f'v_mul_u32_u24 v{vCW}, {1280 * 128}, v{vCW}',
               f'buffer_load_dword v255, v{vCW}, {srd(SRD_W)}, s{S_TW} offen']
        dp2 = [x.replace(f', {2 * 832}', f', {2 * 832 + o.dpn * 1280}').replace(f'v_min_u32 v{vCW}, {o.dpn - 1},', f'v_min_u32 v{vCW}, {o.dpm - 1},') for x in dpf]
        L += vec(L_BIAS, SRD_B1) + (self.build_srd(SRD_W2, S_W2, 3328) + vec(L_W2, SRD_W2) if o.w2e else []) + (dpf if o.dpf in (1, 3, 4) else []) + (spf if o.spp == 0 else [])
        L += self.stamp0()
        L += [f's_lshr_b32 s{HH}, s{S_WAVE}, 2', f's_and_b32 s{SL}, s{S_WAVE}, 3',
              f's_mov_b32 s{S_T2}, 1639', f's_and_b32 s{S_C0}, s{SL}, 1', f's_lshl_b32 s{S_C0}, s{S_C0}, 2',
              f's_mov_b32 s{S_TW}, 3328', f'v_mov_b32 v{T + 16}, v0']
        for u in range(5):
            ci, rr = T + 16, T + 17
            L += [f'v_mul_u32_u24 v{rr}, s{S_T2}, v{ci}', f'v_lshrrev_b32 v{rr}, 16, v{rr}',
                  f'v_mul_u32_u24 v{q}, 40, v{rr}', f'v_sub_u32 v{q}, v{ci}, v{q}',
                  f'v_and_b32 v{i4}, 2, v{rr}', f'v_or_b32 v{i4}, s{S_C0}, v{i4}', f'v_xor_b32 v{q}, v{q}, v{i4}',
                  f'v_mul_u32_u24 v{rr}, s{S_TW}, v{rr}', f'v_lshl_add_u32 v{vWD[u]}, v{q}, 4, v{rr}']
            if u % 4:
                L += [f'v_subrev_u32 v{vWD[u]}, {1024 * u}, v{vWD[u]}']
            if u < 4:
                L += [f'v_add_u32 v{ci}, 64, v{ci}']
        L += [f's_mul_i32 s{S_T2}, s{S_WAVE}, {8 * 3328}', f's_add_u32 s{S_WSOFF}, s{S_T2}, s{S_N0}',
              f's_mul_i32 s{S_WMB}, s{S_WAVE}, {8 * WP}', f's_add_u32 s{S_WMB}, s{S_WMB}, {WR}',
              f's_lshl_b32 s{S_T3}, s{HH}, 14', f's_lshl_b32 s{S_XM0}, s{SL}, 11', f's_add_u32 s{S_XM0}, s{S_XM0}, s{S_T3}', f's_xor_b32 s{S_XM0}, s{S_XM0}, {2 * XSLOT}',
              f'v_and_b32 v{q}, 7, v0', f'v_lshrrev_b32 v{g}, 4, v0',
              f'v_xor_b32 v{q}, v{q}, v{g}', f'v_lshlrev_b32 v{vCh[0]}, 4, v{q}',
              f'v_xor_b32 v{vCh[1]}, 64, v{vCh[0]}']
        LAB = L
        L = [f'v_and_b32 v{q}, 15, v0', f'v_lshlrev_b32 v{q}, 7, v{q}', f's_lshl_b32 s{S_T3}, s{HH}, 14',
              f'v_bfe_u32 v{i4}, v0, 1, 3', f'v_xor_b32 v{i4}, v{i4}, v{g}', f'v_lshl_add_u32 v{q}, v{i4}, 4, v{q}',
              f'v_add_u32 v{vX[0]}, s{S_T3}, v{q}', f'v_xor_b32 v{vX[1]}, 64, v{vX[0]}']
        L += self.build_srd(SRD_W2, S_W2, 3328)
        L += [f's_mul_i32 s{S_T3}, s{SL}, 5',
              f'v_bfe_u32 v{i4}, v0, 2, 2', f'v_lshl_add_u32 v{q}, v{g}, 3, v{i4}', f'v_mul_u32_u24 v{q}, {WP}, v{q}',
              f'v_and_b32 v{i4}, 3, v0', f'v_lshl_add_u32 v{q}, v{i4}, 3, v{q}', f'v_add_u32 v{q}, {WR}, v{q}',
              f'v_bfe_u32 v{i4}, v0, 3, 2']
        for i in range(5):
            L += [f'v_xor_b32 v{T + 16}, s{S_T3}, v{i4}', f'v_lshl_add_u32 v{vW[0][i]}, v{T + 16}, 5, v{q}',
                  f'v_add_u32 v{vW[1][i]}, {3 * WSLOT}, v{vW[0][i]}', f's_add_u32 s{S_T3}, s{S_T3}, 1']
        L += [f's_mul_i32 s{S_T3}, s{SL}, 160', f's_add_u32 s{S_T3}, s{S_T3}, {L_BIAS}',
              f'v_lshlrev_b32 v{q}, 3, v{g}', f'v_add_u32 v{vP}, s{S_T3}, v{q}',
              f's_lshl_b32 s{S_T2}, s{SL}, 1', f's_add_u32 s{S_T2}, s{S_T2}, s{HH}', f's_lshl_b32 s{S_T2}, s{S_T2}, 8', f's_add_u32 s{S_T2}, s{S_T2}, {RB}',
              f'v_lshlrev_b32 v{vPc}, 2, v0', f'v_add_u32 v{vPc}, s{S_T2}, v{vPc}']
        LC, L = (L, LAB) if o.lc else ([], LAB + L)

        def wld(u):
            return I(f'buffer_load_dwordx4 v{vWD[u]}, {srd(SRD_W)}, s{S_WSOFF} offen offset:{1024 * (u % 4)}{o.wfl} lds', tag='W')

        def wst(stage):
            return [(f's_add_u32 m0, s{S_WMB}, {(stage % 3) * 2 * WSLOT}', wld(0)), (wld(1),), (wld(2),), (wld(3),),
                    ('s_add_u32 m0, m0, 4096', wld(4), f's_add_u32 s{S_WSOFF}, s{S_WSOFF}, {64 * 3328}')]

        def xld(v, m0, tag='X'):
            return (m0, I(f'buffer_load_dwordx4 v{v}, {srd(SRD_TAB)}, 0 offen{o.xfl} lds', tag=tag))
        pkreads = lambda off: [f'ds_read_b64 {vr(PK + 2 * tn, 2)}, v{vP} offset:{off + 32 * tn}' for tn in range(5)]

        def unp(dst):
            c = []
            for tn in range(5):
                for d in range(2):
                    c += [f'v_lshlrev_b32 v{dst(tn) + 2 * d}, 16, v{PK + 2 * tn + d}', f'v_and_b32 v{dst(tn) + 2 * d + 1}, 0xffff0000, v{PK + 2 * tn + d}']
            return c

        def reads(st):
            def rdw(tn):
                c = []
                for par in range(2):
                    sl = (st % 3) * 2 + par
                    c += [f'ds_read_b64_tr_b16 {vr(WF + 8 * tn + 4 * par + 2 * rd, 2)}, v{vW[sl // 3][tn]} offset:{(sl % 3) * WSLOT + rd * 4 * WP}' for rd in range(2)]
                return c
            rdx = [f'ds_read_b128 {vr(XA + 8 * tm + 4 * par, 4)}, v{vX[par]} offset:{(st % 2) * XSLOT + tm * 2048}' for tm in range(4) for par in range(2)]
            if o.x64:
                rdx = [f'ds_read_b64 {vr(XA + 8 * tm + 4 * par + 2 * h, 2)}, v{vX[par]} offset:{(st % 2) * XSLOT + tm * 2048 + 8 * h}' for tm in range(4) for par in range(2) for h in range(2)]
            return rdw(0) + rdw(1) + rdw(2) + rdw(3) + rdx + rdw(4) if o.ro == 0 else rdw(0) + rdx + rdw(1) + rdw(2) + rdw(3) + rdw(4)

        def xst(src, f, tag='X'):
            vo = lambda pc: (f'v_lshl_add_u32 v{VO[pc]}, v{src(pc)}, 7, v{vCh[pc]}',)
            return [vo(1) + vo(0) + xld(VO[0], f's_add_u32 m0, s{S_XM0}, {(f % 2) * XSLOT}', tag), xld(VO[1], 's_add_u32 m0, m0, 1024', tag)]
        idxl = lambda k: [f'buffer_load_dwordx3 {vr(ST[k][pc], 3)}, v{vIdxOff}, {srd(SRD_IDX)}, s{S_IDXOFF} offen offset:{pc * 832}' for pc in range(2)] + [f's_add_u32 s{S_IDXOFF}, s{S_IDXOFF}, 12']

        tA = [f'buffer_load_dword v255, v{PI}, {srd(SRD_TAB)}, 0 offen']
        tB = [f'v_lshlrev_b32 v{PI + 2}, 7, v{PI + 2}', f'buffer_load_dword v255, v{PI + 2}, {srd(SRD_TAB)}, 0 offen']
        ini = LC + [WaitTag(vm_tags=['BIAS'])] + pkreads(0) + unp(lambda tn: acc(tn, 0))
        ini += [f'v_mov_b64 {vr(acc(tn, tm) + 2 * d, 2)}, {vr(acc(tn, 0) + 2 * d, 2)}' for tn in range(5) for tm in range(1, 4) for d in range(2)]
        x0 = xst(lambda pc: T + 4 * pc, 0, 'X0')
        tC = [f'v_lshlrev_b32 v{T + 14}, 7, v{T + 14}', f'buffer_load_dword v255, v{T + 14}, {srd(SRD_TAB)}, 0 offen']
        if o.tc == 1:
            tB = tB + tC
        if o.tc == 2:
            ini = ini + tC
        tBl = []
        if o.tbl:
            tBl, tB = tB, []
        b1 = ['s_barrier'] if o.pb & 1 else []
        b2 = ['s_barrier'] if o.pb & 2 else []
        sh = [f'v_lshlrev_b32 v{PI}, 7, v{PI}']
        if o.sv == 0:
            L += sh + (own if not o.idx1 else []) + b1 + tA + tB + self.stamp(6) + wst(0) + ini + x0 + self.stamp(7) + b2
        elif o.sv == 1:
            L += self.stamp(19) + (spf if o.spp == 1 else []) + (co2 if o.co2 == 1 else []) + wst(0) + (co2 if o.co2 == 2 else []) + (co2 if o.co3 & 1 else []) + (spf if o.spp == 2 else []) + sh + (own if not o.idx1 else []) + b1 + tA + self.stamp(6) + x0 + (co2 if o.co2 == 3 or o.co3 & 2 else []) + tB + (dpf if o.dpf == 2 else []) + (dp2 if o.dpf == 3 else []) + b2 + ini + (dp2 if o.dpf == 4 else []) + (co2 if o.co3 & 4 else []) + self.stamp(7)
        elif o.sv == 2:
            L += sh + (own if not o.idx1 else []) + b1 + tA + self.stamp(6) + x0 + wst(0) + tB + b2 + ini + self.stamp(7)
        elif o.sv == 3:
            L += wst(0) + (own if not o.idx1 else []) + x0 + self.stamp(6) + sh + tA + tB + b2 + ini + self.stamp(7)
        L += [f's_lshl_b32 s{S_IDXOFF}, s{HH}, 2', f's_add_u32 s{S_IDXOFF}, s{S_IDXOFF}, 4'] + idxl(0)
        L += [f's_mov_b32 s{S_LOOP}, 0', f's_cmp_lg_u32 s{HH}, 0', 's_cbranch_scc1 L_dnn_h1']
        pro = self.seq(L)

        def mf(tn, tm, par):
            a = acc(tn, tm)
            return f'v_mfma_f32_16x16x32_bf16 {vr(a, 4)}, {vr(WF + 8 * tn + 4 * par, 4)}, {vr(XA + 8 * tm + 4 * par, 4)}, {vr(a, 4)}'
        MM = [mf(tn, j if tn % 2 == 0 else 3 - j, par) for tn in range(5) for j in range(4) for par in range(2)]
        kb = o.bov
        wi = self.winv(W2F, 20, KONE)
        K1 = list(range(132, 140)) + list(range(220, 232))
        KL, SC = 238, 239
        nw_ = 14
        if o.pr:
            wi = self.winv2(W2F, 20, K1, KL, SC)
            nw_ = 30
        trs = []
        for half in range(2):
            def fill(st, w=True, x=True, extra=(), rextra=()):
                D_ = (wst(st + 2) if w else []) + (xst(lambda pc: ST[(st // 3) % 2][pc] + st % 3, st + 1 + half) if x else [])
                return interleave(reads(st) + list(rextra), D_) + list(extra)

            def M(V=(), b=True, last=False, nw=5, g0=0):
                gp = [[] for _ in MM]
                V = list(V)
                n_ = len(MM) - kb - 1
                wt = [2 if isinstance(x, str) and x.startswith(('v_exp', 'v_rcp')) else 1 for x in V]
                cum = 0
                for x, w_ in zip(V, wt):
                    gp[g0 + cum * (n_ - g0) // sum(wt)].append(x)
                    cum += w_
                m = [(x,) + tuple(y) for x, y in zip(MM, gp)]
                return ['s_setprio 0'] * b + m[:len(m) - kb] + (['s_setprio 2'] + ([WaitTag(vm_tags=['W1'], allbut=('W', nw))] if half == 0 else []) + ['s_barrier'] if b else []) + m[len(m) - kb:] + ['s_setprio 0'] * last
            wF = lambda nw=5, nx=2: [WaitTag(vm_tags=['X0'], allbut=('X', nx), lgkm0=True)] + ([WaitTag(allbut=('W', nw))] if half else []) + ['s_barrier']
            L = [f'L_dnn_h{half}:']
            pre = (xst(lambda pc: T + 4 * pc + 1, 1) if half or o.f0 else []) + wst(1)[:4] + [wst(1)[4] + tuple(co2 if o.co3 & 8 else []) + tuple(tC if o.tc == 3 else [])] + tBl + idxl(1)
            wset = pkreads(WP) + self.kconst(KC0, KC1, KONE) + unp(lambda tn: W2F + 4 * tn) + wi if o.w2e else []
            if half == 0 and o.f0:
                for x in flat(pre):
                    if isinstance(x, I) and x.tag == 'W':
                        x.tag = 'W1'
                L += pre + [f's_add_u32 s{S_WSOFF}, s{S_WSOFF}, {64 * 3328}', WaitTag(vm_tags=['W'], lgkm0=True)] + self.stamp(1) + ['s_barrier'] + self.stamp(2)
                L += reads(0) + ['s_branch L_dnn_in0']
            elif half == 0:
                L += pre[:o.q0] + wset + [WaitTag(allbut=('W', min(o.q0, 5)), lgkm0=True)] + self.stamp(1) + ['s_barrier'] + self.stamp(2) + pre[o.q0:]
            else:
                if o.f0:
                    wset = [f's_sub_u32 s{S_WSOFF}, s{S_WSOFF}, {32 * 3328}', f's_sub_u32 s{S_WMB}, s{S_WMB}, {WSLOT}']
                    late_ = wst(2) + [f's_sub_u32 s{S_WSOFF}, s{S_WSOFF}, {32 * 3328}', f's_add_u32 s{S_WMB}, s{S_WMB}, {WSLOT}']
                    wset += late_ if o.f0 == 1 else []
                L += pre[:o.q1] + [WaitTag(allbut=('W', max(0, min(o.q1 - 2, 5)))), WaitTag(vm_tags=['X0'], lgkm0=True)] + self.stamp(1) + ['s_barrier'] + self.stamp(2) + pre[o.q1:] + wset + ['s_barrier'] + (late_ if o.f0 == 2 else [])
            th = pro + self.seq(L)
            L = [f'L_dnn_loop{half}:']
            for st in range(6):
                ex = []
                if st % 3 == 2:
                    ex += idxl(st // 3)
                if st == 4 and half == 1 and not o.w2e:
                    ex += [tuple(vec(L_W2, SRD_W2))]
                if o.padat.startswith('dl') and int(o.padat[2:]) % 6 == st:
                    ex += [('s_memrealtime s[86:87]', 's_waitcnt lgkmcnt(0)', f's_cmp_eq_u32 s{S_LOOP}, {int(o.padat[2:]) // 6}', 's_cselect_b32 s88, s86, s88')]
                if o.cyc.startswith('go,dl') and int(o.cyc[5:]) % 6 == st:
                    ex += [('s_memtime s[86:87]', 's_waitcnt lgkmcnt(0)', 's_sub_u32 s86, s86, s88', f's_cmp_eq_u32 s{S_LOOP}, {int(o.cyc[5:]) // 6}', 's_cselect_b32 s88, s86, s88')]
                if o.stamps and o.itst == 2 and st % 2:
                    ex += [(f's_memtime s[{S_ST}:{S_ST + 1}]', f's_memrealtime s[{S_ST + 2}:{S_ST + 3}]', f's_mul_i32 s{S_TW}, s{S_LOOP}, 3', f's_add_u32 s{S_TW}, s{S_TW}, {8 + st // 2}',
                           f's_min_u32 s{S_TW}, s{S_TW}, 14', 's_waitcnt lgkmcnt(0)',
                           f's_mov_b32 m0, s{S_TW}', f'v_writelane_b32 v252, s{S_ST}, m0', f'v_writelane_b32 v253, s{S_ST + 2}, m0')]
                if o.stamps and o.itst == 1 and st in (1, 4):
                    ex += [(f's_memtime s[{S_ST}:{S_ST + 1}]', f's_memrealtime s[{S_ST + 2}:{S_ST + 3}]', f's_lshl_b32 s{S_TW}, s{S_LOOP}, 1', f's_add_u32 s{S_TW}, s{S_TW}, {6 + st // 3}',
                           f's_max_u32 s{S_TW}, s{S_TW}, 8', 's_waitcnt lgkmcnt(0)',
                           f's_mov_b32 m0, s{S_TW}', f'v_writelane_b32 v252, s{S_ST}, m0', f'v_writelane_b32 v253, s{S_ST + 2}, m0')]
                L += fill(st, extra=ex)
                if st == 0:
                    b0_ = self.seq(L)
                    L = [f'L_dnn_in{half}:']
                L += wF() + M([f's_add_u32 s{S_LOOP}, s{S_LOOP}, 1', f's_cmp_lt_u32 s{S_LOOP}, 4'] if st == 5 else [])
            L += [f's_cbranch_scc1 L_dnn_loop{half}']
            b1_ = self.seq(L)
            th += (b1_ if half == 0 and o.f0 else []) + (b0_ + b1_) * 3
            if o.t2:
                E_ = [(acc(0, tm) + h, WF + 2 * tm + h, W2F + h, SUMP + 2 * tm + h) for tm in range(o.t2) for h in range(2)]
                ev = [f'v_mul_f32 v{t}, v{x}, v{x}' for (x, t, w, s_) in E_] + [f'v_fma_f32 v{t}, v{t}, v{KC1}, v{KC0}' for (x, t, w, s_) in E_]
                ev += [f'v_mul_f32 v{t}, v{t}, v{x}' for (x, t, w, s_) in E_] + [f'v_exp_f32 v{t}, v{t}' for (x, t, w, s_) in E_]
                ev += [f'v_fma_f32 v{t}, v{t}, v{w}, v{w}' for (x, t, w, s_) in E_] + [f'v_rcp_f32 v{t}, v{t}' for (x, t, w, s_) in E_]
                ev += [f'v_mul_f32 v{s_}, v{t}, v{x}' for (x, t, w, s_) in E_]
                L = pkreads(WP) + fill(24, w=False, x=half == 0, extra=(self.tlb2(VO[0], vBL) if half == 0 else []) + unp(lambda tn: W2F + 4 * tn)) + wF(0, 2 - 2 * half)
                L += M(self.kconst(KC0, KC1, KONE) + wi, nw=0)
                L += fill(25, w=False, x=False) + wF(0, 0) + M(ev, b=half == 0, last=True, g0=o.t2g)
            else:
                L = fill(24, w=False, x=half == 0, rextra=pkreads(WP) if not o.w2e else [], extra=self.tlb2(VO[0], vBL) if half == 0 else []) + wF(0, 2 - 2 * half)
                L += M(self.kconst(KC0, KC1, KONE) + unp(lambda tn: W2F + 4 * tn) + wi[:nw_] if not o.w2e else [], nw=0)
                L += fill(25, w=False, x=False) + wF(0, 0) + M(wi[nw_:] if not o.w2e else [], b=half == 0, last=True)
            if half == 0:
                L += ['s_branch L_epi']
            trs.append(th + self.seq(L))
        p2 = lambda r: vr(r, 2)
        el = lambda tn, tm, d: (acc(tn, tm) + 2 * d, W2F + 4 * tn + 2 * d, SUMP + 2 * tm)
        L = ['L_epi:'] + self.stamp(3)
        L += [f's_lshl_b32 s{S_T1}, s{S_R}, 11', f's_and_b32 s{S_T3}, s{S_MB}, 3', f's_lshl_b32 s{S_T3}, s{S_T3}, 9', f's_add_u32 s{S_T1}, s{S_T1}, s{S_T3}',
              f's_lshr_b32 s{S_T0}, s{S_MB}, 2', f's_lshl_b32 s{S_T0}, s{S_T0}, 14', f's_add_u32 s{S_T1}, s{S_T1}, s{S_T0}',
              'v_lshlrev_b32 v3, 3, v0', f'v_add_u32 v2, {RB}, v3']
        if o.pr:
            L += self.gelu2([[(acc(tn, tm), (W2F + 4 * tn, W2F + 4 * tn + 2), (K1[4 * tn], K1[4 * tn + 2]), SUMP + 2 * tm) for tm in range(4)] for tn in range(5)], WF, KC0, KC1, KONE)
        else:
            gr = [[el(tn, tm, d) for tm in range(4) if tn or d or tm >= o.t2] for tn in range(5) for d in range(2)]
            L += self.gelu([x for x in gr if x], WF, KC0, KC1, KONE, [SUMP + 2 * tm for tm in range(o.t2)])
        L += self.red4(SUMP, SC if o.pr else None) + [f'ds_write_b32 v{vPc}, v{SUMP}', 's_waitcnt lgkmcnt(0)'] + self.stamp(4) + self.stamp_flush()
        L += [f's_cmp_eq_u32 s{S_WAVE}, 0', 's_cbranch_scc1 L_dpub']
        tr = self.seq(L)
        self.seq(['s_barrier', 's_endpgm'])
        A = 64
        L = ['L_dpub:'] + self.build_srd(SRD_WS, S_WS, 0x10000000) + self.build_srd(SRD_DBG, S_DBG, 256) + self.cleared('L_dclr', [f's_and_b32 s{S_TW}, s2, 7'], vBL) + ['s_barrier'] + self.stamp(17)
        L += [f'ds_read_b64 {vr(A + 2 * qq, 2)}, v2 offset:{qq * 512}' for qq in range(4)]
        L += [f'v_pk_add_f32 {p2(A)}, {p2(A)}, {p2(A + 2)}', f'v_pk_add_f32 {p2(A + 4)}, {p2(A + 4)}, {p2(A + 6)}', f'v_pk_add_f32 {p2(A)}, {p2(A)}, {p2(A + 4)}',
              f'v_and_b32 v{A}, -2, v{A}', f'v_and_b32 v{A + 1}, -2, v{A + 1}',
              f'buffer_store_dwordx2 {vr(A, 2)}, v3, {srd(SRD_WS)}, s{S_T1} offen sc1'] + self.padsig() + ['s_endpgm']
        return [trs[0] + tr + self.seq(L), trs[1] + tr]

    def rem(self):
        o = self.opt
        self.role = 'r'
        vW = [1, 2, 7, 8]
        vX = [11, 12]
        vWD, vCh, vT, VO = 13, [14, 15], 9, 24
        SUMP = 16
        IDX = 32
        XA, WF = 64, 96
        ACC = 160
        BF, W2F = 32, 48
        PK = 224
        KC0, KC1, KONE = 240, 242, 244
        g, i4, q = 246, 247, 248
        S_F = S_IDXOFF
        acc = lambda tn, tm: ACC + (tn * 4 + tm) * 4
        L = ['L_rem:'] + (['s_memrealtime s[82:83]'] if o.amp == 4 else []) + [f's_lshr_b32 s{S_GRP}, s{S_WAVE}, 2', f's_and_b32 s{S_T0}, s2, 7', f's_lshl_b32 s{S_T0}, s{S_T0}, 3', f's_add_u32 s{S_T0}, s{S_T0}, s{S_WAVE}',
             f's_mul_i32 s{S_T0}, s{S_T0}, {64 * 104}', f's_lshl_b32 s{S_XM0}, s{S_WAVE}, 14',
             f'v_lshlrev_b32 v{q}, 4, v0', f'v_lshrrev_b32 v{g}, 4, v0',
             f'v_lshrrev_b32 v{i4}, 3, v0', f'v_mul_u32_u24 v{vWD}, 3328, v{i4}', f'v_and_b32 v{i4}, 2, v{i4}',
             f's_and_b32 s{S_T1}, s{S_WAVE}, 1', f's_lshl_b32 s{S_T1}, s{S_T1}, 2', f'v_or_b32 v{i4}, s{S_T1}, v{i4}',
             f'v_and_b32 v{vT}, 7, v0', f'v_xor_b32 v{i4}, v{i4}, v{vT}', f'v_lshl_add_u32 v{vWD}, v{i4}, 4, v{vWD}',
             f's_mul_i32 s{S_WSOFF}, s{S_WAVE}, {8 * 3328}', f's_add_u32 s{S_WSOFF}, s{S_WSOFF}, 3200',
             f's_lshl_b32 s{S_WMB}, s{S_WAVE}, 10', f's_add_u32 s{S_WMB}, s{S_WMB}, {RWR}',
             's_waitcnt lgkmcnt(0)']
        L += [f's_load_dword s{S_BOUT}, s[{S_BO}:{S_BO + 1}], 0'] + self.build_srd(SRD_IDX, S_IDX, 4096 * 104)
        for u in range(7):
            L += [f's_add_u32 m0, s{S_XM0}, {8192 + u * 1024}', I(f'buffer_load_dwordx4 v{q}, {srd(SRD_IDX)}, s{S_T0} offen lds', tag='I'),
                  f's_add_u32 s{S_T0}, s{S_T0}, 1024']
        L += self.build_srd(SRD_W, S_W1, 1664 * 3328)
        wld = lambda slot: [f's_add_u32 m0, s{S_WMB}, {slot * 8192}', I(f'buffer_load_dwordx4 v{vWD}, {srd(SRD_W)}, s{S_WSOFF} offen lds', tag='W'),
                            f's_add_u32 s{S_WSOFF}, s{S_WSOFF}, {64 * 3328}']
        L += wld(0)
        L += self.build_srd(SRD_WS, S_WS, 0x10000000) + self.build_srd(SRD_DBG, S_DBG, 256) + [f'v_mov_b32 v{XA + k}, -1' for k in range(4)]
        L += [f's_and_b32 s{S_T2}, s2, 7', f's_lshl_b32 s{S_T0}, s{S_T2}, 3', f's_add_u32 s{S_T0}, s{S_T0}, s{S_WAVE}', f's_lshl_b32 s{S_T0}, s{S_T0}, 11', f's_lshl_b32 s{S_T2}, s{S_T2}, 2',
              f'buffer_store_dwordx4 {vr(XA, 4)}, v{q}, {srd(SRD_WS)}, s{S_T0} offen sc1',
              f'buffer_store_dwordx4 {vr(XA, 4)}, v{q}, {srd(SRD_WS)}, s{S_T0} offen offset:1024 sc1']
        L += self.build_srd(SRD_B1, S_B1, 3328) + self.build_srd(SRD_W2, S_W2, 3328) + self.build_srd(SRD_TAB, S_TAB, 100000 * 128)
        L += self.stamp0()
        L += [f'v_xor_b32 v{q}, v{vT}, v{g}', f'v_lshlrev_b32 v{vCh[0]}, 4, v{q}', f'v_xor_b32 v{vCh[1]}, 64, v{vCh[0]}',
              f'v_bfe_u32 v{i4}, v0, 2, 2', f'v_lshl_add_u32 v{q}, v{g}, 3, v{i4}', f'v_lshlrev_b32 v{q}, 7, v{q}',
              f'v_and_b32 v{i4}, 3, v0', f'v_lshl_add_u32 v{q}, v{i4}, 3, v{q}', f'v_add_u32 v{q}, {RWR}, v{q}',
              f'v_bfe_u32 v{i4}, v0, 3, 2', f'v_lshl_add_u32 v{vW[0]}, v{i4}, 5, v{q}']
        L += [f'v_xor_b32 v{vW[i]}, {32 * i}, v{vW[0]}' for i in range(1, 4)]
        L += [f'v_and_b32 v{q}, 15, v0', f'v_lshlrev_b32 v{q}, 7, v{q}',
              f'v_bfe_u32 v{i4}, v0, 1, 3', f'v_xor_b32 v{i4}, v{i4}, v{g}', f'v_lshl_add_u32 v{q}, v{i4}, 4, v{q}',
              f'v_add_u32 v{vX[0]}, s{S_XM0}, v{q}', f'v_xor_b32 v{vX[1]}, 64, v{vX[0]}',
              f'v_lshrrev_b32 v{i4}, 3, v0', f'v_lshl_add_u32 v{q}, v{vT}, 3, v{i4}', f'v_mul_u32_u24 v{q}, 104, v{q}', f'v_add_u32 v{q}, s{S_XM0}, v{q}']
        S_OO = S_N0
        L += self.build_srd(SRD_OUT, S_OUT, 8192) + [
             f's_and_b32 s{S_OO}, s2, 7', f's_lshl_b32 s{S_T0}, s{S_OO}, 14', f's_lshl_b32 s{S_T1}, s{S_WAVE}, 8', f's_add_u32 s{S_T0}, s{S_T0}, s{S_T1}',
             f's_add_u32 s{S_T1}, s{S_T0}, 4096', f's_add_u32 s{S_T3}, s{S_T0}, 8192',
             f's_lshl_b32 s{S_OO}, s{S_OO}, 3', f's_add_u32 s{S_OO}, s{S_OO}, s{S_WAVE}', f's_lshl_b32 s{S_OO}, s{S_OO}, 7',
             'v_lshlrev_b32 v3, 2, v0', 'v_lshlrev_b32 v4, 1, v0',
             f's_lshl_b32 s{S_TW}, s{S_WAVE}, 6', f'v_add_u32 v5, s{S_TW}, v0', f'v_cmp_lt_u32 vcc, {(439 if o.sym else 483) + o.n4}, v5', 'v_add_u32 v5, 4096, v3', 'v_mov_b32 v6, 0x7f000000',
             'v_cndmask_b32 v5, v6, v5, vcc']
        L += self.kconst(KC0, KC1, KONE, o.rpr) + [f'v_mov_b32 v{r}, 0' for r in range(ACC, ACC + 64)] + ['s_waitcnt vmcnt(0) lgkmcnt(0)', f's_lshl_b32 s{S_BOUT}, s{S_BOUT}, 16']
        L += [f'ds_read_b64 {vr(IDX + 2 * k, 2)}, v{q} offset:{8192 + 8 * k}' for k in range(13)]

        def xld(src, slot, h=None):
            c = [tuple(f'v_add_u32_dpp v{VO + pc}, v{src}, v{vCh[pc % 2]} row_newbcast:{8 * hh + pc} row_mask:0xf bank_mask:{hex(3 << (2 * hh))}'
                       for hh in range(2) for pc in range(4 * k, 4 * k + 4)) for k in range(2)]
            d = [(f's_add_u32 m0, s{S_XM0}, {slot * 8192 + pc * 1024}',
                  I(f'buffer_load_dwordx4 v{VO + pc}, {srd(SRD_TAB)}, 0 offen lds', tag='X')) for pc in range(8)]
            return c[:1] + d[:4] + c[1:] + d[4:] if h is None else c[h:h + 1] + d[4 * h:4 * h + 4]
        L += [f'v_mov_b32 v{VO + pc}, 0' for pc in range(8)] + [f'v_mov_b32 v{IDX + k}, 0x7f000000' for k in (26, 27)]
        L += [f'v_lshlrev_b32 v{IDX}, 7, v{IDX}'] + xld(IDX, 0)
        L += wld(1) + [f'v_lshlrev_b32 v{IDX + k}, 7, v{IDX + k}' for k in range(25, 0, -1)] + xld(IDX + 1, 1) + wld(2)
        L += [f'v_lshlrev_b32 v{q}, 3, v{g}']

        rdx = lambda fp, h: [f'ds_read_b128 {vr(XA + 16 * h + 8 * t + 4 * par, 4)}, v{vX[par]} offset:{fp * 8192 + (2 * h + t) * 2048}' for t in (1, 0) for par in (1, 0)]
        rdw = lambda fp: [f'ds_read_b64_tr_b16 {vr(WF + 32 * fp + 8 * tn + 4 * par + 2 * rd, 2)}, v{vW[tn]} offset:{fp * 8192 + par * 4096 + rd * 512}'
                          for tn in range(4) for par in range(2) for rd in range(2)]

        def mm(fp, h):
            return [f'v_mfma_f32_16x16x32_bf16 {vr(acc(tn, 2 * h + t), 4)}, {vr(WF + 32 * fp + 8 * tn + 4 * par, 4)}, {vr(XA + 16 * h + 8 * t + 4 * par, 4)}, {vr(acc(tn, 2 * h + t), 4)}'
                    for tn in range(4) for t in range(2) for par in range(2)]
        L += [f's_mov_b32 s{S_F}, 3', f'v_mov_b32 v{vT}, v{IDX + 2}'] + list(xld(vT, 0, 0)[0])
        L += [WaitTag(allbut=('X', 12)), 's_barrier'] + self.stamp(2) + rdx(0, 0) + rdw(0)
        L += [f's_cmp_lg_u32 s{S_WAVE}, 7', 's_cbranch_scc1 L_rem_loop', 's_mov_b64 exec, 1',
              ] + (['s_or_b32 s86, s88, 1', 'v_mov_b32 v10, s86'] if o.gs else []) + [
              f'buffer_store_dword v{10 if o.gs else KC0}, v{vCh[0]}, {srd(SRD_DBG)}, s{S_T2} offen offset:128 sc1', 's_mov_b64 exec, -1']
        tr = self.seq(L)

        def phase(M, R, Dm, V, V2=()):
            gp = [[] for _ in M]
            for k, x in enumerate(R):
                gp[k * o.rrd // max(len(R), 1)].append(x)
            for k, x in enumerate(Dm):
                gp[1 + k * 15 // len(Dm)].append(x)
            v0 = o.rrd if R else 0
            for k, x in enumerate(V):
                gp[v0 + k * (16 - v0) // len(V)].append(x)
            for k, x in enumerate(V2):
                gp[3 + k * 12 // len(V2)].append(x)
            return [(m,) + tuple(g_) for m, g_ in zip(M, gp)]
        assert not o.rpr
        ub = [x for k in range(8) for x in (f'v_lshlrev_b32 v{BF + 2 * k}, 16, v{PK + k}', f'v_and_b32 v{BF + 2 * k + 1}, 0xffff0000, v{PK + k}')]
        uw = [x for k in range(8) for x in (f'v_lshlrev_b32 v{W2F + 2 * k}, 16, v{PK + 8 + k}', f'v_and_b32 v{W2F + 2 * k + 1}, 0xffff0000, v{PK + 8 + k}')]
        wi = self.winv(W2F, 16, KONE)
        badd = lambda h: [f'v_add_f32 v{acc(tn, 2 * h + t) + r}, v{BF + 4 * tn + r}, v{acc(tn, 2 * h + t) + r}' for tn in range(4) for t in range(2) for r in range(4)]
        vld = [f'buffer_load_dwordx2 {vr(PK + 2 * tn, 2)}, v{q}, {srd(SRD_B1)}, 0 offen offset:{3200 + 32 * tn}' for tn in range(4)]
        vld += [f'buffer_load_dwordx2 {vr(PK + 8 + 2 * tn, 2)}, v{q}, {srd(SRD_W2)}, 0 offen offset:{3200 + 32 * tn}' for tn in range(4)]

        def field(fp, last):
            L = [WaitTag(allbut=('W', 1)), WaitTag(allbut=('X', 0 if last and fp else 8))] + ([] if last and fp else ['s_barrier'])
            if fp == 1 and not last:
                L += [f'v_xor_b32 v{vW[i]}, 16384, v{vW[i]}' for i in range(4)]
            sx = (f's_xor_b32 s{S_WMB}, s{S_WMB}, 16384',)
            wl = [sx + tuple(wld(1)) + sx] if fp == 0 else [tuple(wld(0)) + sx]
            rw = rdw(1 - fp)
            mv = [(f's_set_gpr_idx_on s{S_F}, gpr_idx(SRC0)', 's_nop 0', f'v_mov_b32 v{vT}, v{IDX}', 's_set_gpr_idx_off', f's_add_u32 s{S_F}, s{S_F}, 1')]
            if not last:
                L += phase(mm(fp, 0), rdx(fp, 1) + rw[:8], xld(vT, fp, 0)[1:], list(xld(vT, fp, 1)[0]))
                L += [WaitTag(allbut=('X', 8))]
                L += phase(mm(fp, 1), rdx(1 - fp, 0) + rw[8:], xld(vT, fp, 1)[1:] + wl, mv + list(xld(vT, fp, 0)[0]))
            elif not o.rv:
                if fp == 0:
                    L += phase(mm(fp, 0), rdx(fp, 1) + rw[:8], vld + [f'buffer_load_dword v255, v3, {srd(SRD_OUT)}, s{S_OO} offen'], []) + [WaitTag(allbut=('X', 4))]
                    L += phase(mm(fp, 1), rdx(1 - fp, 0) + rw[8:], [], [])
                else:
                    L += phase(mm(fp, 0), rdx(fp, 1), [], [], uw + ub[:6]) + phase(mm(fp, 1), [], [], ub[6:] + wi[:o.rwi])
            elif fp == 0:
                L += phase(mm(fp, 0), rdx(fp, 1) + rw[:8], [], [], ub) + [WaitTag(allbut=('X', 4))]
                L += phase(mm(fp, 1), rdx(1 - fp, 0) + rw[8:], [], [], uw)
            else:
                L += phase(mm(fp, 0), rdx(fp, 1), [], [], badd(1)) + phase(mm(fp, 1), [], [], [], badd(0))
            return L
        L = ['L_rem_loop:'] + field(0, False) + ([f's_cmp_lg_u32 s{S_F}, 26', 's_cbranch_scc1 L_rnv'] if o.rv else [])
        bodya = self.seq(L)
        bodyv = self.seq(vld + [f'buffer_load_dword v255, v3, {srd(SRD_OUT)}, s{S_OO} offen']) if o.rv else []
        L = ['L_rnv:'] + field(1, False) + [f's_cmp_lt_u32 s{S_F}, 27', 's_cbranch_scc1 L_rem_loop']
        L = [x for x in flat(L) if not any((x.text if isinstance(x, I) else x).startswith(d) for d in o.rdrop.split(',') if d)]
        body = self.seq(L)
        body2 = self.seq(field(0, True) + field(1, True))
        el = lambda tn, tm, d: (acc(tn, tm) + 2 * d, W2F + 4 * tn + 2 * d, SUMP + 2 * tm)
        A = 128
        pld = [f'buffer_load_dword v{A + k}, v3, {srd(SRD_WS)}, s{(S_T0, S_T1, S_T3)[k // 2]} offen offset:{(k % 2) * 2048} sc1' for k in range(6)]
        pld += [f'buffer_load_dword v{A + 6}, v5, {srd(SRD_WS)}, s{S_T3} offen sc1']
        L = self.stamp(3) + ['L_repi:'] + (wi if o.rv else wi[o.rwi:] + [f'v_pk_add_f32 {vr(acc(tn, tm) + 2 * d, 2)}, {vr(acc(tn, tm) + 2 * d, 2)}, {vr(BF + 4 * tn + 2 * d, 2)}'
                                                                        for tn in range(4) for tm in range(4) for d in range(2)])
        ge = self.gelu([[el(tn, tm, d) for tm in range(4)] for tn in range(4) for d in range(2)], XA, KC0, KC1, KONE)
        early = o.epoll and o.amp not in (2, 3)
        cut = len(ge) - o.epoll * len(ge) // 8
        L += ge[:cut] + (pld if early else []) + ge[cut:]
        L += self.red4(SUMP) + [f'v_add_f32 v{SUMP}, s{S_BOUT}, v{SUMP}', 'L_rclr:'] + self.stamp(4) + self.padsig()
        gsl = []
        if o.gs:
            gsl = [f'buffer_load_dword v10, v3, {srd(SRD_DBG)}, 0 offen offset:128 sc1', 's_waitcnt vmcnt(0)', 's_mov_b32 s83, 0']
            for k in range(8):
                gsl += [f'v_readlane_b32 s82, v10, {k}', 's_nop 1', 's_sub_u32 s82, s82, s88', 's_min_i32 s83, s83, s82']
            gsl += ['s_max_i32 s83, s83, -1000', 's_add_u32 s88, s88, s83']
        tk = ['s_memrealtime s[86:87]', 's_waitcnt lgkmcnt(0)'] + gsl + ['s_sub_u32 s89, s86, s88', 's_min_u32 s89, s89, 10000', 's_lshl_b32 s89, s89, 3']
        if o.amp == 2:
            L += [f's_mov_b32 s{S_LOOP}, 0x40000', 'L_polla:', f's_sub_u32 s{S_LOOP}, s{S_LOOP}, 1', 's_cbranch_scc1 L_pollax']
            L += [f'buffer_load_dword v{A + k}, v3, {srd(SRD_WS)}, s{(S_T0, S_T1, S_T3)[k // 2]} offen offset:{(k % 2) * 2048} sc1' for k in range(5)]
            L += [f'v_max3_u32 v{A + 8}, v{A}, v{A + 1}, v{A + 2}', f'v_max3_u32 v{A + 8}, v{A + 3}, v{A + 4}, v{A + 8}',
                  f'v_cmp_eq_u32 vcc, -1, v{A + 8}', 's_cbranch_vccnz L_polla', 'L_pollax:']
        if o.amp in (2, 3):
            L += tk
        L += [f's_mov_b32 s{S_LOOP}, 0x40000'] + (['s_branch L_pchk'] if early else [])
        tl1 = self.seq(L)
        tl2 = self.seq(['L_poll:', f's_sub_u32 s{S_LOOP}, s{S_LOOP}, 1', 's_cbranch_scc1 L_pollx'] + pld)
        L = ['L_pchk:', 's_waitcnt vmcnt(0)']
        L += [f'v_max3_u32 v{A + 8}, v{A}, v{A + 1}, v{A + 2}', f'v_max3_u32 v{A + 9}, v{A + 3}, v{A + 4}, v{A + 5}', f'v_max3_u32 v{A + 8}, v{A + 8}, v{A + 9}, v{A + 6}',
              f'v_cmp_eq_u32 vcc, -1, v{A + 8}', 's_cbranch_vccnz L_poll', 'L_pollx:']
        L += [f'v_add_f32 v{A}, v{A}, v{A + 1}', f'v_add_f32 v{A + 2}, v{A + 2}, v{A + 3}', f'v_add_f32 v{A + 4}, v{A + 4}, v{A + 5}',
              f'v_add_f32 v{SUMP}, v{SUMP}, v{A + 6}', f'v_add_f32 v{A}, v{A}, v{A + 2}', f'v_add_f32 v{A + 4}, v{A + 4}, v{SUMP}', f'v_add_f32 v{A}, v{A}, v{A + 4}',
              f'v_cvt_pk_bf16_f32 v{A}, v{A}, v{A}']
        if o.amp and o.amp < 4:
            L += (tk if o.amp == 1 else []) + [
                  'L_ampspin:', 's_memrealtime s[86:87]', 's_waitcnt lgkmcnt(0)', 's_sub_u32 s86, s86, s88', 's_cmp_lt_u32 s86, s89', 's_cbranch_scc1 L_ampspin']
        if o.padat:
            L += ['L_padspin:', f'buffer_load_dword v7, v8, {srd(SRD_DBG)}, 0 offen sc1', 's_waitcnt vmcnt(0)', 's_memrealtime s[86:87]',
                  'v_readfirstlane_b32 s88, v7', 's_waitcnt lgkmcnt(0)', 's_cmp_eq_u32 s88, 0', 's_cbranch_scc1 L_padspin'] + (['s_not_b32 s88, s88'] if o.padmin else []) + [
                  's_sub_u32 s86, s86, s88', 's_cmp_lt_i32 s86, 6000', 's_cbranch_scc1 L_padspin'] if o.amp != 4 else [
                  f's_mov_b32 s{S_LOOP}, 0x40000', 'L_padspin:', f's_sub_u32 s{S_LOOP}, s{S_LOOP}, 1', 's_cbranch_scc1 L_padx',
                  f'buffer_load_dword v7, v8, {srd(SRD_DBG)}, 0 offen sc1', 's_waitcnt vmcnt(0)', 's_memrealtime s[86:87]',
                  'v_readfirstlane_b32 s88, v7', 's_waitcnt lgkmcnt(0)'] + (['s_not_b32 s88, s88'] if o.padmin else []) + [
                  ] + (['s_sub_u32 s88, s88, s82', 's_min_u32 s88, s88, 5000', 's_lshl_b32 s88, s88, 3'] if not o.cyc else ['s_min_u32 s88, s88, 60000']) + ['s_add_u32 s88, s88, 5000',
                  's_sub_u32 s86, s86, s82', 's_cmp_lt_u32 s86, s88', 's_cbranch_scc1 L_padspin', 'L_padx:']
        L += [f'buffer_store_short v{A}, v4, {srd(SRD_OUT)}, s{S_OO} offen{o.ofl}'] + self.stamp(5) + self.stamp_flush() + ['s_endpgm']
        return [tr + (bodya + body) * 3 + bodya + bodyv + body + body2 + tl1 + ([] if early else tl2) + self.seq(L)]

    def cin(self):
        o = self.opt
        self.role = 'c'
        cw = S_CW
        S_BCUR, S_BD, S_EXP, S_EXPC, S_PREV, S_SC, S_PH = 74, 75, 48, 49, 50, 51, 97
        S_CHK = S_M26
        vFA, vFR, vOne, vF, vFG, vFGa = 1, 2, 3, 4, 5, 6
        vRaw, vLin, vLinB, vXw, vX1, vX2, vSh, vAcc, vOr, vSI, vXi, vC16, vPWL, vPXL, PXR = range(7, 22)
        FT, XI, aD, aS, aLc, aC = 22, 24, 28, 29, 30, 31
        RAW, X, RZ, D = 32, 40, 52, 68
        WA, WB, WC, WS_, WL = 84, 128, 172, 216, 240
        Da, Db, Dc, Ds = D, D + 4, D + 8, D + 12
        T = 40
        half, i32, t3, t4, t5, vg, vm = T + 1, T + 2, T + 3, T + 4, T + 5, T + 6, T + 7
        vStg = 48
        GB = 49
        vMx, vWr, vL6, vL, vWu, vWo = range(62, 68)
        vDl = 247
        AD = 68
        vA3, vBs0, vBs1a, vBs1b, vUw, vV2w, vE, V3T = 240, 241, 242, 243, 244, 245, 246, 81
        BALL, UP, AFR, DALL = 84, 84, 132, 140
        BT, SUM, OUT = 216, 84, 132
        XJ = 204
        F_W3, F_W2, F_W1, F_PEEL, F_M, F_U, F_V3, F_XB = 0, 4, 8, 12, 16, 24, 32, 36
        nsync = [0]

        def sig(off, A=vFA, **kw):
            return [WaitTag(lgkm0=True, **kw), f'ds_add_u32 v{A}, v{vOne} offset:{off}']

        def wait(off, tgt, R=vFR):
            nsync[0] += 1
            lab = f'L_csync{nsync[0]}'
            return [f'{lab}:', f'ds_read_b32 v{vF}, v{R} offset:{off}', 's_waitcnt lgkmcnt(0)',
                    f'v_cmp_gt_u32 vcc, {tgt}, v{vF}', f's_cbranch_vccnz {lab}']

        def dppred(op, r):
            return [f'{op}_dpp v{r}, v{r}, v{r} {ctl} row_mask:{rm} bank_mask:0xf'
                    for (ctl, rm) in (('row_shr:1', '0xf'), ('row_shr:2', '0xf'), ('row_shr:4', '0xf'), ('row_shr:8', '0xf'),
                                      ('row_bcast:15', '0xa'), ('row_bcast:31', '0xc'))]

        def absmax(dst, regs):
            c = [f'v_max3_f32 v{dst}, abs(v{regs[0]}), abs(v{regs[1]}), abs(v{regs[2]})']
            k = 3
            while k < len(regs):
                b = regs[k + 1] if k + 1 < len(regs) else regs[k]
                c.append(f'v_max3_f32 v{dst}, v{dst}, abs(v{regs[k]}), abs(v{b})')
                k += 2
            return c

        def waitmax(off, dst_e, top, R=vFR):
            nsync[0] += 1
            lab = f'L_csync{nsync[0]}'
            return [f'{lab}:', f'ds_read_b64 {vr(T, 2)}, v{R} offset:{off}', 's_waitcnt lgkmcnt(0)',
                    f'v_cmp_gt_u32 vcc, 4, v{T}', f's_cbranch_vccnz {lab}',
                    f'v_readfirstlane_b32 s{dst_e}, v{T + 1}',
                    f's_lshr_b32 s{dst_e}, s{dst_e}, 23', f's_sub_i32 s{dst_e}, {top}, s{dst_e}', f's_min_i32 s{dst_e}, s{dst_e}, 40']

        def postmax(r, off, **kw):
            return dppred('v_max_u32', r) + [f'v_readlane_b32 s{S_T0}, v{r}, 63', f'v_mov_b32 v{r}, s{S_T0}',
                                             f'ds_max_u32 v{vFA}, v{r} offset:{off + 4}', WaitTag(**kw), f'ds_add_u32 v{vFA}, v{vOne} offset:{off}']
        setsc = lambda e: [f's_add_i32 s{S_SC}, s{e}, 127', f's_lshl_b32 s{S_SC}, s{S_SC}, 23']

        S_C, S_DYN, S_ST0, S_TK = S_R, S_MB, 98, 99
        NST = 40 if o.sym else 44
        PB = 11 * NST
        assert 2 * (512 - PB) - o.n4 <= (88 if o.sym else 44)
        vFl, vTk, vZ = 249, 250, 251
        S_HALF = S_STG9
        L = ['L_cin:', f's_and_b32 s{S_T0}, s{S_MB}, 3', f's_mul_i32 s{S_T0}, s{S_T0}, 3', f's_add_u32 s{S_C}, s{S_T0}, s{S_R}',
             f's_sub_u32 s{S_C}, s{S_C}, 6',
             f's_and_b32 s{cw}, s{S_WAVE}, 3', f's_lshr_b32 s{S_GRP}, s{S_WAVE}, 2',
             f's_lshl_b32 s{S_GW}, s{S_C}, 3', f's_add_u32 s{S_GW}, s{S_GW}, s{S_WAVE}',
             f's_mul_i32 s{S_T0}, s{S_GW}, {10 * 128}',
             f'v_min_u32 v{T}, 9, v0', f'v_lshlrev_b32 v{T}, 7, v{T}',
             f'v_lshlrev_b32 v{vStg}, 4, v0',
             f's_lshl_b32 s{S_STG}, s{cw}, 10',
             f's_cmp_eq_u32 s{cw}, 2', f's_cselect_b64 s[{S_EX}:{S_EX + 1}], 0x3fffff, -1',
             f's_cmp_eq_u32 s{cw}, 3', f's_cselect_b32 s{S_STG9}, 0, {8 * 4096}',
             f's_add_u32 s{S_STG9}, s{S_STG9}, s{S_STG}',
             '@CUT',
             f's_mul_i32 s{S_T1}, s{S_C}, 2979', f's_lshr_b32 s{S_T1}, s{S_T1}, 6', f's_mul_i32 s{S_ST0}, s{S_C}, {NST}',
             f's_and_b32 s{S_T2}, s2, 7', f's_add_u32 s{S_RC}, s{S_ST0}, s{S_WAVE}', f's_lshl_b32 s{S_RC}, s{S_RC}, 2',
             f's_lshl_b32 s{S_ST0}, s{S_T2}, 14', f's_add_u32 s{S_RC}, s{S_RC}, s{S_ST0}', f's_add_u32 s{S_RC}, s{S_RC}, {5 * 2048}', f's_mul_i32 s{S_ST0}, s{S_C}, {NST}', f's_lshl_b32 s{S_PX}, s{S_T2}, 9', f's_add_u32 s{S_SAMP}, s{S_PX}, s{S_ST0}', f's_add_u32 s{S_PX}, s{S_PX}, s{S_T1}',
             f's_add_u32 s{S_SAMP}, s{S_SAMP}, s{S_WAVE}', f's_mul_i32 s{S_SAMP}, s{S_SAMP}, 104',
] + ([f's_lshl_b32 s{S_ST0}, s{S_C}, 2', f's_add_u32 s{S_ST0}, s{S_ST0}, s{S_WAVE}', f's_add_u32 s{S_ST0}, s{S_ST0}, s{S_T2}', f's_and_b32 s{S_ST0}, s{S_ST0}, 7'] if not o.sym else [
             f's_add_u32 s{S_ST0}, s{S_WAVE}, s{S_T2}', f's_and_b32 s{S_ST0}, s{S_ST0}, 3', f's_lshl_b32 s{S_TK}, s{S_GRP}, 2', f's_add_u32 s{S_ST0}, s{S_ST0}, s{S_TK}']) + [
             f's_mul_i32 s{S_ST0}, s{S_ST0}, {16384 + o.shs}', f's_add_u32 s{S_ST0}, s{S_ST0}, {6 * 2048}',
] + ([f's_sub_u32 s{S_LOOP}, 6, s{S_GRP}', f's_lshl_b32 s{S_TK}, s{S_GRP}, 1'] if not o.sym else [f's_mov_b32 s{S_LOOP}, 5', f's_mov_b32 s{S_TK}, 2']) + [f's_mov_b32 s{S_DYN}, -1',
             f'v_lshrrev_b32 v{t3}, 3, v0', f'v_min_u32 v{t3}, 6, v{t3}', f'v_lshlrev_b32 v{vXi}, 4, v{t3}',
             f's_mul_i32 s{S_T2}, s{S_T2}, 88', f's_add_u32 s{S_T2}, s{S_GW}, s{S_T2}', f's_mov_b32 s{S_T3}, 704',
             f'v_mov_b32 v{t4}, s{S_T2}', f'v_mad_u32_u24 v{vPWL}, v0, s{S_T3}, v{t4}',
             f's_mul_i32 s{S_T2}, s{S_GW}, 104', f's_sub_u32 s{S_T2}, s{S_T2}, {13 * 26 - 25}',
             f'v_min_u32 v{t4}, {12 + o.pfr}, v0', f'v_mul_u32_u24 v{t5}, 26, v{t4}', f'v_add_u32 v{t5}, s{S_T2}, v{t5}',
             f'v_cmp_lt_u32 vcc, 12, v{t4}', f'v_cndmask_b32 v{vPWL}, v{vPWL}, v{t5}, vcc', f'v_lshlrev_b32 v{vPWL}, 7, v{vPWL}',
             f's_mov_b32 s{S_PW}, {o.pfe0 * 832 * 128}',
             '@CUT',
             f'v_mov_b32 v{vFR}, {L_FLG}', f'v_lshlrev_b32 v{vFA}, 20, v0', f'v_add_u32 v{vFA}, {L_FLG}, v{vFA}',
             f'v_and_b32 v{t4}, 7, v0', f'v_lshlrev_b32 v{vC16}, 4, v{t4}', f'v_and_b32 v{t4}, 15, v0', f'v_lshl_add_u32 v{t4}, v{t4}, 2, v{vFR}',
             f'v_mov_b32 v{vOne}, 0', f'ds_write_b32 v{t4}, v{vOne}',
             f'v_lshrrev_b32 v{half}, 5, v0', f'v_and_b32 v{i32}, 31, v0',
             's_waitcnt lgkmcnt(0)', f'v_mov_b32 v{vOne}, 1']
        i1 = L.index('@CUT'); i2 = L.index('@CUT', i1 + 1)
        late0 = L[i1 + 1:i2]
        if o.c0l:
            assert o.pf1 == 2
            L = L[:i1] + L[i2 + 1:]
            late0 = late0 + self.build_srd(SRD_TAB, S_TAB, 100000 * 128) + self.build_srd(SRD_W, S_W1, 1664 * 3328) + self.build_srd(SRD_IDX, S_IDX, 4096 * 104)
        else:
            L = L[:i1] + late0 + L[i2 + 1:] + self.tlb1(t5, 255)
            late0 = []
        L += self.build_srd(SRD_CIN, S_CIN, 105456)
        L += [f'buffer_load_dword v255, v{T}, {srd(SRD_CIN)}, s{S_T0} offen'] if o.coop else []
        L += self.build_srd(SRD_W, S_W1, 1664 * 3328) if not o.c0l else []

        def pfw():
            if o.nopf & 4:
                return []
            return [f's_mov_b64 exec, {((1 << (13 + o.pfr)) - 1) & ~(0x1fff if o.nopf & 1 else 0)}', f'buffer_load_dword v255, v{vPWL}, {srd(SRD_W)}, s{S_PW} offen', 's_mov_b64 exec, -1',
                    f's_add_u32 s{S_PW}, s{S_PW}, {352 * 3328}']
        L += ['s_barrier'] + (pfw() if o.pf1 in (0, 3) else [])
        L += self.build_srd(SRD_IDX, S_IDX, 4096 * 104) if not o.c0l else []

        def pfx_a():
            return [] if o.nopf & 2 else [f'buffer_load_dword v{PXR}, v{vPXL}, {srd(SRD_IDX)}, s{S_PX} offen',
                    f's_cmp_eq_u32 s{S_PX}, s{S_PXE}', f's_cselect_b32 s{S_PXE}, 0x7000000, s{S_PXE}',
                    f's_cselect_b32 s{S_PX}, 0x7000000, s{S_PX}',
                    f's_add_u32 s{S_PX}, s{S_PX}, 24', f's_min_u32 s{S_PX}, s{S_PX}, s{S_PXE}']

        def pfx_b():
            return [] if o.nopf & 2 else [f'v_lshlrev_b32 v{PXR}, 7, v{PXR}', f'buffer_load_dword v255, v{PXR}, {srd(SRD_TAB)}, 0 offen']

        def xidx(XI=XI, off=0, adv=True):
            c = [f'buffer_load_dwordx4 {vr(XI, 4)}, v{vXi}, {srd(SRD_IDX)}, s{S_SAMP} offen offset:{off}']
            if adv:
                c.append(f's_add_u32 s{S_SAMP}, s{S_SAMP}, {8 * 104}')
            return c

        def xdma(XI=XI, lo=0):
            c = []
            for u in range(4):
                if u == 2:
                    c += ['s_mov_b32 exec_hi, 0x0000ffff']
                c += [f'v_lshl_add_u32 v{XI + u}, v{XI + u}, 7, v{vC16}']
                if u == 3:
                    c += ['s_mov_b32 exec_lo, 0', 's_mov_b32 exec_hi, 0xffff0000', f'v_mov_b32 v{XI + 3}, v{XI + 1}', f'v_mov_b32 v{XI + 2}, v{XI + 1}',
                          's_mov_b32 exec_hi, 0x00ff0000', f'v_mov_b32 v{XI + 2}, v{XI}', 's_mov_b64 exec, -1']
            for u in range(4):
                c += [f's_add_u32 m0, s{S_BCUR}, {u * XPI + lo}']
                if u == 3:
                    c += ['s_mov_b32 exec_hi, 0x00ffffff']
                c.append(I(f'buffer_load_dwordx4 v{XI + u}, {srd(SRD_TAB)}, 0 offen lds', tag='XB'))
                if u == 3:
                    c += ['s_mov_b32 exec_hi, -1']
            return c
        wco = self.build_srd(SRD_WCO, S_WCO, 156) + [f's_mov_b32 m0, {L_WCO}', 's_mov_b64 exec, 0x7ff',
              I(f'buffer_load_dwordx4 v{vStg}, {srd(SRD_WCO)}, 0 offen lds', tag='STG3'),
              's_mov_b64 exec, -1']
        L += self.stamp0()

        def stage(dst, goff, tag):
            sh = o.w1s and dst == A1
            st = []
            for m in range(8):
                st.append((f's_add_u32 m0, s{S_STG}, {dst + m * 4096}', f's_add_u32 s{S_TW}, s{S_STG}, {goff + m * 4096 - (4 if sh and m >= 5 else 0)}',
                           I(f'buffer_load_dwordx4 v{vStX if sh and m == 5 else vStg}, {srd(SRD_CIN)}, s{S_TW} offen lds', tag=tag)))
            g9 = (f's_add_u32 s{S_TW}, s{S_STG9}, {goff}',) if not sh else (f's_lshr_b32 s{S_TW}, s{S_STG9}, 13', f's_sub_u32 s{S_TW}, s{S_STG9}, s{S_TW}')
            st.append((f's_add_u32 m0, s{S_STG9}, {dst}',) + g9 + (f's_mov_b64 exec, s[{S_EX}:{S_EX + 1}]',
                       I(f'buffer_load_dwordx4 v{vStg}, {srd(SRD_CIN)}, s{S_TW} offen lds', tag=tag),
                       's_mov_b64 exec, -1'))
            return st
        vStX = 248
        if o.w1s:
            L += [f'v_add_u32 v{vStX}, s{S_STG}, v{vStg}', f'v_cmp_gt_u32 vcc, {16 * 1352 - 5 * 4096}, v{vStX}', f'v_cndmask_b32 v{vStX}, 0, 4, vcc',
                  f'v_add_u32 v{vStX}, v{vStX}, v{vStg}']

        L += [f's_cmp_lg_u32 s{S_GRP}, 0', 's_cbranch_scc1 L_g1a']
        c0 = self.seq(L)
        sA, sB = (('1', A1, 0, F_W1), ('2', A2, 35152, F_W2)) if o.w1first else (('2', A2, 35152, F_W2), ('1', A1, 0, F_W1))
        stA, stB = stage(sA[1], sA[2], 'STG' + sA[0]), stage(sB[1], sB[2], 'STG' + sB[0])
        stg = [wco + stage(A3, 70304, 'STG3') + stA[:o.sigat],
               sig(F_W3, vm_tags=['STG3']) + self.stamp(1) + stA[o.sigat:] + stB[:o.sig2],
               sig(sA[3], vm_tags=['STG' + sA[0]]) + stB[o.sig2:]]
        g0a = self.seq(stg[:o.ccpos] + ['s_branch L_addrc'])
        L = ['L_g1a:', 's_setprio 1',
             f'v_bfe_u32 v{t3}, v0, 2, 2', f'v_lshl_add_u32 v{t3}, v{half}, 3, v{t3}',
             f'v_bfe_u32 v{t4}, v0, 4, 1', f'v_lshlrev_b32 v{t4}, 5, v{t4}',
             f'v_and_b32 v{t5}, 3, v0', f'v_lshl_add_u32 v{t4}, v{t5}, 3, v{t4}',
             f'v_lshl_add_u32 v{vA3}, v{t3}, 6, v{t4}', f'v_add_u32 v{vA3}, {V3OFF}, v{vA3}',
             f's_lshl_b32 s{S_T0}, s{cw}, 6', f's_add_u32 s{S_T0}, s{S_T0}, {A2}',
             f'v_add_u32 v{t4}, s{S_T0}, v{t4}',
             f'v_mul_u32_u24 v{t5}, 1352, v{t3}', f'v_add_u32 v{vBs0}, v{t4}, v{t5}',
             f'v_add_u32 v{t5}, 16, v{t3}', f'v_min_u32 v{t5}, 25, v{t5}',
             f'v_mul_u32_u24 v{t5}, 1352, v{t5}', f'v_add_u32 v{vBs1a}, v{t4}, v{t5}',
             f'v_add_u32 v{t5}, 20, v{t3}', f'v_min_u32 v{t5}, 25, v{t5}',
             f'v_mul_u32_u24 v{t5}, 1352, v{t5}', f'v_add_u32 v{vBs1b}, v{t4}, v{t5}',
             f's_lshl_b32 s{S_T0}, s{cw}, 5', f'v_add_u32 v{vE}, s{S_T0}, v{i32}',
             f'v_mul_u32_u24 v{t3}, 52, v{vE}', f'v_lshl_add_u32 v{t3}, v{half}, 3, v{t3}',
             f'v_add_u32 v{vUw}, {A3}, v{t3}',
             f'v_lshlrev_b32 v{t3}, 1, v{vE}', f'v_add_u32 v{vV2w}, {V2OFF}, v{t3}',
             f'v_mov_b32 v{BT}, 0', f'v_mov_b32 v{BT + 1}, 0',
             f'v_lshlrev_b32 v{t3}, 3, v0', f'v_add_u32 v{t4}, {V3OFF}, v{t3}',
             f's_lshl_b32 s{S_T0}, s{cw}, 9', f'v_add_u32 v{t4}, s{S_T0}, v{t4}', f'ds_write_b64 v{t4}, {vr(BT, 2)}']
        L += [f'v_lshl_add_u32 v{t3}, v{half}, 7, v{vE}', f's_mov_b32 s{S_T1}, 2521', f's_mov_b32 s{S_T2}, {V3OFF}']
        for p_ in range(3):
            L += [f'v_mul_u32_u24 v{t4}, s{S_T1}, v{t3}', f'v_lshrrev_b32 v{t4}, 16, v{t4}',
                  f'v_mad_u32_u24 v{t4}, v{t4}, 12, s{S_T2}', f'v_lshl_add_u32 v{AD + p_}, v{t3}, 1, v{t4}']
            if p_ < 2:
                L += [f'v_add_u32 v{t3}, 256, v{t3}']
        L += [f'v_mov_b32 v{t4}, 676', f'v_cmp_gt_u32 s[{S_MASK}:{S_MASK + 1}], v{t4}, v{t3}']
        for m in range(6):
            L += [f'v_add_u32 v{t3}, {128 * m}, v{vE}', f'v_mul_u32_u24 v{t4}, s{S_T1}, v{t3}', f'v_lshrrev_b32 v{t4}, 16, v{t4}',
                  f'v_lshl_add_u32 v{t4}, v{t4}, 2, v{vUw}', f'v_add_u32 v{AD + 4 + m}, {m * 6656}, v{t4}']
        L += [f'v_lshlrev_b32 v{AD + 10}, 4, v{half}', f'v_add_u32 v{AD + 10}, {L_WCO + 104}, v{AD + 10}',
              f'v_lshlrev_b32 v{AD + 11}, 1, v0', f'v_add_u32 v{AD + 11}, {L_WCO}, v{AD + 11}',
              f'v_lshlrev_b32 v{AD + 12}, 6, v0', f'v_add_u32 v{AD + 12}, {V3OFF + 52}, v{AD + 12}']
        g1a = self.seq(L)

        N_ = (0, 1, 2, 3)
        classes = []
        for d in ZD:
            for (a, ha, b, hb) in d:
                if cls(a, ha)[1] == N_ and cls(b, hb)[1] != N_ and cls(b, hb)[1] not in classes:
                    classes.append(cls(b, hb)[1])
        assert len(classes) == 5
        base = {(N_, N_): GB}
        for k, c in enumerate(classes):
            base[(N_, c)] = GB + 1 + 2 * k
            base[(c, N_)] = GB + 2 + 2 * k
        SP1, SP2 = GB + 11, GB + 12
        pk4 = lambda t: '0x%08x' % sum((x & 0xff) << (8 * k) for k, x in enumerate(t))
        L = ['L_addrc:'] + late0 + [
             f's_and_b32 s{S_T2}, s{S_WAVE}, 1', f's_lshl_b32 s{S_T2}, s{S_T2}, 1', f'v_add_u32 v{vg}, s{S_T2}, v{half}',
             f'v_min_u32 v{t3}, 25, v{i32}',
             f's_mul_i32 s{S_T0}, s{S_GRP}, {UST - 1352}', f's_add_u32 s{S_T0}, s{S_T0}, 1352',
             f's_mul_i32 s{S_T1}, s{S_GRP}, {A3 - A1}', f's_add_u32 s{S_T1}, s{S_T1}, {A1}',
             f'v_mul_u32_u24 v{t4}, s{S_T0}, v{t3}', f'v_add_u32 v{t4}, s{S_T1}, v{t4}',
             f'v_lshlrev_b32 v{vDl}, 2, v{t3}', f'v_add_u32 v{vDl}, {A3 - A1}, v{vDl}'] + ([
             f's_lshl_b32 s{S_T0}, s{S_GRP}, 2', f's_xor_b32 s{S_T0}, s{S_T0}, 4', f'v_lshrrev_b32 v{t5}, 2, v{t3}', f'v_and_b32 v{t5}, s{S_T0}, v{t5}',
             f'v_add_u32 v{t4}, v{t4}, v{t5}', f'v_sub_u32 v{vDl}, v{vDl}, v{t5}'] if o.w1s else []) + [
             f'v_mul_u32_u24 v{vL}, 52, v{t3}', f'v_lshl_add_u32 v{vL}, v{vg}, 1, v{vL}', f'v_add_u32 v{vL}, {V2OFF}, v{vL}',
             f'v_lshlrev_b32 v{vWo}, 1, v{t3}', f'v_add_u32 v{vWo}, {L_WCO}, v{vWo}',
             f'v_mad_u32_u24 v{SP1}, v{vg}, 52, v{t4}',
             f'v_lshl_add_u32 v{SP2}, v{vg}, 1, v{t4}',
             f'v_lshl_add_u32 v{GB}, v{vg}, 1, v{SP1}',
             f'v_lshlrev_b32 v{t3}, 3, v{vg}']
        for k, c in enumerate(classes):
            L += [f's_mov_b32 s{S_T0}, {pk4(c)}', f'v_bfe_i32 v{t5}, s{S_T0}, v{t3}, 8',
                  f'v_lshl_add_u32 v{GB + 1 + 2 * k}, v{t5}, 1, v{SP1}', f'v_mad_i32_i24 v{GB + 2 + 2 * k}, v{t5}, 52, v{SP2}']
        L += [f's_mov_b32 s{S_T0}, {pk4((0, 54, 2, 0))}', f'v_bfe_u32 v{t5}, s{S_T0}, v{t3}, 8', f'v_add_u32 v{SP1}, v{t5}, v{t4}',
              f'v_add_u32 v{SP2}, 52, v{t4}', f'v_mov_b32 v{vm}, {OOB}',
              f'v_cmp_eq_u32 vcc, 3, v{vg}', f'v_cndmask_b32 v{SP1}, v{SP1}, v{vm}, vcc', f'v_cndmask_b32 v{vWo}, v{vm}, v{vWo}, vcc',
              f'v_cmp_eq_u32 vcc, 2, v{vg}', f'v_cndmask_b32 v{SP2}, v{vm}, v{SP2}, vcc',
              f'v_cmp_gt_u32 vcc, 2, v{vg}', f'v_cndmask_b32 v{vL6}, v{vm}, v{vL}, vcc']
        L += [f's_lshr_b32 s{S_T1}, s{cw}, 1', f's_mul_i32 s{S_T1}, s{S_T1}, {6 * 1024}', f's_mul_i32 s{S_T0}, s{S_GRP}, {6 * 1024}',
              f'v_lshlrev_b32 v{t5}, 8, v{vg}',
              f'v_lshl_add_u32 v{t3}, v{i32}, 4, v{t5}', f'v_add_u32 v{vWr}, {TA}, v{t3}', f'v_add_u32 v{vWu}, {TB}, v{t3}',
              f'v_bfe_u32 v{t3}, v0, 2, 2', f'v_lshl_add_u32 v{t5}, v{t3}, 4, v{t5}', f'v_and_b32 v{t3}, 3, v0',
              f'v_lshl_add_u32 v{t4}, v{t3}, 6, v{t5}', f'v_add_u32 v{t4}, {TC}, v{t4}',
              f'v_cmp_lt_u32 vcc, 15, v{i32}', f'v_cndmask_b32 v{vWr}, v{vWr}, v{t4}, vcc', f'v_add_u32 v{t4}, 16, v{t4}',
              f'v_cndmask_b32 v{vWu}, v{vWu}, v{t4}, vcc',
              f'v_lshl_add_u32 v{t4}, v{t3}, 5, v{t5}', f'v_add_u32 v{t4}, {TD - 16}, v{t4}',
              f'v_cmp_lt_u32 vcc, 19, v{i32}', f'v_cndmask_b32 v{vWr}, v{vWr}, v{t4}, vcc',
              f'v_add_u32 v{vWr}, s{S_T1}, v{vWr}', f'v_add_u32 v{vWu}, s{S_T0}, v{vWu}',
              f'v_cmp_lt_u32 vcc, 25, v{i32}', f'v_cndmask_b32 v{vWr}, v{vWr}, v{vm}, vcc', f'v_cndmask_b32 v{vWu}, v{vWu}, v{vm}, vcc',
              f'v_mov_b32 v{vMx}, 0']
        L += [f's_mul_i32 s{S_BCUR}, s{S_WAVE}, {XBSZ}', f's_add_u32 s{S_BCUR}, s{S_BCUR}, {XB0}', f's_mov_b32 s{S_BD}, {XB1 - XB0}',
              f'v_add_u32 v{aD}, {TA}, v{vStg}',
              f'v_and_b32 v{t3}, 11, v0', f'v_cmp_eq_u32 vcc, 11, v{t3}', f'v_cndmask_b32 v{aC}, v{aD}, v{vm}, vcc',
              f'v_and_b32 v{t3}, 3, v0', f'v_cmp_eq_u32 vcc, 0, v{t3}', f'v_cndmask_b32 v{aLc}, v{aC}, v{vm}, vcc',
              f'v_lshrrev_b32 v{vg}, 4, v0', f'v_bfe_u32 v{t3}, v0, 1, 3', f'v_lshlrev_b32 v{t5}, 4, v{t3}', f'v_add_u32 v{t5}, {TD}, v{t5}',
              f'v_and_b32 v{t3}, 10, v0', f'v_cmp_eq_u32 vcc, 10, v{t3}', f'v_cndmask_b32 v{t5}, v{t5}, v{vm}, vcc',
              f'v_and_b32 v{t4}, 1, v0', f'v_lshl_add_u32 v{aS}, v{vg}, 9, v{t5}', f'v_lshl_add_u32 v{aS}, v{t4}, 2, v{aS}', f'v_add_u32 v{aS}, 1024, v{aS}',
              f'v_lshl_add_u32 v{FT}, v{vg}, 8, v{t5}', f'v_lshl_add_u32 v{FT}, v{t4}, 20, v{FT}',
              f'v_and_b32 v{vm}, 15, v0', f's_mov_b32 s{S_T0}, {XPI}',
              f'v_lshlrev_b32 v{t3}, 1, v{vm}', f'v_add_u32 v{t3}, s{S_BCUR}, v{t3}',
              f'v_mad_u32_u24 v{vRaw}, v{vg}, s{S_T0}, v{t3}',
              f's_lshl_b32 s{S_T0}, s{S_WAVE}, 10', f's_add_u32 s{S_T0}, s{S_T0}, {XCH}',
              f'v_add_u32 v{vXw}, s{S_T0}, v{vStg}',
              f'v_add_u32 v{t3}, 256, v{vStg}', f'v_and_b32 v{t3}, 1023, v{t3}', f'v_add_u32 v{vX1}, s{S_T0}, v{t3}',
              f'v_xor_b32 v{t3}, 512, v{vStg}', f'v_add_u32 v{vX2}, s{S_T0}, v{t3}', f'v_lshlrev_b32 v{vSh}, 4, v{half}']
        L += [f'v_mov_b32 v{r}, 0' for r in list(range(RAW, RAW + 8)) + list(range(BT, BT + 24))]
        L += [f'v_mul_u32_u24 v{t4}, {XPI}, v{vg}',
              f'v_bfe_u32 v{t5}, v0, 2, 2', f'v_lshl_add_u32 v{t4}, v{t5}, 7, v{t4}',
              f'v_and_b32 v{t5}, 3, v0', f'v_lshl_add_u32 v{vLinB}, v{t5}, 3, v{t4}', f'v_add_u32 v{vLin}, s{S_BCUR}, v{vLinB}',
              f'v_and_b32 v{t5}, 1, v0', f's_mov_b32 s{S_T0}, 0xaaaaaaaa', f'v_mul_lo_u32 v{vSI}, s{S_T0}, v{t5}', f'v_or_b32 v{vSI}, 0x44444444, v{vSI}',
              f'v_lshlrev_b32 v{vOr}, 1, v0', f'v_add_u32 v{vOr}, s{S_BCUR}, v{vOr}', f'v_mov_b32 v{vAcc}, 0x3f80',
              f'ds_write_b16 v{vOr}, v{vAcc} offset:{3 * XPI + 7 * 128}', f'v_add_u32 v{vOr}, s{S_BD}, v{vOr}']
        L += [f's_mul_i32 s{S_T3}, s{S_WAVE}, 6', f's_add_u32 s{S_PX}, s{S_PX}, s{S_T3}', f's_mul_i32 s{S_PX}, s{S_PX}, 104',
              f's_add_u32 s{S_PXE}, s{S_PX}, 80', f's_add_u32 s{S_PX}, s{S_PX}, {4 * o.pfx0}',
              f's_mov_b32 s{S_T3}, 10923', f'v_min_u32 v{t3}, 35, v0',
              f'v_mul_u32_u24 v{t4}, s{S_T3}, v{t3}', f'v_lshrrev_b32 v{t4}, 16, v{t4}',
              f'v_mul_u32_u24 v{t4}, {104 - 24}, v{t4}', f'v_lshl_add_u32 v{vPXL}, v{t3}, 2, v{t4}']
        L += self.stamp(14) + (pfw() if o.pf1 == 1 else [])
        L += [f's_cmp_eq_u32 s{S_GRP}, 0', 's_cbranch_scc1 L_g0pf']
        cc = self.seq(L)

        def bread(m, base):
            b = BALL + m * 8
            return [f'ds_read_b64_tr_b16 {vr(b, 2)}, v{vBs0} offset:{base + m * 256}',
                    f'ds_read_b64_tr_b16 {vr(b + 2, 2)}, v{vBs0} offset:{base + m * 256 + 4 * 1352}',
                    f'ds_read_b64_tr_b16 {vr(b + 4, 2)}, v{vBs1a} offset:{base + m * 256}',
                    f'ds_read_b64_tr_b16 {vr(b + 6, 2)}, v{vBs1b} offset:{base + m * 256}']

        def mm6(base, post=lambda m: []):
            c = []
            for m in range(3 if base is not None else 0):
                c += bread(m, base)
            for m in range(6):
                if m + 3 < 6 and base is not None:
                    c += bread(m + 3, base)
                b = BALL + m * 8
                d = DALL + (m % 4) * 16
                c.append(f'v_mfma_f32_32x32x16_bf16 {vr(d, 16)}, {vr(AFR, 4)}, {vr(b, 4)}, 0')
                c.append(f'v_mfma_f32_32x32x16_bf16 {vr(d, 16)}, {vr(AFR + 4, 4)}, {vr(b + 4, 4)}, {vr(d, 16)}')
                if m >= 2:
                    c += post(m - 2)
            return c + post(4) + post(5)

        e1 = [f's_sub_u32 s{S_T0}, s{S_PX}, {24 * 104}', f'buffer_load_dword v{XJ + 4}, v{vPXL}, {srd(SRD_IDX)}, s{S_T0} offen',
              f'buffer_load_dword v{XJ + 5}, v{vPXL}, {srd(SRD_IDX)}, s{S_PX} offen']
        e2 = [f'v_lshlrev_b32 v{XJ + 4}, 7, v{XJ + 4}', f'buffer_load_dword v255, v{XJ + 4}, {srd(SRD_TAB)}, 0 offen',
              f'v_lshlrev_b32 v{XJ + 5}, 7, v{XJ + 5}', f'buffer_load_dword v255, v{XJ + 5}, {srd(SRD_TAB)}, 0 offen']
        if o.nopf & 8:
            e1, e2 = [], []
        xx = xdma() + xdma(XJ, -4 * XBSZ) + xidx()
        gl = [f's_sub_u32 s{S_SAMP}, s{S_SAMP}, {4 * 104}'] + xidx(XJ, 0, False) + [f's_add_u32 s{S_SAMP}, s{S_SAMP}, {4 * 104}'] + xidx()
        gl += e1 + [f's_add_u32 s{S_PX}, s{S_PX}, 24'] + pfx_a()
        L = sig(F_W3) + (gl if not o.g1l else [])
        L += wait(F_W3, 8) + self.stamp(2)
        uc0 = self.seq(L)
        L = []
        for s2 in range(2):
            for rd in range(2):
                L.append(f'ds_read_b64 {vr(AFR + 4 * s2 + 2 * rd, 2)}, v{AD + 10} offset:{s2 * 32 + rd * 8}')
        L += [f'ds_read_u16 v{t5}, v{AD + 11} offset:52']

        def vpost(m):
            p_ = m // 2
            c = [f'v_cvt_pk_bf16_f32 v{V3T + p_}, v{DALL + 16 * (m % 4)}, 0']
            if m % 2:
                c = ['s_mov_b32 exec_lo, 0'] + c + [f's_mov_b64 exec, s[{S_MASK}:{S_MASK + 1}]' if p_ == 2 else 's_mov_b32 exec_lo, -1',
                                                    f'ds_write_b16 v{AD + p_}, v{V3T + p_}']
            return c
        L += mm6(A3 - A2, vpost)
        L += ['s_mov_b64 exec, 0x3ffffff', f'ds_write_b16 v{AD + 12}, v{t5}', 's_mov_b64 exec, -1']
        L += self.stamp(3) + sig(F_V3) + (gl if o.g1l else []) + (pfw() if o.pf1 in (2, 3) and o.epos != 3 else []) + [f'v_cmp_gt_u32 s[{S_MASK}:{S_MASK + 1}], 36, v{vE}']
        L += (e2 if o.epos == 0 else []) + (xx if o.xpos == 0 else []) + (e2 if o.epos == 1 else [])
        L += wait(F_W2, 4) + [bread(m, 0) for m in range(6)] + wait(F_V3, 4) + self.stamp(5) + [f's_setprio {o.uprio}'] + (e2 + (pfw() if o.pf1 in (2, 3) else []) if o.epos == 3 else [])
        for s2 in range(2):
            for rd in range(2):
                L.append(f'ds_read_b64_tr_b16 {vr(AFR + 4 * s2 + 2 * rd, 2)}, v{vA3} offset:{s2 * 1024 + rd * 256}')

        def upost(m):
            d = DALL + 16 * (m % 4)
            c = [f'v_cvt_pk_bf16_f32 v{UP + 8 * m + qq}, v{d + 2 * qq}, v{d + 2 * qq + 1}' for qq in range(8)]
            if m == 5:
                c.append(f's_mov_b64 exec, s[{S_MASK}:{S_MASK + 1}]')
            w_ = [f'ds_write2_b32 v{AD + 4 + m}, v{UP + 8 * m + 2 * a}, v{UP + 8 * m + 2 * a + 1} offset0:{4 * a} offset1:{4 * a + 1}' for a in range(3)]
            return c + interleave(w_, [f'v_max3_f32 v{vMx}, v{vMx}, abs(v{d + 2 * qq}), abs(v{d + 2 * qq + 1})' for qq in range(7)])
        L += mm6(None, upost)
        L.append('s_mov_b32 exec_hi, 0')
        for m in (5, 4, 3, 2, 1, 0):
            L.append(f'ds_write_b32 v{AD + 4 + m}, v{UP + 8 * m + 6} offset:48')
            L.append(f'ds_write_b16 v{vV2w}, v{UP + 8 * m + 7} offset:{m * 256}')
            if m == 5:
                L.append('s_mov_b32 exec_lo, -1')
        L += ['s_mov_b64 exec, -1'] + postmax(vMx, F_U) + [f's_setprio {o.bprio}'] + (xx if o.xpos == 1 else []) + (e2 if o.epos == 2 else []) + self.stamp(6) + ['s_branch L_uph']
        uc = self.seq(L)

        L = ['L_g0pf:'] + stg[o.ccpos:] + [f's_add_u32 s{S_SAMP}, s{S_SAMP}, {8 * 104}', f's_add_u32 s{S_PX}, s{S_PX}, 24'] + xidx() + pfx_a()
        L += (pfw() if o.pf1 in (2, 3) else []) + sig(sB[3], vm_tags=['STG' + sB[0]]) + self.stamp(4) + [f's_mov_b32 s{S_PH}, 0'] + wait(F_W1, 4) + self.stamp(2)
        L += [f's_cmp_ge_u32 s{cw}, 2', 's_cbranch_scc1 L_chunk2']
        g0pf = self.seq(L)

        def chunk(k):
            units = [(n, h) for n in range(12 * k, min(12 * k + 12, 44)) for h in range(2)]
            NB_, BA = 12, o.ba
            reads, maths = [], []
            for ui, (n, h) in enumerate(units):
                a, ha, b, hb = ZD[n][h]
                (fa, ca), (fb, cb) = cls(a, ha), cls(b, hb)
                tb = BT + (ui % NB_) * 2
                dst = SUM + 24 * (k % 2) + ui
                if ca != N_:
                    R = [f'ds_read_u16_d16_hi v{tb}, v{SP1} offset:{54 * 24}', f'ds_read_u16_d16_hi v{tb + 1}, v{SP2} offset:{54 * 24}']
                    M = [f'v_add_f32 v{dst}, v{tb}, v{tb + 1}']
                elif (a, ha) == (b, hb):
                    R = [f'ds_read_u16_d16_hi v{tb}, v{base[(ca, cb)]} offset:{54 * fa}']
                    M = [f'v_mov_b32 v{dst}, v{tb}']
                else:
                    R = [f'ds_read_u16_d16_hi v{tb}, v{base[(ca, cb)]} offset:{52 * fa + 2 * fb}',
                         f'ds_read_u16_d16_hi v{tb + 1}, v{base[(cb, ca)]} offset:{52 * fb + 2 * fa}']
                    M = [f'v_add_f32 v{dst}, v{tb}, v{tb + 1}']
                if ui % 2:
                    M = M + maths[-1] + [f'v_max3_f32 v{vMx}, v{vMx}, abs(v{dst - 1}), abs(v{dst})']
                    maths[-1] = []
                reads.append(R)
                maths.append(M)
            code = []
            nu = len(units)
            for ui in range(nu + BA):
                if ui < nu:
                    code += reads[ui]
                if ui == nu and k == 3:
                    code += [f'ds_read_u16_d16_hi v{LT + e}, v{vL} offset:{8 * e}' for e in range(6)]
                    code += [f'ds_read_u16_d16_hi v{LT + 6}, v{vL6} offset:48', f'ds_read_u16_d16_hi v{LT + 7}, v{vWo}']
                if ui >= BA:
                    code += maths[ui - BA]
            return code
        LT = BT + 8
        assert o.ba <= 8

        def conv(n):
            c = [f'v_fma_mix{"hi" if h else "lo"}_f16 v{OUT + q}, v{SUM + 2 * q + h}, s{S_SC}, 0' for h in range(2) for q in range(4 * n, 4 * n + 4)]
            if o.wr8:
                m_ = (1 << o.wr8) - 1
                c += [f'v_add_u32 v{OUT + q}, {(1 << (o.wr8 - 1)) * 0x10001}, v{OUT + q}' for q in range(4 * n, 4 * n + 4)]
                c += [f'v_and_b32 v{OUT + q}, {0xffffffff ^ (m_ * 0x10001)}, v{OUT + q}' for q in range(4 * n, 4 * n + 4)]
            return c
        wr = lambda n, A: [f'ds_write_b128 v{A}, {vr(OUT + 4 * n, 4)} offset:{n * 1024}']
        ch, chb = [], []
        for k in range(4):
            ch.append(self.seq([f'L_chunk{k}:'] + chunk(k) + [f's_cmp_lg_u32 s{S_PH}, 0', f's_cbranch_scc1 L_uconv{k % 2}']))
            chb.append(self.seq(['s_branch L_w1conv'] if k == 1 else []))
        L = ['L_w1conv:'] + self.stamp(3) + postmax(vMx, F_M)
        L += [f'v_add_u32 v{GB + k}, v{GB + k}, v{vDl}' for k in range(13)]
        L += waitmax(F_M, S_T2, 141) + setsc(S_T2) + self.stamp(5)
        L += conv(0) + conv(1) + wr(0, vWr) + conv(2) + wr(1, vWr) + conv(3) + wr(2, vWr) + conv(4) + wr(3, vWr) + wr(4, vWr)
        L += [f's_cmp_ge_u32 s{cw}, 2', 's_cbranch_scc1 L_w1x']
        w1a = self.seq(L)
        w1b = self.seq(conv(5) + wr(5, vWr))
        w1c = self.seq(['L_w1x:'])
        xbsig = lambda: [WaitTag(vm_tags=['XB']), f'v_mov_b32 v{vF}, s{S_GRP}', f'ds_add_u32 v{vFA}, v{vF} offset:{F_XB}']
        L = ['L_uph:'] + self.stamp(7) + (self.tlb2(vZ, vFl) if o.lb else []) + waitmax(F_U, S_T3, 140) + setsc(S_T3) + self.stamp(12)
        L += [f's_mov_b32 s{S_PH}, 1', f's_lshr_b32 s{S_T1}, s{S_WAVE}, 1',
              f's_cmp_eq_u32 s{S_T1}, 0', 's_cbranch_scc1 L_chunk0', f's_cmp_eq_u32 s{S_T1}, 1', 's_cbranch_scc1 L_chunk1',
              f's_cmp_eq_u32 s{S_T1}, 2', 's_cbranch_scc1 L_chunk2', 's_branch L_chunk3']
        uph = self.seq(L)
        wm1 = lambda: (xbsig() if o.lb else []) + waitmax(F_M, S_T2, 141)
        u0 = self.seq(['L_uconv0:'] + self.stamp(13) + conv(0) + wm1() + wr(0, vWu) + conv(1) + wr(1, vWu) + conv(2) + wr(2, vWu) + ['s_branch L_built'])
        u1a = self.seq(['L_uconv1:'] + self.stamp(13) + conv(3) + wm1() + wr(3, vWu) + conv(4) + wr(4, vWu) + [f's_cmp_lg_u32 s{S_GRP}, 0', 's_cbranch_scc1 L_ulin'])
        u1b = self.seq(conv(5) + wr(5, vWu) + ['s_branch L_built'])
        L = ['L_ulin:'] + [f'v_mul_f32 v{LT + e}, s{S_SC}, v{LT + e}' for e in range(8)]
        L += [f'v_cvt_pk_bf16_f32 v{OUT + 20 + q}, v{LT + 2 * q}, v{LT + 2 * q + 1}' for q in range(4)] + wr(5, vWu)
        u1c = self.seq(L)

        w0x = self.build_srd(SRD_W2, S_W2, 3328) + [f'v_lshlrev_b32 v{FT}, 7, v0', f'buffer_load_dword v255, v{FT}, {srd(SRD_W2)}, 0 offen']

        slot = lambda k: RZ + 4 * (k % 4)
        MF = [('Lb', 0), ('a', 1), ('b', 1), ('d', 1), ('Lc', 0), ('a', 2), ('c', 1), ('b', 2), ('c', 2)]
        for k in range(3, 10):
            MF += ([('S', k)] if k % 2 else []) + [('a', k), ('b', k), ('c', k)]
        MF += [('a', 10), ('b', 10), ('a', 11), ('b', 11), ('c', 10), ('S', 11), ('c', 11)]
        if o.mo == 1:
            MF = [('Lb', 0), ('a', 1), ('d', 1), ('Lc', 0), ('b', 1), ('a', 2), ('c', 1), ('b', 2), ('a', 3), ('c', 2), ('S', 3), ('b', 3), ('c', 3)]
            for k in range(4, 10):
                MF += ([('S', k)] if k % 2 else []) + [('a', k), ('b', k), ('c', k)]
            MF += [('a', 10), ('b', 10), ('c', 10), ('a', 11), ('b', 11), ('S', 11), ('c', 11)]
        if o.mo == 2:
            MF = [('d', 1), ('Lb', 0), ('a', 1), ('Lc', 0), ('b', 1), ('a', 2), ('c', 1), ('b', 2), ('a', 3), ('c', 2), ('S', 3), ('b', 3), ('c', 3)]
            for k in range(4, 12):
                MF += ([('S', k)] if k % 2 else []) + [('a', k), ('b', k), ('c', k)]
        if o.mo == 3:
            MF = [('d', 1), ('Lb', 0), ('b', 1), ('a', 1), ('Lc', 0), ('c', 1)]
            for k in range(2, 12, 2):
                MF += [('c', k), ('c', k + 1), ('S', k + 1), ('a', k), ('a', k + 1), ('b', k), ('b', k + 1)] if k % 4 == 2 and k < 10 else \
                      [('b', k), ('b', k + 1), ('S', k + 1), ('a', k), ('a', k + 1), ('c', k), ('c', k + 1)]
        if o.mo == 4:
            MF = [('Lb', 0), ('b', 1), ('a', 1), ('d', 1), ('Lc', 0), ('c', 1)]
            for k, od in zip(range(2, 12, 2), ('cSab', 'bSca', 'aSbc', 'cSba', 'abSc')):
                for t_ in od:
                    MF += [('S', k + 1)] if t_ == 'S' else [(t_, k), (t_, k + 1)]
        NM = len(MF)
        use = {k: [m for m, (t_, kk) in enumerate(MF) if kk == k or (t_ == 'S' and kk == k + 1)] for k in range(12)}
        pos = lambda t_, k: MF.index((t_, k))

        def mfma(m):
            t_, k = MF[m]
            if t_[0] == 'L':
                d, w = {'b': (Db, WL), 'c': (Dc, WL + 4)}[t_[1]]
                return f'v_mfma_f32_16x16x32_bf16 {vr(d, 4)}, {vr(w, 4)}, {vr(slot(0), 4)}, 0'
            if t_ == 'S':
                return f'v_smfmac_f32_16x16x64_f16 {vr(Ds, 4)}, {vr(WS_ + 2 * (k - 1), 4)}, {vr(slot(k - 1), 8)}, v{vSI}'
            d, w = {'a': (Da, WA), 'b': (Db, WB), 'c': (Dc, WC), 'd': (Ds, WS_)}[t_]
            return f'v_mfma_f32_16x16x32_f16 {vr(d, 4)}, {vr(w + 4 * (k - 1), 4)}, {vr(slot(k), 4)}, {"0" if t_ in "ad" and k == 1 else vr(d, 4)}'

        def wload(m):
            t_, k = MF[m]
            if t_[0] == 'L':
                a, w, off = {'b': (aD, WL, TB), 'c': (aLc, WL + 4, TC)}[t_[1]]
                return [f'ds_read_b128 {vr(w, 4)}, v{a} offset:{off - TA + 11 * 1024}']
            if t_ == 'd':
                return [f'ds_read_b128 {vr(WS_, 4)}, v{FT}']
            if t_ == 'S':
                w = WS_ + 2 * (k - 1)
                return [f'ds_read2_b32 {vr(w, 2)}, v{aS} offset0:0 offset1:2', f'ds_read2_b32 {vr(w + 2, 2)}, v{aS} offset0:64 offset1:66',
                        f'v_add_u32 v{aS}, 2048, v{aS}']
            w, a, off = {'a': (WA, aD, 0), 'b': (WB, aD, TB - TA), 'c': (WC, aC, TC - TA)}[t_]
            return [f'ds_read_b128 {vr(w + 4 * (k - 1), 4)}, v{a} offset:{off + (k - 1) * 1024}']

        def zops(n):
            z = slot(n // 4 + 1) + n % 4
            (a, ha, b, hb), (a2, ha2, b2, hb2) = ZD[n]
            if (a, b) == (a2, b2):
                return [f'v_pk_mul_f16 v{z}, v{X + a}, v{X + b} op_sel:[{ha},{hb}] op_sel_hi:[{ha2},{hb2}]']
            return [f'v_mul_f16_sdwa v{z}, v{X + a}, v{X + b} dst_sel:WORD_0 dst_unused:UNUSED_PAD src0_sel:WORD_{ha} src1_sel:WORD_{hb}',
                    f'v_mul_f16_sdwa v{z}, v{X + a2}, v{X + b2} dst_sel:WORD_1 dst_unused:UNUSED_PRESERVE src0_sel:WORD_{ha2} src1_sel:WORD_{hb2}']

        cvt = lambda d, a, b: f'v_cvt_pk_f16_f32 v{d}, v{a}, v{b}'
        LAT = o.lat

        class It:
            def __init__(s, name, G, code, lo, hi, pre):
                s.name, s.G, s.code, s.lo, s.hi, s.pre, s.at = name, G, code, lo, hi, list(pre), None

        NG = 14
        items = {}

        def add(name, G, code, lo=-10**9, hi=10**9, pre=()):
            items[(name, G)] = It(name, G, code, lo, hi, pre)
        usej = lambda j: [n for n, d in enumerate(ZD) if any(a // 4 == j or b // 4 == j for (a, _, b, _) in d)]
        lastz = {j: max(usej(j)) for j in range(3)}
        for G in range(NG):
            c, b0 = G % 4, G * NM
            for r in range(8):
                add(f'raw{r}', G, f'ds_read_u16_d16_hi v{RAW + r}, v{vRaw} offset:{r * 128 + c * 32}', lo=b0 - o.rspan, hi=b0 - o.rlead,
                    pre=[(f'co{q}', G - 1, 0) for q in range(4)] + ([('swr', G, 0)] if c == 0 else []) + ([('lin1', G - 1, 0)] if o.w2 else []))
            for q in range(4):
                add(f'co{q}', G, cvt(X + q - 1, RAW + q - 1, RAW + q + 2) if q else cvt(X + 3, RAW + 6, RAW + 7), hi=b0 - 4 if not o.w2 else b0 - 9,
                    pre=[(f'raw{r}', G, LAT) for r in range(8)] + [(f'z{lastz[0]}', G - 1, 0)])
            add('wo', G, f'ds_write_b128 v{vXw}, {vr(X, 4)}', hi=b0 - 2 if not o.w2 else b0 - 8, pre=[(f'co{q}', G, 0) for q in range(4)] + [('r2', G - 1, 0)])
            add('r1', G, f'ds_read_b128 {vr(X + 4, 4)}, v{vX1}', hi=b0 if not o.w2 else b0 - 7, pre=[('wo', G, o.wgap)])
            add('r2', G, f'ds_read_b128 {vr(X + 8, 4)}, v{vX2}', hi=b0 + 1 if not o.w2 else b0 - 7, pre=[('r1', G, 0)])
            for q in range(3):
                add(f'al{q}', G, f'v_alignbit_b32 v{X + 8 + q}, v{X + 8 + q}, v{X + 8 + q}, v{vSh}', lo=b0 + min(use[0]) if o.w2 else -10**9, hi=b0 + 20, pre=[('r2', G, LAT)])
            if c == 0:
                add('swr', G, [f'v_add_u32 v{vRaw}, s{S_BD}, v{vRaw}', WaitTag(vm_tags=['XB'])], lo=b0 - o.rspan - 1, hi=b0 - o.rspan - 1,
                    pre=[(f'raw{r}', G - 1, 0) for r in range(8)])
            for p in range(2):
                add(f'lin{p}', G, f'ds_read_b64_tr_b16 {vr(slot(0) + 2 * p, 2)}, v{vLin} offset:{p * 512 + c * 32}',
                    lo=b0 - NM + max(use[8]), hi=b0 + min(use[0]) - 1 - LAT, pre=([('swl', G, 0)] if c == 0 else []) + ([('r2', G, 0)] if o.w2 else []))
            if c == 0:
                add('swl', G, [f's_add_u32 s{S_TW}, s{S_BCUR}, s{S_BD}', f'v_add_u32 v{vLin}, s{S_TW}, v{vLinB}'], lo=b0 - NM + 20, hi=b0 - 12,
                    pre=[(f'lin{p}', G - 1, 0) for p in range(2)])
            for n in range(44):
                k = n // 4 + 1
                js = {x // 4 for (a, _, b, _) in ZD[n] for x in (a, b)}
                pre = [(f'co{q}', G, 0) for q in range(4)] + ([('r1', G, LAT)] if 1 in js else []) + ([(f'al{q}', G, 0) for q in range(3)] if 2 in js else [])
                if n:
                    pre.append((f'z{n - 1}', G, 0))
                if k == 5 and n % 4 < 3:
                    pre.append(('or1', G, 0))
                lo = b0 + max(use[k - 4]) if k >= 4 else b0 - NM + max(use[k + 8])
                if k == 1:
                    lo = max(lo, b0 - o.z1lo)
                zc = zops(n)
                if n == 12:
                    zc = [zops(12)[0], zops(13)[0]]
                if n == 13:
                    zc = [zops(12)[1], zops(13)[1]]
                add(f'z{n}', G, zc, lo=lo, hi=b0 + min(use[k]) - 2, pre=pre)
            s1 = slot(1)
            if c == 1:
                add('or1', G, f'v_or3_b32 v{vOr}, v{s1}, v{s1 + 1}, v{s1 + 2}', hi=b0 + 6, pre=[('z2', G, 0), ('blk', G - 2, 0)])
                add('ck', G, [f'v_and_b32 v{vOr}, 0x60006000, v{vOr}', f'v_cmp_ne_u32 s[{S_CHK}:{S_CHK + 1}], 0, v{vOr}'], hi=b0 + 30, pre=[('or1', G, 0)])
            e = b0 + NM
            rdy = lambda t_: b0 + pos(t_, 11) + o.flo
            for r in range(4):
                add(f'f{r}', G, f'v_{"mul" if c == 0 and r == 0 else "fmac"}_f32 v{vAcc}, v{Da + r}, v{Db + r}', lo=min(max(rdy('a'), rdy('b')), e + pos('Lb', 0) - 1), hi=e + pos('Lb', 0) - 1,
                    pre=[(f'f{r - 1}', G, 0) if r else ('f8', G - 1, 0)] + ([('blk', G - 1, 0)] if c == 0 else []))
            for r in range(2):
                add(f'f{4 + r}', G, f'v_add_f32 v{FT + r}, v{Ds + 2 * r}, v{Ds + 2 * r + 1}', lo=min(rdy('S'), e + pos('d', 1) - 1), hi=e + pos('d', 1) - 1,
                    pre=[('f8', G - 1, 0)] + ([('blk', G - 1, 0)] if c == 0 else []))
            for r, (x, y) in enumerate(((Dc, Dc + 1), (FT, Dc + 2), (FT + 1, Dc + 3))):
                add(f'f{6 + r}', G, f'v_fmac_f32 v{vAcc}, v{x}, v{y}', lo=rdy('c'), hi=e + pos('Lc', 0) - 1, pre=[(f'f{5 + r}', G, 0), ('f3', G, 0), ('f4', G, 0)])
            if c == 3:
                for q, x in enumerate(dppred('v_add_f32', vAcc)):
                    add(f'dp{q}', G, x, hi=e + 7 + 2 * q, pre=[(f'dp{q - 1}', G, 2) if q else ('f8', G, 2)])
                add('blk', G, '@BLK', hi=e + 20, pre=[('dp5', G, 1)])
        order = list(items.values())
        gaps = {}
        isv = lambda x: isinstance(x, str) and x.startswith('v_')
        isl = lambda x: isinstance(x, str) and x.startswith('ds_')
        for gp in range(-NM, NG * NM):
            gaps[gp] = []
            uv = ul = 0
            if o.cw and (gp + 1 - min(use[0])) % NM == 0:
                ul = 1
            if any(it.name == 'wo' for d_ in range(1, o.wgap) for it in gaps.get(gp - d_, [])):
                ul = 2
            while True:
                cand = []
                for it in order:
                    if it.at is not None or it.lo > gp:
                        continue
                    ok = True
                    for (nm, G, dist) in it.pre:
                        p = items.get((nm, G))
                        if p is None:
                            continue
                        if p.at is None or p.at + dist > gp:
                            ok = False
                            break
                    if not ok:
                        continue
                    cv_, cl_ = sum(map(isv, flat([it.code]))), sum(map(isl, flat([it.code]))) * (o.wcost if it.name == 'wo' else 1) + (1 if o.cw and it.name == 'co0' else 0)
                    if it.hi > gp and (uv + cv_ > o.gapv or ul + cl_ > o.gapl or uv + ul + cv_ + cl_ > o.gapt) and cv_ + cl_:
                        continue
                    cand.append((it, cv_, cl_))
                if not cand:
                    break
                it, cv_, cl_ = min(cand, key=lambda x: x[0].hi)
                it.at = gp
                uv += cv_; ul += cl_
                gaps[gp].append(it)
        late = [(it.name, it.G, it.at - it.hi) for it in order if it.at is not None and it.at > it.hi and 4 <= it.G < 12]
        print('late items', late)
        sig_ = lambda G0: [[(it.name, it.G - G0) for it in gaps[G0 * NM + m]] for m in range(4 * NM)]
        assert sig_(4) == sig_(8), 'schedule not periodic'
        for f_ in (isv, isl):
            print('gap load', ''.join(str(sum(sum(map(f_, flat([it.code]))) for it in gaps[4 * NM + m])) + ('|' if m % NM == NM - 1 else '') for m in range(4 * NM)))
        keep = lambda c: [x for x in flat([c]) if not (isinstance(x, str) and any(x.startswith(d) for d in o.drop.split(',') if d))]
        prio = lambda p, lab: [f's_cmp_lg_u32 s{S_GRP}, 0', f's_cbranch_scc1 {lab}', f's_setprio {p}', f'{lab}:'] if o.phi else []

        def sstamp():
            if not (o.stamps and o.itst):
                return []
            return [f's_memtime s[{S_ST}:{S_ST + 1}]', f's_add_u32 s{S_C0}, s{S_LOOP}, 20', 's_waitcnt lgkmcnt(0)',
                    f's_mov_b32 m0, s{S_C0}', f'v_writelane_b32 v252, s{S_ST}, m0']

        pcode = []
        for gp in range(-NM, 4 * NM):
            for it in gaps[gp]:
                if it.G >= 4 and not it.name.startswith(('sw', 'wx')):
                    pcode += flat([it.code])
        PFD = o.pfd
        pfl = pfx_b() + ([] if o.nopf & 16 else pfx_a()) + pfw()
        L = ['L_built:'] + self.stamp(10) + ([] if o.lb else xbsig() + self.tlb2(vZ, vFl))
        L += [f's_add_i32 s{S_EXP}, s{S_T2}, s{S_T3}'] + wait(F_XB, 4) + pcode + (pfl if o.lb < 2 else [])
        L += ['s_waitcnt lgkmcnt(0)', 's_barrier'] + (['s_setprio 1'] if o.phi else ['s_setprio 0']) + self.stamp(8)
        L += [wload(m) for m in range(PFD)] + prio(o.pp0, 'L_prf') + (['s_mov_b32 s100, 15'] if o.gst else [])
        peel2 = None
        for m in range(NM):
            L += [mfma(m)] + (wload(m + PFD) if m + PFD < NM else [])
            for it in gaps[4 * NM + m]:
                if it.code == '@BLK':
                    L += [f'ds_write_b16 v{vOr}, v{vAcc} offset:{3 * XPI + 7 * 128}']
                    L += self.cleared('L_cclr', [f's_and_b32 s{S_TW}, s2, 7'], vFl) + xdma(XI, XB1 - XB0) + (pfl if o.lb == 2 else []) + (pfw() if o.pfp else [])
                    L += [f's_sub_i32 s{S_EXP}, 0, s{S_EXP}', f's_mov_b32 s{S_EXPC}, s{S_EXP}',
                          f's_mov_b32 s{S_PH}, 1', f's_mov_b32 s{S_PREV}, 1', f's_mov_b32 s{S_HALF}, 0']
                    L += [f's_cmp_lg_u32 s{S_WAVE}, 7', 's_cbranch_scc1 L_nw0']
                    peel1 = self.seq(L)
                    peelw = self.seq(w0x)
                    L = ['L_nw0:']
                elif it.G >= 4:
                    L += flat([it.code])
        L += (prio(o.pp1, 'L_prg') if o.pp1 != o.pp0 else []) + [f'ds_add_u32 v{vFA}, v{vOne} offset:{F_PEEL}', 's_branch L_grp1']
        peel2 = self.seq(L)
        prime = self.seq(['L_prime:'] + [f'v_mov_b32 v{r}, 0' for r in range(D, D + 16)] + [f'v_mov_b32 v{FT}, 0', f'v_mov_b32 v{FT + 1}, 0'] + pcode)
        blk_a = ['L_blk:', f's_cmp_eq_u32 s{S_PREV}, 0', 's_cbranch_scc1 L_blkend',
                 f'v_readlane_b32 s{S_TW}, v{vAcc}, 63', f'v_ldexp_f32 v{vAcc}, v{vAcc}, s{S_EXPC}', f'v_and_b32 v{vAcc}, -2, v{vAcc}',
                 f's_cmp_ge_u32 s{S_PREV}, 2', 's_cbranch_scc1 L_good',
                 f's_cmp_eq_u64 s[{S_CHK}:{S_CHK + 1}], 0', 's_cbranch_scc1 L_slow',
                 f's_bfe_u32 s{S_TW}, s{S_TW}, 0x80017', f's_cmp_eq_u32 s{S_TW}, 255', 's_cbranch_scc1 L_slow',
                 'L_good:', 's_mov_b32 exec_lo, 0', 's_mov_b32 exec_hi, 0x80000000',
                 f'buffer_store_dword v{vAcc}, v{vZ}, {srd(SRD_WS)}, s{S_RC} offen sc1', 's_mov_b64 exec, -1',
                 f's_add_u32 s{S_RC}, s{S_RC}, 32', f's_sub_u32 s{S_LOOP}, s{S_LOOP}, 1', f's_cmp_eq_u32 s{S_LOOP}, 0', 's_cbranch_scc1 L_cin_done']
        blk_a += [f's_cmp_eq_u32 s{S_LOOP}, 1', 's_cbranch_scc1 L_lastnext']
        blk_b = xdma() + [f's_add_u32 s{S_SAMP}, s{S_SAMP}, {8 * 104}', f's_cmp_lg_u32 s{S_LOOP}, s{S_TK}', 's_cbranch_scc1 L_nodma']
        blk_t = self.cleared('L_tclr', [f's_lshr_b32 s{S_TW}, s{S_ST0}, 14'], vFl) + [f'v_mov_b32 v{vTk}, 1', 's_mov_b64 exec, 1', f'buffer_atomic_add v{vTk}, v{vZ}, {srd(SRD_WS)}, s{S_ST0} offen sc0',
                 's_mov_b64 exec, -1', f's_mov_b32 s{S_TK}, 8', 's_branch L_nodma',
                 'L_lastnext:', f's_cmp_lt_i32 s{S_DYN}, 0', f's_cselect_b32 s{S_RC}, s{S_RC}, s{S_DYN}']
        hook_a = [f's_cmp_lg_u32 s{S_TK}, 8', 's_cbranch_scc1 L_hk']
        n4 = o.n4
        hook_t = ['s_waitcnt vmcnt(0)', f'v_readfirstlane_b32 s{S_TW}, v{vTk}', f's_mov_b32 s{S_TK}, 0', f's_add_u32 s{S_TW}, s{S_TW}, 1',
                  ] + ([f's_cmp_lt_u32 s{S_TW}, {n4}', 's_cbranch_scc1 L_hky', 's_setprio 0', 'L_hky:'] if o.y1 else []) + [
                  f's_cmp_ge_u32 s{S_TW}, {2 * (512 - PB) - n4}', 's_cbranch_scc1 L_hk',
                  f's_add_u32 s{S_LOOP}, s{S_LOOP}, 1', f's_mov_b32 s{S_DYN}, {5 * 2048}',
                  f's_cmp_lt_u32 s{S_TW}, {n4}', 's_cbranch_scc1 L_hkf',
                  f's_add_u32 s{S_TW}, s{S_TW}, {n4}', f's_and_b32 s{S_SAMP}, s{S_TW}, 1', f's_lshr_b32 s{S_TW}, s{S_TW}, 1', f's_mov_b32 s{S_HALF}, 1',
                  f's_lshl_b32 s{S_SAMP}, s{S_SAMP}, 6', f'v_xor_b32 v{vC16}, s{S_SAMP}, v{vC16}',
                  f's_lshl_b32 s{S_SAMP}, s{S_SAMP}, 5', f's_add_u32 s{S_DYN}, s{S_DYN}, s{S_SAMP}',
                  'L_hkf:', f's_add_u32 s{S_TW}, s{S_TW}, {PB}', f's_lshl_b32 s{S_SAMP}, s{S_TW}, 2', f's_add_u32 s{S_DYN}, s{S_DYN}, s{S_SAMP}',
                  f's_andn2_b32 s{S_SAMP}, s{S_ST0}, 0x3fff', f's_add_u32 s{S_DYN}, s{S_DYN}, s{S_SAMP}',
                  f's_lshr_b32 s{S_SAMP}, s{S_SAMP}, 5', f's_add_u32 s{S_SAMP}, s{S_SAMP}, s{S_TW}', f's_mul_i32 s{S_SAMP}, s{S_SAMP}, 104']
        if o.wgt:
            F_CNT, F_RNK = 40, 44
            blk_b = [f'ds_add_rtn_u32 v{vF}, v{vFA}, v{vOne} offset:{F_CNT}'] + xdma() + [f's_add_u32 s{S_SAMP}, s{S_SAMP}, {8 * 104}',
                     f'v_readfirstlane_b32 s{S_TW}, v{vF}', f's_cmp_lg_u32 s{S_TW}, {o.wgt - 1}', 's_cbranch_scc1 L_nodma']
            allc = [x.replace(f's_bitcmp1_b32 vcc_lo, s{S_TW}', 's_and_b32 vcc_lo, vcc_lo, 0xff') for x in self.cleared('L_tclr', [], vFl)]
            blk_t = allc + [f'v_mov_b32 v{vTk}, 1', f's_mov_b32 s{S_TW}, {6 * 2048}', 's_mov_b64 exec, 1', f'buffer_atomic_add v{vTk}, v{vZ}, {srd(SRD_WS)}, s{S_TW} offen sc0',
                            's_mov_b64 exec, -1', 's_waitcnt vmcnt(0)', f'v_add_u32 v{vTk}, 2, v{vTk}', f'v_max_u32 v{vTk}, 1, v{vTk}',
                            f'ds_write_b32 v{vFA}, v{vTk} offset:{F_RNK}', 's_branch L_nodma'] + blk_t[-3:]
            hook_a = [f's_cmp_lg_u32 s{S_LOOP}, s{S_TK}', 's_cbranch_scc1 L_hk']
            hook_t = wait(F_RNK, 1) + [f'v_readfirstlane_b32 s{S_TW}, v{vF}', f's_mov_b32 s{S_TK}, 0', f's_sub_u32 s{S_TW}, s{S_TW}, 1', f's_min_u32 s{S_TW}, s{S_TW}, 255',
                      f's_lshl_b32 s{S_TW}, s{S_TW}, 2', f's_add_u32 s{S_TW}, s{S_TW}, s{cw}',
                      f's_cmp_ge_u32 s{S_TW}, {8 * (56 - n4)}', 's_cbranch_scc1 L_hk',
                      f's_add_u32 s{S_LOOP}, s{S_LOOP}, 1', f's_mov_b32 s{S_DYN}, {5 * 2048 + 4 * PB}',
                      f's_cmp_lt_u32 s{S_TW}, {8 * n4}', 's_cbranch_scc1 L_hkf',
                      f's_add_u32 s{S_TW}, s{S_TW}, {8 * n4}', f's_and_b32 s{S_SAMP}, s{S_TW}, 1', f's_lshr_b32 s{S_TW}, s{S_TW}, 1', f's_mov_b32 s{S_HALF}, 1',
                      f's_lshl_b32 s{S_SAMP}, s{S_SAMP}, 6', f'v_xor_b32 v{vC16}, s{S_SAMP}, v{vC16}',
                      f's_lshl_b32 s{S_SAMP}, s{S_SAMP}, 5', f's_add_u32 s{S_DYN}, s{S_DYN}, s{S_SAMP}',
                      'L_hkf:', f's_and_b32 s{S_ST0}, s{S_TW}, 7', f's_lshr_b32 s{S_TW}, s{S_TW}, 3',
                      f's_lshl_b32 s{S_SAMP}, s{S_ST0}, 12', f's_add_u32 s{S_SAMP}, s{S_SAMP}, s{S_TW}', f's_lshl_b32 s{S_SAMP}, s{S_SAMP}, 2', f's_add_u32 s{S_DYN}, s{S_DYN}, s{S_SAMP}',
                      f's_lshl_b32 s{S_SAMP}, s{S_ST0}, 9', f's_add_u32 s{S_SAMP}, s{S_SAMP}, s{S_TW}', f's_add_u32 s{S_SAMP}, s{S_SAMP}, {PB}', f's_mul_i32 s{S_SAMP}, s{S_SAMP}, 104']
        hook_b = ['L_hk:'] + xidx(adv=False)
        blk_b2 = ['L_nodma:'] + [f's_add_u32 s{S_BCUR}, s{S_BCUR}, s{S_BD}', f's_sub_u32 s{S_BD}, 0, s{S_BD}', f's_mov_b32 s{S_EXPC}, s{S_EXP}', f's_mov_b32 s{S_PH}, 1',
                  f's_cmp_eq_u32 s{S_PREV}, 3', 's_cbranch_scc1 L_slow2']
        blk_c = ['L_blkend:', f's_mov_b32 s{S_PREV}, s{S_PH}']
        parts = [[], [], [], [], []]
        cur = self.seq(['L_cin_loop:'])
        for m in range(4 * NM):
            if m == NM:
                parts[3] = cur
                cur = self.seq(['L_grp1:'])
            if m == 2 * NM:
                cur += self.seq([f's_cmp_eq_u32 s{S_LOOP}, s{S_HALF}', 's_cbranch_scc1 L_htail'])
                p4h = list(cur)
            if m == o.hook:
                p4a = cur + self.seq(hook_a)
                p4t = self.seq(hook_t)
                cur = self.seq(hook_b)
            if o.y1 and m == o.hook + o.y1:
                cur += self.seq([f's_cmp_eq_u32 s{S_HALF}, 0', 's_cbranch_scc1 L_y1', 's_setprio 1', 'L_y1:'])
            if o.y1 and m == o.hook + o.y2:
                cur += self.seq([f's_cmp_eq_u32 s{S_GRP}, 0', 's_cbranch_scc1 L_y2', 's_setprio 1', 'L_y2:'])
            if o.gst and m % NM == 0:
                cur += self.seq([f's_memtime s[{S_ST}:{S_ST + 1}]', 's_add_u32 s100, s100, 1', 's_min_u32 s100, s100, 31', 's_waitcnt lgkmcnt(0)',
                                 's_mov_b32 m0, s100', f'v_writelane_b32 v253, s{S_ST}, m0'])
            if o.phi and m in (o.phh, o.phi):
                cur += self.seq(prio(0 if m == o.phi else 2, f'L_pr{m}'))
            cur += self.seq([mfma(m % NM)])
            for it in gaps[4 * NM + m]:
                if it.code == '@BLK':
                    if o.pfa:
                        parts[0] = cur + self.seq(sstamp() + ['s_waitcnt vmcnt(0)'])
                        pfp = []
                    else:
                        parts[0] = cur + self.seq(sstamp() + ['s_waitcnt vmcnt(0)', f's_cmp_le_u32 s{S_LOOP}, {o.pfend}', 's_cbranch_scc1 L_blk'])
                        pfp = self.seq(([] if o.nopf & 16 else pfx_b() + pfx_a()) + pfw())
                    parts[1] = self.seq(blk_a)
                    parts[2] = self.seq(blk_b)
                    pbt = self.seq(blk_t)
                    pb2 = self.seq(blk_b2)
                    cur = self.seq(blk_c)
                    if o.pfa:
                        cur += self.seq([f's_cmp_ge_u32 s{S_PW}, {1664 * 3328}', 's_cbranch_scc1 L_npf'])
                        self.seq(pfw())
                        cur += self.seq(['L_npf:'])
                else:
                    cur += self.seq(keep(it.code))
        cur += self.seq([f's_cmp_lg_u32 s{S_LOOP}, 1', 's_cbranch_scc1 L_cin_loop'])
        parts[4] = p4a + cur
        p4x = p4a + p4t + cur
        tail = self.seq([it.code for m in range(NM) for it in gaps[4 * NM + m] if it.G == 3 and it.code != '@BLK'] + ['s_branch L_blk'])
        assert o.hook > 2 * NM and items[('swr', 8)].at >= 6 * NM and items[('swl', 8)].at >= 6 * NM
        htail = self.seq(['L_htail:'] + [it.code for m in range(NM) for it in gaps[6 * NM + m] if it.G == 5] + dppred('v_add_f32', vAcc)
                         + [f'v_add_u32 v{vRaw}, s{S_BD}, v{vRaw}', 's_branch L_blk'])
        Q = RZ
        rows = [(g, r) for g in range(4) for r in range(8)][:31]
        L = ['L_slow:', f'v_subrev_u32 v{vRaw}, s{S_BD}, v{vRaw}', 'L_slow2:', f'v_lshlrev_b32 v{FT}, 1, v0', f'v_add_u32 v{FT + 1}, s{S_BCUR}, v{FT}',
             f's_mul_i32 s{S_TW}, s{S_WAVE}, {XBSZ}', f's_add_u32 s{S_TW}, s{S_TW}, {XSP}',
             f'v_add_u32 v{FT}, s{S_TW}, v{FT}', f'v_add_u32 v{vLin}, s{S_TW}, v{vLinB}']
        L += wait(F_PEEL, 8)
        L += [f'ds_read_u16 v{Q + n}, v{FT + 1} offset:{g * XPI + r * 128}' for n, (g, r) in enumerate(rows)]
        L += [f'v_lshlrev_b32 v{Q + n}, 16, v{Q + n}' for n in range(31)]
        L += absmax(vAcc, list(range(Q, Q + 31))) + dppred('v_max_u32', vAcc)
        L += [f'v_readlane_b32 s{S_TW}, v{vAcc}, 63', f's_lshr_b32 s{S_TW}, s{S_TW}, 23', f's_sub_i32 s{S_TW}, 134, s{S_TW}',
              f's_cmp_le_u32 s{S_TW}, 9', f's_cselect_b32 s{S_PH}, 2, 3', f's_min_i32 s{S_TW}, s{S_TW}, 16',
              f's_lshl_b32 s{S_EXPC}, s{S_TW}, 2', f's_sub_i32 s{S_EXPC}, s{S_EXP}, s{S_EXPC}',
              f's_add_i32 s{S_TW}, s{S_TW}, 127', f's_lshl_b32 s{S_TW}, s{S_TW}, 23', f'v_mov_b32 v{Q + 31}, s{S_TW}']
        L += [f'v_mul_f32 v{Q + n}, s{S_TW}, v{Q + n}' for n in range(31)]
        L += [f'ds_write_b16_d16_hi v{FT + 1}, v{Q + n} offset:{g * XPI + r * 128}' for n, (g, r) in enumerate(rows)]
        L += [f'v_mul_f32 v{Q + n}, s{S_TW}, v{Q + n}' for n in range(32)]
        L += [f'ds_write_b16_d16_hi v{FT}, v{Q + n} offset:{g * XPI + r * 128}' for n, (g, r) in enumerate(rows + [(3, 7)])]
        L += [f's_mov_b32 s{S_PREV}, 0', 's_waitcnt lgkmcnt(0)', 's_branch L_prime']
        slow = self.seq(L)
        fin_ = self.seq(['L_cin_done:'] + self.stamp(9) + self.stamp_flush() + self.padsig() + ['s_endpgm'])
        rest = parts[3] + parts[4]
        full = parts[0] + pfp + parts[1] + parts[2] + pb2 + rest
        nopf = parts[0] + parts[1] + parts[2] + pbt + pb2 + parts[3] + p4x
        last = parts[0] + parts[1] + pb2 + rest
        redo = lambda pf: parts[1][:10] + slow + prime + parts[0] + (pfp if pf else []) + parts[1][:3] + rest
        end_ = tail + parts[1][:-2] + fin_
        main = peel2 + parts[4] + full + full + parts[0] + pfp + redo(1) + full + nopf + parts[0] + redo(0) + nopf + last + tail + redo(0) + end_
        main = main[:-len(end_)] + parts[0] + parts[1] + parts[2] + pb2 + slow[2:] + prime + parts[0] + parts[1][:3] + rest + end_
        hl = parts[3] + p4h + htail
        main2 = peel2 + parts[4] + parts[0] + pfp + redo(1) + full + nopf + parts[0] + parts[1] + pb2 + hl + parts[1][:10] + slow + prime + parts[0] + parts[1][:3] + hl + parts[1][:-2] + fin_
        traces = []
        for w in range(8):
            if w < 4:
                k0 = w & 2
                tr = c0 + g0a + cc + g0pf + ch[k0] + ch[k0 + 1] + chb[k0 + 1] + w1a + ([] if k0 else w1b) + w1c
            else:
                tr = c0 + g1a + cc + uc0 + uc
            k = w >> 1
            tr += uph + ch[k] + (u0 if k % 2 == 0 else u1a + (u1b if k == 1 else u1c))
            for mn in (main, main2):
                traces.append(tr + peel1 + (peelw if w == 7 else []) + mn)
        return traces

    def build(self):
        pro = self.prologue()
        d = self.dnn()
        cs = self.cin()
        rm = self.rem()
        self.seq(['L_end:', 's_endpgm'])
        traces = [pro + c for c in d + cs + rm]
        for t in traces:
            resolve_waits(t)
        for _ in range(2):
            for t in traces:
                resolve_hazards(t)
        hdr = open(os.path.join(os.path.dirname(os.path.abspath(__file__)), 'header.txt')).read()
        txt = hdr + f'; @launch grid=(256,1,1) block=(512,1,1) lds={LDS_TOTAL}\n'
        txt += f'''.amdgcn_target "amdgcn-amd-amdhsa--gfx950"
{DOC}.text
.globl {KNAME}
.p2align 8
.type {KNAME},@function
{KNAME}:
'''
        body_ = self.P.emit()
        if 'wsame' in self.opt.dbg:
            body_ = body_.replace(f's_add_u32 s{S_WSOFF}, s{S_WSOFF}, {32 * 3328}', f's_xor_b32 s{S_WSOFF}, s{S_WSOFF}, 0')
        if 'xsame' in self.opt.dbg:
            import re as _re
            body_ = _re.sub(r'v_lshl_add_u32 v(2[4-9]|3[01]), v(1[6-9]), 7', r'v_lshl_add_u32 v\1, v16, 7', body_)
            body_ = _re.sub(r'v_lshl_add_u32 v(2[4-9]|3[01]), v(2[0-3]), 7', r'v_lshl_add_u32 v\1, v20, 7', body_)
            body_ = _re.sub(r'v_lshl_add_u32 v(2[4-9]|3[01]), v(9[6-9]), 7', r'v_lshl_add_u32 v\1, v96, 7', body_)
            body_ = _re.sub(r'v_lshl_add_u32 v(2[4-9]|3[01]), v(10[0-3]), 7', r'v_lshl_add_u32 v\1, v100, 7', body_)
            body_ = body_.replace('offen offset:12\n', 'offen offset:0\n').replace('offen offset:844\n', 'offen offset:832\n')
            body_ = body_.replace(f's_mov_b32 s{S_IDXOFF}, 28', f's_mov_b32 s{S_IDXOFF}, 0').replace(f's_add_u32 s{S_IDXOFF}, s{S_IDXOFF}, 16', 's_nop 0')
        if self.opt.align:
            for lab in ('L_dnn_loop0:', 'L_dnn_loop1:', 'L_cin_loop:', 'L_epi:'):
                pad = '  s_nop 0\n' if self.opt.align > 100 else ''
                body_ = body_.replace(lab + '\n', f'.p2align {self.opt.align % 100}\n{pad}{lab}\n')
        txt += body_
        txt += f'''.section .rodata,"a"
.p2align 6
.amdhsa_kernel {KNAME}
  .amdhsa_next_free_vgpr 256
  .amdhsa_next_free_sgpr 102
  .amdhsa_accum_offset 256
  .amdhsa_group_segment_fixed_size 0
  .amdhsa_kernarg_size 88
  .amdhsa_user_sgpr_count 2
  .amdhsa_user_sgpr_kernarg_segment_ptr 1
  .amdhsa_system_sgpr_workgroup_id_x 1
  .amdhsa_float_denorm_mode_32 {self.opt.denorm}
.end_amdhsa_kernel
'''
        return txt


def main():
    ap = argparse.ArgumentParser()
    ap.add_argument('-o', default='standalone__deep_cross_xdeepfm__recsys.s')
    ap.add_argument('--stamps', action='store_true')
    ap.add_argument('--padat', default='')
    ap.add_argument('--padmin', type=int, default=0)
    ap.add_argument('--nodma', action='store_true')
    ap.add_argument('--cpf', type=int, default=2)
    ap.add_argument('--coop', type=int, default=1)
    ap.add_argument('--coopw', type=int, default=2)
    ap.add_argument('--tbpos', type=int, default=0)
    ap.add_argument('--dbar3', type=int, default=1)
    ap.add_argument('--tlb', type=int, default=0)
    ap.add_argument('--tlb2', type=int, default=1)
    ap.add_argument('--itst', type=int, default=0)
    ap.add_argument('--diag', type=int, default=0)
    ap.add_argument('--dbg', default='')
    ap.add_argument('--lead3', type=int, default=1)
    ap.add_argument('--morder', type=int, default=0)
    ap.add_argument('--etlb', type=int, default=21)
    ap.add_argument('--lateb', type=int, default=0)
    ap.add_argument('--wfl', default='')
    ap.add_argument('--xfl', default='')
    ap.add_argument('--tag', type=int, default=0)
    ap.add_argument('--idxfirst', type=int, default=1)
    ap.add_argument('--bpos', type=int, default=2)
    ap.add_argument('--sigat', type=int, default=6)
    ap.add_argument('--epx', type=int, default=1)
    ap.add_argument('--denorm', type=int, default=3)
    ap.add_argument('--mprio', type=int, default=0)
    ap.add_argument('--swap', type=int, default=0)
    ap.add_argument('--bov', type=int, default=1)
    ap.add_argument('--rfirst', type=int, default=0)
    ap.add_argument('--g1x', type=int, default=0)
    ap.add_argument('--ldsred', type=int, default=0)
    ap.add_argument('--csnake', type=int, default=0)
    ap.add_argument('--cswap', type=int, default=0)
    ap.add_argument('--align', type=int, default=0)
    ap.add_argument('--c2', type=int, default=0)
    ap.add_argument('--d1', type=int, default=0)
    ap.add_argument('--cstr', type=int, default=3)
    ap.add_argument('--bearly', type=int, default=1)
    ap.add_argument('--w2late', type=int, default=1)
    ap.add_argument('--aov', type=int, default=3)
    ap.add_argument('--upos', type=int, default=1)
    ap.add_argument('--calt', type=int, default=1)
    ap.add_argument('--pfpos', type=int, default=1)
    ap.add_argument('--wlate', type=int, default=0)
    ap.add_argument('--dbar2', type=int, default=0)
    ap.add_argument('--dbar', type=int, default=0)
    ap.add_argument('--pfw', type=int, default=1)
    ap.add_argument('--pfx', type=int, default=3)
    ap.add_argument('--pfx0', type=int, default=4)
    ap.add_argument('--pfs', type=int, default=14)
    ap.add_argument('--dcoopx', type=int, default=1)
    ap.add_argument('--dcx0', type=int, default=0)
    ap.add_argument('--dcxpos', type=int, default=-1)
    ap.add_argument('--pfe0', type=int, default=6)
    ap.add_argument('--pfne', type=int, default=14)
    ap.add_argument('--prio47', type=int, default=0)
    ap.add_argument('--lookahead', type=int, default=5)
    ap.add_argument('--nz', type=int, default=6)
    ap.add_argument('--nwf', type=int, default=8)
    ap.add_argument('--hiat', type=int, default=4)
    ap.add_argument('--wmerge', type=int, default=0)
    ap.add_argument('--gapv', type=int, default=2)
    ap.add_argument('--lat', type=int, default=3)
    ap.add_argument('--spf', type=int, default=0)
    ap.add_argument('--spp', type=int, default=0)
    ap.add_argument('--f0', type=int, default=0)
    ap.add_argument('--tc', type=int, default=0)
    ap.add_argument('--co3', type=int, default=0)
    ap.add_argument('--co2', type=int, default=2)
    ap.add_argument('--dp0', type=int, default=2)
    ap.add_argument('--cyc', default='')
    ap.add_argument('--dpm', type=int, default=3)
    ap.add_argument('--c0l', type=int, default=1)
    ap.add_argument('--g1l', type=int, default=0)
    ap.add_argument('--phh', type=int, default=0)
    ap.add_argument('--wgt', type=int, default=0)
    ap.add_argument('--gs', type=int, default=0)
    ap.add_argument('--t2', type=int, default=0)
    ap.add_argument('--t2g', type=int, default=9)
    ap.add_argument('--lc', type=int, default=0)
    ap.add_argument('--x64', type=int, default=0)
    ap.add_argument('--rv', type=int, default=0)
    ap.add_argument('--rwi', type=int, default=10)
    ap.add_argument('--epoll', type=int, default=2)
    ap.add_argument('--w1s', type=int, default=1)
    ap.add_argument('--cal', type=int, default=-1)
    ap.add_argument('--pfa', type=int, default=1)
    ap.add_argument('--w2e', type=int, default=0)
    ap.add_argument('--rpr', type=int, default=0)
    ap.add_argument('--pr', type=int, default=1)
    ap.add_argument('--y1', type=int, default=0)
    ap.add_argument('--y2', type=int, default=40)
    ap.add_argument('--pp0', type=int, default=2)
    ap.add_argument('--pp1', type=int, default=2)
    ap.add_argument('--w2', type=int, default=1)
    ap.add_argument('--cw', type=int, default=1)
    ap.add_argument('--wgap', type=int, default=2)
    ap.add_argument('--psl', type=int, default=0)
    ap.add_argument('--wr8', type=int, default=0)
    ap.add_argument('--lb', type=int, default=0)
    ap.add_argument('--sym', type=int, default=0)
    ap.add_argument('--n4', type=int, default=20)
    ap.add_argument('--tbl', type=int, default=0)
    ap.add_argument('--nopf', type=int, default=16)
    ap.add_argument('--idx1', type=int, default=1)
    ap.add_argument('--sv', type=int, default=1)
    ap.add_argument('--pb', type=int, default=3)
    ap.add_argument('--dpf', type=int, default=1)
    ap.add_argument('--dpn', type=int, default=3)
    ap.add_argument('--mord', type=int, default=0)
    ap.add_argument('--q0', type=int, default=5)
    ap.add_argument('--q1', type=int, default=7)
    ap.add_argument('--u0', type=int, default=8)
    ap.add_argument('--un', type=int, default=26)
    ap.add_argument('--ro', type=int, default=0)
    ap.add_argument('--dfirst', type=int, default=0)
    ap.add_argument('--er0', type=int, default=0)
    ap.add_argument('--er1', type=int, default=0)
    ap.add_argument('--lg0', type=int, default=0)
    ap.add_argument('--fprio', type=int, default=1)
    ap.add_argument('--lite', type=int, default=0)
    ap.add_argument('--pf1', type=int, default=2)
    ap.add_argument('--amp', type=int, default=0)
    ap.add_argument('--ofl', default='')
    ap.add_argument('--uprio', type=int, default=0)
    ap.add_argument('--ccpos', type=int, default=3)
    ap.add_argument('--s1e', type=int, default=9)
    ap.add_argument('--s2e', type=int, default=0)
    ap.add_argument('--shs', type=int, default=256)
    ap.add_argument('--pfp', type=int, default=1)
    ap.add_argument('--epos', type=int, default=3)
    ap.add_argument('--hook', type=int, default=100)
    ap.add_argument('--rrd', type=int, default=11)
    ap.add_argument('--rdrop', default='')
    ap.add_argument('--pfr', type=int, default=4)
    ap.add_argument('--vin', type=int, default=1)
    ap.add_argument('--rstag', type=int, default=1)
    ap.add_argument('--eprio', type=int, default=1)
    ap.add_argument('--nopk', type=int, default=0)
    ap.add_argument('--w1first', type=int, default=0)
    ap.add_argument('--xpos', type=int, default=1)
    ap.add_argument('--z1lo', type=int, default=40)
    ap.add_argument('--pfend', type=int, default=3)
    ap.add_argument('--gst', type=int, default=0)
    ap.add_argument('--gapl', type=int, default=2)
    ap.add_argument('--gapt', type=int, default=2)
    ap.add_argument('--wcost', type=int, default=2)
    ap.add_argument('--bprio', type=int, default=0)
    ap.add_argument('--c1hi', type=int, default=-8)
    ap.add_argument('--c2hi', type=int, default=12)
    ap.add_argument('--rspan', type=int, default=48)
    ap.add_argument('--rlead', type=int, default=14)
    ap.add_argument('--pfd', type=int, default=16)
    ap.add_argument('--mo', type=int, default=4)
    ap.add_argument('--ba', type=int, default=8)
    ap.add_argument('--sig2', type=int, default=6)
    ap.add_argument('--drop', default='')
    ap.add_argument('--al8', type=int, default=4)
    ap.add_argument('--alph', type=int, default=0)
    ap.add_argument('--almm', type=int, default=0)
    ap.add_argument('--phi', type=int, default=110)
    ap.add_argument('--rawlo', type=int, default=8)
    ap.add_argument('--flo', type=int, default=2)
    opt = ap.parse_args()
    resolve_waits.dbg = 'dup' in opt.dbg
    g = Gen(opt)
    txt = g.build()
    if opt.al8:
        import align8
        rg = []
        if opt.al8 & 1:
            rg.append(('L_cin_loop', 'L_slow'))
        if opt.al8 & 2:
            rg += [('L_dnn_loop0', 'L_dnn_h1'), ('L_dnn_loop1', 'L_epi')]
        if opt.al8 & 4:
            rg += [('L_epi', 'L_dpub'), ('L_repi', 'L_rclr')]
        txt = align8.align(txt, rg, opt.alph, opt.almm)
    if opt.cal >= 0:
        txt = txt.replace('L_cin_loop:\n', '.p2align 6\n' + '  s_nop 0\n' * (opt.cal // 4) + 'L_cin_loop:\n' , 1)
        txt = txt.replace('L_rem:\n', '.p2align 3\nL_rem:\n', 1)
    open(opt.o, 'w').write(txt)
    print('wrote', opt.o, len(txt), 'bytes')


if __name__ == '__main__':
    main()
```

```python
import sys, os, struct, argparse
sys.path.insert(0, os.path.dirname(os.path.abspath(__file__)))
from cinplan import ZD, cls
from asmlib import I, WaitTag, Prog, resolve_waits, resolve_hazards

KNAME = 'standalone__deep_cross_xdeepfm__recsys_kernel'
LDS_TOTAL = 163840

XSLOT = 8192
WR = 4 * XSLOT
WP = 640
WSLOT = 32 * WP
L_BIAS = WR + 6 * WSLOT
L_W2 = L_BIAS + WP
RB = L_W2 + WP
assert RB + 2048 <= LDS_TOTAL
RWR = 131072

ASZ = 35264
A1 = 1024
A2 = A1 + ASZ
A3 = A2 + ASZ
UST = 1356
V3OFF = A3 + ASZ
V2OFF = V3OFF + 2048
L_WCO = V2OFF + 1408
L_FLG = L_WCO + 192
RC = L_FLG + 64
XB0 = RC + 512
XPI = 1056
XBSZ = 4 * XPI
XB1 = A3
TA = A1
TC = TA + 11 * 1024
TD = TC + 12 * 1024
TB = A2
XSP = A1
XCH = XB0 + 8 * XBSZ
OOB = 0x100000
NCLR = 56
NPOOL = 224
assert XCH + 8192 <= LDS_TOTAL and XB0 % 16 == 0 and A2 % 16 == 0 and A3 % 16 == 0 and L_WCO % 16 == 0
assert 8 * XBSZ <= ASZ and TD + 11 * 1024 <= A2

S_WAVE = 3
S_IDX, S_TAB, S_CIN, S_WCO, S_W1, S_B1, S_W2, S_BO, S_OUT, S_DBG, S_WS = 4, 6, 8, 10, 12, 14, 16, 18, 20, 22, 24
S_MB, S_R = 26, 27
SRD_IDX, SRD_TAB, SRD_CIN, SRD_WCO, SRD_W, SRD_B1, SRD_W2, SRD_OUT, SRD_WS, SRD_DBG = 28, 32, 36, 40, 44, 48, 52, 56, 60, 64
S_T0, S_T1, S_T2, S_T3 = 68, 69, 70, 71
S_LOOP, S_IDXOFF, S_WSOFF, S_WMB, S_XM0, S_N0, S_C0, S_CW, S_BOUT, S_TW = 72, 73, 74, 75, 76, 77, 78, 79, 80, 81
S_EX = 82
S_GRP, S_RC = 84, 85
S_ST = 86
S_M26, S_MASK = 90, 92
S_SAMP, S_STG, S_STG9, S_TGT = 94, 95, 96, 97
S_M26B = 98
S_GW = 100
S_TAGT = 0
S_TAG = 1
S_PW = 101
S_PX = 77
S_PXE = 73

GELU_C0 = -2.0 * 0.7978845608028654 * 1.4426950408889634
GELU_C1 = GELU_C0 * 0.044715


def f32hex(x):
    return '0x%08x' % struct.unpack('<I', struct.pack('<f', x))[0]


def vr(a, n):
    return f'v[{a}:{a + n - 1}]' if n > 1 else f'v{a}'


def srd(a):
    return f's[{a}:{a + 3}]'


def flat(gs):
    res = []
    for c in gs:
        if isinstance(c, (tuple, list)):
            res += flat(c)
        else:
            res.append(c)
    return res


def interleave(a, b):
    out = []
    ia = ib = 0
    na, nb = len(a), len(b)
    while ia < na or ib < nb:
        if ib >= nb or (ia < na and ia * nb <= ib * na):
            out.append(a[ia]); ia += 1
        else:
            out.append(b[ib]); ib += 1
    return out


assert all((d * 2521) >> 16 == d // 26 for d in range(800))
assert all((d * 10923) >> 16 == d // 6 for d in range(64))
assert all((d * 1561) >> 16 == d // 42 for d in range(176))


DOC = '''; ---------------------------------------------------------------------------------------------
;
;       V3[h,k]  = sum_g wo[52+g] W3[g,h,k]          V2[i,j] = sum_h wo[26+h] W2[h,i,j]
;       U[i,j,k] = sum_h W2[h,i,j] V3[h,k]
;       g1[i]    = wo[i] + sum_j V2[i,j] x_j + sum_jk U[i,j,k] x_j x_k
;   Both quadratic forms use the 351 distinct products x_j x_k (j<=k) with symmetrised weights on fp16 MFMA
;   (fp32 accumulate).  Range is handled with power-of-two scales derived from the data on every launch:
; Work split per group of 512 samples (32 workgroups): 20 workgroups do 128 x 320 tiles of the DNN GEMM,
;   Partial logits go through d_ws (sc1): the 64-column workgroup resets the slots at its start (announced in
;   d_debug), later polls until every slot is filled, adds up and writes d_out.
; ---------------------------------------------------------------------------------------------
'''


class Gen:
    def __init__(self, opt):
        self.opt = opt
        self.P = Prog()
        self.role = 'x'

    def seq(self, lines):
        return [self.P.add(l) for l in flat(lines)]

    def build_srd(self, dst, ptr, size):
        return [f's_mov_b32 s{dst}, s{ptr}', f's_and_b32 s{dst + 1}, s{ptr + 1}, 0xffff',
                f's_mov_b32 s{dst + 2}, {size}', f's_mov_b32 s{dst + 3}, 0x20000']

    def stamp(self, slot):
        if self.opt.cyc:
            a_, b_ = self.opt.cyc.split(',')
            if f'{self.role}{slot}' == a_:
                return ['s_memtime s[86:87]', 's_waitcnt lgkmcnt(0)', 's_mov_b32 s89, s86']
            if f'{self.role}{slot}' == b_:
                return ['s_memtime s[86:87]', 's_waitcnt lgkmcnt(0)', 's_sub_u32 s88, s86, s89' if a_ != 'go' else 's_sub_u32 s88, s86, s88']
        if self.opt.padat == f'{self.role}{slot}':
            return [f's_memrealtime s[88:89]', 's_waitcnt lgkmcnt(0)']
        if not self.opt.stamps or (self.opt.lite and f'{self.role}{slot}' not in ('c8', 'c9', 'd2', 'd4', 'r2', 'r4', 'r5')):
            return []
        return [f's_memtime s[{S_ST}:{S_ST + 1}]', f's_memrealtime s[{S_ST + 2}:{S_ST + 3}]', 's_waitcnt lgkmcnt(0)',
                f'v_writelane_b32 v252, s{S_ST}, {slot}', f'v_writelane_b32 v253, s{S_ST + 2}, {slot}']

    def stamp_flush(self):
        if not self.opt.stamps:
            return []
        L = self.build_srd(SRD_WS, S_WS, 0x10000000)
        L += [f's_lshl_b32 s{S_C0}, s2, 3', f's_add_u32 s{S_C0}, s{S_C0}, s{S_WAVE}',
              f's_lshl_b32 s{S_C0}, s{S_C0}, 8', f's_add_u32 s{S_C0}, s{S_C0}, 0x100000',
              'v_lshlrev_b32 v254, 3, v0', 's_mov_b32 exec_hi, 0',
              f'buffer_store_dwordx2 v[252:253], v254, {srd(SRD_WS)}, s{S_C0} offen', 's_mov_b32 exec_hi, -1']
        return L

    def stamp0(self):
        if not self.opt.stamps:
            return self.stamp(15)
        return ['v_mov_b32 v252, 0xcdcdcdcd', 'v_mov_b32 v253, 0xcdcdcdcd',
                f'v_writelane_b32 v252, s{S_ST}, 0', f'v_writelane_b32 v253, s{S_ST + 2}, 0'] + self.stamp(15)

    def tlb2(self, t, vflag):
        L = self.build_srd(SRD_WS, S_WS, 0x10000000) + self.build_srd(SRD_DBG, S_DBG, 256)
        L += [f'v_lshlrev_b32 v{t}, 2, v0',
              ('s_mov_b64 exec, 0xff', f's_mov_b32 s{S_TW}, 0x80000',
               f'buffer_load_dword v255, v{t}, {srd(SRD_WS)}, s{S_TW} offen',
               f'buffer_load_dword v{vflag}, v{t}, {srd(SRD_DBG)}, 0 offen offset:128 sc1',
               's_mov_b64 exec, -1'), f'v_mov_b32 v{t}, 0']
        return L

    def cleared(self, lab, grp, vflag):
        chk = [f'v_cmp_eq_u32 vcc, 0, v{vflag}', f's_bitcmp1_b32 vcc_lo, s{S_TW}']
        return grp + chk + [f's_cbranch_scc0 {lab}_ok', f's_mov_b32 s{S_C0}, 0x40000',
                f'{lab}:', f's_sub_u32 s{S_C0}, s{S_C0}, 1', f's_cbranch_scc1 {lab}_ok', f'v_lshlrev_b32 v{vflag}, 2, v0', f'v_and_b32 v{vflag}, 31, v{vflag}',
                f'buffer_load_dword v{vflag}, v{vflag}, {srd(SRD_DBG)}, 0 offen offset:128 sc1', 's_waitcnt vmcnt(0)'] + chk + [f's_cbranch_scc1 {lab}', f'{lab}_ok:']

    def padsig(self):
        o = self.opt
        if not o.padat:
            return []
        pre = ['v_mov_b32 v8, 4']
        if (o.padat[0] if o.padat != 'start' else 'd') != self.role:
            return pre
        return pre + [f's_cmp_lg_u32 s{S_WAVE}, {o.padw}', 's_cbranch_scc1 L_nosig'] + ([f's_not_b32 s88, s88'] if o.padmin else []) + ['v_mov_b32 v7, s88', 's_mov_b64 exec, 1',
                f'buffer_atomic_umax v7, v8, {srd(SRD_DBG)}, 0 offen', 's_mov_b64 exec, -1', 'L_nosig:']

    def tlb1(self, vtmp, vdst):
        if not self.opt.etlb:
            return self.build_srd(SRD_TAB, S_TAB, 100000 * 128)
        return self.build_srd(SRD_TAB, S_TAB, 100000 * 128) + [
            f'v_mov_b32 v{vtmp}, s{S_BOUT}', f'buffer_load_dword v{vdst}, v{vtmp}, {srd(SRD_TAB)}, 0 offen']

    def prologue(self):
        L = []
        if self.opt.cyc.startswith('go'):
            L += ['s_memtime s[88:89]']
        elif self.opt.padat == 'start' or self.opt.amp in (1, 2, 3):
            L += ['s_memrealtime s[88:89]']
        elif self.opt.padat:
            L += [f's_mov_b32 s88, {-1 if self.opt.padmin else 0}']
        if self.opt.stamps:
            L += [f's_memtime s[{S_ST}:{S_ST + 1}]', f's_memrealtime s[{S_ST + 2}:{S_ST + 3}]']
        L += ['s_cmp_ge_u32 s2, 256', 's_cbranch_scc1 L_end',
              's_load_dwordx16 s[4:19], s[0:1], 0',
              's_load_dwordx4 s[20:23], s[0:1], 64',
              's_load_dwordx2 s[24:25], s[0:1], 80',
              'v_lshrrev_b32 v1, 6, v0']
        if self.opt.cpf:
            L += [f's_getpc_b64 s[{S_MASK}:{S_MASK + 1}]', 'L_pc:',
                  f's_and_b32 s{S_T0}, s2, 0xf8', f'v_add_u32 v2, s{S_T0}, v1', 'v_lshlrev_b32 v2, 7, v2'] + (['v_and_b32 v3, 1, v0', 'v_lshl_add_u32 v2, v3, 15, v2'] if self.opt.cpf == 2 else []) + [
                  f'v_min_u32 v2, L_end-L_pc, v2',
                  f'v_mov_b32 v3, s{S_MASK + 1}',
                  f'v_add_co_u32 v2, vcc, s{S_MASK}, v2', 'v_addc_co_u32 v3, vcc, 0, v3, vcc',
                  'global_load_dword v255, v[2:3], off']
        L += ['v_and_b32 v0, 63, v0',
              f'v_readfirstlane_b32 s{S_WAVE}, v1',
              f's_and_b32 s{S_T0}, s2, 7', f's_lshl_b32 s{S_T0}, s{S_T0}, 2',
              f's_lshr_b32 s{S_MB}, s2, 6', f's_add_u32 s{S_MB}, s{S_MB}, s{S_T0}',
              f's_bfe_u32 s{S_R}, s2, 0x30003',
              f's_and_b32 s{S_BOUT}, s2, 0xf8', f's_add_u32 s{S_BOUT}, s{S_BOUT}, s{S_WAVE}', f's_lshl_b32 s{S_BOUT}, s{S_BOUT}, {self.opt.etlb}',
              f's_lshr_b32 s{S_T0}, s2, 3', f's_cmp_eq_u32 s{S_T0}, 5', 's_cbranch_scc1 L_rem',
              f's_cmp_ge_u32 s{S_R}, 5', 's_cbranch_scc1 L_cin']
        return self.seq(L)

    def gelu(self, groups, TB, KC0, KC1, KONE, seen=()):
        p2 = lambda r: vr(r, 2)
        L = []
        seen = set(seen)
        for k, vals in enumerate(groups):
            tb = TB + (k % 2) * 16
            V_ = [(x, w, s_, tb + 4 * i_, tb + 4 * i_ + 2) for i_, (x, w, s_) in enumerate(vals)]
            for (x, w, s_, t, u) in V_:
                L.append(f'v_pk_mul_f32 {p2(t)}, {p2(x)}, {p2(x)}')
            for (x, w, s_, t, u) in V_:
                L.append(f'v_pk_fma_f32 {p2(t)}, {p2(t)}, {p2(KC1)}, {p2(KC0)}')
            for (x, w, s_, t, u) in V_:
                L.append(f'v_pk_mul_f32 {p2(t)}, {p2(t)}, {p2(x)}')
            for (x, w, s_, t, u) in V_:
                L += [f'v_exp_f32 v{t}, v{t}', f'v_exp_f32 v{t + 1}, v{t + 1}']
            for (x, w, s_, t, u) in V_:
                L.append(f'v_pk_fma_f32 {p2(t)}, {p2(t)}, {p2(w)}, {p2(w)}')
            for (x, w, s_, t, u) in V_:
                L += [f'v_rcp_f32 v{t}, v{t}', f'v_rcp_f32 v{t + 1}, v{t + 1}']
            for (x, w, s_, t, u) in V_:
                if s_ in seen:
                    L.append(f'v_pk_fma_f32 {p2(s_)}, {p2(t)}, {p2(x)}, {p2(s_)}')
                else:
                    L.append(f'v_pk_mul_f32 {p2(s_)}, {p2(t)}, {p2(x)}')
                    seen.add(s_)
        if self.opt.nopk:
            import re as _re
            L2 = []
            for x in L:
                if x.startswith('v_pk_'):
                    mn = x.split()[0].replace('v_pk_', 'v_')
                    rs = [int(r) for r in _re.findall(r'v\[(\d+):', x)]
                    L2 += [f'{mn} ' + ', '.join(f'v{r + h}' for r in rs) for h in range(2)]
                else:
                    L2.append(x)
            L = L2
        return L

    def gelu2(self, groups, TB, KC0, KC1, KSH, seen=()):
        p2 = lambda r: vr(r, 2)
        L = []
        seen = set(seen)
        for k, vals in enumerate(groups):
            tb = TB + (k % 2) * 24
            H = [(x + 2 * d, tb + 6 * i_ + 2 * d, k0[d], k1[d]) for i_, (x, k0, k1, s_) in enumerate(vals) for d in range(2)]
            F = [(x, tb + 6 * i_, s_) for i_, (x, k0, k1, s_) in enumerate(vals)]
            L += [f'v_pk_mul_f32 {p2(t)}, {p2(x)}, {p2(x)}' for (x, t, k0, k1) in H]
            L += [f'v_pk_fma_f32 {p2(t)}, {p2(t)}, {p2(KC1)}, {p2(KC0)}' for (x, t, k0, k1) in H]
            L += [f'v_pk_fma_f32 {p2(t)}, {p2(t)}, {p2(x)}, {p2(KSH)}' for (x, t, k0, k1) in H]
            L += [f'v_exp_f32 v{t + h}, v{t + h} clamp' for (x, t, k0, k1) in H for h in range(2)]
            L += [f'v_pk_fma_f32 {p2(t)}, {p2(t)}, {p2(k1)}, {p2(k0)}' for (x, t, k0, k1) in H]
            L += [f'v_pk_mul_f32 {p2(t + 4)}, {p2(x)}, {p2(t + 2)}' for (x, t, s_) in F]
            L += [f'v_pk_fma_f32 {p2(t + 4)}, {p2(x + 2)}, {p2(t)}, {p2(t + 4)}' for (x, t, s_) in F]
            L += [f'v_pk_mul_f32 {p2(t)}, {p2(t)}, {p2(t + 2)}' for (x, t, s_) in F]
            L += [f'v_rcp_f32 v{t + h}, v{t + h}' for (x, t, s_) in F for h in range(2)]
            for (x, t, s_) in F:
                L.append(f'v_pk_fma_f32 {p2(s_)}, {p2(t)}, {p2(t + 4)}, {p2(s_)}' if s_ in seen else f'v_pk_mul_f32 {p2(s_)}, {p2(t)}, {p2(t + 4)}')
                seen.add(s_)
        return L

    def winv2(self, R, n, K1, KL, SC):
        L = [f'v_mov_b32 v{SC}, 0x21800000', f'v_mov_b32 v{KL}, 0x30800000']
        L += [f'v_max3_f32 v{SC}, v{SC}, abs(v{R + k}), abs(v{R + k + 1})' for k in range(0, n, 2)]
        L += [f'v_and_b32 v{SC}, 0x7f800000, v{SC}', f'v_mul_f32 v{SC}, 0x22000000, v{SC}']
        L += [f'v_rcp_f32 v{R + k}, v{R + k}' for k in range(n)] + [f'v_mul_f32 v{R + k}, v{SC}, v{R + k}' for k in range(n)]
        L += [f'v_med3_f32 v{R + k}, v{R + k}, -v{KL}, v{KL}' for k in range(n)] + [f'v_mul_f32 v{K1[k]}, 0x6c800000, v{R + k}' for k in range(n)]
        return L

    def red4(self, SUMP, SC=None):
        sm = lambda tm: SUMP + 2 * tm
        L = [f'v_add_f32 v{sm(tm)}, v{sm(tm)}, v{sm(tm) + 1}' for tm in range(4)]
        if SC is not None:
            L += [f'v_mul_f32 v{sm(tm)}, v{SC}, v{sm(tm)}' for tm in range(4)]
        L += [f'v_permlane32_swap_b32 v{sm(tm)}, v{sm(tm + 2)}' for tm in range(2)]
        L += [f'v_add_f32 v{sm(tm)}, v{sm(tm)}, v{sm(tm + 2)}' for tm in range(2)]
        L += [f'v_permlane16_swap_b32 v{sm(0)}, v{sm(1)}', f'v_add_f32 v{sm(0)}, v{sm(0)}, v{sm(1)}']
        return L

    def kconst(self, KC0, KC1, KONE, pr=None):
        return [f'v_mov_b32 v{KC0}, {f32hex(GELU_C0)}', f'v_mov_b32 v{KC0 + 1}, {f32hex(GELU_C0)}',
                f'v_mov_b32 v{KC1}, {f32hex(GELU_C1)}', f'v_mov_b32 v{KC1 + 1}, {f32hex(GELU_C1)}',
                ] + ([f'v_mov_b32 v{KONE}, 0x71800000'] if not (self.opt.pr if pr is None else pr) else [f'v_mov_b32 v{KONE}, {f32hex(-90.0)}', f'v_mov_b32 v{KONE + 1}, {f32hex(-90.0)}'])

    def winv(self, R, n, KONE):
        return [f'v_rcp_f32 v{R + k}, v{R + k}' for k in range(n)] + [f'v_med3_f32 v{R + k}, v{R + k}, -v{KONE}, v{KONE}' for k in range(n)]

    def dnn(self):
        o = self.opt
        self.role = 'd'
        vW = [[1, 2, 3, 4, 5], [6, 7, 8, 9, 10]]
        vX = [11, 12]
        vIdxOff, vCh = 13, [14, 15]
        ST = [[16, 20], [24, 240]]
        VO = [28, 34]
        vWD = [29, 30, 31, 32, 33]
        vP, vPc, vBL = 35, 36, 37
        WF = 40
        XA = 80
        T = 44
        W2F = 112
        ACC = 140
        PK = 220
        SUMP, KC0, KC1, KONE = 16, 232, 234, 236

        def acc(tn, tm):
            return ACC + (tn * 4 + tm) * 4

        HH, SL = S_T0, S_T1
        g, i4, q = T + 18, T + 19, T + 20
        PI, vCW = T + 8, T + 12
        nr = o.coopw
        L = [f's_mul_i32 s{S_N0}, s{S_R}, {WP}',
             f's_mul_i32 s{S_T2}, s{S_WAVE}, 7', f'v_min_u32 v{q}, 6, v0', f'v_add_u32 v{q}, s{S_T2}, v{q}', f'v_min_u32 v{q}, 51, v{q}',
             f'v_lshrrev_b32 v{g}, 1, v{q}', f'v_mul_u32_u24 v{g}, 96, v{g}', f'v_lshl_add_u32 v{q}, v{q}, 2, v{g}',
             f's_mul_i32 s{S_C0}, s{S_R}, 26', f's_min_u32 s{S_C0}, s{S_C0}, 102', f's_lshl_b32 s{S_T3}, s{S_MB}, 7',
             f's_add_u32 s{S_C0}, s{S_C0}, s{S_T3}', f's_mul_i32 s{S_C0}, s{S_C0}, 104',
             f's_and_b32 s{S_T2}, s{S_MB}, 3', f's_lshl_b32 s{S_T2}, s{S_T2}, 3', f's_add_u32 s{S_T2}, s{S_T2}, s{S_WAVE}',
             f's_mul_i32 s{S_T2}, s{S_T2}, 3328', f's_add_u32 s{S_TW}, s{S_T2}, s{S_N0}',
             f'v_min_u32 v{vCW}, {8 * nr - 1}, v0', f'v_lshrrev_b32 v{g}, 3, v{vCW}', f's_mov_b32 s{S_T2}, {32 * 3328}',
             f'v_mul_u32_u24 v{g}, s{S_T2}, v{g}',
             f'v_and_b32 v{vCW}, 7, v{vCW}', f'v_min_u32 v{vCW}, 4, v{vCW}', f'v_lshl_add_u32 v{vCW}, v{vCW}, 7, v{g}',
             f's_xor_b32 s{S_T2}, s{S_WAVE}, 4', f's_lshl_b32 s{S_T2}, s{S_T2}, 4', f's_add_u32 s{S_T2}, s{S_T2}, s{S_T3}',
              f'v_lshrrev_b32 v{T + 16}, 3, v0', f'v_add_u32 v{T + 16}, s{S_T2}, v{T + 16}',
              f'v_mul_u32_u24 v{vIdxOff}, 104, v{T + 16}',
             's_waitcnt lgkmcnt(0)']
        L += self.build_srd(SRD_IDX, S_IDX, 4096 * 104)
        own = [f'buffer_load_dwordx2 {vr(T + 4 * pc, 2)}, v{vIdxOff}, {srd(SRD_IDX)}, 0 offen offset:{pc * 832}' for pc in range(2)]
        L += (own if o.idx1 == 2 else []) + [f'buffer_load_dwordx3 {vr(PI, 3)}, v{q}, {srd(SRD_IDX)}, s{S_C0} offen'] + (own if o.idx1 == 1 else []) + ([f'buffer_load_dword v{T + 14}, v{q}, {srd(SRD_IDX)}, s{S_C0} offen offset:16'] if o.tc else [])
        L += self.tlb1(T + 24, 255)
        vec = lambda dst, sr: [f's_mov_b32 m0, {dst}', 's_mov_b32 exec_hi, 0xff',
                               I(f'buffer_load_dwordx4 v{vBL}, {srd(sr)}, s{S_N0} offen lds', tag='BIAS'), 's_mov_b64 exec, -1']
        L += [f'v_lshlrev_b32 v{vBL}, 4, v0'] + self.build_srd(SRD_B1, S_B1, 3328)
        L += self.build_srd(SRD_W, S_W1, 1664 * 3328)
        L += [f'buffer_load_dword v255, v{vCW}, {srd(SRD_W)}, s{S_TW} offen']
        spf = []
        if o.spf:
            L += [f's_add_u32 s90, s{S_W1}, s{S_TW}', f's_addc_u32 s91, s{S_W1 + 1}, 0']
            st0, nst, two = o.spf // 100, o.spf // 10 % 10, o.spf % 10
            spf = [f's_load_dword s92, s[90:91], {(64 * st_ + 32 * k) * 3328 + 128 * ln + 64 * hh}' for st_ in range(st0, st0 + nst) for k in range(2) for ln in range(5) for hh in range(two)]
        if o.co2:
            L += [f'v_mov_b32 v{T + 13}, v{vCW}', f's_add_u32 s85, s{S_TW}, {64 * 3328}']
        co2 = [f'buffer_load_dword v255, v{T + 13}, {srd(SRD_W)}, s85 offen', f's_add_u32 s85, s85, {64 * 3328}']
        dpf = [f's_mul_i32 s{S_TW}, s{S_MB}, 5', f's_add_u32 s{S_TW}, s{S_TW}, s{S_R}', f's_lshl_b32 s{S_TW}, s{S_TW}, 3', f's_add_u32 s{S_TW}, s{S_TW}, s{S_WAVE}',
               f's_add_u32 s{S_TW}, s{S_TW}, {o.dp0 * 832}', f's_lshl_b32 s{S_TW}, s{S_TW}, 7', f'v_min_u32 v{vCW}, {o.dpn - 1}, v0', f'v_mul_u32_u24 v{vCW}, {1280 * 128}, v{vCW}',
               f'buffer_load_dword v255, v{vCW}, {srd(SRD_W)}, s{S_TW} offen']
        dp2 = [x.replace(f', {2 * 832}', f', {2 * 832 + o.dpn * 1280}').replace(f'v_min_u32 v{vCW}, {o.dpn - 1},', f'v_min_u32 v{vCW}, {o.dpm - 1},') for x in dpf]
        L += vec(L_BIAS, SRD_B1) + (self.build_srd(SRD_W2, S_W2, 3328) + vec(L_W2, SRD_W2) if o.w2e else []) + (dpf if o.dpf in (1, 3, 4) else []) + (spf if o.spp == 0 else [])
        L += self.stamp0()
        L += [f's_lshr_b32 s{HH}, s{S_WAVE}, 2', f's_and_b32 s{SL}, s{S_WAVE}, 3',
              f's_mov_b32 s{S_T2}, 1639', f's_and_b32 s{S_C0}, s{SL}, 1', f's_lshl_b32 s{S_C0}, s{S_C0}, 2',
              f's_mov_b32 s{S_TW}, 3328', f'v_mov_b32 v{T + 16}, v0']
        for u in range(5):
            ci, rr = T + 16, T + 17
            L += [f'v_mul_u32_u24 v{rr}, s{S_T2}, v{ci}', f'v_lshrrev_b32 v{rr}, 16, v{rr}',
                  f'v_mul_u32_u24 v{q}, 40, v{rr}', f'v_sub_u32 v{q}, v{ci}, v{q}',
                  f'v_and_b32 v{i4}, 2, v{rr}', f'v_or_b32 v{i4}, s{S_C0}, v{i4}', f'v_xor_b32 v{q}, v{q}, v{i4}',
                  f'v_mul_u32_u24 v{rr}, s{S_TW}, v{rr}', f'v_lshl_add_u32 v{vWD[u]}, v{q}, 4, v{rr}']
            if u % 4:
                L += [f'v_subrev_u32 v{vWD[u]}, {1024 * u}, v{vWD[u]}']
            if u < 4:
                L += [f'v_add_u32 v{ci}, 64, v{ci}']
        L += [f's_mul_i32 s{S_T2}, s{S_WAVE}, {8 * 3328}', f's_add_u32 s{S_WSOFF}, s{S_T2}, s{S_N0}',
              f's_mul_i32 s{S_WMB}, s{S_WAVE}, {8 * WP}', f's_add_u32 s{S_WMB}, s{S_WMB}, {WR}',
              f's_lshl_b32 s{S_T3}, s{HH}, 14', f's_lshl_b32 s{S_XM0}, s{SL}, 11', f's_add_u32 s{S_XM0}, s{S_XM0}, s{S_T3}', f's_xor_b32 s{S_XM0}, s{S_XM0}, {2 * XSLOT}',
              f'v_and_b32 v{q}, 7, v0', f'v_lshrrev_b32 v{g}, 4, v0',
              f'v_xor_b32 v{q}, v{q}, v{g}', f'v_lshlrev_b32 v{vCh[0]}, 4, v{q}',
              f'v_xor_b32 v{vCh[1]}, 64, v{vCh[0]}']
        LAB = L
        L = [f'v_and_b32 v{q}, 15, v0', f'v_lshlrev_b32 v{q}, 7, v{q}', f's_lshl_b32 s{S_T3}, s{HH}, 14',
              f'v_bfe_u32 v{i4}, v0, 1, 3', f'v_xor_b32 v{i4}, v{i4}, v{g}', f'v_lshl_add_u32 v{q}, v{i4}, 4, v{q}',
              f'v_add_u32 v{vX[0]}, s{S_T3}, v{q}', f'v_xor_b32 v{vX[1]}, 64, v{vX[0]}']
        L += self.build_srd(SRD_W2, S_W2, 3328)
        L += [f's_mul_i32 s{S_T3}, s{SL}, 5',
              f'v_bfe_u32 v{i4}, v0, 2, 2', f'v_lshl_add_u32 v{q}, v{g}, 3, v{i4}', f'v_mul_u32_u24 v{q}, {WP}, v{q}',
              f'v_and_b32 v{i4}, 3, v0', f'v_lshl_add_u32 v{q}, v{i4}, 3, v{q}', f'v_add_u32 v{q}, {WR}, v{q}',
              f'v_bfe_u32 v{i4}, v0, 3, 2']
        for i in range(5):
            L += [f'v_xor_b32 v{T + 16}, s{S_T3}, v{i4}', f'v_lshl_add_u32 v{vW[0][i]}, v{T + 16}, 5, v{q}',
                  f'v_add_u32 v{vW[1][i]}, {3 * WSLOT}, v{vW[0][i]}', f's_add_u32 s{S_T3}, s{S_T3}, 1']
        L += [f's_mul_i32 s{S_T3}, s{SL}, 160', f's_add_u32 s{S_T3}, s{S_T3}, {L_BIAS}',
              f'v_lshlrev_b32 v{q}, 3, v{g}', f'v_add_u32 v{vP}, s{S_T3}, v{q}',
              f's_lshl_b32 s{S_T2}, s{SL}, 1', f's_add_u32 s{S_T2}, s{S_T2}, s{HH}', f's_lshl_b32 s{S_T2}, s{S_T2}, 8', f's_add_u32 s{S_T2}, s{S_T2}, {RB}',
              f'v_lshlrev_b32 v{vPc}, 2, v0', f'v_add_u32 v{vPc}, s{S_T2}, v{vPc}']
        LC, L = (L, LAB) if o.lc else ([], LAB + L)

        def wld(u):
            return I(f'buffer_load_dwordx4 v{vWD[u]}, {srd(SRD_W)}, s{S_WSOFF} offen offset:{1024 * (u % 4)}{o.wfl} lds', tag='W')

        def wst(stage):
            return [(f's_add_u32 m0, s{S_WMB}, {(stage % 3) * 2 * WSLOT}', wld(0)), (wld(1),), (wld(2),), (wld(3),),
                    ('s_add_u32 m0, m0, 4096', wld(4), f's_add_u32 s{S_WSOFF}, s{S_WSOFF}, {64 * 3328}')]

        def xld(v, m0, tag='X'):
            return (m0, I(f'buffer_load_dwordx4 v{v}, {srd(SRD_TAB)}, 0 offen{o.xfl} lds', tag=tag))
        pkreads = lambda off: [f'ds_read_b64 {vr(PK + 2 * tn, 2)}, v{vP} offset:{off + 32 * tn}' for tn in range(5)]

        def unp(dst):
            c = []
            for tn in range(5):
                for d in range(2):
                    c += [f'v_lshlrev_b32 v{dst(tn) + 2 * d}, 16, v{PK + 2 * tn + d}', f'v_and_b32 v{dst(tn) + 2 * d + 1}, 0xffff0000, v{PK + 2 * tn + d}']
            return c

        def reads(st):
            def rdw(tn):
                c = []
                for par in range(2):
                    sl = (st % 3) * 2 + par
                    c += [f'ds_read_b64_tr_b16 {vr(WF + 8 * tn + 4 * par + 2 * rd, 2)}, v{vW[sl // 3][tn]} offset:{(sl % 3) * WSLOT + rd * 4 * WP}' for rd in range(2)]
                return c
            rdx = [f'ds_read_b128 {vr(XA + 8 * tm + 4 * par, 4)}, v{vX[par]} offset:{(st % 2) * XSLOT + tm * 2048}' for tm in range(4) for par in range(2)]
            if o.x64:
                rdx = [f'ds_read_b64 {vr(XA + 8 * tm + 4 * par + 2 * h, 2)}, v{vX[par]} offset:{(st % 2) * XSLOT + tm * 2048 + 8 * h}' for tm in range(4) for par in range(2) for h in range(2)]
            return rdw(0) + rdw(1) + rdw(2) + rdw(3) + rdx + rdw(4) if o.ro == 0 else rdw(0) + rdx + rdw(1) + rdw(2) + rdw(3) + rdw(4)

        def xst(src, f, tag='X'):
            vo = lambda pc: (f'v_lshl_add_u32 v{VO[pc]}, v{src(pc)}, 7, v{vCh[pc]}',)
            return [vo(1) + vo(0) + xld(VO[0], f's_add_u32 m0, s{S_XM0}, {(f % 2) * XSLOT}', tag), xld(VO[1], 's_add_u32 m0, m0, 1024', tag)]
        idxl = lambda k: [f'buffer_load_dwordx3 {vr(ST[k][pc], 3)}, v{vIdxOff}, {srd(SRD_IDX)}, s{S_IDXOFF} offen offset:{pc * 832}' for pc in range(2)] + [f's_add_u32 s{S_IDXOFF}, s{S_IDXOFF}, 12']

        tA = [f'buffer_load_dword v255, v{PI}, {srd(SRD_TAB)}, 0 offen']
        tB = [f'v_lshlrev_b32 v{PI + 2}, 7, v{PI + 2}', f'buffer_load_dword v255, v{PI + 2}, {srd(SRD_TAB)}, 0 offen']
        ini = LC + [WaitTag(vm_tags=['BIAS'])] + pkreads(0) + unp(lambda tn: acc(tn, 0))
        ini += [f'v_mov_b64 {vr(acc(tn, tm) + 2 * d, 2)}, {vr(acc(tn, 0) + 2 * d, 2)}' for tn in range(5) for tm in range(1, 4) for d in range(2)]
        x0 = xst(lambda pc: T + 4 * pc, 0, 'X0')
        tC = [f'v_lshlrev_b32 v{T + 14}, 7, v{T + 14}', f'buffer_load_dword v255, v{T + 14}, {srd(SRD_TAB)}, 0 offen']
        if o.tc == 1:
            tB = tB + tC
        if o.tc == 2:
            ini = ini + tC
        tBl = []
        if o.tbl:
            tBl, tB = tB, []
        b1 = ['s_barrier'] if o.pb & 1 else []
        b2 = ['s_barrier'] if o.pb & 2 else []
        sh = [f'v_lshlrev_b32 v{PI}, 7, v{PI}']
        if o.sv == 0:
            L += sh + (own if not o.idx1 else []) + b1 + tA + tB + self.stamp(6) + wst(0) + ini + x0 + self.stamp(7) + b2
        elif o.sv == 1:
            L += self.stamp(19) + (spf if o.spp == 1 else []) + (co2 if o.co2 == 1 else []) + wst(0) + (co2 if o.co2 == 2 else []) + (co2 if o.co3 & 1 else []) + (spf if o.spp == 2 else []) + sh + (own if not o.idx1 else []) + b1 + tA + self.stamp(6) + x0 + (co2 if o.co2 == 3 or o.co3 & 2 else []) + tB + (dpf if o.dpf == 2 else []) + (dp2 if o.dpf == 3 else []) + b2 + ini + (dp2 if o.dpf == 4 else []) + (co2 if o.co3 & 4 else []) + self.stamp(7)
        elif o.sv == 2:
            L += sh + (own if not o.idx1 else []) + b1 + tA + self.stamp(6) + x0 + wst(0) + tB + b2 + ini + self.stamp(7)
        elif o.sv == 3:
            L += wst(0) + (own if not o.idx1 else []) + x0 + self.stamp(6) + sh + tA + tB + b2 + ini + self.stamp(7)
        L += [f's_lshl_b32 s{S_IDXOFF}, s{HH}, 2', f's_add_u32 s{S_IDXOFF}, s{S_IDXOFF}, 4'] + idxl(0)
        L += [f's_mov_b32 s{S_LOOP}, 0', f's_cmp_lg_u32 s{HH}, 0', 's_cbranch_scc1 L_dnn_h1']
        pro = self.seq(L)

        def mf(tn, tm, par):
            a = acc(tn, tm)
            return f'v_mfma_f32_16x16x32_bf16 {vr(a, 4)}, {vr(WF + 8 * tn + 4 * par, 4)}, {vr(XA + 8 * tm + 4 * par, 4)}, {vr(a, 4)}'
        MM = [mf(tn, j if tn % 2 == 0 else 3 - j, par) for tn in range(5) for j in range(4) for par in range(2)]
        kb = o.bov
        wi = self.winv(W2F, 20, KONE)
        K1 = list(range(132, 140)) + list(range(220, 232))
        KL, SC = 238, 239
        nw_ = 14
        if o.pr:
            wi = self.winv2(W2F, 20, K1, KL, SC)
            nw_ = 30
        trs = []
        for half in range(2):
            def fill(st, w=True, x=True, extra=(), rextra=()):
                D_ = (wst(st + 2) if w else []) + (xst(lambda pc: ST[(st // 3) % 2][pc] + st % 3, st + 1 + half) if x else [])
                return interleave(reads(st) + list(rextra), D_) + list(extra)

            def M(V=(), b=True, last=False, nw=5, g0=0):
                gp = [[] for _ in MM]
                V = list(V)
                n_ = len(MM) - kb - 1
                wt = [2 if isinstance(x, str) and x.startswith(('v_exp', 'v_rcp')) else 1 for x in V]
                cum = 0
                for x, w_ in zip(V, wt):
                    gp[g0 + cum * (n_ - g0) // sum(wt)].append(x)
                    cum += w_
                m = [(x,) + tuple(y) for x, y in zip(MM, gp)]
                return ['s_setprio 0'] * b + m[:len(m) - kb] + (['s_setprio 2'] + ([WaitTag(vm_tags=['W1'], allbut=('W', nw))] if half == 0 else []) + ['s_barrier'] if b else []) + m[len(m) - kb:] + ['s_setprio 0'] * last
            wF = lambda nw=5, nx=2: [WaitTag(vm_tags=['X0'], allbut=('X', nx), lgkm0=True)] + ([WaitTag(allbut=('W', nw))] if half else []) + ['s_barrier']
            L = [f'L_dnn_h{half}:']
            pre = (xst(lambda pc: T + 4 * pc + 1, 1) if half or o.f0 else []) + wst(1)[:4] + [wst(1)[4] + tuple(co2 if o.co3 & 8 else []) + tuple(tC if o.tc == 3 else [])] + tBl + idxl(1)
            wset = pkreads(WP) + self.kconst(KC0, KC1, KONE) + unp(lambda tn: W2F + 4 * tn) + wi if o.w2e else []
            if half == 0 and o.f0:
                for x in flat(pre):
                    if isinstance(x, I) and x.tag == 'W':
                        x.tag = 'W1'
                L += pre + [f's_add_u32 s{S_WSOFF}, s{S_WSOFF}, {64 * 3328}', WaitTag(vm_tags=['W'], lgkm0=True)] + self.stamp(1) + ['s_barrier'] + self.stamp(2)
                L += reads(0) + ['s_branch L_dnn_in0']
            elif half == 0:
                L += pre[:o.q0] + wset + [WaitTag(allbut=('W', min(o.q0, 5)), lgkm0=True)] + self.stamp(1) + ['s_barrier'] + self.stamp(2) + pre[o.q0:]
            else:
                if o.f0:
                    wset = [f's_sub_u32 s{S_WSOFF}, s{S_WSOFF}, {32 * 3328}', f's_sub_u32 s{S_WMB}, s{S_WMB}, {WSLOT}']
                    late_ = wst(2) + [f's_sub_u32 s{S_WSOFF}, s{S_WSOFF}, {32 * 3328}', f's_add_u32 s{S_WMB}, s{S_WMB}, {WSLOT}']
                    wset += late_ if o.f0 == 1 else []
                L += pre[:o.q1] + [WaitTag(allbut=('W', max(0, min(o.q1 - 2, 5)))), WaitTag(vm_tags=['X0'], lgkm0=True)] + self.stamp(1) + ['s_barrier'] + self.stamp(2) + pre[o.q1:] + wset + ['s_barrier'] + (late_ if o.f0 == 2 else [])
            th = pro + self.seq(L)
            L = [f'L_dnn_loop{half}:']
            for st in range(6):
                ex = []
                if st % 3 == 2:
                    ex += idxl(st // 3)
                if st == 4 and half == 1 and not o.w2e:
                    ex += [tuple(vec(L_W2, SRD_W2))]
                if o.padat.startswith('dl') and int(o.padat[2:]) % 6 == st:
                    ex += [('s_memrealtime s[86:87]', 's_waitcnt lgkmcnt(0)', f's_cmp_eq_u32 s{S_LOOP}, {int(o.padat[2:]) // 6}', 's_cselect_b32 s88, s86, s88')]
                if o.cyc.startswith('go,dl') and int(o.cyc[5:]) % 6 == st:
                    ex += [('s_memtime s[86:87]', 's_waitcnt lgkmcnt(0)', 's_sub_u32 s86, s86, s88', f's_cmp_eq_u32 s{S_LOOP}, {int(o.cyc[5:]) // 6}', 's_cselect_b32 s88, s86, s88')]
                if o.stamps and o.itst == 2 and st % 2:
                    ex += [(f's_memtime s[{S_ST}:{S_ST + 1}]', f's_memrealtime s[{S_ST + 2}:{S_ST + 3}]', f's_mul_i32 s{S_TW}, s{S_LOOP}, 3', f's_add_u32 s{S_TW}, s{S_TW}, {8 + st // 2}',
                           f's_min_u32 s{S_TW}, s{S_TW}, 14', 's_waitcnt lgkmcnt(0)',
                           f's_mov_b32 m0, s{S_TW}', f'v_writelane_b32 v252, s{S_ST}, m0', f'v_writelane_b32 v253, s{S_ST + 2}, m0')]
                if o.stamps and o.itst == 1 and st in (1, 4):
                    ex += [(f's_memtime s[{S_ST}:{S_ST + 1}]', f's_memrealtime s[{S_ST + 2}:{S_ST + 3}]', f's_lshl_b32 s{S_TW}, s{S_LOOP}, 1', f's_add_u32 s{S_TW}, s{S_TW}, {6 + st // 3}',
                           f's_max_u32 s{S_TW}, s{S_TW}, 8', 's_waitcnt lgkmcnt(0)',
                           f's_mov_b32 m0, s{S_TW}', f'v_writelane_b32 v252, s{S_ST}, m0', f'v_writelane_b32 v253, s{S_ST + 2}, m0')]
                L += fill(st, extra=ex)
                if st == 0:
                    b0_ = self.seq(L)
                    L = [f'L_dnn_in{half}:']
                L += wF() + M([f's_add_u32 s{S_LOOP}, s{S_LOOP}, 1', f's_cmp_lt_u32 s{S_LOOP}, 4'] if st == 5 else ([f's_cmp_eq_u32 s{S_LOOP}, 3'] if st == 5 - o.p6 else []))
                if o.p6 and st == 5 - o.p6:
                    L += [f's_cbranch_scc1 L_dnn_x{half}']
                    nx_ = len(flat(L))
            L += [f's_cbranch_scc1 L_dnn_loop{half}']
            b1_ = self.seq(L)
            th += (b1_ if half == 0 and o.f0 else []) + (b0_ + b1_) * 3
            if o.p6:
                th += b0_ + b1_[:nx_]
                su = self.kconst(KC0, KC1, KONE) + unp(lambda tn: W2F + 4 * tn) + wi
                L = [f'L_dnn_x{half}:']
                for k_, st in enumerate(range(6 - o.p6, 6)):
                    L += fill(st, extra=idxl(st // 3) if st == 2 else [], rextra=pkreads(WP) if k_ == 0 else []) + wF()
                    L += M(su[k_ * len(su) // (o.p6 + 1):(k_ + 1) * len(su) // (o.p6 + 1)])
                th += self.seq(L)
            if o.t2 and o.pr:
                E_ = [(acc(0, tm) + r, 24 + 4 * tm + r, W2F + r, K1[r], SUMP + 2 * tm + r % 2, r) for tm in range(o.t2) for r in range(4)]
                ev = [f'v_mul_f32 v{t}, v{x}, v{x}' for (x, t, w, k1, s_, r) in E_] + [f'v_fma_f32 v{t}, v{t}, v{KC1}, v{KC0}' for (x, t, w, k1, s_, r) in E_]
                ev += [f'v_fma_f32 v{t}, v{t}, v{x}, v{KONE}' for (x, t, w, k1, s_, r) in E_] + [f'v_exp_f32 v{t}, v{t} clamp' for (x, t, w, k1, s_, r) in E_]
                ev += [f'v_fma_f32 v{t}, v{t}, v{k1}, v{w}' for (x, t, w, k1, s_, r) in E_] + [f'v_rcp_f32 v{t}, v{t}' for (x, t, w, k1, s_, r) in E_]
                ev += [f'v_{"mul" if r < 2 else "fmac"}_f32 v{s_}, v{t}, v{x}' for (x, t, w, k1, s_, r) in E_]
                if o.p6:
                    L = fill(24, w=False, x=half == 0, extra=self.tlb2(VO[0], vBL) if half == 0 else []) + wF(0, 2 - 2 * half)
                    L += M(su[o.p6 * len(su) // (o.p6 + 1):], nw=0)
                    L += fill(25, w=False, x=False) + wF(0, 0) + M(ev, b=half == 0, last=True, g0=o.t2g)
                else:
                    L = pkreads(WP) + fill(24, w=False, x=half == 0, extra=(self.tlb2(VO[0], vBL) if half == 0 else []) + unp(lambda tn: W2F + 4 * tn) + wi[:14]) + wF(0, 2 - 2 * half)
                    L += M(self.kconst(KC0, KC1, KONE) + wi[14:o.t2w], nw=0)
                    L += fill(25, w=False, x=False, extra=wi[o.t2w:82]) + wF(0, 0) + M(wi[82:] + ev, b=half == 0, last=True)
            elif o.t2:
                E_ = [(acc(0, tm) + h, WF + 2 * tm + h, W2F + h, SUMP + 2 * tm + h) for tm in range(o.t2) for h in range(2)]
                ev = [f'v_mul_f32 v{t}, v{x}, v{x}' for (x, t, w, s_) in E_] + [f'v_fma_f32 v{t}, v{t}, v{KC1}, v{KC0}' for (x, t, w, s_) in E_]
                ev += [f'v_mul_f32 v{t}, v{t}, v{x}' for (x, t, w, s_) in E_] + [f'v_exp_f32 v{t}, v{t}' for (x, t, w, s_) in E_]
                ev += [f'v_fma_f32 v{t}, v{t}, v{w}, v{w}' for (x, t, w, s_) in E_] + [f'v_rcp_f32 v{t}, v{t}' for (x, t, w, s_) in E_]
                ev += [f'v_mul_f32 v{s_}, v{t}, v{x}' for (x, t, w, s_) in E_]
                L = pkreads(WP) + fill(24, w=False, x=half == 0, extra=(self.tlb2(VO[0], vBL) if half == 0 else []) + unp(lambda tn: W2F + 4 * tn)) + wF(0, 2 - 2 * half)
                L += M(self.kconst(KC0, KC1, KONE) + wi, nw=0)
                L += fill(25, w=False, x=False) + wF(0, 0) + M(ev, b=half == 0, last=True, g0=o.t2g)
            else:
                L = fill(24, w=False, x=half == 0, rextra=pkreads(WP) if not o.w2e else [], extra=self.tlb2(VO[0], vBL) if half == 0 else []) + wF(0, 2 - 2 * half)
                L += M(self.kconst(KC0, KC1, KONE) + unp(lambda tn: W2F + 4 * tn) + wi[:nw_] if not o.w2e else [], nw=0)
                L += fill(25, w=False, x=False) + wF(0, 0) + M(wi[nw_:] if not o.w2e else [], b=half == 0, last=True)
            if half == 0:
                L += ['s_branch L_epi']
            trs.append(th + self.seq(L))
        p2 = lambda r: vr(r, 2)
        el = lambda tn, tm, d: (acc(tn, tm) + 2 * d, W2F + 4 * tn + 2 * d, SUMP + 2 * tm)
        L = ['L_epi:'] + self.stamp(3)
        L += [f's_lshl_b32 s{S_T1}, s{S_R}, 11', f's_and_b32 s{S_T3}, s{S_MB}, 3', f's_lshl_b32 s{S_T3}, s{S_T3}, 9', f's_add_u32 s{S_T1}, s{S_T1}, s{S_T3}',
              f's_lshr_b32 s{S_T0}, s{S_MB}, 2', f's_lshl_b32 s{S_T0}, s{S_T0}, 14', f's_add_u32 s{S_T1}, s{S_T1}, s{S_T0}',
              'v_lshlrev_b32 v3, 3, v0', f'v_add_u32 v2, {RB}, v3']
        if o.pr:
            L += self.gelu2([[(acc(tn, tm), (W2F + 4 * tn, W2F + 4 * tn + 2), (K1[4 * tn], K1[4 * tn + 2]), SUMP + 2 * tm) for tm in range(4) if tn or tm >= o.t2] for tn in range(5)], WF, KC0, KC1, KONE,
                            [SUMP + 2 * tm for tm in range(o.t2)])
        else:
            gr = [[el(tn, tm, d) for tm in range(4) if tn or d or tm >= o.t2] for tn in range(5) for d in range(2)]
            L += self.gelu([x for x in gr if x], WF, KC0, KC1, KONE, [SUMP + 2 * tm for tm in range(o.t2)])
        L += self.red4(SUMP, SC if o.pr else None) + [f'ds_write_b32 v{vPc}, v{SUMP}', 's_waitcnt lgkmcnt(0)'] + self.stamp(4) + self.stamp_flush()
        L += [f's_cmp_eq_u32 s{S_WAVE}, 0', 's_cbranch_scc1 L_dpub']
        tr = self.seq(L)
        self.seq(['s_barrier', 's_endpgm'])
        A = 64
        L = ['L_dpub:'] + self.build_srd(SRD_WS, S_WS, 0x10000000) + self.build_srd(SRD_DBG, S_DBG, 256) + self.cleared('L_dclr', [f's_and_b32 s{S_TW}, s2, 7'], vBL) + ['s_barrier'] + self.stamp(17)
        L += [f'ds_read_b64 {vr(A + 2 * qq, 2)}, v2 offset:{qq * 512}' for qq in range(4)]
        L += [f'v_pk_add_f32 {p2(A)}, {p2(A)}, {p2(A + 2)}', f'v_pk_add_f32 {p2(A + 4)}, {p2(A + 4)}, {p2(A + 6)}', f'v_pk_add_f32 {p2(A)}, {p2(A)}, {p2(A + 4)}',
              f'v_and_b32 v{A}, -2, v{A}', f'v_and_b32 v{A + 1}, -2, v{A + 1}',
              f'buffer_store_dwordx2 {vr(A, 2)}, v3, {srd(SRD_WS)}, s{S_T1} offen sc1'] + self.padsig() + ['s_endpgm']
        return [trs[0] + tr + self.seq(L), trs[1] + tr]

    def rem(self):
        o = self.opt
        self.role = 'r'
        vW = [1, 2, 7, 8]
        vX = [11, 12]
        vWD, vCh, vT, VO = 13, [14, 15], 9, 24
        SUMP = 16
        IDX = 32
        XA, WF = 64, 96
        ACC = 160
        BF, W2F = 32, 48
        PK = 224
        KC0, KC1, KONE = 240, 242, 244
        g, i4, q = 246, 247, 248
        S_F = S_IDXOFF
        acc = lambda tn, tm: ACC + (tn * 4 + tm) * 4
        L = ['L_rem:'] + (['s_memrealtime s[82:83]'] if o.amp == 4 else []) + [f's_lshr_b32 s{S_GRP}, s{S_WAVE}, 2', f's_and_b32 s{S_T0}, s2, 7', f's_lshl_b32 s{S_T0}, s{S_T0}, 3', f's_add_u32 s{S_T0}, s{S_T0}, s{S_WAVE}',
             f's_mul_i32 s{S_T0}, s{S_T0}, {64 * 104}', f's_lshl_b32 s{S_XM0}, s{S_WAVE}, 14',
             f'v_lshlrev_b32 v{q}, 4, v0', f'v_lshrrev_b32 v{g}, 4, v0',
             f'v_lshrrev_b32 v{i4}, 3, v0', f'v_mul_u32_u24 v{vWD}, 3328, v{i4}', f'v_and_b32 v{i4}, 2, v{i4}',
             f's_and_b32 s{S_T1}, s{S_WAVE}, 1', f's_lshl_b32 s{S_T1}, s{S_T1}, 2', f'v_or_b32 v{i4}, s{S_T1}, v{i4}',
             f'v_and_b32 v{vT}, 7, v0', f'v_xor_b32 v{i4}, v{i4}, v{vT}', f'v_lshl_add_u32 v{vWD}, v{i4}, 4, v{vWD}',
             f's_mul_i32 s{S_WSOFF}, s{S_WAVE}, {8 * 3328}', f's_add_u32 s{S_WSOFF}, s{S_WSOFF}, 3200',
             f's_lshl_b32 s{S_WMB}, s{S_WAVE}, 10', f's_add_u32 s{S_WMB}, s{S_WMB}, {RWR}',
             's_waitcnt lgkmcnt(0)']
        L += [f's_load_dword s{S_BOUT}, s[{S_BO}:{S_BO + 1}], 0'] + self.build_srd(SRD_IDX, S_IDX, 4096 * 104)
        for u in range(7):
            L += [f's_add_u32 m0, s{S_XM0}, {8192 + u * 1024}', I(f'buffer_load_dwordx4 v{q}, {srd(SRD_IDX)}, s{S_T0} offen lds', tag='I'),
                  f's_add_u32 s{S_T0}, s{S_T0}, 1024']
        L += self.build_srd(SRD_W, S_W1, 1664 * 3328)
        wld = lambda slot: [f's_add_u32 m0, s{S_WMB}, {slot * 8192}', I(f'buffer_load_dwordx4 v{vWD}, {srd(SRD_W)}, s{S_WSOFF} offen lds', tag='W'),
                            f's_add_u32 s{S_WSOFF}, s{S_WSOFF}, {64 * 3328}']
        L += wld(0)
        L += self.build_srd(SRD_WS, S_WS, 0x10000000) + self.build_srd(SRD_DBG, S_DBG, 256) + [f'v_mov_b32 v{XA + k}, -1' for k in range(4)]
        L += [f's_and_b32 s{S_T2}, s2, 7', f's_lshl_b32 s{S_T0}, s{S_T2}, 3', f's_add_u32 s{S_T0}, s{S_T0}, s{S_WAVE}', f's_lshl_b32 s{S_T0}, s{S_T0}, 11', f's_lshl_b32 s{S_T2}, s{S_T2}, 2',
              f'buffer_store_dwordx4 {vr(XA, 4)}, v{q}, {srd(SRD_WS)}, s{S_T0} offen sc1',
              f'buffer_store_dwordx4 {vr(XA, 4)}, v{q}, {srd(SRD_WS)}, s{S_T0} offen offset:1024 sc1']
        L += self.build_srd(SRD_B1, S_B1, 3328) + self.build_srd(SRD_W2, S_W2, 3328) + self.build_srd(SRD_TAB, S_TAB, 100000 * 128)
        L += self.stamp0()
        L += [f'v_xor_b32 v{q}, v{vT}, v{g}', f'v_lshlrev_b32 v{vCh[0]}, 4, v{q}', f'v_xor_b32 v{vCh[1]}, 64, v{vCh[0]}',
              f'v_bfe_u32 v{i4}, v0, 2, 2', f'v_lshl_add_u32 v{q}, v{g}, 3, v{i4}', f'v_lshlrev_b32 v{q}, 7, v{q}',
              f'v_and_b32 v{i4}, 3, v0', f'v_lshl_add_u32 v{q}, v{i4}, 3, v{q}', f'v_add_u32 v{q}, {RWR}, v{q}',
              f'v_bfe_u32 v{i4}, v0, 3, 2', f'v_lshl_add_u32 v{vW[0]}, v{i4}, 5, v{q}']
        L += [f'v_xor_b32 v{vW[i]}, {32 * i}, v{vW[0]}' for i in range(1, 4)]
        L += [f'v_and_b32 v{q}, 15, v0', f'v_lshlrev_b32 v{q}, 7, v{q}',
              f'v_bfe_u32 v{i4}, v0, 1, 3', f'v_xor_b32 v{i4}, v{i4}, v{g}', f'v_lshl_add_u32 v{q}, v{i4}, 4, v{q}',
              f'v_add_u32 v{vX[0]}, s{S_XM0}, v{q}', f'v_xor_b32 v{vX[1]}, 64, v{vX[0]}',
              f'v_lshrrev_b32 v{i4}, 3, v0', f'v_lshl_add_u32 v{q}, v{vT}, 3, v{i4}', f'v_mul_u32_u24 v{q}, 104, v{q}', f'v_add_u32 v{q}, s{S_XM0}, v{q}']
        S_OO = S_N0
        L += self.build_srd(SRD_OUT, S_OUT, 8192) + [
             f's_and_b32 s{S_OO}, s2, 7', f's_lshl_b32 s{S_T0}, s{S_OO}, 14', f's_lshl_b32 s{S_T1}, s{S_WAVE}, 8', f's_add_u32 s{S_T0}, s{S_T0}, s{S_T1}',
             f's_add_u32 s{S_T1}, s{S_T0}, 4096', f's_add_u32 s{S_T3}, s{S_T0}, 8192',
             f's_lshl_b32 s{S_OO}, s{S_OO}, 3', f's_add_u32 s{S_OO}, s{S_OO}, s{S_WAVE}', f's_lshl_b32 s{S_OO}, s{S_OO}, 7',
             'v_lshlrev_b32 v3, 2, v0', 'v_lshlrev_b32 v4, 1, v0',
             f's_lshl_b32 s{S_TW}, s{S_WAVE}, 6', f'v_add_u32 v5, s{S_TW}, v0', f'v_cmp_lt_u32 vcc, {(439 if o.sym else 483) + o.n4}, v5', 'v_add_u32 v5, 4096, v3', 'v_mov_b32 v6, 0x7f000000',
             'v_cndmask_b32 v5, v6, v5, vcc']
        L += self.kconst(KC0, KC1, KONE, o.rpr) + [f'v_mov_b32 v{r}, 0' for r in range(ACC, ACC + 64)] + ['s_waitcnt vmcnt(0) lgkmcnt(0)', f's_lshl_b32 s{S_BOUT}, s{S_BOUT}, 16']
        L += [f'ds_read_b64 {vr(IDX + 2 * k, 2)}, v{q} offset:{8192 + 8 * k}' for k in range(13)]

        def xld(src, slot, h=None):
            c = [tuple(f'v_add_u32_dpp v{VO + pc}, v{src}, v{vCh[pc % 2]} row_newbcast:{8 * hh + pc} row_mask:0xf bank_mask:{hex(3 << (2 * hh))}'
                       for hh in range(2) for pc in range(4 * k, 4 * k + 4)) for k in range(2)]
            d = [(f's_add_u32 m0, s{S_XM0}, {slot * 8192 + pc * 1024}',
                  I(f'buffer_load_dwordx4 v{VO + pc}, {srd(SRD_TAB)}, 0 offen lds', tag='X')) for pc in range(8)]
            return c[:1] + d[:4] + c[1:] + d[4:] if h is None else c[h:h + 1] + d[4 * h:4 * h + 4]
        L += [f'v_mov_b32 v{VO + pc}, 0' for pc in range(8)] + [f'v_mov_b32 v{IDX + k}, 0x7f000000' for k in (26, 27)]
        L += [f'v_lshlrev_b32 v{IDX}, 7, v{IDX}'] + xld(IDX, 0)
        L += wld(1) + [f'v_lshlrev_b32 v{IDX + k}, 7, v{IDX + k}' for k in range(25, 0, -1)] + xld(IDX + 1, 1) + wld(2)
        L += [f'v_lshlrev_b32 v{q}, 3, v{g}']

        rdx = lambda fp, h: [f'ds_read_b128 {vr(XA + 16 * h + 8 * t + 4 * par, 4)}, v{vX[par]} offset:{fp * 8192 + (2 * h + t) * 2048}' for t in (1, 0) for par in (1, 0)]
        rdw = lambda fp: [f'ds_read_b64_tr_b16 {vr(WF + 32 * fp + 8 * tn + 4 * par + 2 * rd, 2)}, v{vW[tn]} offset:{fp * 8192 + par * 4096 + rd * 512}'
                          for tn in range(4) for par in range(2) for rd in range(2)]

        def mm(fp, h):
            return [f'v_mfma_f32_16x16x32_bf16 {vr(acc(tn, 2 * h + t), 4)}, {vr(WF + 32 * fp + 8 * tn + 4 * par, 4)}, {vr(XA + 16 * h + 8 * t + 4 * par, 4)}, {vr(acc(tn, 2 * h + t), 4)}'
                    for tn in range(4) for t in range(2) for par in range(2)]
        L += [f's_mov_b32 s{S_F}, 3', f'v_mov_b32 v{vT}, v{IDX + 2}'] + list(xld(vT, 0, 0)[0])
        L += [WaitTag(allbut=('X', 12)), 's_barrier'] + self.stamp(2) + rdx(0, 0) + rdw(0)
        L += [f's_cmp_lg_u32 s{S_WAVE}, 7', 's_cbranch_scc1 L_rem_loop', 's_mov_b64 exec, 1',
              ] + (['s_or_b32 s86, s88, 1', 'v_mov_b32 v10, s86'] if o.gs else []) + [
              f'buffer_store_dword v{10 if o.gs else KC0}, v{vCh[0]}, {srd(SRD_DBG)}, s{S_T2} offen offset:128 sc1', 's_mov_b64 exec, -1']
        tr = self.seq(L)

        def phase(M, R, Dm, V, V2=()):
            gp = [[] for _ in M]
            for k, x in enumerate(R):
                gp[k * o.rrd // max(len(R), 1)].append(x)
            for k, x in enumerate(Dm):
                gp[1 + k * 15 // len(Dm)].append(x)
            v0 = o.rrd if R else 0
            for k, x in enumerate(V):
                gp[v0 + k * (16 - v0) // len(V)].append(x)
            for k, x in enumerate(V2):
                gp[3 + k * 12 // len(V2)].append(x)
            return [(m,) + tuple(g_) for m, g_ in zip(M, gp)]
        assert not o.rpr
        ub = [x for k in range(8) for x in (f'v_lshlrev_b32 v{BF + 2 * k}, 16, v{PK + k}', f'v_and_b32 v{BF + 2 * k + 1}, 0xffff0000, v{PK + k}')]
        uw = [x for k in range(8) for x in (f'v_lshlrev_b32 v{W2F + 2 * k}, 16, v{PK + 8 + k}', f'v_and_b32 v{W2F + 2 * k + 1}, 0xffff0000, v{PK + 8 + k}')]
        wi = self.winv(W2F, 16, KONE)
        badd = lambda h: [f'v_add_f32 v{acc(tn, 2 * h + t) + r}, v{BF + 4 * tn + r}, v{acc(tn, 2 * h + t) + r}' for tn in range(4) for t in range(2) for r in range(4)]
        vld = [f'buffer_load_dwordx2 {vr(PK + 2 * tn, 2)}, v{q}, {srd(SRD_B1)}, 0 offen offset:{3200 + 32 * tn}' for tn in range(4)]
        vld += [f'buffer_load_dwordx2 {vr(PK + 8 + 2 * tn, 2)}, v{q}, {srd(SRD_W2)}, 0 offen offset:{3200 + 32 * tn}' for tn in range(4)]

        def field(fp, last):
            L = [WaitTag(allbut=('W', 1)), WaitTag(allbut=('X', 0 if last and fp else 8))] + ([] if last and fp else ['s_barrier'])
            if fp == 1 and not last:
                L += [f'v_xor_b32 v{vW[i]}, 16384, v{vW[i]}' for i in range(4)]
            sx = (f's_xor_b32 s{S_WMB}, s{S_WMB}, 16384',)
            wl = [sx + tuple(wld(1)) + sx] if fp == 0 else [tuple(wld(0)) + sx]
            rw = rdw(1 - fp)
            mv = [(f's_set_gpr_idx_on s{S_F}, gpr_idx(SRC0)', 's_nop 0', f'v_mov_b32 v{vT}, v{IDX}', 's_set_gpr_idx_off', f's_add_u32 s{S_F}, s{S_F}, 1')]
            if not last:
                L += phase(mm(fp, 0), rdx(fp, 1) + rw[:8], xld(vT, fp, 0)[1:], list(xld(vT, fp, 1)[0]))
                L += [WaitTag(allbut=('X', 8))]
                L += phase(mm(fp, 1), rdx(1 - fp, 0) + rw[8:], xld(vT, fp, 1)[1:] + wl, mv + list(xld(vT, fp, 0)[0]))
            elif not o.rv:
                if fp == 0:
                    L += phase(mm(fp, 0), rdx(fp, 1) + rw[:8], vld + [f'buffer_load_dword v255, v3, {srd(SRD_OUT)}, s{S_OO} offen'], []) + [WaitTag(allbut=('X', 4))]
                    L += phase(mm(fp, 1), rdx(1 - fp, 0) + rw[8:], [], [])
                else:
                    L += phase(mm(fp, 0), rdx(fp, 1), [], [], uw + ub[:6]) + phase(mm(fp, 1), [], [], ub[6:] + wi[:o.rwi])
            elif fp == 0:
                L += phase(mm(fp, 0), rdx(fp, 1) + rw[:8], [], [], ub) + [WaitTag(allbut=('X', 4))]
                L += phase(mm(fp, 1), rdx(1 - fp, 0) + rw[8:], [], [], uw)
            else:
                L += phase(mm(fp, 0), rdx(fp, 1), [], [], badd(1)) + phase(mm(fp, 1), [], [], [], badd(0))
            return L
        L = ['L_rem_loop:'] + field(0, False) + ([f's_cmp_lg_u32 s{S_F}, 26', 's_cbranch_scc1 L_rnv'] if o.rv else [])
        bodya = self.seq(L)
        bodyv = self.seq(vld + [f'buffer_load_dword v255, v3, {srd(SRD_OUT)}, s{S_OO} offen']) if o.rv else []
        L = ['L_rnv:'] + field(1, False) + [f's_cmp_lt_u32 s{S_F}, 27', 's_cbranch_scc1 L_rem_loop']
        L = [x for x in flat(L) if not any((x.text if isinstance(x, I) else x).startswith(d) for d in o.rdrop.split(',') if d)]
        body = self.seq(L)
        body2 = self.seq(field(0, True) + field(1, True))
        el = lambda tn, tm, d: (acc(tn, tm) + 2 * d, W2F + 4 * tn + 2 * d, SUMP + 2 * tm)
        A = 128
        pld = [f'buffer_load_dword v{A + k}, v3, {srd(SRD_WS)}, s{(S_T0, S_T1, S_T3)[k // 2]} offen offset:{(k % 2) * 2048} sc1' for k in range(6)]
        pld += [f'buffer_load_dword v{A + 6}, v5, {srd(SRD_WS)}, s{S_T3} offen sc1']
        L = self.stamp(3) + ['L_repi:'] + (wi if o.rv else wi[o.rwi:] + [f'v_pk_add_f32 {vr(acc(tn, tm) + 2 * d, 2)}, {vr(acc(tn, tm) + 2 * d, 2)}, {vr(BF + 4 * tn + 2 * d, 2)}'
                                                                        for tn in range(4) for tm in range(4) for d in range(2)])
        ge = self.gelu([[el(tn, tm, d) for tm in range(4)] for tn in range(4) for d in range(2)], XA, KC0, KC1, KONE)
        early = o.epoll and o.amp not in (2, 3)
        cut = len(ge) - o.epoll * len(ge) // 8
        L += ge[:cut] + (pld if early else []) + ge[cut:]
        L += self.red4(SUMP) + [f'v_add_f32 v{SUMP}, s{S_BOUT}, v{SUMP}', 'L_rclr:'] + self.stamp(4) + self.padsig()
        gsl = []
        if o.gs:
            gsl = [f'buffer_load_dword v10, v3, {srd(SRD_DBG)}, 0 offen offset:128 sc1', 's_waitcnt vmcnt(0)', 's_mov_b32 s83, 0']
            for k in range(8):
                gsl += [f'v_readlane_b32 s82, v10, {k}', 's_nop 1', 's_sub_u32 s82, s82, s88', 's_min_i32 s83, s83, s82']
            gsl += ['s_max_i32 s83, s83, -1000', 's_add_u32 s88, s88, s83']
        tk = ['s_memrealtime s[86:87]', 's_waitcnt lgkmcnt(0)'] + gsl + ['s_sub_u32 s89, s86, s88', 's_min_u32 s89, s89, 10000', 's_lshl_b32 s89, s89, 3']
        if o.amp == 2:
            L += [f's_mov_b32 s{S_LOOP}, 0x40000', 'L_polla:', f's_sub_u32 s{S_LOOP}, s{S_LOOP}, 1', 's_cbranch_scc1 L_pollax']
            L += [f'buffer_load_dword v{A + k}, v3, {srd(SRD_WS)}, s{(S_T0, S_T1, S_T3)[k // 2]} offen offset:{(k % 2) * 2048} sc1' for k in range(5)]
            L += [f'v_max3_u32 v{A + 8}, v{A}, v{A + 1}, v{A + 2}', f'v_max3_u32 v{A + 8}, v{A + 3}, v{A + 4}, v{A + 8}',
                  f'v_cmp_eq_u32 vcc, -1, v{A + 8}', 's_cbranch_vccnz L_polla', 'L_pollax:']
        if o.amp in (2, 3):
            L += tk
        L += [f's_mov_b32 s{S_LOOP}, 0x40000'] + (['s_branch L_pchk'] if early else [])
        tl1 = self.seq(L)
        tl2 = self.seq(['L_poll:', f's_sub_u32 s{S_LOOP}, s{S_LOOP}, 1', 's_cbranch_scc1 L_pollx'] + pld)
        L = ['L_pchk:', 's_waitcnt vmcnt(0)']
        L += [f'v_max3_u32 v{A + 8}, v{A}, v{A + 1}, v{A + 2}', f'v_max3_u32 v{A + 9}, v{A + 3}, v{A + 4}, v{A + 5}', f'v_max3_u32 v{A + 8}, v{A + 8}, v{A + 9}, v{A + 6}',
              f'v_cmp_eq_u32 vcc, -1, v{A + 8}', 's_cbranch_vccnz L_poll', 'L_pollx:']
        L += [f'v_add_f32 v{A}, v{A}, v{A + 1}', f'v_add_f32 v{A + 2}, v{A + 2}, v{A + 3}', f'v_add_f32 v{A + 4}, v{A + 4}, v{A + 5}',
              f'v_add_f32 v{SUMP}, v{SUMP}, v{A + 6}', f'v_add_f32 v{A}, v{A}, v{A + 2}', f'v_add_f32 v{A + 4}, v{A + 4}, v{SUMP}', f'v_add_f32 v{A}, v{A}, v{A + 4}',
              f'v_cvt_pk_bf16_f32 v{A}, v{A}, v{A}']
        if o.amp and o.amp < 4:
            L += (tk if o.amp == 1 else []) + [
                  'L_ampspin:', 's_memrealtime s[86:87]', 's_waitcnt lgkmcnt(0)', 's_sub_u32 s86, s86, s88', 's_cmp_lt_u32 s86, s89', 's_cbranch_scc1 L_ampspin']
        if o.padat:
            L += ['L_padspin:', f'buffer_load_dword v7, v8, {srd(SRD_DBG)}, 0 offen sc1', 's_waitcnt vmcnt(0)', 's_memrealtime s[86:87]',
                  'v_readfirstlane_b32 s88, v7', 's_waitcnt lgkmcnt(0)', 's_cmp_eq_u32 s88, 0', 's_cbranch_scc1 L_padspin'] + (['s_not_b32 s88, s88'] if o.padmin else []) + [
                  's_sub_u32 s86, s86, s88', 's_cmp_lt_i32 s86, 6000', 's_cbranch_scc1 L_padspin'] if o.amp != 4 else [
                  f's_mov_b32 s{S_LOOP}, 0x40000', 'L_padspin:', f's_sub_u32 s{S_LOOP}, s{S_LOOP}, 1', 's_cbranch_scc1 L_padx',
                  f'buffer_load_dword v7, v8, {srd(SRD_DBG)}, 0 offen sc1', 's_waitcnt vmcnt(0)', 's_memrealtime s[86:87]',
                  'v_readfirstlane_b32 s88, v7', 's_waitcnt lgkmcnt(0)'] + (['s_not_b32 s88, s88'] if o.padmin else []) + [
                  ] + (['s_sub_u32 s88, s88, s82', 's_min_u32 s88, s88, 5000', 's_lshl_b32 s88, s88, 3'] if not o.cyc else ['s_min_u32 s88, s88, 60000']) + ['s_add_u32 s88, s88, 5000',
                  's_sub_u32 s86, s86, s82', 's_cmp_lt_u32 s86, s88', 's_cbranch_scc1 L_padspin', 'L_padx:']
        L += [f'buffer_store_short v{A}, v4, {srd(SRD_OUT)}, s{S_OO} offen{o.ofl}'] + self.stamp(5) + self.stamp_flush() + ['s_endpgm']
        return [tr + (bodya + body) * 3 + bodya + bodyv + body + body2 + tl1 + ([] if early else tl2) + self.seq(L)]

    def cin(self):
        o = self.opt
        self.role = 'c'
        cw = S_CW
        S_BCUR, S_BD, S_EXP, S_EXPC, S_PREV, S_SC, S_PH = 74, 75, 48, 49, 50, 51, 97
        S_CHK = S_M26
        vFA, vFR, vOne, vF, vFG, vFGa = 1, 2, 3, 4, 5, 6
        vRaw, vLin, vLinB, vXw, vX1, vX2, vSh, vAcc, vOr, vSI, vXi, vC16, vPWL, vPXL, PXR = range(7, 22)
        FT, XI, aD, aS, aLc, aC = 22, 24, 28, 29, 30, 31
        RAW, X, RZ, D = 32, 40, 52, 68
        WA, WB, WC, WS_, WL = 84, 128, 172, 216, 240
        Da, Db, Dc, Ds = D, D + 4, D + 8, D + 12
        T = 40
        half, i32, t3, t4, t5, vg, vm = T + 1, T + 2, T + 3, T + 4, T + 5, T + 6, T + 7
        vStg = 48
        GB = 49
        vMx, vWr, vL6, vL, vWu, vWo = range(62, 68)
        vDl = 247
        AD = 68
        vA3, vBs0, vBs1a, vBs1b, vUw, vV2w, vE, V3T = 240, 241, 242, 243, 244, 245, 246, 81
        BALL, UP, AFR, DALL = 84, 84, 132, 140
        BT, SUM, OUT = 216, 84, 132
        XJ = 204
        F_W3, F_W2, F_W1, F_PEEL, F_M, F_U, F_V3, F_XB = 0, 4, 8, 12, 16, 24, 32, 36
        nsync = [0]

        def sig(off, A=vFA, **kw):
            return [WaitTag(lgkm0=True, **kw), f'ds_add_u32 v{A}, v{vOne} offset:{off}']

        def wait(off, tgt, R=vFR):
            nsync[0] += 1
            lab = f'L_csync{nsync[0]}'
            return [f'{lab}:', f'ds_read_b32 v{vF}, v{R} offset:{off}', 's_waitcnt lgkmcnt(0)',
                    f'v_cmp_gt_u32 vcc, {tgt}, v{vF}', f's_cbranch_vccnz {lab}']

        def dppred(op, r):
            return [f'{op}_dpp v{r}, v{r}, v{r} {ctl} row_mask:{rm} bank_mask:0xf'
                    for (ctl, rm) in (('row_shr:1', '0xf'), ('row_shr:2', '0xf'), ('row_shr:4', '0xf'), ('row_shr:8', '0xf'),
                                      ('row_bcast:15', '0xa'), ('row_bcast:31', '0xc'))]

        def absmax(dst, regs):
            c = [f'v_max3_f32 v{dst}, abs(v{regs[0]}), abs(v{regs[1]}), abs(v{regs[2]})']
            k = 3
            while k < len(regs):
                b = regs[k + 1] if k + 1 < len(regs) else regs[k]
                c.append(f'v_max3_f32 v{dst}, v{dst}, abs(v{regs[k]}), abs(v{b})')
                k += 2
            return c

        def waitmax(off, dst_e, top, R=vFR):
            nsync[0] += 1
            lab = f'L_csync{nsync[0]}'
            return [f'{lab}:', f'ds_read_b64 {vr(T, 2)}, v{R} offset:{off}', 's_waitcnt lgkmcnt(0)',
                    f'v_cmp_gt_u32 vcc, 4, v{T}', f's_cbranch_vccnz {lab}',
                    f'v_readfirstlane_b32 s{dst_e}, v{T + 1}',
                    f's_lshr_b32 s{dst_e}, s{dst_e}, 23', f's_sub_i32 s{dst_e}, {top}, s{dst_e}', f's_min_i32 s{dst_e}, s{dst_e}, 40']

        def postmax(r, off, **kw):
            return dppred('v_max_u32', r) + [f'v_readlane_b32 s{S_T0}, v{r}, 63', f'v_mov_b32 v{r}, s{S_T0}',
                                             f'ds_max_u32 v{vFA}, v{r} offset:{off + 4}', WaitTag(**kw), f'ds_add_u32 v{vFA}, v{vOne} offset:{off}']
        setsc = lambda e: [f's_add_i32 s{S_SC}, s{e}, 127', f's_lshl_b32 s{S_SC}, s{S_SC}, 23']

        S_C, S_DYN, S_ST0, S_TK = S_R, S_MB, 98, 99
        NST = 40 if o.sym else 44
        PB = 11 * NST
        assert 2 * (512 - PB) - o.n4 <= (88 if o.sym else 44)
        vFl, vTk, vZ = 249, 250, 251
        S_HALF = S_STG9
        L = ['L_cin:', f's_and_b32 s{S_T0}, s{S_MB}, 3', f's_mul_i32 s{S_T0}, s{S_T0}, 3', f's_add_u32 s{S_C}, s{S_T0}, s{S_R}',
             f's_sub_u32 s{S_C}, s{S_C}, 6',
             f's_and_b32 s{cw}, s{S_WAVE}, 3', f's_lshr_b32 s{S_GRP}, s{S_WAVE}, 2',
             f's_lshl_b32 s{S_GW}, s{S_C}, 3', f's_add_u32 s{S_GW}, s{S_GW}, s{S_WAVE}',
             f's_mul_i32 s{S_T0}, s{S_GW}, {10 * 128}',
             f'v_min_u32 v{T}, 9, v0', f'v_lshlrev_b32 v{T}, 7, v{T}',
             f'v_lshlrev_b32 v{vStg}, 4, v0',
             f's_lshl_b32 s{S_STG}, s{cw}, 10',
             f's_cmp_eq_u32 s{cw}, 2', f's_cselect_b64 s[{S_EX}:{S_EX + 1}], 0x3fffff, -1',
             f's_cmp_eq_u32 s{cw}, 3', f's_cselect_b32 s{S_STG9}, 0, {8 * 4096}',
             f's_add_u32 s{S_STG9}, s{S_STG9}, s{S_STG}',
             '@CUT',
             f's_mul_i32 s{S_T1}, s{S_C}, 2979', f's_lshr_b32 s{S_T1}, s{S_T1}, 6', f's_mul_i32 s{S_ST0}, s{S_C}, {NST}',
             f's_and_b32 s{S_T2}, s2, 7', f's_add_u32 s{S_RC}, s{S_ST0}, s{S_WAVE}', f's_lshl_b32 s{S_RC}, s{S_RC}, 2',
             f's_lshl_b32 s{S_ST0}, s{S_T2}, 14', f's_add_u32 s{S_RC}, s{S_RC}, s{S_ST0}', f's_add_u32 s{S_RC}, s{S_RC}, {5 * 2048}', f's_mul_i32 s{S_ST0}, s{S_C}, {NST}', f's_lshl_b32 s{S_PX}, s{S_T2}, 9', f's_add_u32 s{S_SAMP}, s{S_PX}, s{S_ST0}', f's_add_u32 s{S_PX}, s{S_PX}, s{S_T1}',
             f's_add_u32 s{S_SAMP}, s{S_SAMP}, s{S_WAVE}', f's_mul_i32 s{S_SAMP}, s{S_SAMP}, 104',
] + ([f's_lshl_b32 s{S_ST0}, s{S_C}, 2', f's_add_u32 s{S_ST0}, s{S_ST0}, s{S_WAVE}', f's_add_u32 s{S_ST0}, s{S_ST0}, s{S_T2}', f's_and_b32 s{S_ST0}, s{S_ST0}, 7'] if not o.sym else [
             f's_add_u32 s{S_ST0}, s{S_WAVE}, s{S_T2}', f's_and_b32 s{S_ST0}, s{S_ST0}, 3', f's_lshl_b32 s{S_TK}, s{S_GRP}, 2', f's_add_u32 s{S_ST0}, s{S_ST0}, s{S_TK}']) + [
             f's_mul_i32 s{S_ST0}, s{S_ST0}, {16384 + o.shs}', f's_add_u32 s{S_ST0}, s{S_ST0}, {6 * 2048}',
] + ([f's_sub_u32 s{S_LOOP}, 6, s{S_GRP}', f's_lshl_b32 s{S_TK}, s{S_GRP}, 1'] if not o.sym else [f's_mov_b32 s{S_LOOP}, 5', f's_mov_b32 s{S_TK}, 2']) + [f's_mov_b32 s{S_DYN}, -1',
             f'v_lshrrev_b32 v{t3}, 3, v0', f'v_min_u32 v{t3}, 6, v{t3}', f'v_lshlrev_b32 v{vXi}, 4, v{t3}',
             f's_mul_i32 s{S_T2}, s{S_T2}, 88', f's_add_u32 s{S_T2}, s{S_GW}, s{S_T2}', f's_mov_b32 s{S_T3}, 704',
             f'v_mov_b32 v{t4}, s{S_T2}', f'v_mad_u32_u24 v{vPWL}, v0, s{S_T3}, v{t4}',
             f's_mul_i32 s{S_T2}, s{S_GW}, 104', f's_sub_u32 s{S_T2}, s{S_T2}, {13 * 26 - 25}',
             f'v_min_u32 v{t4}, {12 + o.pfr}, v0', f'v_mul_u32_u24 v{t5}, 26, v{t4}', f'v_add_u32 v{t5}, s{S_T2}, v{t5}',
             f'v_cmp_lt_u32 vcc, 12, v{t4}', f'v_cndmask_b32 v{vPWL}, v{vPWL}, v{t5}, vcc', f'v_lshlrev_b32 v{vPWL}, 7, v{vPWL}',
             f's_mov_b32 s{S_PW}, {o.pfe0 * 832 * 128}',
             '@CUT',
             f'v_mov_b32 v{vFR}, {L_FLG}', f'v_lshlrev_b32 v{vFA}, 20, v0', f'v_add_u32 v{vFA}, {L_FLG}, v{vFA}',
             f'v_and_b32 v{t4}, 7, v0', f'v_lshlrev_b32 v{vC16}, 4, v{t4}', f'v_and_b32 v{t4}, 15, v0', f'v_lshl_add_u32 v{t4}, v{t4}, 2, v{vFR}',
             f'v_mov_b32 v{vOne}, 0', f'ds_write_b32 v{t4}, v{vOne}',
             f'v_lshrrev_b32 v{half}, 5, v0', f'v_and_b32 v{i32}, 31, v0',
             's_waitcnt lgkmcnt(0)', f'v_mov_b32 v{vOne}, 1']
        i1 = L.index('@CUT'); i2 = L.index('@CUT', i1 + 1)
        late0 = L[i1 + 1:i2]
        if o.c0l:
            assert o.pf1 == 2
            L = L[:i1] + L[i2 + 1:]
            late0 = late0 + self.build_srd(SRD_TAB, S_TAB, 100000 * 128) + self.build_srd(SRD_W, S_W1, 1664 * 3328) + self.build_srd(SRD_IDX, S_IDX, 4096 * 104)
        else:
            L = L[:i1] + late0 + L[i2 + 1:] + self.tlb1(t5, 255)
            late0 = []
        L += self.build_srd(SRD_CIN, S_CIN, 105456)
        L += [f'buffer_load_dword v255, v{T}, {srd(SRD_CIN)}, s{S_T0} offen'] if o.coop else []
        L += self.build_srd(SRD_W, S_W1, 1664 * 3328) if not o.c0l else []

        def pfw():
            if o.nopf & 4:
                return []
            return [f's_mov_b64 exec, {((1 << (13 + o.pfr)) - 1) & ~(0x1fff if o.nopf & 1 else 0)}', f'buffer_load_dword v255, v{vPWL}, {srd(SRD_W)}, s{S_PW} offen', 's_mov_b64 exec, -1',
                    f's_add_u32 s{S_PW}, s{S_PW}, {352 * 3328}']
        L += ['s_barrier'] + (pfw() if o.pf1 in (0, 3) else [])
        L += self.build_srd(SRD_IDX, S_IDX, 4096 * 104) if not o.c0l else []

        def pfx_a():
            return [] if o.nopf & 2 else [f'buffer_load_dword v{PXR}, v{vPXL}, {srd(SRD_IDX)}, s{S_PX} offen',
                    f's_cmp_eq_u32 s{S_PX}, s{S_PXE}', f's_cselect_b32 s{S_PXE}, 0x7000000, s{S_PXE}',
                    f's_cselect_b32 s{S_PX}, 0x7000000, s{S_PX}',
                    f's_add_u32 s{S_PX}, s{S_PX}, 24', f's_min_u32 s{S_PX}, s{S_PX}, s{S_PXE}']

        def pfx_b():
            return [] if o.nopf & 2 else [f'v_lshlrev_b32 v{PXR}, 7, v{PXR}', f'buffer_load_dword v255, v{PXR}, {srd(SRD_TAB)}, 0 offen']

        def xidx(XI=XI, off=0, adv=True):
            c = [f'buffer_load_dwordx4 {vr(XI, 4)}, v{vXi}, {srd(SRD_IDX)}, s{S_SAMP} offen offset:{off}']
            if adv:
                c.append(f's_add_u32 s{S_SAMP}, s{S_SAMP}, {8 * 104}')
            return c

        def xdma(XI=XI, lo=0):
            c = []
            for u in range(4):
                if u == 2:
                    c += ['s_mov_b32 exec_hi, 0x0000ffff']
                c += [f'v_lshl_add_u32 v{XI + u}, v{XI + u}, 7, v{vC16}']
                if u == 3:
                    c += ['s_mov_b32 exec_lo, 0', 's_mov_b32 exec_hi, 0xffff0000', f'v_mov_b32 v{XI + 3}, v{XI + 1}', f'v_mov_b32 v{XI + 2}, v{XI + 1}',
                          's_mov_b32 exec_hi, 0x00ff0000', f'v_mov_b32 v{XI + 2}, v{XI}', 's_mov_b64 exec, -1']
            for u in range(4):
                c += [f's_add_u32 m0, s{S_BCUR}, {u * XPI + lo}']
                if u == 3:
                    c += ['s_mov_b32 exec_hi, 0x00ffffff']
                c.append(I(f'buffer_load_dwordx4 v{XI + u}, {srd(SRD_TAB)}, 0 offen lds', tag='XB'))
                if u == 3:
                    c += ['s_mov_b32 exec_hi, -1']
            return c
        wco = self.build_srd(SRD_WCO, S_WCO, 156) + [f's_mov_b32 m0, {L_WCO}', 's_mov_b64 exec, 0x7ff',
              I(f'buffer_load_dwordx4 v{vStg}, {srd(SRD_WCO)}, 0 offen lds', tag='STG3'),
              's_mov_b64 exec, -1']
        L += self.stamp0()

        def stage(dst, goff, tag):
            sh = o.w1s and dst == A1
            st = []
            for m in range(8):
                st.append((f's_add_u32 m0, s{S_STG}, {dst + m * 4096}', f's_add_u32 s{S_TW}, s{S_STG}, {goff + m * 4096 - (4 if sh and m >= 5 else 0)}',
                           I(f'buffer_load_dwordx4 v{vStX if sh and m == 5 else vStg}, {srd(SRD_CIN)}, s{S_TW} offen lds', tag=tag)))
            g9 = (f's_add_u32 s{S_TW}, s{S_STG9}, {goff}',) if not sh else (f's_lshr_b32 s{S_TW}, s{S_STG9}, 13', f's_sub_u32 s{S_TW}, s{S_STG9}, s{S_TW}')
            st.append((f's_add_u32 m0, s{S_STG9}, {dst}',) + g9 + (f's_mov_b64 exec, s[{S_EX}:{S_EX + 1}]',
                       I(f'buffer_load_dwordx4 v{vStg}, {srd(SRD_CIN)}, s{S_TW} offen lds', tag=tag),
                       's_mov_b64 exec, -1'))
            return st
        vStX = 248
        if o.w1s:
            L += [f'v_add_u32 v{vStX}, s{S_STG}, v{vStg}', f'v_cmp_gt_u32 vcc, {16 * 1352 - 5 * 4096}, v{vStX}', f'v_cndmask_b32 v{vStX}, 0, 4, vcc',
                  f'v_add_u32 v{vStX}, v{vStX}, v{vStg}']

        L += [f's_cmp_lg_u32 s{S_GRP}, 0', 's_cbranch_scc1 L_g1a']
        c0 = self.seq(L)
        sA, sB = (('1', A1, 0, F_W1), ('2', A2, 35152, F_W2)) if o.w1first else (('2', A2, 35152, F_W2), ('1', A1, 0, F_W1))
        stA, stB = stage(sA[1], sA[2], 'STG' + sA[0]), stage(sB[1], sB[2], 'STG' + sB[0])
        stg = [wco + stage(A3, 70304, 'STG3') + stA[:o.sigat],
               sig(F_W3, vm_tags=['STG3']) + self.stamp(1) + stA[o.sigat:] + stB[:o.sig2],
               sig(sA[3], vm_tags=['STG' + sA[0]]) + stB[o.sig2:]]
        g0a = self.seq(stg[:o.ccpos] + ['s_branch L_addrc'] if o.ccpos < 9 else ['s_branch L_g0pf'])
        L = ['L_g1a:', 's_setprio 1',
             f'v_bfe_u32 v{t3}, v0, 2, 2', f'v_lshl_add_u32 v{t3}, v{half}, 3, v{t3}',
             f'v_bfe_u32 v{t4}, v0, 4, 1', f'v_lshlrev_b32 v{t4}, 5, v{t4}',
             f'v_and_b32 v{t5}, 3, v0', f'v_lshl_add_u32 v{t4}, v{t5}, 3, v{t4}',
             f'v_lshl_add_u32 v{vA3}, v{t3}, 6, v{t4}', f'v_add_u32 v{vA3}, {V3OFF}, v{vA3}',
             f's_lshl_b32 s{S_T0}, s{cw}, 6', f's_add_u32 s{S_T0}, s{S_T0}, {A2}',
             f'v_add_u32 v{t4}, s{S_T0}, v{t4}',
             f'v_mul_u32_u24 v{t5}, 1352, v{t3}', f'v_add_u32 v{vBs0}, v{t4}, v{t5}',
             f'v_add_u32 v{t5}, 16, v{t3}', f'v_min_u32 v{t5}, 25, v{t5}',
             f'v_mul_u32_u24 v{t5}, 1352, v{t5}', f'v_add_u32 v{vBs1a}, v{t4}, v{t5}',
             f'v_add_u32 v{t5}, 20, v{t3}', f'v_min_u32 v{t5}, 25, v{t5}',
             f'v_mul_u32_u24 v{t5}, 1352, v{t5}', f'v_add_u32 v{vBs1b}, v{t4}, v{t5}',
             f's_lshl_b32 s{S_T0}, s{cw}, 5', f'v_add_u32 v{vE}, s{S_T0}, v{i32}',
             f'v_mul_u32_u24 v{t3}, 52, v{vE}', f'v_lshl_add_u32 v{t3}, v{half}, 3, v{t3}',
             f'v_add_u32 v{vUw}, {A3}, v{t3}',
             f'v_lshlrev_b32 v{t3}, 1, v{vE}', f'v_add_u32 v{vV2w}, {V2OFF}, v{t3}',
             f'v_mov_b32 v{BT}, 0', f'v_mov_b32 v{BT + 1}, 0',
             f'v_lshlrev_b32 v{t3}, 3, v0', f'v_add_u32 v{t4}, {V3OFF}, v{t3}',
             f's_lshl_b32 s{S_T0}, s{cw}, 9', f'v_add_u32 v{t4}, s{S_T0}, v{t4}', f'ds_write_b64 v{t4}, {vr(BT, 2)}']
        L += [f'v_lshl_add_u32 v{t3}, v{half}, 7, v{vE}', f's_mov_b32 s{S_T1}, 2521', f's_mov_b32 s{S_T2}, {V3OFF}']
        for p_ in range(3):
            L += [f'v_mul_u32_u24 v{t4}, s{S_T1}, v{t3}', f'v_lshrrev_b32 v{t4}, 16, v{t4}',
                  f'v_mad_u32_u24 v{t4}, v{t4}, 12, s{S_T2}', f'v_lshl_add_u32 v{AD + p_}, v{t3}, 1, v{t4}']
            if p_ < 2:
                L += [f'v_add_u32 v{t3}, 256, v{t3}']
        L += [f'v_mov_b32 v{t4}, 676', f'v_cmp_gt_u32 s[{S_MASK}:{S_MASK + 1}], v{t4}, v{t3}']
        for m in range(6):
            L += [f'v_add_u32 v{t3}, {128 * m}, v{vE}', f'v_mul_u32_u24 v{t4}, s{S_T1}, v{t3}', f'v_lshrrev_b32 v{t4}, 16, v{t4}',
                  f'v_lshl_add_u32 v{t4}, v{t4}, 2, v{vUw}', f'v_add_u32 v{AD + 4 + m}, {m * 6656}, v{t4}']
        L += [f'v_lshlrev_b32 v{AD + 10}, 4, v{half}', f'v_add_u32 v{AD + 10}, {L_WCO + 104}, v{AD + 10}',
              f'v_lshlrev_b32 v{AD + 11}, 1, v0', f'v_add_u32 v{AD + 11}, {L_WCO}, v{AD + 11}',
              f'v_lshlrev_b32 v{AD + 12}, 6, v0', f'v_add_u32 v{AD + 12}, {V3OFF + 52}, v{AD + 12}']
        g1a = self.seq(L)

        N_ = (0, 1, 2, 3)
        classes = []
        for d in ZD:
            for (a, ha, b, hb) in d:
                if cls(a, ha)[1] == N_ and cls(b, hb)[1] != N_ and cls(b, hb)[1] not in classes:
                    classes.append(cls(b, hb)[1])
        assert len(classes) == 5
        base = {(N_, N_): GB}
        for k, c in enumerate(classes):
            base[(N_, c)] = GB + 1 + 2 * k
            base[(c, N_)] = GB + 2 + 2 * k
        SP1, SP2 = GB + 11, GB + 12
        pk4 = lambda t: '0x%08x' % sum((x & 0xff) << (8 * k) for k, x in enumerate(t))
        L = ['L_addrc:'] + late0 + [
             f's_and_b32 s{S_T2}, s{S_WAVE}, 1', f's_lshl_b32 s{S_T2}, s{S_T2}, 1', f'v_add_u32 v{vg}, s{S_T2}, v{half}',
             f'v_min_u32 v{t3}, 25, v{i32}',
             f's_mul_i32 s{S_T0}, s{S_GRP}, {UST - 1352}', f's_add_u32 s{S_T0}, s{S_T0}, 1352',
             f's_mul_i32 s{S_T1}, s{S_GRP}, {A3 - A1}', f's_add_u32 s{S_T1}, s{S_T1}, {A1}',
             f'v_mul_u32_u24 v{t4}, s{S_T0}, v{t3}', f'v_add_u32 v{t4}, s{S_T1}, v{t4}',
             f'v_lshlrev_b32 v{vDl}, 2, v{t3}', f'v_add_u32 v{vDl}, {A3 - A1}, v{vDl}'] + ([
             f's_lshl_b32 s{S_T0}, s{S_GRP}, 2', f's_xor_b32 s{S_T0}, s{S_T0}, 4', f'v_lshrrev_b32 v{t5}, 2, v{t3}', f'v_and_b32 v{t5}, s{S_T0}, v{t5}',
             f'v_add_u32 v{t4}, v{t4}, v{t5}', f'v_sub_u32 v{vDl}, v{vDl}, v{t5}'] if o.w1s else []) + [
             f'v_mul_u32_u24 v{vL}, 52, v{t3}', f'v_lshl_add_u32 v{vL}, v{vg}, 1, v{vL}', f'v_add_u32 v{vL}, {V2OFF}, v{vL}',
             f'v_lshlrev_b32 v{vWo}, 1, v{t3}', f'v_add_u32 v{vWo}, {L_WCO}, v{vWo}',
             f'v_mad_u32_u24 v{SP1}, v{vg}, 52, v{t4}',
             f'v_lshl_add_u32 v{SP2}, v{vg}, 1, v{t4}',
             f'v_lshl_add_u32 v{GB}, v{vg}, 1, v{SP1}',
             f'v_lshlrev_b32 v{t3}, 3, v{vg}']
        for k, c in enumerate(classes):
            L += [f's_mov_b32 s{S_T0}, {pk4(c)}', f'v_bfe_i32 v{t5}, s{S_T0}, v{t3}, 8',
                  f'v_lshl_add_u32 v{GB + 1 + 2 * k}, v{t5}, 1, v{SP1}', f'v_mad_i32_i24 v{GB + 2 + 2 * k}, v{t5}, 52, v{SP2}']
        L += [f's_mov_b32 s{S_T0}, {pk4((0, 54, 2, 0))}', f'v_bfe_u32 v{t5}, s{S_T0}, v{t3}, 8', f'v_add_u32 v{SP1}, v{t5}, v{t4}',
              f'v_add_u32 v{SP2}, 52, v{t4}', f'v_mov_b32 v{vm}, {OOB}',
              f'v_cmp_eq_u32 vcc, 3, v{vg}', f'v_cndmask_b32 v{SP1}, v{SP1}, v{vm}, vcc', f'v_cndmask_b32 v{vWo}, v{vm}, v{vWo}, vcc',
              f'v_cmp_eq_u32 vcc, 2, v{vg}', f'v_cndmask_b32 v{SP2}, v{vm}, v{SP2}, vcc',
              f'v_cmp_gt_u32 vcc, 2, v{vg}', f'v_cndmask_b32 v{vL6}, v{vm}, v{vL}, vcc']
        L += [f's_lshr_b32 s{S_T1}, s{cw}, 1', f's_mul_i32 s{S_T1}, s{S_T1}, {6 * 1024}', f's_mul_i32 s{S_T0}, s{S_GRP}, {6 * 1024}',
              f'v_lshlrev_b32 v{t5}, 8, v{vg}',
              f'v_lshl_add_u32 v{t3}, v{i32}, 4, v{t5}', f'v_add_u32 v{vWr}, {TA}, v{t3}', f'v_add_u32 v{vWu}, {TB}, v{t3}',
              f'v_bfe_u32 v{t3}, v0, 2, 2', f'v_lshl_add_u32 v{t5}, v{t3}, 4, v{t5}', f'v_and_b32 v{t3}, 3, v0',
              f'v_lshl_add_u32 v{t4}, v{t3}, 6, v{t5}', f'v_add_u32 v{t4}, {TC}, v{t4}',
              f'v_cmp_lt_u32 vcc, 15, v{i32}', f'v_cndmask_b32 v{vWr}, v{vWr}, v{t4}, vcc', f'v_add_u32 v{t4}, 16, v{t4}',
              f'v_cndmask_b32 v{vWu}, v{vWu}, v{t4}, vcc',
              f'v_lshl_add_u32 v{t4}, v{t3}, 5, v{t5}', f'v_add_u32 v{t4}, {TD - 16}, v{t4}',
              f'v_cmp_lt_u32 vcc, 19, v{i32}', f'v_cndmask_b32 v{vWr}, v{vWr}, v{t4}, vcc',
              f'v_add_u32 v{vWr}, s{S_T1}, v{vWr}', f'v_add_u32 v{vWu}, s{S_T0}, v{vWu}',
              f'v_cmp_lt_u32 vcc, 25, v{i32}', f'v_cndmask_b32 v{vWr}, v{vWr}, v{vm}, vcc', f'v_cndmask_b32 v{vWu}, v{vWu}, v{vm}, vcc',
              f'v_mov_b32 v{vMx}, 0']
        L += [f's_mul_i32 s{S_BCUR}, s{S_WAVE}, {XBSZ}', f's_add_u32 s{S_BCUR}, s{S_BCUR}, {XB0}', f's_mov_b32 s{S_BD}, {XB1 - XB0}',
              f'v_add_u32 v{aD}, {TA}, v{vStg}',
              f'v_and_b32 v{t3}, 11, v0', f'v_cmp_eq_u32 vcc, 11, v{t3}', f'v_cndmask_b32 v{aC}, v{aD}, v{vm}, vcc',
              f'v_and_b32 v{t3}, 3, v0', f'v_cmp_eq_u32 vcc, 0, v{t3}', f'v_cndmask_b32 v{aLc}, v{aC}, v{vm}, vcc',
              f'v_lshrrev_b32 v{vg}, 4, v0', f'v_bfe_u32 v{t3}, v0, 1, 3', f'v_lshlrev_b32 v{t5}, 4, v{t3}', f'v_add_u32 v{t5}, {TD}, v{t5}',
              f'v_and_b32 v{t3}, 10, v0', f'v_cmp_eq_u32 vcc, 10, v{t3}', f'v_cndmask_b32 v{t5}, v{t5}, v{vm}, vcc',
              f'v_and_b32 v{t4}, 1, v0', f'v_lshl_add_u32 v{aS}, v{vg}, 9, v{t5}', f'v_lshl_add_u32 v{aS}, v{t4}, 2, v{aS}', f'v_add_u32 v{aS}, 1024, v{aS}',
              f'v_lshl_add_u32 v{FT}, v{vg}, 8, v{t5}', f'v_lshl_add_u32 v{FT}, v{t4}, 20, v{FT}',
              f'v_and_b32 v{vm}, 15, v0', f's_mov_b32 s{S_T0}, {XPI}',
              f'v_lshlrev_b32 v{t3}, 1, v{vm}', f'v_add_u32 v{t3}, s{S_BCUR}, v{t3}',
              f'v_mad_u32_u24 v{vRaw}, v{vg}, s{S_T0}, v{t3}',
              f's_lshl_b32 s{S_T0}, s{S_WAVE}, 10', f's_add_u32 s{S_T0}, s{S_T0}, {XCH}',
              f'v_add_u32 v{vXw}, s{S_T0}, v{vStg}',
              f'v_add_u32 v{t3}, 256, v{vStg}', f'v_and_b32 v{t3}, 1023, v{t3}', f'v_add_u32 v{vX1}, s{S_T0}, v{t3}',
              f'v_xor_b32 v{t3}, 512, v{vStg}', f'v_add_u32 v{vX2}, s{S_T0}, v{t3}', f'v_lshlrev_b32 v{vSh}, 4, v{half}']
        L += [f'v_mov_b32 v{r}, 0' for r in list(range(RAW, RAW + 8)) + list(range(BT, BT + 24))]
        L += [f'v_mul_u32_u24 v{t4}, {XPI}, v{vg}',
              f'v_bfe_u32 v{t5}, v0, 2, 2', f'v_lshl_add_u32 v{t4}, v{t5}, 7, v{t4}',
              f'v_and_b32 v{t5}, 3, v0', f'v_lshl_add_u32 v{vLinB}, v{t5}, 3, v{t4}', f'v_add_u32 v{vLin}, s{S_BCUR}, v{vLinB}',
              f'v_and_b32 v{t5}, 1, v0', f's_mov_b32 s{S_T0}, 0xaaaaaaaa', f'v_mul_lo_u32 v{vSI}, s{S_T0}, v{t5}', f'v_or_b32 v{vSI}, 0x44444444, v{vSI}',
              f'v_lshlrev_b32 v{vOr}, 1, v0', f'v_add_u32 v{vOr}, s{S_BCUR}, v{vOr}', f'v_mov_b32 v{vAcc}, 0x3f80',
              f'ds_write_b16 v{vOr}, v{vAcc} offset:{3 * XPI + 7 * 128}', f'v_add_u32 v{vOr}, s{S_BD}, v{vOr}']
        L += [f's_mul_i32 s{S_T3}, s{S_WAVE}, 6', f's_add_u32 s{S_PX}, s{S_PX}, s{S_T3}', f's_mul_i32 s{S_PX}, s{S_PX}, 104',
              f's_add_u32 s{S_PXE}, s{S_PX}, 80', f's_add_u32 s{S_PX}, s{S_PX}, {4 * o.pfx0}',
              f's_mov_b32 s{S_T3}, 10923', f'v_min_u32 v{t3}, 35, v0',
              f'v_mul_u32_u24 v{t4}, s{S_T3}, v{t3}', f'v_lshrrev_b32 v{t4}, 16, v{t4}',
              f'v_mul_u32_u24 v{t4}, {104 - 24}, v{t4}', f'v_lshl_add_u32 v{vPXL}, v{t3}, 2, v{t4}']
        ccl = list(L[1:])
        L += self.stamp(14) + (pfw() if o.pf1 == 1 else [])
        if o.ccpos < 9:
            L += [f's_cmp_eq_u32 s{S_GRP}, 0', 's_cbranch_scc1 L_g0pf']
        cc = self.seq(L)

        def bread(m, base):
            b = BALL + m * 8
            return [f'ds_read_b64_tr_b16 {vr(b, 2)}, v{vBs0} offset:{base + m * 256}',
                    f'ds_read_b64_tr_b16 {vr(b + 2, 2)}, v{vBs0} offset:{base + m * 256 + 4 * 1352}',
                    f'ds_read_b64_tr_b16 {vr(b + 4, 2)}, v{vBs1a} offset:{base + m * 256}',
                    f'ds_read_b64_tr_b16 {vr(b + 6, 2)}, v{vBs1b} offset:{base + m * 256}']

        def mm6(base, post=lambda m: []):
            c = []
            for m in range(3 if base is not None else 0):
                c += bread(m, base)
            for m in range(6):
                if m + 3 < 6 and base is not None:
                    c += bread(m + 3, base)
                b = BALL + m * 8
                d = DALL + (m % 4) * 16
                c.append(f'v_mfma_f32_32x32x16_bf16 {vr(d, 16)}, {vr(AFR, 4)}, {vr(b, 4)}, 0')
                c.append(f'v_mfma_f32_32x32x16_bf16 {vr(d, 16)}, {vr(AFR + 4, 4)}, {vr(b + 4, 4)}, {vr(d, 16)}')
                if m >= 2:
                    c += post(m - 2)
            return c + post(4) + post(5)

        e1 = [f's_sub_u32 s{S_T0}, s{S_PX}, {24 * 104}', f'buffer_load_dword v{XJ + 4}, v{vPXL}, {srd(SRD_IDX)}, s{S_T0} offen',
              f'buffer_load_dword v{XJ + 5}, v{vPXL}, {srd(SRD_IDX)}, s{S_PX} offen']
        e2 = [f'v_lshlrev_b32 v{XJ + 4}, 7, v{XJ + 4}', f'buffer_load_dword v255, v{XJ + 4}, {srd(SRD_TAB)}, 0 offen',
              f'v_lshlrev_b32 v{XJ + 5}, 7, v{XJ + 5}', f'buffer_load_dword v255, v{XJ + 5}, {srd(SRD_TAB)}, 0 offen']
        if o.nopf & 8:
            e1, e2 = [], []
        xx = xdma() + xdma(XJ, -4 * XBSZ) + xidx()
        gl = [f's_sub_u32 s{S_SAMP}, s{S_SAMP}, {4 * 104}'] + xidx(XJ, 0, False) + [f's_add_u32 s{S_SAMP}, s{S_SAMP}, {4 * 104}'] + xidx()
        gl += e1 + [f's_add_u32 s{S_PX}, s{S_PX}, 24'] + pfx_a()
        L = sig(F_W3) + (gl if not o.g1l else [])
        L += wait(F_W3, 8) + self.stamp(2)
        uc0 = self.seq(L)
        L = []
        for s2 in range(2):
            for rd in range(2):
                L.append(f'ds_read_b64 {vr(AFR + 4 * s2 + 2 * rd, 2)}, v{AD + 10} offset:{s2 * 32 + rd * 8}')
        L += [f'ds_read_u16 v{t5}, v{AD + 11} offset:52']

        def vpost(m):
            p_ = m // 2
            c = [f'v_cvt_pk_bf16_f32 v{V3T + p_}, v{DALL + 16 * (m % 4)}, 0']
            if m % 2:
                c = ['s_mov_b32 exec_lo, 0'] + c + [f's_mov_b64 exec, s[{S_MASK}:{S_MASK + 1}]' if p_ == 2 else 's_mov_b32 exec_lo, -1',
                                                    f'ds_write_b16 v{AD + p_}, v{V3T + p_}']
            return c
        L += mm6(A3 - A2, vpost)
        L += ['s_mov_b64 exec, 0x3ffffff', f'ds_write_b16 v{AD + 12}, v{t5}', 's_mov_b64 exec, -1']
        L += self.stamp(3) + sig(F_V3) + (gl if o.g1l else []) + (pfw() if o.pf1 in (2, 3) and o.epos != 3 else []) + [f'v_cmp_gt_u32 s[{S_MASK}:{S_MASK + 1}], 36, v{vE}']
        L += (e2 if o.epos == 0 else []) + (xx if o.xpos == 0 else []) + (e2 if o.epos == 1 else [])
        L += wait(F_W2, 4) + [bread(m, 0) for m in range(6)] + wait(F_V3, 4) + self.stamp(5) + [f's_setprio {o.uprio}'] + (e2 + (pfw() if o.pf1 in (2, 3) else []) if o.epos == 3 else [])
        for s2 in range(2):
            for rd in range(2):
                L.append(f'ds_read_b64_tr_b16 {vr(AFR + 4 * s2 + 2 * rd, 2)}, v{vA3} offset:{s2 * 1024 + rd * 256}')

        def upost(m):
            d = DALL + 16 * (m % 4)
            c = [f'v_cvt_pk_bf16_f32 v{UP + 8 * m + qq}, v{d + 2 * qq}, v{d + 2 * qq + 1}' for qq in range(8)]
            if m == 5:
                c.append(f's_mov_b64 exec, s[{S_MASK}:{S_MASK + 1}]')
            w_ = [f'ds_write2_b32 v{AD + 4 + m}, v{UP + 8 * m + 2 * a}, v{UP + 8 * m + 2 * a + 1} offset0:{4 * a} offset1:{4 * a + 1}' for a in range(3)]
            return c + interleave(w_, [f'v_max3_f32 v{vMx}, v{vMx}, abs(v{d + 2 * qq}), abs(v{d + 2 * qq + 1})' for qq in range(7)])
        L += mm6(None, upost)
        L.append('s_mov_b32 exec_hi, 0')
        for m in (5, 4, 3, 2, 1, 0):
            L.append(f'ds_write_b32 v{AD + 4 + m}, v{UP + 8 * m + 6} offset:48')
            L.append(f'ds_write_b16 v{vV2w}, v{UP + 8 * m + 7} offset:{m * 256}')
            if m == 5:
                L.append('s_mov_b32 exec_lo, -1')
        L += ['s_mov_b64 exec, -1'] + postmax(vMx, F_U) + [f's_setprio {o.bprio}'] + (xx if o.xpos == 1 else []) + (e2 if o.epos == 2 else []) + self.stamp(6) + ['s_branch L_uph']
        uc = self.seq(L)

        if o.ccpos == 9:
            grp = lambda x: [tuple(flat([y])) for y in x]
            dm = [tuple(wco)] + grp(stage(A3, 70304, 'STG3')) + grp(stA[:o.sigat]) + [tuple(sig(F_W3, vm_tags=['STG3']) + self.stamp(1))] + grp(stA[o.sigat:]) + grp(stB[:o.sig2])
            dm += [tuple(sig(sA[3], vm_tags=['STG' + sA[0]]))] + grp(stB[o.sig2:])
            n0, n1, n2 = o.cc0, o.cc2, len(ccl) - o.cc1
            stg = [dm[:n0] + interleave(ccl[:n2], dm[n0:n1]) + dm[n1:] + ccl[n2:] + self.stamp(14)]
        L = ['L_g0pf:'] + stg[o.ccpos % 9:] + [f's_add_u32 s{S_SAMP}, s{S_SAMP}, {8 * 104}', f's_add_u32 s{S_PX}, s{S_PX}, 24'] + xidx() + pfx_a()
        L += (pfw() if o.pf1 in (2, 3) else []) + sig(sB[3], vm_tags=['STG' + sB[0]]) + self.stamp(4) + [f's_mov_b32 s{S_PH}, 0'] + wait(F_W1, 4) + self.stamp(2)
        L += [f's_cmp_ge_u32 s{cw}, 2', 's_cbranch_scc1 L_chunk2']
        g0pf = self.seq(L)

        def chunk(k):
            units = [(n, h) for n in range(12 * k, min(12 * k + 12, 44)) for h in range(2)]
            NB_, BA = 12, o.ba
            reads, maths = [], []
            for ui, (n, h) in enumerate(units):
                a, ha, b, hb = ZD[n][h]
                (fa, ca), (fb, cb) = cls(a, ha), cls(b, hb)
                tb = BT + (ui % NB_) * 2
                dst = SUM + 24 * (k % 2) + ui
                if ca != N_:
                    R = [f'ds_read_u16_d16_hi v{tb}, v{SP1} offset:{54 * 24}', f'ds_read_u16_d16_hi v{tb + 1}, v{SP2} offset:{54 * 24}']
                    M = [f'v_add_f32 v{dst}, v{tb}, v{tb + 1}']
                elif (a, ha) == (b, hb):
                    R = [f'ds_read_u16_d16_hi v{tb}, v{base[(ca, cb)]} offset:{54 * fa}']
                    M = [f'v_mov_b32 v{dst}, v{tb}']
                else:
                    R = [f'ds_read_u16_d16_hi v{tb}, v{base[(ca, cb)]} offset:{52 * fa + 2 * fb}',
                         f'ds_read_u16_d16_hi v{tb + 1}, v{base[(cb, ca)]} offset:{52 * fb + 2 * fa}']
                    M = [f'v_add_f32 v{dst}, v{tb}, v{tb + 1}']
                if ui % 2:
                    M = M + maths[-1] + [f'v_max3_f32 v{vMx}, v{vMx}, abs(v{dst - 1}), abs(v{dst})']
                    maths[-1] = []
                reads.append(R)
                maths.append(M)
            code = []
            nu = len(units)
            for ui in range(nu + BA):
                if ui < nu:
                    code += reads[ui]
                if ui == nu and k == 3:
                    code += [f'ds_read_u16_d16_hi v{LT + e}, v{vL} offset:{8 * e}' for e in range(6)]
                    code += [f'ds_read_u16_d16_hi v{LT + 6}, v{vL6} offset:48', f'ds_read_u16_d16_hi v{LT + 7}, v{vWo}']
                if ui >= BA:
                    code += maths[ui - BA]
            return code
        LT = BT + 8
        assert o.ba <= 8

        def conv(n):
            c = [f'v_fma_mix{"hi" if h else "lo"}_f16 v{OUT + q}, v{SUM + 2 * q + h}, s{S_SC}, 0' for h in range(2) for q in range(4 * n, 4 * n + 4)]
            if o.wr8:
                m_ = (1 << o.wr8) - 1
                c += [f'v_add_u32 v{OUT + q}, {(1 << (o.wr8 - 1)) * 0x10001}, v{OUT + q}' for q in range(4 * n, 4 * n + 4)]
                c += [f'v_and_b32 v{OUT + q}, {0xffffffff ^ (m_ * 0x10001)}, v{OUT + q}' for q in range(4 * n, 4 * n + 4)]
            return c
        wr = lambda n, A: [f'ds_write_b128 v{A}, {vr(OUT + 4 * n, 4)} offset:{n * 1024}']
        ch, chb = [], []
        for k in range(4):
            ch.append(self.seq([f'L_chunk{k}:'] + chunk(k) + [f's_cmp_lg_u32 s{S_PH}, 0', f's_cbranch_scc1 L_uconv{k % 2}']))
            chb.append(self.seq(['s_branch L_w1conv'] if k == 1 else []))
        L = ['L_w1conv:'] + self.stamp(3) + postmax(vMx, F_M)
        L += [f'v_add_u32 v{GB + k}, v{GB + k}, v{vDl}' for k in range(13)]
        L += waitmax(F_M, S_T2, 141) + setsc(S_T2) + self.stamp(5)
        L += conv(0) + conv(1) + wr(0, vWr) + conv(2) + wr(1, vWr) + conv(3) + wr(2, vWr) + conv(4) + wr(3, vWr) + wr(4, vWr)
        L += [f's_cmp_ge_u32 s{cw}, 2', 's_cbranch_scc1 L_w1x']
        w1a = self.seq(L)
        w1b = self.seq(conv(5) + wr(5, vWr))
        w1c = self.seq(['L_w1x:'])
        xbsig = lambda: [WaitTag(vm_tags=['XB']), f'v_mov_b32 v{vF}, s{S_GRP}', f'ds_add_u32 v{vFA}, v{vF} offset:{F_XB}']
        L = ['L_uph:'] + self.stamp(7) + (self.tlb2(vZ, vFl) if o.lb else []) + waitmax(F_U, S_T3, 140) + setsc(S_T3) + self.stamp(12)
        L += [f's_mov_b32 s{S_PH}, 1', f's_lshr_b32 s{S_T1}, s{S_WAVE}, 1',
              f's_cmp_eq_u32 s{S_T1}, 0', 's_cbranch_scc1 L_chunk0', f's_cmp_eq_u32 s{S_T1}, 1', 's_cbranch_scc1 L_chunk1',
              f's_cmp_eq_u32 s{S_T1}, 2', 's_cbranch_scc1 L_chunk2', 's_branch L_chunk3']
        uph = self.seq(L)
        wm1 = lambda: (xbsig() if o.lb else []) + waitmax(F_M, S_T2, 141)
        u0 = self.seq(['L_uconv0:'] + self.stamp(13) + conv(0) + wm1() + wr(0, vWu) + conv(1) + wr(1, vWu) + conv(2) + wr(2, vWu) + ['s_branch L_built'])
        u1a = self.seq(['L_uconv1:'] + self.stamp(13) + conv(3) + wm1() + wr(3, vWu) + conv(4) + wr(4, vWu) + [f's_cmp_lg_u32 s{S_GRP}, 0', 's_cbranch_scc1 L_ulin'])
        u1b = self.seq(conv(5) + wr(5, vWu) + ['s_branch L_built'])
        L = ['L_ulin:'] + [f'v_mul_f32 v{LT + e}, s{S_SC}, v{LT + e}' for e in range(8)]
        L += [f'v_cvt_pk_bf16_f32 v{OUT + 20 + q}, v{LT + 2 * q}, v{LT + 2 * q + 1}' for q in range(4)] + wr(5, vWu)
        u1c = self.seq(L)

        w0x = self.build_srd(SRD_W2, S_W2, 3328) + [f'v_lshlrev_b32 v{FT}, 7, v0', f'buffer_load_dword v255, v{FT}, {srd(SRD_W2)}, 0 offen']

        slot = lambda k: RZ + 4 * (k % 4)
        MF = [('Lb', 0), ('a', 1), ('b', 1), ('d', 1), ('Lc', 0), ('a', 2), ('c', 1), ('b', 2), ('c', 2)]
        for k in range(3, 10):
            MF += ([('S', k)] if k % 2 else []) + [('a', k), ('b', k), ('c', k)]
        MF += [('a', 10), ('b', 10), ('a', 11), ('b', 11), ('c', 10), ('S', 11), ('c', 11)]
        if o.mo == 1:
            MF = [('Lb', 0), ('a', 1), ('d', 1), ('Lc', 0), ('b', 1), ('a', 2), ('c', 1), ('b', 2), ('a', 3), ('c', 2), ('S', 3), ('b', 3), ('c', 3)]
            for k in range(4, 10):
                MF += ([('S', k)] if k % 2 else []) + [('a', k), ('b', k), ('c', k)]
            MF += [('a', 10), ('b', 10), ('c', 10), ('a', 11), ('b', 11), ('S', 11), ('c', 11)]
        if o.mo == 2:
            MF = [('d', 1), ('Lb', 0), ('a', 1), ('Lc', 0), ('b', 1), ('a', 2), ('c', 1), ('b', 2), ('a', 3), ('c', 2), ('S', 3), ('b', 3), ('c', 3)]
            for k in range(4, 12):
                MF += ([('S', k)] if k % 2 else []) + [('a', k), ('b', k), ('c', k)]
        if o.mo == 3:
            MF = [('d', 1), ('Lb', 0), ('b', 1), ('a', 1), ('Lc', 0), ('c', 1)]
            for k in range(2, 12, 2):
                MF += [('c', k), ('c', k + 1), ('S', k + 1), ('a', k), ('a', k + 1), ('b', k), ('b', k + 1)] if k % 4 == 2 and k < 10 else \
                      [('b', k), ('b', k + 1), ('S', k + 1), ('a', k), ('a', k + 1), ('c', k), ('c', k + 1)]
        if o.mo == 4:
            MF = [('Lb', 0), ('b', 1), ('a', 1), ('d', 1), ('Lc', 0), ('c', 1)]
            for k, od in zip(range(2, 12, 2), ('cSab', 'bSca', 'aSbc', 'cSba', 'abSc')):
                for t_ in od:
                    MF += [('S', k + 1)] if t_ == 'S' else [(t_, k), (t_, k + 1)]
        NM = len(MF)
        use = {k: [m for m, (t_, kk) in enumerate(MF) if kk == k or (t_ == 'S' and kk == k + 1)] for k in range(12)}
        pos = lambda t_, k: MF.index((t_, k))

        def mfma(m):
            t_, k = MF[m]
            if t_[0] == 'L':
                d, w = {'b': (Db, WL), 'c': (Dc, WL + 4)}[t_[1]]
                return f'v_mfma_f32_16x16x32_bf16 {vr(d, 4)}, {vr(w, 4)}, {vr(slot(0), 4)}, 0'
            if t_ == 'S':
                return f'v_smfmac_f32_16x16x64_f16 {vr(Ds, 4)}, {vr(WS_ + 2 * (k - 1), 4)}, {vr(slot(k - 1), 8)}, v{vSI}'
            d, w = {'a': (Da, WA), 'b': (Db, WB), 'c': (Dc, WC), 'd': (Ds, WS_)}[t_]
            return f'v_mfma_f32_16x16x32_f16 {vr(d, 4)}, {vr(w + 4 * (k - 1), 4)}, {vr(slot(k), 4)}, {"0" if t_ in "ad" and k == 1 else vr(d, 4)}'

        def wload(m):
            t_, k = MF[m]
            if t_[0] == 'L':
                a, w, off = {'b': (aD, WL, TB), 'c': (aLc, WL + 4, TC)}[t_[1]]
                return [f'ds_read_b128 {vr(w, 4)}, v{a} offset:{off - TA + 11 * 1024}']
            if t_ == 'd':
                return [f'ds_read_b128 {vr(WS_, 4)}, v{FT}']
            if t_ == 'S':
                w = WS_ + 2 * (k - 1)
                return [f'ds_read2_b32 {vr(w, 2)}, v{aS} offset0:0 offset1:2', f'ds_read2_b32 {vr(w + 2, 2)}, v{aS} offset0:64 offset1:66',
                        f'v_add_u32 v{aS}, 2048, v{aS}']
            w, a, off = {'a': (WA, aD, 0), 'b': (WB, aD, TB - TA), 'c': (WC, aC, TC - TA)}[t_]
            return [f'ds_read_b128 {vr(w + 4 * (k - 1), 4)}, v{a} offset:{off + (k - 1) * 1024}']

        def zops(n):
            z = slot(n // 4 + 1) + n % 4
            (a, ha, b, hb), (a2, ha2, b2, hb2) = ZD[n]
            if (a, b) == (a2, b2):
                return [f'v_pk_mul_f16 v{z}, v{X + a}, v{X + b} op_sel:[{ha},{hb}] op_sel_hi:[{ha2},{hb2}]']
            return [f'v_mul_f16_sdwa v{z}, v{X + a}, v{X + b} dst_sel:WORD_0 dst_unused:UNUSED_PAD src0_sel:WORD_{ha} src1_sel:WORD_{hb}',
                    f'v_mul_f16_sdwa v{z}, v{X + a2}, v{X + b2} dst_sel:WORD_1 dst_unused:UNUSED_PRESERVE src0_sel:WORD_{ha2} src1_sel:WORD_{hb2}']

        cvt = lambda d, a, b: f'v_cvt_pk_f16_f32 v{d}, v{a}, v{b}'
        LAT = o.lat

        class It:
            def __init__(s, name, G, code, lo, hi, pre):
                s.name, s.G, s.code, s.lo, s.hi, s.pre, s.at = name, G, code, lo, hi, list(pre), None

        NG = 14
        items = {}

        def add(name, G, code, lo=-10**9, hi=10**9, pre=()):
            items[(name, G)] = It(name, G, code, lo, hi, pre)
        usej = lambda j: [n for n, d in enumerate(ZD) if any(a // 4 == j or b // 4 == j for (a, _, b, _) in d)]
        lastz = {j: max(usej(j)) for j in range(3)}
        for G in range(NG):
            c, b0 = G % 4, G * NM
            for r in range(8):
                add(f'raw{r}', G, f'ds_read_u16_d16_hi v{RAW + r}, v{vRaw} offset:{r * 128 + c * 32}', lo=b0 - o.rspan, hi=b0 - o.rlead,
                    pre=[(f'co{q}', G - 1, 0) for q in range(4)] + ([('swr', G, 0)] if c == 0 else []) + ([('lin1', G - 1, 0)] if o.w2 else []))
            for q in range(4):
                add(f'co{q}', G, cvt(X + q - 1, RAW + q - 1, RAW + q + 2) if q else cvt(X + 3, RAW + 6, RAW + 7), hi=b0 - 4 if not o.w2 else b0 - 9,
                    pre=[(f'raw{r}', G, LAT) for r in range(8)] + [(f'z{lastz[0]}', G - 1, 0)])
            add('wo', G, f'ds_write_b128 v{vXw}, {vr(X, 4)}', hi=b0 - 2 if not o.w2 else b0 - 8, pre=[(f'co{q}', G, 0) for q in range(4)] + [('r2', G - 1, 0)])
            add('r1', G, f'ds_read_b128 {vr(X + 4, 4)}, v{vX1}', hi=b0 if not o.w2 else b0 - 7, pre=[('wo', G, o.wgap)])
            add('r2', G, f'ds_read_b128 {vr(X + 8, 4)}, v{vX2}', hi=b0 + 1 if not o.w2 else b0 - 7, pre=[('r1', G, 0)])
            for q in range(3):
                add(f'al{q}', G, f'v_alignbit_b32 v{X + 8 + q}, v{X + 8 + q}, v{X + 8 + q}, v{vSh}', lo=b0 + min(use[0]) if o.w2 else -10**9, hi=b0 + 20, pre=[('r2', G, LAT)])
            if c == 0:
                add('swr', G, [f'v_add_u32 v{vRaw}, s{S_BD}, v{vRaw}', WaitTag(vm_tags=['XB'])], lo=b0 - o.rspan - 1, hi=b0 - o.rspan - 1,
                    pre=[(f'raw{r}', G - 1, 0) for r in range(8)])
            for p in range(2):
                add(f'lin{p}', G, f'ds_read_b64_tr_b16 {vr(slot(0) + 2 * p, 2)}, v{vLin} offset:{p * 512 + c * 32}',
                    lo=b0 - NM + max(use[8]), hi=b0 + min(use[0]) - 1 - LAT, pre=([('swl', G, 0)] if c == 0 else []) + ([('r2', G, 0)] if o.w2 else []))
            if c == 0:
                add('swl', G, [f's_add_u32 s{S_TW}, s{S_BCUR}, s{S_BD}', f'v_add_u32 v{vLin}, s{S_TW}, v{vLinB}'], lo=b0 - NM + 20, hi=b0 - 12,
                    pre=[(f'lin{p}', G - 1, 0) for p in range(2)])
            for n in range(44):
                k = n // 4 + 1
                js = {x // 4 for (a, _, b, _) in ZD[n] for x in (a, b)}
                pre = [(f'co{q}', G, 0) for q in range(4)] + ([('r1', G, LAT)] if 1 in js else []) + ([(f'al{q}', G, 0) for q in range(3)] if 2 in js else [])
                if n:
                    pre.append((f'z{n - 1}', G, 0))
                if k == 5 and n % 4 < 3:
                    pre.append(('or1', G, 0))
                lo = b0 + max(use[k - 4]) if k >= 4 else b0 - NM + max(use[k + 8])
                if k == 1:
                    lo = max(lo, b0 - o.z1lo)
                zc = zops(n)
                if n == 12:
                    zc = [zops(12)[0], zops(13)[0]]
                if n == 13:
                    zc = [zops(12)[1], zops(13)[1]]
                add(f'z{n}', G, zc, lo=lo, hi=b0 + min(use[k]) - 2, pre=pre)
            s1 = slot(1)
            if c == 1:
                add('or1', G, f'v_or3_b32 v{vOr}, v{s1}, v{s1 + 1}, v{s1 + 2}', hi=b0 + 6, pre=[('z2', G, 0), ('blk', G - 2, 0)])
                add('ck', G, [f'v_and_b32 v{vOr}, 0x60006000, v{vOr}', f'v_cmp_ne_u32 s[{S_CHK}:{S_CHK + 1}], 0, v{vOr}'], hi=b0 + 30, pre=[('or1', G, 0)])
            e = b0 + NM
            rdy = lambda t_: b0 + pos(t_, 11) + o.flo
            for r in range(4):
                add(f'f{r}', G, f'v_{"mul" if c == 0 and r == 0 else "fmac"}_f32 v{vAcc}, v{Da + r}, v{Db + r}', lo=min(max(rdy('a'), rdy('b')), e + pos('Lb', 0) - 1), hi=e + pos('Lb', 0) - 1,
                    pre=[(f'f{r - 1}', G, 0) if r else ('f8', G - 1, 0)] + ([('blk', G - 1, 0)] if c == 0 else []))
            for r in range(2):
                add(f'f{4 + r}', G, f'v_add_f32 v{FT + r}, v{Ds + 2 * r}, v{Ds + 2 * r + 1}', lo=min(rdy('S'), e + pos('d', 1) - 1), hi=e + pos('d', 1) - 1,
                    pre=[('f8', G - 1, 0)] + ([('blk', G - 1, 0)] if c == 0 else []))
            for r, (x, y) in enumerate(((Dc, Dc + 1), (FT, Dc + 2), (FT + 1, Dc + 3))):
                add(f'f{6 + r}', G, f'v_fmac_f32 v{vAcc}, v{x}, v{y}', lo=rdy('c'), hi=e + pos('Lc', 0) - 1, pre=[(f'f{5 + r}', G, 0), ('f3', G, 0), ('f4', G, 0)])
            if c == 3:
                for q, x in enumerate(dppred('v_add_f32', vAcc)):
                    add(f'dp{q}', G, x, hi=e + 7 + 2 * q, pre=[(f'dp{q - 1}', G, 2) if q else ('f8', G, 2)])
                add('blk', G, '@BLK', hi=e + 20, pre=[('dp5', G, 1)])
        order = list(items.values())
        gaps = {}
        isv = lambda x: isinstance(x, str) and x.startswith('v_')
        isl = lambda x: isinstance(x, str) and x.startswith('ds_')
        for gp in range(-NM, NG * NM):
            gaps[gp] = []
            uv = ul = 0
            if o.cw and (gp + 1 - min(use[0])) % NM == 0:
                ul = 1
            if any(it.name == 'wo' for d_ in range(1, o.wgap) for it in gaps.get(gp - d_, [])):
                ul = 2
            while True:
                cand = []
                for it in order:
                    if it.at is not None or it.lo > gp:
                        continue
                    ok = True
                    for (nm, G, dist) in it.pre:
                        p = items.get((nm, G))
                        if p is None:
                            continue
                        if p.at is None or p.at + dist > gp:
                            ok = False
                            break
                    if not ok:
                        continue
                    cv_, cl_ = sum(map(isv, flat([it.code]))), sum(map(isl, flat([it.code]))) * (o.wcost if it.name == 'wo' else 1) + (1 if o.cw and it.name == 'co0' else 0)
                    if it.hi > gp and (uv + cv_ > o.gapv or ul + cl_ > o.gapl or uv + ul + cv_ + cl_ > o.gapt) and cv_ + cl_:
                        continue
                    cand.append((it, cv_, cl_))
                if not cand:
                    break
                it, cv_, cl_ = min(cand, key=lambda x: x[0].hi)
                it.at = gp
                uv += cv_; ul += cl_
                gaps[gp].append(it)
        late = [(it.name, it.G, it.at - it.hi) for it in order if it.at is not None and it.at > it.hi and 4 <= it.G < 12]
        print('late items', late)
        sig_ = lambda G0: [[(it.name, it.G - G0) for it in gaps[G0 * NM + m]] for m in range(4 * NM)]
        assert sig_(4) == sig_(8), 'schedule not periodic'
        for f_ in (isv, isl):
            print('gap load', ''.join(str(sum(sum(map(f_, flat([it.code]))) for it in gaps[4 * NM + m])) + ('|' if m % NM == NM - 1 else '') for m in range(4 * NM)))
        keep = lambda c: [x for x in flat([c]) if not (isinstance(x, str) and any(x.startswith(d) for d in o.drop.split(',') if d))]
        prio = lambda p, lab: [f's_cmp_lg_u32 s{S_GRP}, 0', f's_cbranch_scc1 {lab}', f's_setprio {p}', f'{lab}:'] if o.phi else []

        def sstamp():
            if not (o.stamps and o.itst):
                return []
            return [f's_memtime s[{S_ST}:{S_ST + 1}]', f's_add_u32 s{S_C0}, s{S_LOOP}, 20', 's_waitcnt lgkmcnt(0)',
                    f's_mov_b32 m0, s{S_C0}', f'v_writelane_b32 v252, s{S_ST}, m0']

        pcode = []
        for gp in range(-NM, 4 * NM):
            for it in gaps[gp]:
                if it.G >= 4 and not it.name.startswith(('sw', 'wx')):
                    pcode += flat([it.code])
        PFD = o.pfd
        pfl = pfx_b() + ([] if o.nopf & 16 else pfx_a()) + pfw()
        L = ['L_built:'] + self.stamp(10) + ([] if o.lb else xbsig() + self.tlb2(vZ, vFl))
        L += [f's_add_i32 s{S_EXP}, s{S_T2}, s{S_T3}'] + wait(F_XB, 4) + pcode + (pfl if o.lb < 2 else [])
        L += ['s_waitcnt lgkmcnt(0)', 's_barrier'] + (['s_setprio 1'] if o.phi else ['s_setprio 0']) + self.stamp(8)
        L += [wload(m) for m in range(PFD)] + prio(o.pp0, 'L_prf') + (['s_mov_b32 s100, 15'] if o.gst else [])
        peel2 = None
        for m in range(NM):
            L += [mfma(m)] + (wload(m + PFD) if m + PFD < NM else [])
            for it in gaps[4 * NM + m]:
                if it.code == '@BLK':
                    L += [f'ds_write_b16 v{vOr}, v{vAcc} offset:{3 * XPI + 7 * 128}']
                    L += self.cleared('L_cclr', [f's_and_b32 s{S_TW}, s2, 7'], vFl) + xdma(XI, XB1 - XB0) + (pfl if o.lb == 2 else []) + (pfw() if o.pfp else [])
                    L += [f's_sub_i32 s{S_EXP}, 0, s{S_EXP}', f's_mov_b32 s{S_EXPC}, s{S_EXP}',
                          f's_mov_b32 s{S_PH}, 1', f's_mov_b32 s{S_PREV}, 1', f's_mov_b32 s{S_HALF}, 0']
                    L += [f's_cmp_lg_u32 s{S_WAVE}, 7', 's_cbranch_scc1 L_nw0']
                    peel1 = self.seq(L)
                    peelw = self.seq(w0x)
                    L = ['L_nw0:']
                elif it.G >= 4:
                    L += flat([it.code])
        L += (prio(o.pp1, 'L_prg') if o.pp1 != o.pp0 else []) + [f'ds_add_u32 v{vFA}, v{vOne} offset:{F_PEEL}', 's_branch L_grp1']
        peel2 = self.seq(L)
        prime = self.seq(['L_prime:'] + [f'v_mov_b32 v{r}, 0' for r in range(D, D + 16)] + [f'v_mov_b32 v{FT}, 0', f'v_mov_b32 v{FT + 1}, 0'] + pcode)
        blk_a = ['L_blk:', f's_cmp_eq_u32 s{S_PREV}, 0', 's_cbranch_scc1 L_blkend',
                 f'v_readlane_b32 s{S_TW}, v{vAcc}, 63', f'v_ldexp_f32 v{vAcc}, v{vAcc}, s{S_EXPC}', f'v_and_b32 v{vAcc}, -2, v{vAcc}',
                 f's_cmp_ge_u32 s{S_PREV}, 2', 's_cbranch_scc1 L_good',
                 f's_cmp_eq_u64 s[{S_CHK}:{S_CHK + 1}], 0', 's_cbranch_scc1 L_slow',
                 f's_bfe_u32 s{S_TW}, s{S_TW}, 0x80017', f's_cmp_eq_u32 s{S_TW}, 255', 's_cbranch_scc1 L_slow',
                 'L_good:', 's_mov_b32 exec_lo, 0', 's_mov_b32 exec_hi, 0x80000000',
                 f'buffer_store_dword v{vAcc}, v{vZ}, {srd(SRD_WS)}, s{S_RC} offen sc1', 's_mov_b64 exec, -1',
                 f's_add_u32 s{S_RC}, s{S_RC}, 32', f's_sub_u32 s{S_LOOP}, s{S_LOOP}, 1', f's_cmp_eq_u32 s{S_LOOP}, 0', 's_cbranch_scc1 L_cin_done']
        blk_a += [f's_cmp_eq_u32 s{S_LOOP}, 1', 's_cbranch_scc1 L_lastnext']
        blk_b = xdma() + [f's_add_u32 s{S_SAMP}, s{S_SAMP}, {8 * 104}', f's_cmp_lg_u32 s{S_LOOP}, s{S_TK}', 's_cbranch_scc1 L_nodma']
        blk_t = self.cleared('L_tclr', [f's_lshr_b32 s{S_TW}, s{S_ST0}, 14'], vFl) + [f'v_mov_b32 v{vTk}, 1', 's_mov_b64 exec, 1', f'buffer_atomic_add v{vTk}, v{vZ}, {srd(SRD_WS)}, s{S_ST0} offen sc0',
                 's_mov_b64 exec, -1', f's_mov_b32 s{S_TK}, 8', 's_branch L_nodma',
                 'L_lastnext:', f's_cmp_lt_i32 s{S_DYN}, 0', f's_cselect_b32 s{S_RC}, s{S_RC}, s{S_DYN}']
        hook_a = [f's_cmp_lg_u32 s{S_TK}, 8', 's_cbranch_scc1 L_hk']
        n4 = o.n4
        hook_t = ['s_waitcnt vmcnt(0)', f'v_readfirstlane_b32 s{S_TW}, v{vTk}', f's_mov_b32 s{S_TK}, 0', f's_add_u32 s{S_TW}, s{S_TW}, 1',
                  ] + ([f's_cmp_lt_u32 s{S_TW}, {n4}', 's_cbranch_scc1 L_hky', 's_setprio 0', 'L_hky:'] if o.y1 else []) + [
                  f's_cmp_ge_u32 s{S_TW}, {2 * (512 - PB) - n4}', 's_cbranch_scc1 L_hk',
                  f's_add_u32 s{S_LOOP}, s{S_LOOP}, 1', f's_mov_b32 s{S_DYN}, {5 * 2048}',
                  f's_cmp_lt_u32 s{S_TW}, {n4}', 's_cbranch_scc1 L_hkf',
                  f's_add_u32 s{S_TW}, s{S_TW}, {n4}', f's_and_b32 s{S_SAMP}, s{S_TW}, 1', f's_lshr_b32 s{S_TW}, s{S_TW}, 1', f's_mov_b32 s{S_HALF}, 1',
                  f's_lshl_b32 s{S_SAMP}, s{S_SAMP}, 6', f'v_xor_b32 v{vC16}, s{S_SAMP}, v{vC16}',
                  f's_lshl_b32 s{S_SAMP}, s{S_SAMP}, 5', f's_add_u32 s{S_DYN}, s{S_DYN}, s{S_SAMP}',
                  'L_hkf:', f's_add_u32 s{S_TW}, s{S_TW}, {PB}', f's_lshl_b32 s{S_SAMP}, s{S_TW}, 2', f's_add_u32 s{S_DYN}, s{S_DYN}, s{S_SAMP}',
                  f's_andn2_b32 s{S_SAMP}, s{S_ST0}, 0x3fff', f's_add_u32 s{S_DYN}, s{S_DYN}, s{S_SAMP}',
                  f's_lshr_b32 s{S_SAMP}, s{S_SAMP}, 5', f's_add_u32 s{S_SAMP}, s{S_SAMP}, s{S_TW}', f's_mul_i32 s{S_SAMP}, s{S_SAMP}, 104']
        if o.wgt:
            F_CNT, F_RNK = 40, 44
            blk_b = [f'ds_add_rtn_u32 v{vF}, v{vFA}, v{vOne} offset:{F_CNT}'] + xdma() + [f's_add_u32 s{S_SAMP}, s{S_SAMP}, {8 * 104}',
                     f'v_readfirstlane_b32 s{S_TW}, v{vF}', f's_cmp_lg_u32 s{S_TW}, {o.wgt - 1}', 's_cbranch_scc1 L_nodma']
            allc = [x.replace(f's_bitcmp1_b32 vcc_lo, s{S_TW}', 's_and_b32 vcc_lo, vcc_lo, 0xff') for x in self.cleared('L_tclr', [], vFl)]
            blk_t = allc + [f'v_mov_b32 v{vTk}, 1', f's_mov_b32 s{S_TW}, {6 * 2048}', 's_mov_b64 exec, 1', f'buffer_atomic_add v{vTk}, v{vZ}, {srd(SRD_WS)}, s{S_TW} offen sc0',
                            's_mov_b64 exec, -1', 's_waitcnt vmcnt(0)', f'v_add_u32 v{vTk}, 2, v{vTk}', f'v_max_u32 v{vTk}, 1, v{vTk}',
                            f'ds_write_b32 v{vFA}, v{vTk} offset:{F_RNK}', 's_branch L_nodma'] + blk_t[-3:]
            hook_a = [f's_cmp_lg_u32 s{S_LOOP}, s{S_TK}', 's_cbranch_scc1 L_hk']
            hook_t = wait(F_RNK, 1) + [f'v_readfirstlane_b32 s{S_TW}, v{vF}', f's_mov_b32 s{S_TK}, 0', f's_sub_u32 s{S_TW}, s{S_TW}, 1', f's_min_u32 s{S_TW}, s{S_TW}, 255',
                      f's_lshl_b32 s{S_TW}, s{S_TW}, 2', f's_add_u32 s{S_TW}, s{S_TW}, s{cw}',
                      f's_cmp_ge_u32 s{S_TW}, {8 * (56 - n4)}', 's_cbranch_scc1 L_hk',
                      f's_add_u32 s{S_LOOP}, s{S_LOOP}, 1', f's_mov_b32 s{S_DYN}, {5 * 2048 + 4 * PB}',
                      f's_cmp_lt_u32 s{S_TW}, {8 * n4}', 's_cbranch_scc1 L_hkf',
                      f's_add_u32 s{S_TW}, s{S_TW}, {8 * n4}', f's_and_b32 s{S_SAMP}, s{S_TW}, 1', f's_lshr_b32 s{S_TW}, s{S_TW}, 1', f's_mov_b32 s{S_HALF}, 1',
                      f's_lshl_b32 s{S_SAMP}, s{S_SAMP}, 6', f'v_xor_b32 v{vC16}, s{S_SAMP}, v{vC16}',
                      f's_lshl_b32 s{S_SAMP}, s{S_SAMP}, 5', f's_add_u32 s{S_DYN}, s{S_DYN}, s{S_SAMP}',
                      'L_hkf:', f's_and_b32 s{S_ST0}, s{S_TW}, 7', f's_lshr_b32 s{S_TW}, s{S_TW}, 3',
                      f's_lshl_b32 s{S_SAMP}, s{S_ST0}, 12', f's_add_u32 s{S_SAMP}, s{S_SAMP}, s{S_TW}', f's_lshl_b32 s{S_SAMP}, s{S_SAMP}, 2', f's_add_u32 s{S_DYN}, s{S_DYN}, s{S_SAMP}',
                      f's_lshl_b32 s{S_SAMP}, s{S_ST0}, 9', f's_add_u32 s{S_SAMP}, s{S_SAMP}, s{S_TW}', f's_add_u32 s{S_SAMP}, s{S_SAMP}, {PB}', f's_mul_i32 s{S_SAMP}, s{S_SAMP}, 104']
        hook_b = ['L_hk:'] + xidx(adv=False)
        blk_b2 = ['L_nodma:'] + [f's_add_u32 s{S_BCUR}, s{S_BCUR}, s{S_BD}', f's_sub_u32 s{S_BD}, 0, s{S_BD}', f's_mov_b32 s{S_EXPC}, s{S_EXP}', f's_mov_b32 s{S_PH}, 1',
                  f's_cmp_eq_u32 s{S_PREV}, 3', 's_cbranch_scc1 L_slow2']
        blk_c = ['L_blkend:', f's_mov_b32 s{S_PREV}, s{S_PH}']
        parts = [[], [], [], [], []]
        cur = self.seq(['L_cin_loop:'])
        for m in range(4 * NM):
            if m == NM:
                parts[3] = cur
                cur = self.seq(['L_grp1:'])
            if m == 2 * NM:
                cur += self.seq([f's_cmp_eq_u32 s{S_LOOP}, s{S_HALF}', 's_cbranch_scc1 L_htail'])
                p4h = list(cur)
            if m == o.hook:
                p4a = cur + self.seq(hook_a)
                p4t = self.seq(hook_t)
                cur = self.seq(hook_b)
            if o.y1 and m == o.hook + o.y1:
                cur += self.seq([f's_cmp_eq_u32 s{S_HALF}, 0', 's_cbranch_scc1 L_y1', 's_setprio 1', 'L_y1:'])
            if o.y1 and m == o.hook + o.y2:
                cur += self.seq([f's_cmp_eq_u32 s{S_GRP}, 0', 's_cbranch_scc1 L_y2', 's_setprio 1', 'L_y2:'])
            if o.gst and m % NM == 0:
                cur += self.seq([f's_memtime s[{S_ST}:{S_ST + 1}]', 's_add_u32 s100, s100, 1', 's_min_u32 s100, s100, 31', 's_waitcnt lgkmcnt(0)',
                                 's_mov_b32 m0, s100', f'v_writelane_b32 v253, s{S_ST}, m0'])
            if o.phi and m in (o.phh, o.phi):
                cur += self.seq(prio(0 if m == o.phi else 2, f'L_pr{m}'))
            cur += self.seq([mfma(m % NM)])
            for it in gaps[4 * NM + m]:
                if it.code == '@BLK':
                    if o.pfa:
                        parts[0] = cur + self.seq(sstamp() + ['s_waitcnt vmcnt(0)'])
                        pfp = []
                    else:
                        parts[0] = cur + self.seq(sstamp() + ['s_waitcnt vmcnt(0)', f's_cmp_le_u32 s{S_LOOP}, {o.pfend}', 's_cbranch_scc1 L_blk'])
                        pfp = self.seq(([] if o.nopf & 16 else pfx_b() + pfx_a()) + pfw())
                    parts[1] = self.seq(blk_a)
                    parts[2] = self.seq(blk_b)
                    pbt = self.seq(blk_t)
                    pb2 = self.seq(blk_b2)
                    cur = self.seq(blk_c)
                    if o.pfa:
                        cur += self.seq([f's_cmp_ge_u32 s{S_PW}, {1664 * 3328}', 's_cbranch_scc1 L_npf'])
                        self.seq(pfw())
                        cur += self.seq(['L_npf:'])
                else:
                    cur += self.seq(keep(it.code))
        cur += self.seq([f's_cmp_lg_u32 s{S_LOOP}, 1', 's_cbranch_scc1 L_cin_loop'])
        parts[4] = p4a + cur
        p4x = p4a + p4t + cur
        tail = self.seq([it.code for m in range(NM) for it in gaps[4 * NM + m] if it.G == 3 and it.code != '@BLK'] + ['s_branch L_blk'])
        assert o.hook > 2 * NM and items[('swr', 8)].at >= 6 * NM and items[('swl', 8)].at >= 6 * NM
        htail = self.seq(['L_htail:'] + [it.code for m in range(NM) for it in gaps[6 * NM + m] if it.G == 5] + dppred('v_add_f32', vAcc)
                         + [f'v_add_u32 v{vRaw}, s{S_BD}, v{vRaw}', 's_branch L_blk'])
        Q = RZ
        rows = [(g, r) for g in range(4) for r in range(8)][:31]
        L = ['L_slow:', f'v_subrev_u32 v{vRaw}, s{S_BD}, v{vRaw}', 'L_slow2:', f'v_lshlrev_b32 v{FT}, 1, v0', f'v_add_u32 v{FT + 1}, s{S_BCUR}, v{FT}',
             f's_mul_i32 s{S_TW}, s{S_WAVE}, {XBSZ}', f's_add_u32 s{S_TW}, s{S_TW}, {XSP}',
             f'v_add_u32 v{FT}, s{S_TW}, v{FT}', f'v_add_u32 v{vLin}, s{S_TW}, v{vLinB}']
        L += wait(F_PEEL, 8)
        L += [f'ds_read_u16 v{Q + n}, v{FT + 1} offset:{g * XPI + r * 128}' for n, (g, r) in enumerate(rows)]
        L += [f'v_lshlrev_b32 v{Q + n}, 16, v{Q + n}' for n in range(31)]
        L += absmax(vAcc, list(range(Q, Q + 31))) + dppred('v_max_u32', vAcc)
        L += [f'v_readlane_b32 s{S_TW}, v{vAcc}, 63', f's_lshr_b32 s{S_TW}, s{S_TW}, 23', f's_sub_i32 s{S_TW}, 134, s{S_TW}',
              f's_cmp_le_u32 s{S_TW}, 9', f's_cselect_b32 s{S_PH}, 2, 3', f's_min_i32 s{S_TW}, s{S_TW}, 16',
              f's_lshl_b32 s{S_EXPC}, s{S_TW}, 2', f's_sub_i32 s{S_EXPC}, s{S_EXP}, s{S_EXPC}',
              f's_add_i32 s{S_TW}, s{S_TW}, 127', f's_lshl_b32 s{S_TW}, s{S_TW}, 23', f'v_mov_b32 v{Q + 31}, s{S_TW}']
        L += [f'v_mul_f32 v{Q + n}, s{S_TW}, v{Q + n}' for n in range(31)]
        L += [f'ds_write_b16_d16_hi v{FT + 1}, v{Q + n} offset:{g * XPI + r * 128}' for n, (g, r) in enumerate(rows)]
        L += [f'v_mul_f32 v{Q + n}, s{S_TW}, v{Q + n}' for n in range(32)]
        L += [f'ds_write_b16_d16_hi v{FT}, v{Q + n} offset:{g * XPI + r * 128}' for n, (g, r) in enumerate(rows + [(3, 7)])]
        L += [f's_mov_b32 s{S_PREV}, 0', 's_waitcnt lgkmcnt(0)', 's_branch L_prime']
        slow = self.seq(L)
        fin_ = self.seq(['L_cin_done:'] + self.stamp(9) + self.stamp_flush() + self.padsig() + ['s_endpgm'])
        rest = parts[3] + parts[4]
        full = parts[0] + pfp + parts[1] + parts[2] + pb2 + rest
        nopf = parts[0] + parts[1] + parts[2] + pbt + pb2 + parts[3] + p4x
        last = parts[0] + parts[1] + pb2 + rest
        redo = lambda pf: parts[1][:10] + slow + prime + parts[0] + (pfp if pf else []) + parts[1][:3] + rest
        end_ = tail + parts[1][:-2] + fin_
        main = peel2 + parts[4] + full + full + parts[0] + pfp + redo(1) + full + nopf + parts[0] + redo(0) + nopf + last + tail + redo(0) + end_
        main = main[:-len(end_)] + parts[0] + parts[1] + parts[2] + pb2 + slow[2:] + prime + parts[0] + parts[1][:3] + rest + end_
        hl = parts[3] + p4h + htail
        main2 = peel2 + parts[4] + parts[0] + pfp + redo(1) + full + nopf + parts[0] + parts[1] + pb2 + hl + parts[1][:10] + slow + prime + parts[0] + parts[1][:3] + hl + parts[1][:-2] + fin_
        traces = []
        for w in range(8):
            if w < 4:
                k0 = w & 2
                tr = c0 + g0a + (cc if o.ccpos < 9 else []) + g0pf + ch[k0] + ch[k0 + 1] + chb[k0 + 1] + w1a + ([] if k0 else w1b) + w1c
            else:
                tr = c0 + g1a + cc + uc0 + uc
            k = w >> 1
            tr += uph + ch[k] + (u0 if k % 2 == 0 else u1a + (u1b if k == 1 else u1c))
            for mn in (main, main2):
                traces.append(tr + peel1 + (peelw if w == 7 else []) + mn)
        return traces

    def build(self):
        pro = self.prologue()
        d = self.dnn()
        cs = self.cin()
        rm = self.rem()
        self.seq(['L_end:', 's_endpgm'])
        traces = [pro + c for c in d + cs + rm]
        for t in traces:
            resolve_waits(t)
        for _ in range(2):
            for t in traces:
                resolve_hazards(t)
        hdr = open(os.path.join(os.path.dirname(os.path.abspath(__file__)), 'header.txt')).read()
        txt = hdr + f'; @launch grid=(256,1,1) block=(512,1,1) lds={LDS_TOTAL}\n'
        txt += f'''.amdgcn_target "amdgcn-amd-amdhsa--gfx950"
{DOC}.text
.globl {KNAME}
.p2align 8
.type {KNAME},@function
{KNAME}:
'''
        body_ = self.P.emit()
        if 'wsame' in self.opt.dbg:
            body_ = body_.replace(f's_add_u32 s{S_WSOFF}, s{S_WSOFF}, {32 * 3328}', f's_xor_b32 s{S_WSOFF}, s{S_WSOFF}, 0')
        if 'xsame' in self.opt.dbg:
            import re as _re
            body_ = _re.sub(r'v_lshl_add_u32 v(2[4-9]|3[01]), v(1[6-9]), 7', r'v_lshl_add_u32 v\1, v16, 7', body_)
            body_ = _re.sub(r'v_lshl_add_u32 v(2[4-9]|3[01]), v(2[0-3]), 7', r'v_lshl_add_u32 v\1, v20, 7', body_)
            body_ = _re.sub(r'v_lshl_add_u32 v(2[4-9]|3[01]), v(9[6-9]), 7', r'v_lshl_add_u32 v\1, v96, 7', body_)
            body_ = _re.sub(r'v_lshl_add_u32 v(2[4-9]|3[01]), v(10[0-3]), 7', r'v_lshl_add_u32 v\1, v100, 7', body_)
            body_ = body_.replace('offen offset:12\n', 'offen offset:0\n').replace('offen offset:844\n', 'offen offset:832\n')
            body_ = body_.replace(f's_mov_b32 s{S_IDXOFF}, 28', f's_mov_b32 s{S_IDXOFF}, 0').replace(f's_add_u32 s{S_IDXOFF}, s{S_IDXOFF}, 16', 's_nop 0')
        if self.opt.align:
            for lab in ('L_dnn_loop0:', 'L_dnn_loop1:', 'L_cin_loop:', 'L_epi:'):
                pad = '  s_nop 0\n' if self.opt.align > 100 else ''
                body_ = body_.replace(lab + '\n', f'.p2align {self.opt.align % 100}\n{pad}{lab}\n')
        txt += body_
        txt += f'''.section .rodata,"a"
.p2align 6
.amdhsa_kernel {KNAME}
  .amdhsa_next_free_vgpr 256
  .amdhsa_next_free_sgpr 102
  .amdhsa_accum_offset 256
  .amdhsa_group_segment_fixed_size 0
  .amdhsa_kernarg_size 88
  .amdhsa_user_sgpr_count 2
  .amdhsa_user_sgpr_kernarg_segment_ptr 1
  .amdhsa_system_sgpr_workgroup_id_x 1
  .amdhsa_float_denorm_mode_32 {self.opt.denorm}
.end_amdhsa_kernel
'''
        return txt


def main():
    ap = argparse.ArgumentParser()
    ap.add_argument('-o', default='standalone__deep_cross_xdeepfm__recsys.s')
    ap.add_argument('--stamps', action='store_true')
    ap.add_argument('--padat', default='')
    ap.add_argument('--padmin', type=int, default=0)
    ap.add_argument('--nodma', action='store_true')
    ap.add_argument('--cpf', type=int, default=2)
    ap.add_argument('--coop', type=int, default=1)
    ap.add_argument('--coopw', type=int, default=2)
    ap.add_argument('--tbpos', type=int, default=0)
    ap.add_argument('--dbar3', type=int, default=1)
    ap.add_argument('--tlb', type=int, default=0)
    ap.add_argument('--tlb2', type=int, default=1)
    ap.add_argument('--itst', type=int, default=0)
    ap.add_argument('--diag', type=int, default=0)
    ap.add_argument('--dbg', default='')
    ap.add_argument('--lead3', type=int, default=1)
    ap.add_argument('--morder', type=int, default=0)
    ap.add_argument('--etlb', type=int, default=21)
    ap.add_argument('--lateb', type=int, default=0)
    ap.add_argument('--wfl', default='')
    ap.add_argument('--xfl', default='')
    ap.add_argument('--tag', type=int, default=0)
    ap.add_argument('--idxfirst', type=int, default=1)
    ap.add_argument('--bpos', type=int, default=2)
    ap.add_argument('--sigat', type=int, default=6)
    ap.add_argument('--epx', type=int, default=1)
    ap.add_argument('--denorm', type=int, default=3)
    ap.add_argument('--mprio', type=int, default=0)
    ap.add_argument('--swap', type=int, default=0)
    ap.add_argument('--bov', type=int, default=1)
    ap.add_argument('--rfirst', type=int, default=0)
    ap.add_argument('--g1x', type=int, default=0)
    ap.add_argument('--ldsred', type=int, default=0)
    ap.add_argument('--csnake', type=int, default=0)
    ap.add_argument('--cswap', type=int, default=0)
    ap.add_argument('--align', type=int, default=0)
    ap.add_argument('--c2', type=int, default=0)
    ap.add_argument('--d1', type=int, default=0)
    ap.add_argument('--cstr', type=int, default=3)
    ap.add_argument('--bearly', type=int, default=1)
    ap.add_argument('--w2late', type=int, default=1)
    ap.add_argument('--aov', type=int, default=3)
    ap.add_argument('--upos', type=int, default=1)
    ap.add_argument('--calt', type=int, default=1)
    ap.add_argument('--pfpos', type=int, default=1)
    ap.add_argument('--wlate', type=int, default=0)
    ap.add_argument('--dbar2', type=int, default=0)
    ap.add_argument('--dbar', type=int, default=0)
    ap.add_argument('--pfw', type=int, default=1)
    ap.add_argument('--pfx', type=int, default=3)
    ap.add_argument('--pfx0', type=int, default=4)
    ap.add_argument('--pfs', type=int, default=14)
    ap.add_argument('--dcoopx', type=int, default=1)
    ap.add_argument('--dcx0', type=int, default=0)
    ap.add_argument('--dcxpos', type=int, default=-1)
    ap.add_argument('--pfe0', type=int, default=6)
    ap.add_argument('--pfne', type=int, default=14)
    ap.add_argument('--prio47', type=int, default=0)
    ap.add_argument('--lookahead', type=int, default=5)
    ap.add_argument('--nz', type=int, default=6)
    ap.add_argument('--nwf', type=int, default=8)
    ap.add_argument('--hiat', type=int, default=4)
    ap.add_argument('--wmerge', type=int, default=0)
    ap.add_argument('--gapv', type=int, default=2)
    ap.add_argument('--lat', type=int, default=3)
    ap.add_argument('--p6', type=int, default=2)
    ap.add_argument('--t2w', type=int, default=64)
    ap.add_argument('--cc0', type=int, default=10)
    ap.add_argument('--cc1', type=int, default=80)
    ap.add_argument('--cc2', type=int, default=30)
    ap.add_argument('--padw', type=int, default=0)
    ap.add_argument('--spf', type=int, default=0)
    ap.add_argument('--spp', type=int, default=0)
    ap.add_argument('--f0', type=int, default=0)
    ap.add_argument('--tc', type=int, default=0)
    ap.add_argument('--co3', type=int, default=0)
    ap.add_argument('--co2', type=int, default=2)
    ap.add_argument('--dp0', type=int, default=2)
    ap.add_argument('--cyc', default='')
    ap.add_argument('--dpm', type=int, default=3)
    ap.add_argument('--c0l', type=int, default=1)
    ap.add_argument('--g1l', type=int, default=0)
    ap.add_argument('--phh', type=int, default=0)
    ap.add_argument('--wgt', type=int, default=0)
    ap.add_argument('--gs', type=int, default=0)
    ap.add_argument('--t2', type=int, default=2)
    ap.add_argument('--t2g', type=int, default=3)
    ap.add_argument('--lc', type=int, default=0)
    ap.add_argument('--x64', type=int, default=0)
    ap.add_argument('--rv', type=int, default=0)
    ap.add_argument('--rwi', type=int, default=10)
    ap.add_argument('--epoll', type=int, default=2)
    ap.add_argument('--w1s', type=int, default=1)
    ap.add_argument('--cal', type=int, default=-1)
    ap.add_argument('--pfa', type=int, default=1)
    ap.add_argument('--w2e', type=int, default=0)
    ap.add_argument('--rpr', type=int, default=0)
    ap.add_argument('--pr', type=int, default=1)
    ap.add_argument('--y1', type=int, default=0)
    ap.add_argument('--y2', type=int, default=40)
    ap.add_argument('--pp0', type=int, default=2)
    ap.add_argument('--pp1', type=int, default=2)
    ap.add_argument('--w2', type=int, default=1)
    ap.add_argument('--cw', type=int, default=1)
    ap.add_argument('--wgap', type=int, default=2)
    ap.add_argument('--psl', type=int, default=0)
    ap.add_argument('--wr8', type=int, default=0)
    ap.add_argument('--lb', type=int, default=0)
    ap.add_argument('--sym', type=int, default=0)
    ap.add_argument('--n4', type=int, default=24)
    ap.add_argument('--tbl', type=int, default=0)
    ap.add_argument('--nopf', type=int, default=16)
    ap.add_argument('--idx1', type=int, default=1)
    ap.add_argument('--sv', type=int, default=1)
    ap.add_argument('--pb', type=int, default=3)
    ap.add_argument('--dpf', type=int, default=1)
    ap.add_argument('--dpn', type=int, default=3)
    ap.add_argument('--mord', type=int, default=0)
    ap.add_argument('--q0', type=int, default=5)
    ap.add_argument('--q1', type=int, default=7)
    ap.add_argument('--u0', type=int, default=8)
    ap.add_argument('--un', type=int, default=26)
    ap.add_argument('--ro', type=int, default=0)
    ap.add_argument('--dfirst', type=int, default=0)
    ap.add_argument('--er0', type=int, default=0)
    ap.add_argument('--er1', type=int, default=0)
    ap.add_argument('--lg0', type=int, default=0)
    ap.add_argument('--fprio', type=int, default=1)
    ap.add_argument('--lite', type=int, default=0)
    ap.add_argument('--pf1', type=int, default=2)
    ap.add_argument('--amp', type=int, default=0)
    ap.add_argument('--ofl', default='')
    ap.add_argument('--uprio', type=int, default=0)
    ap.add_argument('--ccpos', type=int, default=9)
    ap.add_argument('--s1e', type=int, default=9)
    ap.add_argument('--s2e', type=int, default=0)
    ap.add_argument('--shs', type=int, default=256)
    ap.add_argument('--pfp', type=int, default=1)
    ap.add_argument('--epos', type=int, default=3)
    ap.add_argument('--hook', type=int, default=100)
    ap.add_argument('--rrd', type=int, default=11)
    ap.add_argument('--rdrop', default='')
    ap.add_argument('--pfr', type=int, default=4)
    ap.add_argument('--vin', type=int, default=1)
    ap.add_argument('--rstag', type=int, default=1)
    ap.add_argument('--eprio', type=int, default=1)
    ap.add_argument('--nopk', type=int, default=0)
    ap.add_argument('--w1first', type=int, default=0)
    ap.add_argument('--xpos', type=int, default=1)
    ap.add_argument('--z1lo', type=int, default=40)
    ap.add_argument('--pfend', type=int, default=3)
    ap.add_argument('--gst', type=int, default=0)
    ap.add_argument('--gapl', type=int, default=2)
    ap.add_argument('--gapt', type=int, default=2)
    ap.add_argument('--wcost', type=int, default=2)
    ap.add_argument('--bprio', type=int, default=0)
    ap.add_argument('--c1hi', type=int, default=-8)
    ap.add_argument('--c2hi', type=int, default=12)
    ap.add_argument('--rspan', type=int, default=48)
    ap.add_argument('--rlead', type=int, default=14)
    ap.add_argument('--pfd', type=int, default=16)
    ap.add_argument('--mo', type=int, default=4)
    ap.add_argument('--ba', type=int, default=8)
    ap.add_argument('--sig2', type=int, default=3)
    ap.add_argument('--drop', default='')
    ap.add_argument('--al8', type=int, default=4)
    ap.add_argument('--alph', type=int, default=0)
    ap.add_argument('--almm', type=int, default=0)
    ap.add_argument('--phi', type=int, default=110)
    ap.add_argument('--rawlo', type=int, default=8)
    ap.add_argument('--flo', type=int, default=2)
    opt = ap.parse_args()
    resolve_waits.dbg = 'dup' in opt.dbg
    g = Gen(opt)
    txt = g.build()
    if opt.al8:
        import align8
        rg = []
        if opt.al8 & 1:
            rg.append(('L_cin_loop', 'L_slow'))
        if opt.al8 & 2:
            rg += [('L_dnn_loop0', 'L_dnn_h1'), ('L_dnn_loop1', 'L_epi')]
        if opt.al8 & 4:
            rg += [('L_epi', 'L_dpub'), ('L_repi', 'L_rclr')]
        txt = align8.align(txt, rg, opt.alph, opt.almm)
    if opt.cal >= 0:
        txt = txt.replace('L_cin_loop:\n', '.p2align 6\n' + '  s_nop 0\n' * (opt.cal // 4) + 'L_cin_loop:\n' , 1)
        txt = txt.replace('L_rem:\n', '.p2align 3\nL_rem:\n', 1)
    open(opt.o, 'w').write(txt)
    print('wrote', opt.o, len(txt), 'bytes')


if __name__ == '__main__':
    main()
```

```python
import sys, os, struct, argparse
sys.path.insert(0, os.path.dirname(os.path.abspath(__file__)))
from cinplan import ZD, cls
from asmlib import I, WaitTag, Prog, resolve_waits, resolve_hazards

KNAME = 'standalone__deep_cross_xdeepfm__recsys_kernel'
LDS_TOTAL = 163840

XSLOT = 8192
WR = 4 * XSLOT
WP = 640
WSLOT = 32 * WP
L_BIAS = WR + 6 * WSLOT
L_W2 = L_BIAS + WP
RB = L_W2 + WP
assert RB + 2048 <= LDS_TOTAL
RWR = 131072

ASZ = 35264
A1 = 1024
A2 = A1 + ASZ
A3 = A2 + ASZ
UST = 1356
V3OFF = A3 + ASZ
V2OFF = V3OFF + 2048
L_WCO = V2OFF + 1408
L_FLG = L_WCO + 192
RC = L_FLG + 64
XB0 = RC + 512
XPI = 1056
XBSZ = 4 * XPI
XB1 = A3
TA = A1
TC = TA + 11 * 1024
TD = TC + 12 * 1024
TB = A2
XSP = A1
XCH = XB0 + 8 * XBSZ
OOB = 0x100000
NCLR = 56
NPOOL = 224
assert XCH + 8192 <= LDS_TOTAL and XB0 % 16 == 0 and A2 % 16 == 0 and A3 % 16 == 0 and L_WCO % 16 == 0
assert 8 * XBSZ <= ASZ and TD + 11 * 1024 <= A2

S_WAVE = 3
S_IDX, S_TAB, S_CIN, S_WCO, S_W1, S_B1, S_W2, S_BO, S_OUT, S_DBG, S_WS = 4, 6, 8, 10, 12, 14, 16, 18, 20, 22, 24
S_MB, S_R = 26, 27
SRD_IDX, SRD_TAB, SRD_CIN, SRD_WCO, SRD_W, SRD_B1, SRD_W2, SRD_OUT, SRD_WS, SRD_DBG = 28, 32, 36, 40, 44, 48, 52, 56, 60, 64
S_T0, S_T1, S_T2, S_T3 = 68, 69, 70, 71
S_LOOP, S_IDXOFF, S_WSOFF, S_WMB, S_XM0, S_N0, S_C0, S_CW, S_BOUT, S_TW = 72, 73, 74, 75, 76, 77, 78, 79, 80, 81
S_EX = 82
S_GRP, S_RC = 84, 85
S_ST = 86
S_M26, S_MASK = 90, 92
S_SAMP, S_STG, S_STG9, S_TGT = 94, 95, 96, 97
S_M26B = 98
S_GW = 100
S_TAGT = 0
S_TAG = 1
S_PW = 101
S_PX = 77
S_PXE = 73

GELU_C0 = -2.0 * 0.7978845608028654 * 1.4426950408889634
GELU_C1 = GELU_C0 * 0.044715


def f32hex(x):
    return '0x%08x' % struct.unpack('<I', struct.pack('<f', x))[0]


def vr(a, n):
    return f'v[{a}:{a + n - 1}]' if n > 1 else f'v{a}'


def srd(a):
    return f's[{a}:{a + 3}]'


def flat(gs):
    res = []
    for c in gs:
        if isinstance(c, (tuple, list)):
            res += flat(c)
        else:
            res.append(c)
    return res


def interleave(a, b):
    out = []
    ia = ib = 0
    na, nb = len(a), len(b)
    while ia < na or ib < nb:
        if ib >= nb or (ia < na and ia * nb <= ib * na):
            out.append(a[ia]); ia += 1
        else:
            out.append(b[ib]); ib += 1
    return out


assert all((d * 2521) >> 16 == d // 26 for d in range(800))
assert all((d * 10923) >> 16 == d // 6 for d in range(64))
assert all((d * 1561) >> 16 == d // 42 for d in range(176))


DOC = '''; ---------------------------------------------------------------------------------------------
;
;       V3[h,k]  = sum_g wo[52+g] W3[g,h,k]          V2[i,j] = sum_h wo[26+h] W2[h,i,j]
;       U[i,j,k] = sum_h W2[h,i,j] V3[h,k]
;       g1[i]    = wo[i] + sum_j V2[i,j] x_j + sum_jk U[i,j,k] x_j x_k
;   Both quadratic forms use the 351 distinct products x_j x_k (j<=k) with symmetrised weights on fp16 MFMA
;   (fp32 accumulate).  Range is handled with power-of-two scales derived from the data on every launch:
; Work split per group of 512 samples (32 workgroups): 20 workgroups do 128 x 320 tiles of the DNN GEMM,
;   Partial logits go through d_ws (sc1): the 64-column workgroup resets the slots at its start (announced in
;   d_debug), later polls until every slot is filled, adds up and writes d_out.
; ---------------------------------------------------------------------------------------------
'''


class Gen:
    def __init__(self, opt):
        self.opt = opt
        self.P = Prog()
        self.role = 'x'

    def seq(self, lines):
        return [self.P.add(l) for l in flat(lines)]

    def build_srd(self, dst, ptr, size):
        return [f's_mov_b32 s{dst}, s{ptr}', f's_and_b32 s{dst + 1}, s{ptr + 1}, 0xffff',
                f's_mov_b32 s{dst + 2}, {size}', f's_mov_b32 s{dst + 3}, 0x20000']

    def stamp(self, slot):
        if self.opt.cyc:
            a_, b_ = self.opt.cyc.split(',')
            if f'{self.role}{slot}' == a_:
                return ['s_memtime s[86:87]', 's_waitcnt lgkmcnt(0)', 's_mov_b32 s89, s86']
            if f'{self.role}{slot}' == b_:
                return ['s_memtime s[86:87]', 's_waitcnt lgkmcnt(0)', 's_sub_u32 s88, s86, s89' if a_ != 'go' else 's_sub_u32 s88, s86, s88']
        if self.opt.padat == f'{self.role}{slot}':
            return [f's_memrealtime s[88:89]', 's_waitcnt lgkmcnt(0)']
        if not self.opt.stamps or (self.opt.lite and f'{self.role}{slot}' not in ('c8', 'c9', 'd2', 'd4', 'r2', 'r4', 'r5')):
            return []
        return [f's_memtime s[{S_ST}:{S_ST + 1}]', f's_memrealtime s[{S_ST + 2}:{S_ST + 3}]', 's_waitcnt lgkmcnt(0)',
                f'v_writelane_b32 v252, s{S_ST}, {slot}', f'v_writelane_b32 v253, s{S_ST + 2}, {slot}']

    def stamp_flush(self):
        if not self.opt.stamps:
            return []
        L = self.build_srd(SRD_WS, S_WS, 0x10000000)
        L += [f's_lshl_b32 s{S_C0}, s2, 3', f's_add_u32 s{S_C0}, s{S_C0}, s{S_WAVE}',
              f's_lshl_b32 s{S_C0}, s{S_C0}, 8', f's_add_u32 s{S_C0}, s{S_C0}, 0x100000',
              'v_lshlrev_b32 v254, 3, v0', 's_mov_b32 exec_hi, 0',
              f'buffer_store_dwordx2 v[252:253], v254, {srd(SRD_WS)}, s{S_C0} offen', 's_mov_b32 exec_hi, -1']
        return L

    def stamp0(self):
        if not self.opt.stamps:
            return self.stamp(15)
        return ['v_mov_b32 v252, 0xcdcdcdcd', 'v_mov_b32 v253, 0xcdcdcdcd',
                f'v_writelane_b32 v252, s{S_ST}, 0', f'v_writelane_b32 v253, s{S_ST + 2}, 0'] + self.stamp(15)

    def tlb2(self, t, vflag):
        L = self.build_srd(SRD_WS, S_WS, 0x10000000) + self.build_srd(SRD_DBG, S_DBG, 256)
        L += [f'v_lshlrev_b32 v{t}, 2, v0',
              ('s_mov_b64 exec, 0xff', f's_mov_b32 s{S_TW}, 0x80000',
               f'buffer_load_dword v255, v{t}, {srd(SRD_WS)}, s{S_TW} offen',
               f'buffer_load_dword v{vflag}, v{t}, {srd(SRD_DBG)}, 0 offen offset:128 sc1',
               's_mov_b64 exec, -1'), f'v_mov_b32 v{t}, 0']
        return L

    def cleared(self, lab, grp, vflag):
        chk = [f'v_cmp_eq_u32 vcc, 0, v{vflag}', f's_bitcmp1_b32 vcc_lo, s{S_TW}']
        return grp + chk + [f's_cbranch_scc0 {lab}_ok', f's_mov_b32 s{S_C0}, 0x40000',
                f'{lab}:', f's_sub_u32 s{S_C0}, s{S_C0}, 1', f's_cbranch_scc1 {lab}_ok', f'v_lshlrev_b32 v{vflag}, 2, v0', f'v_and_b32 v{vflag}, 31, v{vflag}',
                f'buffer_load_dword v{vflag}, v{vflag}, {srd(SRD_DBG)}, 0 offen offset:128 sc1', 's_waitcnt vmcnt(0)'] + chk + [f's_cbranch_scc1 {lab}', f'{lab}_ok:']

    def padsig(self):
        o = self.opt
        if not o.padat:
            return []
        pre = ['v_mov_b32 v8, 4']
        if (o.padat[0] if o.padat != 'start' else 'd') != self.role:
            return pre
        return pre + [f's_cmp_lg_u32 s{S_WAVE}, {o.padw}', 's_cbranch_scc1 L_nosig'] + ([f's_not_b32 s88, s88'] if o.padmin else []) + ['v_mov_b32 v7, s88', 's_mov_b64 exec, 1',
                f'buffer_atomic_umax v7, v8, {srd(SRD_DBG)}, 0 offen', 's_mov_b64 exec, -1', 'L_nosig:']

    def tlb1(self, vtmp, vdst):
        if not self.opt.etlb:
            return self.build_srd(SRD_TAB, S_TAB, 100000 * 128)
        return self.build_srd(SRD_TAB, S_TAB, 100000 * 128) + [
            f'v_mov_b32 v{vtmp}, s{S_BOUT}', f'buffer_load_dword v{vdst}, v{vtmp}, {srd(SRD_TAB)}, 0 offen']

    def prologue(self):
        L = []
        if self.opt.cyc.startswith('go'):
            L += ['s_memtime s[88:89]']
        elif self.opt.padat == 'start' or self.opt.amp in (1, 2, 3):
            L += ['s_memrealtime s[88:89]']
        elif self.opt.padat:
            L += [f's_mov_b32 s88, {-1 if self.opt.padmin else 0}']
        if self.opt.stamps:
            L += [f's_memtime s[{S_ST}:{S_ST + 1}]', f's_memrealtime s[{S_ST + 2}:{S_ST + 3}]']
        L += ['s_cmp_ge_u32 s2, 256', 's_cbranch_scc1 L_end',
              's_load_dwordx16 s[4:19], s[0:1], 0',
              's_load_dwordx4 s[20:23], s[0:1], 64',
              's_load_dwordx2 s[24:25], s[0:1], 80',
              'v_lshrrev_b32 v1, 6, v0']
        if self.opt.cpf:
            L += [f's_getpc_b64 s[{S_MASK}:{S_MASK + 1}]', 'L_pc:',
                  f's_and_b32 s{S_T0}, s2, 0xf8', f'v_add_u32 v2, s{S_T0}, v1', 'v_lshlrev_b32 v2, 7, v2'] + (['v_and_b32 v3, 1, v0', 'v_lshl_add_u32 v2, v3, 15, v2'] if self.opt.cpf == 2 else []) + [
                  f'v_min_u32 v2, L_end-L_pc, v2',
                  f'v_mov_b32 v3, s{S_MASK + 1}',
                  f'v_add_co_u32 v2, vcc, s{S_MASK}, v2', 'v_addc_co_u32 v3, vcc, 0, v3, vcc',
                  'global_load_dword v255, v[2:3], off']
        L += ['v_and_b32 v0, 63, v0',
              f'v_readfirstlane_b32 s{S_WAVE}, v1',
              f's_and_b32 s{S_T0}, s2, 7', f's_lshl_b32 s{S_T0}, s{S_T0}, 2',
              f's_lshr_b32 s{S_MB}, s2, 6', f's_add_u32 s{S_MB}, s{S_MB}, s{S_T0}',
              f's_bfe_u32 s{S_R}, s2, 0x30003',
              f's_and_b32 s{S_BOUT}, s2, 0xf8', f's_add_u32 s{S_BOUT}, s{S_BOUT}, s{S_WAVE}', f's_lshl_b32 s{S_BOUT}, s{S_BOUT}, {self.opt.etlb}',
              f's_lshr_b32 s{S_T0}, s2, 3', f's_cmp_eq_u32 s{S_T0}, 5', 's_cbranch_scc1 L_rem',
              f's_cmp_ge_u32 s{S_R}, 5', 's_cbranch_scc1 L_cin']
        return self.seq(L)

    def gelu(self, groups, TB, KC0, KC1, KONE, seen=()):
        p2 = lambda r: vr(r, 2)
        L = []
        seen = set(seen)
        for k, vals in enumerate(groups):
            tb = TB + (k % 2) * 16
            V_ = [(x, w, s_, tb + 4 * i_, tb + 4 * i_ + 2) for i_, (x, w, s_) in enumerate(vals)]
            for (x, w, s_, t, u) in V_:
                L.append(f'v_pk_mul_f32 {p2(t)}, {p2(x)}, {p2(x)}')
            for (x, w, s_, t, u) in V_:
                L.append(f'v_pk_fma_f32 {p2(t)}, {p2(t)}, {p2(KC1)}, {p2(KC0)}')
            for (x, w, s_, t, u) in V_:
                L.append(f'v_pk_mul_f32 {p2(t)}, {p2(t)}, {p2(x)}')
            for (x, w, s_, t, u) in V_:
                L += [f'v_exp_f32 v{t}, v{t}', f'v_exp_f32 v{t + 1}, v{t + 1}']
            for (x, w, s_, t, u) in V_:
                L.append(f'v_pk_fma_f32 {p2(t)}, {p2(t)}, {p2(w)}, {p2(w)}')
            for (x, w, s_, t, u) in V_:
                L += [f'v_rcp_f32 v{t}, v{t}', f'v_rcp_f32 v{t + 1}, v{t + 1}']
            for (x, w, s_, t, u) in V_:
                if s_ in seen:
                    L.append(f'v_pk_fma_f32 {p2(s_)}, {p2(t)}, {p2(x)}, {p2(s_)}')
                else:
                    L.append(f'v_pk_mul_f32 {p2(s_)}, {p2(t)}, {p2(x)}')
                    seen.add(s_)
        if self.opt.nopk:
            import re as _re
            L2 = []
            for x in L:
                if x.startswith('v_pk_'):
                    mn = x.split()[0].replace('v_pk_', 'v_')
                    rs = [int(r) for r in _re.findall(r'v\[(\d+):', x)]
                    L2 += [f'{mn} ' + ', '.join(f'v{r + h}' for r in rs) for h in range(2)]
                else:
                    L2.append(x)
            L = L2
        return L

    def gelu2(self, groups, TB, KC0, KC1, KSH, seen=()):
        p2 = lambda r: vr(r, 2)
        L = []
        seen = set(seen)
        for k, vals in enumerate(groups):
            tb = TB + (k % 2) * 24
            H = [(x + 2 * d, tb + 6 * i_ + 2 * d, k0[d], k1[d]) for i_, (x, k0, k1, s_) in enumerate(vals) for d in range(2)]
            F = [(x, tb + 6 * i_, s_) for i_, (x, k0, k1, s_) in enumerate(vals)]
            L += [f'v_pk_mul_f32 {p2(t)}, {p2(x)}, {p2(x)}' for (x, t, k0, k1) in H]
            L += [f'v_pk_fma_f32 {p2(t)}, {p2(t)}, {p2(KC1)}, {p2(KC0)}' for (x, t, k0, k1) in H]
            L += [f'v_pk_fma_f32 {p2(t)}, {p2(t)}, {p2(x)}, {p2(KSH)}' for (x, t, k0, k1) in H]
            L += [f'v_exp_f32 v{t + h}, v{t + h} clamp' for (x, t, k0, k1) in H for h in range(2)]
            L += [f'v_pk_fma_f32 {p2(t)}, {p2(t)}, {p2(k1)}, {p2(k0)}' for (x, t, k0, k1) in H]
            L += [f'v_pk_mul_f32 {p2(t + 4)}, {p2(x)}, {p2(t + 2)}' for (x, t, s_) in F]
            L += [f'v_pk_fma_f32 {p2(t + 4)}, {p2(x + 2)}, {p2(t)}, {p2(t + 4)}' for (x, t, s_) in F]
            L += [f'v_pk_mul_f32 {p2(t)}, {p2(t)}, {p2(t + 2)}' for (x, t, s_) in F]
            L += [f'v_rcp_f32 v{t + h}, v{t + h}' for (x, t, s_) in F for h in range(2)]
            for (x, t, s_) in F:
                L.append(f'v_pk_fma_f32 {p2(s_)}, {p2(t)}, {p2(t + 4)}, {p2(s_)}' if s_ in seen else f'v_pk_mul_f32 {p2(s_)}, {p2(t)}, {p2(t + 4)}')
                seen.add(s_)
        return L

    def winv2(self, R, n, K1, KL, SC):
        L = [f'v_mov_b32 v{SC}, 0x21800000', f'v_mov_b32 v{KL}, 0x30800000']
        L += [f'v_max3_f32 v{SC}, v{SC}, abs(v{R + k}), abs(v{R + k + 1})' for k in range(0, n, 2)]
        L += [f'v_and_b32 v{SC}, 0x7f800000, v{SC}', f'v_mul_f32 v{SC}, 0x22000000, v{SC}']
        L += [f'v_rcp_f32 v{R + k}, v{R + k}' for k in range(n)] + [f'v_mul_f32 v{R + k}, v{SC}, v{R + k}' for k in range(n)]
        L += [f'v_med3_f32 v{R + k}, v{R + k}, -v{KL}, v{KL}' for k in range(n)] + [f'v_mul_f32 v{K1[k]}, 0x6c800000, v{R + k}' for k in range(n)]
        return L

    def red4(self, SUMP, SC=None):
        sm = lambda tm: SUMP + 2 * tm
        L = [f'v_add_f32 v{sm(tm)}, v{sm(tm)}, v{sm(tm) + 1}' for tm in range(4)]
        if SC is not None:
            L += [f'v_mul_f32 v{sm(tm)}, v{SC}, v{sm(tm)}' for tm in range(4)]
        L += [f'v_permlane32_swap_b32 v{sm(tm)}, v{sm(tm + 2)}' for tm in range(2)]
        L += [f'v_add_f32 v{sm(tm)}, v{sm(tm)}, v{sm(tm + 2)}' for tm in range(2)]
        L += [f'v_permlane16_swap_b32 v{sm(0)}, v{sm(1)}', f'v_add_f32 v{sm(0)}, v{sm(0)}, v{sm(1)}']
        return L

    def kconst(self, KC0, KC1, KONE, pr=None):
        return [f'v_mov_b32 v{KC0}, {f32hex(GELU_C0)}', f'v_mov_b32 v{KC0 + 1}, {f32hex(GELU_C0)}',
                f'v_mov_b32 v{KC1}, {f32hex(GELU_C1)}', f'v_mov_b32 v{KC1 + 1}, {f32hex(GELU_C1)}',
                ] + ([f'v_mov_b32 v{KONE}, 0x71800000'] if not (self.opt.pr if pr is None else pr) else [f'v_mov_b32 v{KONE}, {f32hex(-90.0)}', f'v_mov_b32 v{KONE + 1}, {f32hex(-90.0)}'])

    def winv(self, R, n, KONE):
        return [f'v_rcp_f32 v{R + k}, v{R + k}' for k in range(n)] + [f'v_med3_f32 v{R + k}, v{R + k}, -v{KONE}, v{KONE}' for k in range(n)]

    def dnn(self):
        o = self.opt
        self.role = 'd'
        vW = [[1, 2, 3, 4, 5], [6, 7, 8, 9, 10]]
        vX = [11, 12]
        vIdxOff, vCh = 13, [14, 15]
        ST = [[16, 20], [24, 240]]
        VO = [28, 34]
        vWD = [29, 30, 31, 32, 33]
        vP, vPc, vBL = 35, 36, 37
        WF = 40
        XA = 80
        T = 44
        W2F = 112
        ACC = 140
        PK = 220
        SUMP, KC0, KC1, KONE = 16, 232, 234, 236

        def acc(tn, tm):
            return ACC + (tn * 4 + tm) * 4

        HH, SL = S_T0, S_T1
        g, i4, q = T + 18, T + 19, T + 20
        PI, vCW = T + 8, T + 12
        nr = o.coopw
        L = [f's_mul_i32 s{S_N0}, s{S_R}, {WP}',
             f's_mul_i32 s{S_T2}, s{S_WAVE}, 7', f'v_min_u32 v{q}, 6, v0', f'v_add_u32 v{q}, s{S_T2}, v{q}', f'v_min_u32 v{q}, 51, v{q}',
             f'v_lshrrev_b32 v{g}, 1, v{q}', f'v_mul_u32_u24 v{g}, 96, v{g}', f'v_lshl_add_u32 v{q}, v{q}, 2, v{g}',
             f's_mul_i32 s{S_C0}, s{S_R}, 26', f's_min_u32 s{S_C0}, s{S_C0}, 102', f's_lshl_b32 s{S_T3}, s{S_MB}, 7',
             f's_add_u32 s{S_C0}, s{S_C0}, s{S_T3}', f's_mul_i32 s{S_C0}, s{S_C0}, 104',
             f's_and_b32 s{S_T2}, s{S_MB}, 3', f's_lshl_b32 s{S_T2}, s{S_T2}, 3', f's_add_u32 s{S_T2}, s{S_T2}, s{S_WAVE}',
             f's_mul_i32 s{S_T2}, s{S_T2}, 3328', f's_add_u32 s{S_TW}, s{S_T2}, s{S_N0}',
             f'v_min_u32 v{vCW}, {8 * nr - 1}, v0', f'v_lshrrev_b32 v{g}, 3, v{vCW}', f's_mov_b32 s{S_T2}, {32 * 3328}',
             f'v_mul_u32_u24 v{g}, s{S_T2}, v{g}',
             f'v_and_b32 v{vCW}, 7, v{vCW}', f'v_min_u32 v{vCW}, 4, v{vCW}', f'v_lshl_add_u32 v{vCW}, v{vCW}, 7, v{g}',
             f's_xor_b32 s{S_T2}, s{S_WAVE}, 4', f's_lshl_b32 s{S_T2}, s{S_T2}, 4', f's_add_u32 s{S_T2}, s{S_T2}, s{S_T3}',
              f'v_lshrrev_b32 v{T + 16}, 3, v0', f'v_add_u32 v{T + 16}, s{S_T2}, v{T + 16}',
              f'v_mul_u32_u24 v{vIdxOff}, 104, v{T + 16}',
             's_waitcnt lgkmcnt(0)']
        L += self.build_srd(SRD_IDX, S_IDX, 4096 * 104)
        own = [f'buffer_load_dwordx2 {vr(T + 4 * pc, 2)}, v{vIdxOff}, {srd(SRD_IDX)}, 0 offen offset:{pc * 832}' for pc in range(2)]
        if o.idx1 == 3:
            k_ = L.index(f's_xor_b32 s{S_T2}, s{S_WAVE}, 4')
            kw = L.index(f's_and_b32 s{S_T2}, s{S_MB}, 3')
            Lw = L[kw:k_]
            L = [f's_lshl_b32 s{S_T3}, s{S_MB}, 7'] + L[k_:] + own + L[:kw]
        L += (own if o.idx1 == 2 else []) + [f'buffer_load_dwordx3 {vr(PI, 3)}, v{q}, {srd(SRD_IDX)}, s{S_C0} offen'] + (own if o.idx1 == 1 else []) + ([f'buffer_load_dword v{T + 14}, v{q}, {srd(SRD_IDX)}, s{S_C0} offen offset:16'] if o.tc else [])
        L += self.tlb1(T + 24, 255) + (Lw if o.idx1 == 3 else [])
        vec = lambda dst, sr: [f's_mov_b32 m0, {dst}', 's_mov_b32 exec_hi, 0xff',
                               I(f'buffer_load_dwordx4 v{vBL}, {srd(sr)}, s{S_N0} offen lds', tag='BIAS'), 's_mov_b64 exec, -1']
        L += [f'v_lshlrev_b32 v{vBL}, 4, v0'] + self.build_srd(SRD_B1, S_B1, 3328)
        L += self.build_srd(SRD_W, S_W1, 1664 * 3328)
        L += [f'buffer_load_dword v255, v{vCW}, {srd(SRD_W)}, s{S_TW} offen']
        spf = []
        if o.spf:
            L += [f's_add_u32 s90, s{S_W1}, s{S_TW}', f's_addc_u32 s91, s{S_W1 + 1}, 0']
            st0, nst, two = o.spf // 100, o.spf // 10 % 10, o.spf % 10
            spf = [f's_load_dword s92, s[90:91], {(64 * st_ + 32 * k) * 3328 + 128 * ln + 64 * hh}' for st_ in range(st0, st0 + nst) for k in range(2) for ln in range(5) for hh in range(two)]
        if o.co2:
            L += [f'v_mov_b32 v{T + 13}, v{vCW}', f's_add_u32 s85, s{S_TW}, {64 * 3328}']
        co2 = [f'buffer_load_dword v255, v{T + 13}, {srd(SRD_W)}, s85 offen', f's_add_u32 s85, s85, {64 * 3328}']
        dpf = [f's_mul_i32 s{S_TW}, s{S_MB}, 5', f's_add_u32 s{S_TW}, s{S_TW}, s{S_R}', f's_lshl_b32 s{S_TW}, s{S_TW}, 3', f's_add_u32 s{S_TW}, s{S_TW}, s{S_WAVE}',
               f's_add_u32 s{S_TW}, s{S_TW}, {o.dp0 * 832}', f's_lshl_b32 s{S_TW}, s{S_TW}, 7', f'v_min_u32 v{vCW}, {o.dpn - 1}, v0', f'v_mul_u32_u24 v{vCW}, {1280 * 128}, v{vCW}',
               f'buffer_load_dword v255, v{vCW}, {srd(SRD_W)}, s{S_TW} offen']
        dp2 = [x.replace(f', {2 * 832}', f', {2 * 832 + o.dpn * 1280}').replace(f'v_min_u32 v{vCW}, {o.dpn - 1},', f'v_min_u32 v{vCW}, {o.dpm - 1},') for x in dpf]
        L += vec(L_BIAS, SRD_B1) + (self.build_srd(SRD_W2, S_W2, 3328) + vec(L_W2, SRD_W2) if o.w2e else []) + (dpf if o.dpf in (1, 3, 4) else []) + (spf if o.spp == 0 else [])
        L += self.stamp0()
        L += [f's_lshr_b32 s{HH}, s{S_WAVE}, 2', f's_and_b32 s{SL}, s{S_WAVE}, 3',
              f's_mov_b32 s{S_T2}, 1639', f's_and_b32 s{S_C0}, s{SL}, 1', f's_lshl_b32 s{S_C0}, s{S_C0}, 2',
              f's_mov_b32 s{S_TW}, 3328', f'v_mov_b32 v{T + 16}, v0']
        for u in range(5):
            ci, rr = T + 16, T + 17
            L += [f'v_mul_u32_u24 v{rr}, s{S_T2}, v{ci}', f'v_lshrrev_b32 v{rr}, 16, v{rr}',
                  f'v_mul_u32_u24 v{q}, 40, v{rr}', f'v_sub_u32 v{q}, v{ci}, v{q}',
                  f'v_and_b32 v{i4}, 2, v{rr}', f'v_or_b32 v{i4}, s{S_C0}, v{i4}', f'v_xor_b32 v{q}, v{q}, v{i4}',
                  f'v_mul_u32_u24 v{rr}, s{S_TW}, v{rr}', f'v_lshl_add_u32 v{vWD[u]}, v{q}, 4, v{rr}']
            if u % 4:
                L += [f'v_subrev_u32 v{vWD[u]}, {1024 * u}, v{vWD[u]}']
            if u < 4:
                L += [f'v_add_u32 v{ci}, 64, v{ci}']
        L += [f's_mul_i32 s{S_T2}, s{S_WAVE}, {8 * 3328}', f's_add_u32 s{S_WSOFF}, s{S_T2}, s{S_N0}',
              f's_mul_i32 s{S_WMB}, s{S_WAVE}, {8 * WP}', f's_add_u32 s{S_WMB}, s{S_WMB}, {WR}',
              f's_lshl_b32 s{S_T3}, s{HH}, 14', f's_lshl_b32 s{S_XM0}, s{SL}, 11', f's_add_u32 s{S_XM0}, s{S_XM0}, s{S_T3}', f's_xor_b32 s{S_XM0}, s{S_XM0}, {2 * XSLOT}',
              f'v_and_b32 v{q}, 7, v0', f'v_lshrrev_b32 v{g}, 4, v0',
              f'v_xor_b32 v{q}, v{q}, v{g}', f'v_lshlrev_b32 v{vCh[0]}, 4, v{q}',
              f'v_xor_b32 v{vCh[1]}, 64, v{vCh[0]}']
        LAB = L
        L = [f'v_and_b32 v{q}, 15, v0', f'v_lshlrev_b32 v{q}, 7, v{q}', f's_lshl_b32 s{S_T3}, s{HH}, 14',
              f'v_bfe_u32 v{i4}, v0, 1, 3', f'v_xor_b32 v{i4}, v{i4}, v{g}', f'v_lshl_add_u32 v{q}, v{i4}, 4, v{q}',
              f'v_add_u32 v{vX[0]}, s{S_T3}, v{q}', f'v_xor_b32 v{vX[1]}, 64, v{vX[0]}']
        L += self.build_srd(SRD_W2, S_W2, 3328)
        L += [f's_mul_i32 s{S_T3}, s{SL}, 5',
              f'v_bfe_u32 v{i4}, v0, 2, 2', f'v_lshl_add_u32 v{q}, v{g}, 3, v{i4}', f'v_mul_u32_u24 v{q}, {WP}, v{q}',
              f'v_and_b32 v{i4}, 3, v0', f'v_lshl_add_u32 v{q}, v{i4}, 3, v{q}', f'v_add_u32 v{q}, {WR}, v{q}',
              f'v_bfe_u32 v{i4}, v0, 3, 2']
        for i in range(5):
            L += [f'v_xor_b32 v{T + 16}, s{S_T3}, v{i4}', f'v_lshl_add_u32 v{vW[0][i]}, v{T + 16}, 5, v{q}',
                  f'v_add_u32 v{vW[1][i]}, {3 * WSLOT}, v{vW[0][i]}', f's_add_u32 s{S_T3}, s{S_T3}, 1']
        L += [f's_mul_i32 s{S_T3}, s{SL}, 160', f's_add_u32 s{S_T3}, s{S_T3}, {L_BIAS}',
              f'v_lshlrev_b32 v{q}, 3, v{g}', f'v_add_u32 v{vP}, s{S_T3}, v{q}',
              f's_lshl_b32 s{S_T2}, s{SL}, 1', f's_add_u32 s{S_T2}, s{S_T2}, s{HH}', f's_lshl_b32 s{S_T2}, s{S_T2}, 8', f's_add_u32 s{S_T2}, s{S_T2}, {RB}',
              f'v_lshlrev_b32 v{vPc}, 2, v0', f'v_add_u32 v{vPc}, s{S_T2}, v{vPc}']
        LC, L = (L, LAB) if o.lc else ([], LAB + L)

        def wld(u):
            return I(f'buffer_load_dwordx4 v{vWD[u]}, {srd(SRD_W)}, s{S_WSOFF} offen offset:{1024 * (u % 4)}{o.wfl} lds', tag='W')

        def wst(stage):
            return [(f's_add_u32 m0, s{S_WMB}, {(stage % 3) * 2 * WSLOT}', wld(0)), (wld(1),), (wld(2),), (wld(3),),
                    ('s_add_u32 m0, m0, 4096', wld(4), f's_add_u32 s{S_WSOFF}, s{S_WSOFF}, {64 * 3328}')]

        def xld(v, m0, tag='X'):
            return (m0, I(f'buffer_load_dwordx4 v{v}, {srd(SRD_TAB)}, 0 offen{o.xfl} lds', tag=tag))
        pkreads = lambda off: [f'ds_read_b64 {vr(PK + 2 * tn, 2)}, v{vP} offset:{off + 32 * tn}' for tn in range(5)]

        def unp(dst):
            c = []
            for tn in range(5):
                for d in range(2):
                    c += [f'v_lshlrev_b32 v{dst(tn) + 2 * d}, 16, v{PK + 2 * tn + d}', f'v_and_b32 v{dst(tn) + 2 * d + 1}, 0xffff0000, v{PK + 2 * tn + d}']
            return c

        def reads(st):
            def rdw(tn):
                c = []
                for par in range(2):
                    sl = (st % 3) * 2 + par
                    c += [f'ds_read_b64_tr_b16 {vr(WF + 8 * tn + 4 * par + 2 * rd, 2)}, v{vW[sl // 3][tn]} offset:{(sl % 3) * WSLOT + rd * 4 * WP}' for rd in range(2)]
                return c
            rdx = [f'ds_read_b128 {vr(XA + 8 * tm + 4 * par, 4)}, v{vX[par]} offset:{(st % 2) * XSLOT + tm * 2048}' for tm in range(4) for par in range(2)]
            if o.x64:
                rdx = [f'ds_read_b64 {vr(XA + 8 * tm + 4 * par + 2 * h, 2)}, v{vX[par]} offset:{(st % 2) * XSLOT + tm * 2048 + 8 * h}' for tm in range(4) for par in range(2) for h in range(2)]
            return rdw(0) + rdw(1) + rdw(2) + rdw(3) + rdx + rdw(4) if o.ro == 0 else rdw(0) + rdx + rdw(1) + rdw(2) + rdw(3) + rdw(4)

        def xst(src, f, tag='X'):
            vo = lambda pc: (f'v_lshl_add_u32 v{VO[pc]}, v{src(pc)}, 7, v{vCh[pc]}',)
            return [vo(1) + vo(0) + xld(VO[0], f's_add_u32 m0, s{S_XM0}, {(f % 2) * XSLOT}', tag), xld(VO[1], 's_add_u32 m0, m0, 1024', tag)]
        idxl = lambda k: [f'buffer_load_dwordx3 {vr(ST[k][pc], 3)}, v{vIdxOff}, {srd(SRD_IDX)}, s{S_IDXOFF} offen offset:{pc * 832}' for pc in range(2)] + [f's_add_u32 s{S_IDXOFF}, s{S_IDXOFF}, 12']

        tA = [f'buffer_load_dword v255, v{PI}, {srd(SRD_TAB)}, 0 offen']
        tB = [f'v_lshlrev_b32 v{PI + 2}, 7, v{PI + 2}', f'buffer_load_dword v255, v{PI + 2}, {srd(SRD_TAB)}, 0 offen']
        ini = LC + [WaitTag(vm_tags=['BIAS'])] + pkreads(0) + unp(lambda tn: acc(tn, 0))
        ini += [f'v_mov_b64 {vr(acc(tn, tm) + 2 * d, 2)}, {vr(acc(tn, 0) + 2 * d, 2)}' for tn in range(5) for tm in range(1, 4) for d in range(2)]
        x0 = xst(lambda pc: T + 4 * pc, 0, 'X0')
        tC = [f'v_lshlrev_b32 v{T + 14}, 7, v{T + 14}', f'buffer_load_dword v255, v{T + 14}, {srd(SRD_TAB)}, 0 offen']
        if o.tc == 1:
            tB = tB + tC
        if o.tc == 2:
            ini = ini + tC
        tBl = []
        if o.tbl:
            tBl, tB = tB, []
        b1 = ['s_barrier'] if o.pb & 1 else []
        b2 = ['s_barrier'] if o.pb & 2 else []
        sh = [f'v_lshlrev_b32 v{PI}, 7, v{PI}']
        if o.sv == 0:
            L += sh + (own if not o.idx1 else []) + b1 + tA + tB + self.stamp(6) + wst(0) + ini + x0 + self.stamp(7) + b2
        elif o.sv == 1:
            L += self.stamp(19) + (spf if o.spp == 1 else []) + (co2 if o.co2 == 1 else []) + wst(0) + (co2 if o.co2 == 2 else []) + (co2 if o.co3 & 1 else []) + (spf if o.spp == 2 else []) + sh + (own if not o.idx1 else []) + b1 + tA + self.stamp(6) + x0 + (co2 if o.co2 == 3 or o.co3 & 2 else []) + tB + (dpf if o.dpf == 2 else []) + (dp2 if o.dpf == 3 else []) + b2 + ini + (dp2 if o.dpf == 4 else []) + (co2 if o.co3 & 4 else []) + self.stamp(7)
        elif o.sv == 2:
            L += sh + (own if not o.idx1 else []) + b1 + tA + self.stamp(6) + x0 + wst(0) + tB + b2 + ini + self.stamp(7)
        elif o.sv == 3:
            L += wst(0) + (own if not o.idx1 else []) + x0 + self.stamp(6) + sh + tA + tB + b2 + ini + self.stamp(7)
        if o.cp2:
            L += [f's_and_b32 s{S_T2}, s{S_MB}, 3', f's_mul_i32 s{S_T2}, s{S_T2}, 5', f's_add_u32 s{S_T2}, s{S_T2}, s{S_R}', f's_lshl_b32 s{S_T2}, s{S_T2}, 3',
                  f's_add_u32 s{S_T2}, s{S_T2}, s{S_WAVE}', f's_lshl_b32 s{S_T2}, s{S_T2}, 7', f's_add_u32 s{S_T2}, s{S_T2}, L_dnn_in0-L_pc',
                  f's_add_u32 s{S_T2}, s{S_T2}, s{S_MASK}', f's_addc_u32 s{S_T3}, s{S_MASK + 1}, 0', f'v_mov_b32 v38, s{S_T2}', f'v_mov_b32 v39, s{S_T3}']
        L += [f's_lshl_b32 s{S_IDXOFF}, s{HH}, 2', f's_add_u32 s{S_IDXOFF}, s{S_IDXOFF}, 4'] + idxl(0)
        L += [f's_mov_b32 s{S_LOOP}, 0', f's_cmp_lg_u32 s{HH}, 0', 's_cbranch_scc1 L_dnn_h1']
        pro = self.seq(L)

        def mf(tn, tm, par):
            a = acc(tn, tm)
            return f'v_mfma_f32_16x16x32_bf16 {vr(a, 4)}, {vr(WF + 8 * tn + 4 * par, 4)}, {vr(XA + 8 * tm + 4 * par, 4)}, {vr(a, 4)}'
        MM = [mf(tn, j if tn % 2 == 0 else 3 - j, par) for tn in range(5) for j in range(4) for par in range(2)]
        kb = o.bov
        wi = self.winv(W2F, 20, KONE)
        K1 = list(range(132, 140)) + list(range(220, 232))
        KL, SC = 238, 239
        nw_ = 14
        if o.pr:
            wi = self.winv2(W2F, 20, K1, KL, SC)
            nw_ = 30
        trs = []
        for half in range(2):
            def fill(st, w=True, x=True, extra=(), rextra=()):
                D_ = (wst(st + 2) if w else []) + (xst(lambda pc: ST[(st // 3) % 2][pc] + st % 3, st + 1 + half) if x else [])
                return interleave(reads(st) + list(rextra), D_) + list(extra)

            def M(V=(), b=True, last=False, nw=5, g0=0):
                gp = [[] for _ in MM]
                V = list(V)
                n_ = len(MM) - kb - 1
                wt = [2 if isinstance(x, str) and x.startswith(('v_exp', 'v_rcp')) else 1 for x in V]
                cum = 0
                for x, w_ in zip(V, wt):
                    gp[g0 + cum * (n_ - g0) // sum(wt)].append(x)
                    cum += w_
                m = [(x,) + tuple(y) for x, y in zip(MM, gp)]
                return ['s_setprio 0'] * b + m[:len(m) - kb] + (['s_setprio 2'] + ([WaitTag(vm_tags=['W1'], allbut=('W', nw))] if half == 0 else []) + ['s_barrier'] if b else []) + m[len(m) - kb:] + ['s_setprio 0'] * last
            wF = lambda nw=5, nx=2: [WaitTag(vm_tags=['X0'], allbut=('X', nx), lgkm0=True)] + ([WaitTag(allbut=('W', nw))] if half else []) + ['s_barrier']
            L = [f'L_dnn_h{half}:']
            pre = (xst(lambda pc: T + 4 * pc + 1, 1) if half or o.f0 else []) + wst(1)[:4] + [wst(1)[4] + tuple(co2 if o.co3 & 8 else []) + tuple(tC if o.tc == 3 else [])] + tBl + idxl(1)
            wset = pkreads(WP) + self.kconst(KC0, KC1, KONE) + unp(lambda tn: W2F + 4 * tn) + wi if o.w2e else []
            if half == 0 and o.f0:
                for x in flat(pre):
                    if isinstance(x, I) and x.tag == 'W':
                        x.tag = 'W1'
                L += pre + [f's_add_u32 s{S_WSOFF}, s{S_WSOFF}, {64 * 3328}', WaitTag(vm_tags=['W'], lgkm0=True)] + self.stamp(1) + ['s_barrier'] + self.stamp(2)
                L += reads(0) + ['s_branch L_dnn_in0']
            elif half == 0:
                L += pre[:o.q0] + wset + [WaitTag(allbut=('W', min(o.q0, 5)), lgkm0=True)] + self.stamp(1) + ['s_barrier'] + self.stamp(2) + pre[o.q0:]
            else:
                if o.f0:
                    wset = [f's_sub_u32 s{S_WSOFF}, s{S_WSOFF}, {32 * 3328}', f's_sub_u32 s{S_WMB}, s{S_WMB}, {WSLOT}']
                    late_ = wst(2) + [f's_sub_u32 s{S_WSOFF}, s{S_WSOFF}, {32 * 3328}', f's_add_u32 s{S_WMB}, s{S_WMB}, {WSLOT}']
                    wset += late_ if o.f0 == 1 else []
                if o.w2e == 2:
                    pre, wset = pre[:o.q1 - 1] + [pre[o.q1 - 1] + tuple(wset)] + pre[o.q1:], []
                L += pre[:o.q1] + [WaitTag(allbut=('W', max(0, min(o.q1 - 2, 5)))), WaitTag(vm_tags=['X0'], lgkm0=True)] + self.stamp(1) + ['s_barrier'] + self.stamp(2) + pre[o.q1:] + wset + ['s_barrier'] + (late_ if o.f0 == 2 else [])
            th = pro + self.seq(L)
            L = [f'L_dnn_loop{half}:']
            for st in range(6):
                ex = []
                if st % 3 == 2:
                    ex += idxl(st // 3)
                if o.cp2 and st == 4:
                    ex += ['global_load_dword v255, v[38:39], off']
                if st == 4 and half == 1 and not o.w2e:
                    ex += [tuple(vec(L_W2, SRD_W2))]
                if o.padat.startswith('dl') and int(o.padat[2:]) % 6 == st:
                    ex += [('s_memrealtime s[86:87]', 's_waitcnt lgkmcnt(0)', f's_cmp_eq_u32 s{S_LOOP}, {int(o.padat[2:]) // 6}', 's_cselect_b32 s88, s86, s88')]
                if o.cyc.startswith('go,dl') and int(o.cyc[5:]) % 6 == st:
                    ex += [('s_memtime s[86:87]', 's_waitcnt lgkmcnt(0)', 's_sub_u32 s86, s86, s88', f's_cmp_eq_u32 s{S_LOOP}, {int(o.cyc[5:]) // 6}', 's_cselect_b32 s88, s86, s88')]
                if o.stamps and o.itst == 2 and st % 2:
                    ex += [(f's_memtime s[{S_ST}:{S_ST + 1}]', f's_memrealtime s[{S_ST + 2}:{S_ST + 3}]', f's_mul_i32 s{S_TW}, s{S_LOOP}, 3', f's_add_u32 s{S_TW}, s{S_TW}, {8 + st // 2}',
                           f's_min_u32 s{S_TW}, s{S_TW}, 14', 's_waitcnt lgkmcnt(0)',
                           f's_mov_b32 m0, s{S_TW}', f'v_writelane_b32 v252, s{S_ST}, m0', f'v_writelane_b32 v253, s{S_ST + 2}, m0')]
                if o.stamps and o.itst == 1 and st in (1, 4):
                    ex += [(f's_memtime s[{S_ST}:{S_ST + 1}]', f's_memrealtime s[{S_ST + 2}:{S_ST + 3}]', f's_lshl_b32 s{S_TW}, s{S_LOOP}, 1', f's_add_u32 s{S_TW}, s{S_TW}, {6 + st // 3}',
                           f's_max_u32 s{S_TW}, s{S_TW}, 8', 's_waitcnt lgkmcnt(0)',
                           f's_mov_b32 m0, s{S_TW}', f'v_writelane_b32 v252, s{S_ST}, m0', f'v_writelane_b32 v253, s{S_ST + 2}, m0')]
                L += fill(st, extra=ex)
                if st == 0:
                    b0_ = self.seq(L)
                    L = [f'L_dnn_in{half}:']
                L += wF() + M([f's_add_u32 s{S_LOOP}, s{S_LOOP}, 1', f's_cmp_lt_u32 s{S_LOOP}, {5 if o.p25 else 4}'] if st == 5 else
                              ([f's_cmp_eq_u32 s{S_LOOP}, 3'] if st == 5 - o.p6 else ([f's_cmp_eq_u32 s{S_LOOP}, 4'] if o.p25 and st == 0 else [])))
                if o.p25 and st == 0:
                    L += [f's_cbranch_scc1 L_dnn_y{half}']
                    ny_ = len(flat(L))
                if o.p6 and st == 5 - o.p6:
                    L += [f's_cbranch_scc1 L_dnn_x{half}']
                    nx_ = len(flat(L))
            L += [f's_cbranch_scc1 L_dnn_loop{half}']
            b1_ = self.seq(L)
            th += (b1_ if half == 0 and o.f0 else []) + (b0_ + b1_) * 3
            if o.p6:
                th += b0_ + b1_[:nx_]
                su = self.kconst(KC0, KC1, KONE) + unp(lambda tn: W2F + 4 * tn) + wi
                L = [f'L_dnn_x{half}:'] + (self.stamp(20) if o.cyc else [])
                for k_, st in enumerate(range(6 - o.p6, 6)):
                    L += fill(st, extra=idxl(st // 3) if st == 2 else [], rextra=pkreads(WP) if k_ == 0 else []) + wF()
                    L += M(su[k_ * len(su) // (o.p6 + 1):(k_ + 1) * len(su) // (o.p6 + 1)])
                th += self.seq(L)
            if o.t2 and o.pr:
                E_ = [(acc(0, tm) + r, 24 + 4 * tm + r, W2F + r, K1[r], SUMP + 2 * tm + r % 2, r) for tm in range(o.t2) for r in range(4)]
                ev = [f'v_mul_f32 v{t}, v{x}, v{x}' for (x, t, w, k1, s_, r) in E_] + [f'v_fma_f32 v{t}, v{t}, v{KC1}, v{KC0}' for (x, t, w, k1, s_, r) in E_]
                ev += [f'v_fma_f32 v{t}, v{t}, v{x}, v{KONE}' for (x, t, w, k1, s_, r) in E_] + [f'v_exp_f32 v{t}, v{t} clamp' for (x, t, w, k1, s_, r) in E_]
                ev += [f'v_fma_f32 v{t}, v{t}, v{k1}, v{w}' for (x, t, w, k1, s_, r) in E_] + [f'v_rcp_f32 v{t}, v{t}' for (x, t, w, k1, s_, r) in E_]
                ev += [f'v_{"mul" if r < 2 else "fmac"}_f32 v{s_}, v{t}, v{x}' for (x, t, w, k1, s_, r) in E_]
                if o.p25:
                    assert o.w2e and not o.p6
                    th += b0_ + b1_[:ny_]
                    L = [f'L_dnn_y{half}:'] + fill(25, w=False, x=False, extra=self.tlb2(VO[0], vBL) if half == 0 else []) + wF(5, 2 * half) + M(ev, b=half == 0, last=True, g0=o.t2g)
                elif o.p6 or o.w2e:
                    L = fill(24, w=False, x=half == 0, extra=self.tlb2(VO[0], vBL) if half == 0 else []) + wF(0, 2 - 2 * half)
                    L += M(su[o.p6 * len(su) // (o.p6 + 1):] if o.p6 else [], nw=0)
                    L += fill(25, w=False, x=False) + wF(0, 0) + M(ev, b=half == 0, last=True, g0=o.t2g)
                else:
                    L = pkreads(WP) + fill(24, w=False, x=half == 0, extra=(self.tlb2(VO[0], vBL) if half == 0 else []) + unp(lambda tn: W2F + 4 * tn) + wi[:14]) + wF(0, 2 - 2 * half)
                    L += M(self.kconst(KC0, KC1, KONE) + wi[14:o.t2w], nw=0)
                    L += fill(25, w=False, x=False, extra=wi[o.t2w:82]) + wF(0, 0) + M(wi[82:] + ev, b=half == 0, last=True)
            elif o.t2:
                E_ = [(acc(0, tm) + h, WF + 2 * tm + h, W2F + h, SUMP + 2 * tm + h) for tm in range(o.t2) for h in range(2)]
                ev = [f'v_mul_f32 v{t}, v{x}, v{x}' for (x, t, w, s_) in E_] + [f'v_fma_f32 v{t}, v{t}, v{KC1}, v{KC0}' for (x, t, w, s_) in E_]
                ev += [f'v_mul_f32 v{t}, v{t}, v{x}' for (x, t, w, s_) in E_] + [f'v_exp_f32 v{t}, v{t}' for (x, t, w, s_) in E_]
                ev += [f'v_fma_f32 v{t}, v{t}, v{w}, v{w}' for (x, t, w, s_) in E_] + [f'v_rcp_f32 v{t}, v{t}' for (x, t, w, s_) in E_]
                ev += [f'v_mul_f32 v{s_}, v{t}, v{x}' for (x, t, w, s_) in E_]
                L = pkreads(WP) + fill(24, w=False, x=half == 0, extra=(self.tlb2(VO[0], vBL) if half == 0 else []) + unp(lambda tn: W2F + 4 * tn)) + wF(0, 2 - 2 * half)
                L += M(self.kconst(KC0, KC1, KONE) + wi, nw=0)
                L += fill(25, w=False, x=False) + wF(0, 0) + M(ev, b=half == 0, last=True, g0=o.t2g)
            else:
                L = fill(24, w=False, x=half == 0, rextra=pkreads(WP) if not o.w2e else [], extra=self.tlb2(VO[0], vBL) if half == 0 else []) + wF(0, 2 - 2 * half)
                L += M(self.kconst(KC0, KC1, KONE) + unp(lambda tn: W2F + 4 * tn) + wi[:nw_] if not o.w2e else [], nw=0)
                L += fill(25, w=False, x=False) + wF(0, 0) + M(wi[nw_:] if not o.w2e else [], b=half == 0, last=True)
            if half == 0:
                L += ['s_branch L_epi']
            trs.append(th + self.seq(L))
        p2 = lambda r: vr(r, 2)
        el = lambda tn, tm, d: (acc(tn, tm) + 2 * d, W2F + 4 * tn + 2 * d, SUMP + 2 * tm)
        L = ['L_epi:'] + self.stamp(3)
        L += [f's_lshl_b32 s{S_T1}, s{S_R}, 11', f's_and_b32 s{S_T3}, s{S_MB}, 3', f's_lshl_b32 s{S_T3}, s{S_T3}, 9', f's_add_u32 s{S_T1}, s{S_T1}, s{S_T3}',
              f's_lshr_b32 s{S_T0}, s{S_MB}, 2', f's_lshl_b32 s{S_T0}, s{S_T0}, 14', f's_add_u32 s{S_T1}, s{S_T1}, s{S_T0}',
              'v_lshlrev_b32 v3, 3, v0', f'v_add_u32 v2, {RB}, v3']
        if o.pr:
            L += self.gelu2([[(acc(tn, tm), (W2F + 4 * tn, W2F + 4 * tn + 2), (K1[4 * tn], K1[4 * tn + 2]), SUMP + 2 * tm) for tm in range(4) if tn or tm >= o.t2] for tn in range(5)], WF, KC0, KC1, KONE,
                            [SUMP + 2 * tm for tm in range(o.t2)])
        else:
            gr = [[el(tn, tm, d) for tm in range(4) if tn or d or tm >= o.t2] for tn in range(5) for d in range(2)]
            L += self.gelu([x for x in gr if x], WF, KC0, KC1, KONE, [SUMP + 2 * tm for tm in range(o.t2)])
        L += self.red4(SUMP, SC if o.pr else None) + [f'ds_write_b32 v{vPc}, v{SUMP}', 's_waitcnt lgkmcnt(0)'] + self.stamp(4) + self.stamp_flush()
        L += [f's_cmp_eq_u32 s{S_WAVE}, 0', 's_cbranch_scc1 L_dpub']
        tr = self.seq(L)
        self.seq(['s_barrier', 's_endpgm'])
        A = 64
        L = ['L_dpub:'] + self.build_srd(SRD_WS, S_WS, 0x10000000) + self.build_srd(SRD_DBG, S_DBG, 256) + self.cleared('L_dclr', [f's_and_b32 s{S_TW}, s2, 7'], vBL) + ['s_barrier'] + self.stamp(17)
        L += [f'ds_read_b64 {vr(A + 2 * qq, 2)}, v2 offset:{qq * 512}' for qq in range(4)]
        L += [f'v_pk_add_f32 {p2(A)}, {p2(A)}, {p2(A + 2)}', f'v_pk_add_f32 {p2(A + 4)}, {p2(A + 4)}, {p2(A + 6)}', f'v_pk_add_f32 {p2(A)}, {p2(A)}, {p2(A + 4)}',
              f'v_and_b32 v{A}, -2, v{A}', f'v_and_b32 v{A + 1}, -2, v{A + 1}',
              f'buffer_store_dwordx2 {vr(A, 2)}, v3, {srd(SRD_WS)}, s{S_T1} offen sc1'] + self.padsig() + ['s_endpgm']
        return [trs[0] + tr + self.seq(L), trs[1] + tr]

    def rem(self):
        o = self.opt
        self.role = 'r'
        vW = [1, 2, 7, 8]
        vX = [11, 12]
        vWD, vCh, vT, VO = 13, [14, 15], 9, 24
        SUMP = 16
        IDX = 32
        XA, WF = 64, 96
        ACC = 160
        BF, W2F = 32, 48
        PK = 224
        KC0, KC1, KONE = 240, 242, 244
        g, i4, q = 246, 247, 248
        S_F = S_IDXOFF
        acc = lambda tn, tm: ACC + (tn * 4 + tm) * 4
        L = ['L_rem:'] + (['s_memrealtime s[82:83]'] if o.amp == 4 else []) + [f's_lshr_b32 s{S_GRP}, s{S_WAVE}, 2', f's_and_b32 s{S_T0}, s2, 7', f's_lshl_b32 s{S_T0}, s{S_T0}, 3', f's_add_u32 s{S_T0}, s{S_T0}, s{S_WAVE}',
             f's_mul_i32 s{S_T0}, s{S_T0}, {64 * 104}', f's_lshl_b32 s{S_XM0}, s{S_WAVE}, 14',
             f'v_lshlrev_b32 v{q}, 4, v0', f'v_lshrrev_b32 v{g}, 4, v0',
             f'v_lshrrev_b32 v{i4}, 3, v0', f'v_mul_u32_u24 v{vWD}, 3328, v{i4}', f'v_and_b32 v{i4}, 2, v{i4}',
             f's_and_b32 s{S_T1}, s{S_WAVE}, 1', f's_lshl_b32 s{S_T1}, s{S_T1}, 2', f'v_or_b32 v{i4}, s{S_T1}, v{i4}',
             f'v_and_b32 v{vT}, 7, v0', f'v_xor_b32 v{i4}, v{i4}, v{vT}', f'v_lshl_add_u32 v{vWD}, v{i4}, 4, v{vWD}',
             f's_mul_i32 s{S_WSOFF}, s{S_WAVE}, {8 * 3328}', f's_add_u32 s{S_WSOFF}, s{S_WSOFF}, 3200',
             f's_lshl_b32 s{S_WMB}, s{S_WAVE}, 10', f's_add_u32 s{S_WMB}, s{S_WMB}, {RWR}',
             's_waitcnt lgkmcnt(0)']
        L += [f's_load_dword s{S_BOUT}, s[{S_BO}:{S_BO + 1}], 0'] + self.build_srd(SRD_IDX, S_IDX, 4096 * 104)
        for u in range(7):
            L += [f's_add_u32 m0, s{S_XM0}, {8192 + u * 1024}', I(f'buffer_load_dwordx4 v{q}, {srd(SRD_IDX)}, s{S_T0} offen lds', tag='I'),
                  f's_add_u32 s{S_T0}, s{S_T0}, 1024']
        L += self.build_srd(SRD_W, S_W1, 1664 * 3328)
        wld = lambda slot: [f's_add_u32 m0, s{S_WMB}, {slot * 8192}', I(f'buffer_load_dwordx4 v{vWD}, {srd(SRD_W)}, s{S_WSOFF} offen lds', tag='W'),
                            f's_add_u32 s{S_WSOFF}, s{S_WSOFF}, {64 * 3328}']
        L += wld(0)
        L += self.build_srd(SRD_WS, S_WS, 0x10000000) + self.build_srd(SRD_DBG, S_DBG, 256) + [f'v_mov_b32 v{XA + k}, -1' for k in range(4)]
        L += [f's_and_b32 s{S_T2}, s2, 7', f's_lshl_b32 s{S_T0}, s{S_T2}, 3', f's_add_u32 s{S_T0}, s{S_T0}, s{S_WAVE}', f's_lshl_b32 s{S_T0}, s{S_T0}, 11', f's_lshl_b32 s{S_T2}, s{S_T2}, 2',
              f'buffer_store_dwordx4 {vr(XA, 4)}, v{q}, {srd(SRD_WS)}, s{S_T0} offen sc1',
              f'buffer_store_dwordx4 {vr(XA, 4)}, v{q}, {srd(SRD_WS)}, s{S_T0} offen offset:1024 sc1']
        L += self.build_srd(SRD_B1, S_B1, 3328) + self.build_srd(SRD_W2, S_W2, 3328) + self.build_srd(SRD_TAB, S_TAB, 100000 * 128)
        L += self.stamp0()
        L += [f'v_xor_b32 v{q}, v{vT}, v{g}', f'v_lshlrev_b32 v{vCh[0]}, 4, v{q}', f'v_xor_b32 v{vCh[1]}, 64, v{vCh[0]}',
              f'v_bfe_u32 v{i4}, v0, 2, 2', f'v_lshl_add_u32 v{q}, v{g}, 3, v{i4}', f'v_lshlrev_b32 v{q}, 7, v{q}',
              f'v_and_b32 v{i4}, 3, v0', f'v_lshl_add_u32 v{q}, v{i4}, 3, v{q}', f'v_add_u32 v{q}, {RWR}, v{q}',
              f'v_bfe_u32 v{i4}, v0, 3, 2', f'v_lshl_add_u32 v{vW[0]}, v{i4}, 5, v{q}']
        L += [f'v_xor_b32 v{vW[i]}, {32 * i}, v{vW[0]}' for i in range(1, 4)]
        L += [f'v_and_b32 v{q}, 15, v0', f'v_lshlrev_b32 v{q}, 7, v{q}',
              f'v_bfe_u32 v{i4}, v0, 1, 3', f'v_xor_b32 v{i4}, v{i4}, v{g}', f'v_lshl_add_u32 v{q}, v{i4}, 4, v{q}',
              f'v_add_u32 v{vX[0]}, s{S_XM0}, v{q}', f'v_xor_b32 v{vX[1]}, 64, v{vX[0]}',
              f'v_lshrrev_b32 v{i4}, 3, v0', f'v_lshl_add_u32 v{q}, v{vT}, 3, v{i4}', f'v_mul_u32_u24 v{q}, 104, v{q}', f'v_add_u32 v{q}, s{S_XM0}, v{q}']
        S_OO = S_N0
        L += self.build_srd(SRD_OUT, S_OUT, 8192) + [
             f's_and_b32 s{S_OO}, s2, 7', f's_lshl_b32 s{S_T0}, s{S_OO}, 14', f's_lshl_b32 s{S_T1}, s{S_WAVE}, 8', f's_add_u32 s{S_T0}, s{S_T0}, s{S_T1}',
             f's_add_u32 s{S_T1}, s{S_T0}, 4096', f's_add_u32 s{S_T3}, s{S_T0}, 8192',
             f's_lshl_b32 s{S_OO}, s{S_OO}, 3', f's_add_u32 s{S_OO}, s{S_OO}, s{S_WAVE}', f's_lshl_b32 s{S_OO}, s{S_OO}, 7',
             'v_lshlrev_b32 v3, 2, v0', 'v_lshlrev_b32 v4, 1, v0',
             f's_lshl_b32 s{S_TW}, s{S_WAVE}, 6', f'v_add_u32 v5, s{S_TW}, v0', f'v_cmp_lt_u32 vcc, {(439 if o.sym else 483) + o.n4}, v5', 'v_add_u32 v5, 4096, v3', 'v_mov_b32 v6, 0x7f000000',
             'v_cndmask_b32 v5, v6, v5, vcc']
        L += self.kconst(KC0, KC1, KONE, o.rpr) + [f'v_mov_b32 v{r}, 0' for r in range(ACC, ACC + 64)] + ['s_waitcnt vmcnt(0) lgkmcnt(0)', f's_lshl_b32 s{S_BOUT}, s{S_BOUT}, 16']
        L += [f'ds_read_b64 {vr(IDX + 2 * k, 2)}, v{q} offset:{8192 + 8 * k}' for k in range(13)]

        def xld(src, slot, h=None):
            c = [tuple(f'v_add_u32_dpp v{VO + pc}, v{src}, v{vCh[pc % 2]} row_newbcast:{8 * hh + pc} row_mask:0xf bank_mask:{hex(3 << (2 * hh))}'
                       for hh in range(2) for pc in range(4 * k, 4 * k + 4)) for k in range(2)]
            d = [(f's_add_u32 m0, s{S_XM0}, {slot * 8192 + pc * 1024}',
                  I(f'buffer_load_dwordx4 v{VO + pc}, {srd(SRD_TAB)}, 0 offen lds', tag='X')) for pc in range(8)]
            return c[:1] + d[:4] + c[1:] + d[4:] if h is None else c[h:h + 1] + d[4 * h:4 * h + 4]
        L += [f'v_mov_b32 v{VO + pc}, 0' for pc in range(8)] + [f'v_mov_b32 v{IDX + k}, 0x7f000000' for k in (26, 27)]
        L += [f'v_lshlrev_b32 v{IDX}, 7, v{IDX}'] + xld(IDX, 0)
        L += wld(1) + [f'v_lshlrev_b32 v{IDX + k}, 7, v{IDX + k}' for k in range(25, 0, -1)] + xld(IDX + 1, 1) + wld(2)
        L += [f'v_lshlrev_b32 v{q}, 3, v{g}']

        rdx = lambda fp, h: [f'ds_read_b128 {vr(XA + 16 * h + 8 * t + 4 * par, 4)}, v{vX[par]} offset:{fp * 8192 + (2 * h + t) * 2048}' for t in (1, 0) for par in (1, 0)]
        rdw = lambda fp: [f'ds_read_b64_tr_b16 {vr(WF + 32 * fp + 8 * tn + 4 * par + 2 * rd, 2)}, v{vW[tn]} offset:{fp * 8192 + par * 4096 + rd * 512}'
                          for tn in range(4) for par in range(2) for rd in range(2)]

        def mm(fp, h):
            return [f'v_mfma_f32_16x16x32_bf16 {vr(acc(tn, 2 * h + t), 4)}, {vr(WF + 32 * fp + 8 * tn + 4 * par, 4)}, {vr(XA + 16 * h + 8 * t + 4 * par, 4)}, {vr(acc(tn, 2 * h + t), 4)}'
                    for tn in range(4) for t in range(2) for par in range(2)]
        L += [f's_mov_b32 s{S_F}, 3', f'v_mov_b32 v{vT}, v{IDX + 2}'] + list(xld(vT, 0, 0)[0])
        L += [WaitTag(allbut=('X', 12)), 's_barrier'] + self.stamp(2) + rdx(0, 0) + rdw(0)
        L += [f's_cmp_lg_u32 s{S_WAVE}, 7', 's_cbranch_scc1 L_rem_loop', 's_mov_b64 exec, 1',
              ] + (['s_or_b32 s86, s88, 1', 'v_mov_b32 v10, s86'] if o.gs else []) + [
              f'buffer_store_dword v{10 if o.gs else KC0}, v{vCh[0]}, {srd(SRD_DBG)}, s{S_T2} offen offset:128 sc1', 's_mov_b64 exec, -1']
        tr = self.seq(L)

        def phase(M, R, Dm, V, V2=()):
            gp = [[] for _ in M]
            for k, x in enumerate(R):
                gp[k * o.rrd // max(len(R), 1)].append(x)
            for k, x in enumerate(Dm):
                gp[1 + k * 15 // len(Dm)].append(x)
            v0 = o.rrd if R else 0
            for k, x in enumerate(V):
                gp[v0 + k * (16 - v0) // len(V)].append(x)
            for k, x in enumerate(V2):
                gp[3 + k * 12 // len(V2)].append(x)
            return [(m,) + tuple(g_) for m, g_ in zip(M, gp)]
        assert not o.rpr
        ub = [x for k in range(8) for x in (f'v_lshlrev_b32 v{BF + 2 * k}, 16, v{PK + k}', f'v_and_b32 v{BF + 2 * k + 1}, 0xffff0000, v{PK + k}')]
        uw = [x for k in range(8) for x in (f'v_lshlrev_b32 v{W2F + 2 * k}, 16, v{PK + 8 + k}', f'v_and_b32 v{W2F + 2 * k + 1}, 0xffff0000, v{PK + 8 + k}')]
        wi = self.winv(W2F, 16, KONE)
        badd = lambda h: [f'v_add_f32 v{acc(tn, 2 * h + t) + r}, v{BF + 4 * tn + r}, v{acc(tn, 2 * h + t) + r}' for tn in range(4) for t in range(2) for r in range(4)]
        vld = [f'buffer_load_dwordx2 {vr(PK + 2 * tn, 2)}, v{q}, {srd(SRD_B1)}, 0 offen offset:{3200 + 32 * tn}' for tn in range(4)]
        vld += [f'buffer_load_dwordx2 {vr(PK + 8 + 2 * tn, 2)}, v{q}, {srd(SRD_W2)}, 0 offen offset:{3200 + 32 * tn}' for tn in range(4)]

        def field(fp, last):
            L = [WaitTag(allbut=('W', 1)), WaitTag(allbut=('X', 0 if last and fp else 8))] + ([] if last and fp else ['s_barrier'])
            if fp == 1 and not last:
                L += [f'v_xor_b32 v{vW[i]}, 16384, v{vW[i]}' for i in range(4)]
            sx = (f's_xor_b32 s{S_WMB}, s{S_WMB}, 16384',)
            wl = [sx + tuple(wld(1)) + sx] if fp == 0 else [tuple(wld(0)) + sx]
            rw = rdw(1 - fp)
            mv = [(f's_set_gpr_idx_on s{S_F}, gpr_idx(SRC0)', 's_nop 0', f'v_mov_b32 v{vT}, v{IDX}', 's_set_gpr_idx_off', f's_add_u32 s{S_F}, s{S_F}, 1')]
            if not last:
                L += phase(mm(fp, 0), rdx(fp, 1) + rw[:8], xld(vT, fp, 0)[1:], list(xld(vT, fp, 1)[0]))
                L += [WaitTag(allbut=('X', 8))]
                L += phase(mm(fp, 1), rdx(1 - fp, 0) + rw[8:], xld(vT, fp, 1)[1:] + wl, mv + list(xld(vT, fp, 0)[0]))
            elif not o.rv:
                if fp == 0:
                    L += phase(mm(fp, 0), rdx(fp, 1) + rw[:8], vld + [f'buffer_load_dword v255, v3, {srd(SRD_OUT)}, s{S_OO} offen'], []) + [WaitTag(allbut=('X', 4))]
                    L += phase(mm(fp, 1), rdx(1 - fp, 0) + rw[8:], [], [])
                else:
                    L += phase(mm(fp, 0), rdx(fp, 1), [], [], uw + ub[:6]) + phase(mm(fp, 1), [], [], ub[6:] + wi[:o.rwi])
            elif fp == 0:
                L += phase(mm(fp, 0), rdx(fp, 1) + rw[:8], [], [], ub) + [WaitTag(allbut=('X', 4))]
                L += phase(mm(fp, 1), rdx(1 - fp, 0) + rw[8:], [], [], uw)
            else:
                L += phase(mm(fp, 0), rdx(fp, 1), [], [], badd(1)) + phase(mm(fp, 1), [], [], [], badd(0))
            return L
        L = ['L_rem_loop:'] + field(0, False) + ([f's_cmp_lg_u32 s{S_F}, 26', 's_cbranch_scc1 L_rnv'] if o.rv else [])
        bodya = self.seq(L)
        bodyv = self.seq(vld + [f'buffer_load_dword v255, v3, {srd(SRD_OUT)}, s{S_OO} offen']) if o.rv else []
        L = ['L_rnv:'] + field(1, False) + [f's_cmp_lt_u32 s{S_F}, 27', 's_cbranch_scc1 L_rem_loop']
        L = [x for x in flat(L) if not any((x.text if isinstance(x, I) else x).startswith(d) for d in o.rdrop.split(',') if d)]
        body = self.seq(L)
        body2 = self.seq(field(0, True) + field(1, True))
        el = lambda tn, tm, d: (acc(tn, tm) + 2 * d, W2F + 4 * tn + 2 * d, SUMP + 2 * tm)
        A = 128
        pld = [f'buffer_load_dword v{A + k}, v3, {srd(SRD_WS)}, s{(S_T0, S_T1, S_T3)[k // 2]} offen offset:{(k % 2) * 2048} sc1' for k in range(6)]
        pld += [f'buffer_load_dword v{A + 6}, v5, {srd(SRD_WS)}, s{S_T3} offen sc1']
        L = self.stamp(3) + ['L_repi:'] + (wi if o.rv else wi[o.rwi:] + [f'v_pk_add_f32 {vr(acc(tn, tm) + 2 * d, 2)}, {vr(acc(tn, tm) + 2 * d, 2)}, {vr(BF + 4 * tn + 2 * d, 2)}'
                                                                        for tn in range(4) for tm in range(4) for d in range(2)])
        ge = self.gelu([[el(tn, tm, d) for tm in range(4)] for tn in range(4) for d in range(2)], XA, KC0, KC1, KONE)
        early = o.epoll and o.amp not in (2, 3)
        cut = len(ge) - o.epoll * len(ge) // 8
        if o.dpoll and early:
            L += [f'v_mov_b32 v{A + k}, -1' for k in list(range(7)) + list(range(12, 19))]
        L += ge[:cut] + (pld if early else []) + ge[cut:]
        L += self.red4(SUMP) + [f'v_add_f32 v{SUMP}, s{S_BOUT}, v{SUMP}', 'L_rclr:'] + self.stamp(4) + self.padsig()
        gsl = []
        if o.gs:
            gsl = [f'buffer_load_dword v10, v3, {srd(SRD_DBG)}, 0 offen offset:128 sc1', 's_waitcnt vmcnt(0)', 's_mov_b32 s83, 0']
            for k in range(8):
                gsl += [f'v_readlane_b32 s82, v10, {k}', 's_nop 1', 's_sub_u32 s82, s82, s88', 's_min_i32 s83, s83, s82']
            gsl += ['s_max_i32 s83, s83, -1000', 's_add_u32 s88, s88, s83']
        tk = ['s_memrealtime s[86:87]', 's_waitcnt lgkmcnt(0)'] + gsl + ['s_sub_u32 s89, s86, s88', 's_min_u32 s89, s89, 10000', 's_lshl_b32 s89, s89, 3']
        if o.amp == 2:
            L += [f's_mov_b32 s{S_LOOP}, 0x40000', 'L_polla:', f's_sub_u32 s{S_LOOP}, s{S_LOOP}, 1', 's_cbranch_scc1 L_pollax']
            L += [f'buffer_load_dword v{A + k}, v3, {srd(SRD_WS)}, s{(S_T0, S_T1, S_T3)[k // 2]} offen offset:{(k % 2) * 2048} sc1' for k in range(5)]
            L += [f'v_max3_u32 v{A + 8}, v{A}, v{A + 1}, v{A + 2}', f'v_max3_u32 v{A + 8}, v{A + 3}, v{A + 4}, v{A + 8}',
                  f'v_cmp_eq_u32 vcc, -1, v{A + 8}', 's_cbranch_vccnz L_polla', 'L_pollax:']
        if o.amp in (2, 3):
            L += tk
        dp = o.dpoll and early
        L += [f's_mov_b32 s{S_LOOP}, 0x40000'] + (['s_branch L_pchk'] if early and not dp else [])
        if dp:
            B = A + 12
            ld = lambda R: [x.replace(f'v{A + k},', f'v{R + k},', 1) for k, x in enumerate(pld)]
            ck = lambda R: ['s_waitcnt vmcnt(7)', f'v_max3_u32 v{R + 8}, v{R}, v{R + 1}, v{R + 2}', f'v_max3_u32 v{R + 9}, v{R + 3}, v{R + 4}, v{R + 5}',
                            f'v_max3_u32 v{R + 8}, v{R + 8}, v{R + 9}, v{R + 6}', f'v_cmp_eq_u32 vcc, -1, v{R + 8}']
            sm = lambda R: [f'v_add_f32 v{R + 8}, v{R}, v{R + 1}', f'v_add_f32 v{R + 9}, v{R + 2}, v{R + 3}', f'v_add_f32 v{R + 10}, v{R + 4}, v{R + 5}',
                            f'v_add_f32 v{SUMP}, v{SUMP}, v{R + 6}', f'v_add_f32 v{R + 8}, v{R + 8}, v{R + 9}', f'v_add_f32 v{R + 10}, v{R + 10}, v{SUMP}',
                            f'v_add_f32 v{SUMP}, v{R + 8}, v{R + 10}']
            tl1 = self.seq(L)
            self.seq(['L_poll:'] + ld(B) + ck(A) + ['s_cbranch_vccz L_gotA'] + ld(A) + ck(B) + ['s_cbranch_vccz L_gotB',
                      f's_sub_u32 s{S_LOOP}, s{S_LOOP}, 1', 's_cbranch_scc0 L_poll', 'L_gotB:'] + sm(B) + ['s_branch L_sum', 'L_gotA:'] + sm(A))
            L = ['L_sum:', f'v_cvt_pk_bf16_f32 v{SUMP}, v{SUMP}, v{SUMP}']
            if o.amp == 1:
                L += tk + ['L_ampspin:', 's_memrealtime s[86:87]', 's_waitcnt lgkmcnt(0)', 's_sub_u32 s86, s86, s88', 's_cmp_lt_u32 s86, s89', 's_cbranch_scc1 L_ampspin']
            assert not o.padat
            L += [f'buffer_store_short v{SUMP}, v4, {srd(SRD_OUT)}, s{S_OO} offen'] + self.stamp(5) + self.stamp_flush() + ['s_endpgm']
            return [tr + (bodya + body) * 3 + bodya + bodyv + body + body2 + tl1 + self.seq(L)]
        tl1 = self.seq(L)
        rl = pld
        if o.spoll and early:
            rl = [[f'v_cmp_eq_u32 vcc, -1, v{A + k}', f's_cbranch_vccz L_ps{k}', x, f'L_ps{k}:'] for k, x in enumerate(pld)]
        tl2 = self.seq(['L_poll:', f's_sub_u32 s{S_LOOP}, s{S_LOOP}, 1', 's_cbranch_scc1 L_pollx'] + rl)
        L = ['L_pchk:', 's_waitcnt vmcnt(0)']
        L += [f'v_max3_u32 v{A + 8}, v{A}, v{A + 1}, v{A + 2}', f'v_max3_u32 v{A + 9}, v{A + 3}, v{A + 4}, v{A + 5}', f'v_max3_u32 v{A + 8}, v{A + 8}, v{A + 9}, v{A + 6}',
              f'v_cmp_eq_u32 vcc, -1, v{A + 8}', 's_cbranch_vccnz L_poll', 'L_pollx:']
        L += [f'v_add_f32 v{A}, v{A}, v{A + 1}', f'v_add_f32 v{A + 2}, v{A + 2}, v{A + 3}', f'v_add_f32 v{A + 4}, v{A + 4}, v{A + 5}',
              f'v_add_f32 v{SUMP}, v{SUMP}, v{A + 6}', f'v_add_f32 v{A}, v{A}, v{A + 2}', f'v_add_f32 v{A + 4}, v{A + 4}, v{SUMP}', f'v_add_f32 v{A}, v{A}, v{A + 4}',
              f'v_cvt_pk_bf16_f32 v{A}, v{A}, v{A}']
        if o.amp and o.amp < 4:
            L += (tk if o.amp == 1 else []) + [
                  'L_ampspin:', 's_memrealtime s[86:87]', 's_waitcnt lgkmcnt(0)', 's_sub_u32 s86, s86, s88', 's_cmp_lt_u32 s86, s89', 's_cbranch_scc1 L_ampspin']
        if o.padat:
            L += ['L_padspin:', f'buffer_load_dword v7, v8, {srd(SRD_DBG)}, 0 offen sc1', 's_waitcnt vmcnt(0)', 's_memrealtime s[86:87]',
                  'v_readfirstlane_b32 s88, v7', 's_waitcnt lgkmcnt(0)', 's_cmp_eq_u32 s88, 0', 's_cbranch_scc1 L_padspin'] + (['s_not_b32 s88, s88'] if o.padmin else []) + [
                  's_sub_u32 s86, s86, s88', 's_cmp_lt_i32 s86, 6000', 's_cbranch_scc1 L_padspin'] if o.amp != 4 else [
                  f's_mov_b32 s{S_LOOP}, 0x40000', 'L_padspin:', f's_sub_u32 s{S_LOOP}, s{S_LOOP}, 1', 's_cbranch_scc1 L_padx',
                  f'buffer_load_dword v7, v8, {srd(SRD_DBG)}, 0 offen sc1', 's_waitcnt vmcnt(0)', 's_memrealtime s[86:87]',
                  'v_readfirstlane_b32 s88, v7', 's_waitcnt lgkmcnt(0)'] + (['s_not_b32 s88, s88'] if o.padmin else []) + [
                  ] + (['s_sub_u32 s88, s88, s82', 's_min_u32 s88, s88, 5000', 's_lshl_b32 s88, s88, 3'] if not o.cyc else ['s_min_u32 s88, s88, 60000']) + ['s_add_u32 s88, s88, 5000',
                  's_sub_u32 s86, s86, s82', 's_cmp_lt_u32 s86, s88', 's_cbranch_scc1 L_padspin', 'L_padx:']
        L += [f'buffer_store_short v{A}, v4, {srd(SRD_OUT)}, s{S_OO} offen{o.ofl}'] + self.stamp(5) + self.stamp_flush() + ['s_endpgm']
        return [tr + (bodya + body) * 3 + bodya + bodyv + body + body2 + tl1 + ([] if early else tl2) + self.seq(L)]

    def cin(self):
        o = self.opt
        self.role = 'c'
        cw = S_CW
        S_BCUR, S_BD, S_EXP, S_EXPC, S_PREV, S_SC, S_PH = 74, 75, 48, 49, 50, 51, 97
        S_CHK = S_M26
        vFA, vFR, vOne, vF, vFG, vFGa = 1, 2, 3, 4, 5, 6
        vRaw, vLin, vLinB, vXw, vX1, vX2, vSh, vAcc, vOr, vSI, vXi, vC16, vPWL, vPXL, PXR = range(7, 22)
        FT, XI, aD, aS, aLc, aC = 22, 24, 28, 29, 30, 31
        RAW, X, RZ, D = 32, 40, 52, 68
        WA, WB, WC, WS_, WL = 84, 128, 172, 216, 240
        Da, Db, Dc, Ds = D, D + 4, D + 8, D + 12
        T = 40
        half, i32, t3, t4, t5, vg, vm = T + 1, T + 2, T + 3, T + 4, T + 5, T + 6, T + 7
        vStg = 48
        GB = 49
        vMx, vWr, vL6, vL, vWu, vWo = range(62, 68)
        vDl = 247
        AD = 68
        vA3, vBs0, vBs1a, vBs1b, vUw, vV2w, vE, V3T = 240, 241, 242, 243, 244, 245, 246, 81
        BALL, UP, AFR, DALL = 84, 84, 132, 140
        BT, SUM, OUT = 216, 84, 132
        XJ = 204
        F_W3, F_W2, F_W1, F_PEEL, F_M, F_U, F_V3, F_XB = 0, 4, 8, 12, 16, 24, 32, 36
        nsync = [0]

        def sig(off, A=vFA, **kw):
            return [WaitTag(lgkm0=True, **kw), f'ds_add_u32 v{A}, v{vOne} offset:{off}']

        def wait(off, tgt, R=vFR):
            nsync[0] += 1
            lab = f'L_csync{nsync[0]}'
            return [f'{lab}:', f'ds_read_b32 v{vF}, v{R} offset:{off}', 's_waitcnt lgkmcnt(0)',
                    f'v_cmp_gt_u32 vcc, {tgt}, v{vF}', f's_cbranch_vccnz {lab}']

        def dppred(op, r):
            return [f'{op}_dpp v{r}, v{r}, v{r} {ctl} row_mask:{rm} bank_mask:0xf'
                    for (ctl, rm) in (('row_shr:1', '0xf'), ('row_shr:2', '0xf'), ('row_shr:4', '0xf'), ('row_shr:8', '0xf'),
                                      ('row_bcast:15', '0xa'), ('row_bcast:31', '0xc'))]

        def absmax(dst, regs):
            c = [f'v_max3_f32 v{dst}, abs(v{regs[0]}), abs(v{regs[1]}), abs(v{regs[2]})']
            k = 3
            while k < len(regs):
                b = regs[k + 1] if k + 1 < len(regs) else regs[k]
                c.append(f'v_max3_f32 v{dst}, v{dst}, abs(v{regs[k]}), abs(v{b})')
                k += 2
            return c

        def waitmax(off, dst_e, top, R=vFR):
            nsync[0] += 1
            lab = f'L_csync{nsync[0]}'
            return [f'{lab}:', f'ds_read_b64 {vr(T, 2)}, v{R} offset:{off}', 's_waitcnt lgkmcnt(0)',
                    f'v_cmp_gt_u32 vcc, 4, v{T}', f's_cbranch_vccnz {lab}',
                    f'v_readfirstlane_b32 s{dst_e}, v{T + 1}',
                    f's_lshr_b32 s{dst_e}, s{dst_e}, 23', f's_sub_i32 s{dst_e}, {top}, s{dst_e}', f's_min_i32 s{dst_e}, s{dst_e}, 40']

        def postmax(r, off, **kw):
            return dppred('v_max_u32', r) + [f'v_readlane_b32 s{S_T0}, v{r}, 63', f'v_mov_b32 v{r}, s{S_T0}',
                                             f'ds_max_u32 v{vFA}, v{r} offset:{off + 4}', WaitTag(**kw), f'ds_add_u32 v{vFA}, v{vOne} offset:{off}']
        setsc = lambda e: [f's_add_i32 s{S_SC}, s{e}, 127', f's_lshl_b32 s{S_SC}, s{S_SC}, 23']

        S_C, S_DYN, S_ST0, S_TK = S_R, S_MB, 98, 99
        NST = 40 if o.sym else 44
        PB = 11 * NST
        assert 2 * (512 - PB) - o.n4 <= (88 if o.sym else 44)
        vFl, vTk, vZ = 249, 250, 251
        S_HALF = S_STG9
        L = ['L_cin:', f's_and_b32 s{S_T0}, s{S_MB}, 3', f's_mul_i32 s{S_T0}, s{S_T0}, 3', f's_add_u32 s{S_C}, s{S_T0}, s{S_R}',
             f's_sub_u32 s{S_C}, s{S_C}, 6',
             f's_and_b32 s{cw}, s{S_WAVE}, 3', f's_lshr_b32 s{S_GRP}, s{S_WAVE}, 2',
             f's_lshl_b32 s{S_GW}, s{S_C}, 3', f's_add_u32 s{S_GW}, s{S_GW}, s{S_WAVE}',
             f's_mul_i32 s{S_T0}, s{S_GW}, {10 * 128}',
             f'v_min_u32 v{T}, 9, v0', f'v_lshlrev_b32 v{T}, 7, v{T}',
             f'v_lshlrev_b32 v{vStg}, 4, v0',
             f's_lshl_b32 s{S_STG}, s{cw}, 10',
             f's_cmp_eq_u32 s{cw}, 2', f's_cselect_b64 s[{S_EX}:{S_EX + 1}], 0x3fffff, -1',
             f's_cmp_eq_u32 s{cw}, 3', f's_cselect_b32 s{S_STG9}, 0, {8 * 4096}',
             f's_add_u32 s{S_STG9}, s{S_STG9}, s{S_STG}',
             '@CUT',
             f's_mul_i32 s{S_T1}, s{S_C}, 2979', f's_lshr_b32 s{S_T1}, s{S_T1}, 6', f's_mul_i32 s{S_ST0}, s{S_C}, {NST}',
             f's_and_b32 s{S_T2}, s2, 7', f's_add_u32 s{S_RC}, s{S_ST0}, s{S_WAVE}', f's_lshl_b32 s{S_RC}, s{S_RC}, 2',
             f's_lshl_b32 s{S_ST0}, s{S_T2}, 14', f's_add_u32 s{S_RC}, s{S_RC}, s{S_ST0}', f's_add_u32 s{S_RC}, s{S_RC}, {5 * 2048}', f's_mul_i32 s{S_ST0}, s{S_C}, {NST}', f's_lshl_b32 s{S_PX}, s{S_T2}, 9', f's_add_u32 s{S_SAMP}, s{S_PX}, s{S_ST0}', f's_add_u32 s{S_PX}, s{S_PX}, s{S_T1}',
             f's_add_u32 s{S_SAMP}, s{S_SAMP}, s{S_WAVE}', f's_mul_i32 s{S_SAMP}, s{S_SAMP}, 104',
] + ([f's_lshl_b32 s{S_ST0}, s{S_C}, 2', f's_add_u32 s{S_ST0}, s{S_ST0}, s{S_WAVE}', f's_add_u32 s{S_ST0}, s{S_ST0}, s{S_T2}', f's_and_b32 s{S_ST0}, s{S_ST0}, 7'] if not o.sym else [
             f's_add_u32 s{S_ST0}, s{S_WAVE}, s{S_T2}', f's_and_b32 s{S_ST0}, s{S_ST0}, 3', f's_lshl_b32 s{S_TK}, s{S_GRP}, 2', f's_add_u32 s{S_ST0}, s{S_ST0}, s{S_TK}']) + [
             f's_mul_i32 s{S_ST0}, s{S_ST0}, {16384 + o.shs}', f's_add_u32 s{S_ST0}, s{S_ST0}, {6 * 2048}',
] + ([f's_sub_u32 s{S_LOOP}, 6, s{S_GRP}', f's_lshl_b32 s{S_TK}, s{S_GRP}, 1'] if not o.sym else [f's_mov_b32 s{S_LOOP}, 5', f's_mov_b32 s{S_TK}, 2']) + [f's_mov_b32 s{S_DYN}, -1',
             f'v_lshrrev_b32 v{t3}, 3, v0', f'v_min_u32 v{t3}, 6, v{t3}', f'v_lshlrev_b32 v{vXi}, 4, v{t3}',
             f's_mul_i32 s{S_T2}, s{S_T2}, 88', f's_add_u32 s{S_T2}, s{S_GW}, s{S_T2}', f's_mov_b32 s{S_T3}, 704',
             f'v_mov_b32 v{t4}, s{S_T2}', f'v_mad_u32_u24 v{vPWL}, v0, s{S_T3}, v{t4}',
             f's_mul_i32 s{S_T2}, s{S_GW}, 104', f's_sub_u32 s{S_T2}, s{S_T2}, {13 * 26 - 25}',
             f'v_min_u32 v{t4}, {12 + o.pfr}, v0', f'v_mul_u32_u24 v{t5}, 26, v{t4}', f'v_add_u32 v{t5}, s{S_T2}, v{t5}',
             f'v_cmp_lt_u32 vcc, 12, v{t4}', f'v_cndmask_b32 v{vPWL}, v{vPWL}, v{t5}, vcc', f'v_lshlrev_b32 v{vPWL}, 7, v{vPWL}',
             f's_mov_b32 s{S_PW}, {o.pfe0 * 832 * 128}',
             '@CUT',
             f'v_mov_b32 v{vFR}, {L_FLG}', f'v_lshlrev_b32 v{vFA}, 20, v0', f'v_add_u32 v{vFA}, {L_FLG}, v{vFA}',
             f'v_and_b32 v{t4}, 7, v0', f'v_lshlrev_b32 v{vC16}, 4, v{t4}', f'v_and_b32 v{t4}, 15, v0', f'v_lshl_add_u32 v{t4}, v{t4}, 2, v{vFR}',
             f'v_mov_b32 v{vOne}, 0', f'ds_write_b32 v{t4}, v{vOne}',
             f'v_lshrrev_b32 v{half}, 5, v0', f'v_and_b32 v{i32}, 31, v0',
             's_waitcnt lgkmcnt(0)', f'v_mov_b32 v{vOne}, 1']
        i1 = L.index('@CUT'); i2 = L.index('@CUT', i1 + 1)
        late0 = L[i1 + 1:i2]
        if o.c0l:
            assert o.pf1 == 2
            L = L[:i1] + L[i2 + 1:]
            late0 = late0 + self.build_srd(SRD_TAB, S_TAB, 100000 * 128) + self.build_srd(SRD_W, S_W1, 1664 * 3328) + self.build_srd(SRD_IDX, S_IDX, 4096 * 104)
        else:
            L = L[:i1] + late0 + L[i2 + 1:] + self.tlb1(t5, 255)
            late0 = []
        L += self.build_srd(SRD_CIN, S_CIN, 105456)
        L += [f'buffer_load_dword v255, v{T}, {srd(SRD_CIN)}, s{S_T0} offen'] if o.coop else []
        L += self.build_srd(SRD_W, S_W1, 1664 * 3328) if not o.c0l else []

        def pfw():
            if o.nopf & 4:
                return []
            return [f's_mov_b64 exec, {((1 << (13 + o.pfr)) - 1) & ~(0x1fff if o.nopf & 1 else 0)}', f'buffer_load_dword v255, v{vPWL}, {srd(SRD_W)}, s{S_PW} offen', 's_mov_b64 exec, -1',
                    f's_add_u32 s{S_PW}, s{S_PW}, {352 * 3328}']
        L += ['s_barrier'] + (pfw() if o.pf1 in (0, 3) else [])
        L += self.build_srd(SRD_IDX, S_IDX, 4096 * 104) if not o.c0l else []

        def pfx_a():
            return [] if o.nopf & 2 else [f'buffer_load_dword v{PXR}, v{vPXL}, {srd(SRD_IDX)}, s{S_PX} offen',
                    f's_cmp_eq_u32 s{S_PX}, s{S_PXE}', f's_cselect_b32 s{S_PXE}, 0x7000000, s{S_PXE}',
                    f's_cselect_b32 s{S_PX}, 0x7000000, s{S_PX}',
                    f's_add_u32 s{S_PX}, s{S_PX}, 24', f's_min_u32 s{S_PX}, s{S_PX}, s{S_PXE}']

        def pfx_b():
            return [] if o.nopf & 2 else [f'v_lshlrev_b32 v{PXR}, 7, v{PXR}', f'buffer_load_dword v255, v{PXR}, {srd(SRD_TAB)}, 0 offen']

        def xidx(XI=XI, off=0, adv=True):
            c = [f'buffer_load_dwordx4 {vr(XI, 4)}, v{vXi}, {srd(SRD_IDX)}, s{S_SAMP} offen offset:{off}']
            if adv:
                c.append(f's_add_u32 s{S_SAMP}, s{S_SAMP}, {8 * 104}')
            return c

        def xdma(XI=XI, lo=0):
            c = []
            for u in range(4):
                if u == 2:
                    c += ['s_mov_b32 exec_hi, 0x0000ffff']
                c += [f'v_lshl_add_u32 v{XI + u}, v{XI + u}, 7, v{vC16}']
                if u == 3:
                    c += ['s_mov_b32 exec_lo, 0', 's_mov_b32 exec_hi, 0xffff0000', f'v_mov_b32 v{XI + 3}, v{XI + 1}', f'v_mov_b32 v{XI + 2}, v{XI + 1}',
                          's_mov_b32 exec_hi, 0x00ff0000', f'v_mov_b32 v{XI + 2}, v{XI}', 's_mov_b64 exec, -1']
            for u in range(4):
                c += [f's_add_u32 m0, s{S_BCUR}, {u * XPI + lo}']
                if u == 3:
                    c += ['s_mov_b32 exec_hi, 0x00ffffff']
                c.append(I(f'buffer_load_dwordx4 v{XI + u}, {srd(SRD_TAB)}, 0 offen lds', tag='XB'))
                if u == 3:
                    c += ['s_mov_b32 exec_hi, -1']
            return c
        wco = self.build_srd(SRD_WCO, S_WCO, 156) + [f's_mov_b32 m0, {L_WCO}', 's_mov_b64 exec, 0x7ff',
              I(f'buffer_load_dwordx4 v{vStg}, {srd(SRD_WCO)}, 0 offen lds', tag='STG3'),
              's_mov_b64 exec, -1']
        L += self.stamp0()

        def stage(dst, goff, tag):
            sh = o.w1s and dst == A1
            st = []
            for m in range(8):
                st.append((f's_add_u32 m0, s{S_STG}, {dst + m * 4096}', f's_add_u32 s{S_TW}, s{S_STG}, {goff + m * 4096 - (4 if sh and m >= 5 else 0)}',
                           I(f'buffer_load_dwordx4 v{vStX if sh and m == 5 else vStg}, {srd(SRD_CIN)}, s{S_TW} offen lds', tag=tag)))
            g9 = (f's_add_u32 s{S_TW}, s{S_STG9}, {goff}',) if not sh else (f's_lshr_b32 s{S_TW}, s{S_STG9}, 13', f's_sub_u32 s{S_TW}, s{S_STG9}, s{S_TW}')
            st.append((f's_add_u32 m0, s{S_STG9}, {dst}',) + g9 + (f's_mov_b64 exec, s[{S_EX}:{S_EX + 1}]',
                       I(f'buffer_load_dwordx4 v{vStg}, {srd(SRD_CIN)}, s{S_TW} offen lds', tag=tag),
                       's_mov_b64 exec, -1'))
            return st
        vStX = 248
        if o.w1s:
            L += [f'v_add_u32 v{vStX}, s{S_STG}, v{vStg}', f'v_cmp_gt_u32 vcc, {16 * 1352 - 5 * 4096}, v{vStX}', f'v_cndmask_b32 v{vStX}, 0, 4, vcc',
                  f'v_add_u32 v{vStX}, v{vStX}, v{vStg}']

        L += [f's_cmp_lg_u32 s{S_GRP}, 0', 's_cbranch_scc1 L_g1a']
        c0 = self.seq(L)
        sA, sB = (('1', A1, 0, F_W1), ('2', A2, 35152, F_W2)) if o.w1first else (('2', A2, 35152, F_W2), ('1', A1, 0, F_W1))
        stA, stB = stage(sA[1], sA[2], 'STG' + sA[0]), stage(sB[1], sB[2], 'STG' + sB[0])
        stg = [wco + stage(A3, 70304, 'STG3') + stA[:o.sigat],
               sig(F_W3, vm_tags=['STG3']) + self.stamp(1) + stA[o.sigat:] + stB[:o.sig2],
               sig(sA[3], vm_tags=['STG' + sA[0]]) + stB[o.sig2:]]
        g0a = self.seq(stg[:o.ccpos] + ['s_branch L_addrc'] if o.ccpos < 9 else ['s_branch L_g0pf'])
        L = ['L_g1a:', 's_setprio 1',
             f'v_bfe_u32 v{t3}, v0, 2, 2', f'v_lshl_add_u32 v{t3}, v{half}, 3, v{t3}',
             f'v_bfe_u32 v{t4}, v0, 4, 1', f'v_lshlrev_b32 v{t4}, 5, v{t4}',
             f'v_and_b32 v{t5}, 3, v0', f'v_lshl_add_u32 v{t4}, v{t5}, 3, v{t4}',
             f'v_lshl_add_u32 v{vA3}, v{t3}, 6, v{t4}', f'v_add_u32 v{vA3}, {V3OFF}, v{vA3}',
             f's_lshl_b32 s{S_T0}, s{cw}, 6', f's_add_u32 s{S_T0}, s{S_T0}, {A2}',
             f'v_add_u32 v{t4}, s{S_T0}, v{t4}',
             f'v_mul_u32_u24 v{t5}, 1352, v{t3}', f'v_add_u32 v{vBs0}, v{t4}, v{t5}',
             f'v_add_u32 v{t5}, 16, v{t3}', f'v_min_u32 v{t5}, 25, v{t5}',
             f'v_mul_u32_u24 v{t5}, 1352, v{t5}', f'v_add_u32 v{vBs1a}, v{t4}, v{t5}',
             f'v_add_u32 v{t5}, 20, v{t3}', f'v_min_u32 v{t5}, 25, v{t5}',
             f'v_mul_u32_u24 v{t5}, 1352, v{t5}', f'v_add_u32 v{vBs1b}, v{t4}, v{t5}',
             f's_lshl_b32 s{S_T0}, s{cw}, 5', f'v_add_u32 v{vE}, s{S_T0}, v{i32}',
             f'v_mul_u32_u24 v{t3}, 52, v{vE}', f'v_lshl_add_u32 v{t3}, v{half}, 3, v{t3}',
             f'v_add_u32 v{vUw}, {A3}, v{t3}',
             f'v_lshlrev_b32 v{t3}, 1, v{vE}', f'v_add_u32 v{vV2w}, {V2OFF}, v{t3}',
             f'v_mov_b32 v{BT}, 0', f'v_mov_b32 v{BT + 1}, 0',
             f'v_lshlrev_b32 v{t3}, 3, v0', f'v_add_u32 v{t4}, {V3OFF}, v{t3}',
             f's_lshl_b32 s{S_T0}, s{cw}, 9', f'v_add_u32 v{t4}, s{S_T0}, v{t4}', f'ds_write_b64 v{t4}, {vr(BT, 2)}']
        L += [f'v_lshl_add_u32 v{t3}, v{half}, 7, v{vE}', f's_mov_b32 s{S_T1}, 2521', f's_mov_b32 s{S_T2}, {V3OFF}']
        for p_ in range(3):
            L += [f'v_mul_u32_u24 v{t4}, s{S_T1}, v{t3}', f'v_lshrrev_b32 v{t4}, 16, v{t4}',
                  f'v_mad_u32_u24 v{t4}, v{t4}, 12, s{S_T2}', f'v_lshl_add_u32 v{AD + p_}, v{t3}, 1, v{t4}']
            if p_ < 2:
                L += [f'v_add_u32 v{t3}, 256, v{t3}']
        L += [f'v_mov_b32 v{t4}, 676', f'v_cmp_gt_u32 s[{S_MASK}:{S_MASK + 1}], v{t4}, v{t3}']
        for m in range(6):
            L += [f'v_add_u32 v{t3}, {128 * m}, v{vE}', f'v_mul_u32_u24 v{t4}, s{S_T1}, v{t3}', f'v_lshrrev_b32 v{t4}, 16, v{t4}',
                  f'v_lshl_add_u32 v{t4}, v{t4}, 2, v{vUw}', f'v_add_u32 v{AD + 4 + m}, {m * 6656}, v{t4}']
        L += [f'v_lshlrev_b32 v{AD + 10}, 4, v{half}', f'v_add_u32 v{AD + 10}, {L_WCO + 104}, v{AD + 10}',
              f'v_lshlrev_b32 v{AD + 11}, 1, v0', f'v_add_u32 v{AD + 11}, {L_WCO}, v{AD + 11}',
              f'v_lshlrev_b32 v{AD + 12}, 6, v0', f'v_add_u32 v{AD + 12}, {V3OFF + 52}, v{AD + 12}']
        g1a = self.seq(L)

        N_ = (0, 1, 2, 3)
        classes = []
        for d in ZD:
            for (a, ha, b, hb) in d:
                if cls(a, ha)[1] == N_ and cls(b, hb)[1] != N_ and cls(b, hb)[1] not in classes:
                    classes.append(cls(b, hb)[1])
        assert len(classes) == 5
        base = {(N_, N_): GB}
        for k, c in enumerate(classes):
            base[(N_, c)] = GB + 1 + 2 * k
            base[(c, N_)] = GB + 2 + 2 * k
        SP1, SP2 = GB + 11, GB + 12
        pk4 = lambda t: '0x%08x' % sum((x & 0xff) << (8 * k) for k, x in enumerate(t))
        L = ['L_addrc:'] + late0 + [
             f's_and_b32 s{S_T2}, s{S_WAVE}, 1', f's_lshl_b32 s{S_T2}, s{S_T2}, 1', f'v_add_u32 v{vg}, s{S_T2}, v{half}',
             f'v_min_u32 v{t3}, 25, v{i32}',
             f's_mul_i32 s{S_T0}, s{S_GRP}, {UST - 1352}', f's_add_u32 s{S_T0}, s{S_T0}, 1352',
             f's_mul_i32 s{S_T1}, s{S_GRP}, {A3 - A1}', f's_add_u32 s{S_T1}, s{S_T1}, {A1}',
             f'v_mul_u32_u24 v{t4}, s{S_T0}, v{t3}', f'v_add_u32 v{t4}, s{S_T1}, v{t4}',
             f'v_lshlrev_b32 v{vDl}, 2, v{t3}', f'v_add_u32 v{vDl}, {A3 - A1}, v{vDl}'] + ([
             f's_lshl_b32 s{S_T0}, s{S_GRP}, 2', f's_xor_b32 s{S_T0}, s{S_T0}, 4', f'v_lshrrev_b32 v{t5}, 2, v{t3}', f'v_and_b32 v{t5}, s{S_T0}, v{t5}',
             f'v_add_u32 v{t4}, v{t4}, v{t5}', f'v_sub_u32 v{vDl}, v{vDl}, v{t5}'] if o.w1s else []) + [
             f'v_mul_u32_u24 v{vL}, 52, v{t3}', f'v_lshl_add_u32 v{vL}, v{vg}, 1, v{vL}', f'v_add_u32 v{vL}, {V2OFF}, v{vL}',
             f'v_lshlrev_b32 v{vWo}, 1, v{t3}', f'v_add_u32 v{vWo}, {L_WCO}, v{vWo}',
             f'v_mad_u32_u24 v{SP1}, v{vg}, 52, v{t4}',
             f'v_lshl_add_u32 v{SP2}, v{vg}, 1, v{t4}',
             f'v_lshl_add_u32 v{GB}, v{vg}, 1, v{SP1}',
             f'v_lshlrev_b32 v{t3}, 3, v{vg}']
        for k, c in enumerate(classes):
            L += [f's_mov_b32 s{S_T0}, {pk4(c)}', f'v_bfe_i32 v{t5}, s{S_T0}, v{t3}, 8',
                  f'v_lshl_add_u32 v{GB + 1 + 2 * k}, v{t5}, 1, v{SP1}', f'v_mad_i32_i24 v{GB + 2 + 2 * k}, v{t5}, 52, v{SP2}']
        L += [f's_mov_b32 s{S_T0}, {pk4((0, 54, 2, 0))}', f'v_bfe_u32 v{t5}, s{S_T0}, v{t3}, 8', f'v_add_u32 v{SP1}, v{t5}, v{t4}',
              f'v_add_u32 v{SP2}, 52, v{t4}', f'v_mov_b32 v{vm}, {OOB}',
              f'v_cmp_eq_u32 vcc, 3, v{vg}', f'v_cndmask_b32 v{SP1}, v{SP1}, v{vm}, vcc', f'v_cndmask_b32 v{vWo}, v{vm}, v{vWo}, vcc',
              f'v_cmp_eq_u32 vcc, 2, v{vg}', f'v_cndmask_b32 v{SP2}, v{vm}, v{SP2}, vcc',
              f'v_cmp_gt_u32 vcc, 2, v{vg}', f'v_cndmask_b32 v{vL6}, v{vm}, v{vL}, vcc']
        L += [f's_lshr_b32 s{S_T1}, s{cw}, 1', f's_mul_i32 s{S_T1}, s{S_T1}, {6 * 1024}', f's_mul_i32 s{S_T0}, s{S_GRP}, {6 * 1024}',
              f'v_lshlrev_b32 v{t5}, 8, v{vg}',
              f'v_lshl_add_u32 v{t3}, v{i32}, 4, v{t5}', f'v_add_u32 v{vWr}, {TA}, v{t3}', f'v_add_u32 v{vWu}, {TB}, v{t3}',
              f'v_bfe_u32 v{t3}, v0, 2, 2', f'v_lshl_add_u32 v{t5}, v{t3}, 4, v{t5}', f'v_and_b32 v{t3}, 3, v0',
              f'v_lshl_add_u32 v{t4}, v{t3}, 6, v{t5}', f'v_add_u32 v{t4}, {TC}, v{t4}',
              f'v_cmp_lt_u32 vcc, 15, v{i32}', f'v_cndmask_b32 v{vWr}, v{vWr}, v{t4}, vcc', f'v_add_u32 v{t4}, 16, v{t4}',
              f'v_cndmask_b32 v{vWu}, v{vWu}, v{t4}, vcc',
              f'v_lshl_add_u32 v{t4}, v{t3}, 5, v{t5}', f'v_add_u32 v{t4}, {TD - 16}, v{t4}',
              f'v_cmp_lt_u32 vcc, 19, v{i32}', f'v_cndmask_b32 v{vWr}, v{vWr}, v{t4}, vcc',
              f'v_add_u32 v{vWr}, s{S_T1}, v{vWr}', f'v_add_u32 v{vWu}, s{S_T0}, v{vWu}',
              f'v_cmp_lt_u32 vcc, 25, v{i32}', f'v_cndmask_b32 v{vWr}, v{vWr}, v{vm}, vcc', f'v_cndmask_b32 v{vWu}, v{vWu}, v{vm}, vcc',
              f'v_mov_b32 v{vMx}, 0']
        L += [f's_mul_i32 s{S_BCUR}, s{S_WAVE}, {XBSZ}', f's_add_u32 s{S_BCUR}, s{S_BCUR}, {XB0}', f's_mov_b32 s{S_BD}, {XB1 - XB0}',
              f'v_add_u32 v{aD}, {TA}, v{vStg}',
              f'v_and_b32 v{t3}, 11, v0', f'v_cmp_eq_u32 vcc, 11, v{t3}', f'v_cndmask_b32 v{aC}, v{aD}, v{vm}, vcc',
              f'v_and_b32 v{t3}, 3, v0', f'v_cmp_eq_u32 vcc, 0, v{t3}', f'v_cndmask_b32 v{aLc}, v{aC}, v{vm}, vcc',
              f'v_lshrrev_b32 v{vg}, 4, v0', f'v_bfe_u32 v{t3}, v0, 1, 3', f'v_lshlrev_b32 v{t5}, 4, v{t3}', f'v_add_u32 v{t5}, {TD}, v{t5}',
              f'v_and_b32 v{t3}, 10, v0', f'v_cmp_eq_u32 vcc, 10, v{t3}', f'v_cndmask_b32 v{t5}, v{t5}, v{vm}, vcc',
              f'v_and_b32 v{t4}, 1, v0', f'v_lshl_add_u32 v{aS}, v{vg}, 9, v{t5}', f'v_lshl_add_u32 v{aS}, v{t4}, 2, v{aS}', f'v_add_u32 v{aS}, 1024, v{aS}',
              f'v_lshl_add_u32 v{FT}, v{vg}, 8, v{t5}', f'v_lshl_add_u32 v{FT}, v{t4}, 20, v{FT}',
              f'v_and_b32 v{vm}, 15, v0', f's_mov_b32 s{S_T0}, {XPI}',
              f'v_lshlrev_b32 v{t3}, 1, v{vm}', f'v_add_u32 v{t3}, s{S_BCUR}, v{t3}',
              f'v_mad_u32_u24 v{vRaw}, v{vg}, s{S_T0}, v{t3}',
              f's_lshl_b32 s{S_T0}, s{S_WAVE}, 10', f's_add_u32 s{S_T0}, s{S_T0}, {XCH}',
              f'v_add_u32 v{vXw}, s{S_T0}, v{vStg}',
              f'v_add_u32 v{t3}, 256, v{vStg}', f'v_and_b32 v{t3}, 1023, v{t3}', f'v_add_u32 v{vX1}, s{S_T0}, v{t3}',
              f'v_xor_b32 v{t3}, 512, v{vStg}', f'v_add_u32 v{vX2}, s{S_T0}, v{t3}', f'v_lshlrev_b32 v{vSh}, 4, v{half}']
        L += [f'v_mov_b32 v{r}, 0' for r in list(range(RAW, RAW + 8)) + list(range(BT, BT + 24))]
        L += [f'v_mul_u32_u24 v{t4}, {XPI}, v{vg}',
              f'v_bfe_u32 v{t5}, v0, 2, 2', f'v_lshl_add_u32 v{t4}, v{t5}, 7, v{t4}',
              f'v_and_b32 v{t5}, 3, v0', f'v_lshl_add_u32 v{vLinB}, v{t5}, 3, v{t4}', f'v_add_u32 v{vLin}, s{S_BCUR}, v{vLinB}',
              f'v_and_b32 v{t5}, 1, v0', f's_mov_b32 s{S_T0}, 0xaaaaaaaa', f'v_mul_lo_u32 v{vSI}, s{S_T0}, v{t5}', f'v_or_b32 v{vSI}, 0x44444444, v{vSI}',
              f'v_lshlrev_b32 v{vOr}, 1, v0', f'v_add_u32 v{vOr}, s{S_BCUR}, v{vOr}', f'v_mov_b32 v{vAcc}, 0x3f80',
              f'ds_write_b16 v{vOr}, v{vAcc} offset:{3 * XPI + 7 * 128}', f'v_add_u32 v{vOr}, s{S_BD}, v{vOr}']
        L += [f's_mul_i32 s{S_T3}, s{S_WAVE}, 6', f's_add_u32 s{S_PX}, s{S_PX}, s{S_T3}', f's_mul_i32 s{S_PX}, s{S_PX}, 104',
              f's_add_u32 s{S_PXE}, s{S_PX}, 80', f's_add_u32 s{S_PX}, s{S_PX}, {4 * o.pfx0}',
              f's_mov_b32 s{S_T3}, 10923', f'v_min_u32 v{t3}, 35, v0',
              f'v_mul_u32_u24 v{t4}, s{S_T3}, v{t3}', f'v_lshrrev_b32 v{t4}, 16, v{t4}',
              f'v_mul_u32_u24 v{t4}, {104 - 24}, v{t4}', f'v_lshl_add_u32 v{vPXL}, v{t3}, 2, v{t4}']
        ccl = list(L[1:])
        L += self.stamp(14) + (pfw() if o.pf1 == 1 else [])
        if o.ccpos < 9:
            L += [f's_cmp_eq_u32 s{S_GRP}, 0', 's_cbranch_scc1 L_g0pf']
        cc = self.seq(L)

        def bread(m, base):
            b = BALL + m * 8
            return [f'ds_read_b64_tr_b16 {vr(b, 2)}, v{vBs0} offset:{base + m * 256}',
                    f'ds_read_b64_tr_b16 {vr(b + 2, 2)}, v{vBs0} offset:{base + m * 256 + 4 * 1352}',
                    f'ds_read_b64_tr_b16 {vr(b + 4, 2)}, v{vBs1a} offset:{base + m * 256}',
                    f'ds_read_b64_tr_b16 {vr(b + 6, 2)}, v{vBs1b} offset:{base + m * 256}']

        def mm6(base, post=lambda m: []):
            c = []
            for m in range(3 if base is not None else 0):
                c += bread(m, base)
            for m in range(6):
                if m + 3 < 6 and base is not None:
                    c += bread(m + 3, base)
                b = BALL + m * 8
                d = DALL + (m % 4) * 16
                c.append(f'v_mfma_f32_32x32x16_bf16 {vr(d, 16)}, {vr(AFR, 4)}, {vr(b, 4)}, 0')
                c.append(f'v_mfma_f32_32x32x16_bf16 {vr(d, 16)}, {vr(AFR + 4, 4)}, {vr(b + 4, 4)}, {vr(d, 16)}')
                if m >= 2:
                    c += post(m - 2)
            return c + post(4) + post(5)

        e1 = [f's_sub_u32 s{S_T0}, s{S_PX}, {24 * 104}', f'buffer_load_dword v{XJ + 4}, v{vPXL}, {srd(SRD_IDX)}, s{S_T0} offen',
              f'buffer_load_dword v{XJ + 5}, v{vPXL}, {srd(SRD_IDX)}, s{S_PX} offen']
        e2 = [f'v_lshlrev_b32 v{XJ + 4}, 7, v{XJ + 4}', f'buffer_load_dword v255, v{XJ + 4}, {srd(SRD_TAB)}, 0 offen',
              f'v_lshlrev_b32 v{XJ + 5}, 7, v{XJ + 5}', f'buffer_load_dword v255, v{XJ + 5}, {srd(SRD_TAB)}, 0 offen']
        if o.nopf & 8:
            e1, e2 = [], []
        if o.ef < 6:
            mk = sum(1 << l for l in range(36) if l % 6 < o.ef)
            e2 = [f's_mov_b32 exec_lo, {mk & 0xffffffff}', f's_mov_b32 exec_hi, {mk >> 32}'] + e2 + ['s_mov_b64 exec, -1']
        xx = xdma() + xdma(XJ, -4 * XBSZ) + xidx()
        gl = [f's_sub_u32 s{S_SAMP}, s{S_SAMP}, {4 * 104}'] + xidx(XJ, 0, False) + [f's_add_u32 s{S_SAMP}, s{S_SAMP}, {4 * 104}'] + xidx()
        gl += e1 + [f's_add_u32 s{S_PX}, s{S_PX}, {4 * o.ef}'] + pfx_a()
        L = sig(F_W3) + (gl if not o.g1l else [])
        L += wait(F_W3, 8) + self.stamp(2)
        uc0 = self.seq(L)
        L = []
        for s2 in range(2):
            for rd in range(2):
                L.append(f'ds_read_b64 {vr(AFR + 4 * s2 + 2 * rd, 2)}, v{AD + 10} offset:{s2 * 32 + rd * 8}')
        L += [f'ds_read_u16 v{t5}, v{AD + 11} offset:52']

        def vpost(m):
            p_ = m // 2
            c = [f'v_cvt_pk_bf16_f32 v{V3T + p_}, v{DALL + 16 * (m % 4)}, 0']
            if m % 2:
                c = ['s_mov_b32 exec_lo, 0'] + c + [f's_mov_b64 exec, s[{S_MASK}:{S_MASK + 1}]' if p_ == 2 else 's_mov_b32 exec_lo, -1',
                                                    f'ds_write_b16 v{AD + p_}, v{V3T + p_}']
            return c
        L += mm6(A3 - A2, vpost)
        L += ['s_mov_b64 exec, 0x3ffffff', f'ds_write_b16 v{AD + 12}, v{t5}', 's_mov_b64 exec, -1']
        L += self.stamp(3) + sig(F_V3) + (gl if o.g1l else []) + (pfw() if o.pf1 in (2, 3) and o.epos != 3 else []) + [f'v_cmp_gt_u32 s[{S_MASK}:{S_MASK + 1}], 36, v{vE}']
        L += (e2 if o.epos == 0 else []) + (xx if o.xpos == 0 else []) + (e2 if o.epos == 1 else [])
        L += wait(F_W2, 4) + [bread(m, 0) for m in range(6)] + wait(F_V3, 4) + self.stamp(5) + [f's_setprio {o.uprio}'] + (e2 + (pfw() if o.pf1 in (2, 3) else []) if o.epos == 3 else [])
        for s2 in range(2):
            for rd in range(2):
                L.append(f'ds_read_b64_tr_b16 {vr(AFR + 4 * s2 + 2 * rd, 2)}, v{vA3} offset:{s2 * 1024 + rd * 256}')

        def upost(m):
            d = DALL + 16 * (m % 4)
            c = [f'v_cvt_pk_bf16_f32 v{UP + 8 * m + qq}, v{d + 2 * qq}, v{d + 2 * qq + 1}' for qq in range(8)]
            if m == 5:
                c.append(f's_mov_b64 exec, s[{S_MASK}:{S_MASK + 1}]')
            w_ = [f'ds_write2_b32 v{AD + 4 + m}, v{UP + 8 * m + 2 * a}, v{UP + 8 * m + 2 * a + 1} offset0:{4 * a} offset1:{4 * a + 1}' for a in range(3)]
            return c + interleave(w_, [f'v_max3_f32 v{vMx}, v{vMx}, abs(v{d + 2 * qq}), abs(v{d + 2 * qq + 1})' for qq in range(7)])
        L += mm6(None, upost)
        L.append('s_mov_b32 exec_hi, 0')
        for m in (5, 4, 3, 2, 1, 0):
            L.append(f'ds_write_b32 v{AD + 4 + m}, v{UP + 8 * m + 6} offset:48')
            L.append(f'ds_write_b16 v{vV2w}, v{UP + 8 * m + 7} offset:{m * 256}')
            if m == 5:
                L.append('s_mov_b32 exec_lo, -1')
        L += ['s_mov_b64 exec, -1'] + postmax(vMx, F_U) + [f's_setprio {o.bprio}'] + (xx if o.xpos == 1 else []) + (e2 if o.epos == 2 else []) + self.stamp(6) + ['s_branch L_uph']
        uc = self.seq(L)

        if o.ccpos == 9:
            grp = lambda x: [tuple(flat([y])) for y in x]
            dm = [tuple(wco)] + grp(stage(A3, 70304, 'STG3')) + grp(stA[:o.sigat]) + [tuple(sig(F_W3, vm_tags=['STG3']) + self.stamp(1))] + grp(stA[o.sigat:]) + grp(stB[:o.sig2])
            dm += [tuple(sig(sA[3], vm_tags=['STG' + sA[0]]))] + grp(stB[o.sig2:])
            n0, n1, n2 = o.cc0, o.cc2, len(ccl) - o.cc1
            stg = [dm[:n0] + interleave(ccl[:n2], dm[n0:n1]) + dm[n1:] + ccl[n2:] + self.stamp(14)]
        L = ['L_g0pf:'] + stg[o.ccpos % 9:] + [f's_add_u32 s{S_SAMP}, s{S_SAMP}, {8 * 104}', f's_add_u32 s{S_PX}, s{S_PX}, {4 * o.ef}'] + xidx() + pfx_a()
        L += (pfw() if o.pf1 in (2, 3) else []) + sig(sB[3], vm_tags=['STG' + sB[0]]) + self.stamp(4) + [f's_mov_b32 s{S_PH}, 0'] + wait(F_W1, 4) + self.stamp(2)
        L += [f's_cmp_ge_u32 s{cw}, 2', 's_cbranch_scc1 L_chunk2']
        g0pf = self.seq(L)

        def chunk(k):
            units = [(n, h) for n in range(12 * k, min(12 * k + 12, 44)) for h in range(2)]
            NB_, BA = 12, o.ba
            reads, maths = [], []
            for ui, (n, h) in enumerate(units):
                a, ha, b, hb = ZD[n][h]
                (fa, ca), (fb, cb) = cls(a, ha), cls(b, hb)
                tb = BT + (ui % NB_) * 2
                dst = SUM + 24 * (k % 2) + ui
                if ca != N_:
                    R = [f'ds_read_u16_d16_hi v{tb}, v{SP1} offset:{54 * 24}', f'ds_read_u16_d16_hi v{tb + 1}, v{SP2} offset:{54 * 24}']
                    M = [f'v_add_f32 v{dst}, v{tb}, v{tb + 1}']
                elif (a, ha) == (b, hb):
                    R = [f'ds_read_u16_d16_hi v{tb}, v{base[(ca, cb)]} offset:{54 * fa}']
                    M = [f'v_mov_b32 v{dst}, v{tb}']
                else:
                    R = [f'ds_read_u16_d16_hi v{tb}, v{base[(ca, cb)]} offset:{52 * fa + 2 * fb}',
                         f'ds_read_u16_d16_hi v{tb + 1}, v{base[(cb, ca)]} offset:{52 * fb + 2 * fa}']
                    M = [f'v_add_f32 v{dst}, v{tb}, v{tb + 1}']
                if ui % 2:
                    M = M + maths[-1] + [f'v_max3_f32 v{vMx}, v{vMx}, abs(v{dst - 1}), abs(v{dst})']
                    maths[-1] = []
                reads.append(R)
                maths.append(M)
            code = []
            nu = len(units)
            for ui in range(nu + BA):
                if ui < nu:
                    code += reads[ui]
                if ui == nu and k == 3:
                    code += [f'ds_read_u16_d16_hi v{LT + e}, v{vL} offset:{8 * e}' for e in range(6)]
                    code += [f'ds_read_u16_d16_hi v{LT + 6}, v{vL6} offset:48', f'ds_read_u16_d16_hi v{LT + 7}, v{vWo}']
                if ui >= BA:
                    code += maths[ui - BA]
            return code
        LT = BT + 8
        assert o.ba <= 8

        def conv(n):
            c = [f'v_fma_mix{"hi" if h else "lo"}_f16 v{OUT + q}, v{SUM + 2 * q + h}, s{S_SC}, 0' for h in range(2) for q in range(4 * n, 4 * n + 4)]
            if o.wr8:
                m_ = (1 << o.wr8) - 1
                c += [f'v_add_u32 v{OUT + q}, {(1 << (o.wr8 - 1)) * 0x10001}, v{OUT + q}' for q in range(4 * n, 4 * n + 4)]
                c += [f'v_and_b32 v{OUT + q}, {0xffffffff ^ (m_ * 0x10001)}, v{OUT + q}' for q in range(4 * n, 4 * n + 4)]
            return c
        wr = lambda n, A: [f'ds_write_b128 v{A}, {vr(OUT + 4 * n, 4)} offset:{n * 1024}']
        ch, chb = [], []
        for k in range(4):
            ch.append(self.seq([f'L_chunk{k}:'] + chunk(k) + [f's_cmp_lg_u32 s{S_PH}, 0', f's_cbranch_scc1 L_uconv{k % 2}']))
            chb.append(self.seq(['s_branch L_w1conv'] if k == 1 else []))
        L = ['L_w1conv:'] + self.stamp(3) + postmax(vMx, F_M)
        L += [f'v_add_u32 v{GB + k}, v{GB + k}, v{vDl}' for k in range(13)]
        L += waitmax(F_M, S_T2, 141) + setsc(S_T2) + self.stamp(5)
        L += conv(0) + conv(1) + wr(0, vWr) + conv(2) + wr(1, vWr) + conv(3) + wr(2, vWr) + conv(4) + wr(3, vWr) + wr(4, vWr)
        L += [f's_cmp_ge_u32 s{cw}, 2', 's_cbranch_scc1 L_w1x']
        w1a = self.seq(L)
        w1b = self.seq(conv(5) + wr(5, vWr))
        w1c = self.seq(['L_w1x:'])
        xbsig = lambda: [WaitTag(vm_tags=['XB']), f'v_mov_b32 v{vF}, s{S_GRP}', f'ds_add_u32 v{vFA}, v{vF} offset:{F_XB}']
        L = ['L_uph:'] + self.stamp(7) + (self.tlb2(vZ, vFl) if o.lb else []) + waitmax(F_U, S_T3, 140) + setsc(S_T3) + self.stamp(12)
        L += [f's_mov_b32 s{S_PH}, 1', f's_lshr_b32 s{S_T1}, s{S_WAVE}, 1',
              f's_cmp_eq_u32 s{S_T1}, 0', 's_cbranch_scc1 L_chunk0', f's_cmp_eq_u32 s{S_T1}, 1', 's_cbranch_scc1 L_chunk1',
              f's_cmp_eq_u32 s{S_T1}, 2', 's_cbranch_scc1 L_chunk2', 's_branch L_chunk3']
        uph = self.seq(L)
        wm1 = lambda: (xbsig() if o.lb else []) + waitmax(F_M, S_T2, 141)
        u0 = self.seq(['L_uconv0:'] + self.stamp(13) + conv(0) + wm1() + wr(0, vWu) + conv(1) + wr(1, vWu) + conv(2) + wr(2, vWu) + ['s_branch L_built'])
        u1a = self.seq(['L_uconv1:'] + self.stamp(13) + conv(3) + wm1() + wr(3, vWu) + conv(4) + wr(4, vWu) + [f's_cmp_lg_u32 s{S_GRP}, 0', 's_cbranch_scc1 L_ulin'])
        u1b = self.seq(conv(5) + wr(5, vWu) + ['s_branch L_built'])
        L = ['L_ulin:'] + [f'v_mul_f32 v{LT + e}, s{S_SC}, v{LT + e}' for e in range(8)]
        L += [f'v_cvt_pk_bf16_f32 v{OUT + 20 + q}, v{LT + 2 * q}, v{LT + 2 * q + 1}' for q in range(4)] + wr(5, vWu)
        u1c = self.seq(L)

        w0x = self.build_srd(SRD_W2, S_W2, 3328) + [f'v_lshlrev_b32 v{FT}, 7, v0', f'buffer_load_dword v255, v{FT}, {srd(SRD_W2)}, 0 offen']

        slot = lambda k: RZ + 4 * (k % 4)
        MF = [('Lb', 0), ('a', 1), ('b', 1), ('d', 1), ('Lc', 0), ('a', 2), ('c', 1), ('b', 2), ('c', 2)]
        for k in range(3, 10):
            MF += ([('S', k)] if k % 2 else []) + [('a', k), ('b', k), ('c', k)]
        MF += [('a', 10), ('b', 10), ('a', 11), ('b', 11), ('c', 10), ('S', 11), ('c', 11)]
        if o.mo == 1:
            MF = [('Lb', 0), ('a', 1), ('d', 1), ('Lc', 0), ('b', 1), ('a', 2), ('c', 1), ('b', 2), ('a', 3), ('c', 2), ('S', 3), ('b', 3), ('c', 3)]
            for k in range(4, 10):
                MF += ([('S', k)] if k % 2 else []) + [('a', k), ('b', k), ('c', k)]
            MF += [('a', 10), ('b', 10), ('c', 10), ('a', 11), ('b', 11), ('S', 11), ('c', 11)]
        if o.mo == 2:
            MF = [('d', 1), ('Lb', 0), ('a', 1), ('Lc', 0), ('b', 1), ('a', 2), ('c', 1), ('b', 2), ('a', 3), ('c', 2), ('S', 3), ('b', 3), ('c', 3)]
            for k in range(4, 12):
                MF += ([('S', k)] if k % 2 else []) + [('a', k), ('b', k), ('c', k)]
        if o.mo == 3:
            MF = [('d', 1), ('Lb', 0), ('b', 1), ('a', 1), ('Lc', 0), ('c', 1)]
            for k in range(2, 12, 2):
                MF += [('c', k), ('c', k + 1), ('S', k + 1), ('a', k), ('a', k + 1), ('b', k), ('b', k + 1)] if k % 4 == 2 and k < 10 else \
                      [('b', k), ('b', k + 1), ('S', k + 1), ('a', k), ('a', k + 1), ('c', k), ('c', k + 1)]
        if o.mo == 4:
            MF = [('Lb', 0), ('b', 1), ('a', 1), ('d', 1), ('Lc', 0), ('c', 1)]
            for k, od in zip(range(2, 12, 2), ('cSab', 'bSca', 'aSbc', 'cSba', 'abSc')):
                for t_ in od:
                    MF += [('S', k + 1)] if t_ == 'S' else [(t_, k), (t_, k + 1)]
        NM = len(MF)
        use = {k: [m for m, (t_, kk) in enumerate(MF) if kk == k or (t_ == 'S' and kk == k + 1)] for k in range(12)}
        pos = lambda t_, k: MF.index((t_, k))

        def mfma(m):
            t_, k = MF[m]
            if t_[0] == 'L':
                d, w = {'b': (Db, WL), 'c': (Dc, WL + 4)}[t_[1]]
                return f'v_mfma_f32_16x16x32_bf16 {vr(d, 4)}, {vr(w, 4)}, {vr(slot(0), 4)}, 0'
            if t_ == 'S':
                return f'v_smfmac_f32_16x16x64_f16 {vr(Ds, 4)}, {vr(WS_ + 2 * (k - 1), 4)}, {vr(slot(k - 1), 8)}, v{vSI}'
            d, w = {'a': (Da, WA), 'b': (Db, WB), 'c': (Dc, WC), 'd': (Ds, WS_)}[t_]
            return f'v_mfma_f32_16x16x32_f16 {vr(d, 4)}, {vr(w + 4 * (k - 1), 4)}, {vr(slot(k), 4)}, {"0" if t_ in "ad" and k == 1 else vr(d, 4)}'

        def wload(m):
            t_, k = MF[m]
            if t_[0] == 'L':
                a, w, off = {'b': (aD, WL, TB), 'c': (aLc, WL + 4, TC)}[t_[1]]
                return [f'ds_read_b128 {vr(w, 4)}, v{a} offset:{off - TA + 11 * 1024}']
            if t_ == 'd':
                return [f'ds_read_b128 {vr(WS_, 4)}, v{FT}']
            if t_ == 'S':
                w = WS_ + 2 * (k - 1)
                return [f'ds_read2_b32 {vr(w, 2)}, v{aS} offset0:0 offset1:2', f'ds_read2_b32 {vr(w + 2, 2)}, v{aS} offset0:64 offset1:66',
                        f'v_add_u32 v{aS}, 2048, v{aS}']
            w, a, off = {'a': (WA, aD, 0), 'b': (WB, aD, TB - TA), 'c': (WC, aC, TC - TA)}[t_]
            return [f'ds_read_b128 {vr(w + 4 * (k - 1), 4)}, v{a} offset:{off + (k - 1) * 1024}']

        def zops(n):
            z = slot(n // 4 + 1) + n % 4
            (a, ha, b, hb), (a2, ha2, b2, hb2) = ZD[n]
            if (a, b) == (a2, b2):
                return [f'v_pk_mul_f16 v{z}, v{X + a}, v{X + b} op_sel:[{ha},{hb}] op_sel_hi:[{ha2},{hb2}]']
            return [f'v_mul_f16_sdwa v{z}, v{X + a}, v{X + b} dst_sel:WORD_0 dst_unused:UNUSED_PAD src0_sel:WORD_{ha} src1_sel:WORD_{hb}',
                    f'v_mul_f16_sdwa v{z}, v{X + a2}, v{X + b2} dst_sel:WORD_1 dst_unused:UNUSED_PRESERVE src0_sel:WORD_{ha2} src1_sel:WORD_{hb2}']

        cvt = lambda d, a, b: f'v_cvt_pk_f16_f32 v{d}, v{a}, v{b}'
        LAT = o.lat

        class It:
            def __init__(s, name, G, code, lo, hi, pre):
                s.name, s.G, s.code, s.lo, s.hi, s.pre, s.at = name, G, code, lo, hi, list(pre), None

        NG = 14
        items = {}

        def add(name, G, code, lo=-10**9, hi=10**9, pre=()):
            items[(name, G)] = It(name, G, code, lo, hi, pre)
        usej = lambda j: [n for n, d in enumerate(ZD) if any(a // 4 == j or b // 4 == j for (a, _, b, _) in d)]
        lastz = {j: max(usej(j)) for j in range(3)}
        for G in range(NG):
            c, b0 = G % 4, G * NM
            for r in range(8):
                add(f'raw{r}', G, f'ds_read_u16_d16_hi v{RAW + r}, v{vRaw} offset:{r * 128 + c * 32}', lo=b0 - o.rspan, hi=b0 - o.rlead,
                    pre=[(f'co{q}', G - 1, 0) for q in range(4)] + ([('swr', G, 0)] if c == 0 else []) + ([('lin1', G - 1, 0)] if o.w2 else []))
            for q in range(4):
                add(f'co{q}', G, cvt(X + q - 1, RAW + q - 1, RAW + q + 2) if q else cvt(X + 3, RAW + 6, RAW + 7), hi=b0 - 4 if not o.w2 else b0 - 9,
                    pre=[(f'raw{r}', G, LAT) for r in range(8)] + [(f'z{lastz[0]}', G - 1, 0)])
            add('wo', G, f'ds_write_b128 v{vXw}, {vr(X, 4)}', hi=b0 - 2 if not o.w2 else b0 - 8, pre=[(f'co{q}', G, 0) for q in range(4)] + [('r2', G - 1, 0)])
            add('r1', G, f'ds_read_b128 {vr(X + 4, 4)}, v{vX1}', hi=b0 if not o.w2 else b0 - 7, pre=[('wo', G, o.wgap)])
            add('r2', G, f'ds_read_b128 {vr(X + 8, 4)}, v{vX2}', hi=b0 + 1 if not o.w2 else b0 - 7, pre=[('r1', G, 0)])
            for q in range(3):
                add(f'al{q}', G, f'v_alignbit_b32 v{X + 8 + q}, v{X + 8 + q}, v{X + 8 + q}, v{vSh}', lo=b0 + min(use[0]) if o.w2 else -10**9, hi=b0 + 20, pre=[('r2', G, LAT)])
            if c == 0:
                add('swr', G, [f'v_add_u32 v{vRaw}, s{S_BD}, v{vRaw}', WaitTag(vm_tags=['XB'])], lo=b0 - o.rspan - 1, hi=b0 - o.rspan - 1,
                    pre=[(f'raw{r}', G - 1, 0) for r in range(8)])
            for p in range(2):
                add(f'lin{p}', G, f'ds_read_b64_tr_b16 {vr(slot(0) + 2 * p, 2)}, v{vLin} offset:{p * 512 + c * 32}',
                    lo=b0 - NM + max(use[8]), hi=b0 + min(use[0]) - 1 - LAT, pre=([('swl', G, 0)] if c == 0 else []) + ([('r2', G, 0)] if o.w2 else []))
            if c == 0:
                add('swl', G, [f's_add_u32 s{S_TW}, s{S_BCUR}, s{S_BD}', f'v_add_u32 v{vLin}, s{S_TW}, v{vLinB}'], lo=b0 - NM + 20, hi=b0 - 12,
                    pre=[(f'lin{p}', G - 1, 0) for p in range(2)])
            for n in range(44):
                k = n // 4 + 1
                js = {x // 4 for (a, _, b, _) in ZD[n] for x in (a, b)}
                pre = [(f'co{q}', G, 0) for q in range(4)] + ([('r1', G, LAT)] if 1 in js else []) + ([(f'al{q}', G, 0) for q in range(3)] if 2 in js else [])
                if n:
                    pre.append((f'z{n - 1}', G, 0))
                if k == 5 and n % 4 < 3:
                    pre.append(('or1', G, 0))
                lo = b0 + max(use[k - 4]) if k >= 4 else b0 - NM + max(use[k + 8])
                if k == 1:
                    lo = max(lo, b0 - o.z1lo)
                zc = zops(n)
                if n == 12:
                    zc = [zops(12)[0], zops(13)[0]]
                if n == 13:
                    zc = [zops(12)[1], zops(13)[1]]
                add(f'z{n}', G, zc, lo=lo, hi=b0 + min(use[k]) - 2, pre=pre)
            s1 = slot(1)
            if c == 1:
                add('or1', G, f'v_or3_b32 v{vOr}, v{s1}, v{s1 + 1}, v{s1 + 2}', hi=b0 + 6, pre=[('z2', G, 0), ('blk', G - 2, 0)])
                add('ck', G, [f'v_and_b32 v{vOr}, 0x60006000, v{vOr}', f'v_cmp_ne_u32 s[{S_CHK}:{S_CHK + 1}], 0, v{vOr}'], hi=b0 + 30, pre=[('or1', G, 0)])
            e = b0 + NM
            rdy = lambda t_: b0 + pos(t_, 11) + o.flo
            for r in range(4):
                add(f'f{r}', G, f'v_{"mul" if c == 0 and r == 0 else "fmac"}_f32 v{vAcc}, v{Da + r}, v{Db + r}', lo=min(max(rdy('a'), rdy('b')), e + pos('Lb', 0) - 1), hi=e + pos('Lb', 0) - 1,
                    pre=[(f'f{r - 1}', G, 0) if r else ('f8', G - 1, 0)] + ([('blk', G - 1, 0)] if c == 0 else []))
            for r in range(2):
                add(f'f{4 + r}', G, f'v_add_f32 v{FT + r}, v{Ds + 2 * r}, v{Ds + 2 * r + 1}', lo=min(rdy('S'), e + pos('d', 1) - 1), hi=e + pos('d', 1) - 1,
                    pre=[('f8', G - 1, 0)] + ([('blk', G - 1, 0)] if c == 0 else []))
            for r, (x, y) in enumerate(((Dc, Dc + 1), (FT, Dc + 2), (FT + 1, Dc + 3))):
                add(f'f{6 + r}', G, f'v_fmac_f32 v{vAcc}, v{x}, v{y}', lo=rdy('c'), hi=e + pos('Lc', 0) - 1, pre=[(f'f{5 + r}', G, 0), ('f3', G, 0), ('f4', G, 0)])
            if c == 3:
                for q, x in enumerate(dppred('v_add_f32', vAcc)):
                    add(f'dp{q}', G, x, hi=e + 7 + 2 * q, pre=[(f'dp{q - 1}', G, 2) if q else ('f8', G, 2)])
                add('blk', G, '@BLK', hi=e + 20, pre=[('dp5', G, 1)])
        order = list(items.values())
        gaps = {}
        isv = lambda x: isinstance(x, str) and x.startswith('v_')
        isl = lambda x: isinstance(x, str) and x.startswith('ds_')
        for gp in range(-NM, NG * NM):
            gaps[gp] = []
            uv = ul = 0
            if o.cw and (gp + 1 - min(use[0])) % NM == 0:
                ul = 1
            if any(it.name == 'wo' for d_ in range(1, o.wgap) for it in gaps.get(gp - d_, [])):
                ul = 2
            while True:
                cand = []
                for it in order:
                    if it.at is not None or it.lo > gp:
                        continue
                    ok = True
                    for (nm, G, dist) in it.pre:
                        p = items.get((nm, G))
                        if p is None:
                            continue
                        if p.at is None or p.at + dist > gp:
                            ok = False
                            break
                    if not ok:
                        continue
                    cv_, cl_ = sum(map(isv, flat([it.code]))), sum(map(isl, flat([it.code]))) * (o.wcost if it.name == 'wo' else 1) + (1 if o.cw and it.name == 'co0' else 0)
                    if it.hi > gp and (uv + cv_ > o.gapv or ul + cl_ > o.gapl or uv + ul + cv_ + cl_ > o.gapt) and cv_ + cl_:
                        continue
                    cand.append((it, cv_, cl_))
                if not cand:
                    break
                it, cv_, cl_ = min(cand, key=lambda x: x[0].hi)
                it.at = gp
                uv += cv_; ul += cl_
                gaps[gp].append(it)
        late = [(it.name, it.G, it.at - it.hi) for it in order if it.at is not None and it.at > it.hi and 4 <= it.G < 12]
        print('late items', late)
        sig_ = lambda G0: [[(it.name, it.G - G0) for it in gaps[G0 * NM + m]] for m in range(4 * NM)]
        assert sig_(4) == sig_(8), 'schedule not periodic'
        for f_ in (isv, isl):
            print('gap load', ''.join(str(sum(sum(map(f_, flat([it.code]))) for it in gaps[4 * NM + m])) + ('|' if m % NM == NM - 1 else '') for m in range(4 * NM)))
        keep = lambda c: [x for x in flat([c]) if not (isinstance(x, str) and any(x.startswith(d) for d in o.drop.split(',') if d))]
        prio = lambda p, lab: [f's_cmp_lg_u32 s{S_GRP}, 0', f's_cbranch_scc1 {lab}', f's_setprio {p}', f'{lab}:'] if o.phi else []

        def sstamp():
            if not (o.stamps and o.itst):
                return []
            return [f's_memtime s[{S_ST}:{S_ST + 1}]', f's_add_u32 s{S_C0}, s{S_LOOP}, 20', 's_waitcnt lgkmcnt(0)',
                    f's_mov_b32 m0, s{S_C0}', f'v_writelane_b32 v252, s{S_ST}, m0']

        pcode = []
        for gp in range(-NM, 4 * NM):
            for it in gaps[gp]:
                if it.G >= 4 and not it.name.startswith(('sw', 'wx')):
                    pcode += flat([it.code])
        PFD = o.pfd
        pfl = pfx_b() + ([] if o.nopf & 16 else pfx_a()) + pfw()
        L = ['L_built:'] + self.stamp(10) + ([] if o.lb else xbsig() + self.tlb2(vZ, vFl))
        L += [f's_add_i32 s{S_EXP}, s{S_T2}, s{S_T3}'] + wait(F_XB, 4) + pcode + (pfl if o.lb < 2 else [])
        L += ['s_waitcnt lgkmcnt(0)', 's_barrier'] + (['s_setprio 1'] if o.phi else ['s_setprio 0']) + self.stamp(8)
        L += [wload(m) for m in range(PFD)] + prio(o.pp0, 'L_prf') + (['s_mov_b32 s100, 15'] if o.gst else [])
        peel2 = None
        for m in range(NM):
            L += [mfma(m)] + (wload(m + PFD) if m + PFD < NM else [])
            for it in gaps[4 * NM + m]:
                if it.code == '@BLK':
                    L += [f'ds_write_b16 v{vOr}, v{vAcc} offset:{3 * XPI + 7 * 128}']
                    L += self.cleared('L_cclr', [f's_and_b32 s{S_TW}, s2, 7'], vFl) + xdma(XI, XB1 - XB0) + (pfl if o.lb == 2 else []) + (pfw() if o.pfp else [])
                    L += [f's_sub_i32 s{S_EXP}, 0, s{S_EXP}', f's_mov_b32 s{S_EXPC}, s{S_EXP}',
                          f's_mov_b32 s{S_PH}, 1', f's_mov_b32 s{S_PREV}, 1', f's_mov_b32 s{S_HALF}, 0']
                    L += [f's_cmp_lg_u32 s{S_WAVE}, 7', 's_cbranch_scc1 L_nw0']
                    peel1 = self.seq(L)
                    peelw = self.seq(w0x)
                    L = ['L_nw0:']
                elif it.G >= 4:
                    L += flat([it.code])
        L += (prio(o.pp1, 'L_prg') if o.pp1 != o.pp0 else []) + [f'ds_add_u32 v{vFA}, v{vOne} offset:{F_PEEL}', 's_branch L_grp1']
        peel2 = self.seq(L)
        prime = self.seq(['L_prime:'] + [f'v_mov_b32 v{r}, 0' for r in range(D, D + 16)] + [f'v_mov_b32 v{FT}, 0', f'v_mov_b32 v{FT + 1}, 0'] + pcode)
        blk_a = ['L_blk:', f's_cmp_eq_u32 s{S_PREV}, 0', 's_cbranch_scc1 L_blkend',
                 f'v_readlane_b32 s{S_TW}, v{vAcc}, 63', f'v_ldexp_f32 v{vAcc}, v{vAcc}, s{S_EXPC}', f'v_and_b32 v{vAcc}, -2, v{vAcc}',
                 f's_cmp_ge_u32 s{S_PREV}, 2', 's_cbranch_scc1 L_good',
                 f's_cmp_eq_u64 s[{S_CHK}:{S_CHK + 1}], 0', 's_cbranch_scc1 L_slow',
                 f's_bfe_u32 s{S_TW}, s{S_TW}, 0x80017', f's_cmp_eq_u32 s{S_TW}, 255', 's_cbranch_scc1 L_slow',
                 'L_good:', 's_mov_b32 exec_lo, 0', 's_mov_b32 exec_hi, 0x80000000',
                 f'buffer_store_dword v{vAcc}, v{vZ}, {srd(SRD_WS)}, s{S_RC} offen sc1', 's_mov_b64 exec, -1',
                 f's_add_u32 s{S_RC}, s{S_RC}, 32', f's_sub_u32 s{S_LOOP}, s{S_LOOP}, 1', f's_cmp_eq_u32 s{S_LOOP}, 0', 's_cbranch_scc1 L_cin_done']
        blk_a += [f's_cmp_eq_u32 s{S_LOOP}, 1', 's_cbranch_scc1 L_lastnext']
        blk_b = xdma() + [f's_add_u32 s{S_SAMP}, s{S_SAMP}, {8 * 104}', f's_cmp_lg_u32 s{S_LOOP}, s{S_TK}', 's_cbranch_scc1 L_nodma']
        blk_t = self.cleared('L_tclr', [f's_lshr_b32 s{S_TW}, s{S_ST0}, 14'], vFl) + [f'v_mov_b32 v{vTk}, 1', 's_mov_b64 exec, 1', f'buffer_atomic_add v{vTk}, v{vZ}, {srd(SRD_WS)}, s{S_ST0} offen sc0',
                 's_mov_b64 exec, -1', f's_mov_b32 s{S_TK}, 8', 's_branch L_nodma',
                 'L_lastnext:', f's_cmp_lt_i32 s{S_DYN}, 0', f's_cselect_b32 s{S_RC}, s{S_RC}, s{S_DYN}']
        hook_a = [f's_cmp_lg_u32 s{S_TK}, 8', 's_cbranch_scc1 L_hk']
        n4 = o.n4
        hook_t = ['s_waitcnt vmcnt(0)', f'v_readfirstlane_b32 s{S_TW}, v{vTk}', f's_mov_b32 s{S_TK}, 0', f's_add_u32 s{S_TW}, s{S_TW}, 1',
                  ] + ([f's_cmp_lt_u32 s{S_TW}, {n4}', 's_cbranch_scc1 L_hky', 's_setprio 0', 'L_hky:'] if o.y1 else []) + [
                  f's_cmp_ge_u32 s{S_TW}, {2 * (512 - PB) - n4}', 's_cbranch_scc1 L_hk',
                  f's_add_u32 s{S_LOOP}, s{S_LOOP}, 1', f's_mov_b32 s{S_DYN}, {5 * 2048}',
                  f's_cmp_lt_u32 s{S_TW}, {n4}', 's_cbranch_scc1 L_hkf',
                  f's_add_u32 s{S_TW}, s{S_TW}, {n4}', f's_and_b32 s{S_SAMP}, s{S_TW}, 1', f's_lshr_b32 s{S_TW}, s{S_TW}, 1', f's_mov_b32 s{S_HALF}, 1',
                  f's_lshl_b32 s{S_SAMP}, s{S_SAMP}, 6', f'v_xor_b32 v{vC16}, s{S_SAMP}, v{vC16}',
                  f's_lshl_b32 s{S_SAMP}, s{S_SAMP}, 5', f's_add_u32 s{S_DYN}, s{S_DYN}, s{S_SAMP}',
                  'L_hkf:', f's_add_u32 s{S_TW}, s{S_TW}, {PB}', f's_lshl_b32 s{S_SAMP}, s{S_TW}, 2', f's_add_u32 s{S_DYN}, s{S_DYN}, s{S_SAMP}',
                  f's_andn2_b32 s{S_SAMP}, s{S_ST0}, 0x3fff', f's_add_u32 s{S_DYN}, s{S_DYN}, s{S_SAMP}',
                  f's_lshr_b32 s{S_SAMP}, s{S_SAMP}, 5', f's_add_u32 s{S_SAMP}, s{S_SAMP}, s{S_TW}', f's_mul_i32 s{S_SAMP}, s{S_SAMP}, 104']
        if o.wgt:
            F_CNT, F_RNK = 40, 44
            blk_b = [f'ds_add_rtn_u32 v{vF}, v{vFA}, v{vOne} offset:{F_CNT}'] + xdma() + [f's_add_u32 s{S_SAMP}, s{S_SAMP}, {8 * 104}',
                     f'v_readfirstlane_b32 s{S_TW}, v{vF}', f's_cmp_lg_u32 s{S_TW}, {o.wgt - 1}', 's_cbranch_scc1 L_nodma']
            allc = [x.replace(f's_bitcmp1_b32 vcc_lo, s{S_TW}', 's_and_b32 vcc_lo, vcc_lo, 0xff') for x in self.cleared('L_tclr', [], vFl)]
            blk_t = allc + [f'v_mov_b32 v{vTk}, 1', f's_mov_b32 s{S_TW}, {6 * 2048}', 's_mov_b64 exec, 1', f'buffer_atomic_add v{vTk}, v{vZ}, {srd(SRD_WS)}, s{S_TW} offen sc0',
                            's_mov_b64 exec, -1', 's_waitcnt vmcnt(0)', f'v_add_u32 v{vTk}, 2, v{vTk}', f'v_max_u32 v{vTk}, 1, v{vTk}',
                            f'ds_write_b32 v{vFA}, v{vTk} offset:{F_RNK}', 's_branch L_nodma'] + blk_t[-3:]
            hook_a = [f's_cmp_lg_u32 s{S_LOOP}, s{S_TK}', 's_cbranch_scc1 L_hk']
            hook_t = wait(F_RNK, 1) + [f'v_readfirstlane_b32 s{S_TW}, v{vF}', f's_mov_b32 s{S_TK}, 0', f's_sub_u32 s{S_TW}, s{S_TW}, 1', f's_min_u32 s{S_TW}, s{S_TW}, 255',
                      f's_lshl_b32 s{S_TW}, s{S_TW}, 2', f's_add_u32 s{S_TW}, s{S_TW}, s{cw}',
                      f's_cmp_ge_u32 s{S_TW}, {8 * (56 - n4)}', 's_cbranch_scc1 L_hk',
                      f's_add_u32 s{S_LOOP}, s{S_LOOP}, 1', f's_mov_b32 s{S_DYN}, {5 * 2048 + 4 * PB}',
                      f's_cmp_lt_u32 s{S_TW}, {8 * n4}', 's_cbranch_scc1 L_hkf',
                      f's_add_u32 s{S_TW}, s{S_TW}, {8 * n4}', f's_and_b32 s{S_SAMP}, s{S_TW}, 1', f's_lshr_b32 s{S_TW}, s{S_TW}, 1', f's_mov_b32 s{S_HALF}, 1',
                      f's_lshl_b32 s{S_SAMP}, s{S_SAMP}, 6', f'v_xor_b32 v{vC16}, s{S_SAMP}, v{vC16}',
                      f's_lshl_b32 s{S_SAMP}, s{S_SAMP}, 5', f's_add_u32 s{S_DYN}, s{S_DYN}, s{S_SAMP}',
                      'L_hkf:', f's_and_b32 s{S_ST0}, s{S_TW}, 7', f's_lshr_b32 s{S_TW}, s{S_TW}, 3',
                      f's_lshl_b32 s{S_SAMP}, s{S_ST0}, 12', f's_add_u32 s{S_SAMP}, s{S_SAMP}, s{S_TW}', f's_lshl_b32 s{S_SAMP}, s{S_SAMP}, 2', f's_add_u32 s{S_DYN}, s{S_DYN}, s{S_SAMP}',
                      f's_lshl_b32 s{S_SAMP}, s{S_ST0}, 9', f's_add_u32 s{S_SAMP}, s{S_SAMP}, s{S_TW}', f's_add_u32 s{S_SAMP}, s{S_SAMP}, {PB}', f's_mul_i32 s{S_SAMP}, s{S_SAMP}, 104']
        hook_b = ['L_hk:'] + xidx(adv=False)
        blk_b2 = ['L_nodma:'] + [f's_add_u32 s{S_BCUR}, s{S_BCUR}, s{S_BD}', f's_sub_u32 s{S_BD}, 0, s{S_BD}', f's_mov_b32 s{S_EXPC}, s{S_EXP}', f's_mov_b32 s{S_PH}, 1',
                  f's_cmp_eq_u32 s{S_PREV}, 3', 's_cbranch_scc1 L_slow2']
        blk_c = ['L_blkend:', f's_mov_b32 s{S_PREV}, s{S_PH}']
        parts = [[], [], [], [], []]
        cur = self.seq(['L_cin_loop:'])
        for m in range(4 * NM):
            if m == NM:
                parts[3] = cur
                cur = self.seq(['L_grp1:'])
            if m == 2 * NM:
                cur += self.seq([f's_cmp_eq_u32 s{S_LOOP}, s{S_HALF}', 's_cbranch_scc1 L_htail'])
                p4h = list(cur)
            if m == o.hook:
                p4a = cur + self.seq(hook_a)
                p4t = self.seq(hook_t)
                cur = self.seq(hook_b)
            if o.y1 and m == o.hook + o.y1:
                cur += self.seq([f's_cmp_eq_u32 s{S_HALF}, 0', 's_cbranch_scc1 L_y1', 's_setprio 1', 'L_y1:'])
            if o.y1 and m == o.hook + o.y2:
                cur += self.seq([f's_cmp_eq_u32 s{S_GRP}, 0', 's_cbranch_scc1 L_y2', 's_setprio 1', 'L_y2:'])
            if o.gst and m % NM == 0:
                cur += self.seq([f's_memtime s[{S_ST}:{S_ST + 1}]', 's_add_u32 s100, s100, 1', 's_min_u32 s100, s100, 31', 's_waitcnt lgkmcnt(0)',
                                 's_mov_b32 m0, s100', f'v_writelane_b32 v253, s{S_ST}, m0'])
            if o.phi and m in (o.phh, o.phi):
                cur += self.seq(prio(0 if m == o.phi else 2, f'L_pr{m}'))
            cur += self.seq([mfma(m % NM)])
            for it in gaps[4 * NM + m]:
                if it.code == '@BLK':
                    if o.pfa:
                        parts[0] = cur + self.seq(sstamp() + ['s_waitcnt vmcnt(0)'])
                        pfp = []
                    else:
                        parts[0] = cur + self.seq(sstamp() + ['s_waitcnt vmcnt(0)', f's_cmp_le_u32 s{S_LOOP}, {o.pfend}', 's_cbranch_scc1 L_blk'])
                        pfp = self.seq(([] if o.nopf & 16 else pfx_b() + pfx_a()) + pfw())
                    parts[1] = self.seq(blk_a)
                    parts[2] = self.seq(blk_b)
                    pbt = self.seq(blk_t)
                    pb2 = self.seq(blk_b2)
                    cur = self.seq(blk_c)
                    if o.pfa:
                        cur += self.seq([f's_cmp_ge_u32 s{S_PW}, {1664 * 3328}', 's_cbranch_scc1 L_npf'])
                        self.seq(pfw())
                        cur += self.seq(['L_npf:'])
                        if not o.nopf & 18:
                            cur += self.seq([f's_cmp_le_u32 s{S_LOOP}, {o.pfend}', 's_cbranch_scc1 L_npx'])
                            self.seq(pfx_b() + pfx_a())
                            cur += self.seq(['L_npx:'])
                else:
                    cur += self.seq(keep(it.code))
        cur += self.seq([f's_cmp_lg_u32 s{S_LOOP}, 1', 's_cbranch_scc1 L_cin_loop'])
        parts[4] = p4a + cur
        p4x = p4a + p4t + cur
        tail = self.seq([it.code for m in range(NM) for it in gaps[4 * NM + m] if it.G == 3 and it.code != '@BLK'] + ['s_branch L_blk'])
        assert o.hook > 2 * NM and items[('swr', 8)].at >= 6 * NM and items[('swl', 8)].at >= 6 * NM
        htail = self.seq(['L_htail:'] + [it.code for m in range(NM) for it in gaps[6 * NM + m] if it.G == 5] + dppred('v_add_f32', vAcc)
                         + [f'v_add_u32 v{vRaw}, s{S_BD}, v{vRaw}', 's_branch L_blk'])
        Q = RZ
        rows = [(g, r) for g in range(4) for r in range(8)][:31]
        L = ['L_slow:', f'v_subrev_u32 v{vRaw}, s{S_BD}, v{vRaw}', 'L_slow2:', f'v_lshlrev_b32 v{FT}, 1, v0', f'v_add_u32 v{FT + 1}, s{S_BCUR}, v{FT}',
             f's_mul_i32 s{S_TW}, s{S_WAVE}, {XBSZ}', f's_add_u32 s{S_TW}, s{S_TW}, {XSP}',
             f'v_add_u32 v{FT}, s{S_TW}, v{FT}', f'v_add_u32 v{vLin}, s{S_TW}, v{vLinB}']
        L += wait(F_PEEL, 8)
        L += [f'ds_read_u16 v{Q + n}, v{FT + 1} offset:{g * XPI + r * 128}' for n, (g, r) in enumerate(rows)]
        L += [f'v_lshlrev_b32 v{Q + n}, 16, v{Q + n}' for n in range(31)]
        L += absmax(vAcc, list(range(Q, Q + 31))) + dppred('v_max_u32', vAcc)
        L += [f'v_readlane_b32 s{S_TW}, v{vAcc}, 63', f's_lshr_b32 s{S_TW}, s{S_TW}, 23', f's_sub_i32 s{S_TW}, 134, s{S_TW}',
              f's_cmp_le_u32 s{S_TW}, 9', f's_cselect_b32 s{S_PH}, 2, 3', f's_min_i32 s{S_TW}, s{S_TW}, 16',
              f's_lshl_b32 s{S_EXPC}, s{S_TW}, 2', f's_sub_i32 s{S_EXPC}, s{S_EXP}, s{S_EXPC}',
              f's_add_i32 s{S_TW}, s{S_TW}, 127', f's_lshl_b32 s{S_TW}, s{S_TW}, 23', f'v_mov_b32 v{Q + 31}, s{S_TW}']
        L += [f'v_mul_f32 v{Q + n}, s{S_TW}, v{Q + n}' for n in range(31)]
        L += [f'ds_write_b16_d16_hi v{FT + 1}, v{Q + n} offset:{g * XPI + r * 128}' for n, (g, r) in enumerate(rows)]
        L += [f'v_mul_f32 v{Q + n}, s{S_TW}, v{Q + n}' for n in range(32)]
        L += [f'ds_write_b16_d16_hi v{FT}, v{Q + n} offset:{g * XPI + r * 128}' for n, (g, r) in enumerate(rows + [(3, 7)])]
        L += [f's_mov_b32 s{S_PREV}, 0', 's_waitcnt lgkmcnt(0)', 's_branch L_prime']
        slow = self.seq(L)
        fin_ = self.seq(['L_cin_done:'] + self.stamp(9) + self.stamp_flush() + self.padsig() + ['s_endpgm'])
        rest = parts[3] + parts[4]
        full = parts[0] + pfp + parts[1] + parts[2] + pb2 + rest
        nopf = parts[0] + parts[1] + parts[2] + pbt + pb2 + parts[3] + p4x
        last = parts[0] + parts[1] + pb2 + rest
        redo = lambda pf: parts[1][:10] + slow + prime + parts[0] + (pfp if pf else []) + parts[1][:3] + rest
        end_ = tail + parts[1][:-2] + fin_
        main = peel2 + parts[4] + full + full + parts[0] + pfp + redo(1) + full + nopf + parts[0] + redo(0) + nopf + last + tail + redo(0) + end_
        main = main[:-len(end_)] + parts[0] + parts[1] + parts[2] + pb2 + slow[2:] + prime + parts[0] + parts[1][:3] + rest + end_
        hl = parts[3] + p4h + htail
        main2 = peel2 + parts[4] + parts[0] + pfp + redo(1) + full + nopf + parts[0] + parts[1] + pb2 + hl + parts[1][:10] + slow + prime + parts[0] + parts[1][:3] + hl + parts[1][:-2] + fin_
        traces = []
        for w in range(8):
            if w < 4:
                k0 = w & 2
                tr = c0 + g0a + (cc if o.ccpos < 9 else []) + g0pf + ch[k0] + ch[k0 + 1] + chb[k0 + 1] + w1a + ([] if k0 else w1b) + w1c
            else:
                tr = c0 + g1a + cc + uc0 + uc
            k = w >> 1
            tr += uph + ch[k] + (u0 if k % 2 == 0 else u1a + (u1b if k == 1 else u1c))
            for mn in (main, main2):
                traces.append(tr + peel1 + (peelw if w == 7 else []) + mn)
        return traces

    def build(self):
        pro = self.prologue()
        d = self.dnn()
        cs = self.cin()
        rm = self.rem()
        self.seq(['L_end:', 's_endpgm'])
        traces = [pro + c for c in d + cs + rm]
        for t in traces:
            resolve_waits(t)
        for _ in range(2):
            for t in traces:
                resolve_hazards(t)
        hdr = open(os.path.join(os.path.dirname(os.path.abspath(__file__)), 'header.txt')).read()
        txt = hdr + f'; @launch grid=(256,1,1) block=(512,1,1) lds={LDS_TOTAL}\n'
        txt += f'''.amdgcn_target "amdgcn-amd-amdhsa--gfx950"
{DOC}.text
.globl {KNAME}
.p2align 8
.type {KNAME},@function
{KNAME}:
'''
        body_ = self.P.emit()
        if 'wsame' in self.opt.dbg:
            body_ = body_.replace(f's_add_u32 s{S_WSOFF}, s{S_WSOFF}, {32 * 3328}', f's_xor_b32 s{S_WSOFF}, s{S_WSOFF}, 0')
        if 'xsame' in self.opt.dbg:
            import re as _re
            body_ = _re.sub(r'v_lshl_add_u32 v(2[4-9]|3[01]), v(1[6-9]), 7', r'v_lshl_add_u32 v\1, v16, 7', body_)
            body_ = _re.sub(r'v_lshl_add_u32 v(2[4-9]|3[01]), v(2[0-3]), 7', r'v_lshl_add_u32 v\1, v20, 7', body_)
            body_ = _re.sub(r'v_lshl_add_u32 v(2[4-9]|3[01]), v(9[6-9]), 7', r'v_lshl_add_u32 v\1, v96, 7', body_)
            body_ = _re.sub(r'v_lshl_add_u32 v(2[4-9]|3[01]), v(10[0-3]), 7', r'v_lshl_add_u32 v\1, v100, 7', body_)
            body_ = body_.replace('offen offset:12\n', 'offen offset:0\n').replace('offen offset:844\n', 'offen offset:832\n')
            body_ = body_.replace(f's_mov_b32 s{S_IDXOFF}, 28', f's_mov_b32 s{S_IDXOFF}, 0').replace(f's_add_u32 s{S_IDXOFF}, s{S_IDXOFF}, 16', 's_nop 0')
        if self.opt.align:
            for lab in ('L_dnn_loop0:', 'L_dnn_loop1:', 'L_cin_loop:', 'L_epi:'):
                pad = '  s_nop 0\n' if self.opt.align > 100 else ''
                body_ = body_.replace(lab + '\n', f'.p2align {self.opt.align % 100}\n{pad}{lab}\n')
        txt += body_
        txt += f'''.section .rodata,"a"
.p2align 6
.amdhsa_kernel {KNAME}
  .amdhsa_next_free_vgpr 256
  .amdhsa_next_free_sgpr 102
  .amdhsa_accum_offset 256
  .amdhsa_group_segment_fixed_size 0
  .amdhsa_kernarg_size 88
  .amdhsa_user_sgpr_count 2
  .amdhsa_user_sgpr_kernarg_segment_ptr 1
  .amdhsa_system_sgpr_workgroup_id_x 1
  .amdhsa_float_denorm_mode_32 {self.opt.denorm}
.end_amdhsa_kernel
'''
        return txt


def main():
    ap = argparse.ArgumentParser()
    ap.add_argument('-o', default='standalone__deep_cross_xdeepfm__recsys.s')
    ap.add_argument('--stamps', action='store_true')
    ap.add_argument('--padat', default='')
    ap.add_argument('--padmin', type=int, default=0)
    ap.add_argument('--nodma', action='store_true')
    ap.add_argument('--cpf', type=int, default=2)
    ap.add_argument('--coop', type=int, default=1)
    ap.add_argument('--coopw', type=int, default=2)
    ap.add_argument('--tbpos', type=int, default=0)
    ap.add_argument('--dbar3', type=int, default=1)
    ap.add_argument('--tlb', type=int, default=0)
    ap.add_argument('--tlb2', type=int, default=1)
    ap.add_argument('--itst', type=int, default=0)
    ap.add_argument('--diag', type=int, default=0)
    ap.add_argument('--dbg', default='')
    ap.add_argument('--lead3', type=int, default=1)
    ap.add_argument('--morder', type=int, default=0)
    ap.add_argument('--etlb', type=int, default=21)
    ap.add_argument('--lateb', type=int, default=0)
    ap.add_argument('--wfl', default='')
    ap.add_argument('--xfl', default='')
    ap.add_argument('--tag', type=int, default=0)
    ap.add_argument('--idxfirst', type=int, default=1)
    ap.add_argument('--bpos', type=int, default=2)
    ap.add_argument('--sigat', type=int, default=6)
    ap.add_argument('--epx', type=int, default=1)
    ap.add_argument('--denorm', type=int, default=3)
    ap.add_argument('--mprio', type=int, default=0)
    ap.add_argument('--swap', type=int, default=0)
    ap.add_argument('--bov', type=int, default=1)
    ap.add_argument('--rfirst', type=int, default=0)
    ap.add_argument('--g1x', type=int, default=0)
    ap.add_argument('--ldsred', type=int, default=0)
    ap.add_argument('--csnake', type=int, default=0)
    ap.add_argument('--cswap', type=int, default=0)
    ap.add_argument('--align', type=int, default=0)
    ap.add_argument('--c2', type=int, default=0)
    ap.add_argument('--d1', type=int, default=0)
    ap.add_argument('--cstr', type=int, default=3)
    ap.add_argument('--bearly', type=int, default=1)
    ap.add_argument('--w2late', type=int, default=1)
    ap.add_argument('--aov', type=int, default=3)
    ap.add_argument('--upos', type=int, default=1)
    ap.add_argument('--calt', type=int, default=1)
    ap.add_argument('--pfpos', type=int, default=1)
    ap.add_argument('--wlate', type=int, default=0)
    ap.add_argument('--dbar2', type=int, default=0)
    ap.add_argument('--dbar', type=int, default=0)
    ap.add_argument('--pfw', type=int, default=1)
    ap.add_argument('--pfx', type=int, default=3)
    ap.add_argument('--pfx0', type=int, default=4)
    ap.add_argument('--pfs', type=int, default=14)
    ap.add_argument('--dcoopx', type=int, default=1)
    ap.add_argument('--dcx0', type=int, default=0)
    ap.add_argument('--dcxpos', type=int, default=-1)
    ap.add_argument('--pfe0', type=int, default=6)
    ap.add_argument('--pfne', type=int, default=14)
    ap.add_argument('--prio47', type=int, default=0)
    ap.add_argument('--lookahead', type=int, default=5)
    ap.add_argument('--nz', type=int, default=6)
    ap.add_argument('--nwf', type=int, default=8)
    ap.add_argument('--hiat', type=int, default=4)
    ap.add_argument('--wmerge', type=int, default=0)
    ap.add_argument('--gapv', type=int, default=2)
    ap.add_argument('--lat', type=int, default=3)
    ap.add_argument('--p25', type=int, default=0)
    ap.add_argument('--cp2', type=int, default=0)
    ap.add_argument('--ef', type=int, default=6)
    ap.add_argument('--spoll', type=int, default=0)
    ap.add_argument('--dpoll', type=int, default=0)
    ap.add_argument('--p6', type=int, default=2)
    ap.add_argument('--t2w', type=int, default=64)
    ap.add_argument('--cc0', type=int, default=10)
    ap.add_argument('--cc1', type=int, default=80)
    ap.add_argument('--cc2', type=int, default=30)
    ap.add_argument('--padw', type=int, default=0)
    ap.add_argument('--spf', type=int, default=0)
    ap.add_argument('--spp', type=int, default=0)
    ap.add_argument('--f0', type=int, default=0)
    ap.add_argument('--tc', type=int, default=0)
    ap.add_argument('--co3', type=int, default=0)
    ap.add_argument('--co2', type=int, default=2)
    ap.add_argument('--dp0', type=int, default=2)
    ap.add_argument('--cyc', default='')
    ap.add_argument('--dpm', type=int, default=3)
    ap.add_argument('--c0l', type=int, default=1)
    ap.add_argument('--g1l', type=int, default=0)
    ap.add_argument('--phh', type=int, default=0)
    ap.add_argument('--wgt', type=int, default=0)
    ap.add_argument('--gs', type=int, default=0)
    ap.add_argument('--t2', type=int, default=2)
    ap.add_argument('--t2g', type=int, default=3)
    ap.add_argument('--lc', type=int, default=0)
    ap.add_argument('--x64', type=int, default=0)
    ap.add_argument('--rv', type=int, default=0)
    ap.add_argument('--rwi', type=int, default=10)
    ap.add_argument('--epoll', type=int, default=2)
    ap.add_argument('--w1s', type=int, default=1)
    ap.add_argument('--cal', type=int, default=-1)
    ap.add_argument('--pfa', type=int, default=1)
    ap.add_argument('--w2e', type=int, default=0)
    ap.add_argument('--rpr', type=int, default=0)
    ap.add_argument('--pr', type=int, default=1)
    ap.add_argument('--y1', type=int, default=0)
    ap.add_argument('--y2', type=int, default=40)
    ap.add_argument('--pp0', type=int, default=2)
    ap.add_argument('--pp1', type=int, default=2)
    ap.add_argument('--w2', type=int, default=1)
    ap.add_argument('--cw', type=int, default=1)
    ap.add_argument('--wgap', type=int, default=2)
    ap.add_argument('--psl', type=int, default=0)
    ap.add_argument('--wr8', type=int, default=0)
    ap.add_argument('--lb', type=int, default=0)
    ap.add_argument('--sym', type=int, default=0)
    ap.add_argument('--n4', type=int, default=24)
    ap.add_argument('--tbl', type=int, default=0)
    ap.add_argument('--nopf', type=int, default=16)
    ap.add_argument('--idx1', type=int, default=1)
    ap.add_argument('--sv', type=int, default=1)
    ap.add_argument('--pb', type=int, default=3)
    ap.add_argument('--dpf', type=int, default=1)
    ap.add_argument('--dpn', type=int, default=3)
    ap.add_argument('--mord', type=int, default=0)
    ap.add_argument('--q0', type=int, default=5)
    ap.add_argument('--q1', type=int, default=7)
    ap.add_argument('--u0', type=int, default=8)
    ap.add_argument('--un', type=int, default=26)
    ap.add_argument('--ro', type=int, default=0)
    ap.add_argument('--dfirst', type=int, default=0)
    ap.add_argument('--er0', type=int, default=0)
    ap.add_argument('--er1', type=int, default=0)
    ap.add_argument('--lg0', type=int, default=0)
    ap.add_argument('--fprio', type=int, default=1)
    ap.add_argument('--lite', type=int, default=0)
    ap.add_argument('--pf1', type=int, default=2)
    ap.add_argument('--amp', type=int, default=0)
    ap.add_argument('--ofl', default='')
    ap.add_argument('--uprio', type=int, default=0)
    ap.add_argument('--ccpos', type=int, default=9)
    ap.add_argument('--s1e', type=int, default=9)
    ap.add_argument('--s2e', type=int, default=0)
    ap.add_argument('--shs', type=int, default=256)
    ap.add_argument('--pfp', type=int, default=1)
    ap.add_argument('--epos', type=int, default=3)
    ap.add_argument('--hook', type=int, default=100)
    ap.add_argument('--rrd', type=int, default=11)
    ap.add_argument('--rdrop', default='')
    ap.add_argument('--pfr', type=int, default=4)
    ap.add_argument('--vin', type=int, default=1)
    ap.add_argument('--rstag', type=int, default=1)
    ap.add_argument('--eprio', type=int, default=1)
    ap.add_argument('--nopk', type=int, default=0)
    ap.add_argument('--w1first', type=int, default=0)
    ap.add_argument('--xpos', type=int, default=1)
    ap.add_argument('--z1lo', type=int, default=40)
    ap.add_argument('--pfend', type=int, default=3)
    ap.add_argument('--gst', type=int, default=0)
    ap.add_argument('--gapl', type=int, default=2)
    ap.add_argument('--gapt', type=int, default=2)
    ap.add_argument('--wcost', type=int, default=2)
    ap.add_argument('--bprio', type=int, default=0)
    ap.add_argument('--c1hi', type=int, default=-8)
    ap.add_argument('--c2hi', type=int, default=12)
    ap.add_argument('--rspan', type=int, default=48)
    ap.add_argument('--rlead', type=int, default=14)
    ap.add_argument('--pfd', type=int, default=16)
    ap.add_argument('--mo', type=int, default=4)
    ap.add_argument('--ba', type=int, default=8)
    ap.add_argument('--sig2', type=int, default=3)
    ap.add_argument('--drop', default='')
    ap.add_argument('--al8', type=int, default=4)
    ap.add_argument('--alph', type=int, default=0)
    ap.add_argument('--almm', type=int, default=0)
    ap.add_argument('--phi', type=int, default=110)
    ap.add_argument('--rawlo', type=int, default=8)
    ap.add_argument('--flo', type=int, default=2)
    opt = ap.parse_args()
    resolve_waits.dbg = 'dup' in opt.dbg
    g = Gen(opt)
    txt = g.build()
    if opt.al8:
        import align8
        rg = []
        if opt.al8 & 1:
            rg.append(('L_cin_loop', 'L_slow'))
        if opt.al8 & 2:
            rg += [('L_dnn_loop0', 'L_dnn_h1'), ('L_dnn_loop1', 'L_epi')]
        if opt.al8 & 4:
            rg += [('L_epi', 'L_dpub'), ('L_repi', 'L_rclr')]
        txt = align8.align(txt, rg, opt.alph, opt.almm)
    if opt.cal >= 0:
        txt = txt.replace('L_cin_loop:\n', '.p2align 6\n' + '  s_nop 0\n' * (opt.cal // 4) + 'L_cin_loop:\n' , 1)
        txt = txt.replace('L_rem:\n', '.p2align 3\nL_rem:\n', 1)
    open(opt.o, 'w').write(txt)
    print('wrote', opt.o, len(txt), 'bytes')


if __name__ == '__main__':
    main()
```
